```python
import torch

def _softmax(x, axis=-1):
    return torch.softmax(x, dim=axis)

def _gelu(x):
    return torch.nn.functional.gelu(x, approximate='tanh')

def _silu(x):
    return torch.nn.functional.silu(x)

def _sigmoid(x):
    return torch.sigmoid(x)

def _layernorm(x, axis=-1, eps=1e-05):
    m = x.mean(dim=axis, keepdim=True)
    v = x.var(dim=axis, keepdim=True, unbiased=False)
    return (x - m) / torch.sqrt(v + eps)

def _scatter_add(tgt, idx, src, axis=0):
    return tgt.clone().index_add_(axis, idx, src)

def _segment_sum(src, seg, n):
    out = torch.zeros((n,) + src.shape[1:], dtype=src.dtype)
    return out.index_add_(0, seg, src)

def _pad(x, pw):
    flat = tuple((v for pair in reversed(pw) for v in pair))
    return torch.nn.functional.pad(x, flat)
kernel_name = 'interleave_layers__memory_aug_recurrent_mem_tr__sliding_local_dilated__prompt'

def setup_inputs():

    _w = lambda a: (lambda t: t.to(torch.bfloat16) if t.is_floating_point() else t)(torch.as_tensor(a))

    def _A_setup():
        B, S, Dm = (1, 2048, 512)
        H, Dh = (32, 128)
        M, seg = (8, 32)
        seg = min(seg, S)
        S = S // seg * seg
        return {'x': _w((lambda *s: torch.randn(*s, dtype=torch.bfloat16) * 0.05)(B, S, Dm)), 'mem0': _w((lambda *s: torch.randn(*s, dtype=torch.bfloat16) * 0.8)(B, M, Dm)), 'Wq': _w((lambda *s: torch.randn(*s, dtype=torch.bfloat16) * 0.8)(Dm, H, Dh) * Dm ** (-0.5)), 'Wk': _w((lambda *s: torch.randn(*s, dtype=torch.bfloat16) * 0.8)(Dm, H, Dh) * Dm ** (-0.5)), 'Wv': _w((lambda *s: torch.randn(*s, dtype=torch.bfloat16) * 0.8)(Dm, H, Dh) * Dm ** (-0.5)), 'Wo': _w((lambda *s: torch.randn(*s, dtype=torch.bfloat16) * 0.8)(H, Dh, Dm) * (H * Dh) ** (-0.5)), 'seg_len': seg}
    _A_in = _A_setup()

    def _B_setup():
        B, S, D = (1, 2048, 512)
        return {'x': _w((lambda *s: torch.randn(*s, dtype=torch.bfloat16) * 0.05)(B, S, D)), 'wqkv': _w((lambda *s: torch.randn(*s, dtype=torch.bfloat16) * 0.05)(D, 3 * D)), 'wo': _w((lambda *s: torch.randn(*s, dtype=torch.bfloat16) * 0.05)(D, D))}
    _B_in = _B_setup()
    return {'A_x': _A_in['x'], 'A_mem0': _A_in['mem0'], 'A_Wq': _A_in['Wq'], 'A_Wk': _A_in['Wk'], 'A_Wv': _A_in['Wv'], 'A_Wo': _A_in['Wo'], 'A_seg_len': _A_in['seg_len'], 'B_x': _B_in['x'], 'B_wqkv': _B_in['wqkv'], 'B_wo': _B_in['wo']}

def reference(A_x, A_mem0, A_Wq, A_Wk, A_Wv, A_Wo, A_seg_len, B_x, B_wqkv, B_wo):

    def _A_ref(x, mem0, Wq, Wk, Wv, Wo, seg_len):
        B, S, Dm = x.shape
        H, Dh = (Wq.shape[1], Wq.shape[2])
        M = mem0.shape[1]
        scale = Dh ** (-0.5)
        n_seg = S // seg_len
        L = M + seg_len
        idx = torch.arange(L)
        mask = (idx[:, None] < M) | (idx[:, None] >= idx[None, :])
        mem = mem0
        outs = []
        for s in range(n_seg):
            xs = x[:, s * seg_len:(s + 1) * seg_len, :].clone()
            h = torch.concatenate([mem, xs], axis=1)
            q = torch.einsum('btd,dhe->bhte', h, Wq)
            k = torch.einsum('btd,dhe->bhte', h, Wk)
            v = torch.einsum('btd,dhe->bhte', h, Wv)
            scores = torch.einsum('bhqe,bhke->bhqk', q, k) * scale
            scores = torch.where(mask[None, None], scores, -1000000000.0)
            p = _softmax(scores, axis=-1)
            o = torch.einsum('bhqk,bhke->bhqe', p, v)
            o = torch.einsum('bhte,hed->btd', o, Wo)
            mem = o[:, :M, :].clone()
            outs.append(o[:, M:, :])
        return torch.concatenate(outs, axis=1)

    def _B_ref(x, wqkv, wo):
        B, S, D = x.shape
        H = 32
        Dh = D // H
        W, dil = (8, 2)
        qkv = (lambda x, *d: x.permute(*d))((x @ wqkv).reshape(B, S, 3, H, Dh), 2, 0, 3, 1, 4)
        q, k, v = (qkv[0], qkv[1], qkv[2])
        scale = Dh ** (-0.5)
        pos = torch.arange(S)
        off = torch.arange(W) * dil
        idx = pos[:, None] - off[None, :]
        mask = idx >= 0
        idx_c = torch.where(mask, idx, 0).reshape(-1)
        kg = k[:, :, idx_c, :].reshape(B, H, S, W, Dh)
        vg = v[:, :, idx_c, :].reshape(B, H, S, W, Dh)
        logits = torch.einsum('bhsd,bhswd->bhsw', q, kg) * scale
        logits = torch.where(mask[None, None, :, :], logits, -1000000000.0)
        attn = _softmax(logits, axis=-1)
        o = torch.einsum('bhsw,bhswd->bhsd', attn, vg)
        return (lambda x, *d: x.permute(*d))(o, 0, 2, 1, 3).reshape(B, S, D) @ wo
    x = A_x
    x = x + _A_ref(_layernorm(x, axis=-1), A_mem0, A_Wq, A_Wk, A_Wv, A_Wo, A_seg_len)
    x = x + _B_ref(_layernorm(x, axis=-1), B_wqkv, B_wo)
    x = x + _A_ref(_layernorm(x, axis=-1), A_mem0, A_Wq, A_Wk, A_Wv, A_Wo, A_seg_len)
    x = x + _B_ref(_layernorm(x, axis=-1), B_wqkv, B_wo)
    return x
```

```python
import re

def vr(a, n=1):
    return f"v{a}" if n == 1 else f"v[{a}:{a+n-1}]"
def ar(a, n=1):
    return f"a{a}" if n == 1 else f"a[{a}:{a+n-1}]"
def sr(a, n=1):
    return f"s{a}" if n == 1 else f"s[{a}:{a+n-1}]"
def xr(a, n=1):
    return vr(a, n) if a < 256 else ar(a - 256, n)

_REG = re.compile(r"^(-|abs\()?\|?([vas])(?:(\d+)|\[(\d+):(\d+)\])\|?\)?$")

def regs_of(tok):
    tok = tok.strip()
    if tok in ("vcc",):
        return {("s", "vcc")}
    if tok in ("exec",):
        return {("s", "exec")}
    if tok == "m0":
        return {("s", "m0")}
    m = _REG.match(tok)
    if not m:
        return set()
    k = m.group(2)
    if m.group(3) is not None:
        lo = hi = int(m.group(3))
    else:
        lo, hi = int(m.group(4)), int(m.group(5))
    if k == "s":
        return {("s", i) for i in range(lo, hi + 1)}
    off = 256 if k == "a" else 0
    return {("v", i + off) for i in range(lo, hi + 1)}

TRANS = ("v_exp_f32", "v_log_f32", "v_rcp_f32", "v_rsq_f32", "v_sqrt_f32", "v_sin_f32", "v_cos_f32")

class Ins:
    __slots__ = ("text", "op", "kind", "w", "r", "srcC", "passes", "label", "target", "cond", "mods",
                 "dpp", "states", "srcAB", "vm", "lgkm", "wide_store", "lds_dma", "sreads_valu")
    def __init__(self, text):
        self.text = text
        self.label = None; self.target = None; self.cond = False
        self.w = set(); self.r = set(); self.srcC = set(); self.srcAB = set()
        self.passes = 0; self.dpp = False; self.vm = False; self.lgkm = None
        self.wide_store = set(); self.lds_dma = False; self.sreads_valu = set()
        t = text.split(";")[0].strip()
        self.kind = "none"; self.op = ""; self.states = 0; self.mods = ""
        if not t or t.startswith("."):
            return
        if t.endswith(":"):
            self.label = t[:-1]; self.kind = "label"; return
        parts = t.split(None, 1)
        op = parts[0]; self.op = op
        rest = parts[1] if len(parts) > 1 else ""
        ops = [x.strip() for x in re.split(r",(?![^\[]*\])", rest)] if rest else []
        if ops:
            last = ops[-1].split(None, 1)
            if not op.startswith("s_waitcnt"):
                ops[-1] = last[0]
                self.mods = last[1] if len(last) > 1 else ""
        self.states = 1
        R = lambda i: regs_of(ops[i]) if i < len(ops) else set()
        allr = lambda a: set().union(*[R(i) for i in range(a, len(ops))]) if a < len(ops) else set()
        if op.startswith("v_mfma") or op.startswith("v_smfmac"):
            self.kind = "mfma"
            self.passes = 8 if "32x32" in op else 4
            self.w = R(0)
            if op.startswith("v_smfmac"):
                self.srcC = R(0); self.srcAB = R(1) | R(2) | R(3); self.states = 3
            else:
                self.srcC = R(3); self.srcAB = R(1) | R(2); self.states = 2
            self.r = self.srcC | self.srcAB
        elif op.startswith("v_"):
            self.kind = "valu"
            self.dpp = ("row_" in self.mods) or ("quad_perm" in self.mods) or op.endswith("_dpp")
            if op.startswith("v_cmp"):
                self.w = R(0); self.r = allr(1)
            elif op.startswith("v_permlane"):
                self.w = R(0) | R(1); self.r = R(0) | R(1); self.kind = "perm"
            elif op.startswith("v_readfirstlane") or op.startswith("v_readlane"):
                self.w = R(0); self.r = allr(1); self.kind = "readlane"
            elif op.startswith(("v_add_co", "v_sub_co", "v_addc_co")):
                self.w = R(0) | R(1); self.r = allr(2)
            elif op == "v_nop":
                pass
            else:
                self.w = R(0); self.r = allr(1)
                if op.startswith(("v_fmac", "v_dot2c", "v_pk_fmac", "v_writelane")) or self.dpp:
                    self.r |= R(0)
                if op.startswith("v_cndmask") and len(ops) == 3:
                    self.r |= {("s", "vcc")}
            self.sreads_valu = {x for x in self.r if x[0] == "s"}
        elif op.startswith("ds_"):
            self.kind = "ds"; self.lgkm = "ds"
            if op.startswith(("ds_read", "ds_bpermute", "ds_swizzle", "ds_permute")) or "_rtn" in op:
                self.w = R(0); self.r = allr(1)
            else:
                self.r = allr(0)
        elif op.startswith(("buffer_", "global_")):
            self.kind = "vmem"; self.vm = True
            if op in ("buffer_wbl2", "buffer_inv"):
                pass
            elif "load" in op:
                if " lds" in (" " + self.mods) or "load_lds" in op:
                    self.lds_dma = True; self.r = allr(0) | {("s", "m0")}
                else:
                    self.w = R(0); self.r = allr(1)
            elif "atomic" in op:
                if "sc0" in self.mods:
                    self.w = R(0); self.r = allr(0) if op.startswith("buffer") else allr(1)
                else:
                    self.r = allr(0)
            else:
                self.r = allr(0)
                if op.endswith(("x3", "x4")):
                    self.wide_store = R(0) if op.startswith("buffer") else R(1)
        elif op.startswith(("s_load", "s_buffer_load", "s_memtime", "s_memrealtime", "s_atomic")):
            self.kind = "smem"; self.lgkm = "smem"; self.w = R(0); self.r = allr(1)
        elif op == "s_nop":
            self.kind = "nop"; self.states = int(ops[0], 0) + 1
        elif op == "s_waitcnt":
            self.kind = "wait"; self.mods = rest
        elif op in ("s_branch",) or op.startswith("s_cbranch"):
            self.kind = "branch"; self.target = ops[0]; self.cond = op != "s_branch"
        elif op in ("s_endpgm", "s_setpc_b64"):
            self.kind = "end"
        elif op.startswith("s_"):
            self.kind = "salu"
            if op.startswith(("s_cmp", "s_barrier", "s_sleep", "s_setprio", "s_bitcmp")):
                self.r = allr(0)
            else:
                self.w = R(0); self.r = allr(1)
                if "saveexec" in op:
                    self.w |= {("s", "exec")}
        else:
            raise ValueError("unknown instr: " + text)

def need_states(p, c):
    n = 0
    pv = p.kind in ("valu", "perm", "readlane")
    cv = c.kind in ("valu", "perm", "readlane")
    if pv:
        wv = {x for x in p.w if x[0] == "v"}
        ws = {x for x in p.w if x[0] == "s"}
        if wv:
            if c.kind == "mfma" and wv & c.r: n = max(n, 2)
            if cv and c.dpp and wv & c.r: n = max(n, 2)
            if c.kind == "perm" and wv & c.r: n = max(n, 2)
            if c.kind == "readlane" and wv & c.r: n = max(n, 1)
            if p.op.split("_e")[0] in TRANS and cv and c.op.split("_e")[0] not in TRANS and wv & c.r: n = max(n, 1)
            if ("op_sel" in p.mods or "sdwa" in p.op) and not p.op.startswith("v_pk_") and cv and wv & (c.r | c.w): n = max(n, 1)
        if ws:
            if cv and ws & c.sreads_valu: n = max(n, 4 if c.kind == "readlane" else 2)
            if c.kind == "vmem" and ws & c.r: n = max(n, 5)
            if c.kind == "salu" and ws & c.r: n = max(n, 1)
    if p.kind == "mfma":
        big = p.passes == 8
        if c.kind == "mfma":
            if p.w & c.srcAB: n = max(n, 12 if big else 8)
            if p.w & c.srcC:
                if not (p.w == c.srcC and p.passes == c.passes): n = max(n, 10 if big else 6)
            elif p.w & c.w: n = max(n, 10 if big else 6)
        elif cv or c.kind in ("vmem", "ds"):
            if p.w & (c.r | c.w): n = max(n, 12 if big else 8)
            if cv and p.srcC & c.w: n = max(n, 7 if big else 3)
    if p.wide_store and p.wide_store & c.w and c.kind != "label":
        n = max(n, 2 if cv else 1)
    if p.kind == "salu" and ("s", "m0") in p.w and c.lds_dma: n = max(n, 1)
    return n

class Asm:
    def __init__(self):
        self.ins = []
        self.nlab = 0
    def __call__(self, text):
        for line in text.split("\n"):
            s = line.strip()
            if s:
                self.ins.append(Ins(s))
    def label(self, name):
        self.ins.append(Ins(name + ":"))
    def newlab(self, base="L"):
        self.nlab += 1
        return f"{base}_{self.nlab}"
    def _preds(self):
        labpos = {x.label: i for i, x in enumerate(self.ins) if x.label}
        jumps = {}
        for i, x in enumerate(self.ins):
            if x.kind == "branch":
                jumps.setdefault(labpos[x.target], []).append(i)
        return labpos, jumps
    def fix_hazards(self, verbose=False):
        total = 0
        while True:
            labpos, jumps = self._preds()
            ins = self.ins
            inserts = {}
            for i, c in enumerate(ins):
                if c.kind in ("none", "label", "nop", "wait", "branch", "end"):
                    continue
                best = 0
                stack = [(i - 1, 0)]
                seen = set()
                while stack:
                    j, d = stack.pop()
                    while j >= 0 and d < 13:
                        if (j, d) in seen: break
                        seen.add((j, d))
                        p = ins[j]
                        if p.kind == "label":
                            for b in jumps.get(j, []):
                                stack.append((b, d))
                            k = j - 1
                            while k >= 0 and ins[k].kind == "none": k -= 1
                            if k >= 0 and (ins[k].kind == "end" or (ins[k].kind == "branch" and not ins[k].cond)):
                                break
                            j -= 1
                            continue
                        if p.kind == "none":
                            j -= 1; continue
                        n = need_states(p, c)
                        if n > d: best = max(best, n - d)
                        d += p.states
                        if j in inserts: d += inserts[j]
                        j -= 1
                if best:
                    inserts[i] = best
            if not inserts:
                break
            out = []
            for i, x in enumerate(ins):
                if i in inserts:
                    out.append(Ins(f"s_nop {inserts[i]-1}"))
                    total += inserts[i]
                    if verbose: print("nop", inserts[i], "before", x.text)
                out.append(x)
            self.ins = out
        return total
    def check_waits(self, cap=6):
        labpos, jumps = self._preds()
        ins = self.ins
        errs = set()
        seen = {}
        work = [(0, (), ())]
        while work:
            i, vm, lg = work.pop()
            vm = list(vm); lg = list(lg)
            while i < len(ins):
                x = ins[i]
                if x.kind == "label":
                    key = (tuple(vm), tuple(lg))
                    s = seen.setdefault(i, set())
                    if key in s or len(s) >= cap: break
                    s.add(key)
                elif x.kind == "wait":
                    m = re.search(r"vmcnt\((\d+)\)", x.mods)
                    if m:
                        n = int(m.group(1))
                        if len(vm) > n: vm = vm[len(vm) - n:] if n else []
                    m = re.search(r"lgkmcnt\((\d+)\)", x.mods)
                    if m:
                        n = int(m.group(1))
                        if n == 0: lg = []
                        else:
                            nds = sum(1 for k, _ in lg if k == "ds")
                            drop = max(0, nds - n); keep = []
                            for k, w in lg:
                                if k == "ds" and drop: drop -= 1
                                else: keep.append((k, w))
                            lg = keep
                elif x.kind == "end":
                    break
                elif x.kind != "none":
                    touch = x.r | x.w
                    if x.op == "s_memtime": touch = set()
                    if "sameval" in x.text:
                        vm = [w - x.w for w in vm]
                    for w in vm:
                        if w & touch and not (x.vm and not (w & x.r)):
                            errs.add((i, "vm", x.text))
                    for k, w in lg:
                        if w & touch and not (x.lgkm == "ds" and k == "ds" and not (w & x.r)):
                            errs.add((i, "lgkm", x.text))
                    if x.vm:
                        vm.append(frozenset(x.w))
                        if len(vm) > 63: vm = vm[-63:]
                    if x.lgkm:
                        lg.append((x.lgkm, frozenset(x.w)))
                        if len(lg) > 40: lg = lg[-40:]
                    if x.kind == "branch":
                        work.append((labpos[x.target], tuple(vm), tuple(lg)))
                        if not x.cond: break
                i += 1
        return sorted(errs)
    def text(self):
        out = []
        for x in self.ins:
            out.append(x.text if (x.label or x.text.startswith(".")) else " " + x.text)
        return "\n".join(out) + "\n"
```

```python
from gen_common import *

def chain(a, local, cfg):
    st = "" if local else " sc1"
    tag = "L" if local else "G"
    stamp = Stamps(a, cfg.get("stamp") == "chain" and local, only=cfg.get("only"))
    vL16, vIdx, vLdsW, vSwx, vSwm, vSrx, vSrm, vOw, vOr, vX1s, vX1l, vX2s = range(1, 13)
    vR, vOnes, vT = 13, 14, 15
    vAw = 0
    sFO = 93
    SelT, VACC, SelM = 16, 20, 28
    q0, k0, q1, k1 = 32, 36, 40, 44
    Kx, Vx, RING, A, WO = 48, 56, 64, 96, 128
    WK, WV = 256, 384
    sStep, sTag, sX2st, sX2re, sMemOff, sKV, sX1a, sX1b, sC = 55, 56, 57, 58, 59, 60, 61, 62, 96
    sMaskHi = 64
    sLds, sRot = 66, 67
    sX2l = 92
    AST, KVL, SX, SM, SJ, OA, CST = 0x20000, 0x22000, 0x26000, 0x26800, 0x26a00, 0x26c00, 0x27400
    sKVL = 94
    lane = 0
    if cfg.get("chain_prologue_done") is None:
        cfg["chain_prologue_done"] = True
        a.label("L_chain")
        a(f"v_and_b32 v0, 63, v0")
        a(f"v_lshlrev_b32 v{vL16}, 4, v0")
        a(f"s_lshl_b32 s{sLds}, s{sWAVE}, 15")
        a(f"s_lshl_b32 s{sRot}, s{sWAVE}, 1")
        vD, vTR, vDo, vTRo = 96, 97, 98, 99
        qkv_dma_addr(a, lane, vD, vT, 8192)
        qkv_tr_addr(a, lane, vTR, vT, sLds)
        a(f"v_lshrrev_b32 v{vDo}, 3, v0")
        a(f"v_lshlrev_b32 v{vDo}, 10, v{vDo}")
        a(f"v_and_b32 v{vT}, 7, v0")
        a(f"v_lshl_add_u32 v{vDo}, v{vT}, 4, v{vDo}")
        a(f"v_bfe_u32 v{vT}, v0, 4, 1")
        a(f"v_lshlrev_b32 v{vTRo}, 11, v{vT}")
        a(f"v_bfe_u32 v{vT}, v0, 5, 1")
        a(f"v_lshl_add_u32 v{vTRo}, v{vT}, 9, v{vTRo}")
        a(f"v_bfe_u32 v{vT}, v0, 2, 1")
        a(f"v_lshl_add_u32 v{vTRo}, v{vT}, 7, v{vTRo}")
        a(f"v_bfe_u32 v{vT}, v0, 3, 1")
        a(f"v_lshl_add_u32 v{vTRo}, v{vT}, 5, v{vTRo}")
        a(f"v_and_b32 v{vT}, 3, v0")
        a(f"v_lshl_add_u32 v{vTRo}, v{vT}, 3, v{vTRo}")
        a(f"v_add_u32 v{vTRo}, s{sLds}, v{vTRo}")
        a(f"v_add_u32 v{vLdsW}, s{sLds}, v{vL16}")
        a(f"s_lshl_b32 s{sT2}, s{sMEMB}, 8")
        a(f"s_lshl_b32 s{sT1}, s{sWAVE}, 6")
        a(f"s_add_u32 s{sT2}, s{sT2}, s{sT1}")
        a(f"s_lshl_b32 s{sT3}, s{sMEMB}, 17")
        a(f"s_lshl_b32 s{sT1}, s{sWAVE}, 8")
        a(f"s_add_u32 s{sT3}, s{sT3}, s{sT1}")
        chunks = []
        def qkv_chunk(ptr, jj, consume):
            def setup():
                if jj == 0: set_srd(a, sWT, ptr, 0x400000)
                a(f"s_xor_b32 s{sT0}, s{sRot}, {jj}")
                a(f"s_lshl_b32 s{sT0}, s{sT0}, 19")
                a(f"s_add_u32 s{sT0}, s{sT0}, s{sT2}")
            chunks.append(dict(setup=setup, vdma=vD, dstep=4 * 8192, consume=consume))
        for ptr, base in ((sWK, WK), (sWV, WV)):
            for jj in range(8):
                def consume(so, jj=jj, base=base):
                    qkv_tr_reads(a, vTR, so, base + jj * 16, base + jj * 16 + 8)
                    a("s_waitcnt lgkmcnt(0)")
                qkv_chunk(ptr, jj, consume)
        for wp in range(4):
            for ap in range(2):
                def setup(wp=wp, ap=ap):
                    if wp == 0 and ap == 0: set_srd(a, sWT, sWO, 0x400000)
                    a(f"s_add_u32 s{sT0}, s{sT3}, {32*wp*1024 + ap*128}")
                def consume(so, wp=wp, ap=ap):
                    for a1 in range(2):
                        dst = WO + ((2 * ap + a1) * 4 + wp) * 8
                        for e4 in range(4):
                            off = so + (8 * (e4 >> 1) + 2 * (e4 & 1)) * 128 + a1 * 64
                            a(f"ds_read_b64_tr_b16 {vr(dst+2*e4,2)}, v{vTRo} offset:{off}")
                    a("s_waitcnt lgkmcnt(0)")
                chunks.append(dict(setup=setup, vdma=vDo, dstep=8192, consume=consume))
        for jj in range(8):
            def consume(so, jj=jj):
                qkv_tr_reads(a, vTR, so, RING, RING + 8)
                a("s_waitcnt lgkmcnt(0)")
                for i in range(4):
                    a(f"ds_write_b128 v{vLdsW}, {vr(RING+4*i,4)} offset:{so+i*1024}")
                a("s_waitcnt lgkmcnt(0)")
            qkv_chunk(sWQ, jj, consume)
        load_chunks(a, chunks, sLds)
        sel_consts(a, lane, 96, selM=SelM, selLo=112, selHi=116, selT=SelT)
        smf_index(a, lane, vIdx, 96)
        n_, g_, q_ = 96, 97, 98
        a(f"v_and_b32 v{n_}, 15, v0")
        a(f"v_lshrrev_b32 v{g_}, 4, v0")
        a(f"v_and_b32 v{q_}, 7, v0")
        a(f"s_mov_b32 s{sMaskHi}, 0xff00ff00")
        a(f"s_mov_b32 s{sMaskHi+1}, 0xff00ff00")
        a(f"v_lshlrev_b32 v99, 3, v{q_}")
        a(f"v_lshl_add_u32 v99, v{g_}, 6, v99")
        a(f"v_add_u32 v99, {SJ}, v99")
        a(f"v_lshrrev_b32 v{vT}, 1, v{g_}")
        a(f"v_lshlrev_b32 v{vSwx}, 8, v{vT}")
        a(f"v_lshl_add_u32 v{vSwx}, v{q_}, 4, v{vSwx}")
        a(f"v_and_b32 v{vT}, 1, v{g_}")
        a(f"v_lshl_add_u32 v{vSwx}, v{vT}, 3, v{vSwx}")
        a(f"s_lshl_b32 s{sT0}, s{sWAVE}, 9")
        a(f"s_add_u32 s{sT1}, s{sT0}, {SX}")
        a(f"v_add_u32 v{vSwx}, s{sT1}, v{vSwx}")
        a(f"v_cndmask_b32 v{vSwx}, v{vSwx}, v99, s[{sMaskHi}:{sMaskHi+1}]")
        a(f"v_lshlrev_b32 v{vSwm}, 4, v{q_}")
        a(f"v_lshl_add_u32 v{vSwm}, v{vT}, 3, v{vSwm}")
        a(f"s_lshl_b32 s{sT1}, s{sWAVE}, 7")
        a(f"s_add_u32 s{sT1}, s{sT1}, {SM}")
        a(f"v_add_u32 v{vSwm}, s{sT1}, v{vSwm}")
        a(f"s_mov_b32 s68, 0")
        a(f"s_mov_b32 s69, 0x00ff00ff")
        a(f"v_cndmask_b32 v{vSwm}, v99, v{vSwm}, s[68:69]")
        a(f"v_lshlrev_b32 v{vSrx}, 9, v{g_}")
        a(f"v_lshl_add_u32 v{vSrx}, v{n_}, 4, v{vSrx}")
        a(f"v_add_u32 v{vSrx}, {SX}, v{vSrx}")
        a(f"v_lshlrev_b32 v{vSrm}, 7, v{g_}")
        a(f"v_lshl_add_u32 v{vSrm}, v{q_}, 4, v{vSrm}")
        a(f"v_add_u32 v{vOr}, {OA}, v{vSrm}")
        a(f"v_add_u32 v{vSrm}, {SM}, v{vSrm}")
        a(f"v_bfe_u32 v{vT}, v0, 3, 1")
        a(f"v_lshl_add_u32 v{vOw}, v{vT}, 3, v{vOr}")
        a(f"v_add_u32 v{vOw}, s{sT0}, v{vOw}")
        a(f"v_lshrrev_b32 v{vT}, 2, v{n_}")
        a(f"v_lshl_add_u32 v{vT}, v{vT}, 2, v{g_}")
        a(f"v_lshlrev_b32 v{vX1s}, 11, v{vT}")
        a(f"v_and_b32 v{vT}, 3, v0")
        a(f"v_lshl_add_u32 v{vX1s}, v{vT}, 4, v{vX1s}")
        a(f"s_lshl_b32 s{sT0}, s{sWAVE}, 16")
        a(f"s_lshl_b32 s{sT1}, s{sMEMB}, 6")
        a(f"s_add_u32 s{sT0}, s{sT0}, s{sT1}")
        a(f"v_add_u32 v{vX1s}, s{sT0}, v{vX1s}")
        a(f"s_lshl_b32 s{sT2}, s{sMEMB}, 2")
        a(f"s_add_u32 s{sT2}, s{sT2}, s{sWAVE}")
        a(f"s_lshl_b32 s{sT0}, s{sT2}, 11")
        a(f"v_add_u32 v{vX1l}, s{sT0}, v{vL16}")
        a(f"v_lshlrev_b32 v{vX2s}, 4, v{g_}")
        a(f"v_lshl_add_u32 v{vX2s}, v{n_}, 2, v{vX2s}")
        a(f"s_lshl_b32 s{sT0}, s{sT2}, 6")
        a(f"v_add_u32 v{vX2s}, s{sT0}, v{vX2s}")
        a(f"v_mov_b32 v{vT}, {OOB:#x}")
        a(f"v_cmp_gt_u32 vcc, 4, v{n_}")
        a(f"v_cndmask_b32 v{vX2s}, v{vT}, v{vX2s}, vcc")
        a(f"v_and_b32 v100, 3, v0")
        a(f"v_lshlrev_b32 v100, 1, v100")
        a(f"v_lshl_add_u32 v100, v{g_}, 10, v100")
        a(f"v_and_b32 v104, 3, v0")
        a(f"v_bfe_u32 v105, v0, 2, 2")
        a(f"v_lshl_add_u32 v104, v104, 2, v105")
        a(f"v_and_b32 v105, 1, v104")
        a(f"v_lshlrev_b32 v105, 4, v105")
        a(f"v_mov_b32 v106, 0x3f80")
        a(f"v_lshlrev_b32 v105, v105, v106")
        a(f"v_lshrrev_b32 v104, 1, v104")
        for e in range(4):
            a(f"v_cmp_eq_u32 vcc, {e}, v104")
            a(f"v_cndmask_b32 v{108+e}, 0, v105, vcc")
        a(f"v_and_b32 v104, 0xf0, v{vL16}")
        a(f"v_add_u32 v104, {CST}, v104")
        a(f"ds_write_b128 v104, v[108:111]")
        a(f"ds_write_b128 v104, v[112:115] offset:256")
        a(f"ds_write_b128 v104, v[116:119] offset:512")
        for e in range(4): a(f"v_mov_b32 v{120+e}, 0x3f803f80")
        for e in range(4): a(f"v_mov_b32 v{124+e}, 0x3f003f00")
        a(f"ds_write_b128 v104, v[120:123] offset:768")
        a(f"ds_write_b128 v104, v[124:127] offset:1024")
        a(f"s_and_b32 s{sT0}, s{sT2}, 1")
        a(f"s_lshl_b32 s{sT0}, s{sT0}, 12")
        a(f"s_lshr_b32 s{sT1}, s{sT2}, 4")
        a(f"s_lshl_b32 s{sT1}, s{sT1}, 7")
        a(f"s_add_u32 s{sT0}, s{sT0}, s{sT1}")
        a(f"s_bfe_u32 s{sT1}, s{sT2}, 0x10001")
        a(f"s_lshl_b32 s{sT1}, s{sT1}, 5")
        a(f"s_add_u32 s{sT0}, s{sT0}, s{sT1}")
        a(f"s_bfe_u32 s{sT1}, s{sT2}, 0x20002")
        a(f"s_lshl_b32 s{sT1}, s{sT1}, 3")
        a(f"s_add_u32 s{sT0}, s{sT0}, s{sT1}")
        set_srd(a, sIN, sMEM0, 8192)
        a(f"buffer_load_ushort v101, v100, s[{sIN}:{sIN+3}], s{sT0} offen")
        a(f"buffer_load_ushort v102, v100, s[{sIN}:{sIN+3}], s{sT0} offen offset:64")
        a(f"s_mov_b32 s{sStep}, 0")
        a(f"s_mov_b32 s{sTag}, 0")
        a(f"s_lshl_b32 s{sT0}, s{sLAY}, 14")
        a(f"s_add_u32 s{sX2st}, s{sT0}, {OFF_X2:#x}")
        a(f"s_add_u32 s{sX2re}, s{sX2st}, 8192")
        a(f"s_lshl_b32 s{sT0}, s{sWAVE}, 11")
        a(f"s_add_u32 s{sX2l}, s{sT0}, s{sX2st}")
        a(f"s_add_u32 s{sT0}, s{sT0}, {AST}")
        a(f"v_add_u32 v{vAw}, s{sT0}, v{vL16}")
        a(f"s_lshl_b32 s{sT0}, s{sLAY}, 19")
        a(f"s_add_u32 s{sMemOff}, s{sT0}, {OFF_MEM:#x}")
        a(f"s_lshl_b32 s{sT0}, s{sLAY}, 18")
        a(f"s_add_u32 s{sX1a}, s{sT0}, {OFF_X1:#x}")
        a(f"s_add_u32 s{sX1b}, s{sX1a}, 32768")
        a(f"s_lshl_b32 s{sT0}, s{sLAY}, 25")
        a(f"s_lshl_b32 s{sT1}, s{sT2}, 12")
        a(f"s_add_u32 s{sT0}, s{sT0}, s{sT1}")
        a(f"s_add_u32 s{sKV}, s{sT0}, {OFF_KV:#x}")
        a(f"s_lshl_b32 s{sT0}, s{sLAY}, 17")
        a(f"s_lshl_b32 s{sT1}, s{sT2}, 2")
        a(f"s_add_u32 s{sT0}, s{sT0}, s{sT1}")
        a(f"s_add_u32 s{sT0}, s{sT0}, {OFF_FLAGS+F_KV}")
        a(f"s_mov_b32 s{sFO}, s{sT0}")
        a(f"s_mov_b32 s{sC}, {fbits(128**-0.5*1.4426950408889634):#x}")
        a(f"s_mov_b32 s{sC+1}, s{sC}")
        a("s_waitcnt vmcnt(0)")
        a(f"v_lshl_or_b32 v{vR}, v102, 16, v101")
        a(f"v_min_u32 v{vR}, -2, v{vR}")
        if not cfg.get("noinit"): wait_init(a)
        lab = a.newlab("L_kv0")
        spin_init(a)
        a.label(lab)
        a(f"buffer_load_dword v{vOnes}, off, s[{sWS}:{sWS+3}], s{sFO} sc1")
        spin_tick(a)
        a("s_waitcnt vmcnt(0)")
        a(f"v_cmp_eq_u32 vcc, 0, v{vOnes}")
        a(f"s_cbranch_vccnz {lab}")
        for f in range(4):
            a(f"buffer_load_dwordx4 {vr(Kx+4*f,4)}, v{vL16}, s[{sWS}:{sWS+3}], s{sKV} offen offset:{f*1024} sc1")
        for i in range(8):
            a(f"ds_read_b128 {vr(RING+4*i,4)}, v{vLdsW} offset:{i*1024}")
        a(f"s_add_u32 s{sFO}, s{sFO}, 2048")
        a(f"buffer_load_dword v{vOnes}, off, s[{sWS}:{sWS+3}], s{sFO} sc1")
        a(f"s_lshl_b32 s{sKVL}, s{sWAVE}, 12")
        a(f"s_add_u32 s{sKVL}, s{sKVL}, {KVL}")
        a(f"s_mov_b32 m0, s{sKVL}")
        a("s_waitcnt vmcnt(0) lgkmcnt(0)")
        if cfg.get("count_redo"):
            a("s_memrealtime s[70:71]")
            a("s_memtime s[98:99]")
            a("s_waitcnt lgkmcnt(0)")
            a("s_sub_u32 s101, s70, s100")
            a("s_mov_b32 s100, s70")
        if cfg.get("force_global"):
            a("s_branch L_chain_loopG")
        else:
            a(f"s_cmp_eq_u32 s{sLOCAL}, 0")
            a("s_cbranch_scc1 L_chain_loopG")
    W = f"s[{sWS}:{sWS+3}]"
    vq = [(t, jj) for jj in range(8) for t in range(2)]
    vacc = (VACC, VACC + 4)
    def fill_v(n):
        for _ in range(n):
            t, jj = vq.pop(0)
            a(f"v_smfmac_f32_16x16x64_bf16 {vr(vacc[t],4)}, {vr(A+4*jj,4)}, {xr(WV+jj*16+t*8,8)}, v{vIdx}")
    def pad(n):
        for _ in range(n): a(f"v_mov_b32 v{vT}, 0")
    cvt = lambda d, s: a(f"v_cvt_pk_bf16_f32 v{d}, v{s}, v{s+1}")
    mfma = lambda d, x, y, c: a(f"v_mfma_f32_16x16x32_bf16 {vr(d,4)}, {vr(x,4)}, {vr(y,4)}, {vr(c,4) if c is not None else 0}")
    mfma16 = lambda d, x, y: a(f"v_mfma_f32_16x16x16_bf16 {vr(d,4)}, {vr(x,2)}, {vr(y,2)}, {vr(d,4)}")
    two = cfg.get("twoset", True)
    a(".p2align 6")
    a.label(f"L_chain_loop{tag}")
    stamp("top")
    a(f"buffer_store_dword v{vR}, v{vX2s}, {W}, s{sX2st} offen{st}")
    a(f"s_cmp_eq_u32 s{sStep}, 63")
    a(f"s_cbranch_scc1 L_chain_last{tag}")
    a(f"v_cmp_eq_u32 vcc, 0, v{vOnes}")
    for i in range(8):
        a(f"v_mov_b64 {vr(q0+2*i,2)}, 0")
    a(f"s_cbranch_vccnz L_chain_kvwait{tag}")
    a.label(f"L_chain_kvok{tag}")
    spin_init(a)
    if cfg.get("ack2"): a("s_waitcnt vmcnt(0)")
    pad(cfg.get("d2", 30))
    def x2_issue(r):
        a(f"buffer_load_dwordx4 {vr(r,4)}, v{vL16}, {W}, s{sX2l} offen sc1")
        a(f"buffer_load_dwordx4 {vr(r+4,4)}, v{vL16}, {W}, s{sX2l} offen offset:1024 sc1")
    def x2_check(r, n):
        a(f"s_waitcnt vmcnt({n+1})")
        a(f"v_max3_u32 v{vT}, v{r}, v{r+1}, v{r+2}")
        a(f"s_waitcnt vmcnt({n})")
        a(f"v_max3_u32 v{vT}, v{vT}, v{r+3}, v{r+4}")
        a(f"v_max3_u32 v{vT}, v{vT}, v{r+5}, v{r+6}")
        a(f"v_max_u32 v{vT}, v{vT}, v{r+7}")
        a(f"v_cmp_eq_u32 vcc, -1, v{vT}")
        a(f"ds_write_b128 v{vAw}, {vr(r,4)}")
        a(f"ds_write_b128 v{vAw}, {vr(r+4,4)} offset:1024")
    stamp("x2iss")
    x2_issue(A)
    for i in range(4):
        a(f"v_mov_b64 {vr(VACC+2*i,2)}, 0")
    a(f"v_mov_b32 v{vOnes}, -1")
    a(f"s_add_u32 s{sFO}, s{sFO}, 2048")
    if not cfg.get("samekv"): a(f"s_add_u32 s{sKV}, s{sKV}, {32*16384}")
    a("s_waitcnt lgkmcnt(0)")
    if two:
        pad(cfg.get("g2", 30))
        x2_issue(A + 8)
        x2_check(A, 2)
        a(f"s_cbranch_vccnz L_chain_x2b{tag}")
    else:
        x2_check(A, 0)
        a(f"s_cbranch_vccnz L_chain_x2b{tag}")
    a.label(f"L_chain_x2ok{tag}")
    if cfg.get("count_redo"): a(f"s_add_u32 s31, s31, s{sSPIN}")
    stamp("A0")
    kvl = [f"buffer_load_dwordx4 v{vL16}, {W}, s{sKV} offen offset:{f*1024} sc1 lds" for f in range(4)]
    lg = {0: None, 1: None, 2: 5, 3: 8, 4: 4, 5: 4, 6: 4, 7: 2}
    SLo, SHi = RING, RING + 4
    for jj in range(8):
        if jj == 2:
            a(f"buffer_store_dword v{vR}, v{vX2s}, {W}, s{sMemOff} offen sc1")
            stamp("k1done", True)
            a("s_waitcnt vmcnt(1) lgkmcnt(8)")
            a("s_barrier")
            stamp("bar1", True)
            for j2 in range(2, 8, 2):
                a(f"v_xor_b32 v{vT}, {j2*1024}, v{vAw}")
                a(f"ds_read_b128 {vr(A+4*j2,4)}, v{vT}")
                a(f"ds_read_b128 {vr(A+4*j2+4,4)}, v{vT} offset:1024")
            fill_v(4)
        if lg[jj] is not None: a(f"s_waitcnt lgkmcnt({lg[jj]})")
        stamp(f"k{jj}", True)
        Aj = vr(A + 4 * jj, 4)
        s0 = RING + ((2 * jj) % 4) * 8; s1 = s0 + 8
        f0 = 2 * jj + 4
        if jj < 6:
            side = [f"ds_read_b128 {vr(s0,4)}, v{vLdsW} offset:{f0*2048}", f"ds_read_b128 {vr(s0+4,4)}, v{vLdsW} offset:{f0*2048+1024}",
                    f"ds_read_b128 {vr(s1,4)}, v{vLdsW} offset:{f0*2048+2048}", f"ds_read_b128 {vr(s1+4,4)}, v{vLdsW} offset:{f0*2048+3072}"]
        elif jj == 6:
            side = [f"v_and_b32 v{vT}, 0xf0, v{vL16}", f"v_add_u32 v{vT}, {CST}, v{vT}",
                    f"ds_read_b128 {vr(SLo,4)}, v{vT} offset:256", f"ds_read_b128 {vr(SHi,4)}, v{vT} offset:512"]
        else:
            side = [f"buffer_store_dword v{vOnes}, v{vX2s}, {W}, s{sX2re} offen{st}", kvl.pop(0), None, None]
        for acc, wsrc, sd in ((q0, vr(s0, 8), side[0]), (k0, xr(WK + jj * 16, 8), side[1]), (q1, vr(s1, 8), side[2]), (k1, xr(WK + jj * 16 + 8, 8), side[3])):
            a(f"v_smfmac_f32_16x16x64_bf16 {vr(acc,4)}, {Aj}, {wsrc}, v{vIdx}")
            if sd: a(sd)
    stamp("h3end")
    Ap0, Ap1, Dp0, Dp1, X = 72, 76, 80, 84, 88
    cvt(Ap0, q0); cvt(Ap0 + 1, q0 + 2); cvt(Ap0 + 2, k0); cvt(Ap0 + 3, k0 + 2)
    cvt(Ap1, q1); cvt(Ap1 + 1, q1 + 2)
    mfma(Dp0, Ap0, SelT, None)
    cvt(Ap1 + 2, k1); cvt(Ap1 + 3, k1 + 2)
    mfma(Dp1, Ap1, SelT, None)
    a(kvl.pop(0))
    cvt(X, Dp0); cvt(X + 1, Dp0 + 2)
    fill_v(1)
    cvt(X + 2, Dp1); cvt(X + 3, Dp1 + 2)
    Sx0, Sx1, Sm = 32, 36, 40
    mfma(Sx0, Kx, X, None)
    mfma(Sx1, Kx + 4, X, None)
    mfma(Sm, X, X, None)
    a(kvl.pop(0))
    cvt(44, Sx0); cvt(45, Sx0 + 2); cvt(46, Sx1); cvt(47, Sx1 + 2)
    a(f"ds_write2_b64 v{vSwx}, v[44:45], v[46:47] offset0:0 offset1:16")
    cvt(92, Sm); cvt(93, Sm + 2)
    a(f"ds_write_b64 v{vSwm}, v[92:93]")
    stamp("swr")
    fill_v(3)
    a(kvl.pop(0))
    a("s_waitcnt lgkmcnt(0)")
    stamp("swdone", True)
    a("s_barrier")
    stamp("bar2", True)
    a(f"ds_read_b128 v[72:75], v{vSrx}")
    a(f"ds_read_b128 v[80:83], v{vSrm}")
    a(f"ds_read_b128 v[76:79], v{vSrx} offset:256")
    ONES, HALF = 88, 92
    a(f"ds_read_b128 {vr(ONES,4)}, v{vT} offset:768")
    a(f"ds_read_b64 {vr(HALF,2)}, v{vT} offset:1024")
    fill_v(3)
    a("s_waitcnt lgkmcnt(3)")
    mfma(32, SLo, 72, None)
    mfma(36, SelM, 80, None)
    a("s_waitcnt lgkmcnt(2)")
    mfma(32, SHi, 76, 32)
    fill_v(2)
    stamp("sred")
    m, t = 46, 47
    a(f"v_max3_f32 v{m}, v36, v37, v38")
    a(f"v_max3_f32 v{t}, v32, v33, v34")
    a(f"v_max3_f32 v{m}, v{m}, v39, v35")
    a(f"v_max_f32 v{m}, v{m}, v{t}")
    fill_v(1)
    a(f"v_max_f32_dpp v{m}, v{m}, v{m} row_ror:8 row_mask:0xf bank_mask:0xf")
    a(f"v_mov_b32 v{t}, v{m}")
    fill_v(1)
    a(f"v_permlane16_swap_b32 v{m}, v{t}")
    a(f"v_max_f32 v{m}, v{m}, v{t}")
    a(f"v_mov_b32 v{t}, v{m}")
    fill_v(1)
    a(f"v_permlane32_swap_b32 v{m}, v{t}")
    a(f"v_max_f32 v{m}, v{m}, v{t}")
    assert not vq
    a(f"v_mul_f32 v{m}, s{sC}, v{m}")
    for i in range(0, 8, 2):
        a(f"v_pk_fma_f32 {vr(32+i,2)}, {vr(32+i,2)}, s[{sC}:{sC+1}], {vr(m,2)} op_sel_hi:[1,1,0] neg_lo:[0,0,1] neg_hi:[0,0,1]")
    for i in range(8):
        a(f"v_exp_f32 v{32+i}, v{32+i}")
    Bx, Pm, vp = 40, 44, 84
    cvt(Bx, 32); cvt(Bx + 1, 34); cvt(Bx + 2, 32); cvt(Bx + 3, 34)
    cvt(Pm, 36); cvt(Pm + 1, 38)
    a(f"v_mov_b32_dpp v{Bx+2}, v{Bx} row_ror:8 row_mask:0xf bank_mask:0x3")
    a(f"v_mov_b32_dpp v{Bx+3}, v{Bx+1} row_ror:8 row_mask:0xf bank_mask:0x3")
    a(f"v_mov_b32_dpp v{Bx}, v{Bx} row_ror:8 row_mask:0xf bank_mask:0xc")
    a(f"v_mov_b32_dpp v{Bx+1}, v{Bx+1} row_ror:8 row_mask:0xf bank_mask:0xc")
    a("s_waitcnt lgkmcnt(0)")
    stamp("pready")
    a(f"v_mfma_f32_16x16x16_bf16 v[32:35], {vr(HALF,2)}, {vr(Pm,2)}, 0")
    cvt(vp, vacc[0]); cvt(vp + 1, vacc[0] + 2)
    mfma(32, ONES, Bx, 32)
    cvt(vp + 2, vacc[1]); cvt(vp + 3, vacc[1] + 2)
    mfma(72, Vx, Bx, None)
    a(f"buffer_load_dword v{vOnes}, off, {W}, s{sFO} sc1")
    mfma(76, Vx + 4, Bx, None)
    mfma16(72, vp, Pm)
    mfma16(76, vp + 2, Pm)
    a(f"v_rcp_f32 v32, v32")
    OF, WA = 96, 112
    for i in range(3):
        a(f"v_mov_b64 {vr(WA+2*i,2)}, 0")
    for i in range(4):
        a(f"v_cndmask_b32 v{72+i}, v{72+i}, v{76+i}, s[{sMaskHi}:{sMaskHi+1}]")
    a(f"v_pk_mul_f32 v[72:73], v[72:73], v[32:33] op_sel_hi:[1,0]")
    a(f"v_pk_mul_f32 v[74:75], v[74:75], v[32:33] op_sel_hi:[1,0]")
    cvt(80, 72); cvt(81, 74)
    a(f"ds_write_b64 v{vOw}, v[80:81]")
    stamp("owr")
    for i in range(3, 8):
        a(f"v_mov_b64 {vr(WA+2*i,2)}, 0")
    a("s_waitcnt vmcnt(5) lgkmcnt(0)")
    stamp("owdone", True)
    a("s_barrier")
    stamp("bar3", True)
    for wp in range(4):
        a(f"ds_read_b128 {vr(OF+4*wp,4)}, v{vOr} offset:{wp*512}")
    a(f"ds_read_b128 v[40:43], v{vT}")
    a(f"s_add_u32 s{sStep}, s{sStep}, 1")
    a(f"s_add_u32 s{sMemOff}, s{sMemOff}, 8192")
    a(f"s_xor_b32 s{sX2st}, s{sX2st}, 8192")
    a(f"s_xor_b32 s{sX2re}, s{sX2re}, 8192")
    a(f"s_xor_b32 s{sX2l}, s{sX2l}, 8192")
    spin_init(a)
    def pack(U):
        d = 32 + 4 * U; s = WA + 8 * U
        return [f"v_cvt_pk_bf16_f32 v{d}, v{s}, v{s+1}", f"v_cvt_pk_bf16_f32 v{d+1}, v{s+2}, v{s+3}",
                f"v_and_or_b32 v{d}, v{d}, -2, s{sTag}",
                f"v_cvt_pk_bf16_f32 v{d+2}, v{s+4}, v{s+5}", f"v_cvt_pk_bf16_f32 v{d+3}, v{s+6}, v{s+7}",
                f"buffer_store_dwordx4 {vr(d,4)}, v{vX1s}, {W}, s{sX1a if U == 0 else sX1b} offen{st}"]
    p0 = pack(0); p1 = pack(1)
    n = 0
    for ac in range(4):
        for wp in range(4):
            if ac == 0: a(f"s_waitcnt lgkmcnt({4-wp})")
            a(f"v_smfmac_f32_16x16x64_bf16 {vr(WA+4*ac,4)}, {vr(OF+4*wp,4)}, {vr(WO+(ac*4+wp)*8,8)}, v{vIdx}")
            n += 1
            stamp(f"wo{n}", True)
            if n in (7, 8, 9, 11, 12, 13): a(p0.pop(0))
            if n in (15, 16): a(p1.pop(0))
    a(p1.pop(0))
    for i in range(4):
        a(f"ds_read_b128 {vr(RING+4*i,4)}, v{vLdsW} offset:{i*1024}")
    for x in p1: a(x)
    stamp("x1st")
    for i in range(4, 8):
        a(f"ds_read_b128 {vr(RING+4*i,4)}, v{vLdsW} offset:{i*1024}")
    a("s_waitcnt vmcnt(3)")
    a(f"v_add_u32 v{vT}, s{sKVL}, v{vL16}")
    for f in range(4):
        a(f"ds_read_b128 {vr(Kx+4*f,4)}, v{vT} offset:{f*1024}")
    if cfg.get("ack1"): a("s_waitcnt vmcnt(0)")
    pad(cfg.get("d1", 30))
    def x1_issue(r):
        a(f"buffer_load_dwordx4 {vr(r,4)}, v{vX1l}, {W}, s{sX1a} offen sc1")
        a(f"buffer_load_dwordx4 {vr(r+4,4)}, v{vX1l}, {W}, s{sX1a} offen offset:1024 sc1")
    def x1_check(r, n):
        a(f"s_waitcnt vmcnt({n+1})")
        mfma(104, 40, r, None)
        a(f"s_waitcnt vmcnt({n})")
        mfma(104, 40, r + 4, 104)
        a(f"v_bitop3_b32 v{vT}, v{r}, v{r+4}, s{sTag} bitop3:0x7e")
        a(f"v_and_b32 v{vT}, 1, v{vT}")
        a(f"v_cmp_ne_u32 vcc, 0, v{vT}")
    stamp("x1iss")
    x1_issue(96)
    a("s_waitcnt lgkmcnt(12)")
    if two:
        pad(cfg.get("g1", 35))
        x1_issue(112)
        x1_check(96, 2)
    else:
        x1_check(96, 0)
    a(f"s_cbranch_vccnz L_chain_x1b{tag}")
    a.label(f"L_chain_x1ok{tag}")
    stamp("x1ok")
    if cfg.get("count_redo"):
        a(f"s_lshl_b32 s{sT0}, s{sSPIN}, 16")
        a(f"s_add_u32 s31, s31, s{sT0}")
    a(f"s_xor_b32 s{sTag}, s{sTag}, 1")
    a(f"v_add_f32_dpp v104, v104, v104 row_ror:4 row_mask:0xf bank_mask:0xf")
    a(f"v_add_f32_dpp v105, v105, v105 row_ror:4 row_mask:0xf bank_mask:0xf")
    a(f"v_add_f32_dpp v104, v104, v104 row_ror:8 row_mask:0xf bank_mask:0xf")
    a(f"v_add_f32_dpp v105, v105, v105 row_ror:8 row_mask:0xf bank_mask:0xf")
    a(f"v_cvt_pk_bf16_f32 v{vR}, v104, v105")
    a(f"v_min_u32 v{vR}, -2, v{vR}")
    if stamp.on:
        a(f"s_cmp_eq_u32 s{sStep}, {cfg.get('stamp_step', 40)}")
        a(f"s_cbranch_scc0 L_chain_loop{tag}")
        a("s_waitcnt lgkmcnt(0)")
        a(f"s_lshl_b32 s{sT0}, s{sMEMB}, 2")
        a(f"s_add_u32 s{sT0}, s{sT0}, s{sWAVE}")
        a(f"s_lshl_b32 s{sT1}, s{sLAY}, 7")
        a(f"s_add_u32 s{sT0}, s{sT0}, s{sT1}")
        a(f"s_lshl_b32 s{sT0}, s{sT0}, 6")
        a(f"s_add_u32 s{sT0}, s{sT0}, {OFF_STAMP:#x}")
        a(f"v_mov_b32 v108, 0")
        for i in range(stamp.n):
            a(f"v_mov_b32 v109, s{stamp.base+2*i}")
            a(f"buffer_store_dword v109, v108, {W}, s{sT0} offen offset:{4*i}")
        cfg["stamp_names"] = stamp.names
    a(f"s_branch L_chain_loop{tag}")
    a.label(f"L_chain_x1b{tag}")
    x1_issue(96)
    spin_tick(a)
    if two:
        x1_check(112, 2)
        a(f"s_cbranch_vccz L_chain_x1ok{tag}")
        x1_issue(112)
        spin_tick(a)
        x1_check(96, 2)
    else:
        x1_check(96, 0)
    a(f"s_cbranch_vccz L_chain_x1ok{tag}")
    a(f"s_branch L_chain_x1b{tag}")
    a.label(f"L_chain_x2b{tag}")
    x2_issue(A)
    spin_tick(a)
    if two:
        x2_check(A + 8, 2)
        a(f"s_cbranch_vccz L_chain_x2c{tag}")
        x2_issue(A + 8)
        spin_tick(a)
        x2_check(A, 2)
    else:
        x2_check(A, 0)
    a(f"s_cbranch_vccz L_chain_x2ok{tag}")
    a(f"s_branch L_chain_x2b{tag}")
    if two:
        a.label(f"L_chain_x2c{tag}")
        for i in range(4):
            a(f"v_mov_b64 {vr(A+2*i,2)}, {vr(A+8+2*i,2)} ; sameval")
        a(f"s_branch L_chain_x2ok{tag}")
    a.label(f"L_chain_last{tag}")
    if cfg.get("count_redo"):
        a("s_memrealtime s[70:71]")
        a("s_memtime s[72:73]")
        a(f"s_lshl_b32 s{sT0}, s{sMEMB}, 2")
        a(f"s_add_u32 s{sT0}, s{sT0}, s{sWAVE}")
        a(f"s_lshl_b32 s{sT1}, s{sLAY}, 7")
        a(f"s_add_u32 s{sT0}, s{sT0}, s{sT1}")
        a(f"s_lshl_b32 s{sT0}, s{sT0}, 6")
        a(f"s_add_u32 s{sT0}, s{sT0}, {OFF_STAMP:#x}")
        a(f"v_mov_b32 v108, 0")
        a("s_waitcnt lgkmcnt(0)")
        a(f"s_sub_u32 s70, s70, s100")
        a(f"s_sub_u32 s72, s72, s98")
        for i, r in enumerate((72, 31, 70, 101)):
            a(f"v_mov_b32 v109, s{r}")
            a(f"buffer_store_dword v109, v108, {W}, s{sT0} offen offset:{48+4*i}")
    a(f"buffer_store_dword v{vR}, v{vX2s}, {W}, s{sMemOff} offen sc1")
    a("s_waitcnt vmcnt(0) lgkmcnt(0)")
    a("s_branch L_exit")
    a.label(f"L_chain_kvwait{tag}")
    a(f"s_cmp_ge_u32 s{sStep}, 62")
    a(f"s_cbranch_scc1 L_chain_kvok{tag}")
    spin_init(a)
    lab = a.newlab("L_kvspin")
    a.label(lab)
    a(f"buffer_load_dword v{vOnes}, off, {W}, s{sFO} sc1")
    spin_tick(a)
    a("s_waitcnt vmcnt(0)")
    a(f"v_cmp_eq_u32 vcc, 0, v{vOnes}")
    a(f"s_cbranch_vccnz {lab}")
    a(f"s_branch L_chain_kvok{tag}")
```

```python
from asmlib import *
from layout import *
import struct

KNAME = "interleave_layers__memory_aug_recurrent_mem_tr__sliding_local_dilated__prompt_kernel"

sX, sMEM0, sWQ, sWK, sWV, sWO = 4, 6, 8, 10, 12, 14
sWB, sWBO, sOUT, sDBG, sWSP = 20, 22, 24, 26, 28
sWS = 32
sWT = 36
sIN = 40
sGRP, sMEMB, sWAVE, sLAY = 44, 45, 46, 47
sSPIN = 30
sLOCAL = 3
sSIG = 2
sT0, sT1, sT2, sT3 = 48, 49, 50, 51
sFB = 52
sFV = 54
SPIN_MAX = 1 << 19
OOB = 0x80000000

def fbits(x):
    return struct.unpack("<I", struct.pack("<f", x))[0]

def set_srd(a, srd, ptr, nbytes):
    a(f"s_mov_b32 s{srd}, s{ptr}")
    a(f"s_mov_b32 s{srd+1}, s{ptr+1}")
    a(f"s_mov_b32 s{srd+2}, {nbytes:#x}")
    a(f"s_mov_b32 s{srd+3}, 0x20000")

def spin_init(a):
    a(f"s_mov_b32 s{sSPIN}, 0")

def spin_tick(a):
    a(f"s_add_u32 s{sSPIN}, s{sSPIN}, 1")
    a(f"s_cmp_gt_u32 s{sSPIN}, {SPIN_MAX}")
    a("s_cbranch_scc1 L_exit")

class Stamps:
    def __init__(self, a, on, base=70, only=None):
        self.a = a; self.on = on; self.base = base; self.n = 0; self.names = []; self.only = only
    def __call__(self, name, extra=False):
        if not self.on: return
        if self.only is None and extra: return
        if self.only is not None and name not in self.only: return
        r = self.base + 2 * self.n
        self.names.append(name); self.n += 1
        assert r + 1 < 92
        self.a(f"s_memtime s[{r}:{r+1}]")

def wait_init(a):
    lab = a.newlab("L_winit")
    spin_init(a)
    a.label(lab)
    a(f"s_load_dword s{sFV}, s[{sDBG}:{sDBG+1}], 0x8 glc")
    spin_tick(a)
    a("s_waitcnt lgkmcnt(0)")
    a(f"s_cmp_lt_u32 s{sFV}, 256")
    a(f"s_cbranch_scc1 {lab}")
    a(f"s_lshl_b32 s{sFV}, s{sGRP}, 5")
    a(f"s_load_dword s{sFV}, s[{sDBG}:{sDBG+1}], s{sFV} glc")
    a("s_waitcnt lgkmcnt(0)")
    a(f"s_cmp_ge_u32 s{sFV}, 32")
    a(f"s_cselect_b32 s{sLOCAL}, 1, 0")

def signal_init(a):
    lab = a.newlab("L_sig")
    a(f"s_cmp_lg_u32 s{sSIG}, 0")
    a(f"s_cbranch_scc1 {lab}")
    a(f"s_mov_b32 s{sSIG}, 1")
    a(f"s_atomic_add s{sSIG}, s[{sDBG}:{sDBG+1}], 0x8")
    a("s_waitcnt lgkmcnt(0)")
    a.label(lab)

def sel_consts(a, vlane, tmp, selM=None, selLo=None, selHi=None, selT=None):
    t0, t1, t2, t3 = tmp, tmp + 1, tmp + 2, tmp + 3
    a(f"v_and_b32 v{t0}, 1, v{vlane}")
    a(f"v_lshlrev_b32 v{t0}, 4, v{t0}")
    a(f"v_mov_b32 v{t1}, 0x3f80")
    a(f"v_lshlrev_b32 v{t0}, v{t0}, v{t1}")
    a(f"v_bfe_u32 v{t1}, v{vlane}, 1, 2")
    a(f"v_bfe_u32 v{t2}, v{vlane}, 3, 1")
    for e in range(4):
        a(f"v_cmp_eq_u32 vcc, {e}, v{t1}")
        a(f"v_cndmask_b32 v{t3}, 0, v{t0}, vcc")
        if selM is not None: a(f"v_mov_b32 v{selM+e}, v{t3}")
        if selLo is not None:
            a(f"v_cmp_eq_u32 vcc, 0, v{t2}")
            a(f"v_cndmask_b32 v{selLo+e}, 0, v{t3}, vcc")
        if selHi is not None:
            a(f"v_cmp_eq_u32 vcc, 1, v{t2}")
            a(f"v_cndmask_b32 v{selHi+e}, 0, v{t3}, vcc")
    if selT is not None:
        a(f"v_bfe_u32 v{t1}, v{vlane}, 2, 1")
        a(f"v_bfe_u32 v{t3}, v{vlane}, 4, 1")
        a(f"v_cmp_eq_u32 vcc, v{t1}, v{t3}")
        a(f"v_cndmask_b32 v{t0}, 0, v{t0}, vcc")
        a(f"v_bfe_u32 v{t1}, v{vlane}, 1, 1")
        a(f"v_lshl_add_u32 v{t1}, v{t2}, 1, v{t1}")
        for e in range(4):
            a(f"v_cmp_eq_u32 vcc, {e}, v{t1}")
            a(f"v_cndmask_b32 v{selT+e}, 0, v{t0}, vcc")

def smf_index(a, vlane, vidx, tmp):
    a(f"v_mov_b32 v{vidx}, 0x44444444")
    a(f"v_mov_b32 v{tmp}, 0xeeeeeeee")
    a(f"v_and_b32 v{tmp+1}, 8, v{vlane}")
    a(f"v_cmp_ne_u32 vcc, 0, v{tmp+1}")
    a(f"v_cndmask_b32 v{vidx}, v{vidx}, v{tmp}, vcc")

def load_chunks(a, chunks, sLdsBase, nslots=8):
    def issue(c):
        ch = chunks[c]; slot = c % nslots
        ch["setup"]()
        a(f"s_add_u32 m0, s{sLdsBase}, {slot*4096}")
        for q in range(4):
            if q: a(f"s_add_u32 s{sT0}, s{sT0}, {ch['dstep']-1024}")
            a(f"buffer_load_dwordx4 v{ch['vdma']}, s[{sWT}:{sWT+3}], s{sT0} offen offset:{q*1024} lds")
    n = len(chunks)
    for c in range(min(nslots, n)): issue(c)
    for c in range(n):
        inflight = min(nslots, n - c)
        a(f"s_waitcnt vmcnt({4*(inflight-1)})")
        if c == 0: signal_init(a)
        chunks[c]["consume"]((c % nslots) * 4096)
        if c + nslots < n: issue(c + nslots)

def qkv_dma_addr(a, vlane, vdst, tmp, rowbytes):
    a(f"v_bfe_u32 v{tmp}, v{vlane}, 2, 1")
    a(f"v_lshlrev_b32 v{vdst}, 5, v{tmp}")
    a(f"v_bfe_u32 v{tmp}, v{vlane}, 3, 1")
    a(f"v_lshl_add_u32 v{vdst}, v{tmp}, 4, v{vdst}")
    a(f"v_bfe_u32 v{tmp}, v{vlane}, 4, 2")
    a(f"v_add_u32 v{vdst}, v{vdst}, v{tmp}")
    a(f"v_mul_u32_u24 v{vdst}, {rowbytes}, v{vdst}")
    a(f"v_and_b32 v{tmp}, 3, v{vlane}")
    a(f"v_lshl_add_u32 v{vdst}, v{tmp}, 4, v{vdst}")

def qkv_tr_addr(a, vlane, vdst, tmp, sLdsBase):
    a(f"v_lshrrev_b32 v{tmp}, 4, v{vlane}")
    a(f"v_lshlrev_b32 v{vdst}, 9, v{tmp}")
    a(f"v_bfe_u32 v{tmp}, v{vlane}, 2, 2")
    a(f"v_lshl_add_u32 v{vdst}, v{tmp}, 6, v{vdst}")
    a(f"v_and_b32 v{tmp}, 3, v{vlane}")
    a(f"v_lshl_add_u32 v{vdst}, v{tmp}, 3, v{vdst}")
    a(f"v_add_u32 v{vdst}, s{sLdsBase}, v{vdst}")

def qkv_tr_reads(a, vaddr, slotoff, dst0, dst1):
    for t, dst in ((0, dst0), (1, dst1)):
        for e4 in range(4):
            off = slotoff + (32 * (e4 >> 1) + 4 * (e4 & 1)) * 64 + t * 32
            a(f"ds_read_b64_tr_b16 {xr(dst+2*e4,2)}, v{vaddr} offset:{off}")

def poll_flags(a, vtmp, voff, soff):
    lab = a.newlab("L_pf")
    spin_init(a)
    a.label(lab)
    a(f"buffer_load_dword v{vtmp}, v{voff}, s[{sWS}:{sWS+3}], s{soff} offen sc1")
    spin_tick(a)
    a("s_waitcnt vmcnt(0)")
    a(f"v_cmp_eq_u32 vcc, 0, v{vtmp}")
    a(f"s_cbranch_vccnz {lab}")

def set_flag(a, vone, soff, imm=0, mod=" sc1"):
    a("s_mov_b64 exec, 1")
    a(f"buffer_store_dword v{vone}, off, s[{sWS}:{sWS+3}], s{soff} offset:{imm}{mod}")
    a("s_mov_b64 exec, -1")

def xlane_g(a, op, m, t):
    a(f"v_mov_b32 v{t}, v{m}")
    a(f"v_permlane16_swap_b32 v{m}, v{t}")
    a(f"{op} v{m}, v{m}, v{t}")
    a(f"v_mov_b32 v{t}, v{m}")
    a(f"v_permlane32_swap_b32 v{m}, v{t}")
    a(f"{op} v{m}, v{m}, v{t}")

def dump_stamps(a, stamp, cfg, row_sgpr_calc):
    a("s_waitcnt lgkmcnt(0)")
    row_sgpr_calc()
    a(f"s_lshl_b32 s{sT0}, s{sT0}, 6")
    a(f"s_add_u32 s{sT0}, s{sT0}, {OFF_STAMP:#x}")
    for i in range(stamp.n):
        a(f"v_mov_b32 v127, s{stamp.base+2*i}")
        a(f"buffer_store_dword v127, off, s[{sWS}:{sWS+3}], s{sT0} offset:{4*i}")
    a("s_waitcnt vmcnt(0)")
    cfg["stamp_names"] = stamp.names
```

```python
from gen_common import *

def role_wa(a, cfg):
    stamp = Stamps(a, cfg.get("stamp") == "wa", base=4, only=cfg.get("only"))
    W = f"s[{sWS}:{sWS+3}]"
    vL16, vIdx, vF8, vOne, vHw, vHr, vT, vT2 = 1, 2, 3, 4, 5, 6, 7, 8
    vKMw, vVr, vNeg = 9, 10, 11
    Sel16 = 12
    XR = 16
    KA, VA, QA = 40, 56, 72
    PK = 88
    WQ, WK, WV = 128, 256, 384
    sI, sSeg, sXn, sFl, sKVo, sMem, sO, sFlA, sHold, sLds, sPar, sC = 55, 56, 57, 58, 59, 60, 61, 62, 63, 66, 67, 96
    sMask = 76
    XN, HOLD, KM, VM = 0, 0x10000, 0x1C000, 0x1D000
    cvt = lambda d, s: a(f"v_cvt_pk_bf16_f32 v{d}, v{s}, v{s+1}")
    def mfma(d, x, y, c):
        a(f"v_mfma_f32_16x16x32_bf16 {vr(d,4)}, {xr(x,4)}, {xr(y,4)}, {vr(c,4) if c is not None else 0}")
    a.label("L_wa")
    a(f"s_mov_b32 s{sPar}, s{sT3}")
    a("v_and_b32 v0, 63, v0")
    a(f"v_lshlrev_b32 v{vL16}, 4, v0")
    a(f"s_lshl_b32 s{sLds}, s{sWAVE}, 15")
    vD, vTR = 96, 97
    qkv_dma_addr(a, 0, vD, vT, 8192)
    qkv_tr_addr(a, 0, vTR, vT, sLds)
    a(f"s_lshl_b32 s{sT2}, s{sMEMB}, 8")
    a(f"s_lshl_b32 s{sT1}, s{sWAVE}, 6")
    a(f"s_add_u32 s{sT2}, s{sT2}, s{sT1}")
    if cfg.get("wa_delay"): cfg["wa_delay"](a)
    chunks = []
    for ptr, base in ((sWK, WK), (sWV, WV), (sWQ, WQ)):
        for jj in range(8):
            def setup(ptr=ptr, jj=jj):
                if jj == 0: set_srd(a, sWT, ptr, 0x400000)
                a(f"s_add_u32 s{sT0}, s{sT2}, {jj << 19}")
            def consume(so, jj=jj, base=base):
                qkv_tr_reads(a, vTR, so, base + jj * 16, base + jj * 16 + 8)
                a("s_waitcnt lgkmcnt(0)")
            chunks.append(dict(setup=setup, vdma=vD, dstep=4 * 8192, consume=consume))
    load_chunks(a, chunks, sLds)
    wfrag = lambda base, ks, t: base + (ks >> 1) * 16 + t * 8 + (ks & 1) * 4
    smf_index(a, 0, vIdx, 96)
    a(f"v_and_b32 v{vF8}, 7, v0")
    a(f"v_lshlrev_b32 v{vF8}, 2, v{vF8}")
    a(f"v_mov_b32 v{vOne}, 1")
    a(f"v_mov_b32 v{vNeg}, {fbits(-1e9 * 128**0.5):#x}")
    a("v_and_b32 v96, 1, v0")
    a("v_lshlrev_b32 v96, 4, v96")
    a("v_mov_b32 v97, 0x3f80")
    a("v_lshlrev_b32 v96, v96, v97")
    a("v_bfe_u32 v97, v0, 2, 1")
    a("v_bfe_u32 v98, v0, 4, 1")
    a("v_cmp_eq_u32 vcc, v97, v98")
    a("v_cndmask_b32 v96, 0, v96, vcc")
    a("v_bfe_u32 v97, v0, 1, 1")
    for e in range(2):
        a(f"v_cmp_eq_u32 vcc, {e}, v97")
        a(f"v_cndmask_b32 v{Sel16+e}, 0, v96, vcc")
    a(f"s_and_b32 s{sT0}, s{sWAVE}, 1")
    a("v_and_b32 v96, 15, v0")
    a(f"v_lshl_add_u32 v96, v96, 1, s{sT0}")
    a("v_lshrrev_b32 v97, 4, v0")
    a("v_lshlrev_b32 v97, 3, v97")
    for up in range(2):
        for r in range(4):
            a(f"v_add_u32 v98, {2*r+up}, v97")
            a(f"v_cmp_le_u32 s[{sMask+2*(up*4+r)}:{sMask+2*(up*4+r)+1}], v98, v96")
    a(f"s_lshl_b32 s{sT1}, s{sWAVE}, 11")
    a(f"s_add_u32 s{sT1}, s{sT1}, {HOLD}")
    a(f"v_add_u32 v{vHw}, s{sT1}, v{vL16}")
    a(f"s_lshl_b32 s{sT1}, s{sT0}, 10")
    a(f"s_add_u32 s{sT1}, s{sT1}, {HOLD+0x6000}")
    a(f"v_add_u32 v{vHr}, s{sT1}, v{vL16}")
    a(f"s_lshl_b32 s{sT1}, s{sWAVE}, 10")
    a(f"s_add_u32 s{sT1}, s{sT1}, {KM}")
    a(f"v_add_u32 v{vKMw}, s{sT1}, v{vL16}")
    a(f"s_mov_b32 s{sHold}, 0x6000")
    a(f"s_mov_b32 s{sI}, 0")
    a(f"s_lshl_b32 s{sT0}, s{sLAY}, 6")
    a(f"s_add_u32 s{sSeg}, s{sT0}, s{sPar}")
    a(f"s_mov_b32 s{sC}, {fbits(128**-0.5*1.4426950408889634):#x}")
    a(f"s_mov_b32 s{sC+1}, s{sC}")
    if not cfg.get("noinit"): wait_init(a)
    a("s_barrier")
    a.label("L_wa_loop")
    stamp("top")
    a(f"s_cmp_eq_u32 s{sI}, 32")
    a("s_cbranch_scc1 L_wa_noqkv")
    a(f"s_lshl_b32 s{sFl}, s{sSeg}, 11")
    poll_flags(a, vT, vF8, sFl)
    a(f"s_lshl_b32 s{sXn}, s{sSeg}, 15")
    a(f"s_lshl_b32 s{sT0}, s{sWAVE}, 13")
    a(f"s_add_u32 s{sXn}, s{sXn}, s{sT0}")
    a(f"s_add_u32 s{sXn}, s{sXn}, {OFF_XN:#x}")
    a(f"s_mov_b32 m0, s{sT0}")
    for i in range(8):
        if i == 4:
            a(f"s_add_u32 m0, s{sT0}, 4096")
            a(f"s_add_u32 s{sXn}, s{sXn}, 4096")
        a(f"buffer_load_dwordx4 v{vL16}, {W}, s{sXn} offen offset:{(i%4)*1024} sc1 lds")
    a(f"s_lshl_b32 s{sKVo}, s{sSeg}, 19")
    a(f"s_lshl_b32 s{sT0}, s{sMEMB}, 2")
    a(f"s_add_u32 s{sT0}, s{sT0}, s{sWAVE}")
    a(f"s_lshl_b32 s{sT1}, s{sT0}, 12")
    a(f"s_add_u32 s{sKVo}, s{sKVo}, s{sT1}")
    a(f"s_add_u32 s{sKVo}, s{sKVo}, {OFF_KV:#x}")
    a(f"s_lshl_b32 s{sT0}, s{sT0}, 2")
    a(f"s_add_u32 s{sFl}, s{sFl}, s{sT0}")
    a("s_waitcnt vmcnt(0)")
    a("s_barrier")
    stamp("staged")
    def xread(step):
        sl = XR + (step % 3) * 8; ks = step % 16
        a(f"ds_read_b128 {vr(sl,4)}, v{vL16} offset:{XN+ks*2048}")
        a(f"ds_read_b128 {vr(sl+4,4)}, v{vL16} offset:{XN+ks*2048+1024}")
    xread(0); xread(1)
    for ks in range(16):
        sl = XR + (ks % 3) * 8
        nxt = ks + 2
        xread(nxt)
        a("s_waitcnt lgkmcnt(4)")
        c0 = lambda x: None if ks == 0 else x
        for u in range(2):
            for t in range(2):
                mfma(KA + (t * 2 + u) * 4, wfrag(WK, ks, t), sl + 4 * u, c0(KA + (t * 2 + u) * 4))
            for t in range(2):
                mfma(VA + (u * 2 + t) * 4, sl + 4 * u, wfrag(WV, ks, t), c0(VA + (u * 2 + t) * 4))
    side = []
    for u in range(2):
        d = PK + 4 * u
        side += [f"v_cvt_pk_bf16_f32 v{d+2*t+hh}, v{KA+(t*2+u)*4+2*hh}, v{KA+(t*2+u)*4+2*hh+1}" for t in range(2) for hh in range(2)]
        side += [f"buffer_store_dwordx4 {vr(d,4)}, v{vL16}, {W}, s{sKVo} offen offset:{u*1024} sc1"]
    for t in range(2):
        d = PK + 8 + 4 * t
        side += [f"v_cvt_pk_bf16_f32 v{d+2*u+hh}, v{VA+(u*2+t)*4+2*hh}, v{VA+(u*2+t)*4+2*hh+1}" for u in range(2) for hh in range(2)]
        side += [f"buffer_store_dwordx4 {vr(d,4)}, v{vL16}, {W}, s{sKVo} offen offset:{2048+t*1024} sc1"]
    hw = [f"ds_write_b128 v{vHw}, {vr(PK+4*i,4)} offset:{(0x2000 if i < 2 else 0x4000) + (i%2)*1024}" for i in range(4)]
    for ks in range(16):
        k3 = ks + 16
        sl = XR + (k3 % 3) * 8
        if ks + 2 < 16:
            s2 = XR + ((k3 + 2) % 3) * 8
            a(f"ds_read_b128 {vr(s2,4)}, v{vL16} offset:{XN+(ks+2)*2048}")
            a(f"ds_read_b128 {vr(s2+4,4)}, v{vL16} offset:{XN+(ks+2)*2048+1024}")
        a(f"s_waitcnt lgkmcnt({4 if ks < 14 else (2 if ks == 14 else 0)})")
        c0 = lambda x: None if ks == 0 else x
        for u in range(2):
            for t in range(2):
                mfma(QA + (t * 2 + u) * 4, wfrag(WQ, ks, t), sl + 4 * u, c0(QA + (t * 2 + u) * 4))
                if ks >= 1 and side: a(side.pop(0))
        if ks == cfg.get("kvflag_ks", 13):
            a("s_waitcnt vmcnt(0)")
            set_flag(a, vOne, sFl, F_KV)
    for x in hw: a(x)
    for u in range(2):
        d = PK + 16 + 4 * u
        for t in range(2):
            cvt(d + 2 * t, QA + (t * 2 + u) * 4); cvt(d + 2 * t + 1, QA + (t * 2 + u) * 4 + 2)
        a(f"ds_write_b128 v{vHw}, {vr(d,4)} offset:{u*1024}")
    a("s_branch L_wa_qkvdone")
    a.label("L_wa_noqkv")
    a("s_barrier")
    a.label("L_wa_qkvdone")
    stamp("qkv")
    a(f"s_cmp_eq_u32 s{sI}, 0")
    a("s_cbranch_scc1 L_wa_first")
    MA = 16
    km, vm = 48, 56
    a(f"s_sub_u32 s{sT0}, s{sSeg}, 2")
    a(f"s_lshl_b32 s{sMem}, s{sT0}, 13")
    a(f"s_add_u32 s{sMem}, s{sMem}, {OFF_MEM:#x}")
    a(f"s_add_u32 s{sT1}, s{sMem}, 4096")
    a(f"s_lshl_b32 s{sO}, s{sT0}, 18")
    a(f"s_lshl_b32 s{sT2}, s{sMEMB}, 13")
    a(f"s_add_u32 s{sO}, s{sO}, s{sT2}")
    a(f"s_lshr_b32 s{sT2}, s{sWAVE}, 1")
    a(f"s_lshl_b32 s{sT2}, s{sT2}, 12")
    a(f"s_add_u32 s{sO}, s{sO}, s{sT2}")
    a(f"s_and_b32 s{sT2}, s{sWAVE}, 1")
    a(f"s_lshl_b32 s{sT2}, s{sT2}, 10")
    a(f"s_add_u32 s{sO}, s{sO}, s{sT2}")
    a(f"s_add_u32 s{sO}, s{sO}, {OFF_O:#x}")
    a(f"s_lshl_b32 s{sFlA}, s{sT0}, 11")
    a(f"s_lshl_b32 s{sT2}, s{sMEMB}, 2")
    a(f"s_add_u32 s{sT2}, s{sT2}, s{sWAVE}")
    a(f"s_lshl_b32 s{sT2}, s{sT2}, 2")
    a(f"s_add_u32 s{sFlA}, s{sFlA}, s{sT2}")
    spin_init(a)
    a.label("L_wa_mem")
    for jj in range(8):
        a(f"buffer_load_dwordx4 {vr(MA+4*jj,4)}, v{vL16}, {W}, s{sMem if jj < 4 else sT1} offen offset:{(jj%4)*1024} sc1")
    for i in range(8): a(f"v_mov_b64 {vr(km+2*i,2)}, 0")
    spin_tick(a)
    for jj in range(8):
        a(f"s_waitcnt vmcnt({7-jj})")
        r = MA + 4 * jj
        if jj == 0:
            a(f"v_max3_u32 v{vT}, v{r}, v{r+1}, v{r+2}")
            a(f"v_max_u32 v{vT}, v{vT}, v{r+3}")
        else:
            a(f"v_max3_u32 v{vT}, v{vT}, v{r}, v{r+1}")
            a(f"v_max3_u32 v{vT}, v{vT}, v{r+2}, v{r+3}")
    a(f"v_cmp_eq_u32 vcc, -1, v{vT}")
    a("s_cbranch_vccnz L_wa_mem")
    stamp("mem")
    for jj in range(8):
        for t in range(2):
            a(f"v_smfmac_f32_16x16x64_bf16 {vr(km+4*t,4)}, {vr(MA+4*jj,4)}, {xr(WK+jj*16+t*8,8)}, v{vIdx}")
    for jj in range(8):
        for t in range(2):
            a(f"v_smfmac_f32_16x16x64_bf16 {vr(vm+4*t,4)}, {vr(MA+4*jj,4)}, {xr(WV+jj*16+t*8,8)}, v{vIdx}")
        if jj == 1:
            cvt(64, km); cvt(65, km + 2); cvt(66, km + 4); cvt(67, km + 6)
        if jj == 2:
            a(f"v_mfma_f32_16x16x16_bf16 v[68:71], v[64:65], {vr(Sel16,2)}, 0")
            a(f"v_mfma_f32_16x16x16_bf16 v[72:75], v[66:67], {vr(Sel16,2)}, 0")
        if jj == 4:
            cvt(64, 68); cvt(65, 70); cvt(66, 72); cvt(67, 74)
            a(f"ds_write_b128 v{vKMw}, v[64:67]")
    cvt(68, vm); cvt(69, vm + 2); cvt(70, vm + 4); cvt(71, vm + 6)
    a(f"ds_write_b128 v{vKMw}, v[68:71] offset:{VM-KM}")
    a("s_waitcnt lgkmcnt(0)")
    a("s_barrier")
    stamp("kvmem")
    Qf, Kf, Mf = 16, 32, 64
    a(f"s_and_b32 s{sT0}, s{sWAVE}, 1")
    a(f"s_lshl_b32 s{sT0}, s{sT0}, 10")
    a(f"v_subrev_u32 v{vT}, s{sT0}, v{vHr}")
    a(f"v_add_u32 v{vT2}, {KM}, v{vL16}")
    for wp in range(4):
        a(f"ds_read_b128 {vr(Qf+4*wp,4)}, v{vHr} offset:{wp*2048}")
        a(f"ds_read_b128 {vr(Kf+8*wp,4)}, v{vT} offset:{0x2000+wp*2048}")
        a(f"ds_read_b128 {vr(Kf+8*wp+4,4)}, v{vT} offset:{0x2000+wp*2048+1024}")
        if wp < 3: a(f"ds_read_b128 {vr(Mf+4*wp,4)}, v{vT2} offset:{wp*1024}")
    S0, S1, SM_ = 80, 84, 88
    for wp in range(4):
        if wp == 0:
            a("s_waitcnt lgkmcnt(11)")
            a(f"ds_read_b128 {vr(Mf+12,4)}, v{vT2} offset:{3*1024}")
        else:
            a(f"s_waitcnt lgkmcnt({[0,8,4,0][wp]})")
        c0 = lambda x: None if wp == 0 else x
        mfma(S0, Kf + 8 * wp, Qf + 4 * wp, c0(S0))
        mfma(S1, Kf + 8 * wp + 4, Qf + 4 * wp, c0(S1))
        mfma(SM_, Mf + 4 * wp, Qf + 4 * wp, c0(SM_))
    Vf, VMf = 16, 32
    a(f"s_lshr_b32 s{sT0}, s{sWAVE}, 1")
    a(f"s_lshl_b32 s{sT1}, s{sT0}, 12")
    a(f"v_add_u32 v{vT}, s{sT1}, v{vT}")
    a(f"s_lshl_b32 s{sT1}, s{sT0}, 11")
    a(f"v_add_u32 v{vT2}, s{sT1}, v{vT2}")
    for i in range(4):
        a(f"ds_read_b128 {vr(Vf+4*i,4)}, v{vT} offset:{0x4000+i*1024}")
    for i in range(2):
        a(f"ds_read_b128 {vr(VMf+4*i,4)}, v{vT2} offset:{VM-KM+i*1024}")
    for up in range(2):
        for r in range(4):
            x = (S0, S1)[up] + r
            a(f"v_cndmask_b32 v{x}, v{vNeg}, v{x}, s[{sMask+2*(up*4+r)}:{sMask+2*(up*4+r)+1}]")
    m, t = 92, 93
    a(f"v_max3_f32 v{m}, v80, v81, v82")
    for i in range(83, 91, 2):
        a(f"v_max3_f32 v{m}, v{m}, v{i}, v{i+1}")
    a(f"v_max_f32 v{m}, v{m}, v91")
    xlane_g(a, "v_max_f32", m, t)
    a(f"v_mul_f32 v{m}, s{sC}, v{m}")
    for i in range(0, 12, 2):
        a(f"v_pk_fma_f32 {vr(80+i,2)}, {vr(80+i,2)}, s[{sC}:{sC+1}], {vr(m,2)} op_sel_hi:[1,1,0] neg_lo:[0,0,1] neg_hi:[0,0,1]")
    for i in range(12):
        a(f"v_exp_f32 v{80+i}, v{80+i}")
    Bx, Pm = 96, 100
    for i in range(6): cvt(Bx + i, 80 + 2 * i)
    OA = 48
    a("s_waitcnt lgkmcnt(0)")
    sumops = [f"v_pk_add_f32 v[80:81], v[80:81], v[82:83]", f"v_pk_add_f32 v[84:85], v[84:85], v[86:87]",
              f"v_pk_add_f32 v[88:89], v[88:89], v[90:91]", f"v_pk_add_f32 v[80:81], v[80:81], v[84:85]",
              f"v_add_f32 v88, v88, v89", f"v_add_f32 v80, v80, v81", f"v_fmac_f32 v80, 0.5, v88"]
    for i in range(4):
        mfma(OA + 4 * i, Vf + 4 * i, Bx, None)
        if sumops: a(sumops.pop(0))
        if sumops: a(sumops.pop(0))
    for i in range(4):
        a(f"v_mfma_f32_16x16x16_bf16 {vr(OA+4*i,4)}, {vr(VMf+2*i,2)}, {vr(Pm,2)}, {vr(OA+4*i,4)}")
    xlane_g(a, "v_add_f32", 80, 81)
    a("v_rcp_f32 v80, v80")
    for i in range(8):
        a(f"v_pk_mul_f32 {vr(OA+2*i,2)}, {vr(OA+2*i,2)}, v[80:81] op_sel_hi:[1,0]")
    for i in range(8): cvt(64 + i, OA + 2 * i)
    a(f"buffer_store_dwordx4 v[64:67], v{vL16}, {W}, s{sO} offen sc1")
    a(f"buffer_store_dwordx4 v[68:71], v{vL16}, {W}, s{sO} offen offset:2048 sc1")
    a("s_waitcnt vmcnt(0)")
    set_flag(a, vOne, sFlA, F_O)
    a("s_branch L_wa_next")
    a.label("L_wa_first")
    a("s_waitcnt lgkmcnt(0)")
    a("s_barrier")
    a.label("L_wa_next")
    stamp("attn")
    if stamp.on:
        lab = a.newlab("L_nost")
        a(f"s_cmp_lg_u32 s{sI}, {cfg.get('stamp_step', 20)}")
        a(f"s_cbranch_scc1 {lab}")
        def row():
            a(f"s_lshl_b32 s{sT0}, s{sGRP}, 7")
            a(f"s_lshl_b32 s{sT1}, s{sMEMB}, 2")
            a(f"s_add_u32 s{sT0}, s{sT0}, s{sT1}")
            a(f"s_add_u32 s{sT0}, s{sT0}, s{sWAVE}")
        dump_stamps(a, stamp, cfg, row)
        a.label(lab)
    a(f"v_add_u32 v{vHw}, s{sHold}, v{vHw}")
    a(f"v_subrev_u32 v{vHr}, s{sHold}, v{vHr}")
    a(f"s_sub_u32 s{sHold}, 0, s{sHold}")
    a(f"s_add_u32 s{sSeg}, s{sSeg}, 2")
    a(f"s_add_u32 s{sI}, s{sI}, 1")
    a(f"s_cmp_le_u32 s{sI}, 32")
    a("s_cbranch_scc1 L_wa_loop")
    a("s_waitcnt vmcnt(0)")
    a("s_branch L_exit")
```

```python
from gen_common import *

W = f"s[{sWS}:{sWS+3}]"
vL16, vT, vT2, vFo, vOne, vRd = 1, 2, 3, 4, 5, 6
sSeg, sEnd, sFl, sSrc, sDst, sBuf, sLds, sC = 55, 56, 57, 58, 59, 60, 66, 96

def cvt(a, d, s): a(f"v_cvt_pk_bf16_f32 v{d}, v{s}, v{s+1}")
def mfma(a, d, x, y, c):
    a(f"v_mfma_f32_16x16x32_bf16 {vr(d,4)}, {xr(x,4)}, {xr(y,4)}, {vr(c,4) if c is not None else 0}")

def common_start(a):
    a("v_and_b32 v0, 63, v0")
    a(f"v_lshlrev_b32 v{vL16}, 4, v0")
    a(f"s_lshl_b32 s{sLds}, s{sWAVE}, 15")
    a(f"v_mov_b32 v{vOne}, 1")
    a(f"s_lshl_b32 s{sSeg}, s{sLAY}, 6")
    a(f"s_add_u32 s{sEnd}, s{sSeg}, 64")

def both_modes(a, name, body, cfg):
    if not cfg.get("noinit"): wait_init(a)
    a("s_barrier")
    if cfg.get("force_global"):
        a(f"s_branch L_{name}_G")
    else:
        a(f"s_cmp_eq_u32 s{sLOCAL}, 0")
        a(f"s_cbranch_scc1 L_{name}_G")
    for tag, st in (("L", ""), ("G", " sc1")):
        stamp = Stamps(a, cfg.get("stamp") == name and tag == "L", base=4, only=cfg.get("only"))
        a.label(f"L_{name}_{tag}")
        stamp("top")
        a(f"s_lshl_b32 s{sFl}, s{sSeg}, 11")
        body(st, stamp)
        stamp("end")
        if stamp.on:
            lab = a.newlab("L_nost")
            a(f"s_and_b32 s{sT0}, s{sSeg}, 63")
            a(f"s_cmp_lg_u32 s{sT0}, {cfg.get('stamp_step', 20)}")
            a(f"s_cbranch_scc1 {lab}")
            def row():
                a(f"s_lshl_b32 s{sT0}, s{sGRP}, 7")
                a(f"s_lshl_b32 s{sT1}, s{sMEMB}, 2")
                a(f"s_add_u32 s{sT0}, s{sT0}, s{sT1}")
                a(f"s_add_u32 s{sT0}, s{sT0}, s{sWAVE}")
            dump_stamps(a, stamp, cfg, row)
            a.label(lab)
        a(f"s_add_u32 s{sSeg}, s{sSeg}, 1")
        a(f"s_cmp_lt_u32 s{sSeg}, s{sEnd}")
        a(f"s_cbranch_scc1 L_{name}_{tag}")
        a("s_waitcnt vmcnt(0)")
        a("s_branch L_exit")

def stage_issue(a, npiece, phase_bytes):
    a(f"s_mul_i32 s{sT0}, s{sWAVE}, {npiece*1024}")
    a(f"s_add_u32 s{sT1}, s{sSrc}, s{sT0}")
    a(f"s_add_u32 s{sT0}, s{sBuf}, s{sT0}")
    for ph in range(4):
        a(f"s_add_u32 m0, s{sT0}, {ph*phase_bytes}")
        if ph: a(f"s_add_u32 s{sT1}, s{sT1}, {phase_bytes}")
        for i in range(npiece):
            a(f"buffer_load_dwordx4 v{vL16}, {W}, s{sT1} offen offset:{i*1024} sc1 lds")

def gemm_phases(a, nks, npiece, extra_vm, rdoffs, ring, step):
    per = nks // 4
    for ph in range(4):
        a(f"s_waitcnt vmcnt({npiece*(3-ph)+extra_vm})")
        a("s_barrier")
        def rd(ks):
            sl = ring + (ks % 3) * 8
            for u in range(2):
                a(f"ds_read_b128 {vr(sl+4*u,4)}, v{vRd} offset:{rdoffs(ks,u)}")
        k0 = ph * per
        rd(k0); rd(k0 + 1)
        for ks in range(k0, k0 + per):
            left = k0 + per - 1 - ks
            if left >= 2: rd(ks + 2)
            a(f"s_waitcnt lgkmcnt({4 if left >= 2 else 2*left})")
            step(ks, ring + (ks % 3) * 8)

def natural_dma64(a, vdst, rowbytes):
    a(f"v_lshrrev_b32 v{vdst}, 2, v0")
    a(f"v_mul_u32_u24 v{vdst}, {rowbytes}, v{vdst}")
    a(f"v_and_b32 v{vT}, 3, v0")
    a(f"v_lshl_add_u32 v{vdst}, v{vT}, 4, v{vdst}")

def img_rd_addr(a, vdst):
    a(f"v_lshrrev_b32 v{vT}, 4, v0")
    a(f"v_lshlrev_b32 v{vT}, 9, v{vT}")
    a(f"v_and_b32 v{vdst}, 15, v0")
    a(f"v_lshl_add_u32 v{vdst}, v{vdst}, 4, v{vT}")

def role_ra(a, cfg):
    WT = 256
    vD, vTR, vSt = 96, 97, 7
    sKs, sNs = 61, 62
    a.label("L_ra")
    common_start(a)
    a(f"s_lshr_b32 s{sKs}, s{sMEMB}, 2")
    a(f"s_and_b32 s{sNs}, s{sMEMB}, 3")
    natural_dma64(a, vD, 1024)
    a(f"v_lshrrev_b32 v{vT}, 2, v0")
    a(f"v_lshlrev_b32 v{vTR}, 6, v{vT}")
    a(f"v_and_b32 v{vT}, 3, v0")
    a(f"v_lshl_add_u32 v{vTR}, v{vT}, 4, v{vTR}")
    a(f"v_add_u32 v{vTR}, s{sLds}, v{vTR}")
    a(f"s_lshl_b32 s{sT2}, s{sKs}, 20")
    a(f"s_lshl_b32 s{sT1}, s{sNs}, 8")
    a(f"s_add_u32 s{sT2}, s{sT2}, s{sT1}")
    a(f"s_lshl_b32 s{sT1}, s{sWAVE}, 6")
    a(f"s_add_u32 s{sT2}, s{sT2}, s{sT1}")
    set_srd(a, sWT, sWO, 0x400000)
    if cfg.get("wo_delay"): cfg["wo_delay"](a)
    chunks = []
    for ch in range(16):
        def setup(ch=ch): a(f"s_add_u32 s{sT0}, s{sT2}, {ch*65536}")
        def consume(so, ch=ch):
            for e in range(2):
                for t in range(2):
                    for jh in range(2):
                        a(f"ds_read_b64_tr_b16 {xr(WT+((2*ch+e)*2+t)*4+2*jh,2)}, v{vTR} offset:{so+(32*e+16*jh)*64+8*t}")
            a("s_waitcnt lgkmcnt(0)")
        chunks.append(dict(setup=setup, vdma=vD, dstep=16384, consume=consume))
    load_chunks(a, chunks, sLds)
    a(f"v_and_b32 v{vFo}, 31, v0")
    a(f"v_lshlrev_b32 v{vFo}, 2, v{vFo}")
    a(f"s_lshl_b32 s{sT0}, s{sKs}, 7")
    a(f"s_add_u32 s{sT0}, s{sT0}, {F_O}")
    a(f"v_add_u32 v{vFo}, s{sT0}, v{vFo}")
    img_rd_addr(a, vSt)
    a(f"s_lshl_b32 s{sT0}, s{sNs}, 13")
    a(f"s_lshl_b32 s{sT1}, s{sWAVE}, 11")
    a(f"s_add_u32 s{sT0}, s{sT0}, s{sT1}")
    a(f"s_lshl_b32 s{sT1}, s{sKs}, 15")
    a(f"s_add_u32 s{sT0}, s{sT0}, s{sT1}")
    a(f"v_add_u32 v{vSt}, s{sT0}, v{vSt}")
    a(f"s_mov_b32 s{sBuf}, 0")
    ACC, RING = 16, 32
    def body(st, stamp):
        poll_flags(a, vT, vFo, sFl)
        stamp("flag")
        a(f"s_lshl_b32 s{sSrc}, s{sSeg}, 18")
        a(f"s_lshl_b32 s{sT0}, s{sKs}, 16")
        a(f"s_add_u32 s{sSrc}, s{sSrc}, s{sT0}")
        a(f"s_add_u32 s{sSrc}, s{sSrc}, {OFF_O:#x}")
        stage_issue(a, 4, 16384)
        a(f"v_add_u32 v{vRd}, s{sBuf}, v{vL16}")
        a(f"s_xor_b32 s{sBuf}, s{sBuf}, 0x10000")
        a(f"s_lshl_b32 s{sDst}, s{sSeg}, 17")
        a(f"s_add_u32 s{sDst}, s{sDst}, {OFF_PART:#x}")
        a(f"s_lshl_b32 s{sT0}, s{sMEMB}, 2")
        a(f"s_add_u32 s{sT0}, s{sT0}, s{sWAVE}")
        a(f"s_lshl_b32 s{sT0}, s{sT0}, 2")
        a(f"s_add_u32 s{sFl}, s{sFl}, s{sT0}")
        def step(ks, fr):
            for u in range(2):
                for t in range(2):
                    acc = ACC + (u * 2 + t) * 4
                    mfma(a, acc, WT + (ks * 2 + t) * 4, fr + 4 * u, None if ks == 0 else acc)
        gemm_phases(a, 32, 4, 0, lambda ks, u: ks * 2048 + u * 1024, RING, step)
        stamp("gemm")
        for u in range(2):
            for i in range(4): cvt(a, 56 + 4 * u + i, ACC + u * 8 + 2 * i)
            a(f"buffer_store_dwordx4 {vr(56+4*u,4)}, v{vSt}, {W}, s{sDst} offen offset:{u*256}{st}")
        a("s_waitcnt vmcnt(0)")
        set_flag(a, vOne, sFl, F_PART, st)
    both_modes(a, "ra", body, cfg)

def role_rc(a, cfg):
    WT = 256
    vD, vTR, vNeg, vRb = 96, 97, 7, 8
    sHb, sMask, sPrevOK = 61, 76, 62
    a.label("L_rc")
    common_start(a)
    a(f"s_sub_u32 s{sHb}, s{sMEMB}, 16")
    a(f"s_lshl_b32 s{sHb}, s{sHb}, 2")
    a(f"s_add_u32 s{sHb}, s{sHb}, s{sWAVE}")
    a(f"v_lshrrev_b32 v{vD}, 1, v0")
    a(f"v_mul_u32_u24 v{vD}, 3072, v{vD}")
    a(f"v_and_b32 v{vT}, 1, v0")
    a(f"v_lshl_add_u32 v{vD}, v{vT}, 4, v{vD}")
    a(f"v_lshrrev_b32 v{vT}, 4, v0")
    a(f"v_lshlrev_b32 v{vTR}, 8, v{vT}")
    a(f"v_bfe_u32 v{vT}, v0, 2, 2")
    a(f"v_lshl_add_u32 v{vTR}, v{vT}, 5, v{vTR}")
    a(f"v_and_b32 v{vT}, 3, v0")
    a(f"v_lshl_add_u32 v{vTR}, v{vT}, 3, v{vTR}")
    a(f"v_add_u32 v{vTR}, s{sLds}, v{vTR}")
    a(f"s_lshl_b32 s{sT2}, s{sHb}, 5")
    set_srd(a, sWT, sWB, 512 * 3072)
    if cfg.get("wo_delay"): cfg["wo_delay"](a)
    chunks = []
    for mm in range(3):
        for ch in range(4):
            def setup(mm=mm, ch=ch): a(f"s_add_u32 s{sT0}, s{sT2}, {128*ch*3072 + mm*1024}")
            def consume(so, mm=mm, ch=ch):
                for e in range(4):
                    for jh in range(2):
                        a(f"ds_read_b64_tr_b16 {xr(WT+((4*ch+e)*3+mm)*4+2*jh,2)}, v{vTR} offset:{so+(32*e+4*jh)*32}")
                a("s_waitcnt lgkmcnt(0)")
            chunks.append(dict(setup=setup, vdma=vD, dstep=32 * 3072, consume=consume))
    load_chunks(a, chunks, sLds)
    a(f"v_and_b32 v{vFo}, 7, v0")
    a(f"v_lshlrev_b32 v{vFo}, 2, v{vFo}")
    a(f"v_add_u32 v{vFo}, {F_XNB}, v{vFo}")
    img_rd_addr(a, vRb)
    a(f"v_mov_b32 v{vNeg}, {fbits(-1e9 * 4):#x}")
    a(f"s_mov_b32 s{sC}, {fbits(0.25*1.4426950408889634):#x}")
    a(f"s_mov_b32 s{sC+1}, s{sC}")
    a("v_and_b32 v96, 15, v0")
    a("v_lshrrev_b32 v97, 4, v0")
    a("v_lshlrev_b32 v97, 2, v97")
    for r in range(4):
        a(f"v_add_u32 v98, {r}, v97")
        a(f"v_add_u32 v99, 9, v96")
        a(f"v_cmp_ge_u32 s[{sMask+2*r}:{sMask+2*r+1}], v98, v99")
        a(f"v_sub_u32 v99, v96, v98")
        a(f"v_cmp_ge_u32 s[{sMask+8+2*r}:{sMask+8+2*r+1}], 7, v99")
    KP, VP = (16, 20), (24, 28)
    for r in range(16, 32): a(f"v_mov_b32 v{r}, 0")
    a(f"s_mov_b32 s{sBuf}, 0")
    a(f"s_mov_b64 s[{sPrevOK}:{sPrevOK+1}], 0")
    RING, ACC = 32, 56
    def body(st, stamp):
        poll_flags(a, vT, vFo, sFl)
        stamp("flag")
        a(f"s_lshl_b32 s{sSrc}, s{sSeg}, 15")
        a(f"s_add_u32 s{sDst}, s{sSrc}, {OFF_OB:#x}")
        a(f"s_add_u32 s{sSrc}, s{sSrc}, {OFF_XNB:#x}")
        stage_issue(a, 2, 8192)
        a(f"v_add_u32 v{vRd}, s{sBuf}, v{vRb}")
        a(f"s_xor_b32 s{sBuf}, s{sBuf}, 0x8000")
        a(f"s_lshl_b32 s{sT0}, s{sHb}, 10")
        a(f"s_add_u32 s{sDst}, s{sDst}, s{sT0}")
        a(f"s_lshl_b32 s{sT0}, s{sHb}, 2")
        a(f"s_add_u32 s{sFl}, s{sFl}, s{sT0}")
        acc = lambda mm, p: ACC + (p * 3 + mm) * 4
        def step(ks, fr):
            for p in range(2):
                c = lambda x: None if ks == 0 else x
                mfma(a, acc(0, p), WT + (ks * 3) * 4, fr + 4 * p, c(acc(0, p)))
                mfma(a, acc(1, p), WT + (ks * 3 + 1) * 4, fr + 4 * p, c(acc(1, p)))
                mfma(a, acc(2, p), fr + 4 * p, WT + (ks * 3 + 2) * 4, c(acc(2, p)))
        gemm_phases(a, 16, 2, 0, lambda ks, u: ks * 2048 + u * 256, RING, step)
        stamp("gemm")
        Q = (80, 82); S = (32, 40); B = (84, 88); O = (48, 52); M = (92, 94)
        for p in range(2):
            cvt(a, Q[p], acc(0, p)); cvt(a, Q[p] + 1, acc(0, p) + 2)
            cvt(a, KP[p] + 2, acc(1, p)); cvt(a, KP[p] + 3, acc(1, p) + 2)
            cvt(a, VP[p] + 2, acc(2, p)); cvt(a, VP[p] + 3, acc(2, p) + 2)
        for p in range(2):
            a(f"v_mfma_f32_16x16x16_bf16 {vr(S[p],4)}, {vr(KP[p],2)}, {vr(Q[p],2)}, 0")
            a(f"v_mfma_f32_16x16x16_bf16 {vr(S[p]+4,4)}, {vr(KP[p]+2,2)}, {vr(Q[p],2)}, 0")
        for r in range(4):
            a(f"s_and_b64 s[{98}:{99}], s[{sMask+2*r}:{sMask+2*r+1}], s[{sPrevOK}:{sPrevOK+1}]")
            for p in range(2):
                a(f"v_cndmask_b32 v{S[p]+r}, v{vNeg}, v{S[p]+r}, s[98:99]")
        for r in range(4):
            for p in range(2):
                a(f"v_cndmask_b32 v{S[p]+4+r}, v{vNeg}, v{S[p]+4+r}, s[{sMask+8+2*r}:{sMask+8+2*r+1}]")
        a(f"s_mov_b64 s[{sPrevOK}:{sPrevOK+1}], -1")
        def both(f):
            for p in range(2): f(p)
        both(lambda p: a(f"v_max3_f32 v{M[p]}, v{S[p]}, v{S[p]+1}, v{S[p]+2}"))
        both(lambda p: a(f"v_max3_f32 v{M[p]}, v{M[p]}, v{S[p]+3}, v{S[p]+4}"))
        both(lambda p: a(f"v_max3_f32 v{M[p]}, v{M[p]}, v{S[p]+5}, v{S[p]+6}"))
        both(lambda p: a(f"v_max_f32 v{M[p]}, v{M[p]}, v{S[p]+7}"))
        def xl(op):
            for sw in ("v_permlane16_swap_b32", "v_permlane32_swap_b32"):
                both(lambda p: a(f"v_mov_b32 v{M[p]+1}, v{M[p]}"))
                both(lambda p: a(f"{sw} v{M[p]}, v{M[p]+1}"))
                both(lambda p: a(f"{op} v{M[p]}, v{M[p]}, v{M[p]+1}"))
        xl("v_max_f32")
        both(lambda p: a(f"v_mul_f32 v{M[p]}, s{sC}, v{M[p]}"))
        for p in range(2):
            for i in range(0, 8, 2):
                a(f"v_pk_fma_f32 {vr(S[p]+i,2)}, {vr(S[p]+i,2)}, s[{sC}:{sC+1}], {vr(M[p],2)} op_sel_hi:[1,1,0] neg_lo:[0,0,1] neg_hi:[0,0,1]")
        for p in range(2):
            for i in range(8): a(f"v_exp_f32 v{S[p]+i}, v{S[p]+i}")
        for p in range(2):
            for i in range(4): cvt(a, B[p] + i, S[p] + 2 * i)
        for p in range(2):
            a(f"v_pk_add_f32 {vr(S[p],2)}, {vr(S[p],2)}, {vr(S[p]+2,2)}")
            a(f"v_pk_add_f32 {vr(S[p]+4,2)}, {vr(S[p]+4,2)}, {vr(S[p]+6,2)}")
            mfma(a, O[p], VP[p], B[p], None)
        both(lambda p: a(f"v_pk_add_f32 {vr(S[p],2)}, {vr(S[p],2)}, {vr(S[p]+4,2)}"))
        both(lambda p: a(f"v_add_f32 v{M[p]}, v{S[p]}, v{S[p]+1}"))
        xl("v_add_f32")
        both(lambda p: a(f"v_rcp_f32 v{M[p]}, v{M[p]}"))
        for p in range(2):
            a(f"v_mov_b64 {vr(KP[p],2)}, {vr(KP[p]+2,2)}")
            a(f"v_mov_b64 {vr(VP[p],2)}, {vr(VP[p]+2,2)}")
        for p in range(2):
            a(f"v_pk_mul_f32 {vr(O[p],2)}, {vr(O[p],2)}, {vr(M[p],2)} op_sel_hi:[1,0]")
            a(f"v_pk_mul_f32 {vr(O[p]+2,2)}, {vr(O[p]+2,2)}, {vr(M[p],2)} op_sel_hi:[1,0]")
        for p in range(2):
            cvt(a, 80 + 2 * p, O[p]); cvt(a, 81 + 2 * p, O[p] + 2)
        a("v_permlane16_swap_b32 v80, v82")
        a("v_permlane16_swap_b32 v81, v83")
        a(f"buffer_store_dwordx4 v[80:83], v{vL16}, {W}, s{sDst} offen{st}")
        stamp("attn")
        a("s_waitcnt vmcnt(0)")
        set_flag(a, vOne, sFl, F_OB, st)
    both_modes(a, "rc", body, cfg)

def role_rd(a, cfg):
    WT = 256
    vD, vTR, vRb, vX1, vSt0, vSt1 = 96, 97, 8, 9, 10, 11
    sMd, sOb = 61, 62
    a.label("L_rd")
    common_start(a)
    a(f"s_sub_u32 s{sMd}, s{sMEMB}, 24")
    a(f"s_lshl_b32 s{sMd}, s{sMd}, 2")
    a(f"s_add_u32 s{sMd}, s{sMd}, s{sWAVE}")
    natural_dma64(a, vD, 1024)
    a(f"v_lshrrev_b32 v{vT}, 4, v0")
    a(f"v_lshlrev_b32 v{vTR}, 9, v{vT}")
    a(f"v_bfe_u32 v{vT}, v0, 2, 2")
    a(f"v_lshl_add_u32 v{vTR}, v{vT}, 6, v{vTR}")
    a(f"v_and_b32 v{vT}, 3, v0")
    a(f"v_lshl_add_u32 v{vTR}, v{vT}, 4, v{vTR}")
    a(f"v_add_u32 v{vTR}, s{sLds}, v{vTR}")
    a(f"s_lshl_b32 s{sT2}, s{sMd}, 6")
    set_srd(a, sWT, sWBO, 0x80000)
    if cfg.get("wo_delay"): cfg["wo_delay"](a)
    chunks = []
    for ch in range(8):
        def setup(ch=ch): a(f"s_add_u32 s{sT0}, s{sT2}, {ch*65536}")
        def consume(so, ch=ch):
            for e in range(2):
                for t in range(2):
                    for jh in range(2):
                        a(f"ds_read_b64_tr_b16 {xr(WT+((2*ch+e)*2+t)*4+2*jh,2)}, v{vTR} offset:{so+(32*e+4*jh)*64+8*t}")
            a("s_waitcnt lgkmcnt(0)")
        chunks.append(dict(setup=setup, vdma=vD, dstep=16384, consume=consume))
    load_chunks(a, chunks, sLds)
    a(f"v_and_b32 v{vFo}, 31, v0")
    a(f"v_lshlrev_b32 v{vFo}, 2, v{vFo}")
    a(f"v_add_u32 v{vFo}, {F_OB}, v{vFo}")
    img_rd_addr(a, vRb)
    a(f"s_lshl_b32 s{sT0}, s{sMd}, 11")
    a(f"v_add_u32 v{vX1}, s{sT0}, v{vRb}")
    a(f"s_cmp_eq_u32 s{sLAY}, 0")
    a("s_cbranch_scc1 L_rd_l0")
    set_srd(a, sIN, sOUT, 0x200000)
    a(f"s_mov_b32 s{sOb}, 0")
    a(f"v_and_b32 v{vT}, 15, v0")
    a(f"v_lshlrev_b32 v{vSt0}, 11, v{vT}")
    a(f"v_lshrrev_b32 v{vT}, 4, v0")
    a(f"v_lshl_add_u32 v{vSt0}, v{vT}, 4, v{vSt0}")
    a(f"s_lshl_b32 s{sT0}, s{sMd}, 6")
    a(f"v_add_u32 v{vSt0}, s{sT0}, v{vSt0}")
    a(f"v_add_u32 v{vSt1}, 1024, v{vSt0}")
    a("s_branch L_rd_go")
    a.label("L_rd_l0")
    set_srd(a, sIN, sWSP, WS_BYTES)
    a(f"s_mov_b32 s{sOb}, {OFF_X2R:#x}")
    a(f"v_mov_b32 v{vSt0}, v{vX1}")
    a(f"v_add_u32 v{vSt1}, 256, v{vX1}")
    a.label("L_rd_go")
    a(f"s_mov_b32 s{sBuf}, 0")
    ACC, RING, XR = 16, 32, 56
    def body(st, stamp):
        poll_flags(a, vT, vFo, sFl)
        stamp("flag")
        a(f"s_lshl_b32 s{sT2}, s{sSeg}, 15")
        a(f"s_add_u32 s{sSrc}, s{sT2}, {OFF_OB:#x}")
        stage_issue(a, 2, 8192)
        a(f"s_add_u32 s{sT2}, s{sT2}, {OFF_X1B:#x}")
        for u in range(2):
            a(f"buffer_load_dwordx4 {vr(XR+4*u,4)}, v{vX1}, {W}, s{sT2} offen offset:{u*256} sc1")
        a(f"v_add_u32 v{vRd}, s{sBuf}, v{vRb}")
        a(f"s_xor_b32 s{sBuf}, s{sBuf}, 0x8000")
        a(f"s_and_b32 s{sDst}, s{sSeg}, 63")
        a(f"s_lshl_b32 s{sDst}, s{sDst}, 15")
        a(f"s_add_u32 s{sDst}, s{sDst}, s{sOb}")
        a(f"s_lshl_b32 s{sT0}, s{sMd}, 2")
        a(f"s_add_u32 s{sFl}, s{sFl}, s{sT0}")
        def step(ks, fr):
            for u in range(2):
                for t in range(2):
                    acc = ACC + (u * 2 + t) * 4
                    mfma(a, acc, WT + (ks * 2 + t) * 4, fr + 4 * u, None if ks == 0 else acc)
        gemm_phases(a, 16, 2, 2, lambda ks, u: ks * 2048 + u * 256, RING, step)
        stamp("gemm")
        a("s_waitcnt vmcnt(0)")
        for i in range(8):
            a(f"v_lshlrev_b32 v{64+2*i}, 16, v{XR+i}")
            a(f"v_and_b32 v{65+2*i}, 0xffff0000, v{XR+i}")
        for i in range(8):
            cvt(a, 80 + i, ACC + 2 * i)
        for i in range(8):
            a(f"v_lshlrev_b32 v{ACC+2*i}, 16, v{80+i}")
            a(f"v_and_b32 v{ACC+2*i+1}, 0xffff0000, v{80+i}")
        for i in range(8):
            a(f"v_pk_add_f32 {vr(ACC+2*i,2)}, {vr(ACC+2*i,2)}, {vr(64+2*i,2)}")
        for u in range(2):
            for i in range(4): cvt(a, 80 + 4 * u + i, ACC + 8 * u + 2 * i)
            a(f"buffer_store_dwordx4 {vr(80+4*u,4)}, v{(vSt0, vSt1)[u]}, s[{sIN}:{sIN+3}], s{sDst} offen sc1")
        a("s_waitcnt vmcnt(0)")
        set_flag(a, vOne, sFl, F_X2, st)
    both_modes(a, "rd", body, cfg)

def row_reduce(a, r, t):
    a(f"v_add_f32_dpp v{r}, v{r}, v{r} row_ror:4 row_mask:0xf bank_mask:0xf")
    a(f"v_add_f32_dpp v{r}, v{r}, v{r} row_ror:8 row_mask:0xf bank_mask:0xf")
    xlane_g(a, "v_add_f32", r, t)

def rnd_bf16(a, r):
    a(f"v_cvt_pk_bf16_f32 v{r}, v{r}, v{r}")
    a(f"v_and_b32 v{r}, 0xffff0000, v{r}")

def layernorm(a, X, T):
    m, t, s = T + 32, T + 33, T + 34
    a(f"v_pk_add_f32 {vr(T,2)}, {vr(X,2)}, {vr(X+2,2)}")
    a(f"v_pk_add_f32 {vr(T+2,2)}, {vr(X+4,2)}, {vr(X+6,2)}")
    for i in range(8, 32, 4):
        a(f"v_pk_add_f32 {vr(T,2)}, {vr(T,2)}, {vr(X+i,2)}")
        a(f"v_pk_add_f32 {vr(T+2,2)}, {vr(T+2,2)}, {vr(X+i+2,2)}")
    a(f"v_pk_add_f32 {vr(T,2)}, {vr(T,2)}, {vr(T+2,2)}")
    a(f"v_add_f32 v{m}, v{T}, v{T+1}")
    row_reduce(a, m, t)
    a(f"v_mul_f32 v{m}, {fbits(1/512):#x}, v{m}")
    for i in range(0, 32, 2):
        a(f"v_pk_add_f32 {vr(T+i,2)}, {vr(X+i,2)}, {vr(m,2)} op_sel_hi:[1,0] neg_lo:[0,1] neg_hi:[0,1]")
    a(f"v_pk_mul_f32 {vr(s,2)}, {vr(T,2)}, {vr(T,2)}")
    for i in range(2, 32, 2):
        a(f"v_pk_fma_f32 {vr(s,2)}, {vr(T+i,2)}, {vr(T+i,2)}, {vr(s,2)}")
    a(f"v_add_f32 v{s}, v{s}, v{s+1}")
    row_reduce(a, s, t)
    a(f"v_mul_f32 v{s}, {fbits(1/512):#x}, v{s}")
    rnd_bf16(a, m)
    rnd_bf16(a, s)
    a(f"v_add_f32 v{s}, {fbits(1e-5):#x}, v{s}")
    rnd_bf16(a, s)
    a(f"v_sqrt_f32 v{s}, v{s}")
    rnd_bf16(a, s)
    a(f"v_rcp_f32 v{s}, v{s}")
    a(f"v_mul_f32 v{m}, v{m}, v{s}")
    for i in range(0, 32, 2):
        a(f"v_pk_fma_f32 {vr(X+i,2)}, {vr(X+i,2)}, {vr(s,2)}, {vr(m,2)} op_sel_hi:[1,0,0] neg_lo:[0,0,1] neg_hi:[0,0,1]")

def unpack(a, dst, src, n):
    for i in range(n):
        a(f"v_lshlrev_b32 v{dst+2*i}, 16, v{src+i}")
        a(f"v_and_b32 v{dst+2*i+1}, 0xffff0000, v{src+i}")

def role_rows(a, cfg):
    sWb, sIb, sLo = 61, 62, 63
    vA = 8
    vP = 12
    a.label("L_rows")
    common_start(a)
    a("s_waitcnt vmcnt(0)")
    signal_init(a)
    a(f"s_sub_u32 s{sWb}, s{sMEMB}, 28")
    a(f"s_lshl_b32 s{sWb}, s{sWb}, 1")
    a(f"s_and_b32 s{sT0}, s{sWAVE}, 1")
    a(f"s_add_u32 s{sWb}, s{sWb}, s{sT0}")
    c_, gi = 96, 97
    a(f"s_lshr_b32 s{sT1}, s{sWb}, 1")
    a(f"s_lshl_b32 s{sT1}, s{sT1}, 2")
    a(f"v_and_b32 v{c_}, 3, v0")
    a(f"v_add_u32 v{c_}, s{sT1}, v{c_}")
    a(f"v_lshrrev_b32 v{gi}, 2, v0")
    a(f"s_lshl_b32 s{sT1}, s{sT0}, 8")
    a(f"v_lshl_add_u32 v98, v{c_}, 4, s{sT1}")
    a(f"s_lshl_b32 s{sT1}, s{sT0}, 10")
    a(f"v_lshl_add_u32 v99, v{c_}, 11, s{sT1}")
    a(f"s_cmp_ge_u32 s{sWAVE}, 2")
    a("s_cbranch_scc1 L_re")
    a(f"v_lshl_add_u32 v{vP}, v{gi}, 9, v98")
    a(f"v_lshlrev_b32 v{vFo}, 2, v0")
    a(f"v_add_u32 v{vFo}, {F_PART}, v{vFo}")
    a(f"s_cmp_eq_u32 s{sLAY}, 0")
    a("s_cbranch_scc1 L_rb_l0")
    set_srd(a, sIN, sWSP, WS_BYTES)
    a(f"s_mov_b32 s{sIb}, {OFF_X2R:#x}")
    for i in range(4): a(f"v_add_u32 v{vA+i}, {i*8192}, v{vP}")
    a("s_branch L_rb_go")
    a.label("L_rb_l0")
    set_srd(a, sIN, sX, 0x200000)
    a(f"s_mov_b32 s{sIb}, 0")
    a(f"v_lshl_add_u32 v{vA}, v{gi}, 4, v99")
    for i in range(1, 4): a(f"v_add_u32 v{vA+i}, {i*256}, v{vA}")
    a.label("L_rb_go")
    a("v_mov_b32 v14, 0x3f80")
    a("v_mov_b32 v15, 0x3f800000")
    X, T, P, R = 16, 48, 128, 112
    def body(st, stamp):
        poll_flags(a, vT, vFo, sFl)
        stamp("flag")
        a(f"s_and_b32 s{sT0}, s{sSeg}, 63")
        a(f"s_lshl_b32 s{sT0}, s{sT0}, 15")
        a(f"s_add_u32 s{sT0}, s{sT0}, s{sIb}")
        for i in range(4):
            a(f"buffer_load_dwordx4 {vr(R+4*i,4)}, v{vA+i}, s[{sIN}:{sIN+3}], s{sT0} offen sc1")
        a(f"s_lshl_b32 s{sSrc}, s{sSeg}, 17")
        a(f"s_add_u32 s{sSrc}, s{sSrc}, {OFF_PART:#x}")
        for n in range(16):
            if n: a(f"s_add_u32 s{sSrc}, s{sSrc}, 8192")
            a(f"buffer_load_dwordx4 {vr(P+4*n,4)}, v{vP}, {W}, s{sSrc} offen sc1")
        a(f"s_lshl_b32 s{sDst}, s{sSeg}, 15")
        a(f"s_add_u32 s{sT2}, s{sDst}, {OFF_X1B:#x}")
        a(f"s_add_u32 s{sDst}, s{sDst}, {OFF_XNB:#x}")
        a(f"s_lshl_b32 s{sT0}, s{sWb}, 2")
        a(f"s_add_u32 s{sFl}, s{sFl}, s{sT0}")
        a("s_waitcnt vmcnt(16)")
        unpack(a, X, R, 16)
        for n in range(16):
            i = n % 4
            a(f"s_waitcnt vmcnt({15-n})")
            for d in range(4):
                a(f"v_dot2_f32_bf16 v{X+8*i+2*d}, v{P+4*n+d}, v14, v{X+8*i+2*d}")
                a(f"v_dot2_f32_bf16 v{X+8*i+2*d+1}, v{P+4*n+d}, v15, v{X+8*i+2*d+1}")
        stamp("sum")
        a("s_nop 2")
        for i in range(16): cvt(a, R + i, X + 2 * i)
        for i in range(4):
            if i: a(f"s_add_u32 s{sT2}, s{sT2}, 8192")
            a(f"buffer_store_dwordx4 {vr(R+4*i,4)}, v{vP}, {W}, s{sT2} offen{st}")
        unpack(a, X, R, 16)
        layernorm(a, X, T)
        for i in range(16): cvt(a, P + i, X + 2 * i)
        for i in range(4):
            if i: a(f"s_add_u32 s{sDst}, s{sDst}, 8192")
            a(f"buffer_store_dwordx4 {vr(P+4*i,4)}, v{vP}, {W}, s{sDst} offen{st}")
        stamp("ln")
        a("s_waitcnt vmcnt(0)")
        set_flag(a, vOne, sFl, F_XNB, st)
    both_modes(a, "rb", body, cfg)
    a.label("L_re")
    a(f"v_and_b32 v{vFo}, 15, v0")
    a(f"v_lshlrev_b32 v{vFo}, 2, v{vFo}")
    a(f"v_add_u32 v{vFo}, {F_X2}, v{vFo}")
    a(f"v_lshrrev_b32 v100, 1, v{gi}")
    a(f"v_and_b32 v101, 1, v{gi}")
    a(f"v_lshl_add_u32 v100, v100, 3, v101")
    a(f"s_lshl_b32 s{sT1}, s{sT0}, 10")
    a(f"v_lshl_add_u32 v{vP}, v{c_}, 4, s{sT1}")
    a(f"v_lshl_add_u32 v{vP}, v{gi}, 11, v{vP}")
    a(f"s_xor_b32 s{sLo}, s{sLAY}, 1")
    a(f"s_lshl_b32 s{sLo}, s{sLo}, 6")
    a(f"s_cmp_eq_u32 s{sLAY}, 0")
    a("s_cbranch_scc1 L_re_l0")
    set_srd(a, sIN, sX, 0x200000)
    a(f"s_mov_b32 s{sIb}, 0")
    a(f"v_lshl_add_u32 v{vA}, v100, 4, v99")
    for q in range(1, 4): a(f"v_add_u32 v{vA+q}, {q*32}, v{vA}")
    a("s_branch L_re_go")
    a.label("L_re_l0")
    set_srd(a, sIN, sWSP, WS_BYTES)
    a(f"s_mov_b32 s{sIb}, {OFF_X2R:#x}")
    a(f"v_lshl_add_u32 v{vA}, v100, 9, v98")
    for q in range(1, 4): a(f"v_add_u32 v{vA+q}, {q*1024}, v{vA}")
    a.label("L_re_go")
    if not cfg.get("noinit"): wait_init(a)
    a("s_barrier")
    stamp = Stamps(a, cfg.get("stamp") == "re", base=4, only=cfg.get("only"))
    a.label("L_re_loop")
    stamp("top")
    a(f"s_cmp_eq_u32 s{sLAY}, 1")
    a("s_cbranch_scc1 L_re_nowait")
    a(f"s_lshl_b32 s{sFl}, s{sSeg}, 11")
    poll_flags(a, vT, vFo, sFl)
    a.label("L_re_nowait")
    stamp("flag")
    a(f"s_and_b32 s{sT2}, s{sSeg}, 63")
    a(f"s_lshl_b32 s{sT0}, s{sT2}, 15")
    a(f"s_add_u32 s{sT0}, s{sT0}, s{sIb}")
    for q in range(4):
        a(f"buffer_load_dwordx4 {vr(R+4*q,4)}, v{vA+q}, s[{sIN}:{sIN+3}], s{sT0} offen sc1")
    a(f"s_add_u32 s{sT2}, s{sT2}, s{sLo}")
    a(f"s_lshl_b32 s{sDst}, s{sT2}, 15")
    a(f"s_add_u32 s{sDst}, s{sDst}, {OFF_XN:#x}")
    a(f"s_lshl_b32 s{sFl}, s{sT2}, 11")
    a(f"s_lshl_b32 s{sT0}, s{sWb}, 2")
    a(f"s_add_u32 s{sFl}, s{sFl}, s{sT0}")
    a("s_waitcnt vmcnt(0)")
    stamp("ld")
    unpack(a, X, R, 16)
    layernorm(a, X, T)
    for g in range(4):
        for dj in range(4):
            half = dj & 1; jh = dj >> 1
            e = 4 * (g >> 1) + 2 * (g & 1) + jh
            a(f"v_cvt_pk_bf16_f32 v{P+4*g+dj}, v{X+8*half+e}, v{X+8*(2+half)+e}")
        a(f"buffer_store_dwordx4 {vr(P+4*g,4)}, v{vP}, {W}, s{sDst} offen offset:{g*256} sc1")
    stamp("ln")
    a("s_waitcnt vmcnt(0)")
    set_flag(a, vOne, sFl, F_XN)
    stamp("end")
    if stamp.on:
        lab = a.newlab("L_nost")
        a(f"s_and_b32 s{sT0}, s{sSeg}, 63")
        a(f"s_cmp_lg_u32 s{sT0}, {cfg.get('stamp_step', 20)}")
        a(f"s_cbranch_scc1 {lab}")
        def row():
            a(f"s_lshl_b32 s{sT0}, s{sGRP}, 7")
            a(f"s_lshl_b32 s{sT1}, s{sMEMB}, 2")
            a(f"s_add_u32 s{sT0}, s{sT0}, s{sT1}")
            a(f"s_add_u32 s{sT0}, s{sT0}, s{sWAVE}")
        dump_stamps(a, stamp, cfg, row)
        a.label(lab)
    a(f"s_add_u32 s{sSeg}, s{sSeg}, 1")
    a(f"s_cmp_lt_u32 s{sSeg}, s{sEnd}")
    a("s_cbranch_scc1 L_re_loop")
    a("s_waitcnt vmcnt(0)")
    a("s_branch L_exit")

def role_wo(a, cfg):
    a.label("L_wo")
    a(f"s_cmp_lt_u32 s{sMEMB}, 16")
    a("s_cbranch_scc1 L_ra")
    a(f"s_cmp_lt_u32 s{sMEMB}, 24")
    a("s_cbranch_scc1 L_rc")
    a(f"s_cmp_lt_u32 s{sMEMB}, 28")
    a("s_cbranch_scc1 L_rd")
    a("s_branch L_rows")
    role_ra(a, cfg); role_rc(a, cfg); role_rd(a, cfg); role_rows(a, cfg)
```

```python
import numpy as np
OFF_FLAGS = 0
F_XN, F_XNB, F_OB, F_X2, F_KV, F_O, F_PART = 0, 128, 256, 384, 512, 1024, 1536
OFF_MEM  = 0x40000
OFF_X2   = 0x140000
OFF_X1   = 0x180000
OFF_XN   = 0x200000
OFF_X1B  = 0x600000
OFF_XNB  = 0xA00000
OFF_OB   = 0xE00000
OFF_X2R  = 0x1200000
OFF_STAMP= 0x1800000
OFF_PART = 0x2000000
OFF_O    = 0x4000000
OFF_KV   = 0x6000000
WS_BYTES = 0x10000000

def kmap(kp):
    J = kp >> 6; ga = (kp >> 4) & 3; p = (kp >> 2) & 3; half = (kp >> 1) & 1; i = kp & 1
    return 64 * J + 32 * i + 16 * half + 4 * ga + p
KMAP = np.array([kmap(k) for k in range(512)])

def mem_layout_index():
    rows = np.zeros((8, 64, 8), int); cols = np.zeros((8, 64, 8), int)
    for J in range(8):
        for l in range(64):
            m = l & 15; ga = l >> 4; half = m >> 3
            for ea in range(8):
                kp = 64 * J + 16 * ga + 4 * (ea >> 1) + 2 * half + (ea & 1)
                rows[J, l, ea] = m & 7; cols[J, l, ea] = kmap(kp)
    return rows, cols

def kv_layout_index():
    tok = np.zeros((4, 4, 64, 8), int); d = np.zeros((4, 4, 64, 8), int)
    for w in range(4):
        for l in range(64):
            c = l & 15; g = l >> 4
            for j in range(8):
                a = j >> 2; r = j & 3
                for u in range(2):
                    tok[w, u, l, j] = 2 * c + u; d[w, u, l, j] = 32 * w + 16 * a + 4 * g + r
                for t in range(2):
                    tok[w, 2 + t, l, j] = 2 * (4 * g + r) + a; d[w, 2 + t, l, j] = 32 * w + 16 * t + c
    return tok, d

def xn_layout_index():
    tok = np.zeros((16, 2, 64, 8), int); col = np.zeros((16, 2, 64, 8), int)
    for ks in range(16):
        for u in range(2):
            for l in range(64):
                c = l & 15; g = l >> 4
                for j in range(8):
                    tok[ks, u, l, j] = 2 * c + u; col[ks, u, l, j] = kmap(32 * ks + 8 * g + j)
    return tok, col

def o_layout_index():
    tok = np.zeros((4, 2, 64, 8), int); d = np.zeros((4, 2, 64, 8), int)
    for wp in range(4):
        for u in range(2):
            for l in range(64):
                c = l & 15; g = l >> 4
                for j in range(8):
                    tok[wp, u, l, j] = 2 * c + u; d[wp, u, l, j] = 32 * wp + 16 * (j >> 2) + 4 * g + (j & 3)
    return tok, d

def img_layout_index():
    tok = np.zeros((64, 2, 16, 8), int); col = np.zeros((64, 2, 16, 8), int)
    for gm in range(64):
        for u in range(2):
            for c in range(16):
                for j in range(8):
                    tok[gm, u, c, j] = 2 * c + u; col[gm, u, c, j] = 8 * gm + j
    return tok, col
```

```python
import sys
from gen_common import *
from gen_chain import chain

HEADER = open('interleave_layers__memory_aug_recurrent_mem_tr__sliding_local_dilated__prompt.s.ref').read().split("; Override launch")[0]

def generate(cfg):
    a = Asm()
    roles = cfg.get("roles", {"chain", "wa", "wo"})
    a("s_cmp_ge_u32 s2, 256")
    a("s_cbranch_scc1 L_exit")
    a("s_load_dwordx16 s[4:19], s[0:1], 0")
    a("s_load_dwordx8 s[20:27], s[0:1], 64")
    a("s_load_dwordx2 s[28:29], s[0:1], 96")
    a(f"s_getreg_b32 s{sGRP}, hwreg(HW_REG_XCC_ID, 0, 4)")
    a("v_lshrrev_b32 v1, 6, v0")
    a(f"v_readfirstlane_b32 s{sWAVE}, v1")
    a(f"s_mov_b32 s{sLOCAL}, 1")
    a("s_mov_b32 s31, 0")
    if cfg.get("count_redo"): a("s_memrealtime s[100:101]")
    a("s_waitcnt lgkmcnt(0)")
    set_srd(a, sWS, sWSP, WS_BYTES)
    a(f"s_cmp_lg_u32 s{sWAVE}, 0")
    a("s_cbranch_scc1 L_notw0")
    a(f"s_mov_b32 s{sMEMB}, 32")
    if cfg.get("scramble"):
        a(f"s_lshr_b32 s{sGRP}, s2, {cfg['scramble']}")
        a(f"s_and_b32 s{sGRP}, s{sGRP}, {cfg.get('scramble_mask', 7)}")
    a(f"s_cmp_gt_u32 s{sGRP}, 7")
    a("s_cbranch_scc1 L_noticket")
    a(f"s_mov_b32 s{sMEMB}, 1")
    a(f"s_lshl_b32 s{sT0}, s{sGRP}, 5")
    a(f"s_atomic_add s{sMEMB}, s[{sDBG}:{sDBG+1}], s{sT0} glc")
    a.label("L_noticket")
    if not cfg.get("noinit"):
        a("v_lshlrev_b32 v1, 4, v0")
        for i in range(4): a(f"v_mov_b32 v{4+i}, 0")
        for i in range(4): a(f"v_mov_b32 v{8+i}, -1")
        a(f"s_lshl_b32 s{sT1}, s2, 10")
        a(f"buffer_store_dwordx4 v[4:7], v1, s[{sWS}:{sWS+3}], s{sT1} offen sc1")
        a(f"s_mul_i32 s{sT1}, s2, 7168")
        a(f"s_add_u32 s{sT1}, s{sT1}, {OFF_MEM:#x}")
        for i in range(7):
            if i == 4: a(f"s_add_u32 s{sT1}, s{sT1}, 4096")
            a(f"buffer_store_dwordx4 v[8:11], v1, s[{sWS}:{sWS+3}], s{sT1} offen offset:{(i%4)*1024} sc1")
    a("s_waitcnt lgkmcnt(0)")
    a(f"s_mov_b32 s{sSIG}, 0")
    a(f"s_cmp_lt_u32 s{sMEMB}, 32")
    a("s_cbranch_scc1 L_haverole")
    a("s_waitcnt vmcnt(0)")
    signal_init(a)
    lab = a.newlab("L_ovw")
    spin_init(a)
    a.label(lab)
    a(f"s_load_dword s{sFV}, s[{sDBG}:{sDBG+1}], 0x8 glc")
    spin_tick(a)
    a("s_waitcnt lgkmcnt(0)")
    a(f"s_cmp_lt_u32 s{sFV}, 256")
    a(f"s_cbranch_scc1 {lab}")
    a(f"s_mov_b32 s{sT1}, 1")
    a(f"s_atomic_add s{sT1}, s[{sDBG}:{sDBG+1}], 0xc glc")
    a(f"s_mov_b32 s{sGRP}, 0")
    a.label("L_ovscan")
    a(f"s_lshl_b32 s{sT0}, s{sGRP}, 5")
    a(f"s_load_dword s{sFV}, s[{sDBG}:{sDBG+1}], s{sT0} glc")
    a("s_waitcnt lgkmcnt(0)")
    a(f"s_min_u32 s{sFV}, s{sFV}, 32")
    a(f"s_add_u32 s{sMEMB}, s{sFV}, s{sT1}")
    a(f"s_cmp_lt_u32 s{sMEMB}, 32")
    a("s_cbranch_scc1 L_haverole")
    a(f"s_sub_u32 s{sT1}, s{sMEMB}, 32")
    a(f"s_add_u32 s{sGRP}, s{sGRP}, 1")
    a(f"s_cmp_lt_u32 s{sGRP}, 8")
    a("s_cbranch_scc1 L_ovscan")
    a.label("L_haverole")
    a(f"s_lshl_b32 s{sT0}, s{sGRP}, 8")
    a(f"s_or_b32 s{sT0}, s{sT0}, s{sMEMB}")
    a(f"v_mov_b32 v1, s{sT0}")
    a("v_mov_b32 v2, 0x27ff0")
    a("ds_write_b32 v2, v1")
    a("s_waitcnt lgkmcnt(0)")
    a("s_branch L_bar0")
    a.label("L_notw0")
    a(f"s_mov_b32 s{sSIG}, 1")
    a.label("L_bar0")
    a("s_barrier")
    a("v_mov_b32 v2, 0x27ff0")
    a("ds_read_b32 v1, v2")
    a("s_waitcnt lgkmcnt(0)")
    a(f"v_readfirstlane_b32 s{sT0}, v1")
    a("s_barrier")
    a(f"s_and_b32 s{sMEMB}, s{sT0}, 31")
    a(f"s_lshr_b32 s{sGRP}, s{sT0}, 8")
    a(f"s_cmp_gt_u32 s{sGRP}, 7")
    a("s_cbranch_scc1 L_exit")
    gmap = cfg.get("gmap", [("chain",0,0),("chain",1,0),("wa",0,0),("wa",0,1),("wa",1,0),("wa",1,1),("wo",0,0),("wo",1,0)])
    for g, (role, lay, par) in enumerate(gmap):
        if role not in roles: continue
        lab = a.newlab("L_ng")
        a(f"s_cmp_lg_u32 s{sGRP}, {g}")
        a(f"s_cbranch_scc1 {lab}")
        a(f"s_mov_b32 s{sLAY}, {lay}")
        a(f"s_mov_b32 s{sT3}, {par}")
        a(f"s_branch L_{role}")
        a.label(lab)
    a("s_waitcnt vmcnt(0)")
    signal_init(a)
    a.label("L_exit")
    a("s_endpgm")
    if "chain" in roles:
        chain(a, True, cfg)
        chain(a, False, cfg)
    if "wa" in roles:
        from gen_wa import role_wa
        role_wa(a, cfg)
    if "wo" in roles:
        from gen_wo import role_wo
        role_wo(a, cfg)
    if cfg.get("drop"):
        a.ins = [x if not x.text.startswith(cfg["drop"]) else Ins("s_nop 2") for x in a.ins]
    nn = a.fix_hazards(verbose=cfg.get("verbose", False))
    errs = a.check_waits()
    for e in errs[:20]: print("WAITERR", e)
    body = a.text()
    txt = HEADER + f"""; @launch grid=(256,1,1) block=(256,1,1) lds=163840
.amdgcn_target "amdgcn-amd-amdhsa--gfx950"
.text
.globl {KNAME}
.p2align 8
.type {KNAME},@function
{KNAME}:
{body}.section .rodata,"a"
.p2align 6
.amdhsa_kernel {KNAME}
  .amdhsa_next_free_vgpr 512
  .amdhsa_next_free_sgpr 102
  .amdhsa_accum_offset 256
  .amdhsa_group_segment_fixed_size 0
  .amdhsa_kernarg_size 104
  .amdhsa_user_sgpr_count 2
  .amdhsa_user_sgpr_kernarg_segment_ptr 1
  .amdhsa_system_sgpr_workgroup_id_x 1
  .amdhsa_float_denorm_mode_32 3
.end_amdhsa_kernel
"""
    return txt, nn, errs

if __name__ == "__main__":
    cfg = eval(sys.argv[2]) if len(sys.argv) > 2 else {}
    txt, nn, errs = generate(cfg)
    open(sys.argv[1], "w").write(txt)
    print("nops", nn, "bytes", len(txt), "errs", len(errs))
```

```python
from gen_common import *

def chain(a, local, cfg):
    st = "" if local else " sc1"
    tag = "L" if local else "G"
    stamp = Stamps(a, cfg.get("stamp") == "chain" and local, only=cfg.get("only"))
    vL16, vIdx, vLdsW, vSwx, vSwm, vSrx, vSrm, vOw, vOr, vX1s, vX1l, vX2s = range(1, 13)
    vR, vOnes, vT = 13, 14, 15
    vAw = 0
    sFO = 93
    SelT, VACC, SelM = 16, 20, 28
    q0, k0, q1, k1 = 32, 36, 40, 44
    Kx, Vx, RING, A, WO = 48, 56, 64, 96, 128
    WK, WV = 256, 384
    sStep, sTag, sX2st, sX2re, sMemOff, sKV, sX1a, sX1b, sC = 55, 56, 57, 58, 59, 60, 61, 62, 96
    sMaskHi = 64
    sLds, sRot = 66, 67
    sX2l = 92
    AST, KVL, SX, SM, SJ, OA, CST = 0x20000, 0x22000, 0x26000, 0x26800, 0x26a00, 0x26c00, 0x27400
    sKVL = 94
    lane = 0
    if cfg.get("chain_prologue_done") is None:
        cfg["chain_prologue_done"] = True
        a.label("L_chain")
        a(f"v_and_b32 v0, 63, v0")
        a(f"v_lshlrev_b32 v{vL16}, 4, v0")
        a(f"s_lshl_b32 s{sLds}, s{sWAVE}, 15")
        a(f"s_lshl_b32 s{sRot}, s{sWAVE}, 1")
        vD, vTR, vDo, vTRo = 96, 97, 98, 99
        qkv_dma_addr(a, lane, vD, vT, 8192)
        qkv_tr_addr(a, lane, vTR, vT, sLds)
        a(f"v_lshrrev_b32 v{vDo}, 3, v0")
        a(f"v_lshlrev_b32 v{vDo}, 10, v{vDo}")
        a(f"v_and_b32 v{vT}, 7, v0")
        a(f"v_lshl_add_u32 v{vDo}, v{vT}, 4, v{vDo}")
        a(f"v_bfe_u32 v{vT}, v0, 4, 1")
        a(f"v_lshlrev_b32 v{vTRo}, 11, v{vT}")
        a(f"v_bfe_u32 v{vT}, v0, 5, 1")
        a(f"v_lshl_add_u32 v{vTRo}, v{vT}, 9, v{vTRo}")
        a(f"v_bfe_u32 v{vT}, v0, 2, 1")
        a(f"v_lshl_add_u32 v{vTRo}, v{vT}, 7, v{vTRo}")
        a(f"v_bfe_u32 v{vT}, v0, 3, 1")
        a(f"v_lshl_add_u32 v{vTRo}, v{vT}, 5, v{vTRo}")
        a(f"v_and_b32 v{vT}, 3, v0")
        a(f"v_lshl_add_u32 v{vTRo}, v{vT}, 3, v{vTRo}")
        a(f"v_add_u32 v{vTRo}, s{sLds}, v{vTRo}")
        a(f"v_add_u32 v{vLdsW}, s{sLds}, v{vL16}")
        a(f"s_lshl_b32 s{sT2}, s{sMEMB}, 8")
        a(f"s_lshl_b32 s{sT1}, s{sWAVE}, 6")
        a(f"s_add_u32 s{sT2}, s{sT2}, s{sT1}")
        a(f"s_lshl_b32 s{sT3}, s{sMEMB}, 17")
        a(f"s_lshl_b32 s{sT1}, s{sWAVE}, 8")
        a(f"s_add_u32 s{sT3}, s{sT3}, s{sT1}")
        late_start(a, cfg)
        chunks = []
        def qkv_chunk(ptr, jj, consume):
            def setup():
                if jj == 0: set_srd(a, sWT, ptr, 0x400000)
                a(f"s_xor_b32 s{sT0}, s{sRot}, {jj}")
                a(f"s_lshl_b32 s{sT0}, s{sT0}, 19")
                a(f"s_add_u32 s{sT0}, s{sT0}, s{sT2}")
            chunks.append(dict(setup=setup, vdma=vD, dstep=4 * 8192, consume=consume))
        for ptr, base in ((sWK, WK), (sWV, WV)):
            for jj in range(8):
                def consume(so, jj=jj, base=base):
                    qkv_tr_reads(a, vTR, so, base + jj * 16, base + jj * 16 + 8)
                    a("s_waitcnt lgkmcnt(0)")
                qkv_chunk(ptr, jj, consume)
        for wp in range(4):
            for ap in range(2):
                def setup(wp=wp, ap=ap):
                    if wp == 0 and ap == 0: set_srd(a, sWT, sWO, 0x400000)
                    a(f"s_add_u32 s{sT0}, s{sT3}, {32*wp*1024 + ap*128}")
                def consume(so, wp=wp, ap=ap):
                    for a1 in range(2):
                        dst = WO + ((2 * ap + a1) * 4 + wp) * 8
                        for e4 in range(4):
                            off = so + (8 * (e4 >> 1) + 2 * (e4 & 1)) * 128 + a1 * 64
                            a(f"ds_read_b64_tr_b16 {vr(dst+2*e4,2)}, v{vTRo} offset:{off}")
                    a("s_waitcnt lgkmcnt(0)")
                chunks.append(dict(setup=setup, vdma=vDo, dstep=8192, consume=consume))
        for jj in range(8):
            def consume(so, jj=jj):
                qkv_tr_reads(a, vTR, so, RING, RING + 8)
                a("s_waitcnt lgkmcnt(0)")
                for i in range(4):
                    a(f"ds_write_b128 v{vLdsW}, {vr(RING+4*i,4)} offset:{so+i*1024}")
                a("s_waitcnt lgkmcnt(0)")
            qkv_chunk(sWQ, jj, consume)
        load_chunks(a, chunks, sLds)
        trace(a, cfg, 6, None, vT)
        sel_consts(a, lane, 96, selM=SelM, selLo=112, selHi=116, selT=SelT)
        smf_index(a, lane, vIdx, 96)
        n_, g_, q_ = 96, 97, 98
        a(f"v_and_b32 v{n_}, 15, v0")
        a(f"v_lshrrev_b32 v{g_}, 4, v0")
        a(f"v_and_b32 v{q_}, 7, v0")
        a(f"s_mov_b32 s{sMaskHi}, 0xff00ff00")
        a(f"s_mov_b32 s{sMaskHi+1}, 0xff00ff00")
        a(f"v_lshlrev_b32 v99, 3, v{q_}")
        a(f"v_lshl_add_u32 v99, v{g_}, 6, v99")
        a(f"v_add_u32 v99, {SJ}, v99")
        a(f"v_lshrrev_b32 v{vT}, 1, v{g_}")
        a(f"v_lshlrev_b32 v{vSwx}, 8, v{vT}")
        a(f"v_lshl_add_u32 v{vSwx}, v{q_}, 4, v{vSwx}")
        a(f"v_and_b32 v{vT}, 1, v{g_}")
        a(f"v_lshl_add_u32 v{vSwx}, v{vT}, 3, v{vSwx}")
        a(f"s_lshl_b32 s{sT0}, s{sWAVE}, 9")
        a(f"s_add_u32 s{sT1}, s{sT0}, {SX}")
        a(f"v_add_u32 v{vSwx}, s{sT1}, v{vSwx}")
        a(f"v_cndmask_b32 v{vSwx}, v{vSwx}, v99, s[{sMaskHi}:{sMaskHi+1}]")
        a(f"v_lshlrev_b32 v{vSwm}, 4, v{q_}")
        a(f"v_lshl_add_u32 v{vSwm}, v{vT}, 3, v{vSwm}")
        a(f"s_lshl_b32 s{sT1}, s{sWAVE}, 7")
        a(f"s_add_u32 s{sT1}, s{sT1}, {SM}")
        a(f"v_add_u32 v{vSwm}, s{sT1}, v{vSwm}")
        a(f"s_mov_b32 s98, 0")
        a(f"s_mov_b32 s99, 0x00ff00ff")
        a(f"v_cndmask_b32 v{vSwm}, v99, v{vSwm}, s[98:99]")
        a(f"v_lshlrev_b32 v{vSrx}, 9, v{g_}")
        a(f"v_lshl_add_u32 v{vSrx}, v{n_}, 4, v{vSrx}")
        a(f"v_add_u32 v{vSrx}, {SX}, v{vSrx}")
        a(f"v_lshlrev_b32 v{vSrm}, 7, v{g_}")
        a(f"v_lshl_add_u32 v{vSrm}, v{q_}, 4, v{vSrm}")
        a(f"v_add_u32 v{vOr}, {OA}, v{vSrm}")
        a(f"v_add_u32 v{vSrm}, {SM}, v{vSrm}")
        a(f"v_bfe_u32 v{vT}, v0, 3, 1")
        a(f"v_lshl_add_u32 v{vOw}, v{vT}, 3, v{vOr}")
        a(f"v_add_u32 v{vOw}, s{sT0}, v{vOw}")
        a(f"v_lshrrev_b32 v{vT}, 2, v{n_}")
        a(f"v_lshl_add_u32 v{vT}, v{vT}, 2, v{g_}")
        a(f"v_lshlrev_b32 v{vX1s}, 11, v{vT}")
        a(f"v_and_b32 v{vT}, 3, v0")
        a(f"v_lshl_add_u32 v{vX1s}, v{vT}, 4, v{vX1s}")
        a(f"s_lshl_b32 s{sT0}, s{sWAVE}, 16")
        a(f"s_lshl_b32 s{sT1}, s{sMEMB}, 6")
        a(f"s_add_u32 s{sT0}, s{sT0}, s{sT1}")
        a(f"v_add_u32 v{vX1s}, s{sT0}, v{vX1s}")
        a(f"s_lshl_b32 s{sT2}, s{sMEMB}, 2")
        a(f"s_add_u32 s{sT2}, s{sT2}, s{sWAVE}")
        a(f"s_lshl_b32 s{sT0}, s{sT2}, 11")
        a(f"v_add_u32 v{vX1l}, s{sT0}, v{vL16}")
        a(f"v_lshlrev_b32 v{vX2s}, 4, v{g_}")
        a(f"v_lshl_add_u32 v{vX2s}, v{n_}, 2, v{vX2s}")
        a(f"s_lshl_b32 s{sT0}, s{sT2}, 6")
        a(f"v_add_u32 v{vX2s}, s{sT0}, v{vX2s}")
        a(f"v_mov_b32 v{vT}, {OOB:#x}")
        a(f"v_cmp_gt_u32 vcc, 4, v{n_}")
        a(f"v_cndmask_b32 v{vX2s}, v{vT}, v{vX2s}, vcc")
        a(f"v_and_b32 v100, 3, v0")
        a(f"v_lshlrev_b32 v100, 1, v100")
        a(f"v_lshl_add_u32 v100, v{g_}, 10, v100")
        a(f"v_and_b32 v104, 3, v0")
        a(f"v_bfe_u32 v105, v0, 2, 2")
        a(f"v_lshl_add_u32 v104, v104, 2, v105")
        a(f"v_and_b32 v105, 1, v104")
        a(f"v_lshlrev_b32 v105, 4, v105")
        a(f"v_mov_b32 v106, 0x3f80")
        a(f"v_lshlrev_b32 v105, v105, v106")
        a(f"v_lshrrev_b32 v104, 1, v104")
        for e in range(4):
            a(f"v_cmp_eq_u32 vcc, {e}, v104")
            a(f"v_cndmask_b32 v{108+e}, 0, v105, vcc")
        a(f"v_and_b32 v104, 0xf0, v{vL16}")
        a(f"v_add_u32 v104, {CST}, v104")
        a(f"ds_write_b128 v104, v[108:111]")
        a(f"ds_write_b128 v104, v[112:115] offset:256")
        a(f"ds_write_b128 v104, v[116:119] offset:512")
        for e in range(4): a(f"v_mov_b32 v{120+e}, 0x3f803f80")
        for e in range(4): a(f"v_mov_b32 v{124+e}, 0x3f003f00")
        a(f"ds_write_b128 v104, v[120:123] offset:768")
        a(f"ds_write_b128 v104, v[124:127] offset:1024")
        a(f"s_and_b32 s{sT0}, s{sT2}, 1")
        a(f"s_lshl_b32 s{sT0}, s{sT0}, 12")
        a(f"s_lshr_b32 s{sT1}, s{sT2}, 4")
        a(f"s_lshl_b32 s{sT1}, s{sT1}, 7")
        a(f"s_add_u32 s{sT0}, s{sT0}, s{sT1}")
        a(f"s_bfe_u32 s{sT1}, s{sT2}, 0x10001")
        a(f"s_lshl_b32 s{sT1}, s{sT1}, 5")
        a(f"s_add_u32 s{sT0}, s{sT0}, s{sT1}")
        a(f"s_bfe_u32 s{sT1}, s{sT2}, 0x20002")
        a(f"s_lshl_b32 s{sT1}, s{sT1}, 3")
        a(f"s_add_u32 s{sT0}, s{sT0}, s{sT1}")
        set_srd(a, sIN, sMEM0, 8192)
        a(f"buffer_load_ushort v101, v100, s[{sIN}:{sIN+3}], s{sT0} offen")
        a(f"buffer_load_ushort v102, v100, s[{sIN}:{sIN+3}], s{sT0} offen offset:64")
        a(f"s_mov_b32 s{sStep}, 0")
        a(f"s_mov_b32 s{sTag}, 0")
        a(f"s_lshl_b32 s{sT0}, s{sLAY}, 14")
        a(f"s_add_u32 s{sX2st}, s{sT0}, {OFF_X2:#x}")
        a(f"s_add_u32 s{sX2re}, s{sX2st}, 8192")
        a(f"s_lshl_b32 s{sT0}, s{sWAVE}, 11")
        a(f"s_add_u32 s{sX2l}, s{sT0}, s{sX2st}")
        a(f"s_add_u32 s{sT0}, s{sT0}, {AST}")
        a(f"v_add_u32 v{vAw}, s{sT0}, v{vL16}")
        a(f"s_lshl_b32 s{sT0}, s{sLAY}, 19")
        a(f"s_add_u32 s{sMemOff}, s{sT0}, {OFF_MEM:#x}")
        a(f"s_lshl_b32 s{sT0}, s{sLAY}, 18")
        a(f"s_add_u32 s{sX1a}, s{sT0}, {OFF_X1:#x}")
        a(f"s_add_u32 s{sX1b}, s{sX1a}, 32768")
        a(f"s_lshl_b32 s{sT0}, s{sLAY}, 25")
        a(f"s_lshl_b32 s{sT1}, s{sT2}, 12")
        a(f"s_add_u32 s{sT0}, s{sT0}, s{sT1}")
        a(f"s_add_u32 s{sKV}, s{sT0}, {OFF_KV:#x}")
        a(f"s_lshl_b32 s{sT0}, s{sLAY}, 17")
        a(f"s_lshl_b32 s{sT1}, s{sT2}, 2")
        a(f"s_add_u32 s{sT0}, s{sT0}, s{sT1}")
        a(f"s_add_u32 s{sT0}, s{sT0}, {OFF_FLAGS+F_KV}")
        a(f"s_mov_b32 s{sFO}, s{sT0}")
        a(f"s_mov_b32 s{sC}, {fbits(128**-0.5*1.4426950408889634):#x}")
        a(f"s_mov_b32 s{sC+1}, s{sC}")
        a("s_waitcnt vmcnt(0)")
        a(f"v_lshl_or_b32 v{vR}, v102, 16, v101")
        a(f"v_min_u32 v{vR}, -2, v{vR}")
        if not cfg.get("noinit"): wait_init(a)
        lab = a.newlab("L_kv0")
        spin_init(a)
        a.label(lab)
        a(f"buffer_load_dword v{vOnes}, off, s[{sWS}:{sWS+3}], s{sFO} sc1")
        spin_tick(a)
        a("s_waitcnt vmcnt(0)")
        a(f"v_cmp_eq_u32 vcc, 0, v{vOnes}")
        a("s_sleep 2")
        a(f"s_cbranch_vccnz {lab}")
        for f in range(4):
            a(f"buffer_load_dwordx4 {vr(Kx+4*f,4)}, v{vL16}, s[{sWS}:{sWS+3}], s{sKV} offen offset:{f*1024} sc1")
        for i in range(8):
            a(f"ds_read_b128 {vr(RING+4*i,4)}, v{vLdsW} offset:{i*1024}")
        a(f"s_add_u32 s{sFO}, s{sFO}, 2048")
        a(f"buffer_load_dword v{vOnes}, off, s[{sWS}:{sWS+3}], s{sFO} sc1")
        a(f"s_lshl_b32 s{sKVL}, s{sWAVE}, 12")
        a(f"s_add_u32 s{sKVL}, s{sKVL}, {KVL}")
        a(f"s_mov_b32 m0, s{sKVL}")
        a("s_waitcnt vmcnt(0) lgkmcnt(0)")
        if cfg.get("count_redo"):
            a("s_memrealtime s[70:71]")
            a("s_memtime s[98:99]")
            a("s_waitcnt lgkmcnt(0)")
            a("s_sub_u32 s101, s70, s100")
            a("s_mov_b32 s100, s70")
        if cfg.get("force_global"):
            a("s_branch L_chain_loopG")
        else:
            a(f"s_cmp_eq_u32 s{sLOCAL}, 0")
            a("s_cbranch_scc1 L_chain_loopG")
    W = f"s[{sWS}:{sWS+3}]"
    vq = [(t, jj) for jj in range(8) for t in range(2)]
    vacc = (VACC, VACC + 4)
    def fill_v(n):
        for _ in range(n):
            t, jj = vq.pop(0)
            a(f"v_smfmac_f32_16x16x64_bf16 {vr(vacc[t],4)}, {vr(A+4*jj,4)}, {xr(WV+jj*16+t*8,8)}, v{vIdx}")
    def pad(n):
        for _ in range(n): a(f"v_mov_b32 v{vT}, 0")
    cvt = lambda d, s: a(f"v_cvt_pk_bf16_f32 v{d}, v{s}, v{s+1}")
    mfma = lambda d, x, y, c: a(f"v_mfma_f32_16x16x32_bf16 {vr(d,4)}, {vr(x,4)}, {vr(y,4)}, {vr(c,4) if c is not None else 0}")
    mfma16 = lambda d, x, y: a(f"v_mfma_f32_16x16x16_bf16 {vr(d,4)}, {vr(x,2)}, {vr(y,2)}, {vr(d,4)}")
    two = cfg.get("twoset", True)
    a(".p2align 6")
    a.label(f"L_chain_loop{tag}")
    stamp("top")
    a(f"buffer_store_dword v{vR}, v{vX2s}, {W}, s{sX2st} offen{st}")
    trace(a, cfg, 0, sStep, vT)
    a(f"s_cmp_eq_u32 s{sStep}, 63")
    a(f"s_cbranch_scc1 L_chain_last{tag}")
    a(f"v_cmp_eq_u32 vcc, 0, v{vOnes}")
    for i in range(8):
        a(f"v_mov_b64 {vr(q0+2*i,2)}, 0")
    a(f"s_cbranch_vccnz L_chain_kvwait{tag}")
    a.label(f"L_chain_kvok{tag}")
    trace(a, cfg, 1, sStep, vT)
    spin_init(a)
    if cfg.get("ack2"): a("s_waitcnt vmcnt(0)")
    pad(cfg.get("d2", 30))
    def x2_issue(r):
        a(f"buffer_load_dwordx4 {vr(r,4)}, v{vL16}, {W}, s{sX2l} offen sc1")
        a(f"buffer_load_dwordx4 {vr(r+4,4)}, v{vL16}, {W}, s{sX2l} offen offset:1024 sc1")
    def x2_check(r, n):
        a(f"s_waitcnt vmcnt({n+1})")
        a(f"v_max3_u32 v{vT}, v{r}, v{r+1}, v{r+2}")
        a(f"s_waitcnt vmcnt({n})")
        a(f"v_max3_u32 v{vT}, v{vT}, v{r+3}, v{r+4}")
        a(f"v_max3_u32 v{vT}, v{vT}, v{r+5}, v{r+6}")
        a(f"v_max_u32 v{vT}, v{vT}, v{r+7}")
        a(f"v_cmp_eq_u32 vcc, -1, v{vT}")
        a(f"ds_write_b128 v{vAw}, {vr(r,4)}")
        a(f"ds_write_b128 v{vAw}, {vr(r+4,4)} offset:1024")
    stamp("x2iss")
    x2_issue(A)
    for i in range(4):
        a(f"v_mov_b64 {vr(VACC+2*i,2)}, 0")
    a(f"v_mov_b32 v{vOnes}, -1")
    a(f"s_add_u32 s{sFO}, s{sFO}, 2048")
    if not cfg.get("samekv"): a(f"s_add_u32 s{sKV}, s{sKV}, {32*16384}")
    a("s_waitcnt lgkmcnt(0)")
    if two:
        pad(cfg.get("g2", 30))
        x2_issue(A + 8)
        x2_check(A, 2)
        a(f"s_cbranch_vccnz L_chain_x2b{tag}")
    else:
        x2_check(A, 0)
        a(f"s_cbranch_vccnz L_chain_x2b{tag}")
    a.label(f"L_chain_x2ok{tag}")
    if cfg.get("count_redo"): a(f"s_add_u32 s31, s31, s{sSPIN}")
    stamp("A0")
    kvl = [f"buffer_load_dwordx4 v{vL16}, {W}, s{sKV} offen offset:{f*1024} sc1 lds" for f in range(4)]
    lg = {0: None, 1: None, 2: 5, 3: 8, 4: 4, 5: 4, 6: 4, 7: 2}
    SLo, SHi = RING, RING + 4
    for jj in range(8):
        if jj == 2:
            a(f"buffer_store_dword v{vR}, v{vX2s}, {W}, s{sMemOff} offen sc1")
            stamp("k1done", True)
            a("s_waitcnt vmcnt(1) lgkmcnt(8)")
            a("s_barrier")
            stamp("bar1", True)
            for j2 in range(2, 8, 2):
                a(f"v_xor_b32 v{vT}, {j2*1024}, v{vAw}")
                a(f"ds_read_b128 {vr(A+4*j2,4)}, v{vT}")
                a(f"ds_read_b128 {vr(A+4*j2+4,4)}, v{vT} offset:1024")
            fill_v(4)
        if lg[jj] is not None: a(f"s_waitcnt lgkmcnt({lg[jj]})")
        stamp(f"k{jj}", True)
        Aj = vr(A + 4 * jj, 4)
        s0 = RING + ((2 * jj) % 4) * 8; s1 = s0 + 8
        f0 = 2 * jj + 4
        if jj < 6:
            side = [f"ds_read_b128 {vr(s0,4)}, v{vLdsW} offset:{f0*2048}", f"ds_read_b128 {vr(s0+4,4)}, v{vLdsW} offset:{f0*2048+1024}",
                    f"ds_read_b128 {vr(s1,4)}, v{vLdsW} offset:{f0*2048+2048}", f"ds_read_b128 {vr(s1+4,4)}, v{vLdsW} offset:{f0*2048+3072}"]
        elif jj == 6:
            side = [f"v_and_b32 v{vT}, 0xf0, v{vL16}", f"v_add_u32 v{vT}, {CST}, v{vT}",
                    f"ds_read_b128 {vr(SLo,4)}, v{vT} offset:256", f"ds_read_b128 {vr(SHi,4)}, v{vT} offset:512"]
        else:
            side = [f"buffer_store_dword v{vOnes}, v{vX2s}, {W}, s{sX2re} offen{st}", kvl.pop(0), None, None]
        for acc, wsrc, sd in ((q0, vr(s0, 8), side[0]), (k0, xr(WK + jj * 16, 8), side[1]), (q1, vr(s1, 8), side[2]), (k1, xr(WK + jj * 16 + 8, 8), side[3])):
            a(f"v_smfmac_f32_16x16x64_bf16 {vr(acc,4)}, {Aj}, {wsrc}, v{vIdx}")
            if sd: a(sd)
    stamp("h3end")
    Ap0, Ap1, Dp0, Dp1, X = 72, 76, 80, 84, 88
    cvt(Ap0, q0); cvt(Ap0 + 1, q0 + 2); cvt(Ap0 + 2, k0); cvt(Ap0 + 3, k0 + 2)
    cvt(Ap1, q1); cvt(Ap1 + 1, q1 + 2)
    mfma(Dp0, Ap0, SelT, None)
    cvt(Ap1 + 2, k1); cvt(Ap1 + 3, k1 + 2)
    mfma(Dp1, Ap1, SelT, None)
    a(kvl.pop(0))
    cvt(X, Dp0); cvt(X + 1, Dp0 + 2)
    fill_v(1)
    cvt(X + 2, Dp1); cvt(X + 3, Dp1 + 2)
    Sx0, Sx1, Sm = 32, 36, 40
    mfma(Sx0, Kx, X, None)
    mfma(Sx1, Kx + 4, X, None)
    mfma(Sm, X, X, None)
    a(kvl.pop(0))
    cvt(44, Sx0); cvt(45, Sx0 + 2); cvt(46, Sx1); cvt(47, Sx1 + 2)
    a(f"ds_write2_b64 v{vSwx}, v[44:45], v[46:47] offset0:0 offset1:16")
    cvt(92, Sm); cvt(93, Sm + 2)
    a(f"ds_write_b64 v{vSwm}, v[92:93]")
    stamp("swr")
    fill_v(3)
    a(kvl.pop(0))
    a("s_waitcnt lgkmcnt(0)")
    stamp("swdone", True)
    a("s_barrier")
    stamp("bar2", True)
    a(f"ds_read_b128 v[72:75], v{vSrx}")
    a(f"ds_read_b128 v[80:83], v{vSrm}")
    a(f"ds_read_b128 v[76:79], v{vSrx} offset:256")
    ONES, HALF = 88, 92
    a(f"ds_read_b128 {vr(ONES,4)}, v{vT} offset:768")
    a(f"ds_read_b64 {vr(HALF,2)}, v{vT} offset:1024")
    fill_v(3)
    a("s_waitcnt lgkmcnt(3)")
    mfma(32, SLo, 72, None)
    mfma(36, SelM, 80, None)
    a("s_waitcnt lgkmcnt(2)")
    mfma(32, SHi, 76, 32)
    fill_v(2)
    stamp("sred")
    m, t = 46, 47
    a(f"v_max3_f32 v{m}, v36, v37, v38")
    a(f"v_max3_f32 v{t}, v32, v33, v34")
    a(f"v_max3_f32 v{m}, v{m}, v39, v35")
    a(f"v_max_f32 v{m}, v{m}, v{t}")
    fill_v(1)
    a(f"v_max_f32_dpp v{m}, v{m}, v{m} row_ror:8 row_mask:0xf bank_mask:0xf")
    a(f"v_mov_b32 v{t}, v{m}")
    fill_v(1)
    a(f"v_permlane16_swap_b32 v{m}, v{t}")
    a(f"v_max_f32 v{m}, v{m}, v{t}")
    a(f"v_mov_b32 v{t}, v{m}")
    fill_v(1)
    a(f"v_permlane32_swap_b32 v{m}, v{t}")
    a(f"v_max_f32 v{m}, v{m}, v{t}")
    assert not vq
    a(f"v_mul_f32 v{m}, s{sC}, v{m}")
    for i in range(0, 8, 2):
        a(f"v_pk_fma_f32 {vr(32+i,2)}, {vr(32+i,2)}, s[{sC}:{sC+1}], {vr(m,2)} op_sel_hi:[1,1,0] neg_lo:[0,0,1] neg_hi:[0,0,1]")
    for i in range(8):
        a(f"v_exp_f32 v{32+i}, v{32+i}")
    Bx, Pm, vp = 40, 44, 84
    cvt(Bx, 32); cvt(Bx + 1, 34); cvt(Bx + 2, 32); cvt(Bx + 3, 34)
    cvt(Pm, 36); cvt(Pm + 1, 38)
    a(f"v_mov_b32_dpp v{Bx+2}, v{Bx} row_ror:8 row_mask:0xf bank_mask:0x3")
    a(f"v_mov_b32_dpp v{Bx+3}, v{Bx+1} row_ror:8 row_mask:0xf bank_mask:0x3")
    a(f"v_mov_b32_dpp v{Bx}, v{Bx} row_ror:8 row_mask:0xf bank_mask:0xc")
    a(f"v_mov_b32_dpp v{Bx+1}, v{Bx+1} row_ror:8 row_mask:0xf bank_mask:0xc")
    a("s_waitcnt lgkmcnt(0)")
    stamp("pready")
    a(f"v_mfma_f32_16x16x16_bf16 v[32:35], {vr(HALF,2)}, {vr(Pm,2)}, 0")
    cvt(vp, vacc[0]); cvt(vp + 1, vacc[0] + 2)
    mfma(32, ONES, Bx, 32)
    cvt(vp + 2, vacc[1]); cvt(vp + 3, vacc[1] + 2)
    mfma(72, Vx, Bx, None)
    a(f"buffer_load_dword v{vOnes}, off, {W}, s{sFO} sc1")
    mfma(76, Vx + 4, Bx, None)
    mfma16(72, vp, Pm)
    mfma16(76, vp + 2, Pm)
    a(f"v_rcp_f32 v32, v32")
    OF, WA = 96, 112
    for i in range(3):
        a(f"v_mov_b64 {vr(WA+2*i,2)}, 0")
    for i in range(4):
        a(f"v_cndmask_b32 v{72+i}, v{72+i}, v{76+i}, s[{sMaskHi}:{sMaskHi+1}]")
    a(f"v_pk_mul_f32 v[72:73], v[72:73], v[32:33] op_sel_hi:[1,0]")
    a(f"v_pk_mul_f32 v[74:75], v[74:75], v[32:33] op_sel_hi:[1,0]")
    cvt(80, 72); cvt(81, 74)
    a(f"ds_write_b64 v{vOw}, v[80:81]")
    stamp("owr")
    for i in range(3, 8):
        a(f"v_mov_b64 {vr(WA+2*i,2)}, 0")
    a("s_waitcnt vmcnt(5) lgkmcnt(0)")
    stamp("owdone", True)
    a("s_barrier")
    stamp("bar3", True)
    for wp in range(4):
        a(f"ds_read_b128 {vr(OF+4*wp,4)}, v{vOr} offset:{wp*512}")
    a(f"ds_read_b128 v[40:43], v{vT}")
    a(f"s_add_u32 s{sStep}, s{sStep}, 1")
    a(f"s_add_u32 s{sMemOff}, s{sMemOff}, 8192")
    a(f"s_xor_b32 s{sX2st}, s{sX2st}, 8192")
    a(f"s_xor_b32 s{sX2re}, s{sX2re}, 8192")
    a(f"s_xor_b32 s{sX2l}, s{sX2l}, 8192")
    spin_init(a)
    def pack(U):
        d = 32 + 4 * U; s = WA + 8 * U
        return [f"v_cvt_pk_bf16_f32 v{d}, v{s}, v{s+1}", f"v_cvt_pk_bf16_f32 v{d+1}, v{s+2}, v{s+3}",
                f"v_and_or_b32 v{d}, v{d}, -2, s{sTag}",
                f"v_cvt_pk_bf16_f32 v{d+2}, v{s+4}, v{s+5}", f"v_cvt_pk_bf16_f32 v{d+3}, v{s+6}, v{s+7}",
                f"buffer_store_dwordx4 {vr(d,4)}, v{vX1s}, {W}, s{sX1a if U == 0 else sX1b} offen{st}"]
    p0 = pack(0); p1 = pack(1)
    n = 0
    for ac in range(4):
        for wp in range(4):
            if ac == 0: a(f"s_waitcnt lgkmcnt({4-wp})")
            a(f"v_smfmac_f32_16x16x64_bf16 {vr(WA+4*ac,4)}, {vr(OF+4*wp,4)}, {vr(WO+(ac*4+wp)*8,8)}, v{vIdx}")
            n += 1
            stamp(f"wo{n}", True)
            if n in (7, 8, 9, 11, 12, 13): a(p0.pop(0))
            if n in (15, 16): a(p1.pop(0))
    a(p1.pop(0))
    for i in range(4):
        a(f"ds_read_b128 {vr(RING+4*i,4)}, v{vLdsW} offset:{i*1024}")
    for x in p1: a(x)
    stamp("x1st")
    for i in range(4, 8):
        a(f"ds_read_b128 {vr(RING+4*i,4)}, v{vLdsW} offset:{i*1024}")
    a("s_waitcnt vmcnt(3)")
    a(f"v_add_u32 v{vT}, s{sKVL}, v{vL16}")
    for f in range(4):
        a(f"ds_read_b128 {vr(Kx+4*f,4)}, v{vT} offset:{f*1024}")
    if cfg.get("ack1"): a("s_waitcnt vmcnt(0)")
    pad(cfg.get("d1", 30))
    def x1_issue(r):
        a(f"buffer_load_dwordx4 {vr(r,4)}, v{vX1l}, {W}, s{sX1a} offen sc1")
        a(f"buffer_load_dwordx4 {vr(r+4,4)}, v{vX1l}, {W}, s{sX1a} offen offset:1024 sc1")
    def x1_check(r, n):
        a(f"s_waitcnt vmcnt({n+1})")
        mfma(104, 40, r, None)
        a(f"s_waitcnt vmcnt({n})")
        mfma(104, 40, r + 4, 104)
        a(f"v_bitop3_b32 v{vT}, v{r}, v{r+4}, s{sTag} bitop3:0x7e")
        a(f"v_and_b32 v{vT}, 1, v{vT}")
        a(f"v_cmp_ne_u32 vcc, 0, v{vT}")
    stamp("x1iss")
    x1_issue(96)
    a("s_waitcnt lgkmcnt(12)")
    if two:
        pad(cfg.get("g1", 35))
        x1_issue(112)
        x1_check(96, 2)
    else:
        x1_check(96, 0)
    a(f"s_cbranch_vccnz L_chain_x1b{tag}")
    a.label(f"L_chain_x1ok{tag}")
    stamp("x1ok")
    if cfg.get("count_redo"):
        a(f"s_lshl_b32 s{sT0}, s{sSPIN}, 16")
        a(f"s_add_u32 s31, s31, s{sT0}")
    a(f"s_xor_b32 s{sTag}, s{sTag}, 1")
    a(f"v_add_f32_dpp v104, v104, v104 row_ror:4 row_mask:0xf bank_mask:0xf")
    a(f"v_add_f32_dpp v105, v105, v105 row_ror:4 row_mask:0xf bank_mask:0xf")
    a(f"v_add_f32_dpp v104, v104, v104 row_ror:8 row_mask:0xf bank_mask:0xf")
    a(f"v_add_f32_dpp v105, v105, v105 row_ror:8 row_mask:0xf bank_mask:0xf")
    a(f"v_cvt_pk_bf16_f32 v{vR}, v104, v105")
    a(f"v_min_u32 v{vR}, -2, v{vR}")
    if stamp.on:
        a(f"s_cmp_eq_u32 s{sStep}, {cfg.get('stamp_step', 40)}")
        a(f"s_cbranch_scc0 L_chain_loop{tag}")
        a("s_waitcnt lgkmcnt(0)")
        a(f"s_lshl_b32 s{sT0}, s{sMEMB}, 2")
        a(f"s_add_u32 s{sT0}, s{sT0}, s{sWAVE}")
        a(f"s_lshl_b32 s{sT1}, s{sLAY}, 7")
        a(f"s_add_u32 s{sT0}, s{sT0}, s{sT1}")
        a(f"s_lshl_b32 s{sT0}, s{sT0}, 6")
        a(f"s_add_u32 s{sT0}, s{sT0}, {OFF_STAMP:#x}")
        a(f"v_mov_b32 v108, 0")
        for i in range(stamp.n):
            a(f"v_mov_b32 v109, s{stamp.base+2*i}")
            a(f"buffer_store_dword v109, v108, {W}, s{sT0} offen offset:{4*i}")
        cfg["stamp_names"] = stamp.names
    a(f"s_branch L_chain_loop{tag}")
    a.label(f"L_chain_x1b{tag}")
    x1_issue(96)
    spin_tick(a)
    if two:
        x1_check(112, 2)
        a(f"s_cbranch_vccz L_chain_x1ok{tag}")
        x1_issue(112)
        spin_tick(a)
        x1_check(96, 2)
    else:
        x1_check(96, 0)
    a(f"s_cbranch_vccz L_chain_x1ok{tag}")
    a(f"s_branch L_chain_x1b{tag}")
    a.label(f"L_chain_x2b{tag}")
    x2_issue(A)
    spin_tick(a)
    if two:
        x2_check(A + 8, 2)
        a(f"s_cbranch_vccz L_chain_x2c{tag}")
        x2_issue(A + 8)
        spin_tick(a)
        x2_check(A, 2)
    else:
        x2_check(A, 0)
    a(f"s_cbranch_vccz L_chain_x2ok{tag}")
    a(f"s_branch L_chain_x2b{tag}")
    if two:
        a.label(f"L_chain_x2c{tag}")
        for i in range(4):
            a(f"v_mov_b64 {vr(A+2*i,2)}, {vr(A+8+2*i,2)} ; sameval")
        a(f"s_branch L_chain_x2ok{tag}")
    a.label(f"L_chain_last{tag}")
    if cfg.get("count_redo"):
        a("s_memrealtime s[70:71]")
        a("s_memtime s[72:73]")
        a(f"s_lshl_b32 s{sT0}, s{sMEMB}, 2")
        a(f"s_add_u32 s{sT0}, s{sT0}, s{sWAVE}")
        a(f"s_lshl_b32 s{sT1}, s{sLAY}, 7")
        a(f"s_add_u32 s{sT0}, s{sT0}, s{sT1}")
        a(f"s_lshl_b32 s{sT0}, s{sT0}, 6")
        a(f"s_add_u32 s{sT0}, s{sT0}, {OFF_STAMP:#x}")
        a(f"v_mov_b32 v108, 0")
        a("s_waitcnt lgkmcnt(0)")
        a(f"s_sub_u32 s70, s70, s100")
        a(f"s_sub_u32 s72, s72, s98")
        for i, r in enumerate((72, 31, 70, 101)):
            a(f"v_mov_b32 v109, s{r}")
            a(f"buffer_store_dword v109, v108, {W}, s{sT0} offen offset:{48+4*i}")
    a(f"buffer_store_dword v{vR}, v{vX2s}, {W}, s{sMemOff} offen sc1")
    a("s_waitcnt vmcnt(0) lgkmcnt(0)")
    a("s_branch L_exit")
    a.label(f"L_chain_kvwait{tag}")
    a(f"s_cmp_ge_u32 s{sStep}, 62")
    a(f"s_cbranch_scc1 L_chain_kvok{tag}")
    spin_init(a)
    lab = a.newlab("L_kvspin")
    a.label(lab)
    a(f"buffer_load_dword v{vOnes}, off, {W}, s{sFO} sc1")
    spin_tick(a)
    a("s_waitcnt vmcnt(0)")
    a(f"v_cmp_eq_u32 vcc, 0, v{vOnes}")
    a(f"s_cbranch_vccz L_chain_kvok{tag}")
    a("s_sleep 1")
    a(f"s_branch {lab}")
```

```python
from asmlib import *
from layout import *
import struct

KNAME = "interleave_layers__memory_aug_recurrent_mem_tr__sliding_local_dilated__prompt_kernel"

sX, sMEM0, sWQ, sWK, sWV, sWO = 4, 6, 8, 10, 12, 14
sWB, sWBO, sOUT, sDBG, sWSP = 20, 22, 24, 26, 28
sWS = 32
sWT = 36
sIN = 40
sGRP, sMEMB, sWAVE, sLAY = 44, 45, 46, 47
sSPIN = 30
sLOCAL = 3
sSIG = 2
sT0, sT1, sT2, sT3 = 48, 49, 50, 51
sFB = 52
sFV = 54
SPIN_MAX = 1 << 19
OOB = 0x80000000

def fbits(x):
    return struct.unpack("<I", struct.pack("<f", x))[0]

def set_srd(a, srd, ptr, nbytes):
    a(f"s_mov_b32 s{srd}, s{ptr}")
    a(f"s_mov_b32 s{srd+1}, s{ptr+1}")
    a(f"s_mov_b32 s{srd+2}, {nbytes:#x}")
    a(f"s_mov_b32 s{srd+3}, 0x20000")

def spin_init(a):
    a(f"s_mov_b32 s{sSPIN}, 0")

def spin_tick(a):
    a(f"s_add_u32 s{sSPIN}, s{sSPIN}, 1")
    a(f"s_cmp_gt_u32 s{sSPIN}, {SPIN_MAX}")
    a("s_cbranch_scc1 L_exit")

class Stamps:
    def __init__(self, a, on, base=70, only=None):
        self.a = a; self.on = on; self.base = base; self.n = 0; self.names = []; self.only = only
    def __call__(self, name, extra=False):
        if not self.on: return
        if self.only is None and extra: return
        if self.only is not None and name not in self.only: return
        r = self.base + 2 * self.n
        self.names.append(name); self.n += 1
        assert r + 1 < 92
        self.a(f"s_memtime s[{r}:{r+1}]")

def wait_init(a):
    lab = a.newlab("L_winit"); done = a.newlab("L_wdone")
    a(f"s_cmp_lg_u32 s{sWAVE}, 0")
    a(f"s_cbranch_scc1 {done}")
    spin_init(a)
    a.label(lab)
    a(f"s_load_dword s{sFV}, s[{sDBG}:{sDBG+1}], 0x80 glc")
    spin_tick(a)
    a("s_waitcnt lgkmcnt(0)")
    a(f"s_cmp_ge_u32 s{sFV}, 256")
    a(f"s_cbranch_scc1 {done}")
    a("s_sleep 12")
    a(f"s_branch {lab}")
    a.label(done)
    a("s_barrier")
    a(f"s_lshl_b32 s{sFV}, s{sGRP}, 4")
    a(f"s_load_dword s{sFV}, s[{sDBG}:{sDBG+1}], s{sFV} glc")
    a("s_waitcnt lgkmcnt(0)")
    a(f"s_cmp_ge_u32 s{sFV}, 32")
    a(f"s_cselect_b32 s{sLOCAL}, 1, 0")

def signal_init(a):
    lab = a.newlab("L_sig")
    a(f"s_cmp_lg_u32 s{sSIG}, 0")
    a(f"s_cbranch_scc1 {lab}")
    a(f"s_mov_b32 s{sSIG}, 1")
    a(f"s_atomic_add s{sSIG}, s[{sDBG}:{sDBG+1}], 0x80")
    a("s_waitcnt lgkmcnt(0)")
    a.label(lab)

def sel_consts(a, vlane, tmp, selM=None, selLo=None, selHi=None, selT=None):
    t0, t1, t2, t3 = tmp, tmp + 1, tmp + 2, tmp + 3
    a(f"v_and_b32 v{t0}, 1, v{vlane}")
    a(f"v_lshlrev_b32 v{t0}, 4, v{t0}")
    a(f"v_mov_b32 v{t1}, 0x3f80")
    a(f"v_lshlrev_b32 v{t0}, v{t0}, v{t1}")
    a(f"v_bfe_u32 v{t1}, v{vlane}, 1, 2")
    a(f"v_bfe_u32 v{t2}, v{vlane}, 3, 1")
    for e in range(4):
        a(f"v_cmp_eq_u32 vcc, {e}, v{t1}")
        a(f"v_cndmask_b32 v{t3}, 0, v{t0}, vcc")
        if selM is not None: a(f"v_mov_b32 v{selM+e}, v{t3}")
        if selLo is not None:
            a(f"v_cmp_eq_u32 vcc, 0, v{t2}")
            a(f"v_cndmask_b32 v{selLo+e}, 0, v{t3}, vcc")
        if selHi is not None:
            a(f"v_cmp_eq_u32 vcc, 1, v{t2}")
            a(f"v_cndmask_b32 v{selHi+e}, 0, v{t3}, vcc")
    if selT is not None:
        a(f"v_bfe_u32 v{t1}, v{vlane}, 2, 1")
        a(f"v_bfe_u32 v{t3}, v{vlane}, 4, 1")
        a(f"v_cmp_eq_u32 vcc, v{t1}, v{t3}")
        a(f"v_cndmask_b32 v{t0}, 0, v{t0}, vcc")
        a(f"v_bfe_u32 v{t1}, v{vlane}, 1, 1")
        a(f"v_lshl_add_u32 v{t1}, v{t2}, 1, v{t1}")
        for e in range(4):
            a(f"v_cmp_eq_u32 vcc, {e}, v{t1}")
            a(f"v_cndmask_b32 v{selT+e}, 0, v{t0}, vcc")

def smf_index(a, vlane, vidx, tmp):
    a(f"v_mov_b32 v{vidx}, 0x44444444")
    a(f"v_mov_b32 v{tmp}, 0xeeeeeeee")
    a(f"v_and_b32 v{tmp+1}, 8, v{vlane}")
    a(f"v_cmp_ne_u32 vcc, 0, v{tmp+1}")
    a(f"v_cndmask_b32 v{vidx}, v{vidx}, v{tmp}, vcc")

def load_chunks(a, chunks, sLdsBase, nslots=8):
    def issue(c):
        ch = chunks[c]; slot = c % nslots
        ch["setup"]()
        a(f"s_add_u32 m0, s{sLdsBase}, {slot*4096}")
        for q in range(4):
            if q: a(f"s_add_u32 s{sT0}, s{sT0}, {ch['dstep']-1024}")
            a(f"buffer_load_dwordx4 v{ch['vdma']}, s[{sWT}:{sWT+3}], s{sT0} offen offset:{q*1024} lds")
    n = len(chunks)
    for c in range(min(nslots, n)): issue(c)
    for c in range(n):
        inflight = min(nslots, n - c)
        a(f"s_waitcnt vmcnt({4*(inflight-1)})")
        chunks[c]["consume"]((c % nslots) * 4096)
        if c + nslots < n: issue(c + nslots)

def qkv_dma_addr(a, vlane, vdst, tmp, rowbytes):
    a(f"v_bfe_u32 v{tmp}, v{vlane}, 2, 1")
    a(f"v_lshlrev_b32 v{vdst}, 5, v{tmp}")
    a(f"v_bfe_u32 v{tmp}, v{vlane}, 3, 1")
    a(f"v_lshl_add_u32 v{vdst}, v{tmp}, 4, v{vdst}")
    a(f"v_bfe_u32 v{tmp}, v{vlane}, 4, 2")
    a(f"v_add_u32 v{vdst}, v{vdst}, v{tmp}")
    a(f"v_mul_u32_u24 v{vdst}, {rowbytes}, v{vdst}")
    a(f"v_and_b32 v{tmp}, 3, v{vlane}")
    a(f"v_lshl_add_u32 v{vdst}, v{tmp}, 4, v{vdst}")

def qkv_tr_addr(a, vlane, vdst, tmp, sLdsBase):
    a(f"v_lshrrev_b32 v{tmp}, 4, v{vlane}")
    a(f"v_lshlrev_b32 v{vdst}, 9, v{tmp}")
    a(f"v_bfe_u32 v{tmp}, v{vlane}, 2, 2")
    a(f"v_lshl_add_u32 v{vdst}, v{tmp}, 6, v{vdst}")
    a(f"v_and_b32 v{tmp}, 3, v{vlane}")
    a(f"v_lshl_add_u32 v{vdst}, v{tmp}, 3, v{vdst}")
    a(f"v_add_u32 v{vdst}, s{sLdsBase}, v{vdst}")

def qkv_tr_reads(a, vaddr, slotoff, dst0, dst1):
    for t, dst in ((0, dst0), (1, dst1)):
        for e4 in range(4):
            off = slotoff + (32 * (e4 >> 1) + 4 * (e4 & 1)) * 64 + t * 32
            a(f"ds_read_b64_tr_b16 {xr(dst+2*e4,2)}, v{vaddr} offset:{off}")

def poll_flags(a, vtmp, voff, soff, sleep=2):
    lab = a.newlab("L_pf"); done = a.newlab("L_pfd")
    spin_init(a)
    a.label(lab)
    a(f"buffer_load_dword v{vtmp}, v{voff}, s[{sWS}:{sWS+3}], s{soff} offen sc1")
    spin_tick(a)
    a("s_waitcnt vmcnt(0)")
    a(f"v_cmp_eq_u32 vcc, 0, v{vtmp}")
    a(f"s_cbranch_vccz {done}")
    if sleep: a(f"s_sleep {sleep}")
    a(f"s_branch {lab}")
    a.label(done)

def set_flag(a, vone, soff, imm=0, mod=" sc1"):
    a("s_mov_b64 exec, 1")
    a(f"buffer_store_dword v{vone}, off, s[{sWS}:{sWS+3}], s{soff} offset:{imm}{mod}")
    a("s_mov_b64 exec, -1")

def xlane_g(a, op, m, t):
    a(f"v_mov_b32 v{t}, v{m}")
    a(f"v_permlane16_swap_b32 v{m}, v{t}")
    a(f"{op} v{m}, v{m}, v{t}")
    a(f"v_mov_b32 v{t}, v{m}")
    a(f"v_permlane32_swap_b32 v{m}, v{t}")
    a(f"{op} v{m}, v{m}, v{t}")

def dump_stamps(a, stamp, cfg, row_sgpr_calc):
    a("s_waitcnt lgkmcnt(0)")
    row_sgpr_calc()
    a(f"s_lshl_b32 s{sT0}, s{sT0}, 6")
    a(f"s_add_u32 s{sT0}, s{sT0}, {OFF_STAMP:#x}")
    for i in range(stamp.n):
        a(f"v_mov_b32 v127, s{stamp.base+2*i}")
        a(f"buffer_store_dword v127, off, s[{sWS}:{sWS+3}], s{sT0} offset:{4*i}")
    a("s_waitcnt vmcnt(0)")
    cfg["stamp_names"] = stamp.names

sTR = 68
def trace_setup(a, cfg):
    if not cfg.get("trace"): return
    a(f"s_lshl_b32 s{sTR}, s{sGRP}, 7")
    a(f"s_lshl_b32 s{sTR+1}, s{sMEMB}, 2")
    a(f"s_add_u32 s{sTR}, s{sTR}, s{sTR+1}")
    a(f"s_add_u32 s{sTR}, s{sTR}, s{sWAVE}")
    a(f"s_lshl_b32 s{sTR}, s{sTR}, 11")
    a(f"s_add_u32 s{sTR}, s{sTR}, {OFF_STAMP+0x20000:#x}")
def trace(a, cfg, ev, sidx, vtmp):
    if not cfg.get("trace"): return
    a("s_memrealtime s[100:101]")
    if sidx is None: a(f"s_mov_b32 s{sTR+1}, s{sTR}")
    else:
        a(f"s_and_b32 s{sTR+1}, s{sidx}, 63")
        a(f"s_lshl_b32 s{sTR+1}, s{sTR+1}, 2")
        a(f"s_add_u32 s{sTR+1}, s{sTR+1}, s{sTR}")
    a("s_waitcnt lgkmcnt(0)")
    a(f"v_mov_b32 v{vtmp}, s100")
    a(f"buffer_store_dword v{vtmp}, off, s[{sWS}:{sWS+3}], s{sTR+1} offset:{ev*256}")

def late_start(a, cfg):
    if cfg.get("noinit") or cfg.get("nolate"): return
    skip = a.newlab("L_nolate"); lab = a.newlab("L_late"); done = a.newlab("L_lated")
    a(f"s_cmp_eq_u32 s{sLAY}, 0")
    a(f"s_cbranch_scc1 {skip}")
    a(f"s_cmp_lg_u32 s{sWAVE}, 0")
    a(f"s_cbranch_scc1 {done}")
    spin_init(a)
    a.label(lab)
    a(f"s_load_dword s{sFV}, s[{sDBG}:{sDBG+1}], 0xc4 glc")
    a(f"s_add_u32 s{sSPIN}, s{sSPIN}, 1")
    a(f"s_cmp_gt_u32 s{sSPIN}, 200")
    a(f"s_cbranch_scc1 {done}")
    a("s_waitcnt lgkmcnt(0)")
    a(f"s_cmp_ge_u32 s{sFV}, {cfg.get('late_n', 32)}")
    a(f"s_cbranch_scc1 {done}")
    a("s_sleep 12")
    a(f"s_branch {lab}")
    a.label(done)
    a("s_waitcnt lgkmcnt(0)")
    a("s_barrier")
    a.label(skip)

def late_signal(a, cfg):
    if cfg.get("noinit") or cfg.get("nolate"): return
    lab = a.newlab("L_lsig")
    a(f"s_or_b32 s{sT0}, s{sLAY}, s{sWAVE}")
    a(f"s_cbranch_scc1 {lab}")
    a(f"s_mov_b32 s{sT0}, 1")
    a(f"s_atomic_add s{sT0}, s[{sDBG}:{sDBG+1}], 0xc4")
    a("s_waitcnt lgkmcnt(0)")
    a.label(lab)

def warm_weights(a, cfg, share, nshare):
    if cfg.get("noinit") or cfg.get("nowarm"): return
    a("v_lshlrev_b32 v100, 4, v0")
    n = 0
    per = 0x400000 // (nshare * 32 * 4096)
    for ptr in (sWK, sWV, sWO, sWQ):
        set_srd(a, sWT, ptr, 0x400000)
        a(f"s_lshl_b32 s{sT0}, s{sMEMB}, 12")
        a(f"s_add_u32 s{sT0}, s{sT0}, {share * 32 * 4096}")
        for i in range(per):
            if i: a(f"s_add_u32 s{sT0}, s{sT0}, {nshare * 32 * 4096}")
            if n >= 32: a("s_waitcnt vmcnt(31)")
            a(f"buffer_load_dwordx4 {ar((n % 32) * 4, 4)}, v100, s[{sWT}:{sWT+3}], s{sT0} offen")
            n += 1
    a("s_waitcnt vmcnt(0)")
```

```python
from gen_common import *

def role_wa(a, cfg):
    stamp = Stamps(a, cfg.get("stamp") == "wa", base=4, only=cfg.get("only"))
    W = f"s[{sWS}:{sWS+3}]"
    vL16, vIdx, vF8, vOne, vHw, vHr, vT, vT2 = 1, 2, 3, 4, 5, 6, 7, 8
    vKMw, vVr, vNeg = 9, 10, 11
    Sel16 = 12
    XR = 16
    KA, VA, QA = 40, 56, 72
    PK = 88
    WQ, WK, WV = 128, 256, 384
    sI, sSeg, sXn, sFl, sKVo, sMem, sO, sFlA, sHold, sLds, sPar, sC = 55, 56, 57, 58, 59, 60, 61, 62, 63, 66, 67, 96
    sMask = 76
    XN, HOLD, KM, VM = 0, 0x10000, 0x1C000, 0x1D000
    cvt = lambda d, s: a(f"v_cvt_pk_bf16_f32 v{d}, v{s}, v{s+1}")
    def mfma(d, x, y, c):
        a(f"v_mfma_f32_16x16x32_bf16 {vr(d,4)}, {xr(x,4)}, {xr(y,4)}, {vr(c,4) if c is not None else 0}")
    a.label("L_wa")
    a(f"s_mov_b32 s{sPar}, s{sT3}")
    a("v_and_b32 v0, 63, v0")
    a(f"v_lshlrev_b32 v{vL16}, 4, v0")
    a(f"s_lshl_b32 s{sLds}, s{sWAVE}, 15")
    vD, vTR = 96, 97
    qkv_dma_addr(a, 0, vD, vT, 8192)
    qkv_tr_addr(a, 0, vTR, vT, sLds)
    a(f"s_lshl_b32 s{sT2}, s{sMEMB}, 8")
    a(f"s_lshl_b32 s{sT1}, s{sWAVE}, 6")
    a(f"s_add_u32 s{sT2}, s{sT2}, s{sT1}")
    late_start(a, cfg)
    chunks = []
    for ptr, base in ((sWK, WK), (sWV, WV), (sWQ, WQ)):
        for jj in range(8):
            def setup(ptr=ptr, jj=jj):
                if jj == 0: set_srd(a, sWT, ptr, 0x400000)
                a(f"s_add_u32 s{sT0}, s{sT2}, {jj << 19}")
            def consume(so, jj=jj, base=base):
                qkv_tr_reads(a, vTR, so, base + jj * 16, base + jj * 16 + 8)
                a("s_waitcnt lgkmcnt(0)")
            chunks.append(dict(setup=setup, vdma=vD, dstep=4 * 8192, consume=consume))
    load_chunks(a, chunks, sLds)
    late_signal(a, cfg)
    trace(a, cfg, 6, None, vT)
    wfrag = lambda base, ks, t: base + (ks >> 1) * 16 + t * 8 + (ks & 1) * 4
    smf_index(a, 0, vIdx, 96)
    a(f"v_and_b32 v{vF8}, 7, v0")
    a(f"v_lshlrev_b32 v{vF8}, 2, v{vF8}")
    a(f"v_mov_b32 v{vOne}, 1")
    a(f"v_mov_b32 v{vNeg}, {fbits(-1e9 * 128**0.5):#x}")
    a("v_and_b32 v96, 1, v0")
    a("v_lshlrev_b32 v96, 4, v96")
    a("v_mov_b32 v97, 0x3f80")
    a("v_lshlrev_b32 v96, v96, v97")
    a("v_bfe_u32 v97, v0, 2, 1")
    a("v_bfe_u32 v98, v0, 4, 1")
    a("v_cmp_eq_u32 vcc, v97, v98")
    a("v_cndmask_b32 v96, 0, v96, vcc")
    a("v_bfe_u32 v97, v0, 1, 1")
    for e in range(2):
        a(f"v_cmp_eq_u32 vcc, {e}, v97")
        a(f"v_cndmask_b32 v{Sel16+e}, 0, v96, vcc")
    a(f"s_and_b32 s{sT0}, s{sWAVE}, 1")
    a("v_and_b32 v96, 15, v0")
    a(f"v_lshl_add_u32 v96, v96, 1, s{sT0}")
    a("v_lshrrev_b32 v97, 4, v0")
    a("v_lshlrev_b32 v97, 3, v97")
    for up in range(2):
        for r in range(4):
            a(f"v_add_u32 v98, {2*r+up}, v97")
            a(f"v_cmp_le_u32 s[{sMask+2*(up*4+r)}:{sMask+2*(up*4+r)+1}], v98, v96")
    a(f"s_lshl_b32 s{sT1}, s{sWAVE}, 11")
    a(f"s_add_u32 s{sT1}, s{sT1}, {HOLD}")
    a(f"v_add_u32 v{vHw}, s{sT1}, v{vL16}")
    a(f"s_lshl_b32 s{sT1}, s{sT0}, 10")
    a(f"s_add_u32 s{sT1}, s{sT1}, {HOLD+0x6000}")
    a(f"v_add_u32 v{vHr}, s{sT1}, v{vL16}")
    a(f"s_lshl_b32 s{sT1}, s{sWAVE}, 10")
    a(f"s_add_u32 s{sT1}, s{sT1}, {KM}")
    a(f"v_add_u32 v{vKMw}, s{sT1}, v{vL16}")
    a(f"s_mov_b32 s{sHold}, 0x6000")
    a(f"s_mov_b32 s{sI}, 0")
    a(f"s_lshl_b32 s{sT0}, s{sLAY}, 6")
    a(f"s_add_u32 s{sSeg}, s{sT0}, s{sPar}")
    a(f"s_mov_b32 s{sC}, {fbits(128**-0.5*1.4426950408889634):#x}")
    a(f"s_mov_b32 s{sC+1}, s{sC}")
    if not cfg.get("noinit"): wait_init(a)
    else: a("s_barrier")
    vF = 14
    sPre, sPend, sXnN, sFlN = 92, 93, 94, 95
    a(f"s_mov_b32 s{sPre}, 0")
    a(f"s_mov_b32 s{sPend}, 0")
    def xn_dma(sseg):
        a(f"s_lshl_b32 s{sXn}, s{sseg}, 15")
        a(f"s_lshl_b32 s{sT0}, s{sWAVE}, 13")
        a(f"s_add_u32 s{sXn}, s{sXn}, s{sT0}")
        a(f"s_add_u32 s{sXn}, s{sXn}, {OFF_XN:#x}")
        a(f"s_mov_b32 m0, s{sT0}")
        for i in range(8):
            if i == 4:
                a(f"s_add_u32 m0, s{sT0}, 4096")
                a(f"s_add_u32 s{sXn}, s{sXn}, 4096")
            a(f"buffer_load_dwordx4 v{vL16}, {W}, s{sXn} offen offset:{(i%4)*1024} sc1 lds")
    MA = 40
    km, vm = 16, 24
    sMem2 = 64
    def mem_loads():
        return [f"buffer_load_dwordx4 {vr(MA+4*jj,4)}, v{vL16}, {W}, s{sMem if jj < 4 else sMem2} offen offset:{(jj%4)*1024} sc1" for jj in range(8)]
    a.label("L_wa_loop")
    stamp("top")
    a(f"s_lshl_b32 s{sFl}, s{sSeg}, 11")
    a(f"s_add_u32 s{sFlN}, s{sFl}, 4096")
    a(f"s_sub_u32 s{sT0}, s{sSeg}, 2")
    a(f"s_lshl_b32 s{sMem}, s{sT0}, 13")
    a(f"s_add_u32 s{sMem}, s{sMem}, {OFF_MEM:#x}")
    a(f"s_add_u32 s{sMem2}, s{sMem}, 4096")
    a(f"s_cmp_eq_u32 s{sI}, 32")
    a("s_cbranch_scc1 L_wa_noqkv")
    a(f"s_cmp_eq_u32 s{sPre}, 1")
    a("s_cbranch_scc1 L_wa_pre")
    poll_flags(a, vT, vF8, sFl)
    xn_dma(sSeg)
    a.label("L_wa_pre")
    trace(a, cfg, 0, sSeg, vT)
    a(f"s_lshl_b32 s{sKVo}, s{sSeg}, 19")
    a(f"s_lshl_b32 s{sT0}, s{sMEMB}, 2")
    a(f"s_add_u32 s{sT0}, s{sT0}, s{sWAVE}")
    a(f"s_lshl_b32 s{sT1}, s{sT0}, 12")
    a(f"s_add_u32 s{sKVo}, s{sKVo}, s{sT1}")
    a(f"s_add_u32 s{sKVo}, s{sKVo}, {OFF_KV:#x}")
    a(f"s_lshl_b32 s{sT0}, s{sT0}, 2")
    a(f"s_add_u32 s{sFl}, s{sFl}, s{sT0}")
    a("s_waitcnt vmcnt(2)")
    a(f"s_cmp_eq_u32 s{sPend}, 1")
    a("s_cbranch_scc1 L_wa_b1")
    a("s_waitcnt vmcnt(0)")
    a.label("L_wa_b1")
    a("s_barrier")
    stamp("staged")
    def xread(step):
        sl = XR + (step % 3) * 8; ks = step % 16
        return [f"ds_read_b128 {vr(sl,4)}, v{vL16} offset:{XN+ks*2048}", f"ds_read_b128 {vr(sl+4,4)}, v{vL16} offset:{XN+ks*2048+1024}"]
    for x in xread(0) + xread(1): a(x)
    for ks in range(16):
        sl = XR + (ks % 3) * 8
        rd = xread(ks + 2)
        a("s_waitcnt lgkmcnt(2)")
        c0 = lambda x: None if ks == 0 else x
        for u in range(2):
            for t in range(2):
                mfma(KA + (t * 2 + u) * 4, wfrag(WK, ks, t), sl + 4 * u, c0(KA + (t * 2 + u) * 4))
                if rd: a(rd.pop(0))
            for t in range(2):
                mfma(VA + (u * 2 + t) * 4, sl + 4 * u, wfrag(WV, ks, t), c0(VA + (u * 2 + t) * 4))
        if ks == cfg.get("oflag_ks", 4):
            lab = a.newlab("L_nopend")
            a(f"s_cmp_eq_u32 s{sPend}, 0")
            a(f"s_cbranch_scc1 {lab}")
            a("s_waitcnt vmcnt(0)")
            set_flag(a, vOne, sFlA, F_O)
            a(f"s_mov_b32 s{sPend}, 0")
            if cfg.get("trace"):
                a(f"s_sub_u32 s{sT0}, s{sSeg}, 4")
                trace(a, cfg, 3, sT0, vT)
            a.label(lab)
    stamp("kvpass", True)
    side = []
    for u in range(2):
        d = PK + 4 * u
        side += [f"v_cvt_pk_bf16_f32 v{d+2*t+hh}, v{KA+(t*2+u)*4+2*hh}, v{KA+(t*2+u)*4+2*hh+1}" for t in range(2) for hh in range(2)]
        side += [f"buffer_store_dwordx4 {vr(d,4)}, v{vL16}, {W}, s{sKVo} offen offset:{u*1024} sc1"]
    for t in range(2):
        d = PK + 8 + 4 * t
        side += [f"v_cvt_pk_bf16_f32 v{d+2*u+hh}, v{VA+(u*2+t)*4+2*hh}, v{VA+(u*2+t)*4+2*hh+1}" for u in range(2) for hh in range(2)]
        side += [f"buffer_store_dwordx4 {vr(d,4)}, v{vL16}, {W}, s{sKVo} offen offset:{2048+t*1024} sc1"]
    late = mem_loads() + [f"buffer_load_dword v{vF}, v{vF8}, {W}, s{sFlN} offen sc1"]
    hw = [f"ds_write_b128 v{vHw}, {vr(PK+4*i,4)} offset:{(0x2000 if i < 2 else 0x4000) + (i%2)*1024}" for i in range(4)]
    nhw = 0
    for ks in range(16):
        k3 = ks + 16
        sl = XR + (k3 % 3) * 8
        rd = xread(k3 + 2) if ks + 2 < 16 else []
        a(f"s_waitcnt lgkmcnt({(2 if ks < 15 else 0) + nhw})")
        nhw = 0
        c0 = lambda x: None if ks == 0 else x
        n = 0
        for u in range(2):
            for t in range(2):
                mfma(QA + (t * 2 + u) * 4, wfrag(WQ, ks, t), sl + 4 * u, c0(QA + (t * 2 + u) * 4))
                n += 1
                if rd: a(rd.pop(0))
                if ks >= 1 and side: a(side.pop(0))
                elif ks >= 6 and hw and n == 3: a(hw.pop(0)); nhw += 1
                elif ks >= 10 and late and n >= 3: a(late.pop(0))
    assert not side and not hw and not late
    a("s_waitcnt vmcnt(9)")
    set_flag(a, vOne, sFl, F_KV)
    trace(a, cfg, 1, sSeg, vT)
    for u in range(2):
        d = PK + 16 + 4 * u
        for t in range(2):
            cvt(d + 2 * t, QA + (t * 2 + u) * 4); cvt(d + 2 * t + 1, QA + (t * 2 + u) * 4 + 2)
        a(f"ds_write_b128 v{vHw}, {vr(d,4)} offset:{u*1024}")
    stamp("qkv")
    a(f"s_cmp_eq_u32 s{sI}, 0")
    a("s_cbranch_scc1 L_wa_b2")
    def mem_check(base):
        for i in range(8): a(f"v_mov_b64 {vr(km+2*i,2)}, 0")
        for jj in range(8):
            a(f"s_waitcnt vmcnt({7-jj+base})")
            r = MA + 4 * jj
            if jj == 0:
                a(f"v_max3_u32 v{vT}, v{r}, v{r+1}, v{r+2}")
                a(f"v_max_u32 v{vT}, v{vT}, v{r+3}")
            else:
                a(f"v_max3_u32 v{vT}, v{vT}, v{r}, v{r+1}")
                a(f"v_max3_u32 v{vT}, v{vT}, v{r+2}, v{r+3}")
        a(f"v_cmp_eq_u32 vcc, -1, v{vT}")
    mem_check(2)
    a("s_cbranch_vccz L_wa_memok")
    a("s_branch L_wa_probe0")
    a.label("L_wa_noqkv")
    a("s_barrier")
    a.label("L_wa_probe0")
    a(f"s_lshl_b32 s{sT2}, s{sMEMB}, 2")
    a(f"s_add_u32 s{sT2}, s{sT2}, s{sWAVE}")
    a(f"s_lshl_b32 s{sT2}, s{sT2}, 6")
    a(f"s_add_u32 s{sT2}, s{sT2}, s{sMem}")
    spin_init(a)
    a.label("L_wa_probe")
    a(f"buffer_load_dword v{vT}, off, {W}, s{sT2} sc1")
    spin_tick(a)
    a("s_waitcnt vmcnt(0)")
    a(f"v_cmp_eq_u32 vcc, -1, v{vT}")
    a("s_cbranch_vccz L_wa_mem")
    a("s_sleep 1")
    a("s_branch L_wa_probe")
    a.label("L_wa_mem")
    for x in mem_loads(): a(x)
    a(f"buffer_load_dword v{vF}, v{vF8}, {W}, s{sFlN} offen sc1")
    spin_tick(a)
    mem_check(1)
    a("s_waitcnt vmcnt(0)")
    a("s_cbranch_vccnz L_wa_mem")
    a.label("L_wa_memok")
    stamp("mem")
    a(f"s_sub_u32 s{sT0}, s{sSeg}, 2")
    trace(a, cfg, 2, sT0, vT)
    sal = []
    sal += [f"s_lshl_b32 s{sO}, s{sT0}, 18", f"s_lshl_b32 s{sT2}, s{sMEMB}, 13", f"s_add_u32 s{sO}, s{sO}, s{sT2}",
            f"s_lshr_b32 s{sT2}, s{sWAVE}, 1", f"s_lshl_b32 s{sT2}, s{sT2}, 12", f"s_add_u32 s{sO}, s{sO}, s{sT2}",
            f"s_and_b32 s{sT2}, s{sWAVE}, 1", f"s_lshl_b32 s{sT2}, s{sT2}, 10", f"s_add_u32 s{sO}, s{sO}, s{sT2}",
            f"s_add_u32 s{sO}, s{sO}, {OFF_O:#x}",
            f"s_lshl_b32 s{sFlA}, s{sT0}, 11", f"s_lshl_b32 s{sT2}, s{sMEMB}, 2", f"s_add_u32 s{sT2}, s{sT2}, s{sWAVE}",
            f"s_lshl_b32 s{sT2}, s{sT2}, 2", f"s_add_u32 s{sFlA}, s{sFlA}, s{sT2}"]
    for jj in range(8):
        for t in range(2):
            a(f"v_smfmac_f32_16x16x64_bf16 {vr(km+4*t,4)}, {vr(MA+4*jj,4)}, {xr(WK+jj*16+t*8,8)}, v{vIdx}")
            if sal: a(sal.pop(0))
    for jj in range(8):
        for t in range(2):
            a(f"v_smfmac_f32_16x16x64_bf16 {vr(vm+4*t,4)}, {vr(MA+4*jj,4)}, {xr(WV+jj*16+t*8,8)}, v{vIdx}")
        if jj == 1:
            cvt(72, km); cvt(73, km + 2); cvt(74, km + 4); cvt(75, km + 6)
        if jj == 2:
            a(f"v_mfma_f32_16x16x16_bf16 v[76:79], v[72:73], {vr(Sel16,2)}, 0")
            a(f"v_mfma_f32_16x16x16_bf16 v[80:83], v[74:75], {vr(Sel16,2)}, 0")
        if jj == 4:
            cvt(72, 76); cvt(73, 78); cvt(74, 80); cvt(75, 82)
            a(f"ds_write_b128 v{vKMw}, v[72:75]")
    cvt(76, vm); cvt(77, vm + 2); cvt(78, vm + 4); cvt(79, vm + 6)
    a(f"ds_write_b128 v{vKMw}, v[76:79] offset:{VM-KM}")
    a.label("L_wa_b2")
    a("s_waitcnt vmcnt(1) lgkmcnt(0)")
    a(f"v_cmp_eq_u32 vcc, 0, v{vF}")
    a("s_barrier")
    stamp("kvmem")
    a(f"s_mov_b32 s{sPre}, 0")
    a("s_cbranch_vccnz L_wa_nopre")
    a(f"s_cmp_ge_u32 s{sI}, 31")
    a("s_cbranch_scc1 L_wa_nopre")
    a(f"s_add_u32 s{sXnN}, s{sSeg}, 2")
    xn_dma(sXnN)
    a(f"s_mov_b32 s{sPre}, 1")
    a.label("L_wa_nopre")
    a(f"s_cmp_eq_u32 s{sI}, 0")
    a("s_cbranch_scc1 L_wa_next")
    Qf, Kf, Mf = 16, 32, 64
    a(f"s_and_b32 s{sT0}, s{sWAVE}, 1")
    a(f"s_lshl_b32 s{sT0}, s{sT0}, 10")
    a(f"v_subrev_u32 v{vT}, s{sT0}, v{vHr}")
    a(f"v_add_u32 v{vT2}, {KM}, v{vL16}")
    for wp in range(4):
        a(f"ds_read_b128 {vr(Qf+4*wp,4)}, v{vHr} offset:{wp*2048}")
        a(f"ds_read_b128 {vr(Kf+8*wp,4)}, v{vT} offset:{0x2000+wp*2048}")
        a(f"ds_read_b128 {vr(Kf+8*wp+4,4)}, v{vT} offset:{0x2000+wp*2048+1024}")
        if wp < 3: a(f"ds_read_b128 {vr(Mf+4*wp,4)}, v{vT2} offset:{wp*1024}")
    S0, S1, SM_ = 80, 84, 88
    for wp in range(4):
        if wp == 0:
            a("s_waitcnt lgkmcnt(11)")
            a(f"ds_read_b128 {vr(Mf+12,4)}, v{vT2} offset:{3*1024}")
        else:
            a(f"s_waitcnt lgkmcnt({[0,8,4,0][wp]})")
        c0 = lambda x: None if wp == 0 else x
        mfma(S0, Kf + 8 * wp, Qf + 4 * wp, c0(S0))
        mfma(S1, Kf + 8 * wp + 4, Qf + 4 * wp, c0(S1))
        mfma(SM_, Mf + 4 * wp, Qf + 4 * wp, c0(SM_))
    Vf, VMf = 16, 32
    a(f"s_lshr_b32 s{sT0}, s{sWAVE}, 1")
    a(f"s_lshl_b32 s{sT1}, s{sT0}, 12")
    a(f"v_add_u32 v{vT}, s{sT1}, v{vT}")
    a(f"s_lshl_b32 s{sT1}, s{sT0}, 11")
    a(f"v_add_u32 v{vT2}, s{sT1}, v{vT2}")
    for i in range(4):
        a(f"ds_read_b128 {vr(Vf+4*i,4)}, v{vT} offset:{0x4000+i*1024}")
    for i in range(2):
        a(f"ds_read_b128 {vr(VMf+4*i,4)}, v{vT2} offset:{VM-KM+i*1024}")
    for up in range(2):
        for r in range(4):
            x = (S0, S1)[up] + r
            a(f"v_cndmask_b32 v{x}, v{vNeg}, v{x}, s[{sMask+2*(up*4+r)}:{sMask+2*(up*4+r)+1}]")
    m, t = 92, 93
    a(f"v_max3_f32 v{m}, v80, v81, v82")
    for i in range(83, 91, 2):
        a(f"v_max3_f32 v{m}, v{m}, v{i}, v{i+1}")
    a(f"v_max_f32 v{m}, v{m}, v91")
    xlane_g(a, "v_max_f32", m, t)
    a(f"v_mul_f32 v{m}, s{sC}, v{m}")
    for i in range(0, 12, 2):
        a(f"v_pk_fma_f32 {vr(80+i,2)}, {vr(80+i,2)}, s[{sC}:{sC+1}], {vr(m,2)} op_sel_hi:[1,1,0] neg_lo:[0,0,1] neg_hi:[0,0,1]")
    for i in range(12):
        a(f"v_exp_f32 v{80+i}, v{80+i}")
    Bx, Pm = 96, 100
    for i in range(6): cvt(Bx + i, 80 + 2 * i)
    OA = 48
    a("s_waitcnt lgkmcnt(0)")
    sumops = [f"v_pk_add_f32 v[80:81], v[80:81], v[82:83]", f"v_pk_add_f32 v[84:85], v[84:85], v[86:87]",
              f"v_pk_add_f32 v[88:89], v[88:89], v[90:91]", f"v_pk_add_f32 v[80:81], v[80:81], v[84:85]",
              f"v_add_f32 v88, v88, v89", f"v_add_f32 v80, v80, v81", f"v_fmac_f32 v80, 0.5, v88"]
    for i in range(4):
        mfma(OA + 4 * i, Vf + 4 * i, Bx, None)
        if sumops: a(sumops.pop(0))
        if sumops: a(sumops.pop(0))
    for i in range(4):
        a(f"v_mfma_f32_16x16x16_bf16 {vr(OA+4*i,4)}, {vr(VMf+2*i,2)}, {vr(Pm,2)}, {vr(OA+4*i,4)}")
    xlane_g(a, "v_add_f32", 80, 81)
    a("v_rcp_f32 v80, v80")
    for i in range(8):
        a(f"v_pk_mul_f32 {vr(OA+2*i,2)}, {vr(OA+2*i,2)}, v[80:81] op_sel_hi:[1,0]")
    for i in range(8): cvt(64 + i, OA + 2 * i)
    a(f"buffer_store_dwordx4 v[64:67], v{vL16}, {W}, s{sO} offen sc1")
    a(f"buffer_store_dwordx4 v[68:71], v{vL16}, {W}, s{sO} offen offset:2048 sc1")
    a(f"s_mov_b32 s{sPend}, s{sPre}")
    a(f"s_cmp_eq_u32 s{sPre}, 1")
    a("s_cbranch_scc1 L_wa_next")
    a("s_waitcnt vmcnt(0)")
    set_flag(a, vOne, sFlA, F_O)
    a(f"s_sub_u32 s{sT0}, s{sSeg}, 2")
    trace(a, cfg, 3, sT0, vT)
    a.label("L_wa_next")
    stamp("attn")
    if stamp.on:
        lab = a.newlab("L_nost")
        a(f"s_cmp_lg_u32 s{sI}, {cfg.get('stamp_step', 20)}")
        a(f"s_cbranch_scc1 {lab}")
        def row():
            a(f"s_lshl_b32 s{sT0}, s{sGRP}, 7")
            a(f"s_lshl_b32 s{sT1}, s{sMEMB}, 2")
            a(f"s_add_u32 s{sT0}, s{sT0}, s{sT1}")
            a(f"s_add_u32 s{sT0}, s{sT0}, s{sWAVE}")
        dump_stamps(a, stamp, cfg, row)
        a.label(lab)
    a(f"v_add_u32 v{vHw}, s{sHold}, v{vHw}")
    a(f"v_subrev_u32 v{vHr}, s{sHold}, v{vHr}")
    a(f"s_sub_u32 s{sHold}, 0, s{sHold}")
    a(f"s_add_u32 s{sSeg}, s{sSeg}, 2")
    a(f"s_add_u32 s{sI}, s{sI}, 1")
    a(f"s_cmp_le_u32 s{sI}, 32")
    a("s_cbranch_scc1 L_wa_loop")
    a("s_waitcnt vmcnt(0)")
    a("s_branch L_exit")
```

```python
from gen_common import *

W = f"s[{sWS}:{sWS+3}]"
vL16, vT, vT2, vFo, vOne, vRd = 1, 2, 3, 4, 5, 6
sSeg, sEnd, sFl, sSrc, sDst, sBuf, sLds, sC = 55, 56, 57, 58, 59, 60, 66, 96

def cvt(a, d, s): a(f"v_cvt_pk_bf16_f32 v{d}, v{s}, v{s+1}")
def mfma(a, d, x, y, c):
    a(f"v_mfma_f32_16x16x32_bf16 {vr(d,4)}, {xr(x,4)}, {xr(y,4)}, {vr(c,4) if c is not None else 0}")

def common_start(a):
    a("v_and_b32 v0, 63, v0")
    a(f"v_lshlrev_b32 v{vL16}, 4, v0")
    a(f"s_lshl_b32 s{sLds}, s{sWAVE}, 15")
    a(f"v_mov_b32 v{vOne}, 1")
    a(f"s_lshl_b32 s{sSeg}, s{sLAY}, 6")
    a(f"s_add_u32 s{sEnd}, s{sSeg}, 64")
    a(f"s_mov_b32 s92, 0")

def both_modes(a, name, body, cfg, before=None):
    trace(a, cfg, 6, None, vT)
    if not cfg.get("noinit"): wait_init(a)
    else: a("s_barrier")
    if before: before()
    if cfg.get("force_global"):
        a(f"s_branch L_{name}_G")
    else:
        a(f"s_cmp_eq_u32 s{sLOCAL}, 0")
        a(f"s_cbranch_scc1 L_{name}_G")
    for tag, st in (("L", ""), ("G", " sc1")):
        stamp = Stamps(a, cfg.get("stamp") == name and tag == "L", base=4, only=cfg.get("only"))
        a.label(f"L_{name}_{tag}")
        stamp("top")
        a(f"s_lshl_b32 s{sFl}, s{sSeg}, 11")
        body(st, stamp)
        trace(a, cfg, 1, sSeg, vT)
        stamp("end")
        if stamp.on:
            lab = a.newlab("L_nost")
            a(f"s_and_b32 s{sT0}, s{sSeg}, 63")
            a(f"s_cmp_lg_u32 s{sT0}, {cfg.get('stamp_step', 20)}")
            a(f"s_cbranch_scc1 {lab}")
            def row():
                a(f"s_lshl_b32 s{sT0}, s{sGRP}, 7")
                a(f"s_lshl_b32 s{sT1}, s{sMEMB}, 2")
                a(f"s_add_u32 s{sT0}, s{sT0}, s{sT1}")
                a(f"s_add_u32 s{sT0}, s{sT0}, s{sWAVE}")
            dump_stamps(a, stamp, cfg, row)
            a.label(lab)
        a(f"s_add_u32 s{sSeg}, s{sSeg}, 1")
        a(f"s_cmp_lt_u32 s{sSeg}, s{sEnd}")
        a(f"s_cbranch_scc1 L_{name}_{tag}")
        a("s_waitcnt vmcnt(0)")
        a("s_branch L_exit")

sPre, sFlN, vF = 92, 93, 13

def stage_issue(a, npiece, phase_bytes):
    a(f"s_mul_i32 s{sT0}, s{sWAVE}, {npiece*1024}")
    a(f"s_add_u32 s{sT1}, s{sSrc}, s{sT0}")
    a(f"s_add_u32 s{sT0}, s{sBuf}, s{sT0}")
    for ph in range(4):
        a(f"s_add_u32 m0, s{sT0}, {ph*phase_bytes}")
        if ph: a(f"s_add_u32 s{sT1}, s{sT1}, {phase_bytes}")
        for i in range(npiece):
            a(f"buffer_load_dwordx4 v{vL16}, {W}, s{sT1} offen offset:{i*1024} sc1 lds")

def fetch_input(a, cfg, stamp, src_of, npiece, phase_bytes, bufsize, vbase):
    lab = a.newlab("L_pre")
    a(f"s_add_u32 s{sFlN}, s{sFl}, 2048")
    a(f"s_cmp_eq_u32 s{sPre}, 1")
    a(f"s_cbranch_scc1 {lab}")
    poll_flags(a, vT, vFo, sFl, sleep=1)
    stamp("polled", True)
    src_of(sSeg)
    stage_issue(a, npiece, phase_bytes)
    a.label(lab)
    stamp("flag")
    trace(a, cfg, 0, sSeg, vT)
    a(f"v_add_u32 v{vRd}, s{sBuf}, v{vbase}")
    a(f"s_xor_b32 s{sBuf}, s{sBuf}, {bufsize}")

def gemm_phases(a, nks, npiece, extra_vm, rdoffs, ring, step, src_of, phase_bytes, stamp):
    per = nks // 4
    def rd(ks):
        sl = ring + (ks % 3) * 8
        return [f"ds_read_b128 {vr(sl+4*u,4)}, v{vRd} offset:{rdoffs(ks,u)}" for u in range(2)]
    for ph, (k0, k1) in enumerate(((0, per), (per, 2 * per), (2 * per, nks))):
        a(f"s_waitcnt vmcnt({(npiece*(3-ph)+extra_vm) if ph < 2 else 0})")
        stamp(f"w{ph}", True)
        if ph == 2: a(f"v_cmp_eq_u32 vcc, 0, v{vF}")
        a("s_barrier")
        stamp(f"b{ph}", True)
        for x in rd(k0) + rd(k0 + 1): a(x)
        if ph == 1:
            a(f"buffer_load_dword v{vF}, v{vFo}, {W}, s{sFlN} offen sc1")
        if ph == 2:
            lab = a.newlab("L_nopre")
            a(f"s_mov_b32 s{sPre}, 0")
            a(f"s_cbranch_vccnz {lab}")
            a(f"s_add_u32 s{sT2}, s{sSeg}, 1")
            a(f"s_cmp_ge_u32 s{sT2}, s{sEnd}")
            a(f"s_cbranch_scc1 {lab}")
            src_of(sT2)
            stage_issue(a, npiece, phase_bytes)
            a(f"s_mov_b32 s{sPre}, 1")
            a.label(lab)
        for ks in range(k0, k1):
            left = k1 - 1 - ks
            a(f"s_waitcnt lgkmcnt({2 if left >= 1 else 0})")
            step(ks, ring + (ks % 3) * 8, rd(ks + 2) if left >= 2 else [])

def natural_dma64(a, vdst, rowbytes):
    a(f"v_lshrrev_b32 v{vdst}, 2, v0")
    a(f"v_mul_u32_u24 v{vdst}, {rowbytes}, v{vdst}")
    a(f"v_and_b32 v{vT}, 3, v0")
    a(f"v_lshl_add_u32 v{vdst}, v{vT}, 4, v{vdst}")

def img_rd_addr(a, vdst):
    a(f"v_lshrrev_b32 v{vT}, 4, v0")
    a(f"v_lshlrev_b32 v{vT}, 9, v{vT}")
    a(f"v_and_b32 v{vdst}, 15, v0")
    a(f"v_lshl_add_u32 v{vdst}, v{vdst}, 4, v{vT}")

def img2_addr(a, vdst):
    a(f"v_lshrrev_b32 v{vT}, 5, v0")
    a(f"v_lshlrev_b32 v{vdst}, 10, v{vT}")
    a(f"v_bfe_u32 v{vT}, v0, 2, 2")
    a(f"v_lshl_add_u32 v{vdst}, v{vT}, 7, v{vdst}")
    a(f"v_bfe_u32 v{vT}, v0, 4, 1")
    a(f"v_lshl_add_u32 v{vdst}, v{vT}, 6, v{vdst}")
    a(f"v_and_b32 v{vT}, 3, v0")
    a(f"v_lshl_add_u32 v{vdst}, v{vT}, 4, v{vdst}")

def role_ra(a, cfg):
    WT = 256
    vD, vTR, vSt = 96, 97, 7
    sKs, sNs = 61, 62
    a.label("L_ra")
    common_start(a)
    a(f"s_lshr_b32 s{sKs}, s{sMEMB}, 2")
    a(f"s_and_b32 s{sNs}, s{sMEMB}, 3")
    natural_dma64(a, vD, 1024)
    a(f"v_lshrrev_b32 v{vT}, 2, v0")
    a(f"v_lshlrev_b32 v{vTR}, 6, v{vT}")
    a(f"v_and_b32 v{vT}, 3, v0")
    a(f"v_lshl_add_u32 v{vTR}, v{vT}, 4, v{vTR}")
    a(f"v_add_u32 v{vTR}, s{sLds}, v{vTR}")
    a(f"s_lshl_b32 s{sT2}, s{sKs}, 20")
    a(f"s_lshl_b32 s{sT1}, s{sNs}, 8")
    a(f"s_add_u32 s{sT2}, s{sT2}, s{sT1}")
    a(f"s_lshl_b32 s{sT1}, s{sWAVE}, 6")
    a(f"s_add_u32 s{sT2}, s{sT2}, s{sT1}")
    set_srd(a, sWT, sWO, 0x400000)
    late_start(a, cfg)
    chunks = []
    for ch in range(16):
        def setup(ch=ch): a(f"s_add_u32 s{sT0}, s{sT2}, {ch*65536}")
        def consume(so, ch=ch):
            for e in range(2):
                for t in range(2):
                    for jh in range(2):
                        a(f"ds_read_b64_tr_b16 {xr(WT+((2*ch+e)*2+t)*4+2*jh,2)}, v{vTR} offset:{so+(32*e+16*jh)*64+8*t}")
            a("s_waitcnt lgkmcnt(0)")
        chunks.append(dict(setup=setup, vdma=vD, dstep=16384, consume=consume))
    load_chunks(a, chunks, sLds)
    a(f"v_and_b32 v{vFo}, 31, v0")
    a(f"v_lshlrev_b32 v{vFo}, 2, v{vFo}")
    a(f"s_lshl_b32 s{sT0}, s{sKs}, 7")
    a(f"s_add_u32 s{sT0}, s{sT0}, {F_O}")
    a(f"v_add_u32 v{vFo}, s{sT0}, v{vFo}")
    img2_addr(a, vSt)
    a(f"s_lshl_b32 s{sT0}, s{sNs}, 13")
    a(f"s_lshl_b32 s{sT1}, s{sWAVE}, 11")
    a(f"s_add_u32 s{sT0}, s{sT0}, s{sT1}")
    a(f"s_lshl_b32 s{sT1}, s{sKs}, 15")
    a(f"s_add_u32 s{sT0}, s{sT0}, s{sT1}")
    a(f"v_add_u32 v{vSt}, s{sT0}, v{vSt}")
    a(f"s_mov_b32 s{sBuf}, 0")
    ACC, RING = 16, 32
    def body(st, stamp):
        def src_of(sg):
            a(f"s_lshl_b32 s{sSrc}, s{sg}, 18")
            a(f"s_lshl_b32 s{sT0}, s{sKs}, 16")
            a(f"s_add_u32 s{sSrc}, s{sSrc}, s{sT0}")
            a(f"s_add_u32 s{sSrc}, s{sSrc}, {OFF_O:#x}")
        fetch_input(a, cfg, stamp, src_of, 4, 16384, 0x10000, vL16)
        a(f"s_lshl_b32 s{sDst}, s{sSeg}, 17")
        a(f"s_add_u32 s{sDst}, s{sDst}, {OFF_PART:#x}")
        a(f"s_lshl_b32 s{sT0}, s{sMEMB}, 2")
        a(f"s_add_u32 s{sT0}, s{sT0}, s{sWAVE}")
        a(f"s_lshl_b32 s{sT0}, s{sT0}, 2")
        a(f"s_add_u32 s{sFl}, s{sFl}, s{sT0}")
        def step(ks, fr, side):
            for u in range(2):
                for t in range(2):
                    acc = ACC + (u * 2 + t) * 4
                    mfma(a, acc, WT + (ks * 2 + t) * 4, fr + 4 * u, None if ks == 0 else acc)
                    if side: a(side.pop(0))
        gemm_phases(a, 32, 4, 0, lambda ks, u: ks * 2048 + u * 1024, RING, step, src_of, 16384, stamp)
        stamp("gemm")
        for u in range(2):
            for i in range(4): cvt(a, 56 + 4 * u + i, ACC + u * 8 + 2 * i)
            a(f"buffer_store_dwordx4 {vr(56+4*u,4)}, v{vSt}, {W}, s{sDst} offen offset:{u*512}{st}")
        a("s_waitcnt vmcnt(0)")
        set_flag(a, vOne, sFl, F_PART, st)
    both_modes(a, "ra", body, cfg)

def role_rc(a, cfg):
    WT = 256
    vD, vTR, vNeg, vRb = 96, 97, 7, 8
    sHb, sMask, sPrevOK = 61, 76, 62
    a.label("L_rc")
    common_start(a)
    a(f"s_sub_u32 s{sHb}, s{sMEMB}, 16")
    a(f"s_lshl_b32 s{sHb}, s{sHb}, 2")
    a(f"s_add_u32 s{sHb}, s{sHb}, s{sWAVE}")
    a(f"v_lshrrev_b32 v{vD}, 1, v0")
    a(f"v_mul_u32_u24 v{vD}, 3072, v{vD}")
    a(f"v_and_b32 v{vT}, 1, v0")
    a(f"v_lshl_add_u32 v{vD}, v{vT}, 4, v{vD}")
    a(f"v_lshrrev_b32 v{vT}, 4, v0")
    a(f"v_lshlrev_b32 v{vTR}, 8, v{vT}")
    a(f"v_bfe_u32 v{vT}, v0, 2, 2")
    a(f"v_lshl_add_u32 v{vTR}, v{vT}, 5, v{vTR}")
    a(f"v_and_b32 v{vT}, 3, v0")
    a(f"v_lshl_add_u32 v{vTR}, v{vT}, 3, v{vTR}")
    a(f"v_add_u32 v{vTR}, s{sLds}, v{vTR}")
    a(f"s_lshl_b32 s{sT2}, s{sHb}, 5")
    set_srd(a, sWT, sWB, 512 * 3072)
    late_start(a, cfg)
    chunks = []
    for mm in range(3):
        for ch in range(4):
            def setup(mm=mm, ch=ch): a(f"s_add_u32 s{sT0}, s{sT2}, {128*ch*3072 + mm*1024}")
            def consume(so, mm=mm, ch=ch):
                for e in range(4):
                    for jh in range(2):
                        a(f"ds_read_b64_tr_b16 {xr(WT+((4*ch+e)*3+mm)*4+2*jh,2)}, v{vTR} offset:{so+(32*e+4*jh)*32}")
                a("s_waitcnt lgkmcnt(0)")
            chunks.append(dict(setup=setup, vdma=vD, dstep=32 * 3072, consume=consume))
    load_chunks(a, chunks, sLds)
    a(f"v_and_b32 v{vFo}, 7, v0")
    a(f"v_lshlrev_b32 v{vFo}, 2, v{vFo}")
    a(f"v_add_u32 v{vFo}, {F_XNB}, v{vFo}")
    img_rd_addr(a, vRb)
    a(f"v_mov_b32 v{vNeg}, {fbits(-1e9 * 4):#x}")
    a(f"s_mov_b32 s{sC}, {fbits(0.25*1.4426950408889634):#x}")
    a(f"s_mov_b32 s{sC+1}, s{sC}")
    a("v_and_b32 v96, 15, v0")
    a("v_lshrrev_b32 v97, 4, v0")
    a("v_lshlrev_b32 v97, 2, v97")
    for r in range(4):
        a(f"v_add_u32 v98, {r}, v97")
        a(f"v_add_u32 v99, 9, v96")
        a(f"v_cmp_ge_u32 s[{sMask+2*r}:{sMask+2*r+1}], v98, v99")
        a(f"v_sub_u32 v99, v96, v98")
        a(f"v_cmp_ge_u32 s[{sMask+8+2*r}:{sMask+8+2*r+1}], 7, v99")
    KP, VP = (16, 20), (24, 28)
    for r in range(16, 32): a(f"v_mov_b32 v{r}, 0")
    a(f"s_mov_b32 s{sBuf}, 0")
    a(f"s_mov_b64 s[{sPrevOK}:{sPrevOK+1}], 0")
    RING, ACC = 32, 56
    def body(st, stamp):
        def src_of(sg):
            a(f"s_lshl_b32 s{sSrc}, s{sg}, 15")
            a(f"s_add_u32 s{sSrc}, s{sSrc}, {OFF_XNB:#x}")
        fetch_input(a, cfg, stamp, src_of, 2, 8192, 0x8000, vRb)
        a(f"s_lshl_b32 s{sDst}, s{sSeg}, 15")
        a(f"s_add_u32 s{sDst}, s{sDst}, {OFF_OB:#x}")
        a(f"s_lshl_b32 s{sT0}, s{sHb}, 10")
        a(f"s_add_u32 s{sDst}, s{sDst}, s{sT0}")
        a(f"s_lshl_b32 s{sT0}, s{sHb}, 2")
        a(f"s_add_u32 s{sFl}, s{sFl}, s{sT0}")
        acc = lambda mm, p: ACC + (p * 3 + mm) * 4
        def step(ks, fr, side):
            for p in range(2):
                c = lambda x: None if ks == 0 else x
                mfma(a, acc(0, p), WT + (ks * 3) * 4, fr + 4 * p, c(acc(0, p)))
                if side: a(side.pop(0))
                mfma(a, acc(1, p), WT + (ks * 3 + 1) * 4, fr + 4 * p, c(acc(1, p)))
                if side: a(side.pop(0))
                mfma(a, acc(2, p), fr + 4 * p, WT + (ks * 3 + 2) * 4, c(acc(2, p)))
        gemm_phases(a, 16, 2, 0, lambda ks, u: ks * 2048 + u * 256, RING, step, src_of, 8192, stamp)
        stamp("gemm")
        Q = (80, 82); S = (32, 40); B = (84, 88); O = (48, 52); M = (92, 94)
        for p in range(2):
            cvt(a, Q[p], acc(0, p)); cvt(a, Q[p] + 1, acc(0, p) + 2)
            cvt(a, KP[p] + 2, acc(1, p)); cvt(a, KP[p] + 3, acc(1, p) + 2)
            cvt(a, VP[p] + 2, acc(2, p)); cvt(a, VP[p] + 3, acc(2, p) + 2)
        for p in range(2):
            a(f"v_mfma_f32_16x16x16_bf16 {vr(S[p],4)}, {vr(KP[p],2)}, {vr(Q[p],2)}, 0")
            a(f"v_mfma_f32_16x16x16_bf16 {vr(S[p]+4,4)}, {vr(KP[p]+2,2)}, {vr(Q[p],2)}, 0")
        for r in range(4):
            a(f"s_and_b64 s[{98}:{99}], s[{sMask+2*r}:{sMask+2*r+1}], s[{sPrevOK}:{sPrevOK+1}]")
            for p in range(2):
                a(f"v_cndmask_b32 v{S[p]+r}, v{vNeg}, v{S[p]+r}, s[98:99]")
        for r in range(4):
            for p in range(2):
                a(f"v_cndmask_b32 v{S[p]+4+r}, v{vNeg}, v{S[p]+4+r}, s[{sMask+8+2*r}:{sMask+8+2*r+1}]")
        a(f"s_mov_b64 s[{sPrevOK}:{sPrevOK+1}], -1")
        def both(f):
            for p in range(2): f(p)
        both(lambda p: a(f"v_max3_f32 v{M[p]}, v{S[p]}, v{S[p]+1}, v{S[p]+2}"))
        both(lambda p: a(f"v_max3_f32 v{M[p]}, v{M[p]}, v{S[p]+3}, v{S[p]+4}"))
        both(lambda p: a(f"v_max3_f32 v{M[p]}, v{M[p]}, v{S[p]+5}, v{S[p]+6}"))
        both(lambda p: a(f"v_max_f32 v{M[p]}, v{M[p]}, v{S[p]+7}"))
        def xl(op):
            for sw in ("v_permlane16_swap_b32", "v_permlane32_swap_b32"):
                both(lambda p: a(f"v_mov_b32 v{M[p]+1}, v{M[p]}"))
                both(lambda p: a(f"{sw} v{M[p]}, v{M[p]+1}"))
                both(lambda p: a(f"{op} v{M[p]}, v{M[p]}, v{M[p]+1}"))
        xl("v_max_f32")
        both(lambda p: a(f"v_mul_f32 v{M[p]}, s{sC}, v{M[p]}"))
        for p in range(2):
            for i in range(0, 8, 2):
                a(f"v_pk_fma_f32 {vr(S[p]+i,2)}, {vr(S[p]+i,2)}, s[{sC}:{sC+1}], {vr(M[p],2)} op_sel_hi:[1,1,0] neg_lo:[0,0,1] neg_hi:[0,0,1]")
        for p in range(2):
            for i in range(8): a(f"v_exp_f32 v{S[p]+i}, v{S[p]+i}")
        for p in range(2):
            for i in range(4): cvt(a, B[p] + i, S[p] + 2 * i)
        for p in range(2):
            a(f"v_pk_add_f32 {vr(S[p],2)}, {vr(S[p],2)}, {vr(S[p]+2,2)}")
            a(f"v_pk_add_f32 {vr(S[p]+4,2)}, {vr(S[p]+4,2)}, {vr(S[p]+6,2)}")
            mfma(a, O[p], VP[p], B[p], None)
        both(lambda p: a(f"v_pk_add_f32 {vr(S[p],2)}, {vr(S[p],2)}, {vr(S[p]+4,2)}"))
        both(lambda p: a(f"v_add_f32 v{M[p]}, v{S[p]}, v{S[p]+1}"))
        xl("v_add_f32")
        both(lambda p: a(f"v_rcp_f32 v{M[p]}, v{M[p]}"))
        for p in range(2):
            a(f"v_mov_b64 {vr(KP[p],2)}, {vr(KP[p]+2,2)}")
            a(f"v_mov_b64 {vr(VP[p],2)}, {vr(VP[p]+2,2)}")
        for p in range(2):
            a(f"v_pk_mul_f32 {vr(O[p],2)}, {vr(O[p],2)}, {vr(M[p],2)} op_sel_hi:[1,0]")
            a(f"v_pk_mul_f32 {vr(O[p]+2,2)}, {vr(O[p]+2,2)}, {vr(M[p],2)} op_sel_hi:[1,0]")
        for p in range(2):
            cvt(a, 80 + 2 * p, O[p]); cvt(a, 81 + 2 * p, O[p] + 2)
        a("v_permlane16_swap_b32 v80, v82")
        a("v_permlane16_swap_b32 v81, v83")
        a(f"buffer_store_dwordx4 v[80:83], v{vL16}, {W}, s{sDst} offen{st}")
        stamp("attn")
        a("s_waitcnt vmcnt(0)")
        set_flag(a, vOne, sFl, F_OB, st)
    both_modes(a, "rc", body, cfg)

def role_rd(a, cfg):
    WT = 256
    vD, vTR, vRb, vX1, vSt0, vSt1 = 96, 97, 8, 9, 10, 11
    sMd, sOb = 61, 62
    a.label("L_rd")
    common_start(a)
    a(f"s_sub_u32 s{sMd}, s{sMEMB}, 24")
    a(f"s_lshl_b32 s{sMd}, s{sMd}, 2")
    a(f"s_add_u32 s{sMd}, s{sMd}, s{sWAVE}")
    natural_dma64(a, vD, 1024)
    a(f"v_lshrrev_b32 v{vT}, 4, v0")
    a(f"v_lshlrev_b32 v{vTR}, 9, v{vT}")
    a(f"v_bfe_u32 v{vT}, v0, 2, 2")
    a(f"v_lshl_add_u32 v{vTR}, v{vT}, 6, v{vTR}")
    a(f"v_and_b32 v{vT}, 3, v0")
    a(f"v_lshl_add_u32 v{vTR}, v{vT}, 4, v{vTR}")
    a(f"v_add_u32 v{vTR}, s{sLds}, v{vTR}")
    a(f"s_lshl_b32 s{sT2}, s{sMd}, 6")
    set_srd(a, sWT, sWBO, 0x80000)
    late_start(a, cfg)
    chunks = []
    for ch in range(8):
        def setup(ch=ch): a(f"s_add_u32 s{sT0}, s{sT2}, {ch*65536}")
        def consume(so, ch=ch):
            for e in range(2):
                for t in range(2):
                    for jh in range(2):
                        a(f"ds_read_b64_tr_b16 {xr(WT+((2*ch+e)*2+t)*4+2*jh,2)}, v{vTR} offset:{so+(32*e+4*jh)*64+8*t}")
            a("s_waitcnt lgkmcnt(0)")
        chunks.append(dict(setup=setup, vdma=vD, dstep=16384, consume=consume))
    load_chunks(a, chunks, sLds)
    a(f"v_and_b32 v{vFo}, 31, v0")
    a(f"v_lshlrev_b32 v{vFo}, 2, v{vFo}")
    a(f"v_add_u32 v{vFo}, {F_OB}, v{vFo}")
    img_rd_addr(a, vRb)
    a(f"s_lshl_b32 s{sT0}, s{sMd}, 11")
    a(f"v_add_u32 v{vX1}, s{sT0}, v{vRb}")
    a(f"s_cmp_eq_u32 s{sLAY}, 0")
    a("s_cbranch_scc1 L_rd_l0")
    set_srd(a, sIN, sOUT, 0x200000)
    a(f"s_mov_b32 s{sOb}, 0")
    a(f"v_and_b32 v{vT}, 15, v0")
    a(f"v_lshlrev_b32 v{vSt0}, 11, v{vT}")
    a(f"v_lshrrev_b32 v{vT}, 4, v0")
    a(f"v_lshl_add_u32 v{vSt0}, v{vT}, 4, v{vSt0}")
    a(f"s_lshl_b32 s{sT0}, s{sMd}, 6")
    a(f"v_add_u32 v{vSt0}, s{sT0}, v{vSt0}")
    a(f"v_add_u32 v{vSt1}, 1024, v{vSt0}")
    a("s_branch L_rd_go")
    a.label("L_rd_l0")
    set_srd(a, sIN, sWSP, WS_BYTES)
    a(f"s_mov_b32 s{sOb}, {OFF_X2R:#x}")
    img2_addr(a, vSt0)
    a(f"s_lshl_b32 s{sT0}, s{sMd}, 11")
    a(f"v_add_u32 v{vSt0}, s{sT0}, v{vSt0}")
    a(f"v_add_u32 v{vSt1}, 512, v{vSt0}")
    a.label("L_rd_go")
    a(f"s_mov_b32 s{sBuf}, 0")
    ACC, RING, XR = 16, 32, 56
    def body(st, stamp):
        def src_of(sg):
            a(f"s_lshl_b32 s{sSrc}, s{sg}, 15")
            a(f"s_add_u32 s{sSrc}, s{sSrc}, {OFF_OB:#x}")
        fetch_input(a, cfg, stamp, src_of, 2, 8192, 0x8000, vRb)
        a(f"s_lshl_b32 s{sT2}, s{sSeg}, 15")
        a(f"s_add_u32 s{sT2}, s{sT2}, {OFF_X1B:#x}")
        for u in range(2):
            a(f"buffer_load_dwordx4 {vr(XR+4*u,4)}, v{vX1}, {W}, s{sT2} offen offset:{u*256} sc1")
        a(f"s_and_b32 s{sDst}, s{sSeg}, 63")
        a(f"s_lshl_b32 s{sDst}, s{sDst}, 15")
        a(f"s_add_u32 s{sDst}, s{sDst}, s{sOb}")
        a(f"s_lshl_b32 s{sT0}, s{sMd}, 2")
        a(f"s_add_u32 s{sFl}, s{sFl}, s{sT0}")
        def step(ks, fr, side):
            for u in range(2):
                for t in range(2):
                    acc = ACC + (u * 2 + t) * 4
                    mfma(a, acc, WT + (ks * 2 + t) * 4, fr + 4 * u, None if ks == 0 else acc)
                    if side: a(side.pop(0))
        gemm_phases(a, 16, 2, 2, lambda ks, u: ks * 2048 + u * 256, RING, step, src_of, 8192, stamp)
        stamp("gemm")
        for i in range(8):
            a(f"v_lshlrev_b32 v{64+2*i}, 16, v{XR+i}")
            a(f"v_and_b32 v{65+2*i}, 0xffff0000, v{XR+i}")
        for i in range(8):
            cvt(a, 80 + i, ACC + 2 * i)
        for i in range(8):
            a(f"v_lshlrev_b32 v{ACC+2*i}, 16, v{80+i}")
            a(f"v_and_b32 v{ACC+2*i+1}, 0xffff0000, v{80+i}")
        for i in range(8):
            a(f"v_pk_add_f32 {vr(ACC+2*i,2)}, {vr(ACC+2*i,2)}, {vr(64+2*i,2)}")
        for u in range(2):
            for i in range(4): cvt(a, 80 + 4 * u + i, ACC + 8 * u + 2 * i)
            a(f"buffer_store_dwordx4 {vr(80+4*u,4)}, v{(vSt0, vSt1)[u]}, s[{sIN}:{sIN+3}], s{sDst} offen sc1")
        a("s_waitcnt vmcnt(0)")
        set_flag(a, vOne, sFl, F_X2, st)
    both_modes(a, "rd", body, cfg)

def row_reduce(a, r, t):
    a(f"v_add_f32_dpp v{r}, v{r}, v{r} row_ror:4 row_mask:0xf bank_mask:0xf")
    a(f"v_add_f32_dpp v{r}, v{r}, v{r} row_ror:8 row_mask:0xf bank_mask:0xf")
    xlane_g(a, "v_add_f32", r, t)

def rnd_bf16(a, r):
    a(f"v_cvt_pk_bf16_f32 v{r}, v{r}, v{r}")
    a(f"v_and_b32 v{r}, 0xffff0000, v{r}")

def layernorm(a, X, T):
    m, t, s = T + 32, T + 33, T + 34
    a(f"v_pk_add_f32 {vr(T,2)}, {vr(X,2)}, {vr(X+2,2)}")
    a(f"v_pk_add_f32 {vr(T+2,2)}, {vr(X+4,2)}, {vr(X+6,2)}")
    for i in range(8, 32, 4):
        a(f"v_pk_add_f32 {vr(T,2)}, {vr(T,2)}, {vr(X+i,2)}")
        a(f"v_pk_add_f32 {vr(T+2,2)}, {vr(T+2,2)}, {vr(X+i+2,2)}")
    a(f"v_pk_add_f32 {vr(T,2)}, {vr(T,2)}, {vr(T+2,2)}")
    a(f"v_add_f32 v{m}, v{T}, v{T+1}")
    row_reduce(a, m, t)
    a(f"v_mul_f32 v{m}, {fbits(1/512):#x}, v{m}")
    for i in range(0, 32, 2):
        a(f"v_pk_add_f32 {vr(T+i,2)}, {vr(X+i,2)}, {vr(m,2)} op_sel_hi:[1,0] neg_lo:[0,1] neg_hi:[0,1]")
    a(f"v_pk_mul_f32 {vr(s,2)}, {vr(T,2)}, {vr(T,2)}")
    for i in range(2, 32, 2):
        a(f"v_pk_fma_f32 {vr(s,2)}, {vr(T+i,2)}, {vr(T+i,2)}, {vr(s,2)}")
    a(f"v_add_f32 v{s}, v{s}, v{s+1}")
    row_reduce(a, s, t)
    a(f"v_mul_f32 v{s}, {fbits(1/512):#x}, v{s}")
    rnd_bf16(a, m)
    rnd_bf16(a, s)
    a(f"v_add_f32 v{s}, {fbits(1e-5):#x}, v{s}")
    rnd_bf16(a, s)
    a(f"v_sqrt_f32 v{s}, v{s}")
    rnd_bf16(a, s)
    a(f"v_rcp_f32 v{s}, v{s}")
    a(f"v_mul_f32 v{m}, v{m}, v{s}")
    for i in range(0, 32, 2):
        a(f"v_pk_fma_f32 {vr(X+i,2)}, {vr(X+i,2)}, {vr(s,2)}, {vr(m,2)} op_sel_hi:[1,0,0] neg_lo:[0,0,1] neg_hi:[0,0,1]")

def unpack(a, dst, src, n):
    for i in range(n):
        a(f"v_lshlrev_b32 v{dst+2*i}, 16, v{src+i}")
        a(f"v_and_b32 v{dst+2*i+1}, 0xffff0000, v{src+i}")

def role_rows(a, cfg):
    sWb, sIb, sLo = 61, 62, 63
    vA = 8
    vP = 12
    vP2 = 7
    vFx = 13
    a.label("L_rows")
    common_start(a)
    a(f"s_sub_u32 s{sWb}, s{sMEMB}, 28")
    a(f"s_lshl_b32 s{sWb}, s{sWb}, 1")
    a(f"s_and_b32 s{sT0}, s{sWAVE}, 1")
    a(f"s_add_u32 s{sWb}, s{sWb}, s{sT0}")
    c_, gi = 96, 97
    a(f"s_lshr_b32 s{sT1}, s{sWb}, 1")
    a(f"s_lshl_b32 s{sT1}, s{sT1}, 2")
    a(f"v_and_b32 v{c_}, 3, v0")
    a(f"v_add_u32 v{c_}, s{sT1}, v{c_}")
    a(f"v_lshrrev_b32 v{gi}, 2, v0")
    a(f"s_lshl_b32 s{sT1}, s{sT0}, 8")
    a(f"v_lshl_add_u32 v98, v{c_}, 4, s{sT1}")
    a(f"s_lshl_b32 s{sT1}, s{sT0}, 10")
    a(f"v_lshl_add_u32 v99, v{c_}, 11, s{sT1}")
    a(f"s_lshl_b32 s{sT1}, s{sT0}, 9")
    a(f"s_lshr_b32 s{sT2}, s{sWb}, 1")
    a(f"s_lshl_b32 s{sT2}, s{sT2}, 7")
    a(f"s_add_u32 s{sT1}, s{sT1}, s{sT2}")
    a(f"v_and_b32 v102, 7, v0")
    a(f"v_lshl_add_u32 v102, v102, 4, s{sT1}")
    a(f"s_cmp_ge_u32 s{sWAVE}, 2")
    a("s_cbranch_scc1 L_re")
    a(f"v_lshl_add_u32 v{vP}, v{gi}, 9, v98")
    a(f"v_lshrrev_b32 v{vP2}, 1, v{gi}")
    a(f"v_lshl_add_u32 v{vP2}, v{vP2}, 10, v102")
    a(f"v_lshlrev_b32 v{vFo}, 2, v0")
    a(f"v_add_u32 v{vFo}, {F_PART}, v{vFo}")
    a(f"s_cmp_eq_u32 s{sLAY}, 0")
    a("s_cbranch_scc1 L_rb_l0")
    set_srd(a, sIN, sWSP, WS_BYTES)
    a(f"s_mov_b32 s{sIb}, {OFF_X2R:#x}")
    for i in range(4): a(f"v_add_u32 v{vA+i}, {i*8192}, v{vP2}")
    a("s_branch L_rb_go")
    a.label("L_rb_l0")
    set_srd(a, sIN, sX, 0x200000)
    a(f"s_mov_b32 s{sIb}, 0")
    a(f"v_lshl_add_u32 v{vA}, v{gi}, 4, v99")
    for i in range(1, 4): a(f"v_add_u32 v{vA+i}, {i*256}, v{vA}")
    a.label("L_rb_go")
    a("v_mov_b32 v14, 0x3f80")
    a("v_mov_b32 v15, 0x3f800000")
    X, T, P, R = 16, 48, 128, 112
    a(f"v_and_b32 v{vFx}, 7, v0")
    a(f"v_lshlrev_b32 v{vFx}, 2, v{vFx}")
    RN = 192
    def res_loads(sg):
        a(f"s_and_b32 s{sT0}, s{sg}, 63")
        a(f"s_lshl_b32 s{sT0}, s{sT0}, 15")
        a(f"s_add_u32 s{sT0}, s{sT0}, s{sIb}")
        for i in range(4):
            a(f"buffer_load_dwordx4 {vr(RN+4*i,4)}, v{vA+i}, s[{sIN}:{sIN+3}], s{sT0} offen sc1")
    def before():
        lab = a.newlab("L_resok")
        a(f"s_cmp_eq_u32 s{sLAY}, 0")
        a(f"s_cbranch_scc1 {lab}")
        a(f"s_lshl_b32 s{sFl}, s{sSeg}, 11")
        poll_flags(a, vT, vFx, sFl, sleep=8)
        a(f"s_add_u32 s{sFl}, s{sFl}, 2048")
        poll_flags(a, vT, vFx, sFl, sleep=8)
        a.label(lab)
        res_loads(sSeg)
        a("s_waitcnt vmcnt(0)")
    def body(st, stamp):
        a(f"s_lshl_b32 s{sSrc}, s{sSeg}, 17")
        a(f"s_add_u32 s{sSrc}, s{sSrc}, {OFF_PART:#x}")
        unpack(a, X, RN, 16)
        poll_flags(a, vT, vFo, sFl, sleep=1)
        stamp("flag")
        trace(a, cfg, 0, sSeg, vT)
        for n in range(16):
            if n: a(f"s_add_u32 s{sSrc}, s{sSrc}, 8192")
            a(f"buffer_load_dwordx4 {vr(P+4*n,4)}, v{vP2}, {W}, s{sSrc} offen sc1")
        a(f"s_add_u32 s{sT0}, s{sSeg}, 1")
        res_loads(sT0)
        a(f"s_lshl_b32 s{sDst}, s{sSeg}, 15")
        a(f"s_add_u32 s{sT2}, s{sDst}, {OFF_X1B:#x}")
        a(f"s_add_u32 s{sDst}, s{sDst}, {OFF_XNB:#x}")
        a(f"s_lshl_b32 s{sT0}, s{sWb}, 2")
        a(f"s_add_u32 s{sFl}, s{sFl}, s{sT0}")
        for n in range(16):
            i = n % 4
            a(f"s_waitcnt vmcnt({19-n})")
            for d in range(4):
                a(f"v_dot2c_f32_bf16 v{X+8*i+2*d}, v{P+4*n+d}, v14")
                a(f"v_dot2c_f32_bf16 v{X+8*i+2*d+1}, v{P+4*n+d}, v15")
        stamp("sum")
        a("s_nop 2")
        for i in range(16): cvt(a, R + i, X + 2 * i)
        for i in range(4):
            if i: a(f"s_add_u32 s{sT2}, s{sT2}, 8192")
            a(f"buffer_store_dwordx4 {vr(R+4*i,4)}, v{vP}, {W}, s{sT2} offen{st}")
        unpack(a, X, R, 16)
        layernorm(a, X, T)
        for i in range(16): cvt(a, P + i, X + 2 * i)
        for i in range(4):
            if i: a(f"s_add_u32 s{sDst}, s{sDst}, 8192")
            a(f"buffer_store_dwordx4 {vr(P+4*i,4)}, v{vP}, {W}, s{sDst} offen{st}")
        stamp("ln")
        a("s_waitcnt vmcnt(0)")
        set_flag(a, vOne, sFl, F_XNB, st)
    both_modes(a, "rb", body, cfg, before)
    a.label("L_re")
    a(f"v_and_b32 v{vFo}, 15, v0")
    a(f"v_lshlrev_b32 v{vFo}, 2, v{vFo}")
    a(f"v_add_u32 v{vFo}, {F_X2}, v{vFo}")
    a(f"v_lshrrev_b32 v100, 1, v{gi}")
    a(f"v_and_b32 v101, 1, v{gi}")
    a(f"v_lshl_add_u32 v100, v100, 3, v101")
    a(f"s_lshl_b32 s{sT1}, s{sT0}, 10")
    a(f"v_lshl_add_u32 v{vP}, v{c_}, 4, s{sT1}")
    a(f"v_lshl_add_u32 v{vP}, v{gi}, 11, v{vP}")
    a(f"s_xor_b32 s{sLo}, s{sLAY}, 1")
    a(f"s_lshl_b32 s{sLo}, s{sLo}, 6")
    a(f"s_cmp_eq_u32 s{sLAY}, 0")
    a("s_cbranch_scc1 L_re_l0")
    set_srd(a, sIN, sX, 0x200000)
    a(f"s_mov_b32 s{sIb}, 0")
    a(f"v_lshl_add_u32 v{vA}, v100, 4, v99")
    for q in range(1, 4): a(f"v_add_u32 v{vA+q}, {q*32}, v{vA}")
    a("s_branch L_re_go")
    a.label("L_re_l0")
    set_srd(a, sIN, sWSP, WS_BYTES)
    a(f"s_mov_b32 s{sIb}, {OFF_X2R:#x}")
    a(f"v_lshrrev_b32 v100, 1, v{gi}")
    a(f"v_lshl_add_u32 v{vA}, v100, 12, v102")
    for q in range(1, 4): a(f"v_add_u32 v{vA+q}, {q*1024}, v{vA}")
    a.label("L_re_go")
    if not cfg.get("noinit"): wait_init(a)
    else: a("s_barrier")
    stamp = Stamps(a, cfg.get("stamp") == "re", base=4, only=cfg.get("only"))
    a.label("L_re_loop")
    stamp("top")
    a(f"s_cmp_eq_u32 s{sLAY}, 1")
    a("s_cbranch_scc1 L_re_nowait")
    a(f"s_lshl_b32 s{sFl}, s{sSeg}, 11")
    poll_flags(a, vT, vFo, sFl, sleep=1)
    a.label("L_re_nowait")
    stamp("flag")
    trace(a, cfg, 0, sSeg, vT)
    a(f"s_and_b32 s{sT2}, s{sSeg}, 63")
    a(f"s_lshl_b32 s{sT0}, s{sT2}, 15")
    a(f"s_add_u32 s{sT0}, s{sT0}, s{sIb}")
    for q in range(4):
        a(f"buffer_load_dwordx4 {vr(R+4*q,4)}, v{vA+q}, s[{sIN}:{sIN+3}], s{sT0} offen sc1")
    a(f"s_add_u32 s{sT2}, s{sT2}, s{sLo}")
    a(f"s_lshl_b32 s{sDst}, s{sT2}, 15")
    a(f"s_add_u32 s{sDst}, s{sDst}, {OFF_XN:#x}")
    a(f"s_lshl_b32 s{sFl}, s{sT2}, 11")
    a(f"s_lshl_b32 s{sT0}, s{sWb}, 2")
    a(f"s_add_u32 s{sFl}, s{sFl}, s{sT0}")
    a("s_waitcnt vmcnt(0)")
    stamp("ld")
    unpack(a, X, R, 16)
    layernorm(a, X, T)
    for g in range(4):
        for dj in range(4):
            half = dj & 1; jh = dj >> 1
            e = 4 * (g >> 1) + 2 * (g & 1) + jh
            a(f"v_cvt_pk_bf16_f32 v{P+4*g+dj}, v{X+8*half+e}, v{X+8*(2+half)+e}")
        a(f"buffer_store_dwordx4 {vr(P+4*g,4)}, v{vP}, {W}, s{sDst} offen offset:{g*256} sc1")
    stamp("ln")
    a("s_waitcnt vmcnt(0)")
    set_flag(a, vOne, sFl, F_XN)
    trace(a, cfg, 1, sSeg, vT)
    stamp("end")
    if stamp.on:
        lab = a.newlab("L_nost")
        a(f"s_and_b32 s{sT0}, s{sSeg}, 63")
        a(f"s_cmp_lg_u32 s{sT0}, {cfg.get('stamp_step', 20)}")
        a(f"s_cbranch_scc1 {lab}")
        def row():
            a(f"s_lshl_b32 s{sT0}, s{sGRP}, 7")
            a(f"s_lshl_b32 s{sT1}, s{sMEMB}, 2")
            a(f"s_add_u32 s{sT0}, s{sT0}, s{sT1}")
            a(f"s_add_u32 s{sT0}, s{sT0}, s{sWAVE}")
        dump_stamps(a, stamp, cfg, row)
        a.label(lab)
    a(f"s_add_u32 s{sSeg}, s{sSeg}, 1")
    a(f"s_cmp_lt_u32 s{sSeg}, s{sEnd}")
    a("s_cbranch_scc1 L_re_loop")
    a("s_waitcnt vmcnt(0)")
    a("s_branch L_exit")

def role_wo(a, cfg):
    a.label("L_wo")
    a(f"s_cmp_lt_u32 s{sMEMB}, 16")
    a("s_cbranch_scc1 L_ra")
    a(f"s_cmp_lt_u32 s{sMEMB}, 24")
    a("s_cbranch_scc1 L_rc")
    a(f"s_cmp_lt_u32 s{sMEMB}, 28")
    a("s_cbranch_scc1 L_rd")
    a("s_branch L_rows")
    role_ra(a, cfg); role_rc(a, cfg); role_rd(a, cfg); role_rows(a, cfg)
```

```python
import sys
from gen_common import *
from gen_chain import chain

HEADER = open('interleave_layers__memory_aug_recurrent_mem_tr__sliding_local_dilated__prompt.s.ref').read().split("; Override launch")[0]

GMAP = [("chain",0,0),("wa",0,0),("chain",1,0),("wa",1,0),("wa",0,1),("wo",0,0),("wa",1,1),("wo",1,0)]
WARM = [3, 6]

def generate(cfg):
    a = Asm()
    roles = cfg.get("roles", {"chain", "wa", "wo"})
    a("s_cmp_ge_u32 s2, 256")
    a("s_cbranch_scc1 L_exit")
    a("s_load_dwordx16 s[4:19], s[0:1], 0")
    a("s_load_dwordx8 s[20:27], s[0:1], 64")
    a("s_load_dwordx2 s[28:29], s[0:1], 96")
    a(f"s_getreg_b32 s{sGRP}, hwreg(HW_REG_XCC_ID, 0, 4)")
    a("v_lshrrev_b32 v1, 6, v0")
    a(f"v_readfirstlane_b32 s{sWAVE}, v1")
    a(f"s_mov_b32 s{sLOCAL}, 1")
    a("s_mov_b32 s31, 0")
    if cfg.get("count_redo"): a("s_memrealtime s[100:101]")
    a("s_waitcnt lgkmcnt(0)")
    set_srd(a, sWS, sWSP, WS_BYTES)
    a(f"s_cmp_lg_u32 s{sWAVE}, 0")
    a("s_cbranch_scc1 L_notw0")
    a(f"s_mov_b32 s{sMEMB}, 32")
    if cfg.get("scramble"):
        a(f"s_lshr_b32 s{sGRP}, s2, {cfg['scramble']}")
        a(f"s_and_b32 s{sGRP}, s{sGRP}, {cfg.get('scramble_mask', 7)}")
    a(f"s_cmp_gt_u32 s{sGRP}, 7")
    a("s_cbranch_scc1 L_noticket")
    a(f"s_mov_b32 s{sMEMB}, 1")
    a(f"s_lshl_b32 s{sT0}, s{sGRP}, 4")
    a(f"s_atomic_add s{sMEMB}, s[{sDBG}:{sDBG+1}], s{sT0} glc")
    a.label("L_noticket")
    if not cfg.get("noinit"):
        a("v_lshlrev_b32 v1, 4, v0")
        for i in range(4): a(f"v_mov_b32 v{4+i}, 0")
        for i in range(4): a(f"v_mov_b32 v{8+i}, -1")
        a(f"s_lshl_b32 s{sT1}, s2, 10")
        a(f"buffer_store_dwordx4 v[4:7], v1, s[{sWS}:{sWS+3}], s{sT1} offen sc1")
        a(f"s_mul_i32 s{sT1}, s2, 7168")
        a(f"s_add_u32 s{sT1}, s{sT1}, {OFF_MEM:#x}")
        for i in range(7):
            if i == 4: a(f"s_add_u32 s{sT1}, s{sT1}, 4096")
            a(f"buffer_store_dwordx4 v[8:11], v1, s[{sWS}:{sWS+3}], s{sT1} offen offset:{(i%4)*1024} sc1")
    a("s_waitcnt vmcnt(0) lgkmcnt(0)")
    a(f"s_mov_b32 s{sT1}, 1")
    a(f"s_atomic_add s{sT1}, s[{sDBG}:{sDBG+1}], 0x80")
    a(f"s_cmp_lt_u32 s{sMEMB}, 32")
    a("s_cbranch_scc1 L_haverole")
    a("s_waitcnt lgkmcnt(0)")
    lab = a.newlab("L_ovw")
    spin_init(a)
    a.label(lab)
    a(f"s_load_dword s{sFV}, s[{sDBG}:{sDBG+1}], 0x80 glc")
    spin_tick(a)
    a("s_waitcnt lgkmcnt(0)")
    a("s_sleep 12")
    a(f"s_cmp_lt_u32 s{sFV}, 256")
    a(f"s_cbranch_scc1 {lab}")
    a(f"s_mov_b32 s{sT1}, 1")
    a(f"s_atomic_add s{sT1}, s[{sDBG}:{sDBG+1}], 0xc0 glc")
    a(f"s_mov_b32 s{sGRP}, 0")
    a.label("L_ovscan")
    a(f"s_lshl_b32 s{sT0}, s{sGRP}, 4")
    a(f"s_load_dword s{sFV}, s[{sDBG}:{sDBG+1}], s{sT0} glc")
    a("s_waitcnt lgkmcnt(0)")
    a(f"s_min_u32 s{sFV}, s{sFV}, 32")
    a(f"s_add_u32 s{sMEMB}, s{sFV}, s{sT1}")
    a(f"s_cmp_lt_u32 s{sMEMB}, 32")
    a("s_cbranch_scc1 L_haverole")
    a(f"s_sub_u32 s{sT1}, s{sMEMB}, 32")
    a(f"s_add_u32 s{sGRP}, s{sGRP}, 1")
    a(f"s_cmp_lt_u32 s{sGRP}, 8")
    a("s_cbranch_scc1 L_ovscan")
    a.label("L_haverole")
    a(f"s_lshl_b32 s{sT0}, s{sGRP}, 8")
    a(f"s_or_b32 s{sT0}, s{sT0}, s{sMEMB}")
    a(f"v_mov_b32 v1, s{sT0}")
    a("v_mov_b32 v2, 0x27ff0")
    a("ds_write_b32 v2, v1")
    a("s_waitcnt lgkmcnt(0)")
    a("s_branch L_bar0")
    a.label("L_notw0")
    if not cfg.get("nocodepf"):
        a(f"s_cmp_lg_u32 s{sWAVE}, 1")
        a("s_cbranch_scc1 L_bar0")
        a("s_getpc_b64 s[64:65]")
        a.label("L_pcref")
        a(f"s_lshr_b32 s{sT0}, s2, 3")
        a(f"s_lshl_b32 s{sT0}, s{sT0}, 12")
        a("v_and_b32 v1, 63, v0")
        a(f"v_lshl_add_u32 v1, v1, 6, s{sT0}")
        a("v_min_u32 v1, L_codeend-L_pcref-4, v1")
        a("global_load_dword v3, v1, s[64:65]")
    a.label("L_bar0")
    a("s_barrier")
    a("v_mov_b32 v2, 0x27ff0")
    a("ds_read_b32 v1, v2")
    a("s_waitcnt lgkmcnt(0)")
    a(f"v_readfirstlane_b32 s{sT0}, v1")
    a("s_waitcnt vmcnt(0)")
    a("s_barrier")
    a(f"s_and_b32 s{sMEMB}, s{sT0}, 31")
    a(f"s_lshr_b32 s{sGRP}, s{sT0}, 8")
    a(f"s_cmp_gt_u32 s{sGRP}, 7")
    a("s_cbranch_scc1 L_exit")
    trace_setup(a, cfg)
    trace(a, cfg, 7, None, 1)
    gmap = cfg.get("gmap", GMAP)
    for g, (role, lay, par) in enumerate(gmap):
        if role not in roles: continue
        lab = a.newlab("L_ng")
        a(f"s_cmp_lg_u32 s{sGRP}, {g}")
        a(f"s_cbranch_scc1 {lab}")
        a(f"s_mov_b32 s{sLAY}, {lay}")
        a(f"s_mov_b32 s{sT3}, {par}")
        warm = cfg.get("warm", WARM)
        if g in warm: warm_weights(a, cfg, warm.index(g), len(warm))
        a(f"s_branch L_{role}")
        a.label(lab)
    a.label("L_exit")
    a("s_endpgm")
    if "chain" in roles:
        chain(a, True, cfg)
        chain(a, False, cfg)
    if "wa" in roles:
        from gen_wa import role_wa
        role_wa(a, cfg)
    if "wo" in roles:
        from gen_wo import role_wo
        role_wo(a, cfg)
    a.label("L_codeend")
    a("s_endpgm")
    if cfg.get("drop"):
        a.ins = [x if not x.text.startswith(cfg["drop"]) else Ins("s_nop 2") for x in a.ins]
    nn = a.fix_hazards(verbose=cfg.get("verbose", False))
    errs = a.check_waits()
    for e in errs[:20]: print("WAITERR", e)
    body = a.text()
    txt = HEADER + f"""; @launch grid=(256,1,1) block=(256,1,1) lds=163840
.amdgcn_target "amdgcn-amd-amdhsa--gfx950"
.text
.globl {KNAME}
.p2align 8
.type {KNAME},@function
{KNAME}:
{body}.section .rodata,"a"
.p2align 6
.amdhsa_kernel {KNAME}
  .amdhsa_next_free_vgpr 512
  .amdhsa_next_free_sgpr 102
  .amdhsa_accum_offset 256
  .amdhsa_group_segment_fixed_size 0
  .amdhsa_kernarg_size 104
  .amdhsa_user_sgpr_count 2
  .amdhsa_user_sgpr_kernarg_segment_ptr 1
  .amdhsa_system_sgpr_workgroup_id_x 1
  .amdhsa_float_denorm_mode_32 3
.end_amdhsa_kernel
"""
    return txt, nn, errs

if __name__ == "__main__":
    cfg = eval(sys.argv[2]) if len(sys.argv) > 2 else {}
    txt, nn, errs = generate(cfg)
    open(sys.argv[1], "w").write(txt)
    print("nops", nn, "bytes", len(txt), "errs", len(errs))
```

```python
from gen_common import *

def chain(a, local, cfg):
    st = "" if local else " sc1"
    tag = "L" if local else "G"
    stamp = Stamps(a, cfg.get("stamp") == "chain" and local, only=cfg.get("only"))
    vL16, vIdx, vLdsW, vSwx, vSwm, vSrx, vSrm, vOw, vOr, vX1s, vX1l, vX2s = range(1, 13)
    vR, vOnes, vT = 13, 14, 15
    vAw = 0
    sKVb, sKT = 93, 95
    SelT, VACC, SelM = 16, 20, 28
    q0, k0, q1, k1 = 32, 36, 40, 44
    Kx, Vx, RING, A, WO = 48, 56, 64, 96, 128
    WK, WV = 256, 384
    sStep, sTag, sX2st, sX2re, sMemOff, sKV, sX1a, sX1b, sC = 55, 56, 57, 58, 59, 60, 61, 62, 96
    sMaskHi = 64
    sLds, sRot = 66, 67
    sX2l = 92
    AST, KVL, SX, SM, SJ, OA, CST = 0x20000, 0x22000, 0x26000, 0x26800, 0x26a00, 0x26c00, 0x27400
    sKVL = 94
    lane = 0
    if cfg.get("chain_prologue_done") is None:
        cfg["chain_prologue_done"] = True
        a.label("L_chain")
        a(f"v_and_b32 v0, 63, v0")
        a(f"v_lshlrev_b32 v{vL16}, 4, v0")
        a(f"s_lshl_b32 s{sLds}, s{sWAVE}, 15")
        a(f"s_lshl_b32 s{sRot}, s{sWAVE}, 1")
        vD, vTR, vDo, vTRo = 96, 97, 98, 99
        qkv_dma_addr(a, lane, vD, vT, 8192)
        qkv_tr_addr(a, lane, vTR, vT, sLds)
        a(f"v_lshrrev_b32 v{vDo}, 3, v0")
        a(f"v_lshlrev_b32 v{vDo}, 10, v{vDo}")
        a(f"v_and_b32 v{vT}, 7, v0")
        a(f"v_lshl_add_u32 v{vDo}, v{vT}, 4, v{vDo}")
        a(f"v_bfe_u32 v{vT}, v0, 4, 1")
        a(f"v_lshlrev_b32 v{vTRo}, 11, v{vT}")
        a(f"v_bfe_u32 v{vT}, v0, 5, 1")
        a(f"v_lshl_add_u32 v{vTRo}, v{vT}, 9, v{vTRo}")
        a(f"v_bfe_u32 v{vT}, v0, 2, 1")
        a(f"v_lshl_add_u32 v{vTRo}, v{vT}, 7, v{vTRo}")
        a(f"v_bfe_u32 v{vT}, v0, 3, 1")
        a(f"v_lshl_add_u32 v{vTRo}, v{vT}, 5, v{vTRo}")
        a(f"v_and_b32 v{vT}, 3, v0")
        a(f"v_lshl_add_u32 v{vTRo}, v{vT}, 3, v{vTRo}")
        a(f"v_add_u32 v{vTRo}, s{sLds}, v{vTRo}")
        a(f"v_add_u32 v{vLdsW}, s{sLds}, v{vL16}")
        a(f"s_lshl_b32 s{sT2}, s{sMEMB}, 8")
        a(f"s_lshl_b32 s{sT1}, s{sWAVE}, 6")
        a(f"s_add_u32 s{sT2}, s{sT2}, s{sT1}")
        a(f"s_lshl_b32 s{sT3}, s{sMEMB}, 17")
        a(f"s_lshl_b32 s{sT1}, s{sWAVE}, 8")
        a(f"s_add_u32 s{sT3}, s{sT3}, s{sT1}")
        late_start(a, cfg)
        chunks = []
        def qkv_chunk(ptr, jj, consume):
            def setup():
                if jj == 0: set_srd(a, sWT, ptr, 0x400000)
                a(f"s_xor_b32 s{sT0}, s{sRot}, {jj}")
                a(f"s_lshl_b32 s{sT0}, s{sT0}, 19")
                a(f"s_add_u32 s{sT0}, s{sT0}, s{sT2}")
            chunks.append(dict(setup=setup, vdma=vD, dstep=4 * 8192, consume=consume))
        for ptr, base in ((sWK, WK), (sWV, WV)):
            for jj in range(8):
                def consume(so, jj=jj, base=base):
                    qkv_tr_reads(a, vTR, so, base + jj * 16, base + jj * 16 + 8)
                    a("s_waitcnt lgkmcnt(0)")
                qkv_chunk(ptr, jj, consume)
        for wp in range(4):
            for ap in range(2):
                def setup(wp=wp, ap=ap):
                    if wp == 0 and ap == 0: set_srd(a, sWT, sWO, 0x400000)
                    a(f"s_add_u32 s{sT0}, s{sT3}, {32*wp*1024 + ap*128}")
                def consume(so, wp=wp, ap=ap):
                    for a1 in range(2):
                        dst = WO + ((2 * ap + a1) * 4 + wp) * 8
                        for e4 in range(4):
                            off = so + (8 * (e4 >> 1) + 2 * (e4 & 1)) * 128 + a1 * 64
                            a(f"ds_read_b64_tr_b16 {vr(dst+2*e4,2)}, v{vTRo} offset:{off}")
                    a("s_waitcnt lgkmcnt(0)")
                chunks.append(dict(setup=setup, vdma=vDo, dstep=8192, consume=consume))
        for jj in range(8):
            def consume(so, jj=jj):
                qkv_tr_reads(a, vTR, so, RING, RING + 8)
                a("s_waitcnt lgkmcnt(0)")
                for i in range(4):
                    a(f"ds_write_b128 v{vLdsW}, {vr(RING+4*i,4)} offset:{so+i*1024}")
                a("s_waitcnt lgkmcnt(0)")
            qkv_chunk(sWQ, jj, consume)
        load_chunks(a, chunks, sLds)
        trace(a, cfg, 6, None, vT)
        sel_consts(a, lane, 96, selM=SelM, selLo=112, selHi=116, selT=SelT)
        smf_index(a, lane, vIdx, 96)
        n_, g_, q_ = 96, 97, 98
        a(f"v_and_b32 v{n_}, 15, v0")
        a(f"v_lshrrev_b32 v{g_}, 4, v0")
        a(f"v_and_b32 v{q_}, 7, v0")
        a(f"s_mov_b32 s{sMaskHi}, 0xff00ff00")
        a(f"s_mov_b32 s{sMaskHi+1}, 0xff00ff00")
        a(f"v_lshlrev_b32 v99, 3, v{q_}")
        a(f"v_lshl_add_u32 v99, v{g_}, 6, v99")
        a(f"v_add_u32 v99, {SJ}, v99")
        a(f"v_lshrrev_b32 v{vT}, 1, v{g_}")
        a(f"v_lshlrev_b32 v{vSwx}, 8, v{vT}")
        a(f"v_lshl_add_u32 v{vSwx}, v{q_}, 4, v{vSwx}")
        a(f"v_and_b32 v{vT}, 1, v{g_}")
        a(f"v_lshl_add_u32 v{vSwx}, v{vT}, 3, v{vSwx}")
        a(f"s_lshl_b32 s{sT0}, s{sWAVE}, 9")
        a(f"s_add_u32 s{sT1}, s{sT0}, {SX}")
        a(f"v_add_u32 v{vSwx}, s{sT1}, v{vSwx}")
        a(f"v_cndmask_b32 v{vSwx}, v{vSwx}, v99, s[{sMaskHi}:{sMaskHi+1}]")
        a(f"v_lshlrev_b32 v{vSwm}, 4, v{q_}")
        a(f"v_lshl_add_u32 v{vSwm}, v{vT}, 3, v{vSwm}")
        a(f"s_lshl_b32 s{sT1}, s{sWAVE}, 7")
        a(f"s_add_u32 s{sT1}, s{sT1}, {SM}")
        a(f"v_add_u32 v{vSwm}, s{sT1}, v{vSwm}")
        a(f"s_mov_b32 s98, 0")
        a(f"s_mov_b32 s99, 0x00ff00ff")
        a(f"v_cndmask_b32 v{vSwm}, v99, v{vSwm}, s[98:99]")
        a(f"v_lshlrev_b32 v{vSrx}, 9, v{g_}")
        a(f"v_lshl_add_u32 v{vSrx}, v{n_}, 4, v{vSrx}")
        a(f"v_add_u32 v{vSrx}, {SX}, v{vSrx}")
        a(f"v_lshlrev_b32 v{vSrm}, 7, v{g_}")
        a(f"v_lshl_add_u32 v{vSrm}, v{q_}, 4, v{vSrm}")
        a(f"v_add_u32 v{vOr}, {OA}, v{vSrm}")
        a(f"v_add_u32 v{vSrm}, {SM}, v{vSrm}")
        a(f"v_bfe_u32 v{vT}, v0, 3, 1")
        a(f"v_lshl_add_u32 v{vOw}, v{vT}, 3, v{vOr}")
        a(f"v_add_u32 v{vOw}, s{sT0}, v{vOw}")
        a(f"v_lshrrev_b32 v{vT}, 2, v{n_}")
        a(f"v_lshl_add_u32 v{vT}, v{vT}, 2, v{g_}")
        a(f"v_lshlrev_b32 v{vX1s}, 11, v{vT}")
        a(f"v_and_b32 v{vT}, 3, v0")
        a(f"v_lshl_add_u32 v{vX1s}, v{vT}, 4, v{vX1s}")
        a(f"s_lshl_b32 s{sT0}, s{sWAVE}, 16")
        a(f"s_lshl_b32 s{sT1}, s{sMEMB}, 6")
        a(f"s_add_u32 s{sT0}, s{sT0}, s{sT1}")
        a(f"v_add_u32 v{vX1s}, s{sT0}, v{vX1s}")
        a(f"s_lshl_b32 s{sT2}, s{sMEMB}, 2")
        a(f"s_add_u32 s{sT2}, s{sT2}, s{sWAVE}")
        a(f"s_lshl_b32 s{sT0}, s{sT2}, 11")
        a(f"v_add_u32 v{vX1l}, s{sT0}, v{vL16}")
        a(f"v_lshlrev_b32 v{vX2s}, 4, v{g_}")
        a(f"v_lshl_add_u32 v{vX2s}, v{n_}, 2, v{vX2s}")
        a(f"s_lshl_b32 s{sT0}, s{sT2}, 6")
        a(f"v_add_u32 v{vX2s}, s{sT0}, v{vX2s}")
        a(f"v_mov_b32 v{vT}, {OOB:#x}")
        a(f"v_cmp_gt_u32 vcc, 4, v{n_}")
        a(f"v_cndmask_b32 v{vX2s}, v{vT}, v{vX2s}, vcc")
        a(f"v_and_b32 v100, 3, v0")
        a(f"v_lshlrev_b32 v100, 1, v100")
        a(f"v_lshl_add_u32 v100, v{g_}, 10, v100")
        a(f"v_and_b32 v104, 3, v0")
        a(f"v_bfe_u32 v105, v0, 2, 2")
        a(f"v_lshl_add_u32 v104, v104, 2, v105")
        a(f"v_and_b32 v105, 1, v104")
        a(f"v_lshlrev_b32 v105, 4, v105")
        a(f"v_mov_b32 v106, 0x3f80")
        a(f"v_lshlrev_b32 v105, v105, v106")
        a(f"v_lshrrev_b32 v104, 1, v104")
        for e in range(4):
            a(f"v_cmp_eq_u32 vcc, {e}, v104")
            a(f"v_cndmask_b32 v{108+e}, 0, v105, vcc")
        a(f"v_and_b32 v104, 0xf0, v{vL16}")
        a(f"v_add_u32 v104, {CST}, v104")
        a(f"ds_write_b128 v104, v[108:111]")
        a(f"ds_write_b128 v104, v[112:115] offset:256")
        a(f"ds_write_b128 v104, v[116:119] offset:512")
        for e in range(4): a(f"v_mov_b32 v{120+e}, 0x3f803f80")
        for e in range(4): a(f"v_mov_b32 v{124+e}, 0x3f003f00")
        a(f"ds_write_b128 v104, v[120:123] offset:768")
        a(f"ds_write_b128 v104, v[124:127] offset:1024")
        a(f"s_and_b32 s{sT0}, s{sT2}, 1")
        a(f"s_lshl_b32 s{sT0}, s{sT0}, 12")
        a(f"s_lshr_b32 s{sT1}, s{sT2}, 4")
        a(f"s_lshl_b32 s{sT1}, s{sT1}, 7")
        a(f"s_add_u32 s{sT0}, s{sT0}, s{sT1}")
        a(f"s_bfe_u32 s{sT1}, s{sT2}, 0x10001")
        a(f"s_lshl_b32 s{sT1}, s{sT1}, 5")
        a(f"s_add_u32 s{sT0}, s{sT0}, s{sT1}")
        a(f"s_bfe_u32 s{sT1}, s{sT2}, 0x20002")
        a(f"s_lshl_b32 s{sT1}, s{sT1}, 3")
        a(f"s_add_u32 s{sT0}, s{sT0}, s{sT1}")
        set_srd(a, sIN, sMEM0, 8192)
        a(f"buffer_load_ushort v101, v100, s[{sIN}:{sIN+3}], s{sT0} offen")
        a(f"buffer_load_ushort v102, v100, s[{sIN}:{sIN+3}], s{sT0} offen offset:64")
        a(f"s_mov_b32 s{sStep}, 0")
        a(f"s_mov_b32 s{sTag}, 0")
        a(f"s_lshl_b32 s{sT0}, s{sLAY}, 14")
        a(f"s_add_u32 s{sX2st}, s{sT0}, {OFF_X2:#x}")
        a(f"s_add_u32 s{sX2re}, s{sX2st}, 8192")
        a(f"s_lshl_b32 s{sT0}, s{sWAVE}, 11")
        a(f"s_add_u32 s{sX2l}, s{sT0}, s{sX2st}")
        a(f"s_add_u32 s{sT0}, s{sT0}, {AST}")
        a(f"v_add_u32 v{vAw}, s{sT0}, v{vL16}")
        a(f"s_lshl_b32 s{sT0}, s{sLAY}, 19")
        a(f"s_add_u32 s{sMemOff}, s{sT0}, {OFF_MEM:#x}")
        a(f"s_lshl_b32 s{sT0}, s{sLAY}, 18")
        a(f"s_add_u32 s{sX1a}, s{sT0}, {OFF_X1:#x}")
        a(f"s_add_u32 s{sX1b}, s{sX1a}, 32768")
        a(f"s_lshl_b32 s{sT0}, s{sLAY}, 21")
        a(f"s_lshl_b32 s{sT1}, s{sT2}, 12")
        a(f"s_add_u32 s{sT0}, s{sT0}, s{sT1}")
        a(f"s_add_u32 s{sKVb}, s{sT0}, {OFF_KVR:#x}")
        a(f"s_mov_b32 s{sKV}, s{sKVb}")
        a(f"s_mov_b32 s{sC}, {fbits(128**-0.5*1.4426950408889634):#x}")
        a(f"s_mov_b32 s{sC+1}, s{sC}")
        a("s_waitcnt vmcnt(0)")
        a(f"v_lshl_or_b32 v{vR}, v102, 16, v101")
        a(f"v_min_u32 v{vR}, -2, v{vR}")
        if not cfg.get("noinit"): wait_init(a)
        for i in range(8):
            a(f"ds_read_b128 {vr(RING+4*i,4)}, v{vLdsW} offset:{i*1024}")
        a(f"v_mov_b32 v{vOnes}, -1")
        for f in range(4): a(f"v_mov_b32 v{Kx+4*f}, -1")
        a(f"s_lshl_b32 s{sKVL}, s{sWAVE}, 12")
        a(f"s_add_u32 s{sKVL}, s{sKVL}, {KVL}")
        a(f"s_mov_b32 m0, s{sKVL}")
        a("s_waitcnt vmcnt(0) lgkmcnt(0)")
        if cfg.get("count_redo"):
            a("s_memrealtime s[70:71]")
            a("s_memtime s[98:99]")
            a("s_waitcnt lgkmcnt(0)")
            a("s_sub_u32 s101, s70, s100")
            a("s_mov_b32 s100, s70")
        if cfg.get("force_global"):
            a("s_branch L_chain_loopG")
        else:
            a(f"s_cmp_eq_u32 s{sLOCAL}, 0")
            a("s_cbranch_scc1 L_chain_loopG")
    W = f"s[{sWS}:{sWS+3}]"
    vq = [(t, jj) for jj in range(8) for t in range(2)]
    vacc = (VACC, VACC + 4)
    def fill_v(n):
        for _ in range(n):
            t, jj = vq.pop(0)
            a(f"v_smfmac_f32_16x16x64_bf16 {vr(vacc[t],4)}, {vr(A+4*jj,4)}, {xr(WV+jj*16+t*8,8)}, v{vIdx}")
    def pad(n):
        for _ in range(n): a(f"v_mov_b32 v{vT}, 0")
    cvt = lambda d, s: a(f"v_cvt_pk_bf16_f32 v{d}, v{s}, v{s+1}")
    mfma = lambda d, x, y, c: a(f"v_mfma_f32_16x16x32_bf16 {vr(d,4)}, {vr(x,4)}, {vr(y,4)}, {vr(c,4) if c is not None else 0}")
    mfma16 = lambda d, x, y: a(f"v_mfma_f32_16x16x16_bf16 {vr(d,4)}, {vr(x,2)}, {vr(y,2)}, {vr(d,4)}")
    two = cfg.get("twoset", True)
    a(".p2align 6")
    a.label(f"L_chain_loop{tag}")
    stamp("top")
    a(f"buffer_store_dword v{vR}, v{vX2s}, {W}, s{sX2st} offen{st}")
    trace(a, cfg, 0, sStep, vT)
    a(f"s_cmp_eq_u32 s{sStep}, 63")
    a(f"s_cbranch_scc1 L_chain_last{tag}")
    def kv_check():
        a(f"v_bitop3_b32 v{vT}, v{Kx}, v{Kx+4}, s{sKT} bitop3:0x7e")
        a(f"v_bitop3_b32 v{VACC}, v{Kx+8}, v{Kx+12}, s{sKT} bitop3:0x7e")
        a(f"v_or_b32 v{vT}, v{vT}, v{VACC}")
        a(f"v_and_b32 v{vT}, 1, v{vT}")
        a(f"v_cmp_ne_u32 vcc, 0, v{vT}")
    a(f"s_bfe_u32 s{sKT}, s{sStep}, 0x10002")
    a("s_waitcnt lgkmcnt(0)")
    kv_check()
    for i in range(8):
        a(f"v_mov_b64 {vr(q0+2*i,2)}, 0")
    a(f"s_cbranch_vccnz L_chain_kvwait{tag}")
    a.label(f"L_chain_kvok{tag}")
    trace(a, cfg, 1, sStep, vT)
    trace(a, cfg, 5, sStep, vT)
    spin_init(a)
    if cfg.get("ack2"): a("s_waitcnt vmcnt(0)")
    pad(cfg.get("d2", 30))
    def x2_issue(r):
        a(f"buffer_load_dwordx4 {vr(r,4)}, v{vL16}, {W}, s{sX2l} offen sc1")
        a(f"buffer_load_dwordx4 {vr(r+4,4)}, v{vL16}, {W}, s{sX2l} offen offset:1024 sc1")
    def x2_check(r, n):
        a(f"s_waitcnt vmcnt({n+1})")
        a(f"v_max3_u32 v{vT}, v{r}, v{r+1}, v{r+2}")
        a(f"s_waitcnt vmcnt({n})")
        a(f"v_max3_u32 v{vT}, v{vT}, v{r+3}, v{r+4}")
        a(f"v_max3_u32 v{vT}, v{vT}, v{r+5}, v{r+6}")
        a(f"v_max_u32 v{vT}, v{vT}, v{r+7}")
        a(f"v_cmp_eq_u32 vcc, -1, v{vT}")
        a(f"ds_write_b128 v{vAw}, {vr(r,4)}")
        a(f"ds_write_b128 v{vAw}, {vr(r+4,4)} offset:1024")
    stamp("x2iss")
    x2_issue(A)
    for i in range(4):
        a(f"v_mov_b64 {vr(VACC+2*i,2)}, 0")
    a(f"s_add_u32 s{sKV}, s{sStep}, 1")
    a(f"s_and_b32 s{sKV}, s{sKV}, 3")
    a(f"s_lshl_b32 s{sKV}, s{sKV}, 19")
    a(f"s_add_u32 s{sKV}, s{sKV}, s{sKVb}")
    if two:
        pad(cfg.get("g2", 30))
        x2_issue(A + 8)
        x2_check(A, 2)
        a(f"s_cbranch_vccnz L_chain_x2b{tag}")
    else:
        x2_check(A, 0)
        a(f"s_cbranch_vccnz L_chain_x2b{tag}")
    a.label(f"L_chain_x2ok{tag}")
    if cfg.get("count_redo"): a(f"s_add_u32 s31, s31, s{sSPIN}")
    stamp("A0")
    kvl = [f"buffer_load_dwordx4 v{vL16}, {W}, s{sKV} offen offset:{f*1024} sc1 lds" for f in range(4)]
    lg = {0: None, 1: None, 2: 5, 3: 8, 4: 4, 5: 4, 6: 4, 7: 2}
    SLo, SHi = RING, RING + 4
    for jj in range(8):
        if jj == 2:
            a(f"buffer_store_dword v{vR}, v{vX2s}, {W}, s{sMemOff} offen sc1")
            stamp("k1done", True)
            a("s_waitcnt vmcnt(1) lgkmcnt(8)")
            a("s_barrier")
            stamp("bar1", True)
            for j2 in range(2, 8, 2):
                a(f"v_xor_b32 v{vT}, {j2*1024}, v{vAw}")
                a(f"ds_read_b128 {vr(A+4*j2,4)}, v{vT}")
                a(f"ds_read_b128 {vr(A+4*j2+4,4)}, v{vT} offset:1024")
            fill_v(4)
        if lg[jj] is not None: a(f"s_waitcnt lgkmcnt({lg[jj]})")
        stamp(f"k{jj}", True)
        Aj = vr(A + 4 * jj, 4)
        s0 = RING + ((2 * jj) % 4) * 8; s1 = s0 + 8
        f0 = 2 * jj + 4
        if jj < 6:
            side = [f"ds_read_b128 {vr(s0,4)}, v{vLdsW} offset:{f0*2048}", f"ds_read_b128 {vr(s0+4,4)}, v{vLdsW} offset:{f0*2048+1024}",
                    f"ds_read_b128 {vr(s1,4)}, v{vLdsW} offset:{f0*2048+2048}", f"ds_read_b128 {vr(s1+4,4)}, v{vLdsW} offset:{f0*2048+3072}"]
        elif jj == 6:
            side = [f"v_and_b32 v{vT}, 0xf0, v{vL16}", f"v_add_u32 v{vT}, {CST}, v{vT}",
                    f"ds_read_b128 {vr(SLo,4)}, v{vT} offset:256", f"ds_read_b128 {vr(SHi,4)}, v{vT} offset:512"]
        else:
            side = [f"buffer_store_dword v{vOnes}, v{vX2s}, {W}, s{sX2re} offen{st}", kvl.pop(0), None, None]
        for acc, wsrc, sd in ((q0, vr(s0, 8), side[0]), (k0, xr(WK + jj * 16, 8), side[1]), (q1, vr(s1, 8), side[2]), (k1, xr(WK + jj * 16 + 8, 8), side[3])):
            a(f"v_smfmac_f32_16x16x64_bf16 {vr(acc,4)}, {Aj}, {wsrc}, v{vIdx}")
            if sd: a(sd)
    stamp("h3end")
    Ap0, Ap1, Dp0, Dp1, X = 72, 76, 80, 84, 88
    cvt(Ap0, q0); cvt(Ap0 + 1, q0 + 2); cvt(Ap0 + 2, k0); cvt(Ap0 + 3, k0 + 2)
    cvt(Ap1, q1); cvt(Ap1 + 1, q1 + 2)
    mfma(Dp0, Ap0, SelT, None)
    cvt(Ap1 + 2, k1); cvt(Ap1 + 3, k1 + 2)
    mfma(Dp1, Ap1, SelT, None)
    a(kvl.pop(0))
    cvt(X, Dp0); cvt(X + 1, Dp0 + 2)
    fill_v(1)
    cvt(X + 2, Dp1); cvt(X + 3, Dp1 + 2)
    Sx0, Sx1, Sm = 32, 36, 40
    mfma(Sx0, Kx, X, None)
    mfma(Sx1, Kx + 4, X, None)
    mfma(Sm, X, X, None)
    a(kvl.pop(0))
    cvt(44, Sx0); cvt(45, Sx0 + 2); cvt(46, Sx1); cvt(47, Sx1 + 2)
    a(f"ds_write2_b64 v{vSwx}, v[44:45], v[46:47] offset0:0 offset1:16")
    cvt(92, Sm); cvt(93, Sm + 2)
    a(f"ds_write_b64 v{vSwm}, v[92:93]")
    stamp("swr")
    fill_v(3)
    a(kvl.pop(0))
    a("s_waitcnt lgkmcnt(0)")
    stamp("swdone", True)
    a("s_barrier")
    stamp("bar2", True)
    a(f"ds_read_b128 v[72:75], v{vSrx}")
    a(f"ds_read_b128 v[80:83], v{vSrm}")
    a(f"ds_read_b128 v[76:79], v{vSrx} offset:256")
    ONES, HALF = 88, 92
    a(f"ds_read_b128 {vr(ONES,4)}, v{vT} offset:768")
    a(f"ds_read_b64 {vr(HALF,2)}, v{vT} offset:1024")
    fill_v(3)
    a("s_waitcnt lgkmcnt(3)")
    mfma(32, SLo, 72, None)
    mfma(36, SelM, 80, None)
    a("s_waitcnt lgkmcnt(2)")
    mfma(32, SHi, 76, 32)
    fill_v(2)
    stamp("sred")
    m, t = 46, 47
    a(f"v_max3_f32 v{m}, v36, v37, v38")
    a(f"v_max3_f32 v{t}, v32, v33, v34")
    a(f"v_max3_f32 v{m}, v{m}, v39, v35")
    a(f"v_max_f32 v{m}, v{m}, v{t}")
    fill_v(1)
    a(f"v_max_f32_dpp v{m}, v{m}, v{m} row_ror:8 row_mask:0xf bank_mask:0xf")
    a(f"v_mov_b32 v{t}, v{m}")
    fill_v(1)
    a(f"v_permlane16_swap_b32 v{m}, v{t}")
    a(f"v_max_f32 v{m}, v{m}, v{t}")
    a(f"v_mov_b32 v{t}, v{m}")
    fill_v(1)
    a(f"v_permlane32_swap_b32 v{m}, v{t}")
    a(f"v_max_f32 v{m}, v{m}, v{t}")
    assert not vq
    a(f"v_mul_f32 v{m}, s{sC}, v{m}")
    for i in range(0, 8, 2):
        a(f"v_pk_fma_f32 {vr(32+i,2)}, {vr(32+i,2)}, s[{sC}:{sC+1}], {vr(m,2)} op_sel_hi:[1,1,0] neg_lo:[0,0,1] neg_hi:[0,0,1]")
    for i in range(8):
        a(f"v_exp_f32 v{32+i}, v{32+i}")
    Bx, Pm, vp = 40, 44, 84
    cvt(Bx, 32); cvt(Bx + 1, 34); cvt(Bx + 2, 32); cvt(Bx + 3, 34)
    cvt(Pm, 36); cvt(Pm + 1, 38)
    a(f"v_mov_b32_dpp v{Bx+2}, v{Bx} row_ror:8 row_mask:0xf bank_mask:0x3")
    a(f"v_mov_b32_dpp v{Bx+3}, v{Bx+1} row_ror:8 row_mask:0xf bank_mask:0x3")
    a(f"v_mov_b32_dpp v{Bx}, v{Bx} row_ror:8 row_mask:0xf bank_mask:0xc")
    a(f"v_mov_b32_dpp v{Bx+1}, v{Bx+1} row_ror:8 row_mask:0xf bank_mask:0xc")
    a("s_waitcnt lgkmcnt(0)")
    stamp("pready")
    a(f"v_mfma_f32_16x16x16_bf16 v[32:35], {vr(HALF,2)}, {vr(Pm,2)}, 0")
    cvt(vp, vacc[0]); cvt(vp + 1, vacc[0] + 2)
    mfma(32, ONES, Bx, 32)
    cvt(vp + 2, vacc[1]); cvt(vp + 3, vacc[1] + 2)
    mfma(72, Vx, Bx, None)
    mfma(76, Vx + 4, Bx, None)
    mfma16(72, vp, Pm)
    mfma16(76, vp + 2, Pm)
    a(f"v_rcp_f32 v32, v32")
    OF, WA = 96, 112
    for i in range(3):
        a(f"v_mov_b64 {vr(WA+2*i,2)}, 0")
    for i in range(4):
        a(f"v_cndmask_b32 v{72+i}, v{72+i}, v{76+i}, s[{sMaskHi}:{sMaskHi+1}]")
    a(f"v_pk_mul_f32 v[72:73], v[72:73], v[32:33] op_sel_hi:[1,0]")
    a(f"v_pk_mul_f32 v[74:75], v[74:75], v[32:33] op_sel_hi:[1,0]")
    cvt(80, 72); cvt(81, 74)
    a(f"ds_write_b64 v{vOw}, v[80:81]")
    stamp("owr")
    for i in range(3, 8):
        a(f"v_mov_b64 {vr(WA+2*i,2)}, 0")
    a("s_waitcnt vmcnt(4) lgkmcnt(0)")
    stamp("owdone", True)
    a("s_barrier")
    stamp("bar3", True)
    for wp in range(4):
        a(f"ds_read_b128 {vr(OF+4*wp,4)}, v{vOr} offset:{wp*512}")
    a(f"ds_read_b128 v[40:43], v{vT}")
    a(f"s_add_u32 s{sStep}, s{sStep}, 1")
    a(f"s_add_u32 s{sMemOff}, s{sMemOff}, 8192")
    a(f"s_xor_b32 s{sX2st}, s{sX2st}, 8192")
    a(f"s_xor_b32 s{sX2re}, s{sX2re}, 8192")
    a(f"s_xor_b32 s{sX2l}, s{sX2l}, 8192")
    spin_init(a)
    def pack(U):
        d = 32 + 4 * U; s = WA + 8 * U
        return [f"v_cvt_pk_bf16_f32 v{d}, v{s}, v{s+1}", f"v_cvt_pk_bf16_f32 v{d+1}, v{s+2}, v{s+3}",
                f"v_and_or_b32 v{d}, v{d}, -2, s{sTag}",
                f"v_cvt_pk_bf16_f32 v{d+2}, v{s+4}, v{s+5}", f"v_cvt_pk_bf16_f32 v{d+3}, v{s+6}, v{s+7}",
                f"buffer_store_dwordx4 {vr(d,4)}, v{vX1s}, {W}, s{sX1a if U == 0 else sX1b} offen{st}"]
    p0 = pack(0); p1 = pack(1)
    n = 0
    for ac in range(4):
        for wp in range(4):
            if ac == 0: a(f"s_waitcnt lgkmcnt({4-wp})")
            a(f"v_smfmac_f32_16x16x64_bf16 {vr(WA+4*ac,4)}, {vr(OF+4*wp,4)}, {vr(WO+(ac*4+wp)*8,8)}, v{vIdx}")
            n += 1
            stamp(f"wo{n}", True)
            if n in (7, 8, 9, 11, 12, 13): a(p0.pop(0))
            if n in (15, 16): a(p1.pop(0))
    a(p1.pop(0))
    for i in range(4):
        a(f"ds_read_b128 {vr(RING+4*i,4)}, v{vLdsW} offset:{i*1024}")
    for x in p1: a(x)
    stamp("x1st")
    for i in range(4, 8):
        a(f"ds_read_b128 {vr(RING+4*i,4)}, v{vLdsW} offset:{i*1024}")
    a("s_waitcnt vmcnt(2)")
    a(f"v_add_u32 v{vT}, s{sKVL}, v{vL16}")
    for f in range(4):
        a(f"ds_read_b128 {vr(Kx+4*f,4)}, v{vT} offset:{f*1024}")
    if cfg.get("ack1"): a("s_waitcnt vmcnt(0)")
    pad(cfg.get("d1", 30))
    def x1_issue(r):
        a(f"buffer_load_dwordx4 {vr(r,4)}, v{vX1l}, {W}, s{sX1a} offen sc1")
        a(f"buffer_load_dwordx4 {vr(r+4,4)}, v{vX1l}, {W}, s{sX1a} offen offset:1024 sc1")
    def x1_check(r, n):
        a(f"s_waitcnt vmcnt({n+1})")
        mfma(104, 40, r, None)
        a(f"s_waitcnt vmcnt({n})")
        mfma(104, 40, r + 4, 104)
        a(f"v_bitop3_b32 v{vT}, v{r}, v{r+4}, s{sTag} bitop3:0x7e")
        a(f"v_and_b32 v{vT}, 1, v{vT}")
        a(f"v_cmp_ne_u32 vcc, 0, v{vT}")
    stamp("x1iss")
    x1_issue(96)
    a("s_waitcnt lgkmcnt(12)")
    if two:
        pad(cfg.get("g1", 35))
        x1_issue(112)
        x1_check(96, 2)
    else:
        x1_check(96, 0)
    a(f"s_cbranch_vccnz L_chain_x1b{tag}")
    a.label(f"L_chain_x1ok{tag}")
    stamp("x1ok")
    if cfg.get("count_redo"):
        a(f"s_lshl_b32 s{sT0}, s{sSPIN}, 16")
        a(f"s_add_u32 s31, s31, s{sT0}")
    a(f"s_xor_b32 s{sTag}, s{sTag}, 1")
    a(f"v_add_f32_dpp v104, v104, v104 row_ror:4 row_mask:0xf bank_mask:0xf")
    a(f"v_add_f32_dpp v105, v105, v105 row_ror:4 row_mask:0xf bank_mask:0xf")
    a(f"v_add_f32_dpp v104, v104, v104 row_ror:8 row_mask:0xf bank_mask:0xf")
    a(f"v_add_f32_dpp v105, v105, v105 row_ror:8 row_mask:0xf bank_mask:0xf")
    a(f"v_cvt_pk_bf16_f32 v{vR}, v104, v105")
    a(f"v_min_u32 v{vR}, -2, v{vR}")
    if stamp.on:
        a(f"s_cmp_eq_u32 s{sStep}, {cfg.get('stamp_step', 40)}")
        a(f"s_cbranch_scc0 L_chain_loop{tag}")
        a("s_waitcnt lgkmcnt(0)")
        a(f"s_lshl_b32 s{sT0}, s{sMEMB}, 2")
        a(f"s_add_u32 s{sT0}, s{sT0}, s{sWAVE}")
        a(f"s_lshl_b32 s{sT1}, s{sLAY}, 7")
        a(f"s_add_u32 s{sT0}, s{sT0}, s{sT1}")
        a(f"s_lshl_b32 s{sT0}, s{sT0}, 6")
        a(f"s_add_u32 s{sT0}, s{sT0}, {OFF_STAMP:#x}")
        a(f"v_mov_b32 v108, 0")
        for i in range(stamp.n):
            a(f"v_mov_b32 v109, s{stamp.base+2*i}")
            a(f"buffer_store_dword v109, v108, {W}, s{sT0} offen offset:{4*i}")
        cfg["stamp_names"] = stamp.names
    a(f"s_branch L_chain_loop{tag}")
    a.label(f"L_chain_x1b{tag}")
    x1_issue(96)
    spin_tick(a)
    if two:
        x1_check(112, 2)
        a(f"s_cbranch_vccz L_chain_x1ok{tag}")
        x1_issue(112)
        spin_tick(a)
        x1_check(96, 2)
    else:
        x1_check(96, 0)
    a(f"s_cbranch_vccz L_chain_x1ok{tag}")
    a(f"s_branch L_chain_x1b{tag}")
    a.label(f"L_chain_x2b{tag}")
    x2_issue(A)
    spin_tick(a)
    if two:
        x2_check(A + 8, 2)
        a(f"s_cbranch_vccz L_chain_x2c{tag}")
        x2_issue(A + 8)
        spin_tick(a)
        x2_check(A, 2)
    else:
        x2_check(A, 0)
    a(f"s_cbranch_vccz L_chain_x2ok{tag}")
    a(f"s_branch L_chain_x2b{tag}")
    if two:
        a.label(f"L_chain_x2c{tag}")
        for i in range(4):
            a(f"v_mov_b64 {vr(A+2*i,2)}, {vr(A+8+2*i,2)} ; sameval")
        a(f"s_branch L_chain_x2ok{tag}")
    a.label(f"L_chain_last{tag}")
    if cfg.get("count_redo"):
        a("s_memrealtime s[70:71]")
        a("s_memtime s[72:73]")
        a(f"s_lshl_b32 s{sT0}, s{sMEMB}, 2")
        a(f"s_add_u32 s{sT0}, s{sT0}, s{sWAVE}")
        a(f"s_lshl_b32 s{sT1}, s{sLAY}, 7")
        a(f"s_add_u32 s{sT0}, s{sT0}, s{sT1}")
        a(f"s_lshl_b32 s{sT0}, s{sT0}, 6")
        a(f"s_add_u32 s{sT0}, s{sT0}, {OFF_STAMP:#x}")
        a(f"v_mov_b32 v108, 0")
        a("s_waitcnt lgkmcnt(0)")
        a(f"s_sub_u32 s70, s70, s100")
        a(f"s_sub_u32 s72, s72, s98")
        for i, r in enumerate((72, 31, 70, 101)):
            a(f"v_mov_b32 v109, s{r}")
            a(f"buffer_store_dword v109, v108, {W}, s{sT0} offen offset:{48+4*i}")
    a(f"buffer_store_dword v{vR}, v{vX2s}, {W}, s{sMemOff} offen sc1")
    a("s_waitcnt vmcnt(0) lgkmcnt(0)")
    a("s_branch L_exit")
    a.label(f"L_chain_kvwait{tag}")
    spin_init(a)
    lab = a.newlab("L_kvspin")
    a.label(lab)
    for f in range(4):
        a(f"buffer_load_dwordx4 {vr(Kx+4*f,4)}, v{vL16}, {W}, s{sKV} offen offset:{f*1024} sc1")
    spin_tick(a)
    a("s_waitcnt vmcnt(0)")
    kv_check()
    a(f"s_cbranch_vccz L_chain_kvok{tag}")
    a("s_sleep 4")
    a(f"s_branch {lab}")
```

```python
from asmlib import *
from layout import *
import struct

KNAME = "interleave_layers__memory_aug_recurrent_mem_tr__sliding_local_dilated__prompt_kernel"

sX, sMEM0, sWQ, sWK, sWV, sWO = 4, 6, 8, 10, 12, 14
sWB, sWBO, sOUT, sDBG, sWSP = 20, 22, 24, 26, 28
sWS = 32
sWT = 36
sIN = 40
sGRP, sMEMB, sWAVE, sLAY = 44, 45, 46, 47
sSPIN = 30
sLOCAL = 3
sSIG = 2
sT0, sT1, sT2, sT3 = 48, 49, 50, 51
sFB = 52
sFV = 54
SPIN_MAX = 1 << 19
OOB = 0x80000000

def fbits(x):
    return struct.unpack("<I", struct.pack("<f", x))[0]

def set_srd(a, srd, ptr, nbytes):
    a(f"s_mov_b32 s{srd}, s{ptr}")
    a(f"s_mov_b32 s{srd+1}, s{ptr+1}")
    a(f"s_mov_b32 s{srd+2}, {nbytes:#x}")
    a(f"s_mov_b32 s{srd+3}, 0x20000")

def spin_init(a):
    a(f"s_mov_b32 s{sSPIN}, 0")

def spin_tick(a):
    a(f"s_add_u32 s{sSPIN}, s{sSPIN}, 1")
    a(f"s_cmp_gt_u32 s{sSPIN}, {SPIN_MAX}")
    a("s_cbranch_scc1 L_exit")

class Stamps:
    def __init__(self, a, on, base=70, only=None):
        self.a = a; self.on = on; self.base = base; self.n = 0; self.names = []; self.only = only
    def __call__(self, name, extra=False):
        if not self.on: return
        if self.only is None and extra: return
        if self.only is not None and name not in self.only: return
        r = self.base + 2 * self.n
        self.names.append(name); self.n += 1
        assert r + 1 < 92
        self.a(f"s_memtime s[{r}:{r+1}]")

def wait_init(a):
    lab = a.newlab("L_winit"); done = a.newlab("L_wdone")
    a(f"s_cmp_lg_u32 s{sWAVE}, 0")
    a(f"s_cbranch_scc1 {done}")
    spin_init(a)
    a.label(lab)
    a(f"s_load_dwordx2 s[{sFB}:{sFB+1}], s[{sDBG}:{sDBG+1}], 0x80 glc")
    spin_tick(a)
    a("s_waitcnt lgkmcnt(0)")
    a(f"s_add_u32 s{sFV}, s{sFB}, s{sFB+1}")
    a(f"s_cmp_ge_u32 s{sFV}, {128+256}")
    a(f"s_cbranch_scc1 {done}")
    a("s_sleep 12")
    a(f"s_branch {lab}")
    a.label(done)
    a("s_barrier")
    a(f"s_lshl_b32 s{sFV}, s{sGRP}, 4")
    a(f"s_load_dword s{sFV}, s[{sDBG}:{sDBG+1}], s{sFV} glc")
    a("s_waitcnt lgkmcnt(0)")
    a(f"s_cmp_ge_u32 s{sFV}, 32")
    a(f"s_cselect_b32 s{sLOCAL}, 1, 0")

def signal_init(a):
    lab = a.newlab("L_sig")
    a(f"s_cmp_lg_u32 s{sSIG}, 0")
    a(f"s_cbranch_scc1 {lab}")
    a(f"s_mov_b32 s{sSIG}, 1")
    a(f"s_atomic_add s{sSIG}, s[{sDBG}:{sDBG+1}], 0x80")
    a("s_waitcnt lgkmcnt(0)")
    a.label(lab)

def sel_consts(a, vlane, tmp, selM=None, selLo=None, selHi=None, selT=None):
    t0, t1, t2, t3 = tmp, tmp + 1, tmp + 2, tmp + 3
    a(f"v_and_b32 v{t0}, 1, v{vlane}")
    a(f"v_lshlrev_b32 v{t0}, 4, v{t0}")
    a(f"v_mov_b32 v{t1}, 0x3f80")
    a(f"v_lshlrev_b32 v{t0}, v{t0}, v{t1}")
    a(f"v_bfe_u32 v{t1}, v{vlane}, 1, 2")
    a(f"v_bfe_u32 v{t2}, v{vlane}, 3, 1")
    for e in range(4):
        a(f"v_cmp_eq_u32 vcc, {e}, v{t1}")
        a(f"v_cndmask_b32 v{t3}, 0, v{t0}, vcc")
        if selM is not None: a(f"v_mov_b32 v{selM+e}, v{t3}")
        if selLo is not None:
            a(f"v_cmp_eq_u32 vcc, 0, v{t2}")
            a(f"v_cndmask_b32 v{selLo+e}, 0, v{t3}, vcc")
        if selHi is not None:
            a(f"v_cmp_eq_u32 vcc, 1, v{t2}")
            a(f"v_cndmask_b32 v{selHi+e}, 0, v{t3}, vcc")
    if selT is not None:
        a(f"v_bfe_u32 v{t1}, v{vlane}, 2, 1")
        a(f"v_bfe_u32 v{t3}, v{vlane}, 4, 1")
        a(f"v_cmp_eq_u32 vcc, v{t1}, v{t3}")
        a(f"v_cndmask_b32 v{t0}, 0, v{t0}, vcc")
        a(f"v_bfe_u32 v{t1}, v{vlane}, 1, 1")
        a(f"v_lshl_add_u32 v{t1}, v{t2}, 1, v{t1}")
        for e in range(4):
            a(f"v_cmp_eq_u32 vcc, {e}, v{t1}")
            a(f"v_cndmask_b32 v{selT+e}, 0, v{t0}, vcc")

def smf_index(a, vlane, vidx, tmp):
    a(f"v_mov_b32 v{vidx}, 0x44444444")
    a(f"v_mov_b32 v{tmp}, 0xeeeeeeee")
    a(f"v_and_b32 v{tmp+1}, 8, v{vlane}")
    a(f"v_cmp_ne_u32 vcc, 0, v{tmp+1}")
    a(f"v_cndmask_b32 v{vidx}, v{vidx}, v{tmp}, vcc")

def load_chunks(a, chunks, sLdsBase, nslots=8):
    def issue(c):
        ch = chunks[c]; slot = c % nslots
        ch["setup"]()
        a(f"s_add_u32 m0, s{sLdsBase}, {slot*4096}")
        for q in range(4):
            if q: a(f"s_add_u32 s{sT0}, s{sT0}, {ch['dstep']-1024}")
            a(f"buffer_load_dwordx4 v{ch['vdma']}, s[{sWT}:{sWT+3}], s{sT0} offen offset:{q*1024} lds")
    n = len(chunks)
    for c in range(min(nslots, n)): issue(c)
    for c in range(n):
        inflight = min(nslots, n - c)
        a(f"s_waitcnt vmcnt({4*(inflight-1)})")
        chunks[c]["consume"]((c % nslots) * 4096)
        if c + nslots < n: issue(c + nslots)

def qkv_dma_addr(a, vlane, vdst, tmp, rowbytes):
    a(f"v_bfe_u32 v{tmp}, v{vlane}, 2, 1")
    a(f"v_lshlrev_b32 v{vdst}, 5, v{tmp}")
    a(f"v_bfe_u32 v{tmp}, v{vlane}, 3, 1")
    a(f"v_lshl_add_u32 v{vdst}, v{tmp}, 4, v{vdst}")
    a(f"v_bfe_u32 v{tmp}, v{vlane}, 4, 2")
    a(f"v_add_u32 v{vdst}, v{vdst}, v{tmp}")
    a(f"v_mul_u32_u24 v{vdst}, {rowbytes}, v{vdst}")
    a(f"v_and_b32 v{tmp}, 3, v{vlane}")
    a(f"v_lshl_add_u32 v{vdst}, v{tmp}, 4, v{vdst}")

def qkv_tr_addr(a, vlane, vdst, tmp, sLdsBase):
    a(f"v_lshrrev_b32 v{tmp}, 4, v{vlane}")
    a(f"v_lshlrev_b32 v{vdst}, 9, v{tmp}")
    a(f"v_bfe_u32 v{tmp}, v{vlane}, 2, 2")
    a(f"v_lshl_add_u32 v{vdst}, v{tmp}, 6, v{vdst}")
    a(f"v_and_b32 v{tmp}, 3, v{vlane}")
    a(f"v_lshl_add_u32 v{vdst}, v{tmp}, 3, v{vdst}")
    a(f"v_add_u32 v{vdst}, s{sLdsBase}, v{vdst}")

def qkv_tr_reads(a, vaddr, slotoff, dst0, dst1):
    for t, dst in ((0, dst0), (1, dst1)):
        for e4 in range(4):
            off = slotoff + (32 * (e4 >> 1) + 4 * (e4 & 1)) * 64 + t * 32
            a(f"ds_read_b64_tr_b16 {xr(dst+2*e4,2)}, v{vaddr} offset:{off}")

def poll_flags(a, vtmp, voff, soff, sleep=2):
    lab = a.newlab("L_pf"); done = a.newlab("L_pfd")
    spin_init(a)
    a.label(lab)
    a(f"buffer_load_dword v{vtmp}, v{voff}, s[{sWS}:{sWS+3}], s{soff} offen sc1")
    spin_tick(a)
    a("s_waitcnt vmcnt(0)")
    a(f"v_cmp_eq_u32 vcc, 0, v{vtmp}")
    a(f"s_cbranch_vccz {done}")
    if sleep: a(f"s_sleep {sleep}")
    a(f"s_branch {lab}")
    a.label(done)

def set_flag(a, vone, soff, imm=0, mod=" sc1"):
    a("s_mov_b64 exec, 1")
    a(f"buffer_store_dword v{vone}, off, s[{sWS}:{sWS+3}], s{soff} offset:{imm}{mod}")
    a("s_mov_b64 exec, -1")

def xlane_g(a, op, m, t):
    a(f"v_mov_b32 v{t}, v{m}")
    a(f"v_permlane16_swap_b32 v{m}, v{t}")
    a(f"{op} v{m}, v{m}, v{t}")
    a(f"v_mov_b32 v{t}, v{m}")
    a(f"v_permlane32_swap_b32 v{m}, v{t}")
    a(f"{op} v{m}, v{m}, v{t}")

def dump_stamps(a, stamp, cfg, row_sgpr_calc):
    a("s_waitcnt lgkmcnt(0)")
    row_sgpr_calc()
    a(f"s_lshl_b32 s{sT0}, s{sT0}, 6")
    a(f"s_add_u32 s{sT0}, s{sT0}, {OFF_STAMP:#x}")
    for i in range(stamp.n):
        a(f"v_mov_b32 v127, s{stamp.base+2*i}")
        a(f"buffer_store_dword v127, off, s[{sWS}:{sWS+3}], s{sT0} offset:{4*i}")
    a("s_waitcnt vmcnt(0)")
    cfg["stamp_names"] = stamp.names

sTR = 68
def trace_setup(a, cfg):
    if not cfg.get("trace"): return
    a(f"s_lshl_b32 s{sTR}, s{sGRP}, 7")
    a(f"s_lshl_b32 s{sTR+1}, s{sMEMB}, 2")
    a(f"s_add_u32 s{sTR}, s{sTR}, s{sTR+1}")
    a(f"s_add_u32 s{sTR}, s{sTR}, s{sWAVE}")
    a(f"s_lshl_b32 s{sTR}, s{sTR}, 11")
    a(f"s_add_u32 s{sTR}, s{sTR}, {OFF_STAMP+0x20000:#x}")
def trace(a, cfg, ev, sidx, vtmp):
    if not cfg.get("trace"): return
    a("s_memtime s[100:101]" if ev == 5 else "s_memrealtime s[100:101]")
    if sidx is None: a(f"s_mov_b32 s{sTR+1}, s{sTR}")
    else:
        a(f"s_and_b32 s{sTR+1}, s{sidx}, 63")
        a(f"s_lshl_b32 s{sTR+1}, s{sTR+1}, 2")
        a(f"s_add_u32 s{sTR+1}, s{sTR+1}, s{sTR}")
    a("s_waitcnt lgkmcnt(0)")
    a(f"v_mov_b32 v{vtmp}, s100")
    a(f"buffer_store_dword v{vtmp}, off, s[{sWS}:{sWS+3}], s{sTR+1} offset:{ev*256}")

def late_start(a, cfg):
    if cfg.get("noinit") or cfg.get("nolate"): return
    skip = a.newlab("L_nolate"); lab = a.newlab("L_late"); done = a.newlab("L_lated")
    a(f"s_cmp_eq_u32 s{sLAY}, 0")
    a(f"s_cbranch_scc1 {skip}")
    a(f"s_cmp_lg_u32 s{sWAVE}, 0")
    a(f"s_cbranch_scc1 {done}")
    spin_init(a)
    a.label(lab)
    a(f"s_load_dword s{sFV}, s[{sDBG}:{sDBG+1}], 0xc4 glc")
    a(f"s_add_u32 s{sSPIN}, s{sSPIN}, 1")
    a(f"s_cmp_gt_u32 s{sSPIN}, 200")
    a(f"s_cbranch_scc1 {done}")
    a("s_waitcnt lgkmcnt(0)")
    a(f"s_cmp_ge_u32 s{sFV}, {cfg.get('late_n', 32)}")
    a(f"s_cbranch_scc1 {done}")
    a("s_sleep 12")
    a(f"s_branch {lab}")
    a.label(done)
    a("s_waitcnt lgkmcnt(0)")
    a("s_barrier")
    a.label(skip)

def late_signal(a, cfg):
    if cfg.get("noinit") or cfg.get("nolate"): return
    lab = a.newlab("L_lsig")
    a(f"s_or_b32 s{sT0}, s{sLAY}, s{sWAVE}")
    a(f"s_cbranch_scc1 {lab}")
    a(f"s_mov_b32 s{sT0}, 1")
    a(f"s_atomic_add s{sT0}, s[{sDBG}:{sDBG+1}], 0xc4")
    a("s_waitcnt lgkmcnt(0)")
    a.label(lab)

def warm_weights(a, cfg, share, nshare):
    if cfg.get("noinit") or cfg.get("nowarm"): return
    a("v_lshlrev_b32 v100, 4, v0")
    n = 0
    per = 0x400000 // (nshare * 32 * 4096)
    for ptr in (sWK, sWV, sWO, sWQ):
        set_srd(a, sWT, ptr, 0x400000)
        a(f"s_lshl_b32 s{sT0}, s{sMEMB}, 12")
        a(f"s_add_u32 s{sT0}, s{sT0}, {share * 32 * 4096}")
        for i in range(per):
            if i: a(f"s_add_u32 s{sT0}, s{sT0}, {nshare * 32 * 4096}")
            if n >= 32: a("s_waitcnt vmcnt(31)")
            a(f"buffer_load_dwordx4 {ar((n % 32) * 4, 4)}, v100, s[{sWT}:{sWT+3}], s{sT0} offen")
            n += 1
    a("s_waitcnt vmcnt(0)")
```

```python
from gen_common import *

def role_wa(a, cfg):
    stamp = Stamps(a, cfg.get("stamp") == "wa", base=4, only=cfg.get("only"))
    W = f"s[{sWS}:{sWS+3}]"
    vL16, vIdx, vF8, vOne, vHw, vHr, vT, vT2 = 1, 2, 3, 4, 5, 6, 7, 8
    vKMw, vVr, vNeg = 9, 10, 11
    Sel16 = 12
    XR = 16
    KA, VA, QA = 40, 56, 72
    PK = 88
    WQ, WK, WV = 128, 256, 384
    sI, sSeg, sXn, sFl, sKVo, sMem, sO, sFlA, sHold, sLds, sPar, sC = 55, 56, 57, 58, 59, 60, 61, 62, 63, 66, 67, 96
    sMask = 76
    XN, HOLD, KM, VM = 0, 0x10000, 0x1C000, 0x1D000
    cvt = lambda d, s: a(f"v_cvt_pk_bf16_f32 v{d}, v{s}, v{s+1}")
    def mfma(d, x, y, c):
        a(f"v_mfma_f32_16x16x32_bf16 {vr(d,4)}, {xr(x,4)}, {xr(y,4)}, {vr(c,4) if c is not None else 0}")
    a.label("L_wa")
    a(f"s_mov_b32 s{sPar}, s{sT3}")
    a("v_and_b32 v0, 63, v0")
    a(f"v_lshlrev_b32 v{vL16}, 4, v0")
    a(f"s_lshl_b32 s{sLds}, s{sWAVE}, 15")
    vD, vTR = 96, 97
    qkv_dma_addr(a, 0, vD, vT, 8192)
    qkv_tr_addr(a, 0, vTR, vT, sLds)
    a(f"s_lshl_b32 s{sT2}, s{sMEMB}, 8")
    a(f"s_lshl_b32 s{sT1}, s{sWAVE}, 6")
    a(f"s_add_u32 s{sT2}, s{sT2}, s{sT1}")
    late_start(a, cfg)
    chunks = []
    for ptr, base in ((sWK, WK), (sWV, WV), (sWQ, WQ)):
        for jj in range(8):
            def setup(ptr=ptr, jj=jj):
                if jj == 0: set_srd(a, sWT, ptr, 0x400000)
                a(f"s_add_u32 s{sT0}, s{sT2}, {jj << 19}")
            def consume(so, jj=jj, base=base):
                qkv_tr_reads(a, vTR, so, base + jj * 16, base + jj * 16 + 8)
                a("s_waitcnt lgkmcnt(0)")
            chunks.append(dict(setup=setup, vdma=vD, dstep=4 * 8192, consume=consume))
    load_chunks(a, chunks, sLds)
    late_signal(a, cfg)
    trace(a, cfg, 6, None, vT)
    wfrag = lambda base, ks, t: base + (ks >> 1) * 16 + t * 8 + (ks & 1) * 4
    smf_index(a, 0, vIdx, 96)
    a(f"v_and_b32 v{vF8}, 7, v0")
    a(f"v_lshlrev_b32 v{vF8}, 2, v{vF8}")
    a(f"v_mov_b32 v{vOne}, 1")
    a(f"v_mov_b32 v{vNeg}, {fbits(-1e9 * 128**0.5):#x}")
    a("v_and_b32 v96, 1, v0")
    a("v_lshlrev_b32 v96, 4, v96")
    a("v_mov_b32 v97, 0x3f80")
    a("v_lshlrev_b32 v96, v96, v97")
    a("v_bfe_u32 v97, v0, 2, 1")
    a("v_bfe_u32 v98, v0, 4, 1")
    a("v_cmp_eq_u32 vcc, v97, v98")
    a("v_cndmask_b32 v96, 0, v96, vcc")
    a("v_bfe_u32 v97, v0, 1, 1")
    for e in range(2):
        a(f"v_cmp_eq_u32 vcc, {e}, v97")
        a(f"v_cndmask_b32 v{Sel16+e}, 0, v96, vcc")
    a(f"s_and_b32 s{sT0}, s{sWAVE}, 1")
    a("v_and_b32 v96, 15, v0")
    a(f"v_lshl_add_u32 v96, v96, 1, s{sT0}")
    a("v_lshrrev_b32 v97, 4, v0")
    a("v_lshlrev_b32 v97, 3, v97")
    for up in range(2):
        for r in range(4):
            a(f"v_add_u32 v98, {2*r+up}, v97")
            a(f"v_cmp_le_u32 s[{sMask+2*(up*4+r)}:{sMask+2*(up*4+r)+1}], v98, v96")
    a(f"s_lshl_b32 s{sT1}, s{sWAVE}, 11")
    a(f"s_add_u32 s{sT1}, s{sT1}, {HOLD}")
    a(f"v_add_u32 v{vHw}, s{sT1}, v{vL16}")
    a(f"s_lshl_b32 s{sT1}, s{sT0}, 10")
    a(f"s_add_u32 s{sT1}, s{sT1}, {HOLD+0x6000}")
    a(f"v_add_u32 v{vHr}, s{sT1}, v{vL16}")
    a(f"s_lshl_b32 s{sT1}, s{sWAVE}, 10")
    a(f"s_add_u32 s{sT1}, s{sT1}, {KM}")
    a(f"v_add_u32 v{vKMw}, s{sT1}, v{vL16}")
    a(f"s_mov_b32 s{sHold}, 0x6000")
    a(f"s_mov_b32 s{sI}, 0")
    a(f"s_lshl_b32 s{sT0}, s{sLAY}, 6")
    a(f"s_add_u32 s{sSeg}, s{sT0}, s{sPar}")
    a(f"s_mov_b32 s{sC}, {fbits(128**-0.5*1.4426950408889634):#x}")
    a(f"s_mov_b32 s{sC+1}, s{sC}")
    if not cfg.get("noinit"): wait_init(a)
    else: a("s_barrier")
    vF = 14
    sPre, sPend, sXnN, sFlN, sTag = 92, 93, 94, 95, 65
    a(f"s_mov_b32 s{sPre}, 0")
    a(f"s_mov_b32 s{sPend}, 0")
    def xn_dma(sseg):
        a(f"s_lshl_b32 s{sXn}, s{sseg}, 15")
        a(f"s_lshl_b32 s{sT0}, s{sWAVE}, 13")
        a(f"s_add_u32 s{sXn}, s{sXn}, s{sT0}")
        a(f"s_add_u32 s{sXn}, s{sXn}, {OFF_XN:#x}")
        a(f"s_mov_b32 m0, s{sT0}")
        for i in range(8):
            if i == 4:
                a(f"s_add_u32 m0, s{sT0}, 4096")
                a(f"s_add_u32 s{sXn}, s{sXn}, 4096")
            a(f"buffer_load_dwordx4 v{vL16}, {W}, s{sXn} offen offset:{(i%4)*1024} sc1 lds")
    MA = 40
    km, vm = 16, 24
    sMem2 = 64
    def mem_loads():
        return [f"buffer_load_dwordx4 {vr(MA+4*jj,4)}, v{vL16}, {W}, s{sMem if jj < 4 else sMem2} offen offset:{(jj%4)*1024} sc1" for jj in range(8)]
    a.label("L_wa_loop")
    stamp("top")
    a(f"s_lshl_b32 s{sFl}, s{sSeg}, 11")
    a(f"s_add_u32 s{sFlN}, s{sFl}, 4096")
    a(f"s_sub_u32 s{sT0}, s{sSeg}, 2")
    a(f"s_lshl_b32 s{sMem}, s{sT0}, 13")
    a(f"s_add_u32 s{sMem}, s{sMem}, {OFF_MEM:#x}")
    a(f"s_add_u32 s{sMem2}, s{sMem}, 4096")
    a(f"s_cmp_eq_u32 s{sI}, 32")
    a("s_cbranch_scc1 L_wa_noqkv")
    a(f"s_cmp_eq_u32 s{sPre}, 1")
    a("s_cbranch_scc1 L_wa_pre")
    poll_flags(a, vT, vF8, sFl)
    xn_dma(sSeg)
    a.label("L_wa_pre")
    trace(a, cfg, 0, sSeg, vT)
    a(f"s_and_b32 s{sKVo}, s{sSeg}, 3")
    a(f"s_lshl_b32 s{sT0}, s{sLAY}, 2")
    a(f"s_add_u32 s{sKVo}, s{sKVo}, s{sT0}")
    a(f"s_lshl_b32 s{sKVo}, s{sKVo}, 19")
    a(f"s_bfe_u32 s{sTag}, s{sSeg}, 0x10002")
    a(f"s_lshl_b32 s{sT0}, s{sMEMB}, 2")
    a(f"s_add_u32 s{sT0}, s{sT0}, s{sWAVE}")
    a(f"s_lshl_b32 s{sT1}, s{sT0}, 12")
    a(f"s_add_u32 s{sKVo}, s{sKVo}, s{sT1}")
    a(f"s_add_u32 s{sKVo}, s{sKVo}, {OFF_KVR:#x}")
    a(f"s_lshl_b32 s{sT0}, s{sT0}, 2")
    a(f"s_add_u32 s{sFl}, s{sFl}, s{sT0}")
    a("s_waitcnt vmcnt(2)")
    a(f"s_cmp_eq_u32 s{sPend}, 1")
    a("s_cbranch_scc1 L_wa_b1")
    a("s_waitcnt vmcnt(0)")
    a.label("L_wa_b1")
    a("s_barrier")
    stamp("staged")
    def xread(step):
        sl = XR + (step % 3) * 8; ks = step % 16
        return [f"ds_read_b128 {vr(sl,4)}, v{vL16} offset:{XN+ks*2048}", f"ds_read_b128 {vr(sl+4,4)}, v{vL16} offset:{XN+ks*2048+1024}"]
    for x in xread(0) + xread(1): a(x)
    for ks in range(16):
        sl = XR + (ks % 3) * 8
        rd = xread(ks + 2)
        a("s_waitcnt lgkmcnt(2)")
        c0 = lambda x: None if ks == 0 else x
        for u in range(2):
            for t in range(2):
                mfma(KA + (t * 2 + u) * 4, wfrag(WK, ks, t), sl + 4 * u, c0(KA + (t * 2 + u) * 4))
                if rd: a(rd.pop(0))
            for t in range(2):
                mfma(VA + (u * 2 + t) * 4, sl + 4 * u, wfrag(WV, ks, t), c0(VA + (u * 2 + t) * 4))
        if ks == cfg.get("oflag_ks", 4):
            lab = a.newlab("L_nopend")
            a(f"s_cmp_eq_u32 s{sPend}, 0")
            a(f"s_cbranch_scc1 {lab}")
            a("s_waitcnt vmcnt(0)")
            set_flag(a, vOne, sFlA, F_O)
            a(f"s_mov_b32 s{sPend}, 0")
            if cfg.get("trace"):
                a(f"s_sub_u32 s{sT0}, s{sSeg}, 4")
                trace(a, cfg, 3, sT0, vT)
            a.label(lab)
    stamp("kvpass", True)
    side = []
    for u in range(2):
        d = PK + 4 * u
        side += [f"v_cvt_pk_bf16_f32 v{d+2*t+hh}, v{KA+(t*2+u)*4+2*hh}, v{KA+(t*2+u)*4+2*hh+1}" for t in range(2) for hh in range(2)]
        side += [f"v_mov_b32 v{112+u}, v{d}", f"v_and_or_b32 v{d}, v{d}, -2, s{sTag}"]
        side += [f"buffer_store_dwordx4 {vr(d,4)}, v{vL16}, {W}, s{sKVo} offen offset:{u*1024} sc1"]
    for t in range(2):
        d = PK + 8 + 4 * t
        side += [f"v_cvt_pk_bf16_f32 v{d+2*u+hh}, v{VA+(u*2+t)*4+2*hh}, v{VA+(u*2+t)*4+2*hh+1}" for u in range(2) for hh in range(2)]
        side += [f"v_mov_b32 v{114+t}, v{d}", f"v_and_or_b32 v{d}, v{d}, -2, s{sTag}"]
        side += [f"buffer_store_dwordx4 {vr(d,4)}, v{vL16}, {W}, s{sKVo} offen offset:{2048+t*1024} sc1"]
    side += [f"v_mov_b32 v{PK+4*i}, v{112+i}" for i in range(4)]
    late = mem_loads() + [f"buffer_load_dword v{vF}, v{vF8}, {W}, s{sFlN} offen sc1"]
    hw = [f"ds_write_b128 v{vHw}, {vr(PK+4*i,4)} offset:{(0x2000 if i < 2 else 0x4000) + (i%2)*1024}" for i in range(4)]
    nhw = 0
    for ks in range(16):
        k3 = ks + 16
        sl = XR + (k3 % 3) * 8
        rd = xread(k3 + 2) if ks + 2 < 16 else []
        a(f"s_waitcnt lgkmcnt({(2 if ks < 15 else 0) + nhw})")
        nhw = 0
        c0 = lambda x: None if ks == 0 else x
        n = 0
        for u in range(2):
            for t in range(2):
                mfma(QA + (t * 2 + u) * 4, wfrag(WQ, ks, t), sl + 4 * u, c0(QA + (t * 2 + u) * 4))
                n += 1
                if rd: a(rd.pop(0))
                if ks >= 1 and side:
                    a(side.pop(0))
                    if n >= 3 and side: a(side.pop(0))
                elif ks >= 7 and hw and n == 3: a(hw.pop(0)); nhw += 1
                elif ks >= 7 and late and n == 4: a(late.pop(0))
    assert not side and not hw and not late
    trace(a, cfg, 1, sSeg, vT)
    trace(a, cfg, 5, sSeg, vT)
    for u in range(2):
        d = PK + 16 + 4 * u
        for t in range(2):
            cvt(d + 2 * t, QA + (t * 2 + u) * 4); cvt(d + 2 * t + 1, QA + (t * 2 + u) * 4 + 2)
        a(f"ds_write_b128 v{vHw}, {vr(d,4)} offset:{u*1024}")
    stamp("qkv")
    a(f"s_cmp_eq_u32 s{sI}, 0")
    a("s_cbranch_scc1 L_wa_b2")
    def mem_check(base):
        for i in range(8): a(f"v_mov_b64 {vr(km+2*i,2)}, 0")
        for jj in range(8):
            a(f"s_waitcnt vmcnt({7-jj+base})")
            r = MA + 4 * jj
            if jj == 0:
                a(f"v_max3_u32 v{vT}, v{r}, v{r+1}, v{r+2}")
                a(f"v_max_u32 v{vT}, v{vT}, v{r+3}")
            else:
                a(f"v_max3_u32 v{vT}, v{vT}, v{r}, v{r+1}")
                a(f"v_max3_u32 v{vT}, v{vT}, v{r+2}, v{r+3}")
        a(f"v_cmp_eq_u32 vcc, -1, v{vT}")
    mem_check(1)
    a("s_cbranch_vccz L_wa_memok")
    a("s_branch L_wa_probe0")
    a.label("L_wa_noqkv")
    a("s_barrier")
    a.label("L_wa_probe0")
    a(f"s_lshl_b32 s{sT2}, s{sMEMB}, 2")
    a(f"s_add_u32 s{sT2}, s{sT2}, s{sWAVE}")
    a(f"s_lshl_b32 s{sT2}, s{sT2}, 6")
    a(f"s_add_u32 s{sT2}, s{sT2}, s{sMem}")
    spin_init(a)
    a.label("L_wa_probe")
    a(f"buffer_load_dword v{vT}, off, {W}, s{sT2} sc1")
    spin_tick(a)
    a("s_waitcnt vmcnt(0)")
    a(f"v_cmp_eq_u32 vcc, -1, v{vT}")
    a("s_cbranch_vccz L_wa_mem")
    a("s_sleep 1")
    a("s_branch L_wa_probe")
    a.label("L_wa_mem")
    for x in mem_loads(): a(x)
    a(f"buffer_load_dword v{vF}, v{vF8}, {W}, s{sFlN} offen sc1")
    spin_tick(a)
    mem_check(1)
    a("s_waitcnt vmcnt(0)")
    a("s_cbranch_vccnz L_wa_mem")
    a.label("L_wa_memok")
    stamp("mem")
    a(f"s_sub_u32 s{sT0}, s{sSeg}, 2")
    trace(a, cfg, 2, sT0, vT)
    sal = []
    sal += [f"s_lshl_b32 s{sO}, s{sT0}, 18", f"s_lshl_b32 s{sT2}, s{sMEMB}, 13", f"s_add_u32 s{sO}, s{sO}, s{sT2}",
            f"s_lshr_b32 s{sT2}, s{sWAVE}, 1", f"s_lshl_b32 s{sT2}, s{sT2}, 12", f"s_add_u32 s{sO}, s{sO}, s{sT2}",
            f"s_and_b32 s{sT2}, s{sWAVE}, 1", f"s_lshl_b32 s{sT2}, s{sT2}, 10", f"s_add_u32 s{sO}, s{sO}, s{sT2}",
            f"s_add_u32 s{sO}, s{sO}, {OFF_O:#x}",
            f"s_lshl_b32 s{sFlA}, s{sT0}, 11", f"s_lshl_b32 s{sT2}, s{sMEMB}, 2", f"s_add_u32 s{sT2}, s{sT2}, s{sWAVE}",
            f"s_lshl_b32 s{sT2}, s{sT2}, 2", f"s_add_u32 s{sFlA}, s{sFlA}, s{sT2}"]
    for jj in range(8):
        for t in range(2):
            a(f"v_smfmac_f32_16x16x64_bf16 {vr(km+4*t,4)}, {vr(MA+4*jj,4)}, {xr(WK+jj*16+t*8,8)}, v{vIdx}")
            if sal: a(sal.pop(0))
    for jj in range(8):
        for t in range(2):
            a(f"v_smfmac_f32_16x16x64_bf16 {vr(vm+4*t,4)}, {vr(MA+4*jj,4)}, {xr(WV+jj*16+t*8,8)}, v{vIdx}")
        if jj == 1:
            cvt(72, km); cvt(73, km + 2); cvt(74, km + 4); cvt(75, km + 6)
        if jj == 2:
            a(f"v_mfma_f32_16x16x16_bf16 v[76:79], v[72:73], {vr(Sel16,2)}, 0")
            a(f"v_mfma_f32_16x16x16_bf16 v[80:83], v[74:75], {vr(Sel16,2)}, 0")
        if jj == 4:
            cvt(72, 76); cvt(73, 78); cvt(74, 80); cvt(75, 82)
            a(f"ds_write_b128 v{vKMw}, v[72:75]")
    cvt(76, vm); cvt(77, vm + 2); cvt(78, vm + 4); cvt(79, vm + 6)
    a(f"ds_write_b128 v{vKMw}, v[76:79] offset:{VM-KM}")
    a.label("L_wa_b2")
    a("s_waitcnt vmcnt(0) lgkmcnt(0)")
    a(f"v_cmp_eq_u32 vcc, 0, v{vF}")
    a("s_barrier")
    stamp("kvmem")
    a(f"s_mov_b32 s{sPre}, 0")
    a("s_cmp_eq_u64 vcc, 0")
    a("s_mov_b64 vcc, 0")
    a("s_cbranch_scc0 L_wa_nopre")
    a(f"s_cmp_ge_u32 s{sI}, 31")
    a("s_cbranch_scc1 L_wa_nopre")
    a(f"s_add_u32 s{sXnN}, s{sSeg}, 2")
    a(f"s_mov_b32 s{sPre}, 1")
    a(f"s_cmp_lg_u32 s{sI}, 0")
    a("s_cbranch_scc1 L_wa_prelater")
    xn_dma(sXnN)
    a("s_branch L_wa_next")
    a.label("L_wa_prelater")
    a(f"s_lshl_b32 s{sXn}, s{sXnN}, 15")
    a(f"s_lshl_b32 s{sXnN}, s{sWAVE}, 13")
    a(f"s_add_u32 s{sXn}, s{sXn}, s{sXnN}")
    a(f"s_add_u32 s{sXn}, s{sXn}, {OFF_XN:#x}")
    a(f"s_mov_b32 m0, s{sXnN}")
    a("s_mov_b64 vcc, -1")
    a.label("L_wa_nopre")
    a(f"s_cmp_eq_u32 s{sI}, 0")
    a("s_cbranch_scc1 L_wa_next")
    dq = []
    for i in range(8):
        x = []
        if i == 4: x += [f"s_add_u32 m0, s{sXnN}, 4096", f"s_add_u32 s{sXn}, s{sXn}, 4096"]
        x.append(f"buffer_load_dwordx4 v{vL16}, {W}, s{sXn} offen offset:{(i%4)*1024} sc1 lds")
        dq.append(x)
    def dma1():
        lab = a.newlab("L_g")
        a(f"s_cbranch_vccz {lab}")
        for y in dq.pop(0): a(y)
        a.label(lab)
    Qf, Kf, Mf = 16, 32, 64
    a(f"s_and_b32 s{sT0}, s{sWAVE}, 1")
    a(f"s_lshl_b32 s{sT0}, s{sT0}, 10")
    a(f"v_subrev_u32 v{vT}, s{sT0}, v{vHr}")
    a(f"v_add_u32 v{vT2}, {KM}, v{vL16}")
    for wp in range(4):
        a(f"ds_read_b128 {vr(Qf+4*wp,4)}, v{vHr} offset:{wp*2048}")
        a(f"ds_read_b128 {vr(Kf+8*wp,4)}, v{vT} offset:{0x2000+wp*2048}")
        a(f"ds_read_b128 {vr(Kf+8*wp+4,4)}, v{vT} offset:{0x2000+wp*2048+1024}")
        if wp < 3: a(f"ds_read_b128 {vr(Mf+4*wp,4)}, v{vT2} offset:{wp*1024}")
    S0, S1, SM_ = 80, 84, 88
    for wp in range(4):
        if wp == 0:
            a("s_waitcnt lgkmcnt(11)")
            a(f"ds_read_b128 {vr(Mf+12,4)}, v{vT2} offset:{3*1024}")
        else:
            a(f"s_waitcnt lgkmcnt({[0,8,4,0][wp]})")
        c0 = lambda x: None if wp == 0 else x
        mfma(S0, Kf + 8 * wp, Qf + 4 * wp, c0(S0))
        mfma(S1, Kf + 8 * wp + 4, Qf + 4 * wp, c0(S1))
        dma1()
        mfma(SM_, Mf + 4 * wp, Qf + 4 * wp, c0(SM_))
        dma1()
    Vf, VMf = 16, 32
    a(f"s_lshr_b32 s{sT0}, s{sWAVE}, 1")
    a(f"s_lshl_b32 s{sT1}, s{sT0}, 12")
    a(f"v_add_u32 v{vT}, s{sT1}, v{vT}")
    a(f"s_lshl_b32 s{sT1}, s{sT0}, 11")
    a(f"v_add_u32 v{vT2}, s{sT1}, v{vT2}")
    for i in range(4):
        a(f"ds_read_b128 {vr(Vf+4*i,4)}, v{vT} offset:{0x4000+i*1024}")
    for i in range(2):
        a(f"ds_read_b128 {vr(VMf+4*i,4)}, v{vT2} offset:{VM-KM+i*1024}")
    for up in range(2):
        for r in range(4):
            x = (S0, S1)[up] + r
            a(f"v_cndmask_b32 v{x}, v{vNeg}, v{x}, s[{sMask+2*(up*4+r)}:{sMask+2*(up*4+r)+1}]")
    m, t = 92, 93
    a(f"v_max3_f32 v{m}, v80, v81, v82")
    for i in range(83, 91, 2):
        a(f"v_max3_f32 v{m}, v{m}, v{i}, v{i+1}")
    a(f"v_max_f32 v{m}, v{m}, v91")
    xlane_g(a, "v_max_f32", m, t)
    a(f"v_mul_f32 v{m}, s{sC}, v{m}")
    for i in range(0, 12, 2):
        a(f"v_pk_fma_f32 {vr(80+i,2)}, {vr(80+i,2)}, s[{sC}:{sC+1}], {vr(m,2)} op_sel_hi:[1,1,0] neg_lo:[0,0,1] neg_hi:[0,0,1]")
    for i in range(12):
        a(f"v_exp_f32 v{80+i}, v{80+i}")
    Bx, Pm = 96, 100
    for i in range(6): cvt(Bx + i, 80 + 2 * i)
    OA = 48
    a("s_waitcnt lgkmcnt(0)")
    sumops = [f"v_pk_add_f32 v[80:81], v[80:81], v[82:83]", f"v_pk_add_f32 v[84:85], v[84:85], v[86:87]",
              f"v_pk_add_f32 v[88:89], v[88:89], v[90:91]", f"v_pk_add_f32 v[80:81], v[80:81], v[84:85]",
              f"v_add_f32 v88, v88, v89", f"v_add_f32 v80, v80, v81", f"v_fmac_f32 v80, 0.5, v88"]
    for i in range(4):
        mfma(OA + 4 * i, Vf + 4 * i, Bx, None)
        if sumops: a(sumops.pop(0))
        if sumops: a(sumops.pop(0))
    for i in range(4):
        a(f"v_mfma_f32_16x16x16_bf16 {vr(OA+4*i,4)}, {vr(VMf+2*i,2)}, {vr(Pm,2)}, {vr(OA+4*i,4)}")
    xlane_g(a, "v_add_f32", 80, 81)
    a("v_rcp_f32 v80, v80")
    for i in range(8):
        a(f"v_pk_mul_f32 {vr(OA+2*i,2)}, {vr(OA+2*i,2)}, v[80:81] op_sel_hi:[1,0]")
    for i in range(8): cvt(64 + i, OA + 2 * i)
    a(f"buffer_store_dwordx4 v[64:67], v{vL16}, {W}, s{sO} offen sc1")
    a(f"buffer_store_dwordx4 v[68:71], v{vL16}, {W}, s{sO} offen offset:2048 sc1")
    a(f"s_mov_b32 s{sPend}, s{sPre}")
    a(f"s_cmp_eq_u32 s{sPre}, 1")
    a("s_cbranch_scc1 L_wa_next")
    a("s_waitcnt vmcnt(0)")
    set_flag(a, vOne, sFlA, F_O)
    a(f"s_sub_u32 s{sT0}, s{sSeg}, 2")
    trace(a, cfg, 3, sT0, vT)
    a.label("L_wa_next")
    stamp("attn")
    if stamp.on:
        lab = a.newlab("L_nost")
        a(f"s_cmp_lg_u32 s{sI}, {cfg.get('stamp_step', 20)}")
        a(f"s_cbranch_scc1 {lab}")
        def row():
            a(f"s_lshl_b32 s{sT0}, s{sGRP}, 7")
            a(f"s_lshl_b32 s{sT1}, s{sMEMB}, 2")
            a(f"s_add_u32 s{sT0}, s{sT0}, s{sT1}")
            a(f"s_add_u32 s{sT0}, s{sT0}, s{sWAVE}")
        dump_stamps(a, stamp, cfg, row)
        a.label(lab)
    a(f"v_add_u32 v{vHw}, s{sHold}, v{vHw}")
    a(f"v_subrev_u32 v{vHr}, s{sHold}, v{vHr}")
    a(f"s_sub_u32 s{sHold}, 0, s{sHold}")
    a(f"s_add_u32 s{sSeg}, s{sSeg}, 2")
    a(f"s_add_u32 s{sI}, s{sI}, 1")
    a(f"s_cmp_le_u32 s{sI}, 32")
    a("s_cbranch_scc1 L_wa_loop")
    a("s_waitcnt vmcnt(0)")
    a("s_branch L_exit")
```

```python
from gen_common import *

W = f"s[{sWS}:{sWS+3}]"
vL16, vT, vT2, vFo, vOne, vRd = 1, 2, 3, 4, 5, 6
sSeg, sEnd, sFl, sSrc, sDst, sBuf, sLds, sC = 55, 56, 57, 58, 59, 60, 66, 96

def cvt(a, d, s): a(f"v_cvt_pk_bf16_f32 v{d}, v{s}, v{s+1}")
def mfma(a, d, x, y, c):
    a(f"v_mfma_f32_16x16x32_bf16 {vr(d,4)}, {xr(x,4)}, {xr(y,4)}, {vr(c,4) if c is not None else 0}")

def common_start(a):
    a("v_and_b32 v0, 63, v0")
    a(f"v_lshlrev_b32 v{vL16}, 4, v0")
    a(f"s_lshl_b32 s{sLds}, s{sWAVE}, 15")
    a(f"v_mov_b32 v{vOne}, 1")
    a(f"s_lshl_b32 s{sSeg}, s{sLAY}, 6")
    a(f"s_add_u32 s{sEnd}, s{sSeg}, 64")
    a(f"s_mov_b32 s92, 0")
    a(f"s_lshl_b32 s94, s{sLAY}, 21")
    a(f"s_add_u32 s94, s94, {OFF_RING:#x}")

def both_modes(a, name, body, cfg, before=None):
    touch_ring(a, cfg)
    trace(a, cfg, 6, None, vT)
    if not cfg.get("noinit"): wait_init(a)
    else: a("s_barrier")
    if before: before()
    if cfg.get("force_global"):
        a(f"s_branch L_{name}_G")
    else:
        a(f"s_cmp_eq_u32 s{sLOCAL}, 0")
        a(f"s_cbranch_scc1 L_{name}_G")
    for tag, st in (("L", ""), ("G", " sc1")):
        stamp = Stamps(a, cfg.get("stamp") == name and tag == "L", base=4, only=cfg.get("only"))
        a.label(f"L_{name}_{tag}")
        stamp("top")
        a(f"s_lshl_b32 s{sFl}, s{sSeg}, 11")
        body(st, stamp)
        trace(a, cfg, 1, sSeg, vT)
        trace(a, cfg, 5, sSeg, vT)
        stamp("end")
        if stamp.on:
            lab = a.newlab("L_nost")
            a(f"s_and_b32 s{sT0}, s{sSeg}, 63")
            a(f"s_cmp_lg_u32 s{sT0}, {cfg.get('stamp_step', 20)}")
            a(f"s_cbranch_scc1 {lab}")
            def row():
                a(f"s_lshl_b32 s{sT0}, s{sGRP}, 7")
                a(f"s_lshl_b32 s{sT1}, s{sMEMB}, 2")
                a(f"s_add_u32 s{sT0}, s{sT0}, s{sT1}")
                a(f"s_add_u32 s{sT0}, s{sT0}, s{sWAVE}")
            dump_stamps(a, stamp, cfg, row)
            a.label(lab)
        a(f"s_add_u32 s{sSeg}, s{sSeg}, 1")
        a(f"s_cmp_lt_u32 s{sSeg}, s{sEnd}")
        a(f"s_cbranch_scc1 L_{name}_{tag}")
        a("s_waitcnt vmcnt(0)")
        a("s_branch L_exit")

sPre, sFlN, vF = 92, 93, 13
sRing, sD0, sD1, sD2 = 94, 95, 64, 65
CFG = {}

def ring_off(a, dst, sg, part):
    a(f"s_and_b32 s{dst}, s{sg}, {CFG.get('ring', 8)-1}")
    a(f"s_lshl_b32 s{dst}, s{dst}, 18")
    a(f"s_add_u32 s{dst}, s{dst}, s{sRing}")
    if part: a(f"s_add_u32 s{dst}, s{dst}, {part:#x}")

def touch_ring(a, cfg):
    a(f"s_lshl_b32 s{sT0}, s{sMEMB}, 16")
    a(f"s_lshl_b32 s{sT1}, s{sWAVE}, 14")
    a(f"s_add_u32 s{sT0}, s{sT0}, s{sT1}")
    a(f"s_add_u32 s{sT0}, s{sT0}, s{sRing}")
    for i in range(16):
        if i and i % 4 == 0: a(f"s_add_u32 s{sT0}, s{sT0}, 4096")
        a(f"buffer_load_dwordx4 v[100:103], v{vL16}, {W}, s{sT0} offen offset:{(i%4)*1024} sc1")
    a("s_waitcnt vmcnt(0)")

def dma_ops(npiece, phase_bytes):
    NT = ' nt' if (npiece == 4 and CFG.get('nt_o', True)) else ''
    ops = []
    for ph in range(4):
        for i in range(npiece):
            x = []
            if i == 0:
                x.append(f"s_add_u32 m0, s{sD0}, {ph*phase_bytes}")
                x.append(f"s_add_u32 s{sD2}, s{sD1}, {ph*phase_bytes}")
            x.append(f"buffer_load_dwordx4 v{vL16}, {W}, s{sD2} offen offset:{i*1024} sc1{NT} lds")
            ops.append(x)
    return ops

def dma_setup(a, npiece):
    a(f"s_mul_i32 s{sT0}, s{sWAVE}, {npiece*1024}")
    a(f"s_add_u32 s{sD1}, s{sSrc}, s{sT0}")
    a(f"s_add_u32 s{sD0}, s{sBuf}, s{sT0}")

def guarded(a, ops):
    lab = a.newlab("L_g")
    a(f"s_cbranch_vccz {lab}")
    for x in ops: a(x)
    a.label(lab)

def stage_issue(a, npiece, phase_bytes):
    a(f"s_mul_i32 s{sT0}, s{sWAVE}, {npiece*1024}")
    a(f"s_add_u32 s{sT1}, s{sSrc}, s{sT0}")
    a(f"s_add_u32 s{sT0}, s{sBuf}, s{sT0}")
    for ph in range(4):
        a(f"s_add_u32 m0, s{sT0}, {ph*phase_bytes}")
        if ph: a(f"s_add_u32 s{sT1}, s{sT1}, {phase_bytes}")
        for i in range(npiece):
            a(f"buffer_load_dwordx4 v{vL16}, {W}, s{sT1} offen offset:{i*1024} sc1 lds")

def fetch_input(a, cfg, stamp, src_of, npiece, phase_bytes, bufsize, vbase, sFl=sFl):
    lab = a.newlab("L_pre")
    a(f"s_add_u32 s{sFlN}, s{sFl}, 2048")
    a("s_mov_b64 vcc, 0")
    a(f"s_cmp_eq_u32 s{sPre}, 1")
    a(f"s_cbranch_scc1 {lab}")
    poll_flags(a, vT, vFo, sFl, sleep=1)
    stamp("polled", True)
    src_of(sSeg)
    dma_setup(a, npiece)
    for x in dma_ops(npiece, phase_bytes)[:2 * npiece]:
        for y in x: a(y)
    a("s_mov_b64 vcc, -1")
    a.label(lab)
    stamp("flag")
    trace(a, cfg, 0, sSeg, vT)
    a(f"v_add_u32 v{vRd}, s{sBuf}, v{vbase}")
    a(f"s_xor_b32 s{sBuf}, s{sBuf}, {bufsize}")

def gemm_phases(a, nks, npiece, extra, rdoffs, ring, step, src_of, phase_bytes, stamp):
    per = nks // 4
    def rd(ks):
        sl = ring + (ks % 3) * 8
        return [f"ds_read_b128 {vr(sl+4*u,4)}, v{vRd} offset:{rdoffs(ks,u)}" for u in range(2)]
    def run(k0, k1, dq, rate=1, restart=True, last=True):
        if restart:
            for x in rd(k0) + rd(k0 + 1): a(x)
        for ks in range(k0, k1):
            left = (k1 if last else nks) - 1 - ks
            a(f"s_waitcnt lgkmcnt({2 if left >= 1 else 0})")
            side = rd(ks + 2) if left >= 2 else []
            for _ in range(rate):
                if dq: side = side + ["\n".join(dq.pop(0))]
            step(ks, ring + (ks % 3) * 8, side)
            assert not side
        assert not dq
    def sample():
        a(f"buffer_load_dword v{vF}, v{vFo}, {W}, s{sFlN} offen sc1")
        for x in extra: a(x)
    def decide(nolab):
        a(f"s_mov_b32 s{sPre}, 0")
        a(f"s_cbranch_vccnz {nolab}")
        a(f"s_add_u32 s{sT2}, s{sSeg}, 1")
        a(f"s_cmp_ge_u32 s{sT2}, s{sEnd}")
        a(f"s_cbranch_scc1 {nolab}")
        src_of(sT2)
        dma_setup(a, npiece)
        a(f"s_mov_b32 s{sPre}, 1")
    lP, lPn, lBn, lE = a.newlab("L_P"), a.newlab("L_Pn"), a.newlab("L_Bn"), a.newlab("L_E")
    a(f"s_cbranch_vccz {lP}")
    a(f"s_waitcnt vmcnt({npiece})")
    a("s_barrier")
    stamp("b0", True)
    run(0, per, dma_ops(npiece, phase_bytes)[2 * npiece:])
    a(f"s_waitcnt vmcnt({2*npiece})")
    a("s_barrier")
    stamp("b1", True)
    sample()
    run(per, 2 * per, [])
    a("s_waitcnt vmcnt(0)")
    a(f"v_cmp_eq_u32 vcc, 0, v{vF}")
    a("s_barrier")
    stamp("b2", True)
    decide(lBn)
    run(2 * per, nks, dma_ops(npiece, phase_bytes), rate=2)
    a(f"s_branch {lE}")
    a.label(lBn)
    run(2 * per, nks, [])
    a(f"s_branch {lE}")
    a.label(lP)
    sample()
    a("s_barrier")
    run(0, per, [])
    a("s_waitcnt vmcnt(0)")
    a(f"v_cmp_eq_u32 vcc, 0, v{vF}")
    a("s_barrier")
    decide(lPn)
    dq = dma_ops(npiece, phase_bytes)
    run(per, 2 * per, dq[:per])
    a("s_barrier")
    run(2 * per, nks, dq[per:])
    a(f"s_branch {lE}")
    a.label(lPn)
    run(per, 2 * per, [])
    a("s_barrier")
    run(2 * per, nks, [])
    a.label(lE)

def natural_dma64(a, vdst, rowbytes):
    a(f"v_lshrrev_b32 v{vdst}, 2, v0")
    a(f"v_mul_u32_u24 v{vdst}, {rowbytes}, v{vdst}")
    a(f"v_and_b32 v{vT}, 3, v0")
    a(f"v_lshl_add_u32 v{vdst}, v{vT}, 4, v{vdst}")

def img_rd_addr(a, vdst):
    a(f"v_lshrrev_b32 v{vT}, 4, v0")
    a(f"v_lshlrev_b32 v{vT}, 9, v{vT}")
    a(f"v_and_b32 v{vdst}, 15, v0")
    a(f"v_lshl_add_u32 v{vdst}, v{vdst}, 4, v{vT}")

def img2_addr(a, vdst):
    a(f"v_lshrrev_b32 v{vT}, 5, v0")
    a(f"v_lshlrev_b32 v{vdst}, 10, v{vT}")
    a(f"v_bfe_u32 v{vT}, v0, 2, 2")
    a(f"v_lshl_add_u32 v{vdst}, v{vT}, 7, v{vdst}")
    a(f"v_bfe_u32 v{vT}, v0, 4, 1")
    a(f"v_lshl_add_u32 v{vdst}, v{vT}, 6, v{vdst}")
    a(f"v_and_b32 v{vT}, 3, v0")
    a(f"v_lshl_add_u32 v{vdst}, v{vT}, 4, v{vdst}")

def role_ra(a, cfg):
    WT = 256
    vD, vTR, vSt, vCr = 96, 97, 7, 8
    sKs, sNs, sBias, sFlP = 61, 62, 63, 76
    a.label("L_ra")
    common_start(a)
    a(f"s_lshr_b32 s{sKs}, s{sMEMB}, 2")
    a(f"s_and_b32 s{sNs}, s{sMEMB}, 3")
    natural_dma64(a, vD, 1024)
    a(f"v_lshrrev_b32 v{vT}, 2, v0")
    a(f"v_lshlrev_b32 v{vTR}, 6, v{vT}")
    a(f"v_and_b32 v{vT}, 3, v0")
    a(f"v_lshl_add_u32 v{vTR}, v{vT}, 4, v{vTR}")
    a(f"v_add_u32 v{vTR}, s{sLds}, v{vTR}")
    a(f"s_lshl_b32 s{sT2}, s{sKs}, 20")
    a(f"s_lshl_b32 s{sT1}, s{sNs}, 8")
    a(f"s_add_u32 s{sT2}, s{sT2}, s{sT1}")
    a(f"s_lshl_b32 s{sT1}, s{sWAVE}, 6")
    a(f"s_add_u32 s{sT2}, s{sT2}, s{sT1}")
    set_srd(a, sWT, sWO, 0x400000)
    late_start(a, cfg)
    chunks = []
    for ch in range(16):
        def setup(ch=ch): a(f"s_add_u32 s{sT0}, s{sT2}, {ch*65536}")
        def consume(so, ch=ch):
            for e in range(2):
                for t in range(2):
                    for jh in range(2):
                        a(f"ds_read_b64_tr_b16 {xr(WT+((2*ch+e)*2+t)*4+2*jh,2)}, v{vTR} offset:{so+(32*e+16*jh)*64+8*t}")
            a("s_waitcnt lgkmcnt(0)")
        chunks.append(dict(setup=setup, vdma=vD, dstep=16384, consume=consume))
    load_chunks(a, chunks, sLds)
    a(f"v_and_b32 v{vFo}, 31, v0")
    a(f"v_lshlrev_b32 v{vFo}, 2, v{vFo}")
    a(f"s_lshl_b32 s{sT0}, s{sKs}, 7")
    a(f"s_add_u32 s{sT0}, s{sT0}, {F_O}")
    a(f"s_mul_i32 s{sBias}, s{sLAY}, {CFG.get('ring', 8)*2048}")
    a(f"s_add_u32 s{sT0}, s{sT0}, s{sBias}")
    a(f"v_add_u32 v{vFo}, s{sT0}, v{vFo}")
    a(f"s_cmp_eq_u32 s{sLAY}, 0")
    a(f"s_mov_b32 s{sT0}, {F_X2}")
    a(f"s_cselect_b32 s{sT0}, {(64-CFG.get('ring', 8))*2048+F_XN}, s{sT0}")
    a(f"s_cselect_b32 s{sT1}, 7, 15")
    a(f"v_and_b32 v{vCr}, s{sT1}, v0")
    a(f"v_lshlrev_b32 v{vCr}, 2, v{vCr}")
    a(f"v_add_u32 v{vCr}, s{sT0}, v{vCr}")
    a(f"v_cmp_gt_u32 vcc, 32, v0")
    a(f"v_cndmask_b32 v{vCr}, v{vCr}, v{vFo}, vcc")
    img2_addr(a, vSt)
    a(f"s_lshl_b32 s{sT0}, s{sNs}, 13")
    a(f"s_lshl_b32 s{sT1}, s{sWAVE}, 11")
    a(f"s_add_u32 s{sT0}, s{sT0}, s{sT1}")
    a(f"s_lshl_b32 s{sT1}, s{sKs}, 15")
    a(f"s_add_u32 s{sT0}, s{sT0}, s{sT1}")
    a(f"v_add_u32 v{vSt}, s{sT0}, v{vSt}")
    a(f"s_mov_b32 s{sBuf}, 0")
    ACC, RING = 16, 32
    def body(st, stamp):
        def src_of(sg):
            a(f"s_lshl_b32 s{sSrc}, s{sg}, 18")
            a(f"s_lshl_b32 s{sT0}, s{sKs}, 16")
            a(f"s_add_u32 s{sSrc}, s{sSrc}, s{sT0}")
            a(f"s_add_u32 s{sSrc}, s{sSrc}, {OFF_O:#x}")
        a(f"s_sub_u32 s{sFlP}, s{sFl}, s{sBias}")
        fetch_input(a, cfg, stamp, src_of, 4, 16384, 0x10000, vL16, sFlP)
        lab = a.newlab("L_nocr")
        a(f"s_and_b32 s{sT0}, s{sSeg}, 63")
        a(f"s_cmp_lg_u32 s{sT0}, {CFG.get('ring', 8)-1}")
        a(f"s_cbranch_scc1 {lab}")
        a(f"v_mov_b32 v{vFo}, v{vCr}")
        a.label(lab)
        ring_off(a, sDst, sSeg, R_PART)
        a(f"s_lshl_b32 s{sT0}, s{sMEMB}, 2")
        a(f"s_add_u32 s{sT0}, s{sT0}, s{sWAVE}")
        a(f"s_lshl_b32 s{sT0}, s{sT0}, 2")
        a(f"s_add_u32 s{sFl}, s{sFl}, s{sT0}")
        def step(ks, fr, side):
            for u in range(2):
                for t in range(2):
                    acc = ACC + (u * 2 + t) * 4
                    mfma(a, acc, WT + (ks * 2 + t) * 4, fr + 4 * u, None if ks == 0 else acc)
                    if side: a(side.pop(0))
        gemm_phases(a, 32, 4, [], lambda ks, u: ks * 2048 + u * 1024, RING, step, src_of, 16384, stamp)
        stamp("gemm")
        for u in range(2):
            for i in range(4): cvt(a, 56 + 4 * u + i, ACC + u * 8 + 2 * i)
            a(f"buffer_store_dwordx4 {vr(56+4*u,4)}, v{vSt}, {W}, s{sDst} offen offset:{u*512}{st}")
        a("s_waitcnt vmcnt(0)")
        set_flag(a, vOne, sFl, F_PART, st)
    both_modes(a, "ra", body, cfg)

def role_rc(a, cfg):
    WT = 256
    vD, vTR, vNeg, vRb = 96, 97, 7, 8
    sHb, sMask, sPrevOK = 61, 76, 62
    a.label("L_rc")
    common_start(a)
    a(f"s_sub_u32 s{sHb}, s{sMEMB}, 16")
    a(f"s_lshl_b32 s{sHb}, s{sHb}, 2")
    a(f"s_add_u32 s{sHb}, s{sHb}, s{sWAVE}")
    a(f"v_lshrrev_b32 v{vD}, 1, v0")
    a(f"v_mul_u32_u24 v{vD}, 3072, v{vD}")
    a(f"v_and_b32 v{vT}, 1, v0")
    a(f"v_lshl_add_u32 v{vD}, v{vT}, 4, v{vD}")
    a(f"v_lshrrev_b32 v{vT}, 4, v0")
    a(f"v_lshlrev_b32 v{vTR}, 8, v{vT}")
    a(f"v_bfe_u32 v{vT}, v0, 2, 2")
    a(f"v_lshl_add_u32 v{vTR}, v{vT}, 5, v{vTR}")
    a(f"v_and_b32 v{vT}, 3, v0")
    a(f"v_lshl_add_u32 v{vTR}, v{vT}, 3, v{vTR}")
    a(f"v_add_u32 v{vTR}, s{sLds}, v{vTR}")
    a(f"s_lshl_b32 s{sT2}, s{sHb}, 5")
    set_srd(a, sWT, sWB, 512 * 3072)
    late_start(a, cfg)
    chunks = []
    for mm in range(3):
        for ch in range(4):
            def setup(mm=mm, ch=ch): a(f"s_add_u32 s{sT0}, s{sT2}, {128*ch*3072 + mm*1024}")
            def consume(so, mm=mm, ch=ch):
                for e in range(4):
                    for jh in range(2):
                        a(f"ds_read_b64_tr_b16 {xr(WT+((4*ch+e)*3+mm)*4+2*jh,2)}, v{vTR} offset:{so+(32*e+4*jh)*32}")
                a("s_waitcnt lgkmcnt(0)")
            chunks.append(dict(setup=setup, vdma=vD, dstep=32 * 3072, consume=consume))
    load_chunks(a, chunks, sLds)
    a(f"v_and_b32 v{vFo}, 7, v0")
    a(f"v_lshlrev_b32 v{vFo}, 2, v{vFo}")
    a(f"v_add_u32 v{vFo}, {F_XNB}, v{vFo}")
    img_rd_addr(a, vRb)
    a(f"v_mov_b32 v{vNeg}, {fbits(-1e9 * 4):#x}")
    a(f"s_mov_b32 s{sC}, {fbits(0.25*1.4426950408889634):#x}")
    a(f"s_mov_b32 s{sC+1}, s{sC}")
    a("v_and_b32 v96, 15, v0")
    a("v_lshrrev_b32 v97, 4, v0")
    a("v_lshlrev_b32 v97, 2, v97")
    for r in range(4):
        a(f"v_add_u32 v98, {r}, v97")
        a(f"v_add_u32 v99, 9, v96")
        a(f"v_cmp_ge_u32 s[{sMask+2*r}:{sMask+2*r+1}], v98, v99")
        a(f"v_sub_u32 v99, v96, v98")
        a(f"v_cmp_ge_u32 s[{sMask+8+2*r}:{sMask+8+2*r+1}], 7, v99")
    KP, VP = (16, 20), (24, 28)
    for r in range(16, 32): a(f"v_mov_b32 v{r}, 0")
    a(f"s_mov_b32 s{sBuf}, 0")
    a(f"s_mov_b64 s[{sPrevOK}:{sPrevOK+1}], 0")
    RING, ACC = 32, 56
    def body(st, stamp):
        def src_of(sg):
            ring_off(a, sSrc, sg, R_XNB)
        fetch_input(a, cfg, stamp, src_of, 2, 8192, 0x8000, vRb)
        ring_off(a, sDst, sSeg, R_OB)
        a(f"s_lshl_b32 s{sT0}, s{sHb}, 10")
        a(f"s_add_u32 s{sDst}, s{sDst}, s{sT0}")
        a(f"s_lshl_b32 s{sT0}, s{sHb}, 2")
        a(f"s_add_u32 s{sFl}, s{sFl}, s{sT0}")
        acc = lambda mm, p: ACC + (p * 3 + mm) * 4
        def step(ks, fr, side):
            for p in range(2):
                c = lambda x: None if ks == 0 else x
                mfma(a, acc(0, p), WT + (ks * 3) * 4, fr + 4 * p, c(acc(0, p)))
                if side: a(side.pop(0))
                mfma(a, acc(1, p), WT + (ks * 3 + 1) * 4, fr + 4 * p, c(acc(1, p)))
                if side: a(side.pop(0))
                mfma(a, acc(2, p), fr + 4 * p, WT + (ks * 3 + 2) * 4, c(acc(2, p)))
                if side: a(side.pop(0))
        gemm_phases(a, 16, 2, [], lambda ks, u: ks * 2048 + u * 256, RING, step, src_of, 8192, stamp)
        stamp("gemm")
        Q = (80, 82); S = (32, 40); B = (84, 88); O = (48, 52); M = (92, 94)
        for p in range(2):
            cvt(a, Q[p], acc(0, p)); cvt(a, Q[p] + 1, acc(0, p) + 2)
            cvt(a, KP[p] + 2, acc(1, p)); cvt(a, KP[p] + 3, acc(1, p) + 2)
            cvt(a, VP[p] + 2, acc(2, p)); cvt(a, VP[p] + 3, acc(2, p) + 2)
        for p in range(2):
            a(f"v_mfma_f32_16x16x16_bf16 {vr(S[p],4)}, {vr(KP[p],2)}, {vr(Q[p],2)}, 0")
            a(f"v_mfma_f32_16x16x16_bf16 {vr(S[p]+4,4)}, {vr(KP[p]+2,2)}, {vr(Q[p],2)}, 0")
        for r in range(4):
            a(f"s_and_b64 s[{98}:{99}], s[{sMask+2*r}:{sMask+2*r+1}], s[{sPrevOK}:{sPrevOK+1}]")
            for p in range(2):
                a(f"v_cndmask_b32 v{S[p]+r}, v{vNeg}, v{S[p]+r}, s[98:99]")
        for r in range(4):
            for p in range(2):
                a(f"v_cndmask_b32 v{S[p]+4+r}, v{vNeg}, v{S[p]+4+r}, s[{sMask+8+2*r}:{sMask+8+2*r+1}]")
        a(f"s_mov_b64 s[{sPrevOK}:{sPrevOK+1}], -1")
        def both(f):
            for p in range(2): f(p)
        both(lambda p: a(f"v_max3_f32 v{M[p]}, v{S[p]}, v{S[p]+1}, v{S[p]+2}"))
        both(lambda p: a(f"v_max3_f32 v{M[p]}, v{M[p]}, v{S[p]+3}, v{S[p]+4}"))
        both(lambda p: a(f"v_max3_f32 v{M[p]}, v{M[p]}, v{S[p]+5}, v{S[p]+6}"))
        both(lambda p: a(f"v_max_f32 v{M[p]}, v{M[p]}, v{S[p]+7}"))
        def xl(op):
            for sw in ("v_permlane16_swap_b32", "v_permlane32_swap_b32"):
                both(lambda p: a(f"v_mov_b32 v{M[p]+1}, v{M[p]}"))
                both(lambda p: a(f"{sw} v{M[p]}, v{M[p]+1}"))
                both(lambda p: a(f"{op} v{M[p]}, v{M[p]}, v{M[p]+1}"))
        xl("v_max_f32")
        both(lambda p: a(f"v_mul_f32 v{M[p]}, s{sC}, v{M[p]}"))
        for p in range(2):
            for i in range(0, 8, 2):
                a(f"v_pk_fma_f32 {vr(S[p]+i,2)}, {vr(S[p]+i,2)}, s[{sC}:{sC+1}], {vr(M[p],2)} op_sel_hi:[1,1,0] neg_lo:[0,0,1] neg_hi:[0,0,1]")
        for p in range(2):
            for i in range(8): a(f"v_exp_f32 v{S[p]+i}, v{S[p]+i}")
        for p in range(2):
            for i in range(4): cvt(a, B[p] + i, S[p] + 2 * i)
        for p in range(2):
            a(f"v_pk_add_f32 {vr(S[p],2)}, {vr(S[p],2)}, {vr(S[p]+2,2)}")
            a(f"v_pk_add_f32 {vr(S[p]+4,2)}, {vr(S[p]+4,2)}, {vr(S[p]+6,2)}")
            mfma(a, O[p], VP[p], B[p], None)
        both(lambda p: a(f"v_pk_add_f32 {vr(S[p],2)}, {vr(S[p],2)}, {vr(S[p]+4,2)}"))
        both(lambda p: a(f"v_add_f32 v{M[p]}, v{S[p]}, v{S[p]+1}"))
        xl("v_add_f32")
        both(lambda p: a(f"v_rcp_f32 v{M[p]}, v{M[p]}"))
        for p in range(2):
            a(f"v_mov_b64 {vr(KP[p],2)}, {vr(KP[p]+2,2)}")
            a(f"v_mov_b64 {vr(VP[p],2)}, {vr(VP[p]+2,2)}")
        for p in range(2):
            a(f"v_pk_mul_f32 {vr(O[p],2)}, {vr(O[p],2)}, {vr(M[p],2)} op_sel_hi:[1,0]")
            a(f"v_pk_mul_f32 {vr(O[p]+2,2)}, {vr(O[p]+2,2)}, {vr(M[p],2)} op_sel_hi:[1,0]")
        for p in range(2):
            cvt(a, 80 + 2 * p, O[p]); cvt(a, 81 + 2 * p, O[p] + 2)
        a("v_permlane16_swap_b32 v80, v82")
        a("v_permlane16_swap_b32 v81, v83")
        a(f"buffer_store_dwordx4 v[80:83], v{vL16}, {W}, s{sDst} offen{st}")
        stamp("attn")
        a("s_waitcnt vmcnt(0)")
        set_flag(a, vOne, sFl, F_OB, st)
    both_modes(a, "rc", body, cfg)

def role_rd(a, cfg):
    WT = 256
    vD, vTR, vRb, vX1, vSt0, vSt1 = 96, 97, 8, 9, 10, 11
    sMd, sOb, sX1o, sOm, sOs = 61, 62, 63, 76, 77
    a.label("L_rd")
    common_start(a)
    a(f"s_sub_u32 s{sMd}, s{sMEMB}, 24")
    a(f"s_lshl_b32 s{sMd}, s{sMd}, 2")
    a(f"s_add_u32 s{sMd}, s{sMd}, s{sWAVE}")
    natural_dma64(a, vD, 1024)
    a(f"v_lshrrev_b32 v{vT}, 4, v0")
    a(f"v_lshlrev_b32 v{vTR}, 9, v{vT}")
    a(f"v_bfe_u32 v{vT}, v0, 2, 2")
    a(f"v_lshl_add_u32 v{vTR}, v{vT}, 6, v{vTR}")
    a(f"v_and_b32 v{vT}, 3, v0")
    a(f"v_lshl_add_u32 v{vTR}, v{vT}, 4, v{vTR}")
    a(f"v_add_u32 v{vTR}, s{sLds}, v{vTR}")
    a(f"s_lshl_b32 s{sT2}, s{sMd}, 6")
    set_srd(a, sWT, sWBO, 0x80000)
    late_start(a, cfg)
    chunks = []
    for ch in range(8):
        def setup(ch=ch): a(f"s_add_u32 s{sT0}, s{sT2}, {ch*65536}")
        def consume(so, ch=ch):
            for e in range(2):
                for t in range(2):
                    for jh in range(2):
                        a(f"ds_read_b64_tr_b16 {xr(WT+((2*ch+e)*2+t)*4+2*jh,2)}, v{vTR} offset:{so+(32*e+4*jh)*64+8*t}")
            a("s_waitcnt lgkmcnt(0)")
        chunks.append(dict(setup=setup, vdma=vD, dstep=16384, consume=consume))
    load_chunks(a, chunks, sLds)
    a(f"v_and_b32 v{vFo}, 31, v0")
    a(f"v_lshlrev_b32 v{vFo}, 2, v{vFo}")
    a(f"v_add_u32 v{vFo}, {F_OB}, v{vFo}")
    img_rd_addr(a, vRb)
    a(f"s_lshl_b32 s{sT0}, s{sMd}, 11")
    a(f"v_add_u32 v{vX1}, s{sT0}, v{vRb}")
    a(f"s_cmp_eq_u32 s{sLAY}, 0")
    a("s_cbranch_scc1 L_rd_l0")
    set_srd(a, sIN, sOUT, 0x200000)
    a(f"s_mov_b32 s{sOb}, 0")
    a(f"s_mov_b32 s{sOm}, 63")
    a(f"s_mov_b32 s{sOs}, 15")
    a(f"v_and_b32 v{vT}, 15, v0")
    a(f"v_lshlrev_b32 v{vSt0}, 11, v{vT}")
    a(f"v_lshrrev_b32 v{vT}, 4, v0")
    a(f"v_lshl_add_u32 v{vSt0}, v{vT}, 4, v{vSt0}")
    a(f"s_lshl_b32 s{sT0}, s{sMd}, 6")
    a(f"v_add_u32 v{vSt0}, s{sT0}, v{vSt0}")
    a(f"v_add_u32 v{vSt1}, 1024, v{vSt0}")
    a("s_branch L_rd_go")
    a.label("L_rd_l0")
    set_srd(a, sIN, sWSP, WS_BYTES)
    a(f"s_add_u32 s{sOb}, s{sRing}, {R_X2:#x}")
    a(f"s_mov_b32 s{sOm}, {CFG.get('ring', 8)-1}")
    a(f"s_mov_b32 s{sOs}, 18")
    img2_addr(a, vSt0)
    a(f"s_lshl_b32 s{sT0}, s{sMd}, 11")
    a(f"v_add_u32 v{vSt0}, s{sT0}, v{vSt0}")
    a(f"v_add_u32 v{vSt1}, 512, v{vSt0}")
    a.label("L_rd_go")
    a(f"s_mov_b32 s{sBuf}, 0")
    ACC, RING, XR = 16, 32, 56
    def body(st, stamp):
        def src_of(sg):
            ring_off(a, sSrc, sg, R_OB)
        fetch_input(a, cfg, stamp, src_of, 2, 8192, 0x8000, vRb)
        ring_off(a, sX1o, sSeg, R_X1)
        extra = [f"buffer_load_dwordx4 {vr(XR+4*u,4)}, v{vX1}, {W}, s{sX1o} offen offset:{u*256} sc1" for u in range(2)]
        a(f"s_and_b32 s{sDst}, s{sSeg}, s{sOm}")
        a(f"s_lshl_b32 s{sDst}, s{sDst}, s{sOs}")
        a(f"s_add_u32 s{sDst}, s{sDst}, s{sOb}")
        a(f"s_lshl_b32 s{sT0}, s{sMd}, 2")
        a(f"s_add_u32 s{sFl}, s{sFl}, s{sT0}")
        def step(ks, fr, side):
            for u in range(2):
                for t in range(2):
                    acc = ACC + (u * 2 + t) * 4
                    mfma(a, acc, WT + (ks * 2 + t) * 4, fr + 4 * u, None if ks == 0 else acc)
                    if side: a(side.pop(0))
        gemm_phases(a, 16, 2, extra, lambda ks, u: ks * 2048 + u * 256, RING, step, src_of, 8192, stamp)
        stamp("gemm")
        for i in range(8):
            a(f"v_lshlrev_b32 v{64+2*i}, 16, v{XR+i}")
            a(f"v_and_b32 v{65+2*i}, 0xffff0000, v{XR+i}")
        for i in range(8):
            cvt(a, 80 + i, ACC + 2 * i)
        for i in range(8):
            a(f"v_lshlrev_b32 v{ACC+2*i}, 16, v{80+i}")
            a(f"v_and_b32 v{ACC+2*i+1}, 0xffff0000, v{80+i}")
        for i in range(8):
            a(f"v_pk_add_f32 {vr(ACC+2*i,2)}, {vr(ACC+2*i,2)}, {vr(64+2*i,2)}")
        for u in range(2):
            for i in range(4): cvt(a, 80 + 4 * u + i, ACC + 8 * u + 2 * i)
            a(f"buffer_store_dwordx4 {vr(80+4*u,4)}, v{(vSt0, vSt1)[u]}, s[{sIN}:{sIN+3}], s{sDst} offen{st}")
        a("s_waitcnt vmcnt(0)")
        set_flag(a, vOne, sFl, F_X2, st)
    both_modes(a, "rd", body, cfg)

def row_reduce(a, r, t):
    a(f"v_add_f32_dpp v{r}, v{r}, v{r} row_ror:4 row_mask:0xf bank_mask:0xf")
    a(f"v_add_f32_dpp v{r}, v{r}, v{r} row_ror:8 row_mask:0xf bank_mask:0xf")
    xlane_g(a, "v_add_f32", r, t)

def rnd_bf16(a, r):
    a(f"v_cvt_pk_bf16_f32 v{r}, v{r}, v{r}")
    a(f"v_and_b32 v{r}, 0xffff0000, v{r}")

def layernorm(a, X, T):
    m, t, s = T + 32, T + 33, T + 34
    a(f"v_pk_add_f32 {vr(T,2)}, {vr(X,2)}, {vr(X+2,2)}")
    a(f"v_pk_add_f32 {vr(T+2,2)}, {vr(X+4,2)}, {vr(X+6,2)}")
    for i in range(8, 32, 4):
        a(f"v_pk_add_f32 {vr(T,2)}, {vr(T,2)}, {vr(X+i,2)}")
        a(f"v_pk_add_f32 {vr(T+2,2)}, {vr(T+2,2)}, {vr(X+i+2,2)}")
    a(f"v_pk_add_f32 {vr(T,2)}, {vr(T,2)}, {vr(T+2,2)}")
    a(f"v_add_f32 v{m}, v{T}, v{T+1}")
    row_reduce(a, m, t)
    a(f"v_mul_f32 v{m}, {fbits(1/512):#x}, v{m}")
    for i in range(0, 32, 2):
        a(f"v_pk_add_f32 {vr(T+i,2)}, {vr(X+i,2)}, {vr(m,2)} op_sel_hi:[1,0] neg_lo:[0,1] neg_hi:[0,1]")
    a(f"v_pk_mul_f32 {vr(s,2)}, {vr(T,2)}, {vr(T,2)}")
    for i in range(2, 32, 2):
        a(f"v_pk_fma_f32 {vr(s,2)}, {vr(T+i,2)}, {vr(T+i,2)}, {vr(s,2)}")
    a(f"v_add_f32 v{s}, v{s}, v{s+1}")
    row_reduce(a, s, t)
    a(f"v_mul_f32 v{s}, {fbits(1/512):#x}, v{s}")
    rnd_bf16(a, m)
    rnd_bf16(a, s)
    a(f"v_add_f32 v{s}, {fbits(1e-5):#x}, v{s}")
    rnd_bf16(a, s)
    a(f"v_sqrt_f32 v{s}, v{s}")
    rnd_bf16(a, s)
    a(f"v_rcp_f32 v{s}, v{s}")
    a(f"v_mul_f32 v{m}, v{m}, v{s}")
    for i in range(0, 32, 2):
        a(f"v_pk_fma_f32 {vr(X+i,2)}, {vr(X+i,2)}, {vr(s,2)}, {vr(m,2)} op_sel_hi:[1,0,0] neg_lo:[0,0,1] neg_hi:[0,0,1]")

def unpack(a, dst, src, n):
    for i in range(n):
        a(f"v_lshlrev_b32 v{dst+2*i}, 16, v{src+i}")
        a(f"v_and_b32 v{dst+2*i+1}, 0xffff0000, v{src+i}")

def rows_setup(a, sWb):
    c_, gi = 96, 97
    a(f"s_and_b32 s{sT0}, s{sWb}, 1")
    a(f"s_lshr_b32 s{sT1}, s{sWb}, 1")
    a(f"s_lshl_b32 s{sT1}, s{sT1}, 2")
    a(f"v_and_b32 v{c_}, 3, v0")
    a(f"v_add_u32 v{c_}, s{sT1}, v{c_}")
    a(f"v_lshrrev_b32 v{gi}, 2, v0")
    a(f"s_lshl_b32 s{sT1}, s{sT0}, 8")
    a(f"v_lshl_add_u32 v98, v{c_}, 4, s{sT1}")
    a(f"s_lshl_b32 s{sT1}, s{sT0}, 10")
    a(f"v_lshl_add_u32 v99, v{c_}, 11, s{sT1}")
    a(f"s_lshl_b32 s{sT1}, s{sT0}, 9")
    a(f"s_lshr_b32 s{sT2}, s{sWb}, 1")
    a(f"s_lshl_b32 s{sT2}, s{sT2}, 7")
    a(f"s_add_u32 s{sT1}, s{sT1}, s{sT2}")
    a(f"v_and_b32 v102, 7, v0")
    a(f"v_lshl_add_u32 v102, v102, 4, s{sT1}")

def xn_store_addr(a, vP):
    a(f"s_lshl_b32 s{sT1}, s{sT0}, 10")
    a(f"v_lshl_add_u32 v{vP}, v96, 4, s{sT1}")
    a(f"v_lshl_add_u32 v{vP}, v97, 11, v{vP}")

def ln_to_xn(a, X, T, R, P, vP):
    unpack(a, X, R, 16)
    layernorm(a, X, T)
    for g in range(4):
        for dj in range(4):
            half = dj & 1; jh = dj >> 1
            e = 4 * (g >> 1) + 2 * (g & 1) + jh
            a(f"v_cvt_pk_bf16_f32 v{P+4*g+dj}, v{X+8*half+e}, v{X+8*(2+half)+e}")
        a(f"buffer_store_dwordx4 {vr(P+4*g,4)}, v{vP}, {W}, s{sDst} offen offset:{g*256} sc1")

def ln0(a, cfg):
    sWb, sU = 61, 62
    vA, vP = 8, 12
    X, T, P, R = 16, 48, 128, 144
    a(f"s_cmp_eq_u32 s{sLAY}, 0")
    a("s_cbranch_scc1 L_ln0_done")
    a("v_and_b32 v0, 63, v0")
    a(f"v_mov_b32 v{vOne}, 1")
    a(f"s_lshl_b32 s{sU}, s{sMEMB}, 2")
    a(f"s_add_u32 s{sU}, s{sU}, s{sWAVE}")
    a(f"s_and_b32 s{sWb}, s{sU}, 7")
    a(f"s_lshr_b32 s{sU}, s{sU}, 3")
    rows_setup(a, sWb)
    xn_store_addr(a, vP)
    a(f"v_lshrrev_b32 v100, 1, v97")
    a(f"v_and_b32 v101, 1, v97")
    a(f"v_lshl_add_u32 v100, v100, 3, v101")
    a(f"v_lshl_add_u32 v{vA}, v100, 4, v99")
    set_srd(a, sIN, sX, 0x200000)
    a(f"s_lshl_b32 s{sT0}, s{sU}, 15")
    for k in range(4):
        if k: a(f"s_add_u32 s{sT0}, s{sT0}, {16 << 15}")
        for q in range(4):
            a(f"buffer_load_dwordx4 {vr(R+16*k+4*q,4)}, v{vA}, s[{sIN}:{sIN+3}], s{sT0} offen offset:{q*32}")
    if not cfg.get("noinit"): wait_init(a)
    a(f"s_lshl_b32 s{sDst}, s{sU}, 15")
    a(f"s_add_u32 s{sDst}, s{sDst}, {OFF_XN:#x}")
    a(f"s_lshl_b32 s{sFl}, s{sU}, 11")
    a(f"s_lshl_b32 s{sT0}, s{sWb}, 2")
    a(f"s_add_u32 s{sFl}, s{sFl}, s{sT0}")
    a(f"s_mov_b32 s{sU}, 0")
    a("s_waitcnt vmcnt(0)")
    a(f"v_lshrrev_b32 v100, 1, v97")
    a(f"v_lshl_add_u32 v{vA}, v100, 12, v102")
    a.label("L_ln0_loop")
    a(f"s_sub_u32 s{sT0}, s{sDst}, {OFF_XN-OFF_XR:#x}")
    for q in range(4):
        a(f"buffer_store_dwordx4 {vr(R+4*q,4)}, v{vA}, {W}, s{sT0} offen offset:{q*1024} sc1")
    ln_to_xn(a, X, T, R, P, vP)
    for i in range(24): a(f"v_mov_b64 {vr(R+2*i,2)}, {vr(R+16+2*i,2)}")
    a("s_waitcnt vmcnt(0)")
    set_flag(a, vOne, sFl, F_XN)
    a(f"s_add_u32 s{sDst}, s{sDst}, {16 << 15}")
    a(f"s_add_u32 s{sFl}, s{sFl}, {16 << 11}")
    a(f"s_add_u32 s{sU}, s{sU}, 1")
    a(f"s_cmp_lt_u32 s{sU}, 4")
    a("s_cbranch_scc1 L_ln0_loop")
    a.label("L_ln0_done")

def role_rows(a, cfg):
    sWb, sIb, sLo = 61, 62, 63
    vA = 8
    vP = 12
    vP2 = 7
    vFx = 13
    c_, gi = 96, 97
    a.label("L_rows")
    common_start(a)
    a(f"s_sub_u32 s{sWb}, s{sMEMB}, 28")
    a(f"s_lshl_b32 s{sWb}, s{sWb}, 1")
    a(f"s_and_b32 s{sT0}, s{sWAVE}, 1")
    a(f"s_add_u32 s{sWb}, s{sWb}, s{sT0}")
    rows_setup(a, sWb)
    a(f"s_cmp_ge_u32 s{sWAVE}, 2")
    a("s_cbranch_scc1 L_re")
    a(f"v_lshl_add_u32 v{vP}, v{gi}, 9, v98")
    a(f"v_lshrrev_b32 v{vP2}, 1, v{gi}")
    a(f"v_lshl_add_u32 v{vP2}, v{vP2}, 10, v102")
    a(f"v_lshlrev_b32 v{vFo}, 2, v0")
    a(f"v_add_u32 v{vFo}, {F_PART}, v{vFo}")
    for i in range(4): a(f"v_add_u32 v{vA+i}, {i*8192}, v{vP2}")
    a("v_mov_b32 v14, 0x3f80")
    a("v_mov_b32 v15, 0x3f800000")
    X, T, P, R = 16, 48, 128, 112
    a(f"v_and_b32 v{vFx}, 7, v0")
    a(f"v_lshlrev_b32 v{vFx}, 2, v{vFx}")
    RN = 192
    def res_loads(sg):
        a(f"s_lshl_b32 s{sT0}, s{sg}, 15")
        a(f"s_add_u32 s{sT0}, s{sT0}, {OFF_XR:#x}")
        for i in range(4):
            a(f"buffer_load_dwordx4 {vr(RN+4*i,4)}, v{vA+i}, {W}, s{sT0} offen sc1")
    def before():
        lab = a.newlab("L_resok")
        a(f"s_lshl_b32 s{sFl}, s{sSeg}, 11")
        poll_flags(a, vT, vFx, sFl, sleep=8)
        a(f"s_add_u32 s{sFl}, s{sFl}, 2048")
        poll_flags(a, vT, vFx, sFl, sleep=8)
        a.label(lab)
        res_loads(sSeg)
        a("s_waitcnt vmcnt(0)")
    def body(st, stamp):
        ring_off(a, sSrc, sSeg, R_PART)
        unpack(a, X, RN, 16)
        poll_flags(a, vT, vFo, sFl, sleep=1)
        stamp("flag")
        trace(a, cfg, 0, sSeg, vT)
        for n in range(16):
            if n: a(f"s_add_u32 s{sSrc}, s{sSrc}, 8192")
            a(f"buffer_load_dwordx4 {vr(P+4*n,4)}, v{vP2}, {W}, s{sSrc} offen sc1")
        a(f"s_add_u32 s{sT0}, s{sSeg}, 1")
        res_loads(sT0)
        ring_off(a, sT2, sSeg, R_X1)
        a(f"s_add_u32 s{sDst}, s{sT2}, {R_XNB-R_X1:#x}")
        a(f"s_lshl_b32 s{sT0}, s{sWb}, 2")
        a(f"s_add_u32 s{sFl}, s{sFl}, s{sT0}")
        for n in range(16):
            i = n % 4
            a(f"s_waitcnt vmcnt({19-n})")
            for d in range(4):
                a(f"v_dot2c_f32_bf16 v{X+8*i+2*d}, v{P+4*n+d}, v14")
                a(f"v_dot2c_f32_bf16 v{X+8*i+2*d+1}, v{P+4*n+d}, v15")
        stamp("sum")
        a("s_nop 2")
        for i in range(16): cvt(a, R + i, X + 2 * i)
        for i in range(4):
            if i: a(f"s_add_u32 s{sT2}, s{sT2}, 8192")
            a(f"buffer_store_dwordx4 {vr(R+4*i,4)}, v{vP}, {W}, s{sT2} offen{st}")
        unpack(a, X, R, 16)
        layernorm(a, X, T)
        for i in range(16): cvt(a, P + i, X + 2 * i)
        for i in range(4):
            if i: a(f"s_add_u32 s{sDst}, s{sDst}, 8192")
            a(f"buffer_store_dwordx4 {vr(P+4*i,4)}, v{vP}, {W}, s{sDst} offen{st}")
        stamp("ln")
        a("s_waitcnt vmcnt(0)")
        set_flag(a, vOne, sFl, F_XNB, st)
    both_modes(a, "rb", body, cfg, before)
    a.label("L_re")
    a(f"v_and_b32 v{vFo}, 15, v0")
    a(f"v_lshlrev_b32 v{vFo}, 2, v{vFo}")
    a(f"v_add_u32 v{vFo}, {F_X2}, v{vFo}")
    xn_store_addr(a, vP)
    a(f"v_lshrrev_b32 v100, 1, v{gi}")
    a(f"v_lshl_add_u32 v{vA}, v100, 12, v102")
    touch_ring(a, cfg)
    a(f"s_cmp_eq_u32 s{sLAY}, 1")
    a("s_cbranch_scc1 L_exit")
    if not cfg.get("noinit"): wait_init(a)
    else: a("s_barrier")
    stamp = Stamps(a, cfg.get("stamp") == "re", base=4, only=cfg.get("only"))
    a.label("L_re_loop")
    stamp("top")
    a(f"s_lshl_b32 s{sFl}, s{sSeg}, 11")
    ring_off(a, sSrc, sSeg, R_X2)
    poll_flags(a, vT, vFo, sFl, sleep=1)
    stamp("flag")
    trace(a, cfg, 0, sSeg, vT)
    for q in range(4):
        a(f"buffer_load_dwordx4 {vr(R+4*q,4)}, v{vA}, {W}, s{sSrc} offen offset:{q*1024} sc1")
    a(f"s_lshl_b32 s{sT0}, s{sSeg}, 15")
    a(f"s_add_u32 s{sDst}, s{sT0}, {OFF_XN+(64<<15):#x}")
    a(f"s_add_u32 s{sSrc}, s{sT0}, {OFF_X2R:#x}")
    a(f"s_lshl_b32 s{sT0}, s{sWb}, 2")
    a(f"s_add_u32 s{sFl}, s{sFl}, s{sT0}")
    a(f"s_add_u32 s{sFl}, s{sFl}, {64<<11}")
    a("s_waitcnt vmcnt(0)")
    stamp("ld")
    for q in range(4):
        a(f"buffer_store_dwordx4 {vr(R+4*q,4)}, v{vA}, {W}, s{sSrc} offen offset:{q*1024} sc1")
    ln_to_xn(a, X, T, R, P, vP)
    stamp("ln")
    a("s_waitcnt vmcnt(0)")
    set_flag(a, vOne, sFl, F_XN)
    trace(a, cfg, 1, sSeg, vT)
    stamp("end")
    if stamp.on:
        lab = a.newlab("L_nost")
        a(f"s_and_b32 s{sT0}, s{sSeg}, 63")
        a(f"s_cmp_lg_u32 s{sT0}, {cfg.get('stamp_step', 20)}")
        a(f"s_cbranch_scc1 {lab}")
        def row():
            a(f"s_lshl_b32 s{sT0}, s{sGRP}, 7")
            a(f"s_lshl_b32 s{sT1}, s{sMEMB}, 2")
            a(f"s_add_u32 s{sT0}, s{sT0}, s{sT1}")
            a(f"s_add_u32 s{sT0}, s{sT0}, s{sWAVE}")
        dump_stamps(a, stamp, cfg, row)
        a.label(lab)
    a(f"s_add_u32 s{sSeg}, s{sSeg}, 1")
    a(f"s_cmp_lt_u32 s{sSeg}, s{sEnd}")
    a("s_cbranch_scc1 L_re_loop")
    a("s_waitcnt vmcnt(0)")
    a("s_branch L_exit")

def role_wo(a, cfg):
    CFG.clear(); CFG.update(cfg)
    a.label("L_wo")
    ln0(a, cfg)
    a(f"s_cmp_lt_u32 s{sMEMB}, 16")
    a("s_cbranch_scc1 L_ra")
    a(f"s_cmp_lt_u32 s{sMEMB}, 24")
    a("s_cbranch_scc1 L_rc")
    a(f"s_cmp_lt_u32 s{sMEMB}, 28")
    a("s_cbranch_scc1 L_rd")
    a("s_branch L_rows")
    role_ra(a, cfg); role_rc(a, cfg); role_rd(a, cfg); role_rows(a, cfg)
```

```python
import numpy as np
OFF_FLAGS = 0
F_XN, F_XNB, F_OB, F_X2, F_KV, F_O, F_PART = 0, 128, 256, 384, 512, 1024, 1536
OFF_MEM  = 0x40000
OFF_X2   = 0x140000
OFF_X1   = 0x180000
OFF_KVR  = 0x200000
OFF_XN   = 0x1400000
OFF_X1B  = 0x600000
OFF_XNB  = 0xA00000
OFF_OB   = 0xE00000
OFF_XR   = 0x1000000
OFF_X2R  = 0x1200000
OFF_STAMP= 0x1800000
OFF_RING = 0x2000000
R_PART, R_X1, R_XNB, R_OB, R_X2 = 0, 0x80000, 0x88000, 0x90000, 0x98000
OFF_O    = 0x4000000
OFF_KV   = 0x6000000
WS_BYTES = 0x10000000

def kmap(kp):
    J = kp >> 6; ga = (kp >> 4) & 3; p = (kp >> 2) & 3; half = (kp >> 1) & 1; i = kp & 1
    return 64 * J + 32 * i + 16 * half + 4 * ga + p
KMAP = np.array([kmap(k) for k in range(512)])

def mem_layout_index():
    rows = np.zeros((8, 64, 8), int); cols = np.zeros((8, 64, 8), int)
    for J in range(8):
        for l in range(64):
            m = l & 15; ga = l >> 4; half = m >> 3
            for ea in range(8):
                kp = 64 * J + 16 * ga + 4 * (ea >> 1) + 2 * half + (ea & 1)
                rows[J, l, ea] = m & 7; cols[J, l, ea] = kmap(kp)
    return rows, cols

def kv_layout_index():
    tok = np.zeros((4, 4, 64, 8), int); d = np.zeros((4, 4, 64, 8), int)
    for w in range(4):
        for l in range(64):
            c = l & 15; g = l >> 4
            for j in range(8):
                a = j >> 2; r = j & 3
                for u in range(2):
                    tok[w, u, l, j] = 2 * c + u; d[w, u, l, j] = 32 * w + 16 * a + 4 * g + r
                for t in range(2):
                    tok[w, 2 + t, l, j] = 2 * (4 * g + r) + a; d[w, 2 + t, l, j] = 32 * w + 16 * t + c
    return tok, d

def xn_layout_index():
    tok = np.zeros((16, 2, 64, 8), int); col = np.zeros((16, 2, 64, 8), int)
    for ks in range(16):
        for u in range(2):
            for l in range(64):
                c = l & 15; g = l >> 4
                for j in range(8):
                    tok[ks, u, l, j] = 2 * c + u; col[ks, u, l, j] = kmap(32 * ks + 8 * g + j)
    return tok, col

def o_layout_index():
    tok = np.zeros((4, 2, 64, 8), int); d = np.zeros((4, 2, 64, 8), int)
    for wp in range(4):
        for u in range(2):
            for l in range(64):
                c = l & 15; g = l >> 4
                for j in range(8):
                    tok[wp, u, l, j] = 2 * c + u; d[wp, u, l, j] = 32 * wp + 16 * (j >> 2) + 4 * g + (j & 3)
    return tok, d

def img_layout_index():
    tok = np.zeros((64, 2, 16, 8), int); col = np.zeros((64, 2, 16, 8), int)
    for gm in range(64):
        for u in range(2):
            for c in range(16):
                for j in range(8):
                    tok[gm, u, c, j] = 2 * c + u; col[gm, u, c, j] = 8 * gm + j
    return tok, col
```

```python
import sys
from gen_common import *
from gen_chain import chain

HEADER = open('interleave_layers__memory_aug_recurrent_mem_tr__sliding_local_dilated__prompt.s.ref').read().split("; Override launch")[0]

GMAP = [("chain",0,0),("wa",0,0),("chain",1,0),("wa",1,0),("wa",0,1),("wo",0,0),("wa",1,1),("wo",1,0)]
WARM = [3, 6]

def generate(cfg):
    a = Asm()
    roles = cfg.get("roles", {"chain", "wa", "wo"})
    a("s_cmp_ge_u32 s2, 256")
    a("s_cbranch_scc1 L_exit")
    a("s_load_dwordx16 s[4:19], s[0:1], 0")
    a("s_load_dwordx8 s[20:27], s[0:1], 64")
    a("s_load_dwordx2 s[28:29], s[0:1], 96")
    a(f"s_getreg_b32 s{sGRP}, hwreg(HW_REG_XCC_ID, 0, 4)")
    a("v_lshrrev_b32 v1, 6, v0")
    a(f"v_readfirstlane_b32 s{sWAVE}, v1")
    a(f"s_mov_b32 s{sLOCAL}, 1")
    a("s_mov_b32 s31, 0")
    if cfg.get("count_redo"): a("s_memrealtime s[100:101]")
    a("s_waitcnt lgkmcnt(0)")
    set_srd(a, sWS, sWSP, WS_BYTES)
    a(f"s_cmp_lg_u32 s{sWAVE}, 0")
    a("s_cbranch_scc1 L_notw0")
    a(f"s_mov_b32 s{sMEMB}, 32")
    if cfg.get("scramble"):
        a(f"s_lshr_b32 s{sGRP}, s2, {cfg['scramble']}")
        a(f"s_and_b32 s{sGRP}, s{sGRP}, {cfg.get('scramble_mask', 7)}")
    a(f"s_cmp_gt_u32 s{sGRP}, 7")
    a("s_cbranch_scc1 L_noticket")
    a(f"s_mov_b32 s{sMEMB}, 1")
    a(f"s_lshl_b32 s{sT0}, s{sGRP}, 4")
    a(f"s_atomic_add s{sMEMB}, s[{sDBG}:{sDBG+1}], s{sT0} glc")
    a.label("L_noticket")
    a("s_waitcnt lgkmcnt(0)")
    a(f"s_mov_b32 s{sT1}, 1")
    a(f"s_atomic_add s{sT1}, s[{sDBG}:{sDBG+1}], 0x84")
    a(f"s_cmp_lt_u32 s{sMEMB}, 32")
    a("s_cbranch_scc1 L_haverole")
    a("s_waitcnt lgkmcnt(0)")
    lab = a.newlab("L_ovw")
    spin_init(a)
    a.label(lab)
    a(f"s_load_dword s{sFV}, s[{sDBG}:{sDBG+1}], 0x84 glc")
    spin_tick(a)
    a("s_waitcnt lgkmcnt(0)")
    a("s_sleep 12")
    a(f"s_cmp_lt_u32 s{sFV}, 256")
    a(f"s_cbranch_scc1 {lab}")
    a(f"s_mov_b32 s{sT1}, 1")
    a(f"s_atomic_add s{sT1}, s[{sDBG}:{sDBG+1}], 0xc0 glc")
    a(f"s_mov_b32 s{sGRP}, 0")
    a.label("L_ovscan")
    a(f"s_lshl_b32 s{sT0}, s{sGRP}, 4")
    a(f"s_load_dword s{sFV}, s[{sDBG}:{sDBG+1}], s{sT0} glc")
    a("s_waitcnt lgkmcnt(0)")
    a(f"s_min_u32 s{sFV}, s{sFV}, 32")
    a(f"s_add_u32 s{sMEMB}, s{sFV}, s{sT1}")
    a(f"s_cmp_lt_u32 s{sMEMB}, 32")
    a("s_cbranch_scc1 L_haverole")
    a(f"s_sub_u32 s{sT1}, s{sMEMB}, 32")
    a(f"s_add_u32 s{sGRP}, s{sGRP}, 1")
    a(f"s_cmp_lt_u32 s{sGRP}, 8")
    a("s_cbranch_scc1 L_ovscan")
    a.label("L_haverole")
    a(f"s_lshl_b32 s{sT0}, s{sGRP}, 8")
    a(f"s_or_b32 s{sT0}, s{sT0}, s{sMEMB}")
    a(f"v_mov_b32 v1, s{sT0}")
    a("v_mov_b32 v2, 0x27ff0")
    a("ds_write_b32 v2, v1")
    a("s_waitcnt lgkmcnt(0)")
    a("s_branch L_bar0")
    a.label("L_notw0")
    if not cfg.get("nocodepf"):
        a(f"s_cmp_lg_u32 s{sWAVE}, 1")
        a("s_cbranch_scc1 L_bar0")
        a("s_getpc_b64 s[64:65]")
        a.label("L_pcref")
        a(f"s_lshr_b32 s{sT0}, s2, 3")
        a(f"s_lshl_b32 s{sT0}, s{sT0}, 12")
        a("v_and_b32 v1, 63, v0")
        a(f"v_lshl_add_u32 v1, v1, 6, s{sT0}")
        a("v_min_u32 v1, L_codeend-L_pcref-4, v1")
        a("global_load_dword v3, v1, s[64:65]")
    a.label("L_bar0")
    a("s_barrier")
    a("v_mov_b32 v2, 0x27ff0")
    a("ds_read_b32 v1, v2")
    a("s_waitcnt lgkmcnt(0)")
    a(f"v_readfirstlane_b32 s{sT0}, v1")
    a("s_waitcnt vmcnt(0)")
    a("s_barrier")
    a(f"s_and_b32 s{sMEMB}, s{sT0}, 31")
    a(f"s_lshr_b32 s{sGRP}, s{sT0}, 8")
    a(f"s_cmp_gt_u32 s{sGRP}, 7")
    a("s_cbranch_scc1 L_exit")
    trace_setup(a, cfg)
    trace(a, cfg, 7, None, 1)
    gmap = cfg.get("gmap", GMAP)
    for g, (role, lay, par) in enumerate(gmap):
        if role not in roles: continue
        lab = a.newlab("L_ng")
        a(f"s_cmp_lg_u32 s{sGRP}, {g}")
        a(f"s_cbranch_scc1 {lab}")
        a(f"s_mov_b32 s{sLAY}, {lay}")
        a(f"s_mov_b32 s{sT3}, {par}")
        if lay == 1 and not cfg.get("noinit"):
            a(f"s_mov_b32 s{sT2}, {[x for x in range(8) if gmap[x][1] == 1].index(g)}")
            a(f"s_getpc_b64 s[98:99]")
            a(f"s_branch L_init")
        warm = cfg.get("warm", WARM)
        if g in warm: warm_weights(a, cfg, warm.index(g), len(warm))
        a(f"s_branch L_{role}")
        a.label(lab)
    a.label("L_exit")
    a("s_endpgm")
    if not cfg.get("noinit"):
        a.label("L_init")
        a(f"s_lshl_b32 s{sT2}, s{sT2}, 5")
        a(f"s_add_u32 s{sT2}, s{sT2}, s{sMEMB}")
        a("v_lshlrev_b32 v1, 3, v0")
        a("v_mov_b64 v[4:5], 0")
        a(f"s_lshl_b32 s{sT1}, s{sT2}, 11")
        a(f"buffer_store_dwordx2 v[4:5], v1, s[{sWS}:{sWS+3}], s{sT1} offen sc1")
        for i in range(4): a(f"v_mov_b32 v{8+i}, -1")
        a(f"s_mul_i32 s{sT1}, s{sT2}, {46*1024}")
        a(f"s_add_u32 s{sT1}, s{sT1}, {OFF_MEM:#x}")
        a(f"buffer_store_dwordx2 v[8:9], v1, s[{sWS}:{sWS+3}], s{sT1} offen sc1")
        a("v_lshlrev_b32 v1, 4, v0")
        a(f"s_add_u32 s{sT1}, s{sT1}, 2048")
        for i in range(11):
            if i: a(f"s_add_u32 s{sT1}, s{sT1}, 4096")
            a(f"buffer_store_dwordx4 v[8:11], v1, s[{sWS}:{sWS+3}], s{sT1} offen sc1")
        a("s_waitcnt vmcnt(0)")
        a("s_barrier")
        a(f"s_cmp_lg_u32 s{sWAVE}, 0")
        a("s_cbranch_scc1 L_init_done")
        a(f"s_mov_b32 s{sT1}, 1")
        a(f"s_atomic_add s{sT1}, s[{sDBG}:{sDBG+1}], 0x80")
        a("s_waitcnt lgkmcnt(0)")
        a.label("L_init_done")
        a("s_add_u32 s98, s98, 4")
        a("s_addc_u32 s99, s99, 0")
        a("s_setpc_b64 s[98:99]")
    if "chain" in roles:
        chain(a, True, cfg)
        chain(a, False, cfg)
    if "wa" in roles:
        from gen_wa import role_wa
        role_wa(a, cfg)
    if "wo" in roles:
        from gen_wo import role_wo
        role_wo(a, cfg)
    a.label("L_codeend")
    a("s_endpgm")
    if cfg.get("drop"):
        a.ins = [x if not x.text.startswith(cfg["drop"]) else Ins("s_nop 2") for x in a.ins]
    nn = a.fix_hazards(verbose=cfg.get("verbose", False))
    errs = a.check_waits()
    for e in errs[:20]: print("WAITERR", e)
    body = a.text()
    txt = HEADER + f"""; @launch grid=(256,1,1) block=(256,1,1) lds=163840
.amdgcn_target "amdgcn-amd-amdhsa--gfx950"
.text
.globl {KNAME}
.p2align 8
.type {KNAME},@function
{KNAME}:
{body}.section .rodata,"a"
.p2align 6
.amdhsa_kernel {KNAME}
  .amdhsa_next_free_vgpr 512
  .amdhsa_next_free_sgpr 102
  .amdhsa_accum_offset 256
  .amdhsa_group_segment_fixed_size 0
  .amdhsa_kernarg_size 104
  .amdhsa_user_sgpr_count 2
  .amdhsa_user_sgpr_kernarg_segment_ptr 1
  .amdhsa_system_sgpr_workgroup_id_x 1
  .amdhsa_float_denorm_mode_32 3
.end_amdhsa_kernel
"""
    return txt, nn, errs

if __name__ == "__main__":
    cfg = eval(sys.argv[2]) if len(sys.argv) > 2 else {}
    txt, nn, errs = generate(cfg)
    open(sys.argv[1], "w").write(txt)
    print("nops", nn, "bytes", len(txt), "errs", len(errs))
```

```python
import re

def vr(a, n=1):
    return f"v{a}" if n == 1 else f"v[{a}:{a+n-1}]"
def ar(a, n=1):
    return f"a{a}" if n == 1 else f"a[{a}:{a+n-1}]"
def sr(a, n=1):
    return f"s{a}" if n == 1 else f"s[{a}:{a+n-1}]"
def xr(a, n=1):
    return vr(a, n) if a < 256 else ar(a - 256, n)

_REG = re.compile(r"^(-|abs\()?\|?([vas])(?:(\d+)|\[(\d+):(\d+)\])\|?\)?$")

def regs_of(tok):
    tok = tok.strip()
    if tok in ("vcc",):
        return {("s", "vcc")}
    if tok in ("exec",):
        return {("s", "exec")}
    if tok == "m0":
        return {("s", "m0")}
    m = _REG.match(tok)
    if not m:
        return set()
    k = m.group(2)
    if m.group(3) is not None:
        lo = hi = int(m.group(3))
    else:
        lo, hi = int(m.group(4)), int(m.group(5))
    if k == "s":
        return {("s", i) for i in range(lo, hi + 1)}
    off = 256 if k == "a" else 0
    return {("v", i + off) for i in range(lo, hi + 1)}

TRANS = ("v_exp_f32", "v_log_f32", "v_rcp_f32", "v_rsq_f32", "v_sqrt_f32", "v_sin_f32", "v_cos_f32")

class Ins:
    __slots__ = ("text", "op", "kind", "w", "r", "srcC", "passes", "label", "target", "cond", "mods",
                 "dpp", "states", "srcAB", "vm", "lgkm", "wide_store", "lds_dma", "sreads_valu")
    def __init__(self, text):
        self.text = text
        self.label = None; self.target = None; self.cond = False
        self.w = set(); self.r = set(); self.srcC = set(); self.srcAB = set()
        self.passes = 0; self.dpp = False; self.vm = False; self.lgkm = None
        self.wide_store = set(); self.lds_dma = False; self.sreads_valu = set()
        t = text.split(";")[0].strip()
        self.kind = "none"; self.op = ""; self.states = 0; self.mods = ""
        if not t or t.startswith("."):
            return
        if t.endswith(":"):
            self.label = t[:-1]; self.kind = "label"; return
        parts = t.split(None, 1)
        op = parts[0]; self.op = op
        rest = parts[1] if len(parts) > 1 else ""
        ops = [x.strip() for x in re.split(r",(?![^\[]*\])", rest)] if rest else []
        if ops:
            last = ops[-1].split(None, 1)
            if not op.startswith("s_waitcnt"):
                ops[-1] = last[0]
                self.mods = last[1] if len(last) > 1 else ""
        self.states = 1
        R = lambda i: regs_of(ops[i]) if i < len(ops) else set()
        allr = lambda a: set().union(*[R(i) for i in range(a, len(ops))]) if a < len(ops) else set()
        if op.startswith("v_mfma") or op.startswith("v_smfmac"):
            self.kind = "mfma"
            self.passes = 8 if "32x32" in op else 4
            self.w = R(0)
            if op.startswith("v_smfmac"):
                self.srcC = R(0); self.srcAB = R(1) | R(2) | R(3); self.states = 3
            else:
                self.srcC = R(3); self.srcAB = R(1) | R(2); self.states = 2
            self.r = self.srcC | self.srcAB
        elif op.startswith("v_"):
            self.kind = "valu"
            self.dpp = ("row_" in self.mods) or ("quad_perm" in self.mods) or op.endswith("_dpp")
            if op.startswith("v_cmp"):
                self.w = R(0); self.r = allr(1)
            elif op.startswith("v_permlane"):
                self.w = R(0) | R(1); self.r = R(0) | R(1); self.kind = "perm"
            elif op.startswith("v_readfirstlane") or op.startswith("v_readlane"):
                self.w = R(0); self.r = allr(1); self.kind = "readlane"
            elif op.startswith(("v_add_co", "v_sub_co", "v_addc_co")):
                self.w = R(0) | R(1); self.r = allr(2)
            elif op.startswith("v_nop"):
                pass
            else:
                self.w = R(0); self.r = allr(1)
                if op.startswith(("v_fmac", "v_dot2c", "v_pk_fmac", "v_writelane")) or self.dpp:
                    self.r |= R(0)
                if op.startswith("v_cndmask") and len(ops) == 3:
                    self.r |= {("s", "vcc")}
            self.sreads_valu = {x for x in self.r if x[0] == "s"}
        elif op.startswith("ds_"):
            self.kind = "ds"; self.lgkm = "ds"
            if op.startswith(("ds_read", "ds_bpermute", "ds_swizzle", "ds_permute")) or "_rtn" in op:
                self.w = R(0); self.r = allr(1)
            else:
                self.r = allr(0)
        elif op.startswith(("buffer_", "global_")):
            self.kind = "vmem"; self.vm = True
            if op in ("buffer_wbl2", "buffer_inv"):
                pass
            elif "load" in op:
                if " lds" in (" " + self.mods) or "load_lds" in op:
                    self.lds_dma = True; self.r = allr(0) | {("s", "m0")}
                else:
                    self.w = R(0); self.r = allr(1)
            elif "atomic" in op:
                if "sc0" in self.mods:
                    self.w = R(0); self.r = allr(0) if op.startswith("buffer") else allr(1)
                else:
                    self.r = allr(0)
            else:
                self.r = allr(0)
                if op.endswith(("x3", "x4")):
                    self.wide_store = R(0) if op.startswith("buffer") else R(1)
        elif op.startswith(("s_load", "s_buffer_load", "s_memtime", "s_memrealtime", "s_atomic")):
            self.kind = "smem"; self.lgkm = "smem"; self.w = R(0); self.r = allr(1)
        elif op == "s_nop":
            self.kind = "nop"; self.states = int(ops[0], 0) + 1
        elif op == "s_waitcnt":
            self.kind = "wait"; self.mods = rest
        elif op in ("s_branch",) or op.startswith("s_cbranch"):
            self.kind = "branch"; self.target = ops[0]; self.cond = op != "s_branch"
        elif op in ("s_endpgm", "s_setpc_b64"):
            self.kind = "end"
        elif op.startswith("s_"):
            self.kind = "salu"
            if op.startswith(("s_cmp", "s_barrier", "s_sleep", "s_setprio", "s_bitcmp")):
                self.r = allr(0)
            else:
                self.w = R(0); self.r = allr(1)
                if "saveexec" in op:
                    self.w |= {("s", "exec")}
        else:
            raise ValueError("unknown instr: " + text)

def need_states(p, c):
    n = 0
    pv = p.kind in ("valu", "perm", "readlane")
    cv = c.kind in ("valu", "perm", "readlane")
    if pv:
        wv = {x for x in p.w if x[0] == "v"}
        ws = {x for x in p.w if x[0] == "s"}
        if wv:
            if c.kind == "mfma" and wv & c.r: n = max(n, 2)
            if cv and c.dpp and wv & c.r: n = max(n, 2)
            if c.kind == "perm" and wv & c.r: n = max(n, 2)
            if c.kind == "readlane" and wv & c.r: n = max(n, 1)
            if p.op.split("_e")[0] in TRANS and cv and c.op.split("_e")[0] not in TRANS and wv & c.r: n = max(n, 1)
            if ("op_sel" in p.mods or "sdwa" in p.op) and not p.op.startswith("v_pk_") and cv and wv & (c.r | c.w): n = max(n, 1)
        if ws:
            if cv and ws & c.sreads_valu: n = max(n, 4 if c.kind == "readlane" else 2)
            if c.kind == "vmem" and ws & c.r: n = max(n, 5)
            if c.kind == "salu" and ws & c.r: n = max(n, 1)
    if p.kind == "mfma":
        big = p.passes == 8
        if c.kind == "mfma":
            if p.w & c.srcAB: n = max(n, 12 if big else 8)
            if p.w & c.srcC:
                if not (p.w == c.srcC and p.passes == c.passes): n = max(n, 10 if big else 6)
            elif p.w & c.w: n = max(n, 10 if big else 6)
        elif cv or c.kind in ("vmem", "ds"):
            if p.w & (c.r | c.w): n = max(n, 12 if big else 8)
            if cv and p.srcC & c.w: n = max(n, 7 if big else 3)
    if p.wide_store and p.wide_store & c.w and c.kind != "label":
        n = max(n, 2 if cv else 1)
    if p.kind == "salu" and ("s", "m0") in p.w and c.lds_dma: n = max(n, 1)
    return n

class Asm:
    def __init__(self):
        self.ins = []
        self.nlab = 0
    def __call__(self, text):
        for line in text.split("\n"):
            s = line.strip()
            if s:
                self.ins.append(Ins(s))
    def label(self, name):
        self.ins.append(Ins(name + ":"))
    def newlab(self, base="L"):
        self.nlab += 1
        return f"{base}_{self.nlab}"
    def _preds(self):
        labpos = {x.label: i for i, x in enumerate(self.ins) if x.label}
        jumps = {}
        for i, x in enumerate(self.ins):
            if x.kind == "branch":
                jumps.setdefault(labpos[x.target], []).append(i)
        return labpos, jumps
    def fix_hazards(self, verbose=False):
        total = 0
        while True:
            labpos, jumps = self._preds()
            ins = self.ins
            inserts = {}
            for i, c in enumerate(ins):
                if c.kind in ("none", "label", "nop", "wait", "branch", "end"):
                    continue
                best = 0
                stack = [(i - 1, 0)]
                seen = set()
                while stack:
                    j, d = stack.pop()
                    while j >= 0 and d < 13:
                        if (j, d) in seen: break
                        seen.add((j, d))
                        p = ins[j]
                        if p.kind == "label":
                            for b in jumps.get(j, []):
                                stack.append((b, d))
                            k = j - 1
                            while k >= 0 and ins[k].kind == "none": k -= 1
                            if k >= 0 and (ins[k].kind == "end" or (ins[k].kind == "branch" and not ins[k].cond)):
                                break
                            j -= 1
                            continue
                        if p.kind == "none":
                            j -= 1; continue
                        n = need_states(p, c)
                        if n > d: best = max(best, n - d)
                        d += p.states
                        if j in inserts: d += inserts[j]
                        j -= 1
                if best:
                    inserts[i] = best
            if not inserts:
                break
            out = []
            for i, x in enumerate(ins):
                if i in inserts:
                    out.append(Ins(f"s_nop {inserts[i]-1}"))
                    total += inserts[i]
                    if verbose: print("nop", inserts[i], "before", x.text)
                out.append(x)
            self.ins = out
        return total
    def check_waits(self, cap=6):
        labpos, jumps = self._preds()
        ins = self.ins
        errs = set()
        seen = {}
        work = [(0, (), ())]
        while work:
            i, vm, lg = work.pop()
            vm = list(vm); lg = list(lg)
            while i < len(ins):
                x = ins[i]
                if x.kind == "label":
                    key = (tuple(vm), tuple(lg))
                    s = seen.setdefault(i, set())
                    if key in s or len(s) >= cap: break
                    s.add(key)
                elif x.kind == "wait":
                    m = re.search(r"vmcnt\((\d+)\)", x.mods)
                    if m:
                        n = int(m.group(1))
                        if len(vm) > n: vm = vm[len(vm) - n:] if n else []
                    m = re.search(r"lgkmcnt\((\d+)\)", x.mods)
                    if m:
                        n = int(m.group(1))
                        if n == 0: lg = []
                        else:
                            nds = sum(1 for k, _ in lg if k == "ds")
                            drop = max(0, nds - n); keep = []
                            for k, w in lg:
                                if k == "ds" and drop: drop -= 1
                                else: keep.append((k, w))
                            lg = keep
                elif x.kind == "end":
                    break
                elif x.kind != "none":
                    touch = x.r | x.w
                    if x.op in ("s_memtime", "s_memrealtime"): touch = set()
                    if "sameval" in x.text:
                        vm = [w - x.w for w in vm]
                    for w in vm:
                        if w & touch and not (x.vm and not (w & x.r)):
                            errs.add((i, "vm", x.text))
                    for k, w in lg:
                        if w & touch and not (x.lgkm == "ds" and k == "ds" and not (w & x.r)):
                            errs.add((i, "lgkm", x.text))
                    if x.vm:
                        vm.append(frozenset() if "nochk" in x.text else frozenset(x.w))
                        if len(vm) > 63: vm = vm[-63:]
                    if x.lgkm:
                        lg.append((x.lgkm, frozenset(x.w)))
                        if len(lg) > 40: lg = lg[-40:]
                    if x.kind == "branch":
                        work.append((labpos[x.target], tuple(vm), tuple(lg)))
                        if not x.cond: break
                i += 1
        return sorted(errs)
    def text(self):
        out = []
        for x in self.ins:
            out.append(x.text if (x.label or x.text.startswith(".")) else " " + x.text)
        return "\n".join(out) + "\n"

import subprocess, tempfile, os
_E64_OK = ("v_mov_b32", "v_add_f32", "v_mul_f32", "v_max_f32", "v_min_u32", "v_max_u32", "v_and_b32", "v_or_b32", "v_xor_b32",
           "v_exp_f32", "v_rcp_f32", "v_sqrt_f32", "v_add_u32", "v_sub_u32", "v_subrev_u32", "v_lshlrev_b32", "v_lshrrev_b32",
           "v_mov_b64", "v_sub_f32", "v_cndmask_b32", "v_cmp_eq_u32", "v_cmp_ne_u32", "v_cmp_nlt_f32")

def sizes_of(ins):
    txt = '.amdgcn_target "amdgcn-amd-amdhsa--gfx950"\n.text\n'
    real = []
    for i, x in enumerate(ins):
        if x.kind == "label": txt += x.text + "\n"
        elif x.kind == "none": continue
        else:
            txt += f"Z{i}:\n {x.text}\n"; real.append(i)
    txt += "Zend:\n"
    d = tempfile.mkdtemp()
    open(d + "/a.s", "w").write(txt)
    subprocess.run(["clang", "-x", "assembler", "-target", "amdgcn-amd-amdhsa", "-mcpu=gfx950", "-c", d + "/a.s", "-o", d + "/a.o"], check=True)
    out = subprocess.run(["llvm-objdump", "-t", d + "/a.o"], capture_output=True, text=True).stdout
    addr = {}
    for line in out.splitlines():
        p = line.split()
        if len(p) >= 4 and p[-1].startswith("Z"): addr[p[-1][1:]] = int(p[0], 16)
    sz = {}
    for k, i in enumerate(real):
        nxt = addr[str(real[k + 1])] if k + 1 < len(real) else addr["end"]
        sz[i] = nxt - addr[str(i)]
    return sz

def align8(asm, minrun=2, padrun=6):
    ins = asm.ins
    sz = sizes_of(ins)
    out = []; par = 0; last4 = None; fixed = padded = 0
    i = 0; n = len(ins)
    while i < n:
        x = ins[i]
        if x.kind == "none":
            if x.text.startswith(".p2align"): par = 0; last4 = None
            out.append(x); i += 1; continue
        if x.kind == "label":
            out.append(x); i += 1; continue
        s = sz[i]
        if s % 8 == 0 and par:
            j = i; cnt = 0
            while j < n and (ins[j].kind in ("none", "label") or sz[j] % 8 == 0):
                if ins[j].kind in ("valu", "perm"): cnt += 1
                j += 1
            if cnt >= minrun:
                done = False
                if last4 is not None:
                    y = out[last4]
                    if y.op in _E64_OK and not y.dpp and "0x" not in y.text and not re.search(r", \d{3,},", y.text):
                        out[last4] = Ins(y.text.replace(y.op, y.op + "_e64", 1)); done = True
                    elif y.op == "s_nop":
                        k = y.states - 1
                        if k == 0: out[last4] = Ins("v_nop_e64")
                        else: out[last4] = Ins(f"s_nop {k-1}"); out.insert(last4 + 1, Ins("s_nop 0"))
                        done = True
                if done: fixed += 1; par = 0; last4 = None
                elif cnt >= padrun:
                    out.append(Ins("s_nop 0")); padded += 1; par = 0; last4 = None
        out.append(x)
        if s % 8 == 4:
            par ^= 1; last4 = len(out) - 1
        i += 1
    asm.ins = out
    return fixed, padded
```

```python
from gen_common import *

def chain(a, local, cfg):
    st = "" if local else " sc1"
    tag = "L" if local else "G"
    stamp = Stamps(a, cfg.get("stamp") == "chain" and local, only=cfg.get("only"))
    vL16, vIdx, vLdsW, vSwx, vSwm, vSrx, vSrm, vOw, vOr, vX1s, vX1l, vX2s = range(1, 13)
    vR, vOnes, vT = 13, 14, 15
    vAw = 0
    sKVb, sKT, sLim = 93, 95, 63
    SelT, VACC, SelM = 16, 20, 28
    q0, k0, q1, k1 = 32, 36, 40, 44
    Kx, Vx, RING, A, WO = 48, 56, 64, 96, 128
    WK, WV = 256, 384
    sStep, sTag, sX2st, sX2re, sMemOff, sKV, sX1a, sX1b, sC = 55, 56, 57, 58, 59, 60, 61, 62, 96
    sMaskHi = 64
    sLds, sRot = 66, 67
    sX2l = 92
    AST, KVL, SX, SM, SJ, OA, CST = 0x20000, 0x22000, 0x27000, 0x27800, 0x27f00, 0x26000, 0x27a00
    sKVL = 94
    lane = 0
    if cfg.get("chain_prologue_done") is None:
        cfg["chain_prologue_done"] = True
        a.label("L_chain")
        a(f"v_and_b32 v0, 63, v0")
        a(f"v_lshlrev_b32 v{vL16}, 4, v0")
        a(f"s_lshl_b32 s{sLds}, s{sWAVE}, 15")
        a(f"s_lshl_b32 s{sRot}, s{sWAVE}, 1")
        vD, vTR, vDo, vTRo = 96, 97, 98, 99
        qkv_dma_addr(a, lane, vD, vT, 8192)
        qkv_tr_addr(a, lane, vTR, vT, sLds)
        a(f"v_lshrrev_b32 v{vDo}, 3, v0")
        a(f"v_lshlrev_b32 v{vDo}, 10, v{vDo}")
        a(f"v_and_b32 v{vT}, 7, v0")
        a(f"v_lshl_add_u32 v{vDo}, v{vT}, 4, v{vDo}")
        a(f"v_bfe_u32 v{vT}, v0, 4, 1")
        a(f"v_lshlrev_b32 v{vTRo}, 11, v{vT}")
        a(f"v_bfe_u32 v{vT}, v0, 5, 1")
        a(f"v_lshl_add_u32 v{vTRo}, v{vT}, 9, v{vTRo}")
        a(f"v_bfe_u32 v{vT}, v0, 2, 1")
        a(f"v_lshl_add_u32 v{vTRo}, v{vT}, 7, v{vTRo}")
        a(f"v_bfe_u32 v{vT}, v0, 3, 1")
        a(f"v_lshl_add_u32 v{vTRo}, v{vT}, 5, v{vTRo}")
        a(f"v_and_b32 v{vT}, 3, v0")
        a(f"v_lshl_add_u32 v{vTRo}, v{vT}, 3, v{vTRo}")
        a(f"v_add_u32 v{vTRo}, s{sLds}, v{vTRo}")
        a(f"v_add_u32 v{vLdsW}, s{sLds}, v{vL16}")
        a(f"s_lshl_b32 s{sT2}, s{sMEMB}, 8")
        a(f"s_lshl_b32 s{sT1}, s{sWAVE}, 6")
        a(f"s_add_u32 s{sT2}, s{sT2}, s{sT1}")
        a(f"s_lshl_b32 s{sT3}, s{sMEMB}, 17")
        a(f"s_lshl_b32 s{sT1}, s{sWAVE}, 8")
        a(f"s_add_u32 s{sT3}, s{sT3}, s{sT1}")
        late_start(a, cfg)
        chunks = []
        def qkv_chunk(ptr, jj, consume):
            def setup():
                if jj == 0: set_srd(a, sWT, ptr, 0x400000)
                a(f"s_xor_b32 s{sT0}, s{sRot}, {jj}")
                a(f"s_lshl_b32 s{sT0}, s{sT0}, 19")
                a(f"s_add_u32 s{sT0}, s{sT0}, s{sT2}")
            chunks.append(dict(setup=setup, vdma=vD, dstep=4 * 8192, consume=consume))
        for ptr, base in ((sWK, WK), (sWV, WV)):
            for jj in range(8):
                def consume(so, jj=jj, base=base):
                    qkv_tr_reads(a, vTR, so, base + jj * 16, base + jj * 16 + 8)
                    a("s_waitcnt lgkmcnt(0)")
                qkv_chunk(ptr, jj, consume)
        for wp in range(4):
            for ap in range(2):
                def setup(wp=wp, ap=ap):
                    if wp == 0 and ap == 0: set_srd(a, sWT, sWO, 0x400000)
                    a(f"s_xor_b32 s{sT0}, s{sWAVE}, {wp}")
                    a(f"s_lshl_b32 s{sT0}, s{sT0}, 15")
                    a(f"s_add_u32 s{sT0}, s{sT0}, s{sT3}")
                    if ap: a(f"s_add_u32 s{sT0}, s{sT0}, {ap*128}")
                def consume(so, wp=wp, ap=ap):
                    for a1 in range(2):
                        dst = WO + ((2 * ap + a1) * 4 + wp) * 8
                        for e4 in range(4):
                            off = so + (8 * (e4 >> 1) + 2 * (e4 & 1)) * 128 + a1 * 64
                            a(f"ds_read_b64_tr_b16 {vr(dst+2*e4,2)}, v{vTRo} offset:{off}")
                    a("s_waitcnt lgkmcnt(0)")
                chunks.append(dict(setup=setup, vdma=vDo, dstep=8192, consume=consume))
        for jj in range(8):
            def consume(so, jj=jj):
                qkv_tr_reads(a, vTR, so, RING, RING + 8)
                a("s_waitcnt lgkmcnt(0)")
                for i in range(4):
                    a(f"ds_write_b128 v{vLdsW}, {vr(RING+4*i,4)} offset:{so+i*1024}")
                a("s_waitcnt lgkmcnt(0)")
            qkv_chunk(sWQ, jj, consume)
        load_chunks(a, chunks, sLds)
        trace(a, cfg, 6, None, vT)
        sel_consts(a, lane, 96, selM=SelM, selLo=112, selHi=116, selT=SelT)
        smf_index(a, lane, vIdx, 96)
        n_, g_, q_ = 96, 97, 98
        a(f"v_and_b32 v{n_}, 15, v0")
        a(f"v_lshrrev_b32 v{g_}, 4, v0")
        a(f"v_and_b32 v{q_}, 7, v0")
        a(f"s_mov_b32 s{sMaskHi}, 0xff00ff00")
        a(f"s_mov_b32 s{sMaskHi+1}, 0xff00ff00")
        a(f"v_lshlrev_b32 v99, 3, v{q_}")
        a(f"v_and_b32 v{vT}, 1, v{g_}")
        a(f"v_lshl_add_u32 v99, v{vT}, 6, v99")
        a(f"v_add_u32 v99, {SJ}, v99")
        a(f"v_lshrrev_b32 v{vT}, 1, v{g_}")
        a(f"v_lshlrev_b32 v{vSwx}, 8, v{vT}")
        a(f"v_lshl_add_u32 v{vSwx}, v{q_}, 4, v{vSwx}")
        a(f"v_and_b32 v{vT}, 1, v{g_}")
        a(f"v_lshl_add_u32 v{vSwx}, v{vT}, 3, v{vSwx}")
        a(f"s_lshl_b32 s{sT0}, s{sWAVE}, 9")
        a(f"s_add_u32 s{sT1}, s{sT0}, {SX}")
        a(f"v_add_u32 v{vSwx}, s{sT1}, v{vSwx}")
        a(f"v_cndmask_b32 v{vSwx}, v{vSwx}, v99, s[{sMaskHi}:{sMaskHi+1}]")
        a(f"v_lshlrev_b32 v{vSwm}, 4, v{q_}")
        a(f"v_lshl_add_u32 v{vSwm}, v{vT}, 3, v{vSwm}")
        a(f"s_lshl_b32 s{sT1}, s{sWAVE}, 7")
        a(f"s_add_u32 s{sT1}, s{sT1}, {SM}")
        a(f"v_add_u32 v{vSwm}, s{sT1}, v{vSwm}")
        a(f"s_mov_b32 s98, 0")
        a(f"s_mov_b32 s99, 0x00ff00ff")
        a(f"v_cndmask_b32 v{vSwm}, v99, v{vSwm}, s[98:99]")
        a(f"v_lshlrev_b32 v{vSrx}, 9, v{g_}")
        a(f"v_lshl_add_u32 v{vSrx}, v{n_}, 4, v{vSrx}")
        a(f"v_add_u32 v{vSrx}, {SX}, v{vSrx}")
        a(f"v_lshlrev_b32 v{vSrm}, 7, v{g_}")
        a(f"v_lshl_add_u32 v{vSrm}, v{q_}, 4, v{vSrm}")
        a(f"v_add_u32 v{vSrm}, {SM}, v{vSrm}")
        a(f"s_lshl_b32 s{sT1}, s{sWAVE}, 9")
        a(f"s_add_u32 s{sT1}, s{sT1}, {OA-SM}")
        a(f"v_bfe_u32 v{vT}, v0, 3, 1")
        a(f"v_lshl_add_u32 v{vOw}, v{vT}, 3, v{vSrm}")
        a(f"v_add_u32 v{vOw}, s{sT1}, v{vOw}")
        a(f"v_and_b32 v{vOr}, 0xf0, v{vL16}")
        a(f"v_add_u32 v{vOr}, {CST}, v{vOr}")
        a(f"v_lshrrev_b32 v{vT}, 2, v{n_}")
        a(f"v_lshl_add_u32 v{vT}, v{vT}, 2, v{g_}")
        a(f"v_lshlrev_b32 v{vX1s}, 11, v{vT}")
        a(f"v_and_b32 v{vT}, 3, v0")
        a(f"v_lshl_add_u32 v{vX1s}, v{vT}, 4, v{vX1s}")
        a(f"s_lshl_b32 s{sT0}, s{sWAVE}, 16")
        a(f"s_lshl_b32 s{sT1}, s{sMEMB}, 6")
        a(f"s_add_u32 s{sT0}, s{sT0}, s{sT1}")
        a(f"v_add_u32 v{vX1s}, s{sT0}, v{vX1s}")
        a(f"s_lshl_b32 s{sT2}, s{sMEMB}, 2")
        a(f"s_add_u32 s{sT2}, s{sT2}, s{sWAVE}")
        a(f"s_lshl_b32 s{sT0}, s{sT2}, 11")
        a(f"v_add_u32 v{vX1l}, s{sT0}, v{vL16}")
        a(f"v_lshlrev_b32 v{vX2s}, 4, v{g_}")
        a(f"v_lshl_add_u32 v{vX2s}, v{n_}, 2, v{vX2s}")
        a(f"s_lshl_b32 s{sT0}, s{sT2}, 6")
        a(f"v_add_u32 v{vX2s}, s{sT0}, v{vX2s}")
        a(f"v_mov_b32 v{vT}, {OOB:#x}")
        a(f"v_cmp_gt_u32 vcc, 4, v{n_}")
        a(f"v_cndmask_b32 v{vX2s}, v{vT}, v{vX2s}, vcc")
        a(f"v_and_b32 v100, 3, v0")
        a(f"v_lshlrev_b32 v100, 1, v100")
        a(f"v_lshl_add_u32 v100, v{g_}, 10, v100")
        a(f"v_and_b32 v104, 3, v0")
        a(f"v_bfe_u32 v105, v0, 2, 2")
        a(f"v_lshl_add_u32 v104, v104, 2, v105")
        a(f"v_and_b32 v105, 1, v104")
        a(f"v_lshlrev_b32 v105, 4, v105")
        a(f"v_mov_b32 v106, 0x3f80")
        a(f"v_lshlrev_b32 v105, v105, v106")
        a(f"v_lshrrev_b32 v104, 1, v104")
        for e in range(4):
            a(f"v_cmp_eq_u32 vcc, {e}, v104")
            a(f"v_cndmask_b32 v{108+e}, 0, v105, vcc")
        a(f"v_and_b32 v104, 0xf0, v{vL16}")
        a(f"v_add_u32 v104, {CST}, v104")
        a(f"ds_write_b128 v104, v[108:111]")
        a(f"ds_write_b128 v104, v[112:115] offset:256")
        a(f"ds_write_b128 v104, v[116:119] offset:512")
        for e in range(4): a(f"v_mov_b32 v{120+e}, 0x3f803f80")
        for e in range(4): a(f"v_mov_b32 v{124+e}, 0x3f003f00")
        a(f"ds_write_b128 v104, v[120:123] offset:768")
        a(f"ds_write_b128 v104, v[124:127] offset:1024")
        a(f"s_and_b32 s{sT0}, s{sT2}, 1")
        a(f"s_lshl_b32 s{sT0}, s{sT0}, 12")
        a(f"s_lshr_b32 s{sT1}, s{sT2}, 4")
        a(f"s_lshl_b32 s{sT1}, s{sT1}, 7")
        a(f"s_add_u32 s{sT0}, s{sT0}, s{sT1}")
        a(f"s_bfe_u32 s{sT1}, s{sT2}, 0x10001")
        a(f"s_lshl_b32 s{sT1}, s{sT1}, 5")
        a(f"s_add_u32 s{sT0}, s{sT0}, s{sT1}")
        a(f"s_bfe_u32 s{sT1}, s{sT2}, 0x20002")
        a(f"s_lshl_b32 s{sT1}, s{sT1}, 3")
        a(f"s_add_u32 s{sT0}, s{sT0}, s{sT1}")
        set_srd(a, sIN, sMEM0, 8192)
        a(f"buffer_load_ushort v101, v100, s[{sIN}:{sIN+3}], s{sT0} offen")
        a(f"buffer_load_ushort v102, v100, s[{sIN}:{sIN+3}], s{sT0} offen offset:64")
        a(f"s_mov_b32 s{sStep}, 0")
        a(f"s_mov_b32 s{sTag}, 0")
        a(f"s_lshl_b32 s{sT0}, s{sLAY}, 14")
        a(f"s_add_u32 s{sX2st}, s{sT0}, {OFF_X2:#x}")
        a(f"s_add_u32 s{sX2re}, s{sX2st}, 8192")
        a(f"s_lshl_b32 s{sT0}, s{sWAVE}, 11")
        a(f"s_add_u32 s{sX2l}, s{sT0}, s{sX2st}")
        a(f"s_add_u32 s{sT0}, s{sT0}, {AST}")
        a(f"v_add_u32 v{vAw}, s{sT0}, v{vL16}")
        a(f"s_lshl_b32 s{sT0}, s{sLAY}, 19")
        a(f"s_add_u32 s{sMemOff}, s{sT0}, {OFF_MEM:#x}")
        a(f"s_lshl_b32 s{sT0}, s{sLAY}, 18")
        a(f"s_add_u32 s{sX1a}, s{sT0}, {OFF_X1:#x}")
        a(f"s_add_u32 s{sX1b}, s{sX1a}, 32768")
        a(f"s_lshl_b32 s{sT0}, s{sLAY}, 21")
        a(f"s_lshl_b32 s{sT1}, s{sT2}, 12")
        a(f"s_add_u32 s{sT0}, s{sT0}, s{sT1}")
        a(f"s_add_u32 s{sKVb}, s{sT0}, {OFF_KVR:#x}")
        a(f"s_mov_b32 s{sKV}, s{sKVb}")
        a(f"s_mov_b32 s{sC}, {fbits(128**-0.5*1.4426950408889634):#x}")
        a(f"s_mov_b32 s{sC+1}, s{sC}")
        a(f"s_mov_b32 s{sLim}, {fbits(cfg.get('lim', 48.0)):#x}")
        a("s_waitcnt vmcnt(0)")
        a(f"v_lshl_or_b32 v{vR}, v102, 16, v101")
        a(f"v_min_u32 v{vR}, -2, v{vR}")
        if not cfg.get("noinit"): wait_init(a)
        for i in range(8):
            a(f"ds_read_b128 {vr(RING+4*i,4)}, v{vLdsW} offset:{i*1024}")
        a(f"v_mov_b32 v{vOnes}, -1")
        for f in range(4): a(f"v_mov_b32 v{Kx+4*f}, -1")
        if cfg.get("nokvcheck"):
            for f in range(16): a(f"v_mov_b32 v{Kx+f}, 0")
        a(f"s_lshl_b32 s{sKVL}, s{sWAVE}, 12")
        a(f"s_add_u32 s{sKVL}, s{sKVL}, {KVL}")
        a(f"s_mov_b32 m0, s{sKVL}")
        a("s_waitcnt vmcnt(0) lgkmcnt(0)")
        if cfg.get("count_redo"):
            a("s_memrealtime s[70:71]")
            a("s_memtime s[98:99]")
            a("s_waitcnt lgkmcnt(0)")
            a("s_sub_u32 s101, s70, s100")
            a("s_mov_b32 s100, s70")
        if cfg.get("force_global"):
            a("s_branch L_chain_entryG")
        else:
            a(f"s_cmp_eq_u32 s{sLOCAL}, 0")
            a("s_cbranch_scc1 L_chain_entryG")
    W = f"s[{sWS}:{sWS+3}]"
    vC = vOr
    vq = [(t, jj) for jj in range(8) for t in range(2)]
    vacc = (VACC, VACC + 4)
    def smf(acc, x, w): a(f"v_smfmac_f32_16x16x64_bf16 {vr(acc,4)}, {vr(x,4)}, {xr(w,8)}, v{vIdx}")
    def fill_v(n):
        for _ in range(n):
            t, jj = vq.pop(0)
            smf(vacc[t], A + 4 * jj, WV + jj * 16 + t * 8)
    def pad(n):
        for _ in range(n): a(f"v_mov_b32 v{vT}, 0")
    cvt = lambda d, s: a(f"v_cvt_pk_bf16_f32 v{d}, v{s}, v{s+1}")
    mfma = lambda d, x, y, c: a(f"v_mfma_f32_16x16x32_bf16 {vr(d,4)}, {vr(x,4)}, {vr(y,4)}, {vr(c,4) if c is not None else 0}")
    mfma16 = lambda d, x, y, c: a(f"v_mfma_f32_16x16x16_bf16 {vr(d,4)}, {vr(x,2)}, {vr(y,2)}, {vr(c,4) if c is not None else 0}")
    def kv_check():
        a(f"v_bitop3_b32 v{vT}, v{Kx}, v{Kx+4}, s{sKT} bitop3:0x7e")
        a(f"v_bitop3_b32 v{VACC}, v{Kx+8}, v{Kx+12}, s{sKT} bitop3:0x7e")
        a(f"v_or_b32 v{vT}, v{vT}, v{VACC}")
        a(f"v_and_b32 v{vT}, 1, v{vT}")
        a(f"v_cmp_ne_u32 vcc, 0, v{vT}")
    def x2_issue(r):
        a(f"buffer_load_dwordx4 {vr(r,4)}, v{vL16}, {W}, s{sX2l} offen sc1")
        a(f"buffer_load_dwordx4 {vr(r+4,4)}, v{vL16}, {W}, s{sX2l} offen offset:1024 sc1")
    def x2_check(r, n):
        a(f"s_waitcnt vmcnt({n+1})")
        smf(k0, r, WK)
        a(f"v_max3_u32 v{vT}, v{r}, v{r+1}, v{r+2}")
        smf(k1, r, WK + 8)
        a(f"s_waitcnt vmcnt({n})")
        a(f"v_max3_u32 v{vT}, v{vT}, v{r+3}, v{r+4}")
        a(f"ds_write_b128 v{vAw}, {vr(r,4)}")
        a(f"v_max3_u32 v{vT}, v{vT}, v{r+5}, v{r+6}")
        a(f"v_max_u32 v{vT}, v{vT}, v{r+7}")
        a(f"v_cmp_eq_u32 vcc, -1, v{vT}")
        smf(k0, r + 4, WK + 16)
        a(f"ds_write_b128 v{vAw}, {vr(r+4,4)} offset:1024")
        smf(k1, r + 4, WK + 24)
    def zero_k():
        for r in (k0, k0 + 2, k1, k1 + 2): a(f"v_mov_b64 {vr(r,2)}, 0")
    a.label(f"L_chain_entry{tag}")
    a(f"buffer_store_dword v{vR}, v{vX2s}, {W}, s{sX2st} offen{st}")
    a(".p2align 6")
    a.label(f"L_chain_loop{tag}")
    stamp("top")
    trace(a, cfg, 0, sStep, vT)
    a(f"s_cmp_eq_u32 s{sStep}, 63")
    a(f"s_cbranch_scc1 L_chain_last{tag}")
    a(f"s_bfe_u32 s{sKT}, s{sStep}, 0x10002")
    a("s_waitcnt lgkmcnt(0)")
    kv_check()
    for i in range(8):
        a(f"v_mov_b64 {vr(q0+2*i,2)}, 0")
    if not cfg.get("nokvcheck"): a(f"s_cbranch_vccnz L_chain_kvwait{tag}")
    a.label(f"L_chain_kvok{tag}")
    trace(a, cfg, 1, sStep, vT)
    trace(a, cfg, 5, sStep, vT)
    spin_init(a)
    pad(cfg.get("d2", 30))
    stamp("x2iss")
    x2_issue(A)
    for i in range(4):
        a(f"v_mov_b64 {vr(VACC+2*i,2)}, 0")
    a(f"s_add_u32 s{sKV}, s{sStep}, 1")
    a(f"s_and_b32 s{sKV}, s{sKV}, 3")
    a(f"s_lshl_b32 s{sKV}, s{sKV}, 19")
    a(f"s_add_u32 s{sKV}, s{sKV}, s{sKVb}")
    if cfg.get("ack2"): a("s_waitcnt vmcnt(2)")
    if cfg.get("one2"):
        x2_check(A, 0)
    else:
        pad(cfg.get("g2", 30))
        x2_issue(A + 8)
        x2_check(A, 2)
    if not cfg.get("nowait2"): a(f"s_cbranch_vccnz L_chain_x2b{tag}")
    a.label(f"L_chain_x2ok{tag}")
    if cfg.get("count_redo"): a(f"s_add_u32 s31, s31, s{sSPIN}")
    stamp("A0")
    kvl = [f"buffer_load_dwordx4 v{vL16}, {W}, s{sKV} offen offset:{f*1024} sc1 lds" for f in range(4)]
    SLo, SHi = RING, RING + 4
    def ring_rd(jj):
        s0 = RING + ((2 * jj) % 4) * 8; f0 = 2 * jj + 4
        return [f"ds_read_b128 {vr(s0+4*i,4)}, v{vLdsW} offset:{f0*2048+i*1024}" for i in range(4)]
    for jj in range(2):
        s0 = RING + 16 * jj; rd = ring_rd(jj)
        smf(q0, A + 4 * jj, s0); a(rd[0]); a(rd[1])
        smf(q1, A + 4 * jj, s0 + 8); a(rd[2]); a(rd[3])
    memst = f"buffer_store_dword v{vR}, v{vX2s}, {W}, s{sMemOff} offen sc1"
    rearm = f"buffer_store_dword v{vOnes}, v{vX2s}, {W}, s{sX2re} offen{st}"
    rf = cfg.get("rearm_first", True)
    a(rearm if rf else memst)
    stamp("k1done", True)
    a("s_waitcnt vmcnt(1) lgkmcnt(8)")
    a("s_barrier")
    stamp("bar1", True)
    for j2 in range(2, 8, 2):
        a(f"v_xor_b32 v{vT}, {j2*1024}, v{vAw}")
        a(f"ds_read_b128 {vr(A+4*j2,4)}, v{vT}")
        a(f"ds_read_b128 {vr(A+4*j2+4,4)}, v{vT} offset:1024")
        if j2 < 6: fill_v(1)
    a(memst if rf else rearm)
    fill_v(1)
    a(kvl.pop(0))
    fill_v(1)
    lg = {2: 5, 3: 8, 4: 4, 5: 4, 6: 4, 7: 2}
    for jj in range(2, 8):
        a(f"s_waitcnt lgkmcnt({lg[jj]})")
        stamp(f"k{jj}", True)
        s0 = RING + ((2 * jj) % 4) * 8; s1 = s0 + 8
        if jj < 6: side = ring_rd(jj)
        elif jj == 6: side = [kvl.pop(0), kvl.pop(0),
                              f"ds_read_b128 {vr(SLo,4)}, v{vC} offset:256", f"ds_read_b128 {vr(SHi,4)}, v{vC} offset:512"]
        else: side = [kvl.pop(0), None, None, None]
        for acc, wsrc, sd in ((q0, s0, side[0]), (k0, WK + jj * 16, side[1]), (q1, s1, side[2]), (k1, WK + jj * 16 + 8, side[3])):
            smf(acc, A + 4 * jj, wsrc)
            if sd: a(sd)
    stamp("h3end")
    Ap0, Ap1, Dp0, Dp1, X = 72, 76, 80, 84, 88
    cvt(Ap0, q0); cvt(Ap0 + 1, q0 + 2); cvt(Ap0 + 2, k0); cvt(Ap0 + 3, k0 + 2)
    cvt(Ap1, q1); cvt(Ap1 + 1, q1 + 2)
    mfma(Dp0, Ap0, SelT, None)
    cvt(Ap1 + 2, k1); cvt(Ap1 + 3, k1 + 2)
    mfma(Dp1, Ap1, SelT, None)
    fill_v(1)
    cvt(X, Dp0); cvt(X + 1, Dp0 + 2)
    cvt(X + 2, Dp1); cvt(X + 3, Dp1 + 2)
    Sx0, Sx1, Sm = 32, 36, 40
    mfma(Sx0, Kx, X, None)
    mfma(Sx1, Kx + 4, X, None)
    mfma(Sm, X, X, None)
    fill_v(1)
    cvt(44, Sx0); cvt(45, Sx0 + 2); cvt(46, Sx1); cvt(47, Sx1 + 2)
    a(f"ds_write2_b64 v{vSwx}, v[44:45], v[46:47] offset0:0 offset1:16")
    cvt(92, Sm); cvt(93, Sm + 2)
    a(f"ds_write_b64 v{vSwm}, v[92:93]")
    stamp("swr")
    fill_v(4)
    a("s_waitcnt lgkmcnt(0)")
    stamp("swdone", True)
    a("s_barrier")
    stamp("bar2", True)
    a(f"ds_read_b128 v[72:75], v{vSrx}")
    a(f"ds_read_b128 v[80:83], v{vSrm}")
    a(f"ds_read_b128 v[76:79], v{vSrx} offset:256")
    ONES, HALF = 88, 92
    fill_v(3)
    a("s_waitcnt lgkmcnt(1)")
    mfma(32, SLo, 72, None)
    mfma(36, SelM, 80, None)
    a("s_waitcnt lgkmcnt(0)")
    mfma(32, SHi, 76, 32)
    a(f"ds_read_b128 {vr(ONES,4)}, v{vC} offset:768")
    a(f"ds_read_b64 {vr(HALF,2)}, v{vC} offset:1024")
    nomax = cfg.get("nomax", False)
    fill_v(2)
    stamp("sred")
    E = 72
    m, t = 46, 47
    def true_max():
        a(f"v_max3_f32 v{m}, v36, v37, v38")
        a(f"v_max3_f32 v{t}, v32, v33, v34")
        a(f"v_max3_f32 v{m}, v{m}, v39, v35")
        a(f"v_max_f32 v{m}, v{m}, v{t}")
        a(f"v_max_f32_dpp v{m}, v{m}, v{m} row_ror:8 row_mask:0xf bank_mask:0xf")
        xlane_g(a, "v_max_f32", m, t)
        a(f"v_mul_f32 v{m}, s{sC}, v{m}")
        for i in range(0, 8, 2):
            a(f"v_pk_fma_f32 {vr(E+i,2)}, {vr(32+i,2)}, s[{sC}:{sC+1}], {vr(m,2)} op_sel_hi:[1,1,0] neg_lo:[0,0,1] neg_hi:[0,0,1]")
    if nomax:
        for i in (4, 5, 6, 7, 0, 1, 2, 3):
            a(f"v_mul_f32 v{E+i}, s{sC}, v{32+i}")
        a(f"v_max3_f32 v{m}, abs(v{E+4}), abs(v{E+5}), abs(v{E+6})")
        a(f"v_max3_f32 v{t}, abs(v{E}), abs(v{E+1}), abs(v{E+2})")
        a(f"v_max3_f32 v{m}, v{m}, abs(v{E+7}), abs(v{E+3})")
        a(f"v_max_f32 v{m}, v{m}, v{t}")
        a(f"v_cmp_nlt_f32 vcc, v{m}, s{sLim}")
        a(f"v_exp_f32 v{E}, v{E}")
        if not cfg.get("nowait1") and not cfg.get("nowait2"): a(f"s_cbranch_vccnz L_chain_big{tag}")
        a.label(f"L_chain_bigok{tag}")
        for i in range(1, 8):
            a(f"v_exp_f32 v{E+i}, v{E+i}")
    else:
        true_max()
        for i in range(8):
            a(f"v_exp_f32 v{E+i}, v{E+i}")
    Bx, Pm, vp = 40, 44, 84
    cvt(Bx, E); cvt(Bx + 1, E + 2); cvt(Bx + 2, E); cvt(Bx + 3, E + 2)
    fill_v(1)
    assert not vq
    a(f"v_mov_b32_dpp v{Bx+2}, v{Bx} row_ror:8 row_mask:0xf bank_mask:0x3")
    a(f"v_mov_b32_dpp v{Bx+3}, v{Bx+1} row_ror:8 row_mask:0xf bank_mask:0x3")
    a(f"v_mov_b32_dpp v{Bx}, v{Bx} row_ror:8 row_mask:0xf bank_mask:0xc")
    a(f"v_mov_b32_dpp v{Bx+1}, v{Bx+1} row_ror:8 row_mask:0xf bank_mask:0xc")
    cvt(Pm, E + 4); cvt(Pm + 1, E + 6)
    stamp("pready")
    OF, WA, LS = 96, 112, 80
    def pack(U, scale):
        d = 32 + 4 * U; s = WA + 8 * U
        mul = lambda r, h: [f"v_mul_f32 v{r}, v{r}, v{LS+2*h}", f"v_mul_f32 v{r+1}, v{r+1}, v{LS+2*h+1}"] if scale else []
        return [mul(s, 0) + mul(s + 2, 1) + [f"v_cvt_pk_bf16_f32 v{d}, v{s}, v{s+1}", f"v_cvt_pk_bf16_f32 v{d+1}, v{s+2}, v{s+3}",
                 f"v_and_or_b32 v{d}, v{d}, -2, s{sTag}"],
                mul(s + 4, 0) + mul(s + 6, 1) + [f"v_cvt_pk_bf16_f32 v{d+2}, v{s+4}, v{s+5}", f"v_cvt_pk_bf16_f32 v{d+3}, v{s+6}, v{s+7}",
                 f"buffer_store_dwordx4 {vr(d,4)}, v{vX1s}, {W}, s{sX1a if U == 0 else sX1b} offen{st}"]]
    sal = [f"s_add_u32 s{sStep}, s{sStep}, 1", f"s_add_u32 s{sMemOff}, s{sMemOff}, 8192", f"s_xor_b32 s{sX2st}, s{sX2st}, 8192",
           f"s_xor_b32 s{sX2re}, s{sX2re}, 8192", f"s_xor_b32 s{sX2l}, s{sX2l}, 8192", f"s_mov_b32 s{sSPIN}, 0"]
    a("s_waitcnt lgkmcnt(0)")
    mfma(32, ONES, Bx, None)
    cvt(vp, vacc[0]); cvt(vp + 1, vacc[0] + 2)
    mfma(72, Vx, Bx, None)
    cvt(vp + 2, vacc[1]); cvt(vp + 3, vacc[1] + 2)
    mfma(76, Vx + 4, Bx, None)
    a(f"v_mov_b64 {vr(WA,2)}, 0"); a(f"v_mov_b64 {vr(WA+2,2)}, 0")
    mfma16(32, HALF, Pm, 32)
    a(f"v_mov_b64 {vr(WA+4,2)}, 0"); a(f"v_mov_b64 {vr(WA+6,2)}, 0")
    mfma16(72, vp, Pm, 72)
    a(f"v_mov_b64 {vr(WA+8,2)}, 0"); a(f"v_mov_b64 {vr(WA+10,2)}, 0")
    mfma16(76, vp + 2, Pm, 76)
    a(f"v_rcp_f32 v32, v32")
    a(f"v_mov_b64 {vr(WA+12,2)}, 0"); a(f"v_mov_b64 {vr(WA+14,2)}, 0")
    for i in range(4): a(f"v_mul_f32 v{72+i}, v{72+i}, v32")
    cvt(OF, 72); cvt(OF + 1, 74)
    for i in range(4): a(f"v_mul_f32 v{76+i}, v{76+i}, v32")
    cvt(OF + 2, 76); cvt(OF + 3, 78)
    a(f"v_cndmask_b32 v80, v{OF}, v{OF+2}, s[{sMaskHi}:{sMaskHi+1}]")
    a(f"v_cndmask_b32 v81, v{OF+1}, v{OF+3}, s[{sMaskHi}:{sMaskHi+1}]")
    a(f"ds_write_b64 v{vOw}, v[80:81]")
    stamp("owr")
    for ac in range(3):
        smf(WA + 4 * ac, OF, WO + ac * 32)
        a(f"v_xor_b32 v{82+ac}, {(ac+1)*512}, v{vOw}")
        a(f"v_and_b32 v{82+ac}, -16, v{82+ac}")
    a(f"s_waitcnt vmcnt({5 if rf else 4}) lgkmcnt(0)")
    stamp("owdone", True)
    a("s_barrier")
    stamp("bar3", True)
    for wp in range(1, 4):
        a(f"ds_read_b128 {vr(OF+4*wp,4)}, v{81+wp}")
    a(f"ds_read_b128 v[40:43], v{vC}")
    smf(WA + 12, OF, WO + 96)
    for x in sal: a(x)
    pk = pack(0, False) + pack(1, False)
    n = 0; side = []
    for ac in range(4):
        for wp in range(1, 4):
            if ac == 0: a(f"s_waitcnt lgkmcnt({4-wp})")
            smf(WA + 4 * ac, OF + 4 * wp, WO + (ac * 4 + wp) * 8)
            n += 1
            stamp(f"wo{n}", True)
            if n in (6, 9, 12): side += pk.pop(0)
            if side: a(side.pop(0))
    for x in side: a(x)
    for i in range(3):
        a(f"ds_read_b128 {vr(RING+4*i,4)}, v{vLdsW} offset:{i*1024}")
    for x in pk.pop(0): a(x)
    stamp("x1st")
    for i in range(3, 8):
        a(f"ds_read_b128 {vr(RING+4*i,4)}, v{vLdsW} offset:{i*1024}")
    a("s_waitcnt vmcnt(2)")
    a(f"v_add_u32 v{vT}, s{sKVL}, v{vL16}")
    for f in range(4):
        a(f"ds_read_b128 {vr(Kx+4*f,4)}, v{vT} offset:{f*1024}")
    if cfg.get("ack1"): a("s_waitcnt vmcnt(1)")
    pad(cfg.get("d1", 40))
    def x1_issue(r):
        a(f"buffer_load_dwordx4 {vr(r,4)}, v{vX1l}, {W}, s{sX1a} offen sc1")
        a(f"buffer_load_dwordx4 {vr(r+4,4)}, v{vX1l}, {W}, s{sX1a} offen offset:1024 sc1")
    def x1_check(r, n):
        a(f"s_waitcnt vmcnt({n+1})")
        mfma(104, 40, r, None)
        a(f"s_waitcnt vmcnt({n})")
        mfma(104, 40, r + 4, 104)
        a(f"v_bitop3_b32 v{vT}, v{r}, v{r+4}, s{sTag} bitop3:0x7e")
        a(f"v_and_b32 v{vT}, 1, v{vT}")
        a(f"v_cmp_ne_u32 vcc, 0, v{vT}")
    stamp("x1iss")
    x1_issue(96)
    a("s_waitcnt lgkmcnt(12)")
    if cfg.get("ack1"): a("s_waitcnt vmcnt(2)")
    if cfg.get("one1"):
        x1_check(96, 0)
    else:
        pad(cfg.get("g1", 35))
        x1_issue(112)
        x1_check(96, 2)
    if not cfg.get("nowait1"): a(f"s_cbranch_vccnz L_chain_x1b{tag}")
    a.label(f"L_chain_x1ok{tag}")
    stamp("x1ok")
    a(f"v_add_f32_dpp v104, v104, v104 row_ror:4 row_mask:0xf bank_mask:0xf")
    a(f"v_add_f32_dpp v105, v105, v105 row_ror:4 row_mask:0xf bank_mask:0xf")
    a(f"s_xor_b32 s{sTag}, s{sTag}, 1")
    a(f"v_add_f32_dpp v104, v104, v104 row_ror:8 row_mask:0xf bank_mask:0xf")
    a(f"v_add_f32_dpp v105, v105, v105 row_ror:8 row_mask:0xf bank_mask:0xf")
    a(f"v_cvt_pk_bf16_f32 v{vR}, v104, v105")
    a(f"v_min_u32 v{vR}, -2, v{vR}")
    a(f"buffer_store_dword v{vR}, v{vX2s}, {W}, s{sX2st} offen{st}")
    if cfg.get("count_redo"):
        a(f"s_lshl_b32 s{sT0}, s{sSPIN}, 16")
        a(f"s_add_u32 s31, s31, s{sT0}")
    if stamp.on:
        a(f"s_cmp_eq_u32 s{sStep}, {cfg.get('stamp_step', 40)}")
        a(f"s_cbranch_scc0 L_chain_loop{tag}")
        a("s_waitcnt lgkmcnt(0)")
        a(f"s_lshl_b32 s{sT0}, s{sMEMB}, 2")
        a(f"s_add_u32 s{sT0}, s{sT0}, s{sWAVE}")
        a(f"s_lshl_b32 s{sT1}, s{sLAY}, 7")
        a(f"s_add_u32 s{sT0}, s{sT0}, s{sT1}")
        a(f"s_lshl_b32 s{sT0}, s{sT0}, 6")
        a(f"s_add_u32 s{sT0}, s{sT0}, {OFF_STAMP:#x}")
        a(f"v_mov_b32 v108, 0")
        for i in range(stamp.n):
            a(f"v_mov_b32 v109, s{stamp.base+2*i}")
            a(f"buffer_store_dword v109, v108, {W}, s{sT0} offen offset:{4*i}")
        cfg["stamp_names"] = stamp.names
    a(f"s_branch L_chain_loop{tag}")
    a.label(f"L_chain_x1b{tag}")
    x1_issue(96)
    spin_tick(a)
    if cfg.get("one1"): x1_check(96, 0)
    else:
        x1_check(112, 2)
        a(f"s_cbranch_vccz L_chain_x1ok{tag}")
        x1_issue(112)
        spin_tick(a)
        x1_check(96, 2)
    a(f"s_cbranch_vccz L_chain_x1ok{tag}")
    a(f"s_branch L_chain_x1b{tag}")
    a.label(f"L_chain_x2b{tag}")
    x2_issue(A)
    spin_tick(a)
    zero_k()
    if cfg.get("one2"): x2_check(A, 0)
    else:
        x2_check(A + 8, 2)
        a(f"s_cbranch_vccz L_chain_x2c{tag}")
        x2_issue(A + 8)
        spin_tick(a)
        zero_k()
        x2_check(A, 2)
    a(f"s_cbranch_vccz L_chain_x2ok{tag}")
    a(f"s_branch L_chain_x2b{tag}")
    a.label(f"L_chain_x2c{tag}")
    for i in range(4):
        a(f"v_mov_b64 {vr(A+2*i,2)}, {vr(A+8+2*i,2)} ; sameval")
    a(f"s_branch L_chain_x2ok{tag}")
    if nomax:
        a.label(f"L_chain_big{tag}")
        true_max()
        a(f"v_exp_f32 v{E}, v{E}")
        a(f"s_branch L_chain_bigok{tag}")
    a.label(f"L_chain_last{tag}")
    if cfg.get("count_redo"):
        a("s_memrealtime s[70:71]")
        a("s_memtime s[72:73]")
        a(f"s_lshl_b32 s{sT0}, s{sMEMB}, 2")
        a(f"s_add_u32 s{sT0}, s{sT0}, s{sWAVE}")
        a(f"s_lshl_b32 s{sT1}, s{sLAY}, 7")
        a(f"s_add_u32 s{sT0}, s{sT0}, s{sT1}")
        a(f"s_lshl_b32 s{sT0}, s{sT0}, 6")
        a(f"s_add_u32 s{sT0}, s{sT0}, {OFF_STAMP:#x}")
        a(f"v_mov_b32 v108, 0")
        a("s_waitcnt lgkmcnt(0)")
        a(f"s_sub_u32 s70, s70, s100")
        a(f"s_sub_u32 s72, s72, s98")
        for i, r in enumerate((72, 31, 70, 101)):
            a(f"v_mov_b32 v109, s{r}")
            a(f"buffer_store_dword v109, v108, {W}, s{sT0} offen offset:{48+4*i}")
    a(f"buffer_store_dword v{vR}, v{vX2s}, {W}, s{sMemOff} offen sc1")
    a("s_waitcnt vmcnt(0) lgkmcnt(0)")
    a("s_branch L_done")
    a.label(f"L_chain_kvwait{tag}")
    spin_init(a)
    lab = a.newlab("L_kvspin")
    a.label(lab)
    for f in range(4):
        a(f"buffer_load_dwordx4 {vr(Kx+4*f,4)}, v{vL16}, {W}, s{sKV} offen offset:{f*1024} sc1")
    spin_tick(a)
    a("s_waitcnt vmcnt(0)")
    kv_check()
    a(f"s_cbranch_vccz L_chain_kvok{tag}")
    a("s_sleep 4")
    a(f"s_branch {lab}")
```

```python
from gen_common import *

def chain(a, local, cfg):
    st = "" if local else " sc1"
    tag = "L" if local else "G"
    stamp = Stamps(a, cfg.get("stamp") == "chain" and local, only=cfg.get("only"))
    vL16, vIdx, vLdsW, vSwx, vSwm, vSrx, vSrm, vOw, vOr, vX1s, vX1l, vX2s = range(1, 13)
    vR, vOnes, vT = 13, 14, 15
    vAw = 0
    sKVb, sKT = 93, 95
    SelT, VACC, SelM = 16, 20, 28
    q0, k0, q1, k1 = 32, 36, 40, 44
    Kx, Vx, RING, A, WO = 48, 56, 64, 96, 128
    WK, WV = 256, 384
    sStep, sTag, sX2st, sX2re, sMemOff, sKV, sX1a, sX1b, sC = 55, 56, 57, 58, 59, 60, 61, 62, 96
    sMaskHi = 64
    sLds, sRot = 66, 67
    sX2l = 92
    AST, KVL, SX, SM, SJ, OA, CST = 0x20000, 0x22000, 0x26000, 0x26800, 0x26a00, 0x26c00, 0x27400
    sKVL = 94
    lane = 0
    if cfg.get("chain_prologue_done") is None:
        cfg["chain_prologue_done"] = True
        a.label("L_chain")
        a(f"v_and_b32 v0, 63, v0")
        a(f"v_lshlrev_b32 v{vL16}, 4, v0")
        a(f"s_lshl_b32 s{sLds}, s{sWAVE}, 15")
        a(f"s_lshl_b32 s{sRot}, s{sWAVE}, 1")
        vD, vTR, vDo, vTRo = 96, 97, 98, 99
        qkv_dma_addr(a, lane, vD, vT, 8192)
        qkv_tr_addr(a, lane, vTR, vT, sLds)
        a(f"v_lshrrev_b32 v{vDo}, 3, v0")
        a(f"v_lshlrev_b32 v{vDo}, 10, v{vDo}")
        a(f"v_and_b32 v{vT}, 7, v0")
        a(f"v_lshl_add_u32 v{vDo}, v{vT}, 4, v{vDo}")
        a(f"v_bfe_u32 v{vT}, v0, 4, 1")
        a(f"v_lshlrev_b32 v{vTRo}, 11, v{vT}")
        a(f"v_bfe_u32 v{vT}, v0, 5, 1")
        a(f"v_lshl_add_u32 v{vTRo}, v{vT}, 9, v{vTRo}")
        a(f"v_bfe_u32 v{vT}, v0, 2, 1")
        a(f"v_lshl_add_u32 v{vTRo}, v{vT}, 7, v{vTRo}")
        a(f"v_bfe_u32 v{vT}, v0, 3, 1")
        a(f"v_lshl_add_u32 v{vTRo}, v{vT}, 5, v{vTRo}")
        a(f"v_and_b32 v{vT}, 3, v0")
        a(f"v_lshl_add_u32 v{vTRo}, v{vT}, 3, v{vTRo}")
        a(f"v_add_u32 v{vTRo}, s{sLds}, v{vTRo}")
        a(f"v_add_u32 v{vLdsW}, s{sLds}, v{vL16}")
        a(f"s_lshl_b32 s{sT2}, s{sMEMB}, 8")
        a(f"s_lshl_b32 s{sT1}, s{sWAVE}, 6")
        a(f"s_add_u32 s{sT2}, s{sT2}, s{sT1}")
        a(f"s_lshl_b32 s{sT3}, s{sMEMB}, 17")
        a(f"s_lshl_b32 s{sT1}, s{sWAVE}, 8")
        a(f"s_add_u32 s{sT3}, s{sT3}, s{sT1}")
        late_start(a, cfg)
        chunks = []
        def qkv_chunk(ptr, jj, consume):
            def setup():
                if jj == 0: set_srd(a, sWT, ptr, 0x400000)
                a(f"s_xor_b32 s{sT0}, s{sRot}, {jj}")
                a(f"s_lshl_b32 s{sT0}, s{sT0}, 19")
                a(f"s_add_u32 s{sT0}, s{sT0}, s{sT2}")
            chunks.append(dict(setup=setup, vdma=vD, dstep=4 * 8192, consume=consume))
        for ptr, base in ((sWK, WK), (sWV, WV)):
            for jj in range(8):
                def consume(so, jj=jj, base=base):
                    qkv_tr_reads(a, vTR, so, base + jj * 16, base + jj * 16 + 8)
                    a("s_waitcnt lgkmcnt(0)")
                qkv_chunk(ptr, jj, consume)
        for wp in range(4):
            for ap in range(2):
                def setup(wp=wp, ap=ap):
                    if wp == 0 and ap == 0: set_srd(a, sWT, sWO, 0x400000)
                    a(f"s_add_u32 s{sT0}, s{sT3}, {32*wp*1024 + ap*128}")
                def consume(so, wp=wp, ap=ap):
                    for a1 in range(2):
                        dst = WO + ((2 * ap + a1) * 4 + wp) * 8
                        for e4 in range(4):
                            off = so + (8 * (e4 >> 1) + 2 * (e4 & 1)) * 128 + a1 * 64
                            a(f"ds_read_b64_tr_b16 {vr(dst+2*e4,2)}, v{vTRo} offset:{off}")
                    a("s_waitcnt lgkmcnt(0)")
                chunks.append(dict(setup=setup, vdma=vDo, dstep=8192, consume=consume))
        for jj in range(8):
            def consume(so, jj=jj):
                qkv_tr_reads(a, vTR, so, RING, RING + 8)
                a("s_waitcnt lgkmcnt(0)")
                for i in range(4):
                    a(f"ds_write_b128 v{vLdsW}, {vr(RING+4*i,4)} offset:{so+i*1024}")
                a("s_waitcnt lgkmcnt(0)")
            qkv_chunk(sWQ, jj, consume)
        load_chunks(a, chunks, sLds)
        trace(a, cfg, 6, None, vT)
        sel_consts(a, lane, 96, selM=SelM, selLo=112, selHi=116, selT=SelT)
        smf_index(a, lane, vIdx, 96)
        n_, g_, q_ = 96, 97, 98
        a(f"v_and_b32 v{n_}, 15, v0")
        a(f"v_lshrrev_b32 v{g_}, 4, v0")
        a(f"v_and_b32 v{q_}, 7, v0")
        a(f"s_mov_b32 s{sMaskHi}, 0xff00ff00")
        a(f"s_mov_b32 s{sMaskHi+1}, 0xff00ff00")
        a(f"v_lshlrev_b32 v99, 3, v{q_}")
        a(f"v_lshl_add_u32 v99, v{g_}, 6, v99")
        a(f"v_add_u32 v99, {SJ}, v99")
        a(f"v_lshrrev_b32 v{vT}, 1, v{g_}")
        a(f"v_lshlrev_b32 v{vSwx}, 8, v{vT}")
        a(f"v_lshl_add_u32 v{vSwx}, v{q_}, 4, v{vSwx}")
        a(f"v_and_b32 v{vT}, 1, v{g_}")
        a(f"v_lshl_add_u32 v{vSwx}, v{vT}, 3, v{vSwx}")
        a(f"s_lshl_b32 s{sT0}, s{sWAVE}, 9")
        a(f"s_add_u32 s{sT1}, s{sT0}, {SX}")
        a(f"v_add_u32 v{vSwx}, s{sT1}, v{vSwx}")
        a(f"v_cndmask_b32 v{vSwx}, v{vSwx}, v99, s[{sMaskHi}:{sMaskHi+1}]")
        a(f"v_lshlrev_b32 v{vSwm}, 4, v{q_}")
        a(f"v_lshl_add_u32 v{vSwm}, v{vT}, 3, v{vSwm}")
        a(f"s_lshl_b32 s{sT1}, s{sWAVE}, 7")
        a(f"s_add_u32 s{sT1}, s{sT1}, {SM}")
        a(f"v_add_u32 v{vSwm}, s{sT1}, v{vSwm}")
        a(f"s_mov_b32 s98, 0")
        a(f"s_mov_b32 s99, 0x00ff00ff")
        a(f"v_cndmask_b32 v{vSwm}, v99, v{vSwm}, s[98:99]")
        a(f"v_lshlrev_b32 v{vSrx}, 9, v{g_}")
        a(f"v_lshl_add_u32 v{vSrx}, v{n_}, 4, v{vSrx}")
        a(f"v_add_u32 v{vSrx}, {SX}, v{vSrx}")
        a(f"v_lshlrev_b32 v{vSrm}, 7, v{g_}")
        a(f"v_lshl_add_u32 v{vSrm}, v{q_}, 4, v{vSrm}")
        a(f"v_add_u32 v{vOr}, {OA}, v{vSrm}")
        a(f"v_add_u32 v{vSrm}, {SM}, v{vSrm}")
        a(f"v_bfe_u32 v{vT}, v0, 3, 1")
        a(f"v_lshl_add_u32 v{vOw}, v{vT}, 3, v{vOr}")
        a(f"v_add_u32 v{vOw}, s{sT0}, v{vOw}")
        a(f"v_lshrrev_b32 v{vT}, 2, v{n_}")
        a(f"v_lshl_add_u32 v{vT}, v{vT}, 2, v{g_}")
        a(f"v_lshlrev_b32 v{vX1s}, 11, v{vT}")
        a(f"v_and_b32 v{vT}, 3, v0")
        a(f"v_lshl_add_u32 v{vX1s}, v{vT}, 4, v{vX1s}")
        a(f"s_lshl_b32 s{sT0}, s{sWAVE}, 16")
        a(f"s_lshl_b32 s{sT1}, s{sMEMB}, 6")
        a(f"s_add_u32 s{sT0}, s{sT0}, s{sT1}")
        a(f"v_add_u32 v{vX1s}, s{sT0}, v{vX1s}")
        a(f"s_lshl_b32 s{sT2}, s{sMEMB}, 2")
        a(f"s_add_u32 s{sT2}, s{sT2}, s{sWAVE}")
        a(f"s_lshl_b32 s{sT0}, s{sT2}, 11")
        a(f"v_add_u32 v{vX1l}, s{sT0}, v{vL16}")
        a(f"v_lshlrev_b32 v{vX2s}, 4, v{g_}")
        a(f"v_lshl_add_u32 v{vX2s}, v{n_}, 2, v{vX2s}")
        a(f"s_lshl_b32 s{sT0}, s{sT2}, 6")
        a(f"v_add_u32 v{vX2s}, s{sT0}, v{vX2s}")
        a(f"v_mov_b32 v{vT}, {OOB:#x}")
        a(f"v_cmp_gt_u32 vcc, 4, v{n_}")
        a(f"v_cndmask_b32 v{vX2s}, v{vT}, v{vX2s}, vcc")
        a(f"v_and_b32 v100, 3, v0")
        a(f"v_lshlrev_b32 v100, 1, v100")
        a(f"v_lshl_add_u32 v100, v{g_}, 10, v100")
        a(f"v_and_b32 v104, 3, v0")
        a(f"v_bfe_u32 v105, v0, 2, 2")
        a(f"v_lshl_add_u32 v104, v104, 2, v105")
        a(f"v_and_b32 v105, 1, v104")
        a(f"v_lshlrev_b32 v105, 4, v105")
        a(f"v_mov_b32 v106, 0x3f80")
        a(f"v_lshlrev_b32 v105, v105, v106")
        a(f"v_lshrrev_b32 v104, 1, v104")
        for e in range(4):
            a(f"v_cmp_eq_u32 vcc, {e}, v104")
            a(f"v_cndmask_b32 v{108+e}, 0, v105, vcc")
        a(f"v_and_b32 v104, 0xf0, v{vL16}")
        a(f"v_add_u32 v104, {CST}, v104")
        a(f"ds_write_b128 v104, v[108:111]")
        a(f"ds_write_b128 v104, v[112:115] offset:256")
        a(f"ds_write_b128 v104, v[116:119] offset:512")
        for e in range(4): a(f"v_mov_b32 v{120+e}, 0x3f803f80")
        for e in range(4): a(f"v_mov_b32 v{124+e}, 0x3f003f00")
        a(f"ds_write_b128 v104, v[120:123] offset:768")
        a(f"ds_write_b128 v104, v[124:127] offset:1024")
        a(f"s_and_b32 s{sT0}, s{sT2}, 1")
        a(f"s_lshl_b32 s{sT0}, s{sT0}, 12")
        a(f"s_lshr_b32 s{sT1}, s{sT2}, 4")
        a(f"s_lshl_b32 s{sT1}, s{sT1}, 7")
        a(f"s_add_u32 s{sT0}, s{sT0}, s{sT1}")
        a(f"s_bfe_u32 s{sT1}, s{sT2}, 0x10001")
        a(f"s_lshl_b32 s{sT1}, s{sT1}, 5")
        a(f"s_add_u32 s{sT0}, s{sT0}, s{sT1}")
        a(f"s_bfe_u32 s{sT1}, s{sT2}, 0x20002")
        a(f"s_lshl_b32 s{sT1}, s{sT1}, 3")
        a(f"s_add_u32 s{sT0}, s{sT0}, s{sT1}")
        set_srd(a, sIN, sMEM0, 8192)
        a(f"buffer_load_ushort v101, v100, s[{sIN}:{sIN+3}], s{sT0} offen")
        a(f"buffer_load_ushort v102, v100, s[{sIN}:{sIN+3}], s{sT0} offen offset:64")
        a(f"s_mov_b32 s{sStep}, 0")
        a(f"s_mov_b32 s{sTag}, 0")
        a(f"s_lshl_b32 s{sT0}, s{sLAY}, 14")
        a(f"s_add_u32 s{sX2st}, s{sT0}, {OFF_X2:#x}")
        a(f"s_add_u32 s{sX2re}, s{sX2st}, 8192")
        a(f"s_lshl_b32 s{sT0}, s{sWAVE}, 11")
        a(f"s_add_u32 s{sX2l}, s{sT0}, s{sX2st}")
        a(f"s_add_u32 s{sT0}, s{sT0}, {AST}")
        a(f"v_add_u32 v{vAw}, s{sT0}, v{vL16}")
        a(f"s_lshl_b32 s{sT0}, s{sLAY}, 19")
        a(f"s_add_u32 s{sMemOff}, s{sT0}, {OFF_MEM:#x}")
        a(f"s_lshl_b32 s{sT0}, s{sLAY}, 18")
        a(f"s_add_u32 s{sX1a}, s{sT0}, {OFF_X1:#x}")
        a(f"s_add_u32 s{sX1b}, s{sX1a}, 32768")
        a(f"s_lshl_b32 s{sT0}, s{sLAY}, 21")
        a(f"s_lshl_b32 s{sT1}, s{sT2}, 12")
        a(f"s_add_u32 s{sT0}, s{sT0}, s{sT1}")
        a(f"s_add_u32 s{sKVb}, s{sT0}, {OFF_KVR:#x}")
        a(f"s_mov_b32 s{sKV}, s{sKVb}")
        a(f"s_mov_b32 s{sC}, {fbits(128**-0.5*1.4426950408889634):#x}")
        a(f"s_mov_b32 s{sC+1}, s{sC}")
        a("s_waitcnt vmcnt(0)")
        a(f"v_lshl_or_b32 v{vR}, v102, 16, v101")
        a(f"v_min_u32 v{vR}, -2, v{vR}")
        if not cfg.get("noinit"): wait_init(a)
        for i in range(8):
            a(f"ds_read_b128 {vr(RING+4*i,4)}, v{vLdsW} offset:{i*1024}")
        a(f"v_mov_b32 v{vOnes}, -1")
        for f in range(4): a(f"v_mov_b32 v{Kx+4*f}, -1")
        a(f"s_lshl_b32 s{sKVL}, s{sWAVE}, 12")
        a(f"s_add_u32 s{sKVL}, s{sKVL}, {KVL}")
        a(f"s_mov_b32 m0, s{sKVL}")
        a("s_waitcnt vmcnt(0) lgkmcnt(0)")
        if cfg.get("count_redo"):
            a("s_memrealtime s[70:71]")
            a("s_memtime s[98:99]")
            a("s_waitcnt lgkmcnt(0)")
            a("s_sub_u32 s101, s70, s100")
            a("s_mov_b32 s100, s70")
        if cfg.get("force_global"):
            a("s_branch L_chain_loopG")
        else:
            a(f"s_cmp_eq_u32 s{sLOCAL}, 0")
            a("s_cbranch_scc1 L_chain_loopG")
    W = f"s[{sWS}:{sWS+3}]"
    vq = [(t, jj) for jj in range(8) for t in range(2)]
    vacc = (VACC, VACC + 4)
    def fill_v(n):
        for _ in range(n):
            t, jj = vq.pop(0)
            a(f"v_smfmac_f32_16x16x64_bf16 {vr(vacc[t],4)}, {vr(A+4*jj,4)}, {xr(WV+jj*16+t*8,8)}, v{vIdx}")
    def pad(n):
        for _ in range(n): a(f"v_mov_b32 v{vT}, 0")
    cvt = lambda d, s: a(f"v_cvt_pk_bf16_f32 v{d}, v{s}, v{s+1}")
    mfma = lambda d, x, y, c: a(f"v_mfma_f32_16x16x32_bf16 {vr(d,4)}, {vr(x,4)}, {vr(y,4)}, {vr(c,4) if c is not None else 0}")
    mfma16 = lambda d, x, y: a(f"v_mfma_f32_16x16x16_bf16 {vr(d,4)}, {vr(x,2)}, {vr(y,2)}, {vr(d,4)}")
    two = cfg.get("twoset", True)
    a(".p2align 6")
    a.label(f"L_chain_loop{tag}")
    stamp("top")
    a(f"buffer_store_dword v{vR}, v{vX2s}, {W}, s{sX2st} offen{st}")
    trace(a, cfg, 0, sStep, vT)
    a(f"s_cmp_eq_u32 s{sStep}, 63")
    a(f"s_cbranch_scc1 L_chain_last{tag}")
    def kv_check():
        a(f"v_bitop3_b32 v{vT}, v{Kx}, v{Kx+4}, s{sKT} bitop3:0x7e")
        a(f"v_bitop3_b32 v{VACC}, v{Kx+8}, v{Kx+12}, s{sKT} bitop3:0x7e")
        a(f"v_or_b32 v{vT}, v{vT}, v{VACC}")
        a(f"v_and_b32 v{vT}, 1, v{vT}")
        a(f"v_cmp_ne_u32 vcc, 0, v{vT}")
    a(f"s_bfe_u32 s{sKT}, s{sStep}, 0x10002")
    a("s_waitcnt lgkmcnt(0)")
    kv_check()
    for i in range(8):
        a(f"v_mov_b64 {vr(q0+2*i,2)}, 0")
    a(f"s_cbranch_vccnz L_chain_kvwait{tag}")
    a.label(f"L_chain_kvok{tag}")
    trace(a, cfg, 1, sStep, vT)
    trace(a, cfg, 5, sStep, vT)
    spin_init(a)
    if cfg.get("ack2"): a("s_waitcnt vmcnt(0)")
    pad(cfg.get("d2", 30))
    def x2_issue(r):
        a(f"buffer_load_dwordx4 {vr(r,4)}, v{vL16}, {W}, s{sX2l} offen sc1")
        a(f"buffer_load_dwordx4 {vr(r+4,4)}, v{vL16}, {W}, s{sX2l} offen offset:1024 sc1")
    def x2_check(r, n):
        a(f"s_waitcnt vmcnt({n+1})")
        a(f"v_max3_u32 v{vT}, v{r}, v{r+1}, v{r+2}")
        a(f"s_waitcnt vmcnt({n})")
        a(f"v_max3_u32 v{vT}, v{vT}, v{r+3}, v{r+4}")
        a(f"v_max3_u32 v{vT}, v{vT}, v{r+5}, v{r+6}")
        a(f"v_max_u32 v{vT}, v{vT}, v{r+7}")
        a(f"v_cmp_eq_u32 vcc, -1, v{vT}")
        a(f"ds_write_b128 v{vAw}, {vr(r,4)}")
        a(f"ds_write_b128 v{vAw}, {vr(r+4,4)} offset:1024")
    stamp("x2iss")
    x2_issue(A)
    for i in range(4):
        a(f"v_mov_b64 {vr(VACC+2*i,2)}, 0")
    a(f"s_add_u32 s{sKV}, s{sStep}, 1")
    a(f"s_and_b32 s{sKV}, s{sKV}, 3")
    a(f"s_lshl_b32 s{sKV}, s{sKV}, 19")
    a(f"s_add_u32 s{sKV}, s{sKV}, s{sKVb}")
    if two:
        pad(cfg.get("g2", 30))
        x2_issue(A + 8)
        x2_check(A, 2)
        a(f"s_cbranch_vccnz L_chain_x2b{tag}")
    else:
        x2_check(A, 0)
        a(f"s_cbranch_vccnz L_chain_x2b{tag}")
    a.label(f"L_chain_x2ok{tag}")
    if cfg.get("count_redo"): a(f"s_add_u32 s31, s31, s{sSPIN}")
    stamp("A0")
    kvl = [f"buffer_load_dwordx4 v{vL16}, {W}, s{sKV} offen offset:{f*1024} sc1 lds" for f in range(4)]
    lg = {0: None, 1: None, 2: 5, 3: 8, 4: 4, 5: 4, 6: 4, 7: 2}
    SLo, SHi = RING, RING + 4
    for jj in range(8):
        if jj == 2:
            a(f"buffer_store_dword v{vR}, v{vX2s}, {W}, s{sMemOff} offen sc1")
            stamp("k1done", True)
            a("s_waitcnt vmcnt(1) lgkmcnt(8)")
            a("s_barrier")
            stamp("bar1", True)
            for j2 in range(2, 8, 2):
                a(f"v_xor_b32 v{vT}, {j2*1024}, v{vAw}")
                a(f"ds_read_b128 {vr(A+4*j2,4)}, v{vT}")
                a(f"ds_read_b128 {vr(A+4*j2+4,4)}, v{vT} offset:1024")
            fill_v(4)
        if lg[jj] is not None: a(f"s_waitcnt lgkmcnt({lg[jj]})")
        stamp(f"k{jj}", True)
        Aj = vr(A + 4 * jj, 4)
        s0 = RING + ((2 * jj) % 4) * 8; s1 = s0 + 8
        f0 = 2 * jj + 4
        if jj < 6:
            side = [f"ds_read_b128 {vr(s0,4)}, v{vLdsW} offset:{f0*2048}", f"ds_read_b128 {vr(s0+4,4)}, v{vLdsW} offset:{f0*2048+1024}",
                    f"ds_read_b128 {vr(s1,4)}, v{vLdsW} offset:{f0*2048+2048}", f"ds_read_b128 {vr(s1+4,4)}, v{vLdsW} offset:{f0*2048+3072}"]
        elif jj == 6:
            side = [f"v_and_b32 v{vT}, 0xf0, v{vL16}", f"v_add_u32 v{vT}, {CST}, v{vT}",
                    f"ds_read_b128 {vr(SLo,4)}, v{vT} offset:256", f"ds_read_b128 {vr(SHi,4)}, v{vT} offset:512"]
        else:
            side = [f"buffer_store_dword v{vOnes}, v{vX2s}, {W}, s{sX2re} offen{st}", kvl.pop(0), None, None]
        for acc, wsrc, sd in ((q0, vr(s0, 8), side[0]), (k0, xr(WK + jj * 16, 8), side[1]), (q1, vr(s1, 8), side[2]), (k1, xr(WK + jj * 16 + 8, 8), side[3])):
            a(f"v_smfmac_f32_16x16x64_bf16 {vr(acc,4)}, {Aj}, {wsrc}, v{vIdx}")
            if sd: a(sd)
    stamp("h3end")
    Ap0, Ap1, Dp0, Dp1, X = 72, 76, 80, 84, 88
    cvt(Ap0, q0); cvt(Ap0 + 1, q0 + 2); cvt(Ap0 + 2, k0); cvt(Ap0 + 3, k0 + 2)
    cvt(Ap1, q1); cvt(Ap1 + 1, q1 + 2)
    mfma(Dp0, Ap0, SelT, None)
    cvt(Ap1 + 2, k1); cvt(Ap1 + 3, k1 + 2)
    mfma(Dp1, Ap1, SelT, None)
    a(kvl.pop(0))
    cvt(X, Dp0); cvt(X + 1, Dp0 + 2)
    fill_v(1)
    cvt(X + 2, Dp1); cvt(X + 3, Dp1 + 2)
    Sx0, Sx1, Sm = 32, 36, 40
    mfma(Sx0, Kx, X, None)
    mfma(Sx1, Kx + 4, X, None)
    mfma(Sm, X, X, None)
    a(kvl.pop(0))
    cvt(44, Sx0); cvt(45, Sx0 + 2); cvt(46, Sx1); cvt(47, Sx1 + 2)
    a(f"ds_write2_b64 v{vSwx}, v[44:45], v[46:47] offset0:0 offset1:16")
    cvt(92, Sm); cvt(93, Sm + 2)
    a(f"ds_write_b64 v{vSwm}, v[92:93]")
    stamp("swr")
    fill_v(3)
    a(kvl.pop(0))
    a("s_waitcnt lgkmcnt(0)")
    stamp("swdone", True)
    a("s_barrier")
    stamp("bar2", True)
    a(f"ds_read_b128 v[72:75], v{vSrx}")
    a(f"ds_read_b128 v[80:83], v{vSrm}")
    a(f"ds_read_b128 v[76:79], v{vSrx} offset:256")
    ONES, HALF = 88, 92
    a(f"ds_read_b128 {vr(ONES,4)}, v{vT} offset:768")
    a(f"ds_read_b64 {vr(HALF,2)}, v{vT} offset:1024")
    fill_v(3)
    a("s_waitcnt lgkmcnt(3)")
    mfma(32, SLo, 72, None)
    mfma(36, SelM, 80, None)
    a("s_waitcnt lgkmcnt(2)")
    mfma(32, SHi, 76, 32)
    fill_v(2)
    stamp("sred")
    m, t = 46, 47
    a(f"v_max3_f32 v{m}, v36, v37, v38")
    a(f"v_max3_f32 v{t}, v32, v33, v34")
    a(f"v_max3_f32 v{m}, v{m}, v39, v35")
    a(f"v_max_f32 v{m}, v{m}, v{t}")
    fill_v(1)
    a(f"v_max_f32_dpp v{m}, v{m}, v{m} row_ror:8 row_mask:0xf bank_mask:0xf")
    a(f"v_mov_b32 v{t}, v{m}")
    fill_v(1)
    a(f"v_permlane16_swap_b32 v{m}, v{t}")
    a(f"v_max_f32 v{m}, v{m}, v{t}")
    a(f"v_mov_b32 v{t}, v{m}")
    fill_v(1)
    a(f"v_permlane32_swap_b32 v{m}, v{t}")
    a(f"v_max_f32 v{m}, v{m}, v{t}")
    assert not vq
    a(f"v_mul_f32 v{m}, s{sC}, v{m}")
    for i in range(0, 8, 2):
        a(f"v_pk_fma_f32 {vr(32+i,2)}, {vr(32+i,2)}, s[{sC}:{sC+1}], {vr(m,2)} op_sel_hi:[1,1,0] neg_lo:[0,0,1] neg_hi:[0,0,1]")
    for i in range(8):
        a(f"v_exp_f32 v{32+i}, v{32+i}")
    Bx, Pm, vp = 40, 44, 84
    cvt(Bx, 32); cvt(Bx + 1, 34); cvt(Bx + 2, 32); cvt(Bx + 3, 34)
    cvt(Pm, 36); cvt(Pm + 1, 38)
    a(f"v_mov_b32_dpp v{Bx+2}, v{Bx} row_ror:8 row_mask:0xf bank_mask:0x3")
    a(f"v_mov_b32_dpp v{Bx+3}, v{Bx+1} row_ror:8 row_mask:0xf bank_mask:0x3")
    a(f"v_mov_b32_dpp v{Bx}, v{Bx} row_ror:8 row_mask:0xf bank_mask:0xc")
    a(f"v_mov_b32_dpp v{Bx+1}, v{Bx+1} row_ror:8 row_mask:0xf bank_mask:0xc")
    a("s_waitcnt lgkmcnt(0)")
    stamp("pready")
    a(f"v_mfma_f32_16x16x16_bf16 v[32:35], {vr(HALF,2)}, {vr(Pm,2)}, 0")
    cvt(vp, vacc[0]); cvt(vp + 1, vacc[0] + 2)
    mfma(32, ONES, Bx, 32)
    cvt(vp + 2, vacc[1]); cvt(vp + 3, vacc[1] + 2)
    mfma(72, Vx, Bx, None)
    mfma(76, Vx + 4, Bx, None)
    mfma16(72, vp, Pm)
    mfma16(76, vp + 2, Pm)
    a(f"v_rcp_f32 v32, v32")
    OF, WA = 96, 112
    for i in range(3):
        a(f"v_mov_b64 {vr(WA+2*i,2)}, 0")
    for i in range(4):
        a(f"v_cndmask_b32 v{72+i}, v{72+i}, v{76+i}, s[{sMaskHi}:{sMaskHi+1}]")
    a(f"v_pk_mul_f32 v[72:73], v[72:73], v[32:33] op_sel_hi:[1,0]")
    a(f"v_pk_mul_f32 v[74:75], v[74:75], v[32:33] op_sel_hi:[1,0]")
    cvt(80, 72); cvt(81, 74)
    a(f"ds_write_b64 v{vOw}, v[80:81]")
    stamp("owr")
    for i in range(3, 8):
        a(f"v_mov_b64 {vr(WA+2*i,2)}, 0")
    a("s_waitcnt vmcnt(4) lgkmcnt(0)")
    stamp("owdone", True)
    a("s_barrier")
    stamp("bar3", True)
    for wp in range(4):
        a(f"ds_read_b128 {vr(OF+4*wp,4)}, v{vOr} offset:{wp*512}")
    a(f"ds_read_b128 v[40:43], v{vT}")
    a(f"s_add_u32 s{sStep}, s{sStep}, 1")
    a(f"s_add_u32 s{sMemOff}, s{sMemOff}, 8192")
    a(f"s_xor_b32 s{sX2st}, s{sX2st}, 8192")
    a(f"s_xor_b32 s{sX2re}, s{sX2re}, 8192")
    a(f"s_xor_b32 s{sX2l}, s{sX2l}, 8192")
    spin_init(a)
    def pack(U):
        d = 32 + 4 * U; s = WA + 8 * U
        return [f"v_cvt_pk_bf16_f32 v{d}, v{s}, v{s+1}", f"v_cvt_pk_bf16_f32 v{d+1}, v{s+2}, v{s+3}",
                f"v_and_or_b32 v{d}, v{d}, -2, s{sTag}",
                f"v_cvt_pk_bf16_f32 v{d+2}, v{s+4}, v{s+5}", f"v_cvt_pk_bf16_f32 v{d+3}, v{s+6}, v{s+7}",
                f"buffer_store_dwordx4 {vr(d,4)}, v{vX1s}, {W}, s{sX1a if U == 0 else sX1b} offen{st}"]
    p0 = pack(0); p1 = pack(1)
    n = 0
    for ac in range(4):
        for wp in range(4):
            if ac == 0: a(f"s_waitcnt lgkmcnt({4-wp})")
            a(f"v_smfmac_f32_16x16x64_bf16 {vr(WA+4*ac,4)}, {vr(OF+4*wp,4)}, {vr(WO+(ac*4+wp)*8,8)}, v{vIdx}")
            n += 1
            stamp(f"wo{n}", True)
            if n in (7, 8, 9, 11, 12, 13): a(p0.pop(0))
            if n in (15, 16): a(p1.pop(0))
    a(p1.pop(0))
    for i in range(4):
        a(f"ds_read_b128 {vr(RING+4*i,4)}, v{vLdsW} offset:{i*1024}")
    for x in p1: a(x)
    stamp("x1st")
    for i in range(4, 8):
        a(f"ds_read_b128 {vr(RING+4*i,4)}, v{vLdsW} offset:{i*1024}")
    a("s_waitcnt vmcnt(2)")
    a(f"v_add_u32 v{vT}, s{sKVL}, v{vL16}")
    for f in range(4):
        a(f"ds_read_b128 {vr(Kx+4*f,4)}, v{vT} offset:{f*1024}")
    if cfg.get("ack1"): a("s_waitcnt vmcnt(0)")
    pad(cfg.get("d1", 30))
    def x1_issue(r):
        a(f"buffer_load_dwordx4 {vr(r,4)}, v{vX1l}, {W}, s{sX1a} offen sc1")
        a(f"buffer_load_dwordx4 {vr(r+4,4)}, v{vX1l}, {W}, s{sX1a} offen offset:1024 sc1")
    def x1_check(r, n):
        a(f"s_waitcnt vmcnt({n+1})")
        mfma(104, 40, r, None)
        a(f"s_waitcnt vmcnt({n})")
        mfma(104, 40, r + 4, 104)
        a(f"v_bitop3_b32 v{vT}, v{r}, v{r+4}, s{sTag} bitop3:0x7e")
        a(f"v_and_b32 v{vT}, 1, v{vT}")
        a(f"v_cmp_ne_u32 vcc, 0, v{vT}")
    stamp("x1iss")
    x1_issue(96)
    a("s_waitcnt lgkmcnt(12)")
    if two:
        pad(cfg.get("g1", 35))
        x1_issue(112)
        x1_check(96, 2)
    else:
        x1_check(96, 0)
    a(f"s_cbranch_vccnz L_chain_x1b{tag}")
    a.label(f"L_chain_x1ok{tag}")
    stamp("x1ok")
    if cfg.get("count_redo"):
        a(f"s_lshl_b32 s{sT0}, s{sSPIN}, 16")
        a(f"s_add_u32 s31, s31, s{sT0}")
    a(f"s_xor_b32 s{sTag}, s{sTag}, 1")
    a(f"v_add_f32_dpp v104, v104, v104 row_ror:4 row_mask:0xf bank_mask:0xf")
    a(f"v_add_f32_dpp v105, v105, v105 row_ror:4 row_mask:0xf bank_mask:0xf")
    a(f"v_add_f32_dpp v104, v104, v104 row_ror:8 row_mask:0xf bank_mask:0xf")
    a(f"v_add_f32_dpp v105, v105, v105 row_ror:8 row_mask:0xf bank_mask:0xf")
    a(f"v_cvt_pk_bf16_f32 v{vR}, v104, v105")
    a(f"v_min_u32 v{vR}, -2, v{vR}")
    if stamp.on:
        a(f"s_cmp_eq_u32 s{sStep}, {cfg.get('stamp_step', 40)}")
        a(f"s_cbranch_scc0 L_chain_loop{tag}")
        a("s_waitcnt lgkmcnt(0)")
        a(f"s_lshl_b32 s{sT0}, s{sMEMB}, 2")
        a(f"s_add_u32 s{sT0}, s{sT0}, s{sWAVE}")
        a(f"s_lshl_b32 s{sT1}, s{sLAY}, 7")
        a(f"s_add_u32 s{sT0}, s{sT0}, s{sT1}")
        a(f"s_lshl_b32 s{sT0}, s{sT0}, 6")
        a(f"s_add_u32 s{sT0}, s{sT0}, {OFF_STAMP:#x}")
        a(f"v_mov_b32 v108, 0")
        for i in range(stamp.n):
            a(f"v_mov_b32 v109, s{stamp.base+2*i}")
            a(f"buffer_store_dword v109, v108, {W}, s{sT0} offen offset:{4*i}")
        cfg["stamp_names"] = stamp.names
    a(f"s_branch L_chain_loop{tag}")
    a.label(f"L_chain_x1b{tag}")
    x1_issue(96)
    spin_tick(a)
    if two:
        x1_check(112, 2)
        a(f"s_cbranch_vccz L_chain_x1ok{tag}")
        x1_issue(112)
        spin_tick(a)
        x1_check(96, 2)
    else:
        x1_check(96, 0)
    a(f"s_cbranch_vccz L_chain_x1ok{tag}")
    a(f"s_branch L_chain_x1b{tag}")
    a.label(f"L_chain_x2b{tag}")
    x2_issue(A)
    spin_tick(a)
    if two:
        x2_check(A + 8, 2)
        a(f"s_cbranch_vccz L_chain_x2c{tag}")
        x2_issue(A + 8)
        spin_tick(a)
        x2_check(A, 2)
    else:
        x2_check(A, 0)
    a(f"s_cbranch_vccz L_chain_x2ok{tag}")
    a(f"s_branch L_chain_x2b{tag}")
    if two:
        a.label(f"L_chain_x2c{tag}")
        for i in range(4):
            a(f"v_mov_b64 {vr(A+2*i,2)}, {vr(A+8+2*i,2)} ; sameval")
        a(f"s_branch L_chain_x2ok{tag}")
    a.label(f"L_chain_last{tag}")
    if cfg.get("count_redo"):
        a("s_memrealtime s[70:71]")
        a("s_memtime s[72:73]")
        a(f"s_lshl_b32 s{sT0}, s{sMEMB}, 2")
        a(f"s_add_u32 s{sT0}, s{sT0}, s{sWAVE}")
        a(f"s_lshl_b32 s{sT1}, s{sLAY}, 7")
        a(f"s_add_u32 s{sT0}, s{sT0}, s{sT1}")
        a(f"s_lshl_b32 s{sT0}, s{sT0}, 6")
        a(f"s_add_u32 s{sT0}, s{sT0}, {OFF_STAMP:#x}")
        a(f"v_mov_b32 v108, 0")
        a("s_waitcnt lgkmcnt(0)")
        a(f"s_sub_u32 s70, s70, s100")
        a(f"s_sub_u32 s72, s72, s98")
        for i, r in enumerate((72, 31, 70, 101)):
            a(f"v_mov_b32 v109, s{r}")
            a(f"buffer_store_dword v109, v108, {W}, s{sT0} offen offset:{48+4*i}")
    a(f"buffer_store_dword v{vR}, v{vX2s}, {W}, s{sMemOff} offen sc1")
    a("s_waitcnt vmcnt(0) lgkmcnt(0)")
    a("s_branch L_done")
    a.label(f"L_chain_kvwait{tag}")
    spin_init(a)
    lab = a.newlab("L_kvspin")
    a.label(lab)
    for f in range(4):
        a(f"buffer_load_dwordx4 {vr(Kx+4*f,4)}, v{vL16}, {W}, s{sKV} offen offset:{f*1024} sc1")
    spin_tick(a)
    a("s_waitcnt vmcnt(0)")
    kv_check()
    a(f"s_cbranch_vccz L_chain_kvok{tag}")
    a("s_sleep 4")
    a(f"s_branch {lab}")
```

```python
from asmlib import *
from layout import *
import struct

KNAME = "interleave_layers__memory_aug_recurrent_mem_tr__sliding_local_dilated__prompt_kernel"

sX, sMEM0, sWQ, sWK, sWV, sWO = 4, 6, 8, 10, 12, 14
sWB, sWBO, sOUT, sDBG, sWSP = 20, 22, 24, 26, 28
sWS = 32
sWT = 36
sIN = 40
sGRP, sMEMB, sWAVE, sLAY = 44, 45, 46, 47
sSPIN = 30
sLOCAL = 3
sSIG = 2
sT0, sT1, sT2, sT3 = 48, 49, 50, 51
sFB = 52
sFV = 54
SPIN_MAX = 1 << 19
OOB = 0x80000000

def fbits(x):
    return struct.unpack("<I", struct.pack("<f", x))[0]

def set_srd(a, srd, ptr, nbytes):
    a(f"s_mov_b32 s{srd}, s{ptr}")
    a(f"s_mov_b32 s{srd+1}, s{ptr+1}")
    a(f"s_mov_b32 s{srd+2}, {nbytes:#x}")
    a(f"s_mov_b32 s{srd+3}, 0x20000")

def spin_init(a):
    a(f"s_mov_b32 s{sSPIN}, 0")

def spin_tick(a):
    a(f"s_add_u32 s{sSPIN}, s{sSPIN}, 1")
    a(f"s_cmp_gt_u32 s{sSPIN}, {SPIN_MAX}")
    a("s_cbranch_scc1 L_exit")

class Stamps:
    def __init__(self, a, on, base=70, only=None):
        self.a = a; self.on = on; self.base = base; self.n = 0; self.names = []; self.only = only
    def __call__(self, name, extra=False):
        if not self.on: return
        if self.only is None and extra: return
        if self.only is not None and name not in self.only: return
        r = self.base + 2 * self.n
        self.names.append(name); self.n += 1
        assert r + 1 < 92
        self.a(f"s_memtime s[{r}:{r+1}]")

def wait_init(a):
    lab = a.newlab("L_winit"); done = a.newlab("L_wdone")
    a(f"s_cmp_lg_u32 s{sWAVE}, 0")
    a(f"s_cbranch_scc1 {done}")
    spin_init(a)
    a.label(lab)
    a(f"s_load_dwordx2 s[{sFB}:{sFB+1}], s[{sDBG}:{sDBG+1}], 0x80 glc")
    spin_tick(a)
    a("s_waitcnt lgkmcnt(0)")
    a(f"s_add_u32 s{sFV}, s{sFB}, s{sFB+1}")
    a(f"s_cmp_ge_u32 s{sFV}, {128+256}")
    a(f"s_cbranch_scc1 {done}")
    a("s_sleep 12")
    a(f"s_branch {lab}")
    a.label(done)
    a("s_barrier")
    a(f"s_lshl_b32 s{sFV}, s{sGRP}, 4")
    a(f"s_load_dword s{sFV}, s[{sDBG}:{sDBG+1}], s{sFV} glc")
    a("s_waitcnt lgkmcnt(0)")
    a(f"s_cmp_ge_u32 s{sFV}, 32")
    a(f"s_cselect_b32 s{sLOCAL}, 1, 0")

def signal_init(a):
    lab = a.newlab("L_sig")
    a(f"s_cmp_lg_u32 s{sSIG}, 0")
    a(f"s_cbranch_scc1 {lab}")
    a(f"s_mov_b32 s{sSIG}, 1")
    a(f"s_atomic_add s{sSIG}, s[{sDBG}:{sDBG+1}], 0x80")
    a("s_waitcnt lgkmcnt(0)")
    a.label(lab)

def sel_consts(a, vlane, tmp, selM=None, selLo=None, selHi=None, selT=None):
    t0, t1, t2, t3 = tmp, tmp + 1, tmp + 2, tmp + 3
    a(f"v_and_b32 v{t0}, 1, v{vlane}")
    a(f"v_lshlrev_b32 v{t0}, 4, v{t0}")
    a(f"v_mov_b32 v{t1}, 0x3f80")
    a(f"v_lshlrev_b32 v{t0}, v{t0}, v{t1}")
    a(f"v_bfe_u32 v{t1}, v{vlane}, 1, 2")
    a(f"v_bfe_u32 v{t2}, v{vlane}, 3, 1")
    for e in range(4):
        a(f"v_cmp_eq_u32 vcc, {e}, v{t1}")
        a(f"v_cndmask_b32 v{t3}, 0, v{t0}, vcc")
        if selM is not None: a(f"v_mov_b32 v{selM+e}, v{t3}")
        if selLo is not None:
            a(f"v_cmp_eq_u32 vcc, 0, v{t2}")
            a(f"v_cndmask_b32 v{selLo+e}, 0, v{t3}, vcc")
        if selHi is not None:
            a(f"v_cmp_eq_u32 vcc, 1, v{t2}")
            a(f"v_cndmask_b32 v{selHi+e}, 0, v{t3}, vcc")
    if selT is not None:
        a(f"v_bfe_u32 v{t1}, v{vlane}, 2, 1")
        a(f"v_bfe_u32 v{t3}, v{vlane}, 4, 1")
        a(f"v_cmp_eq_u32 vcc, v{t1}, v{t3}")
        a(f"v_cndmask_b32 v{t0}, 0, v{t0}, vcc")
        a(f"v_bfe_u32 v{t1}, v{vlane}, 1, 1")
        a(f"v_lshl_add_u32 v{t1}, v{t2}, 1, v{t1}")
        for e in range(4):
            a(f"v_cmp_eq_u32 vcc, {e}, v{t1}")
            a(f"v_cndmask_b32 v{selT+e}, 0, v{t0}, vcc")

def smf_index(a, vlane, vidx, tmp):
    a(f"v_mov_b32 v{vidx}, 0x44444444")
    a(f"v_mov_b32 v{tmp}, 0xeeeeeeee")
    a(f"v_and_b32 v{tmp+1}, 8, v{vlane}")
    a(f"v_cmp_ne_u32 vcc, 0, v{tmp+1}")
    a(f"v_cndmask_b32 v{vidx}, v{vidx}, v{tmp}, vcc")

def load_chunks(a, chunks, sLdsBase, nslots=8):
    def issue(c):
        ch = chunks[c]; slot = c % nslots
        ch["setup"]()
        a(f"s_add_u32 m0, s{sLdsBase}, {slot*4096}")
        for q in range(4):
            if q: a(f"s_add_u32 s{sT0}, s{sT0}, {ch['dstep']-1024}")
            a(f"buffer_load_dwordx4 v{ch['vdma']}, s[{sWT}:{sWT+3}], s{sT0} offen offset:{q*1024} lds")
    n = len(chunks)
    for c in range(min(nslots, n)): issue(c)
    for c in range(n):
        inflight = min(nslots, n - c)
        a(f"s_waitcnt vmcnt({4*(inflight-1)})")
        chunks[c]["consume"]((c % nslots) * 4096)
        if c + nslots < n: issue(c + nslots)

def qkv_dma_addr(a, vlane, vdst, tmp, rowbytes):
    a(f"v_bfe_u32 v{tmp}, v{vlane}, 2, 1")
    a(f"v_lshlrev_b32 v{vdst}, 5, v{tmp}")
    a(f"v_bfe_u32 v{tmp}, v{vlane}, 3, 1")
    a(f"v_lshl_add_u32 v{vdst}, v{tmp}, 4, v{vdst}")
    a(f"v_bfe_u32 v{tmp}, v{vlane}, 4, 2")
    a(f"v_add_u32 v{vdst}, v{vdst}, v{tmp}")
    a(f"v_mul_u32_u24 v{vdst}, {rowbytes}, v{vdst}")
    a(f"v_and_b32 v{tmp}, 3, v{vlane}")
    a(f"v_lshl_add_u32 v{vdst}, v{tmp}, 4, v{vdst}")

def qkv_tr_addr(a, vlane, vdst, tmp, sLdsBase):
    a(f"v_lshrrev_b32 v{tmp}, 4, v{vlane}")
    a(f"v_lshlrev_b32 v{vdst}, 9, v{tmp}")
    a(f"v_bfe_u32 v{tmp}, v{vlane}, 2, 2")
    a(f"v_lshl_add_u32 v{vdst}, v{tmp}, 6, v{vdst}")
    a(f"v_and_b32 v{tmp}, 3, v{vlane}")
    a(f"v_lshl_add_u32 v{vdst}, v{tmp}, 3, v{vdst}")
    a(f"v_add_u32 v{vdst}, s{sLdsBase}, v{vdst}")

def qkv_tr_reads(a, vaddr, slotoff, dst0, dst1):
    for t, dst in ((0, dst0), (1, dst1)):
        for e4 in range(4):
            off = slotoff + (32 * (e4 >> 1) + 4 * (e4 & 1)) * 64 + t * 32
            a(f"ds_read_b64_tr_b16 {xr(dst+2*e4,2)}, v{vaddr} offset:{off}")

def poll_flags(a, vtmp, voff, soff, sleep=2):
    lab = a.newlab("L_pf"); done = a.newlab("L_pfd")
    spin_init(a)
    a.label(lab)
    a(f"buffer_load_dword v{vtmp}, v{voff}, s[{sWS}:{sWS+3}], s{soff} offen sc1")
    spin_tick(a)
    a("s_waitcnt vmcnt(0)")
    a(f"v_cmp_eq_u32 vcc, 0, v{vtmp}")
    a(f"s_cbranch_vccz {done}")
    if sleep: a(f"s_sleep {sleep}")
    a(f"s_branch {lab}")
    a.label(done)

def set_flag(a, vone, soff, imm=0, mod=" sc1"):
    a("s_mov_b64 exec, 1")
    a(f"buffer_store_dword v{vone}, off, s[{sWS}:{sWS+3}], s{soff} offset:{imm}{mod}")
    a("s_mov_b64 exec, -1")

def xlane_g(a, op, m, t):
    a(f"v_mov_b32 v{t}, v{m}")
    a(f"v_permlane16_swap_b32 v{m}, v{t}")
    a(f"{op} v{m}, v{m}, v{t}")
    a(f"v_mov_b32 v{t}, v{m}")
    a(f"v_permlane32_swap_b32 v{m}, v{t}")
    a(f"{op} v{m}, v{m}, v{t}")

def dump_stamps(a, stamp, cfg, row_sgpr_calc):
    a("s_waitcnt lgkmcnt(0)")
    row_sgpr_calc()
    a(f"s_lshl_b32 s{sT0}, s{sT0}, 6")
    a(f"s_add_u32 s{sT0}, s{sT0}, {OFF_STAMP:#x}")
    for i in range(stamp.n):
        a(f"v_mov_b32 v127, s{stamp.base+2*i}")
        a(f"buffer_store_dword v127, off, s[{sWS}:{sWS+3}], s{sT0} offset:{4*i}")
    a("s_waitcnt vmcnt(0)")
    cfg["stamp_names"] = stamp.names

sTR = 68
def trace_setup(a, cfg):
    if not cfg.get("trace"): return
    a(f"s_lshl_b32 s{sTR}, s{sGRP}, 7")
    a(f"s_lshl_b32 s{sTR+1}, s{sMEMB}, 2")
    a(f"s_add_u32 s{sTR}, s{sTR}, s{sTR+1}")
    a(f"s_add_u32 s{sTR}, s{sTR}, s{sWAVE}")
    a(f"s_lshl_b32 s{sTR}, s{sTR}, 11")
    a(f"s_add_u32 s{sTR}, s{sTR}, {OFF_STAMP+0x20000:#x}")
def trace(a, cfg, ev, sidx, vtmp):
    if not cfg.get("trace"): return
    if ev == 5 and not cfg.get("trace_clk"): return
    if cfg.get("trace_only") is not None and ev not in cfg["trace_only"]: return
    if ev != 7:
        a("s_waitcnt lgkmcnt(0)")
        a(f"v_mov_b32 v{vtmp}, s100")
        a(f"buffer_store_dword v{vtmp}, off, s[{sWS}:{sWS+3}], s{sTR+1}")
    if ev == 8: return
    a("s_memtime s[100:101]" if ev == 5 else "s_memrealtime s[100:101]")
    if sidx is None: a(f"s_add_u32 s{sTR+1}, s{sTR}, {ev*256}")
    else:
        a(f"s_and_b32 s{sTR+1}, s{sidx}, 63")
        a(f"s_lshl_b32 s{sTR+1}, s{sTR+1}, 2")
        a(f"s_add_u32 s{sTR+1}, s{sTR+1}, s{sTR}")
        if ev: a(f"s_add_u32 s{sTR+1}, s{sTR+1}, {ev*256}")

def late_start(a, cfg):
    if cfg.get("noinit") or cfg.get("nolate"): return
    skip = a.newlab("L_nolate"); lab = a.newlab("L_late"); done = a.newlab("L_lated")
    a(f"s_cmp_eq_u32 s{sLAY}, 0")
    a(f"s_cbranch_scc1 {skip}")
    a(f"s_cmp_lg_u32 s{sWAVE}, 0")
    a(f"s_cbranch_scc1 {done}")
    spin_init(a)
    a.label(lab)
    a(f"s_load_dword s{sFV}, s[{sDBG}:{sDBG+1}], 0xc4 glc")
    a(f"s_add_u32 s{sSPIN}, s{sSPIN}, 1")
    a(f"s_cmp_gt_u32 s{sSPIN}, 200")
    a(f"s_cbranch_scc1 {done}")
    a("s_waitcnt lgkmcnt(0)")
    a(f"s_cmp_ge_u32 s{sFV}, {cfg.get('late_n', 32)}")
    a(f"s_cbranch_scc1 {done}")
    a("s_sleep 12")
    a(f"s_branch {lab}")
    a.label(done)
    a("s_waitcnt lgkmcnt(0)")
    a("s_barrier")
    a.label(skip)

def late_signal(a, cfg):
    if cfg.get("noinit") or cfg.get("nolate"): return
    lab = a.newlab("L_lsig")
    a(f"s_or_b32 s{sT0}, s{sLAY}, s{sWAVE}")
    a(f"s_cbranch_scc1 {lab}")
    a(f"s_mov_b32 s{sT0}, 1")
    a(f"s_atomic_add s{sT0}, s[{sDBG}:{sDBG+1}], 0xc4")
    a("s_waitcnt lgkmcnt(0)")
    a.label(lab)

def warm_weights(a, cfg, share, nshare):
    if cfg.get("noinit") or cfg.get("nowarm"): return
    a("v_lshlrev_b32 v100, 4, v0")
    n = 0
    per = 0x400000 // (nshare * 32 * 4096)
    for ptr in (sWK, sWV, sWO, sWQ):
        set_srd(a, sWT, ptr, 0x400000)
        a(f"s_lshl_b32 s{sT0}, s{sMEMB}, 12")
        a(f"s_add_u32 s{sT0}, s{sT0}, {share * 32 * 4096}")
        for i in range(per):
            if i: a(f"s_add_u32 s{sT0}, s{sT0}, {nshare * 32 * 4096}")
            if n >= 32: a("s_waitcnt vmcnt(31)")
            a(f"buffer_load_dwordx4 {ar((n % 32) * 4, 4)}, v100, s[{sWT}:{sWT+3}], s{sT0} offen")
            n += 1
    a("s_waitcnt vmcnt(0)")
```

```python
from gen_common import *

def role_wa(a, cfg):
    stamp = Stamps(a, cfg.get("stamp") == "wa", base=4, only=cfg.get("only"))
    W = f"s[{sWS}:{sWS+3}]"
    vL16, vIdx, vF8, vOne, vHw, vHr, vT, vT2 = 1, 2, 3, 4, 5, 6, 7, 8
    vKMw, vVr, vNeg = 9, 10, 11
    Sel16 = 12
    XR = 16
    KA, VA, QA = 40, 56, 72
    PK = 88
    WQ, WK, WV = 128, 256, 384
    sI, sSeg, sXn, sFl, sKVo, sMem, sO, sFlA, sHold, sLds, sPar, sC = 55, 56, 57, 58, 59, 60, 61, 62, 63, 66, 67, 96
    sMask = 76
    XN, HOLD, KM, VM = 0, 0x10000, 0x1C000, 0x1D000
    cvt = lambda d, s: a(f"v_cvt_pk_bf16_f32 v{d}, v{s}, v{s+1}")
    def mfma(d, x, y, c):
        a(f"v_mfma_f32_16x16x32_bf16 {vr(d,4)}, {xr(x,4)}, {xr(y,4)}, {vr(c,4) if c is not None else 0}")
    a.label("L_wa")
    a(f"s_mov_b32 s{sPar}, s{sT3}")
    a("v_and_b32 v0, 63, v0")
    a(f"v_lshlrev_b32 v{vL16}, 4, v0")
    a(f"s_lshl_b32 s{sLds}, s{sWAVE}, 15")
    vD, vTR = 96, 97
    qkv_dma_addr(a, 0, vD, vT, 8192)
    qkv_tr_addr(a, 0, vTR, vT, sLds)
    a(f"s_lshl_b32 s{sT2}, s{sMEMB}, 8")
    a(f"s_lshl_b32 s{sT1}, s{sWAVE}, 6")
    a(f"s_add_u32 s{sT2}, s{sT2}, s{sT1}")
    late_start(a, cfg)
    chunks = []
    for ptr, base in ((sWK, WK), (sWV, WV), (sWQ, WQ)):
        for jj in range(8):
            def setup(ptr=ptr, jj=jj):
                if jj == 0: set_srd(a, sWT, ptr, 0x400000)
                a(f"s_add_u32 s{sT0}, s{sT2}, {jj << 19}")
            def consume(so, jj=jj, base=base):
                qkv_tr_reads(a, vTR, so, base + jj * 16, base + jj * 16 + 8)
                a("s_waitcnt lgkmcnt(0)")
            chunks.append(dict(setup=setup, vdma=vD, dstep=4 * 8192, consume=consume))
    load_chunks(a, chunks, sLds)
    late_signal(a, cfg)
    trace(a, cfg, 6, None, vT)
    wfrag = lambda base, ks, t: base + (ks >> 1) * 16 + t * 8 + (ks & 1) * 4
    smf_index(a, 0, vIdx, 96)
    a(f"v_and_b32 v{vF8}, 7, v0")
    a(f"v_lshlrev_b32 v{vF8}, 2, v{vF8}")
    a(f"v_mov_b32 v{vOne}, 1")
    a(f"v_mov_b32 v{vNeg}, {fbits(-1e9 * 128**0.5):#x}")
    a("v_and_b32 v96, 1, v0")
    a("v_lshlrev_b32 v96, 4, v96")
    a("v_mov_b32 v97, 0x3f80")
    a("v_lshlrev_b32 v96, v96, v97")
    a("v_bfe_u32 v97, v0, 2, 1")
    a("v_bfe_u32 v98, v0, 4, 1")
    a("v_cmp_eq_u32 vcc, v97, v98")
    a("v_cndmask_b32 v96, 0, v96, vcc")
    a("v_bfe_u32 v97, v0, 1, 1")
    for e in range(2):
        a(f"v_cmp_eq_u32 vcc, {e}, v97")
        a(f"v_cndmask_b32 v{Sel16+e}, 0, v96, vcc")
    a(f"s_and_b32 s{sT0}, s{sWAVE}, 1")
    a("v_and_b32 v96, 15, v0")
    a(f"v_lshl_add_u32 v96, v96, 1, s{sT0}")
    a("v_lshrrev_b32 v97, 4, v0")
    a("v_lshlrev_b32 v97, 3, v97")
    for up in range(2):
        for r in range(4):
            a(f"v_add_u32 v98, {2*r+up}, v97")
            a(f"v_cmp_le_u32 s[{sMask+2*(up*4+r)}:{sMask+2*(up*4+r)+1}], v98, v96")
    a(f"s_lshl_b32 s{sT1}, s{sWAVE}, 11")
    a(f"s_add_u32 s{sT1}, s{sT1}, {HOLD}")
    a(f"v_add_u32 v{vHw}, s{sT1}, v{vL16}")
    a(f"s_lshl_b32 s{sT1}, s{sT0}, 10")
    a(f"s_add_u32 s{sT1}, s{sT1}, {HOLD+0x6000}")
    a(f"v_add_u32 v{vHr}, s{sT1}, v{vL16}")
    a(f"s_lshl_b32 s{sT1}, s{sWAVE}, 10")
    a(f"s_add_u32 s{sT1}, s{sT1}, {KM}")
    a(f"v_add_u32 v{vKMw}, s{sT1}, v{vL16}")
    a(f"s_mov_b32 s{sHold}, 0x6000")
    a(f"s_mov_b32 s{sI}, 0")
    a(f"s_lshl_b32 s{sT0}, s{sLAY}, 6")
    a(f"s_add_u32 s{sSeg}, s{sT0}, s{sPar}")
    a(f"s_mov_b32 s{sC}, {fbits(128**-0.5*1.4426950408889634):#x}")
    a(f"s_mov_b32 s{sC+1}, s{sC}")
    if not cfg.get("noinit"): wait_init(a)
    else: a("s_barrier")
    vF = 14
    sPre, sPend, sXnN, sFlN, sTag = 92, 93, 94, 95, 65
    a(f"s_mov_b32 s{sPre}, 0")
    a(f"s_mov_b32 s{sPend}, 0")
    vXr, sXb, sEx = 15, 66, 98
    a(f"s_mov_b32 s{sXb}, 0")
    def xn_setup(sseg):
        a(f"s_lshl_b32 s{sXn}, s{sseg}, 15")
        a(f"s_lshl_b32 s{sXnN}, s{sWAVE}, 13")
        a(f"s_add_u32 s{sXn}, s{sXn}, s{sXnN}")
        a(f"s_add_u32 s{sXn}, s{sXn}, {OFF_XN:#x}")
        a(f"s_add_u32 s{sXnN}, s{sXnN}, s{sXb}")
        a(f"s_mov_b32 m0, s{sXnN}")
    def xn_ops():
        ops = []
        for i in range(8):
            x = []
            if i == 4: x += [f"s_add_u32 m0, s{sXnN}, 4096", f"s_add_u32 s{sXn}, s{sXn}, 4096"]
            x.append(f"buffer_load_dwordx4 v{vL16}, {W}, s{sXn} offen offset:{(i%4)*1024} sc1 lds")
            ops.append(x)
        return ops
    MA = 40
    km, vm = 16, 24
    MQ, MEMB = 116, 0x1E000
    def mem_loads():
        return [f"buffer_load_dwordx4 {vr(MQ+4*jj,4)}, v{vL16}, {W}, s{sMem} offen offset:{jj*1024} sc1" for jj in range(2)]
    a.label("L_wa_loop")
    stamp("top")
    a(f"s_lshl_b32 s{sFl}, s{sSeg}, 11")
    a(f"s_add_u32 s{sFlN}, s{sFl}, 4096")
    a(f"s_sub_u32 s{sT0}, s{sSeg}, 2")
    a(f"s_lshl_b32 s{sMem}, s{sT0}, 13")
    a(f"s_add_u32 s{sMem}, s{sMem}, {OFF_MEM:#x}")
    a(f"s_lshl_b32 s{sT0}, s{sWAVE}, 11")
    a(f"s_add_u32 s{sMem}, s{sMem}, s{sT0}")
    a(f"s_cmp_eq_u32 s{sI}, 32")
    a("s_cbranch_scc1 L_wa_noqkv")
    a(f"s_cmp_eq_u32 s{sPre}, 1")
    a("s_cbranch_scc1 L_wa_pre")
    a(f"s_cmp_eq_u32 s{sPre}, 2")
    a("s_cbranch_scc1 L_wa_E")
    poll_flags(a, vT, vF8, sFl, sleep=1)
    xn_setup(sSeg)
    for x in xn_ops():
        for y in x: a(y)
    a("s_waitcnt vmcnt(0)")
    a.label("L_wa_E")
    a("s_waitcnt vmcnt(1)")
    a.label("L_wa_pre")
    a(f"buffer_load_dword v{vF}, v{vF8}, {W}, s{sFlN} offen sc1")
    a(f"v_add_u32 v{vXr}, s{sXb}, v{vL16}")
    a(f"s_xor_b32 s{sXb}, s{sXb}, 0x8000")
    trace(a, cfg, 0, sSeg, vT)
    a(f"s_and_b32 s{sKVo}, s{sSeg}, 3")
    a(f"s_lshl_b32 s{sT0}, s{sLAY}, 2")
    a(f"s_add_u32 s{sKVo}, s{sKVo}, s{sT0}")
    a(f"s_lshl_b32 s{sKVo}, s{sKVo}, 19")
    a(f"s_bfe_u32 s{sTag}, s{sSeg}, 0x10002")
    a(f"s_lshl_b32 s{sT0}, s{sMEMB}, 2")
    a(f"s_add_u32 s{sT0}, s{sT0}, s{sWAVE}")
    a(f"s_lshl_b32 s{sT1}, s{sT0}, 12")
    a(f"s_add_u32 s{sKVo}, s{sKVo}, s{sT1}")
    a(f"s_add_u32 s{sKVo}, s{sKVo}, {OFF_KVR:#x}")
    a(f"s_lshl_b32 s{sT0}, s{sT0}, 2")
    a(f"s_add_u32 s{sFl}, s{sFl}, s{sT0}")
    a("s_barrier")
    stamp("staged")
    def xread(step):
        sl = XR + (step % 3) * 8; ks = step % 16
        return [f"ds_read_b128 {vr(sl,4)}, v{vXr} offset:{XN+ks*2048}", f"ds_read_b128 {vr(sl+4,4)}, v{vXr} offset:{XN+ks*2048+1024}"]
    for x in xread(0) + xread(1): a(x)
    dq = xn_ops(); KS0 = cfg.get("oflag_ks", 5)
    for ks in range(16):
        sl = XR + (ks % 3) * 8
        rd = xread(ks + 2)
        a("s_waitcnt lgkmcnt(2)")
        c0 = lambda x: None if ks == 0 else x
        for u in range(2):
            for t in range(2):
                mfma(KA + (t * 2 + u) * 4, wfrag(WK, ks, t), sl + 4 * u, c0(KA + (t * 2 + u) * 4))
                if rd: a(rd.pop(0))
            for t in range(2):
                mfma(VA + (u * 2 + t) * 4, sl + 4 * u, wfrag(WV, ks, t), c0(VA + (u * 2 + t) * 4))
                if ks > KS0 and dq and u == 0 and t == 0:
                    x = dq.pop(0)
                    for y in x[:-1]: a(y)
                    a(f"s_mov_b64 exec, s[{sEx}:{sEx+1}]")
                    a(x[-1])
                    a("s_mov_b64 exec, -1")
        if ks == KS0:
            lab = a.newlab("L_nopend")
            a("s_waitcnt vmcnt(0)")
            a(f"v_cmp_eq_u32 vcc, 0, v{vF}")
            a(f"s_cmp_eq_u32 s{sPend}, 0")
            a(f"s_cbranch_scc1 {lab}")
            set_flag(a, vOne, sFlA, F_O)
            a(f"s_mov_b32 s{sPend}, 0")
            if cfg.get("trace"):
                a(f"s_sub_u32 s{sT0}, s{sSeg}, 4")
                trace(a, cfg, 3, sT0, vT)
            a.label(lab)
            a(f"s_add_u32 s{sT0}, s{sSeg}, 2")
            xn_setup(sT0)
            a(f"s_cmp_eq_u64 vcc, 0")
            a(f"s_cselect_b32 s{sPre}, 1, 0")
            a(f"s_cmp_ge_u32 s{sI}, 31")
            a(f"s_cselect_b32 s{sPre}, 0, s{sPre}")
            a(f"s_cmp_eq_u32 s{sPre}, 1")
            a(f"s_cselect_b64 s[{sEx}:{sEx+1}], -1, 0")
    assert not dq
    stamp("kvpass", True)
    side = []
    for u in range(2):
        d = PK + 4 * u
        side += [f"v_cvt_pk_bf16_f32 v{d+2*t+hh}, v{KA+(t*2+u)*4+2*hh}, v{KA+(t*2+u)*4+2*hh+1}" for t in range(2) for hh in range(2)]
        side += [f"v_mov_b32 v{112+u}, v{d}", f"v_and_or_b32 v{d}, v{d}, -2, s{sTag}"]
        side += [f"buffer_store_dwordx4 {vr(d,4)}, v{vL16}, {W}, s{sKVo} offen offset:{u*1024} sc1"]
    for t in range(2):
        d = PK + 8 + 4 * t
        side += [f"v_cvt_pk_bf16_f32 v{d+2*u+hh}, v{VA+(u*2+t)*4+2*hh}, v{VA+(u*2+t)*4+2*hh+1}" for u in range(2) for hh in range(2)]
        side += [f"v_mov_b32 v{114+t}, v{d}", f"v_and_or_b32 v{d}, v{d}, -2, s{sTag}"]
        side += [f"buffer_store_dwordx4 {vr(d,4)}, v{vL16}, {W}, s{sKVo} offen offset:{2048+t*1024} sc1"]
    side += [f"v_mov_b32 v{PK+4*i}, v{112+i}" for i in range(4)]
    late = []
    side = mem_loads() + side
    hw = [f"ds_write_b128 v{vHw}, {vr(PK+4*i,4)} offset:{(0x2000 if i < 2 else 0x4000) + (i%2)*1024}" for i in range(4)]
    nhw = 0
    for ks in range(16):
        k3 = ks + 16
        sl = XR + (k3 % 3) * 8
        rd = xread(k3 + 2) if ks + 2 < 16 else []
        a(f"s_waitcnt lgkmcnt({(2 if ks < 15 else 0) + nhw})")
        nhw = 0
        c0 = lambda x: None if ks == 0 else x
        n = 0
        for u in range(2):
            for t in range(2):
                mfma(QA + (t * 2 + u) * 4, wfrag(WQ, ks, t), sl + 4 * u, c0(QA + (t * 2 + u) * 4))
                n += 1
                if rd: a(rd.pop(0))
                if side and (ks >= 1 or n >= 3):
                    a(side.pop(0))
                    if n == 3 and side: a(side.pop(0))
                elif not side and late and n >= 3: a(late.pop(0))
                elif not side and not late and hw and n == 3: a(hw.pop(0)); nhw += 1
    assert not side and not hw and not late
    trace(a, cfg, 1, sSeg, vT)
    trace(a, cfg, 5, sSeg, vT)
    def q_out():
        for u in range(2):
            d = PK + 16 + 4 * u
            for t in range(2):
                cvt(d + 2 * t, QA + (t * 2 + u) * 4); cvt(d + 2 * t + 1, QA + (t * 2 + u) * 4 + 2)
            a(f"ds_write_b128 v{vHw}, {vr(d,4)} offset:{u*1024}")
    def mem_check(n=0):
        a(f"s_waitcnt vmcnt({n})")
        a(f"v_max3_u32 v{vT}, v{MQ}, v{MQ+1}, v{MQ+2}")
        a(f"v_max3_u32 v{vT}, v{vT}, v{MQ+3}, v{MQ+4}")
        a(f"v_max3_u32 v{vT}, v{vT}, v{MQ+5}, v{MQ+6}")
        a(f"v_max_u32 v{vT}, v{vT}, v{MQ+7}")
        a(f"v_cmp_eq_u32 vcc, -1, v{vT}")
    stamp("qkv")
    mem_check(4)
    q_out()
    a(f"s_cmp_eq_u32 s{sI}, 0")
    a("s_cbranch_scc1 L_wa_first")
    a("s_cbranch_vccz L_wa_memok")
    a("s_branch L_wa_mem0")
    a.label("L_wa_first")
    a("s_waitcnt lgkmcnt(0)")
    a("s_branch L_wa_next")
    a.label("L_wa_noqkv")
    a(f"s_mov_b32 s{sPre}, 0")
    a("s_barrier")
    a.label("L_wa_mem0")
    spin_init(a)
    a.label("L_wa_mem")
    for x in mem_loads(): a(x)
    spin_tick(a)
    mem_check()
    a("s_cbranch_vccz L_wa_memok")
    a(f"s_sleep {cfg.get('mem_sleep', 2)}")
    a("s_branch L_wa_mem")
    a.label("L_wa_memok")
    a(f"s_lshl_b32 s{sT1}, s{sWAVE}, 11")
    a(f"s_add_u32 s{sT1}, s{sT1}, {MEMB}")
    a(f"v_add_u32 v{vT}, s{sT1}, v{vL16}")
    a(f"ds_write_b128 v{vT}, {vr(MQ,4)}")
    a(f"ds_write_b128 v{vT}, {vr(MQ+4,4)} offset:1024")
    for i in range(8): a(f"v_mov_b64 {vr(km+2*i,2)}, 0")
    a(f"v_add_u32 v{vT2}, {MEMB}, v{vL16}")
    a(f"s_and_b32 s{sT0}, s{sWAVE}, 1")
    a(f"s_lshl_b32 s{sT0}, s{sT0}, 10")
    a(f"v_subrev_u32 v{vT}, s{sT0}, v{vHr}")
    a(f"s_sub_u32 s{sT0}, s{sSeg}, 2")
    a("s_waitcnt lgkmcnt(0)")
    a("s_barrier")
    stamp("mem")
    if cfg.get("trace"): trace(a, cfg, 2, sT0, 72)
    for jj in range(8):
        a(f"ds_read_b128 {vr(MA+4*jj,4)}, v{vT2} offset:{jj*1024}")
    for x in [f"s_lshl_b32 s{sO}, s{sT0}, 18", f"s_lshl_b32 s{sT2}, s{sMEMB}, 13", f"s_add_u32 s{sO}, s{sO}, s{sT2}",
              f"s_lshr_b32 s{sT2}, s{sWAVE}, 1", f"s_lshl_b32 s{sT2}, s{sT2}, 12", f"s_add_u32 s{sO}, s{sO}, s{sT2}",
              f"s_and_b32 s{sT2}, s{sWAVE}, 1", f"s_lshl_b32 s{sT2}, s{sT2}, 10", f"s_add_u32 s{sO}, s{sO}, s{sT2}",
              f"s_add_u32 s{sO}, s{sO}, {OFF_O:#x}"]: a(x)
    Qf = 88
    Kf = [32, 36, 104, 108, 112, 116, 120, 124]
    S0, S1, SM_ = 16, 20, 80
    qk = []
    for wp in range(4):
        qk += [f"ds_read_b128 {vr(Qf+4*wp,4)}, v{vHr} offset:{wp*2048}",
               f"ds_read_b128 {vr(Kf[2*wp],4)}, v{vT} offset:{0x2000+wp*2048}",
               f"ds_read_b128 {vr(Kf[2*wp+1],4)}, v{vT} offset:{0x2000+wp*2048+1024}"]
    nq = 0
    for jj in range(8):
        a(f"s_waitcnt lgkmcnt({7-jj+nq})")
        for t in range(2):
            a(f"v_smfmac_f32_16x16x64_bf16 {vr(km+4*t,4)}, {vr(MA+4*jj,4)}, {xr(WK+jj*16+t*8,8)}, v{vIdx}")
            if qk: a(qk.pop(0)); nq += 1
    sx = []
    for wp in range(4):
        c0 = lambda x: None if wp == 0 else x
        sx += [(S0, Kf[2 * wp], Qf + 4 * wp, c0(S0)), (S1, Kf[2 * wp + 1], Qf + 4 * wp, c0(S1))]
    sal = [f"s_lshl_b32 s{sFlA}, s{sT0}, 11", f"s_lshl_b32 s{sT2}, s{sMEMB}, 2", f"s_add_u32 s{sT2}, s{sT2}, s{sWAVE}",
           f"s_lshl_b32 s{sT2}, s{sT2}, 2", f"s_add_u32 s{sFlA}, s{sFlA}, s{sT2}",
           f"s_lshr_b32 s{sT0}, s{sWAVE}, 1", f"s_lshl_b32 s{sT1}, s{sT0}, 12", f"v_add_u32 v{vT}, s{sT1}, v{vT}",
           f"s_lshl_b32 s{sT1}, s{sT0}, 11", f"s_add_u32 s{sT1}, s{sT1}, {VM}"]
    for jj in range(8):
        for t in range(2):
            a(f"v_smfmac_f32_16x16x64_bf16 {vr(vm+4*t,4)}, {vr(MA+4*jj,4)}, {xr(WV+jj*16+t*8,8)}, v{vIdx}")
            if sal and jj not in (1, 4): a(sal.pop(0))
        if jj == 1:
            cvt(72, km); cvt(73, km + 2); cvt(74, km + 4); cvt(75, km + 6)
        if jj == 2:
            a(f"v_mfma_f32_16x16x16_bf16 v[76:79], v[72:73], {vr(Sel16,2)}, 0")
            a(f"v_mfma_f32_16x16x16_bf16 v[80:83], v[74:75], {vr(Sel16,2)}, 0")
            a("s_waitcnt lgkmcnt(0)")
        if jj == 4:
            cvt(72, 76); cvt(73, 78); cvt(74, 80); cvt(75, 82)
            a(f"ds_write_b128 v{vKMw}, v[72:75]")
    assert not sal
    Vf, Mf, VMf = 56, 40, 72
    for i in range(4):
        a(f"ds_read_b128 {vr(Vf+4*i,4)}, v{vT} offset:{0x4000+i*1024}")
    mfma(*sx.pop(0)); mfma(*sx.pop(0))
    cvt(76, vm); cvt(77, vm + 2); cvt(78, vm + 4); cvt(79, vm + 6)
    a(f"ds_write_b128 v{vKMw}, v[76:79] offset:{VM-KM}")
    a(f"v_add_u32 v{vT2}, {KM}, v{vL16}")
    a(f"v_add_u32 v{vT}, s{sT1}, v{vL16}")
    for _ in range(4): mfma(*sx.pop(0))
    a("s_waitcnt lgkmcnt(0)")
    a("s_barrier")
    stamp("kvmem")
    a(f"buffer_load_dword v{vF}, v{vF8}, {W}, s{sFlN} offen sc1")
    for wp in range(4):
        a(f"ds_read_b128 {vr(Mf+4*wp,4)}, v{vT2} offset:{wp*1024}")
    for i in range(2):
        a(f"ds_read_b128 {vr(VMf+4*i,4)}, v{vT} offset:{i*1024}")
    mfma(*sx.pop(0)); mfma(*sx.pop(0))
    for wp in range(4):
        a(f"s_waitcnt lgkmcnt({5-wp})")
        mfma(SM_, Mf + 4 * wp, Qf + 4 * wp, None if wp == 0 else SM_)
    for up in range(2):
        for r in range(4):
            x = (S0, S1)[up] + r
            a(f"v_cndmask_b32 v{x}, v{vNeg}, v{x}, s[{sMask+2*(up*4+r)}:{sMask+2*(up*4+r)+1}]")
    m, t = 84, 85
    a(f"v_max3_f32 v{m}, v16, v17, v18")
    a(f"v_max3_f32 v{m}, v{m}, v19, v20")
    a(f"v_max3_f32 v{m}, v{m}, v21, v22")
    a(f"v_max3_f32 v{m}, v{m}, v23, v80")
    a(f"v_max3_f32 v{m}, v{m}, v81, v82")
    a(f"v_max_f32 v{m}, v{m}, v83")
    xlane_g(a, "v_max_f32", m, t)
    a(f"v_mul_f32 v{m}, s{sC}, v{m}")
    prs = [16, 18, 20, 22, 80, 82]
    for r in prs:
        a(f"v_pk_fma_f32 {vr(r,2)}, {vr(r,2)}, s[{sC}:{sC+1}], {vr(m,2)} op_sel_hi:[1,1,0] neg_lo:[0,0,1] neg_hi:[0,0,1]")
    for r in prs:
        a(f"v_exp_f32 v{r}, v{r}"); a(f"v_exp_f32 v{r+1}, v{r+1}")
    Bx, Pm = 24, 28
    for i, r in enumerate(prs): cvt(Bx + i, r)
    OA = 88
    a("s_waitcnt lgkmcnt(0)")
    sumops = [f"v_pk_add_f32 v[16:17], v[16:17], v[18:19]", f"v_pk_add_f32 v[20:21], v[20:21], v[22:23]",
              f"v_pk_add_f32 v[80:81], v[80:81], v[82:83]", f"v_pk_add_f32 v[16:17], v[16:17], v[20:21]",
              f"v_add_f32 v80, v80, v81", f"v_add_f32 v16, v16, v17", f"v_fmac_f32 v16, 0.5, v80", "v_mov_b32 v17, v16",
              None, "v_permlane16_swap_b32 v16, v17", "v_add_f32 v16, v16, v17", "v_mov_b32 v17, v16", None,
              "v_permlane32_swap_b32 v16, v17", "v_add_f32 v16, v16, v17", "v_rcp_f32 v16, v16"]
    for i in range(8):
        if i < 4: mfma(OA + 4 * i, Vf + 4 * i, Bx, None)
        else: a(f"v_mfma_f32_16x16x16_bf16 {vr(OA+4*(i-4),4)}, {vr(VMf+2*(i-4),2)}, {vr(Pm,2)}, {vr(OA+4*(i-4),4)}")
        for _ in range(2):
            x = sumops.pop(0)
            if x: a(x)
    for hh in range(2):
        for i in range(4):
            a(f"v_pk_mul_f32 {vr(OA+8*hh+2*i,2)}, {vr(OA+8*hh+2*i,2)}, v[16:17] op_sel_hi:[1,0]")
        for i in range(4): cvt(104 + 4 * hh + i, OA + 8 * hh + 2 * i)
        a(f"buffer_store_dwordx4 {vr(104+4*hh,4)}, v{vL16}, {W}, s{sO} offen offset:{hh*2048} sc1")
    a(f"s_mov_b32 s{sPend}, s{sPre}")
    a(f"s_cmp_eq_u32 s{sPre}, 1")
    a("s_cbranch_scc1 L_wa_next")
    a("s_waitcnt vmcnt(2)")
    a(f"v_cmp_eq_u32 vcc, 0, v{vF}")
    a(f"s_cmp_ge_u32 s{sI}, 31")
    a("s_cbranch_scc1 L_wa_noE")
    a("s_cbranch_vccnz L_wa_noE")
    a(f"s_add_u32 s{sT0}, s{sSeg}, 2")
    xn_setup(sT0)
    for x in xn_ops():
        for y in x: a(y)
    a(f"s_mov_b32 s{sPre}, 2")
    a("s_waitcnt vmcnt(8)")
    a("s_branch L_wa_goE")
    a.label("L_wa_noE")
    a("s_waitcnt vmcnt(0)")
    a.label("L_wa_goE")
    set_flag(a, vOne, sFlA, F_O)
    a(f"s_sub_u32 s{sT0}, s{sSeg}, 2")
    trace(a, cfg, 3, sT0, vT)
    a.label("L_wa_next")
    stamp("attn")
    if stamp.on:
        lab = a.newlab("L_nost")
        a(f"s_cmp_lg_u32 s{sI}, {cfg.get('stamp_step', 20)}")
        a(f"s_cbranch_scc1 {lab}")
        def row():
            a(f"s_lshl_b32 s{sT0}, s{sGRP}, 7")
            a(f"s_lshl_b32 s{sT1}, s{sMEMB}, 2")
            a(f"s_add_u32 s{sT0}, s{sT0}, s{sT1}")
            a(f"s_add_u32 s{sT0}, s{sT0}, s{sWAVE}")
        dump_stamps(a, stamp, cfg, row)
        a.label(lab)
    a(f"v_add_u32 v{vHw}, s{sHold}, v{vHw}")
    a(f"v_subrev_u32 v{vHr}, s{sHold}, v{vHr}")
    a(f"s_sub_u32 s{sHold}, 0, s{sHold}")
    a(f"s_add_u32 s{sSeg}, s{sSeg}, 2")
    a(f"s_add_u32 s{sI}, s{sI}, 1")
    a(f"s_cmp_le_u32 s{sI}, 32")
    a("s_cbranch_scc1 L_wa_loop")
    a("s_waitcnt vmcnt(0)")
    a("s_branch L_done")
```

```python
from gen_common import *

W = f"s[{sWS}:{sWS+3}]"
vL16, vT, vT2, vFo, vOne, vRd = 1, 2, 3, 4, 5, 6
sSeg, sEnd, sFl, sSrc, sDst, sBuf, sLds, sC = 55, 56, 57, 58, 59, 60, 66, 96

def cvt(a, d, s): a(f"v_cvt_pk_bf16_f32 v{d}, v{s}, v{s+1}")
def mfma(a, d, x, y, c):
    a(f"v_mfma_f32_16x16x32_bf16 {vr(d,4)}, {xr(x,4)}, {xr(y,4)}, {vr(c,4) if c is not None else 0}")

def common_start(a):
    a("v_and_b32 v0, 63, v0")
    a(f"v_lshlrev_b32 v{vL16}, 4, v0")
    a(f"s_lshl_b32 s{sLds}, s{sWAVE}, 15")
    a(f"v_mov_b32 v{vOne}, 1")
    a(f"s_lshl_b32 s{sSeg}, s{sLAY}, 6")
    a(f"s_add_u32 s{sEnd}, s{sSeg}, 64")
    a(f"s_mov_b32 s92, 0")
    a(f"s_lshl_b32 s94, s{sLAY}, 21")
    a(f"s_add_u32 s94, s94, {OFF_RING:#x}")

def both_modes(a, name, body, cfg, before=None):
    touch_ring(a, cfg)
    trace(a, cfg, 6, None, vT)
    if not cfg.get("noinit"): wait_init(a)
    else: a("s_barrier")
    if before: before()
    if cfg.get("force_global"):
        a(f"s_branch L_{name}_G")
    else:
        a(f"s_cmp_eq_u32 s{sLOCAL}, 0")
        a(f"s_cbranch_scc1 L_{name}_G")
    for tag, st in (("L", ""), ("G", " sc1")):
        stamp = Stamps(a, cfg.get("stamp") == name and tag == "L", base=4, only=cfg.get("only"))
        a.label(f"L_{name}_{tag}")
        stamp("top")
        a(f"s_lshl_b32 s{sFl}, s{sSeg}, 11")
        body(st, stamp)
        trace(a, cfg, 1, sSeg, vT)
        trace(a, cfg, 5, sSeg, vT)
        stamp("end")
        if stamp.on:
            lab = a.newlab("L_nost")
            a(f"s_and_b32 s{sT0}, s{sSeg}, 63")
            a(f"s_cmp_lg_u32 s{sT0}, {cfg.get('stamp_step', 20)}")
            a(f"s_cbranch_scc1 {lab}")
            def row():
                a(f"s_lshl_b32 s{sT0}, s{sGRP}, 7")
                a(f"s_lshl_b32 s{sT1}, s{sMEMB}, 2")
                a(f"s_add_u32 s{sT0}, s{sT0}, s{sT1}")
                a(f"s_add_u32 s{sT0}, s{sT0}, s{sWAVE}")
            dump_stamps(a, stamp, cfg, row)
            a.label(lab)
        a(f"s_add_u32 s{sSeg}, s{sSeg}, 1")
        a(f"s_cmp_lt_u32 s{sSeg}, s{sEnd}")
        a(f"s_cbranch_scc1 L_{name}_{tag}")
        a("s_waitcnt vmcnt(0)")
        a("s_branch L_done")

sPre, sFlN, vF = 92, 93, 13
sRing, sD0, sD1, sD2, sFlD = 94, 95, 64, 65, 67
CFG = {}

def ring_off(a, dst, sg, part):
    a(f"s_and_b32 s{dst}, s{sg}, {CFG.get('ring', 8)-1}")
    a(f"s_lshl_b32 s{dst}, s{dst}, 18")
    a(f"s_add_u32 s{dst}, s{dst}, s{sRing}")
    if part: a(f"s_add_u32 s{dst}, s{dst}, {part:#x}")

def touch_ring(a, cfg):
    a(f"s_lshl_b32 s{sT0}, s{sMEMB}, 16")
    a(f"s_lshl_b32 s{sT1}, s{sWAVE}, 14")
    a(f"s_add_u32 s{sT0}, s{sT0}, s{sT1}")
    a(f"s_add_u32 s{sT0}, s{sT0}, s{sRing}")
    for i in range(16):
        if i and i % 4 == 0: a(f"s_add_u32 s{sT0}, s{sT0}, 4096")
        a(f"buffer_load_dwordx4 v[100:103], v{vL16}, {W}, s{sT0} offen offset:{(i%4)*1024} sc1")
    a("s_waitcnt vmcnt(0)")

def dma_ops(npiece, phase_bytes):
    NT = ' nt' if (npiece == 4 and CFG.get('nt_o', True)) else ''
    ops = []
    for ph in range(4):
        for i in range(npiece):
            x = []
            if i == 0:
                x.append(f"s_add_u32 m0, s{sD0}, {ph*phase_bytes}")
                x.append(f"s_add_u32 s{sD2}, s{sD1}, {ph*phase_bytes}")
            x.append(f"buffer_load_dwordx4 v{vL16}, {W}, s{sD2} offen offset:{i*1024} sc1{NT} lds")
            ops.append(x)
    return ops

def dma_setup(a, npiece):
    a(f"s_mul_i32 s{sT0}, s{sWAVE}, {npiece*1024}")
    a(f"s_add_u32 s{sD1}, s{sSrc}, s{sT0}")
    a(f"s_add_u32 s{sD0}, s{sBuf}, s{sT0}")

def guarded(a, ops):
    lab = a.newlab("L_g")
    a(f"s_cbranch_vccz {lab}")
    for x in ops: a(x)
    a.label(lab)

def stage_issue(a, npiece, phase_bytes):
    a(f"s_mul_i32 s{sT0}, s{sWAVE}, {npiece*1024}")
    a(f"s_add_u32 s{sT1}, s{sSrc}, s{sT0}")
    a(f"s_add_u32 s{sT0}, s{sBuf}, s{sT0}")
    for ph in range(4):
        a(f"s_add_u32 m0, s{sT0}, {ph*phase_bytes}")
        if ph: a(f"s_add_u32 s{sT1}, s{sT1}, {phase_bytes}")
        for i in range(npiece):
            a(f"buffer_load_dwordx4 v{vL16}, {W}, s{sT1} offen offset:{i*1024} sc1 lds")

def fetch_input(a, cfg, stamp, src_of, npiece, phase_bytes, bufsize, vbase, sFl=sFl):
    lab = a.newlab("L_pre")
    a(f"s_add_u32 s{sFlN}, s{sFl}, 2048")
    a("s_mov_b64 vcc, 0")
    a(f"s_cmp_eq_u32 s{sPre}, 1")
    a(f"s_cbranch_scc1 {lab}")
    a("s_mov_b64 vcc, -1")
    a(f"s_cmp_eq_u32 s{sPre}, 2")
    a(f"s_cbranch_scc1 {lab}")
    poll_flags(a, vT, vFo, sFl, sleep=1)
    stamp("polled", True)
    src_of(sSeg)
    dma_setup(a, npiece)
    for x in dma_ops(npiece, phase_bytes)[:2 * npiece]:
        for y in x: a(y)
    a("s_mov_b64 vcc, -1")
    a.label(lab)
    stamp("flag")
    trace(a, cfg, 0, sSeg, vT)
    a(f"v_add_u32 v{vRd}, s{sBuf}, v{vbase}")
    a(f"s_xor_b32 s{sBuf}, s{sBuf}, {bufsize}")

def resample():
    return f"buffer_load_dword v{vF}, v{vFo}, {W}, s{sFlN} offen sc1"

def finish(a, cfg, fl, st, nstore, npiece, phase_bytes, src_of):
    lab = a.newlab('L_defer'); no = a.newlab('L_noE'); go = a.newlab('L_goE')
    a(f's_mov_b32 s{sFlD}, s{sFl}')
    a(f's_cmp_eq_u32 s{sPre}, 1')
    a(f's_cbranch_scc1 {lab}')
    a(f's_waitcnt vmcnt({nstore})')
    a(f"v_cmp_eq_u32 vcc, 0, v{vF}")
    a(f"s_add_u32 s{sT2}, s{sSeg}, 1")
    a(f"s_cmp_ge_u32 s{sT2}, s{sEnd}")
    a(f"s_cbranch_scc1 {no}")
    a(f"s_cbranch_vccnz {no}")
    src_of(sT2)
    dma_setup(a, npiece)
    for x in dma_ops(npiece, phase_bytes)[:2 * npiece]:
        for y in x: a(y)
    a(f"s_mov_b32 s{sPre}, 2")
    a(f's_waitcnt vmcnt({2*npiece})')
    a(f"s_branch {go}")
    a.label(no)
    a('s_waitcnt vmcnt(0)')
    a.label(go)
    set_flag(a, vOne, sFlD, fl, st)
    a.label(lab)

def gemm_phases(a, nks, npiece, extra, rdoffs, ring, step, src_of, phase_bytes, stamp, nstore, fl, st, rs_at):
    per = nks // 4
    def rd(ks):
        sl = ring + (ks % 3) * 8
        return [f"ds_read_b128 {vr(sl+4*u,4)}, v{vRd} offset:{rdoffs(ks,u)}" for u in range(2)]
    def run(k0, k1, dq, rate=1, restart=True, last=True, rs=False):
        if restart:
            for x in rd(k0) + rd(k0 + 1): a(x)
        for ks in range(k0, k1):
            left = (k1 if last else nks) - 1 - ks
            a(f"s_waitcnt lgkmcnt({2 if left >= 1 else 0})")
            side = rd(ks + 2) if left >= 2 else []
            for _ in range(rate):
                if dq: side = side + ["\n".join(dq.pop(0))]
            if rs and ks == rs_at: side = side + [resample()]
            step(ks, ring + (ks % 3) * 8, side)
            assert not side
        assert not dq
    def sample():
        a(f"buffer_load_dword v{vF}, v{vFo}, {W}, s{sFlN} offen sc1")
        for x in extra: a(x)
    def decide(nolab):
        a(f"s_mov_b32 s{sPre}, 0")
        a(f"s_cbranch_vccnz {nolab}")
        a(f"s_add_u32 s{sT2}, s{sSeg}, 1")
        a(f"s_cmp_ge_u32 s{sT2}, s{sEnd}")
        a(f"s_cbranch_scc1 {nolab}")
        src_of(sT2)
        dma_setup(a, npiece)
        a(f"s_mov_b32 s{sPre}, 1")
    lP, lPn, lBn, lE = a.newlab("L_P"), a.newlab("L_Pn"), a.newlab("L_Bn"), a.newlab("L_E")
    a(f"s_cbranch_vccz {lP}")
    a(f"s_waitcnt vmcnt({npiece})")
    a("s_barrier")
    stamp("b0", True)
    run(0, per, dma_ops(npiece, phase_bytes)[2 * npiece:])
    a(f"s_waitcnt vmcnt({2*npiece})")
    a("s_barrier")
    stamp("b1", True)
    sample()
    run(per, 2 * per, [])
    a("s_waitcnt vmcnt(0)")
    a(f"v_cmp_eq_u32 vcc, 0, v{vF}")
    a("s_barrier")
    stamp("b2", True)
    decide(lBn)
    run(2 * per, nks, dma_ops(npiece, phase_bytes), rate=2)
    a(f"s_branch {lE}")
    a.label(lBn)
    run(2 * per, nks, [], rs=True)
    a(f"s_branch {lE}")
    a.label(lP)
    a(f"s_waitcnt vmcnt({nstore})")
    sample()
    a("s_barrier")
    run(0, per, [])
    a("s_waitcnt vmcnt(0)")
    set_flag(a, vOne, sFlD, fl, st)
    a(f"v_cmp_eq_u32 vcc, 0, v{vF}")
    a("s_barrier")
    decide(lPn)
    dq = dma_ops(npiece, phase_bytes)
    run(per, 2 * per, dq[:per])
    a("s_barrier")
    run(2 * per, nks, dq[per:])
    a(f"s_branch {lE}")
    a.label(lPn)
    run(per, 2 * per, [])
    a("s_barrier")
    run(2 * per, nks, [], rs=True)
    a.label(lE)

def natural_dma64(a, vdst, rowbytes):
    a(f"v_lshrrev_b32 v{vdst}, 2, v0")
    a(f"v_mul_u32_u24 v{vdst}, {rowbytes}, v{vdst}")
    a(f"v_and_b32 v{vT}, 3, v0")
    a(f"v_lshl_add_u32 v{vdst}, v{vT}, 4, v{vdst}")

def img_rd_addr(a, vdst):
    a(f"v_lshrrev_b32 v{vT}, 4, v0")
    a(f"v_lshlrev_b32 v{vT}, 9, v{vT}")
    a(f"v_and_b32 v{vdst}, 15, v0")
    a(f"v_lshl_add_u32 v{vdst}, v{vdst}, 4, v{vT}")

def img2_addr(a, vdst):
    a(f"v_lshrrev_b32 v{vT}, 5, v0")
    a(f"v_lshlrev_b32 v{vdst}, 10, v{vT}")
    a(f"v_bfe_u32 v{vT}, v0, 2, 2")
    a(f"v_lshl_add_u32 v{vdst}, v{vT}, 7, v{vdst}")
    a(f"v_bfe_u32 v{vT}, v0, 4, 1")
    a(f"v_lshl_add_u32 v{vdst}, v{vT}, 6, v{vdst}")
    a(f"v_and_b32 v{vT}, 3, v0")
    a(f"v_lshl_add_u32 v{vdst}, v{vT}, 4, v{vdst}")

def role_ra(a, cfg):
    WT = 256
    vD, vTR, vSt, vCr = 96, 97, 7, 8
    sKs, sNs, sBias, sFlP = 61, 62, 63, 76
    a.label("L_ra")
    common_start(a)
    a(f"s_lshr_b32 s{sKs}, s{sMEMB}, 2")
    a(f"s_and_b32 s{sNs}, s{sMEMB}, 3")
    natural_dma64(a, vD, 1024)
    a(f"v_lshrrev_b32 v{vT}, 2, v0")
    a(f"v_lshlrev_b32 v{vTR}, 6, v{vT}")
    a(f"v_and_b32 v{vT}, 3, v0")
    a(f"v_lshl_add_u32 v{vTR}, v{vT}, 4, v{vTR}")
    a(f"v_add_u32 v{vTR}, s{sLds}, v{vTR}")
    a(f"s_lshl_b32 s{sT2}, s{sKs}, 20")
    a(f"s_lshl_b32 s{sT1}, s{sNs}, 8")
    a(f"s_add_u32 s{sT2}, s{sT2}, s{sT1}")
    a(f"s_lshl_b32 s{sT1}, s{sWAVE}, 6")
    a(f"s_add_u32 s{sT2}, s{sT2}, s{sT1}")
    set_srd(a, sWT, sWO, 0x400000)
    late_start(a, cfg)
    chunks = []
    for ch in range(16):
        def setup(ch=ch): a(f"s_add_u32 s{sT0}, s{sT2}, {ch*65536}")
        def consume(so, ch=ch):
            for e in range(2):
                for t in range(2):
                    for jh in range(2):
                        a(f"ds_read_b64_tr_b16 {xr(WT+((2*ch+e)*2+t)*4+2*jh,2)}, v{vTR} offset:{so+(32*e+16*jh)*64+8*t}")
            a("s_waitcnt lgkmcnt(0)")
        chunks.append(dict(setup=setup, vdma=vD, dstep=16384, consume=consume))
    load_chunks(a, chunks, sLds)
    a(f"v_and_b32 v{vFo}, 31, v0")
    a(f"v_lshlrev_b32 v{vFo}, 2, v{vFo}")
    a(f"s_lshl_b32 s{sT0}, s{sKs}, 7")
    a(f"s_add_u32 s{sT0}, s{sT0}, {F_O}")
    a(f"s_mul_i32 s{sBias}, s{sLAY}, {CFG.get('ring', 8)*2048}")
    a(f"s_add_u32 s{sT0}, s{sT0}, s{sBias}")
    a(f"v_add_u32 v{vFo}, s{sT0}, v{vFo}")
    a(f"s_cmp_eq_u32 s{sLAY}, 0")
    a(f"s_mov_b32 s{sT0}, {F_X2}")
    a(f"s_cselect_b32 s{sT0}, {(64-CFG.get('ring', 8))*2048+F_XN}, s{sT0}")
    a(f"s_cselect_b32 s{sT1}, 7, 15")
    a(f"v_and_b32 v{vCr}, s{sT1}, v0")
    a(f"v_lshlrev_b32 v{vCr}, 2, v{vCr}")
    a(f"v_add_u32 v{vCr}, s{sT0}, v{vCr}")
    a(f"v_cmp_gt_u32 vcc, 32, v0")
    a(f"v_cndmask_b32 v{vCr}, v{vCr}, v{vFo}, vcc")
    img2_addr(a, vSt)
    a(f"s_lshl_b32 s{sT0}, s{sNs}, 13")
    a(f"s_lshl_b32 s{sT1}, s{sWAVE}, 11")
    a(f"s_add_u32 s{sT0}, s{sT0}, s{sT1}")
    a(f"s_lshl_b32 s{sT1}, s{sKs}, 15")
    a(f"s_add_u32 s{sT0}, s{sT0}, s{sT1}")
    a(f"v_add_u32 v{vSt}, s{sT0}, v{vSt}")
    a(f"s_mov_b32 s{sBuf}, 0")
    ACC, RING = 16, 32
    def body(st, stamp):
        def src_of(sg):
            a(f"s_lshl_b32 s{sSrc}, s{sg}, 18")
            a(f"s_lshl_b32 s{sT0}, s{sKs}, 16")
            a(f"s_add_u32 s{sSrc}, s{sSrc}, s{sT0}")
            a(f"s_add_u32 s{sSrc}, s{sSrc}, {OFF_O:#x}")
        a(f"s_sub_u32 s{sFlP}, s{sFl}, s{sBias}")
        fetch_input(a, cfg, stamp, src_of, 4, 16384, 0x10000, vL16, sFlP)
        lab = a.newlab("L_nocr")
        a(f"s_and_b32 s{sT0}, s{sSeg}, 63")
        a(f"s_cmp_lg_u32 s{sT0}, {CFG.get('ring', 8)-1}")
        a(f"s_cbranch_scc1 {lab}")
        a(f"v_mov_b32 v{vFo}, v{vCr}")
        a.label(lab)
        ring_off(a, sDst, sSeg, R_PART)
        a(f"s_lshl_b32 s{sT0}, s{sMEMB}, 2")
        a(f"s_add_u32 s{sT0}, s{sT0}, s{sWAVE}")
        a(f"s_lshl_b32 s{sT0}, s{sT0}, 2")
        a(f"s_add_u32 s{sFl}, s{sFl}, s{sT0}")
        def step(ks, fr, side):
            for u in range(2):
                for t in range(2):
                    acc = ACC + (u * 2 + t) * 4
                    mfma(a, acc, WT + (ks * 2 + t) * 4, fr + 4 * u, None if ks == 0 else acc)
                    if side: a(side.pop(0))
        gemm_phases(a, 32, 4, [], lambda ks, u: ks * 2048 + u * 1024, RING, step, src_of, 16384, stamp, 2, F_PART, st, CFG.get('rs_ra', 24))
        stamp("gemm")
        for u in range(2):
            for i in range(4): cvt(a, 56 + 4 * u + i, ACC + u * 8 + 2 * i)
            a(f"buffer_store_dwordx4 {vr(56+4*u,4)}, v{vSt}, {W}, s{sDst} offen offset:{u*512}{st}")
        finish(a, cfg, F_PART, st, 2, 4, 16384, src_of)
    both_modes(a, "ra", body, cfg)

def role_rc(a, cfg):
    WT = 256
    vD, vTR, vNeg, vRb = 96, 97, 7, 8
    sHb, sMask, sPrevOK = 61, 76, 62
    a.label("L_rc")
    common_start(a)
    a(f"s_sub_u32 s{sHb}, s{sMEMB}, 16")
    a(f"s_lshl_b32 s{sHb}, s{sHb}, 2")
    a(f"s_add_u32 s{sHb}, s{sHb}, s{sWAVE}")
    a(f"v_lshrrev_b32 v{vD}, 1, v0")
    a(f"v_mul_u32_u24 v{vD}, 3072, v{vD}")
    a(f"v_and_b32 v{vT}, 1, v0")
    a(f"v_lshl_add_u32 v{vD}, v{vT}, 4, v{vD}")
    a(f"v_lshrrev_b32 v{vT}, 4, v0")
    a(f"v_lshlrev_b32 v{vTR}, 8, v{vT}")
    a(f"v_bfe_u32 v{vT}, v0, 2, 2")
    a(f"v_lshl_add_u32 v{vTR}, v{vT}, 5, v{vTR}")
    a(f"v_and_b32 v{vT}, 3, v0")
    a(f"v_lshl_add_u32 v{vTR}, v{vT}, 3, v{vTR}")
    a(f"v_add_u32 v{vTR}, s{sLds}, v{vTR}")
    a(f"s_lshl_b32 s{sT2}, s{sHb}, 5")
    set_srd(a, sWT, sWB, 512 * 3072)
    late_start(a, cfg)
    chunks = []
    for mm in range(3):
        for ch in range(4):
            def setup(mm=mm, ch=ch): a(f"s_add_u32 s{sT0}, s{sT2}, {128*ch*3072 + mm*1024}")
            def consume(so, mm=mm, ch=ch):
                for e in range(4):
                    for jh in range(2):
                        a(f"ds_read_b64_tr_b16 {xr(WT+((4*ch+e)*3+mm)*4+2*jh,2)}, v{vTR} offset:{so+(32*e+4*jh)*32}")
                a("s_waitcnt lgkmcnt(0)")
            chunks.append(dict(setup=setup, vdma=vD, dstep=32 * 3072, consume=consume))
    load_chunks(a, chunks, sLds)
    a(f"v_and_b32 v{vFo}, 7, v0")
    a(f"v_lshlrev_b32 v{vFo}, 2, v{vFo}")
    a(f"v_add_u32 v{vFo}, {F_XNB}, v{vFo}")
    img_rd_addr(a, vRb)
    a(f"v_mov_b32 v{vNeg}, {fbits(-1e9 * 4):#x}")
    a(f"s_mov_b32 s{sC}, {fbits(0.25*1.4426950408889634):#x}")
    a(f"s_mov_b32 s{sC+1}, s{sC}")
    a("v_and_b32 v96, 15, v0")
    a("v_lshrrev_b32 v97, 4, v0")
    a("v_lshlrev_b32 v97, 2, v97")
    for r in range(4):
        a(f"v_add_u32 v98, {r}, v97")
        a(f"v_add_u32 v99, 9, v96")
        a(f"v_cmp_ge_u32 s[{sMask+2*r}:{sMask+2*r+1}], v98, v99")
        a(f"v_sub_u32 v99, v96, v98")
        a(f"v_cmp_ge_u32 s[{sMask+8+2*r}:{sMask+8+2*r+1}], 7, v99")
    KP, VP = (16, 20), (24, 28)
    for r in range(16, 32): a(f"v_mov_b32 v{r}, 0")
    a(f"s_mov_b32 s{sBuf}, 0")
    a(f"s_mov_b64 s[{sPrevOK}:{sPrevOK+1}], 0")
    RING, ACC = 32, 56
    def body(st, stamp):
        def src_of(sg):
            ring_off(a, sSrc, sg, R_XNB)
        fetch_input(a, cfg, stamp, src_of, 2, 8192, 0x8000, vRb)
        ring_off(a, sDst, sSeg, R_OB)
        a(f"s_lshl_b32 s{sT0}, s{sHb}, 10")
        a(f"s_add_u32 s{sDst}, s{sDst}, s{sT0}")
        a(f"s_lshl_b32 s{sT0}, s{sHb}, 2")
        a(f"s_add_u32 s{sFl}, s{sFl}, s{sT0}")
        acc = lambda mm, p: ACC + (p * 3 + mm) * 4
        def step(ks, fr, side):
            for p in range(2):
                c = lambda x: None if ks == 0 else x
                mfma(a, acc(0, p), WT + (ks * 3) * 4, fr + 4 * p, c(acc(0, p)))
                if side: a(side.pop(0))
                mfma(a, acc(1, p), WT + (ks * 3 + 1) * 4, fr + 4 * p, c(acc(1, p)))
                if side: a(side.pop(0))
                mfma(a, acc(2, p), fr + 4 * p, WT + (ks * 3 + 2) * 4, c(acc(2, p)))
                if side: a(side.pop(0))
        gemm_phases(a, 16, 2, [], lambda ks, u: ks * 2048 + u * 256, RING, step, src_of, 8192, stamp, 1, F_OB, st, 15)
        stamp("gemm")
        Q = (80, 82); S = (32, 40); B = (84, 88); O = (48, 52); M = (92, 94)
        for p in range(2):
            cvt(a, Q[p], acc(0, p)); cvt(a, Q[p] + 1, acc(0, p) + 2)
            cvt(a, KP[p] + 2, acc(1, p)); cvt(a, KP[p] + 3, acc(1, p) + 2)
            cvt(a, VP[p] + 2, acc(2, p)); cvt(a, VP[p] + 3, acc(2, p) + 2)
        for p in range(2):
            a(f"v_mfma_f32_16x16x16_bf16 {vr(S[p],4)}, {vr(KP[p],2)}, {vr(Q[p],2)}, 0")
            a(f"v_mfma_f32_16x16x16_bf16 {vr(S[p]+4,4)}, {vr(KP[p]+2,2)}, {vr(Q[p],2)}, 0")
        for r in range(4):
            a(f"s_and_b64 s[{98}:{99}], s[{sMask+2*r}:{sMask+2*r+1}], s[{sPrevOK}:{sPrevOK+1}]")
            for p in range(2):
                a(f"v_cndmask_b32 v{S[p]+r}, v{vNeg}, v{S[p]+r}, s[98:99]")
        for r in range(4):
            for p in range(2):
                a(f"v_cndmask_b32 v{S[p]+4+r}, v{vNeg}, v{S[p]+4+r}, s[{sMask+8+2*r}:{sMask+8+2*r+1}]")
        a(f"s_mov_b64 s[{sPrevOK}:{sPrevOK+1}], -1")
        def both(f):
            for p in range(2): f(p)
        both(lambda p: a(f"v_max3_f32 v{M[p]}, v{S[p]}, v{S[p]+1}, v{S[p]+2}"))
        both(lambda p: a(f"v_max3_f32 v{M[p]}, v{M[p]}, v{S[p]+3}, v{S[p]+4}"))
        both(lambda p: a(f"v_max3_f32 v{M[p]}, v{M[p]}, v{S[p]+5}, v{S[p]+6}"))
        both(lambda p: a(f"v_max_f32 v{M[p]}, v{M[p]}, v{S[p]+7}"))
        def xl(op):
            for sw in ("v_permlane16_swap_b32", "v_permlane32_swap_b32"):
                both(lambda p: a(f"v_mov_b32 v{M[p]+1}, v{M[p]}"))
                both(lambda p: a(f"{sw} v{M[p]}, v{M[p]+1}"))
                both(lambda p: a(f"{op} v{M[p]}, v{M[p]}, v{M[p]+1}"))
        xl("v_max_f32")
        both(lambda p: a(f"v_mul_f32 v{M[p]}, s{sC}, v{M[p]}"))
        for p in range(2):
            for i in range(0, 8, 2):
                a(f"v_pk_fma_f32 {vr(S[p]+i,2)}, {vr(S[p]+i,2)}, s[{sC}:{sC+1}], {vr(M[p],2)} op_sel_hi:[1,1,0] neg_lo:[0,0,1] neg_hi:[0,0,1]")
        for p in range(2):
            for i in range(8): a(f"v_exp_f32 v{S[p]+i}, v{S[p]+i}")
        for p in range(2):
            for i in range(4): cvt(a, B[p] + i, S[p] + 2 * i)
        for p in range(2):
            a(f"v_pk_add_f32 {vr(S[p],2)}, {vr(S[p],2)}, {vr(S[p]+2,2)}")
            a(f"v_pk_add_f32 {vr(S[p]+4,2)}, {vr(S[p]+4,2)}, {vr(S[p]+6,2)}")
            mfma(a, O[p], VP[p], B[p], None)
        both(lambda p: a(f"v_pk_add_f32 {vr(S[p],2)}, {vr(S[p],2)}, {vr(S[p]+4,2)}"))
        both(lambda p: a(f"v_add_f32 v{M[p]}, v{S[p]}, v{S[p]+1}"))
        xl("v_add_f32")
        both(lambda p: a(f"v_rcp_f32 v{M[p]}, v{M[p]}"))
        for p in range(2):
            a(f"v_mov_b64 {vr(KP[p],2)}, {vr(KP[p]+2,2)}")
            a(f"v_mov_b64 {vr(VP[p],2)}, {vr(VP[p]+2,2)}")
        for p in range(2):
            a(f"v_pk_mul_f32 {vr(O[p],2)}, {vr(O[p],2)}, {vr(M[p],2)} op_sel_hi:[1,0]")
            a(f"v_pk_mul_f32 {vr(O[p]+2,2)}, {vr(O[p]+2,2)}, {vr(M[p],2)} op_sel_hi:[1,0]")
        for p in range(2):
            cvt(a, 80 + 2 * p, O[p]); cvt(a, 81 + 2 * p, O[p] + 2)
        a("v_permlane16_swap_b32 v80, v82")
        a("v_permlane16_swap_b32 v81, v83")
        a(f"buffer_store_dwordx4 v[80:83], v{vL16}, {W}, s{sDst} offen{st}")
        stamp("attn")
        finish(a, cfg, F_OB, st, 1, 2, 8192, src_of)
    both_modes(a, "rc", body, cfg)

def role_rd(a, cfg):
    WT = 256
    vD, vTR, vRb, vX1, vSt0, vSt1 = 96, 97, 8, 9, 10, 11
    sMd, sOb, sX1o, sOm, sOs = 61, 62, 63, 76, 77
    a.label("L_rd")
    common_start(a)
    a(f"s_sub_u32 s{sMd}, s{sMEMB}, 24")
    a(f"s_lshl_b32 s{sMd}, s{sMd}, 2")
    a(f"s_add_u32 s{sMd}, s{sMd}, s{sWAVE}")
    natural_dma64(a, vD, 1024)
    a(f"v_lshrrev_b32 v{vT}, 4, v0")
    a(f"v_lshlrev_b32 v{vTR}, 9, v{vT}")
    a(f"v_bfe_u32 v{vT}, v0, 2, 2")
    a(f"v_lshl_add_u32 v{vTR}, v{vT}, 6, v{vTR}")
    a(f"v_and_b32 v{vT}, 3, v0")
    a(f"v_lshl_add_u32 v{vTR}, v{vT}, 4, v{vTR}")
    a(f"v_add_u32 v{vTR}, s{sLds}, v{vTR}")
    a(f"s_lshl_b32 s{sT2}, s{sMd}, 6")
    set_srd(a, sWT, sWBO, 0x80000)
    late_start(a, cfg)
    chunks = []
    for ch in range(8):
        def setup(ch=ch): a(f"s_add_u32 s{sT0}, s{sT2}, {ch*65536}")
        def consume(so, ch=ch):
            for e in range(2):
                for t in range(2):
                    for jh in range(2):
                        a(f"ds_read_b64_tr_b16 {xr(WT+((2*ch+e)*2+t)*4+2*jh,2)}, v{vTR} offset:{so+(32*e+4*jh)*64+8*t}")
            a("s_waitcnt lgkmcnt(0)")
        chunks.append(dict(setup=setup, vdma=vD, dstep=16384, consume=consume))
    load_chunks(a, chunks, sLds)
    a(f"v_and_b32 v{vFo}, 31, v0")
    a(f"v_lshlrev_b32 v{vFo}, 2, v{vFo}")
    a(f"v_add_u32 v{vFo}, {F_OB}, v{vFo}")
    img_rd_addr(a, vRb)
    a(f"s_lshl_b32 s{sT0}, s{sMd}, 11")
    a(f"v_add_u32 v{vX1}, s{sT0}, v{vRb}")
    a(f"s_cmp_eq_u32 s{sLAY}, 0")
    a("s_cbranch_scc1 L_rd_l0")
    set_srd(a, sIN, sOUT, 0x200000)
    a(f"s_mov_b32 s{sOb}, 0")
    a(f"s_mov_b32 s{sOm}, 63")
    a(f"s_mov_b32 s{sOs}, 15")
    a(f"v_and_b32 v{vT}, 15, v0")
    a(f"v_lshlrev_b32 v{vSt0}, 11, v{vT}")
    a(f"v_lshrrev_b32 v{vT}, 4, v0")
    a(f"v_lshl_add_u32 v{vSt0}, v{vT}, 4, v{vSt0}")
    a(f"s_lshl_b32 s{sT0}, s{sMd}, 6")
    a(f"v_add_u32 v{vSt0}, s{sT0}, v{vSt0}")
    a(f"v_add_u32 v{vSt1}, 1024, v{vSt0}")
    a("s_branch L_rd_go")
    a.label("L_rd_l0")
    set_srd(a, sIN, sWSP, WS_BYTES)
    a(f"s_add_u32 s{sOb}, s{sRing}, {R_X2:#x}")
    a(f"s_mov_b32 s{sOm}, {CFG.get('ring', 8)-1}")
    a(f"s_mov_b32 s{sOs}, 18")
    img2_addr(a, vSt0)
    a(f"s_lshl_b32 s{sT0}, s{sMd}, 11")
    a(f"v_add_u32 v{vSt0}, s{sT0}, v{vSt0}")
    a(f"v_add_u32 v{vSt1}, 512, v{vSt0}")
    a.label("L_rd_go")
    a(f"s_mov_b32 s{sBuf}, 0")
    ACC, RING, XR = 16, 32, 56
    def body(st, stamp):
        def src_of(sg):
            ring_off(a, sSrc, sg, R_OB)
        fetch_input(a, cfg, stamp, src_of, 2, 8192, 0x8000, vRb)
        ring_off(a, sX1o, sSeg, R_X1)
        extra = [f"buffer_load_dwordx4 {vr(XR+4*u,4)}, v{vX1}, {W}, s{sX1o} offen offset:{u*256} sc1" for u in range(2)]
        a(f"s_and_b32 s{sDst}, s{sSeg}, s{sOm}")
        a(f"s_lshl_b32 s{sDst}, s{sDst}, s{sOs}")
        a(f"s_add_u32 s{sDst}, s{sDst}, s{sOb}")
        a(f"s_lshl_b32 s{sT0}, s{sMd}, 2")
        a(f"s_add_u32 s{sFl}, s{sFl}, s{sT0}")
        def step(ks, fr, side):
            for u in range(2):
                for t in range(2):
                    acc = ACC + (u * 2 + t) * 4
                    mfma(a, acc, WT + (ks * 2 + t) * 4, fr + 4 * u, None if ks == 0 else acc)
                    if side: a(side.pop(0))
        gemm_phases(a, 16, 2, extra, lambda ks, u: ks * 2048 + u * 256, RING, step, src_of, 8192, stamp, 2, F_X2, st, 13)
        stamp("gemm")
        for i in range(8):
            a(f"v_lshlrev_b32 v{64+2*i}, 16, v{XR+i}")
            a(f"v_and_b32 v{65+2*i}, 0xffff0000, v{XR+i}")
        for i in range(8):
            cvt(a, 80 + i, ACC + 2 * i)
        for i in range(8):
            a(f"v_lshlrev_b32 v{ACC+2*i}, 16, v{80+i}")
            a(f"v_and_b32 v{ACC+2*i+1}, 0xffff0000, v{80+i}")
        for i in range(8):
            a(f"v_pk_add_f32 {vr(ACC+2*i,2)}, {vr(ACC+2*i,2)}, {vr(64+2*i,2)}")
        for u in range(2):
            for i in range(4): cvt(a, 80 + 4 * u + i, ACC + 8 * u + 2 * i)
            a(f"buffer_store_dwordx4 {vr(80+4*u,4)}, v{(vSt0, vSt1)[u]}, s[{sIN}:{sIN+3}], s{sDst} offen{st}")
        finish(a, cfg, F_X2, st, 2, 2, 8192, src_of)
    both_modes(a, "rd", body, cfg)

def row_reduce(a, r, t):
    a(f"v_add_f32_dpp v{r}, v{r}, v{r} row_ror:4 row_mask:0xf bank_mask:0xf")
    a(f"v_add_f32_dpp v{r}, v{r}, v{r} row_ror:8 row_mask:0xf bank_mask:0xf")
    xlane_g(a, "v_add_f32", r, t)

def rnd_bf16(a, r):
    a(f"v_cvt_pk_bf16_f32 v{r}, v{r}, v{r}")
    a(f"v_and_b32 v{r}, 0xffff0000, v{r}")

def layernorm(a, X, T, between=()):
    m, t, s, t2 = T, T + 2, T + 4, T + 6
    between = list(between)
    a(f"v_pk_add_f32 {vr(m,2)}, {vr(X,2)}, {vr(X+2,2)}")
    a(f"v_pk_mul_f32 {vr(s,2)}, {vr(X,2)}, {vr(X,2)}")
    a(f"v_pk_fma_f32 {vr(s,2)}, {vr(X+2,2)}, {vr(X+2,2)}, {vr(s,2)}")
    for i in range(4, 32, 2):
        a(f"v_pk_add_f32 {vr(m,2)}, {vr(m,2)}, {vr(X+i,2)}")
        a(f"v_pk_fma_f32 {vr(s,2)}, {vr(X+i,2)}, {vr(X+i,2)}, {vr(s,2)}")
    a(f"v_add_f32 v{m}, v{m}, v{m+1}")
    a(f"v_add_f32 v{s}, v{s}, v{s+1}")
    def gap():
        if between: a(between.pop(0))
    for ror in (4, 8):
        gap()
        a(f"v_add_f32_dpp v{m}, v{m}, v{m} row_ror:{ror} row_mask:0xf bank_mask:0xf")
        a(f"v_add_f32_dpp v{s}, v{s}, v{s} row_ror:{ror} row_mask:0xf bank_mask:0xf")
    for sw in ("v_permlane16_swap_b32", "v_permlane32_swap_b32"):
        a(f"v_mov_b32 v{t}, v{m}")
        a(f"v_mov_b32 v{t2}, v{s}")
        gap()
        a(f"{sw} v{m}, v{t}")
        a(f"{sw} v{s}, v{t2}")
        a(f"v_add_f32 v{m}, v{m}, v{t}")
        a(f"v_add_f32 v{s}, v{s}, v{t2}")
    a(f"v_mul_f32 v{m}, {fbits(1/512):#x}, v{m}")
    a(f"v_mul_f32 v{s}, {fbits(1/512):#x}, v{s}")
    a(f"v_fma_f32 v{s}, -v{m}, v{m}, v{s}")
    a(f"v_max_f32 v{s}, 0, v{s}")
    rnd_bf16(a, m)
    rnd_bf16(a, s)
    a(f"v_add_f32 v{s}, {fbits(1e-5):#x}, v{s}")
    rnd_bf16(a, s)
    a(f"v_sqrt_f32 v{s}, v{s}")
    gap()
    rnd_bf16(a, s)
    a(f"v_rcp_f32 v{s}, v{s}")
    for x in between: a(x)
    a(f"v_mul_f32 v{m}, v{m}, v{s}")
    for i in range(0, 32, 2):
        a(f"v_pk_fma_f32 {vr(X+i,2)}, {vr(X+i,2)}, {vr(s,2)}, {vr(m,2)} op_sel_hi:[1,0,0] neg_lo:[0,0,1] neg_hi:[0,0,1]")

def unpack(a, dst, src, n):
    for i in range(n):
        a(f"v_lshlrev_b32 v{dst+2*i}, 16, v{src+i}")
        a(f"v_and_b32 v{dst+2*i+1}, 0xffff0000, v{src+i}")

def rows_setup(a, sWb):
    c_, gi = 96, 97
    a(f"s_and_b32 s{sT0}, s{sWb}, 1")
    a(f"s_lshr_b32 s{sT1}, s{sWb}, 1")
    a(f"s_lshl_b32 s{sT1}, s{sT1}, 2")
    a(f"v_and_b32 v{c_}, 3, v0")
    a(f"v_add_u32 v{c_}, s{sT1}, v{c_}")
    a(f"v_lshrrev_b32 v{gi}, 2, v0")
    a(f"s_lshl_b32 s{sT1}, s{sT0}, 8")
    a(f"v_lshl_add_u32 v98, v{c_}, 4, s{sT1}")
    a(f"s_lshl_b32 s{sT1}, s{sT0}, 10")
    a(f"v_lshl_add_u32 v99, v{c_}, 11, s{sT1}")
    a(f"s_lshl_b32 s{sT1}, s{sT0}, 9")
    a(f"s_lshr_b32 s{sT2}, s{sWb}, 1")
    a(f"s_lshl_b32 s{sT2}, s{sT2}, 7")
    a(f"s_add_u32 s{sT1}, s{sT1}, s{sT2}")
    a(f"v_and_b32 v102, 7, v0")
    a(f"v_lshl_add_u32 v102, v102, 4, s{sT1}")

def xn_store_addr(a, vP):
    a(f"s_lshl_b32 s{sT1}, s{sT0}, 10")
    a(f"v_lshl_add_u32 v{vP}, v96, 4, s{sT1}")
    a(f"v_lshl_add_u32 v{vP}, v97, 11, v{vP}")

def ln_to_xn(a, X, T, R, P, vP):
    unpack(a, X, R, 16)
    layernorm(a, X, T)
    for g in range(4):
        for dj in range(4):
            half = dj & 1; jh = dj >> 1
            e = 4 * (g >> 1) + 2 * (g & 1) + jh
            a(f"v_cvt_pk_bf16_f32 v{P+4*g+dj}, v{X+8*half+e}, v{X+8*(2+half)+e}")
        a(f"buffer_store_dwordx4 {vr(P+4*g,4)}, v{vP}, {W}, s{sDst} offen offset:{g*256} sc1")

def ln0(a, cfg):
    sWb, sU = 61, 62
    vA, vP = 8, 12
    X, T, P, R = 16, 48, 128, 144
    a(f"s_cmp_eq_u32 s{sLAY}, 0")
    a("s_cbranch_scc1 L_ln0_done")
    a("v_and_b32 v0, 63, v0")
    a(f"v_mov_b32 v{vOne}, 1")
    a(f"s_lshl_b32 s{sU}, s{sMEMB}, 2")
    a(f"s_add_u32 s{sU}, s{sU}, s{sWAVE}")
    a(f"s_and_b32 s{sWb}, s{sU}, 7")
    a(f"s_lshr_b32 s{sU}, s{sU}, 3")
    rows_setup(a, sWb)
    xn_store_addr(a, vP)
    a(f"v_lshrrev_b32 v100, 1, v97")
    a(f"v_and_b32 v101, 1, v97")
    a(f"v_lshl_add_u32 v100, v100, 3, v101")
    a(f"v_lshl_add_u32 v{vA}, v100, 4, v99")
    set_srd(a, sIN, sX, 0x200000)
    a(f"s_lshl_b32 s{sT0}, s{sU}, 15")
    for k in range(4):
        if k: a(f"s_add_u32 s{sT0}, s{sT0}, {16 << 15}")
        for q in range(4):
            a(f"buffer_load_dwordx4 {vr(R+16*k+4*q,4)}, v{vA}, s[{sIN}:{sIN+3}], s{sT0} offen offset:{q*32}")
    if not cfg.get("noinit"): wait_init(a)
    a(f"s_lshl_b32 s{sDst}, s{sU}, 15")
    a(f"s_add_u32 s{sDst}, s{sDst}, {OFF_XN:#x}")
    a(f"s_lshl_b32 s{sFl}, s{sU}, 11")
    a(f"s_lshl_b32 s{sT0}, s{sWb}, 2")
    a(f"s_add_u32 s{sFl}, s{sFl}, s{sT0}")
    a(f"s_mov_b32 s{sU}, 0")
    a("s_waitcnt vmcnt(0)")
    a(f"v_lshrrev_b32 v100, 1, v97")
    a(f"v_lshl_add_u32 v{vA}, v100, 12, v102")
    a.label("L_ln0_loop")
    a(f"s_sub_u32 s{sT0}, s{sDst}, {OFF_XN-OFF_XR:#x}")
    for q in range(4):
        a(f"buffer_store_dwordx4 {vr(R+4*q,4)}, v{vA}, {W}, s{sT0} offen offset:{q*1024} sc1")
    ln_to_xn(a, X, T, R, P, vP)
    for i in range(24): a(f"v_mov_b64 {vr(R+2*i,2)}, {vr(R+16+2*i,2)}")
    a("s_waitcnt vmcnt(0)")
    set_flag(a, vOne, sFl, F_XN)
    a(f"s_add_u32 s{sDst}, s{sDst}, {16 << 15}")
    a(f"s_add_u32 s{sFl}, s{sFl}, {16 << 11}")
    a(f"s_add_u32 s{sU}, s{sU}, 1")
    a(f"s_cmp_lt_u32 s{sU}, 4")
    a("s_cbranch_scc1 L_ln0_loop")
    a.label("L_ln0_done")

def role_rows(a, cfg):
    sWb, sIb, sLo = 61, 62, 63
    vA = 8
    vP = 12
    vP2 = 7
    vFx = 13
    c_, gi = 96, 97
    a.label("L_rows")
    common_start(a)
    a(f"s_sub_u32 s{sWb}, s{sMEMB}, 28")
    a(f"s_lshl_b32 s{sWb}, s{sWb}, 1")
    a(f"s_and_b32 s{sT0}, s{sWAVE}, 1")
    a(f"s_add_u32 s{sWb}, s{sWb}, s{sT0}")
    rows_setup(a, sWb)
    a(f"s_cmp_ge_u32 s{sWAVE}, 2")
    a("s_cbranch_scc1 L_re")
    SelLo, SelHi = 104, 108
    X, T, P, R, RN = 16, 48, 128, 112, 192
    a(f"v_lshlrev_b32 v{vFo}, 2, v0")
    a(f"v_add_u32 v{vFo}, {F_PART}, v{vFo}")
    a(f"v_and_b32 v{vFx}, 7, v0")
    a(f"v_lshlrev_b32 v{vFx}, 2, v{vFx}")
    a("v_bfe_u32 v100, v0, 3, 1")
    a("v_lshl_add_u32 v102, v100, 10, v102")
    a("v_lshrrev_b32 v100, 4, v0")
    a(f"v_lshl_add_u32 v{vP2}, v100, 15, v102")
    a("v_bfe_u32 v100, v0, 4, 1")
    a("v_lshlrev_b32 v101, 12, v100")
    a("v_bfe_u32 v100, v0, 5, 1")
    a("v_lshl_add_u32 v101, v100, 11, v101")
    a(f"v_add_u32 v{vA}, v101, v102")
    a("v_bfe_u32 v100, v0, 2, 2")
    a("v_lshl_add_u32 v101, v100, 9, v101")
    a(f"v_add_u32 v{vP}, v101, v98")
    sel_consts(a, 0, 100, selLo=SelLo, selHi=SelHi)
    def res_loads(sg):
        a(f"s_lshl_b32 s{sT0}, s{sg}, 15")
        a(f"s_add_u32 s{sT0}, s{sT0}, {OFF_XR:#x}")
        for i in range(4):
            if i: a(f"s_add_u32 s{sT0}, s{sT0}, 8192")
            a(f"buffer_load_dwordx4 {vr(RN+4*i,4)}, v{vA}, {W}, s{sT0} offen sc1")
    def before():
        a(f"s_lshl_b32 s{sFl}, s{sSeg}, 11")
        poll_flags(a, vT, vFx, sFl, sleep=8)
        a(f"s_add_u32 s{sFl}, s{sFl}, 2048")
        poll_flags(a, vT, vFx, sFl, sleep=8)
        res_loads(sSeg)
        a("s_waitcnt vmcnt(0)")
    def swaps(r):
        return [f"v_permlane16_swap_b32 v{r+4*p+h}, v{r+4*p+2+h}" for p in range(4) for h in range(2)]
    def body(st, stamp):
        ring_off(a, sSrc, sSeg, R_PART)
        for x in swaps(RN): a(x)
        unpack(a, X, RN, 16)
        poll_flags(a, vT, vFo, sFl, sleep=1)
        stamp("flag")
        trace(a, cfg, 0, sSeg, vT)
        for n in range(16):
            if n and n % 2 == 0: a(f"s_add_u32 s{sSrc}, s{sSrc}, 4096")
            a(f"buffer_load_dwordx4 {vr(P+4*n,4)}, v{vP2}, {W}, s{sSrc} offen offset:{(n%2)*2048} sc1")
        a(f"s_add_u32 s{sT0}, s{sSeg}, 1")
        res_loads(sT0)
        ring_off(a, sT2, sSeg, R_X1)
        a(f"s_add_u32 s{sDst}, s{sT2}, {R_XNB-R_X1:#x}")
        a(f"s_lshl_b32 s{sT0}, s{sWb}, 2")
        a(f"s_add_u32 s{sFl}, s{sFl}, s{sT0}")
        for n in range(16):
            a(f"s_waitcnt vmcnt({19-n})")
            mfma(a, X + 4 * (n // 2), (SelLo, SelHi)[n % 2], P + 4 * n, X + 4 * (n // 2))
            if n >= 5 and n % 2 == 1:
                i = (n - 5) // 2
                cvt(a, R + 2 * i, X + 4 * i); cvt(a, R + 2 * i + 1, X + 4 * i + 2)
        stamp("sum")
        for i in range(12, 16): cvt(a, R + i, X + 2 * i)
        for x in swaps(R): a(x)
        stores = []
        for i in range(4):
            stores.append((f"s_add_u32 s{sT2}, s{sT2}, 8192\n" if i else "") + f"buffer_store_dwordx4 {vr(R+4*i,4)}, v{vP}, {W}, s{sT2} offen{st}")
        layernorm(a, X, T, stores)
        for p in range(4):
            for i in range(4): cvt(a, P + 4 * p + i, X + 8 * p + 2 * i)
            for x in swaps(P)[2*p:2*p+2]: a(x)
            if p: a(f"s_add_u32 s{sDst}, s{sDst}, 8192")
            a(f"buffer_store_dwordx4 {vr(P+4*p,4)}, v{vP}, {W}, s{sDst} offen{st}")
        stamp("ln")
        a("s_waitcnt vmcnt(0)")
        set_flag(a, vOne, sFl, F_XNB, st)
    both_modes(a, "rb", body, cfg, before)
    a.label("L_re")
    a(f"v_and_b32 v{vFo}, 15, v0")
    a(f"v_lshlrev_b32 v{vFo}, 2, v{vFo}")
    a(f"v_add_u32 v{vFo}, {F_X2}, v{vFo}")
    xn_store_addr(a, vP)
    a(f"v_lshrrev_b32 v100, 1, v{gi}")
    a(f"v_lshl_add_u32 v{vA}, v100, 12, v102")
    touch_ring(a, cfg)
    a(f"s_cmp_eq_u32 s{sLAY}, 1")
    a("s_cbranch_scc1 L_exit")
    if not cfg.get("noinit"): wait_init(a)
    else: a("s_barrier")
    stamp = Stamps(a, cfg.get("stamp") == "re", base=4, only=cfg.get("only"))
    a.label("L_re_loop")
    stamp("top")
    a(f"s_lshl_b32 s{sFl}, s{sSeg}, 11")
    ring_off(a, sSrc, sSeg, R_X2)
    poll_flags(a, vT, vFo, sFl, sleep=1)
    stamp("flag")
    trace(a, cfg, 0, sSeg, vT)
    for q in range(4):
        a(f"buffer_load_dwordx4 {vr(R+4*q,4)}, v{vA}, {W}, s{sSrc} offen offset:{q*1024} sc1")
    a(f"s_lshl_b32 s{sT0}, s{sSeg}, 15")
    a(f"s_add_u32 s{sDst}, s{sT0}, {OFF_XN+(64<<15):#x}")
    a(f"s_add_u32 s{sSrc}, s{sT0}, {OFF_X2R:#x}")
    a(f"s_lshl_b32 s{sT0}, s{sWb}, 2")
    a(f"s_add_u32 s{sFl}, s{sFl}, s{sT0}")
    a(f"s_add_u32 s{sFl}, s{sFl}, {64<<11}")
    a("s_waitcnt vmcnt(0)")
    stamp("ld")
    for q in range(4):
        a(f"buffer_store_dwordx4 {vr(R+4*q,4)}, v{vA}, {W}, s{sSrc} offen offset:{q*1024} sc1")
    ln_to_xn(a, X, T, R, P, vP)
    stamp("ln")
    a("s_waitcnt vmcnt(0)")
    set_flag(a, vOne, sFl, F_XN)
    trace(a, cfg, 1, sSeg, vT)
    stamp("end")
    if stamp.on:
        lab = a.newlab("L_nost")
        a(f"s_and_b32 s{sT0}, s{sSeg}, 63")
        a(f"s_cmp_lg_u32 s{sT0}, {cfg.get('stamp_step', 20)}")
        a(f"s_cbranch_scc1 {lab}")
        def row():
            a(f"s_lshl_b32 s{sT0}, s{sGRP}, 7")
            a(f"s_lshl_b32 s{sT1}, s{sMEMB}, 2")
            a(f"s_add_u32 s{sT0}, s{sT0}, s{sT1}")
            a(f"s_add_u32 s{sT0}, s{sT0}, s{sWAVE}")
        dump_stamps(a, stamp, cfg, row)
        a.label(lab)
    a(f"s_add_u32 s{sSeg}, s{sSeg}, 1")
    a(f"s_cmp_lt_u32 s{sSeg}, s{sEnd}")
    a("s_cbranch_scc1 L_re_loop")
    a("s_waitcnt vmcnt(0)")
    a("s_branch L_done")

def role_wo(a, cfg):
    CFG.clear(); CFG.update(cfg)
    a.label("L_wo")
    ln0(a, cfg)
    a(f"s_cmp_lt_u32 s{sMEMB}, 16")
    a("s_cbranch_scc1 L_ra")
    a(f"s_cmp_lt_u32 s{sMEMB}, 24")
    a("s_cbranch_scc1 L_rc")
    a(f"s_cmp_lt_u32 s{sMEMB}, 28")
    a("s_cbranch_scc1 L_rd")
    a("s_branch L_rows")
    role_ra(a, cfg); role_rc(a, cfg); role_rd(a, cfg); role_rows(a, cfg)
```

```python
import sys
from gen_common import *
from gen_chain import chain

HEADER = open('interleave_layers__memory_aug_recurrent_mem_tr__sliding_local_dilated__prompt.s.ref').read().split("; Override launch")[0]

GMAP = [("chain",0,0),("wa",0,0),("chain",1,0),("wa",1,0),("wa",0,1),("wo",0,0),("wa",1,1),("wo",1,0)]
WARM = [3, 6]

def generate(cfg):
    a = Asm()
    roles = cfg.get("roles", {"chain", "wa", "wo"})
    a("s_cmp_ge_u32 s2, 256")
    a("s_cbranch_scc1 L_exit")
    a("s_load_dwordx16 s[4:19], s[0:1], 0")
    a("s_load_dwordx8 s[20:27], s[0:1], 64")
    a("s_load_dwordx2 s[28:29], s[0:1], 96")
    a(f"s_getreg_b32 s{sGRP}, hwreg(HW_REG_XCC_ID, 0, 4)")
    a("v_lshrrev_b32 v1, 6, v0")
    a(f"v_readfirstlane_b32 s{sWAVE}, v1")
    a(f"s_mov_b32 s{sLOCAL}, 1")
    a("s_mov_b32 s31, 0")
    if cfg.get("count_redo"): a("s_memrealtime s[100:101]")
    a("s_waitcnt lgkmcnt(0)")
    set_srd(a, sWS, sWSP, WS_BYTES)
    a(f"s_cmp_lg_u32 s{sWAVE}, 0")
    a("s_cbranch_scc1 L_notw0")
    a(f"s_mov_b32 s{sMEMB}, 32")
    if cfg.get("scramble"):
        a(f"s_lshr_b32 s{sGRP}, s2, {cfg['scramble']}")
        a(f"s_and_b32 s{sGRP}, s{sGRP}, {cfg.get('scramble_mask', 7)}")
    a(f"s_cmp_gt_u32 s{sGRP}, 7")
    a("s_cbranch_scc1 L_noticket")
    a(f"s_mov_b32 s{sMEMB}, 1")
    a(f"s_lshl_b32 s{sT0}, s{sGRP}, 4")
    a(f"s_atomic_add s{sMEMB}, s[{sDBG}:{sDBG+1}], s{sT0} glc")
    a.label("L_noticket")
    a("s_waitcnt lgkmcnt(0)")
    a(f"s_mov_b32 s{sT1}, 1")
    a(f"s_atomic_add s{sT1}, s[{sDBG}:{sDBG+1}], 0x84")
    a(f"s_cmp_lt_u32 s{sMEMB}, 32")
    a("s_cbranch_scc1 L_haverole")
    a("s_waitcnt lgkmcnt(0)")
    lab = a.newlab("L_ovw")
    spin_init(a)
    a.label(lab)
    a(f"s_load_dword s{sFV}, s[{sDBG}:{sDBG+1}], 0x84 glc")
    spin_tick(a)
    a("s_waitcnt lgkmcnt(0)")
    a("s_sleep 12")
    a(f"s_cmp_lt_u32 s{sFV}, 256")
    a(f"s_cbranch_scc1 {lab}")
    a(f"s_mov_b32 s{sT1}, 1")
    a(f"s_atomic_add s{sT1}, s[{sDBG}:{sDBG+1}], 0xc0 glc")
    a(f"s_mov_b32 s{sGRP}, 0")
    a.label("L_ovscan")
    a(f"s_lshl_b32 s{sT0}, s{sGRP}, 4")
    a(f"s_load_dword s{sFV}, s[{sDBG}:{sDBG+1}], s{sT0} glc")
    a("s_waitcnt lgkmcnt(0)")
    a(f"s_min_u32 s{sFV}, s{sFV}, 32")
    a(f"s_add_u32 s{sMEMB}, s{sFV}, s{sT1}")
    a(f"s_cmp_lt_u32 s{sMEMB}, 32")
    a("s_cbranch_scc1 L_haverole")
    a(f"s_sub_u32 s{sT1}, s{sMEMB}, 32")
    a(f"s_add_u32 s{sGRP}, s{sGRP}, 1")
    a(f"s_cmp_lt_u32 s{sGRP}, 8")
    a("s_cbranch_scc1 L_ovscan")
    a.label("L_haverole")
    a(f"s_lshl_b32 s{sT0}, s{sGRP}, 8")
    a(f"s_or_b32 s{sT0}, s{sT0}, s{sMEMB}")
    a(f"v_mov_b32 v1, s{sT0}")
    a("v_mov_b32 v2, 0x27ff0")
    a("ds_write_b32 v2, v1")
    a("s_waitcnt lgkmcnt(0)")
    a("s_branch L_bar0")
    a.label("L_notw0")
    if not cfg.get("nocodepf"):
        a(f"s_cmp_lg_u32 s{sWAVE}, 1")
        a("s_cbranch_scc1 L_bar0")
        a("s_getpc_b64 s[64:65]")
        a.label("L_pcref")
        a(f"s_lshr_b32 s{sT0}, s2, 3")
        a(f"s_lshl_b32 s{sT0}, s{sT0}, 12")
        a("v_and_b32 v1, 63, v0")
        a(f"v_lshl_add_u32 v1, v1, 6, s{sT0}")
        a("v_min_u32 v1, L_codeend-L_pcref-4, v1")
        a("global_load_dword v3, v1, s[64:65]")
    a.label("L_bar0")
    a("s_barrier")
    a("v_mov_b32 v2, 0x27ff0")
    a("ds_read_b32 v1, v2")
    a("s_waitcnt lgkmcnt(0)")
    a(f"v_readfirstlane_b32 s{sT0}, v1")
    a("s_waitcnt vmcnt(0)")
    a("s_barrier")
    a(f"s_and_b32 s{sMEMB}, s{sT0}, 31")
    a(f"s_lshr_b32 s{sGRP}, s{sT0}, 8")
    a(f"s_cmp_gt_u32 s{sGRP}, 7")
    a("s_cbranch_scc1 L_exit")
    trace_setup(a, cfg)
    trace(a, cfg, 7, None, 1)
    gmap = cfg.get("gmap", GMAP)
    for g, (role, lay, par) in enumerate(gmap):
        if role not in roles: continue
        lab = a.newlab("L_ng")
        a(f"s_cmp_lg_u32 s{sGRP}, {g}")
        a(f"s_cbranch_scc1 {lab}")
        a(f"s_mov_b32 s{sLAY}, {lay}")
        a(f"s_mov_b32 s{sT3}, {par}")
        if lay == 1 and not cfg.get("noinit"):
            a(f"s_mov_b32 s{sT2}, {[x for x in range(8) if gmap[x][1] == 1].index(g)}")
            a(f"s_getpc_b64 s[98:99]")
            a(f"s_branch L_init")
        warm = cfg.get("warm", WARM)
        if g in warm: warm_weights(a, cfg, warm.index(g), len(warm))
        a(f"s_branch L_{role}")
        a.label(lab)
    a.label("L_done")
    trace(a, cfg, 8, None, 1)
    a.label("L_exit")
    a("s_endpgm")
    if not cfg.get("noinit"):
        a.label("L_init")
        a(f"s_lshl_b32 s{sT2}, s{sT2}, 5")
        a(f"s_add_u32 s{sT2}, s{sT2}, s{sMEMB}")
        a("v_lshlrev_b32 v1, 3, v0")
        a("v_mov_b64 v[4:5], 0")
        a(f"s_lshl_b32 s{sT1}, s{sT2}, 11")
        a(f"buffer_store_dwordx2 v[4:5], v1, s[{sWS}:{sWS+3}], s{sT1} offen sc1")
        for i in range(4): a(f"v_mov_b32 v{8+i}, -1")
        a(f"s_mul_i32 s{sT1}, s{sT2}, {46*1024}")
        a(f"s_add_u32 s{sT1}, s{sT1}, {OFF_MEM:#x}")
        a(f"buffer_store_dwordx2 v[8:9], v1, s[{sWS}:{sWS+3}], s{sT1} offen sc1")
        a("v_lshlrev_b32 v1, 4, v0")
        a(f"s_add_u32 s{sT1}, s{sT1}, 2048")
        for i in range(11):
            if i: a(f"s_add_u32 s{sT1}, s{sT1}, 4096")
            a(f"buffer_store_dwordx4 v[8:11], v1, s[{sWS}:{sWS+3}], s{sT1} offen sc1")
        a("s_waitcnt vmcnt(0)")
        a("s_barrier")
        a(f"s_cmp_lg_u32 s{sWAVE}, 0")
        a("s_cbranch_scc1 L_init_done")
        a(f"s_mov_b32 s{sT1}, 1")
        a(f"s_atomic_add s{sT1}, s[{sDBG}:{sDBG+1}], 0x80")
        a("s_waitcnt lgkmcnt(0)")
        a.label("L_init_done")
        a("s_add_u32 s98, s98, 4")
        a("s_addc_u32 s99, s99, 0")
        a("s_setpc_b64 s[98:99]")
    if "chain" in roles:
        if cfg.get("v1"):
            from gen_chain_v1 import chain as ch
        else: ch = chain
        ch(a, True, cfg)
        ch(a, False, cfg)
    if "wa" in roles:
        from gen_wa import role_wa
        role_wa(a, cfg)
    if "wo" in roles:
        from gen_wo import role_wo
        role_wo(a, cfg)
    a.label("L_codeend")
    a("s_endpgm")
    if cfg.get("drop"):
        a.ins = [x if not x.text.startswith(cfg["drop"]) else Ins("s_nop 2") for x in a.ins]
    nn = a.fix_hazards(verbose=cfg.get("verbose", False))
    if cfg.get("align", True):
        fx = align8(a)
        if cfg.get("verbose"): print("align", fx)
    errs = a.check_waits()
    for e in errs[:20]: print("WAITERR", e)
    body = a.text()
    txt = HEADER + f"""; @launch grid=(256,1,1) block=(256,1,1) lds=163840
.amdgcn_target "amdgcn-amd-amdhsa--gfx950"
.text
.globl {KNAME}
.p2align 8
.type {KNAME},@function
{KNAME}:
{body}.section .rodata,"a"
.p2align 6
.amdhsa_kernel {KNAME}
  .amdhsa_next_free_vgpr 512
  .amdhsa_next_free_sgpr 102
  .amdhsa_accum_offset 256
  .amdhsa_group_segment_fixed_size 0
  .amdhsa_kernarg_size 104
  .amdhsa_user_sgpr_count 2
  .amdhsa_user_sgpr_kernarg_segment_ptr 1
  .amdhsa_system_sgpr_workgroup_id_x 1
  .amdhsa_float_denorm_mode_32 3
.end_amdhsa_kernel
"""
    return txt, nn, errs

if __name__ == "__main__":
    cfg = eval(sys.argv[2]) if len(sys.argv) > 2 else {}
    txt, nn, errs = generate(cfg)
    open(sys.argv[1], "w").write(txt)
    print("nops", nn, "bytes", len(txt), "errs", len(errs))
```

```python
from gen_common import *

W = f"s[{sWS}:{sWS+3}]"
vL16, vT, vT2, vFo, vOne, vRd = 1, 2, 3, 4, 5, 6
sSeg, sEnd, sFl, sSrc, sDst, sBuf, sLds, sC = 55, 56, 57, 58, 59, 60, 66, 96

def cvt(a, d, s): a(f"v_cvt_pk_bf16_f32 v{d}, v{s}, v{s+1}")
def mfma(a, d, x, y, c):
    a(f"v_mfma_f32_16x16x32_bf16 {vr(d,4)}, {xr(x,4)}, {xr(y,4)}, {vr(c,4) if c is not None else 0}")

def common_start(a):
    a("v_and_b32 v0, 63, v0")
    a(f"v_lshlrev_b32 v{vL16}, 4, v0")
    a(f"s_lshl_b32 s{sLds}, s{sWAVE}, 15")
    a(f"v_mov_b32 v{vOne}, 1")
    a(f"s_lshl_b32 s{sSeg}, s{sLAY}, 6")
    a(f"s_add_u32 s{sEnd}, s{sSeg}, 64")
    a(f"s_mov_b32 s92, 0")
    a(f"s_lshl_b32 s94, s{sLAY}, 21")
    a(f"s_add_u32 s94, s94, {OFF_RING:#x}")

def both_modes(a, name, body, cfg, before=None):
    touch_ring(a, cfg)
    trace(a, cfg, 6, None, vT)
    if not cfg.get("noinit"): wait_init(a)
    else: a("s_barrier")
    if before: before()
    if cfg.get("force_global"):
        a(f"s_branch L_{name}_G")
    else:
        a(f"s_cmp_eq_u32 s{sLOCAL}, 0")
        a(f"s_cbranch_scc1 L_{name}_G")
    for tag, st in (("L", ""), ("G", " sc1")):
        stamp = Stamps(a, cfg.get("stamp") == name and tag == "L", base=4, only=cfg.get("only"))
        a.label(f"L_{name}_{tag}")
        stamp("top")
        a(f"s_lshl_b32 s{sFl}, s{sSeg}, 11")
        body(st, stamp)
        trace(a, cfg, 1, sSeg, vT)
        trace(a, cfg, 5, sSeg, vT)
        stamp("end")
        if stamp.on:
            lab = a.newlab("L_nost")
            a(f"s_and_b32 s{sT0}, s{sSeg}, 63")
            a(f"s_cmp_lg_u32 s{sT0}, {cfg.get('stamp_step', 20)}")
            a(f"s_cbranch_scc1 {lab}")
            def row():
                a(f"s_lshl_b32 s{sT0}, s{sGRP}, 7")
                a(f"s_lshl_b32 s{sT1}, s{sMEMB}, 2")
                a(f"s_add_u32 s{sT0}, s{sT0}, s{sT1}")
                a(f"s_add_u32 s{sT0}, s{sT0}, s{sWAVE}")
            dump_stamps(a, stamp, cfg, row)
            a.label(lab)
        a(f"s_add_u32 s{sSeg}, s{sSeg}, 1")
        a(f"s_cmp_lt_u32 s{sSeg}, s{sEnd}")
        a(f"s_cbranch_scc1 L_{name}_{tag}")
        a("s_waitcnt vmcnt(0)")
        a("s_branch L_done")

sPre, sFlN, vF = 92, 93, 13
sRing, sD0, sD1, sD2, sFlD = 94, 95, 64, 65, 67
CFG = {}

def ring_off(a, dst, sg, part):
    a(f"s_and_b32 s{dst}, s{sg}, {CFG.get('ring', 4)-1}")
    a(f"s_lshl_b32 s{dst}, s{dst}, 18")
    a(f"s_add_u32 s{dst}, s{dst}, s{sRing}")
    if part: a(f"s_add_u32 s{dst}, s{dst}, {part:#x}")

def touch_ring(a, cfg):
    R = CFG.get('ring', 4)
    a(f"s_mul_i32 s{sT0}, s{sMEMB}, {R*8192}")
    a(f"s_mul_i32 s{sT1}, s{sWAVE}, {R*2048}")
    a(f"s_add_u32 s{sT0}, s{sT0}, s{sT1}")
    a(f"s_add_u32 s{sT0}, s{sT0}, s{sRing}")
    for i in range(2 * R):
        if i and i % 4 == 0: a(f"s_add_u32 s{sT0}, s{sT0}, 4096")
        a(f"buffer_load_dwordx4 v[100:103], v{vL16}, {W}, s{sT0} offen offset:{(i%4)*1024} sc1")
    a("s_waitcnt vmcnt(0)")

def dma_ops(npiece, phase_bytes):
    NT = ' nt' if (npiece == 4 and CFG.get('nt_o', False)) else ''
    ops = []
    for ph in range(4):
        for i in range(npiece):
            x = []
            if i == 0:
                x.append(f"s_add_u32 m0, s{sD0}, {ph*phase_bytes}")
                x.append(f"s_add_u32 s{sD2}, s{sD1}, {ph*phase_bytes}")
            x.append(f"buffer_load_dwordx4 v{vL16}, {W}, s{sD2} offen offset:{i*1024} sc1{NT} lds")
            ops.append(x)
    return ops

def dma_setup(a, npiece):
    a(f"s_mul_i32 s{sT0}, s{sWAVE}, {npiece*1024}")
    a(f"s_add_u32 s{sD1}, s{sSrc}, s{sT0}")
    a(f"s_add_u32 s{sD0}, s{sBuf}, s{sT0}")

def guarded(a, ops):
    lab = a.newlab("L_g")
    a(f"s_cbranch_vccz {lab}")
    for x in ops: a(x)
    a.label(lab)

def stage_issue(a, npiece, phase_bytes):
    a(f"s_mul_i32 s{sT0}, s{sWAVE}, {npiece*1024}")
    a(f"s_add_u32 s{sT1}, s{sSrc}, s{sT0}")
    a(f"s_add_u32 s{sT0}, s{sBuf}, s{sT0}")
    for ph in range(4):
        a(f"s_add_u32 m0, s{sT0}, {ph*phase_bytes}")
        if ph: a(f"s_add_u32 s{sT1}, s{sT1}, {phase_bytes}")
        for i in range(npiece):
            a(f"buffer_load_dwordx4 v{vL16}, {W}, s{sT1} offen offset:{i*1024} sc1 lds")

def fetch_input(a, cfg, stamp, src_of, npiece, phase_bytes, bufsize, vbase, sFl=sFl):
    lab = a.newlab("L_pre")
    a(f"s_add_u32 s{sFlN}, s{sFl}, 2048")
    a("s_mov_b64 vcc, 0")
    a(f"s_cmp_eq_u32 s{sPre}, 1")
    a(f"s_cbranch_scc1 {lab}")
    a("s_mov_b64 vcc, -1")
    a(f"s_cmp_eq_u32 s{sPre}, 2")
    a(f"s_cbranch_scc1 {lab}")
    poll_flags(a, vT, vFo, sFl, sleep=1)
    stamp("polled", True)
    src_of(sSeg)
    dma_setup(a, npiece)
    for x in dma_ops(npiece, phase_bytes)[:2 * npiece]:
        for y in x: a(y)
    a("s_mov_b64 vcc, -1")
    a.label(lab)
    stamp("flag")
    trace(a, cfg, 0, sSeg, vT)
    a(f"v_add_u32 v{vRd}, s{sBuf}, v{vbase}")
    a(f"s_xor_b32 s{sBuf}, s{sBuf}, {bufsize}")

def resample():
    return f"buffer_load_dword v{vF}, v{vFo}, {W}, s{sFlN} offen sc1"

def finish(a, cfg, fl, st, nstore, npiece, phase_bytes, src_of):
    lab = a.newlab('L_defer'); no = a.newlab('L_noE'); go = a.newlab('L_goE')
    a(f's_mov_b32 s{sFlD}, s{sFl}')
    a(f's_cmp_eq_u32 s{sPre}, 1')
    a(f's_cbranch_scc1 {lab if cfg.get("defer", False) else no}')
    a(f's_waitcnt vmcnt({nstore})')
    a(f"v_cmp_eq_u32 vcc, 0, v{vF}")
    a(f"s_add_u32 s{sT2}, s{sSeg}, 1")
    a(f"s_cmp_ge_u32 s{sT2}, s{sEnd}")
    a(f"s_cbranch_scc1 {no}")
    a(f"s_cbranch_vccnz {no}")
    src_of(sT2)
    dma_setup(a, npiece)
    for x in dma_ops(npiece, phase_bytes)[:2 * npiece]:
        for y in x: a(y)
    a(f"s_mov_b32 s{sPre}, 2")
    a(f's_waitcnt vmcnt({2*npiece})')
    a(f"s_branch {go}")
    a.label(no)
    a('s_waitcnt vmcnt(0)')
    a.label(go)
    set_flag(a, vOne, sFlD, fl, st)
    a.label(lab)

def gemm_phases(a, nks, npiece, extra, rdoffs, ring, step, src_of, phase_bytes, stamp, nstore, fl, st, rs_at):
    per = nks // 4
    def rd(ks):
        sl = ring + (ks % 3) * 8
        return [f"ds_read_b128 {vr(sl+4*u,4)}, v{vRd} offset:{rdoffs(ks,u)}" for u in range(2)]
    def run(k0, k1, dq, rate=1, restart=True, last=True, rs=False):
        if restart:
            for x in rd(k0) + rd(k0 + 1): a(x)
        for ks in range(k0, k1):
            left = (k1 if last else nks) - 1 - ks
            a(f"s_waitcnt lgkmcnt({2 if left >= 1 else 0})")
            side = rd(ks + 2) if left >= 2 else []
            for _ in range(rate):
                if dq: side = side + ["\n".join(dq.pop(0))]
            if rs and ks == rs_at: side = side + [resample()]
            step(ks, ring + (ks % 3) * 8, side)
            assert not side
        assert not dq
    def sample():
        a(f"buffer_load_dword v{vF}, v{vFo}, {W}, s{sFlN} offen sc1")
        for x in extra: a(x)
    def decide(nolab):
        a(f"s_mov_b32 s{sPre}, 0")
        a(f"s_cbranch_vccnz {nolab}")
        a(f"s_add_u32 s{sT2}, s{sSeg}, 1")
        a(f"s_cmp_ge_u32 s{sT2}, s{sEnd}")
        a(f"s_cbranch_scc1 {nolab}")
        src_of(sT2)
        dma_setup(a, npiece)
        a(f"s_mov_b32 s{sPre}, 1")
    lP, lPn, lBn, lE = a.newlab("L_P"), a.newlab("L_Pn"), a.newlab("L_Bn"), a.newlab("L_E")
    a(f"s_cbranch_vccz {lP}")
    a(f"s_waitcnt vmcnt({npiece})")
    a("s_barrier")
    stamp("b0", True)
    run(0, per, dma_ops(npiece, phase_bytes)[2 * npiece:])
    a(f"s_waitcnt vmcnt({2*npiece})")
    a("s_barrier")
    stamp("b1", True)
    sample()
    run(per, 2 * per, [])
    a("s_waitcnt vmcnt(0)")
    a(f"v_cmp_eq_u32 vcc, 0, v{vF}")
    a("s_barrier")
    stamp("b2", True)
    decide(lBn)
    run(2 * per, nks, dma_ops(npiece, phase_bytes), rate=2)
    a(f"s_branch {lE}")
    a.label(lBn)
    run(2 * per, nks, [], rs=True)
    a(f"s_branch {lE}")
    a.label(lP)
    a(f"s_waitcnt vmcnt({nstore})")
    sample()
    a("s_barrier")
    run(0, per, [])
    a("s_waitcnt vmcnt(0)")
    if CFG.get("defer", False): set_flag(a, vOne, sFlD, fl, st)
    a(f"v_cmp_eq_u32 vcc, 0, v{vF}")
    a("s_barrier")
    decide(lPn)
    dq = dma_ops(npiece, phase_bytes)
    run(per, 2 * per, dq[:per])
    a("s_barrier")
    run(2 * per, nks, dq[per:])
    a(f"s_branch {lE}")
    a.label(lPn)
    run(per, 2 * per, [])
    a("s_barrier")
    run(2 * per, nks, [], rs=True)
    a.label(lE)

def natural_dma64(a, vdst, rowbytes):
    a(f"v_lshrrev_b32 v{vdst}, 2, v0")
    a(f"v_mul_u32_u24 v{vdst}, {rowbytes}, v{vdst}")
    a(f"v_and_b32 v{vT}, 3, v0")
    a(f"v_lshl_add_u32 v{vdst}, v{vT}, 4, v{vdst}")

def img_rd_addr(a, vdst):
    a(f"v_lshrrev_b32 v{vT}, 4, v0")
    a(f"v_lshlrev_b32 v{vT}, 9, v{vT}")
    a(f"v_and_b32 v{vdst}, 15, v0")
    a(f"v_lshl_add_u32 v{vdst}, v{vdst}, 4, v{vT}")

def img2_addr(a, vdst):
    a(f"v_lshrrev_b32 v{vT}, 5, v0")
    a(f"v_lshlrev_b32 v{vdst}, 10, v{vT}")
    a(f"v_bfe_u32 v{vT}, v0, 2, 2")
    a(f"v_lshl_add_u32 v{vdst}, v{vT}, 7, v{vdst}")
    a(f"v_bfe_u32 v{vT}, v0, 4, 1")
    a(f"v_lshl_add_u32 v{vdst}, v{vT}, 6, v{vdst}")
    a(f"v_and_b32 v{vT}, 3, v0")
    a(f"v_lshl_add_u32 v{vdst}, v{vT}, 4, v{vdst}")

sBias, sFlP = 78, 79
def credit_setup(a, vCr, off, n):
    R = CFG.get('ring', 4)
    a(f"s_mov_b32 s{sBias}, 0")
    a(f"v_and_b32 v{vCr}, {n-1}, v0")
    a(f"v_lshlrev_b32 v{vCr}, 2, v{vCr}")
    a(f"v_add_u32 v{vCr}, {off}, v{vCr}")
    a(f"v_add_u32 v{vT}, {R*2048}, v{vFo}")
    a(f"v_cmp_gt_u32 vcc, 32, v0")
    a(f"v_cndmask_b32 v{vCr}, v{vCr}, v{vT}, vcc")

def credit_switch(a, vCr):
    R = CFG.get('ring', 4)
    lab = a.newlab("L_nocr")
    a(f"s_and_b32 s{sT0}, s{sSeg}, 63")
    a(f"s_cmp_lg_u32 s{sT0}, {R-1}")
    a(f"s_cbranch_scc1 {lab}")
    a(f"v_mov_b32 v{vFo}, v{vCr}")
    a(f"s_mov_b32 s{sBias}, {R*2048}")
    a(f"s_sub_u32 s{sFlN}, s{sFlN}, {R*2048}")
    a.label(lab)

def role_ra(a, cfg):
    WT = 256
    vD, vTR, vSt, vCr = 96, 97, 7, 8
    sKs, sNs = 61, 62
    a.label("L_ra")
    common_start(a)
    a(f"s_lshr_b32 s{sKs}, s{sMEMB}, 2")
    a(f"s_and_b32 s{sNs}, s{sMEMB}, 3")
    natural_dma64(a, vD, 1024)
    a(f"v_lshrrev_b32 v{vT}, 2, v0")
    a(f"v_lshlrev_b32 v{vTR}, 6, v{vT}")
    a(f"v_and_b32 v{vT}, 3, v0")
    a(f"v_lshl_add_u32 v{vTR}, v{vT}, 4, v{vTR}")
    a(f"v_add_u32 v{vTR}, s{sLds}, v{vTR}")
    a(f"s_lshl_b32 s{sT2}, s{sKs}, 20")
    a(f"s_lshl_b32 s{sT1}, s{sNs}, 8")
    a(f"s_add_u32 s{sT2}, s{sT2}, s{sT1}")
    a(f"s_lshl_b32 s{sT1}, s{sWAVE}, 6")
    a(f"s_add_u32 s{sT2}, s{sT2}, s{sT1}")
    set_srd(a, sWT, sWO, 0x400000)
    late_start(a, cfg)
    chunks = []
    for ch in range(16):
        def setup(ch=ch): a(f"s_add_u32 s{sT0}, s{sT2}, {ch*65536}")
        def consume(so, ch=ch):
            for e in range(2):
                for t in range(2):
                    for jh in range(2):
                        a(f"ds_read_b64_tr_b16 {xr(WT+((2*ch+e)*2+t)*4+2*jh,2)}, v{vTR} offset:{so+(32*e+16*jh)*64+8*t}")
            a("s_waitcnt lgkmcnt(0)")
        chunks.append(dict(setup=setup, vdma=vD, dstep=16384, consume=consume))
    load_chunks(a, chunks, sLds)
    a(f"v_and_b32 v{vFo}, 31, v0")
    a(f"v_lshlrev_b32 v{vFo}, 2, v{vFo}")
    a(f"s_lshl_b32 s{sT0}, s{sKs}, 7")
    a(f"s_add_u32 s{sT0}, s{sT0}, {F_O}")
    a(f"v_add_u32 v{vFo}, s{sT0}, v{vFo}")
    credit_setup(a, vCr, F_XNB, 8)
    img2_addr(a, vSt)
    a(f"s_lshl_b32 s{sT0}, s{sNs}, 13")
    a(f"s_lshl_b32 s{sT1}, s{sWAVE}, 11")
    a(f"s_add_u32 s{sT0}, s{sT0}, s{sT1}")
    a(f"s_lshl_b32 s{sT1}, s{sKs}, 15")
    a(f"s_add_u32 s{sT0}, s{sT0}, s{sT1}")
    a(f"v_add_u32 v{vSt}, s{sT0}, v{vSt}")
    a(f"s_mov_b32 s{sBuf}, 0")
    ACC, RING = 16, 32
    def body(st, stamp):
        def src_of(sg):
            a(f"s_lshl_b32 s{sSrc}, s{sg}, 18")
            a(f"s_lshl_b32 s{sT0}, s{sKs}, 16")
            a(f"s_add_u32 s{sSrc}, s{sSrc}, s{sT0}")
            a(f"s_add_u32 s{sSrc}, s{sSrc}, {OFF_O:#x}")
        a(f"s_sub_u32 s{sFlP}, s{sFl}, s{sBias}")
        fetch_input(a, cfg, stamp, src_of, 4, 16384, 0x10000, vL16, sFlP)
        credit_switch(a, vCr)
        ring_off(a, sDst, sSeg, R_PART)
        a(f"s_lshl_b32 s{sT0}, s{sMEMB}, 2")
        a(f"s_add_u32 s{sT0}, s{sT0}, s{sWAVE}")
        a(f"s_lshl_b32 s{sT0}, s{sT0}, 2")
        a(f"s_add_u32 s{sFl}, s{sFl}, s{sT0}")
        def step(ks, fr, side):
            for u in range(2):
                for t in range(2):
                    acc = ACC + (u * 2 + t) * 4
                    mfma(a, acc, WT + (ks * 2 + t) * 4, fr + 4 * u, None if ks == 0 else acc)
                    if side: a(side.pop(0))
        gemm_phases(a, 32, 4, [], lambda ks, u: ks * 2048 + u * 1024, RING, step, src_of, 16384, stamp, 2, F_PART, st, CFG.get('rs_ra', 24))
        stamp("gemm")
        for u in range(2):
            for i in range(4): cvt(a, 56 + 4 * u + i, ACC + u * 8 + 2 * i)
            a(f"buffer_store_dwordx4 {vr(56+4*u,4)}, v{vSt}, {W}, s{sDst} offen offset:{u*512}{st}")
        finish(a, cfg, F_PART, st, 2, 4, 16384, src_of)
    both_modes(a, "ra", body, cfg)

def role_rc(a, cfg):
    WT = 256
    vD, vTR, vNeg, vRb = 96, 97, 7, 8
    sHb, sMask, sPrevOK = 61, 76, 62
    a.label("L_rc")
    common_start(a)
    a(f"s_sub_u32 s{sHb}, s{sMEMB}, 16")
    a(f"s_lshl_b32 s{sHb}, s{sHb}, 2")
    a(f"s_add_u32 s{sHb}, s{sHb}, s{sWAVE}")
    a(f"v_lshrrev_b32 v{vD}, 1, v0")
    a(f"v_mul_u32_u24 v{vD}, 3072, v{vD}")
    a(f"v_and_b32 v{vT}, 1, v0")
    a(f"v_lshl_add_u32 v{vD}, v{vT}, 4, v{vD}")
    a(f"v_lshrrev_b32 v{vT}, 4, v0")
    a(f"v_lshlrev_b32 v{vTR}, 8, v{vT}")
    a(f"v_bfe_u32 v{vT}, v0, 2, 2")
    a(f"v_lshl_add_u32 v{vTR}, v{vT}, 5, v{vTR}")
    a(f"v_and_b32 v{vT}, 3, v0")
    a(f"v_lshl_add_u32 v{vTR}, v{vT}, 3, v{vTR}")
    a(f"v_add_u32 v{vTR}, s{sLds}, v{vTR}")
    a(f"s_lshl_b32 s{sT2}, s{sHb}, 5")
    set_srd(a, sWT, sWB, 512 * 3072)
    late_start(a, cfg)
    chunks = []
    for mm in range(3):
        for ch in range(4):
            def setup(mm=mm, ch=ch): a(f"s_add_u32 s{sT0}, s{sT2}, {128*ch*3072 + mm*1024}")
            def consume(so, mm=mm, ch=ch):
                for e in range(4):
                    for jh in range(2):
                        a(f"ds_read_b64_tr_b16 {xr(WT+((4*ch+e)*3+mm)*4+2*jh,2)}, v{vTR} offset:{so+(32*e+4*jh)*32}")
                a("s_waitcnt lgkmcnt(0)")
            chunks.append(dict(setup=setup, vdma=vD, dstep=32 * 3072, consume=consume))
    load_chunks(a, chunks, sLds)
    a(f"v_and_b32 v{vFo}, 7, v0")
    a(f"v_lshlrev_b32 v{vFo}, 2, v{vFo}")
    a(f"v_add_u32 v{vFo}, {F_XNB}, v{vFo}")
    img_rd_addr(a, vRb)
    a(f"v_mov_b32 v{vNeg}, {fbits(-1e9 * 4):#x}")
    a(f"s_mov_b32 s{sC}, {fbits(0.25*1.4426950408889634):#x}")
    a(f"s_mov_b32 s{sC+1}, s{sC}")
    a("v_and_b32 v96, 15, v0")
    a("v_lshrrev_b32 v97, 4, v0")
    a("v_lshlrev_b32 v97, 2, v97")
    for r in range(4):
        a(f"v_add_u32 v98, {r}, v97")
        a(f"v_add_u32 v99, 9, v96")
        a(f"v_cmp_ge_u32 s[{sMask+2*r}:{sMask+2*r+1}], v98, v99")
        a(f"v_sub_u32 v99, v96, v98")
        a(f"v_cmp_ge_u32 s[{sMask+8+2*r}:{sMask+8+2*r+1}], 7, v99")
    KP, VP = (16, 20), (24, 28)
    for r in range(16, 32): a(f"v_mov_b32 v{r}, 0")
    a(f"s_mov_b32 s{sBuf}, 0")
    a(f"s_mov_b64 s[{sPrevOK}:{sPrevOK+1}], 0")
    RING, ACC = 32, 56
    def body(st, stamp):
        def src_of(sg):
            ring_off(a, sSrc, sg, R_XNB)
        fetch_input(a, cfg, stamp, src_of, 2, 8192, 0x8000, vRb)
        ring_off(a, sDst, sSeg, R_OB)
        a(f"s_lshl_b32 s{sT0}, s{sHb}, 10")
        a(f"s_add_u32 s{sDst}, s{sDst}, s{sT0}")
        a(f"s_lshl_b32 s{sT0}, s{sHb}, 2")
        a(f"s_add_u32 s{sFl}, s{sFl}, s{sT0}")
        acc = lambda mm, p: ACC + (p * 3 + mm) * 4
        def step(ks, fr, side):
            for p in range(2):
                c = lambda x: None if ks == 0 else x
                mfma(a, acc(0, p), WT + (ks * 3) * 4, fr + 4 * p, c(acc(0, p)))
                if side: a(side.pop(0))
                mfma(a, acc(1, p), WT + (ks * 3 + 1) * 4, fr + 4 * p, c(acc(1, p)))
                if side: a(side.pop(0))
                mfma(a, acc(2, p), fr + 4 * p, WT + (ks * 3 + 2) * 4, c(acc(2, p)))
                if side: a(side.pop(0))
        gemm_phases(a, 16, 2, [], lambda ks, u: ks * 2048 + u * 256, RING, step, src_of, 8192, stamp, 1, F_OB, st, 15)
        stamp("gemm")
        Q = (80, 82); S = (32, 40); B = (84, 88); O = (48, 52); M = (92, 94)
        for p in range(2):
            cvt(a, Q[p], acc(0, p)); cvt(a, Q[p] + 1, acc(0, p) + 2)
            cvt(a, KP[p] + 2, acc(1, p)); cvt(a, KP[p] + 3, acc(1, p) + 2)
            cvt(a, VP[p] + 2, acc(2, p)); cvt(a, VP[p] + 3, acc(2, p) + 2)
        for p in range(2):
            a(f"v_mfma_f32_16x16x16_bf16 {vr(S[p],4)}, {vr(KP[p],2)}, {vr(Q[p],2)}, 0")
            a(f"v_mfma_f32_16x16x16_bf16 {vr(S[p]+4,4)}, {vr(KP[p]+2,2)}, {vr(Q[p],2)}, 0")
        for r in range(4):
            a(f"s_and_b64 s[{98}:{99}], s[{sMask+2*r}:{sMask+2*r+1}], s[{sPrevOK}:{sPrevOK+1}]")
            for p in range(2):
                a(f"v_cndmask_b32 v{S[p]+r}, v{vNeg}, v{S[p]+r}, s[98:99]")
        for r in range(4):
            for p in range(2):
                a(f"v_cndmask_b32 v{S[p]+4+r}, v{vNeg}, v{S[p]+4+r}, s[{sMask+8+2*r}:{sMask+8+2*r+1}]")
        a(f"s_mov_b64 s[{sPrevOK}:{sPrevOK+1}], -1")
        def both(f):
            for p in range(2): f(p)
        both(lambda p: a(f"v_max3_f32 v{M[p]}, v{S[p]}, v{S[p]+1}, v{S[p]+2}"))
        both(lambda p: a(f"v_max3_f32 v{M[p]}, v{M[p]}, v{S[p]+3}, v{S[p]+4}"))
        both(lambda p: a(f"v_max3_f32 v{M[p]}, v{M[p]}, v{S[p]+5}, v{S[p]+6}"))
        both(lambda p: a(f"v_max_f32 v{M[p]}, v{M[p]}, v{S[p]+7}"))
        def xl(op):
            for sw in ("v_permlane16_swap_b32", "v_permlane32_swap_b32"):
                both(lambda p: a(f"v_mov_b32 v{M[p]+1}, v{M[p]}"))
                both(lambda p: a(f"{sw} v{M[p]}, v{M[p]+1}"))
                both(lambda p: a(f"{op} v{M[p]}, v{M[p]}, v{M[p]+1}"))
        xl("v_max_f32")
        both(lambda p: a(f"v_mul_f32 v{M[p]}, s{sC}, v{M[p]}"))
        for p in range(2):
            for i in range(0, 8, 2):
                a(f"v_pk_fma_f32 {vr(S[p]+i,2)}, {vr(S[p]+i,2)}, s[{sC}:{sC+1}], {vr(M[p],2)} op_sel_hi:[1,1,0] neg_lo:[0,0,1] neg_hi:[0,0,1]")
        for p in range(2):
            for i in range(8): a(f"v_exp_f32 v{S[p]+i}, v{S[p]+i}")
        for p in range(2):
            for i in range(4): cvt(a, B[p] + i, S[p] + 2 * i)
        for p in range(2):
            a(f"v_pk_add_f32 {vr(S[p],2)}, {vr(S[p],2)}, {vr(S[p]+2,2)}")
            a(f"v_pk_add_f32 {vr(S[p]+4,2)}, {vr(S[p]+4,2)}, {vr(S[p]+6,2)}")
            mfma(a, O[p], VP[p], B[p], None)
        both(lambda p: a(f"v_pk_add_f32 {vr(S[p],2)}, {vr(S[p],2)}, {vr(S[p]+4,2)}"))
        both(lambda p: a(f"v_add_f32 v{M[p]}, v{S[p]}, v{S[p]+1}"))
        xl("v_add_f32")
        both(lambda p: a(f"v_rcp_f32 v{M[p]}, v{M[p]}"))
        for p in range(2):
            a(f"v_mov_b64 {vr(KP[p],2)}, {vr(KP[p]+2,2)}")
            a(f"v_mov_b64 {vr(VP[p],2)}, {vr(VP[p]+2,2)}")
        for p in range(2):
            a(f"v_pk_mul_f32 {vr(O[p],2)}, {vr(O[p],2)}, {vr(M[p],2)} op_sel_hi:[1,0]")
            a(f"v_pk_mul_f32 {vr(O[p]+2,2)}, {vr(O[p]+2,2)}, {vr(M[p],2)} op_sel_hi:[1,0]")
        for p in range(2):
            cvt(a, 80 + 2 * p, O[p]); cvt(a, 81 + 2 * p, O[p] + 2)
        a("v_permlane16_swap_b32 v80, v82")
        a("v_permlane16_swap_b32 v81, v83")
        a(f"buffer_store_dwordx4 v[80:83], v{vL16}, {W}, s{sDst} offen{st}")
        stamp("attn")
        finish(a, cfg, F_OB, st, 1, 2, 8192, src_of)
    both_modes(a, "rc", body, cfg)

def role_rd(a, cfg):
    WT = 256
    vD, vTR, vRb, vX1, vSt0, vSt1 = 96, 97, 8, 9, 10, 11
    sMd, sOb, sX1o, sOm, sOs = 61, 62, 63, 76, 77
    a.label("L_rd")
    common_start(a)
    a(f"s_sub_u32 s{sMd}, s{sMEMB}, 24")
    a(f"s_lshl_b32 s{sMd}, s{sMd}, 2")
    a(f"s_add_u32 s{sMd}, s{sMd}, s{sWAVE}")
    natural_dma64(a, vD, 1024)
    a(f"v_lshrrev_b32 v{vT}, 4, v0")
    a(f"v_lshlrev_b32 v{vTR}, 9, v{vT}")
    a(f"v_bfe_u32 v{vT}, v0, 2, 2")
    a(f"v_lshl_add_u32 v{vTR}, v{vT}, 6, v{vTR}")
    a(f"v_and_b32 v{vT}, 3, v0")
    a(f"v_lshl_add_u32 v{vTR}, v{vT}, 4, v{vTR}")
    a(f"v_add_u32 v{vTR}, s{sLds}, v{vTR}")
    a(f"s_lshl_b32 s{sT2}, s{sMd}, 6")
    set_srd(a, sWT, sWBO, 0x80000)
    late_start(a, cfg)
    chunks = []
    for ch in range(8):
        def setup(ch=ch): a(f"s_add_u32 s{sT0}, s{sT2}, {ch*65536}")
        def consume(so, ch=ch):
            for e in range(2):
                for t in range(2):
                    for jh in range(2):
                        a(f"ds_read_b64_tr_b16 {xr(WT+((2*ch+e)*2+t)*4+2*jh,2)}, v{vTR} offset:{so+(32*e+4*jh)*64+8*t}")
            a("s_waitcnt lgkmcnt(0)")
        chunks.append(dict(setup=setup, vdma=vD, dstep=16384, consume=consume))
    load_chunks(a, chunks, sLds)
    a(f"v_and_b32 v{vFo}, 31, v0")
    a(f"v_lshlrev_b32 v{vFo}, 2, v{vFo}")
    a(f"v_add_u32 v{vFo}, {F_OB}, v{vFo}")
    a(f"s_cmp_eq_u32 s{sLAY}, 0")
    a(f"s_mov_b32 s{sT1}, {F_OB}")
    a(f"s_cselect_b32 s{sT1}, {64*2048+F_XN}, s{sT1}")
    credit_setup(a, 12, f"s{sT1}", 8)
    img_rd_addr(a, vRb)
    a(f"s_lshl_b32 s{sT0}, s{sMd}, 11")
    a(f"v_add_u32 v{vX1}, s{sT0}, v{vRb}")
    a(f"s_cmp_eq_u32 s{sLAY}, 0")
    a("s_cbranch_scc1 L_rd_l0")
    set_srd(a, sIN, sOUT, 0x200000)
    a(f"s_mov_b32 s{sOb}, 0")
    a(f"s_mov_b32 s{sOm}, 63")
    a(f"s_mov_b32 s{sOs}, 15")
    a(f"v_and_b32 v{vT}, 15, v0")
    a(f"v_lshlrev_b32 v{vSt0}, 11, v{vT}")
    a(f"v_lshrrev_b32 v{vT}, 4, v0")
    a(f"v_lshl_add_u32 v{vSt0}, v{vT}, 4, v{vSt0}")
    a(f"s_lshl_b32 s{sT0}, s{sMd}, 6")
    a(f"v_add_u32 v{vSt0}, s{sT0}, v{vSt0}")
    a(f"v_add_u32 v{vSt1}, 1024, v{vSt0}")
    a("s_branch L_rd_go")
    a.label("L_rd_l0")
    set_srd(a, sIN, sWSP, WS_BYTES)
    a(f"s_add_u32 s{sOb}, s{sRing}, {R_X2:#x}")
    a(f"s_mov_b32 s{sOm}, {CFG.get('ring', 4)-1}")
    a(f"s_mov_b32 s{sOs}, 18")
    img2_addr(a, vSt0)
    a(f"s_lshl_b32 s{sT0}, s{sMd}, 11")
    a(f"v_add_u32 v{vSt0}, s{sT0}, v{vSt0}")
    a(f"v_add_u32 v{vSt1}, 512, v{vSt0}")
    a.label("L_rd_go")
    a(f"s_mov_b32 s{sBuf}, 0")
    ACC, RING, XR = 16, 32, 56
    def body(st, stamp):
        def src_of(sg):
            ring_off(a, sSrc, sg, R_OB)
        a(f"s_sub_u32 s{sFlP}, s{sFl}, s{sBias}")
        fetch_input(a, cfg, stamp, src_of, 2, 8192, 0x8000, vRb, sFlP)
        credit_switch(a, 12)
        ring_off(a, sX1o, sSeg, R_X1)
        extra = [f"buffer_load_dwordx4 {vr(XR+4*u,4)}, v{vX1}, {W}, s{sX1o} offen offset:{u*256} sc1" for u in range(2)]
        a(f"s_and_b32 s{sDst}, s{sSeg}, s{sOm}")
        a(f"s_lshl_b32 s{sDst}, s{sDst}, s{sOs}")
        a(f"s_add_u32 s{sDst}, s{sDst}, s{sOb}")
        a(f"s_lshl_b32 s{sT0}, s{sMd}, 2")
        a(f"s_add_u32 s{sFl}, s{sFl}, s{sT0}")
        def step(ks, fr, side):
            for u in range(2):
                for t in range(2):
                    acc = ACC + (u * 2 + t) * 4
                    mfma(a, acc, WT + (ks * 2 + t) * 4, fr + 4 * u, None if ks == 0 else acc)
                    if side: a(side.pop(0))
        gemm_phases(a, 16, 2, extra, lambda ks, u: ks * 2048 + u * 256, RING, step, src_of, 8192, stamp, 2, F_X2, st, 13)
        stamp("gemm")
        for i in range(8):
            a(f"v_lshlrev_b32 v{64+2*i}, 16, v{XR+i}")
            a(f"v_and_b32 v{65+2*i}, 0xffff0000, v{XR+i}")
        for i in range(8):
            cvt(a, 80 + i, ACC + 2 * i)
        for i in range(8):
            a(f"v_lshlrev_b32 v{ACC+2*i}, 16, v{80+i}")
            a(f"v_and_b32 v{ACC+2*i+1}, 0xffff0000, v{80+i}")
        for i in range(8):
            a(f"v_pk_add_f32 {vr(ACC+2*i,2)}, {vr(ACC+2*i,2)}, {vr(64+2*i,2)}")
        for u in range(2):
            for i in range(4): cvt(a, 80 + 4 * u + i, ACC + 8 * u + 2 * i)
            a(f"buffer_store_dwordx4 {vr(80+4*u,4)}, v{(vSt0, vSt1)[u]}, s[{sIN}:{sIN+3}], s{sDst} offen{st}")
        finish(a, cfg, F_X2, st, 2, 2, 8192, src_of)
    both_modes(a, "rd", body, cfg)

def row_reduce(a, r, t):
    a(f"v_add_f32_dpp v{r}, v{r}, v{r} row_ror:4 row_mask:0xf bank_mask:0xf")
    a(f"v_add_f32_dpp v{r}, v{r}, v{r} row_ror:8 row_mask:0xf bank_mask:0xf")
    xlane_g(a, "v_add_f32", r, t)

def rnd_bf16(a, r):
    a(f"v_cvt_pk_bf16_f32 v{r}, v{r}, v{r}")
    a(f"v_and_b32 v{r}, 0xffff0000, v{r}")

def layernorm(a, X, T, between=()):
    m, t, s, t2 = T, T + 2, T + 4, T + 6
    between = list(between)
    a(f"v_pk_add_f32 {vr(m,2)}, {vr(X,2)}, {vr(X+2,2)}")
    a(f"v_pk_mul_f32 {vr(s,2)}, {vr(X,2)}, {vr(X,2)}")
    a(f"v_pk_fma_f32 {vr(s,2)}, {vr(X+2,2)}, {vr(X+2,2)}, {vr(s,2)}")
    for i in range(4, 32, 2):
        a(f"v_pk_add_f32 {vr(m,2)}, {vr(m,2)}, {vr(X+i,2)}")
        a(f"v_pk_fma_f32 {vr(s,2)}, {vr(X+i,2)}, {vr(X+i,2)}, {vr(s,2)}")
    a(f"v_add_f32 v{m}, v{m}, v{m+1}")
    a(f"v_add_f32 v{s}, v{s}, v{s+1}")
    def gap():
        if between: a(between.pop(0))
    for ror in (4, 8):
        gap()
        a(f"v_add_f32_dpp v{m}, v{m}, v{m} row_ror:{ror} row_mask:0xf bank_mask:0xf")
        a(f"v_add_f32_dpp v{s}, v{s}, v{s} row_ror:{ror} row_mask:0xf bank_mask:0xf")
    for sw in ("v_permlane16_swap_b32", "v_permlane32_swap_b32"):
        a(f"v_mov_b32 v{t}, v{m}")
        a(f"v_mov_b32 v{t2}, v{s}")
        gap()
        a(f"{sw} v{m}, v{t}")
        a(f"{sw} v{s}, v{t2}")
        a(f"v_add_f32 v{m}, v{m}, v{t}")
        a(f"v_add_f32 v{s}, v{s}, v{t2}")
    a(f"v_mul_f32 v{m}, {fbits(1/512):#x}, v{m}")
    a(f"v_mul_f32 v{s}, {fbits(1/512):#x}, v{s}")
    a(f"v_fma_f32 v{s}, -v{m}, v{m}, v{s}")
    a(f"v_max_f32 v{s}, 0, v{s}")
    rnd_bf16(a, m)
    rnd_bf16(a, s)
    a(f"v_add_f32 v{s}, {fbits(1e-5):#x}, v{s}")
    rnd_bf16(a, s)
    a(f"v_sqrt_f32 v{s}, v{s}")
    gap()
    rnd_bf16(a, s)
    a(f"v_rcp_f32 v{s}, v{s}")
    for x in between: a(x)
    a(f"v_mul_f32 v{m}, v{m}, v{s}")
    for i in range(0, 32, 2):
        a(f"v_pk_fma_f32 {vr(X+i,2)}, {vr(X+i,2)}, {vr(s,2)}, {vr(m,2)} op_sel_hi:[1,0,0] neg_lo:[0,0,1] neg_hi:[0,0,1]")

def unpack(a, dst, src, n):
    for i in range(n):
        a(f"v_lshlrev_b32 v{dst+2*i}, 16, v{src+i}")
        a(f"v_and_b32 v{dst+2*i+1}, 0xffff0000, v{src+i}")

def rows_setup(a, sWb):
    c_, gi = 96, 97
    a(f"s_and_b32 s{sT0}, s{sWb}, 1")
    a(f"s_lshr_b32 s{sT1}, s{sWb}, 1")
    a(f"s_lshl_b32 s{sT1}, s{sT1}, 2")
    a(f"v_and_b32 v{c_}, 3, v0")
    a(f"v_add_u32 v{c_}, s{sT1}, v{c_}")
    a(f"v_lshrrev_b32 v{gi}, 2, v0")
    a(f"s_lshl_b32 s{sT1}, s{sT0}, 8")
    a(f"v_lshl_add_u32 v98, v{c_}, 4, s{sT1}")
    a(f"s_lshl_b32 s{sT1}, s{sT0}, 10")
    a(f"v_lshl_add_u32 v99, v{c_}, 11, s{sT1}")
    a(f"s_lshl_b32 s{sT1}, s{sT0}, 9")
    a(f"s_lshr_b32 s{sT2}, s{sWb}, 1")
    a(f"s_lshl_b32 s{sT2}, s{sT2}, 7")
    a(f"s_add_u32 s{sT1}, s{sT1}, s{sT2}")
    a(f"v_and_b32 v102, 7, v0")
    a(f"v_lshl_add_u32 v102, v102, 4, s{sT1}")

def xn_store_addr(a, vP):
    a(f"s_lshl_b32 s{sT1}, s{sT0}, 10")
    a(f"v_lshl_add_u32 v{vP}, v96, 4, s{sT1}")
    a(f"v_lshl_add_u32 v{vP}, v97, 11, v{vP}")

def ln_to_xn(a, X, T, R, P, vP):
    unpack(a, X, R, 16)
    layernorm(a, X, T)
    for g in range(4):
        for dj in range(4):
            half = dj & 1; jh = dj >> 1
            e = 4 * (g >> 1) + 2 * (g & 1) + jh
            a(f"v_cvt_pk_bf16_f32 v{P+4*g+dj}, v{X+8*half+e}, v{X+8*(2+half)+e}")
        a(f"buffer_store_dwordx4 {vr(P+4*g,4)}, v{vP}, {W}, s{sDst} offen offset:{g*256} sc1")

def ln0(a, cfg):
    sWb, sU = 61, 62
    vA, vP = 8, 12
    X, T, P, R = 16, 48, 128, 144
    a(f"s_cmp_eq_u32 s{sLAY}, 0")
    a("s_cbranch_scc1 L_ln0_done")
    a("v_and_b32 v0, 63, v0")
    a(f"v_mov_b32 v{vOne}, 1")
    a(f"s_lshl_b32 s{sU}, s{sMEMB}, 2")
    a(f"s_add_u32 s{sU}, s{sU}, s{sWAVE}")
    a(f"s_and_b32 s{sWb}, s{sU}, 7")
    a(f"s_lshr_b32 s{sU}, s{sU}, 3")
    rows_setup(a, sWb)
    xn_store_addr(a, vP)
    a(f"v_lshrrev_b32 v100, 1, v97")
    a(f"v_and_b32 v101, 1, v97")
    a(f"v_lshl_add_u32 v100, v100, 3, v101")
    a(f"v_lshl_add_u32 v{vA}, v100, 4, v99")
    set_srd(a, sIN, sX, 0x200000)
    a(f"s_lshl_b32 s{sT0}, s{sU}, 15")
    for k in range(4):
        if k: a(f"s_add_u32 s{sT0}, s{sT0}, {16 << 15}")
        for q in range(4):
            a(f"buffer_load_dwordx4 {vr(R+16*k+4*q,4)}, v{vA}, s[{sIN}:{sIN+3}], s{sT0} offen offset:{q*32}")
    if not cfg.get("noinit"): wait_init(a)
    a(f"s_lshl_b32 s{sDst}, s{sU}, 15")
    a(f"s_add_u32 s{sDst}, s{sDst}, {OFF_XN:#x}")
    a(f"s_lshl_b32 s{sFl}, s{sU}, 11")
    a(f"s_lshl_b32 s{sT0}, s{sWb}, 2")
    a(f"s_add_u32 s{sFl}, s{sFl}, s{sT0}")
    a(f"s_mov_b32 s{sU}, 0")
    a("s_waitcnt vmcnt(0)")
    a(f"v_lshrrev_b32 v100, 1, v97")
    a(f"v_lshl_add_u32 v{vA}, v100, 12, v102")
    a.label("L_ln0_loop")
    a(f"s_sub_u32 s{sT0}, s{sDst}, {OFF_XN-OFF_XR:#x}")
    for q in range(4):
        a(f"buffer_store_dwordx4 {vr(R+4*q,4)}, v{vA}, {W}, s{sT0} offen offset:{q*1024} sc1")
    ln_to_xn(a, X, T, R, P, vP)
    for i in range(24): a(f"v_mov_b64 {vr(R+2*i,2)}, {vr(R+16+2*i,2)}")
    a("s_waitcnt vmcnt(0)")
    set_flag(a, vOne, sFl, F_XN)
    a(f"s_add_u32 s{sDst}, s{sDst}, {16 << 15}")
    a(f"s_add_u32 s{sFl}, s{sFl}, {16 << 11}")
    a(f"s_add_u32 s{sU}, s{sU}, 1")
    a(f"s_cmp_lt_u32 s{sU}, 4")
    a("s_cbranch_scc1 L_ln0_loop")
    a.label("L_ln0_done")

def role_rows(a, cfg):
    sWb, sIb, sLo = 61, 62, 63
    vA = 8
    vP = 12
    vP2 = 7
    vFx = 13
    c_, gi = 96, 97
    a.label("L_rows")
    common_start(a)
    a(f"s_sub_u32 s{sWb}, s{sMEMB}, 28")
    a(f"s_lshl_b32 s{sWb}, s{sWb}, 1")
    a(f"s_and_b32 s{sT0}, s{sWAVE}, 1")
    a(f"s_add_u32 s{sWb}, s{sWb}, s{sT0}")
    rows_setup(a, sWb)
    a(f"s_cmp_ge_u32 s{sWAVE}, 2")
    a("s_cbranch_scc1 L_re")
    SelLo, SelHi = 104, 108
    X, T, P, R, RN = 16, 48, 128, 112, 192
    a(f"v_lshlrev_b32 v{vFo}, 2, v0")
    a(f"v_add_u32 v{vFo}, {F_PART}, v{vFo}")
    a(f"v_and_b32 v{vFx}, 7, v0")
    a(f"v_lshlrev_b32 v{vFx}, 2, v{vFx}")
    a("v_bfe_u32 v100, v0, 3, 1")
    a("v_lshl_add_u32 v102, v100, 10, v102")
    a("v_lshrrev_b32 v100, 4, v0")
    a(f"v_lshl_add_u32 v{vP2}, v100, 15, v102")
    a("v_bfe_u32 v100, v0, 4, 1")
    a("v_lshlrev_b32 v101, 12, v100")
    a("v_bfe_u32 v100, v0, 5, 1")
    a("v_lshl_add_u32 v101, v100, 11, v101")
    a(f"v_add_u32 v{vA}, v101, v102")
    a("v_bfe_u32 v100, v0, 2, 2")
    a("v_lshl_add_u32 v101, v100, 9, v101")
    a(f"v_add_u32 v{vP}, v101, v98")
    sel_consts(a, 0, 100, selLo=SelLo, selHi=SelHi)
    vCa, vCv, sCr = 9, 10, 76
    a(f"v_and_b32 v{vCa}, 15, v0")
    a(f"v_lshlrev_b32 v{vCa}, 2, v{vCa}")
    a(f"v_add_u32 v{vCa}, {F_X2}, v{vCa}")
    def res_loads(sg):
        a(f"s_lshl_b32 s{sT0}, s{sg}, 15")
        a(f"s_add_u32 s{sT0}, s{sT0}, {OFF_XR:#x}")
        for i in range(4):
            if i: a(f"s_add_u32 s{sT0}, s{sT0}, 8192")
            a(f"buffer_load_dwordx4 {vr(RN+4*i,4)}, v{vA}, {W}, s{sT0} offen sc1")
    def before():
        a(f"s_lshl_b32 s{sFl}, s{sSeg}, 11")
        poll_flags(a, vT, vFx, sFl, sleep=8)
        a(f"s_add_u32 s{sFl}, s{sFl}, 2048")
        poll_flags(a, vT, vFx, sFl, sleep=8)
        res_loads(sSeg)
        a("s_waitcnt vmcnt(0)")
    def swaps(r):
        return [f"v_permlane16_swap_b32 v{r+4*p+h}, v{r+4*p+2+h}" for p in range(4) for h in range(2)]
    def body(st, stamp):
        ring_off(a, sSrc, sSeg, R_PART)
        for x in swaps(RN): a(x)
        unpack(a, X, RN, 16)
        poll_flags(a, vT, vFo, sFl, sleep=1)
        stamp("flag")
        trace(a, cfg, 0, sSeg, vT)
        for n in range(16):
            if n and n % 2 == 0: a(f"s_add_u32 s{sSrc}, s{sSrc}, 4096")
            a(f"buffer_load_dwordx4 {vr(P+4*n,4)}, v{vP2}, {W}, s{sSrc} offen offset:{(n%2)*2048} sc1")
        a(f"s_and_b32 s{sT0}, s{sSeg}, 63")
        a(f"s_cmp_ge_u32 s{sT0}, {CFG.get('ring', 4)}")
        a(f"s_cselect_b32 s{sCr}, {CFG.get('ring', 4)*2048+F_PART-F_X2}, 0")
        a(f"s_sub_u32 s{sCr}, s{sFl}, s{sCr}")
        a(f"s_add_u32 s{sCr}, s{sCr}, {F_PART-F_X2}")
        a(f"buffer_load_dword v{vCv}, v{vCa}, {W}, s{sCr} offen sc1")
        a(f"s_add_u32 s{sT0}, s{sSeg}, 1")
        res_loads(sT0)
        ring_off(a, sT2, sSeg, R_X1)
        a(f"s_add_u32 s{sDst}, s{sT2}, {R_XNB-R_X1:#x}")
        a(f"s_lshl_b32 s{sT0}, s{sWb}, 2")
        a(f"s_add_u32 s{sFl}, s{sFl}, s{sT0}")
        for n in range(16):
            a(f"s_waitcnt vmcnt({20-n})")
            mfma(a, X + 4 * (n // 2), (SelLo, SelHi)[n % 2], P + 4 * n, X + 4 * (n // 2))
            if n >= 5 and n % 2 == 1:
                i = (n - 5) // 2
                cvt(a, R + 2 * i, X + 4 * i); cvt(a, R + 2 * i + 1, X + 4 * i + 2)
        stamp("sum")
        lab = a.newlab("L_crok")
        a("s_waitcnt vmcnt(4)")
        a(f"v_cmp_eq_u32 vcc, 0, v{vCv}")
        a(f"s_cbranch_vccz {lab}")
        poll_flags(a, vCv, vCa, sCr, sleep=2)
        a.label(lab)
        for i in range(12, 16): cvt(a, R + i, X + 2 * i)
        for x in swaps(R): a(x)
        stores = []
        for i in range(4):
            stores.append((f"s_add_u32 s{sT2}, s{sT2}, 8192\n" if i else "") + f"buffer_store_dwordx4 {vr(R+4*i,4)}, v{vP}, {W}, s{sT2} offen{st}")
        layernorm(a, X, T, stores)
        for p in range(4):
            for i in range(4): cvt(a, P + 4 * p + i, X + 8 * p + 2 * i)
            for x in swaps(P)[2*p:2*p+2]: a(x)
            if p: a(f"s_add_u32 s{sDst}, s{sDst}, 8192")
            a(f"buffer_store_dwordx4 {vr(P+4*p,4)}, v{vP}, {W}, s{sDst} offen{st}")
        stamp("ln")
        a("s_waitcnt vmcnt(0)")
        set_flag(a, vOne, sFl, F_XNB, st)
    both_modes(a, "rb", body, cfg, before)
    a.label("L_re")
    a(f"v_and_b32 v{vFo}, 15, v0")
    a(f"v_lshlrev_b32 v{vFo}, 2, v{vFo}")
    a(f"v_add_u32 v{vFo}, {F_X2}, v{vFo}")
    xn_store_addr(a, vP)
    a(f"v_lshrrev_b32 v100, 1, v{gi}")
    a(f"v_lshl_add_u32 v{vA}, v100, 12, v102")
    touch_ring(a, cfg)
    a(f"s_cmp_eq_u32 s{sLAY}, 1")
    a("s_cbranch_scc1 L_exit")
    if not cfg.get("noinit"): wait_init(a)
    else: a("s_barrier")
    stamp = Stamps(a, cfg.get("stamp") == "re", base=4, only=cfg.get("only"))
    a.label("L_re_loop")
    stamp("top")
    a(f"s_lshl_b32 s{sFl}, s{sSeg}, 11")
    ring_off(a, sSrc, sSeg, R_X2)
    poll_flags(a, vT, vFo, sFl, sleep=1)
    stamp("flag")
    trace(a, cfg, 0, sSeg, vT)
    for q in range(4):
        a(f"buffer_load_dwordx4 {vr(R+4*q,4)}, v{vA}, {W}, s{sSrc} offen offset:{q*1024} sc1")
    a(f"s_lshl_b32 s{sT0}, s{sSeg}, 15")
    a(f"s_add_u32 s{sDst}, s{sT0}, {OFF_XN+(64<<15):#x}")
    a(f"s_add_u32 s{sSrc}, s{sT0}, {OFF_X2R:#x}")
    a(f"s_lshl_b32 s{sT0}, s{sWb}, 2")
    a(f"s_add_u32 s{sFl}, s{sFl}, s{sT0}")
    a(f"s_add_u32 s{sFl}, s{sFl}, {64<<11}")
    a("s_waitcnt vmcnt(0)")
    stamp("ld")
    for q in range(4):
        a(f"buffer_store_dwordx4 {vr(R+4*q,4)}, v{vA}, {W}, s{sSrc} offen offset:{q*1024} sc1")
    ln_to_xn(a, X, T, R, P, vP)
    stamp("ln")
    a("s_waitcnt vmcnt(0)")
    set_flag(a, vOne, sFl, F_XN)
    trace(a, cfg, 1, sSeg, vT)
    stamp("end")
    if stamp.on:
        lab = a.newlab("L_nost")
        a(f"s_and_b32 s{sT0}, s{sSeg}, 63")
        a(f"s_cmp_lg_u32 s{sT0}, {cfg.get('stamp_step', 20)}")
        a(f"s_cbranch_scc1 {lab}")
        def row():
            a(f"s_lshl_b32 s{sT0}, s{sGRP}, 7")
            a(f"s_lshl_b32 s{sT1}, s{sMEMB}, 2")
            a(f"s_add_u32 s{sT0}, s{sT0}, s{sT1}")
            a(f"s_add_u32 s{sT0}, s{sT0}, s{sWAVE}")
        dump_stamps(a, stamp, cfg, row)
        a.label(lab)
    a(f"s_add_u32 s{sSeg}, s{sSeg}, 1")
    a(f"s_cmp_lt_u32 s{sSeg}, s{sEnd}")
    a("s_cbranch_scc1 L_re_loop")
    a("s_waitcnt vmcnt(0)")
    a("s_branch L_done")

def role_wo(a, cfg):
    CFG.clear(); CFG.update(cfg)
    a.label("L_wo")
    ln0(a, cfg)
    a(f"s_cmp_lt_u32 s{sMEMB}, 16")
    a("s_cbranch_scc1 L_ra")
    a(f"s_cmp_lt_u32 s{sMEMB}, 24")
    a("s_cbranch_scc1 L_rc")
    a(f"s_cmp_lt_u32 s{sMEMB}, 28")
    a("s_cbranch_scc1 L_rd")
    a("s_branch L_rows")
    role_ra(a, cfg); role_rc(a, cfg); role_rd(a, cfg); role_rows(a, cfg)
```

```python
import sys
from gen_common import *
from gen_chain import chain

HEADER = open('interleave_layers__memory_aug_recurrent_mem_tr__sliding_local_dilated__prompt.s.ref').read().split("; Override launch")[0]

GMAP = [("chain",0,0),("wa",0,0),("chain",1,0),("wa",1,0),("wa",0,1),("wo",0,0),("wa",1,1),("wo",1,0)]
WARM = [3, 6]

def generate(cfg):
    a = Asm()
    roles = cfg.get("roles", {"chain", "wa", "wo"})
    a("s_cmp_ge_u32 s2, 256")
    a("s_cbranch_scc1 L_exit")
    a("s_load_dwordx16 s[4:19], s[0:1], 0")
    a("s_load_dwordx8 s[20:27], s[0:1], 64")
    a("s_load_dwordx2 s[28:29], s[0:1], 96")
    a(f"s_getreg_b32 s{sGRP}, hwreg(HW_REG_XCC_ID, 0, 4)")
    a("v_lshrrev_b32 v1, 6, v0")
    a(f"v_readfirstlane_b32 s{sWAVE}, v1")
    a(f"s_mov_b32 s{sLOCAL}, 1")
    a("s_mov_b32 s31, 0")
    if cfg.get("count_redo") or cfg.get("hold_us"): a("s_memrealtime s[100:101]")
    a("s_waitcnt lgkmcnt(0)")
    set_srd(a, sWS, sWSP, WS_BYTES)
    a(f"s_cmp_lg_u32 s{sWAVE}, 0")
    a("s_cbranch_scc1 L_notw0")
    a(f"s_mov_b32 s{sMEMB}, 32")
    if cfg.get("scramble"):
        a(f"s_lshr_b32 s{sGRP}, s2, {cfg['scramble']}")
        a(f"s_and_b32 s{sGRP}, s{sGRP}, {cfg.get('scramble_mask', 7)}")
    a(f"s_cmp_gt_u32 s{sGRP}, 7")
    a("s_cbranch_scc1 L_noticket")
    a(f"s_mov_b32 s{sMEMB}, 1")
    a(f"s_lshl_b32 s{sT0}, s{sGRP}, 4")
    a(f"s_atomic_add s{sMEMB}, s[{sDBG}:{sDBG+1}], s{sT0} glc")
    a.label("L_noticket")
    a("s_waitcnt lgkmcnt(0)")
    a(f"s_mov_b32 s{sT1}, 1")
    a(f"s_atomic_add s{sT1}, s[{sDBG}:{sDBG+1}], 0x84")
    a(f"s_cmp_lt_u32 s{sMEMB}, 32")
    a("s_cbranch_scc1 L_haverole")
    a("s_waitcnt lgkmcnt(0)")
    lab = a.newlab("L_ovw")
    spin_init(a)
    a.label(lab)
    a(f"s_load_dword s{sFV}, s[{sDBG}:{sDBG+1}], 0x84 glc")
    spin_tick(a)
    a("s_waitcnt lgkmcnt(0)")
    a("s_sleep 12")
    a(f"s_cmp_lt_u32 s{sFV}, 256")
    a(f"s_cbranch_scc1 {lab}")
    a(f"s_mov_b32 s{sT1}, 1")
    a(f"s_atomic_add s{sT1}, s[{sDBG}:{sDBG+1}], 0xc0 glc")
    a(f"s_mov_b32 s{sGRP}, 0")
    a.label("L_ovscan")
    a(f"s_lshl_b32 s{sT0}, s{sGRP}, 4")
    a(f"s_load_dword s{sFV}, s[{sDBG}:{sDBG+1}], s{sT0} glc")
    a("s_waitcnt lgkmcnt(0)")
    a(f"s_min_u32 s{sFV}, s{sFV}, 32")
    a(f"s_add_u32 s{sMEMB}, s{sFV}, s{sT1}")
    a(f"s_cmp_lt_u32 s{sMEMB}, 32")
    a("s_cbranch_scc1 L_haverole")
    a(f"s_sub_u32 s{sT1}, s{sMEMB}, 32")
    a(f"s_add_u32 s{sGRP}, s{sGRP}, 1")
    a(f"s_cmp_lt_u32 s{sGRP}, 8")
    a("s_cbranch_scc1 L_ovscan")
    a.label("L_haverole")
    a(f"s_lshl_b32 s{sT0}, s{sGRP}, 8")
    a(f"s_or_b32 s{sT0}, s{sT0}, s{sMEMB}")
    a(f"v_mov_b32 v1, s{sT0}")
    a("v_mov_b32 v2, 0x27ff0")
    a("ds_write_b32 v2, v1")
    a("s_waitcnt lgkmcnt(0)")
    a("s_branch L_bar0")
    a.label("L_notw0")
    if not cfg.get("nocodepf"):
        a(f"s_cmp_lg_u32 s{sWAVE}, 1")
        a("s_cbranch_scc1 L_bar0")
        a("s_getpc_b64 s[64:65]")
        a.label("L_pcref")
        a(f"s_lshr_b32 s{sT0}, s2, 3")
        a(f"s_lshl_b32 s{sT0}, s{sT0}, 12")
        a("v_and_b32 v1, 63, v0")
        a(f"v_lshl_add_u32 v1, v1, 6, s{sT0}")
        a("v_min_u32 v1, L_codeend-L_pcref-4, v1")
        a("global_load_dword v3, v1, s[64:65]")
    a.label("L_bar0")
    a("s_barrier")
    a("v_mov_b32 v2, 0x27ff0")
    a("ds_read_b32 v1, v2")
    a("s_waitcnt lgkmcnt(0)")
    a(f"v_readfirstlane_b32 s{sT0}, v1")
    a("s_waitcnt vmcnt(0)")
    a("s_barrier")
    a(f"s_and_b32 s{sMEMB}, s{sT0}, 31")
    a(f"s_lshr_b32 s{sGRP}, s{sT0}, 8")
    a(f"s_cmp_gt_u32 s{sGRP}, 7")
    a("s_cbranch_scc1 L_exit")
    trace_setup(a, cfg)
    trace(a, cfg, 7, None, 1)
    gmap = cfg.get("gmap", GMAP)
    for g, (role, lay, par) in enumerate(gmap):
        if role not in roles: continue
        lab = a.newlab("L_ng")
        a(f"s_cmp_lg_u32 s{sGRP}, {g}")
        a(f"s_cbranch_scc1 {lab}")
        a(f"s_mov_b32 s{sLAY}, {lay}")
        a(f"s_mov_b32 s{sT3}, {par}")
        if lay == 1 and not cfg.get("noinit"):
            a(f"s_mov_b32 s{sT2}, {[x for x in range(8) if gmap[x][1] == 1].index(g)}")
            a(f"s_getpc_b64 s[98:99]")
            a(f"s_branch L_init")
        warm = cfg.get("warm", WARM)
        if g in warm: warm_weights(a, cfg, warm.index(g), len(warm))
        a(f"s_branch L_{role}")
        a.label(lab)
    a.label("L_done")
    trace(a, cfg, 8, None, 1)
    if cfg.get("hold_us"):
        a.label("L_hold")
        a("s_memrealtime s[70:71]")
        a("s_waitcnt lgkmcnt(0)")
        a("s_sub_u32 s70, s70, s100")
        a(f"s_cmp_lt_u32 s70, {cfg['hold_us']*100}")
        a("s_cbranch_scc1 L_hold")
    a.label("L_exit")
    a("s_endpgm")
    if not cfg.get("noinit"):
        a.label("L_init")
        a(f"s_lshl_b32 s{sT2}, s{sT2}, 5")
        a(f"s_add_u32 s{sT2}, s{sT2}, s{sMEMB}")
        a("v_lshlrev_b32 v1, 3, v0")
        a("v_mov_b64 v[4:5], 0")
        a(f"s_lshl_b32 s{sT1}, s{sT2}, 11")
        a(f"buffer_store_dwordx2 v[4:5], v1, s[{sWS}:{sWS+3}], s{sT1} offen sc1")
        for i in range(4): a(f"v_mov_b32 v{8+i}, -1")
        a(f"s_mul_i32 s{sT1}, s{sT2}, {46*1024}")
        a(f"s_add_u32 s{sT1}, s{sT1}, {OFF_MEM:#x}")
        a(f"buffer_store_dwordx2 v[8:9], v1, s[{sWS}:{sWS+3}], s{sT1} offen sc1")
        a("v_lshlrev_b32 v1, 4, v0")
        a(f"s_add_u32 s{sT1}, s{sT1}, 2048")
        for i in range(11):
            if i: a(f"s_add_u32 s{sT1}, s{sT1}, 4096")
            a(f"buffer_store_dwordx4 v[8:11], v1, s[{sWS}:{sWS+3}], s{sT1} offen sc1")
        a("s_waitcnt vmcnt(0)")
        a("s_barrier")
        a(f"s_cmp_lg_u32 s{sWAVE}, 0")
        a("s_cbranch_scc1 L_init_done")
        a(f"s_mov_b32 s{sT1}, 1")
        a(f"s_atomic_add s{sT1}, s[{sDBG}:{sDBG+1}], 0x80")
        a("s_waitcnt lgkmcnt(0)")
        a.label("L_init_done")
        a("s_add_u32 s98, s98, 4")
        a("s_addc_u32 s99, s99, 0")
        a("s_setpc_b64 s[98:99]")
    if "chain" in roles:
        if cfg.get("v1"):
            from gen_chain_v1 import chain as ch
        else: ch = chain
        ch(a, True, cfg)
        ch(a, False, cfg)
    if "wa" in roles:
        from gen_wa import role_wa
        role_wa(a, cfg)
    if "wo" in roles:
        from gen_wo import role_wo
        role_wo(a, cfg)
    a.label("L_codeend")
    a("s_endpgm")
    if cfg.get("drop"):
        a.ins = [x if not x.text.startswith(cfg["drop"]) else Ins("s_nop 2") for x in a.ins]
    nn = a.fix_hazards(verbose=cfg.get("verbose", False))
    if cfg.get("align", True):
        fx = align8(a)
        if cfg.get("verbose"): print("align", fx)
    errs = a.check_waits()
    for e in errs[:20]: print("WAITERR", e)
    body = a.text()
    txt = HEADER + f"""; @launch grid=(256,1,1) block=(256,1,1) lds=163840
.amdgcn_target "amdgcn-amd-amdhsa--gfx950"
.text
.globl {KNAME}
.p2align 8
.type {KNAME},@function
{KNAME}:
{body}.section .rodata,"a"
.p2align 6
.amdhsa_kernel {KNAME}
  .amdhsa_next_free_vgpr 512
  .amdhsa_next_free_sgpr 102
  .amdhsa_accum_offset 256
  .amdhsa_group_segment_fixed_size 0
  .amdhsa_kernarg_size 104
  .amdhsa_user_sgpr_count 2
  .amdhsa_user_sgpr_kernarg_segment_ptr 1
  .amdhsa_system_sgpr_workgroup_id_x 1
  .amdhsa_float_denorm_mode_32 3
.end_amdhsa_kernel
"""
    return txt, nn, errs

if __name__ == "__main__":
    cfg = eval(sys.argv[2]) if len(sys.argv) > 2 else {}
    txt, nn, errs = generate(cfg)
    open(sys.argv[1], "w").write(txt)
    print("nops", nn, "bytes", len(txt), "errs", len(errs))
```

```python
from gen_common import *

def chain(a, local, cfg):
    st = "" if local else " sc1"
    tag = "L" if local else "G"
    stamp = Stamps(a, cfg.get("stamp") == "chain" and local, only=cfg.get("only"))
    vL16, vIdx, vLdsW, vSwx, vSwm, vSrx, vSrm, vOw, vOr, vX1s, vX1l, vX2s = range(1, 13)
    vR, vOnes, vT = 13, 14, 15
    vAw = 0
    sKVb, sKT, sLim, sKVc, sLate = 93, 95, 63, 66, 67
    SelT, VACC, SelM = 16, 20, 28
    q0, k0, q1, k1 = 32, 36, 40, 44
    Kx, Vx, RING, A, WO = 48, 56, 64, 96, 128
    WK, WV = 256, 384
    sStep, sTag, sX2st, sX2re, sMemOff, sKV, sX1a, sX1b, sC = 55, 56, 57, 58, 59, 60, 61, 62, 96
    sMaskHi = 64
    sLds, sRot = 66, 67
    sX2l = 92
    AST, KVL, SX, SM, SJ, OA, CST = 0x20000, 0x22000, 0x27000, 0x27800, 0x27f00, 0x26000, 0x27a00
    sKVL = 94
    lane = 0
    if cfg.get("chain_prologue_done") is None:
        cfg["chain_prologue_done"] = True
        a.label("L_chain")
        a(f"v_and_b32 v0, 63, v0")
        a(f"v_lshlrev_b32 v{vL16}, 4, v0")
        a(f"s_lshl_b32 s{sLds}, s{sWAVE}, 15")
        a(f"s_lshl_b32 s{sRot}, s{sWAVE}, 1")
        vD, vTR, vDo, vTRo = 32, 33, 34, 35
        sL2, sL3 = 70, 71
        vD1, vTR1, sLq = 38, 39, 72
        coop_addrs(a, vD, vD1, vTR, vTR1, vT)
        a(f"s_lshl_b32 s{sLq}, s{sWAVE}, 12")
        a(f"v_lshrrev_b32 v{vDo}, 3, v0")
        a(f"v_lshlrev_b32 v{vDo}, 10, v{vDo}")
        a(f"v_and_b32 v{vT}, 7, v0")
        a(f"v_lshl_add_u32 v{vDo}, v{vT}, 4, v{vDo}")
        a(f"v_bfe_u32 v{vT}, v0, 4, 1")
        a(f"v_lshlrev_b32 v{vTRo}, 11, v{vT}")
        a(f"v_bfe_u32 v{vT}, v0, 5, 1")
        a(f"v_lshl_add_u32 v{vTRo}, v{vT}, 9, v{vTRo}")
        a(f"v_bfe_u32 v{vT}, v0, 2, 1")
        a(f"v_lshl_add_u32 v{vTRo}, v{vT}, 7, v{vTRo}")
        a(f"v_bfe_u32 v{vT}, v0, 3, 1")
        a(f"v_lshl_add_u32 v{vTRo}, v{vT}, 5, v{vTRo}")
        a(f"v_and_b32 v{vT}, 3, v0")
        a(f"v_lshl_add_u32 v{vTRo}, v{vT}, 3, v{vTRo}")
        a(f"v_add_u32 v{vTRo}, s{sLq}, v{vTRo}")
        a(f"s_add_u32 s{sT0}, s{sLds}, s{sLq}")
        a(f"v_add_u32 v{vLdsW}, s{sT0}, v{vL16}")
        a(f"s_lshl_b32 s{sL2}, s{sMEMB}, 8")
        a(f"s_lshl_b32 s{sT1}, s{sWAVE}, 15")
        a(f"s_add_u32 s{sL2}, s{sL2}, s{sT1}")
        a(f"s_lshl_b32 s{sL3}, s{sMEMB}, 17")
        a(f"s_lshl_b32 s{sT1}, s{sWAVE}, 8")
        a(f"s_add_u32 s{sL3}, s{sL3}, s{sT1}")
        late_start(a, cfg)
        stages = []
        for ptr, base in ((sWK, WK), (sWV, WV)):
            for J in range(8):
                def consume(slot, J=J, base=base):
                    end = a.newlab("L_cw")
                    for w in range(4):
                        nxt = a.newlab("L_cw")
                        if w < 3:
                            a(f"s_cmp_lg_u32 s{sWAVE}, {w}")
                            a(f"s_cbranch_scc1 {nxt}")
                        jj = J ^ (2 * w)
                        coop_reads(a, slot, vTR, vTR1, 40, base + jj * 16, base + jj * 16 + 8)
                        if w < 3:
                            a(f"s_branch {end}")
                            a.label(nxt)
                    a.label(end)
                stages.append(dict(issue=lambda slot, ptr=ptr, J=J: coop_issue(a, ptr, J, slot, sL2, vD, vD1, sLq), consume=consume))
        for wp in range(4):
            for ap in range(2):
                def issue(slot, wp=wp, ap=ap):
                    if wp == 0 and ap == 0: set_srd(a, sWT, sWO, 0x400000)
                    a(f"s_add_u32 m0, s{sLq}, {slot*16384}")
                    a(f"s_xor_b32 s{sT0}, s{sWAVE}, {wp}")
                    a(f"s_lshl_b32 s{sT0}, s{sT0}, 15")
                    a(f"s_add_u32 s{sT0}, s{sT0}, s{sL3}")
                    if ap: a(f"s_add_u32 s{sT0}, s{sT0}, {ap*128}")
                    for q in range(4):
                        if q: a(f"s_add_u32 s{sT0}, s{sT0}, {8192-1024}")
                        a(f"buffer_load_dwordx4 v{vDo}, s[{sWT}:{sWT+3}], s{sT0} offen offset:{q*1024} lds")
                def consume(slot, wp=wp, ap=ap):
                    va = vTRo
                    if slot >= 4:
                        a(f"v_add_u32 v40, 0x10000, v{vTRo}"); va = 40
                    for a1 in range(2):
                        dst = WO + ((2 * ap + a1) * 4 + wp) * 8
                        for e4 in range(4):
                            off = (slot & 3) * 16384 + (8 * (e4 >> 1) + 2 * (e4 & 1)) * 128 + a1 * 64
                            a(f"ds_read_b64_tr_b16 {vr(dst+2*e4,2)}, v{va} offset:{off}")
                stages.append(dict(issue=issue, consume=consume))
        for J in range(8):
            tmp = RING + 16 * (J & 1)
            def post(slot, tmp=tmp):
                a(f"s_add_u32 s{sT0}, s{sLq}, {slot*16384}")
                a(f"v_add_u32 v40, s{sT0}, v{vL16}")
                for i in range(4):
                    a(f"ds_write_b128 v40, {vr(tmp+4*i,4)} offset:{i*1024}")
            stages.append(dict(issue=lambda slot, J=J: coop_issue(a, sWQ, J, slot, sL2, vD, vD1, sLq),
                               consume=lambda slot, tmp=tmp: coop_reads(a, slot, vTR, vTR1, 40, tmp, tmp + 8), post=post))
        def setup_rest():
            sel_consts(a, lane, 96, selM=SelM, selLo=112, selHi=116, selT=SelT)
            smf_index(a, lane, vIdx, 96)
            n_, g_, q_ = 96, 97, 98
            a(f"v_and_b32 v{n_}, 15, v0")
            a(f"v_lshrrev_b32 v{g_}, 4, v0")
            a(f"v_and_b32 v{q_}, 7, v0")
            a(f"s_mov_b32 s{sMaskHi}, 0xff00ff00")
            a(f"s_mov_b32 s{sMaskHi+1}, 0xff00ff00")
            a(f"v_lshlrev_b32 v99, 3, v{q_}")
            a(f"v_and_b32 v{vT}, 1, v{g_}")
            a(f"v_lshl_add_u32 v99, v{vT}, 6, v99")
            a(f"v_add_u32 v99, {SJ}, v99")
            a(f"v_lshrrev_b32 v{vT}, 1, v{g_}")
            a(f"v_lshlrev_b32 v{vSwx}, 8, v{vT}")
            a(f"v_lshl_add_u32 v{vSwx}, v{q_}, 4, v{vSwx}")
            a(f"v_and_b32 v{vT}, 1, v{g_}")
            a(f"v_lshl_add_u32 v{vSwx}, v{vT}, 3, v{vSwx}")
            a(f"s_lshl_b32 s{sT0}, s{sWAVE}, 9")
            a(f"s_add_u32 s{sT1}, s{sT0}, {SX}")
            a(f"v_add_u32 v{vSwx}, s{sT1}, v{vSwx}")
            a(f"v_cndmask_b32 v{vSwx}, v{vSwx}, v99, s[{sMaskHi}:{sMaskHi+1}]")
            a(f"v_lshlrev_b32 v{vSwm}, 4, v{q_}")
            a(f"v_lshl_add_u32 v{vSwm}, v{vT}, 3, v{vSwm}")
            a(f"s_lshl_b32 s{sT1}, s{sWAVE}, 7")
            a(f"s_add_u32 s{sT1}, s{sT1}, {SM}")
            a(f"v_add_u32 v{vSwm}, s{sT1}, v{vSwm}")
            a(f"s_mov_b32 s98, 0")
            a(f"s_mov_b32 s99, 0x00ff00ff")
            a(f"v_cndmask_b32 v{vSwm}, v99, v{vSwm}, s[98:99]")
            a(f"v_lshlrev_b32 v{vSrx}, 9, v{g_}")
            a(f"v_lshl_add_u32 v{vSrx}, v{n_}, 4, v{vSrx}")
            a(f"v_add_u32 v{vSrx}, {SX}, v{vSrx}")
            a(f"v_lshlrev_b32 v{vSrm}, 7, v{g_}")
            a(f"v_lshl_add_u32 v{vSrm}, v{q_}, 4, v{vSrm}")
            a(f"v_add_u32 v{vSrm}, {SM}, v{vSrm}")
            a(f"s_lshl_b32 s{sT1}, s{sWAVE}, 9")
            a(f"s_add_u32 s{sT1}, s{sT1}, {OA-SM}")
            a(f"v_bfe_u32 v{vT}, v0, 3, 1")
            a(f"v_lshl_add_u32 v{vOw}, v{vT}, 3, v{vSrm}")
            a(f"v_add_u32 v{vOw}, s{sT1}, v{vOw}")
            a(f"v_and_b32 v{vOr}, 0xf0, v{vL16}")
            a(f"v_add_u32 v{vOr}, {CST}, v{vOr}")
            a(f"v_lshrrev_b32 v{vT}, 2, v{n_}")
            a(f"v_lshl_add_u32 v{vT}, v{vT}, 2, v{g_}")
            a(f"v_lshlrev_b32 v{vX1s}, 11, v{vT}")
            a(f"v_and_b32 v{vT}, 3, v0")
            a(f"v_lshl_add_u32 v{vX1s}, v{vT}, 4, v{vX1s}")
            a(f"s_lshl_b32 s{sT0}, s{sWAVE}, 16")
            a(f"s_lshl_b32 s{sT1}, s{sMEMB}, 6")
            a(f"s_add_u32 s{sT0}, s{sT0}, s{sT1}")
            a(f"v_add_u32 v{vX1s}, s{sT0}, v{vX1s}")
            a(f"s_lshl_b32 s{sT2}, s{sMEMB}, 2")
            a(f"s_add_u32 s{sT2}, s{sT2}, s{sWAVE}")
            a(f"s_lshl_b32 s{sT0}, s{sT2}, 11")
            a(f"v_add_u32 v{vX1l}, s{sT0}, v{vL16}")
            a(f"v_lshlrev_b32 v{vX2s}, 4, v{g_}")
            a(f"v_lshl_add_u32 v{vX2s}, v{n_}, 2, v{vX2s}")
            a(f"s_lshl_b32 s{sT0}, s{sT2}, 6")
            a(f"v_add_u32 v{vX2s}, s{sT0}, v{vX2s}")
            a(f"v_mov_b32 v{vT}, {OOB:#x}")
            a(f"v_cmp_gt_u32 vcc, 4, v{n_}")
            a(f"v_cndmask_b32 v{vX2s}, v{vT}, v{vX2s}, vcc")
            a(f"v_and_b32 v100, 3, v0")
            a(f"v_lshlrev_b32 v100, 1, v100")
            a(f"v_lshl_add_u32 v100, v{g_}, 10, v100")
            a(f"v_and_b32 v104, 3, v0")
            a(f"v_bfe_u32 v105, v0, 2, 2")
            a(f"v_lshl_add_u32 v104, v104, 2, v105")
            a(f"v_and_b32 v105, 1, v104")
            a(f"v_lshlrev_b32 v105, 4, v105")
            a(f"v_mov_b32 v106, 0x3f80")
            a(f"v_lshlrev_b32 v105, v105, v106")
            a(f"v_lshrrev_b32 v104, 1, v104")
            for e in range(4):
                a(f"v_cmp_eq_u32 vcc, {e}, v104")
                a(f"v_cndmask_b32 v{108+e}, 0, v105, vcc")
            a(f"v_and_b32 v104, 0xf0, v{vL16}")
            a(f"v_add_u32 v104, {CST}, v104")
            a(f"ds_write_b128 v104, v[108:111]")
            a(f"ds_write_b128 v104, v[112:115] offset:256")
            a(f"ds_write_b128 v104, v[116:119] offset:512")
            for e in range(4): a(f"v_mov_b32 v{120+e}, 0x3f803f80")
            for e in range(4): a(f"v_mov_b32 v{124+e}, 0x3f003f00")
            a(f"ds_write_b128 v104, v[120:123] offset:768")
            a(f"ds_write_b128 v104, v[124:127] offset:1024")
            a(f"s_and_b32 s{sT0}, s{sT2}, 1")
            a(f"s_lshl_b32 s{sT0}, s{sT0}, 12")
            a(f"s_lshr_b32 s{sT1}, s{sT2}, 4")
            a(f"s_lshl_b32 s{sT1}, s{sT1}, 7")
            a(f"s_add_u32 s{sT0}, s{sT0}, s{sT1}")
            a(f"s_bfe_u32 s{sT1}, s{sT2}, 0x10001")
            a(f"s_lshl_b32 s{sT1}, s{sT1}, 5")
            a(f"s_add_u32 s{sT0}, s{sT0}, s{sT1}")
            a(f"s_bfe_u32 s{sT1}, s{sT2}, 0x20002")
            a(f"s_lshl_b32 s{sT1}, s{sT1}, 3")
            a(f"s_add_u32 s{sT0}, s{sT0}, s{sT1}")
            set_srd(a, sIN, sMEM0, 8192)
            a(f"buffer_load_ushort v36, v100, s[{sIN}:{sIN+3}], s{sT0} offen")
            a(f"buffer_load_ushort v37, v100, s[{sIN}:{sIN+3}], s{sT0} offen offset:64")
            a(f"s_mov_b32 s{sStep}, 0")
            a(f"s_mov_b32 s{sTag}, 0")
            a(f"s_lshl_b32 s{sT0}, s{sLAY}, 14")
            a(f"s_add_u32 s{sX2st}, s{sT0}, {OFF_X2:#x}")
            a(f"s_add_u32 s{sX2re}, s{sX2st}, 8192")
            a(f"s_lshl_b32 s{sT0}, s{sWAVE}, 11")
            a(f"s_add_u32 s{sX2l}, s{sT0}, s{sX2st}")
            a(f"s_add_u32 s{sT0}, s{sT0}, {AST}")
            a(f"v_add_u32 v{vAw}, s{sT0}, v{vL16}")
            a(f"s_lshl_b32 s{sT0}, s{sLAY}, 19")
            a(f"s_add_u32 s{sMemOff}, s{sT0}, {OFF_MEM:#x}")
            a(f"s_lshl_b32 s{sT0}, s{sLAY}, 18")
            a(f"s_add_u32 s{sX1a}, s{sT0}, {OFF_X1:#x}")
            a(f"s_add_u32 s{sX1b}, s{sX1a}, 32768")
            a(f"s_lshl_b32 s{sT0}, s{sLAY}, 21")
            a(f"s_lshl_b32 s{sT1}, s{sT2}, 12")
            a(f"s_add_u32 s{sT0}, s{sT0}, s{sT1}")
            a(f"s_add_u32 s{sKVb}, s{sT0}, {OFF_KVR:#x}")
            a(f"s_mov_b32 s{sKV}, s{sKVb}")
            a(f"s_mov_b32 s{sC}, {fbits(128**-0.5*1.4426950408889634):#x}")
            a(f"s_mov_b32 s{sC+1}, s{sC}")
            a(f"s_mov_b32 s{sLim}, {fbits(cfg.get('lim', 48.0)):#x}")
        load_stages(a, stages, meanwhile=setup_rest,
                    hooks=None if cfg.get("noinit") else {25: lambda: go_load(a), cfg.get("chain_sig", 99): lambda: late_signal(a, cfg)})
        trace(a, cfg, 6, None, vT)
        if not cfg.get("noinit"): wait_init(a, sampled=True, barrier=False)
        a(f"v_lshl_or_b32 v{vR}, v37, 16, v36")
        a(f"v_min_u32 v{vR}, -2, v{vR}")
        for i in range(8):
            a(f"ds_read_b128 {vr(RING+4*i,4)}, v{vLdsW} offset:{(i>>2)*16384+(i&3)*1024}")
        a(f"v_mov_b32 v{vOnes}, -1")
        for f in range(4): a(f"v_mov_b32 v{Kx+4*f}, -1")
        if cfg.get("nokvcheck"):
            for f in range(16): a(f"v_mov_b32 v{Kx+f}, 0")
        a(f"s_lshl_b32 s{sKVL}, s{sWAVE}, 12")
        a(f"s_add_u32 s{sKVL}, s{sKVL}, {KVL}")
        a(f"s_mov_b32 m0, s{sKVL}")
        a("s_waitcnt vmcnt(0) lgkmcnt(0)")
        if cfg.get("count_redo"):
            a("s_memrealtime s[70:71]")
            a("s_memtime s[98:99]")
            a("s_waitcnt lgkmcnt(0)")
            a("s_sub_u32 s101, s70, s100")
            a("s_mov_b32 s100, s70")
        if cfg.get("force_global"):
            a("s_branch L_chain_entryG")
        else:
            a(f"s_cmp_eq_u32 s{sLOCAL}, 0")
            a("s_cbranch_scc1 L_chain_entryG")
    W = f"s[{sWS}:{sWS+3}]"
    vC = vOr
    vq = [(t, jj) for jj in range(8) for t in range(2)]
    vacc = (VACC, VACC + 4)
    def smf(acc, x, w): a(f"v_smfmac_f32_16x16x64_bf16 {vr(acc,4)}, {vr(x,4)}, {xr(w,8)}, v{vIdx}")
    def fill_v(n):
        for _ in range(n):
            t, jj = vq.pop(0)
            smf(vacc[t], A + 4 * jj, WV + jj * 16 + t * 8)
    def pad(n):
        for _ in range(n): a(f"v_mov_b32 v{vT}, 0")
    cvt = lambda d, s: a(f"v_cvt_pk_bf16_f32 v{d}, v{s}, v{s+1}")
    mfma = lambda d, x, y, c: a(f"v_mfma_f32_16x16x32_bf16 {vr(d,4)}, {vr(x,4)}, {vr(y,4)}, {vr(c,4) if c is not None else 0}")
    mfma16 = lambda d, x, y, c: a(f"v_mfma_f32_16x16x16_bf16 {vr(d,4)}, {vr(x,2)}, {vr(y,2)}, {vr(c,4) if c is not None else 0}")
    def kv_check():
        a(f"v_bitop3_b32 v{vT}, v{Kx}, v{Kx+4}, s{sKT} bitop3:0x7e")
        a(f"v_bitop3_b32 v{VACC}, v{Kx+8}, v{Kx+12}, s{sKT} bitop3:0x7e")
        a(f"v_or_b32 v{vT}, v{vT}, v{VACC}")
        a(f"v_and_b32 v{vT}, 1, v{vT}")
        a(f"v_cmp_ne_u32 vcc, 0, v{vT}")
    def x2_issue(r):
        a(f"buffer_load_dwordx4 {vr(r,4)}, v{vL16}, {W}, s{sX2l} offen sc1")
        a(f"buffer_load_dwordx4 {vr(r+4,4)}, v{vL16}, {W}, s{sX2l} offen offset:1024 sc1")
    def x2_check(r, n):
        a(f"s_waitcnt vmcnt({n+1})")
        smf(k0, r, WK)
        a(f"v_max3_u32 v{vT}, v{r}, v{r+1}, v{r+2}")
        smf(k1, r, WK + 8)
        a(f"s_waitcnt vmcnt({n})")
        a(f"v_max3_u32 v{vT}, v{vT}, v{r+3}, v{r+4}")
        a(f"ds_write_b128 v{vAw}, {vr(r,4)}")
        a(f"v_max3_u32 v{vT}, v{vT}, v{r+5}, v{r+6}")
        a(f"v_max_u32 v{vT}, v{vT}, v{r+7}")
        a(f"v_cmp_eq_u32 vcc, -1, v{vT}")
        smf(k0, r + 4, WK + 16)
        a(f"ds_write_b128 v{vAw}, {vr(r+4,4)} offset:1024")
        smf(k1, r + 4, WK + 24)
    def zero_k():
        for r in (k0, k0 + 2, k1, k1 + 2): a(f"v_mov_b64 {vr(r,2)}, 0")
    a.label(f"L_chain_entry{tag}")
    a(f"buffer_store_dword v{vR}, v{vX2s}, {W}, s{sX2st} offen{st}")
    a(".p2align 6")
    a.label(f"L_chain_loop{tag}")
    stamp("top")
    trace(a, cfg, 0, sStep, vT)
    a(f"s_cmp_eq_u32 s{sStep}, 63")
    a(f"s_cbranch_scc1 L_chain_last{tag}")
    a(f"s_bfe_u32 s{sKT}, s{sStep}, 0x10002")
    a("s_waitcnt lgkmcnt(0)")
    kv_check()
    for i in range(8):
        a(f"v_mov_b64 {vr(q0+2*i,2)}, 0")
    lateok = cfg.get("latekv", False) and not cfg.get("nokvcheck")
    if lateok:
        a(f"s_mov_b32 s{sKVc}, s{sKV}")
        a(f"s_cmp_lg_u64 vcc, 0")
        a(f"s_cselect_b32 s{sLate}, 1, 0")
    elif not cfg.get("nokvcheck"): a(f"s_cbranch_vccnz L_chain_kvwait{tag}")
    a.label(f"L_chain_kvok{tag}")
    trace(a, cfg, 1, sStep, vT)
    trace(a, cfg, 5, sStep, vT)
    spin_init(a)
    pad(cfg.get("d2", 30))
    stamp("x2iss")
    x2_issue(A)
    for i in range(4):
        a(f"v_mov_b64 {vr(VACC+2*i,2)}, 0")
    a(f"s_add_u32 s{sKV}, s{sStep}, 1")
    a(f"s_and_b32 s{sKV}, s{sKV}, 3")
    a(f"s_lshl_b32 s{sKV}, s{sKV}, 19")
    a(f"s_add_u32 s{sKV}, s{sKV}, s{sKVb}")
    if cfg.get("ack2"): a("s_waitcnt vmcnt(2)")
    if cfg.get("one2"):
        x2_check(A, 0)
    else:
        pad(cfg.get("g2", 30))
        x2_issue(A + 8)
        x2_check(A, 2)
    if not cfg.get("nowait2"): a(f"s_cbranch_vccnz L_chain_x2b{tag}")
    a.label(f"L_chain_x2ok{tag}")
    if cfg.get("count_redo"): a(f"s_add_u32 s31, s31, s{sSPIN}")
    stamp("A0")
    kvl = [f"buffer_load_dwordx4 v{vL16}, {W}, s{sKV} offen offset:{f*1024} sc1 lds" for f in range(4)]
    SLo, SHi = RING, RING + 4
    def ring_rd(jj):
        s0 = RING + ((2 * jj) % 4) * 8
        return [f"ds_read_b128 {vr(s0+4*i,4)}, v{vW2} offset:{(jj&1)*16384+i*1024}" for i in range(4)]
    vW2 = vT
    for jj in range(2):
        s0 = RING + 16 * jj; rd = ring_rd(jj)
        if jj == 0: a(f"v_xor_b32 v{vW2}, 0x8000, v{vLdsW}")
        smf(q0, A + 4 * jj, s0); a(rd[0]); a(rd[1])
        smf(q1, A + 4 * jj, s0 + 8); a(rd[2]); a(rd[3])
    memst = f"buffer_store_dword v{vR}, v{vX2s}, {W}, s{sMemOff} offen sc1"
    rearm = f"buffer_store_dword v{vOnes}, v{vX2s}, {W}, s{sX2re} offen{st}"
    rf = cfg.get("rearm_first", True)
    a(rearm if rf else memst)
    stamp("k1done", True)
    a("s_waitcnt vmcnt(1) lgkmcnt(8)")
    a("s_barrier")
    stamp("bar1", True)
    for j2 in range(2, 8, 2):
        a(f"v_xor_b32 v{vT}, {j2*1024}, v{vAw}")
        a(f"ds_read_b128 {vr(A+4*j2,4)}, v{vT}")
        a(f"ds_read_b128 {vr(A+4*j2+4,4)}, v{vT} offset:1024")
        if j2 < 6: fill_v(1)
    if lateok:
        a(f"s_cmp_lg_u32 s{sLate}, 0")
        a(f"s_cbranch_scc1 L_chain_late1{tag}")
    a(memst if rf else rearm)
    a.label(f"L_chain_late1r{tag}")
    fill_v(1)
    a(kvl.pop(0))
    fill_v(1)
    lg = {2: 5, 3: 8, 4: 4, 5: 4, 6: 4, 7: 2}
    for jj in range(2, 8):
        if jj in (2, 4): a(f"v_xor_b32 v{vW2}, {(jj//2+1)*0x8000:#x}, v{vLdsW}")
        a(f"s_waitcnt lgkmcnt({lg[jj]})")
        stamp(f"k{jj}", True)
        s0 = RING + ((2 * jj) % 4) * 8; s1 = s0 + 8
        if jj < 6: side = ring_rd(jj)
        elif jj == 6: side = [kvl.pop(0), kvl.pop(0),
                              f"ds_read_b128 {vr(SLo,4)}, v{vC} offset:256", f"ds_read_b128 {vr(SHi,4)}, v{vC} offset:512"]
        else: side = [kvl.pop(0), None, None, None]
        for acc, wsrc, sd in ((q0, s0, side[0]), (k0, WK + jj * 16, side[1]), (q1, s1, side[2]), (k1, WK + jj * 16 + 8, side[3])):
            smf(acc, A + 4 * jj, wsrc)
            if sd: a(sd)
    stamp("h3end")
    Ap0, Ap1, Dp0, Dp1, X = 72, 76, 80, 84, 88
    cvt(Ap0, q0); cvt(Ap0 + 1, q0 + 2); cvt(Ap0 + 2, k0); cvt(Ap0 + 3, k0 + 2)
    cvt(Ap1, q1); cvt(Ap1 + 1, q1 + 2)
    mfma(Dp0, Ap0, SelT, None)
    cvt(Ap1 + 2, k1); cvt(Ap1 + 3, k1 + 2)
    mfma(Dp1, Ap1, SelT, None)
    fill_v(1)
    cvt(X, Dp0); cvt(X + 1, Dp0 + 2)
    if lateok: a(f"s_cmp_lg_u32 s{sLate}, 0")
    cvt(X + 2, Dp1); cvt(X + 3, Dp1 + 2)
    Sx0, Sx1, Sm = 32, 36, 40
    if lateok:
        a(f"s_cbranch_scc1 L_chain_late2{tag}")
        a.label(f"L_chain_late2r{tag}")
    mfma(Sx0, Kx, X, None)
    mfma(Sx1, Kx + 4, X, None)
    mfma(Sm, X, X, None)
    fill_v(1)
    cvt(44, Sx0); cvt(45, Sx0 + 2); cvt(46, Sx1); cvt(47, Sx1 + 2)
    a(f"ds_write2_b64 v{vSwx}, v[44:45], v[46:47] offset0:0 offset1:16")
    cvt(92, Sm); cvt(93, Sm + 2)
    a(f"ds_write_b64 v{vSwm}, v[92:93]")
    stamp("swr")
    fill_v(4)
    a("s_waitcnt lgkmcnt(0)")
    stamp("swdone", True)
    a("s_barrier")
    stamp("bar2", True)
    a(f"ds_read_b128 v[72:75], v{vSrx}")
    a(f"ds_read_b128 v[80:83], v{vSrm}")
    a(f"ds_read_b128 v[76:79], v{vSrx} offset:256")
    ONES, HALF = 88, 92
    fill_v(3)
    a("s_waitcnt lgkmcnt(1)")
    mfma(32, SLo, 72, None)
    mfma(36, SelM, 80, None)
    a("s_waitcnt lgkmcnt(0)")
    mfma(32, SHi, 76, 32)
    a(f"ds_read_b128 {vr(ONES,4)}, v{vC} offset:768")
    a(f"ds_read_b64 {vr(HALF,2)}, v{vC} offset:1024")
    nomax = cfg.get("nomax", False)
    fill_v(2)
    stamp("sred")
    E = 72
    m, t = 46, 47
    def true_max():
        a(f"v_max3_f32 v{m}, v36, v37, v38")
        a(f"v_max3_f32 v{t}, v32, v33, v34")
        a(f"v_max3_f32 v{m}, v{m}, v39, v35")
        a(f"v_max_f32 v{m}, v{m}, v{t}")
        a(f"v_max_f32_dpp v{m}, v{m}, v{m} row_ror:8 row_mask:0xf bank_mask:0xf")
        xlane_g(a, "v_max_f32", m, t)
        a(f"v_mul_f32 v{m}, s{sC}, v{m}")
        for i in range(0, 8, 2):
            a(f"v_pk_fma_f32 {vr(E+i,2)}, {vr(32+i,2)}, s[{sC}:{sC+1}], {vr(m,2)} op_sel_hi:[1,1,0] neg_lo:[0,0,1] neg_hi:[0,0,1]")
    if nomax:
        for i in (4, 5, 6, 7, 0, 1, 2, 3):
            a(f"v_mul_f32 v{E+i}, s{sC}, v{32+i}")
        a(f"v_max3_f32 v{m}, abs(v{E+4}), abs(v{E+5}), abs(v{E+6})")
        a(f"v_max3_f32 v{t}, abs(v{E}), abs(v{E+1}), abs(v{E+2})")
        a(f"v_max3_f32 v{m}, v{m}, abs(v{E+7}), abs(v{E+3})")
        a(f"v_max_f32 v{m}, v{m}, v{t}")
        a(f"v_cmp_nlt_f32 vcc, v{m}, s{sLim}")
        a(f"v_exp_f32 v{E}, v{E}")
        if not cfg.get("nowait1") and not cfg.get("nowait2"): a(f"s_cbranch_vccnz L_chain_big{tag}")
        a.label(f"L_chain_bigok{tag}")
        for i in range(1, 8):
            a(f"v_exp_f32 v{E+i}, v{E+i}")
    else:
        true_max()
        for i in range(8):
            a(f"v_exp_f32 v{E+i}, v{E+i}")
    Bx, Pm, vp = 40, 44, 84
    cvt(Bx, E); cvt(Bx + 1, E + 2); cvt(Bx + 2, E); cvt(Bx + 3, E + 2)
    fill_v(1)
    assert not vq
    a(f"v_mov_b32_dpp v{Bx+2}, v{Bx} row_ror:8 row_mask:0xf bank_mask:0x3")
    a(f"v_mov_b32_dpp v{Bx+3}, v{Bx+1} row_ror:8 row_mask:0xf bank_mask:0x3")
    a(f"v_mov_b32_dpp v{Bx}, v{Bx} row_ror:8 row_mask:0xf bank_mask:0xc")
    a(f"v_mov_b32_dpp v{Bx+1}, v{Bx+1} row_ror:8 row_mask:0xf bank_mask:0xc")
    cvt(Pm, E + 4); cvt(Pm + 1, E + 6)
    stamp("pready")
    OF, WA, LS = 96, 112, 80
    def pack(U, scale):
        d = 32 + 4 * U; s = WA + 8 * U
        mul = lambda r, h: [f"v_mul_f32 v{r}, v{r}, v{LS+2*h}", f"v_mul_f32 v{r+1}, v{r+1}, v{LS+2*h+1}"] if scale else []
        return [mul(s, 0) + mul(s + 2, 1) + [f"v_cvt_pk_bf16_f32 v{d}, v{s}, v{s+1}", f"v_cvt_pk_bf16_f32 v{d+1}, v{s+2}, v{s+3}",
                 f"v_and_or_b32 v{d}, v{d}, -2, s{sTag}"],
                mul(s + 4, 0) + mul(s + 6, 1) + [f"v_cvt_pk_bf16_f32 v{d+2}, v{s+4}, v{s+5}", f"v_cvt_pk_bf16_f32 v{d+3}, v{s+6}, v{s+7}",
                 f"buffer_store_dwordx4 {vr(d,4)}, v{vX1s}, {W}, s{sX1a if U == 0 else sX1b} offen{st}"]]
    sal = [f"s_add_u32 s{sStep}, s{sStep}, 1", f"s_add_u32 s{sMemOff}, s{sMemOff}, 8192", f"s_xor_b32 s{sX2st}, s{sX2st}, 8192",
           f"s_xor_b32 s{sX2re}, s{sX2re}, 8192", f"s_xor_b32 s{sX2l}, s{sX2l}, 8192", f"s_mov_b32 s{sSPIN}, 0"]
    a("s_waitcnt lgkmcnt(0)")
    mfma(32, ONES, Bx, None)
    cvt(vp, vacc[0]); cvt(vp + 1, vacc[0] + 2)
    mfma(72, Vx, Bx, None)
    cvt(vp + 2, vacc[1]); cvt(vp + 3, vacc[1] + 2)
    mfma(76, Vx + 4, Bx, None)
    a(f"v_mov_b64 {vr(WA,2)}, 0"); a(f"v_mov_b64 {vr(WA+2,2)}, 0")
    mfma16(32, HALF, Pm, 32)
    a(f"v_mov_b64 {vr(WA+4,2)}, 0"); a(f"v_mov_b64 {vr(WA+6,2)}, 0")
    mfma16(72, vp, Pm, 72)
    a(f"v_mov_b64 {vr(WA+8,2)}, 0"); a(f"v_mov_b64 {vr(WA+10,2)}, 0")
    mfma16(76, vp + 2, Pm, 76)
    a(f"v_rcp_f32 v32, v32")
    a(f"v_mov_b64 {vr(WA+12,2)}, 0"); a(f"v_mov_b64 {vr(WA+14,2)}, 0")
    for i in range(4): a(f"v_mul_f32 v{72+i}, v{72+i}, v32")
    cvt(OF, 72); cvt(OF + 1, 74)
    for i in range(4): a(f"v_mul_f32 v{76+i}, v{76+i}, v32")
    cvt(OF + 2, 76); cvt(OF + 3, 78)
    a(f"v_cndmask_b32 v80, v{OF}, v{OF+2}, s[{sMaskHi}:{sMaskHi+1}]")
    a(f"v_cndmask_b32 v81, v{OF+1}, v{OF+3}, s[{sMaskHi}:{sMaskHi+1}]")
    a(f"ds_write_b64 v{vOw}, v[80:81]")
    stamp("owr")
    for ac in range(3):
        smf(WA + 4 * ac, OF, WO + ac * 32)
        a(f"v_xor_b32 v{82+ac}, {(ac+1)*512}, v{vOw}")
        a(f"v_and_b32 v{82+ac}, -16, v{82+ac}")
    a(f"s_waitcnt vmcnt({5 if rf else 4}) lgkmcnt(0)")
    stamp("owdone", True)
    a("s_barrier")
    stamp("bar3", True)
    for wp in range(1, 4):
        a(f"ds_read_b128 {vr(OF+4*wp,4)}, v{81+wp}")
    a(f"ds_read_b128 v[40:43], v{vC}")
    smf(WA + 12, OF, WO + 96)
    for x in sal: a(x)
    pk = pack(0, False) + pack(1, False)
    n = 0; side = []
    for ac in range(4):
        for wp in range(1, 4):
            if ac == 0: a(f"s_waitcnt lgkmcnt({4-wp})")
            smf(WA + 4 * ac, OF + 4 * wp, WO + (ac * 4 + wp) * 8)
            n += 1
            stamp(f"wo{n}", True)
            if n in (6, 9, 12): side += pk.pop(0)
            if side: a(side.pop(0))
    for x in side: a(x)
    for i in range(3):
        a(f"ds_read_b128 {vr(RING+4*i,4)}, v{vLdsW} offset:{(i>>2)*16384+(i&3)*1024}")
    for x in pk.pop(0): a(x)
    stamp("x1st")
    for i in range(3, 8):
        a(f"ds_read_b128 {vr(RING+4*i,4)}, v{vLdsW} offset:{(i>>2)*16384+(i&3)*1024}")
    a("s_waitcnt vmcnt(2)")
    a(f"v_add_u32 v{vT}, s{sKVL}, v{vL16}")
    for f in range(4):
        a(f"ds_read_b128 {vr(Kx+4*f,4)}, v{vT} offset:{f*1024}")
    if cfg.get("ack1"): a("s_waitcnt vmcnt(1)")
    pad(cfg.get("d1", 40))
    def x1_issue(r):
        a(f"buffer_load_dwordx4 {vr(r,4)}, v{vX1l}, {W}, s{sX1a} offen sc1")
        a(f"buffer_load_dwordx4 {vr(r+4,4)}, v{vX1l}, {W}, s{sX1a} offen offset:1024 sc1")
    def x1_check(r, n):
        a(f"s_waitcnt vmcnt({n+1})")
        mfma(104, 40, r, None)
        a(f"s_waitcnt vmcnt({n})")
        mfma(104, 40, r + 4, 104)
        a(f"v_bitop3_b32 v{vT}, v{r}, v{r+4}, s{sTag} bitop3:0x7e")
        a(f"v_and_b32 v{vT}, 1, v{vT}")
        a(f"v_cmp_ne_u32 vcc, 0, v{vT}")
    stamp("x1iss")
    x1_issue(96)
    a("s_waitcnt lgkmcnt(12)")
    if cfg.get("ack1"): a("s_waitcnt vmcnt(2)")
    if cfg.get("one1"):
        x1_check(96, 0)
    else:
        pad(cfg.get("g1", 35))
        x1_issue(112)
        x1_check(96, 2)
    if not cfg.get("nowait1"): a(f"s_cbranch_vccnz L_chain_x1b{tag}")
    a.label(f"L_chain_x1ok{tag}")
    stamp("x1ok")
    a(f"v_add_f32_dpp v104, v104, v104 row_ror:4 row_mask:0xf bank_mask:0xf")
    a(f"v_add_f32_dpp v105, v105, v105 row_ror:4 row_mask:0xf bank_mask:0xf")
    a(f"s_xor_b32 s{sTag}, s{sTag}, 1")
    a(f"v_add_f32_dpp v104, v104, v104 row_ror:8 row_mask:0xf bank_mask:0xf")
    a(f"v_add_f32_dpp v105, v105, v105 row_ror:8 row_mask:0xf bank_mask:0xf")
    a(f"v_cvt_pk_bf16_f32 v{vR}, v104, v105")
    a(f"v_min_u32 v{vR}, -2, v{vR}")
    a(f"buffer_store_dword v{vR}, v{vX2s}, {W}, s{sX2st} offen{st}")
    if cfg.get("count_redo"):
        a(f"s_lshl_b32 s{sT0}, s{sSPIN}, 16")
        a(f"s_add_u32 s31, s31, s{sT0}")
    if stamp.on:
        a(f"s_cmp_eq_u32 s{sStep}, {cfg.get('stamp_step', 40)}")
        a(f"s_cbranch_scc0 L_chain_loop{tag}")
        a("s_waitcnt lgkmcnt(0)")
        a(f"s_lshl_b32 s{sT0}, s{sMEMB}, 2")
        a(f"s_add_u32 s{sT0}, s{sT0}, s{sWAVE}")
        a(f"s_lshl_b32 s{sT1}, s{sLAY}, 7")
        a(f"s_add_u32 s{sT0}, s{sT0}, s{sT1}")
        a(f"s_lshl_b32 s{sT0}, s{sT0}, 6")
        a(f"s_add_u32 s{sT0}, s{sT0}, {OFF_STAMP:#x}")
        a(f"v_mov_b32 v108, 0")
        for i in range(stamp.n):
            a(f"v_mov_b32 v109, s{stamp.base+2*i}")
            a(f"buffer_store_dword v109, v108, {W}, s{sT0} offen offset:{4*i}")
        cfg["stamp_names"] = stamp.names
    a(f"s_branch L_chain_loop{tag}")
    a.label(f"L_chain_x1b{tag}")
    x1_issue(96)
    spin_tick(a)
    if cfg.get("one1"): x1_check(96, 0)
    else:
        x1_check(112, 2)
        a(f"s_cbranch_vccz L_chain_x1ok{tag}")
        x1_issue(112)
        spin_tick(a)
        x1_check(96, 2)
    a(f"s_cbranch_vccz L_chain_x1ok{tag}")
    a(f"s_branch L_chain_x1b{tag}")
    a.label(f"L_chain_x2b{tag}")
    x2_issue(A)
    spin_tick(a)
    zero_k()
    if cfg.get("one2"): x2_check(A, 0)
    else:
        x2_check(A + 8, 2)
        a(f"s_cbranch_vccz L_chain_x2c{tag}")
        x2_issue(A + 8)
        spin_tick(a)
        zero_k()
        x2_check(A, 2)
    a(f"s_cbranch_vccz L_chain_x2ok{tag}")
    a(f"s_branch L_chain_x2b{tag}")
    a.label(f"L_chain_x2c{tag}")
    for i in range(4):
        a(f"v_mov_b64 {vr(A+2*i,2)}, {vr(A+8+2*i,2)} ; sameval")
    a(f"s_branch L_chain_x2ok{tag}")
    if lateok:
        assert rf
        a.label(f"L_chain_late1{tag}")
        for f in range(4):
            a(f"buffer_load_dwordx4 {vr(Kx+4*f,4)}, v{vL16}, {W}, s{sKVc} offen offset:{f*1024} sc1")
        a(f"s_branch L_chain_late1r{tag}")
        a.label(f"L_chain_late2{tag}")
        spin_init(a)
        a("s_waitcnt vmcnt(4)")
        lab = a.newlab("L_kvl"); ok = a.newlab("L_kvlok")
        a.label(lab)
        a(f"v_bitop3_b32 v{vT}, v{Kx}, v{Kx+4}, s{sKT} bitop3:0x7e")
        a(f"v_bitop3_b32 v92, v{Kx+8}, v{Kx+12}, s{sKT} bitop3:0x7e")
        a(f"v_or_b32 v{vT}, v{vT}, v92")
        a(f"v_and_b32 v{vT}, 1, v{vT}")
        a(f"v_cmp_ne_u32 vcc, 0, v{vT}")
        a(f"s_cbranch_vccz {ok}")
        a("s_sleep 2")
        for f in range(4):
            a(f"buffer_load_dwordx4 {vr(Kx+4*f,4)}, v{vL16}, {W}, s{sKVc} offen offset:{f*1024} sc1")
        spin_tick(a)
        a("s_waitcnt vmcnt(0)")
        a(f"s_branch {lab}")
        a.label(ok)
        a(memst)
        a(f"s_branch L_chain_late2r{tag}")
    if nomax:
        a.label(f"L_chain_big{tag}")
        true_max()
        a(f"v_exp_f32 v{E}, v{E}")
        a(f"s_branch L_chain_bigok{tag}")
    a.label(f"L_chain_last{tag}")
    if cfg.get("count_redo"):
        a("s_memrealtime s[70:71]")
        a("s_memtime s[72:73]")
        a(f"s_lshl_b32 s{sT0}, s{sMEMB}, 2")
        a(f"s_add_u32 s{sT0}, s{sT0}, s{sWAVE}")
        a(f"s_lshl_b32 s{sT1}, s{sLAY}, 7")
        a(f"s_add_u32 s{sT0}, s{sT0}, s{sT1}")
        a(f"s_lshl_b32 s{sT0}, s{sT0}, 6")
        a(f"s_add_u32 s{sT0}, s{sT0}, {OFF_STAMP:#x}")
        a(f"v_mov_b32 v108, 0")
        a("s_waitcnt lgkmcnt(0)")
        a(f"s_sub_u32 s70, s70, s100")
        a(f"s_sub_u32 s72, s72, s98")
        for i, r in enumerate((72, 31, 70, 101)):
            a(f"v_mov_b32 v109, s{r}")
            a(f"buffer_store_dword v109, v108, {W}, s{sT0} offen offset:{48+4*i}")
    a(f"buffer_store_dword v{vR}, v{vX2s}, {W}, s{sMemOff} offen sc1")
    a("s_waitcnt vmcnt(0) lgkmcnt(0)")
    a("s_branch L_done")
    a.label(f"L_chain_kvwait{tag}")
    spin_init(a)
    lab = a.newlab("L_kvspin")
    a.label(lab)
    for f in range(4):
        a(f"buffer_load_dwordx4 {vr(Kx+4*f,4)}, v{vL16}, {W}, s{sKV} offen offset:{f*1024} sc1")
    spin_tick(a)
    a("s_waitcnt vmcnt(0)")
    kv_check()
    a(f"s_cbranch_vccz L_chain_kvok{tag}")
    a("s_sleep 4")
    a(f"s_branch {lab}")
```

```python
from asmlib import *
from layout import *
import struct

KNAME = "interleave_layers__memory_aug_recurrent_mem_tr__sliding_local_dilated__prompt_kernel"

sX, sMEM0, sWQ, sWK, sWV, sWO = 4, 6, 8, 10, 12, 14
sWB, sWBO, sOUT, sDBG, sWSP = 20, 22, 24, 26, 28
sWS = 32
sWT = 36
sIN = 40
sGRP, sMEMB, sWAVE, sLAY = 44, 45, 46, 47
sSPIN = 30
sLOCAL = 3
sSIG = 2
sT0, sT1, sT2, sT3 = 48, 49, 50, 51
sFB = 52
sFV = 54
SPIN_MAX = 1 << 19
OOB = 0x80000000

def fbits(x):
    return struct.unpack("<I", struct.pack("<f", x))[0]

def set_srd(a, srd, ptr, nbytes):
    a(f"s_mov_b32 s{srd}, s{ptr}")
    a(f"s_mov_b32 s{srd+1}, s{ptr+1}")
    a(f"s_mov_b32 s{srd+2}, {nbytes:#x}")
    a(f"s_mov_b32 s{srd+3}, 0x20000")

def spin_init(a):
    a(f"s_mov_b32 s{sSPIN}, 0")

def spin_tick(a):
    a(f"s_add_u32 s{sSPIN}, s{sSPIN}, 1")
    a(f"s_cmp_gt_u32 s{sSPIN}, {SPIN_MAX}")
    a("s_cbranch_scc1 L_exit")

class Stamps:
    def __init__(self, a, on, base=70, only=None):
        self.a = a; self.on = on; self.base = base; self.n = 0; self.names = []; self.only = only
    def __call__(self, name, extra=False):
        if not self.on: return
        if self.only is None and extra: return
        if self.only is not None and name not in self.only: return
        r = self.base + 2 * self.n
        self.names.append(name); self.n += 1
        assert r + 1 < 92
        self.a(f"s_memtime s[{r}:{r+1}]")

vGO0, vGO1 = 124, 125
def go_load(a, off=128):
    a(f"v_mov_b32 v{vGO0}, 0")
    a(f"global_load_dword v{vGO1}, v{vGO0}, s[{sDBG}:{sDBG+1}] offset:{off} sc1")

def wait_init(a, sampled=False, barrier=True):
    lab = a.newlab("L_winit"); done = a.newlab("L_wdone"); chk = a.newlab("L_wchk")
    spin_init(a)
    if sampled: a(f"s_branch {chk}")
    a.label(lab)
    go_load(a)
    a.label(chk)
    spin_tick(a)
    a("s_waitcnt vmcnt(0)")
    a(f"v_readfirstlane_b32 s{sFV}, v{vGO1}")
    a(f"s_cmp_lg_u32 s{sFV}, 0")
    a(f"s_cbranch_scc1 {done}")
    a("s_sleep 8")
    a(f"s_branch {lab}")
    a.label(done)
    a(f"s_lshr_b32 s{sLOCAL}, s{sFV}, s{sGRP}")
    a(f"s_and_b32 s{sLOCAL}, s{sLOCAL}, 1")
    if barrier: a("s_barrier")

def count_tickets(a):
    lab = a.newlab("L_cnt")
    spin_init(a)
    a.label(lab)
    a(f"s_load_dwordx16 s[72:87], s[{sDBG}:{sDBG+1}], 0 glc")
    spin_tick(a)
    a("s_waitcnt lgkmcnt(0)")
    a(f"s_mov_b32 s{sFV}, s73")
    for g in range(8):
        a(f"s_add_u32 s{sFV}, s{sFV}, s{72+2*g}")
    a(f"s_cmp_lt_u32 s{sFV}, 256")
    a(f"s_cbranch_scc1 {lab}")

def sel_consts(a, vlane, tmp, selM=None, selLo=None, selHi=None, selT=None):
    t0, t1, t2, t3 = tmp, tmp + 1, tmp + 2, tmp + 3
    a(f"v_and_b32 v{t0}, 1, v{vlane}")
    a(f"v_lshlrev_b32 v{t0}, 4, v{t0}")
    a(f"v_mov_b32 v{t1}, 0x3f80")
    a(f"v_lshlrev_b32 v{t0}, v{t0}, v{t1}")
    a(f"v_bfe_u32 v{t1}, v{vlane}, 1, 2")
    a(f"v_bfe_u32 v{t2}, v{vlane}, 3, 1")
    for e in range(4):
        a(f"v_cmp_eq_u32 vcc, {e}, v{t1}")
        a(f"v_cndmask_b32 v{t3}, 0, v{t0}, vcc")
        if selM is not None: a(f"v_mov_b32 v{selM+e}, v{t3}")
        if selLo is not None:
            a(f"v_cmp_eq_u32 vcc, 0, v{t2}")
            a(f"v_cndmask_b32 v{selLo+e}, 0, v{t3}, vcc")
        if selHi is not None:
            a(f"v_cmp_eq_u32 vcc, 1, v{t2}")
            a(f"v_cndmask_b32 v{selHi+e}, 0, v{t3}, vcc")
    if selT is not None:
        a(f"v_bfe_u32 v{t1}, v{vlane}, 2, 1")
        a(f"v_bfe_u32 v{t3}, v{vlane}, 4, 1")
        a(f"v_cmp_eq_u32 vcc, v{t1}, v{t3}")
        a(f"v_cndmask_b32 v{t0}, 0, v{t0}, vcc")
        a(f"v_bfe_u32 v{t1}, v{vlane}, 1, 1")
        a(f"v_lshl_add_u32 v{t1}, v{t2}, 1, v{t1}")
        for e in range(4):
            a(f"v_cmp_eq_u32 vcc, {e}, v{t1}")
            a(f"v_cndmask_b32 v{selT+e}, 0, v{t0}, vcc")

def smf_index(a, vlane, vidx, tmp):
    a(f"v_mov_b32 v{vidx}, 0x44444444")
    a(f"v_mov_b32 v{tmp}, 0xeeeeeeee")
    a(f"v_and_b32 v{tmp+1}, 8, v{vlane}")
    a(f"v_cmp_ne_u32 vcc, 0, v{tmp+1}")
    a(f"v_cndmask_b32 v{vidx}, v{vidx}, v{tmp}, vcc")

TRC = {}
def load_chunks(a, chunks, sLdsBase, nslots=8, meanwhile=None, hooks=None):
    def issue(c):
        ch = chunks[c]; slot = c % nslots
        ch["setup"]()
        a(f"s_add_u32 m0, s{sLdsBase}, {slot*4096}")
        for q in range(4):
            if q: a(f"s_add_u32 s{sT0}, s{sT0}, {ch['dstep']-1024}")
            a(f"buffer_load_dwordx4 v{ch['vdma']}, s[{sWT}:{sWT+3}], s{sT0} offen offset:{q*1024} lds")
    n = len(chunks)
    for c in range(min(nslots, n)): issue(c)
    if meanwhile: meanwhile()
    for c in range(n):
        inflight = min(nslots, n - c)
        a(f"s_waitcnt vmcnt({4*(inflight-1)})")
        chunks[c]["consume"]((c % nslots) * 4096)
        if c + nslots < n: issue(c + nslots)
        if hooks and c in hooks: hooks[c]()
        if TRC.get("trace") and c % 4 == 3:
            a(f"s_mov_b32 s{sT1}, {c}")
            trace(a, TRC, 4, sT1, 127)

def qkv_dma_addr(a, vlane, vdst, tmp, rowbytes):
    a(f"v_bfe_u32 v{tmp}, v{vlane}, 2, 1")
    a(f"v_lshlrev_b32 v{vdst}, 5, v{tmp}")
    a(f"v_bfe_u32 v{tmp}, v{vlane}, 3, 1")
    a(f"v_lshl_add_u32 v{vdst}, v{tmp}, 4, v{vdst}")
    a(f"v_bfe_u32 v{tmp}, v{vlane}, 4, 2")
    a(f"v_add_u32 v{vdst}, v{vdst}, v{tmp}")
    a(f"v_mul_u32_u24 v{vdst}, {rowbytes}, v{vdst}")
    a(f"v_and_b32 v{tmp}, 3, v{vlane}")
    a(f"v_lshl_add_u32 v{vdst}, v{tmp}, 4, v{vdst}")

def qkv_tr_addr(a, vlane, vdst, tmp, sLdsBase):
    a(f"v_lshrrev_b32 v{tmp}, 4, v{vlane}")
    a(f"v_lshlrev_b32 v{vdst}, 9, v{tmp}")
    a(f"v_bfe_u32 v{tmp}, v{vlane}, 2, 2")
    a(f"v_lshl_add_u32 v{vdst}, v{tmp}, 6, v{vdst}")
    a(f"v_and_b32 v{tmp}, 3, v{vlane}")
    a(f"v_lshl_add_u32 v{vdst}, v{tmp}, 3, v{vdst}")
    a(f"v_add_u32 v{vdst}, s{sLdsBase}, v{vdst}")

def qkv_tr_reads(a, vaddr, slotoff, dst0, dst1):
    for t, dst in ((0, dst0), (1, dst1)):
        for e4 in range(4):
            off = slotoff + (32 * (e4 >> 1) + 4 * (e4 & 1)) * 64 + t * 32
            a(f"ds_read_b64_tr_b16 {xr(dst+2*e4,2)}, v{vaddr} offset:{off}")

def poll_flags(a, vtmp, voff, soff, sleep=2):
    lab = a.newlab("L_pf"); done = a.newlab("L_pfd")
    spin_init(a)
    a.label(lab)
    a(f"buffer_load_dword v{vtmp}, v{voff}, s[{sWS}:{sWS+3}], s{soff} offen sc1")
    spin_tick(a)
    a("s_waitcnt vmcnt(0)")
    a(f"v_cmp_eq_u32 vcc, 0, v{vtmp}")
    a(f"s_cbranch_vccz {done}")
    if sleep: a(f"s_sleep {sleep}")
    a(f"s_branch {lab}")
    a.label(done)

def set_flag(a, vone, soff, imm=0, mod=" sc1"):
    a("s_mov_b64 exec, 1")
    a(f"buffer_store_dword v{vone}, off, s[{sWS}:{sWS+3}], s{soff} offset:{imm}{mod}")
    a("s_mov_b64 exec, -1")

def xlane_g(a, op, m, t):
    a(f"v_mov_b32 v{t}, v{m}")
    a(f"v_permlane16_swap_b32 v{m}, v{t}")
    a(f"{op} v{m}, v{m}, v{t}")
    a(f"v_mov_b32 v{t}, v{m}")
    a(f"v_permlane32_swap_b32 v{m}, v{t}")
    a(f"{op} v{m}, v{m}, v{t}")

def dump_stamps(a, stamp, cfg, row_sgpr_calc):
    a("s_waitcnt lgkmcnt(0)")
    row_sgpr_calc()
    a(f"s_lshl_b32 s{sT0}, s{sT0}, 6")
    a(f"s_add_u32 s{sT0}, s{sT0}, {OFF_STAMP:#x}")
    for i in range(stamp.n):
        a(f"v_mov_b32 v127, s{stamp.base+2*i}")
        a(f"buffer_store_dword v127, off, s[{sWS}:{sWS+3}], s{sT0} offset:{4*i}")
    a("s_waitcnt vmcnt(0)")
    cfg["stamp_names"] = stamp.names

sTR = 68
def trace_setup(a, cfg):
    if not cfg.get("trace"): return
    a(f"s_lshl_b32 s{sTR}, s{sGRP}, 7")
    a(f"s_lshl_b32 s{sTR+1}, s{sMEMB}, 2")
    a(f"s_add_u32 s{sTR}, s{sTR}, s{sTR+1}")
    a(f"s_add_u32 s{sTR}, s{sTR}, s{sWAVE}")
    a(f"s_lshl_b32 s{sTR}, s{sTR}, 11")
    a(f"s_add_u32 s{sTR}, s{sTR}, {OFF_STAMP+0x20000:#x}")
def trace(a, cfg, ev, sidx, vtmp):
    if not cfg.get("trace"): return
    if ev == 5 and not cfg.get("trace_clk"): return
    if cfg.get("trace_only") is not None and ev not in cfg["trace_only"]: return
    if ev != 7:
        a("s_waitcnt lgkmcnt(0)")
        a(f"v_mov_b32 v{vtmp}, s100")
        a(f"buffer_store_dword v{vtmp}, off, s[{sWS}:{sWS+3}], s{sTR+1}")
    if ev == 8: return
    a("s_memtime s[100:101]" if ev == 5 else "s_memrealtime s[100:101]")
    if sidx is None: a(f"s_add_u32 s{sTR+1}, s{sTR}, {ev*256}")
    else:
        a(f"s_and_b32 s{sTR+1}, s{sidx}, 63")
        a(f"s_lshl_b32 s{sTR+1}, s{sTR+1}, 2")
        a(f"s_add_u32 s{sTR+1}, s{sTR+1}, s{sTR}")
        if ev: a(f"s_add_u32 s{sTR+1}, s{sTR+1}, {ev*256}")

def late_start(a, cfg):
    if cfg.get("noinit") or cfg.get("nolate"): return
    skip = a.newlab("L_nolate"); lab = a.newlab("L_late"); done = a.newlab("L_lated")
    a(f"s_lshr_b32 s{sFV}, {cfg.get('latemask', 0xcc)}, s{sGRP}")
    a(f"s_and_b32 s{sFV}, s{sFV}, 1")
    a(f"s_cbranch_scc0 {skip}")
    a(f"s_cmp_lg_u32 s{sWAVE}, 0")
    a(f"s_cbranch_scc1 {done}")
    spin_init(a)
    a.label(lab)
    go_load(a, 192)
    a(f"s_add_u32 s{sSPIN}, s{sSPIN}, 1")
    a("s_waitcnt vmcnt(0)")
    a(f"s_cmp_gt_u32 s{sSPIN}, 200")
    a(f"s_cbranch_scc1 {done}")
    a(f"v_readfirstlane_b32 s{sFV}, v{vGO1}")
    a(f"s_cmp_ge_u32 s{sFV}, 1")
    a(f"s_cbranch_scc1 {done}")
    a("s_sleep 12")
    a(f"s_branch {lab}")
    a.label(done)
    a("s_waitcnt lgkmcnt(0)")
    a("s_barrier")
    a.label(skip)

def late_signal(a, cfg):
    if cfg.get("noinit") or cfg.get("nolate"): return
    lab = a.newlab("L_lsig")
    a(f"s_or_b32 s{sT0}, s{sLAY}, s{sWAVE}")
    a(f"s_or_b32 s{sT0}, s{sT0}, s{sMEMB}")
    a(f"s_cbranch_scc1 {lab}")
    a("v_mov_b32 v126, 1")
    a("v_mov_b32 v127, 0")
    a("s_mov_b64 exec, 1")
    a(f"global_store_dword v127, v126, s[{sDBG}:{sDBG+1}] offset:192 sc1")
    a("s_mov_b64 exec, -1")
    a.label(lab)

def warm_weights(a, cfg, share, nshare):
    if cfg.get("noinit") or cfg.get("nowarm", True): return
    a("v_lshlrev_b32 v100, 4, v0")
    n = 0
    per = 0x400000 // (nshare * 32 * 4096)
    for ptr in (sWK, sWV, sWO, sWQ):
        set_srd(a, sWT, ptr, 0x400000)
        a(f"s_lshl_b32 s{sT0}, s{sMEMB}, 12")
        a(f"s_add_u32 s{sT0}, s{sT0}, {share * 32 * 4096}")
        for i in range(per):
            if i: a(f"s_add_u32 s{sT0}, s{sT0}, {nshare * 32 * 4096}")
            if n >= 32: a("s_waitcnt vmcnt(31)")
            a(f"buffer_load_dwordx4 {ar((n % 32) * 4, 4)}, v100, s[{sWT}:{sWT+3}], s{sT0} offen")
            n += 1
    a("s_waitcnt vmcnt(0)")

def load_stages(a, stages, meanwhile=None, hooks=None):
    n = len(stages); NS = 8
    for c in range(min(NS, n)): stages[c]["issue"](c % NS)
    if meanwhile: meanwhile()
    issued = min(NS, n)
    for c in range(n + 1):
        if c < n: a(f"s_waitcnt vmcnt({4*(issued-c-1)})")
        a("s_barrier")
        if c >= 1:
            if stages[c - 1].get("post"): stages[c - 1]["post"]((c - 1) % NS)
            if issued < n:
                stages[issued]["issue"](issued % NS); issued += 1
        if c < n:
            stages[c]["consume"](c % NS)
            a("s_waitcnt lgkmcnt(0)")
            if hooks and c in hooks: hooks[c]()
            if TRC.get("trace") and c % 4 == 3:
                a(f"s_mov_b32 s{sT1}, {c}")
                trace(a, TRC, 4, sT1, 127)

def coop_addrs(a, vD0, vD1, vT0, vT1, tmp):
    a(f"v_bfe_u32 v{tmp}, v0, 4, 1")
    a(f"v_lshlrev_b32 v{vD0}, 18, v{tmp}")
    a(f"v_bfe_u32 v{tmp}, v0, 5, 1")
    a(f"v_lshl_add_u32 v{vD0}, v{tmp}, 17, v{vD0}")
    a(f"v_lshrrev_b32 v{tmp}, 4, v0")
    a(f"v_lshlrev_b32 v{tmp}, 1, v{tmp}")
    a(f"v_and_b32 v{vD1}, 15, v0")
    a(f"v_xor_b32 v{tmp}, v{tmp}, v{vD1}")
    a(f"v_lshl_add_u32 v{vD0}, v{tmp}, 4, v{vD0}")
    a(f"v_xor_b32 v{vD1}, 128, v{vD0}")
    a(f"v_lshrrev_b32 v{tmp}, 4, v0")
    a(f"v_lshlrev_b32 v{vT0}, 11, v{tmp}")
    a(f"v_bfe_u32 v{tmp}, v0, 2, 2")
    a(f"v_lshl_add_u32 v{vT0}, v{tmp}, 8, v{vT0}")
    a(f"v_bfe_u32 v{vT1}, v0, 2, 3")
    a(f"v_lshlrev_b32 v{vT1}, 1, v{vT1}")
    a(f"v_bfe_u32 v{tmp}, v0, 1, 1")
    a(f"s_lshl_b32 s{sT0}, s{sWAVE}, 2")
    a(f"v_add_u32 v{tmp}, s{sT0}, v{tmp}")
    a(f"v_xor_b32 v{tmp}, v{tmp}, v{vT1}")
    a(f"v_lshl_add_u32 v{vT0}, v{tmp}, 4, v{vT0}")
    a(f"v_and_b32 v{tmp}, 1, v0")
    a(f"v_lshl_add_u32 v{vT0}, v{tmp}, 3, v{vT0}")
    a(f"v_xor_b32 v{vT1}, 32, v{vT0}")

def coop_issue(a, ptr, J, slot, sBase, vD0, vD1, sLq, who='c'):
    if J == 0: set_srd(a, sWT, ptr, 0x400000)
    a(f"s_add_u32 m0, s{sLq}, {slot*16384}")
    a(f"s_add_u32 s{sT0}, s{sBase}, {J << 19}")
    for q in range(4):
        if q: a(f"s_add_u32 s{sT0}, s{sT0}, {8192-1024}")
        a(f"buffer_load_dwordx4 v{vD0 if q < 2 else vD1}, s[{sWT}:{sWT+3}], s{sT0} offen offset:{q*1024}{' nt' if str(ptr) + who in TRC.get('ntw', ()) else ''} lds")

def coop_reads(a, slot, vT0, vT1, vtmp, dst0, dst1):
    hi = slot >= 4
    for t, dst, va in ((0, dst0, vT0), (1, dst1, vT1)):
        if hi:
            a(f"v_add_u32 v{vtmp}, 0x10000, v{va}"); va = vtmp
        for e4 in range(4):
            off = (slot & 3) * 16384 + (32 * (e4 >> 1) + 4 * (e4 & 1)) * 256
            a(f"ds_read_b64_tr_b16 {xr(dst+2*e4,2)}, v{va} offset:{off}")
```

```python
from gen_common import *

def role_wa(a, cfg):
    stamp = Stamps(a, cfg.get("stamp") == "wa", base=4, only=cfg.get("only"))
    W = f"s[{sWS}:{sWS+3}]"
    vL16, vIdx, vF8, vOne, vHw, vHr, vT, vT2 = 1, 2, 3, 4, 5, 6, 7, 8
    vKMw, vVr, vNeg = 9, 10, 11
    Sel16 = 12
    XR = 16
    KA, VA, QA = 40, 56, 72
    PK = 88
    WQ, WK, WV = 128, 256, 384
    sI, sSeg, sXn, sFl, sKVo, sMem, sO, sFlA, sHold, sLds, sPar, sC = 55, 56, 57, 58, 59, 60, 61, 62, 63, 66, 67, 96
    sMask = 76
    XN, HOLD, KM, VM = 0, 0x10000, 0x1C000, 0x1D000
    cvt = lambda d, s: a(f"v_cvt_pk_bf16_f32 v{d}, v{s}, v{s+1}")
    def mfma(d, x, y, c):
        a(f"v_mfma_f32_16x16x32_bf16 {vr(d,4)}, {xr(x,4)}, {xr(y,4)}, {vr(c,4) if c is not None else 0}")
    a.label("L_wa")
    a(f"s_mov_b32 s{sPar}, s{sT3}")
    a("v_and_b32 v0, 63, v0")
    a(f"v_lshlrev_b32 v{vL16}, 4, v0")
    a(f"s_lshl_b32 s{sLds}, s{sWAVE}, 15")
    vD, vTR = 32, 33
    sL2 = 70
    vD1, vTR1, sLq = 34, 35, 71
    coop_addrs(a, vD, vD1, vTR, vTR1, vT)
    a(f"s_lshl_b32 s{sL2}, s{sMEMB}, 8")
    a(f"s_lshl_b32 s{sT1}, s{sWAVE}, 15")
    a(f"s_add_u32 s{sL2}, s{sL2}, s{sT1}")
    a(f"s_lshl_b32 s{sLq}, s{sWAVE}, 12")
    late_start(a, cfg)
    def mk_chunks(order):
        st = []
        for ptr, base in order:
            for J in range(8):
                st.append(dict(issue=lambda slot, ptr=ptr, J=J: coop_issue(a, ptr, J, slot, sL2, vD, vD1, sLq, 'w'),
                               consume=lambda slot, J=J, base=base: coop_reads(a, slot, vTR, vTR1, 36, base + J * 16, base + J * 16 + 8)))
        return st
    M = {"k": (sWK, WK), "v": (sWV, WV), "q": (sWQ, WQ)}
    def setup_rest():
        smf_index(a, 0, vIdx, 96)
        a(f"v_and_b32 v{vF8}, 7, v0")
        a(f"v_lshlrev_b32 v{vF8}, 2, v{vF8}")
        a(f"v_mov_b32 v{vOne}, 1")
        a(f"v_mov_b32 v{vNeg}, {fbits(-1e9 * 128**0.5):#x}")
        a("v_and_b32 v96, 1, v0")
        a("v_lshlrev_b32 v96, 4, v96")
        a("v_mov_b32 v97, 0x3f80")
        a("v_lshlrev_b32 v96, v96, v97")
        a("v_bfe_u32 v97, v0, 2, 1")
        a("v_bfe_u32 v98, v0, 4, 1")
        a("v_cmp_eq_u32 vcc, v97, v98")
        a("v_cndmask_b32 v96, 0, v96, vcc")
        a("v_bfe_u32 v97, v0, 1, 1")
        for e in range(2):
            a(f"v_cmp_eq_u32 vcc, {e}, v97")
            a(f"v_cndmask_b32 v{Sel16+e}, 0, v96, vcc")
        a(f"s_and_b32 s{sT0}, s{sWAVE}, 1")
        a("v_and_b32 v96, 15, v0")
        a(f"v_lshl_add_u32 v96, v96, 1, s{sT0}")
        a("v_lshrrev_b32 v97, 4, v0")
        a("v_lshlrev_b32 v97, 3, v97")
        for up in range(2):
            for r in range(4):
                a(f"v_add_u32 v98, {2*r+up}, v97")
                a(f"v_cmp_le_u32 s[{sMask+2*(up*4+r)}:{sMask+2*(up*4+r)+1}], v98, v96")
        a(f"s_lshl_b32 s{sT1}, s{sWAVE}, 11")
        a(f"s_add_u32 s{sT1}, s{sT1}, {HOLD}")
        a(f"v_add_u32 v{vHw}, s{sT1}, v{vL16}")
        a(f"s_lshl_b32 s{sT1}, s{sT0}, 10")
        a(f"s_add_u32 s{sT1}, s{sT1}, {HOLD+0x6000}")
        a(f"v_add_u32 v{vHr}, s{sT1}, v{vL16}")
        a(f"s_lshl_b32 s{sT1}, s{sWAVE}, 10")
        a(f"s_add_u32 s{sT1}, s{sT1}, {KM}")
        a(f"v_add_u32 v{vKMw}, s{sT1}, v{vL16}")
        a(f"s_mov_b32 s{sHold}, 0x6000")
        a(f"s_mov_b32 s{sI}, 0")
        a(f"s_lshl_b32 s{sT0}, s{sLAY}, 6")
        a(f"s_add_u32 s{sSeg}, s{sT0}, s{sPar}")
        a(f"s_mov_b32 s{sC}, {fbits(128**-0.5*1.4426950408889634):#x}")
        a(f"s_mov_b32 s{sC+1}, s{sC}")
    wfrag = lambda base, ks, t: base + (ks >> 1) * 16 + t * 8 + (ks & 1) * 4
    def mid():
        if "chain_sig" not in cfg: late_signal(a, cfg)
        if not cfg.get("noinit"): go_load(a)
    o0, o1 = cfg.get("wa_order", ("kvq", "kvq"))
    if o0 != o1:
        a(f"s_cmp_eq_u32 s{sPar}, 1")
        a("s_cbranch_scc1 L_wa_ld1")
    load_stages(a, mk_chunks([M[x] for x in o0]), meanwhile=setup_rest, hooks={cfg.get("late_chunk", 17): mid})
    if o0 != o1:
        a("s_branch L_wa_ldd")
        a.label("L_wa_ld1")
        load_stages(a, mk_chunks([M[x] for x in o1]), meanwhile=setup_rest, hooks={cfg.get("late_chunk", 17): mid})
        a.label("L_wa_ldd")
    trace(a, cfg, 6, None, vT)
    if not cfg.get("noinit"): wait_init(a, sampled=True, barrier=False)
    a("s_barrier")
    vF = 14
    sPre, sPend, sXnN, sFlN, sTag = 92, 93, 94, 95, 65
    a(f"s_mov_b32 s{sPre}, 0")
    a(f"s_mov_b32 s{sPend}, 0")
    vXr, sXb, sEx = 15, 66, 98
    a(f"s_mov_b32 s{sXb}, 0")
    def xn_setup(sseg):
        a(f"s_lshl_b32 s{sXn}, s{sseg}, 15")
        a(f"s_lshl_b32 s{sXnN}, s{sWAVE}, 13")
        a(f"s_add_u32 s{sXn}, s{sXn}, s{sXnN}")
        a(f"s_add_u32 s{sXn}, s{sXn}, {OFF_XN:#x}")
        a(f"s_add_u32 s{sXnN}, s{sXnN}, s{sXb}")
        a(f"s_mov_b32 m0, s{sXnN}")
    def xn_ops():
        ops = []
        for i in range(8):
            x = []
            if i == 4: x += [f"s_add_u32 m0, s{sXnN}, 4096", f"s_add_u32 s{sXn}, s{sXn}, 4096"]
            x.append(f"buffer_load_dwordx4 v{vL16}, {W}, s{sXn} offen offset:{(i%4)*1024} sc1 lds")
            ops.append(x)
        return ops
    MA = 40
    km, vm = 16, 24
    MQ, MEMB = 116, 0x1E000
    def mem_loads():
        return [f"buffer_load_dwordx4 {vr(MQ+4*jj,4)}, v{vL16}, {W}, s{sMem} offen offset:{jj*1024} sc1" for jj in range(2)]
    a.label("L_wa_loop")
    stamp("top")
    a(f"s_lshl_b32 s{sFl}, s{sSeg}, 11")
    a(f"s_add_u32 s{sFlN}, s{sFl}, 4096")
    a(f"s_sub_u32 s{sT0}, s{sSeg}, 2")
    a(f"s_lshl_b32 s{sMem}, s{sT0}, 13")
    a(f"s_add_u32 s{sMem}, s{sMem}, {OFF_MEM:#x}")
    a(f"s_lshl_b32 s{sT0}, s{sWAVE}, 11")
    a(f"s_add_u32 s{sMem}, s{sMem}, s{sT0}")
    a(f"s_cmp_eq_u32 s{sI}, 32")
    a("s_cbranch_scc1 L_wa_noqkv")
    a(f"s_cmp_eq_u32 s{sPre}, 1")
    a("s_cbranch_scc1 L_wa_pre")
    a(f"s_cmp_eq_u32 s{sPre}, 2")
    a("s_cbranch_scc1 L_wa_E")
    poll_flags(a, vT, vF8, sFl, sleep=1)
    xn_setup(sSeg)
    for x in xn_ops():
        for y in x: a(y)
    a("s_waitcnt vmcnt(0)")
    a.label("L_wa_E")
    a("s_waitcnt vmcnt(1)")
    a.label("L_wa_pre")
    a(f"buffer_load_dword v{vF}, v{vF8}, {W}, s{sFlN} offen sc1")
    a(f"v_add_u32 v{vXr}, s{sXb}, v{vL16}")
    a(f"s_xor_b32 s{sXb}, s{sXb}, 0x8000")
    trace(a, cfg, 0, sSeg, vT)
    a(f"s_and_b32 s{sKVo}, s{sSeg}, 3")
    a(f"s_lshl_b32 s{sT0}, s{sLAY}, 2")
    a(f"s_add_u32 s{sKVo}, s{sKVo}, s{sT0}")
    a(f"s_lshl_b32 s{sKVo}, s{sKVo}, 19")
    a(f"s_bfe_u32 s{sTag}, s{sSeg}, 0x10002")
    a(f"s_lshl_b32 s{sT0}, s{sMEMB}, 2")
    a(f"s_add_u32 s{sT0}, s{sT0}, s{sWAVE}")
    a(f"s_lshl_b32 s{sT1}, s{sT0}, 12")
    a(f"s_add_u32 s{sKVo}, s{sKVo}, s{sT1}")
    a(f"s_add_u32 s{sKVo}, s{sKVo}, {OFF_KVR:#x}")
    a(f"s_lshl_b32 s{sT0}, s{sT0}, 2")
    a(f"s_add_u32 s{sFl}, s{sFl}, s{sT0}")
    a("s_barrier")
    stamp("staged")
    def xread(step):
        sl = XR + (step % 3) * 8; ks = step % 16
        return [f"ds_read_b128 {vr(sl,4)}, v{vXr} offset:{XN+ks*2048}", f"ds_read_b128 {vr(sl+4,4)}, v{vXr} offset:{XN+ks*2048+1024}"]
    for x in xread(0) + xread(1): a(x)
    dq = xn_ops(); KS0 = cfg.get("oflag_ks", 4)
    for ks in range(16):
        sl = XR + (ks % 3) * 8
        rd = xread(ks + 2)
        a("s_waitcnt lgkmcnt(2)")
        c0 = lambda x: None if ks == 0 else x
        for u in range(2):
            for t in range(2):
                mfma(KA + (t * 2 + u) * 4, wfrag(WK, ks, t), sl + 4 * u, c0(KA + (t * 2 + u) * 4))
                if rd: a(rd.pop(0))
            for t in range(2):
                mfma(VA + (u * 2 + t) * 4, sl + 4 * u, wfrag(WV, ks, t), c0(VA + (u * 2 + t) * 4))
                if ks > KS0 and dq and u == 0 and t == 0:
                    x = dq.pop(0)
                    for y in x[:-1]: a(y)
                    a(f"s_mov_b64 exec, s[{sEx}:{sEx+1}]")
                    a(x[-1])
                    a("s_mov_b64 exec, -1")
        if ks == KS0:
            lab = a.newlab("L_nopend")
            a("s_waitcnt vmcnt(0)")
            a(f"v_cmp_eq_u32 vcc, 0, v{vF}")
            a(f"s_cmp_eq_u32 s{sPend}, 0")
            a(f"s_cbranch_scc1 {lab}")
            set_flag(a, vOne, sFlA, F_O)
            a(f"s_mov_b32 s{sPend}, 0")
            if cfg.get("trace"):
                a(f"s_sub_u32 s{sT0}, s{sSeg}, 4")
                trace(a, cfg, 3, sT0, vT)
            a.label(lab)
            a(f"s_add_u32 s{sT0}, s{sSeg}, 2")
            xn_setup(sT0)
            a(f"s_cmp_eq_u64 vcc, 0")
            a(f"s_cselect_b32 s{sPre}, 1, 0")
            a(f"s_cmp_ge_u32 s{sI}, 31")
            a(f"s_cselect_b32 s{sPre}, 0, s{sPre}")
            a(f"s_cmp_eq_u32 s{sPre}, 1")
            a(f"s_cselect_b64 s[{sEx}:{sEx+1}], -1, 0")
    assert not dq
    stamp("kvpass", True)
    side = []
    for u in range(2):
        d = PK + 4 * u
        side += [f"v_cvt_pk_bf16_f32 v{d+2*t+hh}, v{KA+(t*2+u)*4+2*hh}, v{KA+(t*2+u)*4+2*hh+1}" for t in range(2) for hh in range(2)]
        side += [f"v_mov_b32 v{112+u}, v{d}", f"v_and_or_b32 v{d}, v{d}, -2, s{sTag}"]
        side += [f"buffer_store_dwordx4 {vr(d,4)}, v{vL16}, {W}, s{sKVo} offen offset:{u*1024} sc1"]
    for t in range(2):
        d = PK + 8 + 4 * t
        side += [f"v_cvt_pk_bf16_f32 v{d+2*u+hh}, v{VA+(u*2+t)*4+2*hh}, v{VA+(u*2+t)*4+2*hh+1}" for u in range(2) for hh in range(2)]
        side += [f"v_mov_b32 v{114+t}, v{d}", f"v_and_or_b32 v{d}, v{d}, -2, s{sTag}"]
        side += [f"buffer_store_dwordx4 {vr(d,4)}, v{vL16}, {W}, s{sKVo} offen offset:{2048+t*1024} sc1"]
    side += [f"v_mov_b32 v{PK+4*i}, v{112+i}" for i in range(4)]
    late = []
    side = mem_loads() + [f"buffer_load_dword v{vF}, v{vF8}, {W}, s{sFlN} offen sc1"] + side
    hw = [f"ds_write_b128 v{vHw}, {vr(PK+4*i,4)} offset:{(0x2000 if i < 2 else 0x4000) + (i%2)*1024}" for i in range(4)]
    nhw = 0
    for ks in range(16):
        k3 = ks + 16
        sl = XR + (k3 % 3) * 8
        rd = xread(k3 + 2) if ks + 2 < 16 else []
        a(f"s_waitcnt lgkmcnt({(2 if ks < 15 else 0) + nhw})")
        nhw = 0
        c0 = lambda x: None if ks == 0 else x
        n = 0
        for u in range(2):
            for t in range(2):
                mfma(QA + (t * 2 + u) * 4, wfrag(WQ, ks, t), sl + 4 * u, c0(QA + (t * 2 + u) * 4))
                n += 1
                if rd: a(rd.pop(0))
                if side and (ks >= 1 or n >= 3):
                    a(side.pop(0))
                    if n == 3 and side: a(side.pop(0))
                elif not side and late and n >= 3: a(late.pop(0))
                elif not side and not late and hw and n == 3: a(hw.pop(0)); nhw += 1
    assert not side and not hw and not late
    trace(a, cfg, 1, sSeg, vT)
    trace(a, cfg, 5, sSeg, vT)
    def q_out():
        for u in range(2):
            d = PK + 16 + 4 * u
            for t in range(2):
                cvt(d + 2 * t, QA + (t * 2 + u) * 4); cvt(d + 2 * t + 1, QA + (t * 2 + u) * 4 + 2)
            a(f"ds_write_b128 v{vHw}, {vr(d,4)} offset:{u*1024}")
    def mem_check(n=0):
        a(f"s_waitcnt vmcnt({n})")
        a(f"v_max3_u32 v{vT}, v{MQ}, v{MQ+1}, v{MQ+2}")
        a(f"v_max3_u32 v{vT}, v{vT}, v{MQ+3}, v{MQ+4}")
        a(f"v_max3_u32 v{vT}, v{vT}, v{MQ+5}, v{MQ+6}")
        a(f"v_max_u32 v{vT}, v{vT}, v{MQ+7}")
        a(f"v_cmp_eq_u32 vcc, -1, v{vT}")
    stamp("qkv")
    mem_check(4)
    q_out()
    a(f"s_cmp_eq_u32 s{sI}, 0")
    a("s_cbranch_scc1 L_wa_first")
    a("s_cbranch_vccz L_wa_memok")
    a("s_branch L_wa_mem0")
    a.label("L_wa_first")
    a("s_waitcnt lgkmcnt(0)")
    a("s_branch L_wa_next")
    a.label("L_wa_noqkv")
    a(f"s_mov_b32 s{sPre}, 0")
    a("s_barrier")
    a.label("L_wa_mem0")
    spin_init(a)
    a.label("L_wa_mem")
    for x in mem_loads(): a(x)
    spin_tick(a)
    mem_check()
    a("s_cbranch_vccz L_wa_memok")
    a(f"s_sleep {cfg.get('mem_sleep', 2)}")
    a("s_branch L_wa_mem")
    a.label("L_wa_memok")
    a(f"s_lshl_b32 s{sT1}, s{sWAVE}, 11")
    a(f"s_add_u32 s{sT1}, s{sT1}, {MEMB}")
    a(f"v_add_u32 v{vT}, s{sT1}, v{vL16}")
    a(f"ds_write_b128 v{vT}, {vr(MQ,4)}")
    a(f"ds_write_b128 v{vT}, {vr(MQ+4,4)} offset:1024")
    for i in range(8): a(f"v_mov_b64 {vr(km+2*i,2)}, 0")
    a(f"v_add_u32 v{vT2}, {MEMB}, v{vL16}")
    a(f"s_and_b32 s{sT0}, s{sWAVE}, 1")
    a(f"s_lshl_b32 s{sT0}, s{sT0}, 10")
    a(f"v_subrev_u32 v{vT}, s{sT0}, v{vHr}")
    if cfg.get("s2", True):
        a(f"v_cmp_eq_u32 vcc, 0, v{vF}")
        a(f"s_cmp_lg_u32 s{sPre}, 0")
        a("s_cbranch_scc1 L_wa_nos2")
        a(f"s_cmp_ge_u32 s{sI}, 31")
        a("s_cbranch_scc1 L_wa_nos2")
        a("s_cbranch_vccnz L_wa_nos2")
        a(f"s_add_u32 s{sT0}, s{sSeg}, 2")
        xn_setup(sT0)
        for x in xn_ops():
            for y in x: a(y)
        a(f"s_mov_b32 s{sPre}, 3")
        a.label("L_wa_nos2")
    a(f"s_sub_u32 s{sT0}, s{sSeg}, 2")
    a("s_waitcnt lgkmcnt(0)")
    a("s_barrier")
    stamp("mem")
    if cfg.get("trace"): trace(a, cfg, 2, sT0, 72)
    for jj in range(8):
        a(f"ds_read_b128 {vr(MA+4*jj,4)}, v{vT2} offset:{jj*1024}")
    for x in [f"s_lshl_b32 s{sO}, s{sT0}, 18", f"s_lshl_b32 s{sT2}, s{sMEMB}, 13", f"s_add_u32 s{sO}, s{sO}, s{sT2}",
              f"s_lshr_b32 s{sT2}, s{sWAVE}, 1", f"s_lshl_b32 s{sT2}, s{sT2}, 12", f"s_add_u32 s{sO}, s{sO}, s{sT2}",
              f"s_and_b32 s{sT2}, s{sWAVE}, 1", f"s_lshl_b32 s{sT2}, s{sT2}, 10", f"s_add_u32 s{sO}, s{sO}, s{sT2}",
              f"s_add_u32 s{sO}, s{sO}, {OFF_O:#x}"]: a(x)
    Qf = 88
    Kf = [32, 36, 104, 108, 112, 116, 120, 124]
    S0, S1, SM_ = 16, 20, 80
    qk = []
    for wp in range(4):
        qk += [f"ds_read_b128 {vr(Qf+4*wp,4)}, v{vHr} offset:{wp*2048}",
               f"ds_read_b128 {vr(Kf[2*wp],4)}, v{vT} offset:{0x2000+wp*2048}",
               f"ds_read_b128 {vr(Kf[2*wp+1],4)}, v{vT} offset:{0x2000+wp*2048+1024}"]
    nq = 0
    for jj in range(8):
        a(f"s_waitcnt lgkmcnt({7-jj+nq})")
        for t in range(2):
            a(f"v_smfmac_f32_16x16x64_bf16 {vr(km+4*t,4)}, {vr(MA+4*jj,4)}, {xr(WK+jj*16+t*8,8)}, v{vIdx}")
            if qk: a(qk.pop(0)); nq += 1
    sx = []
    for wp in range(4):
        c0 = lambda x: None if wp == 0 else x
        sx += [(S0, Kf[2 * wp], Qf + 4 * wp, c0(S0)), (S1, Kf[2 * wp + 1], Qf + 4 * wp, c0(S1))]
    sal = [f"s_lshl_b32 s{sFlA}, s{sT0}, 11", f"s_lshl_b32 s{sT2}, s{sMEMB}, 2", f"s_add_u32 s{sT2}, s{sT2}, s{sWAVE}",
           f"s_lshl_b32 s{sT2}, s{sT2}, 2", f"s_add_u32 s{sFlA}, s{sFlA}, s{sT2}",
           f"s_lshr_b32 s{sT0}, s{sWAVE}, 1", f"s_lshl_b32 s{sT1}, s{sT0}, 12", f"v_add_u32 v{vT}, s{sT1}, v{vT}",
           f"s_lshl_b32 s{sT1}, s{sT0}, 11", f"s_add_u32 s{sT1}, s{sT1}, {VM}"]
    for jj in range(8):
        for t in range(2):
            a(f"v_smfmac_f32_16x16x64_bf16 {vr(vm+4*t,4)}, {vr(MA+4*jj,4)}, {xr(WV+jj*16+t*8,8)}, v{vIdx}")
            if sal and jj not in (1, 4): a(sal.pop(0))
        if jj == 1:
            cvt(72, km); cvt(73, km + 2); cvt(74, km + 4); cvt(75, km + 6)
        if jj == 2:
            a(f"v_mfma_f32_16x16x16_bf16 v[76:79], v[72:73], {vr(Sel16,2)}, 0")
            a(f"v_mfma_f32_16x16x16_bf16 v[80:83], v[74:75], {vr(Sel16,2)}, 0")
            a("s_waitcnt lgkmcnt(0)")
        if jj == 4:
            cvt(72, 76); cvt(73, 78); cvt(74, 80); cvt(75, 82)
            a(f"ds_write_b128 v{vKMw}, v[72:75]")
    assert not sal
    Vf, Mf, VMf = 56, 40, 72
    for i in range(4):
        a(f"ds_read_b128 {vr(Vf+4*i,4)}, v{vT} offset:{0x4000+i*1024}")
    mfma(*sx.pop(0)); mfma(*sx.pop(0))
    cvt(76, vm); cvt(77, vm + 2); cvt(78, vm + 4); cvt(79, vm + 6)
    a(f"ds_write_b128 v{vKMw}, v[76:79] offset:{VM-KM}")
    a(f"v_add_u32 v{vT2}, {KM}, v{vL16}")
    a(f"v_add_u32 v{vT}, s{sT1}, v{vL16}")
    for _ in range(4): mfma(*sx.pop(0))
    a("s_waitcnt lgkmcnt(0)")
    a("s_barrier")
    stamp("kvmem")
    a(f"buffer_load_dword v{vF}, v{vF8}, {W}, s{sFlN} offen sc1")
    for wp in range(4):
        a(f"ds_read_b128 {vr(Mf+4*wp,4)}, v{vT2} offset:{wp*1024}")
    for i in range(2):
        a(f"ds_read_b128 {vr(VMf+4*i,4)}, v{vT} offset:{i*1024}")
    mfma(*sx.pop(0)); mfma(*sx.pop(0))
    for wp in range(4):
        a(f"s_waitcnt lgkmcnt({5-wp})")
        mfma(SM_, Mf + 4 * wp, Qf + 4 * wp, None if wp == 0 else SM_)
    for up in range(2):
        for r in range(4):
            x = (S0, S1)[up] + r
            a(f"v_cndmask_b32 v{x}, v{vNeg}, v{x}, s[{sMask+2*(up*4+r)}:{sMask+2*(up*4+r)+1}]")
    m, t = 84, 85
    a(f"v_max3_f32 v{m}, v16, v17, v18")
    a(f"v_max3_f32 v{m}, v{m}, v19, v20")
    a(f"v_max3_f32 v{m}, v{m}, v21, v22")
    a(f"v_max3_f32 v{m}, v{m}, v23, v80")
    a(f"v_max3_f32 v{m}, v{m}, v81, v82")
    a(f"v_max_f32 v{m}, v{m}, v83")
    xlane_g(a, "v_max_f32", m, t)
    a(f"v_mul_f32 v{m}, s{sC}, v{m}")
    prs = [16, 18, 20, 22, 80, 82]
    for r in prs:
        a(f"v_pk_fma_f32 {vr(r,2)}, {vr(r,2)}, s[{sC}:{sC+1}], {vr(m,2)} op_sel_hi:[1,1,0] neg_lo:[0,0,1] neg_hi:[0,0,1]")
    for r in prs:
        a(f"v_exp_f32 v{r}, v{r}"); a(f"v_exp_f32 v{r+1}, v{r+1}")
    Bx, Pm = 24, 28
    for i, r in enumerate(prs): cvt(Bx + i, r)
    OA = 88
    a("s_waitcnt lgkmcnt(0)")
    sumops = [f"v_pk_add_f32 v[16:17], v[16:17], v[18:19]", f"v_pk_add_f32 v[20:21], v[20:21], v[22:23]",
              f"v_pk_add_f32 v[80:81], v[80:81], v[82:83]", f"v_pk_add_f32 v[16:17], v[16:17], v[20:21]",
              f"v_add_f32 v80, v80, v81", f"v_add_f32 v16, v16, v17", f"v_fmac_f32 v16, 0.5, v80", "v_mov_b32 v17, v16",
              None, "v_permlane16_swap_b32 v16, v17", "v_add_f32 v16, v16, v17", "v_mov_b32 v17, v16", None,
              "v_permlane32_swap_b32 v16, v17", "v_add_f32 v16, v16, v17", "v_rcp_f32 v16, v16"]
    for i in range(8):
        if i < 4: mfma(OA + 4 * i, Vf + 4 * i, Bx, None)
        else: a(f"v_mfma_f32_16x16x16_bf16 {vr(OA+4*(i-4),4)}, {vr(VMf+2*(i-4),2)}, {vr(Pm,2)}, {vr(OA+4*(i-4),4)}")
        for _ in range(2):
            x = sumops.pop(0)
            if x: a(x)
    for hh in range(2):
        for i in range(4):
            a(f"v_pk_mul_f32 {vr(OA+8*hh+2*i,2)}, {vr(OA+8*hh+2*i,2)}, v[16:17] op_sel_hi:[1,0]")
        for i in range(4): cvt(104 + 4 * hh + i, OA + 8 * hh + 2 * i)
        a(f"buffer_store_dwordx4 {vr(104+4*hh,4)}, v{vL16}, {W}, s{sO} offen offset:{hh*2048} sc1")
    lab3 = a.newlab("L_m3")
    a(f"s_cmp_lg_u32 s{sPre}, 3")
    a(f"s_cbranch_scc1 {lab3}")
    a("s_waitcnt vmcnt(2)")
    a(f"s_mov_b32 s{sPre}, 1")
    a.label(lab3)
    if cfg.get("wa_defer", True): a(f"s_mov_b32 s{sPend}, s{sPre}")
    a(f"s_cmp_eq_u32 s{sPre}, 1")
    a("s_cbranch_scc1 L_wa_next" if cfg.get("wa_defer", True) else "s_cbranch_scc1 L_wa_noE")
    a("s_waitcnt vmcnt(2)")
    a(f"v_cmp_eq_u32 vcc, 0, v{vF}")
    a(f"s_cmp_ge_u32 s{sI}, 31")
    a("s_cbranch_scc1 L_wa_noE")
    a("s_cbranch_vccnz L_wa_noE")
    a(f"s_add_u32 s{sT0}, s{sSeg}, 2")
    xn_setup(sT0)
    for x in xn_ops():
        for y in x: a(y)
    a(f"s_mov_b32 s{sPre}, 2")
    a("s_waitcnt vmcnt(8)")
    a("s_branch L_wa_goE")
    a.label("L_wa_noE")
    a("s_waitcnt vmcnt(0)")
    a.label("L_wa_goE")
    set_flag(a, vOne, sFlA, F_O)
    a(f"s_sub_u32 s{sT0}, s{sSeg}, 2")
    trace(a, cfg, 3, sT0, vT)
    a.label("L_wa_next")
    stamp("attn")
    if stamp.on:
        lab = a.newlab("L_nost")
        a(f"s_cmp_lg_u32 s{sI}, {cfg.get('stamp_step', 20)}")
        a(f"s_cbranch_scc1 {lab}")
        def row():
            a(f"s_lshl_b32 s{sT0}, s{sGRP}, 7")
            a(f"s_lshl_b32 s{sT1}, s{sMEMB}, 2")
            a(f"s_add_u32 s{sT0}, s{sT0}, s{sT1}")
            a(f"s_add_u32 s{sT0}, s{sT0}, s{sWAVE}")
        dump_stamps(a, stamp, cfg, row)
        a.label(lab)
    a(f"v_add_u32 v{vHw}, s{sHold}, v{vHw}")
    a(f"v_subrev_u32 v{vHr}, s{sHold}, v{vHr}")
    a(f"s_sub_u32 s{sHold}, 0, s{sHold}")
    a(f"s_add_u32 s{sSeg}, s{sSeg}, 2")
    a(f"s_add_u32 s{sI}, s{sI}, 1")
    a(f"s_cmp_le_u32 s{sI}, 32")
    a("s_cbranch_scc1 L_wa_loop")
    a("s_waitcnt vmcnt(0)")
    a("s_branch L_done")
```

```python
from gen_common import *

W = f"s[{sWS}:{sWS+3}]"
vL16, vT, vT2, vFo, vOne, vRd = 1, 2, 3, 4, 5, 6
sSeg, sEnd, sFl, sSrc, sDst, sBuf, sLds, sC = 55, 56, 57, 58, 59, 60, 66, 96

def cvt(a, d, s): a(f"v_cvt_pk_bf16_f32 v{d}, v{s}, v{s+1}")
def mfma(a, d, x, y, c):
    a(f"v_mfma_f32_16x16x32_bf16 {vr(d,4)}, {xr(x,4)}, {xr(y,4)}, {vr(c,4) if c is not None else 0}")

def mfma32(a, d, x, y, first):
    a(f"v_mfma_f32_32x32x16_bf16 {vr(d,16)}, {xr(x,4)}, {vr(y,4)}, {0 if first else vr(d,16)}")

def tr32_addr(a, vTR, rowmul_hi):
    a(f"v_lshrrev_b32 v{vT}, 5, v0")
    a(f"v_mul_u32_u24 v{vTR}, {rowmul_hi*64}, v{vT}")
    a(f"v_bfe_u32 v{vT}, v0, 2, 2")
    a(f"v_lshl_add_u32 v{vTR}, v{vT}, 6, v{vTR}")
    a(f"v_bfe_u32 v{vT}, v0, 4, 1")
    a(f"v_lshl_add_u32 v{vTR}, v{vT}, 5, v{vTR}")
    a(f"v_and_b32 v{vT}, 1, v0")
    a(f"v_lshl_add_u32 v{vTR}, v{vT}, 4, v{vTR}")
    a(f"v_bfe_u32 v{vT}, v0, 1, 1")
    a(f"v_lshl_add_u32 v{vTR}, v{vT}, 3, v{vTR}")
    a(f"v_add_u32 v{vTR}, s{sLds}, v{vTR}")

def lane32_addr(a, vdst, mu, mhi, paired):
    a(f"v_bfe_u32 v{vT}, v0, 4, 1")
    a(f"v_mul_u32_u24 v{vdst}, {mu}, v{vT}")
    a(f"v_lshrrev_b32 v{vT}, 5, v0")
    a(f"v_mul_u32_u24 v{vT}, {mhi}, v{vT}")
    a(f"v_add_u32 v{vdst}, v{vdst}, v{vT}")
    if paired:
        a(f"v_bfe_u32 v{vT}, v0, 2, 2")
        a(f"v_lshl_add_u32 v{vdst}, v{vT}, 7, v{vdst}")
        a(f"v_and_b32 v{vT}, 3, v0")
    else:
        a(f"v_and_b32 v{vT}, 15, v0")
    a(f"v_lshl_add_u32 v{vdst}, v{vT}, 4, v{vdst}")

def common_start(a):
    a("v_and_b32 v0, 63, v0")
    a(f"v_lshlrev_b32 v{vL16}, 4, v0")
    a(f"s_lshl_b32 s{sLds}, s{sWAVE}, 15")
    a(f"v_mov_b32 v{vOne}, 1")
    a(f"s_lshl_b32 s{sSeg}, s{sLAY}, 6")
    a(f"s_add_u32 s{sEnd}, s{sSeg}, 64")
    a(f"s_mov_b32 s92, 0")
    a(f"s_lshl_b32 s94, s{sLAY}, 21")
    a(f"s_add_u32 s94, s94, {OFF_RING:#x}")

def both_modes(a, name, body, cfg, before=None):
    touch_ring(a, cfg)
    trace(a, cfg, 6, None, vT)
    if not cfg.get("noinit"): wait_init(a)
    else: a("s_barrier")
    if before: before()
    if cfg.get("force_global"):
        a(f"s_branch L_{name}_G")
    else:
        a(f"s_cmp_eq_u32 s{sLOCAL}, 0")
        a(f"s_cbranch_scc1 L_{name}_G")
    for tag, st in (("L", ""), ("G", " sc1")):
        stamp = Stamps(a, cfg.get("stamp") == name and tag == "L", base=4, only=cfg.get("only"))
        a.label(f"L_{name}_{tag}")
        stamp("top")
        a(f"s_lshl_b32 s{sFl}, s{sSeg}, 11")
        body(st, stamp)
        trace(a, cfg, 1, sSeg, vT)
        trace(a, cfg, 5, sSeg, vT)
        stamp("end")
        if stamp.on:
            lab = a.newlab("L_nost")
            a(f"s_and_b32 s{sT0}, s{sSeg}, 63")
            a(f"s_cmp_lg_u32 s{sT0}, {cfg.get('stamp_step', 20)}")
            a(f"s_cbranch_scc1 {lab}")
            def row():
                a(f"s_lshl_b32 s{sT0}, s{sGRP}, 7")
                a(f"s_lshl_b32 s{sT1}, s{sMEMB}, 2")
                a(f"s_add_u32 s{sT0}, s{sT0}, s{sT1}")
                a(f"s_add_u32 s{sT0}, s{sT0}, s{sWAVE}")
            dump_stamps(a, stamp, cfg, row)
            a.label(lab)
        a(f"s_add_u32 s{sSeg}, s{sSeg}, 1")
        a(f"s_cmp_lt_u32 s{sSeg}, s{sEnd}")
        a(f"s_cbranch_scc1 L_{name}_{tag}")
        a("s_waitcnt vmcnt(0)")
        a("s_branch L_done")

sPre, sFlN, vF = 92, 93, 13
sRing, sD0, sD1, sD2, sFlD = 94, 95, 64, 65, 67
CFG = {}

def ring_off(a, dst, sg, part):
    a(f"s_and_b32 s{dst}, s{sg}, {CFG.get('ring', 4)-1}")
    a(f"s_lshl_b32 s{dst}, s{dst}, 18")
    a(f"s_add_u32 s{dst}, s{dst}, s{sRing}")
    if part: a(f"s_add_u32 s{dst}, s{dst}, {part:#x}")

def touch_ring(a, cfg):
    R = CFG.get('ring', 4)
    a(f"s_mul_i32 s{sT0}, s{sMEMB}, {R*8192}")
    a(f"s_mul_i32 s{sT1}, s{sWAVE}, {R*2048}")
    a(f"s_add_u32 s{sT0}, s{sT0}, s{sT1}")
    a(f"s_add_u32 s{sT0}, s{sT0}, s{sRing}")
    for i in range(2 * R):
        if i and i % 4 == 0: a(f"s_add_u32 s{sT0}, s{sT0}, 4096")
        a(f"buffer_load_dwordx4 v[100:103], v{vL16}, {W}, s{sT0} offen offset:{(i%4)*1024} sc1")
    a("s_waitcnt vmcnt(0)")

def dma_ops(npiece, phase_bytes):
    NT = ' nt' if (npiece == 4 and CFG.get('nt_o', False)) else ''
    ops = []
    for ph in range(4):
        for i in range(npiece):
            x = []
            if i == 0:
                x.append(f"s_add_u32 m0, s{sD0}, {ph*phase_bytes}")
                x.append(f"s_add_u32 s{sD2}, s{sD1}, {ph*phase_bytes}")
            x.append(f"buffer_load_dwordx4 v{vL16}, {W}, s{sD2} offen offset:{i*1024} sc1{NT} lds")
            ops.append(x)
    return ops

def dma_setup(a, npiece):
    a(f"s_mul_i32 s{sT0}, s{sWAVE}, {npiece*1024}")
    a(f"s_add_u32 s{sD1}, s{sSrc}, s{sT0}")
    a(f"s_add_u32 s{sD0}, s{sBuf}, s{sT0}")

def guarded(a, ops):
    lab = a.newlab("L_g")
    a(f"s_cbranch_vccz {lab}")
    for x in ops: a(x)
    a.label(lab)

def stage_issue(a, npiece, phase_bytes):
    a(f"s_mul_i32 s{sT0}, s{sWAVE}, {npiece*1024}")
    a(f"s_add_u32 s{sT1}, s{sSrc}, s{sT0}")
    a(f"s_add_u32 s{sT0}, s{sBuf}, s{sT0}")
    for ph in range(4):
        a(f"s_add_u32 m0, s{sT0}, {ph*phase_bytes}")
        if ph: a(f"s_add_u32 s{sT1}, s{sT1}, {phase_bytes}")
        for i in range(npiece):
            a(f"buffer_load_dwordx4 v{vL16}, {W}, s{sT1} offen offset:{i*1024} sc1 lds")

def fetch_input(a, cfg, stamp, src_of, npiece, phase_bytes, bufsize, vbase, sFl=sFl):
    lab = a.newlab("L_pre")
    a(f"s_add_u32 s{sFlN}, s{sFl}, 2048")
    a(f"s_cmp_lg_u32 s{sPre}, 0")
    a(f"s_cbranch_scc1 {lab}")
    poll_flags(a, vT, vFo, sFl, sleep=CFG.get('psleep', 1))
    stamp("polled", True)
    src_of(sSeg)
    dma_setup(a, npiece)
    for x in dma_ops(npiece, phase_bytes)[:2 * npiece]:
        for y in x: a(y)
    a.label(lab)
    stamp("flag")
    trace(a, cfg, 0, sSeg, vT)
    a(f"v_add_u32 v{vRd}, s{sBuf}, v{vbase}")
    a(f"s_xor_b32 s{sBuf}, s{sBuf}, {bufsize}")

def resample():
    return f"buffer_load_dword v{vF}, v{vFo}, {W}, s{sFlN} offen sc1"

def finish(a, cfg, fl, st, nstore, npiece, phase_bytes, src_of):
    no = a.newlab('L_noE'); go = a.newlab('L_goE')
    a(f's_cmp_lg_u32 s{sPre}, 0')
    a(f's_cbranch_scc1 {no}')
    a(f's_waitcnt vmcnt({nstore})')
    a(f"v_cmp_eq_u32 vcc, 0, v{vF}")
    a(f"s_add_u32 s{sT2}, s{sSeg}, 1")
    a(f"s_cmp_ge_u32 s{sT2}, s{sEnd}")
    a(f"s_cbranch_scc1 {no}")
    a(f"s_cbranch_vccnz {no}")
    src_of(sT2)
    dma_setup(a, npiece)
    for x in dma_ops(npiece, phase_bytes)[:2 * npiece]:
        for y in x: a(y)
    a(f"s_mov_b32 s{sPre}, 1")
    a(f's_waitcnt vmcnt({2*npiece})')
    a(f"s_branch {go}")
    a.label(no)
    a('s_waitcnt vmcnt(0)')
    a.label(go)
    set_flag(a, vOne, sFl, fl, st)

def gemm_phases(a, nks, npiece, extra, rdoffs, ring, step, src_of, phase_bytes, stamp, rs_at):
    per = nks // 4
    def rd(ks):
        sl = ring + (ks % 3) * 8
        return [f"ds_read_b128 {vr(sl+4*u,4)}, v{vRd} offset:{rdoffs(ks,u)}" for u in range(2)]
    def kstep(ks, more):
        left = nks - 1 - ks
        a(f"s_waitcnt lgkmcnt({2 if left >= 1 else 0})")
        side = (rd(ks + 2) if left >= 2 else []) + more
        step(ks, ring + (ks % 3) * 8, side)
        assert not side
    a(f"s_waitcnt vmcnt({npiece})")
    a("s_barrier")
    stamp("b0", True)
    for x in rd(0) + rd(1): a(x)
    dq = dma_ops(npiece, phase_bytes)[2 * npiece:]
    dec = CFG.get("dec%d" % nks, 3 * per - 2 if npiece == 2 else 20)
    ops = []
    def gate(q):
        last = max([k for k, x in enumerate(ops) if x == q], default=-1)
        a(f"s_waitcnt vmcnt({len(ops)-1-last})")
        a("s_barrier")
        stamp(f"b{q}", True)
    def common(ks):
        more = []
        for q in (1, 2, 3):
            if ks == q * per - 2: gate(q)
        if dq:
            more.append("\n".join(dq.pop(0))); ops.append(2 + (2 * npiece - len(dq) - 1) // npiece)
        if ks == 2 * npiece:
            for x in extra: more.append(x); ops.append(None)
        return more
    for ks in range(0, dec):
        more = common(ks)
        if ks == max(2 * npiece, dec - CFG.get('lead%d' % nks, 12 if npiece == 4 else 6)): more.append(resample()); ops.append(None)
        kstep(ks, more)
    no, end = a.newlab("L_Hn"), a.newlab("L_He")
    a("s_waitcnt vmcnt(0)")
    ops.clear()
    a(f"v_cmp_eq_u32 vcc, 0, v{vF}")
    a(f"s_mov_b32 s{sPre}, 0")
    a(f"s_add_u32 s{sT2}, s{sSeg}, 1")
    a(f"s_cmp_ge_u32 s{sT2}, s{sEnd}")
    a(f"s_cbranch_scc1 {no}")
    a(f"s_cbranch_vccnz {no}")
    src_of(sT2)
    dma_setup(a, npiece)
    a(f"s_mov_b32 s{sPre}, 1")
    dn = dma_ops(npiece, phase_bytes)[:2 * npiece]
    for ks in range(dec, nks):
        more = []
        if ks == 3 * per - 2: a("s_barrier")
        if dn: more.append("\n".join(dn.pop(0)))
        kstep(ks, more)
    assert not dn
    a(f"s_branch {end}")
    a.label(no)
    for ks in range(dec, nks):
        if ks == 3 * per - 2: a("s_barrier")
        kstep(ks, [resample()] if ks == rs_at else [])
    a.label(end)

def natural_dma64(a, vdst, rowbytes):
    a(f"v_lshrrev_b32 v{vdst}, 2, v0")
    a(f"v_mul_u32_u24 v{vdst}, {rowbytes}, v{vdst}")
    a(f"v_and_b32 v{vT}, 3, v0")
    a(f"v_lshl_add_u32 v{vdst}, v{vT}, 4, v{vdst}")

def img_rd_addr(a, vdst):
    a(f"v_lshrrev_b32 v{vT}, 4, v0")
    a(f"v_lshlrev_b32 v{vT}, 9, v{vT}")
    a(f"v_and_b32 v{vdst}, 15, v0")
    a(f"v_lshl_add_u32 v{vdst}, v{vdst}, 4, v{vT}")

def img2_addr(a, vdst):
    a(f"v_lshrrev_b32 v{vT}, 5, v0")
    a(f"v_lshlrev_b32 v{vdst}, 10, v{vT}")
    a(f"v_bfe_u32 v{vT}, v0, 2, 2")
    a(f"v_lshl_add_u32 v{vdst}, v{vT}, 7, v{vdst}")
    a(f"v_bfe_u32 v{vT}, v0, 4, 1")
    a(f"v_lshl_add_u32 v{vdst}, v{vT}, 6, v{vdst}")
    a(f"v_and_b32 v{vT}, 3, v0")
    a(f"v_lshl_add_u32 v{vdst}, v{vT}, 4, v{vdst}")

sBias, sFlP = 78, 79
def credit_setup(a, vCr, off, n):
    R = CFG.get('ring', 4)
    a(f"s_mov_b32 s{sBias}, 0")
    a(f"v_and_b32 v{vCr}, {n-1}, v0")
    a(f"v_lshlrev_b32 v{vCr}, 2, v{vCr}")
    a(f"v_add_u32 v{vCr}, {off}, v{vCr}")
    a(f"v_add_u32 v{vT}, {R*2048}, v{vFo}")
    a(f"v_cmp_gt_u32 vcc, 32, v0")
    a(f"v_cndmask_b32 v{vCr}, v{vCr}, v{vT}, vcc")

def credit_switch(a, vCr):
    R = CFG.get('ring', 4)
    lab = a.newlab("L_nocr")
    a(f"s_and_b32 s{sT0}, s{sSeg}, 63")
    a(f"s_cmp_lg_u32 s{sT0}, {R-1}")
    a(f"s_cbranch_scc1 {lab}")
    a(f"v_mov_b32 v{vFo}, v{vCr}")
    a(f"s_mov_b32 s{sBias}, {R*2048}")
    a(f"s_sub_u32 s{sFlN}, s{sFlN}, {R*2048}")
    a.label(lab)

def role_ra(a, cfg):
    WT = 256
    vD, vTR, vSt, vCr = 96, 97, 7, 8
    sKs, sNs = 61, 62
    a.label("L_ra")
    common_start(a)
    a(f"s_lshr_b32 s{sKs}, s{sMEMB}, 2")
    a(f"s_and_b32 s{sNs}, s{sMEMB}, 3")
    natural_dma64(a, vD, 1024)
    tr32_addr(a, vTR, 4)
    a(f"s_lshl_b32 s{sT2}, s{sKs}, 20")
    a(f"s_lshl_b32 s{sT1}, s{sNs}, 8")
    a(f"s_add_u32 s{sT2}, s{sT2}, s{sT1}")
    a(f"s_lshl_b32 s{sT1}, s{sWAVE}, 6")
    a(f"s_add_u32 s{sT2}, s{sT2}, s{sT1}")
    set_srd(a, sWT, sWO, 0x400000)
    late_start(a, cfg)
    chunks = []
    for ch in range(16):
        def setup(ch=ch): a(f"s_add_u32 s{sT0}, s{sT2}, {ch*65536}")
        def consume(so, ch=ch):
            for e in range(2):
                for hh in range(2):
                    for jh in range(2):
                        a(f"ds_read_b64_tr_b16 {xr(WT+((2*ch+e)*2+hh)*4+2*jh,2)}, v{vTR} offset:{so+(32*e+16*jh+8*hh)*64}")
            a("s_waitcnt lgkmcnt(0)")
        chunks.append(dict(setup=setup, vdma=vD, dstep=16384, consume=consume))
    load_chunks(a, chunks, sLds)
    a(f"v_and_b32 v{vFo}, 31, v0")
    a(f"v_lshlrev_b32 v{vFo}, 2, v{vFo}")
    a(f"s_lshl_b32 s{sT0}, s{sKs}, 7")
    a(f"s_add_u32 s{sT0}, s{sT0}, {F_O}")
    a(f"v_add_u32 v{vFo}, s{sT0}, v{vFo}")
    credit_setup(a, vCr, F_XNB, 8)
    lane32_addr(a, vSt, 512, 64, True)
    lane32_addr(a, 9, 1024, 256, False)
    a(f"s_lshl_b32 s{sT0}, s{sNs}, 13")
    a(f"s_lshl_b32 s{sT1}, s{sWAVE}, 11")
    a(f"s_add_u32 s{sT0}, s{sT0}, s{sT1}")
    a(f"s_lshl_b32 s{sT1}, s{sKs}, 15")
    a(f"s_add_u32 s{sT0}, s{sT0}, s{sT1}")
    a(f"v_add_u32 v{vSt}, s{sT0}, v{vSt}")
    a(f"s_mov_b32 s{sBuf}, 0")
    ACC, RING = 16, 32
    def body(st, stamp):
        def src_of(sg):
            a(f"s_lshl_b32 s{sSrc}, s{sg}, 18")
            a(f"s_lshl_b32 s{sT0}, s{sKs}, 16")
            a(f"s_add_u32 s{sSrc}, s{sSrc}, s{sT0}")
            a(f"s_add_u32 s{sSrc}, s{sSrc}, {OFF_O:#x}")
        a(f"s_sub_u32 s{sFlP}, s{sFl}, s{sBias}")
        fetch_input(a, cfg, stamp, src_of, 4, 16384, 0x10000, 9, sFlP)
        credit_switch(a, vCr)
        ring_off(a, sDst, sSeg, R_PART)
        a(f"s_lshl_b32 s{sT0}, s{sMEMB}, 2")
        a(f"s_add_u32 s{sT0}, s{sT0}, s{sWAVE}")
        a(f"s_lshl_b32 s{sT0}, s{sT0}, 2")
        a(f"s_add_u32 s{sFl}, s{sFl}, s{sT0}")
        def step(ks, fr, side):
            for hh in range(2):
                mfma32(a, ACC, WT + (ks * 2 + hh) * 4, fr + 4 * hh, ks == 0 and hh == 0)
                for _ in range(3):
                    if side: a(side.pop(0))
        gemm_phases(a, 32, 4, [], lambda ks, u: ks * 2048 + u * 512, RING, step, src_of, 16384, stamp, CFG.get('rs_ra', 27))
        stamp("gemm")
        for u in range(2):
            for i in range(4): cvt(a, 56 + 4 * u + i, ACC + u * 8 + 2 * i)
            a(f"buffer_store_dwordx4 {vr(56+4*u,4)}, v{vSt}, {W}, s{sDst} offen offset:{u*1024}{st}")
        finish(a, cfg, F_PART, st, 2, 4, 16384, src_of)
    both_modes(a, "ra", body, cfg)

def role_rc(a, cfg):
    WT = 256
    vD, vTR, vNeg, vRb = 96, 97, 7, 8
    sHb, sMask, sPrevOK = 61, 76, 62
    a.label("L_rc")
    common_start(a)
    a(f"s_sub_u32 s{sHb}, s{sMEMB}, 16")
    a(f"s_lshl_b32 s{sHb}, s{sHb}, 2")
    a(f"s_add_u32 s{sHb}, s{sHb}, s{sWAVE}")
    a(f"v_lshrrev_b32 v{vD}, 1, v0")
    a(f"v_mul_u32_u24 v{vD}, 3072, v{vD}")
    a(f"v_and_b32 v{vT}, 1, v0")
    a(f"v_lshl_add_u32 v{vD}, v{vT}, 4, v{vD}")
    a(f"v_lshrrev_b32 v{vT}, 4, v0")
    a(f"v_lshlrev_b32 v{vTR}, 8, v{vT}")
    a(f"v_bfe_u32 v{vT}, v0, 2, 2")
    a(f"v_lshl_add_u32 v{vTR}, v{vT}, 5, v{vTR}")
    a(f"v_and_b32 v{vT}, 3, v0")
    a(f"v_lshl_add_u32 v{vTR}, v{vT}, 3, v{vTR}")
    a(f"v_add_u32 v{vTR}, s{sLds}, v{vTR}")
    a(f"s_lshl_b32 s{sT2}, s{sHb}, 5")
    set_srd(a, sWT, sWB, 512 * 3072)
    late_start(a, cfg)
    chunks = []
    for mm in range(3):
        for ch in range(4):
            def setup(mm=mm, ch=ch): a(f"s_add_u32 s{sT0}, s{sT2}, {128*ch*3072 + mm*1024}")
            def consume(so, mm=mm, ch=ch):
                for e in range(4):
                    for jh in range(2):
                        a(f"ds_read_b64_tr_b16 {xr(WT+((4*ch+e)*3+mm)*4+2*jh,2)}, v{vTR} offset:{so+(32*e+4*jh)*32}")
                a("s_waitcnt lgkmcnt(0)")
            chunks.append(dict(setup=setup, vdma=vD, dstep=32 * 3072, consume=consume))
    load_chunks(a, chunks, sLds)
    a(f"v_and_b32 v{vFo}, 7, v0")
    a(f"v_lshlrev_b32 v{vFo}, 2, v{vFo}")
    a(f"v_add_u32 v{vFo}, {F_XNB}, v{vFo}")
    img_rd_addr(a, vRb)
    a(f"v_mov_b32 v{vNeg}, {fbits(-1e9 * 4):#x}")
    a(f"s_mov_b32 s{sC}, {fbits(0.25*1.4426950408889634):#x}")
    a(f"s_mov_b32 s{sC+1}, s{sC}")
    a("v_and_b32 v96, 15, v0")
    a("v_lshrrev_b32 v97, 4, v0")
    a("v_lshlrev_b32 v97, 2, v97")
    for r in range(4):
        a(f"v_add_u32 v98, {r}, v97")
        a(f"v_add_u32 v99, 9, v96")
        a(f"v_cmp_ge_u32 s[{sMask+2*r}:{sMask+2*r+1}], v98, v99")
        a(f"v_sub_u32 v99, v96, v98")
        a(f"v_cmp_ge_u32 s[{sMask+8+2*r}:{sMask+8+2*r+1}], 7, v99")
    KP, VP = (16, 20), (24, 28)
    for r in range(16, 32): a(f"v_mov_b32 v{r}, 0")
    a(f"s_mov_b32 s{sBuf}, 0")
    a(f"s_mov_b64 s[{sPrevOK}:{sPrevOK+1}], 0")
    RING, ACC = 32, 56
    def body(st, stamp):
        def src_of(sg):
            ring_off(a, sSrc, sg, R_XNB)
        fetch_input(a, cfg, stamp, src_of, 2, 8192, 0x8000, vRb)
        ring_off(a, sDst, sSeg, R_OB)
        a(f"s_lshl_b32 s{sT0}, s{sHb}, 10")
        a(f"s_add_u32 s{sDst}, s{sDst}, s{sT0}")
        a(f"s_lshl_b32 s{sT0}, s{sHb}, 2")
        a(f"s_add_u32 s{sFl}, s{sFl}, s{sT0}")
        acc = lambda mm, p: ACC + (p * 3 + mm) * 4
        def step(ks, fr, side):
            for p in range(2):
                c = lambda x: None if ks == 0 else x
                mfma(a, acc(0, p), WT + (ks * 3) * 4, fr + 4 * p, c(acc(0, p)))
                if side: a(side.pop(0))
                mfma(a, acc(1, p), WT + (ks * 3 + 1) * 4, fr + 4 * p, c(acc(1, p)))
                if side: a(side.pop(0))
                mfma(a, acc(2, p), fr + 4 * p, WT + (ks * 3 + 2) * 4, c(acc(2, p)))
                if side: a(side.pop(0))
        gemm_phases(a, 16, 2, [], lambda ks, u: ks * 2048 + u * 256, RING, step, src_of, 8192, stamp, 15)
        stamp("gemm")
        Q = (80, 82); S = (32, 40); B = (84, 88); O = (48, 52); M = (92, 94)
        for p in range(2):
            cvt(a, Q[p], acc(0, p)); cvt(a, Q[p] + 1, acc(0, p) + 2)
            cvt(a, KP[p] + 2, acc(1, p)); cvt(a, KP[p] + 3, acc(1, p) + 2)
            cvt(a, VP[p] + 2, acc(2, p)); cvt(a, VP[p] + 3, acc(2, p) + 2)
        for p in range(2):
            a(f"v_mfma_f32_16x16x16_bf16 {vr(S[p],4)}, {vr(KP[p],2)}, {vr(Q[p],2)}, 0")
            a(f"v_mfma_f32_16x16x16_bf16 {vr(S[p]+4,4)}, {vr(KP[p]+2,2)}, {vr(Q[p],2)}, 0")
        for r in range(4):
            a(f"s_and_b64 s[{98}:{99}], s[{sMask+2*r}:{sMask+2*r+1}], s[{sPrevOK}:{sPrevOK+1}]")
            for p in range(2):
                a(f"v_cndmask_b32 v{S[p]+r}, v{vNeg}, v{S[p]+r}, s[98:99]")
        for r in range(4):
            for p in range(2):
                a(f"v_cndmask_b32 v{S[p]+4+r}, v{vNeg}, v{S[p]+4+r}, s[{sMask+8+2*r}:{sMask+8+2*r+1}]")
        a(f"s_mov_b64 s[{sPrevOK}:{sPrevOK+1}], -1")
        def both(f):
            for p in range(2): f(p)
        both(lambda p: a(f"v_max3_f32 v{M[p]}, v{S[p]}, v{S[p]+1}, v{S[p]+2}"))
        both(lambda p: a(f"v_max3_f32 v{M[p]}, v{M[p]}, v{S[p]+3}, v{S[p]+4}"))
        both(lambda p: a(f"v_max3_f32 v{M[p]}, v{M[p]}, v{S[p]+5}, v{S[p]+6}"))
        both(lambda p: a(f"v_max_f32 v{M[p]}, v{M[p]}, v{S[p]+7}"))
        def xl(op):
            for sw in ("v_permlane16_swap_b32", "v_permlane32_swap_b32"):
                both(lambda p: a(f"v_mov_b32 v{M[p]+1}, v{M[p]}"))
                both(lambda p: a(f"{sw} v{M[p]}, v{M[p]+1}"))
                both(lambda p: a(f"{op} v{M[p]}, v{M[p]}, v{M[p]+1}"))
        xl("v_max_f32")
        both(lambda p: a(f"v_mul_f32 v{M[p]}, s{sC}, v{M[p]}"))
        for p in range(2):
            for i in range(0, 8, 2):
                a(f"v_pk_fma_f32 {vr(S[p]+i,2)}, {vr(S[p]+i,2)}, s[{sC}:{sC+1}], {vr(M[p],2)} op_sel_hi:[1,1,0] neg_lo:[0,0,1] neg_hi:[0,0,1]")
        for p in range(2):
            for i in range(8): a(f"v_exp_f32 v{S[p]+i}, v{S[p]+i}")
        for p in range(2):
            for i in range(4): cvt(a, B[p] + i, S[p] + 2 * i)
        for p in range(2):
            a(f"v_pk_add_f32 {vr(S[p],2)}, {vr(S[p],2)}, {vr(S[p]+2,2)}")
            a(f"v_pk_add_f32 {vr(S[p]+4,2)}, {vr(S[p]+4,2)}, {vr(S[p]+6,2)}")
            mfma(a, O[p], VP[p], B[p], None)
        both(lambda p: a(f"v_pk_add_f32 {vr(S[p],2)}, {vr(S[p],2)}, {vr(S[p]+4,2)}"))
        both(lambda p: a(f"v_add_f32 v{M[p]}, v{S[p]}, v{S[p]+1}"))
        xl("v_add_f32")
        both(lambda p: a(f"v_rcp_f32 v{M[p]}, v{M[p]}"))
        for p in range(2):
            a(f"v_mov_b64 {vr(KP[p],2)}, {vr(KP[p]+2,2)}")
            a(f"v_mov_b64 {vr(VP[p],2)}, {vr(VP[p]+2,2)}")
        for p in range(2):
            a(f"v_pk_mul_f32 {vr(O[p],2)}, {vr(O[p],2)}, {vr(M[p],2)} op_sel_hi:[1,0]")
            a(f"v_pk_mul_f32 {vr(O[p]+2,2)}, {vr(O[p]+2,2)}, {vr(M[p],2)} op_sel_hi:[1,0]")
        for p in range(2):
            cvt(a, 80 + 2 * p, O[p]); cvt(a, 81 + 2 * p, O[p] + 2)
        a("v_permlane16_swap_b32 v80, v82")
        a("v_permlane16_swap_b32 v81, v83")
        a(f"buffer_store_dwordx4 v[80:83], v{vL16}, {W}, s{sDst} offen{st}")
        stamp("attn")
        finish(a, cfg, F_OB, st, 1, 2, 8192, src_of)
    both_modes(a, "rc", body, cfg)

def role_rd(a, cfg):
    WT = 256
    vD, vTR, vRb, vX1, vSt0, vSt1 = 96, 97, 8, 9, 10, 11
    sMd, sOb, sX1o, sOm, sOs = 61, 62, 63, 76, 77
    a.label("L_rd")
    common_start(a)
    a(f"s_sub_u32 s{sMd}, s{sMEMB}, 24")
    a(f"s_lshl_b32 s{sMd}, s{sMd}, 2")
    a(f"s_add_u32 s{sMd}, s{sMd}, s{sWAVE}")
    natural_dma64(a, vD, 1024)
    tr32_addr(a, vTR, 8)
    a(f"s_lshl_b32 s{sT2}, s{sMd}, 6")
    set_srd(a, sWT, sWBO, 0x80000)
    late_start(a, cfg)
    chunks = []
    for ch in range(8):
        def setup(ch=ch): a(f"s_add_u32 s{sT0}, s{sT2}, {ch*65536}")
        def consume(so, ch=ch):
            for e in range(2):
                for hh in range(2):
                    for jh in range(2):
                        a(f"ds_read_b64_tr_b16 {xr(WT+((2*ch+e)*2+hh)*4+2*jh,2)}, v{vTR} offset:{so+(32*e+16*hh+4*jh)*64}")
            a("s_waitcnt lgkmcnt(0)")
        chunks.append(dict(setup=setup, vdma=vD, dstep=16384, consume=consume))
    load_chunks(a, chunks, sLds)
    a(f"v_and_b32 v{vFo}, 31, v0")
    a(f"v_lshlrev_b32 v{vFo}, 2, v{vFo}")
    a(f"v_add_u32 v{vFo}, {F_OB}, v{vFo}")
    a(f"s_cmp_eq_u32 s{sLAY}, 0")
    a(f"s_mov_b32 s{sT1}, {F_OB}")
    a(f"s_cselect_b32 s{sT1}, {64*2048+F_XN}, s{sT1}")
    credit_setup(a, 12, f"s{sT1}", 8)
    lane32_addr(a, vRb, 256, 512, False)
    a(f"s_lshl_b32 s{sT0}, s{sMd}, 11")
    a(f"v_add_u32 v{vX1}, s{sT0}, v{vRb}")
    a(f"s_cmp_eq_u32 s{sLAY}, 0")
    a("s_cbranch_scc1 L_rd_l0")
    set_srd(a, sIN, sOUT, 0x200000)
    a(f"s_mov_b32 s{sOb}, 0")
    a(f"s_mov_b32 s{sOm}, 63")
    a(f"s_mov_b32 s{sOs}, 15")
    a(f"v_and_b32 v{vT}, 15, v0")
    a(f"v_lshlrev_b32 v{vSt0}, 11, v{vT}")
    a(f"v_bfe_u32 v{vT}, v0, 4, 1")
    a(f"v_lshl_add_u32 v{vSt0}, v{vT}, 10, v{vSt0}")
    a(f"v_lshrrev_b32 v{vT}, 5, v0")
    a(f"v_lshl_add_u32 v{vSt0}, v{vT}, 4, v{vSt0}")
    a(f"s_lshl_b32 s{sT0}, s{sMd}, 6")
    a(f"v_add_u32 v{vSt0}, s{sT0}, v{vSt0}")
    a(f"v_add_u32 v{vSt1}, 32, v{vSt0}")
    a("s_branch L_rd_go")
    a.label("L_rd_l0")
    set_srd(a, sIN, sWSP, WS_BYTES)
    a(f"s_add_u32 s{sOb}, s{sRing}, {R_X2:#x}")
    a(f"s_mov_b32 s{sOm}, {CFG.get('ring', 4)-1}")
    a(f"s_mov_b32 s{sOs}, 18")
    lane32_addr(a, vSt0, 512, 64, True)
    a(f"s_lshl_b32 s{sT0}, s{sMd}, 11")
    a(f"v_add_u32 v{vSt0}, s{sT0}, v{vSt0}")
    a(f"v_add_u32 v{vSt1}, 1024, v{vSt0}")
    a.label("L_rd_go")
    a(f"s_mov_b32 s{sBuf}, 0")
    ACC, RING, XR = 16, 32, 56
    def body(st, stamp):
        def src_of(sg):
            ring_off(a, sSrc, sg, R_OB)
        a(f"s_sub_u32 s{sFlP}, s{sFl}, s{sBias}")
        fetch_input(a, cfg, stamp, src_of, 2, 8192, 0x8000, vRb, sFlP)
        credit_switch(a, 12)
        ring_off(a, sX1o, sSeg, R_X1)
        extra = [f"buffer_load_dwordx4 {vr(XR+4*u,4)}, v{vX1}, {W}, s{sX1o} offen offset:{u*1024} sc1" for u in range(2)]
        a(f"s_and_b32 s{sDst}, s{sSeg}, s{sOm}")
        a(f"s_lshl_b32 s{sDst}, s{sDst}, s{sOs}")
        a(f"s_add_u32 s{sDst}, s{sDst}, s{sOb}")
        a(f"s_lshl_b32 s{sT0}, s{sMd}, 2")
        a(f"s_add_u32 s{sFl}, s{sFl}, s{sT0}")
        def step(ks, fr, side):
            for hh in range(2):
                mfma32(a, ACC, WT + (ks * 2 + hh) * 4, fr + 4 * hh, ks == 0 and hh == 0)
                for _ in range(3):
                    if side: a(side.pop(0))
        gemm_phases(a, 16, 2, extra, lambda ks, u: ks * 2048 + u * 1024, RING, step, src_of, 8192, stamp, 14)
        stamp("gemm")
        for i in range(8):
            a(f"v_lshlrev_b32 v{64+2*i}, 16, v{XR+i}")
            a(f"v_and_b32 v{65+2*i}, 0xffff0000, v{XR+i}")
        for i in range(8):
            cvt(a, 80 + i, ACC + 2 * i)
        for i in range(8):
            a(f"v_lshlrev_b32 v{ACC+2*i}, 16, v{80+i}")
            a(f"v_and_b32 v{ACC+2*i+1}, 0xffff0000, v{80+i}")
        for i in range(8):
            a(f"v_pk_add_f32 {vr(ACC+2*i,2)}, {vr(ACC+2*i,2)}, {vr(64+2*i,2)}")
        for u in range(2):
            for i in range(4): cvt(a, 80 + 4 * u + i, ACC + 8 * u + 2 * i)
            a(f"buffer_store_dwordx4 {vr(80+4*u,4)}, v{(vSt0, vSt1)[u]}, s[{sIN}:{sIN+3}], s{sDst} offen{st}")
        finish(a, cfg, F_X2, st, 2, 2, 8192, src_of)
    both_modes(a, "rd", body, cfg)

def row_reduce(a, r, t):
    a(f"v_add_f32_dpp v{r}, v{r}, v{r} row_ror:4 row_mask:0xf bank_mask:0xf")
    a(f"v_add_f32_dpp v{r}, v{r}, v{r} row_ror:8 row_mask:0xf bank_mask:0xf")
    xlane_g(a, "v_add_f32", r, t)

def rnd_bf16(a, r):
    a(f"v_cvt_pk_bf16_f32 v{r}, v{r}, v{r}")
    a(f"v_and_b32 v{r}, 0xffff0000, v{r}")

def layernorm(a, X, T, between=()):
    m, t, s, t2 = T, T + 2, T + 4, T + 6
    between = list(between)
    a(f"v_pk_add_f32 {vr(m,2)}, {vr(X,2)}, {vr(X+2,2)}")
    a(f"v_pk_mul_f32 {vr(s,2)}, {vr(X,2)}, {vr(X,2)}")
    a(f"v_pk_fma_f32 {vr(s,2)}, {vr(X+2,2)}, {vr(X+2,2)}, {vr(s,2)}")
    for i in range(4, 32, 2):
        a(f"v_pk_add_f32 {vr(m,2)}, {vr(m,2)}, {vr(X+i,2)}")
        a(f"v_pk_fma_f32 {vr(s,2)}, {vr(X+i,2)}, {vr(X+i,2)}, {vr(s,2)}")
    a(f"v_add_f32 v{m}, v{m}, v{m+1}")
    a(f"v_add_f32 v{s}, v{s}, v{s+1}")
    def gap():
        if between: a(between.pop(0))
    for ror in (4, 8):
        gap()
        a(f"v_add_f32_dpp v{m}, v{m}, v{m} row_ror:{ror} row_mask:0xf bank_mask:0xf")
        a(f"v_add_f32_dpp v{s}, v{s}, v{s} row_ror:{ror} row_mask:0xf bank_mask:0xf")
    for sw in ("v_permlane16_swap_b32", "v_permlane32_swap_b32"):
        a(f"v_mov_b32 v{t}, v{m}")
        a(f"v_mov_b32 v{t2}, v{s}")
        gap()
        a(f"{sw} v{m}, v{t}")
        a(f"{sw} v{s}, v{t2}")
        a(f"v_add_f32 v{m}, v{m}, v{t}")
        a(f"v_add_f32 v{s}, v{s}, v{t2}")
    a(f"v_mul_f32 v{m}, {fbits(1/512):#x}, v{m}")
    a(f"v_mul_f32 v{s}, {fbits(1/512):#x}, v{s}")
    a(f"v_fma_f32 v{s}, -v{m}, v{m}, v{s}")
    a(f"v_max_f32 v{s}, 0, v{s}")
    rnd_bf16(a, m)
    rnd_bf16(a, s)
    a(f"v_add_f32 v{s}, {fbits(1e-5):#x}, v{s}")
    rnd_bf16(a, s)
    a(f"v_sqrt_f32 v{s}, v{s}")
    gap()
    rnd_bf16(a, s)
    a(f"v_rcp_f32 v{s}, v{s}")
    for x in between: a(x)
    a(f"v_mul_f32 v{m}, v{m}, v{s}")
    for i in range(0, 32, 2):
        a(f"v_pk_fma_f32 {vr(X+i,2)}, {vr(X+i,2)}, {vr(s,2)}, {vr(m,2)} op_sel_hi:[1,0,0] neg_lo:[0,0,1] neg_hi:[0,0,1]")

def unpack(a, dst, src, n):
    for i in range(n):
        a(f"v_lshlrev_b32 v{dst+2*i}, 16, v{src+i}")
        a(f"v_and_b32 v{dst+2*i+1}, 0xffff0000, v{src+i}")

def rows_setup(a, sWb):
    c_, gi = 96, 97
    a(f"s_and_b32 s{sT0}, s{sWb}, 1")
    a(f"s_lshr_b32 s{sT1}, s{sWb}, 1")
    a(f"s_lshl_b32 s{sT1}, s{sT1}, 2")
    a(f"v_and_b32 v{c_}, 3, v0")
    a(f"v_add_u32 v{c_}, s{sT1}, v{c_}")
    a(f"v_lshrrev_b32 v{gi}, 2, v0")
    a(f"s_lshl_b32 s{sT1}, s{sT0}, 8")
    a(f"v_lshl_add_u32 v98, v{c_}, 4, s{sT1}")
    a(f"s_lshl_b32 s{sT1}, s{sT0}, 10")
    a(f"v_lshl_add_u32 v99, v{c_}, 11, s{sT1}")
    a(f"s_lshl_b32 s{sT1}, s{sT0}, 9")
    a(f"s_lshr_b32 s{sT2}, s{sWb}, 1")
    a(f"s_lshl_b32 s{sT2}, s{sT2}, 7")
    a(f"s_add_u32 s{sT1}, s{sT1}, s{sT2}")
    a(f"v_and_b32 v102, 7, v0")
    a(f"v_lshl_add_u32 v102, v102, 4, s{sT1}")

def xn_store_addr(a, vP):
    a(f"s_lshl_b32 s{sT1}, s{sT0}, 10")
    a(f"v_lshl_add_u32 v{vP}, v96, 4, s{sT1}")
    a(f"v_lshl_add_u32 v{vP}, v97, 11, v{vP}")

def ln_to_xn(a, X, T, R, P, vP):
    unpack(a, X, R, 16)
    layernorm(a, X, T)
    for g in range(4):
        for dj in range(4):
            half = dj & 1; jh = dj >> 1
            e = 4 * (g >> 1) + 2 * (g & 1) + jh
            a(f"v_cvt_pk_bf16_f32 v{P+4*g+dj}, v{X+8*half+e}, v{X+8*(2+half)+e}")
        a(f"buffer_store_dwordx4 {vr(P+4*g,4)}, v{vP}, {W}, s{sDst} offen offset:{g*256} sc1")

def ln0(a, cfg):
    sWb, sU = 61, 62
    vA, vP = 8, 12
    X, T, P, R = 16, 48, 128, 144
    a(f"s_cmp_eq_u32 s{sLAY}, 0")
    a("s_cbranch_scc1 L_ln0_done")
    a("v_and_b32 v0, 63, v0")
    a(f"v_mov_b32 v{vOne}, 1")
    a(f"s_lshl_b32 s{sU}, s{sMEMB}, 2")
    a(f"s_add_u32 s{sU}, s{sU}, s{sWAVE}")
    a(f"s_and_b32 s{sWb}, s{sU}, 7")
    a(f"s_lshr_b32 s{sU}, s{sU}, 3")
    rows_setup(a, sWb)
    xn_store_addr(a, vP)
    a(f"v_lshrrev_b32 v100, 1, v97")
    a(f"v_and_b32 v101, 1, v97")
    a(f"v_lshl_add_u32 v100, v100, 3, v101")
    a(f"v_lshl_add_u32 v{vA}, v100, 4, v99")
    set_srd(a, sIN, sX, 0x200000)
    a(f"s_lshl_b32 s{sT0}, s{sU}, 15")
    for k in range(4):
        if k: a(f"s_add_u32 s{sT0}, s{sT0}, {16 << 15}")
        for q in range(4):
            a(f"buffer_load_dwordx4 {vr(R+16*k+4*q,4)}, v{vA}, s[{sIN}:{sIN+3}], s{sT0} offen offset:{q*32}")
    if not cfg.get("noinit"): wait_init(a)
    a(f"s_lshl_b32 s{sDst}, s{sU}, 15")
    a(f"s_add_u32 s{sDst}, s{sDst}, {OFF_XN:#x}")
    a(f"s_lshl_b32 s{sFl}, s{sU}, 11")
    a(f"s_lshl_b32 s{sT0}, s{sWb}, 2")
    a(f"s_add_u32 s{sFl}, s{sFl}, s{sT0}")
    a(f"s_mov_b32 s{sU}, 0")
    a("s_waitcnt vmcnt(0)")
    a(f"v_lshrrev_b32 v100, 1, v97")
    a(f"v_lshl_add_u32 v{vA}, v100, 12, v102")
    a.label("L_ln0_loop")
    a(f"s_sub_u32 s{sT0}, s{sDst}, {OFF_XN-OFF_XR:#x}")
    for q in range(4):
        a(f"buffer_store_dwordx4 {vr(R+4*q,4)}, v{vA}, {W}, s{sT0} offen offset:{q*1024} sc1")
    ln_to_xn(a, X, T, R, P, vP)
    for i in range(24): a(f"v_mov_b64 {vr(R+2*i,2)}, {vr(R+16+2*i,2)}")
    a("s_waitcnt vmcnt(0)")
    set_flag(a, vOne, sFl, F_XN)
    a(f"s_add_u32 s{sDst}, s{sDst}, {16 << 15}")
    a(f"s_add_u32 s{sFl}, s{sFl}, {16 << 11}")
    a(f"s_add_u32 s{sU}, s{sU}, 1")
    a(f"s_cmp_lt_u32 s{sU}, 4")
    a("s_cbranch_scc1 L_ln0_loop")
    a.label("L_ln0_done")

def role_rows(a, cfg):
    sWb, sIb, sLo = 61, 62, 63
    vA = 8
    vP = 12
    vP2 = 7
    vFx = 13
    c_, gi = 96, 97
    a.label("L_rows")
    common_start(a)
    a(f"s_sub_u32 s{sWb}, s{sMEMB}, 28")
    a(f"s_lshl_b32 s{sWb}, s{sWb}, 1")
    a(f"s_and_b32 s{sT0}, s{sWAVE}, 1")
    a(f"s_add_u32 s{sWb}, s{sWb}, s{sT0}")
    rows_setup(a, sWb)
    a(f"s_cmp_ge_u32 s{sWAVE}, 2")
    a("s_cbranch_scc1 L_re")
    SelLo, SelHi = 104, 108
    X, T, P, R, RN = 16, 48, 128, 112, 192
    a(f"v_lshlrev_b32 v{vFo}, 2, v0")
    a(f"v_add_u32 v{vFo}, {F_PART}, v{vFo}")
    a(f"v_and_b32 v{vFx}, 7, v0")
    a(f"v_lshlrev_b32 v{vFx}, 2, v{vFx}")
    a("v_bfe_u32 v100, v0, 3, 1")
    a("v_lshl_add_u32 v102, v100, 10, v102")
    a("v_lshrrev_b32 v100, 4, v0")
    a(f"v_lshl_add_u32 v{vP2}, v100, 15, v102")
    a("v_bfe_u32 v100, v0, 4, 1")
    a("v_lshlrev_b32 v101, 12, v100")
    a("v_bfe_u32 v100, v0, 5, 1")
    a("v_lshl_add_u32 v101, v100, 11, v101")
    a(f"v_add_u32 v{vA}, v101, v102")
    a("v_bfe_u32 v100, v0, 2, 2")
    a("v_lshl_add_u32 v101, v100, 9, v101")
    a(f"v_add_u32 v{vP}, v101, v98")
    sel_consts(a, 0, 100, selLo=SelLo, selHi=SelHi)
    vCa, vCv, sCr = 9, 10, 76
    a(f"v_and_b32 v{vCa}, 15, v0")
    a(f"v_lshlrev_b32 v{vCa}, 2, v{vCa}")
    a(f"v_add_u32 v{vCa}, {F_X2}, v{vCa}")
    def res_loads(sg):
        a(f"s_lshl_b32 s{sT0}, s{sg}, 15")
        a(f"s_add_u32 s{sT0}, s{sT0}, {OFF_XR:#x}")
        for i in range(4):
            if i: a(f"s_add_u32 s{sT0}, s{sT0}, 8192")
            a(f"buffer_load_dwordx4 {vr(RN+4*i,4)}, v{vA}, {W}, s{sT0} offen sc1")
    def before():
        a(f"s_lshl_b32 s{sFl}, s{sSeg}, 11")
        poll_flags(a, vT, vFx, sFl, sleep=8)
        a(f"s_add_u32 s{sFl}, s{sFl}, 2048")
        poll_flags(a, vT, vFx, sFl, sleep=8)
        res_loads(sSeg)
        a("s_waitcnt vmcnt(0)")
    def swaps(r):
        return [f"v_permlane16_swap_b32 v{r+4*p+h}, v{r+4*p+2+h}" for p in range(4) for h in range(2)]
    def body(st, stamp):
        ring_off(a, sSrc, sSeg, R_PART)
        for x in swaps(RN): a(x)
        unpack(a, X, RN, 16)
        poll_flags(a, vT, vFo, sFl, sleep=CFG.get('psleep', 1))
        stamp("flag")
        trace(a, cfg, 0, sSeg, vT)
        for n in range(16):
            if n and n % 2 == 0: a(f"s_add_u32 s{sSrc}, s{sSrc}, 4096")
            a(f"buffer_load_dwordx4 {vr(P+4*n,4)}, v{vP2}, {W}, s{sSrc} offen offset:{(n%2)*2048} sc1")
        a(f"s_and_b32 s{sT0}, s{sSeg}, 63")
        a(f"s_cmp_ge_u32 s{sT0}, {CFG.get('ring', 4)}")
        a(f"s_cselect_b32 s{sCr}, {CFG.get('ring', 4)*2048+F_PART-F_X2}, 0")
        a(f"s_sub_u32 s{sCr}, s{sFl}, s{sCr}")
        a(f"s_add_u32 s{sCr}, s{sCr}, {F_PART-F_X2}")
        a(f"buffer_load_dword v{vCv}, v{vCa}, {W}, s{sCr} offen sc1")
        a(f"s_add_u32 s{sT0}, s{sSeg}, 1")
        res_loads(sT0)
        ring_off(a, sT2, sSeg, R_X1)
        a(f"s_add_u32 s{sDst}, s{sT2}, {R_XNB-R_X1:#x}")
        a(f"s_lshl_b32 s{sT0}, s{sWb}, 2")
        a(f"s_add_u32 s{sFl}, s{sFl}, s{sT0}")
        for n in range(16):
            a(f"s_waitcnt vmcnt({20-n})")
            mfma(a, X + 4 * (n // 2), (SelLo, SelHi)[n % 2], P + 4 * n, X + 4 * (n // 2))
            if n >= 5 and n % 2 == 1:
                i = (n - 5) // 2
                cvt(a, R + 2 * i, X + 4 * i); cvt(a, R + 2 * i + 1, X + 4 * i + 2)
        stamp("sum")
        lab = a.newlab("L_crok")
        a("s_waitcnt vmcnt(4)")
        a(f"v_cmp_eq_u32 vcc, 0, v{vCv}")
        a(f"s_cbranch_vccz {lab}")
        poll_flags(a, vCv, vCa, sCr, sleep=2)
        a.label(lab)
        for i in range(12, 16): cvt(a, R + i, X + 2 * i)
        for x in swaps(R): a(x)
        stores = []
        for i in range(4):
            stores.append((f"s_add_u32 s{sT2}, s{sT2}, 8192\n" if i else "") + f"buffer_store_dwordx4 {vr(R+4*i,4)}, v{vP}, {W}, s{sT2} offen{st}")
        layernorm(a, X, T, stores)
        for p in range(4):
            for i in range(4): cvt(a, P + 4 * p + i, X + 8 * p + 2 * i)
            for x in swaps(P)[2*p:2*p+2]: a(x)
            if p: a(f"s_add_u32 s{sDst}, s{sDst}, 8192")
            a(f"buffer_store_dwordx4 {vr(P+4*p,4)}, v{vP}, {W}, s{sDst} offen{st}")
        stamp("ln")
        a("s_waitcnt vmcnt(0)")
        set_flag(a, vOne, sFl, F_XNB, st)
    both_modes(a, "rb", body, cfg, before)
    a.label("L_re")
    a(f"v_and_b32 v{vFo}, 15, v0")
    a(f"v_lshlrev_b32 v{vFo}, 2, v{vFo}")
    a(f"v_add_u32 v{vFo}, {F_X2}, v{vFo}")
    xn_store_addr(a, vP)
    a(f"v_lshrrev_b32 v100, 1, v{gi}")
    a(f"v_lshl_add_u32 v{vA}, v100, 12, v102")
    touch_ring(a, cfg)
    a(f"s_cmp_eq_u32 s{sLAY}, 1")
    a("s_cbranch_scc1 L_exit")
    if not cfg.get("noinit"): wait_init(a)
    else: a("s_barrier")
    stamp = Stamps(a, cfg.get("stamp") == "re", base=4, only=cfg.get("only"))
    a.label("L_re_loop")
    stamp("top")
    a(f"s_lshl_b32 s{sFl}, s{sSeg}, 11")
    ring_off(a, sSrc, sSeg, R_X2)
    poll_flags(a, vT, vFo, sFl, sleep=CFG.get('psleep', 1))
    stamp("flag")
    trace(a, cfg, 0, sSeg, vT)
    for q in range(4):
        a(f"buffer_load_dwordx4 {vr(R+4*q,4)}, v{vA}, {W}, s{sSrc} offen offset:{q*1024} sc1")
    a(f"s_lshl_b32 s{sT0}, s{sSeg}, 15")
    a(f"s_add_u32 s{sDst}, s{sT0}, {OFF_XN+(64<<15):#x}")
    a(f"s_add_u32 s{sSrc}, s{sT0}, {OFF_X2R:#x}")
    a(f"s_lshl_b32 s{sT0}, s{sWb}, 2")
    a(f"s_add_u32 s{sFl}, s{sFl}, s{sT0}")
    a(f"s_add_u32 s{sFl}, s{sFl}, {64<<11}")
    a("s_waitcnt vmcnt(0)")
    stamp("ld")
    for q in range(4):
        a(f"buffer_store_dwordx4 {vr(R+4*q,4)}, v{vA}, {W}, s{sSrc} offen offset:{q*1024} sc1")
    ln_to_xn(a, X, T, R, P, vP)
    stamp("ln")
    a("s_waitcnt vmcnt(0)")
    set_flag(a, vOne, sFl, F_XN)
    trace(a, cfg, 1, sSeg, vT)
    stamp("end")
    if stamp.on:
        lab = a.newlab("L_nost")
        a(f"s_and_b32 s{sT0}, s{sSeg}, 63")
        a(f"s_cmp_lg_u32 s{sT0}, {cfg.get('stamp_step', 20)}")
        a(f"s_cbranch_scc1 {lab}")
        def row():
            a(f"s_lshl_b32 s{sT0}, s{sGRP}, 7")
            a(f"s_lshl_b32 s{sT1}, s{sMEMB}, 2")
            a(f"s_add_u32 s{sT0}, s{sT0}, s{sT1}")
            a(f"s_add_u32 s{sT0}, s{sT0}, s{sWAVE}")
        dump_stamps(a, stamp, cfg, row)
        a.label(lab)
    a(f"s_add_u32 s{sSeg}, s{sSeg}, 1")
    a(f"s_cmp_lt_u32 s{sSeg}, s{sEnd}")
    a("s_cbranch_scc1 L_re_loop")
    a("s_waitcnt vmcnt(0)")
    a("s_branch L_done")

def role_wo(a, cfg):
    CFG.clear(); CFG.update(cfg)
    a.label("L_wo")
    ln0(a, cfg)
    a(f"s_cmp_lt_u32 s{sMEMB}, 16")
    a("s_cbranch_scc1 L_ra")
    a(f"s_cmp_lt_u32 s{sMEMB}, 24")
    a("s_cbranch_scc1 L_rc")
    a(f"s_cmp_lt_u32 s{sMEMB}, 28")
    a("s_cbranch_scc1 L_rd")
    a("s_branch L_rows")
    role_ra(a, cfg); role_rc(a, cfg); role_rd(a, cfg); role_rows(a, cfg)
```

```python
import sys
from gen_common import *
from gen_chain import chain

HEADER = open('interleave_layers__memory_aug_recurrent_mem_tr__sliding_local_dilated__prompt.s.ref').read().split("; Override launch")[0]

GMAP = [("chain",0,0),("wa",0,0),("chain",1,0),("wa",1,0),("wa",0,1),("wo",0,0),("wa",1,1),("wo",1,0)]
WARM = [3, 6]

def generate(cfg):
    a = Asm()
    TRC.clear(); TRC.update(cfg)
    roles = cfg.get("roles", {"chain", "wa", "wo"})
    a("s_cmp_ge_u32 s2, 256")
    a("s_cbranch_scc1 L_exit")
    a("s_load_dwordx16 s[4:19], s[0:1], 0")
    a("s_load_dwordx8 s[20:27], s[0:1], 64")
    a("s_load_dwordx2 s[28:29], s[0:1], 96")
    a(f"s_getreg_b32 s{sGRP}, hwreg(HW_REG_XCC_ID, 0, 4)")
    a("v_lshrrev_b32 v1, 6, v0")
    a(f"v_readfirstlane_b32 s{sWAVE}, v1")
    a(f"s_mov_b32 s{sLOCAL}, 1")
    a("s_mov_b32 s31, 0")
    if cfg.get("count_redo") or cfg.get("hold_us"): a("s_memrealtime s[100:101]")
    a("s_waitcnt lgkmcnt(0)")
    set_srd(a, sWS, sWSP, WS_BYTES)
    a(f"s_cmp_lg_u32 s{sWAVE}, 0")
    a("s_cbranch_scc1 L_notw0")
    if cfg.get("scramble"):
        a(f"s_lshr_b32 s{sGRP}, s2, {cfg['scramble']}")
        a(f"s_and_b32 s{sGRP}, s{sGRP}, {cfg.get('scramble_mask', 7)}")
    a(f"s_mov_b32 s{sMEMB}, 1")
    a(f"s_lshl_b32 s{sT0}, s{sGRP}, 3")
    a(f"s_cmp_gt_u32 s{sGRP}, 7")
    a(f"s_cselect_b32 s{sT0}, 4, s{sT0}")
    a(f"s_atomic_add s{sMEMB}, s[{sDBG}:{sDBG+1}], s{sT0} glc")
    a("s_waitcnt lgkmcnt(0)")
    a(f"s_cmp_gt_u32 s{sGRP}, 7")
    a(f"s_cselect_b32 s{sMEMB}, 32, s{sMEMB}")
    a(f"s_cmp_lt_u32 s{sMEMB}, 32")
    a("s_cbranch_scc1 L_haverole")
    count_tickets(a)
    a(f"s_mov_b32 s{sT1}, 1")
    a(f"s_atomic_add s{sT1}, s[{sDBG}:{sDBG+1}], 0xc glc")
    a("s_waitcnt lgkmcnt(0)")
    for g in range(8):
        a(f"s_mov_b32 s{sGRP}, {g}")
        a(f"s_min_u32 s{sFV}, s{72+2*g}, 32")
        a(f"s_add_u32 s{sMEMB}, s{sFV}, s{sT1}")
        a(f"s_cmp_lt_u32 s{sMEMB}, 32")
        a("s_cbranch_scc1 L_haverole")
        a(f"s_sub_u32 s{sT1}, s{sMEMB}, 32")
    a(f"s_mov_b32 s{sGRP}, 8")
    a.label("L_haverole")
    a(f"s_lshl_b32 s{sT0}, s{sGRP}, 8")
    a(f"s_or_b32 s{sT0}, s{sT0}, s{sMEMB}")
    a(f"v_mov_b32 v1, s{sT0}")
    a("v_mov_b32 v2, 0x27ff0")
    a("ds_write_b32 v2, v1")
    a("s_waitcnt lgkmcnt(0)")
    a("s_branch L_bar0")
    a.label("L_notw0")
    if cfg.get("warm0"):
        a(f"s_cmp_lt_u32 s{sWAVE}, 2")
        a("s_cbranch_scc1 L_nowarm0")
        a("v_and_b32 v1, 127, v0")
        a("v_lshlrev_b32 v1, 4, v1")
        n = 0
        for ptr in [dict(k=sWK, v=sWV, o=sWO, q=sWQ)[x] for x in cfg["warm0"]]:
            set_srd(a, sWT, ptr, 0x400000)
            a(f"s_lshl_b32 s{sT0}, s2, 11")
            for i in range(8):
                if i: a(f"s_add_u32 s{sT0}, s{sT0}, {1 << 19}")
                a(f"buffer_load_dwordx4 {ar(n*4,4)}, v1, s[{sWT}:{sWT+3}], s{sT0} offen")
                n += 1
        a("s_branch L_bar0")
        a.label("L_nowarm0")
    if not cfg.get("nocodepf"):
        a(f"s_cmp_lg_u32 s{sWAVE}, 1")
        a("s_cbranch_scc1 L_bar0")
        a("s_getpc_b64 s[64:65]")
        a.label("L_pcref")
        a(f"s_lshr_b32 s{sT0}, s2, 3")
        a(f"s_lshl_b32 s{sT0}, s{sT0}, 12")
        a("v_and_b32 v1, 63, v0")
        a(f"v_lshl_add_u32 v1, v1, 6, s{sT0}")
        a("v_min_u32 v1, L_codeend-L_pcref-4, v1")
        a("global_load_dword v255, v1, s[64:65]")
    a.label("L_bar0")
    a("s_barrier")
    a("v_mov_b32 v2, 0x27ff0")
    a("ds_read_b32 v1, v2")
    a("s_waitcnt lgkmcnt(0)")
    a(f"v_readfirstlane_b32 s{sT0}, v1")
    a("s_barrier")
    a(f"s_and_b32 s{sMEMB}, s{sT0}, 31")
    a(f"s_lshr_b32 s{sGRP}, s{sT0}, 8")
    a(f"s_cmp_gt_u32 s{sGRP}, 7")
    a("s_cbranch_scc1 L_exit")
    trace_setup(a, cfg)
    trace(a, cfg, 7, None, 1)
    gmap = cfg.get("gmap", GMAP)
    for g, (role, lay, par) in enumerate(gmap):
        if role not in roles: continue
        lab = a.newlab("L_ng")
        a(f"s_cmp_lg_u32 s{sGRP}, {g}")
        a(f"s_cbranch_scc1 {lab}")
        a(f"s_mov_b32 s{sLAY}, {lay}")
        a(f"s_mov_b32 s{sT3}, {par}")
        warm = cfg.get("warm", WARM)
        initg = [x for x in range(len(gmap)) if gmap[x][1] == 1 and x not in warm]
        if g in initg and not cfg.get("noinit"):
            assert len(initg) == 2
            a(f"s_mov_b32 s{sT2}, {initg.index(g)}")
            a(f"s_getpc_b64 s[98:99]")
            a(f"s_branch L_init")
        if g in warm: warm_weights(a, cfg, warm.index(g), len(warm))
        a(f"s_branch L_{role}")
        a.label(lab)
    a.label("L_done")
    trace(a, cfg, 8, None, 1)
    if cfg.get("hold_us"):
        a.label("L_hold")
        a("s_memrealtime s[70:71]")
        a("s_waitcnt lgkmcnt(0)")
        a("s_sub_u32 s70, s70, s100")
        a(f"s_cmp_lt_u32 s70, {cfg['hold_us']*100}")
        a("s_cbranch_scc1 L_hold")
    a.label("L_exit")
    a("s_endpgm")
    if not cfg.get("noinit"):
        a.label("L_init")
        a(f"s_lshl_b32 s{sT2}, s{sT2}, 5")
        a(f"s_add_u32 s{sT2}, s{sT2}, s{sMEMB}")
        a("v_lshlrev_b32 v1, 4, v0")
        for i in range(4): a(f"v_mov_b32 v{4+i}, 0")
        a(f"s_lshl_b32 s{sT1}, s{sT2}, 12")
        a(f"buffer_store_dwordx4 v[4:7], v1, s[{sWS}:{sWS+3}], s{sT1} offen sc1")
        for i in range(4): a(f"v_mov_b32 v{8+i}, -1")
        a(f"s_mul_i32 s{sT1}, s{sT2}, {92*1024}")
        a(f"s_add_u32 s{sT1}, s{sT1}, {OFF_MEM:#x}")
        for i in range(23):
            if i: a(f"s_add_u32 s{sT1}, s{sT1}, 4096")
            a(f"buffer_store_dwordx4 v[8:11], v1, s[{sWS}:{sWS+3}], s{sT1} offen sc1")
        a("s_waitcnt vmcnt(0)")
        a("s_barrier")
        a(f"s_cmp_lg_u32 s{sWAVE}, 0")
        a("s_cbranch_scc1 L_init_done")
        a(f"s_mov_b32 s{sT1}, 1")
        a(f"s_atomic_add s{sT1}, s[{sDBG}:{sDBG+1}], 0x14 glc")
        a("s_waitcnt lgkmcnt(0)")
        a(f"s_cmp_lg_u32 s{sT1}, 63")
        a("s_cbranch_scc1 L_init_done")
        count_tickets(a)
        a(f"s_mov_b32 s{sT1}, 0x100")
        for g in range(8):
            a(f"s_cmp_ge_u32 s{72+2*g}, 32")
            a(f"s_cselect_b32 s{sT0}, {1 << g}, 0")
            a(f"s_or_b32 s{sT1}, s{sT1}, s{sT0}")
        a(f"v_mov_b32 v4, s{sT1}")
        a("v_mov_b32 v5, 0")
        a("s_mov_b64 exec, 1")
        a(f"global_store_dword v5, v4, s[{sDBG}:{sDBG+1}] offset:128 sc1")
        a("s_mov_b64 exec, -1")
        a.label("L_init_done")
        a("s_add_u32 s98, s98, 4")
        a("s_addc_u32 s99, s99, 0")
        a("s_setpc_b64 s[98:99]")
    if "chain" in roles:
        if cfg.get("v2"):
            from gen_chain_v2 import chain as ch
        else: ch = chain
        ch(a, True, cfg)
        ch(a, False, cfg)
    if "wa" in roles:
        from gen_wa import role_wa
        role_wa(a, cfg)
    if "wo" in roles:
        from gen_wo import role_wo
        role_wo(a, cfg)
    a.label("L_codeend")
    a("s_endpgm")
    if cfg.get("drop"):
        a.ins = [x if not x.text.startswith(cfg["drop"]) else Ins("s_nop 2") for x in a.ins]
    nn = a.fix_hazards(verbose=cfg.get("verbose", False), timed=cfg.get("timed", True))
    if cfg.get("align", True):
        fx = align8(a)
        if cfg.get("verbose"): print("align", fx)
    errs = a.check_waits()
    for e in errs[:20]: print("WAITERR", e)
    body = a.text()
    txt = HEADER + f"""; @launch grid=(256,1,1) block=(256,1,1) lds=163840
.amdgcn_target "amdgcn-amd-amdhsa--gfx950"
.text
.globl {KNAME}
.p2align 8
.type {KNAME},@function
{KNAME}:
{body}.section .rodata,"a"
.p2align 6
.amdhsa_kernel {KNAME}
  .amdhsa_next_free_vgpr 512
  .amdhsa_next_free_sgpr 102
  .amdhsa_accum_offset 256
  .amdhsa_group_segment_fixed_size 0
  .amdhsa_kernarg_size 104
  .amdhsa_user_sgpr_count 2
  .amdhsa_user_sgpr_kernarg_segment_ptr 1
  .amdhsa_system_sgpr_workgroup_id_x 1
  .amdhsa_float_denorm_mode_32 3
.end_amdhsa_kernel
"""
    return txt, nn, errs

if __name__ == "__main__":
    cfg = eval(sys.argv[2]) if len(sys.argv) > 2 else {}
    txt, nn, errs = generate(cfg)
    open(sys.argv[1], "w").write(txt)
    print("nops", nn, "bytes", len(txt), "errs", len(errs))
```

```python
import re

def vr(a, n=1):
    return f"v{a}" if n == 1 else f"v[{a}:{a+n-1}]"
def ar(a, n=1):
    return f"a{a}" if n == 1 else f"a[{a}:{a+n-1}]"
def sr(a, n=1):
    return f"s{a}" if n == 1 else f"s[{a}:{a+n-1}]"
def xr(a, n=1):
    return vr(a, n) if a < 256 else ar(a - 256, n)

_REG = re.compile(r"^(-|abs\()?\|?([vas])(?:(\d+)|\[(\d+):(\d+)\])\|?\)?$")

def regs_of(tok):
    tok = tok.strip()
    if tok in ("vcc",):
        return {("s", "vcc")}
    if tok in ("exec",):
        return {("s", "exec")}
    if tok == "m0":
        return {("s", "m0")}
    m = _REG.match(tok)
    if not m:
        return set()
    k = m.group(2)
    if m.group(3) is not None:
        lo = hi = int(m.group(3))
    else:
        lo, hi = int(m.group(4)), int(m.group(5))
    if k == "s":
        return {("s", i) for i in range(lo, hi + 1)}
    off = 256 if k == "a" else 0
    return {("v", i + off) for i in range(lo, hi + 1)}

TRANS = ("v_exp_f32", "v_log_f32", "v_rcp_f32", "v_rsq_f32", "v_sqrt_f32", "v_sin_f32", "v_cos_f32")

class Ins:
    __slots__ = ("text", "op", "kind", "w", "r", "srcC", "passes", "label", "target", "cond", "mods",
                 "dpp", "states", "srcAB", "vm", "lgkm", "wide_store", "lds_dma", "sreads_valu")
    def __init__(self, text):
        self.text = text
        self.label = None; self.target = None; self.cond = False
        self.w = set(); self.r = set(); self.srcC = set(); self.srcAB = set()
        self.passes = 0; self.dpp = False; self.vm = False; self.lgkm = None
        self.wide_store = set(); self.lds_dma = False; self.sreads_valu = set()
        t = text.split(";")[0].strip()
        self.kind = "none"; self.op = ""; self.states = 0; self.mods = ""
        if not t or t.startswith("."):
            return
        if t.endswith(":"):
            self.label = t[:-1]; self.kind = "label"; return
        parts = t.split(None, 1)
        op = parts[0]; self.op = op
        rest = parts[1] if len(parts) > 1 else ""
        ops = [x.strip() for x in re.split(r",(?![^\[]*\])", rest)] if rest else []
        if ops:
            last = ops[-1].split(None, 1)
            if not op.startswith("s_waitcnt"):
                ops[-1] = last[0]
                self.mods = last[1] if len(last) > 1 else ""
        self.states = 1
        R = lambda i: regs_of(ops[i]) if i < len(ops) else set()
        allr = lambda a: set().union(*[R(i) for i in range(a, len(ops))]) if a < len(ops) else set()
        if op.startswith("v_mfma") or op.startswith("v_smfmac"):
            self.kind = "mfma"
            self.passes = 8 if "32x32" in op else 4
            self.w = R(0)
            if op.startswith("v_smfmac"):
                self.srcC = R(0); self.srcAB = R(1) | R(2) | R(3); self.states = 3
            else:
                self.srcC = R(3); self.srcAB = R(1) | R(2); self.states = 2
            self.r = self.srcC | self.srcAB
        elif op.startswith("v_"):
            self.kind = "valu"
            self.dpp = ("row_" in self.mods) or ("quad_perm" in self.mods) or op.endswith("_dpp")
            if op.startswith("v_cmp"):
                self.w = R(0); self.r = allr(1)
            elif op.startswith("v_permlane"):
                self.w = R(0) | R(1); self.r = R(0) | R(1); self.kind = "perm"
            elif op.startswith("v_readfirstlane") or op.startswith("v_readlane"):
                self.w = R(0); self.r = allr(1); self.kind = "readlane"
            elif op.startswith(("v_add_co", "v_sub_co", "v_addc_co")):
                self.w = R(0) | R(1); self.r = allr(2)
            elif op.startswith("v_nop"):
                pass
            else:
                self.w = R(0); self.r = allr(1)
                if op.startswith(("v_fmac", "v_dot2c", "v_pk_fmac", "v_writelane")) or self.dpp:
                    self.r |= R(0)
                if op.startswith("v_cndmask") and len(ops) == 3:
                    self.r |= {("s", "vcc")}
            self.sreads_valu = {x for x in self.r if x[0] == "s"}
        elif op.startswith("ds_"):
            self.kind = "ds"; self.lgkm = "ds"
            if op.startswith(("ds_read", "ds_bpermute", "ds_swizzle", "ds_permute")) or "_rtn" in op:
                self.w = R(0); self.r = allr(1)
            else:
                self.r = allr(0)
        elif op.startswith(("buffer_", "global_")):
            self.kind = "vmem"; self.vm = True
            if op in ("buffer_wbl2", "buffer_inv"):
                pass
            elif "load" in op:
                if " lds" in (" " + self.mods) or "load_lds" in op:
                    self.lds_dma = True; self.r = allr(0) | {("s", "m0")}
                else:
                    self.w = R(0); self.r = allr(1)
            elif "atomic" in op:
                if "sc0" in self.mods:
                    self.w = R(0); self.r = allr(0) if op.startswith("buffer") else allr(1)
                else:
                    self.r = allr(0)
            else:
                self.r = allr(0)
                if op.endswith(("x3", "x4")):
                    self.wide_store = R(0) if op.startswith("buffer") else R(1)
        elif op.startswith(("s_load", "s_buffer_load", "s_memtime", "s_memrealtime", "s_atomic")):
            self.kind = "smem"; self.lgkm = "smem"; self.w = R(0); self.r = allr(1)
        elif op == "s_nop":
            self.kind = "nop"; self.states = int(ops[0], 0) + 1
        elif op == "s_waitcnt":
            self.kind = "wait"; self.mods = rest
        elif op in ("s_branch",) or op.startswith("s_cbranch"):
            self.kind = "branch"; self.target = ops[0]; self.cond = op != "s_branch"
        elif op in ("s_endpgm", "s_setpc_b64"):
            self.kind = "end"
        elif op.startswith("s_"):
            self.kind = "salu"
            if op.startswith(("s_cmp", "s_barrier", "s_sleep", "s_setprio", "s_bitcmp")):
                self.r = allr(0)
            else:
                self.w = R(0); self.r = allr(1)
                if "saveexec" in op:
                    self.w |= {("s", "exec")}
        else:
            raise ValueError("unknown instr: " + text)

def need_states(p, c):
    n = 0
    pv = p.kind in ("valu", "perm", "readlane")
    cv = c.kind in ("valu", "perm", "readlane")
    if pv:
        wv = {x for x in p.w if x[0] == "v"}
        ws = {x for x in p.w if x[0] == "s"}
        if wv:
            if c.kind == "mfma" and wv & c.r: n = max(n, 2)
            if cv and c.dpp and wv & c.r: n = max(n, 2)
            if c.kind == "perm" and wv & c.r: n = max(n, 2)
            if c.kind == "readlane" and wv & c.r: n = max(n, 1)
            if p.op.split("_e")[0] in TRANS and cv and c.op.split("_e")[0] not in TRANS and wv & c.r: n = max(n, 1)
            if ("op_sel" in p.mods or "sdwa" in p.op) and not p.op.startswith("v_pk_") and cv and wv & (c.r | c.w): n = max(n, 1)
        if ws:
            if cv and ws & c.sreads_valu: n = max(n, 4 if c.kind == "readlane" else 2)
            if c.kind == "vmem" and ws & c.r: n = max(n, 5)
            if c.kind == "salu" and ws & c.r: n = max(n, 1)
    if p.kind == "mfma":
        big = p.passes == 8
        if c.kind == "mfma":
            if p.w & c.srcAB: n = max(n, 12 if big else 8)
            if p.w & c.srcC:
                if not (p.w == c.srcC and p.passes == c.passes): n = max(n, 10 if big else 6)
            elif p.w & c.w: n = max(n, 10 if big else 6)
        elif cv or c.kind in ("vmem", "ds"):
            if p.w & (c.r | c.w): n = max(n, 12 if big else 8)
            if cv and p.srcC & c.w: n = max(n, 7 if big else 3)
    if p.wide_store and p.wide_store & c.w and c.kind != "label":
        n = max(n, 2 if cv else 1)
    if p.kind == "salu" and ("s", "m0") in p.w and c.lds_dma: n = max(n, 1)
    return n

class Asm:
    def __init__(self):
        self.ins = []
        self.nlab = 0
    def __call__(self, text):
        for line in text.split("\n"):
            s = line.strip()
            if s:
                self.ins.append(Ins(s))
    def label(self, name):
        self.ins.append(Ins(name + ":"))
    def newlab(self, base="L"):
        self.nlab += 1
        return f"{base}_{self.nlab}"
    def _preds(self):
        labpos = {x.label: i for i, x in enumerate(self.ins) if x.label}
        jumps = {}
        for i, x in enumerate(self.ins):
            if x.kind == "branch":
                jumps.setdefault(labpos[x.target], []).append(i)
        return labpos, jumps
    def fix_hazards(self, verbose=False, timed=True):
        total = 0
        def elapsed(seq):
            t = 0; pipe = 0; vfree = 0
            for k, x in enumerate(seq):
                if k:
                    if x.kind == "mfma": t = max(t, pipe, vfree)
                    elif x.kind in ("valu", "perm", "readlane"): t = max(t, vfree)
                if k == len(seq) - 1: break
                if x.kind == "mfma":
                    pipe = t + 4 * x.passes
                    vfree = t + (12 if x.op.startswith("v_smfmac") else 8)
                    t += 4
                elif x.kind == "nop": t += 4 * x.states
                else:
                    if x.op.split("_e")[0] in TRANS: vfree = t + 8
                    t += 4
            return t // 4 - 1
        while True:
            labpos, jumps = self._preds()
            ins = self.ins
            out = []; changed = False
            inserts = {}
            for i, c in enumerate(ins):
                if c.kind in ("none", "label", "nop", "wait", "branch", "end"):
                    continue
                best = 0
                stack = [(i - 1, (c,))]
                seen = set()
                while stack:
                    j, seq = stack.pop()
                    while j >= 0 and len(seq) < 15:
                        if (j, len(seq)) in seen: break
                        seen.add((j, len(seq)))
                        p = ins[j]
                        if p.kind == "label":
                            for b in jumps.get(j, []):
                                stack.append((b, seq))
                            k = j - 1
                            while k >= 0 and ins[k].kind == "none": k -= 1
                            if k >= 0 and (ins[k].kind == "end" or (ins[k].kind == "branch" and not ins[k].cond)):
                                break
                            j -= 1
                            continue
                        if p.kind == "none":
                            j -= 1; continue
                        n = need_states(p, c)
                        if n:
                            full = (p,) + seq
                            if timed and p.kind == "mfma":
                                add = 0
                                while elapsed(full[:-1] + ((Ins(f"s_nop {add-1}"),) if add else ()) + full[-1:]) < n: add += 1
                            else:
                                add = n - sum(x.states for x in seq[:-1])
                            best = max(best, add)
                        seq = (p,) + seq
                        if j in inserts: seq = (Ins(f"s_nop {inserts[j]-1}"),) + seq
                        if sum(x.states for x in seq[:-1]) >= 13: break
                        j -= 1
                if best > 0:
                    inserts[i] = best
            if not inserts:
                break
            for i, x in enumerate(ins):
                if i in inserts:
                    out.append(Ins(f"s_nop {inserts[i]-1}"))
                    total += inserts[i]
                    if verbose: print("nop", inserts[i], "before", x.text)
                out.append(x)
            self.ins = out
        return total
    def check_waits(self, cap=6):
        labpos, jumps = self._preds()
        ins = self.ins
        errs = set()
        seen = {}
        work = [(0, (), ())]
        while work:
            i, vm, lg = work.pop()
            vm = list(vm); lg = list(lg)
            while i < len(ins):
                x = ins[i]
                if x.kind == "label":
                    key = (tuple(vm), tuple(lg))
                    s = seen.setdefault(i, set())
                    if key in s or len(s) >= cap: break
                    s.add(key)
                elif x.kind == "wait":
                    m = re.search(r"vmcnt\((\d+)\)", x.mods)
                    if m:
                        n = int(m.group(1))
                        if len(vm) > n: vm = vm[len(vm) - n:] if n else []
                    m = re.search(r"lgkmcnt\((\d+)\)", x.mods)
                    if m:
                        n = int(m.group(1))
                        if n == 0: lg = []
                        else:
                            nds = sum(1 for k, _ in lg if k == "ds")
                            drop = max(0, nds - n); keep = []
                            for k, w in lg:
                                if k == "ds" and drop: drop -= 1
                                else: keep.append((k, w))
                            lg = keep
                elif x.kind == "end":
                    break
                elif x.kind != "none":
                    touch = x.r | x.w
                    if x.op in ("s_memtime", "s_memrealtime") or (x.kind == "mfma" and "nochk" in x.text): touch = set()
                    if "sameval" in x.text:
                        vm = [w - x.w for w in vm]
                    for w in vm:
                        if w & touch and not (x.vm and not (w & x.r)):
                            errs.add((i, "vm", x.text))
                    for k, w in lg:
                        if w & touch and not (x.lgkm == "ds" and k == "ds" and not (w & x.r)):
                            errs.add((i, "lgkm", x.text))
                    if x.vm:
                        vm.append(frozenset() if "nochk" in x.text else frozenset(x.w))
                        if len(vm) > 63: vm = vm[-63:]
                    if x.lgkm:
                        lg.append((x.lgkm, frozenset(x.w)))
                        if len(lg) > 40: lg = lg[-40:]
                    if x.kind == "branch":
                        work.append((labpos[x.target], tuple(vm), tuple(lg)))
                        if not x.cond: break
                i += 1
        return sorted(errs)
    def text(self):
        out = []
        for x in self.ins:
            out.append(x.text if (x.label or x.text.startswith(".")) else " " + x.text)
        return "\n".join(out) + "\n"

import subprocess, tempfile, os
_E64_OK = ("v_mov_b32", "v_add_f32", "v_mul_f32", "v_max_f32", "v_min_u32", "v_max_u32", "v_and_b32", "v_or_b32", "v_xor_b32",
           "v_exp_f32", "v_rcp_f32", "v_sqrt_f32", "v_add_u32", "v_sub_u32", "v_subrev_u32", "v_lshlrev_b32", "v_lshrrev_b32",
           "v_mov_b64", "v_sub_f32", "v_cndmask_b32", "v_cmp_eq_u32", "v_cmp_ne_u32", "v_cmp_nlt_f32")

def sizes_of(ins):
    txt = '.amdgcn_target "amdgcn-amd-amdhsa--gfx950"\n.text\n'
    real = []
    for i, x in enumerate(ins):
        if x.kind == "label": txt += x.text + "\n"
        elif x.kind == "none": continue
        else:
            txt += f"Z{i}:\n {x.text}\n"; real.append(i)
    txt += "Zend:\n"
    d = tempfile.mkdtemp()
    open(d + "/a.s", "w").write(txt)
    subprocess.run(["clang", "-x", "assembler", "-target", "amdgcn-amd-amdhsa", "-mcpu=gfx950", "-c", d + "/a.s", "-o", d + "/a.o"], check=True)
    out = subprocess.run(["llvm-objdump", "-t", d + "/a.o"], capture_output=True, text=True).stdout
    addr = {}
    for line in out.splitlines():
        p = line.split()
        if len(p) >= 4 and p[-1].startswith("Z"): addr[p[-1][1:]] = int(p[0], 16)
    sz = {}
    for k, i in enumerate(real):
        nxt = addr[str(real[k + 1])] if k + 1 < len(real) else addr["end"]
        sz[i] = nxt - addr[str(i)]
    return sz

def align8(asm, minrun=2, padrun=6):
    ins = asm.ins
    sz = sizes_of(ins)
    out = []; par = 0; last4 = None; fixed = padded = 0
    i = 0; n = len(ins)
    while i < n:
        x = ins[i]
        if x.kind == "none":
            if x.text.startswith(".p2align"): par = 0; last4 = None
            out.append(x); i += 1; continue
        if x.kind == "label":
            out.append(x); i += 1; continue
        s = sz[i]
        if s % 8 == 0 and par:
            j = i; cnt = 0
            while j < n and (ins[j].kind in ("none", "label") or sz[j] % 8 == 0):
                if ins[j].kind in ("valu", "perm"): cnt += 1
                j += 1
            if cnt >= minrun:
                done = False
                if last4 is not None:
                    y = out[last4]
                    if y.op in _E64_OK and not y.dpp and "0x" not in y.text and not re.search(r", \d{3,},", y.text):
                        out[last4] = Ins(y.text.replace(y.op, y.op + "_e64", 1)); done = True
                    elif y.op == "s_nop":
                        k = y.states - 1
                        if k == 0: out[last4] = Ins("v_nop_e64")
                        else: out[last4] = Ins(f"s_nop {k-1}"); out.insert(last4 + 1, Ins("s_nop 0"))
                        done = True
                if done: fixed += 1; par = 0; last4 = None
                elif cnt >= padrun:
                    out.append(Ins("s_nop 0")); padded += 1; par = 0; last4 = None
        out.append(x)
        if s % 8 == 4:
            par ^= 1; last4 = len(out) - 1
        i += 1
    asm.ins = out
    return fixed, padded
```

```python
from gen_common import *

def chain(a, local, cfg):
    st = "" if local else " sc1"
    tag = "L" if local else "G"
    stamp = Stamps(a, cfg.get("stamp") == "chain" and local, only=cfg.get("only"))
    vL16, vIdx, vLdsW, vSwx, vSwm, vSrx, vSrm, vOw, vOr, vX1s, vX1l, vX2s = range(1, 13)
    vR, vOnes, vT = 13, 14, 15
    vAw = 0
    sKVb, sKT, sLim, sKVc, sLate = 93, 95, 63, 66, 67
    SelT, VACC, SelM = 16, 20, 28
    q0, k0, q1, k1 = 32, 36, 40, 44
    Kx, Vx, RING, A, WO = 48, 56, 64, 96, 128
    WK, WV = 256, 384
    sStep, sTag, sX2st, sX2re, sMemOff, sKV, sX1a, sX1b, sC = 55, 56, 57, 58, 59, 60, 61, 62, 96
    sMaskHi = 64
    sLds, sRot = 66, 67
    sX2l = 92
    AST, KVL, SX, SM, SJ, OA, CST = 0x20000, 0x22000, 0x27000, 0x27800, 0x27f00, 0x26000, 0x27a00
    sKVL = 94
    lane = 0
    if cfg.get("chain_prologue_done") is None:
        cfg["chain_prologue_done"] = True
        a.label("L_chain")
        a(f"v_and_b32 v0, 63, v0")
        a(f"v_lshlrev_b32 v{vL16}, 4, v0")
        a(f"s_lshl_b32 s{sLds}, s{sWAVE}, 15")
        a(f"s_lshl_b32 s{sRot}, s{sWAVE}, 1")
        vD, vTR, vDo, vTRo = 32, 33, 34, 35
        sL2, sL3 = 70, 71
        vD1, vTR1, sLq = 38, 39, 72
        coop_addrs(a, vD, vD1, vTR, vTR1, vT)
        a(f"s_lshl_b32 s{sLq}, s{sWAVE}, 12")
        a(f"v_lshrrev_b32 v{vDo}, 3, v0")
        a(f"v_lshlrev_b32 v{vDo}, 10, v{vDo}")
        a(f"v_and_b32 v{vT}, 7, v0")
        a(f"v_lshl_add_u32 v{vDo}, v{vT}, 4, v{vDo}")
        a(f"v_bfe_u32 v{vT}, v0, 4, 1")
        a(f"v_lshlrev_b32 v{vTRo}, 11, v{vT}")
        a(f"v_bfe_u32 v{vT}, v0, 5, 1")
        a(f"v_lshl_add_u32 v{vTRo}, v{vT}, 9, v{vTRo}")
        a(f"v_bfe_u32 v{vT}, v0, 2, 1")
        a(f"v_lshl_add_u32 v{vTRo}, v{vT}, 7, v{vTRo}")
        a(f"v_bfe_u32 v{vT}, v0, 3, 1")
        a(f"v_lshl_add_u32 v{vTRo}, v{vT}, 5, v{vTRo}")
        a(f"v_and_b32 v{vT}, 3, v0")
        a(f"v_lshl_add_u32 v{vTRo}, v{vT}, 3, v{vTRo}")
        a(f"v_add_u32 v{vTRo}, s{sLq}, v{vTRo}")
        a(f"s_add_u32 s{sT0}, s{sLds}, s{sLq}")
        a(f"v_add_u32 v{vLdsW}, s{sT0}, v{vL16}")
        a(f"s_lshl_b32 s{sL2}, s{sMEMB}, 8")
        a(f"s_lshl_b32 s{sT1}, s{sWAVE}, 15")
        a(f"s_add_u32 s{sL2}, s{sL2}, s{sT1}")
        a(f"s_lshl_b32 s{sL3}, s{sMEMB}, 17")
        a(f"s_lshl_b32 s{sT1}, s{sWAVE}, 8")
        a(f"s_add_u32 s{sL3}, s{sL3}, s{sT1}")
        late_start(a, cfg)
        stages = []
        for ptr, base in ((sWK, WK), (sWV, WV)):
            for J in range(8):
                def consume(slot, J=J, base=base):
                    end = a.newlab("L_cw")
                    for w in range(4):
                        nxt = a.newlab("L_cw")
                        if w < 3:
                            a(f"s_cmp_lg_u32 s{sWAVE}, {w}")
                            a(f"s_cbranch_scc1 {nxt}")
                        jj = J ^ (2 * w)
                        coop_reads(a, slot, vTR, vTR1, 40, base + jj * 16, base + jj * 16 + 8)
                        if w < 3:
                            a(f"s_branch {end}")
                            a.label(nxt)
                    a.label(end)
                stages.append(dict(issue=lambda slot, ptr=ptr, J=J: coop_issue(a, ptr, J, slot, sL2, vD, vD1, sLq), consume=consume))
        for wp in range(4):
            for ap in range(2):
                def issue(slot, wp=wp, ap=ap):
                    if wp == 0 and ap == 0: set_srd(a, sWT, sWO, 0x400000)
                    a(f"s_add_u32 m0, s{sLq}, {slot*16384}")
                    a(f"s_xor_b32 s{sT0}, s{sWAVE}, {wp}")
                    a(f"s_lshl_b32 s{sT0}, s{sT0}, 15")
                    a(f"s_add_u32 s{sT0}, s{sT0}, s{sL3}")
                    if ap: a(f"s_add_u32 s{sT0}, s{sT0}, {ap*128}")
                    for q in range(4):
                        if q: a(f"s_add_u32 s{sT0}, s{sT0}, {8192-1024}")
                        a(f"buffer_load_dwordx4 v{vDo}, s[{sWT}:{sWT+3}], s{sT0} offen offset:{q*1024}{' nt' if '14c' in cfg.get('ntw', ()) else ''} lds")
                def consume(slot, wp=wp, ap=ap):
                    va = vTRo
                    if slot >= 4:
                        a(f"v_add_u32 v40, 0x10000, v{vTRo}"); va = 40
                    for a1 in range(2):
                        dst = WO + ((2 * ap + a1) * 4 + wp) * 8
                        for e4 in range(4):
                            off = (slot & 3) * 16384 + (8 * (e4 >> 1) + 2 * (e4 & 1)) * 128 + a1 * 64
                            a(f"ds_read_b64_tr_b16 {vr(dst+2*e4,2)}, v{va} offset:{off}")
                stages.append(dict(issue=issue, consume=consume))
        for J in range(8):
            tmp = RING + 16 * (J & 1)
            def post(slot, tmp=tmp):
                a(f"s_add_u32 s{sT0}, s{sLq}, {slot*16384}")
                a(f"v_add_u32 v40, s{sT0}, v{vL16}")
                for i in range(4):
                    a(f"ds_write_b128 v40, {vr(tmp+4*i,4)} offset:{i*1024}")
            stages.append(dict(issue=lambda slot, J=J: coop_issue(a, sWQ, J, slot, sL2, vD, vD1, sLq),
                               consume=lambda slot, tmp=tmp: coop_reads(a, slot, vTR, vTR1, 40, tmp, tmp + 8), post=post))
        def setup_rest():
            sel_consts(a, lane, 96, selM=SelM, selLo=112, selHi=116, selT=SelT)
            smf_index(a, lane, vIdx, 96)
            n_, g_, q_ = 96, 97, 98
            a(f"v_and_b32 v{n_}, 15, v0")
            a(f"v_lshrrev_b32 v{g_}, 4, v0")
            a(f"v_and_b32 v{q_}, 7, v0")
            a(f"s_mov_b32 s{sMaskHi}, 0xff00ff00")
            a(f"s_mov_b32 s{sMaskHi+1}, 0xff00ff00")
            a(f"v_lshlrev_b32 v99, 3, v{q_}")
            a(f"v_and_b32 v{vT}, 1, v{g_}")
            a(f"v_lshl_add_u32 v99, v{vT}, 6, v99")
            a(f"v_add_u32 v99, {SJ}, v99")
            a(f"v_lshrrev_b32 v{vT}, 1, v{g_}")
            a(f"v_lshlrev_b32 v{vSwx}, 8, v{vT}")
            a(f"v_lshl_add_u32 v{vSwx}, v{q_}, 4, v{vSwx}")
            a(f"v_and_b32 v{vT}, 1, v{g_}")
            a(f"v_lshl_add_u32 v{vSwx}, v{vT}, 3, v{vSwx}")
            a(f"s_lshl_b32 s{sT0}, s{sWAVE}, 9")
            a(f"s_add_u32 s{sT1}, s{sT0}, {SX}")
            a(f"v_add_u32 v{vSwx}, s{sT1}, v{vSwx}")
            a(f"v_cndmask_b32 v{vSwx}, v{vSwx}, v99, s[{sMaskHi}:{sMaskHi+1}]")
            a(f"v_lshlrev_b32 v{vSwm}, 4, v{q_}")
            a(f"v_lshl_add_u32 v{vSwm}, v{vT}, 3, v{vSwm}")
            a(f"s_lshl_b32 s{sT1}, s{sWAVE}, 7")
            a(f"s_add_u32 s{sT1}, s{sT1}, {SM}")
            a(f"v_add_u32 v{vSwm}, s{sT1}, v{vSwm}")
            a(f"s_mov_b32 s98, 0")
            a(f"s_mov_b32 s99, 0x00ff00ff")
            a(f"v_cndmask_b32 v{vSwm}, v99, v{vSwm}, s[98:99]")
            a(f"v_lshlrev_b32 v{vSrx}, 9, v{g_}")
            a(f"v_lshl_add_u32 v{vSrx}, v{n_}, 4, v{vSrx}")
            a(f"v_add_u32 v{vSrx}, {SX}, v{vSrx}")
            a(f"v_lshlrev_b32 v{vSrm}, 7, v{g_}")
            a(f"v_lshl_add_u32 v{vSrm}, v{q_}, 4, v{vSrm}")
            a(f"v_add_u32 v{vSrm}, {SM}, v{vSrm}")
            a(f"s_lshl_b32 s{sT1}, s{sWAVE}, 9")
            a(f"s_add_u32 s{sT1}, s{sT1}, {OA-SM}")
            a(f"v_bfe_u32 v{vT}, v0, 3, 1")
            a(f"v_lshl_add_u32 v{vOw}, v{vT}, 3, v{vSrm}")
            a(f"v_add_u32 v{vOw}, s{sT1}, v{vOw}")
            a(f"v_and_b32 v{vOr}, 0xf0, v{vL16}")
            a(f"v_add_u32 v{vOr}, {CST}, v{vOr}")
            a(f"v_lshrrev_b32 v{vT}, 2, v{n_}")
            a(f"v_lshl_add_u32 v{vT}, v{vT}, 2, v{g_}")
            a(f"v_lshlrev_b32 v{vX1s}, 11, v{vT}")
            a(f"v_and_b32 v{vT}, 3, v0")
            a(f"v_lshl_add_u32 v{vX1s}, v{vT}, 4, v{vX1s}")
            a(f"s_lshl_b32 s{sT0}, s{sWAVE}, 16")
            a(f"s_lshl_b32 s{sT1}, s{sMEMB}, 6")
            a(f"s_add_u32 s{sT0}, s{sT0}, s{sT1}")
            a(f"v_add_u32 v{vX1s}, s{sT0}, v{vX1s}")
            a(f"s_lshl_b32 s{sT2}, s{sMEMB}, 2")
            a(f"s_add_u32 s{sT2}, s{sT2}, s{sWAVE}")
            a(f"s_lshl_b32 s{sT0}, s{sT2}, 11")
            a(f"v_add_u32 v{vX1l}, s{sT0}, v{vL16}")
            a(f"v_lshlrev_b32 v{vX2s}, 4, v{g_}")
            a(f"v_lshl_add_u32 v{vX2s}, v{n_}, 2, v{vX2s}")
            a(f"s_lshl_b32 s{sT0}, s{sT2}, 6")
            a(f"v_add_u32 v{vX2s}, s{sT0}, v{vX2s}")
            a(f"v_mov_b32 v{vT}, {OOB:#x}")
            a(f"v_cmp_gt_u32 vcc, 4, v{n_}")
            a(f"v_cndmask_b32 v{vX2s}, v{vT}, v{vX2s}, vcc")
            a(f"v_and_b32 v100, 3, v0")
            a(f"v_lshlrev_b32 v100, 1, v100")
            a(f"v_lshl_add_u32 v100, v{g_}, 10, v100")
            a(f"v_and_b32 v104, 3, v0")
            a(f"v_bfe_u32 v105, v0, 2, 2")
            a(f"v_lshl_add_u32 v104, v104, 2, v105")
            a(f"v_and_b32 v105, 1, v104")
            a(f"v_lshlrev_b32 v105, 4, v105")
            a(f"v_mov_b32 v106, 0x3f80")
            a(f"v_lshlrev_b32 v105, v105, v106")
            a(f"v_lshrrev_b32 v104, 1, v104")
            for e in range(4):
                a(f"v_cmp_eq_u32 vcc, {e}, v104")
                a(f"v_cndmask_b32 v{108+e}, 0, v105, vcc")
            a(f"v_and_b32 v104, 0xf0, v{vL16}")
            a(f"v_add_u32 v104, {CST}, v104")
            a(f"ds_write_b128 v104, v[108:111]")
            a(f"ds_write_b128 v104, v[112:115] offset:256")
            a(f"ds_write_b128 v104, v[116:119] offset:512")
            for e in range(4): a(f"v_mov_b32 v{120+e}, 0x3f803f80")
            for e in range(4): a(f"v_mov_b32 v{124+e}, 0x3f003f00")
            a(f"ds_write_b128 v104, v[120:123] offset:768")
            a(f"ds_write_b128 v104, v[124:127] offset:1024")
            a(f"s_and_b32 s{sT0}, s{sT2}, 1")
            a(f"s_lshl_b32 s{sT0}, s{sT0}, 12")
            a(f"s_lshr_b32 s{sT1}, s{sT2}, 4")
            a(f"s_lshl_b32 s{sT1}, s{sT1}, 7")
            a(f"s_add_u32 s{sT0}, s{sT0}, s{sT1}")
            a(f"s_bfe_u32 s{sT1}, s{sT2}, 0x10001")
            a(f"s_lshl_b32 s{sT1}, s{sT1}, 5")
            a(f"s_add_u32 s{sT0}, s{sT0}, s{sT1}")
            a(f"s_bfe_u32 s{sT1}, s{sT2}, 0x20002")
            a(f"s_lshl_b32 s{sT1}, s{sT1}, 3")
            a(f"s_add_u32 s{sT0}, s{sT0}, s{sT1}")
            set_srd(a, sIN, sMEM0, 8192)
            a(f"buffer_load_ushort v36, v100, s[{sIN}:{sIN+3}], s{sT0} offen")
            a(f"buffer_load_ushort v37, v100, s[{sIN}:{sIN+3}], s{sT0} offen offset:64")
            a(f"s_mov_b32 s{sStep}, 0")
            a(f"s_mov_b32 s{sTag}, 0")
            a(f"s_lshl_b32 s{sT0}, s{sLAY}, 14")
            a(f"s_add_u32 s{sX2st}, s{sT0}, {OFF_X2:#x}")
            a(f"s_add_u32 s{sX2re}, s{sX2st}, 8192")
            a(f"s_lshl_b32 s{sT0}, s{sWAVE}, 11")
            a(f"s_add_u32 s{sX2l}, s{sT0}, s{sX2st}")
            a(f"s_add_u32 s{sT0}, s{sT0}, {AST}")
            a(f"v_add_u32 v{vAw}, s{sT0}, v{vL16}")
            a(f"s_lshl_b32 s{sT0}, s{sLAY}, 19")
            a(f"s_add_u32 s{sMemOff}, s{sT0}, {OFF_MEM:#x}")
            a(f"s_lshl_b32 s{sT0}, s{sLAY}, 18")
            a(f"s_add_u32 s{sX1a}, s{sT0}, {OFF_X1:#x}")
            a(f"s_add_u32 s{sX1b}, s{sX1a}, 32768")
            a(f"s_lshl_b32 s{sT0}, s{sLAY}, 21")
            a(f"s_lshl_b32 s{sT1}, s{sT2}, 12")
            a(f"s_add_u32 s{sT0}, s{sT0}, s{sT1}")
            a(f"s_add_u32 s{sKVb}, s{sT0}, {OFF_KVR:#x}")
            a(f"s_mov_b32 s{sKV}, s{sKVb}")
            a(f"s_mov_b32 s{sC}, {fbits(128**-0.5*1.4426950408889634):#x}")
            a(f"s_mov_b32 s{sC+1}, s{sC}")
            a(f"s_mov_b32 s{sLim}, {fbits(cfg.get('lim', 48.0) / (128**-0.5*1.4426950408889634)):#x}")
        load_stages(a, stages, meanwhile=setup_rest,
                    hooks=None if cfg.get("noinit") else {25: lambda: go_load(a), cfg.get("chain_sig", 99): lambda: late_signal(a, cfg)})
        trace(a, cfg, 6, None, vT)
        if not cfg.get("noinit"): wait_init(a, sampled=True, barrier=False)
        a(f"v_lshl_or_b32 v{vR}, v37, 16, v36")
        a(f"v_min_u32 v{vR}, -2, v{vR}")
        for i in range(8):
            a(f"ds_read_b128 {vr(RING+4*i,4)}, v{vLdsW} offset:{(i>>2)*16384+(i&3)*1024}")
        a(f"v_mov_b32 v{vOnes}, -1")
        for f in range(4): a(f"v_mov_b32 v{Kx+4*f}, -1")
        if cfg.get("nokvcheck"):
            for f in range(16): a(f"v_mov_b32 v{Kx+f}, 0")
        a(f"s_lshl_b32 s{sKVL}, s{sWAVE}, 12")
        a(f"s_add_u32 s{sKVL}, s{sKVL}, {KVL}")
        a(f"s_mov_b32 m0, s{sKVL}")
        a("s_waitcnt vmcnt(0) lgkmcnt(0)")
        if cfg.get("count_redo"):
            a("s_memrealtime s[70:71]")
            a("s_memtime s[98:99]")
            a("s_waitcnt lgkmcnt(0)")
            a("s_sub_u32 s101, s70, s100")
            a("s_mov_b32 s100, s70")
        if cfg.get("force_global"):
            a("s_branch L_chain_entryG")
        else:
            a(f"s_cmp_eq_u32 s{sLOCAL}, 0")
            a("s_cbranch_scc1 L_chain_entryG")
    W = f"s[{sWS}:{sWS+3}]"
    vC = vOr
    vq = [(t, jj) for jj in range(8) for t in range(2)]
    vacc = (VACC, VACC + 4)
    def smf(acc, x, w): a(f"v_smfmac_f32_16x16x64_bf16 {vr(acc,4)}, {vr(x,4)}, {xr(w,8)}, v{vIdx}")
    def fill_v(n):
        for _ in range(n):
            t, jj = vq.pop(0)
            smf(vacc[t], A + 4 * jj, WV + jj * 16 + t * 8)
    def pad(n):
        k = cfg.get("padkind", "nop")
        if k == "mov":
            for _ in range(n): a(f"v_mov_b32 v{vT}, 0")
        elif k == "nop":
            while n > 0:
                a(f"s_nop {min(n,16)-1}"); n -= 16
        elif k == "mfma":
            for i in range(n // 4): a(f"v_mfma_f32_16x16x32_bf16 v[108:111], {xr(WK+(i%16)*4,4)}, {xr(WV+(i%16)*4,4)}, 0 ; nochk")
    cvt = lambda d, s: a(f"v_cvt_pk_bf16_f32 v{d}, v{s}, v{s+1}")
    mfma = lambda d, x, y, c: a(f"v_mfma_f32_16x16x32_bf16 {vr(d,4)}, {vr(x,4)}, {vr(y,4)}, {vr(c,4) if c is not None else 0}")
    mfma16 = lambda d, x, y, c: a(f"v_mfma_f32_16x16x16_bf16 {vr(d,4)}, {vr(x,2)}, {vr(y,2)}, {vr(c,4) if c is not None else 0}")
    def kv_check():
        a(f"v_bitop3_b32 v{vT}, v{Kx}, v{Kx+4}, s{sKT} bitop3:0x7e")
        a(f"v_bitop3_b32 v{VACC}, v{Kx+8}, v{Kx+12}, s{sKT} bitop3:0x7e")
        a(f"v_or_b32 v{vT}, v{vT}, v{VACC}")
        a(f"v_and_b32 v{vT}, 1, v{vT}")
        a(f"v_cmp_ne_u32 vcc, 0, v{vT}")
    def x2_issue(r):
        a(f"buffer_load_dwordx4 {vr(r,4)}, v{vL16}, {W}, s{sX2l} offen sc1")
        a(f"buffer_load_dwordx4 {vr(r+4,4)}, v{vL16}, {W}, s{sX2l} offen offset:1024 sc1")
    def x2_check(r, n):
        a(f"s_waitcnt vmcnt({n+1})")
        smf(k0, r, WK)
        a(f"v_max3_u32 v{vT}, v{r}, v{r+1}, v{r+2}")
        smf(k1, r, WK + 8)
        a(f"s_waitcnt vmcnt({n})")
        a(f"v_max3_u32 v{vT}, v{vT}, v{r+3}, v{r+4}")
        a(f"ds_write_b128 v{vAw}, {vr(r,4)}")
        a(f"v_max3_u32 v{vT}, v{vT}, v{r+5}, v{r+6}")
        a(f"v_max_u32 v{vT}, v{vT}, v{r+7}")
        a(f"v_cmp_eq_u32 vcc, -1, v{vT}")
        smf(k0, r + 4, WK + 16)
        a(f"ds_write_b128 v{vAw}, {vr(r+4,4)} offset:1024")
        smf(k1, r + 4, WK + 24)
    def zero_k():
        for r in (k0, k0 + 2, k1, k1 + 2): a(f"v_mov_b64 {vr(r,2)}, 0")
    a.label(f"L_chain_entry{tag}")
    a(f"buffer_store_dword v{vR}, v{vX2s}, {W}, s{sX2st} offen{st}")
    a(".p2align 6")
    a.label(f"L_chain_loop{tag}")
    stamp("top")
    trace(a, cfg, 0, sStep, vT)
    a(f"s_cmp_eq_u32 s{sStep}, 63")
    a(f"s_cbranch_scc1 L_chain_last{tag}")
    a(f"s_bfe_u32 s{sKT}, s{sStep}, 0x10002")
    a("s_waitcnt lgkmcnt(0)")
    kv_check()
    for i in range(8):
        a(f"v_mov_b64 {vr(q0+2*i,2)}, 0")
    lateok = cfg.get("latekv", False) and not cfg.get("nokvcheck")
    if lateok:
        a(f"s_mov_b32 s{sKVc}, s{sKV}")
        a(f"s_cmp_lg_u64 vcc, 0")
        a(f"s_cselect_b32 s{sLate}, 1, 0")
    elif not cfg.get("nokvcheck"): a(f"s_cbranch_vccnz L_chain_kvwait{tag}")
    a.label(f"L_chain_kvok{tag}")
    trace(a, cfg, 1, sStep, vT)
    trace(a, cfg, 5, sStep, vT)
    spin_init(a)
    pad(cfg.get("d2", 30))
    stamp("x2iss")
    x2_issue(A)
    for i in range(4):
        a(f"v_mov_b64 {vr(VACC+2*i,2)}, 0")
    a(f"s_add_u32 s{sKV}, s{sStep}, 1")
    a(f"s_and_b32 s{sKV}, s{sKV}, 3")
    a(f"s_lshl_b32 s{sKV}, s{sKV}, 19")
    a(f"s_add_u32 s{sKV}, s{sKV}, s{sKVb}")
    if cfg.get("ack2"): a("s_waitcnt vmcnt(2)")
    if cfg.get("one2"):
        x2_check(A, 0)
    else:
        pad(cfg.get("g2", 30))
        x2_issue(A + 8)
        x2_check(A, 2)
    if not cfg.get("nowait2"): a(f"s_cbranch_vccnz L_chain_x2b{tag}")
    a.label(f"L_chain_x2ok{tag}")
    if cfg.get("count_redo"): a(f"s_add_u32 s31, s31, s{sSPIN}")
    stamp("A0")
    kvl = [f"buffer_load_dwordx4 v{vL16}, {W}, s{sKV} offen offset:{f*1024} sc1 lds" for f in range(4)]
    SLo, SHi = RING, RING + 4
    plan = list(cfg.get("plan", ["r:pre", "m:b1", "k3", "k5", "k7", "h6w"]))
    after_r = []
    def at(pos):
        for x in list(plan):
            if x == pos: a(kvl.pop(0)); plan.remove(x)
            elif x == "m:" + pos: a(memst); plan.remove(x)
            elif x == "r:" + pos: a(rearm); plan.remove(x); after_r.append(len(plan))
    def ring_rd(jj):
        s0 = RING + ((2 * jj) % 4) * 8
        return [f"ds_read_b128 {vr(s0+4*i,4)}, v{vW2} offset:{(jj&1)*16384+i*1024}" for i in range(4)]
    vW2 = vT
    for jj in range(2):
        s0 = RING + 16 * jj; rd = ring_rd(jj)
        if jj == 0: a(f"v_xor_b32 v{vW2}, 0x8000, v{vLdsW}")
        smf(q0, A + 4 * jj, s0); a(rd[0]); a(rd[1])
        smf(q1, A + 4 * jj, s0 + 8); a(rd[2]); a(rd[3])
    memst = f"buffer_store_dword v{vR}, v{vX2s}, {W}, s{sMemOff} offen sc1"
    rearm = f"buffer_store_dword v{vOnes}, v{vX2s}, {W}, s{sX2re} offen{st}"
    rf = cfg.get("rearm_first", True)
    nb = len([x for x in plan if x.endswith("pre")])
    at("pre")
    stamp("k1done", True)
    a(f"s_waitcnt vmcnt({nb}) lgkmcnt(8)")
    a("s_barrier")
    stamp("bar1", True)
    for j2 in range(2, 8, 2):
        a(f"v_xor_b32 v{vT}, {j2*1024}, v{vAw}")
        a(f"ds_read_b128 {vr(A+4*j2,4)}, v{vT}")
        a(f"ds_read_b128 {vr(A+4*j2+4,4)}, v{vT} offset:1024")
        if j2 < 6: fill_v(1)
    at("b1")
    fill_v(2)
    lg = {2: 5, 3: 8, 4: 4, 5: 4}
    Ap0, Ap1, Dp0, Dp1, X = 72, 76, 80, 84, 88
    for jj in range(2, 6):
        if jj in (2, 4): a(f"v_xor_b32 v{vW2}, {(jj//2+1)*0x8000:#x}, v{vLdsW}")
        a(f"s_waitcnt lgkmcnt({lg[jj]})")
        stamp(f"k{jj}", True)
        s0 = RING + ((2 * jj) % 4) * 8; s1 = s0 + 8
        side = ring_rd(jj)
        for acc, wsrc, sd in ((q0, s0, side[0]), (k0, WK + jj * 16, side[1]), (q1, s1, side[2]), (k1, WK + jj * 16 + 8, side[3])):
            smf(acc, A + 4 * jj, wsrc)
            a(sd)
        at(f"k{jj}")
    A6, A7 = A + 24, A + 28
    smf(k0, A6, WK + 96); at("k6")
    smf(k0, A7, WK + 112); a("s_waitcnt lgkmcnt(6)")
    smf(q0, A6, RING); a("s_waitcnt lgkmcnt(2)")
    smf(q0, A7, RING + 16); at("k7")
    smf(q1, A6, RING + 8); a(f"ds_read_b128 {vr(SLo,4)}, v{vC} offset:256")
    a("s_waitcnt lgkmcnt(1)")
    smf(q1, A7, RING + 24); cvt(Ap0 + 2, k0)
    smf(k1, A6, WK + 104); cvt(Ap0 + 3, k0 + 2)
    smf(k1, A7, WK + 120)
    stamp("h3end")
    OF, WA = 96, 112
    cvt(Ap0, q0); cvt(Ap0 + 1, q0 + 2)
    cvt(Ap1, q1); cvt(Ap1 + 1, q1 + 2)
    mfma(Dp0, Ap0, SelT, None)
    a(f"ds_read_b128 {vr(SHi,4)}, v{vC} offset:512")
    cvt(Ap1 + 2, k1); cvt(Ap1 + 3, k1 + 2)
    at("h4")
    mfma(Dp1, Ap1, SelT, None)
    cvt(X, Dp0); cvt(X + 1, Dp0 + 2)
    cvt(X + 2, Dp1); cvt(X + 3, Dp1 + 2)
    Sx0, Sx1, Sm = 32, 36, 40
    mfma(Sx0, Kx, X, None)
    mfma(Sx1, Kx + 4, X, None)
    mfma(Sm, X, X, None)
    cvt(44, Sx0); cvt(45, Sx0 + 2); cvt(46, Sx1); cvt(47, Sx1 + 2)
    a(f"ds_write2_b64 v{vSwx}, v[44:45], v[46:47] offset0:0 offset1:16")
    cvt(92, Sm); cvt(93, Sm + 2)
    a(f"ds_write_b64 v{vSwm}, v[92:93]")
    stamp("swr")
    at("h6w")
    nomax = cfg.get("nomax", True)
    fl = cfg.get("fills", (5, 3, 2, 2) if nomax else (5, 3, 1, 3))
    fill_v(fl[0])
    a("s_waitcnt lgkmcnt(0)")
    stamp("swdone", True)
    a("s_barrier")
    stamp("bar2", True)
    a(f"ds_read_b128 v[72:75], v{vSrx}")
    a(f"ds_read_b128 v[80:83], v{vSrm}")
    a(f"ds_read_b128 v[76:79], v{vSrx} offset:256")
    ONES, HALF = 88, 92
    at("h6r")
    fill_v(fl[1])
    a("s_waitcnt lgkmcnt(1)")
    mfma(32, SLo, 72, None)
    mfma(36, SelM, 80, None)
    a("s_waitcnt lgkmcnt(0)")
    mfma(32, SHi, 76, 32)
    a(f"ds_read_b128 {vr(ONES,4)}, v{vC} offset:768")
    a(f"ds_read_b64 {vr(HALF,2)}, v{vC} offset:1024")
    fill_v(fl[2])
    stamp("sred")
    E = 72
    m, t = 46, 47
    Bx, Pm, vp, LS = 40, 44, 84, 80
    def true_max(fill=False):
        a(f"v_max3_f32 v{m}, v36, v37, v38")
        a(f"v_max3_f32 v{t}, v32, v33, v34")
        a(f"v_max3_f32 v{m}, v{m}, v39, v35")
        a(f"v_max_f32 v{m}, v{m}, v{t}")
        if fill: fill_v(1)
        a(f"v_max_f32_dpp v{m}, v{m}, v{m} row_ror:8 row_mask:0xf bank_mask:0xf")
        a(f"v_mov_b32 v{t}, v{m}")
        if fill: fill_v(1)
        a(f"v_permlane16_swap_b32 v{m}, v{t}")
        a(f"v_max_f32 v{m}, v{m}, v{t}")
        a(f"v_mov_b32 v{t}, v{m}")
        if fill: fill_v(1)
        a(f"v_permlane32_swap_b32 v{m}, v{t}")
        a(f"v_max_f32 v{m}, v{m}, v{t}")
        a(f"v_mul_f32 v{m}, s{sC}, v{m}")
        for i in range(8):
            a(f"v_fma_f32 v{E+i}, v{32+i}, s{sC}, -v{m}")
    def weights_to_o(first):
        for i in range(8):
            a(f"v_exp_f32 v{E+i}, v{E+i}")
            if first and nomax and i in (1, 5) and vq: fill_v(1)
        assert not vq
        cvt(Bx, E); cvt(Bx + 1, E + 2); cvt(Bx + 2, E); cvt(Bx + 3, E + 2)
        cvt(Pm, E + 4); cvt(Pm + 1, E + 6)
        a(f"v_mov_b32_dpp v{Bx+2}, v{Bx} row_ror:8 row_mask:0xf bank_mask:0x3")
        a(f"v_mov_b32_dpp v{Bx+3}, v{Bx+1} row_ror:8 row_mask:0xf bank_mask:0x3")
        a(f"v_mov_b32_dpp v{Bx}, v{Bx} row_ror:8 row_mask:0xf bank_mask:0xc")
        a(f"v_mov_b32_dpp v{Bx+1}, v{Bx+1} row_ror:8 row_mask:0xf bank_mask:0xc")
        if first: stamp("pready")
        side = []
        if first:
            side = [f"v_cvt_pk_bf16_f32 v{vp}, v{vacc[0]}, v{vacc[0]+1}", f"v_cvt_pk_bf16_f32 v{vp+1}, v{vacc[0]+2}, v{vacc[0]+3}",
                    f"v_cvt_pk_bf16_f32 v{vp+2}, v{vacc[1]}, v{vacc[1]+1}", f"v_cvt_pk_bf16_f32 v{vp+3}, v{vacc[1]+2}, v{vacc[1]+3}"]
            if nomax:
                side += [f"v_max3_f32 v{m}, abs(v32), abs(v33), abs(v34)", f"v_max3_f32 v{t}, abs(v35), abs(v36), abs(v37)",
                         f"v_max3_f32 v{m}, v{m}, abs(v38), abs(v39)", f"v_max_f32 v{m}, v{m}, v{t}", f"v_cmp_nlt_f32 vcc, v{m}, s{sLim}"]
            a("s_waitcnt lgkmcnt(0)")
        def two():
            for _ in range(2):
                if side: a(side.pop(0))
        mfma16(LS, HALF, Pm, None); two()
        mfma(72, Vx, Bx, None); two()
        mfma(LS, ONES, Bx, LS); two()
        mfma(76, Vx + 4, Bx, None); two()
        mfma16(72, vp, Pm, 72); two()
        mfma16(76, vp + 2, Pm, 76)
        a(f"v_rcp_f32 v{LS}, v{LS}")
    if nomax:
        for i in (4, 5, 6, 7, 0, 1, 2, 3):
            a(f"v_mul_f32 v{E+i}, s{sC}, v{32+i}")
    else:
        true_max(True)
    weights_to_o(True)
    if nomax:
        if not cfg.get("nowait1") and not cfg.get("nowait2"): a(f"s_cbranch_vccnz L_chain_big{tag}")
        a.label(f"L_chain_bigok{tag}")
    def pack(U):
        d = 32 + 4 * U; s = WA + 8 * U
        return [[f"v_cvt_pk_bf16_f32 v{d}, v{s}, v{s+1}", f"v_cvt_pk_bf16_f32 v{d+1}, v{s+2}, v{s+3}",
                 f"v_and_or_b32 v{d}, v{d}, -2, s{sTag}"],
                [f"v_cvt_pk_bf16_f32 v{d+2}, v{s+4}, v{s+5}", f"v_cvt_pk_bf16_f32 v{d+3}, v{s+6}, v{s+7}",
                 f"buffer_store_dwordx4 {vr(d,4)}, v{vX1s}, {W}, s{sX1a if U == 0 else sX1b} offen{st}"]]
    sal = [f"s_add_u32 s{sStep}, s{sStep}, 1", f"s_add_u32 s{sMemOff}, s{sMemOff}, 8192", f"s_xor_b32 s{sX2st}, s{sX2st}, 8192",
           f"s_xor_b32 s{sX2re}, s{sX2re}, 8192", f"s_xor_b32 s{sX2l}, s{sX2l}, 8192", f"s_mov_b32 s{sSPIN}, 0"]
    for i in range(4): a(f"v_mov_b64 {vr(WA+2*i,2)}, 0")
    for i in range(4): a(f"v_mul_f32 v{72+i}, v{72+i}, v{LS}")
    for i in range(4): a(f"v_mul_f32 v{76+i}, v{76+i}, v{LS}")
    cvt(OF, 72); cvt(OF + 2, 76); cvt(OF + 1, 74); cvt(OF + 3, 78)
    a(f"v_cndmask_b32 v80, v{OF}, v{OF+2}, s[{sMaskHi}:{sMaskHi+1}]")
    a(f"v_cndmask_b32 v81, v{OF+1}, v{OF+3}, s[{sMaskHi}:{sMaskHi+1}]")
    a(f"ds_write_b64 v{vOw}, v[80:81]")
    stamp("owr")
    at("h10w")
    assert not plan and not kvl
    smf(WA, OF, WO)
    for i in range(4, 8): a(f"v_mov_b64 {vr(WA+2*i,2)}, 0")
    smf(WA + 4, OF, WO + 32)
    a(f"v_and_b32 v85, -16, v{vOw}")
    for ac in range(3): a(f"v_xor_b32 v{82+ac}, {(ac+1)*512}, v85")
    a(f"s_waitcnt vmcnt({after_r[0]}) lgkmcnt(0)")
    stamp("owdone", True)
    a("s_barrier")
    stamp("bar3", True)
    for wp in range(1, 4):
        a(f"ds_read_b128 {vr(OF+4*wp,4)}, v{81+wp}")
    a(f"ds_read_b128 v[40:43], v{vC}")
    smf(WA + 8, OF, WO + 64)
    for x in sal[:3]: a(x)
    smf(WA + 12, OF, WO + 96)
    for x in sal[3:]: a(x)
    pk = pack(0) + pack(1)
    n = 0; side = []
    for ac in range(4):
        for wp in range(1, 4):
            if ac == 0: a(f"s_waitcnt lgkmcnt({4-wp})")
            smf(WA + 4 * ac, OF + 4 * wp, WO + (ac * 4 + wp) * 8)
            n += 1
            stamp(f"wo{n}", True)
            if n in (6, 9, 12): side += pk.pop(0)
            if side: a(side.pop(0))
    for x in side: a(x)
    for i in range(3):
        a(f"ds_read_b128 {vr(RING+4*i,4)}, v{vLdsW} offset:{(i>>2)*16384+(i&3)*1024}")
    for x in pk.pop(0): a(x)
    stamp("x1st")
    for i in range(3, 8):
        a(f"ds_read_b128 {vr(RING+4*i,4)}, v{vLdsW} offset:{(i>>2)*16384+(i&3)*1024}")
    a("s_waitcnt vmcnt(2)")
    a(f"v_add_u32 v{vT}, s{sKVL}, v{vL16}")
    for f in range(4):
        a(f"ds_read_b128 {vr(Kx+4*f,4)}, v{vT} offset:{f*1024}")
    if cfg.get("ack1"): a("s_waitcnt vmcnt(1)")
    pad(cfg.get("d1", 40))
    def x1_issue(r):
        a(f"buffer_load_dwordx4 {vr(r,4)}, v{vX1l}, {W}, s{sX1a} offen sc1")
        a(f"buffer_load_dwordx4 {vr(r+4,4)}, v{vX1l}, {W}, s{sX1a} offen offset:1024 sc1")
    def x1_check(r, n):
        a(f"s_waitcnt vmcnt({n+1})")
        mfma(104, 40, r, None)
        a(f"s_waitcnt vmcnt({n})")
        mfma(104, 40, r + 4, 104)
        a(f"v_bitop3_b32 v{vT}, v{r}, v{r+4}, s{sTag} bitop3:0x7e")
        a(f"v_and_b32 v{vT}, 1, v{vT}")
        a(f"v_cmp_ne_u32 vcc, 0, v{vT}")
    stamp("x1iss")
    x1_issue(96)
    a("s_waitcnt lgkmcnt(12)")
    if cfg.get("ack1"): a("s_waitcnt vmcnt(2)")
    if cfg.get("one1"):
        x1_check(96, 0)
    else:
        pad(cfg.get("g1", 35))
        x1_issue(112)
        x1_check(96, 2)
    if not cfg.get("nowait1"): a(f"s_cbranch_vccnz L_chain_x1b{tag}")
    a.label(f"L_chain_x1ok{tag}")
    stamp("x1ok")
    a(f"v_add_f32_dpp v104, v104, v104 row_ror:4 row_mask:0xf bank_mask:0xf")
    a(f"v_add_f32_dpp v105, v105, v105 row_ror:4 row_mask:0xf bank_mask:0xf")
    a(f"s_xor_b32 s{sTag}, s{sTag}, 1")
    a(f"v_add_f32_dpp v104, v104, v104 row_ror:8 row_mask:0xf bank_mask:0xf")
    a(f"v_add_f32_dpp v105, v105, v105 row_ror:8 row_mask:0xf bank_mask:0xf")
    a(f"v_cvt_pk_bf16_f32 v{vR}, v104, v105")
    a(f"v_min_u32 v{vR}, -2, v{vR}")
    a(f"buffer_store_dword v{vR}, v{vX2s}, {W}, s{sX2st} offen{st}")
    if cfg.get("count_redo"):
        a(f"s_lshl_b32 s{sT0}, s{sSPIN}, 16")
        a(f"s_add_u32 s31, s31, s{sT0}")
    if stamp.on:
        a(f"s_cmp_eq_u32 s{sStep}, {cfg.get('stamp_step', 40)}")
        a(f"s_cbranch_scc0 L_chain_loop{tag}")
        a("s_waitcnt lgkmcnt(0)")
        a(f"s_lshl_b32 s{sT0}, s{sMEMB}, 2")
        a(f"s_add_u32 s{sT0}, s{sT0}, s{sWAVE}")
        a(f"s_lshl_b32 s{sT1}, s{sLAY}, 7")
        a(f"s_add_u32 s{sT0}, s{sT0}, s{sT1}")
        a(f"s_lshl_b32 s{sT0}, s{sT0}, 6")
        a(f"s_add_u32 s{sT0}, s{sT0}, {OFF_STAMP:#x}")
        a(f"v_mov_b32 v108, 0")
        for i in range(stamp.n):
            a(f"v_mov_b32 v109, s{stamp.base+2*i}")
            a(f"buffer_store_dword v109, v108, {W}, s{sT0} offen offset:{4*i}")
        cfg["stamp_names"] = stamp.names
    a(f"s_branch L_chain_loop{tag}")
    a.label(f"L_chain_x1b{tag}")
    x1_issue(96)
    spin_tick(a)
    if cfg.get("one1"): x1_check(96, 0)
    else:
        x1_check(112, 2)
        a(f"s_cbranch_vccz L_chain_x1ok{tag}")
        x1_issue(112)
        spin_tick(a)
        x1_check(96, 2)
    a(f"s_cbranch_vccz L_chain_x1ok{tag}")
    a(f"s_branch L_chain_x1b{tag}")
    a.label(f"L_chain_x2b{tag}")
    x2_issue(A)
    spin_tick(a)
    zero_k()
    if cfg.get("one2"): x2_check(A, 0)
    else:
        x2_check(A + 8, 2)
        a(f"s_cbranch_vccz L_chain_x2c{tag}")
        x2_issue(A + 8)
        spin_tick(a)
        zero_k()
        x2_check(A, 2)
    a(f"s_cbranch_vccz L_chain_x2ok{tag}")
    a(f"s_branch L_chain_x2b{tag}")
    a.label(f"L_chain_x2c{tag}")
    for i in range(4):
        a(f"v_mov_b64 {vr(A+2*i,2)}, {vr(A+8+2*i,2)} ; sameval")
    a(f"s_branch L_chain_x2ok{tag}")
    if nomax:
        a.label(f"L_chain_big{tag}")
        true_max()
        weights_to_o(False)
        a(f"s_branch L_chain_bigok{tag}")
    a.label(f"L_chain_last{tag}")
    if cfg.get("count_redo"):
        a("s_memrealtime s[70:71]")
        a("s_memtime s[72:73]")
        a(f"s_lshl_b32 s{sT0}, s{sMEMB}, 2")
        a(f"s_add_u32 s{sT0}, s{sT0}, s{sWAVE}")
        a(f"s_lshl_b32 s{sT1}, s{sLAY}, 7")
        a(f"s_add_u32 s{sT0}, s{sT0}, s{sT1}")
        a(f"s_lshl_b32 s{sT0}, s{sT0}, 6")
        a(f"s_add_u32 s{sT0}, s{sT0}, {OFF_STAMP:#x}")
        a(f"v_mov_b32 v108, 0")
        a("s_waitcnt lgkmcnt(0)")
        a(f"s_sub_u32 s70, s70, s100")
        a(f"s_sub_u32 s72, s72, s98")
        for i, r in enumerate((72, 31, 70, 101)):
            a(f"v_mov_b32 v109, s{r}")
            a(f"buffer_store_dword v109, v108, {W}, s{sT0} offen offset:{48+4*i}")
    a(f"buffer_store_dword v{vR}, v{vX2s}, {W}, s{sMemOff} offen sc1")
    a("s_waitcnt vmcnt(0) lgkmcnt(0)")
    a("s_branch L_done")
    a.label(f"L_chain_kvwait{tag}")
    if cfg.get("count_redo"): a("s_add_u32 s31, s31, 0x4000000")
    spin_init(a)
    lab = a.newlab("L_kvspin")
    a.label(lab)
    for f in range(4):
        a(f"buffer_load_dwordx4 {vr(Kx+4*f,4)}, v{vL16}, {W}, s{sKV} offen offset:{f*1024} sc1")
    spin_tick(a)
    a("s_waitcnt vmcnt(0)")
    kv_check()
    a(f"s_cbranch_vccz L_chain_kvok{tag}")
    a("s_sleep 4")
    a(f"s_branch {lab}")
```

```python
from gen_common import *

def chain(a, local, cfg):
    st = "" if local else " sc1"
    tag = "L" if local else "G"
    stamp = Stamps(a, cfg.get("stamp") == "chain" and local, only=cfg.get("only"))
    vL16, vIdx, vLdsW, vSwx, vSwm, vSrx, vSrm, vOw, vOr, vX1s, vX1l, vX2s = range(1, 13)
    vR, vOnes, vT = 13, 14, 15
    vAw = 0
    sKVb, sKT, sLim, sKVc, sLate = 93, 95, 63, 66, 67
    SelT, VACC, SelM = 16, 20, 28
    q0, k0, q1, k1 = 32, 36, 40, 44
    Kx, Vx, RING, A, WO = 48, 56, 64, 96, 128
    WK, WV = 256, 384
    sStep, sTag, sX2st, sX2re, sMemOff, sKV, sX1a, sX1b, sC = 55, 56, 57, 58, 59, 60, 61, 62, 96
    sMaskHi = 64
    sLds, sRot = 66, 67
    sX2l = 92
    AST, KVL, SX, SM, SJ, OA, CST = 0x20000, 0x22000, 0x27000, 0x27800, 0x27f00, 0x26000, 0x27a00
    sKVL = 94
    lane = 0
    if cfg.get("chain_prologue_done") is None:
        cfg["chain_prologue_done"] = True
        a.label("L_chain")
        a(f"v_and_b32 v0, 63, v0")
        a(f"v_lshlrev_b32 v{vL16}, 4, v0")
        a(f"s_lshl_b32 s{sLds}, s{sWAVE}, 15")
        a(f"s_lshl_b32 s{sRot}, s{sWAVE}, 1")
        vD, vTR, vDo, vTRo = 32, 33, 34, 35
        sL2, sL3 = 70, 71
        vD1, vTR1, sLq = 38, 39, 72
        coop_addrs(a, vD, vD1, vTR, vTR1, vT)
        a(f"s_lshl_b32 s{sLq}, s{sWAVE}, 12")
        a(f"v_lshrrev_b32 v{vDo}, 3, v0")
        a(f"v_lshlrev_b32 v{vDo}, 10, v{vDo}")
        a(f"v_and_b32 v{vT}, 7, v0")
        a(f"v_lshl_add_u32 v{vDo}, v{vT}, 4, v{vDo}")
        a(f"v_bfe_u32 v{vT}, v0, 4, 1")
        a(f"v_lshlrev_b32 v{vTRo}, 11, v{vT}")
        a(f"v_bfe_u32 v{vT}, v0, 5, 1")
        a(f"v_lshl_add_u32 v{vTRo}, v{vT}, 9, v{vTRo}")
        a(f"v_bfe_u32 v{vT}, v0, 2, 1")
        a(f"v_lshl_add_u32 v{vTRo}, v{vT}, 7, v{vTRo}")
        a(f"v_bfe_u32 v{vT}, v0, 3, 1")
        a(f"v_lshl_add_u32 v{vTRo}, v{vT}, 5, v{vTRo}")
        a(f"v_and_b32 v{vT}, 3, v0")
        a(f"v_lshl_add_u32 v{vTRo}, v{vT}, 3, v{vTRo}")
        a(f"v_add_u32 v{vTRo}, s{sLq}, v{vTRo}")
        a(f"s_add_u32 s{sT0}, s{sLds}, s{sLq}")
        a(f"v_add_u32 v{vLdsW}, s{sT0}, v{vL16}")
        a(f"s_lshl_b32 s{sL2}, s{sMEMB}, 8")
        a(f"s_lshl_b32 s{sT1}, s{sWAVE}, 15")
        a(f"s_add_u32 s{sL2}, s{sL2}, s{sT1}")
        a(f"s_lshl_b32 s{sL3}, s{sMEMB}, 17")
        a(f"s_lshl_b32 s{sT1}, s{sWAVE}, 8")
        a(f"s_add_u32 s{sL3}, s{sL3}, s{sT1}")
        late_start(a, cfg)
        stages = []
        for ptr, base in ((sWK, WK), (sWV, WV)):
            for J in range(8):
                def consume(slot, J=J, base=base):
                    end = a.newlab("L_cw")
                    for w in range(4):
                        nxt = a.newlab("L_cw")
                        if w < 3:
                            a(f"s_cmp_lg_u32 s{sWAVE}, {w}")
                            a(f"s_cbranch_scc1 {nxt}")
                        jj = J ^ (2 * w)
                        coop_reads(a, slot, vTR, vTR1, 40, base + jj * 16, base + jj * 16 + 8)
                        if w < 3:
                            a(f"s_branch {end}")
                            a.label(nxt)
                    a.label(end)
                stages.append(dict(issue=lambda slot, ptr=ptr, J=J: coop_issue(a, ptr, J, slot, sL2, vD, vD1, sLq), consume=consume))
        for wp in range(4):
            for ap in range(2):
                def issue(slot, wp=wp, ap=ap):
                    if wp == 0 and ap == 0: set_srd(a, sWT, sWO, 0x400000)
                    a(f"s_add_u32 m0, s{sLq}, {slot*16384}")
                    a(f"s_xor_b32 s{sT0}, s{sWAVE}, {wp}")
                    a(f"s_lshl_b32 s{sT0}, s{sT0}, 15")
                    a(f"s_add_u32 s{sT0}, s{sT0}, s{sL3}")
                    if ap: a(f"s_add_u32 s{sT0}, s{sT0}, {ap*128}")
                    for q in range(4):
                        if q: a(f"s_add_u32 s{sT0}, s{sT0}, {8192-1024}")
                        a(f"buffer_load_dwordx4 v{vDo}, s[{sWT}:{sWT+3}], s{sT0} offen offset:{q*1024}{' nt' if '14c' in cfg.get('ntw', ()) else ''} lds")
                def consume(slot, wp=wp, ap=ap):
                    va = vTRo
                    if slot >= 4:
                        a(f"v_add_u32 v40, 0x10000, v{vTRo}"); va = 40
                    for a1 in range(2):
                        dst = WO + ((2 * ap + a1) * 4 + wp) * 8
                        for e4 in range(4):
                            off = (slot & 3) * 16384 + (8 * (e4 >> 1) + 2 * (e4 & 1)) * 128 + a1 * 64
                            a(f"ds_read_b64_tr_b16 {vr(dst+2*e4,2)}, v{va} offset:{off}")
                stages.append(dict(issue=issue, consume=consume))
        for J in range(8):
            tmp = RING + 16 * (J & 1)
            def post(slot, tmp=tmp):
                a(f"s_add_u32 s{sT0}, s{sLq}, {slot*16384}")
                a(f"v_add_u32 v40, s{sT0}, v{vL16}")
                for i in range(4):
                    a(f"ds_write_b128 v40, {vr(tmp+4*i,4)} offset:{i*1024}")
            stages.append(dict(issue=lambda slot, J=J: coop_issue(a, sWQ, J, slot, sL2, vD, vD1, sLq),
                               consume=lambda slot, tmp=tmp: coop_reads(a, slot, vTR, vTR1, 40, tmp, tmp + 8), post=post))
        def setup_rest():
            sel_consts(a, lane, 96, selM=SelM, selLo=112, selHi=116, selT=SelT)
            smf_index(a, lane, vIdx, 96)
            n_, g_, q_ = 96, 97, 98
            a(f"v_and_b32 v{n_}, 15, v0")
            a(f"v_lshrrev_b32 v{g_}, 4, v0")
            a(f"v_and_b32 v{q_}, 7, v0")
            a(f"s_mov_b32 s{sMaskHi}, 0xff00ff00")
            a(f"s_mov_b32 s{sMaskHi+1}, 0xff00ff00")
            a(f"v_lshlrev_b32 v99, 3, v{q_}")
            a(f"v_and_b32 v{vT}, 1, v{g_}")
            a(f"v_lshl_add_u32 v99, v{vT}, 6, v99")
            a(f"v_add_u32 v99, {SJ}, v99")
            a(f"v_lshrrev_b32 v{vT}, 1, v{g_}")
            a(f"v_lshlrev_b32 v{vSwx}, 8, v{vT}")
            a(f"v_lshl_add_u32 v{vSwx}, v{q_}, 4, v{vSwx}")
            a(f"v_and_b32 v{vT}, 1, v{g_}")
            a(f"v_lshl_add_u32 v{vSwx}, v{vT}, 3, v{vSwx}")
            a(f"s_lshl_b32 s{sT0}, s{sWAVE}, 9")
            a(f"s_add_u32 s{sT1}, s{sT0}, {SX}")
            a(f"v_add_u32 v{vSwx}, s{sT1}, v{vSwx}")
            a(f"v_cndmask_b32 v{vSwx}, v{vSwx}, v99, s[{sMaskHi}:{sMaskHi+1}]")
            a(f"v_lshlrev_b32 v{vSwm}, 4, v{q_}")
            a(f"v_lshl_add_u32 v{vSwm}, v{vT}, 3, v{vSwm}")
            a(f"s_lshl_b32 s{sT1}, s{sWAVE}, 7")
            a(f"s_add_u32 s{sT1}, s{sT1}, {SM}")
            a(f"v_add_u32 v{vSwm}, s{sT1}, v{vSwm}")
            a(f"s_mov_b32 s98, 0")
            a(f"s_mov_b32 s99, 0x00ff00ff")
            a(f"v_cndmask_b32 v{vSwm}, v99, v{vSwm}, s[98:99]")
            a(f"v_lshlrev_b32 v{vSrx}, 9, v{g_}")
            a(f"v_lshl_add_u32 v{vSrx}, v{n_}, 4, v{vSrx}")
            a(f"v_add_u32 v{vSrx}, {SX}, v{vSrx}")
            a(f"v_lshlrev_b32 v{vSrm}, 7, v{g_}")
            a(f"v_lshl_add_u32 v{vSrm}, v{q_}, 4, v{vSrm}")
            a(f"v_add_u32 v{vSrm}, {SM}, v{vSrm}")
            a(f"s_lshl_b32 s{sT1}, s{sWAVE}, 9")
            a(f"s_add_u32 s{sT1}, s{sT1}, {OA-SM}")
            a(f"v_bfe_u32 v{vT}, v0, 3, 1")
            a(f"v_lshl_add_u32 v{vOw}, v{vT}, 3, v{vSrm}")
            a(f"v_add_u32 v{vOw}, s{sT1}, v{vOw}")
            a(f"v_and_b32 v{vOr}, 0xf0, v{vL16}")
            a(f"v_add_u32 v{vOr}, {CST}, v{vOr}")
            a(f"v_lshrrev_b32 v{vT}, 2, v{n_}")
            a(f"v_lshl_add_u32 v{vT}, v{vT}, 2, v{g_}")
            a(f"v_lshlrev_b32 v{vX1s}, 11, v{vT}")
            a(f"v_and_b32 v{vT}, 3, v0")
            a(f"v_lshl_add_u32 v{vX1s}, v{vT}, 4, v{vX1s}")
            a(f"s_lshl_b32 s{sT0}, s{sWAVE}, 16")
            a(f"s_lshl_b32 s{sT1}, s{sMEMB}, 6")
            a(f"s_add_u32 s{sT0}, s{sT0}, s{sT1}")
            a(f"v_add_u32 v{vX1s}, s{sT0}, v{vX1s}")
            a(f"s_lshl_b32 s{sT2}, s{sMEMB}, 2")
            a(f"s_add_u32 s{sT2}, s{sT2}, s{sWAVE}")
            a(f"s_lshl_b32 s{sT0}, s{sT2}, 11")
            a(f"v_add_u32 v{vX1l}, s{sT0}, v{vL16}")
            a(f"v_lshlrev_b32 v{vX2s}, 4, v{g_}")
            a(f"v_lshl_add_u32 v{vX2s}, v{n_}, 2, v{vX2s}")
            a(f"s_lshl_b32 s{sT0}, s{sT2}, 6")
            a(f"v_add_u32 v{vX2s}, s{sT0}, v{vX2s}")
            a(f"v_mov_b32 v{vT}, {OOB:#x}")
            a(f"v_cmp_gt_u32 vcc, 4, v{n_}")
            a(f"v_cndmask_b32 v{vX2s}, v{vT}, v{vX2s}, vcc")
            a(f"v_and_b32 v100, 3, v0")
            a(f"v_lshlrev_b32 v100, 1, v100")
            a(f"v_lshl_add_u32 v100, v{g_}, 10, v100")
            a(f"v_and_b32 v104, 3, v0")
            a(f"v_bfe_u32 v105, v0, 2, 2")
            a(f"v_lshl_add_u32 v104, v104, 2, v105")
            a(f"v_and_b32 v105, 1, v104")
            a(f"v_lshlrev_b32 v105, 4, v105")
            a(f"v_mov_b32 v106, 0x3f80")
            a(f"v_lshlrev_b32 v105, v105, v106")
            a(f"v_lshrrev_b32 v104, 1, v104")
            for e in range(4):
                a(f"v_cmp_eq_u32 vcc, {e}, v104")
                a(f"v_cndmask_b32 v{108+e}, 0, v105, vcc")
            a(f"v_and_b32 v104, 0xf0, v{vL16}")
            a(f"v_add_u32 v104, {CST}, v104")
            a(f"ds_write_b128 v104, v[108:111]")
            a(f"ds_write_b128 v104, v[112:115] offset:256")
            a(f"ds_write_b128 v104, v[116:119] offset:512")
            for e in range(4): a(f"v_mov_b32 v{120+e}, 0x3f803f80")
            for e in range(4): a(f"v_mov_b32 v{124+e}, 0x3f003f00")
            a(f"ds_write_b128 v104, v[120:123] offset:768")
            a(f"ds_write_b128 v104, v[124:127] offset:1024")
            a(f"s_and_b32 s{sT0}, s{sT2}, 1")
            a(f"s_lshl_b32 s{sT0}, s{sT0}, 12")
            a(f"s_lshr_b32 s{sT1}, s{sT2}, 4")
            a(f"s_lshl_b32 s{sT1}, s{sT1}, 7")
            a(f"s_add_u32 s{sT0}, s{sT0}, s{sT1}")
            a(f"s_bfe_u32 s{sT1}, s{sT2}, 0x10001")
            a(f"s_lshl_b32 s{sT1}, s{sT1}, 5")
            a(f"s_add_u32 s{sT0}, s{sT0}, s{sT1}")
            a(f"s_bfe_u32 s{sT1}, s{sT2}, 0x20002")
            a(f"s_lshl_b32 s{sT1}, s{sT1}, 3")
            a(f"s_add_u32 s{sT0}, s{sT0}, s{sT1}")
            set_srd(a, sIN, sMEM0, 8192)
            a(f"buffer_load_ushort v36, v100, s[{sIN}:{sIN+3}], s{sT0} offen")
            a(f"buffer_load_ushort v37, v100, s[{sIN}:{sIN+3}], s{sT0} offen offset:64")
            a(f"s_mov_b32 s{sStep}, 0")
            a(f"s_mov_b32 s{sTag}, 0")
            a(f"s_lshl_b32 s{sT0}, s{sLAY}, 14")
            a(f"s_add_u32 s{sX2st}, s{sT0}, {OFF_X2:#x}")
            a(f"s_add_u32 s{sX2re}, s{sX2st}, 8192")
            a(f"s_lshl_b32 s{sT0}, s{sWAVE}, 11")
            a(f"s_add_u32 s{sX2l}, s{sT0}, s{sX2st}")
            a(f"s_add_u32 s{sT0}, s{sT0}, {AST}")
            a(f"v_add_u32 v{vAw}, s{sT0}, v{vL16}")
            a(f"s_lshl_b32 s{sT0}, s{sLAY}, 19")
            a(f"s_add_u32 s{sMemOff}, s{sT0}, {OFF_MEM:#x}")
            a(f"s_lshl_b32 s{sT0}, s{sLAY}, 18")
            a(f"s_add_u32 s{sX1a}, s{sT0}, {OFF_X1:#x}")
            a(f"s_add_u32 s{sX1b}, s{sX1a}, 32768")
            a(f"s_lshl_b32 s{sT0}, s{sLAY}, 21")
            a(f"s_lshl_b32 s{sT1}, s{sT2}, 12")
            a(f"s_add_u32 s{sT0}, s{sT0}, s{sT1}")
            a(f"s_add_u32 s{sKVb}, s{sT0}, {OFF_KVR:#x}")
            a(f"s_mov_b32 s{sKV}, s{sKVb}")
            a(f"s_mov_b32 s{sC}, {fbits(128**-0.5*1.4426950408889634):#x}")
            a(f"s_mov_b32 s{sC+1}, s{sC}")
            a(f"s_mov_b32 s{sLim}, {fbits(cfg.get('lim', 48.0)):#x}")
        load_stages(a, stages, meanwhile=setup_rest,
                    hooks=None if cfg.get("noinit") else {25: lambda: go_load(a), cfg.get("chain_sig", 99): lambda: late_signal(a, cfg)})
        trace(a, cfg, 6, None, vT)
        if not cfg.get("noinit"): wait_init(a, sampled=True, barrier=False)
        a(f"v_lshl_or_b32 v{vR}, v37, 16, v36")
        a(f"v_min_u32 v{vR}, -2, v{vR}")
        for i in range(8):
            a(f"ds_read_b128 {vr(RING+4*i,4)}, v{vLdsW} offset:{(i>>2)*16384+(i&3)*1024}")
        a(f"v_mov_b32 v{vOnes}, -1")
        for f in range(4): a(f"v_mov_b32 v{Kx+4*f}, -1")
        if cfg.get("nokvcheck"):
            for f in range(16): a(f"v_mov_b32 v{Kx+f}, 0")
        a(f"s_lshl_b32 s{sKVL}, s{sWAVE}, 12")
        a(f"s_add_u32 s{sKVL}, s{sKVL}, {KVL}")
        a(f"s_mov_b32 m0, s{sKVL}")
        a("s_waitcnt vmcnt(0) lgkmcnt(0)")
        if cfg.get("count_redo"):
            a("s_memrealtime s[70:71]")
            a("s_memtime s[98:99]")
            a("s_waitcnt lgkmcnt(0)")
            a("s_sub_u32 s101, s70, s100")
            a("s_mov_b32 s100, s70")
        if cfg.get("force_global"):
            a("s_branch L_chain_entryG")
        else:
            a(f"s_cmp_eq_u32 s{sLOCAL}, 0")
            a("s_cbranch_scc1 L_chain_entryG")
    W = f"s[{sWS}:{sWS+3}]"
    vC = vOr
    vq = [(t, jj) for jj in range(8) for t in range(2)]
    vacc = (VACC, VACC + 4)
    def smf(acc, x, w): a(f"v_smfmac_f32_16x16x64_bf16 {vr(acc,4)}, {vr(x,4)}, {xr(w,8)}, v{vIdx}")
    def fill_v(n):
        for _ in range(n):
            t, jj = vq.pop(0)
            smf(vacc[t], A + 4 * jj, WV + jj * 16 + t * 8)
    def pad(n):
        k = cfg.get("padkind", "mov")
        if k == "mov":
            for _ in range(n): a(f"v_mov_b32 v{vT}, 0")
        elif k == "nop":
            while n > 0:
                a(f"s_nop {min(n,16)-1}"); n -= 16
        elif k == "mfma":
            for i in range(n // 4): a(f"v_mfma_f32_16x16x32_bf16 v[108:111], {xr(WK+(i%16)*4,4)}, {xr(WV+(i%16)*4,4)}, 0 ; nochk")
    cvt = lambda d, s: a(f"v_cvt_pk_bf16_f32 v{d}, v{s}, v{s+1}")
    mfma = lambda d, x, y, c: a(f"v_mfma_f32_16x16x32_bf16 {vr(d,4)}, {vr(x,4)}, {vr(y,4)}, {vr(c,4) if c is not None else 0}")
    mfma16 = lambda d, x, y, c: a(f"v_mfma_f32_16x16x16_bf16 {vr(d,4)}, {vr(x,2)}, {vr(y,2)}, {vr(c,4) if c is not None else 0}")
    def kv_check():
        a(f"v_bitop3_b32 v{vT}, v{Kx}, v{Kx+4}, s{sKT} bitop3:0x7e")
        a(f"v_bitop3_b32 v{VACC}, v{Kx+8}, v{Kx+12}, s{sKT} bitop3:0x7e")
        a(f"v_or_b32 v{vT}, v{vT}, v{VACC}")
        a(f"v_and_b32 v{vT}, 1, v{vT}")
        a(f"v_cmp_ne_u32 vcc, 0, v{vT}")
    def x2_issue(r):
        a(f"buffer_load_dwordx4 {vr(r,4)}, v{vL16}, {W}, s{sX2l} offen sc1")
        a(f"buffer_load_dwordx4 {vr(r+4,4)}, v{vL16}, {W}, s{sX2l} offen offset:1024 sc1")
    def x2_check(r, n):
        a(f"s_waitcnt vmcnt({n+1})")
        smf(k0, r, WK)
        a(f"v_max3_u32 v{vT}, v{r}, v{r+1}, v{r+2}")
        smf(k1, r, WK + 8)
        a(f"s_waitcnt vmcnt({n})")
        a(f"v_max3_u32 v{vT}, v{vT}, v{r+3}, v{r+4}")
        a(f"ds_write_b128 v{vAw}, {vr(r,4)}")
        a(f"v_max3_u32 v{vT}, v{vT}, v{r+5}, v{r+6}")
        a(f"v_max_u32 v{vT}, v{vT}, v{r+7}")
        a(f"v_cmp_eq_u32 vcc, -1, v{vT}")
        smf(k0, r + 4, WK + 16)
        a(f"ds_write_b128 v{vAw}, {vr(r+4,4)} offset:1024")
        smf(k1, r + 4, WK + 24)
    def zero_k():
        for r in (k0, k0 + 2, k1, k1 + 2): a(f"v_mov_b64 {vr(r,2)}, 0")
    a.label(f"L_chain_entry{tag}")
    a(f"buffer_store_dword v{vR}, v{vX2s}, {W}, s{sX2st} offen{st}")
    a(".p2align 6")
    a.label(f"L_chain_loop{tag}")
    stamp("top")
    trace(a, cfg, 0, sStep, vT)
    a(f"s_cmp_eq_u32 s{sStep}, 63")
    a(f"s_cbranch_scc1 L_chain_last{tag}")
    a(f"s_bfe_u32 s{sKT}, s{sStep}, 0x10002")
    a("s_waitcnt lgkmcnt(0)")
    kv_check()
    for i in range(8):
        a(f"v_mov_b64 {vr(q0+2*i,2)}, 0")
    lateok = cfg.get("latekv", False) and not cfg.get("nokvcheck")
    if lateok:
        a(f"s_mov_b32 s{sKVc}, s{sKV}")
        a(f"s_cmp_lg_u64 vcc, 0")
        a(f"s_cselect_b32 s{sLate}, 1, 0")
    elif not cfg.get("nokvcheck"): a(f"s_cbranch_vccnz L_chain_kvwait{tag}")
    a.label(f"L_chain_kvok{tag}")
    trace(a, cfg, 1, sStep, vT)
    trace(a, cfg, 5, sStep, vT)
    spin_init(a)
    pad(cfg.get("d2", 30))
    stamp("x2iss")
    x2_issue(A)
    for i in range(4):
        a(f"v_mov_b64 {vr(VACC+2*i,2)}, 0")
    a(f"s_add_u32 s{sKV}, s{sStep}, 1")
    a(f"s_and_b32 s{sKV}, s{sKV}, 3")
    a(f"s_lshl_b32 s{sKV}, s{sKV}, 19")
    a(f"s_add_u32 s{sKV}, s{sKV}, s{sKVb}")
    if cfg.get("ack2"): a("s_waitcnt vmcnt(2)")
    if cfg.get("one2"):
        x2_check(A, 0)
    else:
        pad(cfg.get("g2", 30))
        x2_issue(A + 8)
        x2_check(A, 2)
    if not cfg.get("nowait2"): a(f"s_cbranch_vccnz L_chain_x2b{tag}")
    a.label(f"L_chain_x2ok{tag}")
    if cfg.get("count_redo"): a(f"s_add_u32 s31, s31, s{sSPIN}")
    stamp("A0")
    kvl = [f"buffer_load_dwordx4 v{vL16}, {W}, s{sKV} offen offset:{f*1024} sc1 lds" for f in range(4)]
    SLo, SHi = RING, RING + 4
    def ring_rd(jj):
        s0 = RING + ((2 * jj) % 4) * 8
        return [f"ds_read_b128 {vr(s0+4*i,4)}, v{vW2} offset:{(jj&1)*16384+i*1024}" for i in range(4)]
    vW2 = vT
    for jj in range(2):
        s0 = RING + 16 * jj; rd = ring_rd(jj)
        if jj == 0: a(f"v_xor_b32 v{vW2}, 0x8000, v{vLdsW}")
        smf(q0, A + 4 * jj, s0); a(rd[0]); a(rd[1])
        smf(q1, A + 4 * jj, s0 + 8); a(rd[2]); a(rd[3])
    memst = f"buffer_store_dword v{vR}, v{vX2s}, {W}, s{sMemOff} offen sc1"
    rearm = f"buffer_store_dword v{vOnes}, v{vX2s}, {W}, s{sX2re} offen{st}"
    rf = cfg.get("rearm_first", True)
    a(rearm if rf else memst)
    stamp("k1done", True)
    a("s_waitcnt vmcnt(1) lgkmcnt(8)")
    a("s_barrier")
    stamp("bar1", True)
    for j2 in range(2, 8, 2):
        a(f"v_xor_b32 v{vT}, {j2*1024}, v{vAw}")
        a(f"ds_read_b128 {vr(A+4*j2,4)}, v{vT}")
        a(f"ds_read_b128 {vr(A+4*j2+4,4)}, v{vT} offset:1024")
        if j2 < 6: fill_v(1)
    if lateok:
        a(f"s_cmp_lg_u32 s{sLate}, 0")
        a(f"s_cbranch_scc1 L_chain_late1{tag}")
    a(memst if rf else rearm)
    a.label(f"L_chain_late1r{tag}")
    fill_v(1)
    a(kvl.pop(0))
    fill_v(1)
    lg = {2: 5, 3: 8, 4: 4, 5: 4, 6: 4, 7: 2}
    for jj in range(2, 8):
        if jj in (2, 4): a(f"v_xor_b32 v{vW2}, {(jj//2+1)*0x8000:#x}, v{vLdsW}")
        a(f"s_waitcnt lgkmcnt({lg[jj]})")
        stamp(f"k{jj}", True)
        s0 = RING + ((2 * jj) % 4) * 8; s1 = s0 + 8
        if jj < 6: side = ring_rd(jj)
        elif jj == 6: side = [kvl.pop(0), kvl.pop(0),
                              f"ds_read_b128 {vr(SLo,4)}, v{vC} offset:256", f"ds_read_b128 {vr(SHi,4)}, v{vC} offset:512"]
        else: side = [kvl.pop(0), None, None, None]
        for acc, wsrc, sd in ((q0, s0, side[0]), (k0, WK + jj * 16, side[1]), (q1, s1, side[2]), (k1, WK + jj * 16 + 8, side[3])):
            smf(acc, A + 4 * jj, wsrc)
            if sd: a(sd)
    stamp("h3end")
    Ap0, Ap1, Dp0, Dp1, X = 72, 76, 80, 84, 88
    cvt(Ap0, q0); cvt(Ap0 + 1, q0 + 2); cvt(Ap0 + 2, k0); cvt(Ap0 + 3, k0 + 2)
    cvt(Ap1, q1); cvt(Ap1 + 1, q1 + 2)
    mfma(Dp0, Ap0, SelT, None)
    cvt(Ap1 + 2, k1); cvt(Ap1 + 3, k1 + 2)
    mfma(Dp1, Ap1, SelT, None)
    fill_v(1)
    cvt(X, Dp0); cvt(X + 1, Dp0 + 2)
    if lateok: a(f"s_cmp_lg_u32 s{sLate}, 0")
    cvt(X + 2, Dp1); cvt(X + 3, Dp1 + 2)
    Sx0, Sx1, Sm = 32, 36, 40
    if lateok:
        a(f"s_cbranch_scc1 L_chain_late2{tag}")
        a.label(f"L_chain_late2r{tag}")
    mfma(Sx0, Kx, X, None)
    mfma(Sx1, Kx + 4, X, None)
    mfma(Sm, X, X, None)
    fill_v(1)
    cvt(44, Sx0); cvt(45, Sx0 + 2); cvt(46, Sx1); cvt(47, Sx1 + 2)
    a(f"ds_write2_b64 v{vSwx}, v[44:45], v[46:47] offset0:0 offset1:16")
    cvt(92, Sm); cvt(93, Sm + 2)
    a(f"ds_write_b64 v{vSwm}, v[92:93]")
    stamp("swr")
    fill_v(4)
    a("s_waitcnt lgkmcnt(0)")
    stamp("swdone", True)
    a("s_barrier")
    stamp("bar2", True)
    a(f"ds_read_b128 v[72:75], v{vSrx}")
    a(f"ds_read_b128 v[80:83], v{vSrm}")
    a(f"ds_read_b128 v[76:79], v{vSrx} offset:256")
    ONES, HALF = 88, 92
    fill_v(3)
    a("s_waitcnt lgkmcnt(1)")
    mfma(32, SLo, 72, None)
    mfma(36, SelM, 80, None)
    a("s_waitcnt lgkmcnt(0)")
    mfma(32, SHi, 76, 32)
    a(f"ds_read_b128 {vr(ONES,4)}, v{vC} offset:768")
    a(f"ds_read_b64 {vr(HALF,2)}, v{vC} offset:1024")
    nomax = cfg.get("nomax", False)
    fill_v(2)
    stamp("sred")
    E = 72
    m, t = 46, 47
    def true_max():
        a(f"v_max3_f32 v{m}, v36, v37, v38")
        a(f"v_max3_f32 v{t}, v32, v33, v34")
        a(f"v_max3_f32 v{m}, v{m}, v39, v35")
        a(f"v_max_f32 v{m}, v{m}, v{t}")
        a(f"v_max_f32_dpp v{m}, v{m}, v{m} row_ror:8 row_mask:0xf bank_mask:0xf")
        xlane_g(a, "v_max_f32", m, t)
        a(f"v_mul_f32 v{m}, s{sC}, v{m}")
        for i in range(0, 8, 2):
            a(f"v_pk_fma_f32 {vr(E+i,2)}, {vr(32+i,2)}, s[{sC}:{sC+1}], {vr(m,2)} op_sel_hi:[1,1,0] neg_lo:[0,0,1] neg_hi:[0,0,1]")
    if nomax:
        for i in (4, 5, 6, 7, 0, 1, 2, 3):
            a(f"v_mul_f32 v{E+i}, s{sC}, v{32+i}")
        a(f"v_max3_f32 v{m}, abs(v{E+4}), abs(v{E+5}), abs(v{E+6})")
        a(f"v_max3_f32 v{t}, abs(v{E}), abs(v{E+1}), abs(v{E+2})")
        a(f"v_max3_f32 v{m}, v{m}, abs(v{E+7}), abs(v{E+3})")
        a(f"v_max_f32 v{m}, v{m}, v{t}")
        a(f"v_cmp_nlt_f32 vcc, v{m}, s{sLim}")
        a(f"v_exp_f32 v{E}, v{E}")
        if not cfg.get("nowait1") and not cfg.get("nowait2"): a(f"s_cbranch_vccnz L_chain_big{tag}")
        a.label(f"L_chain_bigok{tag}")
        for i in range(1, 8):
            a(f"v_exp_f32 v{E+i}, v{E+i}")
    else:
        true_max()
        for i in range(8):
            a(f"v_exp_f32 v{E+i}, v{E+i}")
    Bx, Pm, vp = 40, 44, 84
    cvt(Bx, E); cvt(Bx + 1, E + 2); cvt(Bx + 2, E); cvt(Bx + 3, E + 2)
    fill_v(1)
    assert not vq
    a(f"v_mov_b32_dpp v{Bx+2}, v{Bx} row_ror:8 row_mask:0xf bank_mask:0x3")
    a(f"v_mov_b32_dpp v{Bx+3}, v{Bx+1} row_ror:8 row_mask:0xf bank_mask:0x3")
    a(f"v_mov_b32_dpp v{Bx}, v{Bx} row_ror:8 row_mask:0xf bank_mask:0xc")
    a(f"v_mov_b32_dpp v{Bx+1}, v{Bx+1} row_ror:8 row_mask:0xf bank_mask:0xc")
    cvt(Pm, E + 4); cvt(Pm + 1, E + 6)
    stamp("pready")
    OF, WA, LS = 96, 112, 80
    def pack(U, scale):
        d = 32 + 4 * U; s = WA + 8 * U
        mul = lambda r, h: [f"v_mul_f32 v{r}, v{r}, v{LS+2*h}", f"v_mul_f32 v{r+1}, v{r+1}, v{LS+2*h+1}"] if scale else []
        return [mul(s, 0) + mul(s + 2, 1) + [f"v_cvt_pk_bf16_f32 v{d}, v{s}, v{s+1}", f"v_cvt_pk_bf16_f32 v{d+1}, v{s+2}, v{s+3}",
                 f"v_and_or_b32 v{d}, v{d}, -2, s{sTag}"],
                mul(s + 4, 0) + mul(s + 6, 1) + [f"v_cvt_pk_bf16_f32 v{d+2}, v{s+4}, v{s+5}", f"v_cvt_pk_bf16_f32 v{d+3}, v{s+6}, v{s+7}",
                 f"buffer_store_dwordx4 {vr(d,4)}, v{vX1s}, {W}, s{sX1a if U == 0 else sX1b} offen{st}"]]
    sal = [f"s_add_u32 s{sStep}, s{sStep}, 1", f"s_add_u32 s{sMemOff}, s{sMemOff}, 8192", f"s_xor_b32 s{sX2st}, s{sX2st}, 8192",
           f"s_xor_b32 s{sX2re}, s{sX2re}, 8192", f"s_xor_b32 s{sX2l}, s{sX2l}, 8192", f"s_mov_b32 s{sSPIN}, 0"]
    a("s_waitcnt lgkmcnt(0)")
    mfma(32, ONES, Bx, None)
    cvt(vp, vacc[0]); cvt(vp + 1, vacc[0] + 2)
    mfma(72, Vx, Bx, None)
    cvt(vp + 2, vacc[1]); cvt(vp + 3, vacc[1] + 2)
    mfma(76, Vx + 4, Bx, None)
    a(f"v_mov_b64 {vr(WA,2)}, 0"); a(f"v_mov_b64 {vr(WA+2,2)}, 0")
    mfma16(32, HALF, Pm, 32)
    a(f"v_mov_b64 {vr(WA+4,2)}, 0"); a(f"v_mov_b64 {vr(WA+6,2)}, 0")
    mfma16(72, vp, Pm, 72)
    a(f"v_mov_b64 {vr(WA+8,2)}, 0"); a(f"v_mov_b64 {vr(WA+10,2)}, 0")
    mfma16(76, vp + 2, Pm, 76)
    a(f"v_rcp_f32 v32, v32")
    a(f"v_mov_b64 {vr(WA+12,2)}, 0"); a(f"v_mov_b64 {vr(WA+14,2)}, 0")
    for i in range(4): a(f"v_mul_f32 v{72+i}, v{72+i}, v32")
    cvt(OF, 72); cvt(OF + 1, 74)
    for i in range(4): a(f"v_mul_f32 v{76+i}, v{76+i}, v32")
    cvt(OF + 2, 76); cvt(OF + 3, 78)
    a(f"v_cndmask_b32 v80, v{OF}, v{OF+2}, s[{sMaskHi}:{sMaskHi+1}]")
    a(f"v_cndmask_b32 v81, v{OF+1}, v{OF+3}, s[{sMaskHi}:{sMaskHi+1}]")
    a(f"ds_write_b64 v{vOw}, v[80:81]")
    stamp("owr")
    for ac in range(3):
        smf(WA + 4 * ac, OF, WO + ac * 32)
        a(f"v_xor_b32 v{82+ac}, {(ac+1)*512}, v{vOw}")
        a(f"v_and_b32 v{82+ac}, -16, v{82+ac}")
    a(f"s_waitcnt vmcnt({5 if rf else 4}) lgkmcnt(0)")
    stamp("owdone", True)
    a("s_barrier")
    stamp("bar3", True)
    for wp in range(1, 4):
        a(f"ds_read_b128 {vr(OF+4*wp,4)}, v{81+wp}")
    a(f"ds_read_b128 v[40:43], v{vC}")
    smf(WA + 12, OF, WO + 96)
    for x in sal: a(x)
    pk = pack(0, False) + pack(1, False)
    n = 0; side = []
    for ac in range(4):
        for wp in range(1, 4):
            if ac == 0: a(f"s_waitcnt lgkmcnt({4-wp})")
            smf(WA + 4 * ac, OF + 4 * wp, WO + (ac * 4 + wp) * 8)
            n += 1
            stamp(f"wo{n}", True)
            if n in (6, 9, 12): side += pk.pop(0)
            if side: a(side.pop(0))
    for x in side: a(x)
    for i in range(3):
        a(f"ds_read_b128 {vr(RING+4*i,4)}, v{vLdsW} offset:{(i>>2)*16384+(i&3)*1024}")
    for x in pk.pop(0): a(x)
    stamp("x1st")
    for i in range(3, 8):
        a(f"ds_read_b128 {vr(RING+4*i,4)}, v{vLdsW} offset:{(i>>2)*16384+(i&3)*1024}")
    a("s_waitcnt vmcnt(2)")
    a(f"v_add_u32 v{vT}, s{sKVL}, v{vL16}")
    for f in range(4):
        a(f"ds_read_b128 {vr(Kx+4*f,4)}, v{vT} offset:{f*1024}")
    if cfg.get("ack1"): a("s_waitcnt vmcnt(1)")
    pad(cfg.get("d1", 40))
    def x1_issue(r):
        a(f"buffer_load_dwordx4 {vr(r,4)}, v{vX1l}, {W}, s{sX1a} offen sc1")
        a(f"buffer_load_dwordx4 {vr(r+4,4)}, v{vX1l}, {W}, s{sX1a} offen offset:1024 sc1")
    def x1_check(r, n):
        a(f"s_waitcnt vmcnt({n+1})")
        mfma(104, 40, r, None)
        a(f"s_waitcnt vmcnt({n})")
        mfma(104, 40, r + 4, 104)
        a(f"v_bitop3_b32 v{vT}, v{r}, v{r+4}, s{sTag} bitop3:0x7e")
        a(f"v_and_b32 v{vT}, 1, v{vT}")
        a(f"v_cmp_ne_u32 vcc, 0, v{vT}")
    stamp("x1iss")
    x1_issue(96)
    a("s_waitcnt lgkmcnt(12)")
    if cfg.get("ack1"): a("s_waitcnt vmcnt(2)")
    if cfg.get("one1"):
        x1_check(96, 0)
    else:
        pad(cfg.get("g1", 35))
        x1_issue(112)
        x1_check(96, 2)
    if not cfg.get("nowait1"): a(f"s_cbranch_vccnz L_chain_x1b{tag}")
    a.label(f"L_chain_x1ok{tag}")
    stamp("x1ok")
    a(f"v_add_f32_dpp v104, v104, v104 row_ror:4 row_mask:0xf bank_mask:0xf")
    a(f"v_add_f32_dpp v105, v105, v105 row_ror:4 row_mask:0xf bank_mask:0xf")
    a(f"s_xor_b32 s{sTag}, s{sTag}, 1")
    a(f"v_add_f32_dpp v104, v104, v104 row_ror:8 row_mask:0xf bank_mask:0xf")
    a(f"v_add_f32_dpp v105, v105, v105 row_ror:8 row_mask:0xf bank_mask:0xf")
    a(f"v_cvt_pk_bf16_f32 v{vR}, v104, v105")
    a(f"v_min_u32 v{vR}, -2, v{vR}")
    a(f"buffer_store_dword v{vR}, v{vX2s}, {W}, s{sX2st} offen{st}")
    if cfg.get("count_redo"):
        a(f"s_lshl_b32 s{sT0}, s{sSPIN}, 16")
        a(f"s_add_u32 s31, s31, s{sT0}")
    if stamp.on:
        a(f"s_cmp_eq_u32 s{sStep}, {cfg.get('stamp_step', 40)}")
        a(f"s_cbranch_scc0 L_chain_loop{tag}")
        a("s_waitcnt lgkmcnt(0)")
        a(f"s_lshl_b32 s{sT0}, s{sMEMB}, 2")
        a(f"s_add_u32 s{sT0}, s{sT0}, s{sWAVE}")
        a(f"s_lshl_b32 s{sT1}, s{sLAY}, 7")
        a(f"s_add_u32 s{sT0}, s{sT0}, s{sT1}")
        a(f"s_lshl_b32 s{sT0}, s{sT0}, 6")
        a(f"s_add_u32 s{sT0}, s{sT0}, {OFF_STAMP:#x}")
        a(f"v_mov_b32 v108, 0")
        for i in range(stamp.n):
            a(f"v_mov_b32 v109, s{stamp.base+2*i}")
            a(f"buffer_store_dword v109, v108, {W}, s{sT0} offen offset:{4*i}")
        cfg["stamp_names"] = stamp.names
    a(f"s_branch L_chain_loop{tag}")
    a.label(f"L_chain_x1b{tag}")
    x1_issue(96)
    spin_tick(a)
    if cfg.get("one1"): x1_check(96, 0)
    else:
        x1_check(112, 2)
        a(f"s_cbranch_vccz L_chain_x1ok{tag}")
        x1_issue(112)
        spin_tick(a)
        x1_check(96, 2)
    a(f"s_cbranch_vccz L_chain_x1ok{tag}")
    a(f"s_branch L_chain_x1b{tag}")
    a.label(f"L_chain_x2b{tag}")
    x2_issue(A)
    spin_tick(a)
    zero_k()
    if cfg.get("one2"): x2_check(A, 0)
    else:
        x2_check(A + 8, 2)
        a(f"s_cbranch_vccz L_chain_x2c{tag}")
        x2_issue(A + 8)
        spin_tick(a)
        zero_k()
        x2_check(A, 2)
    a(f"s_cbranch_vccz L_chain_x2ok{tag}")
    a(f"s_branch L_chain_x2b{tag}")
    a.label(f"L_chain_x2c{tag}")
    for i in range(4):
        a(f"v_mov_b64 {vr(A+2*i,2)}, {vr(A+8+2*i,2)} ; sameval")
    a(f"s_branch L_chain_x2ok{tag}")
    if lateok:
        assert rf
        a.label(f"L_chain_late1{tag}")
        for f in range(4):
            a(f"buffer_load_dwordx4 {vr(Kx+4*f,4)}, v{vL16}, {W}, s{sKVc} offen offset:{f*1024} sc1")
        a(f"s_branch L_chain_late1r{tag}")
        a.label(f"L_chain_late2{tag}")
        spin_init(a)
        a("s_waitcnt vmcnt(4)")
        lab = a.newlab("L_kvl"); ok = a.newlab("L_kvlok")
        a.label(lab)
        a(f"v_bitop3_b32 v{vT}, v{Kx}, v{Kx+4}, s{sKT} bitop3:0x7e")
        a(f"v_bitop3_b32 v92, v{Kx+8}, v{Kx+12}, s{sKT} bitop3:0x7e")
        a(f"v_or_b32 v{vT}, v{vT}, v92")
        a(f"v_and_b32 v{vT}, 1, v{vT}")
        a(f"v_cmp_ne_u32 vcc, 0, v{vT}")
        a(f"s_cbranch_vccz {ok}")
        a("s_sleep 2")
        for f in range(4):
            a(f"buffer_load_dwordx4 {vr(Kx+4*f,4)}, v{vL16}, {W}, s{sKVc} offen offset:{f*1024} sc1")
        spin_tick(a)
        a("s_waitcnt vmcnt(0)")
        a(f"s_branch {lab}")
        a.label(ok)
        a(memst)
        a(f"s_branch L_chain_late2r{tag}")
    if nomax:
        a.label(f"L_chain_big{tag}")
        true_max()
        a(f"v_exp_f32 v{E}, v{E}")
        a(f"s_branch L_chain_bigok{tag}")
    a.label(f"L_chain_last{tag}")
    if cfg.get("count_redo"):
        a("s_memrealtime s[70:71]")
        a("s_memtime s[72:73]")
        a(f"s_lshl_b32 s{sT0}, s{sMEMB}, 2")
        a(f"s_add_u32 s{sT0}, s{sT0}, s{sWAVE}")
        a(f"s_lshl_b32 s{sT1}, s{sLAY}, 7")
        a(f"s_add_u32 s{sT0}, s{sT0}, s{sT1}")
        a(f"s_lshl_b32 s{sT0}, s{sT0}, 6")
        a(f"s_add_u32 s{sT0}, s{sT0}, {OFF_STAMP:#x}")
        a(f"v_mov_b32 v108, 0")
        a("s_waitcnt lgkmcnt(0)")
        a(f"s_sub_u32 s70, s70, s100")
        a(f"s_sub_u32 s72, s72, s98")
        for i, r in enumerate((72, 31, 70, 101)):
            a(f"v_mov_b32 v109, s{r}")
            a(f"buffer_store_dword v109, v108, {W}, s{sT0} offen offset:{48+4*i}")
    a(f"buffer_store_dword v{vR}, v{vX2s}, {W}, s{sMemOff} offen sc1")
    a("s_waitcnt vmcnt(0) lgkmcnt(0)")
    a("s_branch L_done")
    a.label(f"L_chain_kvwait{tag}")
    if cfg.get("count_redo"): a("s_add_u32 s31, s31, 0x4000000")
    spin_init(a)
    lab = a.newlab("L_kvspin")
    a.label(lab)
    for f in range(4):
        a(f"buffer_load_dwordx4 {vr(Kx+4*f,4)}, v{vL16}, {W}, s{sKV} offen offset:{f*1024} sc1")
    spin_tick(a)
    a("s_waitcnt vmcnt(0)")
    kv_check()
    a(f"s_cbranch_vccz L_chain_kvok{tag}")
    a("s_sleep 4")
    a(f"s_branch {lab}")
```

```python
from gen_common import *

W = f"s[{sWS}:{sWS+3}]"
vL16, vT, vT2, vFo, vOne, vRd = 1, 2, 3, 4, 5, 6
sSeg, sEnd, sFl, sSrc, sDst, sBuf, sLds, sC = 55, 56, 57, 58, 59, 60, 66, 96

def cvt(a, d, s): a(f"v_cvt_pk_bf16_f32 v{d}, v{s}, v{s+1}")
def mfma(a, d, x, y, c):
    a(f"v_mfma_f32_16x16x32_bf16 {vr(d,4)}, {xr(x,4)}, {xr(y,4)}, {vr(c,4) if c is not None else 0}")

def mfma32(a, d, x, y, first):
    a(f"v_mfma_f32_32x32x16_bf16 {vr(d,16)}, {xr(x,4)}, {vr(y,4)}, {0 if first else vr(d,16)}")

def tr32_addr(a, vTR, rowmul_hi):
    a(f"v_lshrrev_b32 v{vT}, 5, v0")
    a(f"v_mul_u32_u24 v{vTR}, {rowmul_hi*64}, v{vT}")
    a(f"v_bfe_u32 v{vT}, v0, 2, 2")
    a(f"v_lshl_add_u32 v{vTR}, v{vT}, 6, v{vTR}")
    a(f"v_bfe_u32 v{vT}, v0, 4, 1")
    a(f"v_lshl_add_u32 v{vTR}, v{vT}, 5, v{vTR}")
    a(f"v_and_b32 v{vT}, 1, v0")
    a(f"v_lshl_add_u32 v{vTR}, v{vT}, 4, v{vTR}")
    a(f"v_bfe_u32 v{vT}, v0, 1, 1")
    a(f"v_lshl_add_u32 v{vTR}, v{vT}, 3, v{vTR}")
    a(f"v_add_u32 v{vTR}, s{sLds}, v{vTR}")

def lane32_addr(a, vdst, mu, mhi, paired):
    a(f"v_bfe_u32 v{vT}, v0, 4, 1")
    a(f"v_mul_u32_u24 v{vdst}, {mu}, v{vT}")
    a(f"v_lshrrev_b32 v{vT}, 5, v0")
    a(f"v_mul_u32_u24 v{vT}, {mhi}, v{vT}")
    a(f"v_add_u32 v{vdst}, v{vdst}, v{vT}")
    if paired:
        a(f"v_bfe_u32 v{vT}, v0, 2, 2")
        a(f"v_lshl_add_u32 v{vdst}, v{vT}, 7, v{vdst}")
        a(f"v_and_b32 v{vT}, 3, v0")
    else:
        a(f"v_and_b32 v{vT}, 15, v0")
    a(f"v_lshl_add_u32 v{vdst}, v{vT}, 4, v{vdst}")

def common_start(a):
    a("v_and_b32 v0, 63, v0")
    a(f"v_lshlrev_b32 v{vL16}, 4, v0")
    a(f"s_lshl_b32 s{sLds}, s{sWAVE}, 15")
    a(f"v_mov_b32 v{vOne}, 1")
    a(f"s_lshl_b32 s{sSeg}, s{sLAY}, 6")
    a(f"s_add_u32 s{sEnd}, s{sSeg}, 64")
    a(f"s_mov_b32 s92, 0")
    a(f"s_mov_b32 s75, 0")
    a(f"s_lshl_b32 s94, s{sLAY}, 21")
    a(f"s_add_u32 s94, s94, {OFF_RING:#x}")

def both_modes(a, name, body, cfg, before=None):
    touch_ring(a, cfg)
    trace(a, cfg, 6, None, vT)
    if not cfg.get("noinit"): wait_init(a)
    else: a("s_barrier")
    if cfg.get("touch_flags", True):
        a(f"s_lshl_b32 s{sT0}, s{sMEMB}, 12")
        a(f"s_lshl_b32 s{sT1}, s{sWAVE}, 10")
        a(f"s_add_u32 s{sT0}, s{sT0}, s{sT1}")
        a(f"s_lshl_b32 s{sT1}, s{sLAY}, 17")
        a(f"s_add_u32 s{sT0}, s{sT0}, s{sT1}")
        a(f"buffer_load_dwordx4 v[100:103], v{vL16}, {W}, s{sT0} offen sc1")
        a("s_waitcnt vmcnt(0)")
    if before: before()
    if cfg.get("force_global"):
        a(f"s_branch L_{name}_G")
    else:
        a(f"s_cmp_eq_u32 s{sLOCAL}, 0")
        a(f"s_cbranch_scc1 L_{name}_G")
    for tag, st in (("L", ""), ("G", " sc1")):
        stamp = Stamps(a, cfg.get("stamp") == name and tag == "L", base=16 if name == "rc" else 4, only=cfg.get("only"))
        a.label(f"L_{name}_{tag}")
        stamp("top")
        a(f"s_lshl_b32 s{sFl}, s{sSeg}, 11")
        body(st, stamp)
        trace(a, cfg, 1, sSeg, vT)
        trace(a, cfg, 5, sSeg, vT)
        stamp("end")
        if stamp.on:
            lab = a.newlab("L_nost")
            a(f"s_and_b32 s{sT0}, s{sSeg}, 63")
            a(f"s_cmp_lg_u32 s{sT0}, {cfg.get('stamp_step', 20)}")
            a(f"s_cbranch_scc1 {lab}")
            def row():
                a(f"s_lshl_b32 s{sT0}, s{sGRP}, 7")
                a(f"s_lshl_b32 s{sT1}, s{sMEMB}, 2")
                a(f"s_add_u32 s{sT0}, s{sT0}, s{sT1}")
                a(f"s_add_u32 s{sT0}, s{sT0}, s{sWAVE}")
            dump_stamps(a, stamp, cfg, row)
            a.label(lab)
        a(f"s_add_u32 s{sSeg}, s{sSeg}, 1")
        a(f"s_cmp_lt_u32 s{sSeg}, s{sEnd}")
        a(f"s_cbranch_scc1 L_{name}_{tag}")
        a("s_waitcnt vmcnt(0)")
        a("s_branch L_done")

sPre, sFlN, vF = 92, 93, 13
sRing, sD0, sD1, sD2, sFlD, sPend = 94, 95, 64, 65, 67, 75
CFG = {}

def RB_(): return CFG.get('ring', 8)

def ring_off(a, dst, sg, part):
    a(f"s_and_b32 s{dst}, s{sg}, {(RB_() if part else 4)-1}")
    a(f"s_lshl_b32 s{dst}, s{dst}, 17")
    a(f"s_add_u32 s{dst}, s{dst}, s{sRing}")
    if part: a(f"s_add_u32 s{dst}, s{dst}, {part:#x}")

def touch_ring(a, cfg):
    R = (4 + RB_()) // 2
    a(f"s_mul_i32 s{sT0}, s{sMEMB}, {R*8192}")
    a(f"s_mul_i32 s{sT1}, s{sWAVE}, {R*2048}")
    a(f"s_add_u32 s{sT0}, s{sT0}, s{sT1}")
    a(f"s_add_u32 s{sT0}, s{sT0}, s{sRing}")
    for i in range(2 * R):
        if i and i % 4 == 0: a(f"s_add_u32 s{sT0}, s{sT0}, 4096")
        a(f"buffer_load_dwordx4 v[100:103], v{vL16}, {W}, s{sT0} offen offset:{(i%4)*1024} sc1")
    a("s_waitcnt vmcnt(0)")

def dma_ops(npiece, phase_bytes):
    NT = ' nt' if (npiece == 4 and CFG.get('nt_o', False)) else ''
    ops = []
    for ph in range(4):
        for i in range(npiece):
            x = []
            if i == 0:
                x.append(f"s_add_u32 m0, s{sD0}, {ph*phase_bytes}")
                x.append(f"s_add_u32 s{sD2}, s{sD1}, {ph*phase_bytes}")
            x.append(f"buffer_load_dwordx4 v{vL16}, {W}, s{sD2} offen offset:{i*1024} sc1{NT} lds")
            ops.append(x)
    return ops

def dma_setup(a, npiece):
    a(f"s_mul_i32 s{sT0}, s{sWAVE}, {npiece*1024}")
    a(f"s_add_u32 s{sD1}, s{sSrc}, s{sT0}")
    a(f"s_add_u32 s{sD0}, s{sBuf}, s{sT0}")

def guarded(a, ops):
    lab = a.newlab("L_g")
    a(f"s_cbranch_vccz {lab}")
    for x in ops: a(x)
    a.label(lab)

def stage_issue(a, npiece, phase_bytes):
    a(f"s_mul_i32 s{sT0}, s{sWAVE}, {npiece*1024}")
    a(f"s_add_u32 s{sT1}, s{sSrc}, s{sT0}")
    a(f"s_add_u32 s{sT0}, s{sBuf}, s{sT0}")
    for ph in range(4):
        a(f"s_add_u32 m0, s{sT0}, {ph*phase_bytes}")
        if ph: a(f"s_add_u32 s{sT1}, s{sT1}, {phase_bytes}")
        for i in range(npiece):
            a(f"buffer_load_dwordx4 v{vL16}, {W}, s{sT1} offen offset:{i*1024} sc1 lds")

def fetch_input(a, cfg, stamp, src_of, npiece, phase_bytes, bufsize, vbase, sFl=sFl):
    lab = a.newlab("L_pre")
    a(f"s_add_u32 s{sFlN}, s{sFl}, 2048")
    a(f"s_cmp_lg_u32 s{sPre}, 0")
    a(f"s_cbranch_scc1 {lab}")
    poll_flags(a, vT, vFo, sFl, sleep=CFG.get('psleep', 1))
    stamp("polled", True)
    src_of(sSeg)
    dma_setup(a, npiece)
    for x in dma_ops(npiece, phase_bytes)[:2 * npiece]:
        for y in x: a(y)
    a.label(lab)
    stamp("flag")
    trace(a, cfg, 0, sSeg, vT)
    a(f"v_add_u32 v{vRd}, s{sBuf}, v{vbase}")
    a(f"s_xor_b32 s{sBuf}, s{sBuf}, {bufsize}")

def resample():
    return f"buffer_load_dword v{vF}, v{vFo}, {W}, s{sFlN} offen sc1"

def finish(a, cfg, fl, st, nstore, npiece, phase_bytes, src_of):
    no = a.newlab('L_noE'); go = a.newlab('L_goE'); fin = a.newlab('L_fin')
    a(f's_mov_b32 s{sFlD}, s{sFl}')
    a(f's_mov_b32 s{sPend}, s{sPre}')
    a(f's_cmp_lg_u32 s{sPre}, 0')
    a(f"s_cbranch_scc1 {fin if CFG.get('pend', True) else no}")
    a(f's_waitcnt vmcnt({nstore})')
    a(f"v_cmp_eq_u32 vcc, 0, v{vF}")
    a(f"s_add_u32 s{sT2}, s{sSeg}, 1")
    a(f"s_cmp_ge_u32 s{sT2}, s{sEnd}")
    a(f"s_cbranch_scc1 {no}")
    a(f"s_cbranch_vccnz {no}")
    src_of(sT2)
    dma_setup(a, npiece)
    for x in dma_ops(npiece, phase_bytes)[:2 * npiece]:
        for y in x: a(y)
    a(f"s_mov_b32 s{sPre}, 1")
    a(f's_waitcnt vmcnt({2*npiece})')
    a(f"s_branch {go}")
    a.label(no)
    a('s_waitcnt vmcnt(0)')
    a.label(go)
    set_flag(a, vOne, sFl, fl, st)
    a.label(fin)

def gemm_phases(a, nks, npiece, extra, rdoffs, ring, step, src_of, phase_bytes, stamp, rs_at, nstore, fl, st, mid=True, nring=3):
    per = nks // 4
    def rd(ks):
        sl = ring + (ks % nring) * 8
        return [f"ds_read_b128 {vr(sl+4*u,4)}, v{vRd} offset:{rdoffs(ks,u)}" for u in range(2)]
    def kstep(ks, more):
        left = nks - 1 - ks
        a(f"s_waitcnt lgkmcnt({2 if left >= 1 else 0})")
        side = (rd(ks + 2) if left >= 2 else []) + more
        step(ks, ring + (ks % nring) * 8, side)
        assert not side
    if CFG.get('pend', True):
        lab = a.newlab("L_np")
        a(f"s_waitcnt vmcnt({npiece+nstore})")
        a(f"s_cmp_lg_u32 s{sPend}, 0")
        a(f"s_cbranch_scc1 {lab}")
    a(f"s_waitcnt vmcnt({npiece})")
    if CFG.get('pend', True): a.label(lab)
    stamp("w0", True)
    a("s_barrier")
    stamp("b0", True)
    for x in rd(0) + rd(1): a(x)
    dq = dma_ops(npiece, phase_bytes)[2 * npiece:]
    dec = CFG.get("dec%d" % nks, 3 * per - 2 if npiece == 2 else 20)
    ops = []
    def gate(q):
        last = max([k for k, x in enumerate(ops) if x == q], default=-1)
        a(f"s_waitcnt vmcnt({len(ops)-1-last})")
        if q == 1 and CFG.get('pend', True):
            lab = a.newlab("L_np")
            a(f"s_cmp_eq_u32 s{sPend}, 0")
            a(f"s_cbranch_scc1 {lab}")
            set_flag(a, vOne, sFlD, fl, st)
            a.label(lab)
        a("s_barrier")
        stamp(f"b{q}", True)
    def common(ks):
        more = []
        for q in (1, 2, 3):
            if ks == q * per - 2: gate(q)
        if dq:
            more.append("\n".join(dq.pop(0))); ops.append(2 + (2 * npiece - len(dq) - 1) // npiece)
        if ks == 2 * npiece:
            for x in extra: more.append(x); ops.append(None)
        return more
    if not mid:
        a(f"s_mov_b32 s{sPre}, 0")
        for ks in range(nks):
            more = common(ks)
            if ks == rs_at: more.append(resample()); ops.append(None)
            kstep(ks, more)
        return
    for ks in range(0, dec):
        more = common(ks)
        if ks == max(2 * npiece, dec - CFG.get('lead%d' % nks, 12 if npiece == 4 else 6)): more.append(resample()); ops.append(None)
        kstep(ks, more)
    no, end = a.newlab("L_Hn"), a.newlab("L_He")
    a("s_waitcnt vmcnt(0)")
    ops.clear()
    a(f"v_cmp_eq_u32 vcc, 0, v{vF}")
    a(f"s_mov_b32 s{sPre}, 0")
    a(f"s_add_u32 s{sT2}, s{sSeg}, 1")
    a(f"s_cmp_ge_u32 s{sT2}, s{sEnd}")
    a(f"s_cbranch_scc1 {no}")
    a(f"s_cbranch_vccnz {no}")
    src_of(sT2)
    dma_setup(a, npiece)
    a(f"s_mov_b32 s{sPre}, 1")
    stamp("dec", True)
    dn = dma_ops(npiece, phase_bytes)[:2 * npiece]
    for ks in range(dec, nks):
        more = []
        if ks == 3 * per - 2: a("s_barrier")
        if dn: more.append("\n".join(dn.pop(0)))
        kstep(ks, more)
    assert not dn
    a(f"s_branch {end}")
    a.label(no)
    for ks in range(dec, nks):
        if ks == 3 * per - 2: a("s_barrier")
        kstep(ks, [resample()] if ks == rs_at else [])
    a.label(end)

def natural_dma64(a, vdst, rowbytes):
    a(f"v_lshrrev_b32 v{vdst}, 2, v0")
    a(f"v_mul_u32_u24 v{vdst}, {rowbytes}, v{vdst}")
    a(f"v_and_b32 v{vT}, 3, v0")
    a(f"v_lshl_add_u32 v{vdst}, v{vT}, 4, v{vdst}")

def img_rd_addr(a, vdst):
    a(f"v_lshrrev_b32 v{vT}, 4, v0")
    a(f"v_lshlrev_b32 v{vT}, 9, v{vT}")
    a(f"v_and_b32 v{vdst}, 15, v0")
    a(f"v_lshl_add_u32 v{vdst}, v{vdst}, 4, v{vT}")

def img2_addr(a, vdst):
    a(f"v_lshrrev_b32 v{vT}, 5, v0")
    a(f"v_lshlrev_b32 v{vdst}, 10, v{vT}")
    a(f"v_bfe_u32 v{vT}, v0, 2, 2")
    a(f"v_lshl_add_u32 v{vdst}, v{vT}, 7, v{vdst}")
    a(f"v_bfe_u32 v{vT}, v0, 4, 1")
    a(f"v_lshl_add_u32 v{vdst}, v{vT}, 6, v{vdst}")
    a(f"v_and_b32 v{vT}, 3, v0")
    a(f"v_lshl_add_u32 v{vdst}, v{vT}, 4, v{vdst}")

sBias, sFlP = 78, 79
def credit_setup(a, vCr, off, n, R):
    a(f"s_mov_b32 s{sBias}, 0")
    a(f"v_and_b32 v{vCr}, {n-1}, v0")
    a(f"v_lshlrev_b32 v{vCr}, 2, v{vCr}")
    a(f"v_add_u32 v{vCr}, {off}, v{vCr}")
    a(f"v_add_u32 v{vT}, {R*2048}, v{vFo}")
    a(f"v_cmp_gt_u32 vcc, 32, v0")
    a(f"v_cndmask_b32 v{vCr}, v{vCr}, v{vT}, vcc")

def credit_switch(a, vCr, R):
    lab = a.newlab("L_nocr")
    a(f"s_and_b32 s{sT0}, s{sSeg}, 63")
    a(f"s_cmp_lg_u32 s{sT0}, {R-1}")
    a(f"s_cbranch_scc1 {lab}")
    a(f"v_mov_b32 v{vFo}, v{vCr}")
    a(f"s_mov_b32 s{sBias}, {R*2048}")
    a(f"s_sub_u32 s{sFlN}, s{sFlN}, {R*2048}")
    a.label(lab)

def role_ra(a, cfg):
    WT = 256
    vD, vTR, vSt, vCr = 96, 97, 7, 8
    sKs, sNs = 61, 62
    a.label("L_ra")
    common_start(a)
    a(f"s_lshr_b32 s{sKs}, s{sMEMB}, 2")
    a(f"s_and_b32 s{sNs}, s{sMEMB}, 3")
    natural_dma64(a, vD, 1024)
    tr32_addr(a, vTR, 4)
    a(f"s_lshl_b32 s{sT2}, s{sKs}, 20")
    a(f"s_lshl_b32 s{sT1}, s{sNs}, 8")
    a(f"s_add_u32 s{sT2}, s{sT2}, s{sT1}")
    a(f"s_lshl_b32 s{sT1}, s{sWAVE}, 6")
    a(f"s_add_u32 s{sT2}, s{sT2}, s{sT1}")
    set_srd(a, sWT, sWO, 0x400000)
    late_start(a, cfg)
    chunks = []
    for ch in range(16):
        def setup(ch=ch): a(f"s_add_u32 s{sT0}, s{sT2}, {ch*65536}")
        def consume(so, ch=ch):
            for e in range(2):
                for hh in range(2):
                    for jh in range(2):
                        a(f"ds_read_b64_tr_b16 {xr(WT+((2*ch+e)*2+hh)*4+2*jh,2)}, v{vTR} offset:{so+(32*e+16*jh+8*hh)*64}")
            a("s_waitcnt lgkmcnt(0)")
        chunks.append(dict(setup=setup, vdma=vD, dstep=16384, consume=consume))
    load_chunks(a, chunks, sLds)
    a(f"v_and_b32 v{vFo}, 31, v0")
    a(f"v_lshlrev_b32 v{vFo}, 2, v{vFo}")
    a(f"s_lshl_b32 s{sT0}, s{sKs}, 7")
    a(f"s_add_u32 s{sT0}, s{sT0}, {F_O}")
    a(f"v_add_u32 v{vFo}, s{sT0}, v{vFo}")
    credit_setup(a, vCr, F_XNB, 8, 4)
    lane32_addr(a, vSt, 512, 64, True)
    lane32_addr(a, 9, 1024, 256, False)
    a(f"s_lshl_b32 s{sT0}, s{sNs}, 13")
    a(f"s_lshl_b32 s{sT1}, s{sWAVE}, 11")
    a(f"s_add_u32 s{sT0}, s{sT0}, s{sT1}")
    a(f"s_lshl_b32 s{sT1}, s{sKs}, 15")
    a(f"s_add_u32 s{sT0}, s{sT0}, s{sT1}")
    a(f"v_add_u32 v{vSt}, s{sT0}, v{vSt}")
    a(f"s_mov_b32 s{sBuf}, 0")
    ACC, RING = 16, 32
    def body(st, stamp):
        def src_of(sg):
            a(f"s_lshl_b32 s{sSrc}, s{sg}, 18")
            a(f"s_lshl_b32 s{sT0}, s{sKs}, 16")
            a(f"s_add_u32 s{sSrc}, s{sSrc}, s{sT0}")
            a(f"s_add_u32 s{sSrc}, s{sSrc}, {OFF_O:#x}")
        a(f"s_sub_u32 s{sFlP}, s{sFl}, s{sBias}")
        fetch_input(a, cfg, stamp, src_of, 4, 16384, 0x10000, 9, sFlP)
        credit_switch(a, vCr, 4)
        ring_off(a, sDst, sSeg, R_PART)
        a(f"s_lshl_b32 s{sT0}, s{sMEMB}, 2")
        a(f"s_add_u32 s{sT0}, s{sT0}, s{sWAVE}")
        a(f"s_lshl_b32 s{sT0}, s{sT0}, 2")
        a(f"s_add_u32 s{sFl}, s{sFl}, s{sT0}")
        def step(ks, fr, side):
            for hh in range(2):
                mfma32(a, ACC, WT + (ks * 2 + hh) * 4, fr + 4 * hh, ks == 0 and hh == 0)
                for _ in range(3):
                    if side: a(side.pop(0))
        gemm_phases(a, 32, 4, [], lambda ks, u: ks * 2048 + u * 512, RING, step, src_of, 16384, stamp, CFG.get('rs_ra', 27), 2, F_PART, st)
        stamp("gemm")
        for u in range(2):
            for i in range(4): cvt(a, 56 + 4 * u + i, ACC + u * 8 + 2 * i)
            a(f"buffer_store_dwordx4 {vr(56+4*u,4)}, v{vSt}, {W}, s{sDst} offen offset:{u*1024}{st}")
        finish(a, cfg, F_PART, st, 2, 4, 16384, src_of)
    both_modes(a, "ra", body, cfg)

def role_rc(a, cfg):
    WT = 256
    vD, vTR, vNeg, vRb = 96, 97, 7, 8
    sHb, sMask, sPrevOK = 61, 76, 62
    a.label("L_rc")
    common_start(a)
    a(f"s_sub_u32 s{sHb}, s{sMEMB}, 16")
    a(f"s_lshl_b32 s{sHb}, s{sHb}, 2")
    a(f"s_add_u32 s{sHb}, s{sHb}, s{sWAVE}")
    a(f"v_lshrrev_b32 v{vD}, 1, v0")
    a(f"v_mul_u32_u24 v{vD}, 3072, v{vD}")
    a(f"v_and_b32 v{vT}, 1, v0")
    a(f"v_lshl_add_u32 v{vD}, v{vT}, 4, v{vD}")
    a(f"v_lshrrev_b32 v{vT}, 4, v0")
    a(f"v_lshlrev_b32 v{vTR}, 8, v{vT}")
    a(f"v_bfe_u32 v{vT}, v0, 2, 2")
    a(f"v_lshl_add_u32 v{vTR}, v{vT}, 5, v{vTR}")
    a(f"v_and_b32 v{vT}, 3, v0")
    a(f"v_lshl_add_u32 v{vTR}, v{vT}, 3, v{vTR}")
    a(f"v_add_u32 v{vTR}, s{sLds}, v{vTR}")
    a(f"s_lshl_b32 s{sT2}, s{sHb}, 5")
    set_srd(a, sWT, sWB, 512 * 3072)
    late_start(a, cfg)
    chunks = []
    for mm in range(3):
        for ch in range(4):
            def setup(mm=mm, ch=ch): a(f"s_add_u32 s{sT0}, s{sT2}, {128*ch*3072 + mm*1024}")
            def consume(so, mm=mm, ch=ch):
                for e in range(4):
                    for jh in range(2):
                        a(f"ds_read_b64_tr_b16 {xr(WT+((4*ch+e)*3+mm)*4+2*jh,2)}, v{vTR} offset:{so+(32*e+4*jh)*32}")
                a("s_waitcnt lgkmcnt(0)")
            chunks.append(dict(setup=setup, vdma=vD, dstep=32 * 3072, consume=consume))
    load_chunks(a, chunks, sLds)
    a(f"v_and_b32 v{vFo}, 7, v0")
    a(f"v_lshlrev_b32 v{vFo}, 2, v{vFo}")
    a(f"v_add_u32 v{vFo}, {F_XNB}, v{vFo}")
    img_rd_addr(a, vRb)
    a(f"v_mov_b32 v{vNeg}, {fbits(-1e9 * 4):#x}")
    a(f"s_mov_b32 s{sC}, {fbits(0.25*1.4426950408889634):#x}")
    a(f"s_mov_b32 s{sC+1}, s{sC}")
    a("v_and_b32 v96, 15, v0")
    a("v_lshrrev_b32 v97, 4, v0")
    a("v_lshlrev_b32 v97, 2, v97")
    for r in range(4):
        a(f"v_add_u32 v98, {r}, v97")
        a(f"v_add_u32 v99, 9, v96")
        a(f"v_cmp_ge_u32 s[{sMask+2*r}:{sMask+2*r+1}], v98, v99")
        a(f"v_sub_u32 v99, v96, v98")
        a(f"v_cmp_ge_u32 s[{sMask+8+2*r}:{sMask+8+2*r+1}], 7, v99")
    KP, VP = (16, 20), (24, 28)
    for r in range(16, 32): a(f"v_mov_b32 v{r}, 0")
    a(f"s_mov_b32 s{sBuf}, 0")
    sPM = 8
    for r in range(4): a(f"s_mov_b64 s[{sPM+2*r}:{sPM+2*r+1}], 0")
    RING, ACC = 32, 56
    def body(st, stamp):
        def src_of(sg):
            ring_off(a, sSrc, sg, R_XNB)
        fetch_input(a, cfg, stamp, src_of, 2, 8192, 0x8000, vRb)
        ring_off(a, sDst, sSeg, R_OB)
        a(f"s_lshl_b32 s{sT0}, s{sHb}, 10")
        a(f"s_add_u32 s{sDst}, s{sDst}, s{sT0}")
        a(f"s_lshl_b32 s{sT0}, s{sHb}, 2")
        a(f"s_add_u32 s{sFl}, s{sFl}, s{sT0}")
        acc = lambda mm, p: ACC + (p * 3 + mm) * 4
        FR = 128
        wq, wk, wv = (lambda ks: WT + ks * 12), (lambda ks: WT + ks * 12 + 4), (lambda ks: WT + ks * 12 + 8)
        def step(ks, fr, side):
            c = lambda x: None if ks == 0 else x
            mfma(a, acc(0, 0), wq(ks), fr, c(acc(0, 0)))
            for _ in range(2):
                if side: a(side.pop(0))
            mfma(a, acc(1, 0), wk(ks), fr, c(acc(1, 0)))
            if side: a(side.pop(0))
            mfma(a, acc(2, 0), fr, wv(ks), c(acc(2, 0)))
            for _ in range(2):
                if side: a(side.pop(0))
        gemm_phases(a, 16, 2, [], lambda ks, u: ks * 2048 + u * 256, FR, step, src_of, 8192, stamp, 99, 1, F_OB, st, mid=False, nring=16)
        stamp("gemm")
        Q = (80, 82); S = (96, 104); B = (84, 88); O = (112, 116); M = (92, 94)
        def xl(op, p):
            out = []
            for sw in ("v_permlane16_swap_b32", "v_permlane32_swap_b32"):
                out += [f"v_mov_b32 v{M[p]+1}, v{M[p]}", None, f"{sw} v{M[p]}, v{M[p]+1}", f"{op} v{M[p]}, v{M[p]}, v{M[p]+1}"]
            return out
        def softmax(p):
            sm = [None] * 3
            sm += [f"v_cvt_pk_bf16_f32 v{Q[p]}, v{acc(0,p)}, v{acc(0,p)+1}", f"v_cvt_pk_bf16_f32 v{Q[p]+1}, v{acc(0,p)+2}, v{acc(0,p)+3}",
                   f"v_cvt_pk_bf16_f32 v{KP[p]+2}, v{acc(1,p)}, v{acc(1,p)+1}", f"v_cvt_pk_bf16_f32 v{KP[p]+3}, v{acc(1,p)+2}, v{acc(1,p)+3}", None,
                   f"v_mfma_f32_16x16x16_bf16 {vr(S[p],4)}, {vr(KP[p],2)}, {vr(Q[p],2)}, 0",
                   f"v_mfma_f32_16x16x16_bf16 {vr(S[p]+4,4)}, {vr(KP[p]+2,2)}, {vr(Q[p],2)}, 0",
                   f"v_mov_b64 {vr(KP[p],2)}, {vr(KP[p]+2,2)}", None, None]
            sm += [f"v_cndmask_b32 v{S[p]+r}, v{vNeg}, v{S[p]+r}, s[{sPM+2*r}:{sPM+2*r+1}]" for r in range(4)]
            sm += [f"v_cndmask_b32 v{S[p]+4+r}, v{vNeg}, v{S[p]+4+r}, s[{sMask+8+2*r}:{sMask+8+2*r+1}]" for r in range(4)]
            sm += [f"v_max3_f32 v{M[p]}, v{S[p]}, v{S[p]+1}, v{S[p]+2}", f"v_max3_f32 v{M[p]}, v{M[p]}, v{S[p]+3}, v{S[p]+4}",
                   f"v_max3_f32 v{M[p]}, v{M[p]}, v{S[p]+5}, v{S[p]+6}", f"v_max_f32 v{M[p]}, v{M[p]}, v{S[p]+7}"]
            sm += xl("v_max_f32", p)
            sm += [f"v_mul_f32 v{M[p]}, s{sC}, v{M[p]}"]
            sm += [f"v_fma_f32 v{S[p]+i}, v{S[p]+i}, s{sC}, -v{M[p]}" for i in range(8)]
            sm += [f"v_exp_f32 v{S[p]+i}, v{S[p]+i}" for i in range(8)]
            sm += [f"v_cvt_pk_bf16_f32 v{B[p]+i}, v{S[p]+2*i}, v{S[p]+2*i+1}" for i in range(4)]
            return sm
        def rsum(p):
            out = []
            for d in (4, 2, 1):
                for i in range(d): out.append(f"v_add_f32 v{S[p]+i if d > 1 else M[p]}, v{S[p]+i}, v{S[p]+i+d}")
            return out + xl("v_add_f32", p) + [f"v_rcp_f32 v{M[p]}, v{M[p]}"]
        def vpack(p): return [f"v_cvt_pk_bf16_f32 v{VP[p]+2}, v{acc(2,p)}, v{acc(2,p)+1}", f"v_cvt_pk_bf16_f32 v{VP[p]+3}, v{acc(2,p)+2}, v{acc(2,p)+3}"]
        def weave(mfmas, side, rate):
            for m_ in mfmas:
                mfma(a, *m_)
                for _ in range(rate):
                    if side:
                        x = side.pop(0)
                        if x: a(x)
        side = softmax(0) + vpack(0)
        mm = []
        for ks in range(16):
            c = lambda x: None if ks == 0 else x
            mm += [(acc(0, 1), wq(ks), FR + 8 * ks + 4, c(acc(0, 1))), (acc(1, 1), wk(ks), FR + 8 * ks + 4, c(acc(1, 1)))]
        weave(mm, side, 2)
        for x in side:
            if x: a(x)
        a(resample())
        side = rsum(0)[:3] + softmax(1)[3:]
        mm = [(acc(2, 1), FR + 8 * ks + 4, wv(ks), None if ks == 0 else acc(2, 1)) for ks in range(16)]
        weave([(O[0], VP[0], B[0], None)] + mm, side, 3)
        for x in side + vpack(1) + rsum(0)[3:7]:
            if x: a(x)
        mfma(a, O[1], VP[1], B[1], None)
        r0, r1 = rsum(0)[7:], rsum(1)
        for x in r1[:7]: a(x)
        for x, y in zip(r0, r1[7:]):
            if x: a(x)
            if y: a(y)
        for p in range(2): a(f"v_mov_b64 {vr(VP[p],2)}, {vr(VP[p]+2,2)}")
        for r in range(4): a(f"s_mov_b64 s[{sPM+2*r}:{sPM+2*r+1}], s[{sMask+2*r}:{sMask+2*r+1}]")
        for p in range(2):
            a(f"v_pk_mul_f32 {vr(O[p],2)}, {vr(O[p],2)}, {vr(M[p],2)} op_sel_hi:[1,0]")
            a(f"v_pk_mul_f32 {vr(O[p]+2,2)}, {vr(O[p]+2,2)}, {vr(M[p],2)} op_sel_hi:[1,0]")
        for p in range(2):
            cvt(a, 80 + 2 * p, O[p]); cvt(a, 81 + 2 * p, O[p] + 2)
        a("v_permlane16_swap_b32 v80, v82")
        a("v_permlane16_swap_b32 v81, v83")
        a(f"buffer_store_dwordx4 v[80:83], v{vL16}, {W}, s{sDst} offen{st}")
        stamp("attn")
        finish(a, cfg, F_OB, st, 1, 2, 8192, src_of)
    both_modes(a, "rc", body, cfg)

def role_rd(a, cfg):
    WT = 256
    vD, vTR, vRb, vX1, vSt0, vSt1 = 96, 97, 8, 9, 10, 11
    sMd, sOb, sX1o, sOm, sOs = 61, 62, 63, 76, 77
    a.label("L_rd")
    common_start(a)
    a(f"s_sub_u32 s{sMd}, s{sMEMB}, 24")
    a(f"s_lshl_b32 s{sMd}, s{sMd}, 2")
    a(f"s_add_u32 s{sMd}, s{sMd}, s{sWAVE}")
    natural_dma64(a, vD, 1024)
    tr32_addr(a, vTR, 8)
    a(f"s_lshl_b32 s{sT2}, s{sMd}, 6")
    set_srd(a, sWT, sWBO, 0x80000)
    late_start(a, cfg)
    chunks = []
    for ch in range(8):
        def setup(ch=ch): a(f"s_add_u32 s{sT0}, s{sT2}, {ch*65536}")
        def consume(so, ch=ch):
            for e in range(2):
                for hh in range(2):
                    for jh in range(2):
                        a(f"ds_read_b64_tr_b16 {xr(WT+((2*ch+e)*2+hh)*4+2*jh,2)}, v{vTR} offset:{so+(32*e+16*hh+4*jh)*64}")
            a("s_waitcnt lgkmcnt(0)")
        chunks.append(dict(setup=setup, vdma=vD, dstep=16384, consume=consume))
    load_chunks(a, chunks, sLds)
    a(f"v_and_b32 v{vFo}, 31, v0")
    a(f"v_lshlrev_b32 v{vFo}, 2, v{vFo}")
    a(f"v_add_u32 v{vFo}, {F_OB}, v{vFo}")
    a(f"s_cmp_eq_u32 s{sLAY}, 0")
    a(f"s_mov_b32 s{sT1}, {F_OB}")
    a(f"s_cselect_b32 s{sT1}, {64*2048+F_XN}, s{sT1}")
    credit_setup(a, 12, f"s{sT1}", 8, RB_())
    lane32_addr(a, vRb, 256, 512, False)
    a(f"s_lshl_b32 s{sT0}, s{sMd}, 11")
    a(f"v_add_u32 v{vX1}, s{sT0}, v{vRb}")
    a(f"s_cmp_eq_u32 s{sLAY}, 0")
    a("s_cbranch_scc1 L_rd_l0")
    set_srd(a, sIN, sOUT, 0x200000)
    a(f"s_mov_b32 s{sOb}, 0")
    a(f"s_mov_b32 s{sOm}, 63")
    a(f"s_mov_b32 s{sOs}, 15")
    a(f"v_and_b32 v{vT}, 15, v0")
    a(f"v_lshlrev_b32 v{vSt0}, 11, v{vT}")
    a(f"v_bfe_u32 v{vT}, v0, 4, 1")
    a(f"v_lshl_add_u32 v{vSt0}, v{vT}, 10, v{vSt0}")
    a(f"v_lshrrev_b32 v{vT}, 5, v0")
    a(f"v_lshl_add_u32 v{vSt0}, v{vT}, 4, v{vSt0}")
    a(f"s_lshl_b32 s{sT0}, s{sMd}, 6")
    a(f"v_add_u32 v{vSt0}, s{sT0}, v{vSt0}")
    a(f"v_add_u32 v{vSt1}, 32, v{vSt0}")
    a("s_branch L_rd_go")
    a.label("L_rd_l0")
    set_srd(a, sIN, sWSP, WS_BYTES)
    a(f"s_add_u32 s{sOb}, s{sRing}, {R_X2:#x}")
    a(f"s_mov_b32 s{sOm}, {RB_()-1}")
    a(f"s_mov_b32 s{sOs}, 17")
    lane32_addr(a, vSt0, 512, 64, True)
    a(f"s_lshl_b32 s{sT0}, s{sMd}, 11")
    a(f"v_add_u32 v{vSt0}, s{sT0}, v{vSt0}")
    a(f"v_add_u32 v{vSt1}, 1024, v{vSt0}")
    a.label("L_rd_go")
    a(f"s_mov_b32 s{sBuf}, 0")
    ACC, RING, XR = 16, 32, 56
    def body(st, stamp):
        def src_of(sg):
            ring_off(a, sSrc, sg, R_OB)
        a(f"s_sub_u32 s{sFlP}, s{sFl}, s{sBias}")
        fetch_input(a, cfg, stamp, src_of, 2, 8192, 0x8000, vRb, sFlP)
        credit_switch(a, 12, RB_())
        ring_off(a, sX1o, sSeg, R_X1)
        extra = [f"buffer_load_dwordx4 {vr(XR+4*u,4)}, v{vX1}, {W}, s{sX1o} offen offset:{u*1024} sc1" for u in range(2)]
        a(f"s_and_b32 s{sDst}, s{sSeg}, s{sOm}")
        a(f"s_lshl_b32 s{sDst}, s{sDst}, s{sOs}")
        a(f"s_add_u32 s{sDst}, s{sDst}, s{sOb}")
        a(f"s_lshl_b32 s{sT0}, s{sMd}, 2")
        a(f"s_add_u32 s{sFl}, s{sFl}, s{sT0}")
        def step(ks, fr, side):
            for hh in range(2):
                mfma32(a, ACC, WT + (ks * 2 + hh) * 4, fr + 4 * hh, ks == 0 and hh == 0)
                for _ in range(3):
                    if side: a(side.pop(0))
        gemm_phases(a, 16, 2, extra, lambda ks, u: ks * 2048 + u * 1024, RING, step, src_of, 8192, stamp, CFG.get('rs_rd', 11), 2, F_X2, st, mid=False)
        stamp("gemm")
        a("s_waitcnt vmcnt(1)")
        for i in range(8):
            a(f"v_lshlrev_b32 v{64+2*i}, 16, v{XR+i}")
            a(f"v_and_b32 v{65+2*i}, 0xffff0000, v{XR+i}")
        for i in range(8):
            cvt(a, 80 + i, ACC + 2 * i)
        for i in range(8):
            a(f"v_lshlrev_b32 v{ACC+2*i}, 16, v{80+i}")
            a(f"v_and_b32 v{ACC+2*i+1}, 0xffff0000, v{80+i}")
        for i in range(8):
            a(f"v_pk_add_f32 {vr(ACC+2*i,2)}, {vr(ACC+2*i,2)}, {vr(64+2*i,2)}")
        for u in range(2):
            for i in range(4): cvt(a, 80 + 4 * u + i, ACC + 8 * u + 2 * i)
            a(f"buffer_store_dwordx4 {vr(80+4*u,4)}, v{(vSt0, vSt1)[u]}, s[{sIN}:{sIN+3}], s{sDst} offen{st}")
        if cfg.get("rd_copy", True):
            def copy(cond):
                lab = a.newlab("L_nocp")
                a(f"s_cmp_{cond}_u32 s{sSeg}, 63")
                a(f"s_cbranch_scc0 {lab}")
                a(f"s_lshl_b32 s{sX1o}, s{sSeg}, 15")
                a(f"s_add_u32 s{sX1o}, s{sX1o}, {OFF_X2R:#x}")
                for u in range(2):
                    a(f"buffer_store_dwordx4 {vr(80+4*u,4)}, v{(vSt0, vSt1)[u]}, {W}, s{sX1o} offen sc1")
                a.label(lab)
            copy("eq")
        finish(a, cfg, F_X2, st, 2, 2, 8192, src_of)
        if cfg.get("rd_copy", True): copy("lt")
    both_modes(a, "rd", body, cfg)

def row_reduce(a, r, t):
    a(f"v_add_f32_dpp v{r}, v{r}, v{r} row_ror:4 row_mask:0xf bank_mask:0xf")
    a(f"v_add_f32_dpp v{r}, v{r}, v{r} row_ror:8 row_mask:0xf bank_mask:0xf")
    xlane_g(a, "v_add_f32", r, t)

def rnd_bf16(a, r):
    a(f"v_cvt_pk_bf16_f32 v{r}, v{r}, v{r}")
    a(f"v_and_b32 v{r}, 0xffff0000, v{r}")

def layernorm(a, X, T, between=()):
    m, t, s, t2 = T, T + 2, T + 4, T + 6
    between = list(between)
    a(f"v_pk_add_f32 {vr(m,2)}, {vr(X,2)}, {vr(X+2,2)}")
    a(f"v_pk_mul_f32 {vr(s,2)}, {vr(X,2)}, {vr(X,2)}")
    a(f"v_pk_fma_f32 {vr(s,2)}, {vr(X+2,2)}, {vr(X+2,2)}, {vr(s,2)}")
    for i in range(4, 32, 2):
        a(f"v_pk_add_f32 {vr(m,2)}, {vr(m,2)}, {vr(X+i,2)}")
        a(f"v_pk_fma_f32 {vr(s,2)}, {vr(X+i,2)}, {vr(X+i,2)}, {vr(s,2)}")
    a(f"v_add_f32 v{m}, v{m}, v{m+1}")
    a(f"v_add_f32 v{s}, v{s}, v{s+1}")
    def gap():
        if between: a(between.pop(0))
    for ror in (4, 8):
        gap()
        a(f"v_add_f32_dpp v{m}, v{m}, v{m} row_ror:{ror} row_mask:0xf bank_mask:0xf")
        a(f"v_add_f32_dpp v{s}, v{s}, v{s} row_ror:{ror} row_mask:0xf bank_mask:0xf")
    for sw in ("v_permlane16_swap_b32", "v_permlane32_swap_b32"):
        a(f"v_mov_b32 v{t}, v{m}")
        a(f"v_mov_b32 v{t2}, v{s}")
        gap()
        a(f"{sw} v{m}, v{t}")
        a(f"{sw} v{s}, v{t2}")
        a(f"v_add_f32 v{m}, v{m}, v{t}")
        a(f"v_add_f32 v{s}, v{s}, v{t2}")
    a(f"v_mul_f32 v{m}, {fbits(1/512):#x}, v{m}")
    a(f"v_mul_f32 v{s}, {fbits(1/512):#x}, v{s}")
    a(f"v_fma_f32 v{s}, -v{m}, v{m}, v{s}")
    a(f"v_max_f32 v{s}, 0, v{s}")
    rnd_bf16(a, m)
    rnd_bf16(a, s)
    a(f"v_add_f32 v{s}, {fbits(1e-5):#x}, v{s}")
    rnd_bf16(a, s)
    a(f"v_sqrt_f32 v{s}, v{s}")
    gap()
    rnd_bf16(a, s)
    a(f"v_rcp_f32 v{s}, v{s}")
    for x in between: a(x)
    a(f"v_mul_f32 v{m}, v{m}, v{s}")
    for i in range(0, 32, 2):
        a(f"v_pk_fma_f32 {vr(X+i,2)}, {vr(X+i,2)}, {vr(s,2)}, {vr(m,2)} op_sel_hi:[1,0,0] neg_lo:[0,0,1] neg_hi:[0,0,1]")

def unpack(a, dst, src, n):
    for i in range(n):
        a(f"v_lshlrev_b32 v{dst+2*i}, 16, v{src+i}")
        a(f"v_and_b32 v{dst+2*i+1}, 0xffff0000, v{src+i}")

def rows_setup(a, sWb):
    c_, gi = 96, 97
    a(f"s_and_b32 s{sT0}, s{sWb}, 1")
    a(f"s_lshr_b32 s{sT1}, s{sWb}, 1")
    a(f"s_lshl_b32 s{sT1}, s{sT1}, 2")
    a(f"v_and_b32 v{c_}, 3, v0")
    a(f"v_add_u32 v{c_}, s{sT1}, v{c_}")
    a(f"v_lshrrev_b32 v{gi}, 2, v0")
    a(f"s_lshl_b32 s{sT1}, s{sT0}, 8")
    a(f"v_lshl_add_u32 v98, v{c_}, 4, s{sT1}")
    a(f"s_lshl_b32 s{sT1}, s{sT0}, 10")
    a(f"v_lshl_add_u32 v99, v{c_}, 11, s{sT1}")
    a(f"s_lshl_b32 s{sT1}, s{sT0}, 9")
    a(f"s_lshr_b32 s{sT2}, s{sWb}, 1")
    a(f"s_lshl_b32 s{sT2}, s{sT2}, 7")
    a(f"s_add_u32 s{sT1}, s{sT1}, s{sT2}")
    a(f"v_and_b32 v102, 7, v0")
    a(f"v_lshl_add_u32 v102, v102, 4, s{sT1}")

def xn_store_addr(a, vP):
    a(f"s_lshl_b32 s{sT1}, s{sT0}, 10")
    a(f"v_lshl_add_u32 v{vP}, v96, 4, s{sT1}")
    a(f"v_lshl_add_u32 v{vP}, v97, 11, v{vP}")

def ln_to_xn(a, X, T, R, P, vP):
    unpack(a, X, R, 16)
    layernorm(a, X, T)
    for g in range(4):
        for dj in range(4):
            half = dj & 1; jh = dj >> 1
            e = 4 * (g >> 1) + 2 * (g & 1) + jh
            a(f"v_cvt_pk_bf16_f32 v{P+4*g+dj}, v{X+8*half+e}, v{X+8*(2+half)+e}")
        a(f"buffer_store_dwordx4 {vr(P+4*g,4)}, v{vP}, {W}, s{sDst} offen offset:{g*256} sc1")

def ln0(a, cfg):
    sWb, sU = 61, 62
    vA, vP = 8, 12
    X, T, P, R = 16, 48, 128, 144
    a(f"s_cmp_eq_u32 s{sLAY}, 0")
    a("s_cbranch_scc1 L_ln0_done")
    a("v_and_b32 v0, 63, v0")
    a(f"v_mov_b32 v{vOne}, 1")
    a(f"s_lshl_b32 s{sU}, s{sMEMB}, 2")
    a(f"s_add_u32 s{sU}, s{sU}, s{sWAVE}")
    a(f"s_and_b32 s{sWb}, s{sU}, 7")
    a(f"s_lshr_b32 s{sU}, s{sU}, 3")
    rows_setup(a, sWb)
    xn_store_addr(a, vP)
    a(f"v_lshrrev_b32 v100, 1, v97")
    a(f"v_and_b32 v101, 1, v97")
    a(f"v_lshl_add_u32 v100, v100, 3, v101")
    a(f"v_lshl_add_u32 v{vA}, v100, 4, v99")
    set_srd(a, sIN, sX, 0x200000)
    a(f"s_lshl_b32 s{sT0}, s{sU}, 15")
    for k in range(4):
        if k: a(f"s_add_u32 s{sT0}, s{sT0}, {16 << 15}")
        for q in range(4):
            a(f"buffer_load_dwordx4 {vr(R+16*k+4*q,4)}, v{vA}, s[{sIN}:{sIN+3}], s{sT0} offen offset:{q*32}")
    trace(a, cfg, 2, None, vT)
    if not cfg.get("noinit"): wait_init(a)
    trace(a, cfg, 3, None, vT)
    a(f"s_lshl_b32 s{sDst}, s{sU}, 15")
    a(f"s_add_u32 s{sDst}, s{sDst}, {OFF_XN:#x}")
    a(f"s_lshl_b32 s{sFl}, s{sU}, 11")
    a(f"s_lshl_b32 s{sT0}, s{sWb}, 2")
    a(f"s_add_u32 s{sFl}, s{sFl}, s{sT0}")
    a(f"s_mov_b32 s{sU}, 0")
    a("s_waitcnt vmcnt(0)")
    a(f"v_lshrrev_b32 v100, 1, v97")
    a(f"v_lshl_add_u32 v{vA}, v100, 12, v102")
    a.label("L_ln0_loop")
    a(f"s_sub_u32 s{sT0}, s{sDst}, {OFF_XN-OFF_XR:#x}")
    for q in range(4):
        a(f"buffer_store_dwordx4 {vr(R+4*q,4)}, v{vA}, {W}, s{sT0} offen offset:{q*1024} sc1")
    ln_to_xn(a, X, T, R, P, vP)
    for i in range(24): a(f"v_mov_b64 {vr(R+2*i,2)}, {vr(R+16+2*i,2)}")
    a("s_waitcnt vmcnt(0)")
    set_flag(a, vOne, sFl, F_XN)
    a(f"s_add_u32 s{sDst}, s{sDst}, {16 << 15}")
    a(f"s_add_u32 s{sFl}, s{sFl}, {16 << 11}")
    a(f"s_add_u32 s{sU}, s{sU}, 1")
    trace(a, cfg, 3, sU, vT)
    if cfg.get("ln0_late", False):
        lab = a.newlab("L_l0l")
        a(f"s_cmp_lg_u32 s{sU}, 1")
        a(f"s_cbranch_scc1 {lab}")
        late_start(a, cfg)
        a.label(lab)
    a(f"s_cmp_lt_u32 s{sU}, 4")
    a("s_cbranch_scc1 L_ln0_loop")
    a.label("L_ln0_done")

def role_rows(a, cfg):
    sWb, sIb, sLo = 61, 62, 63
    vA = 8
    vP = 12
    vP2 = 7
    vFx = 13
    c_, gi = 96, 97
    a.label("L_rows")
    common_start(a)
    a(f"s_sub_u32 s{sWb}, s{sMEMB}, 28")
    a(f"s_lshl_b32 s{sT1}, s{sWb}, 2")
    a(f"s_add_u32 s{sT1}, s{sT1}, s{sWAVE}")
    a(f"s_lshl_b32 s{sWb}, s{sWb}, 1")
    a(f"s_and_b32 s{sT0}, s{sWAVE}, 1")
    a(f"s_add_u32 s{sWb}, s{sWb}, s{sT0}")
    a(f"s_lshr_b32 s{sLo}, s{sWAVE}, 1")
    if cfg.get("split_rows", False):
        a(f"s_and_b32 s{sT0}, s{sT1}, 7")
        a(f"s_lshr_b32 s{sT1}, s{sT1}, 3")
        a(f"s_cmp_eq_u32 s{sLAY}, 0")
        a(f"s_cselect_b32 s{sWb}, s{sT0}, s{sWb}")
        a(f"s_cselect_b32 s{sLo}, s{sT1}, s{sLo}")
    rows_setup(a, sWb)
    a(f"s_cmp_eq_u32 s{sLo}, 1")
    a("s_cbranch_scc1 L_re")
    SelLo, SelHi = 104, 108
    X, T, P, R, RN = 16, 48, 128, 112, 192
    a(f"v_lshlrev_b32 v{vFo}, 2, v0")
    a(f"v_add_u32 v{vFo}, {F_PART}, v{vFo}")
    a(f"v_and_b32 v{vFx}, 7, v0")
    a(f"v_lshlrev_b32 v{vFx}, 2, v{vFx}")
    a("v_bfe_u32 v100, v0, 3, 1")
    a("v_lshl_add_u32 v102, v100, 10, v102")
    a("v_lshrrev_b32 v100, 4, v0")
    a(f"v_lshl_add_u32 v{vP2}, v100, 15, v102")
    a("v_bfe_u32 v100, v0, 4, 1")
    a("v_lshlrev_b32 v101, 12, v100")
    a("v_bfe_u32 v100, v0, 5, 1")
    a("v_lshl_add_u32 v101, v100, 11, v101")
    a(f"v_add_u32 v{vA}, v101, v102")
    a("v_bfe_u32 v100, v0, 2, 2")
    a("v_lshl_add_u32 v101, v100, 9, v101")
    a(f"v_add_u32 v{vP}, v101, v98")
    sel_consts(a, 0, 100, selLo=SelLo, selHi=SelHi)
    vCa, vCv, sCr = 9, 10, 76
    a(f"v_and_b32 v{vCa}, 15, v0")
    a(f"v_lshlrev_b32 v{vCa}, 2, v{vCa}")
    a(f"v_add_u32 v{vCa}, {F_X2}, v{vCa}")
    def res_loads(sg):
        a(f"s_lshl_b32 s{sT0}, s{sg}, 15")
        a(f"s_add_u32 s{sT0}, s{sT0}, {OFF_XR:#x}")
        for i in range(4):
            if i: a(f"s_add_u32 s{sT0}, s{sT0}, 8192")
            a(f"buffer_load_dwordx4 {vr(RN+4*i,4)}, v{vA}, {W}, s{sT0} offen sc1")
    def before():
        a(f"s_lshl_b32 s{sFl}, s{sSeg}, 11")
        poll_flags(a, vT, vFx, sFl, sleep=8)
        for _ in range(2):
            a(f"s_add_u32 s{sFl}, s{sFl}, 2048")
            poll_flags(a, vT, vFx, sFl, sleep=8)
        res_loads(sSeg)
        a("s_waitcnt vmcnt(0)")
    def swaps(r):
        return [f"v_permlane16_swap_b32 v{r+4*p+h}, v{r+4*p+2+h}" for p in range(4) for h in range(2)]
    def body(st, stamp):
        ring_off(a, sSrc, sSeg, R_PART)
        for x in swaps(RN): a(x)
        unpack(a, X, RN, 16)
        poll_flags(a, vT, vFo, sFl, sleep=CFG.get('psleep', 1))
        stamp("flag")
        trace(a, cfg, 0, sSeg, vT)
        for n in range(16):
            if n and n % 2 == 0: a(f"s_add_u32 s{sSrc}, s{sSrc}, 4096")
            a(f"buffer_load_dwordx4 {vr(P+4*n,4)}, v{vP2}, {W}, s{sSrc} offen offset:{(n%2)*2048} sc1")
        a(f"s_and_b32 s{sT0}, s{sSeg}, 63")
        a(f"s_cmp_ge_u32 s{sT0}, {RB_()}")
        a(f"s_cselect_b32 s{sCr}, {RB_()*2048+F_PART-F_X2}, 0")
        a(f"s_sub_u32 s{sCr}, s{sFl}, s{sCr}")
        a(f"s_add_u32 s{sCr}, s{sCr}, {F_PART-F_X2}")
        a(f"buffer_load_dword v{vCv}, v{vCa}, {W}, s{sCr} offen sc1")
        a(f"s_add_u32 s{sT0}, s{sSeg}, 1")
        res_loads(sT0)
        ring_off(a, sT2, sSeg, R_X1)
        a(f"s_add_u32 s{sDst}, s{sT2}, {R_XNB-R_X1:#x}")
        a(f"s_lshl_b32 s{sT0}, s{sWb}, 2")
        a(f"s_add_u32 s{sFl}, s{sFl}, s{sT0}")
        for n in range(16):
            a(f"s_waitcnt vmcnt({20-n})")
            mfma(a, X + 4 * (n // 2), (SelLo, SelHi)[n % 2], P + 4 * n, X + 4 * (n // 2))
            if n >= 5 and n % 2 == 1:
                i = (n - 5) // 2
                cvt(a, R + 2 * i, X + 4 * i); cvt(a, R + 2 * i + 1, X + 4 * i + 2)
        stamp("sum")
        lab = a.newlab("L_crok")
        a("s_waitcnt vmcnt(4)")
        a(f"v_cmp_eq_u32 vcc, 0, v{vCv}")
        a(f"s_cbranch_vccz {lab}")
        poll_flags(a, vCv, vCa, sCr, sleep=2)
        a.label(lab)
        for i in range(12, 16): cvt(a, R + i, X + 2 * i)
        for x in swaps(R): a(x)
        stores = []
        for i in range(4):
            stores.append((f"s_add_u32 s{sT2}, s{sT2}, 8192\n" if i else "") + f"buffer_store_dwordx4 {vr(R+4*i,4)}, v{vP}, {W}, s{sT2} offen{st}")
        layernorm(a, X, T, stores)
        for p in range(4):
            for i in range(4): cvt(a, P + 4 * p + i, X + 8 * p + 2 * i)
            for x in swaps(P)[2*p:2*p+2]: a(x)
            if p: a(f"s_add_u32 s{sDst}, s{sDst}, 8192")
            a(f"buffer_store_dwordx4 {vr(P+4*p,4)}, v{vP}, {W}, s{sDst} offen{st}")
        stamp("ln")
        a("s_waitcnt vmcnt(0)")
        set_flag(a, vOne, sFl, F_XNB, st)
    both_modes(a, "rb", body, cfg, before)
    a.label("L_re")
    a(f"v_and_b32 v{vFo}, 15, v0")
    a(f"v_lshlrev_b32 v{vFo}, 2, v{vFo}")
    a(f"v_add_u32 v{vFo}, {F_X2}, v{vFo}")
    xn_store_addr(a, vP)
    a(f"v_lshrrev_b32 v100, 1, v{gi}")
    a(f"v_lshl_add_u32 v{vA}, v100, 12, v102")
    touch_ring(a, cfg)
    a(f"s_cmp_eq_u32 s{sLAY}, 1")
    a("s_cbranch_scc1 L_exit")
    if not cfg.get("noinit"): wait_init(a)
    else: a("s_barrier")
    stamp = Stamps(a, cfg.get("stamp") == "re", base=4, only=cfg.get("only"))
    a.label("L_re_loop")
    stamp("top")
    a(f"s_lshl_b32 s{sFl}, s{sSeg}, 11")
    ring_off(a, sSrc, sSeg, R_X2)
    poll_flags(a, vT, vFo, sFl, sleep=CFG.get('psleep', 1))
    stamp("flag")
    trace(a, cfg, 0, sSeg, vT)
    for q in range(4):
        a(f"buffer_load_dwordx4 {vr(R+4*q,4)}, v{vA}, {W}, s{sSrc} offen offset:{q*1024} sc1")
    a(f"s_lshl_b32 s{sT0}, s{sSeg}, 15")
    a(f"s_add_u32 s{sDst}, s{sT0}, {OFF_XN+(64<<15):#x}")
    a(f"s_add_u32 s{sSrc}, s{sT0}, {OFF_X2R:#x}")
    a(f"s_lshl_b32 s{sT0}, s{sWb}, 2")
    a(f"s_add_u32 s{sFl}, s{sFl}, s{sT0}")
    a(f"s_add_u32 s{sFl}, s{sFl}, {64<<11}")
    a("s_waitcnt vmcnt(0)")
    stamp("ld")
    for q in range(0 if cfg.get("rd_copy", True) else 4):
        a(f"buffer_store_dwordx4 {vr(R+4*q,4)}, v{vA}, {W}, s{sSrc} offen offset:{q*1024} sc1")
    ln_to_xn(a, X, T, R, P, vP)
    stamp("ln")
    a("s_waitcnt vmcnt(0)")
    set_flag(a, vOne, sFl, F_XN)
    trace(a, cfg, 1, sSeg, vT)
    stamp("end")
    if stamp.on:
        lab = a.newlab("L_nost")
        a(f"s_and_b32 s{sT0}, s{sSeg}, 63")
        a(f"s_cmp_lg_u32 s{sT0}, {cfg.get('stamp_step', 20)}")
        a(f"s_cbranch_scc1 {lab}")
        def row():
            a(f"s_lshl_b32 s{sT0}, s{sGRP}, 7")
            a(f"s_lshl_b32 s{sT1}, s{sMEMB}, 2")
            a(f"s_add_u32 s{sT0}, s{sT0}, s{sT1}")
            a(f"s_add_u32 s{sT0}, s{sT0}, s{sWAVE}")
        dump_stamps(a, stamp, cfg, row)
        a.label(lab)
    a(f"s_add_u32 s{sSeg}, s{sSeg}, 1")
    a(f"s_cmp_lt_u32 s{sSeg}, s{sEnd}")
    a("s_cbranch_scc1 L_re_loop")
    a("s_waitcnt vmcnt(0)")
    a("s_branch L_done")

def role_wo(a, cfg):
    CFG.clear(); CFG.update(cfg)
    a.label("L_wo")
    ln0(a, cfg)
    a(f"s_cmp_lt_u32 s{sMEMB}, 16")
    a("s_cbranch_scc1 L_ra")
    a(f"s_cmp_lt_u32 s{sMEMB}, 24")
    a("s_cbranch_scc1 L_rc")
    a(f"s_cmp_lt_u32 s{sMEMB}, 28")
    a("s_cbranch_scc1 L_rd")
    a("s_branch L_rows")
    role_ra(a, cfg); role_rc(a, cfg); role_rd(a, cfg); role_rows(a, cfg)
```

```python
from gen_common import *

def chain(a, local, cfg):
    st = "" if local else " sc1"
    tag = "L" if local else "G"
    stamp = Stamps(a, cfg.get("stamp") == "chain" and local, only=cfg.get("only"))
    vL16, vIdx, vLdsW, vSwx, vSwm, vSrx, vSrm, vOw, vOr, vX1s, vX1l, vX2s = range(1, 13)
    vR, vOnes, vT = 13, 14, 15
    vAw = 0
    sKVb, sKT, sLim, sKVc, sLate = 93, 95, 63, 66, 67
    SelT, VACC, SelM = 16, 20, 28
    q0, k0, q1, k1 = 32, 36, 40, 44
    Kx, Vx, RING, A, WO = 48, 56, 64, 96, 128
    WK, WV = 256, 384
    sStep, sTag, sX2st, sX2re, sMemOff, sKV, sX1a, sX1b, sC = 55, 56, 57, 58, 59, 60, 61, 62, 96
    sMaskHi = 64
    sLds, sRot = 66, 67
    sX2l = 92
    AST, KVL, SX, SM, SJ, OA, CST = 0x20000, 0x22000, 0x27000, 0x27800, 0x27f00, 0x26000, 0x27a00
    sKVL = 94
    lane = 0
    if cfg.get("chain_prologue_done") is None:
        cfg["chain_prologue_done"] = True
        a.label("L_chain")
        a(f"v_and_b32 v0, 63, v0")
        a(f"v_lshlrev_b32 v{vL16}, 4, v0")
        a(f"s_lshl_b32 s{sLds}, s{sWAVE}, 15")
        a(f"s_lshl_b32 s{sRot}, s{sWAVE}, 1")
        vD, vTR, vDo, vTRo = 32, 33, 34, 35
        sL2, sL3 = 70, 71
        vD1, vTR1, sLq = 38, 39, 72
        coop_addrs(a, vD, vD1, vTR, vTR1, vT)
        a(f"s_lshl_b32 s{sLq}, s{sWAVE}, 12")
        a(f"v_lshrrev_b32 v{vDo}, 3, v0")
        a(f"v_lshlrev_b32 v{vDo}, 10, v{vDo}")
        a(f"v_and_b32 v{vT}, 7, v0")
        a(f"v_lshl_add_u32 v{vDo}, v{vT}, 4, v{vDo}")
        a(f"v_bfe_u32 v{vT}, v0, 4, 1")
        a(f"v_lshlrev_b32 v{vTRo}, 11, v{vT}")
        a(f"v_bfe_u32 v{vT}, v0, 5, 1")
        a(f"v_lshl_add_u32 v{vTRo}, v{vT}, 9, v{vTRo}")
        a(f"v_bfe_u32 v{vT}, v0, 2, 1")
        a(f"v_lshl_add_u32 v{vTRo}, v{vT}, 7, v{vTRo}")
        a(f"v_bfe_u32 v{vT}, v0, 3, 1")
        a(f"v_lshl_add_u32 v{vTRo}, v{vT}, 5, v{vTRo}")
        a(f"v_and_b32 v{vT}, 3, v0")
        a(f"v_lshl_add_u32 v{vTRo}, v{vT}, 3, v{vTRo}")
        a(f"v_add_u32 v{vTRo}, s{sLq}, v{vTRo}")
        a(f"s_add_u32 s{sT0}, s{sLds}, s{sLq}")
        a(f"v_add_u32 v{vLdsW}, s{sT0}, v{vL16}")
        a(f"s_lshl_b32 s{sL2}, s{sMEMB}, 8")
        a(f"s_lshl_b32 s{sT1}, s{sWAVE}, 15")
        a(f"s_add_u32 s{sL2}, s{sL2}, s{sT1}")
        a(f"s_lshl_b32 s{sL3}, s{sMEMB}, 17")
        a(f"s_lshl_b32 s{sT1}, s{sWAVE}, 8")
        a(f"s_add_u32 s{sL3}, s{sL3}, s{sT1}")
        late_start(a, cfg)
        stages = []
        for ptr, base in ((sWK, WK), (sWV, WV)):
            for J in range(8):
                def consume(slot, J=J, base=base):
                    end = a.newlab("L_cw")
                    for w in range(4):
                        nxt = a.newlab("L_cw")
                        if w < 3:
                            a(f"s_cmp_lg_u32 s{sWAVE}, {w}")
                            a(f"s_cbranch_scc1 {nxt}")
                        jj = J ^ (2 * w)
                        coop_reads(a, slot, vTR, vTR1, 40, base + jj * 16, base + jj * 16 + 8)
                        if w < 3:
                            a(f"s_branch {end}")
                            a.label(nxt)
                    a.label(end)
                stages.append(dict(issue=lambda slot, ptr=ptr, J=J: coop_issue(a, ptr, J, slot, sL2, vD, vD1, sLq), consume=consume))
        for wp in range(4):
            for ap in range(2):
                def issue(slot, wp=wp, ap=ap):
                    if wp == 0 and ap == 0: set_srd(a, sWT, sWO, 0x400000)
                    a(f"s_add_u32 m0, s{sLq}, {slot*16384}")
                    a(f"s_xor_b32 s{sT0}, s{sWAVE}, {wp}")
                    a(f"s_lshl_b32 s{sT0}, s{sT0}, 15")
                    a(f"s_add_u32 s{sT0}, s{sT0}, s{sL3}")
                    if ap: a(f"s_add_u32 s{sT0}, s{sT0}, {ap*128}")
                    for q in range(4):
                        if q: a(f"s_add_u32 s{sT0}, s{sT0}, {8192-1024}")
                        a(f"buffer_load_dwordx4 v{vDo}, s[{sWT}:{sWT+3}], s{sT0} offen offset:{q*1024}{' nt' if '14c' in cfg.get('ntw', ()) else ''} lds")
                def consume(slot, wp=wp, ap=ap):
                    va = vTRo
                    if slot >= 4:
                        a(f"v_add_u32 v40, 0x10000, v{vTRo}"); va = 40
                    for a1 in range(2):
                        dst = WO + ((2 * ap + a1) * 4 + wp) * 8
                        for e4 in range(4):
                            off = (slot & 3) * 16384 + (8 * (e4 >> 1) + 2 * (e4 & 1)) * 128 + a1 * 64
                            a(f"ds_read_b64_tr_b16 {vr(dst+2*e4,2)}, v{va} offset:{off}")
                stages.append(dict(issue=issue, consume=consume))
        for J in range(8):
            tmp = RING + 16 * (J & 1)
            def post(slot, tmp=tmp):
                a(f"s_add_u32 s{sT0}, s{sLq}, {slot*16384}")
                a(f"v_add_u32 v40, s{sT0}, v{vL16}")
                for i in range(4):
                    a(f"ds_write_b128 v40, {vr(tmp+4*i,4)} offset:{i*1024}")
            stages.append(dict(issue=lambda slot, J=J: coop_issue(a, sWQ, J, slot, sL2, vD, vD1, sLq),
                               consume=lambda slot, tmp=tmp: coop_reads(a, slot, vTR, vTR1, 40, tmp, tmp + 8), post=post))
        def setup_rest():
            sel_consts(a, lane, 96, selM=SelM, selLo=112, selHi=116, selT=SelT)
            smf_index(a, lane, vIdx, 96)
            n_, g_, q_ = 96, 97, 98
            a(f"v_and_b32 v{n_}, 15, v0")
            a(f"v_lshrrev_b32 v{g_}, 4, v0")
            a(f"v_and_b32 v{q_}, 7, v0")
            a(f"s_mov_b32 s{sMaskHi}, 0xff00ff00")
            a(f"s_mov_b32 s{sMaskHi+1}, 0xff00ff00")
            a(f"v_lshlrev_b32 v99, 3, v{q_}")
            a(f"v_and_b32 v{vT}, 1, v{g_}")
            a(f"v_lshl_add_u32 v99, v{vT}, 6, v99")
            a(f"v_add_u32 v99, {SJ}, v99")
            a(f"v_lshrrev_b32 v{vT}, 1, v{g_}")
            a(f"v_lshlrev_b32 v{vSwx}, 8, v{vT}")
            a(f"v_lshl_add_u32 v{vSwx}, v{q_}, 4, v{vSwx}")
            a(f"v_and_b32 v{vT}, 1, v{g_}")
            a(f"v_lshl_add_u32 v{vSwx}, v{vT}, 3, v{vSwx}")
            a(f"s_lshl_b32 s{sT0}, s{sWAVE}, 9")
            a(f"s_add_u32 s{sT1}, s{sT0}, {SX}")
            a(f"v_add_u32 v{vSwx}, s{sT1}, v{vSwx}")
            a(f"v_cndmask_b32 v{vSwx}, v{vSwx}, v99, s[{sMaskHi}:{sMaskHi+1}]")
            a(f"v_lshlrev_b32 v{vSwm}, 4, v{q_}")
            a(f"v_lshl_add_u32 v{vSwm}, v{vT}, 3, v{vSwm}")
            a(f"s_lshl_b32 s{sT1}, s{sWAVE}, 7")
            a(f"s_add_u32 s{sT1}, s{sT1}, {SM}")
            a(f"v_add_u32 v{vSwm}, s{sT1}, v{vSwm}")
            a(f"s_mov_b32 s98, 0")
            a(f"s_mov_b32 s99, 0x00ff00ff")
            a(f"v_cndmask_b32 v{vSwm}, v99, v{vSwm}, s[98:99]")
            a(f"v_lshlrev_b32 v{vSrx}, 9, v{g_}")
            a(f"v_lshl_add_u32 v{vSrx}, v{n_}, 4, v{vSrx}")
            a(f"v_add_u32 v{vSrx}, {SX}, v{vSrx}")
            a(f"v_lshlrev_b32 v{vSrm}, 7, v{g_}")
            a(f"v_lshl_add_u32 v{vSrm}, v{q_}, 4, v{vSrm}")
            a(f"v_add_u32 v{vSrm}, {SM}, v{vSrm}")
            a(f"s_lshl_b32 s{sT1}, s{sWAVE}, 9")
            a(f"s_add_u32 s{sT1}, s{sT1}, {OA-SM}")
            a(f"v_bfe_u32 v{vT}, v0, 3, 1")
            a(f"v_lshl_add_u32 v{vOw}, v{vT}, 3, v{vSrm}")
            a(f"v_add_u32 v{vOw}, s{sT1}, v{vOw}")
            a(f"v_and_b32 v{vOr}, 0xf0, v{vL16}")
            a(f"v_add_u32 v{vOr}, {CST}, v{vOr}")
            a(f"v_lshrrev_b32 v{vT}, 2, v{n_}")
            a(f"v_lshl_add_u32 v{vT}, v{vT}, 2, v{g_}")
            a(f"v_lshlrev_b32 v{vX1s}, 11, v{vT}")
            a(f"v_and_b32 v{vT}, 3, v0")
            a(f"v_lshl_add_u32 v{vX1s}, v{vT}, 4, v{vX1s}")
            a(f"s_lshl_b32 s{sT0}, s{sWAVE}, 16")
            a(f"s_lshl_b32 s{sT1}, s{sMEMB}, 6")
            a(f"s_add_u32 s{sT0}, s{sT0}, s{sT1}")
            a(f"v_add_u32 v{vX1s}, s{sT0}, v{vX1s}")
            a(f"s_lshl_b32 s{sT2}, s{sMEMB}, 2")
            a(f"s_add_u32 s{sT2}, s{sT2}, s{sWAVE}")
            a(f"s_lshl_b32 s{sT0}, s{sT2}, 11")
            a(f"v_add_u32 v{vX1l}, s{sT0}, v{vL16}")
            a(f"v_lshlrev_b32 v{vX2s}, 4, v{g_}")
            a(f"v_lshl_add_u32 v{vX2s}, v{n_}, 2, v{vX2s}")
            a(f"s_lshl_b32 s{sT0}, s{sT2}, 6")
            a(f"v_add_u32 v{vX2s}, s{sT0}, v{vX2s}")
            a(f"v_mov_b32 v{vT}, {OOB:#x}")
            a(f"v_cmp_gt_u32 vcc, 4, v{n_}")
            a(f"v_cndmask_b32 v{vX2s}, v{vT}, v{vX2s}, vcc")
            a(f"v_and_b32 v100, 3, v0")
            a(f"v_lshlrev_b32 v100, 1, v100")
            a(f"v_lshl_add_u32 v100, v{g_}, 10, v100")
            a(f"v_and_b32 v104, 3, v0")
            a(f"v_bfe_u32 v105, v0, 2, 2")
            a(f"v_lshl_add_u32 v104, v104, 2, v105")
            a(f"v_and_b32 v105, 1, v104")
            a(f"v_lshlrev_b32 v105, 4, v105")
            a(f"v_mov_b32 v106, 0x3f80")
            a(f"v_lshlrev_b32 v105, v105, v106")
            a(f"v_lshrrev_b32 v104, 1, v104")
            for e in range(4):
                a(f"v_cmp_eq_u32 vcc, {e}, v104")
                a(f"v_cndmask_b32 v{108+e}, 0, v105, vcc")
            a(f"v_and_b32 v104, 0xf0, v{vL16}")
            a(f"v_add_u32 v104, {CST}, v104")
            a(f"ds_write_b128 v104, v[108:111]")
            a(f"ds_write_b128 v104, v[112:115] offset:256")
            a(f"ds_write_b128 v104, v[116:119] offset:512")
            for e in range(4): a(f"v_mov_b32 v{120+e}, 0x3f803f80")
            for e in range(4): a(f"v_mov_b32 v{124+e}, 0x3f003f00")
            a(f"ds_write_b128 v104, v[120:123] offset:768")
            a(f"ds_write_b128 v104, v[124:127] offset:1024")
            a(f"s_and_b32 s{sT0}, s{sT2}, 1")
            a(f"s_lshl_b32 s{sT0}, s{sT0}, 12")
            a(f"s_lshr_b32 s{sT1}, s{sT2}, 4")
            a(f"s_lshl_b32 s{sT1}, s{sT1}, 7")
            a(f"s_add_u32 s{sT0}, s{sT0}, s{sT1}")
            a(f"s_bfe_u32 s{sT1}, s{sT2}, 0x10001")
            a(f"s_lshl_b32 s{sT1}, s{sT1}, 5")
            a(f"s_add_u32 s{sT0}, s{sT0}, s{sT1}")
            a(f"s_bfe_u32 s{sT1}, s{sT2}, 0x20002")
            a(f"s_lshl_b32 s{sT1}, s{sT1}, 3")
            a(f"s_add_u32 s{sT0}, s{sT0}, s{sT1}")
            set_srd(a, sIN, sMEM0, 8192)
            a(f"buffer_load_ushort v36, v100, s[{sIN}:{sIN+3}], s{sT0} offen")
            a(f"buffer_load_ushort v37, v100, s[{sIN}:{sIN+3}], s{sT0} offen offset:64")
            a(f"s_mov_b32 s{sStep}, 0")
            a(f"s_mov_b32 s{sTag}, 0")
            a(f"s_lshl_b32 s{sT0}, s{sLAY}, 14")
            a(f"s_add_u32 s{sX2st}, s{sT0}, {OFF_X2:#x}")
            a(f"s_add_u32 s{sX2re}, s{sX2st}, 8192")
            a(f"s_lshl_b32 s{sT0}, s{sWAVE}, 11")
            a(f"s_add_u32 s{sX2l}, s{sT0}, s{sX2st}")
            a(f"s_add_u32 s{sT0}, s{sT0}, {AST}")
            a(f"v_add_u32 v{vAw}, s{sT0}, v{vL16}")
            a(f"s_lshl_b32 s{sT0}, s{sLAY}, 19")
            a(f"s_add_u32 s{sMemOff}, s{sT0}, {OFF_MEM:#x}")
            a(f"s_lshl_b32 s{sT0}, s{sLAY}, 18")
            a(f"s_add_u32 s{sX1a}, s{sT0}, {OFF_X1:#x}")
            a(f"s_add_u32 s{sX1b}, s{sX1a}, 32768")
            a(f"s_lshl_b32 s{sT0}, s{sLAY}, 21")
            a(f"s_lshl_b32 s{sT1}, s{sT2}, 12")
            a(f"s_add_u32 s{sT0}, s{sT0}, s{sT1}")
            a(f"s_add_u32 s{sKVb}, s{sT0}, {OFF_KVR:#x}")
            a(f"s_mov_b32 s{sKV}, s{sKVb}")
            a(f"s_mov_b32 s{sC}, {fbits(128**-0.5*1.4426950408889634):#x}")
            a(f"s_mov_b32 s{sC+1}, s{sC}")
            a(f"s_mov_b32 s{sLim}, {fbits(cfg.get('lim', 48.0) / (128**-0.5*1.4426950408889634)):#x}")
        load_stages(a, stages, meanwhile=setup_rest,
                    hooks=None if cfg.get("noinit") else {25: lambda: go_load(a), cfg.get("chain_sig", 99): lambda: late_signal(a, cfg)})
        trace(a, cfg, 6, None, vT)
        if not cfg.get("noinit"): wait_init(a, sampled=True, barrier=False)
        a(f"v_lshl_or_b32 v{vR}, v37, 16, v36")
        a(f"v_min_u32 v{vR}, -2, v{vR}")
        for i in range(8):
            a(f"ds_read_b128 {vr(RING+4*i,4)}, v{vLdsW} offset:{(i>>2)*16384+(i&3)*1024}")
        a(f"v_mov_b32 v{vOnes}, -1")
        for f in range(4): a(f"v_mov_b32 v{Kx+4*f}, -1")
        if cfg.get("nokvcheck"):
            for f in range(16): a(f"v_mov_b32 v{Kx+f}, 0")
        a(f"s_lshl_b32 s{sKVL}, s{sWAVE}, 12")
        a(f"s_add_u32 s{sKVL}, s{sKVL}, {KVL}")
        a(f"s_mov_b32 m0, s{sKVL}")
        a("s_waitcnt vmcnt(0) lgkmcnt(0)")
        if cfg.get("count_redo"):
            a("s_memrealtime s[70:71]")
            a("s_memtime s[98:99]")
            a("s_waitcnt lgkmcnt(0)")
            a("s_sub_u32 s101, s70, s100")
            a("s_mov_b32 s100, s70")
        if cfg.get("force_global"):
            a("s_branch L_chain_entryG")
        else:
            a(f"s_cmp_eq_u32 s{sLOCAL}, 0")
            a("s_cbranch_scc1 L_chain_entryG")
    W = f"s[{sWS}:{sWS+3}]"
    vC = vOr
    vq = [(t, jj) for jj in range(8) for t in range(2)]
    vacc = (VACC, VACC + 4)
    def smf(acc, x, w): a(f"v_smfmac_f32_16x16x64_bf16 {vr(acc,4)}, {vr(x,4)}, {xr(w,8)}, v{vIdx}")
    def fill_v(n):
        for _ in range(n):
            t, jj = vq.pop(0)
            smf(vacc[t], A + 4 * jj, WV + jj * 16 + t * 8)
    def pad(n):
        k = cfg.get("padkind", "nop")
        if k == "mov":
            for _ in range(n): a(f"v_mov_b32 v{vT}, 0")
        elif k == "nop":
            while n > 0:
                a(f"s_nop {min(n,16)-1}"); n -= 16
        elif k == "mfma":
            for i in range(n // 4): a(f"v_mfma_f32_16x16x32_bf16 v[108:111], {xr(WK+(i%16)*4,4)}, {xr(WV+(i%16)*4,4)}, 0 ; nochk")
    cvt = lambda d, s: a(f"v_cvt_pk_bf16_f32 v{d}, v{s}, v{s+1}")
    mfma = lambda d, x, y, c: a(f"v_mfma_f32_16x16x32_bf16 {vr(d,4)}, {vr(x,4)}, {vr(y,4)}, {vr(c,4) if c is not None else 0}")
    mfma16 = lambda d, x, y, c: a(f"v_mfma_f32_16x16x16_bf16 {vr(d,4)}, {vr(x,2)}, {vr(y,2)}, {vr(c,4) if c is not None else 0}")
    def kv_check():
        a(f"v_bitop3_b32 v{vT}, v{Kx}, v{Kx+4}, s{sKT} bitop3:0x7e")
        a(f"v_bitop3_b32 v{VACC}, v{Kx+8}, v{Kx+12}, s{sKT} bitop3:0x7e")
        a(f"v_or_b32 v{vT}, v{vT}, v{VACC}")
        a(f"v_and_b32 v{vT}, 1, v{vT}")
        a(f"v_cmp_ne_u32 vcc, 0, v{vT}")
    def x2_issue(r):
        a(f"buffer_load_dwordx4 {vr(r,4)}, v{vL16}, {W}, s{sX2l} offen sc1")
        a(f"buffer_load_dwordx4 {vr(r+4,4)}, v{vL16}, {W}, s{sX2l} offen offset:1024 sc1")
    def x2_check(r, n):
        a(f"s_waitcnt vmcnt({n+1})")
        smf(k0, r, WK)
        a(f"v_max3_u32 v{vT}, v{r}, v{r+1}, v{r+2}")
        smf(k1, r, WK + 8)
        a(f"s_waitcnt vmcnt({n})")
        a(f"v_max3_u32 v{vT}, v{vT}, v{r+3}, v{r+4}")
        a(f"ds_write_b128 v{vAw}, {vr(r,4)}")
        a(f"v_max3_u32 v{vT}, v{vT}, v{r+5}, v{r+6}")
        a(f"v_max_u32 v{vT}, v{vT}, v{r+7}")
        a(f"v_cmp_eq_u32 vcc, -1, v{vT}")
        smf(k0, r + 4, WK + 16)
        a(f"ds_write_b128 v{vAw}, {vr(r+4,4)} offset:1024")
        smf(k1, r + 4, WK + 24)
    def zero_k():
        for r in (k0, k0 + 2, k1, k1 + 2): a(f"v_mov_b64 {vr(r,2)}, 0")
    a.label(f"L_chain_entry{tag}")
    a(f"buffer_store_dword v{vR}, v{vX2s}, {W}, s{sX2st} offen{st}")
    a(".p2align 6")
    a.label(f"L_chain_loop{tag}")
    stamp("top")
    trace(a, cfg, 0, sStep, vT)
    a(f"s_cmp_eq_u32 s{sStep}, 63")
    a(f"s_cbranch_scc1 L_chain_last{tag}")
    a(f"s_bfe_u32 s{sKT}, s{sStep}, 0x10002")
    a("s_waitcnt lgkmcnt(0)")
    kv_check()
    for i in range(8):
        a(f"v_mov_b64 {vr(q0+2*i,2)}, 0")
    lateok = cfg.get("latekv", False) and not cfg.get("nokvcheck")
    if lateok:
        a(f"s_mov_b32 s{sKVc}, s{sKV}")
        a(f"s_cmp_lg_u64 vcc, 0")
        a(f"s_cselect_b32 s{sLate}, 1, 0")
    elif not cfg.get("nokvcheck"): a(f"s_cbranch_vccnz L_chain_kvwait{tag}")
    a.label(f"L_chain_kvok{tag}")
    trace(a, cfg, 1, sStep, vT)
    trace(a, cfg, 5, sStep, vT)
    spin_init(a)
    pad(cfg.get("d2", 30))
    stamp("x2iss")
    x2_issue(A)
    for i in range(4):
        a(f"v_mov_b64 {vr(VACC+2*i,2)}, 0")
    a(f"s_add_u32 s{sKV}, s{sStep}, 1")
    a(f"s_and_b32 s{sKV}, s{sKV}, 3")
    a(f"s_lshl_b32 s{sKV}, s{sKV}, 19")
    a(f"s_add_u32 s{sKV}, s{sKV}, s{sKVb}")
    if cfg.get("ack2"): a("s_waitcnt vmcnt(2)")
    if cfg.get("one2"):
        x2_check(A, 0)
    else:
        pad(cfg.get("g2", 30))
        x2_issue(A + 8)
        x2_check(A, 2)
    if not cfg.get("nowait2"): a(f"s_cbranch_vccnz L_chain_x2b{tag}")
    a.label(f"L_chain_x2ok{tag}")
    if cfg.get("count_redo"): a(f"s_add_u32 s31, s31, s{sSPIN}")
    stamp("A0")
    kvl = [f"buffer_load_dwordx4 v{vL16}, {W}, s{sKV} offen offset:{f*1024} sc1 lds" for f in range(4)]
    SLo, SHi = RING, RING + 4
    plan = list(cfg.get("plan", ["r:pre", "m:b1", "k3", "k5", "k7", "h6w"]))
    after_r = []
    def at(pos):
        for x in list(plan):
            if x == pos: a(kvl.pop(0)); plan.remove(x)
            elif x == "m:" + pos: a(memst); plan.remove(x)
            elif x == "r:" + pos: a(rearm); plan.remove(x); after_r.append(len(plan))
    def ring_rd(jj):
        s0 = RING + ((2 * jj) % 4) * 8
        return [f"ds_read_b128 {vr(s0+4*i,4)}, v{vW2} offset:{(jj&1)*16384+i*1024}" for i in range(4)]
    vW2 = vT
    for jj in range(2):
        s0 = RING + 16 * jj; rd = ring_rd(jj)
        if jj == 0: a(f"v_xor_b32 v{vW2}, 0x8000, v{vLdsW}")
        smf(q0, A + 4 * jj, s0); a(rd[0]); a(rd[1])
        smf(q1, A + 4 * jj, s0 + 8); a(rd[2]); a(rd[3])
    memst = f"buffer_store_dword v{vR}, v{vX2s}, {W}, s{sMemOff} offen sc1"
    rearm = f"buffer_store_dword v{vOnes}, v{vX2s}, {W}, s{sX2re} offen{st}"
    rf = cfg.get("rearm_first", True)
    nb = len([x for x in plan if x.endswith("pre")])
    at("pre")
    stamp("k1done", True)
    a(f"s_waitcnt vmcnt({nb}) lgkmcnt(8)")
    a("s_barrier")
    stamp("bar1", True)
    for j2 in range(2, 8, 2):
        a(f"v_xor_b32 v{vT}, {j2*1024}, v{vAw}")
        a(f"ds_read_b128 {vr(A+4*j2,4)}, v{vT}")
        a(f"ds_read_b128 {vr(A+4*j2+4,4)}, v{vT} offset:1024")
        if j2 < 6: fill_v(1)
    at("b1")
    fill_v(2)
    lg = {2: 5, 3: 8, 4: 4, 5: 4}
    Ap0, Ap1, Dp0, Dp1, X = 72, 76, 80, 84, 88
    for jj in range(2, 6):
        if jj in (2, 4): a(f"v_xor_b32 v{vW2}, {(jj//2+1)*0x8000:#x}, v{vLdsW}")
        a(f"s_waitcnt lgkmcnt({lg[jj]})")
        stamp(f"k{jj}", True)
        s0 = RING + ((2 * jj) % 4) * 8; s1 = s0 + 8
        side = ring_rd(jj)
        for acc, wsrc, sd in ((q0, s0, side[0]), (k0, WK + jj * 16, side[1]), (q1, s1, side[2]), (k1, WK + jj * 16 + 8, side[3])):
            smf(acc, A + 4 * jj, wsrc)
            a(sd)
        at(f"k{jj}")
    A6, A7 = A + 24, A + 28
    smf(k0, A6, WK + 96); at("k6")
    smf(k0, A7, WK + 112); a("s_waitcnt lgkmcnt(6)")
    smf(q0, A6, RING); a("s_waitcnt lgkmcnt(2)")
    smf(q0, A7, RING + 16); at("k7")
    smf(q1, A6, RING + 8); a(f"ds_read_b128 {vr(SLo,4)}, v{vC} offset:256")
    a("s_waitcnt lgkmcnt(1)")
    smf(q1, A7, RING + 24); cvt(Ap0 + 2, k0)
    smf(k1, A6, WK + 104); cvt(Ap0 + 3, k0 + 2)
    smf(k1, A7, WK + 120)
    stamp("h3end")
    OF, WA = 96, 112
    cvt(Ap0, q0); cvt(Ap0 + 1, q0 + 2)
    cvt(Ap1, q1); cvt(Ap1 + 1, q1 + 2)
    mfma(Dp0, Ap0, SelT, None)
    a(f"ds_read_b128 {vr(SHi,4)}, v{vC} offset:512")
    cvt(Ap1 + 2, k1); cvt(Ap1 + 3, k1 + 2)
    at("h4")
    mfma(Dp1, Ap1, SelT, None)
    cvt(X, Dp0); cvt(X + 1, Dp0 + 2)
    cvt(X + 2, Dp1); cvt(X + 3, Dp1 + 2)
    Sx0, Sx1, Sm = 32, 36, 40
    mfma(Sx0, Kx, X, None)
    mfma(Sx1, Kx + 4, X, None)
    mfma(Sm, X, X, None)
    cvt(44, Sx0); cvt(45, Sx0 + 2); cvt(46, Sx1); cvt(47, Sx1 + 2)
    a(f"ds_write2_b64 v{vSwx}, v[44:45], v[46:47] offset0:0 offset1:16")
    cvt(92, Sm); cvt(93, Sm + 2)
    a(f"ds_write_b64 v{vSwm}, v[92:93]")
    stamp("swr")
    at("h6w")
    nomax = cfg.get("nomax", True)
    fl = cfg.get("fills", (5, 3, 2, 2) if nomax else (5, 3, 1, 3))
    fill_v(fl[0])
    a("s_waitcnt lgkmcnt(0)")
    stamp("swdone", True)
    a("s_barrier")
    stamp("bar2", True)
    a(f"ds_read_b128 v[72:75], v{vSrx}")
    a(f"ds_read_b128 v[80:83], v{vSrm}")
    a(f"ds_read_b128 v[76:79], v{vSrx} offset:256")
    ONES, HALF = 88, 92
    at("h6r")
    fill_v(fl[1])
    a("s_waitcnt lgkmcnt(1)")
    mfma(32, SLo, 72, None)
    mfma(36, SelM, 80, None)
    a("s_waitcnt lgkmcnt(0)")
    mfma(32, SHi, 76, 32)
    a(f"ds_read_b128 {vr(ONES,4)}, v{vC} offset:768")
    a(f"ds_read_b64 {vr(HALF,2)}, v{vC} offset:1024")
    fill_v(fl[2])
    stamp("sred")
    E = 72
    m, t = 46, 47
    Bx, Pm, vp, LS = 40, 44, 84, 80
    def true_max(fill=False):
        a(f"v_max3_f32 v{m}, v36, v37, v38")
        a(f"v_max3_f32 v{t}, v32, v33, v34")
        a(f"v_max3_f32 v{m}, v{m}, v39, v35")
        a(f"v_max_f32 v{m}, v{m}, v{t}")
        if fill: fill_v(1)
        a(f"v_max_f32_dpp v{m}, v{m}, v{m} row_ror:8 row_mask:0xf bank_mask:0xf")
        a(f"v_mov_b32 v{t}, v{m}")
        if fill: fill_v(1)
        a(f"v_permlane16_swap_b32 v{m}, v{t}")
        a(f"v_max_f32 v{m}, v{m}, v{t}")
        a(f"v_mov_b32 v{t}, v{m}")
        if fill: fill_v(1)
        a(f"v_permlane32_swap_b32 v{m}, v{t}")
        a(f"v_max_f32 v{m}, v{m}, v{t}")
        a(f"v_mul_f32 v{m}, s{sC}, v{m}")
        for i in range(8):
            a(f"v_fma_f32 v{E+i}, v{32+i}, s{sC}, -v{m}")
    def weights_to_o(first):
        for i in range(8):
            a(f"v_exp_f32 v{E+i}, v{E+i}")
            if first and nomax and i in (1, 5) and vq: fill_v(1)
        assert not vq
        cvt(Bx, E); cvt(Bx + 1, E + 2); cvt(Bx + 2, E); cvt(Bx + 3, E + 2)
        cvt(Pm, E + 4); cvt(Pm + 1, E + 6)
        a(f"v_mov_b32_dpp v{Bx+2}, v{Bx} row_ror:8 row_mask:0xf bank_mask:0x3")
        a(f"v_mov_b32_dpp v{Bx+3}, v{Bx+1} row_ror:8 row_mask:0xf bank_mask:0x3")
        a(f"v_mov_b32_dpp v{Bx}, v{Bx} row_ror:8 row_mask:0xf bank_mask:0xc")
        a(f"v_mov_b32_dpp v{Bx+1}, v{Bx+1} row_ror:8 row_mask:0xf bank_mask:0xc")
        if first: stamp("pready")
        side = []
        if first:
            side = [f"v_cvt_pk_bf16_f32 v{vp}, v{vacc[0]}, v{vacc[0]+1}", f"v_cvt_pk_bf16_f32 v{vp+1}, v{vacc[0]+2}, v{vacc[0]+3}",
                    f"v_cvt_pk_bf16_f32 v{vp+2}, v{vacc[1]}, v{vacc[1]+1}", f"v_cvt_pk_bf16_f32 v{vp+3}, v{vacc[1]+2}, v{vacc[1]+3}"]
            if nomax:
                side += [f"v_max3_f32 v{m}, abs(v32), abs(v33), abs(v34)", f"v_max3_f32 v{t}, abs(v35), abs(v36), abs(v37)",
                         f"v_max3_f32 v{m}, v{m}, abs(v38), abs(v39)", f"v_max_f32 v{m}, v{m}, v{t}", f"v_cmp_nlt_f32 vcc, v{m}, s{sLim}"]
            a("s_waitcnt lgkmcnt(0)")
        def two():
            for _ in range(2):
                if side: a(side.pop(0))
        mfma16(LS, HALF, Pm, None); two()
        mfma(72, Vx, Bx, None); two()
        mfma(LS, ONES, Bx, LS); two()
        mfma(76, Vx + 4, Bx, None); two()
        mfma16(72, vp, Pm, 72); two()
        mfma16(76, vp + 2, Pm, 76)
        a(f"v_rcp_f32 v{LS}, v{LS}")
    if nomax:
        for i in (4, 5, 6, 7, 0, 1, 2, 3):
            a(f"v_mul_f32 v{E+i}, s{sC}, v{32+i}")
    else:
        true_max(True)
    weights_to_o(True)
    if nomax:
        if not cfg.get("nowait1") and not cfg.get("nowait2"): a(f"s_cbranch_vccnz L_chain_big{tag}")
        a.label(f"L_chain_bigok{tag}")
    def pack(U):
        d = 32 + 4 * U; s = WA + 8 * U
        return [[f"v_cvt_pk_bf16_f32 v{d}, v{s}, v{s+1}", f"v_cvt_pk_bf16_f32 v{d+1}, v{s+2}, v{s+3}",
                 f"v_and_or_b32 v{d}, v{d}, -2, s{sTag}"],
                [f"v_cvt_pk_bf16_f32 v{d+2}, v{s+4}, v{s+5}", f"v_cvt_pk_bf16_f32 v{d+3}, v{s+6}, v{s+7}",
                 f"buffer_store_dwordx4 {vr(d,4)}, v{vX1s}, {W}, s{sX1a if U == 0 else sX1b} offen{st}"]]
    sal = [f"s_add_u32 s{sStep}, s{sStep}, 1", f"s_add_u32 s{sMemOff}, s{sMemOff}, 8192", f"s_xor_b32 s{sX2st}, s{sX2st}, 8192",
           f"s_xor_b32 s{sX2re}, s{sX2re}, 8192", f"s_xor_b32 s{sX2l}, s{sX2l}, 8192", f"s_mov_b32 s{sSPIN}, 0"]
    for i in range(4): a(f"v_mov_b64 {vr(WA+2*i,2)}, 0")
    for i in range(4): a(f"v_mul_f32 v{72+i}, v{72+i}, v{LS}")
    for i in range(4): a(f"v_mul_f32 v{76+i}, v{76+i}, v{LS}")
    cvt(OF, 72); cvt(OF + 2, 76); cvt(OF + 1, 74); cvt(OF + 3, 78)
    a(f"v_cndmask_b32 v80, v{OF}, v{OF+2}, s[{sMaskHi}:{sMaskHi+1}]")
    a(f"v_cndmask_b32 v81, v{OF+1}, v{OF+3}, s[{sMaskHi}:{sMaskHi+1}]")
    a(f"ds_write_b64 v{vOw}, v[80:81]")
    stamp("owr")
    at("h10w")
    assert not plan and not kvl
    smf(WA, OF, WO)
    for i in range(4, 8): a(f"v_mov_b64 {vr(WA+2*i,2)}, 0")
    smf(WA + 4, OF, WO + 32)
    a(f"v_and_b32 v85, -16, v{vOw}")
    for ac in range(3): a(f"v_xor_b32 v{82+ac}, {(ac+1)*512}, v85")
    a(f"s_waitcnt vmcnt({after_r[0]}) lgkmcnt(0)")
    stamp("owdone", True)
    a("s_barrier")
    stamp("bar3", True)
    for wp in range(1, 4):
        a(f"ds_read_b128 {vr(OF+4*wp,4)}, v{81+wp}")
    a(f"ds_read_b128 v[40:43], v{vC}")
    smf(WA + 8, OF, WO + 64)
    for x in sal[:3]: a(x)
    smf(WA + 12, OF, WO + 96)
    for x in sal[3:]: a(x)
    pk = pack(0) + pack(1)
    n = 0; side = []
    for ac in range(4):
        for wp in range(1, 4):
            if ac == 0: a(f"s_waitcnt lgkmcnt({4-wp})")
            smf(WA + 4 * ac, OF + 4 * wp, WO + (ac * 4 + wp) * 8)
            n += 1
            stamp(f"wo{n}", True)
            if n in (6, 9, 12): side += pk.pop(0)
            if side: a(side.pop(0))
    for x in side: a(x)
    for i in range(3):
        a(f"ds_read_b128 {vr(RING+4*i,4)}, v{vLdsW} offset:{(i>>2)*16384+(i&3)*1024}")
    for x in pk.pop(0): a(x)
    stamp("x1st")
    for i in range(3, 8):
        a(f"ds_read_b128 {vr(RING+4*i,4)}, v{vLdsW} offset:{(i>>2)*16384+(i&3)*1024}")
    a("s_waitcnt vmcnt(2)")
    a(f"v_add_u32 v{vT}, s{sKVL}, v{vL16}")
    for f in range(4):
        a(f"ds_read_b128 {vr(Kx+4*f,4)}, v{vT} offset:{f*1024}")
    if cfg.get("ack1"): a("s_waitcnt vmcnt(1)")
    pad(cfg.get("d1", 40))
    def x1_issue(r):
        a(f"buffer_load_dwordx4 {vr(r,4)}, v{vX1l}, {W}, s{sX1a} offen sc1")
        a(f"buffer_load_dwordx4 {vr(r+4,4)}, v{vX1l}, {W}, s{sX1a} offen offset:1024 sc1")
    def x1_check(r, n):
        a(f"s_waitcnt vmcnt({n+1})")
        mfma(104, 40, r, None)
        a(f"s_waitcnt vmcnt({n})")
        mfma(104, 40, r + 4, 104)
        a(f"v_bitop3_b32 v{vT}, v{r}, v{r+4}, s{sTag} bitop3:0x7e")
        a(f"v_and_b32 v{vT}, 1, v{vT}")
        a(f"v_cmp_ne_u32 vcc, 0, v{vT}")
    stamp("x1iss")
    x1_issue(96)
    a("s_waitcnt lgkmcnt(12)")
    if cfg.get("ack1"): a("s_waitcnt vmcnt(2)")
    if cfg.get("one1"):
        x1_check(96, 0)
    else:
        pad(cfg.get("g1", 35))
        x1_issue(112)
        x1_check(96, 2)
    if not cfg.get("nowait1"): a(f"s_cbranch_vccnz L_chain_x1b{tag}")
    a.label(f"L_chain_x1ok{tag}")
    stamp("x1ok")
    a(f"v_add_f32_dpp v104, v104, v104 row_ror:4 row_mask:0xf bank_mask:0xf")
    a(f"v_add_f32_dpp v105, v105, v105 row_ror:4 row_mask:0xf bank_mask:0xf")
    a(f"s_xor_b32 s{sTag}, s{sTag}, 1")
    a(f"v_add_f32_dpp v104, v104, v104 row_ror:8 row_mask:0xf bank_mask:0xf")
    a(f"v_add_f32_dpp v105, v105, v105 row_ror:8 row_mask:0xf bank_mask:0xf")
    a(f"v_cvt_pk_bf16_f32 v{vR}, v104, v105")
    a(f"v_min_u32 v{vR}, -2, v{vR}")
    a(f"buffer_store_dword v{vR}, v{vX2s}, {W}, s{sX2st} offen{st}")
    if cfg.get("count_redo"):
        a(f"s_lshl_b32 s{sT0}, s{sSPIN}, 16")
        a(f"s_add_u32 s31, s31, s{sT0}")
    if stamp.on:
        a(f"s_cmp_eq_u32 s{sStep}, {cfg.get('stamp_step', 40)}")
        a(f"s_cbranch_scc0 L_chain_loop{tag}")
        a("s_waitcnt lgkmcnt(0)")
        a(f"s_lshl_b32 s{sT0}, s{sMEMB}, 2")
        a(f"s_add_u32 s{sT0}, s{sT0}, s{sWAVE}")
        a(f"s_lshl_b32 s{sT1}, s{sLAY}, 7")
        a(f"s_add_u32 s{sT0}, s{sT0}, s{sT1}")
        a(f"s_lshl_b32 s{sT0}, s{sT0}, 6")
        a(f"s_add_u32 s{sT0}, s{sT0}, {OFF_STAMP:#x}")
        a(f"v_mov_b32 v108, 0")
        for i in range(stamp.n):
            a(f"v_mov_b32 v109, s{stamp.base+2*i}")
            a(f"buffer_store_dword v109, v108, {W}, s{sT0} offen offset:{4*i}")
        cfg["stamp_names"] = stamp.names
    a(f"s_branch L_chain_loop{tag}")
    a.label(f"L_chain_x1b{tag}")
    x1_issue(96)
    spin_tick(a)
    if cfg.get("one1"): x1_check(96, 0)
    else:
        x1_check(112, 2)
        a(f"s_cbranch_vccz L_chain_x1ok{tag}")
        x1_issue(112)
        spin_tick(a)
        x1_check(96, 2)
    a(f"s_cbranch_vccz L_chain_x1ok{tag}")
    a(f"s_branch L_chain_x1b{tag}")
    a.label(f"L_chain_x2b{tag}")
    x2_issue(A)
    spin_tick(a)
    zero_k()
    if cfg.get("one2"): x2_check(A, 0)
    else:
        x2_check(A + 8, 2)
        a(f"s_cbranch_vccz L_chain_x2c{tag}")
        x2_issue(A + 8)
        spin_tick(a)
        zero_k()
        x2_check(A, 2)
    a(f"s_cbranch_vccz L_chain_x2ok{tag}")
    a(f"s_branch L_chain_x2b{tag}")
    a.label(f"L_chain_x2c{tag}")
    for i in range(4):
        a(f"v_mov_b64 {vr(A+2*i,2)}, {vr(A+8+2*i,2)} ; sameval")
    a(f"s_branch L_chain_x2ok{tag}")
    if nomax:
        a.label(f"L_chain_big{tag}")
        true_max()
        weights_to_o(False)
        a(f"s_branch L_chain_bigok{tag}")
    a.label(f"L_chain_last{tag}")
    if cfg.get("count_redo"):
        a("s_memrealtime s[70:71]")
        a("s_memtime s[72:73]")
        a(f"s_lshl_b32 s{sT0}, s{sMEMB}, 2")
        a(f"s_add_u32 s{sT0}, s{sT0}, s{sWAVE}")
        a(f"s_lshl_b32 s{sT1}, s{sLAY}, 7")
        a(f"s_add_u32 s{sT0}, s{sT0}, s{sT1}")
        a(f"s_lshl_b32 s{sT0}, s{sT0}, 6")
        a(f"s_add_u32 s{sT0}, s{sT0}, {OFF_STAMP:#x}")
        a(f"v_mov_b32 v108, 0")
        a("s_waitcnt lgkmcnt(0)")
        a(f"s_sub_u32 s70, s70, s100")
        a(f"s_sub_u32 s72, s72, s98")
        for i, r in enumerate((72, 31, 70, 101)):
            a(f"v_mov_b32 v109, s{r}")
            a(f"buffer_store_dword v109, v108, {W}, s{sT0} offen offset:{48+4*i}")
    a(f"buffer_store_dword v{vR}, v{vX2s}, {W}, s{sMemOff} offen sc1")
    a("s_waitcnt vmcnt(0) lgkmcnt(0)")
    if cfg.get("probe"):
        what, lay = cfg["probe"]
        a(f"s_cmp_lg_u32 s{sLAY}, {lay}")
        a("s_cbranch_scc1 L_done")
        if what == "T0": a("s_mov_b32 s74, s101")
        elif what == "loop": a("s_mov_b32 s74, s70")
        elif what == "end": a("s_add_u32 s74, s70, s101")
        a("s_sub_u32 s75, s100, s101")
        a("s_add_u32 s74, s74, 23000")
        lab = a.newlab("L_probe")
        a.label(lab)
        a("s_memrealtime s[76:77]")
        a("s_waitcnt lgkmcnt(0)")
        a("s_sub_u32 s76, s76, s75")
        a("s_cmp_lt_u32 s76, s74")
        a(f"s_cbranch_scc1 {lab}")
    a("s_branch L_done")
    a.label(f"L_chain_kvwait{tag}")
    if cfg.get("count_redo"): a("s_add_u32 s31, s31, 0x4000000")
    spin_init(a)
    lab = a.newlab("L_kvspin")
    a.label(lab)
    for f in range(4):
        a(f"buffer_load_dwordx4 {vr(Kx+4*f,4)}, v{vL16}, {W}, s{sKV} offen offset:{f*1024} sc1")
    spin_tick(a)
    a("s_waitcnt vmcnt(0)")
    kv_check()
    a(f"s_cbranch_vccz L_chain_kvok{tag}")
    a("s_sleep 4")
    a(f"s_branch {lab}")
```

```python
import re

def vr(a, n=1):
    return f"v{a}" if n == 1 else f"v[{a}:{a+n-1}]"
def ar(a, n=1):
    return f"a{a}" if n == 1 else f"a[{a}:{a+n-1}]"
def sr(a, n=1):
    return f"s{a}" if n == 1 else f"s[{a}:{a+n-1}]"
def xr(a, n=1):
    return vr(a, n) if a < 256 else ar(a - 256, n)

_REG = re.compile(r"^(-|abs\()?\|?([vas])(?:(\d+)|\[(\d+):(\d+)\])\|?\)?$")

def regs_of(tok):
    tok = tok.strip()
    if tok in ("vcc",):
        return {("s", "vcc")}
    if tok in ("exec",):
        return {("s", "exec")}
    if tok == "m0":
        return {("s", "m0")}
    m = _REG.match(tok)
    if not m:
        return set()
    k = m.group(2)
    if m.group(3) is not None:
        lo = hi = int(m.group(3))
    else:
        lo, hi = int(m.group(4)), int(m.group(5))
    if k == "s":
        return {("s", i) for i in range(lo, hi + 1)}
    off = 256 if k == "a" else 0
    return {("v", i + off) for i in range(lo, hi + 1)}

TRANS = ("v_exp_f32", "v_log_f32", "v_rcp_f32", "v_rsq_f32", "v_sqrt_f32", "v_sin_f32", "v_cos_f32")

class Ins:
    __slots__ = ("text", "op", "kind", "w", "r", "srcC", "passes", "label", "target", "cond", "mods",
                 "dpp", "states", "srcAB", "vm", "lgkm", "wide_store", "lds_dma", "sreads_valu")
    def __init__(self, text):
        self.text = text
        self.label = None; self.target = None; self.cond = False
        self.w = set(); self.r = set(); self.srcC = set(); self.srcAB = set()
        self.passes = 0; self.dpp = False; self.vm = False; self.lgkm = None
        self.wide_store = set(); self.lds_dma = False; self.sreads_valu = set()
        t = text.split(";")[0].strip()
        self.kind = "none"; self.op = ""; self.states = 0; self.mods = ""
        if not t or t.startswith("."):
            return
        if t.endswith(":"):
            self.label = t[:-1]; self.kind = "label"; return
        parts = t.split(None, 1)
        op = parts[0]; self.op = op
        rest = parts[1] if len(parts) > 1 else ""
        ops = [x.strip() for x in re.split(r",(?![^\[]*\])", rest)] if rest else []
        if ops:
            last = ops[-1].split(None, 1)
            if not op.startswith("s_waitcnt"):
                ops[-1] = last[0]
                self.mods = last[1] if len(last) > 1 else ""
        self.states = 1
        R = lambda i: regs_of(ops[i]) if i < len(ops) else set()
        allr = lambda a: set().union(*[R(i) for i in range(a, len(ops))]) if a < len(ops) else set()
        if op.startswith("v_mfma") or op.startswith("v_smfmac"):
            self.kind = "mfma"
            self.passes = 8 if "32x32" in op else 4
            self.w = R(0)
            if op.startswith("v_smfmac"):
                self.srcC = R(0); self.srcAB = R(1) | R(2) | R(3); self.states = 3
            else:
                self.srcC = R(3); self.srcAB = R(1) | R(2); self.states = 2
            self.r = self.srcC | self.srcAB
        elif op.startswith("v_"):
            self.kind = "valu"
            self.dpp = ("row_" in self.mods) or ("quad_perm" in self.mods) or op.endswith("_dpp")
            if op.startswith("v_cmp"):
                self.w = R(0); self.r = allr(1)
            elif op.startswith("v_permlane"):
                self.w = R(0) | R(1); self.r = R(0) | R(1); self.kind = "perm"
            elif op.startswith("v_readfirstlane") or op.startswith("v_readlane"):
                self.w = R(0); self.r = allr(1); self.kind = "readlane"
            elif op.startswith(("v_add_co", "v_sub_co", "v_addc_co")):
                self.w = R(0) | R(1); self.r = allr(2)
            elif op.startswith("v_nop"):
                pass
            else:
                self.w = R(0); self.r = allr(1)
                if op.startswith(("v_fmac", "v_dot2c", "v_pk_fmac", "v_writelane")) or self.dpp:
                    self.r |= R(0)
                if op.startswith("v_cndmask") and len(ops) == 3:
                    self.r |= {("s", "vcc")}
            self.sreads_valu = {x for x in self.r if x[0] == "s"}
        elif op.startswith("ds_"):
            self.kind = "ds"; self.lgkm = "ds"
            if op.startswith(("ds_read", "ds_bpermute", "ds_swizzle", "ds_permute")) or "_rtn" in op:
                self.w = R(0); self.r = allr(1)
            else:
                self.r = allr(0)
        elif op.startswith(("buffer_", "global_")):
            self.kind = "vmem"; self.vm = True
            if op in ("buffer_wbl2", "buffer_inv"):
                pass
            elif "load" in op:
                if " lds" in (" " + self.mods) or "load_lds" in op:
                    self.lds_dma = True; self.r = allr(0) | {("s", "m0")}
                else:
                    self.w = R(0); self.r = allr(1)
            elif "atomic" in op:
                if "sc0" in self.mods:
                    self.w = R(0); self.r = allr(0) if op.startswith("buffer") else allr(1)
                else:
                    self.r = allr(0)
            else:
                self.r = allr(0)
                if op.endswith(("x3", "x4")):
                    self.wide_store = R(0) if op.startswith("buffer") else R(1)
        elif op.startswith(("s_load", "s_buffer_load", "s_memtime", "s_memrealtime", "s_atomic")):
            self.kind = "smem"; self.lgkm = "smem"; self.w = R(0); self.r = allr(1)
        elif op == "s_nop":
            self.kind = "nop"; self.states = int(ops[0], 0) + 1
        elif op == "s_waitcnt":
            self.kind = "wait"; self.mods = rest
        elif op in ("s_branch",) or op.startswith("s_cbranch"):
            self.kind = "branch"; self.target = ops[0]; self.cond = op != "s_branch"
        elif op in ("s_endpgm", "s_setpc_b64"):
            self.kind = "end"
        elif op.startswith("s_"):
            self.kind = "salu"
            if op.startswith(("s_cmp", "s_barrier", "s_sleep", "s_setprio", "s_bitcmp")):
                self.r = allr(0)
            else:
                self.w = R(0); self.r = allr(1)
                if "saveexec" in op:
                    self.w |= {("s", "exec")}
        else:
            raise ValueError("unknown instr: " + text)

def need_states(p, c):
    n = 0
    pv = p.kind in ("valu", "perm", "readlane")
    cv = c.kind in ("valu", "perm", "readlane")
    if pv:
        wv = {x for x in p.w if x[0] == "v"}
        ws = {x for x in p.w if x[0] == "s"}
        if wv:
            if c.kind == "mfma" and wv & c.r: n = max(n, 2)
            if cv and c.dpp and wv & c.r: n = max(n, 2)
            if c.kind == "perm" and wv & c.r: n = max(n, 2)
            if c.kind == "readlane" and wv & c.r: n = max(n, 1)
            if p.op.split("_e")[0] in TRANS and cv and c.op.split("_e")[0] not in TRANS and wv & c.r: n = max(n, 1)
            if ("op_sel" in p.mods or "sdwa" in p.op) and not p.op.startswith("v_pk_") and cv and wv & (c.r | c.w): n = max(n, 1)
        if ws:
            if cv and ws & c.sreads_valu: n = max(n, 4 if c.kind == "readlane" else 2)
            if c.kind == "vmem" and ws & c.r: n = max(n, 5)
            if c.kind == "salu" and ws & c.r: n = max(n, 1)
    if p.kind == "mfma":
        big = p.passes == 8
        if c.kind == "mfma":
            if p.w & c.srcAB: n = max(n, 12 if big else 8)
            if p.w & c.srcC:
                if not (p.w == c.srcC and p.passes == c.passes): n = max(n, 10 if big else 6)
            elif p.w & c.w: n = max(n, 10 if big else 6)
        elif cv or c.kind in ("vmem", "ds"):
            if p.w & (c.r | c.w): n = max(n, 12 if big else 8)
            if cv and p.srcC & c.w: n = max(n, 7 if big else 3)
    if p.wide_store and p.wide_store & c.w and c.kind != "label":
        n = max(n, 2 if cv else 1)
    if p.kind == "salu" and ("s", "m0") in p.w and c.lds_dma: n = max(n, 1)
    return n

class Asm:
    def __init__(self):
        self.ins = []
        self.nlab = 0
    def __call__(self, text):
        for line in text.split("\n"):
            s = line.strip()
            if s:
                self.ins.append(Ins(s))
    def label(self, name):
        self.ins.append(Ins(name + ":"))
    def newlab(self, base="L"):
        self.nlab += 1
        return f"{base}_{self.nlab}"
    def _preds(self):
        labpos = {x.label: i for i, x in enumerate(self.ins) if x.label}
        jumps = {}
        for i, x in enumerate(self.ins):
            if x.kind == "branch":
                jumps.setdefault(labpos[x.target], []).append(i)
        return labpos, jumps
    def fix_hazards(self, verbose=False, timed=True):
        total = 0
        def elapsed(seq):
            t = 0; pipe = 0; vfree = 0
            for k, x in enumerate(seq):
                if k:
                    if x.kind == "mfma": t = max(t, pipe, vfree)
                    elif x.kind in ("valu", "perm", "readlane"): t = max(t, vfree)
                if k == len(seq) - 1: break
                if x.kind == "mfma":
                    pipe = t + 4 * x.passes
                    vfree = t + (12 if x.op.startswith("v_smfmac") else 8)
                    t += 4
                elif x.kind == "nop": t += 4 * x.states
                else:
                    if x.op.split("_e")[0] in TRANS: vfree = t + 8
                    t += 4
            return t // 4 - 1
        while True:
            labpos, jumps = self._preds()
            ins = self.ins
            out = []; changed = False
            inserts = {}
            for i, c in enumerate(ins):
                if c.kind in ("none", "label", "nop", "wait", "branch", "end"):
                    continue
                best = 0
                stack = [(i - 1, (c,))]
                seen = set()
                while stack:
                    j, seq = stack.pop()
                    while j >= 0 and len(seq) < 15:
                        if (j, len(seq)) in seen: break
                        seen.add((j, len(seq)))
                        p = ins[j]
                        if p.kind == "label":
                            for b in jumps.get(j, []):
                                stack.append((b, seq))
                            k = j - 1
                            while k >= 0 and ins[k].kind == "none": k -= 1
                            if k >= 0 and (ins[k].kind == "end" or (ins[k].kind == "branch" and not ins[k].cond)):
                                break
                            j -= 1
                            continue
                        if p.kind == "none":
                            j -= 1; continue
                        n = need_states(p, c)
                        if n:
                            full = (p,) + seq
                            if timed and p.kind == "mfma":
                                add = 0
                                while elapsed(full[:-1] + ((Ins(f"s_nop {add-1}"),) if add else ()) + full[-1:]) < n: add += 1
                            else:
                                add = n - sum(x.states for x in seq[:-1])
                            best = max(best, add)
                        seq = (p,) + seq
                        if j in inserts: seq = (Ins(f"s_nop {inserts[j]-1}"),) + seq
                        if sum(x.states for x in seq[:-1]) >= 13: break
                        j -= 1
                if best > 0:
                    inserts[i] = best
            if not inserts:
                break
            for i, x in enumerate(ins):
                if i in inserts:
                    out.append(Ins(f"s_nop {inserts[i]-1}"))
                    total += inserts[i]
                    if verbose: print("nop", inserts[i], "before", x.text)
                out.append(x)
            self.ins = out
        return total
    def check_waits(self, cap=6):
        labpos, jumps = self._preds()
        ins = self.ins
        errs = set()
        seen = {}
        work = [(0, (), ())]
        while work:
            i, vm, lg = work.pop()
            vm = list(vm); lg = list(lg)
            while i < len(ins):
                x = ins[i]
                if x.kind == "label":
                    key = (tuple(vm), tuple(lg))
                    s = seen.setdefault(i, set())
                    if key in s or len(s) >= cap: break
                    s.add(key)
                elif x.kind == "wait":
                    m = re.search(r"vmcnt\((\d+)\)", x.mods)
                    if m:
                        n = int(m.group(1))
                        if len(vm) > n: vm = vm[len(vm) - n:] if n else []
                    m = re.search(r"lgkmcnt\((\d+)\)", x.mods)
                    if m:
                        n = int(m.group(1))
                        if n == 0: lg = []
                        else:
                            nds = sum(1 for k, _ in lg if k == "ds")
                            drop = max(0, nds - n); keep = []
                            for k, w in lg:
                                if k == "ds" and drop: drop -= 1
                                else: keep.append((k, w))
                            lg = keep
                elif x.kind == "end":
                    break
                elif x.kind != "none":
                    touch = x.r | x.w
                    if x.op in ("s_memtime", "s_memrealtime") or (x.kind == "mfma" and "nochk" in x.text): touch = set()
                    if "sameval" in x.text:
                        vm = [w - x.w for w in vm]
                    for w in vm:
                        if w & touch and not (x.vm and not (w & x.r)):
                            errs.add((i, "vm", x.text))
                    for k, w in lg:
                        if w & touch and not (x.lgkm == "ds" and k == "ds" and not (w & x.r)):
                            errs.add((i, "lgkm", x.text))
                    if x.vm:
                        vm.append(frozenset() if "nochk" in x.text else frozenset(x.w))
                        if len(vm) > 63: vm = vm[-63:]
                    if x.lgkm:
                        lg.append((x.lgkm, frozenset(x.w)))
                        if len(lg) > 40: lg = lg[-40:]
                    if x.kind == "branch":
                        work.append((labpos[x.target], tuple(vm), tuple(lg)))
                        if not x.cond: break
                i += 1
        return sorted(errs)
    def text(self):
        out = []
        for x in self.ins:
            out.append(x.text if (x.label or x.text.startswith(".")) else " " + x.text)
        return "\n".join(out) + "\n"

import subprocess, tempfile, os
_E64_OK = ("v_mov_b32", "v_add_f32", "v_mul_f32", "v_max_f32", "v_min_u32", "v_max_u32", "v_and_b32", "v_or_b32", "v_xor_b32",
           "v_exp_f32", "v_rcp_f32", "v_sqrt_f32", "v_add_u32", "v_sub_u32", "v_subrev_u32", "v_lshlrev_b32", "v_lshrrev_b32",
           "v_mov_b64", "v_sub_f32", "v_cndmask_b32", "v_cmp_eq_u32", "v_cmp_ne_u32", "v_cmp_nlt_f32")

def sizes_of(ins):
    txt = '.amdgcn_target "amdgcn-amd-amdhsa--gfx950"\n.text\n'
    real = []
    for i, x in enumerate(ins):
        if x.kind == "label": txt += x.text + "\n"
        elif x.kind == "none": continue
        else:
            txt += f"Z{i}:\n {x.text}\n"; real.append(i)
    txt += "Zend:\n"
    d = tempfile.mkdtemp()
    open(d + "/a.s", "w").write(txt)
    subprocess.run(["clang", "-x", "assembler", "-target", "amdgcn-amd-amdhsa", "-mcpu=gfx950", "-c", d + "/a.s", "-o", d + "/a.o"], check=True)
    out = subprocess.run(["llvm-objdump", "-t", d + "/a.o"], capture_output=True, text=True).stdout
    addr = {}
    for line in out.splitlines():
        p = line.split()
        if len(p) >= 4 and p[-1].startswith("Z"): addr[p[-1][1:]] = int(p[0], 16)
    sz = {}
    for k, i in enumerate(real):
        nxt = addr[str(real[k + 1])] if k + 1 < len(real) else addr["end"]
        sz[i] = nxt - addr[str(i)]
    return sz

def align8(asm, minrun=2, padrun=6):
    ins = asm.ins
    sz = sizes_of(ins)
    out = []; par = 0; last4 = None; fixed = padded = 0
    i = 0; n = len(ins)
    while i < n:
        x = ins[i]
        if x.kind == "none":
            if x.text.startswith(".p2align"): par = 0; last4 = None
            out.append(x); i += 1; continue
        if x.kind == "label":
            out.append(x); i += 1; continue
        s = sz[i]
        if s % 8 == 0 and par:
            j = i; cnt = 0
            while j < n and (ins[j].kind in ("none", "label") or sz[j] % 8 == 0):
                if ins[j].kind in ("valu", "perm"): cnt += 1
                j += 1
            if cnt >= minrun:
                done = False
                if last4 is not None:
                    y = out[last4]
                    if y.op in _E64_OK and not y.dpp and "0x" not in y.text and not re.search(r", \d{3,},", y.text):
                        out[last4] = Ins(y.text.replace(y.op, y.op + "_e64", 1)); done = True
                    elif y.op == "s_nop":
                        k = y.states - 1
                        if k == 0: out[last4] = Ins("v_nop_e64")
                        else: out[last4] = Ins(f"s_nop {k-1}"); out.insert(last4 + 1, Ins("s_nop 0"))
                        done = True
                if done: fixed += 1; par = 0; last4 = None
                elif cnt >= padrun:
                    out.append(Ins("s_nop 0")); padded += 1; par = 0; last4 = None
        out.append(x)
        if s % 8 == 4:
            par ^= 1; last4 = len(out) - 1
        i += 1
    asm.ins = out
    return fixed, padded

def check_ptrs(asm, lo=4, hi=29, srds=(32, 36, 40)):
    ins = asm.ins
    labpos, jumps = asm._preds()
    errs = set(); seen = {}
    rets = [i + 1 for i, x in enumerate(ins) if x.kind == "branch" and i and ins[i - 1].op == "s_getpc_b64"]
    work = [(0, frozenset())]
    while work:
        i, bad = work.pop()
        bad = set(bad)
        while i < len(ins):
            x = ins[i]
            if x.kind == "label":
                old = seen.get(i)
                if old is not None and bad <= old: break
                bad |= (old or set()); seen[i] = set(bad)
            elif x.kind == "end":
                if x.op == "s_setpc_b64":
                    for r in rets: work.append((r, frozenset(bad)))
                break
            elif x.kind != "none":
                rs = {r for k, r in x.r if k == "s" and isinstance(r, int)}
                ws = {r for k, r in x.w if k == "s" and isinstance(r, int)}
                srdw = [r for r in ws if any(b <= r < b + 4 for b in srds)]
                if srdw:
                    if x.op != "s_mov_b32": errs.add((i, "descriptor word written by " + x.text))
                    if rs & bad: errs.add((i, "descriptor from overwritten pointer: " + x.text))
                    if any(r % 4 < 2 for r in srdw) and not any(lo <= r <= hi for r in rs): errs.add((i, "descriptor base not from a pointer: " + x.text))
                if x.kind in ("vmem", "smem") and "[" in x.text:
                    for m in re.finditer(r"s\[(\d+):(\d+)\]", x.text):
                        a0, a1 = int(m.group(1)), int(m.group(2))
                        if a1 - a0 == 1 and (a0 in bad or a1 in bad) and (x.kind == "vmem" or ("s", a0) in x.r):
                            errs.add((i, "base pair overwritten: " + x.text))
                if not (x.kind == "smem" and "s[0:1]" in x.text):
                    bad |= {r for r in ws if lo <= r <= hi}
                if x.kind == "branch":
                    work.append((labpos[x.target], frozenset(bad)))
                    if not x.cond: break
            i += 1
    return sorted(errs)
```

```python
from gen_common import *

def chain(a, local, cfg):
    st = "" if local else " sc1"
    tag = "L" if local else "G"
    stamp = Stamps(a, cfg.get("stamp") == "chain" and local, only=cfg.get("only"))
    vL16, vIdx, vLdsW, vSwx, vSwm, vSrx, vSrm, vOw, vOr, vX1s, vX1l, vX2s = range(1, 13)
    vR, vOnes, vT = 13, 14, 15
    vAw = 0
    sKVb, sKT, sLim, sKVc, sLate = 93, 95, 63, 66, 67
    SelT, VACC, SelM = 16, 20, 28
    q0, k0, q1, k1 = 32, 36, 40, 44
    Kx, Vx, RING, A, WO = 48, 56, 64, 96, 128
    WK, WV = 256, 384
    sStep, sTag, sX2st, sX2re, sMemOff, sKV, sX1a, sX1b, sC = 55, 56, 57, 58, 59, 60, 61, 62, 96
    sMaskHi = 64
    sLds, sRot = 66, 67
    sX2l = 92
    AST, KVL, SX, SM, SJ, OA, CST = 0x20000, 0x22000, 0x27000, 0x27800, 0x27f00, 0x26000, 0x27a00
    sKVL = 94
    lane = 0
    if cfg.get("chain_prologue_done") is None:
        cfg["chain_prologue_done"] = True
        a.label("L_chain")
        a(f"v_and_b32 v0, 63, v0")
        a(f"v_lshlrev_b32 v{vL16}, 4, v0")
        a(f"s_lshl_b32 s{sLds}, s{sWAVE}, 15")
        a(f"s_lshl_b32 s{sRot}, s{sWAVE}, 1")
        vD, vTR, vDo, vTRo = 32, 33, 34, 35
        sL2, sL3 = 70, 71
        vD1, vTR1, sLq = 38, 39, 72
        coop_addrs(a, vD, vD1, vTR, vTR1, vT)
        a(f"s_lshl_b32 s{sLq}, s{sWAVE}, 12")
        a(f"v_lshrrev_b32 v{vDo}, 3, v0")
        a(f"v_lshlrev_b32 v{vDo}, 10, v{vDo}")
        a(f"v_and_b32 v{vT}, 7, v0")
        a(f"v_lshl_add_u32 v{vDo}, v{vT}, 4, v{vDo}")
        a(f"v_bfe_u32 v{vT}, v0, 4, 1")
        a(f"v_lshlrev_b32 v{vTRo}, 11, v{vT}")
        a(f"v_bfe_u32 v{vT}, v0, 5, 1")
        a(f"v_lshl_add_u32 v{vTRo}, v{vT}, 9, v{vTRo}")
        a(f"v_bfe_u32 v{vT}, v0, 2, 1")
        a(f"v_lshl_add_u32 v{vTRo}, v{vT}, 7, v{vTRo}")
        a(f"v_bfe_u32 v{vT}, v0, 3, 1")
        a(f"v_lshl_add_u32 v{vTRo}, v{vT}, 5, v{vTRo}")
        a(f"v_and_b32 v{vT}, 3, v0")
        a(f"v_lshl_add_u32 v{vTRo}, v{vT}, 3, v{vTRo}")
        a(f"v_add_u32 v{vTRo}, s{sLq}, v{vTRo}")
        a(f"s_add_u32 s{sT0}, s{sLds}, s{sLq}")
        a(f"v_add_u32 v{vLdsW}, s{sT0}, v{vL16}")
        a(f"s_lshl_b32 s{sL2}, s{sMEMB}, 8")
        a(f"s_lshl_b32 s{sT1}, s{sWAVE}, 15")
        a(f"s_add_u32 s{sL2}, s{sL2}, s{sT1}")
        a(f"s_lshl_b32 s{sL3}, s{sMEMB}, 17")
        a(f"s_lshl_b32 s{sT1}, s{sWAVE}, 8")
        a(f"s_add_u32 s{sL3}, s{sL3}, s{sT1}")
        late_start(a, cfg)
        stages = []
        for ptr, base in ((sWK, WK), (sWV, WV)):
            for J in range(8):
                def consume(slot, J=J, base=base):
                    end = a.newlab("L_cw")
                    for w in range(4):
                        nxt = a.newlab("L_cw")
                        if w < 3:
                            a(f"s_cmp_lg_u32 s{sWAVE}, {w}")
                            a(f"s_cbranch_scc1 {nxt}")
                        jj = J ^ (2 * w)
                        coop_reads(a, slot, vTR, vTR1, 40, base + jj * 16, base + jj * 16 + 8)
                        if w < 3:
                            a(f"s_branch {end}")
                            a.label(nxt)
                    a.label(end)
                stages.append(dict(issue=lambda slot, ptr=ptr, J=J: coop_issue(a, ptr, J, slot, sL2, vD, vD1, sLq), consume=consume))
        for wp in range(4):
            for ap in range(2):
                def issue(slot, wp=wp, ap=ap):
                    if wp == 0 and ap == 0: set_srd(a, sWT, sWO, 0x400000)
                    a(f"s_add_u32 m0, s{sLq}, {slot*16384}")
                    a(f"s_xor_b32 s{sT0}, s{sWAVE}, {wp}")
                    a(f"s_lshl_b32 s{sT0}, s{sT0}, 15")
                    a(f"s_add_u32 s{sT0}, s{sT0}, s{sL3}")
                    if ap: a(f"s_add_u32 s{sT0}, s{sT0}, {ap*128}")
                    for q in range(4):
                        if q: a(f"s_add_u32 s{sT0}, s{sT0}, {8192-1024}")
                        a(f"buffer_load_dwordx4 v{vDo}, s[{sWT}:{sWT+3}], s{sT0} offen offset:{q*1024}{' nt' if '14c' in cfg.get('ntw', ()) else ''} lds")
                def consume(slot, wp=wp, ap=ap):
                    va = vTRo
                    if slot >= 4:
                        a(f"v_add_u32 v40, 0x10000, v{vTRo}"); va = 40
                    for a1 in range(2):
                        dst = WO + ((2 * ap + a1) * 4 + wp) * 8
                        for e4 in range(4):
                            off = (slot & 3) * 16384 + (8 * (e4 >> 1) + 2 * (e4 & 1)) * 128 + a1 * 64
                            a(f"ds_read_b64_tr_b16 {vr(dst+2*e4,2)}, v{va} offset:{off}")
                stages.append(dict(issue=issue, consume=consume))
        for J in range(8):
            tmp = RING + 16 * (J & 1)
            def post(slot, tmp=tmp):
                a(f"s_add_u32 s{sT0}, s{sLq}, {slot*16384}")
                a(f"v_add_u32 v40, s{sT0}, v{vL16}")
                for i in range(4):
                    a(f"ds_write_b128 v40, {vr(tmp+4*i,4)} offset:{i*1024}")
            stages.append(dict(issue=lambda slot, J=J: coop_issue(a, sWQ, J, slot, sL2, vD, vD1, sLq),
                               consume=lambda slot, tmp=tmp: coop_reads(a, slot, vTR, vTR1, 40, tmp, tmp + 8), post=post))
        def setup_rest():
            sel_consts(a, lane, 96, selM=SelM, selLo=112, selHi=116, selT=SelT)
            smf_index(a, lane, vIdx, 96)
            n_, g_, q_ = 96, 97, 98
            a(f"v_and_b32 v{n_}, 15, v0")
            a(f"v_lshrrev_b32 v{g_}, 4, v0")
            a(f"v_and_b32 v{q_}, 7, v0")
            a(f"s_mov_b32 s{sMaskHi}, 0xff00ff00")
            a(f"s_mov_b32 s{sMaskHi+1}, 0xff00ff00")
            a(f"v_lshlrev_b32 v99, 3, v{q_}")
            a(f"v_and_b32 v{vT}, 1, v{g_}")
            a(f"v_lshl_add_u32 v99, v{vT}, 6, v99")
            a(f"v_add_u32 v99, {SJ}, v99")
            a(f"v_lshrrev_b32 v{vT}, 1, v{g_}")
            a(f"v_lshlrev_b32 v{vSwx}, 8, v{vT}")
            a(f"v_lshl_add_u32 v{vSwx}, v{q_}, 4, v{vSwx}")
            a(f"v_and_b32 v{vT}, 1, v{g_}")
            a(f"v_lshl_add_u32 v{vSwx}, v{vT}, 3, v{vSwx}")
            a(f"s_lshl_b32 s{sT0}, s{sWAVE}, 9")
            a(f"s_add_u32 s{sT1}, s{sT0}, {SX}")
            a(f"v_add_u32 v{vSwx}, s{sT1}, v{vSwx}")
            a(f"v_cndmask_b32 v{vSwx}, v{vSwx}, v99, s[{sMaskHi}:{sMaskHi+1}]")
            a(f"v_lshlrev_b32 v{vSwm}, 4, v{q_}")
            a(f"v_lshl_add_u32 v{vSwm}, v{vT}, 3, v{vSwm}")
            a(f"s_lshl_b32 s{sT1}, s{sWAVE}, 7")
            a(f"s_add_u32 s{sT1}, s{sT1}, {SM}")
            a(f"v_add_u32 v{vSwm}, s{sT1}, v{vSwm}")
            a(f"s_mov_b32 s98, 0")
            a(f"s_mov_b32 s99, 0x00ff00ff")
            a(f"v_cndmask_b32 v{vSwm}, v99, v{vSwm}, s[98:99]")
            a(f"v_lshlrev_b32 v{vSrx}, 9, v{g_}")
            a(f"v_lshl_add_u32 v{vSrx}, v{n_}, 4, v{vSrx}")
            a(f"v_add_u32 v{vSrx}, {SX}, v{vSrx}")
            a(f"v_lshlrev_b32 v{vSrm}, 7, v{g_}")
            a(f"v_lshl_add_u32 v{vSrm}, v{q_}, 4, v{vSrm}")
            a(f"v_add_u32 v{vSrm}, {SM}, v{vSrm}")
            a(f"s_lshl_b32 s{sT1}, s{sWAVE}, 9")
            a(f"s_add_u32 s{sT1}, s{sT1}, {OA-SM}")
            a(f"v_bfe_u32 v{vT}, v0, 3, 1")
            a(f"v_lshl_add_u32 v{vOw}, v{vT}, 3, v{vSrm}")
            a(f"v_add_u32 v{vOw}, s{sT1}, v{vOw}")
            a(f"v_and_b32 v{vOr}, 0xf0, v{vL16}")
            a(f"v_add_u32 v{vOr}, {CST}, v{vOr}")
            a(f"v_lshrrev_b32 v{vT}, 2, v{n_}")
            a(f"v_lshl_add_u32 v{vT}, v{vT}, 2, v{g_}")
            a(f"v_lshlrev_b32 v{vX1s}, 11, v{vT}")
            a(f"v_and_b32 v{vT}, 3, v0")
            a(f"v_lshl_add_u32 v{vX1s}, v{vT}, 4, v{vX1s}")
            a(f"s_lshl_b32 s{sT0}, s{sWAVE}, 16")
            a(f"s_lshl_b32 s{sT1}, s{sMEMB}, 6")
            a(f"s_add_u32 s{sT0}, s{sT0}, s{sT1}")
            a(f"v_add_u32 v{vX1s}, s{sT0}, v{vX1s}")
            a(f"s_lshl_b32 s{sT2}, s{sMEMB}, 2")
            a(f"s_add_u32 s{sT2}, s{sT2}, s{sWAVE}")
            a(f"s_lshl_b32 s{sT0}, s{sT2}, 11")
            a(f"v_add_u32 v{vX1l}, s{sT0}, v{vL16}")
            a(f"v_lshlrev_b32 v{vX2s}, 4, v{g_}")
            a(f"v_lshl_add_u32 v{vX2s}, v{n_}, 2, v{vX2s}")
            a(f"s_lshl_b32 s{sT0}, s{sT2}, 6")
            a(f"v_add_u32 v{vX2s}, s{sT0}, v{vX2s}")
            a(f"v_mov_b32 v{vT}, {OOB:#x}")
            a(f"v_cmp_gt_u32 vcc, 4, v{n_}")
            a(f"v_cndmask_b32 v{vX2s}, v{vT}, v{vX2s}, vcc")
            a(f"v_and_b32 v100, 3, v0")
            a(f"v_lshlrev_b32 v100, 1, v100")
            a(f"v_lshl_add_u32 v100, v{g_}, 10, v100")
            a(f"v_and_b32 v104, 3, v0")
            a(f"v_bfe_u32 v105, v0, 2, 2")
            a(f"v_lshl_add_u32 v104, v104, 2, v105")
            a(f"v_and_b32 v105, 1, v104")
            a(f"v_lshlrev_b32 v105, 4, v105")
            a(f"v_mov_b32 v106, 0x3f80")
            a(f"v_lshlrev_b32 v105, v105, v106")
            a(f"v_lshrrev_b32 v104, 1, v104")
            for e in range(4):
                a(f"v_cmp_eq_u32 vcc, {e}, v104")
                a(f"v_cndmask_b32 v{108+e}, 0, v105, vcc")
            a(f"v_and_b32 v104, 0xf0, v{vL16}")
            a(f"v_add_u32 v104, {CST}, v104")
            a(f"ds_write_b128 v104, v[108:111]")
            a(f"ds_write_b128 v104, v[112:115] offset:256")
            a(f"ds_write_b128 v104, v[116:119] offset:512")
            for e in range(4): a(f"v_mov_b32 v{120+e}, 0x3f803f80")
            for e in range(4): a(f"v_mov_b32 v{124+e}, 0x3f003f00")
            a(f"ds_write_b128 v104, v[120:123] offset:768")
            a(f"ds_write_b128 v104, v[124:127] offset:1024")
            a(f"s_and_b32 s{sT0}, s{sT2}, 1")
            a(f"s_lshl_b32 s{sT0}, s{sT0}, 12")
            a(f"s_lshr_b32 s{sT1}, s{sT2}, 4")
            a(f"s_lshl_b32 s{sT1}, s{sT1}, 7")
            a(f"s_add_u32 s{sT0}, s{sT0}, s{sT1}")
            a(f"s_bfe_u32 s{sT1}, s{sT2}, 0x10001")
            a(f"s_lshl_b32 s{sT1}, s{sT1}, 5")
            a(f"s_add_u32 s{sT0}, s{sT0}, s{sT1}")
            a(f"s_bfe_u32 s{sT1}, s{sT2}, 0x20002")
            a(f"s_lshl_b32 s{sT1}, s{sT1}, 3")
            a(f"s_add_u32 s{sT0}, s{sT0}, s{sT1}")
            set_srd(a, sIN, sMEM0, 8192)
            a(f"buffer_load_ushort v36, v100, s[{sIN}:{sIN+3}], s{sT0} offen")
            a(f"buffer_load_ushort v37, v100, s[{sIN}:{sIN+3}], s{sT0} offen offset:64")
            a(f"s_mov_b32 s{sStep}, 0")
            a(f"s_mov_b32 s{sTag}, 0")
            a(f"s_lshl_b32 s{sT0}, s{sLAY}, 14")
            a(f"s_add_u32 s{sX2st}, s{sT0}, {OFF_X2:#x}")
            a(f"s_add_u32 s{sX2re}, s{sX2st}, 8192")
            a(f"s_lshl_b32 s{sT0}, s{sWAVE}, 11")
            a(f"s_add_u32 s{sX2l}, s{sT0}, s{sX2st}")
            a(f"s_add_u32 s{sT0}, s{sT0}, {AST}")
            a(f"v_add_u32 v{vAw}, s{sT0}, v{vL16}")
            a(f"s_lshl_b32 s{sT0}, s{sLAY}, 19")
            a(f"s_add_u32 s{sMemOff}, s{sT0}, {OFF_MEM:#x}")
            a(f"s_lshl_b32 s{sT0}, s{sLAY}, 18")
            a(f"s_add_u32 s{sX1a}, s{sT0}, {OFF_X1:#x}")
            a(f"s_add_u32 s{sX1b}, s{sX1a}, 32768")
            a(f"s_lshl_b32 s{sT0}, s{sLAY}, 21")
            a(f"s_lshl_b32 s{sT1}, s{sT2}, 12")
            a(f"s_add_u32 s{sT0}, s{sT0}, s{sT1}")
            a(f"s_add_u32 s{sKVb}, s{sT0}, {OFF_KVR:#x}")
            a(f"s_mov_b32 s{sKV}, s{sKVb}")
            a(f"s_mov_b32 s{sC}, {fbits(128**-0.5*1.4426950408889634):#x}")
            a(f"s_mov_b32 s{sC+1}, s{sC}")
            a(f"s_mov_b32 s{sLim}, {fbits(cfg.get('lim', 48.0) / (128**-0.5*1.4426950408889634)):#x}")
        load_stages(a, stages, meanwhile=setup_rest,
                    hooks=None if cfg.get("noinit") else {25: lambda: go_load(a)})
        trace(a, cfg, 6, None, vT)
        if not cfg.get("noinit"): wait_init(a, sampled=True, barrier=False)
        late_signal(a, cfg)
        a(f"v_lshl_or_b32 v{vR}, v37, 16, v36")
        a(f"v_min_u32 v{vR}, -2, v{vR}")
        for i in range(8):
            a(f"ds_read_b128 {vr(RING+4*i,4)}, v{vLdsW} offset:{(i>>2)*16384+(i&3)*1024}")
        a(f"v_mov_b32 v{vOnes}, -1")
        for f in range(4): a(f"v_mov_b32 v{Kx+4*f}, -1")
        if cfg.get("nokvcheck"):
            for f in range(16): a(f"v_mov_b32 v{Kx+f}, 0")
        a(f"s_lshl_b32 s{sKVL}, s{sWAVE}, 12")
        a(f"s_add_u32 s{sKVL}, s{sKVL}, {KVL}")
        a(f"s_mov_b32 m0, s{sKVL}")
        a("s_waitcnt vmcnt(0) lgkmcnt(0)")
        if cfg.get("count_redo"):
            a("s_memrealtime s[70:71]")
            a("s_memtime s[98:99]")
            a("s_waitcnt lgkmcnt(0)")
            a("s_sub_u32 s101, s70, s100")
            a("s_mov_b32 s100, s70")
        if cfg.get("force_global"):
            a("s_branch L_chain_entryG")
        else:
            a(f"s_cmp_eq_u32 s{sLOCAL}, 0")
            a("s_cbranch_scc1 L_chain_entryG")
    W = f"s[{sWS}:{sWS+3}]"
    vC = vOr
    pl = cfg.get("pollmod", "sc1") if local else "sc1"
    if local: st = cfg.get("stmod", "")
    vq = [(t, jj) for jj in range(8) for t in range(2)]
    vacc = (VACC, VACC + 4)
    def smf(acc, x, w): a(f"v_smfmac_f32_16x16x64_bf16 {vr(acc,4)}, {vr(x,4)}, {xr(w,8)}, v{vIdx}")
    def fill_v(n):
        for _ in range(n):
            t, jj = vq.pop(0)
            smf(vacc[t], A + 4 * jj, WV + jj * 16 + t * 8)
    def pad(n):
        k = cfg.get("padkind", "nop")
        if k == "mov":
            for _ in range(n): a(f"v_mov_b32 v{vT}, 0")
        elif k == "nop":
            while n > 0:
                a(f"s_nop {min(n,16)-1}"); n -= 16
        elif k == "mfma":
            for i in range(n // 4): a(f"v_mfma_f32_16x16x32_bf16 v[108:111], {xr(WK+(i%16)*4,4)}, {xr(WV+(i%16)*4,4)}, 0 ; nochk")
    cvt = lambda d, s: a(f"v_cvt_pk_bf16_f32 v{d}, v{s}, v{s+1}")
    mfma = lambda d, x, y, c: a(f"v_mfma_f32_16x16x32_bf16 {vr(d,4)}, {vr(x,4)}, {vr(y,4)}, {vr(c,4) if c is not None else 0}")
    mfma16 = lambda d, x, y, c: a(f"v_mfma_f32_16x16x16_bf16 {vr(d,4)}, {vr(x,2)}, {vr(y,2)}, {vr(c,4) if c is not None else 0}")
    def kv_check():
        a(f"v_bitop3_b32 v{vT}, v{Kx}, v{Kx+4}, s{sKT} bitop3:0x7e")
        a(f"v_bitop3_b32 v{VACC}, v{Kx+8}, v{Kx+12}, s{sKT} bitop3:0x7e")
        a(f"v_or_b32 v{vT}, v{vT}, v{VACC}")
        a(f"v_and_b32 v{vT}, 1, v{vT}")
        a(f"v_cmp_ne_u32 vcc, 0, v{vT}")
    def x2_issue(r):
        a(f"buffer_load_dwordx4 {vr(r,4)}, v{vL16}, {W}, s{sX2l} offen {pl}")
        a(f"buffer_load_dwordx4 {vr(r+4,4)}, v{vL16}, {W}, s{sX2l} offen offset:1024 {pl}")
    def x2_check(r, n):
        a(f"s_waitcnt vmcnt({n+1})")
        smf(k0, r, WK)
        a(f"v_max3_u32 v{vT}, v{r}, v{r+1}, v{r+2}")
        smf(k1, r, WK + 8)
        a(f"s_waitcnt vmcnt({n})")
        a(f"v_max3_u32 v{vT}, v{vT}, v{r+3}, v{r+4}")
        a(f"ds_write_b128 v{vAw}, {vr(r,4)}")
        a(f"v_max3_u32 v{vT}, v{vT}, v{r+5}, v{r+6}")
        a(f"v_max_u32 v{vT}, v{vT}, v{r+7}")
        a(f"v_cmp_eq_u32 vcc, -1, v{vT}")
        smf(k0, r + 4, WK + 16)
        a(f"ds_write_b128 v{vAw}, {vr(r+4,4)} offset:1024")
        smf(k1, r + 4, WK + 24)
    def zero_k():
        for r in (k0, k0 + 2, k1, k1 + 2): a(f"v_mov_b64 {vr(r,2)}, 0")
    a.label(f"L_chain_entry{tag}")
    a(f"buffer_store_dword v{vR}, v{vX2s}, {W}, s{sX2st} offen{st}")
    a(".p2align 6")
    a.label(f"L_chain_loop{tag}")
    stamp("top")
    trace(a, cfg, 0, sStep, vT)
    a(f"s_cmp_eq_u32 s{sStep}, 63")
    a(f"s_cbranch_scc1 L_chain_last{tag}")
    a(f"s_bfe_u32 s{sKT}, s{sStep}, 0x10002")
    a("s_waitcnt lgkmcnt(0)")
    kv_check()
    for i in range(8):
        a(f"v_mov_b64 {vr(q0+2*i,2)}, 0")
    lateok = cfg.get("latekv", False) and not cfg.get("nokvcheck")
    if lateok:
        a(f"s_mov_b32 s{sKVc}, s{sKV}")
        a(f"s_cmp_lg_u64 vcc, 0")
        a(f"s_cselect_b32 s{sLate}, 1, 0")
    elif not cfg.get("nokvcheck"): a(f"s_cbranch_vccnz L_chain_kvwait{tag}")
    a.label(f"L_chain_kvok{tag}")
    trace(a, cfg, 1, sStep, vT)
    trace(a, cfg, 5, sStep, vT)
    spin_init(a)
    pad(cfg.get("d2", 34))
    stamp("x2iss")
    x2_issue(A)
    for i in range(4):
        a(f"v_mov_b64 {vr(VACC+2*i,2)}, 0")
    a(f"s_add_u32 s{sKV}, s{sStep}, 1")
    a(f"s_and_b32 s{sKV}, s{sKV}, 3")
    a(f"s_lshl_b32 s{sKV}, s{sKV}, 19")
    a(f"s_add_u32 s{sKV}, s{sKV}, s{sKVb}")
    if cfg.get("ack2"): a("s_waitcnt vmcnt(2)")
    if cfg.get("one2"):
        x2_check(A, 0)
    else:
        pad(cfg.get("g2", 30))
        x2_issue(A + 8)
        x2_check(A, 2)
    if not cfg.get("nowait2"): a(f"s_cbranch_vccnz L_chain_x2b{tag}")
    a.label(f"L_chain_x2ok{tag}")
    if cfg.get("count_redo"): a(f"s_add_u32 s31, s31, s{sSPIN}")
    stamp("A0")
    kvl = [f"buffer_load_dwordx4 v{vL16}, {W}, s{sKV} offen offset:{f*1024} sc1 lds" for f in range(4)]
    SLo, SHi = RING, RING + 4
    plan = list(cfg.get("plan", ["r:pre", "m:b1", "k3", "k5", "k7", "h6w"]))
    after_r = []
    def at(pos):
        for x in list(plan):
            if x == pos: a(kvl.pop(0)); plan.remove(x)
            elif x == "m:" + pos: a(memst); plan.remove(x)
            elif x == "r:" + pos: a(rearm); plan.remove(x); after_r.append(len(plan))
    def ring_rd(jj):
        s0 = RING + ((2 * jj) % 4) * 8
        return [f"ds_read_b128 {vr(s0+4*i,4)}, v{vW2} offset:{(jj&1)*16384+i*1024}" for i in range(4)]
    vW2 = vT
    for jj in range(2):
        s0 = RING + 16 * jj; rd = ring_rd(jj)
        if jj == 0: a(f"v_xor_b32 v{vW2}, 0x8000, v{vLdsW}")
        smf(q0, A + 4 * jj, s0); a(rd[0]); a(rd[1])
        smf(q1, A + 4 * jj, s0 + 8); a(rd[2]); a(rd[3])
    memst = f"buffer_store_dword v{vR}, v{vX2s}, {W}, s{sMemOff} offen sc1"
    rearm = f"buffer_store_dword v{vOnes}, v{vX2s}, {W}, s{sX2re} offen{st}"
    rf = cfg.get("rearm_first", True)
    nb = len([x for x in plan if x.endswith("pre")])
    at("pre")
    stamp("k1done", True)
    a(f"s_waitcnt vmcnt({nb}) lgkmcnt(8)")
    a("s_barrier")
    stamp("bar1", True)
    for j2 in range(2, 8, 2):
        a(f"v_xor_b32 v{vT}, {j2*1024}, v{vAw}")
        a(f"ds_read_b128 {vr(A+4*j2,4)}, v{vT}")
        a(f"ds_read_b128 {vr(A+4*j2+4,4)}, v{vT} offset:1024")
        if j2 < 6: fill_v(1)
    at("b1")
    fill_v(2)
    lg = {2: 5, 3: 8, 4: 4, 5: 4}
    Ap0, Ap1, Dp0, Dp1, X = 72, 76, 80, 84, 88
    for jj in range(2, 6):
        if jj in (2, 4): a(f"v_xor_b32 v{vW2}, {(jj//2+1)*0x8000:#x}, v{vLdsW}")
        a(f"s_waitcnt lgkmcnt({lg[jj]})")
        stamp(f"k{jj}", True)
        s0 = RING + ((2 * jj) % 4) * 8; s1 = s0 + 8
        side = ring_rd(jj)
        for acc, wsrc, sd in ((q0, s0, side[0]), (k0, WK + jj * 16, side[1]), (q1, s1, side[2]), (k1, WK + jj * 16 + 8, side[3])):
            smf(acc, A + 4 * jj, wsrc)
            a(sd)
        at(f"k{jj}")
    A6, A7 = A + 24, A + 28
    smf(k0, A6, WK + 96); at("k6")
    smf(k0, A7, WK + 112); a("s_waitcnt lgkmcnt(6)")
    smf(q0, A6, RING); a("s_waitcnt lgkmcnt(2)")
    smf(q0, A7, RING + 16); at("k7")
    smf(q1, A6, RING + 8); a(f"ds_read_b128 {vr(SLo,4)}, v{vC} offset:256")
    a("s_waitcnt lgkmcnt(1)")
    smf(q1, A7, RING + 24); cvt(Ap0 + 2, k0)
    smf(k1, A6, WK + 104); cvt(Ap0 + 3, k0 + 2)
    smf(k1, A7, WK + 120)
    stamp("h3end")
    OF, WA = 96, 112
    cvt(Ap0, q0); cvt(Ap0 + 1, q0 + 2)
    cvt(Ap1, q1); cvt(Ap1 + 1, q1 + 2)
    mfma(Dp0, Ap0, SelT, None)
    a(f"ds_read_b128 {vr(SHi,4)}, v{vC} offset:512")
    cvt(Ap1 + 2, k1); cvt(Ap1 + 3, k1 + 2)
    at("h4")
    mfma(Dp1, Ap1, SelT, None)
    cvt(X, Dp0); cvt(X + 1, Dp0 + 2)
    cvt(X + 2, Dp1); cvt(X + 3, Dp1 + 2)
    Sx0, Sx1, Sm = 32, 36, 40
    mfma(Sx0, Kx, X, None)
    mfma(Sx1, Kx + 4, X, None)
    mfma(Sm, X, X, None)
    cvt(44, Sx0); cvt(45, Sx0 + 2); cvt(46, Sx1); cvt(47, Sx1 + 2)
    a(f"ds_write2_b64 v{vSwx}, v[44:45], v[46:47] offset0:0 offset1:16")
    cvt(92, Sm); cvt(93, Sm + 2)
    a(f"ds_write_b64 v{vSwm}, v[92:93]")
    stamp("swr")
    at("h6w")
    nomax = cfg.get("nomax", True)
    fl = cfg.get("fills", (5, 3, 2, 2) if nomax else (5, 3, 1, 3))
    fill_v(fl[0])
    a("s_waitcnt lgkmcnt(0)")
    stamp("swdone", True)
    a("s_barrier")
    stamp("bar2", True)
    a(f"ds_read_b128 v[72:75], v{vSrx}")
    a(f"ds_read_b128 v[80:83], v{vSrm}")
    a(f"ds_read_b128 v[76:79], v{vSrx} offset:256")
    ONES, HALF = 88, 92
    at("h6r")
    fill_v(fl[1])
    a("s_waitcnt lgkmcnt(1)")
    mfma(32, SLo, 72, None)
    mfma(36, SelM, 80, None)
    a("s_waitcnt lgkmcnt(0)")
    mfma(32, SHi, 76, 32)
    a(f"ds_read_b128 {vr(ONES,4)}, v{vC} offset:768")
    a(f"ds_read_b64 {vr(HALF,2)}, v{vC} offset:1024")
    fill_v(fl[2])
    stamp("sred")
    E = 72
    m, t = 46, 47
    Bx, Pm, vp, LS = 40, 44, 84, 80
    def true_max(fill=False):
        a(f"v_max3_f32 v{m}, v36, v37, v38")
        a(f"v_max3_f32 v{t}, v32, v33, v34")
        a(f"v_max3_f32 v{m}, v{m}, v39, v35")
        a(f"v_max_f32 v{m}, v{m}, v{t}")
        if fill: fill_v(1)
        a(f"v_max_f32_dpp v{m}, v{m}, v{m} row_ror:8 row_mask:0xf bank_mask:0xf")
        a(f"v_mov_b32 v{t}, v{m}")
        if fill: fill_v(1)
        a(f"v_permlane16_swap_b32 v{m}, v{t}")
        a(f"v_max_f32 v{m}, v{m}, v{t}")
        a(f"v_mov_b32 v{t}, v{m}")
        if fill: fill_v(1)
        a(f"v_permlane32_swap_b32 v{m}, v{t}")
        a(f"v_max_f32 v{m}, v{m}, v{t}")
        a(f"v_mul_f32 v{m}, s{sC}, v{m}")
        for i in range(8):
            a(f"v_fma_f32 v{E+i}, v{32+i}, s{sC}, -v{m}")
    def weights_to_o(first):
        for i in range(8):
            a(f"v_exp_f32 v{E+i}, v{E+i}")
            if first and nomax and i in (1, 5) and vq: fill_v(1)
        assert not vq
        cvt(Bx, E); cvt(Bx + 1, E + 2); cvt(Bx + 2, E); cvt(Bx + 3, E + 2)
        cvt(Pm, E + 4); cvt(Pm + 1, E + 6)
        a(f"v_mov_b32_dpp v{Bx+2}, v{Bx} row_ror:8 row_mask:0xf bank_mask:0x3")
        a(f"v_mov_b32_dpp v{Bx+3}, v{Bx+1} row_ror:8 row_mask:0xf bank_mask:0x3")
        a(f"v_mov_b32_dpp v{Bx}, v{Bx} row_ror:8 row_mask:0xf bank_mask:0xc")
        a(f"v_mov_b32_dpp v{Bx+1}, v{Bx+1} row_ror:8 row_mask:0xf bank_mask:0xc")
        if first: stamp("pready")
        side = []
        if first:
            side = [f"v_cvt_pk_bf16_f32 v{vp}, v{vacc[0]}, v{vacc[0]+1}", f"v_cvt_pk_bf16_f32 v{vp+1}, v{vacc[0]+2}, v{vacc[0]+3}",
                    f"v_cvt_pk_bf16_f32 v{vp+2}, v{vacc[1]}, v{vacc[1]+1}", f"v_cvt_pk_bf16_f32 v{vp+3}, v{vacc[1]+2}, v{vacc[1]+3}"]
            if nomax:
                side += [f"v_max3_f32 v{m}, abs(v32), abs(v33), abs(v34)", f"v_max3_f32 v{t}, abs(v35), abs(v36), abs(v37)",
                         f"v_max3_f32 v{m}, v{m}, abs(v38), abs(v39)", f"v_max_f32 v{m}, v{m}, v{t}", f"v_cmp_nlt_f32 vcc, v{m}, s{sLim}"]
            a("s_waitcnt lgkmcnt(0)")
        def two():
            for _ in range(2):
                if side: a(side.pop(0))
        mfma16(LS, HALF, Pm, None); two()
        mfma(72, Vx, Bx, None); two()
        mfma(LS, ONES, Bx, LS); two()
        mfma(76, Vx + 4, Bx, None); two()
        mfma16(72, vp, Pm, 72); two()
        mfma16(76, vp + 2, Pm, 76)
        a(f"v_rcp_f32 v{LS}, v{LS}")
    if nomax:
        for i in (4, 5, 6, 7, 0, 1, 2, 3):
            a(f"v_mul_f32 v{E+i}, s{sC}, v{32+i}")
    else:
        true_max(True)
    weights_to_o(True)
    if nomax:
        if not cfg.get("nowait1") and not cfg.get("nowait2"): a(f"s_cbranch_vccnz L_chain_big{tag}")
        a.label(f"L_chain_bigok{tag}")
    def pack(U):
        d = 32 + 4 * U; s = WA + 8 * U
        return [[f"v_cvt_pk_bf16_f32 v{d}, v{s}, v{s+1}", f"v_cvt_pk_bf16_f32 v{d+1}, v{s+2}, v{s+3}",
                 f"v_and_or_b32 v{d}, v{d}, -2, s{sTag}"],
                [f"v_cvt_pk_bf16_f32 v{d+2}, v{s+4}, v{s+5}", f"v_cvt_pk_bf16_f32 v{d+3}, v{s+6}, v{s+7}",
                 f"buffer_store_dwordx4 {vr(d,4)}, v{vX1s}, {W}, s{sX1a if U == 0 else sX1b} offen{st}"]]
    sal = [f"s_add_u32 s{sStep}, s{sStep}, 1", f"s_add_u32 s{sMemOff}, s{sMemOff}, 8192", f"s_xor_b32 s{sX2st}, s{sX2st}, 8192",
           f"s_xor_b32 s{sX2re}, s{sX2re}, 8192", f"s_xor_b32 s{sX2l}, s{sX2l}, 8192", f"s_mov_b32 s{sSPIN}, 0"]
    for i in range(4): a(f"v_mov_b64 {vr(WA+2*i,2)}, 0")
    for i in range(4): a(f"v_mul_f32 v{72+i}, v{72+i}, v{LS}")
    for i in range(4): a(f"v_mul_f32 v{76+i}, v{76+i}, v{LS}")
    cvt(OF, 72); cvt(OF + 2, 76); cvt(OF + 1, 74); cvt(OF + 3, 78)
    a(f"v_cndmask_b32 v80, v{OF}, v{OF+2}, s[{sMaskHi}:{sMaskHi+1}]")
    a(f"v_cndmask_b32 v81, v{OF+1}, v{OF+3}, s[{sMaskHi}:{sMaskHi+1}]")
    a(f"ds_write_b64 v{vOw}, v[80:81]")
    stamp("owr")
    at("h10w")
    assert not plan and not kvl
    smf(WA, OF, WO)
    for i in range(4, 8): a(f"v_mov_b64 {vr(WA+2*i,2)}, 0")
    smf(WA + 4, OF, WO + 32)
    a(f"v_and_b32 v85, -16, v{vOw}")
    for ac in range(3): a(f"v_xor_b32 v{82+ac}, {(ac+1)*512}, v85")
    a(f"s_waitcnt vmcnt({after_r[0]}) lgkmcnt(0)")
    stamp("owdone", True)
    a("s_barrier")
    stamp("bar3", True)
    for wp in range(1, 4):
        a(f"ds_read_b128 {vr(OF+4*wp,4)}, v{81+wp}")
    a(f"ds_read_b128 v[40:43], v{vC}")
    smf(WA + 8, OF, WO + 64)
    for x in sal[:3]: a(x)
    smf(WA + 12, OF, WO + 96)
    for x in sal[3:]: a(x)
    pk = pack(0) + pack(1)
    n = 0; side = []
    for ac in range(4):
        for wp in range(1, 4):
            if ac == 0: a(f"s_waitcnt lgkmcnt({4-wp})")
            smf(WA + 4 * ac, OF + 4 * wp, WO + (ac * 4 + wp) * 8)
            n += 1
            stamp(f"wo{n}", True)
            if n in (6, 9, 12): side += pk.pop(0)
            if side: a(side.pop(0))
    for x in side: a(x)
    for i in range(3):
        a(f"ds_read_b128 {vr(RING+4*i,4)}, v{vLdsW} offset:{(i>>2)*16384+(i&3)*1024}")
    for x in pk.pop(0): a(x)
    stamp("x1st")
    for i in range(3, 8):
        a(f"ds_read_b128 {vr(RING+4*i,4)}, v{vLdsW} offset:{(i>>2)*16384+(i&3)*1024}")
    a("s_waitcnt vmcnt(2)")
    a(f"v_add_u32 v{vT}, s{sKVL}, v{vL16}")
    for f in range(4):
        a(f"ds_read_b128 {vr(Kx+4*f,4)}, v{vT} offset:{f*1024}")
    if cfg.get("ack1"): a("s_waitcnt vmcnt(1)")
    pad(cfg.get("d1", 46))
    def x1_issue(r):
        a(f"buffer_load_dwordx4 {vr(r,4)}, v{vX1l}, {W}, s{sX1a} offen {pl}")
        a(f"buffer_load_dwordx4 {vr(r+4,4)}, v{vX1l}, {W}, s{sX1a} offen offset:1024 {pl}")
    def x1_check(r, n):
        a(f"s_waitcnt vmcnt({n+1})")
        mfma(104, 40, r, None)
        a(f"s_waitcnt vmcnt({n})")
        mfma(104, 40, r + 4, 104)
        a(f"v_bitop3_b32 v{vT}, v{r}, v{r+4}, s{sTag} bitop3:0x7e")
        a(f"v_and_b32 v{vT}, 1, v{vT}")
        a(f"v_cmp_ne_u32 vcc, 0, v{vT}")
    stamp("x1iss")
    x1_issue(96)
    a("s_waitcnt lgkmcnt(12)")
    if cfg.get("ack1"): a("s_waitcnt vmcnt(2)")
    if cfg.get("one1"):
        x1_check(96, 0)
    else:
        pad(cfg.get("g1", 35))
        x1_issue(112)
        x1_check(96, 2)
    if not cfg.get("nowait1"): a(f"s_cbranch_vccnz L_chain_x1b{tag}")
    a.label(f"L_chain_x1ok{tag}")
    stamp("x1ok")
    a(f"v_add_f32_dpp v104, v104, v104 row_ror:4 row_mask:0xf bank_mask:0xf")
    a(f"v_add_f32_dpp v105, v105, v105 row_ror:4 row_mask:0xf bank_mask:0xf")
    a(f"s_xor_b32 s{sTag}, s{sTag}, 1")
    a(f"v_add_f32_dpp v104, v104, v104 row_ror:8 row_mask:0xf bank_mask:0xf")
    a(f"v_add_f32_dpp v105, v105, v105 row_ror:8 row_mask:0xf bank_mask:0xf")
    a(f"v_cvt_pk_bf16_f32 v{vR}, v104, v105")
    a(f"v_min_u32 v{vR}, -2, v{vR}")
    a(f"buffer_store_dword v{vR}, v{vX2s}, {W}, s{sX2st} offen{st}")
    if cfg.get("count_redo"):
        a(f"s_lshl_b32 s{sT0}, s{sSPIN}, 16")
        a(f"s_add_u32 s31, s31, s{sT0}")
    if stamp.on:
        a(f"s_cmp_eq_u32 s{sStep}, {cfg.get('stamp_step', 40)}")
        a(f"s_cbranch_scc0 L_chain_loop{tag}")
        a("s_waitcnt lgkmcnt(0)")
        a(f"s_lshl_b32 s{sT0}, s{sMEMB}, 2")
        a(f"s_add_u32 s{sT0}, s{sT0}, s{sWAVE}")
        a(f"s_lshl_b32 s{sT1}, s{sLAY}, 7")
        a(f"s_add_u32 s{sT0}, s{sT0}, s{sT1}")
        a(f"s_lshl_b32 s{sT0}, s{sT0}, 6")
        a(f"s_add_u32 s{sT0}, s{sT0}, {OFF_STAMP:#x}")
        a(f"v_mov_b32 v108, 0")
        for i in range(stamp.n):
            a(f"v_mov_b32 v109, s{stamp.base+2*i}")
            a(f"buffer_store_dword v109, v108, {W}, s{sT0} offen offset:{4*i}")
        cfg["stamp_names"] = stamp.names
    a(f"s_branch L_chain_loop{tag}")
    a.label(f"L_chain_x1b{tag}")
    x1_issue(96)
    spin_tick(a)
    if cfg.get("one1"): x1_check(96, 0)
    else:
        x1_check(112, 2)
        a(f"s_cbranch_vccz L_chain_x1ok{tag}")
        x1_issue(112)
        spin_tick(a)
        x1_check(96, 2)
    a(f"s_cbranch_vccz L_chain_x1ok{tag}")
    a(f"s_branch L_chain_x1b{tag}")
    a.label(f"L_chain_x2b{tag}")
    x2_issue(A)
    spin_tick(a)
    zero_k()
    if cfg.get("one2"): x2_check(A, 0)
    else:
        x2_check(A + 8, 2)
        a(f"s_cbranch_vccz L_chain_x2c{tag}")
        x2_issue(A + 8)
        spin_tick(a)
        zero_k()
        x2_check(A, 2)
    a(f"s_cbranch_vccz L_chain_x2ok{tag}")
    a(f"s_branch L_chain_x2b{tag}")
    a.label(f"L_chain_x2c{tag}")
    for i in range(4):
        a(f"v_mov_b64 {vr(A+2*i,2)}, {vr(A+8+2*i,2)} ; sameval")
    a(f"s_branch L_chain_x2ok{tag}")
    if nomax:
        a.label(f"L_chain_big{tag}")
        true_max()
        weights_to_o(False)
        a(f"s_branch L_chain_bigok{tag}")
    a.label(f"L_chain_last{tag}")
    if cfg.get("count_redo"):
        a("s_memrealtime s[70:71]")
        a("s_memtime s[72:73]")
        a(f"s_lshl_b32 s{sT0}, s{sMEMB}, 2")
        a(f"s_add_u32 s{sT0}, s{sT0}, s{sWAVE}")
        a(f"s_lshl_b32 s{sT1}, s{sLAY}, 7")
        a(f"s_add_u32 s{sT0}, s{sT0}, s{sT1}")
        a(f"s_lshl_b32 s{sT0}, s{sT0}, 6")
        a(f"s_add_u32 s{sT0}, s{sT0}, {OFF_STAMP:#x}")
        a(f"v_mov_b32 v108, 0")
        a("s_waitcnt lgkmcnt(0)")
        a(f"s_sub_u32 s70, s70, s100")
        a(f"s_sub_u32 s72, s72, s98")
        for i, r in enumerate((72, 31, 70, 101)):
            a(f"v_mov_b32 v109, s{r}")
            a(f"buffer_store_dword v109, v108, {W}, s{sT0} offen offset:{48+4*i}")
    a(f"buffer_store_dword v{vR}, v{vX2s}, {W}, s{sMemOff} offen sc1")
    a("s_waitcnt vmcnt(0) lgkmcnt(0)")
    if cfg.get("probe"):
        what, lay = cfg["probe"]
        a(f"s_cmp_lg_u32 s{sLAY}, {lay}")
        a("s_cbranch_scc1 L_done")
        if what == "T0": a("s_mov_b32 s74, s101")
        elif what == "loop": a("s_mov_b32 s74, s70")
        elif what == "end": a("s_add_u32 s74, s70, s101")
        a("s_sub_u32 s75, s100, s101")
        a("s_add_u32 s74, s74, 23000")
        lab = a.newlab("L_probe")
        a.label(lab)
        a("s_memrealtime s[76:77]")
        a("s_waitcnt lgkmcnt(0)")
        a("s_sub_u32 s76, s76, s75")
        a("s_cmp_lt_u32 s76, s74")
        a(f"s_cbranch_scc1 {lab}")
    a("s_branch L_done")
    a.label(f"L_chain_kvwait{tag}")
    if cfg.get("count_redo"): a("s_add_u32 s31, s31, 0x4000000")
    spin_init(a)
    lab = a.newlab("L_kvspin")
    a.label(lab)
    for f in range(4):
        a(f"buffer_load_dwordx4 {vr(Kx+4*f,4)}, v{vL16}, {W}, s{sKV} offen offset:{f*1024} sc1")
    spin_tick(a)
    a("s_waitcnt vmcnt(0)")
    kv_check()
    a(f"s_cbranch_vccz L_chain_kvok{tag}")
    a("s_sleep 4")
    a(f"s_branch {lab}")
```

```python
from asmlib import *
from layout import *
import struct

KNAME = "interleave_layers__memory_aug_recurrent_mem_tr__sliding_local_dilated__prompt_kernel"

sX, sMEM0, sWQ, sWK, sWV, sWO = 4, 6, 8, 10, 12, 14
sWB, sWBO, sOUT, sDBG, sWSP = 20, 22, 24, 26, 28
sWS = 32
sWT = 36
sIN = 40
sGRP, sMEMB, sWAVE, sLAY = 44, 45, 46, 47
sSPIN = 30
sLOCAL = 3
sSIG = 2
sT0, sT1, sT2, sT3 = 48, 49, 50, 51
sFB = 52
sFV = 54
SPIN_MAX = 1 << 19
OOB = 0x80000000

def fbits(x):
    return struct.unpack("<I", struct.pack("<f", x))[0]

def set_srd(a, srd, ptr, nbytes):
    a(f"s_mov_b32 s{srd}, s{ptr}")
    a(f"s_mov_b32 s{srd+1}, s{ptr+1}")
    a(f"s_mov_b32 s{srd+2}, {nbytes:#x}")
    a(f"s_mov_b32 s{srd+3}, 0x20000")

def spin_init(a):
    a(f"s_mov_b32 s{sSPIN}, 0")

def spin_tick(a):
    a(f"s_add_u32 s{sSPIN}, s{sSPIN}, 1")
    a(f"s_cmp_gt_u32 s{sSPIN}, {SPIN_MAX}")
    a("s_cbranch_scc1 L_exit")

class Stamps:
    def __init__(self, a, on, base=70, only=None):
        self.a = a; self.on = on; self.base = base; self.n = 0; self.names = []; self.only = only
    def __call__(self, name, extra=False):
        if not self.on: return
        if self.only is None and extra: return
        if self.only is not None and name not in self.only: return
        r = self.base + 2 * self.n
        self.names.append(name); self.n += 1
        assert r + 1 < 92
        self.a(f"s_memtime s[{r}:{r+1}]")

vGO0, vGO1 = 124, 125
def go_load(a, off=128):
    a(f"v_mov_b32 v{vGO0}, 0")
    a(f"global_load_dword v{vGO1}, v{vGO0}, s[{sDBG}:{sDBG+1}] offset:{off} sc1")

def wait_init(a, sampled=False, barrier=True):
    lab = a.newlab("L_winit"); done = a.newlab("L_wdone"); chk = a.newlab("L_wchk")
    spin_init(a)
    if sampled: a(f"s_branch {chk}")
    a.label(lab)
    go_load(a)
    a.label(chk)
    spin_tick(a)
    a("s_waitcnt vmcnt(0)")
    a(f"v_readfirstlane_b32 s{sFV}, v{vGO1}")
    a(f"s_cmp_lg_u32 s{sFV}, 0")
    a(f"s_cbranch_scc1 {done}")
    a("s_sleep 8")
    a(f"s_branch {lab}")
    a.label(done)
    a(f"s_lshr_b32 s{sLOCAL}, s{sFV}, s{sGRP}")
    a(f"s_and_b32 s{sLOCAL}, s{sLOCAL}, 1")
    if barrier: a("s_barrier")

def count_tickets(a):
    lab = a.newlab("L_cnt")
    spin_init(a)
    a.label(lab)
    a(f"s_load_dwordx16 s[72:87], s[{sDBG}:{sDBG+1}], 0 glc")
    spin_tick(a)
    a("s_waitcnt lgkmcnt(0)")
    a(f"s_mov_b32 s{sFV}, s73")
    for g in range(8):
        a(f"s_add_u32 s{sFV}, s{sFV}, s{72+2*g}")
    a(f"s_cmp_lt_u32 s{sFV}, 256")
    a(f"s_cbranch_scc1 {lab}")

def sel_consts(a, vlane, tmp, selM=None, selLo=None, selHi=None, selT=None):
    t0, t1, t2, t3 = tmp, tmp + 1, tmp + 2, tmp + 3
    a(f"v_and_b32 v{t0}, 1, v{vlane}")
    a(f"v_lshlrev_b32 v{t0}, 4, v{t0}")
    a(f"v_mov_b32 v{t1}, 0x3f80")
    a(f"v_lshlrev_b32 v{t0}, v{t0}, v{t1}")
    a(f"v_bfe_u32 v{t1}, v{vlane}, 1, 2")
    a(f"v_bfe_u32 v{t2}, v{vlane}, 3, 1")
    for e in range(4):
        a(f"v_cmp_eq_u32 vcc, {e}, v{t1}")
        a(f"v_cndmask_b32 v{t3}, 0, v{t0}, vcc")
        if selM is not None: a(f"v_mov_b32 v{selM+e}, v{t3}")
        if selLo is not None:
            a(f"v_cmp_eq_u32 vcc, 0, v{t2}")
            a(f"v_cndmask_b32 v{selLo+e}, 0, v{t3}, vcc")
        if selHi is not None:
            a(f"v_cmp_eq_u32 vcc, 1, v{t2}")
            a(f"v_cndmask_b32 v{selHi+e}, 0, v{t3}, vcc")
    if selT is not None:
        a(f"v_bfe_u32 v{t1}, v{vlane}, 2, 1")
        a(f"v_bfe_u32 v{t3}, v{vlane}, 4, 1")
        a(f"v_cmp_eq_u32 vcc, v{t1}, v{t3}")
        a(f"v_cndmask_b32 v{t0}, 0, v{t0}, vcc")
        a(f"v_bfe_u32 v{t1}, v{vlane}, 1, 1")
        a(f"v_lshl_add_u32 v{t1}, v{t2}, 1, v{t1}")
        for e in range(4):
            a(f"v_cmp_eq_u32 vcc, {e}, v{t1}")
            a(f"v_cndmask_b32 v{selT+e}, 0, v{t0}, vcc")

def smf_index(a, vlane, vidx, tmp):
    a(f"v_mov_b32 v{vidx}, 0x44444444")
    a(f"v_mov_b32 v{tmp}, 0xeeeeeeee")
    a(f"v_and_b32 v{tmp+1}, 8, v{vlane}")
    a(f"v_cmp_ne_u32 vcc, 0, v{tmp+1}")
    a(f"v_cndmask_b32 v{vidx}, v{vidx}, v{tmp}, vcc")

TRC = {}
def load_chunks(a, chunks, sLdsBase, nslots=8, meanwhile=None, hooks=None):
    def issue(c):
        ch = chunks[c]; slot = c % nslots
        ch["setup"]()
        a(f"s_add_u32 m0, s{sLdsBase}, {slot*4096}")
        for q in range(4):
            if q: a(f"s_add_u32 s{sT0}, s{sT0}, {ch['dstep']-1024}")
            a(f"buffer_load_dwordx4 v{ch['vdma']}, s[{sWT}:{sWT+3}], s{sT0} offen offset:{q*1024} lds")
    n = len(chunks)
    for c in range(min(nslots, n)): issue(c)
    if meanwhile: meanwhile()
    for c in range(n):
        inflight = min(nslots, n - c)
        a(f"s_waitcnt vmcnt({4*(inflight-1)})")
        chunks[c]["consume"]((c % nslots) * 4096)
        if c + nslots < n: issue(c + nslots)
        if hooks and c in hooks: hooks[c]()
        if TRC.get("trace") and c % 4 == 3:
            a(f"s_mov_b32 s{sT1}, {c}")
            trace(a, TRC, 4, sT1, 127)

def qkv_dma_addr(a, vlane, vdst, tmp, rowbytes):
    a(f"v_bfe_u32 v{tmp}, v{vlane}, 2, 1")
    a(f"v_lshlrev_b32 v{vdst}, 5, v{tmp}")
    a(f"v_bfe_u32 v{tmp}, v{vlane}, 3, 1")
    a(f"v_lshl_add_u32 v{vdst}, v{tmp}, 4, v{vdst}")
    a(f"v_bfe_u32 v{tmp}, v{vlane}, 4, 2")
    a(f"v_add_u32 v{vdst}, v{vdst}, v{tmp}")
    a(f"v_mul_u32_u24 v{vdst}, {rowbytes}, v{vdst}")
    a(f"v_and_b32 v{tmp}, 3, v{vlane}")
    a(f"v_lshl_add_u32 v{vdst}, v{tmp}, 4, v{vdst}")

def qkv_tr_addr(a, vlane, vdst, tmp, sLdsBase):
    a(f"v_lshrrev_b32 v{tmp}, 4, v{vlane}")
    a(f"v_lshlrev_b32 v{vdst}, 9, v{tmp}")
    a(f"v_bfe_u32 v{tmp}, v{vlane}, 2, 2")
    a(f"v_lshl_add_u32 v{vdst}, v{tmp}, 6, v{vdst}")
    a(f"v_and_b32 v{tmp}, 3, v{vlane}")
    a(f"v_lshl_add_u32 v{vdst}, v{tmp}, 3, v{vdst}")
    a(f"v_add_u32 v{vdst}, s{sLdsBase}, v{vdst}")

def qkv_tr_reads(a, vaddr, slotoff, dst0, dst1):
    for t, dst in ((0, dst0), (1, dst1)):
        for e4 in range(4):
            off = slotoff + (32 * (e4 >> 1) + 4 * (e4 & 1)) * 64 + t * 32
            a(f"ds_read_b64_tr_b16 {xr(dst+2*e4,2)}, v{vaddr} offset:{off}")

def poll_flags(a, vtmp, voff, soff, sleep=2):
    lab = a.newlab("L_pf"); done = a.newlab("L_pfd")
    spin_init(a)
    a.label(lab)
    a(f"buffer_load_dword v{vtmp}, v{voff}, s[{sWS}:{sWS+3}], s{soff} offen sc1")
    spin_tick(a)
    a("s_waitcnt vmcnt(0)")
    a(f"v_cmp_eq_u32 vcc, 0, v{vtmp}")
    a(f"s_cbranch_vccz {done}")
    if sleep: a(f"s_sleep {sleep}")
    a(f"s_branch {lab}")
    a.label(done)

def set_flag(a, vone, soff, imm=0, mod=" sc1"):
    a("s_mov_b64 exec, 1")
    a(f"buffer_store_dword v{vone}, off, s[{sWS}:{sWS+3}], s{soff} offset:{imm}{mod}")
    a("s_mov_b64 exec, -1")

def xlane_g(a, op, m, t):
    a(f"v_mov_b32 v{t}, v{m}")
    a(f"v_permlane16_swap_b32 v{m}, v{t}")
    a(f"{op} v{m}, v{m}, v{t}")
    a(f"v_mov_b32 v{t}, v{m}")
    a(f"v_permlane32_swap_b32 v{m}, v{t}")
    a(f"{op} v{m}, v{m}, v{t}")

def dump_stamps(a, stamp, cfg, row_sgpr_calc):
    a("s_waitcnt lgkmcnt(0)")
    row_sgpr_calc()
    a(f"s_lshl_b32 s{sT0}, s{sT0}, 6")
    a(f"s_add_u32 s{sT0}, s{sT0}, {OFF_STAMP:#x}")
    for i in range(stamp.n):
        a(f"v_mov_b32 v127, s{stamp.base+2*i}")
        a(f"buffer_store_dword v127, off, s[{sWS}:{sWS+3}], s{sT0} offset:{4*i}")
    a("s_waitcnt vmcnt(0)")
    cfg["stamp_names"] = stamp.names

sTR = 68
def trace_setup(a, cfg):
    if not cfg.get("trace"): return
    a(f"s_lshl_b32 s{sTR}, s{sGRP}, 7")
    a(f"s_lshl_b32 s{sTR+1}, s{sMEMB}, 2")
    a(f"s_add_u32 s{sTR}, s{sTR}, s{sTR+1}")
    a(f"s_add_u32 s{sTR}, s{sTR}, s{sWAVE}")
    a(f"s_lshl_b32 s{sTR}, s{sTR}, 11")
    a(f"s_add_u32 s{sTR}, s{sTR}, {OFF_STAMP+0x20000:#x}")
def trace(a, cfg, ev, sidx, vtmp):
    if not cfg.get("trace"): return
    if ev == 5 and not cfg.get("trace_clk"): return
    if cfg.get("trace_only") is not None and ev not in cfg["trace_only"]: return
    if ev != 7:
        a("s_waitcnt lgkmcnt(0)")
        a(f"v_mov_b32 v{vtmp}, s100")
        a(f"buffer_store_dword v{vtmp}, off, s[{sWS}:{sWS+3}], s{sTR+1}")
    if ev == 8: return
    a("s_memtime s[100:101]" if ev == 5 else "s_memrealtime s[100:101]")
    if sidx is None: a(f"s_add_u32 s{sTR+1}, s{sTR}, {ev*256}")
    else:
        a(f"s_and_b32 s{sTR+1}, s{sidx}, 63")
        a(f"s_lshl_b32 s{sTR+1}, s{sTR+1}, 2")
        a(f"s_add_u32 s{sTR+1}, s{sTR+1}, s{sTR}")
        if ev: a(f"s_add_u32 s{sTR+1}, s{sTR+1}, {ev*256}")

GATE = 1792
def late_start(a, cfg):
    if cfg.get("noinit") or cfg.get("nolate"): return
    skip = a.newlab("L_nolate"); lab = a.newlab("L_late"); done = a.newlab("L_lated")
    a(f"s_lshr_b32 s{sFV}, {cfg.get('latemask', 0xcc)}, s{sGRP}")
    a(f"s_and_b32 s{sFV}, s{sFV}, 1")
    a(f"s_cbranch_scc0 {skip}")
    a(f"s_cmp_lg_u32 s{sWAVE}, 0")
    a(f"s_cbranch_scc1 {done}")
    wait_init(a, barrier=False)
    a(f"s_lshl_b32 s{sFB}, s{sGRP}, 11")
    spin_init(a)
    a.label(lab)
    a(f"buffer_load_dword v{vGO1}, off, s[{sWS}:{sWS+3}], s{sFB} offset:{GATE} sc1")
    a(f"s_add_u32 s{sSPIN}, s{sSPIN}, 1")
    a("s_waitcnt vmcnt(0)")
    a(f"s_cmp_gt_u32 s{sSPIN}, 200")
    a(f"s_cbranch_scc1 {done}")
    a(f"v_readfirstlane_b32 s{sFV}, v{vGO1}")
    a(f"s_cmp_ge_u32 s{sFV}, 1")
    a(f"s_cbranch_scc1 {done}")
    a("s_sleep 8")
    a(f"s_branch {lab}")
    a.label(done)
    a("s_barrier")
    a.label(skip)

def late_signal(a, cfg):
    if cfg.get("noinit") or cfg.get("nolate"): return
    lab = a.newlab("L_lsig")
    a(f"s_or_b32 s{sT0}, s{sLAY}, s{sWAVE}")
    a(f"s_or_b32 s{sT0}, s{sT0}, s{sMEMB}")
    a(f"s_cbranch_scc1 {lab}")
    a("v_mbcnt_lo_u32_b32 v127, -1, 0")
    a("v_lshlrev_b32 v127, 11, v127")
    a("v_mov_b32 v126, 1")
    a("s_mov_b64 exec, 0xff")
    a(f"buffer_store_dword v126, v127, s[{sWS}:{sWS+3}], 0 offen offset:{GATE} sc1")
    a("s_mov_b64 exec, -1")
    a.label(lab)

def warm_weights(a, cfg, share, nshare):
    if cfg.get("noinit") or cfg.get("nowarm", True): return
    a("v_lshlrev_b32 v100, 4, v0")
    n = 0
    per = 0x400000 // (nshare * 32 * 4096)
    for ptr in [dict(k=sWK, v=sWV, o=sWO, q=sWQ)[x] for x in cfg.get('warm_order', 'voq')]:
        set_srd(a, sWT, ptr, 0x400000)
        a(f"s_lshl_b32 s{sT0}, s{sMEMB}, 12")
        a(f"s_add_u32 s{sT0}, s{sT0}, {share * 32 * 4096}")
        for i in range(per):
            if i: a(f"s_add_u32 s{sT0}, s{sT0}, {nshare * 32 * 4096}")
            if n >= 32: a("s_waitcnt vmcnt(31)")
            a(f"buffer_load_dwordx4 {ar((n % 32) * 4, 4)}, v100, s[{sWT}:{sWT+3}], s{sT0} offen")
            n += 1
    a("s_waitcnt vmcnt(0)")

def load_stages(a, stages, meanwhile=None, hooks=None, extra0=0):
    n = len(stages); NS = 8
    for c in range(min(NS, n)): stages[c]["issue"](c % NS)
    if meanwhile: meanwhile()
    issued = min(NS, n)
    for c in range(n + 1):
        if c < n: a(f"s_waitcnt vmcnt({4*(issued-c-1)})")
        a("s_barrier")
        if c >= 1:
            if stages[c - 1].get("post"): stages[c - 1]["post"]((c - 1) % NS)
            if issued < n:
                stages[issued]["issue"](issued % NS); issued += 1
        if c < n:
            stages[c]["consume"](c % NS)
            a("s_waitcnt lgkmcnt(0)")
            if hooks and c in hooks: hooks[c]()
            if TRC.get("trace") and c % 4 == 3:
                a(f"s_mov_b32 s{sT1}, {c}")
                trace(a, TRC, 4, sT1, 127)

def coop_addrs(a, vD0, vD1, vT0, vT1, tmp):
    a(f"v_bfe_u32 v{tmp}, v0, 4, 1")
    a(f"v_lshlrev_b32 v{vD0}, 18, v{tmp}")
    a(f"v_bfe_u32 v{tmp}, v0, 5, 1")
    a(f"v_lshl_add_u32 v{vD0}, v{tmp}, 17, v{vD0}")
    a(f"v_lshrrev_b32 v{tmp}, 4, v0")
    a(f"v_lshlrev_b32 v{tmp}, 1, v{tmp}")
    a(f"v_and_b32 v{vD1}, 15, v0")
    a(f"v_xor_b32 v{tmp}, v{tmp}, v{vD1}")
    a(f"v_lshl_add_u32 v{vD0}, v{tmp}, 4, v{vD0}")
    a(f"v_xor_b32 v{vD1}, 128, v{vD0}")
    a(f"v_lshrrev_b32 v{tmp}, 4, v0")
    a(f"v_lshlrev_b32 v{vT0}, 11, v{tmp}")
    a(f"v_bfe_u32 v{tmp}, v0, 2, 2")
    a(f"v_lshl_add_u32 v{vT0}, v{tmp}, 8, v{vT0}")
    a(f"v_bfe_u32 v{vT1}, v0, 2, 3")
    a(f"v_lshlrev_b32 v{vT1}, 1, v{vT1}")
    a(f"v_bfe_u32 v{tmp}, v0, 1, 1")
    a(f"s_lshl_b32 s{sT0}, s{sWAVE}, 2")
    a(f"v_add_u32 v{tmp}, s{sT0}, v{tmp}")
    a(f"v_xor_b32 v{tmp}, v{tmp}, v{vT1}")
    a(f"v_lshl_add_u32 v{vT0}, v{tmp}, 4, v{vT0}")
    a(f"v_and_b32 v{tmp}, 1, v0")
    a(f"v_lshl_add_u32 v{vT0}, v{tmp}, 3, v{vT0}")
    a(f"v_xor_b32 v{vT1}, 32, v{vT0}")

def coop_issue(a, ptr, J, slot, sBase, vD0, vD1, sLq, who='c'):
    if J == 0: set_srd(a, sWT, ptr, 0x400000)
    a(f"s_add_u32 m0, s{sLq}, {slot*16384}")
    a(f"s_add_u32 s{sT0}, s{sBase}, {J << 19}")
    for q in range(4):
        if q: a(f"s_add_u32 s{sT0}, s{sT0}, {8192-1024}")
        a(f"buffer_load_dwordx4 v{vD0 if q < 2 else vD1}, s[{sWT}:{sWT+3}], s{sT0} offen offset:{q*1024}{' nt' if str(ptr) + who in TRC.get('ntw', ()) else ''} lds")

def coop_reads(a, slot, vT0, vT1, vtmp, dst0, dst1):
    hi = slot >= 4
    for t, dst, va in ((0, dst0, vT0), (1, dst1, vT1)):
        if hi:
            a(f"v_add_u32 v{vtmp}, 0x10000, v{va}"); va = vtmp
        for e4 in range(4):
            off = (slot & 3) * 16384 + (32 * (e4 >> 1) + 4 * (e4 & 1)) * 256
            a(f"ds_read_b64_tr_b16 {xr(dst+2*e4,2)}, v{va} offset:{off}")
```

```python
from gen_common import *

W = f"s[{sWS}:{sWS+3}]"
vL16, vT, vT2, vFo, vOne, vRd = 1, 2, 3, 4, 5, 6
sSeg, sEnd, sFl, sSrc, sDst, sBuf, sLds, sC = 55, 56, 57, 58, 59, 60, 66, 96

def cvt(a, d, s): a(f"v_cvt_pk_bf16_f32 v{d}, v{s}, v{s+1}")
def mfma(a, d, x, y, c):
    a(f"v_mfma_f32_16x16x32_bf16 {vr(d,4)}, {xr(x,4)}, {xr(y,4)}, {vr(c,4) if c is not None else 0}")

def mfma32(a, d, x, y, first):
    a(f"v_mfma_f32_32x32x16_bf16 {vr(d,16)}, {xr(x,4)}, {vr(y,4)}, {0 if first else vr(d,16)}")

def tr32_addr(a, vTR, rowmul_hi):
    a(f"v_lshrrev_b32 v{vT}, 5, v0")
    a(f"v_mul_u32_u24 v{vTR}, {rowmul_hi*64}, v{vT}")
    a(f"v_bfe_u32 v{vT}, v0, 2, 2")
    a(f"v_lshl_add_u32 v{vTR}, v{vT}, 6, v{vTR}")
    a(f"v_bfe_u32 v{vT}, v0, 4, 1")
    a(f"v_lshl_add_u32 v{vTR}, v{vT}, 5, v{vTR}")
    a(f"v_and_b32 v{vT}, 1, v0")
    a(f"v_lshl_add_u32 v{vTR}, v{vT}, 4, v{vTR}")
    a(f"v_bfe_u32 v{vT}, v0, 1, 1")
    a(f"v_lshl_add_u32 v{vTR}, v{vT}, 3, v{vTR}")
    a(f"v_add_u32 v{vTR}, s{sLds}, v{vTR}")

def lane32_addr(a, vdst, mu, mhi, paired):
    a(f"v_bfe_u32 v{vT}, v0, 4, 1")
    a(f"v_mul_u32_u24 v{vdst}, {mu}, v{vT}")
    a(f"v_lshrrev_b32 v{vT}, 5, v0")
    a(f"v_mul_u32_u24 v{vT}, {mhi}, v{vT}")
    a(f"v_add_u32 v{vdst}, v{vdst}, v{vT}")
    if paired:
        a(f"v_bfe_u32 v{vT}, v0, 2, 2")
        a(f"v_lshl_add_u32 v{vdst}, v{vT}, 7, v{vdst}")
        a(f"v_and_b32 v{vT}, 3, v0")
    else:
        a(f"v_and_b32 v{vT}, 15, v0")
    a(f"v_lshl_add_u32 v{vdst}, v{vT}, 4, v{vdst}")

def common_start(a):
    a("v_and_b32 v0, 63, v0")
    a(f"v_lshlrev_b32 v{vL16}, 4, v0")
    a(f"s_lshl_b32 s{sLds}, s{sWAVE}, 15")
    a(f"v_mov_b32 v{vOne}, 1")
    a(f"s_lshl_b32 s{sSeg}, s{sLAY}, 6")
    a(f"s_add_u32 s{sEnd}, s{sSeg}, 64")
    a(f"s_mov_b32 s92, 0")
    a(f"s_mov_b32 s75, 0")
    a(f"s_lshl_b32 s94, s{sLAY}, 21")
    a(f"s_add_u32 s94, s94, {OFF_RING:#x}")

def both_modes(a, name, body, cfg, before=None):
    touch_ring(a, cfg)
    trace(a, cfg, 6, None, vT)
    if not cfg.get("noinit"): wait_init(a)
    else: a("s_barrier")
    if cfg.get("touch_flags", True):
        a(f"s_lshl_b32 s{sT0}, s{sMEMB}, 12")
        a(f"s_lshl_b32 s{sT1}, s{sWAVE}, 10")
        a(f"s_add_u32 s{sT0}, s{sT0}, s{sT1}")
        a(f"s_lshl_b32 s{sT1}, s{sLAY}, 17")
        a(f"s_add_u32 s{sT0}, s{sT0}, s{sT1}")
        a(f"buffer_load_dwordx4 v[100:103], v{vL16}, {W}, s{sT0} offen sc1")
        a("s_waitcnt vmcnt(0)")
    if before: before()
    if cfg.get("force_global"):
        a(f"s_branch L_{name}_G")
    else:
        a(f"s_cmp_eq_u32 s{sLOCAL}, 0")
        a(f"s_cbranch_scc1 L_{name}_G")
    for tag, st in (("L", ""), ("G", " sc1")):
        stamp = Stamps(a, cfg.get("stamp") == name and tag == "L", base=16 if name == "rc" else 4, only=cfg.get("only"))
        a.label(f"L_{name}_{tag}")
        stamp("top")
        a(f"s_lshl_b32 s{sFl}, s{sSeg}, 11")
        body(st, stamp)
        trace(a, cfg, 1, sSeg, vT)
        trace(a, cfg, 5, sSeg, vT)
        stamp("end")
        if stamp.on:
            lab = a.newlab("L_nost")
            a(f"s_and_b32 s{sT0}, s{sSeg}, 63")
            a(f"s_cmp_lg_u32 s{sT0}, {cfg.get('stamp_step', 20)}")
            a(f"s_cbranch_scc1 {lab}")
            def row():
                a(f"s_lshl_b32 s{sT0}, s{sGRP}, 7")
                a(f"s_lshl_b32 s{sT1}, s{sMEMB}, 2")
                a(f"s_add_u32 s{sT0}, s{sT0}, s{sT1}")
                a(f"s_add_u32 s{sT0}, s{sT0}, s{sWAVE}")
            dump_stamps(a, stamp, cfg, row)
            a.label(lab)
        a(f"s_add_u32 s{sSeg}, s{sSeg}, 1")
        a(f"s_cmp_lt_u32 s{sSeg}, s{sEnd}")
        a(f"s_cbranch_scc1 L_{name}_{tag}")
        a("s_waitcnt vmcnt(0)")
        a("s_branch L_done")

sPre, sFlN, vF = 92, 93, 13
sRing, sD0, sD1, sD2, sFlD, sPend = 94, 95, 64, 65, 67, 75
CFG = {}

def RB_(): return CFG.get('ring', 8)

def ring_off(a, dst, sg, part):
    a(f"s_and_b32 s{dst}, s{sg}, {(RB_() if part else 4)-1}")
    a(f"s_lshl_b32 s{dst}, s{dst}, 17")
    a(f"s_add_u32 s{dst}, s{dst}, s{sRing}")
    if part: a(f"s_add_u32 s{dst}, s{dst}, {part:#x}")

def touch_ring(a, cfg):
    R = (4 + RB_()) // 2
    a(f"s_mul_i32 s{sT0}, s{sMEMB}, {R*8192}")
    a(f"s_mul_i32 s{sT1}, s{sWAVE}, {R*2048}")
    a(f"s_add_u32 s{sT0}, s{sT0}, s{sT1}")
    a(f"s_add_u32 s{sT0}, s{sT0}, s{sRing}")
    for i in range(2 * R):
        if i and i % 4 == 0: a(f"s_add_u32 s{sT0}, s{sT0}, 4096")
        a(f"buffer_load_dwordx4 v[100:103], v{vL16}, {W}, s{sT0} offen offset:{(i%4)*1024} sc1")
    a("s_waitcnt vmcnt(0)")

def dma_ops(npiece, phase_bytes):
    NT = ' nt' if (npiece == 4 and CFG.get('nt_o', False)) else ''
    ops = []
    for ph in range(4):
        for i in range(npiece):
            x = []
            if i == 0:
                x.append(f"s_add_u32 m0, s{sD0}, {ph*phase_bytes}")
                x.append(f"s_add_u32 s{sD2}, s{sD1}, {ph*phase_bytes}")
            x.append(f"buffer_load_dwordx4 v{vL16}, {W}, s{sD2} offen offset:{i*1024} sc1{NT} lds")
            ops.append(x)
    return ops

def dma_setup(a, npiece):
    a(f"s_mul_i32 s{sT0}, s{sWAVE}, {npiece*1024}")
    a(f"s_add_u32 s{sD1}, s{sSrc}, s{sT0}")
    a(f"s_add_u32 s{sD0}, s{sBuf}, s{sT0}")

def guarded(a, ops):
    lab = a.newlab("L_g")
    a(f"s_cbranch_vccz {lab}")
    for x in ops: a(x)
    a.label(lab)

def stage_issue(a, npiece, phase_bytes):
    a(f"s_mul_i32 s{sT0}, s{sWAVE}, {npiece*1024}")
    a(f"s_add_u32 s{sT1}, s{sSrc}, s{sT0}")
    a(f"s_add_u32 s{sT0}, s{sBuf}, s{sT0}")
    for ph in range(4):
        a(f"s_add_u32 m0, s{sT0}, {ph*phase_bytes}")
        if ph: a(f"s_add_u32 s{sT1}, s{sT1}, {phase_bytes}")
        for i in range(npiece):
            a(f"buffer_load_dwordx4 v{vL16}, {W}, s{sT1} offen offset:{i*1024} sc1 lds")

def fetch_input(a, cfg, stamp, src_of, npiece, phase_bytes, bufsize, vbase, sFl=sFl):
    lab = a.newlab("L_pre")
    a(f"s_add_u32 s{sFlN}, s{sFl}, 2048")
    a(f"s_cmp_lg_u32 s{sPre}, 0")
    a(f"s_cbranch_scc1 {lab}")
    poll_flags(a, vT, vFo, sFl, sleep=CFG.get('psleep', 1))
    stamp("polled", True)
    src_of(sSeg)
    dma_setup(a, npiece)
    for x in dma_ops(npiece, phase_bytes)[:2 * npiece]:
        for y in x: a(y)
    a.label(lab)
    stamp("flag")
    trace(a, cfg, 0, sSeg, vT)
    a(f"v_add_u32 v{vRd}, s{sBuf}, v{vbase}")
    a(f"s_xor_b32 s{sBuf}, s{sBuf}, {bufsize}")

def resample():
    return f"buffer_load_dword v{vF}, v{vFo}, {W}, s{sFlN} offen sc1"

def finish(a, cfg, fl, st, nstore, npiece, phase_bytes, src_of):
    no = a.newlab('L_noE'); go = a.newlab('L_goE'); fin = a.newlab('L_fin')
    a(f's_mov_b32 s{sFlD}, s{sFl}')
    a(f's_mov_b32 s{sPend}, s{sPre}')
    a(f's_cmp_lg_u32 s{sPre}, 0')
    a(f"s_cbranch_scc1 {fin if CFG.get('pend', True) else no}")
    a(f's_waitcnt vmcnt({nstore})')
    a(f"v_cmp_eq_u32 vcc, 0, v{vF}")
    a(f"s_add_u32 s{sT2}, s{sSeg}, 1")
    a(f"s_cmp_ge_u32 s{sT2}, s{sEnd}")
    a(f"s_cbranch_scc1 {no}")
    a(f"s_cbranch_vccnz {no}")
    src_of(sT2)
    dma_setup(a, npiece)
    for x in dma_ops(npiece, phase_bytes)[:2 * npiece]:
        for y in x: a(y)
    a(f"s_mov_b32 s{sPre}, 1")
    a(f's_waitcnt vmcnt({2*npiece})')
    a(f"s_branch {go}")
    a.label(no)
    a('s_waitcnt vmcnt(0)')
    a.label(go)
    set_flag(a, vOne, sFl, fl, st)
    a.label(fin)

def gemm_phases(a, nks, npiece, extra, rdoffs, ring, step, src_of, phase_bytes, stamp, rs_at, nstore, fl, st, mid=True, nring=3):
    per = nks // 4
    def rd(ks):
        sl = ring + (ks % nring) * 8
        return [f"ds_read_b128 {vr(sl+4*u,4)}, v{vRd} offset:{rdoffs(ks,u)}" for u in range(2)]
    def kstep(ks, more):
        left = nks - 1 - ks
        a(f"s_waitcnt lgkmcnt({2 if left >= 1 else 0})")
        side = (rd(ks + 2) if left >= 2 else []) + more
        step(ks, ring + (ks % nring) * 8, side)
        assert not side
    if CFG.get('pend', True):
        lab = a.newlab("L_np")
        a(f"s_waitcnt vmcnt({npiece+nstore})")
        a(f"s_cmp_lg_u32 s{sPend}, 0")
        a(f"s_cbranch_scc1 {lab}")
    a(f"s_waitcnt vmcnt({npiece})")
    if CFG.get('pend', True): a.label(lab)
    stamp("w0", True)
    a("s_barrier")
    stamp("b0", True)
    for x in rd(0) + rd(1): a(x)
    dq = dma_ops(npiece, phase_bytes)[2 * npiece:]
    dec = CFG.get("dec%d" % nks, 3 * per - 2 if npiece == 2 else 20)
    ops = []
    def gate(q):
        last = max([k for k, x in enumerate(ops) if x == q], default=-1)
        a(f"s_waitcnt vmcnt({len(ops)-1-last})")
        if q == 1 and CFG.get('pend', True):
            lab = a.newlab("L_np")
            a(f"s_cmp_eq_u32 s{sPend}, 0")
            a(f"s_cbranch_scc1 {lab}")
            set_flag(a, vOne, sFlD, fl, st)
            a.label(lab)
        a("s_barrier")
        stamp(f"b{q}", True)
    def common(ks):
        more = []
        for q in (1, 2, 3):
            if ks == q * per - 2: gate(q)
        if dq:
            more.append("\n".join(dq.pop(0))); ops.append(2 + (2 * npiece - len(dq) - 1) // npiece)
        if ks == 2 * npiece:
            for x in extra: more.append(x); ops.append(None)
        return more
    if not mid:
        a(f"s_mov_b32 s{sPre}, 0")
        for ks in range(nks):
            more = common(ks)
            if ks == rs_at: more.append(resample()); ops.append(None)
            kstep(ks, more)
        return
    for ks in range(0, dec):
        more = common(ks)
        if ks == max(2 * npiece, dec - CFG.get('lead%d' % nks, 12 if npiece == 4 else 6)): more.append(resample()); ops.append(None)
        kstep(ks, more)
    no, end = a.newlab("L_Hn"), a.newlab("L_He")
    a("s_waitcnt vmcnt(0)")
    ops.clear()
    a(f"v_cmp_eq_u32 vcc, 0, v{vF}")
    a(f"s_mov_b32 s{sPre}, 0")
    a(f"s_add_u32 s{sT2}, s{sSeg}, 1")
    a(f"s_cmp_ge_u32 s{sT2}, s{sEnd}")
    a(f"s_cbranch_scc1 {no}")
    a(f"s_cbranch_vccnz {no}")
    src_of(sT2)
    dma_setup(a, npiece)
    a(f"s_mov_b32 s{sPre}, 1")
    stamp("dec", True)
    dn = dma_ops(npiece, phase_bytes)[:2 * npiece]
    for ks in range(dec, nks):
        more = []
        if ks == 3 * per - 2: a("s_barrier")
        if dn: more.append("\n".join(dn.pop(0)))
        kstep(ks, more)
    assert not dn
    a(f"s_branch {end}")
    a.label(no)
    for ks in range(dec, nks):
        if ks == 3 * per - 2: a("s_barrier")
        kstep(ks, [resample()] if ks == rs_at else [])
    a.label(end)

def natural_dma64(a, vdst, rowbytes):
    a(f"v_lshrrev_b32 v{vdst}, 2, v0")
    a(f"v_mul_u32_u24 v{vdst}, {rowbytes}, v{vdst}")
    a(f"v_and_b32 v{vT}, 3, v0")
    a(f"v_lshl_add_u32 v{vdst}, v{vT}, 4, v{vdst}")

def img_rd_addr(a, vdst):
    a(f"v_lshrrev_b32 v{vT}, 4, v0")
    a(f"v_lshlrev_b32 v{vT}, 9, v{vT}")
    a(f"v_and_b32 v{vdst}, 15, v0")
    a(f"v_lshl_add_u32 v{vdst}, v{vdst}, 4, v{vT}")

def img2_addr(a, vdst):
    a(f"v_lshrrev_b32 v{vT}, 5, v0")
    a(f"v_lshlrev_b32 v{vdst}, 10, v{vT}")
    a(f"v_bfe_u32 v{vT}, v0, 2, 2")
    a(f"v_lshl_add_u32 v{vdst}, v{vT}, 7, v{vdst}")
    a(f"v_bfe_u32 v{vT}, v0, 4, 1")
    a(f"v_lshl_add_u32 v{vdst}, v{vT}, 6, v{vdst}")
    a(f"v_and_b32 v{vT}, 3, v0")
    a(f"v_lshl_add_u32 v{vdst}, v{vT}, 4, v{vdst}")

sBias, sFlP = 78, 79
def credit_setup(a, vCr, off, n, R):
    a(f"s_mov_b32 s{sBias}, 0")
    a(f"v_and_b32 v{vCr}, {n-1}, v0")
    a(f"v_lshlrev_b32 v{vCr}, 2, v{vCr}")
    a(f"v_add_u32 v{vCr}, {off}, v{vCr}")
    a(f"v_add_u32 v{vT}, {R*2048}, v{vFo}")
    a(f"v_cmp_gt_u32 vcc, 32, v0")
    a(f"v_cndmask_b32 v{vCr}, v{vCr}, v{vT}, vcc")

def credit_switch(a, vCr, R):
    lab = a.newlab("L_nocr")
    a(f"s_and_b32 s{sT0}, s{sSeg}, 63")
    a(f"s_cmp_lg_u32 s{sT0}, {R-1}")
    a(f"s_cbranch_scc1 {lab}")
    a(f"v_mov_b32 v{vFo}, v{vCr}")
    a(f"s_mov_b32 s{sBias}, {R*2048}")
    a(f"s_sub_u32 s{sFlN}, s{sFlN}, {R*2048}")
    a.label(lab)

def role_ra(a, cfg):
    WT = 256
    vD, vTR, vSt, vCr = 96, 97, 7, 8
    sKs, sNs = 61, 62
    a.label("L_ra")
    common_start(a)
    a(f"s_lshr_b32 s{sKs}, s{sMEMB}, 2")
    a(f"s_and_b32 s{sNs}, s{sMEMB}, 3")
    natural_dma64(a, vD, 1024)
    tr32_addr(a, vTR, 4)
    a(f"s_lshl_b32 s{sT2}, s{sKs}, 20")
    a(f"s_lshl_b32 s{sT1}, s{sNs}, 8")
    a(f"s_add_u32 s{sT2}, s{sT2}, s{sT1}")
    a(f"s_lshl_b32 s{sT1}, s{sWAVE}, 6")
    a(f"s_add_u32 s{sT2}, s{sT2}, s{sT1}")
    set_srd(a, sWT, sWO, 0x400000)
    late_start(a, cfg)
    chunks = []
    for ch in range(16):
        def setup(ch=ch): a(f"s_add_u32 s{sT0}, s{sT2}, {ch*65536}")
        def consume(so, ch=ch):
            for e in range(2):
                for hh in range(2):
                    for jh in range(2):
                        a(f"ds_read_b64_tr_b16 {xr(WT+((2*ch+e)*2+hh)*4+2*jh,2)}, v{vTR} offset:{so+(32*e+16*jh+8*hh)*64}")
            a("s_waitcnt lgkmcnt(0)")
        chunks.append(dict(setup=setup, vdma=vD, dstep=16384, consume=consume))
    load_chunks(a, chunks, sLds)
    a(f"v_and_b32 v{vFo}, 31, v0")
    a(f"v_lshlrev_b32 v{vFo}, 2, v{vFo}")
    a(f"s_lshl_b32 s{sT0}, s{sKs}, 7")
    a(f"s_add_u32 s{sT0}, s{sT0}, {F_O}")
    a(f"v_add_u32 v{vFo}, s{sT0}, v{vFo}")
    credit_setup(a, vCr, F_XNB, 8, 4)
    lane32_addr(a, vSt, 512, 64, True)
    lane32_addr(a, 9, 1024, 256, False)
    a(f"s_lshl_b32 s{sT0}, s{sNs}, 13")
    a(f"s_lshl_b32 s{sT1}, s{sWAVE}, 11")
    a(f"s_add_u32 s{sT0}, s{sT0}, s{sT1}")
    a(f"s_lshl_b32 s{sT1}, s{sKs}, 15")
    a(f"s_add_u32 s{sT0}, s{sT0}, s{sT1}")
    a(f"v_add_u32 v{vSt}, s{sT0}, v{vSt}")
    a(f"s_mov_b32 s{sBuf}, 0")
    ACC, RING = 16, 32
    def body(st, stamp):
        def src_of(sg):
            a(f"s_lshl_b32 s{sSrc}, s{sg}, 18")
            a(f"s_lshl_b32 s{sT0}, s{sKs}, 16")
            a(f"s_add_u32 s{sSrc}, s{sSrc}, s{sT0}")
            a(f"s_add_u32 s{sSrc}, s{sSrc}, {OFF_O:#x}")
        a(f"s_sub_u32 s{sFlP}, s{sFl}, s{sBias}")
        fetch_input(a, cfg, stamp, src_of, 4, 16384, 0x10000, 9, sFlP)
        credit_switch(a, vCr, 4)
        ring_off(a, sDst, sSeg, R_PART)
        a(f"s_lshl_b32 s{sT0}, s{sMEMB}, 2")
        a(f"s_add_u32 s{sT0}, s{sT0}, s{sWAVE}")
        a(f"s_lshl_b32 s{sT0}, s{sT0}, 2")
        a(f"s_add_u32 s{sFl}, s{sFl}, s{sT0}")
        def step(ks, fr, side):
            for hh in range(2):
                mfma32(a, ACC, WT + (ks * 2 + hh) * 4, fr + 4 * hh, ks == 0 and hh == 0)
                for _ in range(3):
                    if side: a(side.pop(0))
        gemm_phases(a, 32, 4, [], lambda ks, u: ks * 2048 + u * 512, RING, step, src_of, 16384, stamp, CFG.get('rs_ra', 27), 2, F_PART, st)
        stamp("gemm")
        for u in range(2):
            for i in range(4): cvt(a, 56 + 4 * u + i, ACC + u * 8 + 2 * i)
            a(f"buffer_store_dwordx4 {vr(56+4*u,4)}, v{vSt}, {W}, s{sDst} offen offset:{u*1024}{st}")
        finish(a, cfg, F_PART, st, 2, 4, 16384, src_of)
    both_modes(a, "ra", body, cfg)

def role_rc(a, cfg):
    WT = 256
    vD, vTR, vNeg, vRb = 96, 97, 7, 8
    sHb, sMask, sPrevOK = 61, 76, 62
    a.label("L_rc")
    common_start(a)
    a(f"s_sub_u32 s{sHb}, s{sMEMB}, 16")
    a(f"s_lshl_b32 s{sHb}, s{sHb}, 2")
    a(f"s_add_u32 s{sHb}, s{sHb}, s{sWAVE}")
    a(f"v_lshrrev_b32 v{vD}, 1, v0")
    a(f"v_mul_u32_u24 v{vD}, 3072, v{vD}")
    a(f"v_and_b32 v{vT}, 1, v0")
    a(f"v_lshl_add_u32 v{vD}, v{vT}, 4, v{vD}")
    a(f"v_lshrrev_b32 v{vT}, 4, v0")
    a(f"v_lshlrev_b32 v{vTR}, 8, v{vT}")
    a(f"v_bfe_u32 v{vT}, v0, 2, 2")
    a(f"v_lshl_add_u32 v{vTR}, v{vT}, 5, v{vTR}")
    a(f"v_and_b32 v{vT}, 3, v0")
    a(f"v_lshl_add_u32 v{vTR}, v{vT}, 3, v{vTR}")
    a(f"v_add_u32 v{vTR}, s{sLds}, v{vTR}")
    a(f"s_lshl_b32 s{sT2}, s{sHb}, 5")
    set_srd(a, sWT, sWB, 512 * 3072)
    late_start(a, cfg)
    chunks = []
    for mm in range(3):
        for ch in range(4):
            def setup(mm=mm, ch=ch): a(f"s_add_u32 s{sT0}, s{sT2}, {128*ch*3072 + mm*1024}")
            def consume(so, mm=mm, ch=ch):
                for e in range(4):
                    for jh in range(2):
                        a(f"ds_read_b64_tr_b16 {xr(WT+((4*ch+e)*3+mm)*4+2*jh,2)}, v{vTR} offset:{so+(32*e+4*jh)*32}")
                a("s_waitcnt lgkmcnt(0)")
            chunks.append(dict(setup=setup, vdma=vD, dstep=32 * 3072, consume=consume))
    load_chunks(a, chunks, sLds)
    a(f"v_and_b32 v{vFo}, 7, v0")
    a(f"v_lshlrev_b32 v{vFo}, 2, v{vFo}")
    a(f"v_add_u32 v{vFo}, {F_XNB}, v{vFo}")
    img_rd_addr(a, vRb)
    a(f"v_mov_b32 v{vNeg}, {fbits(-1e9 * 4):#x}")
    a(f"s_mov_b32 s{sC}, {fbits(0.25*1.4426950408889634):#x}")
    a(f"s_mov_b32 s{sC+1}, s{sC}")
    a("v_and_b32 v96, 15, v0")
    a("v_lshrrev_b32 v97, 4, v0")
    a("v_lshlrev_b32 v97, 2, v97")
    for r in range(4):
        a(f"v_add_u32 v98, {r}, v97")
        a(f"v_add_u32 v99, 9, v96")
        a(f"v_cmp_ge_u32 s[{sMask+2*r}:{sMask+2*r+1}], v98, v99")
        a(f"v_sub_u32 v99, v96, v98")
        a(f"v_cmp_ge_u32 s[{sMask+8+2*r}:{sMask+8+2*r+1}], 7, v99")
    KP, VP = (16, 20), (24, 28)
    for r in range(16, 32): a(f"v_mov_b32 v{r}, 0")
    a(f"s_mov_b32 s{sBuf}, 0")
    sPM = 8
    for r in range(4): a(f"s_mov_b64 s[{sPM+2*r}:{sPM+2*r+1}], 0")
    RING, ACC = 32, 56
    def body(st, stamp):
        def src_of(sg):
            ring_off(a, sSrc, sg, R_XNB)
        fetch_input(a, cfg, stamp, src_of, 2, 8192, 0x8000, vRb)
        ring_off(a, sDst, sSeg, R_OB)
        a(f"s_lshl_b32 s{sT0}, s{sHb}, 10")
        a(f"s_add_u32 s{sDst}, s{sDst}, s{sT0}")
        a(f"s_lshl_b32 s{sT0}, s{sHb}, 2")
        a(f"s_add_u32 s{sFl}, s{sFl}, s{sT0}")
        acc = lambda mm, p: ACC + (p * 3 + mm) * 4
        FR = 128
        wq, wk, wv = (lambda ks: WT + ks * 12), (lambda ks: WT + ks * 12 + 4), (lambda ks: WT + ks * 12 + 8)
        def step(ks, fr, side):
            c = lambda x: None if ks == 0 else x
            mfma(a, acc(0, 0), wq(ks), fr, c(acc(0, 0)))
            for _ in range(2):
                if side: a(side.pop(0))
            mfma(a, acc(1, 0), wk(ks), fr, c(acc(1, 0)))
            if side: a(side.pop(0))
            mfma(a, acc(2, 0), fr, wv(ks), c(acc(2, 0)))
            for _ in range(2):
                if side: a(side.pop(0))
        gemm_phases(a, 16, 2, [], lambda ks, u: ks * 2048 + u * 256, FR, step, src_of, 8192, stamp, 99, 1, F_OB, st, mid=False, nring=16)
        stamp("gemm")
        Q = (80, 82); S = (96, 104); B = (84, 88); O = (112, 116); M = (92, 94)
        def xl(op, p):
            out = []
            for sw in ("v_permlane16_swap_b32", "v_permlane32_swap_b32"):
                out += [f"v_mov_b32 v{M[p]+1}, v{M[p]}", None, f"{sw} v{M[p]}, v{M[p]+1}", f"{op} v{M[p]}, v{M[p]}, v{M[p]+1}"]
            return out
        def softmax(p):
            sm = [None] * 3
            sm += [f"v_cvt_pk_bf16_f32 v{Q[p]}, v{acc(0,p)}, v{acc(0,p)+1}", f"v_cvt_pk_bf16_f32 v{Q[p]+1}, v{acc(0,p)+2}, v{acc(0,p)+3}",
                   f"v_cvt_pk_bf16_f32 v{KP[p]+2}, v{acc(1,p)}, v{acc(1,p)+1}", f"v_cvt_pk_bf16_f32 v{KP[p]+3}, v{acc(1,p)+2}, v{acc(1,p)+3}", None,
                   f"v_mfma_f32_16x16x16_bf16 {vr(S[p],4)}, {vr(KP[p],2)}, {vr(Q[p],2)}, 0",
                   f"v_mfma_f32_16x16x16_bf16 {vr(S[p]+4,4)}, {vr(KP[p]+2,2)}, {vr(Q[p],2)}, 0",
                   f"v_mov_b64 {vr(KP[p],2)}, {vr(KP[p]+2,2)}", None, None]
            sm += [f"v_cndmask_b32 v{S[p]+r}, v{vNeg}, v{S[p]+r}, s[{sPM+2*r}:{sPM+2*r+1}]" for r in range(4)]
            sm += [f"v_cndmask_b32 v{S[p]+4+r}, v{vNeg}, v{S[p]+4+r}, s[{sMask+8+2*r}:{sMask+8+2*r+1}]" for r in range(4)]
            sm += [f"v_max3_f32 v{M[p]}, v{S[p]}, v{S[p]+1}, v{S[p]+2}", f"v_max3_f32 v{M[p]}, v{M[p]}, v{S[p]+3}, v{S[p]+4}",
                   f"v_max3_f32 v{M[p]}, v{M[p]}, v{S[p]+5}, v{S[p]+6}", f"v_max_f32 v{M[p]}, v{M[p]}, v{S[p]+7}"]
            sm += xl("v_max_f32", p)
            sm += [f"v_mul_f32 v{M[p]}, s{sC}, v{M[p]}"]
            sm += [f"v_fma_f32 v{S[p]+i}, v{S[p]+i}, s{sC}, -v{M[p]}" for i in range(8)]
            sm += [f"v_exp_f32 v{S[p]+i}, v{S[p]+i}" for i in range(8)]
            sm += [f"v_cvt_pk_bf16_f32 v{B[p]+i}, v{S[p]+2*i}, v{S[p]+2*i+1}" for i in range(4)]
            return sm
        def rsum(p):
            out = []
            for d in (4, 2, 1):
                for i in range(d): out.append(f"v_add_f32 v{S[p]+i if d > 1 else M[p]}, v{S[p]+i}, v{S[p]+i+d}")
            return out + xl("v_add_f32", p) + [f"v_rcp_f32 v{M[p]}, v{M[p]}"]
        def vpack(p): return [f"v_cvt_pk_bf16_f32 v{VP[p]+2}, v{acc(2,p)}, v{acc(2,p)+1}", f"v_cvt_pk_bf16_f32 v{VP[p]+3}, v{acc(2,p)+2}, v{acc(2,p)+3}"]
        def weave(mfmas, side, rate):
            for m_ in mfmas:
                mfma(a, *m_)
                for _ in range(rate):
                    if side:
                        x = side.pop(0)
                        if x: a(x)
        side = softmax(0) + vpack(0)
        mm = []
        for ks in range(16):
            c = lambda x: None if ks == 0 else x
            mm += [(acc(0, 1), wq(ks), FR + 8 * ks + 4, c(acc(0, 1))), (acc(1, 1), wk(ks), FR + 8 * ks + 4, c(acc(1, 1)))]
        weave(mm, side, 2)
        for x in side:
            if x: a(x)
        a(resample())
        side = rsum(0)[:3] + softmax(1)[3:]
        mm = [(acc(2, 1), FR + 8 * ks + 4, wv(ks), None if ks == 0 else acc(2, 1)) for ks in range(16)]
        weave([(O[0], VP[0], B[0], None)] + mm, side, 3)
        for x in side + vpack(1) + rsum(0)[3:7]:
            if x: a(x)
        mfma(a, O[1], VP[1], B[1], None)
        r0, r1 = rsum(0)[7:], rsum(1)
        for x in r1[:7]: a(x)
        for x, y in zip(r0, r1[7:]):
            if x: a(x)
            if y: a(y)
        for p in range(2): a(f"v_mov_b64 {vr(VP[p],2)}, {vr(VP[p]+2,2)}")
        for r in range(4): a(f"s_mov_b64 s[{sPM+2*r}:{sPM+2*r+1}], s[{sMask+2*r}:{sMask+2*r+1}]")
        for p in range(2):
            a(f"v_pk_mul_f32 {vr(O[p],2)}, {vr(O[p],2)}, {vr(M[p],2)} op_sel_hi:[1,0]")
            a(f"v_pk_mul_f32 {vr(O[p]+2,2)}, {vr(O[p]+2,2)}, {vr(M[p],2)} op_sel_hi:[1,0]")
        for p in range(2):
            cvt(a, 80 + 2 * p, O[p]); cvt(a, 81 + 2 * p, O[p] + 2)
        a("v_permlane16_swap_b32 v80, v82")
        a("v_permlane16_swap_b32 v81, v83")
        a(f"buffer_store_dwordx4 v[80:83], v{vL16}, {W}, s{sDst} offen{st}")
        stamp("attn")
        finish(a, cfg, F_OB, st, 1, 2, 8192, src_of)
    both_modes(a, "rc", body, cfg)

def role_rd(a, cfg):
    WT = 256
    vD, vTR, vRb, vX1, vSt0, vSt1 = 96, 97, 8, 9, 10, 11
    sMd, sOb, sX1o, sOm, sOs = 61, 62, 63, 76, 77
    a.label("L_rd")
    common_start(a)
    a(f"s_sub_u32 s{sMd}, s{sMEMB}, 24")
    a(f"s_lshl_b32 s{sMd}, s{sMd}, 2")
    a(f"s_add_u32 s{sMd}, s{sMd}, s{sWAVE}")
    natural_dma64(a, vD, 1024)
    tr32_addr(a, vTR, 8)
    a(f"s_lshl_b32 s{sT2}, s{sMd}, 6")
    set_srd(a, sWT, sWBO, 0x80000)
    late_start(a, cfg)
    chunks = []
    for ch in range(8):
        def setup(ch=ch): a(f"s_add_u32 s{sT0}, s{sT2}, {ch*65536}")
        def consume(so, ch=ch):
            for e in range(2):
                for hh in range(2):
                    for jh in range(2):
                        a(f"ds_read_b64_tr_b16 {xr(WT+((2*ch+e)*2+hh)*4+2*jh,2)}, v{vTR} offset:{so+(32*e+16*hh+4*jh)*64}")
            a("s_waitcnt lgkmcnt(0)")
        chunks.append(dict(setup=setup, vdma=vD, dstep=16384, consume=consume))
    load_chunks(a, chunks, sLds)
    a(f"v_and_b32 v{vFo}, 31, v0")
    a(f"v_lshlrev_b32 v{vFo}, 2, v{vFo}")
    a(f"v_add_u32 v{vFo}, {F_OB}, v{vFo}")
    a(f"s_cmp_eq_u32 s{sLAY}, 0")
    a(f"s_mov_b32 s{sT1}, {F_OB}")
    a(f"s_cselect_b32 s{sT1}, {64*2048+F_XN}, s{sT1}")
    credit_setup(a, 12, f"s{sT1}", 8, RB_())
    lane32_addr(a, vRb, 256, 512, False)
    a(f"s_lshl_b32 s{sT0}, s{sMd}, 11")
    a(f"v_add_u32 v{vX1}, s{sT0}, v{vRb}")
    a(f"s_cmp_eq_u32 s{sLAY}, 0")
    a("s_cbranch_scc1 L_rd_l0")
    set_srd(a, sIN, sOUT, 0x200000)
    a(f"s_mov_b32 s{sOb}, 0")
    a(f"s_mov_b32 s{sOm}, 63")
    a(f"s_mov_b32 s{sOs}, 15")
    a(f"v_and_b32 v{vT}, 15, v0")
    a(f"v_lshlrev_b32 v{vSt0}, 11, v{vT}")
    a(f"v_bfe_u32 v{vT}, v0, 4, 1")
    a(f"v_lshl_add_u32 v{vSt0}, v{vT}, 10, v{vSt0}")
    a(f"v_lshrrev_b32 v{vT}, 5, v0")
    a(f"v_lshl_add_u32 v{vSt0}, v{vT}, 4, v{vSt0}")
    a(f"s_lshl_b32 s{sT0}, s{sMd}, 6")
    a(f"v_add_u32 v{vSt0}, s{sT0}, v{vSt0}")
    a(f"v_add_u32 v{vSt1}, 32, v{vSt0}")
    a("s_branch L_rd_go")
    a.label("L_rd_l0")
    set_srd(a, sIN, sWSP, WS_BYTES)
    a(f"s_add_u32 s{sOb}, s{sRing}, {R_X2:#x}")
    a(f"s_mov_b32 s{sOm}, {RB_()-1}")
    a(f"s_mov_b32 s{sOs}, 17")
    lane32_addr(a, vSt0, 512, 64, True)
    a(f"s_lshl_b32 s{sT0}, s{sMd}, 11")
    a(f"v_add_u32 v{vSt0}, s{sT0}, v{vSt0}")
    a(f"v_add_u32 v{vSt1}, 1024, v{vSt0}")
    a.label("L_rd_go")
    a(f"s_mov_b32 s{sBuf}, 0")
    ACC, RING, XR = 16, 32, 56
    def body(st, stamp):
        def src_of(sg):
            ring_off(a, sSrc, sg, R_OB)
        a(f"s_sub_u32 s{sFlP}, s{sFl}, s{sBias}")
        fetch_input(a, cfg, stamp, src_of, 2, 8192, 0x8000, vRb, sFlP)
        credit_switch(a, 12, RB_())
        ring_off(a, sX1o, sSeg, R_X1)
        extra = [f"buffer_load_dwordx4 {vr(XR+4*u,4)}, v{vX1}, {W}, s{sX1o} offen offset:{u*1024} sc1" for u in range(2)]
        a(f"s_and_b32 s{sDst}, s{sSeg}, s{sOm}")
        a(f"s_lshl_b32 s{sDst}, s{sDst}, s{sOs}")
        a(f"s_add_u32 s{sDst}, s{sDst}, s{sOb}")
        a(f"s_lshl_b32 s{sT0}, s{sMd}, 2")
        a(f"s_add_u32 s{sFl}, s{sFl}, s{sT0}")
        def step(ks, fr, side):
            for hh in range(2):
                mfma32(a, ACC, WT + (ks * 2 + hh) * 4, fr + 4 * hh, ks == 0 and hh == 0)
                for _ in range(3):
                    if side: a(side.pop(0))
        gemm_phases(a, 16, 2, extra, lambda ks, u: ks * 2048 + u * 1024, RING, step, src_of, 8192, stamp, CFG.get('rs_rd', 11), 2, F_X2, st, mid=False)
        stamp("gemm")
        a("s_waitcnt vmcnt(1)")
        for i in range(8):
            a(f"v_lshlrev_b32 v{64+2*i}, 16, v{XR+i}")
            a(f"v_and_b32 v{65+2*i}, 0xffff0000, v{XR+i}")
        for i in range(8):
            cvt(a, 80 + i, ACC + 2 * i)
        for i in range(8):
            a(f"v_lshlrev_b32 v{ACC+2*i}, 16, v{80+i}")
            a(f"v_and_b32 v{ACC+2*i+1}, 0xffff0000, v{80+i}")
        for i in range(8):
            a(f"v_pk_add_f32 {vr(ACC+2*i,2)}, {vr(ACC+2*i,2)}, {vr(64+2*i,2)}")
        for u in range(2):
            for i in range(4): cvt(a, 80 + 4 * u + i, ACC + 8 * u + 2 * i)
            a(f"buffer_store_dwordx4 {vr(80+4*u,4)}, v{(vSt0, vSt1)[u]}, s[{sIN}:{sIN+3}], s{sDst} offen{st}")
        if cfg.get("rd_copy", True):
            def copy(cond):
                lab = a.newlab("L_nocp")
                a(f"s_cmp_{cond}_u32 s{sSeg}, 63")
                a(f"s_cbranch_scc0 {lab}")
                a(f"s_lshl_b32 s{sX1o}, s{sSeg}, 15")
                a(f"s_add_u32 s{sX1o}, s{sX1o}, {OFF_X2R:#x}")
                for u in range(2):
                    a(f"buffer_store_dwordx4 {vr(80+4*u,4)}, v{(vSt0, vSt1)[u]}, {W}, s{sX1o} offen sc1")
                a.label(lab)
            copy("eq")
        finish(a, cfg, F_X2, st, 2, 2, 8192, src_of)
        if cfg.get("rd_copy", True): copy("lt")
    both_modes(a, "rd", body, cfg)

def row_reduce(a, r, t):
    a(f"v_add_f32_dpp v{r}, v{r}, v{r} row_ror:4 row_mask:0xf bank_mask:0xf")
    a(f"v_add_f32_dpp v{r}, v{r}, v{r} row_ror:8 row_mask:0xf bank_mask:0xf")
    xlane_g(a, "v_add_f32", r, t)

def rnd_bf16(a, r):
    a(f"v_cvt_pk_bf16_f32 v{r}, v{r}, v{r}")
    a(f"v_and_b32 v{r}, 0xffff0000, v{r}")

def layernorm(a, X, T, between=()):
    m, t, s, t2 = T, T + 2, T + 4, T + 6
    between = list(between)
    a(f"v_pk_add_f32 {vr(m,2)}, {vr(X,2)}, {vr(X+2,2)}")
    a(f"v_pk_mul_f32 {vr(s,2)}, {vr(X,2)}, {vr(X,2)}")
    a(f"v_pk_fma_f32 {vr(s,2)}, {vr(X+2,2)}, {vr(X+2,2)}, {vr(s,2)}")
    for i in range(4, 32, 2):
        a(f"v_pk_add_f32 {vr(m,2)}, {vr(m,2)}, {vr(X+i,2)}")
        a(f"v_pk_fma_f32 {vr(s,2)}, {vr(X+i,2)}, {vr(X+i,2)}, {vr(s,2)}")
    a(f"v_add_f32 v{m}, v{m}, v{m+1}")
    a(f"v_add_f32 v{s}, v{s}, v{s+1}")
    def gap():
        if between: a(between.pop(0))
    for ror in (4, 8):
        gap()
        a(f"v_add_f32_dpp v{m}, v{m}, v{m} row_ror:{ror} row_mask:0xf bank_mask:0xf")
        a(f"v_add_f32_dpp v{s}, v{s}, v{s} row_ror:{ror} row_mask:0xf bank_mask:0xf")
    for sw in ("v_permlane16_swap_b32", "v_permlane32_swap_b32"):
        a(f"v_mov_b32 v{t}, v{m}")
        a(f"v_mov_b32 v{t2}, v{s}")
        gap()
        a(f"{sw} v{m}, v{t}")
        a(f"{sw} v{s}, v{t2}")
        a(f"v_add_f32 v{m}, v{m}, v{t}")
        a(f"v_add_f32 v{s}, v{s}, v{t2}")
    a(f"v_mul_f32 v{m}, {fbits(1/512):#x}, v{m}")
    a(f"v_mul_f32 v{s}, {fbits(1/512):#x}, v{s}")
    a(f"v_fma_f32 v{s}, -v{m}, v{m}, v{s}")
    a(f"v_max_f32 v{s}, 0, v{s}")
    rnd_bf16(a, m)
    rnd_bf16(a, s)
    a(f"v_add_f32 v{s}, {fbits(1e-5):#x}, v{s}")
    rnd_bf16(a, s)
    a(f"v_sqrt_f32 v{s}, v{s}")
    gap()
    rnd_bf16(a, s)
    a(f"v_rcp_f32 v{s}, v{s}")
    for x in between: a(x)
    a(f"v_mul_f32 v{m}, v{m}, v{s}")
    for i in range(0, 32, 2):
        a(f"v_pk_fma_f32 {vr(X+i,2)}, {vr(X+i,2)}, {vr(s,2)}, {vr(m,2)} op_sel_hi:[1,0,0] neg_lo:[0,0,1] neg_hi:[0,0,1]")

def unpack(a, dst, src, n):
    for i in range(n):
        a(f"v_lshlrev_b32 v{dst+2*i}, 16, v{src+i}")
        a(f"v_and_b32 v{dst+2*i+1}, 0xffff0000, v{src+i}")

def rows_setup(a, sWb):
    c_, gi = 96, 97
    a(f"s_and_b32 s{sT0}, s{sWb}, 1")
    a(f"s_lshr_b32 s{sT1}, s{sWb}, 1")
    a(f"s_lshl_b32 s{sT1}, s{sT1}, 2")
    a(f"v_and_b32 v{c_}, 3, v0")
    a(f"v_add_u32 v{c_}, s{sT1}, v{c_}")
    a(f"v_lshrrev_b32 v{gi}, 2, v0")
    a(f"s_lshl_b32 s{sT1}, s{sT0}, 8")
    a(f"v_lshl_add_u32 v98, v{c_}, 4, s{sT1}")
    a(f"s_lshl_b32 s{sT1}, s{sT0}, 10")
    a(f"v_lshl_add_u32 v99, v{c_}, 11, s{sT1}")
    a(f"s_lshl_b32 s{sT1}, s{sT0}, 9")
    a(f"s_lshr_b32 s{sT2}, s{sWb}, 1")
    a(f"s_lshl_b32 s{sT2}, s{sT2}, 7")
    a(f"s_add_u32 s{sT1}, s{sT1}, s{sT2}")
    a(f"v_and_b32 v102, 7, v0")
    a(f"v_lshl_add_u32 v102, v102, 4, s{sT1}")

def xn_store_addr(a, vP):
    a(f"s_lshl_b32 s{sT1}, s{sT0}, 10")
    a(f"v_lshl_add_u32 v{vP}, v96, 4, s{sT1}")
    a(f"v_lshl_add_u32 v{vP}, v97, 11, v{vP}")

def ln_to_xn(a, X, T, R, P, vP):
    unpack(a, X, R, 16)
    layernorm(a, X, T)
    for g in range(4):
        for dj in range(4):
            half = dj & 1; jh = dj >> 1
            e = 4 * (g >> 1) + 2 * (g & 1) + jh
            a(f"v_cvt_pk_bf16_f32 v{P+4*g+dj}, v{X+8*half+e}, v{X+8*(2+half)+e}")
        a(f"buffer_store_dwordx4 {vr(P+4*g,4)}, v{vP}, {W}, s{sDst} offen offset:{g*256} sc1")

def ln0(a, cfg):
    sWb, sU = 61, 62
    vA, vP = 8, 12
    X, T, P, R = 16, 48, 128, 144
    a(f"s_cmp_eq_u32 s{sLAY}, 0")
    a("s_cbranch_scc1 L_ln0_done")
    a("v_and_b32 v0, 63, v0")
    a(f"v_mov_b32 v{vOne}, 1")
    a(f"s_lshl_b32 s{sU}, s{sMEMB}, 2")
    a(f"s_add_u32 s{sU}, s{sU}, s{sWAVE}")
    a(f"s_and_b32 s{sWb}, s{sU}, 7")
    a(f"s_lshr_b32 s{sU}, s{sU}, 3")
    rows_setup(a, sWb)
    xn_store_addr(a, vP)
    a(f"v_lshrrev_b32 v100, 1, v97")
    a(f"v_and_b32 v101, 1, v97")
    a(f"v_lshl_add_u32 v100, v100, 3, v101")
    a(f"v_lshl_add_u32 v{vA}, v100, 4, v99")
    set_srd(a, sIN, sX, 0x200000)
    a(f"s_lshl_b32 s{sT0}, s{sU}, 15")
    for k in range(4):
        if k: a(f"s_add_u32 s{sT0}, s{sT0}, {16 << 15}")
        for q in range(4):
            a(f"buffer_load_dwordx4 {vr(R+16*k+4*q,4)}, v{vA}, s[{sIN}:{sIN+3}], s{sT0} offen offset:{q*32}")
    trace(a, cfg, 2, None, vT)
    a(f"s_lshl_b32 s{sDst}, s{sU}, 15")
    a(f"s_add_u32 s{sDst}, s{sDst}, {OFF_XN:#x}")
    a(f"s_lshl_b32 s{sFl}, s{sU}, 11")
    a(f"s_lshl_b32 s{sT0}, s{sWb}, 2")
    a(f"s_add_u32 s{sFl}, s{sFl}, s{sT0}")
    a(f"s_mov_b32 s{sU}, 0")
    a("s_waitcnt vmcnt(0)")
    a(f"v_lshrrev_b32 v100, 1, v97")
    a(f"v_lshl_add_u32 v{vA}, v100, 12, v102")
    a.label("L_ln0_loop")
    a(f"s_sub_u32 s{sT0}, s{sDst}, {OFF_XN-OFF_XR:#x}")
    for q in range(4):
        a(f"buffer_store_dwordx4 {vr(R+4*q,4)}, v{vA}, {W}, s{sT0} offen offset:{q*1024} sc1")
    ln_to_xn(a, X, T, R, P, vP)
    for i in range(24): a(f"v_mov_b64 {vr(R+2*i,2)}, {vr(R+16+2*i,2)}")
    if not cfg.get("noinit"):
        lab = a.newlab("L_l0g")
        a(f"s_cmp_lg_u32 s{sU}, 0")
        a(f"s_cbranch_scc1 {lab}")
        wait_init(a, barrier=False)
        trace(a, cfg, 3, None, vT)
        a.label(lab)
    a("s_waitcnt vmcnt(0)")
    set_flag(a, vOne, sFl, F_XN)
    a(f"s_add_u32 s{sDst}, s{sDst}, {16 << 15}")
    a(f"s_add_u32 s{sFl}, s{sFl}, {16 << 11}")
    a(f"s_add_u32 s{sU}, s{sU}, 1")
    trace(a, cfg, 3, sU, vT)
    if cfg.get("ln0_late", False):
        lab = a.newlab("L_l0l")
        a(f"s_cmp_lg_u32 s{sU}, 1")
        a(f"s_cbranch_scc1 {lab}")
        late_start(a, cfg)
        a.label(lab)
    a(f"s_cmp_lt_u32 s{sU}, 4")
    a("s_cbranch_scc1 L_ln0_loop")
    a.label("L_ln0_done")

def role_rows(a, cfg):
    sWb, sIb, sLo = 61, 62, 63
    vA = 8
    vP = 12
    vP2 = 7
    vFx = 13
    c_, gi = 96, 97
    a.label("L_rows")
    common_start(a)
    a(f"s_sub_u32 s{sWb}, s{sMEMB}, 28")
    a(f"s_lshl_b32 s{sT1}, s{sWb}, 2")
    a(f"s_add_u32 s{sT1}, s{sT1}, s{sWAVE}")
    a(f"s_lshl_b32 s{sWb}, s{sWb}, 1")
    a(f"s_and_b32 s{sT0}, s{sWAVE}, 1")
    a(f"s_add_u32 s{sWb}, s{sWb}, s{sT0}")
    a(f"s_lshr_b32 s{sLo}, s{sWAVE}, 1")
    if cfg.get("split_rows", False):
        a(f"s_and_b32 s{sT0}, s{sT1}, 7")
        a(f"s_lshr_b32 s{sT1}, s{sT1}, 3")
        a(f"s_cmp_eq_u32 s{sLAY}, 0")
        a(f"s_cselect_b32 s{sWb}, s{sT0}, s{sWb}")
        a(f"s_cselect_b32 s{sLo}, s{sT1}, s{sLo}")
    rows_setup(a, sWb)
    a(f"s_cmp_eq_u32 s{sLo}, 1")
    a("s_cbranch_scc1 L_re")
    SelLo, SelHi = 104, 108
    X, T, P, R, RN = 16, 48, 128, 112, 192
    a(f"v_lshlrev_b32 v{vFo}, 2, v0")
    a(f"v_add_u32 v{vFo}, {F_PART}, v{vFo}")
    a(f"v_and_b32 v{vFx}, 7, v0")
    a(f"v_lshlrev_b32 v{vFx}, 2, v{vFx}")
    a("v_bfe_u32 v100, v0, 3, 1")
    a("v_lshl_add_u32 v102, v100, 10, v102")
    a("v_lshrrev_b32 v100, 4, v0")
    a(f"v_lshl_add_u32 v{vP2}, v100, 15, v102")
    a("v_bfe_u32 v100, v0, 4, 1")
    a("v_lshlrev_b32 v101, 12, v100")
    a("v_bfe_u32 v100, v0, 5, 1")
    a("v_lshl_add_u32 v101, v100, 11, v101")
    a(f"v_add_u32 v{vA}, v101, v102")
    a("v_bfe_u32 v100, v0, 2, 2")
    a("v_lshl_add_u32 v101, v100, 9, v101")
    a(f"v_add_u32 v{vP}, v101, v98")
    sel_consts(a, 0, 100, selLo=SelLo, selHi=SelHi)
    vCa, vCv, sCr = 9, 10, 76
    a(f"v_and_b32 v{vCa}, 15, v0")
    a(f"v_lshlrev_b32 v{vCa}, 2, v{vCa}")
    a(f"v_add_u32 v{vCa}, {F_X2}, v{vCa}")
    def res_loads(sg):
        a(f"s_lshl_b32 s{sT0}, s{sg}, 15")
        a(f"s_add_u32 s{sT0}, s{sT0}, {OFF_XR:#x}")
        for i in range(4):
            if i: a(f"s_add_u32 s{sT0}, s{sT0}, 8192")
            a(f"buffer_load_dwordx4 {vr(RN+4*i,4)}, v{vA}, {W}, s{sT0} offen sc1")
    def before():
        a(f"s_lshl_b32 s{sFl}, s{sSeg}, 11")
        poll_flags(a, vT, vFx, sFl, sleep=8)
        for _ in range(2):
            a(f"s_add_u32 s{sFl}, s{sFl}, 2048")
            poll_flags(a, vT, vFx, sFl, sleep=8)
        res_loads(sSeg)
        a("s_waitcnt vmcnt(0)")
    def swaps(r):
        return [f"v_permlane16_swap_b32 v{r+4*p+h}, v{r+4*p+2+h}" for p in range(4) for h in range(2)]
    def body(st, stamp):
        ring_off(a, sSrc, sSeg, R_PART)
        for x in swaps(RN): a(x)
        unpack(a, X, RN, 16)
        poll_flags(a, vT, vFo, sFl, sleep=CFG.get('psleep', 1))
        stamp("flag")
        trace(a, cfg, 0, sSeg, vT)
        for n in range(16):
            if n and n % 2 == 0: a(f"s_add_u32 s{sSrc}, s{sSrc}, 4096")
            a(f"buffer_load_dwordx4 {vr(P+4*n,4)}, v{vP2}, {W}, s{sSrc} offen offset:{(n%2)*2048} sc1")
        a(f"s_and_b32 s{sT0}, s{sSeg}, 63")
        a(f"s_cmp_ge_u32 s{sT0}, {RB_()}")
        a(f"s_cselect_b32 s{sCr}, {RB_()*2048+F_PART-F_X2}, 0")
        a(f"s_sub_u32 s{sCr}, s{sFl}, s{sCr}")
        a(f"s_add_u32 s{sCr}, s{sCr}, {F_PART-F_X2}")
        a(f"buffer_load_dword v{vCv}, v{vCa}, {W}, s{sCr} offen sc1")
        a(f"s_add_u32 s{sT0}, s{sSeg}, 1")
        res_loads(sT0)
        ring_off(a, sT2, sSeg, R_X1)
        a(f"s_add_u32 s{sDst}, s{sT2}, {R_XNB-R_X1:#x}")
        a(f"s_lshl_b32 s{sT0}, s{sWb}, 2")
        a(f"s_add_u32 s{sFl}, s{sFl}, s{sT0}")
        for n in range(16):
            a(f"s_waitcnt vmcnt({20-n})")
            mfma(a, X + 4 * (n // 2), (SelLo, SelHi)[n % 2], P + 4 * n, X + 4 * (n // 2))
            if n >= 5 and n % 2 == 1:
                i = (n - 5) // 2
                cvt(a, R + 2 * i, X + 4 * i); cvt(a, R + 2 * i + 1, X + 4 * i + 2)
        stamp("sum")
        lab = a.newlab("L_crok")
        a("s_waitcnt vmcnt(4)")
        a(f"v_cmp_eq_u32 vcc, 0, v{vCv}")
        a(f"s_cbranch_vccz {lab}")
        poll_flags(a, vCv, vCa, sCr, sleep=2)
        a.label(lab)
        for i in range(12, 16): cvt(a, R + i, X + 2 * i)
        for x in swaps(R): a(x)
        stores = []
        for i in range(4):
            stores.append((f"s_add_u32 s{sT2}, s{sT2}, 8192\n" if i else "") + f"buffer_store_dwordx4 {vr(R+4*i,4)}, v{vP}, {W}, s{sT2} offen{st}")
        layernorm(a, X, T, stores)
        for p in range(4):
            for i in range(4): cvt(a, P + 4 * p + i, X + 8 * p + 2 * i)
            for x in swaps(P)[2*p:2*p+2]: a(x)
            if p: a(f"s_add_u32 s{sDst}, s{sDst}, 8192")
            a(f"buffer_store_dwordx4 {vr(P+4*p,4)}, v{vP}, {W}, s{sDst} offen{st}")
        stamp("ln")
        a("s_waitcnt vmcnt(0)")
        set_flag(a, vOne, sFl, F_XNB, st)
    both_modes(a, "rb", body, cfg, before)
    a.label("L_re")
    a(f"v_and_b32 v{vFo}, 15, v0")
    a(f"v_lshlrev_b32 v{vFo}, 2, v{vFo}")
    a(f"v_add_u32 v{vFo}, {F_X2}, v{vFo}")
    xn_store_addr(a, vP)
    a(f"v_lshrrev_b32 v100, 1, v{gi}")
    a(f"v_lshl_add_u32 v{vA}, v100, 12, v102")
    touch_ring(a, cfg)
    a(f"s_cmp_eq_u32 s{sLAY}, 1")
    a("s_cbranch_scc1 L_exit")
    if not cfg.get("noinit"): wait_init(a)
    else: a("s_barrier")
    stamp = Stamps(a, cfg.get("stamp") == "re", base=4, only=cfg.get("only"))
    a.label("L_re_loop")
    stamp("top")
    a(f"s_lshl_b32 s{sFl}, s{sSeg}, 11")
    ring_off(a, sSrc, sSeg, R_X2)
    poll_flags(a, vT, vFo, sFl, sleep=CFG.get('psleep', 1))
    stamp("flag")
    trace(a, cfg, 0, sSeg, vT)
    for q in range(4):
        a(f"buffer_load_dwordx4 {vr(R+4*q,4)}, v{vA}, {W}, s{sSrc} offen offset:{q*1024} sc1")
    a(f"s_lshl_b32 s{sT0}, s{sSeg}, 15")
    a(f"s_add_u32 s{sDst}, s{sT0}, {OFF_XN+(64<<15):#x}")
    a(f"s_add_u32 s{sSrc}, s{sT0}, {OFF_X2R:#x}")
    a(f"s_lshl_b32 s{sT0}, s{sWb}, 2")
    a(f"s_add_u32 s{sFl}, s{sFl}, s{sT0}")
    a(f"s_add_u32 s{sFl}, s{sFl}, {64<<11}")
    a("s_waitcnt vmcnt(0)")
    stamp("ld")
    for q in range(0 if cfg.get("rd_copy", True) else 4):
        a(f"buffer_store_dwordx4 {vr(R+4*q,4)}, v{vA}, {W}, s{sSrc} offen offset:{q*1024} sc1")
    ln_to_xn(a, X, T, R, P, vP)
    stamp("ln")
    a("s_waitcnt vmcnt(0)")
    set_flag(a, vOne, sFl, F_XN)
    trace(a, cfg, 1, sSeg, vT)
    stamp("end")
    if stamp.on:
        lab = a.newlab("L_nost")
        a(f"s_and_b32 s{sT0}, s{sSeg}, 63")
        a(f"s_cmp_lg_u32 s{sT0}, {cfg.get('stamp_step', 20)}")
        a(f"s_cbranch_scc1 {lab}")
        def row():
            a(f"s_lshl_b32 s{sT0}, s{sGRP}, 7")
            a(f"s_lshl_b32 s{sT1}, s{sMEMB}, 2")
            a(f"s_add_u32 s{sT0}, s{sT0}, s{sT1}")
            a(f"s_add_u32 s{sT0}, s{sT0}, s{sWAVE}")
        dump_stamps(a, stamp, cfg, row)
        a.label(lab)
    a(f"s_add_u32 s{sSeg}, s{sSeg}, 1")
    a(f"s_cmp_lt_u32 s{sSeg}, s{sEnd}")
    a("s_cbranch_scc1 L_re_loop")
    a("s_waitcnt vmcnt(0)")
    a("s_branch L_done")

def role_wo(a, cfg):
    CFG.clear(); CFG.update(cfg)
    a.label("L_wo")
    ln0(a, cfg)
    a(f"s_cmp_lt_u32 s{sMEMB}, 16")
    a("s_cbranch_scc1 L_ra")
    a(f"s_cmp_lt_u32 s{sMEMB}, 24")
    a("s_cbranch_scc1 L_rc")
    a(f"s_cmp_lt_u32 s{sMEMB}, 28")
    a("s_cbranch_scc1 L_rd")
    a("s_branch L_rows")
    role_ra(a, cfg); role_rc(a, cfg); role_rd(a, cfg); role_rows(a, cfg)
```

```python
import sys
from gen_common import *
from gen_chain import chain

HEADER = open('interleave_layers__memory_aug_recurrent_mem_tr__sliding_local_dilated__prompt.s.ref').read().split("; Override launch")[0]

GMAP = [("chain",0,0),("wa",0,0),("chain",1,0),("wa",1,0),("wa",0,1),("wo",0,0),("wa",1,1),("wo",1,0)]
WARM = [3, 6]

def generate(cfg):
    a = Asm()
    TRC.clear(); TRC.update(cfg)
    roles = cfg.get("roles", {"chain", "wa", "wo"})
    a("s_cmp_ge_u32 s2, 256")
    a("s_cbranch_scc1 L_exit")
    a("s_load_dwordx16 s[4:19], s[0:1], 0")
    a("s_load_dwordx8 s[20:27], s[0:1], 64")
    a("s_load_dwordx2 s[28:29], s[0:1], 96")
    a(f"s_getreg_b32 s{sGRP}, hwreg(HW_REG_XCC_ID, 0, 4)")
    a("v_lshrrev_b32 v1, 6, v0")
    a(f"v_readfirstlane_b32 s{sWAVE}, v1")
    a(f"s_mov_b32 s{sLOCAL}, 1")
    a("s_mov_b32 s31, 0")
    if cfg.get("count_redo") or cfg.get("hold_us"): a("s_memrealtime s[100:101]")
    a("s_waitcnt lgkmcnt(0)")
    set_srd(a, sWS, sWSP, WS_BYTES)
    a(f"s_cmp_lg_u32 s{sWAVE}, 0")
    a("s_cbranch_scc1 L_notw0")
    if cfg.get("scramble"):
        a(f"s_lshr_b32 s{sGRP}, s2, {cfg['scramble']}")
        a(f"s_and_b32 s{sGRP}, s{sGRP}, {cfg.get('scramble_mask', 7)}")
    a(f"s_mov_b32 s{sMEMB}, 1")
    a(f"s_lshl_b32 s{sT0}, s{sGRP}, 3")
    a(f"s_cmp_gt_u32 s{sGRP}, 7")
    a(f"s_cselect_b32 s{sT0}, 4, s{sT0}")
    a(f"s_atomic_add s{sMEMB}, s[{sDBG}:{sDBG+1}], s{sT0} glc")
    a("s_waitcnt lgkmcnt(0)")
    a(f"s_cmp_gt_u32 s{sGRP}, 7")
    a(f"s_cselect_b32 s{sMEMB}, 32, s{sMEMB}")
    a(f"s_cmp_lt_u32 s{sMEMB}, 32")
    a("s_cbranch_scc1 L_haverole")
    count_tickets(a)
    a(f"s_mov_b32 s{sT1}, 1")
    a(f"s_atomic_add s{sT1}, s[{sDBG}:{sDBG+1}], 0xc glc")
    a("s_waitcnt lgkmcnt(0)")
    for g in range(8):
        a(f"s_mov_b32 s{sGRP}, {g}")
        a(f"s_min_u32 s{sFV}, s{72+2*g}, 32")
        a(f"s_add_u32 s{sMEMB}, s{sFV}, s{sT1}")
        a(f"s_cmp_lt_u32 s{sMEMB}, 32")
        a("s_cbranch_scc1 L_haverole")
        a(f"s_sub_u32 s{sT1}, s{sMEMB}, 32")
    a(f"s_mov_b32 s{sGRP}, 8")
    a.label("L_haverole")
    a(f"s_lshl_b32 s{sT0}, s{sGRP}, 8")
    a(f"s_or_b32 s{sT0}, s{sT0}, s{sMEMB}")
    a(f"v_mov_b32 v1, s{sT0}")
    a("v_mov_b32 v2, 0x27ff0")
    a("ds_write_b32 v2, v1")
    a("s_waitcnt lgkmcnt(0)")
    a("s_branch L_bar0")
    a.label("L_notw0")
    if cfg.get("warm0"):
        a(f"s_cmp_lt_u32 s{sWAVE}, 2")
        a("s_cbranch_scc1 L_nowarm0")
        a("v_and_b32 v1, 127, v0")
        a("v_lshlrev_b32 v1, 4, v1")
        n = 0
        for ptr in [dict(k=sWK, v=sWV, o=sWO, q=sWQ)[x] for x in cfg["warm0"]]:
            set_srd(a, sWT, ptr, 0x400000)
            a(f"s_lshl_b32 s{sT0}, s2, 11")
            for i in range(8):
                if i: a(f"s_add_u32 s{sT0}, s{sT0}, {1 << 19}")
                a(f"buffer_load_dwordx4 {ar(n*4,4)}, v1, s[{sWT}:{sWT+3}], s{sT0} offen")
                n += 1
        a("s_branch L_bar0")
        a.label("L_nowarm0")
    if not cfg.get("nocodepf"):
        a(f"s_cmp_lg_u32 s{sWAVE}, 1")
        a("s_cbranch_scc1 L_bar0")
        a("s_getpc_b64 s[64:65]")
        a.label("L_pcref")
        a(f"s_lshr_b32 s{sT0}, s2, 3")
        a(f"s_lshl_b32 s{sT0}, s{sT0}, 12")
        a("v_and_b32 v1, 63, v0")
        a(f"v_lshl_add_u32 v1, v1, 6, s{sT0}")
        a("v_min_u32 v1, L_codeend-L_pcref-4, v1")
        a("global_load_dword v255, v1, s[64:65]")
    a.label("L_bar0")
    a("s_barrier")
    a("v_mov_b32 v2, 0x27ff0")
    a("ds_read_b32 v1, v2")
    a("s_waitcnt lgkmcnt(0)")
    a(f"v_readfirstlane_b32 s{sT0}, v1")
    a("s_barrier")
    a(f"s_and_b32 s{sMEMB}, s{sT0}, 31")
    a(f"s_lshr_b32 s{sGRP}, s{sT0}, 8")
    a(f"s_cmp_gt_u32 s{sGRP}, 7")
    a("s_cbranch_scc1 L_exit")
    trace_setup(a, cfg)
    trace(a, cfg, 7, None, 1)
    gmap = cfg.get("gmap", GMAP)
    for g, (role, lay, par) in enumerate(gmap):
        if role not in roles: continue
        lab = a.newlab("L_ng")
        a(f"s_cmp_lg_u32 s{sGRP}, {g}")
        a(f"s_cbranch_scc1 {lab}")
        a(f"s_mov_b32 s{sLAY}, {lay}")
        a(f"s_mov_b32 s{sT3}, {par}")
        warm = cfg.get("warm", WARM)
        initg = cfg.get("initg", [x for x in range(len(gmap)) if gmap[x] in (("chain", 1, 0), ("wa", 1, 1))])
        if g in initg and not cfg.get("noinit"):
            assert len(initg) == 2
            a(f"s_mov_b32 s{sT2}, {initg.index(g)}")
            a(f"s_getpc_b64 s[98:99]")
            a(f"s_branch L_init")
        if g in warm: warm_weights(a, cfg, warm.index(g), len(warm))
        a(f"s_branch L_{role}")
        a.label(lab)
    a.label("L_done")
    trace(a, cfg, 8, None, 1)
    if cfg.get("hold_us"):
        a.label("L_hold")
        a("s_memrealtime s[70:71]")
        a("s_waitcnt lgkmcnt(0)")
        a("s_sub_u32 s70, s70, s100")
        a(f"s_cmp_lt_u32 s70, {cfg['hold_us']*100}")
        a("s_cbranch_scc1 L_hold")
    a.label("L_exit")
    a("s_endpgm")
    if not cfg.get("noinit"):
        a.label("L_init")
        a(f"s_lshl_b32 s{sT2}, s{sT2}, 5")
        a(f"s_add_u32 s{sT2}, s{sT2}, s{sMEMB}")
        a("v_lshlrev_b32 v1, 4, v0")
        for i in range(4): a(f"v_mov_b32 v{4+i}, 0")
        a(f"s_lshl_b32 s{sT1}, s{sT2}, 12")
        a(f"buffer_store_dwordx4 v[4:7], v1, s[{sWS}:{sWS+3}], s{sT1} offen sc1")
        for i in range(4): a(f"v_mov_b32 v{8+i}, -1")
        a(f"s_mul_i32 s{sT1}, s{sT2}, {cfg.get('ninit', 23)*4096}")
        a(f"s_add_u32 s{sT1}, s{sT1}, {OFF_MEM:#x}")
        for i in range(cfg.get('ninit', 23)):
            if i: a(f"s_add_u32 s{sT1}, s{sT1}, 4096")
            a(f"buffer_store_dwordx4 v[8:11], v1, s[{sWS}:{sWS+3}], s{sT1} offen sc1")
        a("s_waitcnt vmcnt(0)")
        a("s_barrier")
        a(f"s_cmp_lg_u32 s{sWAVE}, 0")
        a("s_cbranch_scc1 L_init_done")
        a(f"s_mov_b32 s{sT1}, 1")
        a(f"s_atomic_add s{sT1}, s[{sDBG}:{sDBG+1}], 0x14 glc")
        a("s_waitcnt lgkmcnt(0)")
        a(f"s_cmp_lg_u32 s{sT1}, 63")
        a("s_cbranch_scc1 L_init_done")
        count_tickets(a)
        a(f"s_mov_b32 s{sT1}, 0x100")
        for g in range(8):
            a(f"s_cmp_ge_u32 s{72+2*g}, 32")
            a(f"s_cselect_b32 s{sT0}, {1 << g}, 0")
            a(f"s_or_b32 s{sT1}, s{sT1}, s{sT0}")
        a(f"v_mov_b32 v4, s{sT1}")
        a("v_mov_b32 v5, 0")
        a("s_mov_b64 exec, 1")
        a(f"global_store_dword v5, v4, s[{sDBG}:{sDBG+1}] offset:128 sc1")
        a("s_mov_b64 exec, -1")
        a.label("L_init_done")
        a("s_add_u32 s98, s98, 4")
        a("s_addc_u32 s99, s99, 0")
        a("s_setpc_b64 s[98:99]")
    if "chain" in roles:
        if cfg.get("v2"):
            from gen_chain_v2 import chain as ch
        else: ch = chain
        ch(a, True, cfg)
        ch(a, False, cfg)
    if "wa" in roles:
        if cfg.get("wa1"): from gen_wa_v1 import role_wa
        else: from gen_wa import role_wa
        role_wa(a, cfg)
    if "wo" in roles:
        from gen_wo import role_wo
        role_wo(a, cfg)
    a.label("L_codeend")
    a("s_endpgm")
    if cfg.get("drop"):
        a.ins = [x if not x.text.startswith(cfg["drop"]) else Ins("s_nop 2") for x in a.ins]
    nn = a.fix_hazards(verbose=cfg.get("verbose", False), timed=cfg.get("timed", True))
    if cfg.get("align", True):
        fx = align8(a)
        if cfg.get("verbose"): print("align", fx)
    errs = a.check_waits() + check_ptrs(a)
    for e in errs[:20]: print("WAITERR", e)
    body = a.text()
    txt = HEADER + f"""; @launch grid=(256,1,1) block=(256,1,1) lds=163840
.amdgcn_target "amdgcn-amd-amdhsa--gfx950"
.text
.globl {KNAME}
.p2align 8
.type {KNAME},@function
{KNAME}:
{body}.section .rodata,"a"
.p2align 6
.amdhsa_kernel {KNAME}
  .amdhsa_next_free_vgpr 512
  .amdhsa_next_free_sgpr 102
  .amdhsa_accum_offset 256
  .amdhsa_group_segment_fixed_size 0
  .amdhsa_kernarg_size 104
  .amdhsa_user_sgpr_count 2
  .amdhsa_user_sgpr_kernarg_segment_ptr 1
  .amdhsa_system_sgpr_workgroup_id_x 1
  .amdhsa_float_denorm_mode_32 3
.end_amdhsa_kernel
"""
    return txt, nn, errs

if __name__ == "__main__":
    cfg = eval(sys.argv[2]) if len(sys.argv) > 2 else {}
    txt, nn, errs = generate(cfg)
    open(sys.argv[1], "w").write(txt)
    print("nops", nn, "bytes", len(txt), "errs", len(errs))
```

```python
from gen_common import *

def chain(a, local, cfg):
    st = "" if local else " sc1"
    tag = "L" if local else "G"
    stamp = Stamps(a, cfg.get("stamp") == "chain" and local, only=cfg.get("only"))
    vL16, vIdx, vLdsW, vSwx, vSwm, vSrx, vSrm, vOw, vOr, vX1s, vX1l, vX2s = range(1, 13)
    vR, vOnes, vT = 13, 14, 15
    vAw = 0
    sKVb, sKT, sLim, sKVc, sLate = 93, 95, 63, 66, 67
    SelT, VACC, SelM = 16, 20, 28
    q0, k0, q1, k1 = 32, 36, 40, 44
    Kx, Vx, RING, A, WO = 48, 56, 64, 96, 128
    WK, WV = 256, 384
    sStep, sTag, sX2st, sX2re, sMemOff, sKV, sX1a, sX1b, sC = 55, 56, 57, 58, 59, 60, 61, 62, 96
    sMaskHi = 64
    sLds, sRot = 66, 67
    sX2l = 92
    AST, KVL, SX, SM, SJ, OA, CST = 0x20000, 0x22000, 0x27000, 0x27800, 0x27f00, 0x26000, 0x27a00
    sKVL = 94
    lane = 0
    if cfg.get("chain_prologue_done") is None:
        cfg["chain_prologue_done"] = True
        a.label("L_chain")
        a(f"v_and_b32 v0, 63, v0")
        a(f"v_lshlrev_b32 v{vL16}, 4, v0")
        a(f"s_lshl_b32 s{sLds}, s{sWAVE}, 15")
        a(f"s_lshl_b32 s{sRot}, s{sWAVE}, 1")
        vD, vTR, vDo, vTRo = 32, 33, 34, 35
        sL2, sL3 = 70, 71
        vD1, vTR1, sLq = 38, 39, 72
        coop_addrs(a, vD, vD1, vTR, vTR1, vT)
        a(f"s_lshl_b32 s{sLq}, s{sWAVE}, 12")
        a(f"v_lshrrev_b32 v{vDo}, 3, v0")
        a(f"v_lshlrev_b32 v{vDo}, 10, v{vDo}")
        a(f"v_and_b32 v{vT}, 7, v0")
        a(f"v_lshl_add_u32 v{vDo}, v{vT}, 4, v{vDo}")
        a(f"v_bfe_u32 v{vT}, v0, 4, 1")
        a(f"v_lshlrev_b32 v{vTRo}, 11, v{vT}")
        a(f"v_bfe_u32 v{vT}, v0, 5, 1")
        a(f"v_lshl_add_u32 v{vTRo}, v{vT}, 9, v{vTRo}")
        a(f"v_bfe_u32 v{vT}, v0, 2, 1")
        a(f"v_lshl_add_u32 v{vTRo}, v{vT}, 7, v{vTRo}")
        a(f"v_bfe_u32 v{vT}, v0, 3, 1")
        a(f"v_lshl_add_u32 v{vTRo}, v{vT}, 5, v{vTRo}")
        a(f"v_and_b32 v{vT}, 3, v0")
        a(f"v_lshl_add_u32 v{vTRo}, v{vT}, 3, v{vTRo}")
        a(f"v_add_u32 v{vTRo}, s{sLq}, v{vTRo}")
        a(f"s_add_u32 s{sT0}, s{sLds}, s{sLq}")
        a(f"v_add_u32 v{vLdsW}, s{sT0}, v{vL16}")
        a(f"s_lshl_b32 s{sL2}, s{sMEMB}, 8")
        a(f"s_lshl_b32 s{sT1}, s{sWAVE}, 15")
        a(f"s_add_u32 s{sL2}, s{sL2}, s{sT1}")
        a(f"s_lshl_b32 s{sL3}, s{sMEMB}, 17")
        a(f"s_lshl_b32 s{sT1}, s{sWAVE}, 8")
        a(f"s_add_u32 s{sL3}, s{sL3}, s{sT1}")
        late_start(a, cfg)
        stages = []
        for ptr, base in ((sWK, WK), (sWV, WV)):
            for J in range(8):
                def consume(slot, J=J, base=base):
                    end = a.newlab("L_cw")
                    for w in range(4):
                        nxt = a.newlab("L_cw")
                        if w < 3:
                            a(f"s_cmp_lg_u32 s{sWAVE}, {w}")
                            a(f"s_cbranch_scc1 {nxt}")
                        jj = J ^ (2 * w)
                        coop_reads(a, slot, vTR, vTR1, 40, base + jj * 16, base + jj * 16 + 8)
                        if w < 3:
                            a(f"s_branch {end}")
                            a.label(nxt)
                    a.label(end)
                stages.append(dict(issue=lambda slot, ptr=ptr, J=J: coop_issue(a, ptr, J, slot, sL2, vD, vD1, sLq), consume=consume))
        for wp in range(4):
            for ap in range(2):
                def issue(slot, wp=wp, ap=ap):
                    if wp == 0 and ap == 0: set_srd(a, sWT, sWO, 0x400000)
                    a(f"s_add_u32 m0, s{sLq}, {slot*16384}")
                    a(f"s_xor_b32 s{sT0}, s{sWAVE}, {wp}")
                    a(f"s_lshl_b32 s{sT0}, s{sT0}, 15")
                    a(f"s_add_u32 s{sT0}, s{sT0}, s{sL3}")
                    if ap: a(f"s_add_u32 s{sT0}, s{sT0}, {ap*128}")
                    for q in range(4):
                        if q: a(f"s_add_u32 s{sT0}, s{sT0}, {8192-1024}")
                        a(f"buffer_load_dwordx4 v{vDo}, s[{sWT}:{sWT+3}], s{sT0} offen offset:{q*1024}{' nt' if '14c' in cfg.get('ntw', ()) else ''} lds")
                def consume(slot, wp=wp, ap=ap):
                    va = vTRo
                    if slot >= 4:
                        a(f"v_add_u32 v40, 0x10000, v{vTRo}"); va = 40
                    for a1 in range(2):
                        dst = WO + ((2 * ap + a1) * 4 + wp) * 8
                        for e4 in range(4):
                            off = (slot & 3) * 16384 + (8 * (e4 >> 1) + 2 * (e4 & 1)) * 128 + a1 * 64
                            a(f"ds_read_b64_tr_b16 {vr(dst+2*e4,2)}, v{va} offset:{off}")
                stages.append(dict(issue=issue, consume=consume))
        for J in range(8):
            tmp = RING + 16 * (J & 1)
            def post(slot, tmp=tmp):
                a(f"s_add_u32 s{sT0}, s{sLq}, {slot*16384}")
                a(f"v_add_u32 v40, s{sT0}, v{vL16}")
                for i in range(4):
                    a(f"ds_write_b128 v40, {vr(tmp+4*i,4)} offset:{i*1024}")
            stages.append(dict(issue=lambda slot, J=J: coop_issue(a, sWQ, J, slot, sL2, vD, vD1, sLq),
                               consume=lambda slot, tmp=tmp: coop_reads(a, slot, vTR, vTR1, 40, tmp, tmp + 8), post=post))
        def setup_rest():
            sel_consts(a, lane, 96, selM=SelM, selLo=112, selHi=116, selT=SelT)
            smf_index(a, lane, vIdx, 96)
            n_, g_, q_ = 96, 97, 98
            a(f"v_and_b32 v{n_}, 15, v0")
            a(f"v_lshrrev_b32 v{g_}, 4, v0")
            a(f"v_and_b32 v{q_}, 7, v0")
            a(f"s_mov_b32 s{sMaskHi}, 0xff00ff00")
            a(f"s_mov_b32 s{sMaskHi+1}, 0xff00ff00")
            a(f"v_lshlrev_b32 v99, 3, v{q_}")
            a(f"v_and_b32 v{vT}, 1, v{g_}")
            a(f"v_lshl_add_u32 v99, v{vT}, 6, v99")
            a(f"v_add_u32 v99, {SJ}, v99")
            a(f"v_lshrrev_b32 v{vT}, 1, v{g_}")
            a(f"v_lshlrev_b32 v{vSwx}, 8, v{vT}")
            a(f"v_lshl_add_u32 v{vSwx}, v{q_}, 4, v{vSwx}")
            a(f"v_and_b32 v{vT}, 1, v{g_}")
            a(f"v_lshl_add_u32 v{vSwx}, v{vT}, 3, v{vSwx}")
            a(f"s_lshl_b32 s{sT0}, s{sWAVE}, 9")
            a(f"s_add_u32 s{sT1}, s{sT0}, {SX}")
            a(f"v_add_u32 v{vSwx}, s{sT1}, v{vSwx}")
            a(f"v_cndmask_b32 v{vSwx}, v{vSwx}, v99, s[{sMaskHi}:{sMaskHi+1}]")
            a(f"v_lshlrev_b32 v{vSwm}, 4, v{q_}")
            a(f"v_lshl_add_u32 v{vSwm}, v{vT}, 3, v{vSwm}")
            a(f"s_lshl_b32 s{sT1}, s{sWAVE}, 7")
            a(f"s_add_u32 s{sT1}, s{sT1}, {SM}")
            a(f"v_add_u32 v{vSwm}, s{sT1}, v{vSwm}")
            a(f"s_mov_b32 s98, 0")
            a(f"s_mov_b32 s99, 0x00ff00ff")
            a(f"v_cndmask_b32 v{vSwm}, v99, v{vSwm}, s[98:99]")
            a(f"v_lshlrev_b32 v{vSrx}, 9, v{g_}")
            a(f"v_lshl_add_u32 v{vSrx}, v{n_}, 4, v{vSrx}")
            a(f"v_add_u32 v{vSrx}, {SX}, v{vSrx}")
            a(f"v_lshlrev_b32 v{vSrm}, 7, v{g_}")
            a(f"v_lshl_add_u32 v{vSrm}, v{q_}, 4, v{vSrm}")
            a(f"v_add_u32 v{vSrm}, {SM}, v{vSrm}")
            a(f"s_lshl_b32 s{sT1}, s{sWAVE}, 9")
            a(f"s_add_u32 s{sT1}, s{sT1}, {OA-SM}")
            a(f"v_bfe_u32 v{vT}, v0, 3, 1")
            a(f"v_lshl_add_u32 v{vOw}, v{vT}, 3, v{vSrm}")
            a(f"v_add_u32 v{vOw}, s{sT1}, v{vOw}")
            a(f"v_and_b32 v{vOr}, 0xf0, v{vL16}")
            a(f"v_add_u32 v{vOr}, {CST}, v{vOr}")
            a(f"v_lshrrev_b32 v{vT}, 2, v{n_}")
            a(f"v_lshl_add_u32 v{vT}, v{vT}, 2, v{g_}")
            a(f"v_lshlrev_b32 v{vX1s}, 11, v{vT}")
            a(f"v_and_b32 v{vT}, 3, v0")
            a(f"v_lshl_add_u32 v{vX1s}, v{vT}, 4, v{vX1s}")
            a(f"s_lshl_b32 s{sT0}, s{sWAVE}, 16")
            a(f"s_lshl_b32 s{sT1}, s{sMEMB}, 6")
            a(f"s_add_u32 s{sT0}, s{sT0}, s{sT1}")
            a(f"v_add_u32 v{vX1s}, s{sT0}, v{vX1s}")
            a(f"s_lshl_b32 s{sT2}, s{sMEMB}, 2")
            a(f"s_add_u32 s{sT2}, s{sT2}, s{sWAVE}")
            a(f"s_lshl_b32 s{sT0}, s{sT2}, 11")
            a(f"v_add_u32 v{vX1l}, s{sT0}, v{vL16}")
            a(f"v_lshlrev_b32 v{vX2s}, 4, v{g_}")
            a(f"v_lshl_add_u32 v{vX2s}, v{n_}, 2, v{vX2s}")
            a(f"s_lshl_b32 s{sT0}, s{sT2}, 6")
            a(f"v_add_u32 v{vX2s}, s{sT0}, v{vX2s}")
            a(f"v_mov_b32 v{vT}, {OOB:#x}")
            a(f"v_cmp_gt_u32 vcc, 4, v{n_}")
            a(f"v_cndmask_b32 v{vX2s}, v{vT}, v{vX2s}, vcc")
            a(f"v_and_b32 v100, 3, v0")
            a(f"v_lshlrev_b32 v100, 1, v100")
            a(f"v_lshl_add_u32 v100, v{g_}, 10, v100")
            a(f"v_and_b32 v104, 3, v0")
            a(f"v_bfe_u32 v105, v0, 2, 2")
            a(f"v_lshl_add_u32 v104, v104, 2, v105")
            a(f"v_and_b32 v105, 1, v104")
            a(f"v_lshlrev_b32 v105, 4, v105")
            a(f"v_mov_b32 v106, 0x3f80")
            a(f"v_lshlrev_b32 v105, v105, v106")
            a(f"v_lshrrev_b32 v104, 1, v104")
            for e in range(4):
                a(f"v_cmp_eq_u32 vcc, {e}, v104")
                a(f"v_cndmask_b32 v{108+e}, 0, v105, vcc")
            a(f"v_and_b32 v104, 0xf0, v{vL16}")
            a(f"v_add_u32 v104, {CST}, v104")
            a(f"ds_write_b128 v104, v[108:111]")
            a(f"ds_write_b128 v104, v[112:115] offset:256")
            a(f"ds_write_b128 v104, v[116:119] offset:512")
            for e in range(4): a(f"v_mov_b32 v{120+e}, 0x3f803f80")
            for e in range(4): a(f"v_mov_b32 v{124+e}, 0x3f003f00")
            a(f"ds_write_b128 v104, v[120:123] offset:768")
            a(f"ds_write_b128 v104, v[124:127] offset:1024")
            a(f"s_and_b32 s{sT0}, s{sT2}, 1")
            a(f"s_lshl_b32 s{sT0}, s{sT0}, 12")
            a(f"s_lshr_b32 s{sT1}, s{sT2}, 4")
            a(f"s_lshl_b32 s{sT1}, s{sT1}, 7")
            a(f"s_add_u32 s{sT0}, s{sT0}, s{sT1}")
            a(f"s_bfe_u32 s{sT1}, s{sT2}, 0x10001")
            a(f"s_lshl_b32 s{sT1}, s{sT1}, 5")
            a(f"s_add_u32 s{sT0}, s{sT0}, s{sT1}")
            a(f"s_bfe_u32 s{sT1}, s{sT2}, 0x20002")
            a(f"s_lshl_b32 s{sT1}, s{sT1}, 3")
            a(f"s_add_u32 s{sT0}, s{sT0}, s{sT1}")
            set_srd(a, sIN, sMEM0, 8192)
            a(f"buffer_load_ushort v36, v100, s[{sIN}:{sIN+3}], s{sT0} offen")
            a(f"buffer_load_ushort v37, v100, s[{sIN}:{sIN+3}], s{sT0} offen offset:64")
            a(f"s_mov_b32 s{sStep}, 0")
            a(f"s_mov_b32 s{sTag}, 0")
            a(f"s_lshl_b32 s{sT0}, s{sLAY}, 14")
            a(f"s_add_u32 s{sX2st}, s{sT0}, {OFF_X2:#x}")
            a(f"s_add_u32 s{sX2re}, s{sX2st}, 8192")
            a(f"s_lshl_b32 s{sT0}, s{sWAVE}, 11")
            a(f"s_add_u32 s{sX2l}, s{sT0}, s{sX2st}")
            a(f"s_add_u32 s{sT0}, s{sT0}, {AST}")
            a(f"v_add_u32 v{vAw}, s{sT0}, v{vL16}")
            a(f"s_lshl_b32 s{sT0}, s{sLAY}, 19")
            a(f"s_add_u32 s{sMemOff}, s{sT0}, {OFF_MEM:#x}")
            a(f"s_lshl_b32 s{sT0}, s{sLAY}, 18")
            a(f"s_add_u32 s{sX1a}, s{sT0}, {OFF_X1:#x}")
            a(f"s_add_u32 s{sX1b}, s{sX1a}, 32768")
            a(f"s_lshl_b32 s{sT0}, s{sLAY}, 21")
            a(f"s_lshl_b32 s{sT1}, s{sT2}, 12")
            a(f"s_add_u32 s{sT0}, s{sT0}, s{sT1}")
            a(f"s_add_u32 s{sKVb}, s{sT0}, {OFF_KVR:#x}")
            a(f"s_mov_b32 s{sKV}, s{sKVb}")
            a(f"s_mov_b32 s{sC}, {fbits(128**-0.5*1.4426950408889634):#x}")
            a(f"s_mov_b32 s{sC+1}, s{sC}")
            a(f"s_mov_b32 s{sLim}, {fbits(cfg.get('lim', 48.0) / (128**-0.5*1.4426950408889634)):#x}")
        load_stages(a, stages, meanwhile=setup_rest,
                    hooks=None if cfg.get("noinit") else {25: lambda: go_load(a)})
        trace(a, cfg, 6, None, vT)
        if not cfg.get("noinit"): wait_init(a, sampled=True, barrier=False)
        late_signal(a, cfg)
        a(f"v_lshl_or_b32 v{vR}, v37, 16, v36")
        a(f"v_min_u32 v{vR}, -2, v{vR}")
        for i in range(8):
            a(f"ds_read_b128 {vr(RING+4*i,4)}, v{vLdsW} offset:{(i>>2)*16384+(i&3)*1024}")
        a(f"v_mov_b32 v{vOnes}, -1")
        for f in range(4): a(f"v_mov_b32 v{Kx+4*f}, -1")
        for i in range(4): a(f"v_mov_b64 {vr(VACC+2*i,2)}, 0")
        if cfg.get("nokvcheck"):
            for f in range(16): a(f"v_mov_b32 v{Kx+f}, 0")
        a(f"s_lshl_b32 s{sKVL}, s{sWAVE}, 12")
        a(f"s_add_u32 s{sKVL}, s{sKVL}, {KVL}")
        a(f"s_mov_b32 m0, s{sKVL}")
        a(f"v_add_u32 v{vT}, s{sKVL}, v{vL16}")
        for f in range(4): a(f"v_mov_b32 v{40+f}, {0 if cfg.get('nokvcheck') else -1}")
        for f in range(4): a(f"ds_write_b128 v{vT}, v[40:43] offset:{f*1024}")
        a("s_waitcnt vmcnt(0) lgkmcnt(0)")
        if cfg.get("count_redo"):
            a("s_memrealtime s[70:71]")
            a("s_memtime s[98:99]")
            a("s_waitcnt lgkmcnt(0)")
            a("s_sub_u32 s101, s70, s100")
            a("s_mov_b32 s100, s70")
        if cfg.get("force_global"):
            a("s_branch L_chain_entryG")
        else:
            a(f"s_cmp_eq_u32 s{sLOCAL}, 0")
            a("s_cbranch_scc1 L_chain_entryG")
    W = f"s[{sWS}:{sWS+3}]"
    vC = vOr
    pl = cfg.get("pollmod", "sc1") if local else "sc1"
    if local: st = cfg.get("stmod", "")
    vq = [(t, jj) for jj in range(8) for t in range(2)]
    vacc = (VACC, VACC + 4)
    def smf(acc, x, w): a(f"v_smfmac_f32_16x16x64_bf16 {vr(acc,4)}, {vr(x,4)}, {xr(w,8)}, v{vIdx}")
    def fill_v(n):
        for _ in range(n):
            t, jj = vq.pop(0)
            smf(vacc[t], A + 4 * jj, WV + jj * 16 + t * 8)
    def pad(n):
        k = cfg.get("padkind", "nop")
        if k == "mov":
            for _ in range(n): a(f"v_mov_b32 v{vT}, 0")
        elif k == "nop":
            while n > 0:
                a(f"s_nop {min(n,16)-1}"); n -= 16
        elif k == "mfma":
            for i in range(n // 4): a(f"v_mfma_f32_16x16x32_bf16 v[108:111], {xr(WK+(i%16)*4,4)}, {xr(WV+(i%16)*4,4)}, 0 ; nochk")
    cvt = lambda d, s: a(f"v_cvt_pk_bf16_f32 v{d}, v{s}, v{s+1}")
    mfma = lambda d, x, y, c: a(f"v_mfma_f32_16x16x32_bf16 {vr(d,4)}, {vr(x,4)}, {vr(y,4)}, {vr(c,4) if c is not None else 0}")
    mfma16 = lambda d, x, y, c: a(f"v_mfma_f32_16x16x16_bf16 {vr(d,4)}, {vr(x,2)}, {vr(y,2)}, {vr(c,4) if c is not None else 0}")
    def kv_check():
        a(f"v_bitop3_b32 v{vT}, v{Kx}, v{Kx+4}, s{sKT} bitop3:0x7e")
        a(f"v_bitop3_b32 v120, v{Kx+8}, v{Kx+12}, s{sKT} bitop3:0x7e")
        a(f"v_or_b32 v{vT}, v{vT}, v120")
        a(f"v_and_b32 v{vT}, 1, v{vT}")
        a(f"v_cmp_ne_u32 vcc, 0, v{vT}")
    def x2_issue(r):
        a(f"buffer_load_dwordx4 {vr(r,4)}, v{vL16}, {W}, s{sX2l} offen {pl}")
        a(f"buffer_load_dwordx4 {vr(r+4,4)}, v{vL16}, {W}, s{sX2l} offen offset:1024 {pl}")
    def x2_check(r, n):
        a(f"s_waitcnt vmcnt({n+1})")
        smf(k0, r, WK)
        a(f"v_max3_u32 v{vT}, v{r}, v{r+1}, v{r+2}")
        smf(k1, r, WK + 8)
        a(f"s_waitcnt vmcnt({n})")
        a(f"v_max3_u32 v{vT}, v{vT}, v{r+3}, v{r+4}")
        a(f"ds_write_b128 v{vAw}, {vr(r,4)}")
        a(f"v_max3_u32 v{vT}, v{vT}, v{r+5}, v{r+6}")
        a(f"v_max_u32 v{vT}, v{vT}, v{r+7}")
        a(f"v_cmp_eq_u32 vcc, -1, v{vT}")
        smf(k0, r + 4, WK + 16)
        a(f"ds_write_b128 v{vAw}, {vr(r+4,4)} offset:1024")
        smf(k1, r + 4, WK + 24)
    def zero_k():
        for r in (k0, k0 + 2, k1, k1 + 2): a(f"v_mov_b64 {vr(r,2)}, 0")
    a.label(f"L_chain_entry{tag}")
    a(f"buffer_store_dword v{vR}, v{vX2s}, {W}, s{sX2st} offen{st}")
    a(".p2align 6")
    a.label(f"L_chain_loop{tag}")
    stamp("top")
    trace(a, cfg, 0, sStep, vT)
    a(f"s_cmp_eq_u32 s{sStep}, 63")
    a(f"s_cbranch_scc1 L_chain_last{tag}")
    win = cfg.get("win", dict(a1=["v1", "zv"], b1=["v2", "kvrd", "lw"], a2=["ring0", "lw", "zq", "kvchk"], b2=["ring1", "lw", "sal"]))
    def work(items):
        for x in items:
            if x in ("ring0", "ring1"):
                for i in (range(4) if x == "ring0" else range(4, 8)):
                    a(f"ds_read_b128 {vr(RING+4*i,4)}, v{vLdsW} offset:{(i>>2)*16384+(i&3)*1024}")
            elif x == "kvrd":
                a(f"v_add_u32 v{vT}, s{sKVL}, v{vL16}")
                for f in range(4): a(f"ds_read_b128 {vr(Kx+4*f,4)}, v{vT} offset:{f*1024}")
            elif x == "lw": a("s_waitcnt lgkmcnt(0)")
            elif x == "zq":
                for i in range(8): a(f"v_mov_b64 {vr(q0+2*i,2)}, 0")
            elif x == "zv":
                for i in range(4): a(f"v_mov_b64 {vr(VACC+2*i,2)}, 0")
            elif x == "kvchk":
                a(f"s_bfe_u32 s{sKT}, s{sStep}, 0x10002")
                kv_check()
                if not cfg.get("nokvcheck"): a(f"s_cbranch_vccnz L_chain_kvwait{tag}")
                a.label(f"L_chain_kvok{tag}")
                trace(a, cfg, 1, sStep, vT)
                trace(a, cfg, 5, sStep, vT)
                spin_init(a)
            elif x == "sal":
                a(f"s_add_u32 s{sKV}, s{sStep}, 1")
                a(f"s_and_b32 s{sKV}, s{sKV}, 3")
                a(f"s_lshl_b32 s{sKV}, s{sKV}, 19")
                a(f"s_add_u32 s{sKV}, s{sKV}, s{sKVb}")
            elif x[0] == "v": a(f"s_waitcnt vmcnt({x[1:]})")
            elif x[0] == "p": pad(int(x[1:]))
            else: raise ValueError(x)
    lateok = False
    work(win["a2"])
    stamp("x2iss")
    x2_issue(A)
    work(win["b2"])
    x2_issue(A + 8)
    x2_check(A, 2)
    if not cfg.get("nowait2"): a(f"s_cbranch_vccnz L_chain_x2b{tag}")
    a.label(f"L_chain_x2ok{tag}")
    if cfg.get("count_redo"): a(f"s_add_u32 s31, s31, s{sSPIN}")
    stamp("A0")
    kvl = [f"buffer_load_dwordx4 v{vL16}, {W}, s{sKV} offen offset:{f*1024} sc1 lds" for f in range(4)]
    SLo, SHi = RING, RING + 4
    plan = list(cfg.get("plan", ["r:pre", "m:b1", "k3", "k5", "k7", "h6w"]))
    after_r = []
    def at(pos):
        for x in list(plan):
            if x == pos: a(kvl.pop(0)); plan.remove(x)
            elif x == "m:" + pos: a(memst); plan.remove(x)
            elif x == "r:" + pos: a(rearm); plan.remove(x); after_r.append(len(plan))
    def ring_rd(jj):
        s0 = RING + ((2 * jj) % 4) * 8
        return [f"ds_read_b128 {vr(s0+4*i,4)}, v{vW2} offset:{(jj&1)*16384+i*1024}" for i in range(4)]
    vW2 = vT
    for jj in range(2):
        s0 = RING + 16 * jj; rd = ring_rd(jj)
        if jj == 0: a(f"v_xor_b32 v{vW2}, 0x8000, v{vLdsW}")
        smf(q0, A + 4 * jj, s0); a(rd[0]); a(rd[1])
        smf(q1, A + 4 * jj, s0 + 8); a(rd[2]); a(rd[3])
    memst = f"buffer_store_dword v{vR}, v{vX2s}, {W}, s{sMemOff} offen sc1"
    rearm = f"buffer_store_dword v{vOnes}, v{vX2s}, {W}, s{sX2re} offen{st}"
    rf = cfg.get("rearm_first", True)
    nb = len([x for x in plan if x.endswith("pre")])
    at("pre")
    stamp("k1done", True)
    a(f"s_waitcnt vmcnt({nb}) lgkmcnt(8)")
    a("s_barrier")
    stamp("bar1", True)
    for j2 in range(2, 8, 2):
        a(f"v_xor_b32 v{vT}, {j2*1024}, v{vAw}")
        a(f"ds_read_b128 {vr(A+4*j2,4)}, v{vT}")
        a(f"ds_read_b128 {vr(A+4*j2+4,4)}, v{vT} offset:1024")
        if j2 < 6: fill_v(1)
    at("b1")
    fill_v(2)
    lg = {2: 5, 3: 8, 4: 4, 5: 4}
    Ap0, Ap1, Dp0, Dp1, X = 72, 76, 80, 84, 88
    for jj in range(2, 6):
        if jj in (2, 4): a(f"v_xor_b32 v{vW2}, {(jj//2+1)*0x8000:#x}, v{vLdsW}")
        a(f"s_waitcnt lgkmcnt({lg[jj]})")
        stamp(f"k{jj}", True)
        s0 = RING + ((2 * jj) % 4) * 8; s1 = s0 + 8
        side = ring_rd(jj)
        for acc, wsrc, sd in ((q0, s0, side[0]), (k0, WK + jj * 16, side[1]), (q1, s1, side[2]), (k1, WK + jj * 16 + 8, side[3])):
            smf(acc, A + 4 * jj, wsrc)
            a(sd)
        at(f"k{jj}")
    A6, A7 = A + 24, A + 28
    smf(k0, A6, WK + 96); at("k6")
    smf(k0, A7, WK + 112); a("s_waitcnt lgkmcnt(6)")
    smf(q0, A6, RING); a("s_waitcnt lgkmcnt(2)")
    smf(q0, A7, RING + 16); at("k7")
    smf(q1, A6, RING + 8); a(f"ds_read_b128 {vr(SLo,4)}, v{vC} offset:256")
    a("s_waitcnt lgkmcnt(1)")
    smf(q1, A7, RING + 24); cvt(Ap0 + 2, k0)
    smf(k1, A6, WK + 104); cvt(Ap0 + 3, k0 + 2)
    smf(k1, A7, WK + 120)
    stamp("h3end")
    OF, WA = 96, 112
    cvt(Ap0, q0); cvt(Ap0 + 1, q0 + 2)
    cvt(Ap1, q1); cvt(Ap1 + 1, q1 + 2)
    mfma(Dp0, Ap0, SelT, None)
    a(f"ds_read_b128 {vr(SHi,4)}, v{vC} offset:512")
    cvt(Ap1 + 2, k1); cvt(Ap1 + 3, k1 + 2)
    at("h4")
    mfma(Dp1, Ap1, SelT, None)
    cvt(X, Dp0); cvt(X + 1, Dp0 + 2)
    cvt(X + 2, Dp1); cvt(X + 3, Dp1 + 2)
    Sx0, Sx1, Sm = 32, 36, 40
    mfma(Sx0, Kx, X, None)
    mfma(Sx1, Kx + 4, X, None)
    mfma(Sm, X, X, None)
    cvt(44, Sx0); cvt(45, Sx0 + 2); cvt(46, Sx1); cvt(47, Sx1 + 2)
    a(f"ds_write2_b64 v{vSwx}, v[44:45], v[46:47] offset0:0 offset1:16")
    cvt(92, Sm); cvt(93, Sm + 2)
    a(f"ds_write_b64 v{vSwm}, v[92:93]")
    stamp("swr")
    at("h6w")
    nomax = cfg.get("nomax", True)
    fl = cfg.get("fills", (5, 3, 2, 2) if nomax else (5, 3, 1, 3))
    fill_v(fl[0])
    a("s_waitcnt lgkmcnt(0)")
    stamp("swdone", True)
    a("s_barrier")
    stamp("bar2", True)
    a(f"ds_read_b128 v[72:75], v{vSrx}")
    a(f"ds_read_b128 v[80:83], v{vSrm}")
    a(f"ds_read_b128 v[76:79], v{vSrx} offset:256")
    ONES, HALF = 88, 92
    at("h6r")
    fill_v(fl[1])
    a("s_waitcnt lgkmcnt(1)")
    mfma(32, SLo, 72, None)
    mfma(36, SelM, 80, None)
    a("s_waitcnt lgkmcnt(0)")
    mfma(32, SHi, 76, 32)
    a(f"ds_read_b128 {vr(ONES,4)}, v{vC} offset:768")
    a(f"ds_read_b64 {vr(HALF,2)}, v{vC} offset:1024")
    fill_v(fl[2])
    stamp("sred")
    E = 72
    m, t = 46, 47
    Bx, Pm, vp, LS = 40, 44, 84, 80
    def true_max(fill=False):
        a(f"v_max3_f32 v{m}, v36, v37, v38")
        a(f"v_max3_f32 v{t}, v32, v33, v34")
        a(f"v_max3_f32 v{m}, v{m}, v39, v35")
        a(f"v_max_f32 v{m}, v{m}, v{t}")
        if fill: fill_v(1)
        a(f"v_max_f32_dpp v{m}, v{m}, v{m} row_ror:8 row_mask:0xf bank_mask:0xf")
        a(f"v_mov_b32 v{t}, v{m}")
        if fill: fill_v(1)
        a(f"v_permlane16_swap_b32 v{m}, v{t}")
        a(f"v_max_f32 v{m}, v{m}, v{t}")
        a(f"v_mov_b32 v{t}, v{m}")
        if fill: fill_v(1)
        a(f"v_permlane32_swap_b32 v{m}, v{t}")
        a(f"v_max_f32 v{m}, v{m}, v{t}")
        a(f"v_mul_f32 v{m}, s{sC}, v{m}")
        for i in range(8):
            a(f"v_fma_f32 v{E+i}, v{32+i}, s{sC}, -v{m}")
    def weights_to_o(first):
        for i in range(8):
            a(f"v_exp_f32 v{E+i}, v{E+i}")
            if first and nomax and i in (1, 5) and vq: fill_v(1)
        assert not vq
        cvt(Bx, E); cvt(Bx + 1, E + 2); cvt(Bx + 2, E); cvt(Bx + 3, E + 2)
        cvt(Pm, E + 4); cvt(Pm + 1, E + 6)
        a(f"v_mov_b32_dpp v{Bx+2}, v{Bx} row_ror:8 row_mask:0xf bank_mask:0x3")
        a(f"v_mov_b32_dpp v{Bx+3}, v{Bx+1} row_ror:8 row_mask:0xf bank_mask:0x3")
        a(f"v_mov_b32_dpp v{Bx}, v{Bx} row_ror:8 row_mask:0xf bank_mask:0xc")
        a(f"v_mov_b32_dpp v{Bx+1}, v{Bx+1} row_ror:8 row_mask:0xf bank_mask:0xc")
        if first: stamp("pready")
        side = []
        if first:
            side = [f"v_cvt_pk_bf16_f32 v{vp}, v{vacc[0]}, v{vacc[0]+1}", f"v_cvt_pk_bf16_f32 v{vp+1}, v{vacc[0]+2}, v{vacc[0]+3}",
                    f"v_cvt_pk_bf16_f32 v{vp+2}, v{vacc[1]}, v{vacc[1]+1}", f"v_cvt_pk_bf16_f32 v{vp+3}, v{vacc[1]+2}, v{vacc[1]+3}"]
            if nomax:
                side += [f"v_max3_f32 v{m}, abs(v32), abs(v33), abs(v34)", f"v_max3_f32 v{t}, abs(v35), abs(v36), abs(v37)",
                         f"v_max3_f32 v{m}, v{m}, abs(v38), abs(v39)", f"v_max_f32 v{m}, v{m}, v{t}", f"v_cmp_nlt_f32 vcc, v{m}, s{sLim}"]
            a("s_waitcnt lgkmcnt(0)")
        def two():
            for _ in range(2):
                if side: a(side.pop(0))
        mfma16(LS, HALF, Pm, None); two()
        mfma(72, Vx, Bx, None); two()
        mfma(LS, ONES, Bx, LS); two()
        mfma(76, Vx + 4, Bx, None); two()
        mfma16(72, vp, Pm, 72); two()
        mfma16(76, vp + 2, Pm, 76)
        a(f"v_rcp_f32 v{LS}, v{LS}")
    if nomax:
        for i in (4, 5, 6, 7, 0, 1, 2, 3):
            a(f"v_mul_f32 v{E+i}, s{sC}, v{32+i}")
    else:
        true_max(True)
    weights_to_o(True)
    if nomax:
        if not cfg.get("nowait1") and not cfg.get("nowait2"): a(f"s_cbranch_vccnz L_chain_big{tag}")
        a.label(f"L_chain_bigok{tag}")
    def pack(U):
        d = 32 + 4 * U; s = WA + 8 * U
        return [[f"v_cvt_pk_bf16_f32 v{d}, v{s}, v{s+1}", f"v_cvt_pk_bf16_f32 v{d+1}, v{s+2}, v{s+3}",
                 f"v_and_or_b32 v{d}, v{d}, -2, s{sTag}"],
                [f"v_cvt_pk_bf16_f32 v{d+2}, v{s+4}, v{s+5}", f"v_cvt_pk_bf16_f32 v{d+3}, v{s+6}, v{s+7}",
                 f"buffer_store_dwordx4 {vr(d,4)}, v{vX1s}, {W}, s{sX1a if U == 0 else sX1b} offen{st}"]]
    sal = [f"s_add_u32 s{sStep}, s{sStep}, 1", f"s_add_u32 s{sMemOff}, s{sMemOff}, 8192", f"s_xor_b32 s{sX2st}, s{sX2st}, 8192",
           f"s_xor_b32 s{sX2re}, s{sX2re}, 8192", f"s_xor_b32 s{sX2l}, s{sX2l}, 8192", f"s_mov_b32 s{sSPIN}, 0"]
    for i in range(4): a(f"v_mov_b64 {vr(WA+2*i,2)}, 0")
    for i in range(4): a(f"v_mul_f32 v{72+i}, v{72+i}, v{LS}")
    for i in range(4): a(f"v_mul_f32 v{76+i}, v{76+i}, v{LS}")
    cvt(OF, 72); cvt(OF + 2, 76); cvt(OF + 1, 74); cvt(OF + 3, 78)
    a(f"v_cndmask_b32 v80, v{OF}, v{OF+2}, s[{sMaskHi}:{sMaskHi+1}]")
    a(f"v_cndmask_b32 v81, v{OF+1}, v{OF+3}, s[{sMaskHi}:{sMaskHi+1}]")
    a(f"ds_write_b64 v{vOw}, v[80:81]")
    stamp("owr")
    at("h10w")
    assert not plan and not kvl
    smf(WA, OF, WO)
    for i in range(4, 8): a(f"v_mov_b64 {vr(WA+2*i,2)}, 0")
    smf(WA + 4, OF, WO + 32)
    a(f"v_and_b32 v85, -16, v{vOw}")
    for ac in range(3): a(f"v_xor_b32 v{82+ac}, {(ac+1)*512}, v85")
    a(f"s_waitcnt vmcnt({after_r[0]}) lgkmcnt(0)")
    stamp("owdone", True)
    a("s_barrier")
    stamp("bar3", True)
    for wp in range(1, 4):
        a(f"ds_read_b128 {vr(OF+4*wp,4)}, v{81+wp}")
    a(f"ds_read_b128 v[40:43], v{vC}")
    smf(WA + 8, OF, WO + 64)
    for x in sal[:3]: a(x)
    smf(WA + 12, OF, WO + 96)
    for x in sal[3:]: a(x)
    pk = pack(0) + pack(1)
    n = 0; side = []
    for ac in range(4):
        for wp in range(1, 4):
            if ac == 0: a(f"s_waitcnt lgkmcnt({4-wp})")
            smf(WA + 4 * ac, OF + 4 * wp, WO + (ac * 4 + wp) * 8)
            n += 1
            stamp(f"wo{n}", True)
            if n in (6, 9, 12): side += pk.pop(0)
            if side: a(side.pop(0))
    for x in side: a(x)
    for x in pk.pop(0): a(x)
    stamp("x1st")
    work(win["a1"])
    def x1_issue(r):
        a(f"buffer_load_dwordx4 {vr(r,4)}, v{vX1l}, {W}, s{sX1a} offen {pl}")
        a(f"buffer_load_dwordx4 {vr(r+4,4)}, v{vX1l}, {W}, s{sX1a} offen offset:1024 {pl}")
    def x1_check(r, n):
        a(f"s_waitcnt vmcnt({n+1})")
        mfma(104, 40, r, None)
        a(f"s_waitcnt vmcnt({n})")
        mfma(104, 40, r + 4, 104)
        a(f"v_bitop3_b32 v{vT}, v{r}, v{r+4}, s{sTag} bitop3:0x7e")
        a(f"v_and_b32 v{vT}, 1, v{vT}")
        a(f"v_cmp_ne_u32 vcc, 0, v{vT}")
    stamp("x1iss")
    x1_issue(96)
    work(win["b1"])
    x1_issue(112)
    x1_check(96, 2)
    if not cfg.get("nowait1"): a(f"s_cbranch_vccnz L_chain_x1b{tag}")
    a.label(f"L_chain_x1ok{tag}")
    stamp("x1ok")
    a(f"v_add_f32_dpp v104, v104, v104 row_ror:4 row_mask:0xf bank_mask:0xf")
    a(f"v_add_f32_dpp v105, v105, v105 row_ror:4 row_mask:0xf bank_mask:0xf")
    a(f"s_xor_b32 s{sTag}, s{sTag}, 1")
    a(f"v_add_f32_dpp v104, v104, v104 row_ror:8 row_mask:0xf bank_mask:0xf")
    a(f"v_add_f32_dpp v105, v105, v105 row_ror:8 row_mask:0xf bank_mask:0xf")
    a(f"v_cvt_pk_bf16_f32 v{vR}, v104, v105")
    a(f"v_min_u32 v{vR}, -2, v{vR}")
    a(f"buffer_store_dword v{vR}, v{vX2s}, {W}, s{sX2st} offen{st}")
    if cfg.get("count_redo"):
        a(f"s_lshl_b32 s{sT0}, s{sSPIN}, 16")
        a(f"s_add_u32 s31, s31, s{sT0}")
    if stamp.on:
        a(f"s_cmp_eq_u32 s{sStep}, {cfg.get('stamp_step', 40)}")
        a(f"s_cbranch_scc0 L_chain_loop{tag}")
        a("s_waitcnt lgkmcnt(0)")
        a(f"s_lshl_b32 s{sT0}, s{sMEMB}, 2")
        a(f"s_add_u32 s{sT0}, s{sT0}, s{sWAVE}")
        a(f"s_lshl_b32 s{sT1}, s{sLAY}, 7")
        a(f"s_add_u32 s{sT0}, s{sT0}, s{sT1}")
        a(f"s_lshl_b32 s{sT0}, s{sT0}, 6")
        a(f"s_add_u32 s{sT0}, s{sT0}, {OFF_STAMP:#x}")
        a(f"v_mov_b32 v108, 0")
        for i in range(stamp.n):
            a(f"v_mov_b32 v109, s{stamp.base+2*i}")
            a(f"buffer_store_dword v109, v108, {W}, s{sT0} offen offset:{4*i}")
        cfg["stamp_names"] = stamp.names
    a(f"s_branch L_chain_loop{tag}")
    a.label(f"L_chain_x1b{tag}")
    x1_issue(96)
    spin_tick(a)
    if cfg.get("one1"): x1_check(96, 0)
    else:
        x1_check(112, 2)
        a(f"s_cbranch_vccz L_chain_x1ok{tag}")
        x1_issue(112)
        spin_tick(a)
        x1_check(96, 2)
    a(f"s_cbranch_vccz L_chain_x1ok{tag}")
    a(f"s_branch L_chain_x1b{tag}")
    a.label(f"L_chain_x2b{tag}")
    x2_issue(A)
    spin_tick(a)
    zero_k()
    if cfg.get("one2"): x2_check(A, 0)
    else:
        x2_check(A + 8, 2)
        a(f"s_cbranch_vccz L_chain_x2c{tag}")
        x2_issue(A + 8)
        spin_tick(a)
        zero_k()
        x2_check(A, 2)
    a(f"s_cbranch_vccz L_chain_x2ok{tag}")
    a(f"s_branch L_chain_x2b{tag}")
    a.label(f"L_chain_x2c{tag}")
    for i in range(4):
        a(f"v_mov_b64 {vr(A+2*i,2)}, {vr(A+8+2*i,2)} ; sameval")
    a(f"s_branch L_chain_x2ok{tag}")
    if nomax:
        a.label(f"L_chain_big{tag}")
        true_max()
        weights_to_o(False)
        a(f"s_branch L_chain_bigok{tag}")
    a.label(f"L_chain_last{tag}")
    if cfg.get("count_redo"):
        a("s_memrealtime s[70:71]")
        a("s_memtime s[72:73]")
        a(f"s_lshl_b32 s{sT0}, s{sMEMB}, 2")
        a(f"s_add_u32 s{sT0}, s{sT0}, s{sWAVE}")
        a(f"s_lshl_b32 s{sT1}, s{sLAY}, 7")
        a(f"s_add_u32 s{sT0}, s{sT0}, s{sT1}")
        a(f"s_lshl_b32 s{sT0}, s{sT0}, 6")
        a(f"s_add_u32 s{sT0}, s{sT0}, {OFF_STAMP:#x}")
        a(f"v_mov_b32 v108, 0")
        a("s_waitcnt lgkmcnt(0)")
        a(f"s_sub_u32 s70, s70, s100")
        a(f"s_sub_u32 s72, s72, s98")
        for i, r in enumerate((72, 31, 70, 101)):
            a(f"v_mov_b32 v109, s{r}")
            a(f"buffer_store_dword v109, v108, {W}, s{sT0} offen offset:{48+4*i}")
    a(f"buffer_store_dword v{vR}, v{vX2s}, {W}, s{sMemOff} offen sc1")
    a("s_waitcnt vmcnt(0) lgkmcnt(0)")
    if cfg.get("probe"):
        what, lay = cfg["probe"]
        a(f"s_cmp_lg_u32 s{sLAY}, {lay}")
        a("s_cbranch_scc1 L_done")
        if what == "T0": a("s_mov_b32 s74, s101")
        elif what == "loop": a("s_mov_b32 s74, s70")
        elif what == "end": a("s_add_u32 s74, s70, s101")
        a("s_sub_u32 s75, s100, s101")
        a("s_add_u32 s74, s74, 23000")
        lab = a.newlab("L_probe")
        a.label(lab)
        a("s_memrealtime s[76:77]")
        a("s_waitcnt lgkmcnt(0)")
        a("s_sub_u32 s76, s76, s75")
        a("s_cmp_lt_u32 s76, s74")
        a(f"s_cbranch_scc1 {lab}")
    a("s_branch L_done")
    a.label(f"L_chain_kvwait{tag}")
    if cfg.get("count_redo"): a("s_add_u32 s31, s31, 0x4000000")
    spin_init(a)
    lab = a.newlab("L_kvspin")
    a.label(lab)
    for f in range(4):
        a(f"buffer_load_dwordx4 {vr(Kx+4*f,4)}, v{vL16}, {W}, s{sKV} offen offset:{f*1024} sc1")
    spin_tick(a)
    a("s_waitcnt vmcnt(0)")
    kv_check()
    a(f"s_cbranch_vccz L_chain_kvok{tag}")
    a("s_sleep 4")
    a(f"s_branch {lab}")
```

```python
from gen_common import *

W = f"s[{sWS}:{sWS+3}]"
vL16, vT, vT2, vFo, vOne, vRd = 1, 2, 3, 4, 5, 6
sSeg, sEnd, sFl, sSrc, sDst, sBuf, sLds, sC = 55, 56, 57, 58, 59, 60, 66, 96

def cvt(a, d, s): a(f"v_cvt_pk_bf16_f32 v{d}, v{s}, v{s+1}")
def mfma(a, d, x, y, c):
    a(f"v_mfma_f32_16x16x32_bf16 {vr(d,4)}, {xr(x,4)}, {xr(y,4)}, {vr(c,4) if c is not None else 0}")

def mfma32(a, d, x, y, first):
    a(f"v_mfma_f32_32x32x16_bf16 {vr(d,16)}, {xr(x,4)}, {vr(y,4)}, {0 if first else vr(d,16)}")

def tr32_addr(a, vTR, rowmul_hi):
    a(f"v_lshrrev_b32 v{vT}, 5, v0")
    a(f"v_mul_u32_u24 v{vTR}, {rowmul_hi*64}, v{vT}")
    a(f"v_bfe_u32 v{vT}, v0, 2, 2")
    a(f"v_lshl_add_u32 v{vTR}, v{vT}, 6, v{vTR}")
    a(f"v_bfe_u32 v{vT}, v0, 4, 1")
    a(f"v_lshl_add_u32 v{vTR}, v{vT}, 5, v{vTR}")
    a(f"v_and_b32 v{vT}, 1, v0")
    a(f"v_lshl_add_u32 v{vTR}, v{vT}, 4, v{vTR}")
    a(f"v_bfe_u32 v{vT}, v0, 1, 1")
    a(f"v_lshl_add_u32 v{vTR}, v{vT}, 3, v{vTR}")
    a(f"v_add_u32 v{vTR}, s{sLds}, v{vTR}")

def lane32_addr(a, vdst, mu, mhi, paired):
    a(f"v_bfe_u32 v{vT}, v0, 4, 1")
    a(f"v_mul_u32_u24 v{vdst}, {mu}, v{vT}")
    a(f"v_lshrrev_b32 v{vT}, 5, v0")
    a(f"v_mul_u32_u24 v{vT}, {mhi}, v{vT}")
    a(f"v_add_u32 v{vdst}, v{vdst}, v{vT}")
    if paired:
        a(f"v_bfe_u32 v{vT}, v0, 2, 2")
        a(f"v_lshl_add_u32 v{vdst}, v{vT}, 7, v{vdst}")
        a(f"v_and_b32 v{vT}, 3, v0")
    else:
        a(f"v_and_b32 v{vT}, 15, v0")
    a(f"v_lshl_add_u32 v{vdst}, v{vT}, 4, v{vdst}")

def common_start(a):
    a("v_and_b32 v0, 63, v0")
    a(f"v_lshlrev_b32 v{vL16}, 4, v0")
    a(f"s_lshl_b32 s{sLds}, s{sWAVE}, 15")
    a(f"v_mov_b32 v{vOne}, 1")
    a(f"s_lshl_b32 s{sSeg}, s{sLAY}, 6")
    a(f"s_add_u32 s{sEnd}, s{sSeg}, 64")
    a(f"s_mov_b32 s92, 0")
    a(f"s_mov_b32 s75, 0")
    a(f"s_lshl_b32 s94, s{sLAY}, 21")
    a(f"s_add_u32 s94, s94, {OFF_RING:#x}")

def both_modes(a, name, body, cfg, before=None):
    touch_ring(a, cfg)
    trace(a, cfg, 6, None, vT)
    if not cfg.get("noinit"): wait_init(a)
    else: a("s_barrier")
    if cfg.get("touch_flags", True):
        a(f"s_lshl_b32 s{sT0}, s{sMEMB}, 12")
        a(f"s_lshl_b32 s{sT1}, s{sWAVE}, 10")
        a(f"s_add_u32 s{sT0}, s{sT0}, s{sT1}")
        a(f"s_lshl_b32 s{sT1}, s{sLAY}, 17")
        a(f"s_add_u32 s{sT0}, s{sT0}, s{sT1}")
        a(f"buffer_load_dwordx4 v[100:103], v{vL16}, {W}, s{sT0} offen sc1")
        a("s_waitcnt vmcnt(0)")
    if before: before()
    if cfg.get("force_global"):
        a(f"s_branch L_{name}_G")
    else:
        a(f"s_cmp_eq_u32 s{sLOCAL}, 0")
        a(f"s_cbranch_scc1 L_{name}_G")
    for tag, st in (("L", ""), ("G", " sc1")):
        stamp = Stamps(a, cfg.get("stamp") == name and tag == "L", base=16 if name == "rc" else 4, only=cfg.get("only"))
        a.label(f"L_{name}_{tag}")
        stamp("top")
        a(f"s_lshl_b32 s{sFl}, s{sSeg}, 11")
        body(st, stamp)
        trace(a, cfg, 1, sSeg, vT)
        trace(a, cfg, 5, sSeg, vT)
        stamp("end")
        if stamp.on:
            lab = a.newlab("L_nost")
            a(f"s_and_b32 s{sT0}, s{sSeg}, 63")
            a(f"s_cmp_lg_u32 s{sT0}, {cfg.get('stamp_step', 20)}")
            a(f"s_cbranch_scc1 {lab}")
            def row():
                a(f"s_lshl_b32 s{sT0}, s{sGRP}, 7")
                a(f"s_lshl_b32 s{sT1}, s{sMEMB}, 2")
                a(f"s_add_u32 s{sT0}, s{sT0}, s{sT1}")
                a(f"s_add_u32 s{sT0}, s{sT0}, s{sWAVE}")
            dump_stamps(a, stamp, cfg, row)
            a.label(lab)
        a(f"s_add_u32 s{sSeg}, s{sSeg}, 1")
        a(f"s_cmp_lt_u32 s{sSeg}, s{sEnd}")
        a(f"s_cbranch_scc1 L_{name}_{tag}")
        a("s_waitcnt vmcnt(0)")
        a("s_branch L_done")

sPre, sFlN, vF = 92, 93, 13
sRing, sD0, sD1, sD2, sFlD, sPend = 94, 95, 64, 65, 67, 75
CFG = {}

def RB_(): return CFG.get('ring', 8)

def ring_off(a, dst, sg, part):
    a(f"s_and_b32 s{dst}, s{sg}, {(RB_() if part else 4)-1}")
    a(f"s_lshl_b32 s{dst}, s{dst}, 17")
    a(f"s_add_u32 s{dst}, s{dst}, s{sRing}")
    if part: a(f"s_add_u32 s{dst}, s{dst}, {part:#x}")

def touch_ring(a, cfg):
    R = (4 + RB_()) // 2
    a(f"s_mul_i32 s{sT0}, s{sMEMB}, {R*8192}")
    a(f"s_mul_i32 s{sT1}, s{sWAVE}, {R*2048}")
    a(f"s_add_u32 s{sT0}, s{sT0}, s{sT1}")
    a(f"s_add_u32 s{sT0}, s{sT0}, s{sRing}")
    for i in range(2 * R):
        if i and i % 4 == 0: a(f"s_add_u32 s{sT0}, s{sT0}, 4096")
        a(f"buffer_load_dwordx4 v[100:103], v{vL16}, {W}, s{sT0} offen offset:{(i%4)*1024} sc1")
    a("s_waitcnt vmcnt(0)")

def dma_ops(npiece, phase_bytes):
    NT = ' nt' if (npiece == 4 and CFG.get('nt_o', False)) else ''
    ops = []
    for ph in range(4):
        for i in range(npiece):
            x = []
            if i == 0:
                x.append(f"s_add_u32 m0, s{sD0}, {ph*phase_bytes}")
                x.append(f"s_add_u32 s{sD2}, s{sD1}, {ph*phase_bytes}")
            x.append(f"buffer_load_dwordx4 v{vL16}, {W}, s{sD2} offen offset:{i*1024} sc1{NT} lds")
            ops.append(x)
    return ops

def dma_setup(a, npiece):
    a(f"s_mul_i32 s{sT0}, s{sWAVE}, {npiece*1024}")
    a(f"s_add_u32 s{sD1}, s{sSrc}, s{sT0}")
    a(f"s_add_u32 s{sD0}, s{sBuf}, s{sT0}")

def guarded(a, ops):
    lab = a.newlab("L_g")
    a(f"s_cbranch_vccz {lab}")
    for x in ops: a(x)
    a.label(lab)

def stage_issue(a, npiece, phase_bytes):
    a(f"s_mul_i32 s{sT0}, s{sWAVE}, {npiece*1024}")
    a(f"s_add_u32 s{sT1}, s{sSrc}, s{sT0}")
    a(f"s_add_u32 s{sT0}, s{sBuf}, s{sT0}")
    for ph in range(4):
        a(f"s_add_u32 m0, s{sT0}, {ph*phase_bytes}")
        if ph: a(f"s_add_u32 s{sT1}, s{sT1}, {phase_bytes}")
        for i in range(npiece):
            a(f"buffer_load_dwordx4 v{vL16}, {W}, s{sT1} offen offset:{i*1024} sc1 lds")

def fetch_input(a, cfg, stamp, src_of, npiece, phase_bytes, bufsize, vbase, sFl=sFl):
    lab = a.newlab("L_pre")
    a(f"s_add_u32 s{sFlN}, s{sFl}, 2048")
    a(f"s_cmp_lg_u32 s{sPre}, 0")
    a(f"s_cbranch_scc1 {lab}")
    poll_flags(a, vT, vFo, sFl, sleep=CFG.get('psleep', 1))
    stamp("polled", True)
    src_of(sSeg)
    dma_setup(a, npiece)
    for x in dma_ops(npiece, phase_bytes)[:2 * npiece]:
        for y in x: a(y)
    a.label(lab)
    stamp("flag")
    trace(a, cfg, 0, sSeg, vT)
    a(f"v_add_u32 v{vRd}, s{sBuf}, v{vbase}")
    a(f"s_xor_b32 s{sBuf}, s{sBuf}, {bufsize}")

def resample():
    return f"buffer_load_dword v{vF}, v{vFo}, {W}, s{sFlN} offen sc1"

def finish(a, cfg, fl, st, nstore, npiece, phase_bytes, src_of):
    no = a.newlab('L_noE'); go = a.newlab('L_goE'); fin = a.newlab('L_fin')
    a(f's_mov_b32 s{sFlD}, s{sFl}')
    a(f's_mov_b32 s{sPend}, s{sPre}')
    a(f's_cmp_lg_u32 s{sPre}, 0')
    a(f"s_cbranch_scc1 {fin if CFG.get('pend', True) else no}")
    a(f's_waitcnt vmcnt({nstore})')
    a(f"v_cmp_eq_u32 vcc, 0, v{vF}")
    a(f"s_add_u32 s{sT2}, s{sSeg}, 1")
    a(f"s_cmp_ge_u32 s{sT2}, s{sEnd}")
    a(f"s_cbranch_scc1 {no}")
    a(f"s_cbranch_vccnz {no}")
    src_of(sT2)
    dma_setup(a, npiece)
    for x in dma_ops(npiece, phase_bytes)[:2 * npiece]:
        for y in x: a(y)
    a(f"s_mov_b32 s{sPre}, 1")
    a(f's_waitcnt vmcnt({2*npiece})')
    a(f"s_branch {go}")
    a.label(no)
    a('s_waitcnt vmcnt(0)')
    a.label(go)
    set_flag(a, vOne, sFl, fl, st)
    a.label(fin)

def gemm_phases(a, nks, npiece, extra, rdoffs, ring, step, src_of, phase_bytes, stamp, rs_at, nstore, fl, st, mid=True, nring=3):
    per = nks // 4
    def rd(ks):
        sl = ring + (ks % nring) * 8
        return [f"ds_read_b128 {vr(sl+4*u,4)}, v{vRd} offset:{rdoffs(ks,u)}" for u in range(2)]
    def kstep(ks, more):
        left = nks - 1 - ks
        a(f"s_waitcnt lgkmcnt({2 if left >= 1 else 0})")
        side = (rd(ks + 2) if left >= 2 else []) + more
        step(ks, ring + (ks % nring) * 8, side)
        assert not side
    if CFG.get('pend', True):
        lab = a.newlab("L_np")
        a(f"s_waitcnt vmcnt({npiece+nstore})")
        a(f"s_cmp_lg_u32 s{sPend}, 0")
        a(f"s_cbranch_scc1 {lab}")
    a(f"s_waitcnt vmcnt({npiece})")
    if CFG.get('pend', True): a.label(lab)
    stamp("w0", True)
    a("s_barrier")
    stamp("b0", True)
    for x in rd(0) + rd(1): a(x)
    dq = dma_ops(npiece, phase_bytes)[2 * npiece:]
    dec = CFG.get("dec%d" % nks, 3 * per - 2 if npiece == 2 else 20)
    ops = []
    def gate(q):
        last = max([k for k, x in enumerate(ops) if x == q], default=-1)
        a(f"s_waitcnt vmcnt({len(ops)-1-last})")
        if q == 1 and CFG.get('pend', True):
            lab = a.newlab("L_np")
            a(f"s_cmp_eq_u32 s{sPend}, 0")
            a(f"s_cbranch_scc1 {lab}")
            set_flag(a, vOne, sFlD, fl, st)
            a.label(lab)
        a("s_barrier")
        stamp(f"b{q}", True)
    def common(ks):
        more = []
        for q in (1, 2, 3):
            if ks == q * per - 2: gate(q)
        if dq:
            more.append("\n".join(dq.pop(0))); ops.append(2 + (2 * npiece - len(dq) - 1) // npiece)
        if ks == 2 * npiece:
            for x in extra: more.append(x); ops.append(None)
        return more
    if not mid:
        a(f"s_mov_b32 s{sPre}, 0")
        for ks in range(nks):
            more = common(ks)
            if ks == rs_at: more.append(resample()); ops.append(None)
            kstep(ks, more)
        return
    for ks in range(0, dec):
        more = common(ks)
        if ks == max(2 * npiece, dec - CFG.get('lead%d' % nks, 12 if npiece == 4 else 6)): more.append(resample()); ops.append(None)
        kstep(ks, more)
    no, end = a.newlab("L_Hn"), a.newlab("L_He")
    a("s_waitcnt vmcnt(0)")
    ops.clear()
    a(f"v_cmp_eq_u32 vcc, 0, v{vF}")
    a(f"s_mov_b32 s{sPre}, 0")
    a(f"s_add_u32 s{sT2}, s{sSeg}, 1")
    a(f"s_cmp_ge_u32 s{sT2}, s{sEnd}")
    a(f"s_cbranch_scc1 {no}")
    a(f"s_cbranch_vccnz {no}")
    src_of(sT2)
    dma_setup(a, npiece)
    a(f"s_mov_b32 s{sPre}, 1")
    stamp("dec", True)
    dn = dma_ops(npiece, phase_bytes)[:2 * npiece]
    for ks in range(dec, nks):
        more = []
        if ks == 3 * per - 2: a("s_barrier")
        if dn: more.append("\n".join(dn.pop(0)))
        kstep(ks, more)
    assert not dn
    a(f"s_branch {end}")
    a.label(no)
    for ks in range(dec, nks):
        if ks == 3 * per - 2: a("s_barrier")
        kstep(ks, [resample()] if ks == rs_at else [])
    a.label(end)

def natural_dma64(a, vdst, rowbytes):
    a(f"v_lshrrev_b32 v{vdst}, 2, v0")
    a(f"v_mul_u32_u24 v{vdst}, {rowbytes}, v{vdst}")
    a(f"v_and_b32 v{vT}, 3, v0")
    a(f"v_lshl_add_u32 v{vdst}, v{vT}, 4, v{vdst}")

def img_rd_addr(a, vdst):
    a(f"v_lshrrev_b32 v{vT}, 4, v0")
    a(f"v_lshlrev_b32 v{vT}, 9, v{vT}")
    a(f"v_and_b32 v{vdst}, 15, v0")
    a(f"v_lshl_add_u32 v{vdst}, v{vdst}, 4, v{vT}")

def img2_addr(a, vdst):
    a(f"v_lshrrev_b32 v{vT}, 5, v0")
    a(f"v_lshlrev_b32 v{vdst}, 10, v{vT}")
    a(f"v_bfe_u32 v{vT}, v0, 2, 2")
    a(f"v_lshl_add_u32 v{vdst}, v{vT}, 7, v{vdst}")
    a(f"v_bfe_u32 v{vT}, v0, 4, 1")
    a(f"v_lshl_add_u32 v{vdst}, v{vT}, 6, v{vdst}")
    a(f"v_and_b32 v{vT}, 3, v0")
    a(f"v_lshl_add_u32 v{vdst}, v{vT}, 4, v{vdst}")

sBias, sFlP = 78, 79
def credit_setup(a, vCr, off, n, R):
    a(f"s_mov_b32 s{sBias}, 0")
    a(f"v_and_b32 v{vCr}, {n-1}, v0")
    a(f"v_lshlrev_b32 v{vCr}, 2, v{vCr}")
    a(f"v_add_u32 v{vCr}, {off}, v{vCr}")
    a(f"v_add_u32 v{vT}, {R*2048}, v{vFo}")
    a(f"v_cmp_gt_u32 vcc, 32, v0")
    a(f"v_cndmask_b32 v{vCr}, v{vCr}, v{vT}, vcc")

def credit_switch(a, vCr, R):
    lab = a.newlab("L_nocr")
    a(f"s_and_b32 s{sT0}, s{sSeg}, 63")
    a(f"s_cmp_lg_u32 s{sT0}, {R-1}")
    a(f"s_cbranch_scc1 {lab}")
    a(f"v_mov_b32 v{vFo}, v{vCr}")
    a(f"s_mov_b32 s{sBias}, {R*2048}")
    a(f"s_sub_u32 s{sFlN}, s{sFlN}, {R*2048}")
    a.label(lab)

def role_ra(a, cfg):
    WT = 256
    vD, vTR, vSt, vCr = 96, 97, 7, 8
    sKs, sNs = 61, 62
    a.label("L_ra")
    common_start(a)
    a(f"s_lshr_b32 s{sKs}, s{sMEMB}, 2")
    a(f"s_and_b32 s{sNs}, s{sMEMB}, 3")
    natural_dma64(a, vD, 1024)
    tr32_addr(a, vTR, 4)
    a(f"s_lshl_b32 s{sT2}, s{sKs}, 20")
    a(f"s_lshl_b32 s{sT1}, s{sNs}, 8")
    a(f"s_add_u32 s{sT2}, s{sT2}, s{sT1}")
    a(f"s_lshl_b32 s{sT1}, s{sWAVE}, 6")
    a(f"s_add_u32 s{sT2}, s{sT2}, s{sT1}")
    set_srd(a, sWT, sWO, 0x400000)
    late_start(a, cfg)
    chunks = []
    for ch in range(16):
        def setup(ch=ch): a(f"s_add_u32 s{sT0}, s{sT2}, {ch*65536}")
        def consume(so, ch=ch):
            for e in range(2):
                for hh in range(2):
                    for jh in range(2):
                        a(f"ds_read_b64_tr_b16 {xr(WT+((2*ch+e)*2+hh)*4+2*jh,2)}, v{vTR} offset:{so+(32*e+16*jh+8*hh)*64}")
            a("s_waitcnt lgkmcnt(0)")
        chunks.append(dict(setup=setup, vdma=vD, dstep=16384, consume=consume))
    load_chunks(a, chunks, sLds)
    a(f"v_and_b32 v{vFo}, 31, v0")
    a(f"v_lshlrev_b32 v{vFo}, 2, v{vFo}")
    a(f"s_lshl_b32 s{sT0}, s{sKs}, 7")
    a(f"s_add_u32 s{sT0}, s{sT0}, {F_O}")
    a(f"v_add_u32 v{vFo}, s{sT0}, v{vFo}")
    credit_setup(a, vCr, F_XNB, 8, 4)
    lane32_addr(a, vSt, 512, 64, True)
    lane32_addr(a, 9, 1024, 256, False)
    a(f"s_lshl_b32 s{sT0}, s{sNs}, 13")
    a(f"s_lshl_b32 s{sT1}, s{sWAVE}, 11")
    a(f"s_add_u32 s{sT0}, s{sT0}, s{sT1}")
    a(f"s_lshl_b32 s{sT1}, s{sKs}, 15")
    a(f"s_add_u32 s{sT0}, s{sT0}, s{sT1}")
    a(f"v_add_u32 v{vSt}, s{sT0}, v{vSt}")
    a(f"s_mov_b32 s{sBuf}, 0")
    ACC, RING = 16, 32
    def body(st, stamp):
        def src_of(sg):
            a(f"s_lshl_b32 s{sSrc}, s{sg}, 18")
            a(f"s_lshl_b32 s{sT0}, s{sKs}, 16")
            a(f"s_add_u32 s{sSrc}, s{sSrc}, s{sT0}")
            a(f"s_add_u32 s{sSrc}, s{sSrc}, {OFF_O:#x}")
        a(f"s_sub_u32 s{sFlP}, s{sFl}, s{sBias}")
        fetch_input(a, cfg, stamp, src_of, 4, 16384, 0x10000, 9, sFlP)
        credit_switch(a, vCr, 4)
        ring_off(a, sDst, sSeg, R_PART)
        a(f"s_lshl_b32 s{sT0}, s{sMEMB}, 2")
        a(f"s_add_u32 s{sT0}, s{sT0}, s{sWAVE}")
        a(f"s_lshl_b32 s{sT0}, s{sT0}, 2")
        a(f"s_add_u32 s{sFl}, s{sFl}, s{sT0}")
        def step(ks, fr, side):
            for hh in range(2):
                mfma32(a, ACC, WT + (ks * 2 + hh) * 4, fr + 4 * hh, ks == 0 and hh == 0)
                for _ in range(3):
                    if side: a(side.pop(0))
        gemm_phases(a, 32, 4, [], lambda ks, u: ks * 2048 + u * 512, RING, step, src_of, 16384, stamp, CFG.get('rs_ra', 27), 2, F_PART, st)
        stamp("gemm")
        for u in range(2):
            for i in range(4): cvt(a, 56 + 4 * u + i, ACC + u * 8 + 2 * i)
            a(f"buffer_store_dwordx4 {vr(56+4*u,4)}, v{vSt}, {W}, s{sDst} offen offset:{u*1024}{st}")
        finish(a, cfg, F_PART, st, 2, 4, 16384, src_of)
    both_modes(a, "ra", body, cfg)

def role_rc(a, cfg):
    WT = 256
    vD, vTR, vNeg, vRb = 96, 97, 7, 8
    sHb, sMask, sPrevOK = 61, 76, 62
    a.label("L_rc")
    common_start(a)
    a(f"s_sub_u32 s{sHb}, s{sMEMB}, 16")
    a(f"s_lshl_b32 s{sHb}, s{sHb}, 2")
    a(f"s_add_u32 s{sHb}, s{sHb}, s{sWAVE}")
    a(f"v_lshrrev_b32 v{vD}, 1, v0")
    a(f"v_mul_u32_u24 v{vD}, 3072, v{vD}")
    a(f"v_and_b32 v{vT}, 1, v0")
    a(f"v_lshl_add_u32 v{vD}, v{vT}, 4, v{vD}")
    a(f"v_lshrrev_b32 v{vT}, 4, v0")
    a(f"v_lshlrev_b32 v{vTR}, 8, v{vT}")
    a(f"v_bfe_u32 v{vT}, v0, 2, 2")
    a(f"v_lshl_add_u32 v{vTR}, v{vT}, 5, v{vTR}")
    a(f"v_and_b32 v{vT}, 3, v0")
    a(f"v_lshl_add_u32 v{vTR}, v{vT}, 3, v{vTR}")
    a(f"v_add_u32 v{vTR}, s{sLds}, v{vTR}")
    a(f"s_lshl_b32 s{sT2}, s{sHb}, 5")
    set_srd(a, sWT, sWB, 512 * 3072)
    late_start(a, cfg)
    chunks = []
    for mm in range(3):
        for ch in range(4):
            def setup(mm=mm, ch=ch): a(f"s_add_u32 s{sT0}, s{sT2}, {128*ch*3072 + mm*1024}")
            def consume(so, mm=mm, ch=ch):
                for e in range(4):
                    for jh in range(2):
                        a(f"ds_read_b64_tr_b16 {xr(WT+((4*ch+e)*3+mm)*4+2*jh,2)}, v{vTR} offset:{so+(32*e+4*jh)*32}")
                a("s_waitcnt lgkmcnt(0)")
            chunks.append(dict(setup=setup, vdma=vD, dstep=32 * 3072, consume=consume))
    load_chunks(a, chunks, sLds)
    a(f"v_and_b32 v{vFo}, 7, v0")
    a(f"v_lshlrev_b32 v{vFo}, 2, v{vFo}")
    a(f"v_add_u32 v{vFo}, {F_XNB}, v{vFo}")
    img_rd_addr(a, vRb)
    a(f"v_mov_b32 v{vNeg}, {fbits(-1e9 * 4):#x}")
    a(f"s_mov_b32 s{sC}, {fbits(0.25*1.4426950408889634):#x}")
    a(f"s_mov_b32 s{sC+1}, s{sC}")
    a("v_and_b32 v96, 15, v0")
    a("v_lshrrev_b32 v97, 4, v0")
    a("v_lshlrev_b32 v97, 2, v97")
    for r in range(4):
        a(f"v_add_u32 v98, {r}, v97")
        a(f"v_add_u32 v99, 9, v96")
        a(f"v_cmp_ge_u32 s[{sMask+2*r}:{sMask+2*r+1}], v98, v99")
        a(f"v_sub_u32 v99, v96, v98")
        a(f"v_cmp_ge_u32 s[{sMask+8+2*r}:{sMask+8+2*r+1}], 7, v99")
    KP, VP = (16, 20), (24, 28)
    for r in range(16, 32): a(f"v_mov_b32 v{r}, 0")
    a(f"s_mov_b32 s{sBuf}, 0")
    sPM = 8
    for r in range(4): a(f"s_mov_b64 s[{sPM+2*r}:{sPM+2*r+1}], 0")
    RING, ACC = 32, 56
    def body(st, stamp):
        def src_of(sg):
            ring_off(a, sSrc, sg, R_XNB)
        fetch_input(a, cfg, stamp, src_of, 2, 8192, 0x8000, vRb)
        ring_off(a, sDst, sSeg, R_OB)
        a(f"s_lshl_b32 s{sT0}, s{sHb}, 10")
        a(f"s_add_u32 s{sDst}, s{sDst}, s{sT0}")
        a(f"s_lshl_b32 s{sT0}, s{sHb}, 2")
        a(f"s_add_u32 s{sFl}, s{sFl}, s{sT0}")
        acc = lambda mm, p: ACC + (p * 3 + mm) * 4
        FR = 128
        wq, wk, wv = (lambda ks: WT + ks * 12), (lambda ks: WT + ks * 12 + 4), (lambda ks: WT + ks * 12 + 8)
        def step(ks, fr, side):
            c = lambda x: None if ks == 0 else x
            mfma(a, acc(0, 0), wq(ks), fr, c(acc(0, 0)))
            for _ in range(2):
                if side: a(side.pop(0))
            mfma(a, acc(1, 0), wk(ks), fr, c(acc(1, 0)))
            if side: a(side.pop(0))
            mfma(a, acc(2, 0), fr, wv(ks), c(acc(2, 0)))
            for _ in range(2):
                if side: a(side.pop(0))
        gemm_phases(a, 16, 2, [], lambda ks, u: ks * 2048 + u * 256, FR, step, src_of, 8192, stamp, 99, 1, F_OB, st, mid=False, nring=16)
        stamp("gemm")
        Q = (80, 82); S = (96, 104); B = (84, 88); O = (112, 116); M = (92, 94)
        def xl(op, p):
            out = []
            for sw in ("v_permlane16_swap_b32", "v_permlane32_swap_b32"):
                out += [f"v_mov_b32 v{M[p]+1}, v{M[p]}", None, f"{sw} v{M[p]}, v{M[p]+1}", f"{op} v{M[p]}, v{M[p]}, v{M[p]+1}"]
            return out
        def softmax(p):
            sm = [None] * 3
            sm += [f"v_cvt_pk_bf16_f32 v{Q[p]}, v{acc(0,p)}, v{acc(0,p)+1}", f"v_cvt_pk_bf16_f32 v{Q[p]+1}, v{acc(0,p)+2}, v{acc(0,p)+3}",
                   f"v_cvt_pk_bf16_f32 v{KP[p]+2}, v{acc(1,p)}, v{acc(1,p)+1}", f"v_cvt_pk_bf16_f32 v{KP[p]+3}, v{acc(1,p)+2}, v{acc(1,p)+3}", None,
                   f"v_mfma_f32_16x16x16_bf16 {vr(S[p],4)}, {vr(KP[p],2)}, {vr(Q[p],2)}, 0",
                   f"v_mfma_f32_16x16x16_bf16 {vr(S[p]+4,4)}, {vr(KP[p]+2,2)}, {vr(Q[p],2)}, 0",
                   f"v_mov_b64 {vr(KP[p],2)}, {vr(KP[p]+2,2)}", None, None]
            sm += [f"v_cndmask_b32 v{S[p]+r}, v{vNeg}, v{S[p]+r}, s[{sPM+2*r}:{sPM+2*r+1}]" for r in range(4)]
            sm += [f"v_cndmask_b32 v{S[p]+4+r}, v{vNeg}, v{S[p]+4+r}, s[{sMask+8+2*r}:{sMask+8+2*r+1}]" for r in range(4)]
            sm += [f"v_max3_f32 v{M[p]}, v{S[p]}, v{S[p]+1}, v{S[p]+2}", f"v_max3_f32 v{M[p]}, v{M[p]}, v{S[p]+3}, v{S[p]+4}",
                   f"v_max3_f32 v{M[p]}, v{M[p]}, v{S[p]+5}, v{S[p]+6}", f"v_max_f32 v{M[p]}, v{M[p]}, v{S[p]+7}"]
            sm += xl("v_max_f32", p)
            sm += [f"v_mul_f32 v{M[p]}, s{sC}, v{M[p]}"]
            sm += [f"v_fma_f32 v{S[p]+i}, v{S[p]+i}, s{sC}, -v{M[p]}" for i in range(8)]
            sm += [f"v_exp_f32 v{S[p]+i}, v{S[p]+i}" for i in range(8)]
            sm += [f"v_cvt_pk_bf16_f32 v{B[p]+i}, v{S[p]+2*i}, v{S[p]+2*i+1}" for i in range(4)]
            return sm
        def rsum(p):
            out = []
            for d in (4, 2, 1):
                for i in range(d): out.append(f"v_add_f32 v{S[p]+i if d > 1 else M[p]}, v{S[p]+i}, v{S[p]+i+d}")
            return out + xl("v_add_f32", p) + [f"v_rcp_f32 v{M[p]}, v{M[p]}"]
        def vpack(p): return [f"v_cvt_pk_bf16_f32 v{VP[p]+2}, v{acc(2,p)}, v{acc(2,p)+1}", f"v_cvt_pk_bf16_f32 v{VP[p]+3}, v{acc(2,p)+2}, v{acc(2,p)+3}"]
        def weave(mfmas, side, rate):
            for m_ in mfmas:
                mfma(a, *m_)
                for _ in range(rate):
                    if side:
                        x = side.pop(0)
                        if x: a(x)
        side = softmax(0) + vpack(0)
        mm = []
        for ks in range(16):
            c = lambda x: None if ks == 0 else x
            mm += [(acc(0, 1), wq(ks), FR + 8 * ks + 4, c(acc(0, 1))), (acc(1, 1), wk(ks), FR + 8 * ks + 4, c(acc(1, 1)))]
        weave(mm, side, 2)
        for x in side:
            if x: a(x)
        a(resample())
        side = rsum(0)[:3] + softmax(1)[3:]
        mm = [(acc(2, 1), FR + 8 * ks + 4, wv(ks), None if ks == 0 else acc(2, 1)) for ks in range(16)]
        weave([(O[0], VP[0], B[0], None)] + mm, side, 3)
        for x in side + vpack(1) + rsum(0)[3:7]:
            if x: a(x)
        mfma(a, O[1], VP[1], B[1], None)
        r0, r1 = rsum(0)[7:], rsum(1)
        for x in r1[:7]: a(x)
        for x, y in zip(r0, r1[7:]):
            if x: a(x)
            if y: a(y)
        for p in range(2): a(f"v_mov_b64 {vr(VP[p],2)}, {vr(VP[p]+2,2)}")
        for r in range(4): a(f"s_mov_b64 s[{sPM+2*r}:{sPM+2*r+1}], s[{sMask+2*r}:{sMask+2*r+1}]")
        for p in range(2):
            a(f"v_pk_mul_f32 {vr(O[p],2)}, {vr(O[p],2)}, {vr(M[p],2)} op_sel_hi:[1,0]")
            a(f"v_pk_mul_f32 {vr(O[p]+2,2)}, {vr(O[p]+2,2)}, {vr(M[p],2)} op_sel_hi:[1,0]")
        for p in range(2):
            cvt(a, 80 + 2 * p, O[p]); cvt(a, 81 + 2 * p, O[p] + 2)
        a("v_permlane16_swap_b32 v80, v82")
        a("v_permlane16_swap_b32 v81, v83")
        a(f"buffer_store_dwordx4 v[80:83], v{vL16}, {W}, s{sDst} offen{st}")
        stamp("attn")
        finish(a, cfg, F_OB, st, 1, 2, 8192, src_of)
    both_modes(a, "rc", body, cfg)

def role_rd(a, cfg):
    WT = 256
    vD, vTR, vRb, vX1, vSt0, vSt1 = 96, 97, 8, 9, 10, 11
    sMd, sOb, sX1o, sOm, sOs = 61, 62, 63, 76, 77
    a.label("L_rd")
    common_start(a)
    a(f"s_sub_u32 s{sMd}, s{sMEMB}, 24")
    a(f"s_lshl_b32 s{sMd}, s{sMd}, 2")
    a(f"s_add_u32 s{sMd}, s{sMd}, s{sWAVE}")
    natural_dma64(a, vD, 1024)
    tr32_addr(a, vTR, 8)
    a(f"s_lshl_b32 s{sT2}, s{sMd}, 6")
    set_srd(a, sWT, sWBO, 0x80000)
    late_start(a, cfg)
    chunks = []
    for ch in range(8):
        def setup(ch=ch): a(f"s_add_u32 s{sT0}, s{sT2}, {ch*65536}")
        def consume(so, ch=ch):
            for e in range(2):
                for hh in range(2):
                    for jh in range(2):
                        a(f"ds_read_b64_tr_b16 {xr(WT+((2*ch+e)*2+hh)*4+2*jh,2)}, v{vTR} offset:{so+(32*e+16*hh+4*jh)*64}")
            a("s_waitcnt lgkmcnt(0)")
        chunks.append(dict(setup=setup, vdma=vD, dstep=16384, consume=consume))
    load_chunks(a, chunks, sLds)
    a(f"v_and_b32 v{vFo}, 31, v0")
    a(f"v_lshlrev_b32 v{vFo}, 2, v{vFo}")
    a(f"v_add_u32 v{vFo}, {F_OB}, v{vFo}")
    a(f"s_cmp_eq_u32 s{sLAY}, 0")
    a(f"s_mov_b32 s{sT1}, {F_OB}")
    a(f"s_cselect_b32 s{sT1}, {64*2048+F_XN}, s{sT1}")
    credit_setup(a, 12, f"s{sT1}", 8, RB_())
    lane32_addr(a, vRb, 256, 512, False)
    a(f"s_lshl_b32 s{sT0}, s{sMd}, 11")
    a(f"v_add_u32 v{vX1}, s{sT0}, v{vRb}")
    a(f"s_cmp_eq_u32 s{sLAY}, 0")
    a("s_cbranch_scc1 L_rd_l0")
    set_srd(a, sIN, sOUT, 0x200000)
    a(f"s_mov_b32 s{sOb}, 0")
    a(f"s_mov_b32 s{sOm}, 63")
    a(f"s_mov_b32 s{sOs}, 15")
    a(f"v_and_b32 v{vT}, 15, v0")
    a(f"v_lshlrev_b32 v{vSt0}, 11, v{vT}")
    a(f"v_bfe_u32 v{vT}, v0, 4, 1")
    a(f"v_lshl_add_u32 v{vSt0}, v{vT}, 10, v{vSt0}")
    a(f"v_lshrrev_b32 v{vT}, 5, v0")
    a(f"v_lshl_add_u32 v{vSt0}, v{vT}, 4, v{vSt0}")
    a(f"s_lshl_b32 s{sT0}, s{sMd}, 6")
    a(f"v_add_u32 v{vSt0}, s{sT0}, v{vSt0}")
    a(f"v_add_u32 v{vSt1}, 32, v{vSt0}")
    a("s_branch L_rd_go")
    a.label("L_rd_l0")
    set_srd(a, sIN, sWSP, WS_BYTES)
    a(f"s_add_u32 s{sOb}, s{sRing}, {R_X2:#x}")
    a(f"s_mov_b32 s{sOm}, {RB_()-1}")
    a(f"s_mov_b32 s{sOs}, 17")
    lane32_addr(a, vSt0, 512, 64, True)
    a(f"s_lshl_b32 s{sT0}, s{sMd}, 11")
    a(f"v_add_u32 v{vSt0}, s{sT0}, v{vSt0}")
    a(f"v_add_u32 v{vSt1}, 1024, v{vSt0}")
    a.label("L_rd_go")
    a(f"s_mov_b32 s{sBuf}, 0")
    ACC, RING, XR = 16, 32, 56
    def body(st, stamp):
        def src_of(sg):
            ring_off(a, sSrc, sg, R_OB)
        a(f"s_sub_u32 s{sFlP}, s{sFl}, s{sBias}")
        fetch_input(a, cfg, stamp, src_of, 2, 8192, 0x8000, vRb, sFlP)
        credit_switch(a, 12, RB_())
        ring_off(a, sX1o, sSeg, R_X1)
        extra = [f"buffer_load_dwordx4 {vr(XR+4*u,4)}, v{vX1}, {W}, s{sX1o} offen offset:{u*1024} sc1" for u in range(2)]
        a(f"s_and_b32 s{sDst}, s{sSeg}, s{sOm}")
        a(f"s_lshl_b32 s{sDst}, s{sDst}, s{sOs}")
        a(f"s_add_u32 s{sDst}, s{sDst}, s{sOb}")
        a(f"s_lshl_b32 s{sT0}, s{sMd}, 2")
        a(f"s_add_u32 s{sFl}, s{sFl}, s{sT0}")
        def step(ks, fr, side):
            for hh in range(2):
                mfma32(a, ACC, WT + (ks * 2 + hh) * 4, fr + 4 * hh, ks == 0 and hh == 0)
                for _ in range(3):
                    if side: a(side.pop(0))
        gemm_phases(a, 16, 2, extra, lambda ks, u: ks * 2048 + u * 1024, RING, step, src_of, 8192, stamp, CFG.get('rs_rd', 11), 2, F_X2, st, mid=False)
        stamp("gemm")
        a("s_waitcnt vmcnt(1)")
        for i in range(8):
            a(f"v_lshlrev_b32 v{64+2*i}, 16, v{XR+i}")
            a(f"v_and_b32 v{65+2*i}, 0xffff0000, v{XR+i}")
        for i in range(8):
            cvt(a, 80 + i, ACC + 2 * i)
        for i in range(8):
            a(f"v_lshlrev_b32 v{ACC+2*i}, 16, v{80+i}")
            a(f"v_and_b32 v{ACC+2*i+1}, 0xffff0000, v{80+i}")
        for i in range(8):
            a(f"v_pk_add_f32 {vr(ACC+2*i,2)}, {vr(ACC+2*i,2)}, {vr(64+2*i,2)}")
        for u in range(2):
            for i in range(4): cvt(a, 80 + 4 * u + i, ACC + 8 * u + 2 * i)
            if not cfg.get("out_sc1") or st:
                a(f"buffer_store_dwordx4 {vr(80+4*u,4)}, v{(vSt0, vSt1)[u]}, s[{sIN}:{sIN+3}], s{sDst} offen{st}")
            else:
                l1, l2 = a.newlab("L_o1"), a.newlab("L_o2")
                a(f"s_cmp_eq_u32 s{sLAY}, 1")
                a(f"s_cbranch_scc1 {l1}")
                a(f"buffer_store_dwordx4 {vr(80+4*u,4)}, v{(vSt0, vSt1)[u]}, s[{sIN}:{sIN+3}], s{sDst} offen")
                a(f"s_branch {l2}")
                a.label(l1)
                a(f"buffer_store_dwordx4 {vr(80+4*u,4)}, v{(vSt0, vSt1)[u]}, s[{sIN}:{sIN+3}], s{sDst} offen sc1")
                a.label(l2)
        if cfg.get("rd_copy", True):
            def copy(cond):
                lab = a.newlab("L_nocp")
                a(f"s_cmp_{cond}_u32 s{sSeg}, 63")
                a(f"s_cbranch_scc0 {lab}")
                a(f"s_lshl_b32 s{sX1o}, s{sSeg}, 15")
                a(f"s_add_u32 s{sX1o}, s{sX1o}, {OFF_X2R:#x}")
                for u in range(2):
                    a(f"buffer_store_dwordx4 {vr(80+4*u,4)}, v{(vSt0, vSt1)[u]}, {W}, s{sX1o} offen sc1")
                a.label(lab)
            copy("eq")
        finish(a, cfg, F_X2, st, 2, 2, 8192, src_of)
        if cfg.get("rd_copy", True): copy("lt")
    both_modes(a, "rd", body, cfg)

def row_reduce(a, r, t):
    a(f"v_add_f32_dpp v{r}, v{r}, v{r} row_ror:4 row_mask:0xf bank_mask:0xf")
    a(f"v_add_f32_dpp v{r}, v{r}, v{r} row_ror:8 row_mask:0xf bank_mask:0xf")
    xlane_g(a, "v_add_f32", r, t)

def rnd_bf16(a, r):
    a(f"v_cvt_pk_bf16_f32 v{r}, v{r}, v{r}")
    a(f"v_and_b32 v{r}, 0xffff0000, v{r}")

def layernorm(a, X, T, between=()):
    m, t, s, t2 = T, T + 2, T + 4, T + 6
    between = list(between)
    a(f"v_pk_add_f32 {vr(m,2)}, {vr(X,2)}, {vr(X+2,2)}")
    a(f"v_pk_mul_f32 {vr(s,2)}, {vr(X,2)}, {vr(X,2)}")
    a(f"v_pk_fma_f32 {vr(s,2)}, {vr(X+2,2)}, {vr(X+2,2)}, {vr(s,2)}")
    for i in range(4, 32, 2):
        a(f"v_pk_add_f32 {vr(m,2)}, {vr(m,2)}, {vr(X+i,2)}")
        a(f"v_pk_fma_f32 {vr(s,2)}, {vr(X+i,2)}, {vr(X+i,2)}, {vr(s,2)}")
    a(f"v_add_f32 v{m}, v{m}, v{m+1}")
    a(f"v_add_f32 v{s}, v{s}, v{s+1}")
    def gap():
        if between: a(between.pop(0))
    for ror in (4, 8):
        gap()
        a(f"v_add_f32_dpp v{m}, v{m}, v{m} row_ror:{ror} row_mask:0xf bank_mask:0xf")
        a(f"v_add_f32_dpp v{s}, v{s}, v{s} row_ror:{ror} row_mask:0xf bank_mask:0xf")
    for sw in ("v_permlane16_swap_b32", "v_permlane32_swap_b32"):
        a(f"v_mov_b32 v{t}, v{m}")
        a(f"v_mov_b32 v{t2}, v{s}")
        gap()
        a(f"{sw} v{m}, v{t}")
        a(f"{sw} v{s}, v{t2}")
        a(f"v_add_f32 v{m}, v{m}, v{t}")
        a(f"v_add_f32 v{s}, v{s}, v{t2}")
    a(f"v_mul_f32 v{m}, {fbits(1/512):#x}, v{m}")
    a(f"v_mul_f32 v{s}, {fbits(1/512):#x}, v{s}")
    a(f"v_fma_f32 v{s}, -v{m}, v{m}, v{s}")
    a(f"v_max_f32 v{s}, 0, v{s}")
    rnd_bf16(a, m)
    rnd_bf16(a, s)
    a(f"v_add_f32 v{s}, {fbits(1e-5):#x}, v{s}")
    rnd_bf16(a, s)
    a(f"v_sqrt_f32 v{s}, v{s}")
    gap()
    rnd_bf16(a, s)
    a(f"v_rcp_f32 v{s}, v{s}")
    for x in between: a(x)
    a(f"v_mul_f32 v{m}, v{m}, v{s}")
    for i in range(0, 32, 2):
        a(f"v_pk_fma_f32 {vr(X+i,2)}, {vr(X+i,2)}, {vr(s,2)}, {vr(m,2)} op_sel_hi:[1,0,0] neg_lo:[0,0,1] neg_hi:[0,0,1]")

def unpack(a, dst, src, n):
    for i in range(n):
        a(f"v_lshlrev_b32 v{dst+2*i}, 16, v{src+i}")
        a(f"v_and_b32 v{dst+2*i+1}, 0xffff0000, v{src+i}")

def rows_setup(a, sWb):
    c_, gi = 96, 97
    a(f"s_and_b32 s{sT0}, s{sWb}, 1")
    a(f"s_lshr_b32 s{sT1}, s{sWb}, 1")
    a(f"s_lshl_b32 s{sT1}, s{sT1}, 2")
    a(f"v_and_b32 v{c_}, 3, v0")
    a(f"v_add_u32 v{c_}, s{sT1}, v{c_}")
    a(f"v_lshrrev_b32 v{gi}, 2, v0")
    a(f"s_lshl_b32 s{sT1}, s{sT0}, 8")
    a(f"v_lshl_add_u32 v98, v{c_}, 4, s{sT1}")
    a(f"s_lshl_b32 s{sT1}, s{sT0}, 10")
    a(f"v_lshl_add_u32 v99, v{c_}, 11, s{sT1}")
    a(f"s_lshl_b32 s{sT1}, s{sT0}, 9")
    a(f"s_lshr_b32 s{sT2}, s{sWb}, 1")
    a(f"s_lshl_b32 s{sT2}, s{sT2}, 7")
    a(f"s_add_u32 s{sT1}, s{sT1}, s{sT2}")
    a(f"v_and_b32 v102, 7, v0")
    a(f"v_lshl_add_u32 v102, v102, 4, s{sT1}")

def xn_store_addr(a, vP):
    a(f"s_lshl_b32 s{sT1}, s{sT0}, 10")
    a(f"v_lshl_add_u32 v{vP}, v96, 4, s{sT1}")
    a(f"v_lshl_add_u32 v{vP}, v97, 11, v{vP}")

def ln_to_xn(a, X, T, R, P, vP):
    unpack(a, X, R, 16)
    layernorm(a, X, T)
    for g in range(4):
        for dj in range(4):
            half = dj & 1; jh = dj >> 1
            e = 4 * (g >> 1) + 2 * (g & 1) + jh
            a(f"v_cvt_pk_bf16_f32 v{P+4*g+dj}, v{X+8*half+e}, v{X+8*(2+half)+e}")
        a(f"buffer_store_dwordx4 {vr(P+4*g,4)}, v{vP}, {W}, s{sDst} offen offset:{g*256} sc1")

def ln0(a, cfg):
    sWb, sU = 61, 62
    vA, vP = 8, 12
    X, T, P, R = 16, 48, 128, 144
    a(f"s_cmp_eq_u32 s{sLAY}, 0")
    a("s_cbranch_scc1 L_ln0_done")
    a("v_and_b32 v0, 63, v0")
    a(f"v_mov_b32 v{vOne}, 1")
    a(f"s_lshl_b32 s{sU}, s{sMEMB}, 2")
    a(f"s_add_u32 s{sU}, s{sU}, s{sWAVE}")
    a(f"s_and_b32 s{sWb}, s{sU}, 7")
    a(f"s_lshr_b32 s{sU}, s{sU}, 3")
    rows_setup(a, sWb)
    xn_store_addr(a, vP)
    a(f"v_lshrrev_b32 v100, 1, v97")
    a(f"v_and_b32 v101, 1, v97")
    a(f"v_lshl_add_u32 v100, v100, 3, v101")
    a(f"v_lshl_add_u32 v{vA}, v100, 4, v99")
    set_srd(a, sIN, sX, 0x200000)
    a(f"s_lshl_b32 s{sT0}, s{sU}, 15")
    for k in range(4):
        if k: a(f"s_add_u32 s{sT0}, s{sT0}, {16 << 15}")
        for q in range(4):
            a(f"buffer_load_dwordx4 {vr(R+16*k+4*q,4)}, v{vA}, s[{sIN}:{sIN+3}], s{sT0} offen offset:{q*32}")
    trace(a, cfg, 2, None, vT)
    a(f"s_lshl_b32 s{sDst}, s{sU}, 15")
    a(f"s_add_u32 s{sDst}, s{sDst}, {OFF_XN:#x}")
    a(f"s_lshl_b32 s{sFl}, s{sU}, 11")
    a(f"s_lshl_b32 s{sT0}, s{sWb}, 2")
    a(f"s_add_u32 s{sFl}, s{sFl}, s{sT0}")
    a(f"s_mov_b32 s{sU}, 0")
    a("s_waitcnt vmcnt(0)")
    a(f"v_lshrrev_b32 v100, 1, v97")
    a(f"v_lshl_add_u32 v{vA}, v100, 12, v102")
    a.label("L_ln0_loop")
    a(f"s_sub_u32 s{sT0}, s{sDst}, {OFF_XN-OFF_XR:#x}")
    for q in range(4):
        a(f"buffer_store_dwordx4 {vr(R+4*q,4)}, v{vA}, {W}, s{sT0} offen offset:{q*1024} sc1")
    ln_to_xn(a, X, T, R, P, vP)
    for i in range(24): a(f"v_mov_b64 {vr(R+2*i,2)}, {vr(R+16+2*i,2)}")
    if not cfg.get("noinit"):
        lab = a.newlab("L_l0g")
        a(f"s_cmp_lg_u32 s{sU}, 0")
        a(f"s_cbranch_scc1 {lab}")
        wait_init(a, barrier=False)
        trace(a, cfg, 3, None, vT)
        a.label(lab)
    a("s_waitcnt vmcnt(0)")
    set_flag(a, vOne, sFl, F_XN)
    a(f"s_add_u32 s{sDst}, s{sDst}, {16 << 15}")
    a(f"s_add_u32 s{sFl}, s{sFl}, {16 << 11}")
    a(f"s_add_u32 s{sU}, s{sU}, 1")
    trace(a, cfg, 3, sU, vT)
    if cfg.get("ln0_late", False):
        lab = a.newlab("L_l0l")
        a(f"s_cmp_lg_u32 s{sU}, 1")
        a(f"s_cbranch_scc1 {lab}")
        late_start(a, cfg)
        a.label(lab)
    a(f"s_cmp_lt_u32 s{sU}, 4")
    a("s_cbranch_scc1 L_ln0_loop")
    a.label("L_ln0_done")

def role_rows(a, cfg):
    sWb, sIb, sLo = 61, 62, 63
    vA = 8
    vP = 12
    vP2 = 7
    vFx = 13
    c_, gi = 96, 97
    a.label("L_rows")
    common_start(a)
    a(f"s_sub_u32 s{sWb}, s{sMEMB}, 28")
    a(f"s_lshl_b32 s{sT1}, s{sWb}, 2")
    a(f"s_add_u32 s{sT1}, s{sT1}, s{sWAVE}")
    a(f"s_lshl_b32 s{sWb}, s{sWb}, 1")
    a(f"s_and_b32 s{sT0}, s{sWAVE}, 1")
    a(f"s_add_u32 s{sWb}, s{sWb}, s{sT0}")
    a(f"s_lshr_b32 s{sLo}, s{sWAVE}, 1")
    if cfg.get("split_rows", False):
        a(f"s_and_b32 s{sT0}, s{sT1}, 7")
        a(f"s_lshr_b32 s{sT1}, s{sT1}, 3")
        a(f"s_cmp_eq_u32 s{sLAY}, 0")
        a(f"s_cselect_b32 s{sWb}, s{sT0}, s{sWb}")
        a(f"s_cselect_b32 s{sLo}, s{sT1}, s{sLo}")
    rows_setup(a, sWb)
    a(f"s_cmp_eq_u32 s{sLo}, 1")
    a("s_cbranch_scc1 L_re")
    SelLo, SelHi = 104, 108
    X, T, P, R, RN = 16, 48, 128, 112, 192
    a(f"v_lshlrev_b32 v{vFo}, 2, v0")
    a(f"v_add_u32 v{vFo}, {F_PART}, v{vFo}")
    a(f"v_and_b32 v{vFx}, 7, v0")
    a(f"v_lshlrev_b32 v{vFx}, 2, v{vFx}")
    a("v_bfe_u32 v100, v0, 3, 1")
    a("v_lshl_add_u32 v102, v100, 10, v102")
    a("v_lshrrev_b32 v100, 4, v0")
    a(f"v_lshl_add_u32 v{vP2}, v100, 15, v102")
    a("v_bfe_u32 v100, v0, 4, 1")
    a("v_lshlrev_b32 v101, 12, v100")
    a("v_bfe_u32 v100, v0, 5, 1")
    a("v_lshl_add_u32 v101, v100, 11, v101")
    a(f"v_add_u32 v{vA}, v101, v102")
    a("v_bfe_u32 v100, v0, 2, 2")
    a("v_lshl_add_u32 v101, v100, 9, v101")
    a(f"v_add_u32 v{vP}, v101, v98")
    sel_consts(a, 0, 100, selLo=SelLo, selHi=SelHi)
    vCa, vCv, sCr = 9, 10, 76
    a(f"v_and_b32 v{vCa}, 15, v0")
    a(f"v_lshlrev_b32 v{vCa}, 2, v{vCa}")
    a(f"v_add_u32 v{vCa}, {F_X2}, v{vCa}")
    def res_loads(sg):
        a(f"s_lshl_b32 s{sT0}, s{sg}, 15")
        a(f"s_add_u32 s{sT0}, s{sT0}, {OFF_XR:#x}")
        for i in range(4):
            if i: a(f"s_add_u32 s{sT0}, s{sT0}, 8192")
            a(f"buffer_load_dwordx4 {vr(RN+4*i,4)}, v{vA}, {W}, s{sT0} offen sc1")
    def before():
        a(f"s_lshl_b32 s{sFl}, s{sSeg}, 11")
        poll_flags(a, vT, vFx, sFl, sleep=8)
        for _ in range(2):
            a(f"s_add_u32 s{sFl}, s{sFl}, 2048")
            poll_flags(a, vT, vFx, sFl, sleep=8)
        res_loads(sSeg)
        a("s_waitcnt vmcnt(0)")
    def swaps(r):
        return [f"v_permlane16_swap_b32 v{r+4*p+h}, v{r+4*p+2+h}" for p in range(4) for h in range(2)]
    def body(st, stamp):
        ring_off(a, sSrc, sSeg, R_PART)
        for x in swaps(RN): a(x)
        unpack(a, X, RN, 16)
        poll_flags(a, vT, vFo, sFl, sleep=CFG.get('psleep', 1))
        stamp("flag")
        trace(a, cfg, 0, sSeg, vT)
        for n in range(16):
            if n and n % 2 == 0: a(f"s_add_u32 s{sSrc}, s{sSrc}, 4096")
            a(f"buffer_load_dwordx4 {vr(P+4*n,4)}, v{vP2}, {W}, s{sSrc} offen offset:{(n%2)*2048} sc1")
        a(f"s_and_b32 s{sT0}, s{sSeg}, 63")
        a(f"s_cmp_ge_u32 s{sT0}, {RB_()}")
        a(f"s_cselect_b32 s{sCr}, {RB_()*2048+F_PART-F_X2}, 0")
        a(f"s_sub_u32 s{sCr}, s{sFl}, s{sCr}")
        a(f"s_add_u32 s{sCr}, s{sCr}, {F_PART-F_X2}")
        a(f"buffer_load_dword v{vCv}, v{vCa}, {W}, s{sCr} offen sc1")
        a(f"s_add_u32 s{sT0}, s{sSeg}, 1")
        res_loads(sT0)
        ring_off(a, sT2, sSeg, R_X1)
        a(f"s_add_u32 s{sDst}, s{sT2}, {R_XNB-R_X1:#x}")
        a(f"s_lshl_b32 s{sT0}, s{sWb}, 2")
        a(f"s_add_u32 s{sFl}, s{sFl}, s{sT0}")
        for n in range(16):
            a(f"s_waitcnt vmcnt({20-n})")
            mfma(a, X + 4 * (n // 2), (SelLo, SelHi)[n % 2], P + 4 * n, X + 4 * (n // 2))
            if n >= 5 and n % 2 == 1:
                i = (n - 5) // 2
                cvt(a, R + 2 * i, X + 4 * i); cvt(a, R + 2 * i + 1, X + 4 * i + 2)
        stamp("sum")
        lab = a.newlab("L_crok")
        a("s_waitcnt vmcnt(4)")
        a(f"v_cmp_eq_u32 vcc, 0, v{vCv}")
        a(f"s_cbranch_vccz {lab}")
        poll_flags(a, vCv, vCa, sCr, sleep=2)
        a.label(lab)
        for i in range(12, 16): cvt(a, R + i, X + 2 * i)
        for x in swaps(R): a(x)
        stores = []
        for i in range(4):
            stores.append((f"s_add_u32 s{sT2}, s{sT2}, 8192\n" if i else "") + f"buffer_store_dwordx4 {vr(R+4*i,4)}, v{vP}, {W}, s{sT2} offen{st}")
        layernorm(a, X, T, stores)
        for p in range(4):
            for i in range(4): cvt(a, P + 4 * p + i, X + 8 * p + 2 * i)
            for x in swaps(P)[2*p:2*p+2]: a(x)
            if p: a(f"s_add_u32 s{sDst}, s{sDst}, 8192")
            a(f"buffer_store_dwordx4 {vr(P+4*p,4)}, v{vP}, {W}, s{sDst} offen{st}")
        stamp("ln")
        a("s_waitcnt vmcnt(0)")
        set_flag(a, vOne, sFl, F_XNB, st)
    both_modes(a, "rb", body, cfg, before)
    a.label("L_re")
    a(f"v_and_b32 v{vFo}, 15, v0")
    a(f"v_lshlrev_b32 v{vFo}, 2, v{vFo}")
    a(f"v_add_u32 v{vFo}, {F_X2}, v{vFo}")
    xn_store_addr(a, vP)
    a(f"v_lshrrev_b32 v100, 1, v{gi}")
    a(f"v_lshl_add_u32 v{vA}, v100, 12, v102")
    touch_ring(a, cfg)
    a(f"s_cmp_eq_u32 s{sLAY}, 1")
    a("s_cbranch_scc1 L_exit")
    if not cfg.get("noinit"): wait_init(a)
    else: a("s_barrier")
    stamp = Stamps(a, cfg.get("stamp") == "re", base=4, only=cfg.get("only"))
    a.label("L_re_loop")
    stamp("top")
    a(f"s_lshl_b32 s{sFl}, s{sSeg}, 11")
    ring_off(a, sSrc, sSeg, R_X2)
    poll_flags(a, vT, vFo, sFl, sleep=CFG.get('psleep', 1))
    stamp("flag")
    trace(a, cfg, 0, sSeg, vT)
    for q in range(4):
        a(f"buffer_load_dwordx4 {vr(R+4*q,4)}, v{vA}, {W}, s{sSrc} offen offset:{q*1024} sc1")
    a(f"s_lshl_b32 s{sT0}, s{sSeg}, 15")
    a(f"s_add_u32 s{sDst}, s{sT0}, {OFF_XN+(64<<15):#x}")
    a(f"s_add_u32 s{sSrc}, s{sT0}, {OFF_X2R:#x}")
    a(f"s_lshl_b32 s{sT0}, s{sWb}, 2")
    a(f"s_add_u32 s{sFl}, s{sFl}, s{sT0}")
    a(f"s_add_u32 s{sFl}, s{sFl}, {64<<11}")
    a("s_waitcnt vmcnt(0)")
    stamp("ld")
    for q in range(0 if cfg.get("rd_copy", True) else 4):
        a(f"buffer_store_dwordx4 {vr(R+4*q,4)}, v{vA}, {W}, s{sSrc} offen offset:{q*1024} sc1")
    ln_to_xn(a, X, T, R, P, vP)
    stamp("ln")
    a("s_waitcnt vmcnt(0)")
    set_flag(a, vOne, sFl, F_XN)
    trace(a, cfg, 1, sSeg, vT)
    stamp("end")
    if stamp.on:
        lab = a.newlab("L_nost")
        a(f"s_and_b32 s{sT0}, s{sSeg}, 63")
        a(f"s_cmp_lg_u32 s{sT0}, {cfg.get('stamp_step', 20)}")
        a(f"s_cbranch_scc1 {lab}")
        def row():
            a(f"s_lshl_b32 s{sT0}, s{sGRP}, 7")
            a(f"s_lshl_b32 s{sT1}, s{sMEMB}, 2")
            a(f"s_add_u32 s{sT0}, s{sT0}, s{sT1}")
            a(f"s_add_u32 s{sT0}, s{sT0}, s{sWAVE}")
        dump_stamps(a, stamp, cfg, row)
        a.label(lab)
    a(f"s_add_u32 s{sSeg}, s{sSeg}, 1")
    a(f"s_cmp_lt_u32 s{sSeg}, s{sEnd}")
    a("s_cbranch_scc1 L_re_loop")
    a("s_waitcnt vmcnt(0)")
    a("s_branch L_done")

def role_wo(a, cfg):
    CFG.clear(); CFG.update(cfg)
    a.label("L_wo")
    ln0(a, cfg)
    a(f"s_cmp_lt_u32 s{sMEMB}, 16")
    a("s_cbranch_scc1 L_ra")
    a(f"s_cmp_lt_u32 s{sMEMB}, 24")
    a("s_cbranch_scc1 L_rc")
    a(f"s_cmp_lt_u32 s{sMEMB}, 28")
    a("s_cbranch_scc1 L_rd")
    a("s_branch L_rows")
    role_ra(a, cfg); role_rc(a, cfg); role_rd(a, cfg); role_rows(a, cfg)
```

```python
import sys
from gen_common import *
from gen_chain import chain

HEADER = open('interleave_layers__memory_aug_recurrent_mem_tr__sliding_local_dilated__prompt.s.ref').read().split("; Override launch")[0]

GMAP = [("chain",0,0),("wa",0,0),("chain",1,0),("wa",1,0),("wa",0,1),("wo",0,0),("wa",1,1),("wo",1,0)]
WARM = [3, 6]

def generate(cfg):
    a = Asm()
    TRC.clear(); TRC.update(cfg)
    roles = cfg.get("roles", {"chain", "wa", "wo"})
    a("s_cmp_ge_u32 s2, 256")
    a("s_cbranch_scc1 L_exit")
    a("s_load_dwordx16 s[4:19], s[0:1], 0")
    a("s_load_dwordx8 s[20:27], s[0:1], 64")
    a("s_load_dwordx2 s[28:29], s[0:1], 96")
    a(f"s_getreg_b32 s{sGRP}, hwreg(HW_REG_XCC_ID, 0, 4)")
    a("v_lshrrev_b32 v1, 6, v0")
    a(f"v_readfirstlane_b32 s{sWAVE}, v1")
    a(f"s_mov_b32 s{sLOCAL}, 1")
    a("s_mov_b32 s31, 0")
    if cfg.get("count_redo") or cfg.get("hold_us"): a("s_memrealtime s[100:101]")
    a("s_waitcnt lgkmcnt(0)")
    set_srd(a, sWS, sWSP, WS_BYTES)
    a(f"s_cmp_lg_u32 s{sWAVE}, 0")
    a("s_cbranch_scc1 L_notw0")
    if cfg.get("scramble"):
        a(f"s_lshr_b32 s{sGRP}, s2, {cfg['scramble']}")
        a(f"s_and_b32 s{sGRP}, s{sGRP}, {cfg.get('scramble_mask', 7)}")
    a(f"s_mov_b32 s{sMEMB}, 1")
    a(f"s_lshl_b32 s{sT0}, s{sGRP}, 3")
    a(f"s_cmp_gt_u32 s{sGRP}, 7")
    a(f"s_cselect_b32 s{sT0}, 4, s{sT0}")
    a(f"s_atomic_add s{sMEMB}, s[{sDBG}:{sDBG+1}], s{sT0} glc")
    a("s_waitcnt lgkmcnt(0)")
    a(f"s_cmp_gt_u32 s{sGRP}, 7")
    a(f"s_cselect_b32 s{sMEMB}, 32, s{sMEMB}")
    a(f"s_cmp_lt_u32 s{sMEMB}, 32")
    a("s_cbranch_scc1 L_haverole")
    count_tickets(a)
    a(f"s_mov_b32 s{sT1}, 1")
    a(f"s_atomic_add s{sT1}, s[{sDBG}:{sDBG+1}], 0xc glc")
    a("s_waitcnt lgkmcnt(0)")
    for g in range(8):
        a(f"s_mov_b32 s{sGRP}, {g}")
        a(f"s_min_u32 s{sFV}, s{72+2*g}, 32")
        a(f"s_add_u32 s{sMEMB}, s{sFV}, s{sT1}")
        a(f"s_cmp_lt_u32 s{sMEMB}, 32")
        a("s_cbranch_scc1 L_haverole")
        a(f"s_sub_u32 s{sT1}, s{sMEMB}, 32")
    a(f"s_mov_b32 s{sGRP}, 8")
    a.label("L_haverole")
    a(f"s_lshl_b32 s{sT0}, s{sGRP}, 8")
    a(f"s_or_b32 s{sT0}, s{sT0}, s{sMEMB}")
    a(f"v_mov_b32 v1, s{sT0}")
    a("v_mov_b32 v2, 0x27ff0")
    a("ds_write_b32 v2, v1")
    a("s_waitcnt lgkmcnt(0)")
    a("s_branch L_bar0")
    a.label("L_notw0")
    if cfg.get("warm0"):
        a(f"s_cmp_lt_u32 s{sWAVE}, 2")
        a("s_cbranch_scc1 L_nowarm0")
        a("v_and_b32 v1, 127, v0")
        a("v_lshlrev_b32 v1, 4, v1")
        n = 0
        for ptr in [dict(k=sWK, v=sWV, o=sWO, q=sWQ)[x] for x in cfg["warm0"]]:
            set_srd(a, sWT, ptr, 0x400000)
            a(f"s_lshl_b32 s{sT0}, s2, 11")
            for i in range(8):
                if i: a(f"s_add_u32 s{sT0}, s{sT0}, {1 << 19}")
                a(f"buffer_load_dwordx4 {ar(n*4,4)}, v1, s[{sWT}:{sWT+3}], s{sT0} offen")
                n += 1
        a("s_branch L_bar0")
        a.label("L_nowarm0")
    if not cfg.get("nocodepf"):
        a(f"s_cmp_lg_u32 s{sWAVE}, 1")
        a("s_cbranch_scc1 L_bar0")
        a("s_getpc_b64 s[64:65]")
        a.label("L_pcref")
        a(f"s_lshr_b32 s{sT0}, s2, 3")
        a(f"s_lshl_b32 s{sT0}, s{sT0}, 12")
        a("v_and_b32 v1, 63, v0")
        a(f"v_lshl_add_u32 v1, v1, 6, s{sT0}")
        a("v_min_u32 v1, L_codeend-L_pcref-4, v1")
        a("global_load_dword v255, v1, s[64:65]")
    a.label("L_bar0")
    a("s_barrier")
    a("v_mov_b32 v2, 0x27ff0")
    a("ds_read_b32 v1, v2")
    a("s_waitcnt lgkmcnt(0)")
    a(f"v_readfirstlane_b32 s{sT0}, v1")
    a("s_barrier")
    a(f"s_and_b32 s{sMEMB}, s{sT0}, 31")
    a(f"s_lshr_b32 s{sGRP}, s{sT0}, 8")
    a(f"s_cmp_gt_u32 s{sGRP}, 7")
    a("s_cbranch_scc1 L_exit")
    trace_setup(a, cfg)
    trace(a, cfg, 7, None, 1)
    gmap = cfg.get("gmap", GMAP)
    for g, (role, lay, par) in enumerate(gmap):
        if role not in roles: continue
        lab = a.newlab("L_ng")
        a(f"s_cmp_lg_u32 s{sGRP}, {g}")
        a(f"s_cbranch_scc1 {lab}")
        a(f"s_mov_b32 s{sLAY}, {lay}")
        a(f"s_mov_b32 s{sT3}, {par}")
        warm = cfg.get("warm", WARM)
        initg = cfg.get("initg", [x for x in range(len(gmap)) if gmap[x] in (("chain", 1, 0), ("wa", 1, 1))])
        if g in initg and not cfg.get("noinit"):
            assert len(initg) == 2
            a(f"s_mov_b32 s{sT2}, {initg.index(g)}")
            a(f"s_getpc_b64 s[98:99]")
            a(f"s_branch L_init")
        if g in warm: warm_weights(a, cfg, warm.index(g), len(warm))
        a(f"s_branch L_{role}")
        a.label(lab)
    a.label("L_done")
    trace(a, cfg, 8, None, 1)
    if cfg.get("wb"):
        a(f"s_or_b32 s{sT0}, s{sWAVE}, s{sMEMB}")
        a("s_cbranch_scc1 L_nowb")
        a("buffer_wbl2 sc1")
        a("s_waitcnt vmcnt(0)")
        a.label("L_nowb")
    if cfg.get("hold_us"):
        a.label("L_hold")
        a("s_memrealtime s[70:71]")
        a("s_waitcnt lgkmcnt(0)")
        a("s_sub_u32 s70, s70, s100")
        a(f"s_cmp_lt_u32 s70, {cfg['hold_us']*100}")
        a("s_cbranch_scc1 L_hold")
    a.label("L_exit")
    a("s_endpgm")
    if not cfg.get("noinit"):
        a.label("L_init")
        a(f"s_lshl_b32 s{sT2}, s{sT2}, 5")
        a(f"s_add_u32 s{sT2}, s{sT2}, s{sMEMB}")
        a("v_lshlrev_b32 v1, 4, v0")
        for i in range(4): a(f"v_mov_b32 v{4+i}, 0")
        a(f"s_lshl_b32 s{sT1}, s{sT2}, 12")
        a(f"buffer_store_dwordx4 v[4:7], v1, s[{sWS}:{sWS+3}], s{sT1} offen sc1")
        for i in range(4): a(f"v_mov_b32 v{8+i}, -1")
        a(f"s_mul_i32 s{sT1}, s{sT2}, {cfg.get('ninit', 23)*4096}")
        a(f"s_add_u32 s{sT1}, s{sT1}, {OFF_MEM:#x}")
        for i in range(cfg.get('ninit', 23)):
            if i: a(f"s_add_u32 s{sT1}, s{sT1}, 4096")
            a(f"buffer_store_dwordx4 v[8:11], v1, s[{sWS}:{sWS+3}], s{sT1} offen sc1")
        a("s_waitcnt vmcnt(0)")
        a("s_barrier")
        a(f"s_cmp_lg_u32 s{sWAVE}, 0")
        a("s_cbranch_scc1 L_init_done")
        a(f"s_mov_b32 s{sT1}, 1")
        a(f"s_atomic_add s{sT1}, s[{sDBG}:{sDBG+1}], 0x14 glc")
        a("s_waitcnt lgkmcnt(0)")
        a(f"s_cmp_lg_u32 s{sT1}, 63")
        a("s_cbranch_scc1 L_init_done")
        count_tickets(a)
        a(f"s_mov_b32 s{sT1}, 0x100")
        for g in range(8):
            a(f"s_cmp_ge_u32 s{72+2*g}, 32")
            a(f"s_cselect_b32 s{sT0}, {1 << g}, 0")
            a(f"s_or_b32 s{sT1}, s{sT1}, s{sT0}")
        a(f"v_mov_b32 v4, s{sT1}")
        a("v_mov_b32 v5, 0")
        a("s_mov_b64 exec, 1")
        a(f"global_store_dword v5, v4, s[{sDBG}:{sDBG+1}] offset:128 sc1")
        a("s_mov_b64 exec, -1")
        a.label("L_init_done")
        a("s_add_u32 s98, s98, 4")
        a("s_addc_u32 s99, s99, 0")
        a("s_setpc_b64 s[98:99]")
    if "chain" in roles:
        if cfg.get("v2"):
            from gen_chain_v2 import chain as ch
        else: ch = chain
        ch(a, True, cfg)
        ch(a, False, cfg)
    if "wa" in roles:
        if cfg.get("wa1"): from gen_wa_v1 import role_wa
        else: from gen_wa import role_wa
        role_wa(a, cfg)
    if "wo" in roles:
        from gen_wo import role_wo
        role_wo(a, cfg)
    a.label("L_codeend")
    a("s_endpgm")
    if cfg.get("drop"):
        a.ins = [x if not x.text.startswith(cfg["drop"]) else Ins("s_nop 2") for x in a.ins]
    nn = a.fix_hazards(verbose=cfg.get("verbose", False), timed=cfg.get("timed", True))
    if cfg.get("align", True):
        fx = align8(a)
        if cfg.get("verbose"): print("align", fx)
    errs = a.check_waits() + check_ptrs(a)
    for e in errs[:20]: print("WAITERR", e)
    body = a.text()
    txt = HEADER + f"""; @launch grid=(256,1,1) block=(256,1,1) lds=163840
.amdgcn_target "amdgcn-amd-amdhsa--gfx950"
.text
.globl {KNAME}
.p2align 8
.type {KNAME},@function
{KNAME}:
{body}.section .rodata,"a"
.p2align 6
.amdhsa_kernel {KNAME}
  .amdhsa_next_free_vgpr 512
  .amdhsa_next_free_sgpr 102
  .amdhsa_accum_offset 256
  .amdhsa_group_segment_fixed_size 0
  .amdhsa_kernarg_size 104
  .amdhsa_user_sgpr_count 2
  .amdhsa_user_sgpr_kernarg_segment_ptr 1
  .amdhsa_system_sgpr_workgroup_id_x 1
  .amdhsa_float_denorm_mode_32 3
.end_amdhsa_kernel
"""
    return txt, nn, errs

if __name__ == "__main__":
    cfg = eval(sys.argv[2]) if len(sys.argv) > 2 else {}
    txt, nn, errs = generate(cfg)
    open(sys.argv[1], "w").write(txt)
    print("nops", nn, "bytes", len(txt), "errs", len(errs))
```

```python
from gen_common import *

def chain(a, local, cfg):
    st = "" if local else " sc1"
    tag = "L" if local else "G"
    stamp = Stamps(a, cfg.get("stamp") == "chain" and local, only=cfg.get("only"))
    vL16, vIdx, vLdsW, vSwx, vSwm, vSrx, vSrm, vOw, vOr, vX1s, vX1l, vX2s = range(1, 13)
    vR, vOnes, vT = 13, 14, 15
    vAw = 0
    sKVb, sKT, sLim, sKVc, sLate = 93, 95, 63, 66, 67
    SelT, VACC, SelM = 16, 20, 28
    q0, k0, q1, k1 = 32, 36, 40, 44
    Kx, Vx, RING, A, WO = 48, 56, 64, 96, 128
    WK, WV = 256, 384
    sStep, sTag, sX2st, sX2re, sMemOff, sKV, sX1a, sX1b, sC = 55, 56, 57, 58, 59, 60, 61, 62, 96
    sMaskHi = 64
    sLds, sRot = 66, 67
    sX2l = 92
    AST, KVL, SX, SM, SJ, OA, CST = 0x20000, 0x22000, 0x27000, 0x27800, 0x27f00, 0x26000, 0x27a00
    sKVL = 94
    lane = 0
    if cfg.get("chain_prologue_done") is None:
        cfg["chain_prologue_done"] = True
        a.label("L_chain")
        a(f"v_and_b32 v0, 63, v0")
        a(f"v_lshlrev_b32 v{vL16}, 4, v0")
        a(f"s_lshl_b32 s{sLds}, s{sWAVE}, 15")
        a(f"s_lshl_b32 s{sRot}, s{sWAVE}, 1")
        vD, vTR, vDo, vTRo = 32, 33, 34, 35
        sL2, sL3 = 70, 71
        vD1, vTR1, sLq = 38, 39, 72
        coop_addrs(a, vD, vD1, vTR, vTR1, vT)
        a(f"s_lshl_b32 s{sLq}, s{sWAVE}, 12")
        a(f"v_lshrrev_b32 v{vDo}, 3, v0")
        a(f"v_lshlrev_b32 v{vDo}, 10, v{vDo}")
        a(f"v_and_b32 v{vT}, 7, v0")
        a(f"v_lshl_add_u32 v{vDo}, v{vT}, 4, v{vDo}")
        a(f"v_bfe_u32 v{vT}, v0, 4, 1")
        a(f"v_lshlrev_b32 v{vTRo}, 11, v{vT}")
        a(f"v_bfe_u32 v{vT}, v0, 5, 1")
        a(f"v_lshl_add_u32 v{vTRo}, v{vT}, 9, v{vTRo}")
        a(f"v_bfe_u32 v{vT}, v0, 2, 1")
        a(f"v_lshl_add_u32 v{vTRo}, v{vT}, 7, v{vTRo}")
        a(f"v_bfe_u32 v{vT}, v0, 3, 1")
        a(f"v_lshl_add_u32 v{vTRo}, v{vT}, 5, v{vTRo}")
        a(f"v_and_b32 v{vT}, 3, v0")
        a(f"v_lshl_add_u32 v{vTRo}, v{vT}, 3, v{vTRo}")
        a(f"v_add_u32 v{vTRo}, s{sLq}, v{vTRo}")
        a(f"s_add_u32 s{sT0}, s{sLds}, s{sLq}")
        a(f"v_add_u32 v{vLdsW}, s{sT0}, v{vL16}")
        a(f"s_lshl_b32 s{sL2}, s{sMEMB}, 8")
        a(f"s_lshl_b32 s{sT1}, s{sWAVE}, 15")
        a(f"s_add_u32 s{sL2}, s{sL2}, s{sT1}")
        a(f"s_lshl_b32 s{sL3}, s{sMEMB}, 17")
        a(f"s_lshl_b32 s{sT1}, s{sWAVE}, 8")
        a(f"s_add_u32 s{sL3}, s{sL3}, s{sT1}")
        late_start(a, cfg)
        stages = []
        for ptr, base in ((sWK, WK), (sWV, WV)):
            for J in range(8):
                def consume(slot, J=J, base=base):
                    end = a.newlab("L_cw")
                    for w in range(4):
                        nxt = a.newlab("L_cw")
                        if w < 3:
                            a(f"s_cmp_lg_u32 s{sWAVE}, {w}")
                            a(f"s_cbranch_scc1 {nxt}")
                        jj = J ^ (2 * w)
                        coop_reads(a, slot, vTR, vTR1, 40, base + jj * 16, base + jj * 16 + 8)
                        if w < 3:
                            a(f"s_branch {end}")
                            a.label(nxt)
                    a.label(end)
                stages.append(dict(issue=lambda slot, ptr=ptr, J=J: coop_issue(a, ptr, J, slot, sL2, vD, vD1, sLq), consume=consume))
        for wp in range(4):
            for ap in range(2):
                def issue(slot, wp=wp, ap=ap):
                    if wp == 0 and ap == 0: set_srd(a, sWT, sWO, 0x400000)
                    a(f"s_add_u32 m0, s{sLq}, {slot*16384}")
                    a(f"s_xor_b32 s{sT0}, s{sWAVE}, {wp}")
                    a(f"s_lshl_b32 s{sT0}, s{sT0}, 15")
                    a(f"s_add_u32 s{sT0}, s{sT0}, s{sL3}")
                    if ap: a(f"s_add_u32 s{sT0}, s{sT0}, {ap*128}")
                    for q in range(4):
                        if q: a(f"s_add_u32 s{sT0}, s{sT0}, {8192-1024}")
                        a(f"buffer_load_dwordx4 v{vDo}, s[{sWT}:{sWT+3}], s{sT0} offen offset:{q*1024}{' nt' if '14c' in cfg.get('ntw', ()) else ''} lds")
                def consume(slot, wp=wp, ap=ap):
                    va = vTRo
                    if slot >= 4:
                        a(f"v_add_u32 v40, 0x10000, v{vTRo}"); va = 40
                    for a1 in range(2):
                        dst = WO + ((2 * ap + a1) * 4 + wp) * 8
                        for e4 in range(4):
                            off = (slot & 3) * 16384 + (8 * (e4 >> 1) + 2 * (e4 & 1)) * 128 + a1 * 64
                            a(f"ds_read_b64_tr_b16 {vr(dst+2*e4,2)}, v{va} offset:{off}")
                stages.append(dict(issue=issue, consume=consume))
        for J in range(8):
            tmp = RING + 16 * (J & 1)
            def post(slot, tmp=tmp):
                a(f"s_add_u32 s{sT0}, s{sLq}, {slot*16384}")
                a(f"v_add_u32 v40, s{sT0}, v{vL16}")
                for i in range(4):
                    a(f"ds_write_b128 v40, {vr(tmp+4*i,4)} offset:{i*1024}")
            stages.append(dict(issue=lambda slot, J=J: coop_issue(a, sWQ, J, slot, sL2, vD, vD1, sLq),
                               consume=lambda slot, tmp=tmp: coop_reads(a, slot, vTR, vTR1, 40, tmp, tmp + 8), post=post))
        co = cfg.get("ch_ord", "kvo")
        parts = {"k": stages[0:8], "v": stages[8:16], "o": stages[16:24]}
        stages = parts[co[0]] + parts[co[1]] + parts[co[2]] + stages[24:]
        def setup_rest():
            sel_consts(a, lane, 96, selM=SelM, selLo=112, selHi=116, selT=SelT)
            smf_index(a, lane, vIdx, 96)
            n_, g_, q_ = 96, 97, 98
            a(f"v_and_b32 v{n_}, 15, v0")
            a(f"v_lshrrev_b32 v{g_}, 4, v0")
            a(f"v_and_b32 v{q_}, 7, v0")
            a(f"s_mov_b32 s{sMaskHi}, 0xff00ff00")
            a(f"s_mov_b32 s{sMaskHi+1}, 0xff00ff00")
            a(f"v_lshlrev_b32 v99, 3, v{q_}")
            a(f"v_and_b32 v{vT}, 1, v{g_}")
            a(f"v_lshl_add_u32 v99, v{vT}, 6, v99")
            a(f"v_add_u32 v99, {SJ}, v99")
            a(f"v_lshrrev_b32 v{vT}, 1, v{g_}")
            a(f"v_lshlrev_b32 v{vSwx}, 8, v{vT}")
            a(f"v_lshl_add_u32 v{vSwx}, v{q_}, 4, v{vSwx}")
            a(f"v_and_b32 v{vT}, 1, v{g_}")
            a(f"v_lshl_add_u32 v{vSwx}, v{vT}, 3, v{vSwx}")
            a(f"s_lshl_b32 s{sT0}, s{sWAVE}, 9")
            a(f"s_add_u32 s{sT1}, s{sT0}, {SX}")
            a(f"v_add_u32 v{vSwx}, s{sT1}, v{vSwx}")
            a(f"v_cndmask_b32 v{vSwx}, v{vSwx}, v99, s[{sMaskHi}:{sMaskHi+1}]")
            a(f"v_lshlrev_b32 v{vSwm}, 4, v{q_}")
            a(f"v_lshl_add_u32 v{vSwm}, v{vT}, 3, v{vSwm}")
            a(f"s_lshl_b32 s{sT1}, s{sWAVE}, 7")
            a(f"s_add_u32 s{sT1}, s{sT1}, {SM}")
            a(f"v_add_u32 v{vSwm}, s{sT1}, v{vSwm}")
            a(f"s_mov_b32 s98, 0")
            a(f"s_mov_b32 s99, 0x00ff00ff")
            a(f"v_cndmask_b32 v{vSwm}, v99, v{vSwm}, s[98:99]")
            a(f"v_lshlrev_b32 v{vSrx}, 9, v{g_}")
            a(f"v_lshl_add_u32 v{vSrx}, v{n_}, 4, v{vSrx}")
            a(f"v_add_u32 v{vSrx}, {SX}, v{vSrx}")
            a(f"v_lshlrev_b32 v{vSrm}, 7, v{g_}")
            a(f"v_lshl_add_u32 v{vSrm}, v{q_}, 4, v{vSrm}")
            a(f"v_add_u32 v{vSrm}, {SM}, v{vSrm}")
            a(f"s_lshl_b32 s{sT1}, s{sWAVE}, 9")
            a(f"s_add_u32 s{sT1}, s{sT1}, {OA-SM}")
            a(f"v_bfe_u32 v{vT}, v0, 3, 1")
            a(f"v_lshl_add_u32 v{vOw}, v{vT}, 3, v{vSrm}")
            a(f"v_add_u32 v{vOw}, s{sT1}, v{vOw}")
            a(f"v_and_b32 v{vOr}, 0xf0, v{vL16}")
            a(f"v_add_u32 v{vOr}, {CST}, v{vOr}")
            a(f"v_lshrrev_b32 v{vT}, 2, v{n_}")
            a(f"v_lshl_add_u32 v{vT}, v{vT}, 2, v{g_}")
            a(f"v_lshlrev_b32 v{vX1s}, 11, v{vT}")
            a(f"v_and_b32 v{vT}, 3, v0")
            a(f"v_lshl_add_u32 v{vX1s}, v{vT}, 4, v{vX1s}")
            a(f"s_lshl_b32 s{sT0}, s{sWAVE}, 16")
            a(f"s_lshl_b32 s{sT1}, s{sMEMB}, 6")
            a(f"s_add_u32 s{sT0}, s{sT0}, s{sT1}")
            a(f"v_add_u32 v{vX1s}, s{sT0}, v{vX1s}")
            a(f"s_lshl_b32 s{sT2}, s{sMEMB}, 2")
            a(f"s_add_u32 s{sT2}, s{sT2}, s{sWAVE}")
            a(f"s_lshl_b32 s{sT0}, s{sT2}, 11")
            a(f"v_add_u32 v{vX1l}, s{sT0}, v{vL16}")
            a(f"v_lshlrev_b32 v{vX2s}, 4, v{g_}")
            a(f"v_lshl_add_u32 v{vX2s}, v{n_}, 2, v{vX2s}")
            a(f"s_lshl_b32 s{sT0}, s{sT2}, 6")
            a(f"v_add_u32 v{vX2s}, s{sT0}, v{vX2s}")
            a(f"v_mov_b32 v{vT}, {OOB:#x}")
            a(f"v_cmp_gt_u32 vcc, 4, v{n_}")
            a(f"v_cndmask_b32 v{vX2s}, v{vT}, v{vX2s}, vcc")
            a(f"v_and_b32 v100, 3, v0")
            a(f"v_lshlrev_b32 v100, 1, v100")
            a(f"v_lshl_add_u32 v100, v{g_}, 10, v100")
            a(f"v_and_b32 v104, 3, v0")
            a(f"v_bfe_u32 v105, v0, 2, 2")
            a(f"v_lshl_add_u32 v104, v104, 2, v105")
            a(f"v_and_b32 v105, 1, v104")
            a(f"v_lshlrev_b32 v105, 4, v105")
            a(f"v_mov_b32 v106, 0x3f80")
            a(f"v_lshlrev_b32 v105, v105, v106")
            a(f"v_lshrrev_b32 v104, 1, v104")
            for e in range(4):
                a(f"v_cmp_eq_u32 vcc, {e}, v104")
                a(f"v_cndmask_b32 v{108+e}, 0, v105, vcc")
            a(f"v_and_b32 v104, 0xf0, v{vL16}")
            a(f"v_add_u32 v104, {CST}, v104")
            a(f"ds_write_b128 v104, v[108:111]")
            a(f"ds_write_b128 v104, v[112:115] offset:256")
            a(f"ds_write_b128 v104, v[116:119] offset:512")
            for e in range(4): a(f"v_mov_b32 v{120+e}, 0x3f803f80")
            for e in range(4): a(f"v_mov_b32 v{124+e}, 0x3f003f00")
            a(f"ds_write_b128 v104, v[120:123] offset:768")
            a(f"ds_write_b128 v104, v[124:127] offset:1024")
            a(f"s_and_b32 s{sT0}, s{sT2}, 1")
            a(f"s_lshl_b32 s{sT0}, s{sT0}, 12")
            a(f"s_lshr_b32 s{sT1}, s{sT2}, 4")
            a(f"s_lshl_b32 s{sT1}, s{sT1}, 7")
            a(f"s_add_u32 s{sT0}, s{sT0}, s{sT1}")
            a(f"s_bfe_u32 s{sT1}, s{sT2}, 0x10001")
            a(f"s_lshl_b32 s{sT1}, s{sT1}, 5")
            a(f"s_add_u32 s{sT0}, s{sT0}, s{sT1}")
            a(f"s_bfe_u32 s{sT1}, s{sT2}, 0x20002")
            a(f"s_lshl_b32 s{sT1}, s{sT1}, 3")
            a(f"s_add_u32 s{sT0}, s{sT0}, s{sT1}")
            set_srd(a, sIN, sMEM0, 8192)
            a(f"buffer_load_ushort v36, v100, s[{sIN}:{sIN+3}], s{sT0} offen")
            a(f"buffer_load_ushort v37, v100, s[{sIN}:{sIN+3}], s{sT0} offen offset:64")
            a(f"s_mov_b32 s{sStep}, 0")
            a(f"s_mov_b32 s{sTag}, 0")
            a(f"s_lshl_b32 s{sT0}, s{sLAY}, 14")
            a(f"s_add_u32 s{sX2st}, s{sT0}, {OFF_X2:#x}")
            a(f"s_add_u32 s{sX2re}, s{sX2st}, 8192")
            a(f"s_lshl_b32 s{sT0}, s{sWAVE}, 11")
            a(f"s_add_u32 s{sX2l}, s{sT0}, s{sX2st}")
            a(f"s_add_u32 s{sT0}, s{sT0}, {AST}")
            a(f"v_add_u32 v{vAw}, s{sT0}, v{vL16}")
            a(f"s_lshl_b32 s{sT0}, s{sLAY}, 19")
            a(f"s_add_u32 s{sMemOff}, s{sT0}, {OFF_MEM:#x}")
            a(f"s_lshl_b32 s{sT0}, s{sLAY}, 18")
            a(f"s_add_u32 s{sX1a}, s{sT0}, {OFF_X1:#x}")
            a(f"s_add_u32 s{sX1b}, s{sX1a}, 32768")
            a(f"s_lshl_b32 s{sT0}, s{sLAY}, 21")
            a(f"s_lshl_b32 s{sT1}, s{sT2}, 12")
            a(f"s_add_u32 s{sT0}, s{sT0}, s{sT1}")
            a(f"s_add_u32 s{sKVb}, s{sT0}, {OFF_KVR:#x}")
            a(f"s_mov_b32 s{sKV}, s{sKVb}")
            a(f"s_mov_b32 s{sC}, {fbits(128**-0.5*1.4426950408889634):#x}")
            a(f"s_mov_b32 s{sC+1}, s{sC}")
            a(f"s_mov_b32 s{sLim}, {fbits(cfg.get('lim', 48.0) / (128**-0.5*1.4426950408889634)):#x}")
        load_stages(a, stages, meanwhile=setup_rest,
                    hooks=None if cfg.get("noinit") else {25: lambda: go_load(a)})
        trace(a, cfg, 6, None, vT)
        if not cfg.get("noinit"): wait_init(a, sampled=True, barrier=False)
        late_signal(a, cfg)
        a(f"v_lshl_or_b32 v{vR}, v37, 16, v36")
        a(f"v_min_u32 v{vR}, -2, v{vR}")
        for i in range(8):
            a(f"ds_read_b128 {vr(RING+4*i,4)}, v{vLdsW} offset:{(i>>2)*16384+(i&3)*1024}")
        a(f"v_mov_b32 v{vOnes}, -1")
        for f in range(4): a(f"v_mov_b32 v{Kx+4*f}, -1")
        for i in range(4): a(f"v_mov_b64 {vr(VACC+2*i,2)}, 0")
        if cfg.get("nokvcheck"):
            for f in range(16): a(f"v_mov_b32 v{Kx+f}, 0")
        a(f"s_lshl_b32 s{sKVL}, s{sWAVE}, 12")
        a(f"s_add_u32 s{sKVL}, s{sKVL}, {KVL}")
        a(f"s_mov_b32 m0, s{sKVL}")
        a(f"v_add_u32 v{vT}, s{sKVL}, v{vL16}")
        for f in range(4): a(f"v_mov_b32 v{40+f}, {0 if cfg.get('nokvcheck') else -1}")
        for f in range(4): a(f"ds_write_b128 v{vT}, v[40:43] offset:{f*1024}")
        a("s_waitcnt vmcnt(0) lgkmcnt(0)")
        if cfg.get("count_redo"):
            a("s_memrealtime s[70:71]")
            a("s_memtime s[98:99]")
            a("s_waitcnt lgkmcnt(0)")
            a("s_sub_u32 s101, s70, s100")
            a("s_mov_b32 s100, s70")
        if cfg.get("force_global"):
            a("s_branch L_chain_entryG")
        else:
            a(f"s_cmp_eq_u32 s{sLOCAL}, 0")
            a("s_cbranch_scc1 L_chain_entryG")
    W = f"s[{sWS}:{sWS+3}]"
    vC = vOr
    pl = cfg.get("pollmod", "sc1") if local else "sc1"
    if local: st = cfg.get("stmod", "")
    vq = [(t, jj) for jj in range(8) for t in range(2)]
    vacc = (VACC, VACC + 4)
    def smf(acc, x, w): a(f"v_smfmac_f32_16x16x64_bf16 {vr(acc,4)}, {vr(x,4)}, {xr(w,8)}, v{vIdx}")
    def fill_v(n):
        for _ in range(n):
            t, jj = vq.pop(0)
            smf(vacc[t], A + 4 * jj, WV + jj * 16 + t * 8)
    def pad(n):
        k = cfg.get("padkind", "nop")
        if k == "mov":
            for _ in range(n): a(f"v_mov_b32 v{vT}, 0")
        elif k == "nop":
            while n > 0:
                a(f"s_nop {min(n,16)-1}"); n -= 16
        elif k == "mfma":
            for i in range(n // 4): a(f"v_mfma_f32_16x16x32_bf16 v[108:111], {xr(WK+(i%16)*4,4)}, {xr(WV+(i%16)*4,4)}, 0 ; nochk")
    cvt = lambda d, s: a(f"v_cvt_pk_bf16_f32 v{d}, v{s}, v{s+1}")
    mfma = lambda d, x, y, c: a(f"v_mfma_f32_16x16x32_bf16 {vr(d,4)}, {vr(x,4)}, {vr(y,4)}, {vr(c,4) if c is not None else 0}")
    mfma16 = lambda d, x, y, c: a(f"v_mfma_f32_16x16x16_bf16 {vr(d,4)}, {vr(x,2)}, {vr(y,2)}, {vr(c,4) if c is not None else 0}")
    def kv_check():
        a(f"v_bitop3_b32 v{vT}, v{Kx}, v{Kx+4}, s{sKT} bitop3:0x7e")
        a(f"v_bitop3_b32 v120, v{Kx+8}, v{Kx+12}, s{sKT} bitop3:0x7e")
        a(f"v_or_b32 v{vT}, v{vT}, v120")
        a(f"v_and_b32 v{vT}, 1, v{vT}")
        a(f"v_cmp_ne_u32 vcc, 0, v{vT}")
    def x2_issue(r):
        a(f"buffer_load_dwordx4 {vr(r,4)}, v{vL16}, {W}, s{sX2l} offen {pl}")
        a(f"buffer_load_dwordx4 {vr(r+4,4)}, v{vL16}, {W}, s{sX2l} offen offset:1024 {pl}")
    def x2_check(r, n):
        a(f"s_waitcnt vmcnt({n+1})")
        smf(k0, r, WK)
        a(f"v_max3_u32 v{vT}, v{r}, v{r+1}, v{r+2}")
        smf(k1, r, WK + 8)
        a(f"s_waitcnt vmcnt({n})")
        a(f"v_max3_u32 v{vT}, v{vT}, v{r+3}, v{r+4}")
        a(f"ds_write_b128 v{vAw}, {vr(r,4)}")
        a(f"v_max3_u32 v{vT}, v{vT}, v{r+5}, v{r+6}")
        a(f"v_max_u32 v{vT}, v{vT}, v{r+7}")
        a(f"v_cmp_eq_u32 vcc, -1, v{vT}")
        smf(k0, r + 4, WK + 16)
        a(f"ds_write_b128 v{vAw}, {vr(r+4,4)} offset:1024")
        smf(k1, r + 4, WK + 24)
    def zero_k():
        for r in (k0, k0 + 2, k1, k1 + 2): a(f"v_mov_b64 {vr(r,2)}, 0")
    a.label(f"L_chain_entry{tag}")
    a(f"buffer_store_dword v{vR}, v{vX2s}, {W}, s{sX2st} offen{st}")
    a(".p2align 6")
    a.label(f"L_chain_loop{tag}")
    stamp("top")
    trace(a, cfg, 0, sStep, vT)
    a(f"s_cmp_eq_u32 s{sStep}, 63")
    a(f"s_cbranch_scc1 L_chain_last{tag}")
    win = cfg.get("win", dict(a1=["v1", "zv"], b1=["v2", "kvrd", "lw"], a2=["ring0", "lw", "zq", "kvchk"], b2=["ring1", "lw", "sal"]))
    def work(items):
        for x in items:
            if x in ("ring0", "ring1"):
                for i in (range(4) if x == "ring0" else range(4, 8)):
                    a(f"ds_read_b128 {vr(RING+4*i,4)}, v{vLdsW} offset:{(i>>2)*16384+(i&3)*1024}")
            elif x == "kvrd":
                a(f"v_add_u32 v{vT}, s{sKVL}, v{vL16}")
                for f in range(4): a(f"ds_read_b128 {vr(Kx+4*f,4)}, v{vT} offset:{f*1024}")
            elif x == "lw": a("s_waitcnt lgkmcnt(0)")
            elif x == "zq":
                for i in range(8): a(f"v_mov_b64 {vr(q0+2*i,2)}, 0")
            elif x == "zv":
                for i in range(4): a(f"v_mov_b64 {vr(VACC+2*i,2)}, 0")
            elif x == "kvchk":
                a(f"s_bfe_u32 s{sKT}, s{sStep}, 0x10002")
                kv_check()
                if not cfg.get("nokvcheck"): a(f"s_cbranch_vccnz L_chain_kvwait{tag}")
                a.label(f"L_chain_kvok{tag}")
                trace(a, cfg, 1, sStep, vT)
                trace(a, cfg, 5, sStep, vT)
                spin_init(a)
            elif x == "sal":
                a(f"s_add_u32 s{sKV}, s{sStep}, 1")
                a(f"s_and_b32 s{sKV}, s{sKV}, 3")
                a(f"s_lshl_b32 s{sKV}, s{sKV}, 19")
                a(f"s_add_u32 s{sKV}, s{sKV}, s{sKVb}")
            elif x[0] == "v": a(f"s_waitcnt vmcnt({x[1:]})")
            elif x[0] == "p": pad(int(x[1:]))
            else: raise ValueError(x)
    lateok = False
    work(win["a2"])
    stamp("x2iss")
    x2_issue(A)
    work(win["b2"])
    x2_issue(A + 8)
    x2_check(A, 2)
    if not cfg.get("nowait2"): a(f"s_cbranch_vccnz L_chain_x2b{tag}")
    a.label(f"L_chain_x2ok{tag}")
    if cfg.get("count_redo"): a(f"s_add_u32 s31, s31, s{sSPIN}")
    stamp("A0")
    kvl = [f"buffer_load_dwordx4 v{vL16}, {W}, s{sKV} offen offset:{f*1024} sc1 lds" for f in range(4)]
    SLo, SHi = RING, RING + 4
    plan = list(cfg.get("plan", ["r:pre", "m:b1", "k3", "k5", "k7", "h6w"]))
    after_r = []
    def at(pos):
        for x in list(plan):
            if x == pos: a(kvl.pop(0)); plan.remove(x)
            elif x == "m:" + pos: a(memst); plan.remove(x)
            elif x == "r:" + pos: a(rearm); plan.remove(x); after_r.append(len(plan))
    def ring_rd(jj):
        s0 = RING + ((2 * jj) % 4) * 8
        return [f"ds_read_b128 {vr(s0+4*i,4)}, v{vW2} offset:{(jj&1)*16384+i*1024}" for i in range(4)]
    vW2 = vT
    for jj in range(2):
        s0 = RING + 16 * jj; rd = ring_rd(jj)
        if jj == 0: a(f"v_xor_b32 v{vW2}, 0x8000, v{vLdsW}")
        smf(q0, A + 4 * jj, s0); a(rd[0]); a(rd[1])
        smf(q1, A + 4 * jj, s0 + 8); a(rd[2]); a(rd[3])
    memst = f"buffer_store_dword v{vR}, v{vX2s}, {W}, s{sMemOff} offen sc1"
    rearm = f"buffer_store_dword v{vOnes}, v{vX2s}, {W}, s{sX2re} offen{st}"
    rf = cfg.get("rearm_first", True)
    nb = len([x for x in plan if x.endswith("pre")])
    at("pre")
    stamp("k1done", True)
    a(f"s_waitcnt vmcnt({nb}) lgkmcnt(8)")
    a("s_barrier")
    stamp("bar1", True)
    for j2 in range(2, 8, 2):
        a(f"v_xor_b32 v{vT}, {j2*1024}, v{vAw}")
        a(f"ds_read_b128 {vr(A+4*j2,4)}, v{vT}")
        a(f"ds_read_b128 {vr(A+4*j2+4,4)}, v{vT} offset:1024")
        if j2 < 6: fill_v(1)
    at("b1")
    fill_v(2)
    lg = {2: 5, 3: 8, 4: 4, 5: 4}
    Ap0, Ap1, Dp0, Dp1, X = 72, 76, 80, 84, 88
    for jj in range(2, 6):
        if jj in (2, 4): a(f"v_xor_b32 v{vW2}, {(jj//2+1)*0x8000:#x}, v{vLdsW}")
        a(f"s_waitcnt lgkmcnt({lg[jj]})")
        stamp(f"k{jj}", True)
        s0 = RING + ((2 * jj) % 4) * 8; s1 = s0 + 8
        side = ring_rd(jj)
        for acc, wsrc, sd in ((q0, s0, side[0]), (k0, WK + jj * 16, side[1]), (q1, s1, side[2]), (k1, WK + jj * 16 + 8, side[3])):
            smf(acc, A + 4 * jj, wsrc)
            a(sd)
        at(f"k{jj}")
    A6, A7 = A + 24, A + 28
    smf(k0, A6, WK + 96); at("k6")
    smf(k0, A7, WK + 112); a("s_waitcnt lgkmcnt(6)")
    smf(q0, A6, RING); a("s_waitcnt lgkmcnt(2)")
    smf(q0, A7, RING + 16); at("k7")
    smf(q1, A6, RING + 8); a(f"ds_read_b128 {vr(SLo,4)}, v{vC} offset:256")
    a("s_waitcnt lgkmcnt(1)")
    smf(q1, A7, RING + 24); cvt(Ap0 + 2, k0)
    smf(k1, A6, WK + 104); cvt(Ap0 + 3, k0 + 2)
    smf(k1, A7, WK + 120)
    stamp("h3end")
    OF, WA = 96, 112
    cvt(Ap0, q0); cvt(Ap0 + 1, q0 + 2)
    cvt(Ap1, q1); cvt(Ap1 + 1, q1 + 2)
    mfma(Dp0, Ap0, SelT, None)
    a(f"ds_read_b128 {vr(SHi,4)}, v{vC} offset:512")
    cvt(Ap1 + 2, k1); cvt(Ap1 + 3, k1 + 2)
    at("h4")
    mfma(Dp1, Ap1, SelT, None)
    cvt(X, Dp0); cvt(X + 1, Dp0 + 2)
    cvt(X + 2, Dp1); cvt(X + 3, Dp1 + 2)
    Sx0, Sx1, Sm = 32, 36, 40
    mfma(Sx0, Kx, X, None)
    mfma(Sx1, Kx + 4, X, None)
    mfma(Sm, X, X, None)
    cvt(44, Sx0); cvt(45, Sx0 + 2); cvt(46, Sx1); cvt(47, Sx1 + 2)
    a(f"ds_write2_b64 v{vSwx}, v[44:45], v[46:47] offset0:0 offset1:16")
    cvt(92, Sm); cvt(93, Sm + 2)
    a(f"ds_write_b64 v{vSwm}, v[92:93]")
    stamp("swr")
    at("h6w")
    nomax = cfg.get("nomax", True)
    fl = cfg.get("fills", (5, 3, 2, 2) if nomax else (5, 3, 1, 3))
    fill_v(fl[0])
    a("s_waitcnt lgkmcnt(0)")
    stamp("swdone", True)
    a("s_barrier")
    stamp("bar2", True)
    a(f"ds_read_b128 v[72:75], v{vSrx}")
    a(f"ds_read_b128 v[80:83], v{vSrm}")
    a(f"ds_read_b128 v[76:79], v{vSrx} offset:256")
    ONES, HALF = 88, 92
    at("h6r")
    fill_v(fl[1])
    a("s_waitcnt lgkmcnt(1)")
    mfma(32, SLo, 72, None)
    mfma(36, SelM, 80, None)
    a("s_waitcnt lgkmcnt(0)")
    mfma(32, SHi, 76, 32)
    a(f"ds_read_b128 {vr(ONES,4)}, v{vC} offset:768")
    a(f"ds_read_b64 {vr(HALF,2)}, v{vC} offset:1024")
    fill_v(fl[2])
    stamp("sred")
    E = 72
    m, t = 46, 47
    Bx, Pm, vp, LS = 40, 44, 84, 80
    def true_max(fill=False):
        a(f"v_max3_f32 v{m}, v36, v37, v38")
        a(f"v_max3_f32 v{t}, v32, v33, v34")
        a(f"v_max3_f32 v{m}, v{m}, v39, v35")
        a(f"v_max_f32 v{m}, v{m}, v{t}")
        if fill: fill_v(1)
        a(f"v_max_f32_dpp v{m}, v{m}, v{m} row_ror:8 row_mask:0xf bank_mask:0xf")
        a(f"v_mov_b32 v{t}, v{m}")
        if fill: fill_v(1)
        a(f"v_permlane16_swap_b32 v{m}, v{t}")
        a(f"v_max_f32 v{m}, v{m}, v{t}")
        a(f"v_mov_b32 v{t}, v{m}")
        if fill: fill_v(1)
        a(f"v_permlane32_swap_b32 v{m}, v{t}")
        a(f"v_max_f32 v{m}, v{m}, v{t}")
        a(f"v_mul_f32 v{m}, s{sC}, v{m}")
        for i in range(8):
            a(f"v_fma_f32 v{E+i}, v{32+i}, s{sC}, -v{m}")
    def weights_to_o(first):
        for i in range(8):
            a(f"v_exp_f32 v{E+i}, v{E+i}")
            if first and nomax and i in (1, 5) and vq: fill_v(1)
        assert not vq
        cvt(Bx, E); cvt(Bx + 1, E + 2); cvt(Bx + 2, E); cvt(Bx + 3, E + 2)
        cvt(Pm, E + 4); cvt(Pm + 1, E + 6)
        a(f"v_mov_b32_dpp v{Bx+2}, v{Bx} row_ror:8 row_mask:0xf bank_mask:0x3")
        a(f"v_mov_b32_dpp v{Bx+3}, v{Bx+1} row_ror:8 row_mask:0xf bank_mask:0x3")
        a(f"v_mov_b32_dpp v{Bx}, v{Bx} row_ror:8 row_mask:0xf bank_mask:0xc")
        a(f"v_mov_b32_dpp v{Bx+1}, v{Bx+1} row_ror:8 row_mask:0xf bank_mask:0xc")
        if first: stamp("pready")
        side = []
        if first:
            side = [f"v_cvt_pk_bf16_f32 v{vp}, v{vacc[0]}, v{vacc[0]+1}", f"v_cvt_pk_bf16_f32 v{vp+1}, v{vacc[0]+2}, v{vacc[0]+3}",
                    f"v_cvt_pk_bf16_f32 v{vp+2}, v{vacc[1]}, v{vacc[1]+1}", f"v_cvt_pk_bf16_f32 v{vp+3}, v{vacc[1]+2}, v{vacc[1]+3}"]
            if nomax:
                side += [f"v_max3_f32 v{m}, abs(v32), abs(v33), abs(v34)", f"v_max3_f32 v{t}, abs(v35), abs(v36), abs(v37)",
                         f"v_max3_f32 v{m}, v{m}, abs(v38), abs(v39)", f"v_max_f32 v{m}, v{m}, v{t}", f"v_cmp_nlt_f32 vcc, v{m}, s{sLim}"]
            a("s_waitcnt lgkmcnt(0)")
        def two():
            for _ in range(2):
                if side: a(side.pop(0))
        mfma16(LS, HALF, Pm, None); two()
        mfma(72, Vx, Bx, None); two()
        mfma(LS, ONES, Bx, LS); two()
        mfma(76, Vx + 4, Bx, None); two()
        mfma16(72, vp, Pm, 72); two()
        mfma16(76, vp + 2, Pm, 76)
        a(f"v_rcp_f32 v{LS}, v{LS}")
    if nomax:
        for i in (4, 5, 6, 7, 0, 1, 2, 3):
            a(f"v_mul_f32 v{E+i}, s{sC}, v{32+i}")
    else:
        true_max(True)
    weights_to_o(True)
    if nomax:
        if not cfg.get("nowait1") and not cfg.get("nowait2"): a(f"s_cbranch_vccnz L_chain_big{tag}")
        a.label(f"L_chain_bigok{tag}")
    def pack(U):
        d = 32 + 4 * U; s = WA + 8 * U
        return [[f"v_cvt_pk_bf16_f32 v{d}, v{s}, v{s+1}", f"v_cvt_pk_bf16_f32 v{d+1}, v{s+2}, v{s+3}",
                 f"v_and_or_b32 v{d}, v{d}, -2, s{sTag}"],
                [f"v_cvt_pk_bf16_f32 v{d+2}, v{s+4}, v{s+5}", f"v_cvt_pk_bf16_f32 v{d+3}, v{s+6}, v{s+7}",
                 f"buffer_store_dwordx4 {vr(d,4)}, v{vX1s}, {W}, s{sX1a if U == 0 else sX1b} offen{st}"]]
    sal = [f"s_add_u32 s{sStep}, s{sStep}, 1", f"s_add_u32 s{sMemOff}, s{sMemOff}, 8192", f"s_xor_b32 s{sX2st}, s{sX2st}, 8192",
           f"s_xor_b32 s{sX2re}, s{sX2re}, 8192", f"s_xor_b32 s{sX2l}, s{sX2l}, 8192", f"s_mov_b32 s{sSPIN}, 0"]
    for i in range(4): a(f"v_mov_b64 {vr(WA+2*i,2)}, 0")
    for i in range(4): a(f"v_mul_f32 v{72+i}, v{72+i}, v{LS}")
    for i in range(4): a(f"v_mul_f32 v{76+i}, v{76+i}, v{LS}")
    cvt(OF, 72); cvt(OF + 2, 76); cvt(OF + 1, 74); cvt(OF + 3, 78)
    a(f"v_cndmask_b32 v80, v{OF}, v{OF+2}, s[{sMaskHi}:{sMaskHi+1}]")
    a(f"v_cndmask_b32 v81, v{OF+1}, v{OF+3}, s[{sMaskHi}:{sMaskHi+1}]")
    a(f"ds_write_b64 v{vOw}, v[80:81]")
    stamp("owr")
    at("h10w")
    assert not plan and not kvl
    smf(WA, OF, WO)
    for i in range(4, 8): a(f"v_mov_b64 {vr(WA+2*i,2)}, 0")
    smf(WA + 4, OF, WO + 32)
    a(f"v_and_b32 v85, -16, v{vOw}")
    for ac in range(3): a(f"v_xor_b32 v{82+ac}, {(ac+1)*512}, v85")
    a(f"s_waitcnt vmcnt({after_r[0]}) lgkmcnt(0)")
    stamp("owdone", True)
    a("s_barrier")
    stamp("bar3", True)
    for wp in range(1, 4):
        a(f"ds_read_b128 {vr(OF+4*wp,4)}, v{81+wp}")
    a(f"ds_read_b128 v[40:43], v{vC}")
    smf(WA + 8, OF, WO + 64)
    for x in sal[:3]: a(x)
    smf(WA + 12, OF, WO + 96)
    for x in sal[3:]: a(x)
    pk = pack(0) + pack(1)
    n = 0; side = []
    for ac in range(4):
        for wp in range(1, 4):
            if ac == 0: a(f"s_waitcnt lgkmcnt({4-wp})")
            smf(WA + 4 * ac, OF + 4 * wp, WO + (ac * 4 + wp) * 8)
            n += 1
            stamp(f"wo{n}", True)
            if n in cfg.get("pops", (6, 9, 12)): side += pk.pop(0)
            for _ in range(cfg.get("poprate", 1)):
                if side: a(side.pop(0))
    for x in side: a(x)
    work(win.get("t", []))
    for x in pk.pop(0): a(x)
    stamp("x1st")
    work(win["a1"])
    def x1_issue(r):
        a(f"buffer_load_dwordx4 {vr(r,4)}, v{vX1l}, {W}, s{sX1a} offen {pl}")
        a(f"buffer_load_dwordx4 {vr(r+4,4)}, v{vX1l}, {W}, s{sX1a} offen offset:1024 {pl}")
    def x1_check(r, n):
        a(f"s_waitcnt vmcnt({n+1})")
        mfma(104, 40, r, None)
        a(f"s_waitcnt vmcnt({n})")
        mfma(104, 40, r + 4, 104)
        a(f"v_bitop3_b32 v{vT}, v{r}, v{r+4}, s{sTag} bitop3:0x7e")
        a(f"v_and_b32 v{vT}, 1, v{vT}")
        a(f"v_cmp_ne_u32 vcc, 0, v{vT}")
    stamp("x1iss")
    x1_issue(96)
    work(win["b1"])
    x1_issue(112)
    x1_check(96, 2)
    if not cfg.get("nowait1"): a(f"s_cbranch_vccnz L_chain_x1b{tag}")
    a.label(f"L_chain_x1ok{tag}")
    stamp("x1ok")
    a(f"v_add_f32_dpp v104, v104, v104 row_ror:4 row_mask:0xf bank_mask:0xf")
    a(f"v_add_f32_dpp v105, v105, v105 row_ror:4 row_mask:0xf bank_mask:0xf")
    a(f"s_xor_b32 s{sTag}, s{sTag}, 1")
    a(f"v_add_f32_dpp v104, v104, v104 row_ror:8 row_mask:0xf bank_mask:0xf")
    a(f"v_add_f32_dpp v105, v105, v105 row_ror:8 row_mask:0xf bank_mask:0xf")
    a(f"v_cvt_pk_bf16_f32 v{vR}, v104, v105")
    a(f"v_min_u32 v{vR}, -2, v{vR}")
    a(f"buffer_store_dword v{vR}, v{vX2s}, {W}, s{sX2st} offen{st}")
    if cfg.get("count_redo"):
        a(f"s_lshl_b32 s{sT0}, s{sSPIN}, 16")
        a(f"s_add_u32 s31, s31, s{sT0}")
    if stamp.on:
        a(f"s_cmp_eq_u32 s{sStep}, {cfg.get('stamp_step', 40)}")
        a(f"s_cbranch_scc0 L_chain_loop{tag}")
        a("s_waitcnt lgkmcnt(0)")
        a(f"s_lshl_b32 s{sT0}, s{sMEMB}, 2")
        a(f"s_add_u32 s{sT0}, s{sT0}, s{sWAVE}")
        a(f"s_lshl_b32 s{sT1}, s{sLAY}, 7")
        a(f"s_add_u32 s{sT0}, s{sT0}, s{sT1}")
        a(f"s_lshl_b32 s{sT0}, s{sT0}, 6")
        a(f"s_add_u32 s{sT0}, s{sT0}, {OFF_STAMP:#x}")
        a(f"v_mov_b32 v108, 0")
        for i in range(stamp.n):
            a(f"v_mov_b32 v109, s{stamp.base+2*i}")
            a(f"buffer_store_dword v109, v108, {W}, s{sT0} offen offset:{4*i}")
        cfg["stamp_names"] = stamp.names
    a(f"s_branch L_chain_loop{tag}")
    a.label(f"L_chain_x1b{tag}")
    x1_issue(96)
    spin_tick(a)
    if cfg.get("one1"): x1_check(96, 0)
    else:
        x1_check(112, 2)
        a(f"s_cbranch_vccz L_chain_x1ok{tag}")
        x1_issue(112)
        spin_tick(a)
        x1_check(96, 2)
    a(f"s_cbranch_vccz L_chain_x1ok{tag}")
    a(f"s_branch L_chain_x1b{tag}")
    a.label(f"L_chain_x2b{tag}")
    x2_issue(A)
    spin_tick(a)
    zero_k()
    if cfg.get("one2"): x2_check(A, 0)
    else:
        x2_check(A + 8, 2)
        a(f"s_cbranch_vccz L_chain_x2c{tag}")
        x2_issue(A + 8)
        spin_tick(a)
        zero_k()
        x2_check(A, 2)
    a(f"s_cbranch_vccz L_chain_x2ok{tag}")
    a(f"s_branch L_chain_x2b{tag}")
    a.label(f"L_chain_x2c{tag}")
    for i in range(4):
        a(f"v_mov_b64 {vr(A+2*i,2)}, {vr(A+8+2*i,2)} ; sameval")
    a(f"s_branch L_chain_x2ok{tag}")
    if nomax:
        a.label(f"L_chain_big{tag}")
        true_max()
        weights_to_o(False)
        a(f"s_branch L_chain_bigok{tag}")
    a.label(f"L_chain_last{tag}")
    if cfg.get("count_redo"):
        a("s_memrealtime s[70:71]")
        a("s_memtime s[72:73]")
        a(f"s_lshl_b32 s{sT0}, s{sMEMB}, 2")
        a(f"s_add_u32 s{sT0}, s{sT0}, s{sWAVE}")
        a(f"s_lshl_b32 s{sT1}, s{sLAY}, 7")
        a(f"s_add_u32 s{sT0}, s{sT0}, s{sT1}")
        a(f"s_lshl_b32 s{sT0}, s{sT0}, 6")
        a(f"s_add_u32 s{sT0}, s{sT0}, {OFF_STAMP:#x}")
        a(f"v_mov_b32 v108, 0")
        a("s_waitcnt lgkmcnt(0)")
        a(f"s_sub_u32 s70, s70, s100")
        a(f"s_sub_u32 s72, s72, s98")
        for i, r in enumerate((72, 31, 70, 101)):
            a(f"v_mov_b32 v109, s{r}")
            a(f"buffer_store_dword v109, v108, {W}, s{sT0} offen offset:{48+4*i}")
    a(f"buffer_store_dword v{vR}, v{vX2s}, {W}, s{sMemOff} offen sc1")
    a("s_waitcnt vmcnt(0) lgkmcnt(0)")
    if cfg.get("probe"):
        what, lay = cfg["probe"]
        a(f"s_cmp_lg_u32 s{sLAY}, {lay}")
        a("s_cbranch_scc1 L_done")
        if what == "T0": a("s_mov_b32 s74, s101")
        elif what == "loop": a("s_mov_b32 s74, s70")
        elif what == "end": a("s_add_u32 s74, s70, s101")
        a("s_sub_u32 s75, s100, s101")
        a("s_add_u32 s74, s74, 23000")
        lab = a.newlab("L_probe")
        a.label(lab)
        a("s_memrealtime s[76:77]")
        a("s_waitcnt lgkmcnt(0)")
        a("s_sub_u32 s76, s76, s75")
        a("s_cmp_lt_u32 s76, s74")
        a(f"s_cbranch_scc1 {lab}")
    a("s_branch L_done")
    a.label(f"L_chain_kvwait{tag}")
    if cfg.get("count_redo"): a("s_add_u32 s31, s31, 0x4000000")
    spin_init(a)
    lab = a.newlab("L_kvspin")
    a.label(lab)
    for f in range(4):
        a(f"buffer_load_dwordx4 {vr(Kx+4*f,4)}, v{vL16}, {W}, s{sKV} offen offset:{f*1024} sc1")
    spin_tick(a)
    a("s_waitcnt vmcnt(0)")
    kv_check()
    a(f"s_cbranch_vccz L_chain_kvok{tag}")
    a(f"s_sleep {cfg.get('kvsleep', 1)}")
    a(f"s_branch {lab}")
```

```python
from gen_common import *

def chain(a, local, cfg):
    st = "" if local else " sc1"
    tag = "L" if local else "G"
    stamp = Stamps(a, cfg.get("stamp") == "chain" and local, only=cfg.get("only"))
    vL16, vIdx, vLdsW, vSwx, vSwm, vSrx, vSrm, vOw, vOr, vX1s, vX1l, vX2s = range(1, 13)
    vR, vOnes, vT = 13, 14, 15
    vAw = 0
    sKVb, sKT, sLim, sKVc, sLate = 93, 95, 63, 66, 67
    SelT, VACC, SelM = 16, 20, 28
    q0, k0, q1, k1 = 32, 36, 40, 44
    Kx, Vx, RING, A, WO = 48, 56, 64, 96, 128
    WK, WV = 256, 384
    sStep, sTag, sX2st, sX2re, sMemOff, sKV, sX1a, sX1b, sC = 55, 56, 57, 58, 59, 60, 61, 62, 96
    sMaskHi = 64
    sLds, sRot = 66, 67
    sX2l = 92
    AST, KVL, SX, SM, SJ, OA, CST = 0x20000, 0x22000, 0x27000, 0x27800, 0x27f00, 0x26000, 0x27a00
    sKVL = 94
    lane = 0
    if cfg.get("chain_prologue_done") is None:
        cfg["chain_prologue_done"] = True
        a.label("L_chain")
        a(f"v_and_b32 v0, 63, v0")
        a(f"v_lshlrev_b32 v{vL16}, 4, v0")
        a(f"s_lshl_b32 s{sLds}, s{sWAVE}, 15")
        a(f"s_lshl_b32 s{sRot}, s{sWAVE}, 1")
        vD, vTR, vDo, vTRo = 32, 33, 34, 35
        sL2, sL3 = 70, 71
        vD1, vTR1, sLq = 38, 39, 72
        coop_addrs(a, vD, vD1, vTR, vTR1, vT)
        a(f"s_lshl_b32 s{sLq}, s{sWAVE}, 12")
        a(f"v_lshrrev_b32 v{vDo}, 3, v0")
        a(f"v_lshlrev_b32 v{vDo}, 10, v{vDo}")
        a(f"v_and_b32 v{vT}, 7, v0")
        a(f"v_lshl_add_u32 v{vDo}, v{vT}, 4, v{vDo}")
        a(f"v_bfe_u32 v{vT}, v0, 4, 1")
        a(f"v_lshlrev_b32 v{vTRo}, 11, v{vT}")
        a(f"v_bfe_u32 v{vT}, v0, 5, 1")
        a(f"v_lshl_add_u32 v{vTRo}, v{vT}, 9, v{vTRo}")
        a(f"v_bfe_u32 v{vT}, v0, 2, 1")
        a(f"v_lshl_add_u32 v{vTRo}, v{vT}, 7, v{vTRo}")
        a(f"v_bfe_u32 v{vT}, v0, 3, 1")
        a(f"v_lshl_add_u32 v{vTRo}, v{vT}, 5, v{vTRo}")
        a(f"v_and_b32 v{vT}, 3, v0")
        a(f"v_lshl_add_u32 v{vTRo}, v{vT}, 3, v{vTRo}")
        a(f"v_add_u32 v{vTRo}, s{sLq}, v{vTRo}")
        a(f"s_add_u32 s{sT0}, s{sLds}, s{sLq}")
        a(f"v_add_u32 v{vLdsW}, s{sT0}, v{vL16}")
        a(f"s_lshl_b32 s{sL2}, s{sMEMB}, 8")
        a(f"s_lshl_b32 s{sT1}, s{sWAVE}, 15")
        a(f"s_add_u32 s{sL2}, s{sL2}, s{sT1}")
        a(f"s_lshl_b32 s{sL3}, s{sMEMB}, 17")
        a(f"s_lshl_b32 s{sT1}, s{sWAVE}, 8")
        a(f"s_add_u32 s{sL3}, s{sL3}, s{sT1}")
        late_start(a, cfg)
        stages = []
        for ptr, base in ((sWK, WK), (sWV, WV)):
            for J in range(8):
                def consume(slot, J=J, base=base):
                    end = a.newlab("L_cw")
                    for w in range(4):
                        nxt = a.newlab("L_cw")
                        if w < 3:
                            a(f"s_cmp_lg_u32 s{sWAVE}, {w}")
                            a(f"s_cbranch_scc1 {nxt}")
                        jj = J ^ (2 * w)
                        coop_reads(a, slot, vTR, vTR1, 40, base + jj * 16, base + jj * 16 + 8)
                        if w < 3:
                            a(f"s_branch {end}")
                            a.label(nxt)
                    a.label(end)
                stages.append(dict(issue=lambda slot, ptr=ptr, J=J: coop_issue(a, ptr, J, slot, sL2, vD, vD1, sLq), consume=consume))
        for wp in range(4):
            for ap in range(2):
                def issue(slot, wp=wp, ap=ap):
                    if wp == 0 and ap == 0: set_srd(a, sWT, sWO, 0x400000)
                    a(f"s_add_u32 m0, s{sLq}, {slot*16384}")
                    a(f"s_xor_b32 s{sT0}, s{sWAVE}, {wp}")
                    a(f"s_lshl_b32 s{sT0}, s{sT0}, 15")
                    a(f"s_add_u32 s{sT0}, s{sT0}, s{sL3}")
                    if ap: a(f"s_add_u32 s{sT0}, s{sT0}, {ap*128}")
                    for q in range(4):
                        if q: a(f"s_add_u32 s{sT0}, s{sT0}, {8192-1024}")
                        a(f"buffer_load_dwordx4 v{vDo}, s[{sWT}:{sWT+3}], s{sT0} offen offset:{q*1024}{' nt' if '14c' in cfg.get('ntw', ()) else ''} lds")
                def consume(slot, wp=wp, ap=ap):
                    va = vTRo
                    if slot >= 4:
                        a(f"v_add_u32 v40, 0x10000, v{vTRo}"); va = 40
                    for a1 in range(2):
                        dst = WO + ((2 * ap + a1) * 4 + wp) * 8
                        for e4 in range(4):
                            off = (slot & 3) * 16384 + (8 * (e4 >> 1) + 2 * (e4 & 1)) * 128 + a1 * 64
                            a(f"ds_read_b64_tr_b16 {vr(dst+2*e4,2)}, v{va} offset:{off}")
                stages.append(dict(issue=issue, consume=consume))
        for J in range(8):
            tmp = RING + 16 * (J & 1)
            def post(slot, tmp=tmp):
                a(f"s_add_u32 s{sT0}, s{sLq}, {slot*16384}")
                a(f"v_add_u32 v40, s{sT0}, v{vL16}")
                for i in range(4):
                    a(f"ds_write_b128 v40, {vr(tmp+4*i,4)} offset:{i*1024}")
            stages.append(dict(issue=lambda slot, J=J: coop_issue(a, sWQ, J, slot, sL2, vD, vD1, sLq),
                               consume=lambda slot, tmp=tmp: coop_reads(a, slot, vTR, vTR1, 40, tmp, tmp + 8), post=post))
        co = cfg.get("ch_ord", "kvo")
        parts = {"k": stages[0:8], "v": stages[8:16], "o": stages[16:24]}
        stages = parts[co[0]] + parts[co[1]] + parts[co[2]] + stages[24:]
        def setup_rest():
            sel_consts(a, lane, 96, selM=SelM, selLo=112, selHi=116, selT=SelT)
            smf_index(a, lane, vIdx, 96)
            n_, g_, q_ = 96, 97, 98
            a(f"v_and_b32 v{n_}, 15, v0")
            a(f"v_lshrrev_b32 v{g_}, 4, v0")
            a(f"v_and_b32 v{q_}, 7, v0")
            a(f"s_mov_b32 s{sMaskHi}, 0xff00ff00")
            a(f"s_mov_b32 s{sMaskHi+1}, 0xff00ff00")
            a(f"v_lshlrev_b32 v99, 3, v{q_}")
            a(f"v_and_b32 v{vT}, 1, v{g_}")
            a(f"v_lshl_add_u32 v99, v{vT}, 6, v99")
            a(f"v_add_u32 v99, {SJ}, v99")
            a(f"v_lshrrev_b32 v{vT}, 1, v{g_}")
            a(f"v_lshlrev_b32 v{vSwx}, 8, v{vT}")
            a(f"v_lshl_add_u32 v{vSwx}, v{q_}, 4, v{vSwx}")
            a(f"v_and_b32 v{vT}, 1, v{g_}")
            a(f"v_lshl_add_u32 v{vSwx}, v{vT}, 3, v{vSwx}")
            a(f"s_lshl_b32 s{sT0}, s{sWAVE}, 9")
            a(f"s_add_u32 s{sT1}, s{sT0}, {SX}")
            a(f"v_add_u32 v{vSwx}, s{sT1}, v{vSwx}")
            a(f"v_cndmask_b32 v{vSwx}, v{vSwx}, v99, s[{sMaskHi}:{sMaskHi+1}]")
            a(f"v_lshlrev_b32 v{vSwm}, 4, v{q_}")
            a(f"v_lshl_add_u32 v{vSwm}, v{vT}, 3, v{vSwm}")
            a(f"s_lshl_b32 s{sT1}, s{sWAVE}, 7")
            a(f"s_add_u32 s{sT1}, s{sT1}, {SM}")
            a(f"v_add_u32 v{vSwm}, s{sT1}, v{vSwm}")
            a(f"s_mov_b32 s98, 0")
            a(f"s_mov_b32 s99, 0x00ff00ff")
            a(f"v_cndmask_b32 v{vSwm}, v99, v{vSwm}, s[98:99]")
            a(f"v_lshlrev_b32 v{vSrx}, 9, v{g_}")
            a(f"v_lshl_add_u32 v{vSrx}, v{n_}, 4, v{vSrx}")
            a(f"v_add_u32 v{vSrx}, {SX}, v{vSrx}")
            a(f"v_lshlrev_b32 v{vSrm}, 7, v{g_}")
            a(f"v_lshl_add_u32 v{vSrm}, v{q_}, 4, v{vSrm}")
            a(f"v_add_u32 v{vSrm}, {SM}, v{vSrm}")
            a(f"s_lshl_b32 s{sT1}, s{sWAVE}, 9")
            a(f"s_add_u32 s{sT1}, s{sT1}, {OA-SM}")
            a(f"v_bfe_u32 v{vT}, v0, 3, 1")
            a(f"v_lshl_add_u32 v{vOw}, v{vT}, 3, v{vSrm}")
            a(f"v_add_u32 v{vOw}, s{sT1}, v{vOw}")
            a(f"v_and_b32 v{vOr}, 0xf0, v{vL16}")
            a(f"v_add_u32 v{vOr}, {CST}, v{vOr}")
            a(f"v_lshrrev_b32 v{vT}, 2, v{n_}")
            a(f"v_lshl_add_u32 v{vT}, v{vT}, 2, v{g_}")
            a(f"v_lshlrev_b32 v{vX1s}, 11, v{vT}")
            a(f"v_and_b32 v{vT}, 3, v0")
            a(f"v_lshl_add_u32 v{vX1s}, v{vT}, 4, v{vX1s}")
            a(f"s_lshl_b32 s{sT0}, s{sWAVE}, 16")
            a(f"s_lshl_b32 s{sT1}, s{sMEMB}, 6")
            a(f"s_add_u32 s{sT0}, s{sT0}, s{sT1}")
            a(f"v_add_u32 v{vX1s}, s{sT0}, v{vX1s}")
            a(f"s_lshl_b32 s{sT2}, s{sMEMB}, 2")
            a(f"s_add_u32 s{sT2}, s{sT2}, s{sWAVE}")
            a(f"s_lshl_b32 s{sT0}, s{sT2}, 11")
            a(f"v_add_u32 v{vX1l}, s{sT0}, v{vL16}")
            a(f"v_lshlrev_b32 v{vX2s}, 4, v{g_}")
            a(f"v_lshl_add_u32 v{vX2s}, v{n_}, 2, v{vX2s}")
            a(f"s_lshl_b32 s{sT0}, s{sT2}, 6")
            a(f"v_add_u32 v{vX2s}, s{sT0}, v{vX2s}")
            a(f"v_mov_b32 v{vT}, {OOB:#x}")
            a(f"v_cmp_gt_u32 vcc, 4, v{n_}")
            a(f"v_cndmask_b32 v{vX2s}, v{vT}, v{vX2s}, vcc")
            a(f"v_and_b32 v100, 3, v0")
            a(f"v_lshlrev_b32 v100, 1, v100")
            a(f"v_lshl_add_u32 v100, v{g_}, 10, v100")
            a(f"v_and_b32 v104, 3, v0")
            a(f"v_bfe_u32 v105, v0, 2, 2")
            a(f"v_lshl_add_u32 v104, v104, 2, v105")
            a(f"v_and_b32 v105, 1, v104")
            a(f"v_lshlrev_b32 v105, 4, v105")
            a(f"v_mov_b32 v106, 0x3f80")
            a(f"v_lshlrev_b32 v105, v105, v106")
            a(f"v_lshrrev_b32 v104, 1, v104")
            for e in range(4):
                a(f"v_cmp_eq_u32 vcc, {e}, v104")
                a(f"v_cndmask_b32 v{108+e}, 0, v105, vcc")
            a(f"v_and_b32 v104, 0xf0, v{vL16}")
            a(f"v_add_u32 v104, {CST}, v104")
            a(f"ds_write_b128 v104, v[108:111]")
            a(f"ds_write_b128 v104, v[112:115] offset:256")
            a(f"ds_write_b128 v104, v[116:119] offset:512")
            for e in range(4): a(f"v_mov_b32 v{120+e}, 0x3f803f80")
            for e in range(4): a(f"v_mov_b32 v{124+e}, 0x3f003f00")
            a(f"ds_write_b128 v104, v[120:123] offset:768")
            a(f"ds_write_b128 v104, v[124:127] offset:1024")
            a(f"s_and_b32 s{sT0}, s{sT2}, 1")
            a(f"s_lshl_b32 s{sT0}, s{sT0}, 12")
            a(f"s_lshr_b32 s{sT1}, s{sT2}, 4")
            a(f"s_lshl_b32 s{sT1}, s{sT1}, 7")
            a(f"s_add_u32 s{sT0}, s{sT0}, s{sT1}")
            a(f"s_bfe_u32 s{sT1}, s{sT2}, 0x10001")
            a(f"s_lshl_b32 s{sT1}, s{sT1}, 5")
            a(f"s_add_u32 s{sT0}, s{sT0}, s{sT1}")
            a(f"s_bfe_u32 s{sT1}, s{sT2}, 0x20002")
            a(f"s_lshl_b32 s{sT1}, s{sT1}, 3")
            a(f"s_add_u32 s{sT0}, s{sT0}, s{sT1}")
            set_srd(a, sIN, sMEM0, 8192)
            a(f"buffer_load_ushort v36, v100, s[{sIN}:{sIN+3}], s{sT0} offen")
            a(f"buffer_load_ushort v37, v100, s[{sIN}:{sIN+3}], s{sT0} offen offset:64")
            a(f"s_mov_b32 s{sStep}, 0")
            a(f"s_mov_b32 s{sTag}, 0")
            a(f"s_lshl_b32 s{sT0}, s{sLAY}, 14")
            a(f"s_add_u32 s{sX2st}, s{sT0}, {OFF_X2:#x}")
            a(f"s_add_u32 s{sX2re}, s{sX2st}, 8192")
            a(f"s_lshl_b32 s{sT0}, s{sWAVE}, 11")
            a(f"s_add_u32 s{sX2l}, s{sT0}, s{sX2st}")
            a(f"s_add_u32 s{sT0}, s{sT0}, {AST}")
            a(f"v_add_u32 v{vAw}, s{sT0}, v{vL16}")
            a(f"s_lshl_b32 s{sT0}, s{sLAY}, 19")
            a(f"s_add_u32 s{sMemOff}, s{sT0}, {OFF_MEM:#x}")
            a(f"s_lshl_b32 s{sT0}, s{sLAY}, 18")
            a(f"s_add_u32 s{sX1a}, s{sT0}, {OFF_X1:#x}")
            a(f"s_add_u32 s{sX1b}, s{sX1a}, 32768")
            a(f"s_lshl_b32 s{sT0}, s{sLAY}, 21")
            a(f"s_lshl_b32 s{sT1}, s{sT2}, 12")
            a(f"s_add_u32 s{sT0}, s{sT0}, s{sT1}")
            a(f"s_add_u32 s{sKVb}, s{sT0}, {OFF_KVR:#x}")
            a(f"s_mov_b32 s{sKV}, s{sKVb}")
            a(f"s_mov_b32 s{sC}, {fbits(128**-0.5*1.4426950408889634):#x}")
            a(f"s_mov_b32 s{sC+1}, s{sC}")
            a(f"s_mov_b32 s{sLim}, {fbits(cfg.get('lim', 48.0) / (128**-0.5*1.4426950408889634)):#x}")
        load_stages(a, stages, meanwhile=setup_rest,
                    hooks=None if cfg.get("noinit") else {25: lambda: go_load(a)})
        trace(a, cfg, 6, None, vT)
        if not cfg.get("noinit"): wait_init(a, sampled=True, barrier=False)
        late_signal(a, cfg)
        a(f"v_lshl_or_b32 v{vR}, v37, 16, v36")
        a(f"v_min_u32 v{vR}, -2, v{vR}")
        for i in range(8):
            a(f"ds_read_b128 {vr(RING+4*i,4)}, v{vLdsW} offset:{(i>>2)*16384+(i&3)*1024}")
        a(f"v_mov_b32 v{vOnes}, -1")
        for f in range(4): a(f"v_mov_b32 v{Kx+4*f}, -1")
        for i in range(4): a(f"v_mov_b64 {vr(VACC+2*i,2)}, 0")
        if cfg.get("nokvcheck"):
            for f in range(16): a(f"v_mov_b32 v{Kx+f}, 0")
        a(f"s_lshl_b32 s{sKVL}, s{sWAVE}, 12")
        a(f"s_add_u32 s{sKVL}, s{sKVL}, {KVL}")
        a(f"s_mov_b32 m0, s{sKVL}")
        a(f"v_add_u32 v{vT}, s{sKVL}, v{vL16}")
        for f in range(4): a(f"v_mov_b32 v{40+f}, {0 if cfg.get('nokvcheck') else -1}")
        for f in range(4): a(f"ds_write_b128 v{vT}, v[40:43] offset:{f*1024}")
        a("s_waitcnt vmcnt(0) lgkmcnt(0)")
        if cfg.get("count_redo"):
            a("s_memrealtime s[70:71]")
            a("s_memtime s[98:99]")
            a("s_waitcnt lgkmcnt(0)")
            a("s_sub_u32 s101, s70, s100")
            a("s_mov_b32 s100, s70")
        if cfg.get("force_global"):
            a("s_branch L_chain_entryG")
        else:
            a(f"s_cmp_eq_u32 s{sLOCAL}, 0")
            a("s_cbranch_scc1 L_chain_entryG")
    W = f"s[{sWS}:{sWS+3}]"
    vC = vOr
    pl = cfg.get("pollmod", "sc1") if local else "sc1"
    if local: st = cfg.get("stmod", "")
    vq = [(t, jj) for jj in range(8) for t in range(2)]
    vacc = (VACC, VACC + 4)
    def smf(acc, x, w): a(f"v_smfmac_f32_16x16x64_bf16 {vr(acc,4)}, {vr(x,4)}, {xr(w,8)}, v{vIdx}")
    def fill_v(n):
        for _ in range(n):
            t, jj = vq.pop(0)
            smf(vacc[t], A + 4 * jj, WV + jj * 16 + t * 8)
    def pad(n):
        k = cfg.get("padkind", "nop")
        if k == "mov":
            for _ in range(n): a(f"v_mov_b32 v{vT}, 0")
        elif k == "nop":
            while n > 0:
                a(f"s_nop {min(n,16)-1}"); n -= 16
        elif k == "mfma":
            for i in range(n // 4): a(f"v_mfma_f32_16x16x32_bf16 v[108:111], {xr(WK+(i%16)*4,4)}, {xr(WV+(i%16)*4,4)}, 0 ; nochk")
    cvt = lambda d, s: a(f"v_cvt_pk_bf16_f32 v{d}, v{s}, v{s+1}")
    mfma = lambda d, x, y, c: a(f"v_mfma_f32_16x16x32_bf16 {vr(d,4)}, {vr(x,4)}, {vr(y,4)}, {vr(c,4) if c is not None else 0}")
    mfma16 = lambda d, x, y, c: a(f"v_mfma_f32_16x16x16_bf16 {vr(d,4)}, {vr(x,2)}, {vr(y,2)}, {vr(c,4) if c is not None else 0}")
    def kv_check():
        a(f"v_bitop3_b32 v{vT}, v{Kx}, v{Kx+4}, s{sKT} bitop3:0x7e")
        a(f"v_bitop3_b32 v120, v{Kx+8}, v{Kx+12}, s{sKT} bitop3:0x7e")
        a(f"v_or_b32 v{vT}, v{vT}, v120")
        a(f"v_and_b32 v{vT}, 1, v{vT}")
        a(f"v_cmp_ne_u32 vcc, 0, v{vT}")
    def x2_issue(r):
        a(f"buffer_load_dwordx4 {vr(r,4)}, v{vL16}, {W}, s{sX2l} offen {pl}")
        a(f"buffer_load_dwordx4 {vr(r+4,4)}, v{vL16}, {W}, s{sX2l} offen offset:1024 {pl}")
    def x2_check(r, n):
        a(f"s_waitcnt vmcnt({n+1})")
        smf(k0, r, WK)
        a(f"v_max3_u32 v{vT}, v{r}, v{r+1}, v{r+2}")
        smf(k1, r, WK + 8)
        a(f"s_waitcnt vmcnt({n})")
        a(f"v_max3_u32 v{vT}, v{vT}, v{r+3}, v{r+4}")
        a(f"ds_write_b128 v{vAw}, {vr(r,4)}")
        a(f"v_max3_u32 v{vT}, v{vT}, v{r+5}, v{r+6}")
        a(f"v_max_u32 v{vT}, v{vT}, v{r+7}")
        a(f"v_cmp_eq_u32 vcc, -1, v{vT}")
        smf(k0, r + 4, WK + 16)
        a(f"ds_write_b128 v{vAw}, {vr(r+4,4)} offset:1024")
        smf(k1, r + 4, WK + 24)
    def zero_k():
        for r in (k0, k0 + 2, k1, k1 + 2): a(f"v_mov_b64 {vr(r,2)}, 0")
    a.label(f"L_chain_entry{tag}")
    a(f"buffer_store_dword v{vR}, v{vX2s}, {W}, s{sX2st} offen{st}")
    a(".p2align 6")
    a.label(f"L_chain_loop{tag}")
    stamp("top")
    trace(a, cfg, 0, sStep, vT)
    a(f"s_cmp_eq_u32 s{sStep}, 63")
    a(f"s_cbranch_scc1 L_chain_last{tag}")
    win = cfg.get("win", dict(a1=["v1", "zv"], b1=["v2", "kvrd", "lw"], a2=["ring0", "lw", "zq", "kvchk"], b2=["ring1", "lw", "sal"]))
    def work(items):
        for x in items:
            if x in ("ring0", "ring1"):
                for i in (range(4) if x == "ring0" else range(4, 8)):
                    a(f"ds_read_b128 {vr(RING+4*i,4)}, v{vLdsW} offset:{(i>>2)*16384+(i&3)*1024}")
            elif x == "kvrd":
                a(f"v_add_u32 v{vT}, s{sKVL}, v{vL16}")
                for f in range(4): a(f"ds_read_b128 {vr(Kx+4*f,4)}, v{vT} offset:{f*1024}")
            elif x == "lw": a("s_waitcnt lgkmcnt(0)")
            elif x == "zq":
                for i in range(8): a(f"v_mov_b64 {vr(q0+2*i,2)}, 0")
            elif x == "zv":
                for i in range(4): a(f"v_mov_b64 {vr(VACC+2*i,2)}, 0")
            elif x == "kvchk":
                a(f"s_bfe_u32 s{sKT}, s{sStep}, 0x10002")
                kv_check()
                if not cfg.get("nokvcheck"): a(f"s_cbranch_vccnz L_chain_kvwait{tag}")
                a.label(f"L_chain_kvok{tag}")
                trace(a, cfg, 1, sStep, vT)
                trace(a, cfg, 5, sStep, vT)
                spin_init(a)
            elif x == "sal":
                a(f"s_add_u32 s{sKV}, s{sStep}, 1")
                a(f"s_and_b32 s{sKV}, s{sKV}, 3")
                a(f"s_lshl_b32 s{sKV}, s{sKV}, 19")
                a(f"s_add_u32 s{sKV}, s{sKV}, s{sKVb}")
            elif x[0] == "v": a(f"s_waitcnt vmcnt({x[1:]})")
            elif x[0] == "p": pad(int(x[1:]))
            else: raise ValueError(x)
    lateok = False
    work(win["a2"])
    stamp("x2iss")
    x2_issue(A)
    work(win["b2"])
    x2_issue(A + 8)
    x2_check(A, 2)
    if not cfg.get("nowait2"): a(f"s_cbranch_vccnz L_chain_x2b{tag}")
    a.label(f"L_chain_x2ok{tag}")
    if cfg.get("count_redo"): a(f"s_add_u32 s31, s31, s{sSPIN}")
    stamp("A0")
    kvl = [f"buffer_load_dwordx4 v{vL16}, {W}, s{sKV} offen offset:{f*1024} sc1 lds" for f in range(4)]
    SLo, SHi = RING, RING + 4
    plan = list(cfg.get("plan", ["r:pre", "m:b1", "k3", "k5", "k7", "h6w"]))
    after_r = []
    def at(pos):
        for x in list(plan):
            if x == pos: a(kvl.pop(0)); plan.remove(x)
            elif x == "m:" + pos: a(memst); plan.remove(x)
            elif x == "r:" + pos: a(rearm); plan.remove(x); after_r.append(len(plan))
    def ring_rd(jj):
        s0 = RING + ((2 * jj) % 4) * 8
        return [f"ds_read_b128 {vr(s0+4*i,4)}, v{vW2} offset:{(jj&1)*16384+i*1024}" for i in range(4)]
    vW2 = vT
    for jj in range(2):
        s0 = RING + 16 * jj; rd = ring_rd(jj)
        if jj == 0: a(f"v_xor_b32 v{vW2}, 0x8000, v{vLdsW}")
        smf(q0, A + 4 * jj, s0); a(rd[0]); a(rd[1])
        smf(q1, A + 4 * jj, s0 + 8); a(rd[2]); a(rd[3])
    memst = f"buffer_store_dword v{vR}, v{vX2s}, {W}, s{sMemOff} offen sc1"
    rearm = f"buffer_store_dword v{vOnes}, v{vX2s}, {W}, s{sX2re} offen{st}"
    rf = cfg.get("rearm_first", True)
    nb = len([x for x in plan if x.endswith("pre")])
    at("pre")
    stamp("k1done", True)
    a(f"s_waitcnt vmcnt({nb}) lgkmcnt(8)")
    a("s_barrier")
    stamp("bar1", True)
    for j2 in range(2, 8, 2):
        a(f"v_xor_b32 v{vT}, {j2*1024}, v{vAw}")
        a(f"ds_read_b128 {vr(A+4*j2,4)}, v{vT}")
        a(f"ds_read_b128 {vr(A+4*j2+4,4)}, v{vT} offset:1024")
        if j2 < 6: fill_v(1)
    at("b1")
    fill_v(2)
    lg = {2: 5, 3: 8, 4: 4, 5: 4}
    Ap0, Ap1, Dp0, Dp1, X = 72, 76, 80, 84, 88
    for jj in range(2, 6):
        if jj in (2, 4): a(f"v_xor_b32 v{vW2}, {(jj//2+1)*0x8000:#x}, v{vLdsW}")
        a(f"s_waitcnt lgkmcnt({lg[jj]})")
        stamp(f"k{jj}", True)
        s0 = RING + ((2 * jj) % 4) * 8; s1 = s0 + 8
        side = ring_rd(jj)
        for acc, wsrc, sd in ((q0, s0, side[0]), (k0, WK + jj * 16, side[1]), (q1, s1, side[2]), (k1, WK + jj * 16 + 8, side[3])):
            smf(acc, A + 4 * jj, wsrc)
            a(sd)
        at(f"k{jj}")
    A6, A7 = A + 24, A + 28
    smf(k0, A6, WK + 96); at("k6")
    smf(k0, A7, WK + 112); a("s_waitcnt lgkmcnt(6)")
    smf(q0, A6, RING); a("s_waitcnt lgkmcnt(2)")
    smf(q0, A7, RING + 16); at("k7")
    smf(q1, A6, RING + 8); a(f"ds_read_b128 {vr(SLo,4)}, v{vC} offset:256")
    a("s_waitcnt lgkmcnt(1)")
    smf(q1, A7, RING + 24); cvt(Ap0 + 2, k0)
    smf(k1, A6, WK + 104); cvt(Ap0 + 3, k0 + 2)
    smf(k1, A7, WK + 120)
    stamp("h3end")
    OF, WA = 96, 112
    cvt(Ap0, q0); cvt(Ap0 + 1, q0 + 2)
    cvt(Ap1, q1); cvt(Ap1 + 1, q1 + 2)
    mfma(Dp0, Ap0, SelT, None)
    a(f"ds_read_b128 {vr(SHi,4)}, v{vC} offset:512")
    cvt(Ap1 + 2, k1); cvt(Ap1 + 3, k1 + 2)
    at("h4")
    mfma(Dp1, Ap1, SelT, None)
    cvt(X, Dp0); cvt(X + 1, Dp0 + 2)
    cvt(X + 2, Dp1); cvt(X + 3, Dp1 + 2)
    Sx0, Sx1, Sm = 32, 36, 40
    mfma(Sx0, Kx, X, None)
    mfma(Sx1, Kx + 4, X, None)
    mfma(Sm, X, X, None)
    cvt(44, Sx0); cvt(45, Sx0 + 2); cvt(46, Sx1); cvt(47, Sx1 + 2)
    a(f"ds_write2_b64 v{vSwx}, v[44:45], v[46:47] offset0:0 offset1:16")
    cvt(92, Sm); cvt(93, Sm + 2)
    a(f"ds_write_b64 v{vSwm}, v[92:93]")
    stamp("swr")
    at("h6w")
    nomax = cfg.get("nomax", True)
    fl = cfg.get("fills", (5, 3, 2, 2) if nomax else (5, 3, 1, 3))
    fill_v(fl[0])
    a("s_waitcnt lgkmcnt(0)")
    stamp("swdone", True)
    a("s_barrier")
    stamp("bar2", True)
    a(f"ds_read_b128 v[72:75], v{vSrx}")
    a(f"ds_read_b128 v[80:83], v{vSrm}")
    a(f"ds_read_b128 v[76:79], v{vSrx} offset:256")
    ONES, HALF = 88, 92
    at("h6r")
    fill_v(fl[1])
    a("s_waitcnt lgkmcnt(1)")
    mfma(32, SLo, 72, None)
    mfma(36, SelM, 80, None)
    a("s_waitcnt lgkmcnt(0)")
    mfma(32, SHi, 76, 32)
    a(f"ds_read_b128 {vr(ONES,4)}, v{vC} offset:768")
    a(f"ds_read_b64 {vr(HALF,2)}, v{vC} offset:1024")
    fill_v(fl[2])
    stamp("sred")
    E = 72
    m, t = 46, 47
    Bx, Pm, vp, LS = 40, 44, 84, 80
    def true_max(fill=False):
        a(f"v_max3_f32 v{m}, v36, v37, v38")
        a(f"v_max3_f32 v{t}, v32, v33, v34")
        a(f"v_max3_f32 v{m}, v{m}, v39, v35")
        a(f"v_max_f32 v{m}, v{m}, v{t}")
        if fill: fill_v(1)
        a(f"v_max_f32_dpp v{m}, v{m}, v{m} row_ror:8 row_mask:0xf bank_mask:0xf")
        a(f"v_mov_b32 v{t}, v{m}")
        if fill: fill_v(1)
        a(f"v_permlane16_swap_b32 v{m}, v{t}")
        a(f"v_max_f32 v{m}, v{m}, v{t}")
        a(f"v_mov_b32 v{t}, v{m}")
        if fill: fill_v(1)
        a(f"v_permlane32_swap_b32 v{m}, v{t}")
        a(f"v_max_f32 v{m}, v{m}, v{t}")
        a(f"v_mul_f32 v{m}, s{sC}, v{m}")
        for i in range(8):
            a(f"v_fma_f32 v{E+i}, v{32+i}, s{sC}, -v{m}")
    def weights_to_o(first):
        for i in range(8):
            a(f"v_exp_f32 v{E+i}, v{E+i}")
            if first and nomax and i in (1, 5) and vq: fill_v(1)
        assert not vq
        cvt(Bx, E); cvt(Bx + 1, E + 2); cvt(Bx + 2, E); cvt(Bx + 3, E + 2)
        cvt(Pm, E + 4); cvt(Pm + 1, E + 6)
        a(f"v_mov_b32_dpp v{Bx+2}, v{Bx} row_ror:8 row_mask:0xf bank_mask:0x3")
        a(f"v_mov_b32_dpp v{Bx+3}, v{Bx+1} row_ror:8 row_mask:0xf bank_mask:0x3")
        a(f"v_mov_b32_dpp v{Bx}, v{Bx} row_ror:8 row_mask:0xf bank_mask:0xc")
        a(f"v_mov_b32_dpp v{Bx+1}, v{Bx+1} row_ror:8 row_mask:0xf bank_mask:0xc")
        if first: stamp("pready")
        side = []
        if first:
            side = [f"v_cvt_pk_bf16_f32 v{vp}, v{vacc[0]}, v{vacc[0]+1}", f"v_cvt_pk_bf16_f32 v{vp+1}, v{vacc[0]+2}, v{vacc[0]+3}",
                    f"v_cvt_pk_bf16_f32 v{vp+2}, v{vacc[1]}, v{vacc[1]+1}", f"v_cvt_pk_bf16_f32 v{vp+3}, v{vacc[1]+2}, v{vacc[1]+3}"]
            if nomax:
                side += [f"v_max3_f32 v{m}, abs(v32), abs(v33), abs(v34)", f"v_max3_f32 v{t}, abs(v35), abs(v36), abs(v37)",
                         f"v_max3_f32 v{m}, v{m}, abs(v38), abs(v39)", f"v_max_f32 v{m}, v{m}, v{t}", f"v_cmp_nlt_f32 vcc, v{m}, s{sLim}"]
            a("s_waitcnt lgkmcnt(0)")
        def two():
            for _ in range(2):
                if side: a(side.pop(0))
        mfma16(LS, HALF, Pm, None); two()
        mfma(72, Vx, Bx, None); two()
        mfma(LS, ONES, Bx, LS); two()
        mfma(76, Vx + 4, Bx, None); two()
        mfma16(72, vp, Pm, 72); two()
        mfma16(76, vp + 2, Pm, 76)
        a(f"v_rcp_f32 v{LS}, v{LS}")
    if nomax:
        for i in (4, 5, 6, 7, 0, 1, 2, 3):
            a(f"v_mul_f32 v{E+i}, s{sC}, v{32+i}")
    else:
        true_max(True)
    weights_to_o(True)
    if nomax:
        if not cfg.get("nowait1") and not cfg.get("nowait2"): a(f"s_cbranch_vccnz L_chain_big{tag}")
        a.label(f"L_chain_bigok{tag}")
    def pack(U):
        d = 32 + 4 * U; s = WA + 8 * U
        return [[f"v_cvt_pk_bf16_f32 v{d}, v{s}, v{s+1}", f"v_cvt_pk_bf16_f32 v{d+1}, v{s+2}, v{s+3}",
                 f"v_and_or_b32 v{d}, v{d}, -2, s{sTag}"],
                [f"v_cvt_pk_bf16_f32 v{d+2}, v{s+4}, v{s+5}", f"v_cvt_pk_bf16_f32 v{d+3}, v{s+6}, v{s+7}",
                 f"buffer_store_dwordx4 {vr(d,4)}, v{vX1s}, {W}, s{sX1a if U == 0 else sX1b} offen{st}"]]
    sal = [f"s_add_u32 s{sStep}, s{sStep}, 1", f"s_add_u32 s{sMemOff}, s{sMemOff}, 8192", f"s_xor_b32 s{sX2st}, s{sX2st}, 8192",
           f"s_xor_b32 s{sX2re}, s{sX2re}, 8192", f"s_xor_b32 s{sX2l}, s{sX2l}, 8192", f"s_mov_b32 s{sSPIN}, 0"]
    for i in range(4): a(f"v_mov_b64 {vr(WA+2*i,2)}, 0")
    for i in range(4): a(f"v_mul_f32 v{72+i}, v{72+i}, v{LS}")
    for i in range(4): a(f"v_mul_f32 v{76+i}, v{76+i}, v{LS}")
    cvt(OF, 72); cvt(OF + 2, 76); cvt(OF + 1, 74); cvt(OF + 3, 78)
    a(f"v_cndmask_b32 v80, v{OF}, v{OF+2}, s[{sMaskHi}:{sMaskHi+1}]")
    a(f"v_cndmask_b32 v81, v{OF+1}, v{OF+3}, s[{sMaskHi}:{sMaskHi+1}]")
    a(f"ds_write_b64 v{vOw}, v[80:81]")
    stamp("owr")
    at("h10w")
    assert not plan and not kvl
    smf(WA, OF, WO)
    for i in range(4, 8): a(f"v_mov_b64 {vr(WA+2*i,2)}, 0")
    smf(WA + 4, OF, WO + 32)
    a(f"v_and_b32 v85, -16, v{vOw}")
    for ac in range(3): a(f"v_xor_b32 v{82+ac}, {(ac+1)*512}, v85")
    a(f"s_waitcnt vmcnt({after_r[0]}) lgkmcnt(0)")
    stamp("owdone", True)
    a("s_barrier")
    stamp("bar3", True)
    for wp in range(1, 4):
        a(f"ds_read_b128 {vr(OF+4*wp,4)}, v{81+wp}")
    a(f"ds_read_b128 v[40:43], v{vC}")
    smf(WA + 8, OF, WO + 64)
    for x in sal[:3]: a(x)
    smf(WA + 12, OF, WO + 96)
    for x in sal[3:]: a(x)
    pk = pack(0) + pack(1)
    n = 0; side = []
    for ac in range(4):
        for wp in range(1, 4):
            if ac == 0: a(f"s_waitcnt lgkmcnt({4-wp})")
            smf(WA + 4 * ac, OF + 4 * wp, WO + (ac * 4 + wp) * 8)
            n += 1
            stamp(f"wo{n}", True)
            if n in (6, 9, 12): side += pk.pop(0)
            if side: a(side.pop(0))
    for x in side: a(x)
    for x in pk.pop(0): a(x)
    stamp("x1st")
    work(win["a1"])
    def x1_issue(r):
        a(f"buffer_load_dwordx4 {vr(r,4)}, v{vX1l}, {W}, s{sX1a} offen {pl}")
        a(f"buffer_load_dwordx4 {vr(r+4,4)}, v{vX1l}, {W}, s{sX1a} offen offset:1024 {pl}")
    def x1_check(r, n):
        a(f"s_waitcnt vmcnt({n+1})")
        mfma(104, 40, r, None)
        a(f"s_waitcnt vmcnt({n})")
        mfma(104, 40, r + 4, 104)
        a(f"v_bitop3_b32 v{vT}, v{r}, v{r+4}, s{sTag} bitop3:0x7e")
        a(f"v_and_b32 v{vT}, 1, v{vT}")
        a(f"v_cmp_ne_u32 vcc, 0, v{vT}")
    stamp("x1iss")
    x1_issue(96)
    work(win["b1"])
    x1_issue(112)
    x1_check(96, 2)
    if not cfg.get("nowait1"): a(f"s_cbranch_vccnz L_chain_x1b{tag}")
    a.label(f"L_chain_x1ok{tag}")
    stamp("x1ok")
    a(f"v_add_f32_dpp v104, v104, v104 row_ror:4 row_mask:0xf bank_mask:0xf")
    a(f"v_add_f32_dpp v105, v105, v105 row_ror:4 row_mask:0xf bank_mask:0xf")
    a(f"s_xor_b32 s{sTag}, s{sTag}, 1")
    a(f"v_add_f32_dpp v104, v104, v104 row_ror:8 row_mask:0xf bank_mask:0xf")
    a(f"v_add_f32_dpp v105, v105, v105 row_ror:8 row_mask:0xf bank_mask:0xf")
    a(f"v_cvt_pk_bf16_f32 v{vR}, v104, v105")
    a(f"v_min_u32 v{vR}, -2, v{vR}")
    a(f"buffer_store_dword v{vR}, v{vX2s}, {W}, s{sX2st} offen{st}")
    if cfg.get("count_redo"):
        a(f"s_lshl_b32 s{sT0}, s{sSPIN}, 16")
        a(f"s_add_u32 s31, s31, s{sT0}")
    if stamp.on:
        a(f"s_cmp_eq_u32 s{sStep}, {cfg.get('stamp_step', 40)}")
        a(f"s_cbranch_scc0 L_chain_loop{tag}")
        a("s_waitcnt lgkmcnt(0)")
        a(f"s_lshl_b32 s{sT0}, s{sMEMB}, 2")
        a(f"s_add_u32 s{sT0}, s{sT0}, s{sWAVE}")
        a(f"s_lshl_b32 s{sT1}, s{sLAY}, 7")
        a(f"s_add_u32 s{sT0}, s{sT0}, s{sT1}")
        a(f"s_lshl_b32 s{sT0}, s{sT0}, 6")
        a(f"s_add_u32 s{sT0}, s{sT0}, {OFF_STAMP:#x}")
        a(f"v_mov_b32 v108, 0")
        for i in range(stamp.n):
            a(f"v_mov_b32 v109, s{stamp.base+2*i}")
            a(f"buffer_store_dword v109, v108, {W}, s{sT0} offen offset:{4*i}")
        cfg["stamp_names"] = stamp.names
    a(f"s_branch L_chain_loop{tag}")
    a.label(f"L_chain_x1b{tag}")
    x1_issue(96)
    spin_tick(a)
    if cfg.get("one1"): x1_check(96, 0)
    else:
        x1_check(112, 2)
        a(f"s_cbranch_vccz L_chain_x1ok{tag}")
        x1_issue(112)
        spin_tick(a)
        x1_check(96, 2)
    a(f"s_cbranch_vccz L_chain_x1ok{tag}")
    a(f"s_branch L_chain_x1b{tag}")
    a.label(f"L_chain_x2b{tag}")
    x2_issue(A)
    spin_tick(a)
    zero_k()
    if cfg.get("one2"): x2_check(A, 0)
    else:
        x2_check(A + 8, 2)
        a(f"s_cbranch_vccz L_chain_x2c{tag}")
        x2_issue(A + 8)
        spin_tick(a)
        zero_k()
        x2_check(A, 2)
    a(f"s_cbranch_vccz L_chain_x2ok{tag}")
    a(f"s_branch L_chain_x2b{tag}")
    a.label(f"L_chain_x2c{tag}")
    for i in range(4):
        a(f"v_mov_b64 {vr(A+2*i,2)}, {vr(A+8+2*i,2)} ; sameval")
    a(f"s_branch L_chain_x2ok{tag}")
    if nomax:
        a.label(f"L_chain_big{tag}")
        true_max()
        weights_to_o(False)
        a(f"s_branch L_chain_bigok{tag}")
    a.label(f"L_chain_last{tag}")
    if cfg.get("count_redo"):
        a("s_memrealtime s[70:71]")
        a("s_memtime s[72:73]")
        a(f"s_lshl_b32 s{sT0}, s{sMEMB}, 2")
        a(f"s_add_u32 s{sT0}, s{sT0}, s{sWAVE}")
        a(f"s_lshl_b32 s{sT1}, s{sLAY}, 7")
        a(f"s_add_u32 s{sT0}, s{sT0}, s{sT1}")
        a(f"s_lshl_b32 s{sT0}, s{sT0}, 6")
        a(f"s_add_u32 s{sT0}, s{sT0}, {OFF_STAMP:#x}")
        a(f"v_mov_b32 v108, 0")
        a("s_waitcnt lgkmcnt(0)")
        a(f"s_sub_u32 s70, s70, s100")
        a(f"s_sub_u32 s72, s72, s98")
        for i, r in enumerate((72, 31, 70, 101)):
            a(f"v_mov_b32 v109, s{r}")
            a(f"buffer_store_dword v109, v108, {W}, s{sT0} offen offset:{48+4*i}")
    a(f"buffer_store_dword v{vR}, v{vX2s}, {W}, s{sMemOff} offen sc1")
    a("s_waitcnt vmcnt(0) lgkmcnt(0)")
    if cfg.get("probe"):
        what, lay = cfg["probe"]
        a(f"s_cmp_lg_u32 s{sLAY}, {lay}")
        a("s_cbranch_scc1 L_done")
        if what == "T0": a("s_mov_b32 s74, s101")
        elif what == "loop": a("s_mov_b32 s74, s70")
        elif what == "end": a("s_add_u32 s74, s70, s101")
        a("s_sub_u32 s75, s100, s101")
        a("s_add_u32 s74, s74, 23000")
        lab = a.newlab("L_probe")
        a.label(lab)
        a("s_memrealtime s[76:77]")
        a("s_waitcnt lgkmcnt(0)")
        a("s_sub_u32 s76, s76, s75")
        a("s_cmp_lt_u32 s76, s74")
        a(f"s_cbranch_scc1 {lab}")
    a("s_branch L_done")
    a.label(f"L_chain_kvwait{tag}")
    if cfg.get("count_redo"): a("s_add_u32 s31, s31, 0x4000000")
    spin_init(a)
    lab = a.newlab("L_kvspin")
    a.label(lab)
    for f in range(4):
        a(f"buffer_load_dwordx4 {vr(Kx+4*f,4)}, v{vL16}, {W}, s{sKV} offen offset:{f*1024} sc1")
    spin_tick(a)
    a("s_waitcnt vmcnt(0)")
    kv_check()
    a(f"s_cbranch_vccz L_chain_kvok{tag}")
    a("s_sleep 4")
    a(f"s_branch {lab}")
```

```python
from asmlib import *
from layout import *
import struct

KNAME = "interleave_layers__memory_aug_recurrent_mem_tr__sliding_local_dilated__prompt_kernel"

sX, sMEM0, sWQ, sWK, sWV, sWO = 4, 6, 8, 10, 12, 14
sWB, sWBO, sOUT, sDBG, sWSP = 20, 22, 24, 26, 28
sWS = 32
sWT = 36
sIN = 40
sGRP, sMEMB, sWAVE, sLAY = 44, 45, 46, 47
sSPIN = 30
sLOCAL = 3
sSIG = 2
sT0, sT1, sT2, sT3 = 48, 49, 50, 51
sFB = 52
sFV = 54
SPIN_MAX = 1 << 19
OOB = 0x80000000

def fbits(x):
    return struct.unpack("<I", struct.pack("<f", x))[0]

def set_srd(a, srd, ptr, nbytes):
    a(f"s_mov_b32 s{srd}, s{ptr}")
    a(f"s_mov_b32 s{srd+1}, s{ptr+1}")
    a(f"s_mov_b32 s{srd+2}, {nbytes:#x}")
    a(f"s_mov_b32 s{srd+3}, 0x20000")

def spin_init(a):
    a(f"s_mov_b32 s{sSPIN}, 0")

def spin_tick(a):
    a(f"s_add_u32 s{sSPIN}, s{sSPIN}, 1")
    a(f"s_cmp_gt_u32 s{sSPIN}, {SPIN_MAX}")
    a("s_cbranch_scc1 L_exit")

class Stamps:
    def __init__(self, a, on, base=70, only=None):
        self.a = a; self.on = on; self.base = base; self.n = 0; self.names = []; self.only = only
    def __call__(self, name, extra=False):
        if not self.on: return
        if self.only is None and extra: return
        if self.only is not None and name not in self.only: return
        r = self.base + 2 * self.n
        self.names.append(name); self.n += 1
        assert r + 1 < 92
        self.a(f"s_memtime s[{r}:{r+1}]")

vGO0, vGO1 = 124, 125
def go_load(a, off=192):
    a(f"v_mov_b32 v{vGO0}, 0")
    a(f"global_load_dword v{vGO1}, v{vGO0}, s[{sDBG}:{sDBG+1}] offset:{off} sc1")

def wait_init(a, sampled=False, barrier=True):
    lab = a.newlab("L_winit"); done = a.newlab("L_wdone"); chk = a.newlab("L_wchk")
    spin_init(a)
    if sampled: a(f"s_branch {chk}")
    a.label(lab)
    go_load(a)
    a.label(chk)
    spin_tick(a)
    a("s_waitcnt vmcnt(0)")
    a(f"v_readfirstlane_b32 s{sFV}, v{vGO1}")
    a(f"s_cmp_lg_u32 s{sFV}, 0")
    a(f"s_cbranch_scc1 {done}")
    a("s_sleep 8")
    a(f"s_branch {lab}")
    a.label(done)
    a(f"s_lshr_b32 s{sLOCAL}, s{sFV}, s{sGRP}")
    a(f"s_and_b32 s{sLOCAL}, s{sLOCAL}, 1")
    if barrier: a("s_barrier")

def cnt_reg(g): return 72 + 4 * (g % 3) + g // 3
def count_tickets(a):
    lab = a.newlab("L_cnt")
    spin_init(a)
    a.label(lab)
    for k in range(3): a(f"s_load_dwordx4 s[{72+4*k}:{75+4*k}], s[{sDBG}:{sDBG+1}], {64*k} glc")
    spin_tick(a)
    a("s_waitcnt lgkmcnt(0)")
    a(f"s_mov_b32 s{sFV}, s75")
    for g in range(8):
        a(f"s_add_u32 s{sFV}, s{sFV}, s{cnt_reg(g)}")
    a("s_sleep 4")
    a(f"s_cmp_lt_u32 s{sFV}, 256")
    a(f"s_cbranch_scc1 {lab}")

def sel_consts(a, vlane, tmp, selM=None, selLo=None, selHi=None, selT=None, val=0x3f80):
    t0, t1, t2, t3 = tmp, tmp + 1, tmp + 2, tmp + 3
    a(f"v_and_b32 v{t0}, 1, v{vlane}")
    a(f"v_lshlrev_b32 v{t0}, 4, v{t0}")
    a(f"v_mov_b32 v{t1}, {val:#x}")
    a(f"v_lshlrev_b32 v{t0}, v{t0}, v{t1}")
    a(f"v_bfe_u32 v{t1}, v{vlane}, 1, 2")
    a(f"v_bfe_u32 v{t2}, v{vlane}, 3, 1")
    for e in range(4):
        a(f"v_cmp_eq_u32 vcc, {e}, v{t1}")
        a(f"v_cndmask_b32 v{t3}, 0, v{t0}, vcc")
        if selM is not None: a(f"v_mov_b32 v{selM+e}, v{t3}")
        if selLo is not None:
            a(f"v_cmp_eq_u32 vcc, 0, v{t2}")
            a(f"v_cndmask_b32 v{selLo+e}, 0, v{t3}, vcc")
        if selHi is not None:
            a(f"v_cmp_eq_u32 vcc, 1, v{t2}")
            a(f"v_cndmask_b32 v{selHi+e}, 0, v{t3}, vcc")
    if selT is not None:
        a(f"v_bfe_u32 v{t1}, v{vlane}, 2, 1")
        a(f"v_bfe_u32 v{t3}, v{vlane}, 4, 1")
        a(f"v_cmp_eq_u32 vcc, v{t1}, v{t3}")
        a(f"v_cndmask_b32 v{t0}, 0, v{t0}, vcc")
        a(f"v_bfe_u32 v{t1}, v{vlane}, 1, 1")
        a(f"v_lshl_add_u32 v{t1}, v{t2}, 1, v{t1}")
        for e in range(4):
            a(f"v_cmp_eq_u32 vcc, {e}, v{t1}")
            a(f"v_cndmask_b32 v{selT+e}, 0, v{t0}, vcc")

def smf_index(a, vlane, vidx, tmp):
    a(f"v_mov_b32 v{vidx}, 0x44444444")
    a(f"v_mov_b32 v{tmp}, 0xeeeeeeee")
    a(f"v_and_b32 v{tmp+1}, 8, v{vlane}")
    a(f"v_cmp_ne_u32 vcc, 0, v{tmp+1}")
    a(f"v_cndmask_b32 v{vidx}, v{vidx}, v{tmp}, vcc")

TRC = {}
def load_chunks(a, chunks, sLdsBase, nslots=8, meanwhile=None, hooks=None):
    def issue(c):
        ch = chunks[c]; slot = c % nslots
        ch["setup"]()
        a(f"s_add_u32 m0, s{sLdsBase}, {slot*4096}")
        for q in range(4):
            if q: a(f"s_add_u32 s{sT0}, s{sT0}, {ch['dstep']-1024}")
            a(f"buffer_load_dwordx4 v{ch['vdma']}, s[{sWT}:{sWT+3}], s{sT0} offen offset:{q*1024} lds")
    n = len(chunks)
    for c in range(min(nslots, n)): issue(c)
    if meanwhile: meanwhile()
    for c in range(n):
        inflight = min(nslots, n - c)
        a(f"s_waitcnt vmcnt({4*(inflight-1)})")
        chunks[c]["consume"]((c % nslots) * 4096)
        if c + nslots < n: issue(c + nslots)
        if hooks and c in hooks: hooks[c]()
        if TRC.get("trace") and c % 4 == 3:
            a(f"s_mov_b32 s{sT1}, {c}")
            trace(a, TRC, 4, sT1, 127)

def qkv_dma_addr(a, vlane, vdst, tmp, rowbytes):
    a(f"v_bfe_u32 v{tmp}, v{vlane}, 2, 1")
    a(f"v_lshlrev_b32 v{vdst}, 5, v{tmp}")
    a(f"v_bfe_u32 v{tmp}, v{vlane}, 3, 1")
    a(f"v_lshl_add_u32 v{vdst}, v{tmp}, 4, v{vdst}")
    a(f"v_bfe_u32 v{tmp}, v{vlane}, 4, 2")
    a(f"v_add_u32 v{vdst}, v{vdst}, v{tmp}")
    a(f"v_mul_u32_u24 v{vdst}, {rowbytes}, v{vdst}")
    a(f"v_and_b32 v{tmp}, 3, v{vlane}")
    a(f"v_lshl_add_u32 v{vdst}, v{tmp}, 4, v{vdst}")

def qkv_tr_addr(a, vlane, vdst, tmp, sLdsBase):
    a(f"v_lshrrev_b32 v{tmp}, 4, v{vlane}")
    a(f"v_lshlrev_b32 v{vdst}, 9, v{tmp}")
    a(f"v_bfe_u32 v{tmp}, v{vlane}, 2, 2")
    a(f"v_lshl_add_u32 v{vdst}, v{tmp}, 6, v{vdst}")
    a(f"v_and_b32 v{tmp}, 3, v{vlane}")
    a(f"v_lshl_add_u32 v{vdst}, v{tmp}, 3, v{vdst}")
    a(f"v_add_u32 v{vdst}, s{sLdsBase}, v{vdst}")

def qkv_tr_reads(a, vaddr, slotoff, dst0, dst1):
    for t, dst in ((0, dst0), (1, dst1)):
        for e4 in range(4):
            off = slotoff + (32 * (e4 >> 1) + 4 * (e4 & 1)) * 64 + t * 32
            a(f"ds_read_b64_tr_b16 {xr(dst+2*e4,2)}, v{vaddr} offset:{off}")

def poll_flags(a, vtmp, voff, soff, sleep=2):
    lab = a.newlab("L_pf"); done = a.newlab("L_pfd")
    spin_init(a)
    a.label(lab)
    a(f"buffer_load_dword v{vtmp}, v{voff}, s[{sWS}:{sWS+3}], s{soff} offen sc1")
    spin_tick(a)
    a("s_waitcnt vmcnt(0)")
    a(f"v_cmp_eq_u32 vcc, 0, v{vtmp}")
    a(f"s_cbranch_vccz {done}")
    if sleep: a(f"s_sleep {sleep}")
    a(f"s_branch {lab}")
    a.label(done)

def set_flag(a, vone, soff, imm=0, mod=" sc1"):
    a("s_mov_b64 exec, 1")
    a(f"buffer_store_dword v{vone}, off, s[{sWS}:{sWS+3}], s{soff} offset:{imm}{mod}")
    a("s_mov_b64 exec, -1")

def xlane_g(a, op, m, t):
    a(f"v_mov_b32 v{t}, v{m}")
    a(f"v_permlane16_swap_b32 v{m}, v{t}")
    a(f"{op} v{m}, v{m}, v{t}")
    a(f"v_mov_b32 v{t}, v{m}")
    a(f"v_permlane32_swap_b32 v{m}, v{t}")
    a(f"{op} v{m}, v{m}, v{t}")

def dump_stamps(a, stamp, cfg, row_sgpr_calc):
    a("s_waitcnt lgkmcnt(0)")
    row_sgpr_calc()
    a(f"s_lshl_b32 s{sT0}, s{sT0}, 6")
    a(f"s_add_u32 s{sT0}, s{sT0}, {OFF_STAMP:#x}")
    for i in range(stamp.n):
        a(f"v_mov_b32 v127, s{stamp.base+2*i}")
        a(f"buffer_store_dword v127, off, s[{sWS}:{sWS+3}], s{sT0} offset:{4*i}")
    a("s_waitcnt vmcnt(0)")
    cfg["stamp_names"] = stamp.names

sTR = 68
def trace_setup(a, cfg):
    if not cfg.get("trace"): return
    a(f"s_lshl_b32 s{sTR}, s{sGRP}, 7")
    a(f"s_lshl_b32 s{sTR+1}, s{sMEMB}, 2")
    a(f"s_add_u32 s{sTR}, s{sTR}, s{sTR+1}")
    a(f"s_add_u32 s{sTR}, s{sTR}, s{sWAVE}")
    a(f"s_lshl_b32 s{sTR}, s{sTR}, 11")
    a(f"s_add_u32 s{sTR}, s{sTR}, {OFF_STAMP+0x20000:#x}")
def trace(a, cfg, ev, sidx, vtmp):
    if not cfg.get("trace"): return
    if ev == 5 and not cfg.get("trace_clk"): return
    if cfg.get("trace_only") is not None and ev not in cfg["trace_only"]: return
    if ev != 7:
        a("s_waitcnt lgkmcnt(0)")
        a(f"v_mov_b32 v{vtmp}, s100")
        a(f"buffer_store_dword v{vtmp}, off, s[{sWS}:{sWS+3}], s{sTR+1}")
    if ev == 8: return
    a("s_memtime s[100:101]" if ev == 5 else "s_memrealtime s[100:101]")
    if sidx is None: a(f"s_add_u32 s{sTR+1}, s{sTR}, {ev*256}")
    else:
        a(f"s_and_b32 s{sTR+1}, s{sidx}, 63")
        a(f"s_lshl_b32 s{sTR+1}, s{sTR+1}, 2")
        a(f"s_add_u32 s{sTR+1}, s{sTR+1}, s{sTR}")
        if ev: a(f"s_add_u32 s{sTR+1}, s{sTR+1}, {ev*256}")

GATE = 1792
def late_start(a, cfg):
    if cfg.get("noinit") or cfg.get("nolate"): return
    skip = a.newlab("L_nolate"); lab = a.newlab("L_late"); done = a.newlab("L_lated")
    a(f"s_lshr_b32 s{sFV}, {cfg.get('latemask', 0xcc)}, s{sGRP}")
    a(f"s_and_b32 s{sFV}, s{sFV}, 1")
    a(f"s_cbranch_scc0 {skip}")
    a(f"s_cmp_lg_u32 s{sWAVE}, 0")
    a(f"s_cbranch_scc1 {done}")
    wait_init(a, barrier=False)
    a(f"s_lshl_b32 s{sFB}, s{sGRP}, 11")
    spin_init(a)
    a.label(lab)
    a(f"buffer_load_dword v{vGO1}, off, s[{sWS}:{sWS+3}], s{sFB} offset:{GATE} sc1")
    a(f"s_add_u32 s{sSPIN}, s{sSPIN}, 1")
    a("s_waitcnt vmcnt(0)")
    a(f"s_cmp_gt_u32 s{sSPIN}, 200")
    a(f"s_cbranch_scc1 {done}")
    a(f"v_readfirstlane_b32 s{sFV}, v{vGO1}")
    a(f"s_cmp_ge_u32 s{sFV}, 1")
    a(f"s_cbranch_scc1 {done}")
    a("s_sleep 8")
    a(f"s_branch {lab}")
    a.label(done)
    a("s_barrier")
    a.label(skip)

def late_signal(a, cfg):
    if cfg.get("noinit") or cfg.get("nolate"): return
    lab = a.newlab("L_lsig")
    a(f"s_or_b32 s{sT0}, s{sLAY}, s{sWAVE}")
    a(f"s_or_b32 s{sT0}, s{sT0}, s{sMEMB}")
    a(f"s_cbranch_scc1 {lab}")
    a("v_mbcnt_lo_u32_b32 v127, -1, 0")
    a("v_lshlrev_b32 v127, 11, v127")
    a("v_mov_b32 v126, 1")
    a("s_mov_b64 exec, 0xff")
    a(f"buffer_store_dword v126, v127, s[{sWS}:{sWS+3}], 0 offen offset:{GATE} sc1")
    a("s_mov_b64 exec, -1")
    a.label(lab)

def warm_weights(a, cfg, share, nshare):
    if cfg.get("noinit") or cfg.get("nowarm", True): return
    a("v_lshlrev_b32 v100, 4, v0")
    n = 0
    per = 0x400000 // (nshare * 32 * 4096)
    for ptr in [dict(k=sWK, v=sWV, o=sWO, q=sWQ)[x] for x in cfg.get('warm_order', 'voq')]:
        set_srd(a, sWT, ptr, 0x400000)
        a(f"s_lshl_b32 s{sT0}, s{sMEMB}, 12")
        a(f"s_add_u32 s{sT0}, s{sT0}, {share * 32 * 4096}")
        for i in range(per):
            if i: a(f"s_add_u32 s{sT0}, s{sT0}, {nshare * 32 * 4096}")
            if n >= 32: a("s_waitcnt vmcnt(31)")
            a(f"buffer_load_dwordx4 {ar((n % 32) * 4, 4)}, v100, s[{sWT}:{sWT+3}], s{sT0} offen")
            n += 1
    a("s_waitcnt vmcnt(0)")

def load_stages(a, stages, meanwhile=None, hooks=None, extra0=0):
    n = len(stages); NS = 8
    for c in range(min(NS, n)): stages[c]["issue"](c % NS)
    if meanwhile: meanwhile()
    issued = min(NS, n)
    for c in range(n + 1):
        if c < n: a(f"s_waitcnt vmcnt({4*(issued-c-1)})")
        a("s_barrier")
        if c >= 1:
            if stages[c - 1].get("post"): stages[c - 1]["post"]((c - 1) % NS)
            if issued < n:
                stages[issued]["issue"](issued % NS); issued += 1
        if c < n:
            stages[c]["consume"](c % NS)
            a("s_waitcnt lgkmcnt(0)")
            if hooks and c in hooks: hooks[c]()
            if TRC.get("trace") and c % 4 == 3:
                a(f"s_mov_b32 s{sT1}, {c}")
                trace(a, TRC, 4, sT1, 127)

def coop_addrs(a, vD0, vD1, vT0, vT1, tmp):
    a(f"v_bfe_u32 v{tmp}, v0, 4, 1")
    a(f"v_lshlrev_b32 v{vD0}, 18, v{tmp}")
    a(f"v_bfe_u32 v{tmp}, v0, 5, 1")
    a(f"v_lshl_add_u32 v{vD0}, v{tmp}, 17, v{vD0}")
    a(f"v_lshrrev_b32 v{tmp}, 4, v0")
    a(f"v_lshlrev_b32 v{tmp}, 1, v{tmp}")
    a(f"v_and_b32 v{vD1}, 15, v0")
    a(f"v_xor_b32 v{tmp}, v{tmp}, v{vD1}")
    a(f"v_lshl_add_u32 v{vD0}, v{tmp}, 4, v{vD0}")
    a(f"v_xor_b32 v{vD1}, 128, v{vD0}")
    a(f"v_lshrrev_b32 v{tmp}, 4, v0")
    a(f"v_lshlrev_b32 v{vT0}, 11, v{tmp}")
    a(f"v_bfe_u32 v{tmp}, v0, 2, 2")
    a(f"v_lshl_add_u32 v{vT0}, v{tmp}, 8, v{vT0}")
    a(f"v_bfe_u32 v{vT1}, v0, 2, 3")
    a(f"v_lshlrev_b32 v{vT1}, 1, v{vT1}")
    a(f"v_bfe_u32 v{tmp}, v0, 1, 1")
    a(f"s_lshl_b32 s{sT0}, s{sWAVE}, 2")
    a(f"v_add_u32 v{tmp}, s{sT0}, v{tmp}")
    a(f"v_xor_b32 v{tmp}, v{tmp}, v{vT1}")
    a(f"v_lshl_add_u32 v{vT0}, v{tmp}, 4, v{vT0}")
    a(f"v_and_b32 v{tmp}, 1, v0")
    a(f"v_lshl_add_u32 v{vT0}, v{tmp}, 3, v{vT0}")
    a(f"v_xor_b32 v{vT1}, 32, v{vT0}")

def coop_issue(a, ptr, J, slot, sBase, vD0, vD1, sLq, who='c'):
    if J == 0: set_srd(a, sWT, ptr, 0x400000)
    a(f"s_add_u32 m0, s{sLq}, {slot*16384}")
    a(f"s_add_u32 s{sT0}, s{sBase}, {J << 19}")
    for q in range(4):
        if q: a(f"s_add_u32 s{sT0}, s{sT0}, {8192-1024}")
        a(f"buffer_load_dwordx4 v{vD0 if q < 2 else vD1}, s[{sWT}:{sWT+3}], s{sT0} offen offset:{q*1024}{' nt' if str(ptr) + who in TRC.get('ntw', ()) else ''} lds")

def coop_reads(a, slot, vT0, vT1, vtmp, dst0, dst1):
    hi = slot >= 4
    for t, dst, va in ((0, dst0, vT0), (1, dst1, vT1)):
        if hi:
            a(f"v_add_u32 v{vtmp}, 0x10000, v{va}"); va = vtmp
        for e4 in range(4):
            off = (slot & 3) * 16384 + (32 * (e4 >> 1) + 4 * (e4 & 1)) * 256
            a(f"ds_read_b64_tr_b16 {xr(dst+2*e4,2)}, v{va} offset:{off}")
```

```python
from gen_common import *

W = f"s[{sWS}:{sWS+3}]"
vL16, vT, vT2, vFo, vOne, vRd = 1, 2, 3, 4, 5, 6
sSeg, sEnd, sFl, sSrc, sDst, sBuf, sLds, sC = 55, 56, 57, 58, 59, 60, 66, 96

def cvt(a, d, s): a(f"v_cvt_pk_bf16_f32 v{d}, v{s}, v{s+1}")
def mfma(a, d, x, y, c):
    a(f"v_mfma_f32_16x16x32_bf16 {vr(d,4)}, {xr(x,4)}, {xr(y,4)}, {vr(c,4) if c is not None else 0}")

def mfma32(a, d, x, y, first):
    a(f"v_mfma_f32_32x32x16_bf16 {vr(d,16)}, {xr(x,4)}, {vr(y,4)}, {0 if first else vr(d,16)}")

def tr32_addr(a, vTR, rowmul_hi):
    a(f"v_lshrrev_b32 v{vT}, 5, v0")
    a(f"v_mul_u32_u24 v{vTR}, {rowmul_hi*64}, v{vT}")
    a(f"v_bfe_u32 v{vT}, v0, 2, 2")
    a(f"v_lshl_add_u32 v{vTR}, v{vT}, 6, v{vTR}")
    a(f"v_bfe_u32 v{vT}, v0, 4, 1")
    a(f"v_lshl_add_u32 v{vTR}, v{vT}, 5, v{vTR}")
    a(f"v_and_b32 v{vT}, 1, v0")
    a(f"v_lshl_add_u32 v{vTR}, v{vT}, 4, v{vTR}")
    a(f"v_bfe_u32 v{vT}, v0, 1, 1")
    a(f"v_lshl_add_u32 v{vTR}, v{vT}, 3, v{vTR}")
    a(f"v_add_u32 v{vTR}, s{sLds}, v{vTR}")

def lane32_addr(a, vdst, mu, mhi, paired):
    a(f"v_bfe_u32 v{vT}, v0, 4, 1")
    a(f"v_mul_u32_u24 v{vdst}, {mu}, v{vT}")
    a(f"v_lshrrev_b32 v{vT}, 5, v0")
    a(f"v_mul_u32_u24 v{vT}, {mhi}, v{vT}")
    a(f"v_add_u32 v{vdst}, v{vdst}, v{vT}")
    if paired:
        a(f"v_bfe_u32 v{vT}, v0, 2, 2")
        a(f"v_lshl_add_u32 v{vdst}, v{vT}, 7, v{vdst}")
        a(f"v_and_b32 v{vT}, 3, v0")
    else:
        a(f"v_and_b32 v{vT}, 15, v0")
    a(f"v_lshl_add_u32 v{vdst}, v{vT}, 4, v{vdst}")

def common_start(a):
    a("v_and_b32 v0, 63, v0")
    a(f"v_lshlrev_b32 v{vL16}, 4, v0")
    a(f"s_lshl_b32 s{sLds}, s{sWAVE}, 15")
    a(f"v_mov_b32 v{vOne}, 1")
    a(f"s_lshl_b32 s{sSeg}, s{sLAY}, 6")
    a(f"s_add_u32 s{sEnd}, s{sSeg}, 64")
    a(f"s_mov_b32 s92, 0")
    a(f"s_mov_b32 s75, 0")
    a(f"s_lshl_b32 s94, s{sLAY}, 21")
    a(f"s_add_u32 s94, s94, {OFF_RING:#x}")

def both_modes(a, name, body, cfg, before=None):
    touch_ring(a, cfg)
    trace(a, cfg, 6, None, vT)
    if not cfg.get("noinit"): wait_init(a)
    else: a("s_barrier")
    if cfg.get("touch_flags", True):
        a(f"s_lshl_b32 s{sT0}, s{sMEMB}, 12")
        a(f"s_lshl_b32 s{sT1}, s{sWAVE}, 10")
        a(f"s_add_u32 s{sT0}, s{sT0}, s{sT1}")
        a(f"s_lshl_b32 s{sT1}, s{sLAY}, 17")
        a(f"s_add_u32 s{sT0}, s{sT0}, s{sT1}")
        a(f"buffer_load_dwordx4 v[100:103], v{vL16}, {W}, s{sT0} offen sc1")
        a("s_waitcnt vmcnt(0)")
    if before: before()
    if cfg.get("force_global"):
        a(f"s_branch L_{name}_G")
    else:
        a(f"s_cmp_eq_u32 s{sLOCAL}, 0")
        a(f"s_cbranch_scc1 L_{name}_G")
    for tag, st in (("L", ""), ("G", " sc1")):
        stamp = Stamps(a, cfg.get("stamp") == name and tag == "L", base=16 if name == "rc" else 4, only=cfg.get("only"))
        a.label(f"L_{name}_{tag}")
        stamp("top")
        a(f"s_lshl_b32 s{sFl}, s{sSeg}, 11")
        body(st, stamp)
        trace(a, cfg, 1, sSeg, vT)
        trace(a, cfg, 5, sSeg, vT)
        stamp("end")
        if stamp.on:
            lab = a.newlab("L_nost")
            a(f"s_and_b32 s{sT0}, s{sSeg}, 63")
            a(f"s_cmp_lg_u32 s{sT0}, {cfg.get('stamp_step', 20)}")
            a(f"s_cbranch_scc1 {lab}")
            def row():
                a(f"s_lshl_b32 s{sT0}, s{sGRP}, 7")
                a(f"s_lshl_b32 s{sT1}, s{sMEMB}, 2")
                a(f"s_add_u32 s{sT0}, s{sT0}, s{sT1}")
                a(f"s_add_u32 s{sT0}, s{sT0}, s{sWAVE}")
            dump_stamps(a, stamp, cfg, row)
            a.label(lab)
        a(f"s_add_u32 s{sSeg}, s{sSeg}, 1")
        a(f"s_cmp_lt_u32 s{sSeg}, s{sEnd}")
        a(f"s_cbranch_scc1 L_{name}_{tag}")
        a("s_waitcnt vmcnt(0)")
        a("s_branch L_done")

sPre, sFlN, vF = 92, 93, 13
sRing, sD0, sD1, sD2, sFlD, sPend = 94, 95, 64, 65, 67, 75
CFG = {}

def RB_(): return CFG.get('ring', 8)

def ring_off(a, dst, sg, part):
    a(f"s_and_b32 s{dst}, s{sg}, {(RB_() if part else 4)-1}")
    a(f"s_lshl_b32 s{dst}, s{dst}, 17")
    a(f"s_add_u32 s{dst}, s{dst}, s{sRing}")
    if part: a(f"s_add_u32 s{dst}, s{dst}, {part:#x}")

def touch_ring(a, cfg):
    R = (4 + RB_()) // 2
    a(f"s_mul_i32 s{sT0}, s{sMEMB}, {R*8192}")
    a(f"s_mul_i32 s{sT1}, s{sWAVE}, {R*2048}")
    a(f"s_add_u32 s{sT0}, s{sT0}, s{sT1}")
    a(f"s_add_u32 s{sT0}, s{sT0}, s{sRing}")
    for i in range(2 * R):
        if i and i % 4 == 0: a(f"s_add_u32 s{sT0}, s{sT0}, 4096")
        a(f"buffer_load_dwordx4 v[100:103], v{vL16}, {W}, s{sT0} offen offset:{(i%4)*1024} sc1")
    a("s_waitcnt vmcnt(0)")

def dma_ops(npiece, phase_bytes):
    NT = ' nt' if (npiece == 4 and CFG.get('nt_o', False)) else ''
    ops = []
    for ph in range(4):
        for i in range(npiece):
            x = []
            if i == 0:
                x.append(f"s_add_u32 m0, s{sD0}, {ph*phase_bytes}")
                x.append(f"s_add_u32 s{sD2}, s{sD1}, {ph*phase_bytes}")
            x.append(f"buffer_load_dwordx4 v{vL16}, {W}, s{sD2} offen offset:{i*1024} sc1{NT} lds")
            ops.append(x)
    return ops

def dma_setup(a, npiece):
    a(f"s_mul_i32 s{sT0}, s{sWAVE}, {npiece*1024}")
    a(f"s_add_u32 s{sD1}, s{sSrc}, s{sT0}")
    a(f"s_add_u32 s{sD0}, s{sBuf}, s{sT0}")

def guarded(a, ops):
    lab = a.newlab("L_g")
    a(f"s_cbranch_vccz {lab}")
    for x in ops: a(x)
    a.label(lab)

def stage_issue(a, npiece, phase_bytes):
    a(f"s_mul_i32 s{sT0}, s{sWAVE}, {npiece*1024}")
    a(f"s_add_u32 s{sT1}, s{sSrc}, s{sT0}")
    a(f"s_add_u32 s{sT0}, s{sBuf}, s{sT0}")
    for ph in range(4):
        a(f"s_add_u32 m0, s{sT0}, {ph*phase_bytes}")
        if ph: a(f"s_add_u32 s{sT1}, s{sT1}, {phase_bytes}")
        for i in range(npiece):
            a(f"buffer_load_dwordx4 v{vL16}, {W}, s{sT1} offen offset:{i*1024} sc1 lds")

def fetch_input(a, cfg, stamp, src_of, npiece, phase_bytes, bufsize, vbase, sFl=sFl):
    lab = a.newlab("L_pre")
    a(f"s_add_u32 s{sFlN}, s{sFl}, 2048")
    a(f"s_cmp_lg_u32 s{sPre}, 0")
    a(f"s_cbranch_scc1 {lab}")
    poll_flags(a, vT, vFo, sFl, sleep=CFG.get('psleep', 1))
    stamp("polled", True)
    src_of(sSeg)
    dma_setup(a, npiece)
    for x in dma_ops(npiece, phase_bytes)[:2 * npiece]:
        for y in x: a(y)
    a.label(lab)
    stamp("flag")
    trace(a, cfg, 0, sSeg, vT)
    a(f"v_add_u32 v{vRd}, s{sBuf}, v{vbase}")
    a(f"s_xor_b32 s{sBuf}, s{sBuf}, {bufsize}")

def resample():
    return f"buffer_load_dword v{vF}, v{vFo}, {W}, s{sFlN} offen sc1"

def finish(a, cfg, fl, st, nstore, npiece, phase_bytes, src_of):
    no = a.newlab('L_noE'); go = a.newlab('L_goE'); fin = a.newlab('L_fin')
    a(f's_mov_b32 s{sFlD}, s{sFl}')
    a(f's_mov_b32 s{sPend}, s{sPre}')
    a(f's_cmp_lg_u32 s{sPre}, 0')
    a(f"s_cbranch_scc1 {fin if CFG.get('pend', True) else no}")
    a(f's_waitcnt vmcnt({nstore})')
    a(f"v_cmp_eq_u32 vcc, 0, v{vF}")
    a(f"s_add_u32 s{sT2}, s{sSeg}, 1")
    a(f"s_cmp_ge_u32 s{sT2}, s{sEnd}")
    a(f"s_cbranch_scc1 {no}")
    a(f"s_cbranch_vccnz {no}")
    src_of(sT2)
    dma_setup(a, npiece)
    for x in dma_ops(npiece, phase_bytes)[:2 * npiece]:
        for y in x: a(y)
    a(f"s_mov_b32 s{sPre}, 1")
    a(f's_waitcnt vmcnt({2*npiece})')
    a(f"s_branch {go}")
    a.label(no)
    a('s_waitcnt vmcnt(0)')
    a.label(go)
    set_flag(a, vOne, sFl, fl, st)
    a.label(fin)

def gemm_phases(a, nks, npiece, extra, rdoffs, ring, step, src_of, phase_bytes, stamp, rs_at, nstore, fl, st, mid=True, nring=3):
    per = nks // 4
    def rd(ks):
        sl = ring + (ks % nring) * 8
        return [f"ds_read_b128 {vr(sl+4*u,4)}, v{vRd} offset:{rdoffs(ks,u)}" for u in range(2)]
    def kstep(ks, more):
        left = nks - 1 - ks
        a(f"s_waitcnt lgkmcnt({2 if left >= 1 else 0})")
        side = (rd(ks + 2) if left >= 2 else []) + more
        step(ks, ring + (ks % nring) * 8, side)
        assert not side
    if CFG.get('pend', True):
        lab = a.newlab("L_np")
        a(f"s_waitcnt vmcnt({npiece+nstore})")
        a(f"s_cmp_lg_u32 s{sPend}, 0")
        a(f"s_cbranch_scc1 {lab}")
    a(f"s_waitcnt vmcnt({npiece})")
    if CFG.get('pend', True): a.label(lab)
    stamp("w0", True)
    a("s_barrier")
    stamp("b0", True)
    for x in rd(0) + rd(1): a(x)
    dq = dma_ops(npiece, phase_bytes)[2 * npiece:]
    dec = CFG.get("dec%d" % nks, 3 * per - 2 if npiece == 2 else 24)
    ops = []
    def gate(q):
        last = max([k for k, x in enumerate(ops) if x == q], default=-1)
        a(f"s_waitcnt vmcnt({len(ops)-1-last})")
        if q == 1 and CFG.get('pend', True):
            lab = a.newlab("L_np")
            a(f"s_cmp_eq_u32 s{sPend}, 0")
            a(f"s_cbranch_scc1 {lab}")
            set_flag(a, vOne, sFlD, fl, st)
            a.label(lab)
        a("s_barrier")
        stamp(f"b{q}", True)
    def common(ks):
        more = []
        for q in (1, 2, 3):
            if ks == q * per - 2: gate(q)
        if dq:
            more.append("\n".join(dq.pop(0))); ops.append(2 + (2 * npiece - len(dq) - 1) // npiece)
        if ks == 2 * npiece:
            for x in extra: more.append(x); ops.append(None)
        return more
    if not mid:
        a(f"s_mov_b32 s{sPre}, 0")
        for ks in range(nks):
            more = common(ks)
            if ks == rs_at: more.append(resample()); ops.append(None)
            kstep(ks, more)
        return
    for ks in range(0, dec):
        more = common(ks)
        if ks == max(2 * npiece, dec - CFG.get('lead%d' % nks, 10 if npiece == 4 else 6)): more.append(resample()); ops.append(None)
        kstep(ks, more)
    no, end = a.newlab("L_Hn"), a.newlab("L_He")
    a("s_waitcnt vmcnt(0)")
    ops.clear()
    a(f"v_cmp_eq_u32 vcc, 0, v{vF}")
    a(f"s_mov_b32 s{sPre}, 0")
    a(f"s_add_u32 s{sT2}, s{sSeg}, 1")
    a(f"s_cmp_ge_u32 s{sT2}, s{sEnd}")
    a(f"s_cbranch_scc1 {no}")
    a(f"s_cbranch_vccnz {no}")
    src_of(sT2)
    dma_setup(a, npiece)
    a(f"s_mov_b32 s{sPre}, 1")
    stamp("dec", True)
    dn = dma_ops(npiece, phase_bytes)[:2 * npiece]
    for ks in range(dec, nks):
        more = []
        if ks == 3 * per - 2: a("s_barrier")
        if dn: more.append("\n".join(dn.pop(0)))
        kstep(ks, more)
    assert not dn
    a(f"s_branch {end}")
    a.label(no)
    for ks in range(dec, nks):
        if ks == 3 * per - 2: a("s_barrier")
        kstep(ks, [resample()] if ks == rs_at else [])
    a.label(end)

def natural_dma64(a, vdst, rowbytes):
    a(f"v_lshrrev_b32 v{vdst}, 2, v0")
    a(f"v_mul_u32_u24 v{vdst}, {rowbytes}, v{vdst}")
    a(f"v_and_b32 v{vT}, 3, v0")
    a(f"v_lshl_add_u32 v{vdst}, v{vT}, 4, v{vdst}")

def img_rd_addr(a, vdst):
    a(f"v_lshrrev_b32 v{vT}, 4, v0")
    a(f"v_lshlrev_b32 v{vT}, 9, v{vT}")
    a(f"v_and_b32 v{vdst}, 15, v0")
    a(f"v_lshl_add_u32 v{vdst}, v{vdst}, 4, v{vT}")

def img2_addr(a, vdst):
    a(f"v_lshrrev_b32 v{vT}, 5, v0")
    a(f"v_lshlrev_b32 v{vdst}, 10, v{vT}")
    a(f"v_bfe_u32 v{vT}, v0, 2, 2")
    a(f"v_lshl_add_u32 v{vdst}, v{vT}, 7, v{vdst}")
    a(f"v_bfe_u32 v{vT}, v0, 4, 1")
    a(f"v_lshl_add_u32 v{vdst}, v{vT}, 6, v{vdst}")
    a(f"v_and_b32 v{vT}, 3, v0")
    a(f"v_lshl_add_u32 v{vdst}, v{vT}, 4, v{vdst}")

sBias, sFlP = 78, 79
def credit_setup(a, vCr, off, n, R):
    a(f"s_mov_b32 s{sBias}, 0")
    a(f"v_and_b32 v{vCr}, {n-1}, v0")
    a(f"v_lshlrev_b32 v{vCr}, 2, v{vCr}")
    a(f"v_add_u32 v{vCr}, {off}, v{vCr}")
    a(f"v_add_u32 v{vT}, {R*2048}, v{vFo}")
    a(f"v_cmp_gt_u32 vcc, 32, v0")
    a(f"v_cndmask_b32 v{vCr}, v{vCr}, v{vT}, vcc")

def credit_switch(a, vCr, R):
    lab = a.newlab("L_nocr")
    a(f"s_and_b32 s{sT0}, s{sSeg}, 63")
    a(f"s_cmp_lg_u32 s{sT0}, {R-1}")
    a(f"s_cbranch_scc1 {lab}")
    a(f"v_mov_b32 v{vFo}, v{vCr}")
    a(f"s_mov_b32 s{sBias}, {R*2048}")
    a(f"s_sub_u32 s{sFlN}, s{sFlN}, {R*2048}")
    a.label(lab)

def role_ra(a, cfg):
    WT = 256
    vD, vTR, vSt, vCr = 96, 97, 7, 8
    sKs, sNs = 61, 62
    a.label("L_ra")
    common_start(a)
    a(f"s_lshr_b32 s{sKs}, s{sMEMB}, 2")
    a(f"s_and_b32 s{sNs}, s{sMEMB}, 3")
    natural_dma64(a, vD, 1024)
    tr32_addr(a, vTR, 4)
    a(f"s_lshl_b32 s{sT2}, s{sKs}, 20")
    a(f"s_lshl_b32 s{sT1}, s{sNs}, 8")
    a(f"s_add_u32 s{sT2}, s{sT2}, s{sT1}")
    a(f"s_lshl_b32 s{sT1}, s{sWAVE}, 6")
    a(f"s_add_u32 s{sT2}, s{sT2}, s{sT1}")
    set_srd(a, sWT, sWO, 0x400000)
    late_start(a, cfg)
    chunks = []
    for ch in range(16):
        def setup(ch=ch): a(f"s_add_u32 s{sT0}, s{sT2}, {ch*65536}")
        def consume(so, ch=ch):
            for e in range(2):
                for hh in range(2):
                    for jh in range(2):
                        a(f"ds_read_b64_tr_b16 {xr(WT+((2*ch+e)*2+hh)*4+2*jh,2)}, v{vTR} offset:{so+(32*e+16*jh+8*hh)*64}")
            a("s_waitcnt lgkmcnt(0)")
        chunks.append(dict(setup=setup, vdma=vD, dstep=16384, consume=consume))
    load_chunks(a, chunks, sLds)
    a(f"v_and_b32 v{vFo}, 31, v0")
    a(f"v_lshlrev_b32 v{vFo}, 2, v{vFo}")
    a(f"s_lshl_b32 s{sT0}, s{sKs}, 7")
    a(f"s_add_u32 s{sT0}, s{sT0}, {F_O}")
    a(f"v_add_u32 v{vFo}, s{sT0}, v{vFo}")
    credit_setup(a, vCr, F_XNB, 8, 4)
    lane32_addr(a, vSt, 512, 64, True)
    lane32_addr(a, 9, 1024, 256, False)
    a(f"s_lshl_b32 s{sT0}, s{sNs}, 13")
    a(f"s_lshl_b32 s{sT1}, s{sWAVE}, 11")
    a(f"s_add_u32 s{sT0}, s{sT0}, s{sT1}")
    a(f"s_lshl_b32 s{sT1}, s{sKs}, 15")
    a(f"s_add_u32 s{sT0}, s{sT0}, s{sT1}")
    a(f"v_add_u32 v{vSt}, s{sT0}, v{vSt}")
    a(f"s_mov_b32 s{sBuf}, 0")
    ACC, RING = 16, 32
    def body(st, stamp):
        def src_of(sg):
            a(f"s_lshl_b32 s{sSrc}, s{sg}, 18")
            a(f"s_lshl_b32 s{sT0}, s{sKs}, 16")
            a(f"s_add_u32 s{sSrc}, s{sSrc}, s{sT0}")
            a(f"s_add_u32 s{sSrc}, s{sSrc}, {OFF_O:#x}")
        a(f"s_sub_u32 s{sFlP}, s{sFl}, s{sBias}")
        fetch_input(a, cfg, stamp, src_of, 4, 16384, 0x10000, 9, sFlP)
        credit_switch(a, vCr, 4)
        ring_off(a, sDst, sSeg, R_PART)
        a(f"s_lshl_b32 s{sT0}, s{sMEMB}, 2")
        a(f"s_add_u32 s{sT0}, s{sT0}, s{sWAVE}")
        a(f"s_lshl_b32 s{sT0}, s{sT0}, 2")
        a(f"s_add_u32 s{sFl}, s{sFl}, s{sT0}")
        def step(ks, fr, side):
            for hh in range(2):
                mfma32(a, ACC, WT + (ks * 2 + hh) * 4, fr + 4 * hh, ks == 0 and hh == 0)
                for _ in range(3):
                    if side: a(side.pop(0))
        gemm_phases(a, 32, 4, [], lambda ks, u: ks * 2048 + u * 512, RING, step, src_of, 16384, stamp, CFG.get('rs_ra', 29), 2, F_PART, st)
        stamp("gemm")
        for u in range(2):
            for i in range(4): cvt(a, 56 + 4 * u + i, ACC + u * 8 + 2 * i)
            a(f"buffer_store_dwordx4 {vr(56+4*u,4)}, v{vSt}, {W}, s{sDst} offen offset:{u*1024}{st}")
        finish(a, cfg, F_PART, st, 2, 4, 16384, src_of)
    both_modes(a, "ra", body, cfg)

def role_rc(a, cfg):
    WT = 256
    vD, vTR, vNeg, vRb = 96, 97, 7, 8
    sHb, sMask, sPrevOK = 61, 76, 62
    a.label("L_rc")
    common_start(a)
    a(f"s_sub_u32 s{sHb}, s{sMEMB}, 16")
    a(f"s_lshl_b32 s{sHb}, s{sHb}, 2")
    a(f"s_add_u32 s{sHb}, s{sHb}, s{sWAVE}")
    a(f"v_lshrrev_b32 v{vD}, 1, v0")
    a(f"v_mul_u32_u24 v{vD}, 3072, v{vD}")
    a(f"v_and_b32 v{vT}, 1, v0")
    a(f"v_lshl_add_u32 v{vD}, v{vT}, 4, v{vD}")
    a(f"v_lshrrev_b32 v{vT}, 4, v0")
    a(f"v_lshlrev_b32 v{vTR}, 8, v{vT}")
    a(f"v_bfe_u32 v{vT}, v0, 2, 2")
    a(f"v_lshl_add_u32 v{vTR}, v{vT}, 5, v{vTR}")
    a(f"v_and_b32 v{vT}, 3, v0")
    a(f"v_lshl_add_u32 v{vTR}, v{vT}, 3, v{vTR}")
    a(f"v_add_u32 v{vTR}, s{sLds}, v{vTR}")
    a(f"s_lshl_b32 s{sT2}, s{sHb}, 5")
    set_srd(a, sWT, sWB, 512 * 3072)
    late_start(a, cfg)
    chunks = []
    for mm in range(3):
        for ch in range(4):
            def setup(mm=mm, ch=ch): a(f"s_add_u32 s{sT0}, s{sT2}, {128*ch*3072 + mm*1024}")
            def consume(so, mm=mm, ch=ch):
                for e in range(4):
                    for jh in range(2):
                        a(f"ds_read_b64_tr_b16 {xr(WT+((4*ch+e)*3+mm)*4+2*jh,2)}, v{vTR} offset:{so+(32*e+4*jh)*32}")
                a("s_waitcnt lgkmcnt(0)")
            chunks.append(dict(setup=setup, vdma=vD, dstep=32 * 3072, consume=consume))
    load_chunks(a, chunks, sLds)
    a(f"v_and_b32 v{vFo}, 7, v0")
    a(f"v_lshlrev_b32 v{vFo}, 2, v{vFo}")
    a(f"v_add_u32 v{vFo}, {F_XNB}, v{vFo}")
    img_rd_addr(a, vRb)
    a(f"v_mov_b32 v{vNeg}, {fbits(-1e9 * 4):#x}")
    a(f"s_mov_b32 s{sC}, {fbits(0.25*1.4426950408889634):#x}")
    a(f"s_mov_b32 s{sC+1}, s{sC}")
    a("v_and_b32 v96, 15, v0")
    a("v_lshrrev_b32 v97, 4, v0")
    a("v_lshlrev_b32 v97, 2, v97")
    for r in range(4):
        a(f"v_add_u32 v98, {r}, v97")
        a(f"v_add_u32 v99, 9, v96")
        a(f"v_cmp_ge_u32 s[{sMask+2*r}:{sMask+2*r+1}], v98, v99")
        a(f"v_sub_u32 v99, v96, v98")
        a(f"v_cmp_ge_u32 s[{sMask+8+2*r}:{sMask+8+2*r+1}], 7, v99")
    KP, VP = (16, 20), (24, 28)
    for r in range(16, 32): a(f"v_mov_b32 v{r}, 0")
    a(f"s_mov_b32 s{sBuf}, 0")
    sPM = 8
    for r in range(4): a(f"s_mov_b64 s[{sPM+2*r}:{sPM+2*r+1}], 0")
    RING, ACC = 32, 56
    def body(st, stamp):
        def src_of(sg):
            ring_off(a, sSrc, sg, R_XNB)
        fetch_input(a, cfg, stamp, src_of, 2, 8192, 0x8000, vRb)
        ring_off(a, sDst, sSeg, R_OB)
        a(f"s_lshl_b32 s{sT0}, s{sHb}, 10")
        a(f"s_add_u32 s{sDst}, s{sDst}, s{sT0}")
        a(f"s_lshl_b32 s{sT0}, s{sHb}, 2")
        a(f"s_add_u32 s{sFl}, s{sFl}, s{sT0}")
        acc = lambda mm, p: ACC + (p * 3 + mm) * 4
        FR = 128
        wq, wk, wv = (lambda ks: WT + ks * 12), (lambda ks: WT + ks * 12 + 4), (lambda ks: WT + ks * 12 + 8)
        def step(ks, fr, side):
            c = lambda x: None if ks == 0 else x
            mfma(a, acc(0, 0), wq(ks), fr, c(acc(0, 0)))
            for _ in range(2):
                if side: a(side.pop(0))
            mfma(a, acc(1, 0), wk(ks), fr, c(acc(1, 0)))
            if side: a(side.pop(0))
            mfma(a, acc(2, 0), fr, wv(ks), c(acc(2, 0)))
            for _ in range(2):
                if side: a(side.pop(0))
        gemm_phases(a, 16, 2, [], lambda ks, u: ks * 2048 + u * 256, FR, step, src_of, 8192, stamp, 99, 1, F_OB, st, mid=False, nring=16)
        stamp("gemm")
        Q = (80, 82); S = (96, 104); B = (84, 88); O = (112, 116); M = (92, 94)
        def xl(op, p):
            out = []
            for sw in ("v_permlane16_swap_b32", "v_permlane32_swap_b32"):
                out += [f"v_mov_b32 v{M[p]+1}, v{M[p]}", None, f"{sw} v{M[p]}, v{M[p]+1}", f"{op} v{M[p]}, v{M[p]}, v{M[p]+1}"]
            return out
        def softmax(p):
            sm = [None] * 3
            sm += [f"v_cvt_pk_bf16_f32 v{Q[p]}, v{acc(0,p)}, v{acc(0,p)+1}", f"v_cvt_pk_bf16_f32 v{Q[p]+1}, v{acc(0,p)+2}, v{acc(0,p)+3}",
                   f"v_cvt_pk_bf16_f32 v{KP[p]+2}, v{acc(1,p)}, v{acc(1,p)+1}", f"v_cvt_pk_bf16_f32 v{KP[p]+3}, v{acc(1,p)+2}, v{acc(1,p)+3}", None,
                   f"v_mfma_f32_16x16x16_bf16 {vr(S[p],4)}, {vr(KP[p],2)}, {vr(Q[p],2)}, 0",
                   f"v_mfma_f32_16x16x16_bf16 {vr(S[p]+4,4)}, {vr(KP[p]+2,2)}, {vr(Q[p],2)}, 0",
                   f"v_mov_b64 {vr(KP[p],2)}, {vr(KP[p]+2,2)}", None, None]
            sm += [f"v_cndmask_b32 v{S[p]+r}, v{vNeg}, v{S[p]+r}, s[{sPM+2*r}:{sPM+2*r+1}]" for r in range(4)]
            sm += [f"v_cndmask_b32 v{S[p]+4+r}, v{vNeg}, v{S[p]+4+r}, s[{sMask+8+2*r}:{sMask+8+2*r+1}]" for r in range(4)]
            sm += [f"v_max3_f32 v{M[p]}, v{S[p]}, v{S[p]+1}, v{S[p]+2}", f"v_max3_f32 v{M[p]}, v{M[p]}, v{S[p]+3}, v{S[p]+4}",
                   f"v_max3_f32 v{M[p]}, v{M[p]}, v{S[p]+5}, v{S[p]+6}", f"v_max_f32 v{M[p]}, v{M[p]}, v{S[p]+7}"]
            sm += xl("v_max_f32", p)
            sm += [f"v_mul_f32 v{M[p]}, s{sC}, v{M[p]}"]
            sm += [f"v_fma_f32 v{S[p]+i}, v{S[p]+i}, s{sC}, -v{M[p]}" for i in range(8)]
            sm += [f"v_exp_f32 v{S[p]+i}, v{S[p]+i}" for i in range(8)]
            sm += [f"v_cvt_pk_bf16_f32 v{B[p]+i}, v{S[p]+2*i}, v{S[p]+2*i+1}" for i in range(4)]
            return sm
        def rsum(p):
            out = []
            for d in (4, 2, 1):
                for i in range(d): out.append(f"v_add_f32 v{S[p]+i if d > 1 else M[p]}, v{S[p]+i}, v{S[p]+i+d}")
            return out + xl("v_add_f32", p) + [f"v_rcp_f32 v{M[p]}, v{M[p]}"]
        def vpack(p): return [f"v_cvt_pk_bf16_f32 v{VP[p]+2}, v{acc(2,p)}, v{acc(2,p)+1}", f"v_cvt_pk_bf16_f32 v{VP[p]+3}, v{acc(2,p)+2}, v{acc(2,p)+3}"]
        def weave(mfmas, side, rate):
            for m_ in mfmas:
                mfma(a, *m_)
                for _ in range(rate):
                    if side:
                        x = side.pop(0)
                        if x: a(x)
        side = softmax(0) + vpack(0)
        mm = []
        for ks in range(16):
            c = lambda x: None if ks == 0 else x
            mm += [(acc(0, 1), wq(ks), FR + 8 * ks + 4, c(acc(0, 1))), (acc(1, 1), wk(ks), FR + 8 * ks + 4, c(acc(1, 1)))]
        weave(mm, side, 2)
        for x in side:
            if x: a(x)
        a(resample())
        side = rsum(0)[:3] + softmax(1)[3:]
        mm = [(acc(2, 1), FR + 8 * ks + 4, wv(ks), None if ks == 0 else acc(2, 1)) for ks in range(16)]
        weave([(O[0], VP[0], B[0], None)] + mm, side, 3)
        for x in side + vpack(1) + rsum(0)[3:7]:
            if x: a(x)
        mfma(a, O[1], VP[1], B[1], None)
        r0, r1 = rsum(0)[7:], rsum(1)
        for x in r1[:7]: a(x)
        for x, y in zip(r0, r1[7:]):
            if x: a(x)
            if y: a(y)
        for p in range(2): a(f"v_mov_b64 {vr(VP[p],2)}, {vr(VP[p]+2,2)}")
        for r in range(4): a(f"s_mov_b64 s[{sPM+2*r}:{sPM+2*r+1}], s[{sMask+2*r}:{sMask+2*r+1}]")
        for p in range(2):
            a(f"v_pk_mul_f32 {vr(O[p],2)}, {vr(O[p],2)}, {vr(M[p],2)} op_sel_hi:[1,0]")
            a(f"v_pk_mul_f32 {vr(O[p]+2,2)}, {vr(O[p]+2,2)}, {vr(M[p],2)} op_sel_hi:[1,0]")
        for p in range(2):
            cvt(a, 80 + 2 * p, O[p]); cvt(a, 81 + 2 * p, O[p] + 2)
        a("v_permlane16_swap_b32 v80, v82")
        a("v_permlane16_swap_b32 v81, v83")
        a(f"buffer_store_dwordx4 v[80:83], v{vL16}, {W}, s{sDst} offen{st}")
        stamp("attn")
        finish(a, cfg, F_OB, st, 1, 2, 8192, src_of)
    both_modes(a, "rc", body, cfg)

def role_rd(a, cfg):
    WT = 256
    vD, vTR, vRb, vX1, vSt0, vSt1 = 96, 97, 8, 9, 10, 11
    sMd, sOb, sX1o, sOm, sOs = 61, 62, 63, 76, 77
    a.label("L_rd")
    common_start(a)
    a(f"s_sub_u32 s{sMd}, s{sMEMB}, 24")
    a(f"s_lshl_b32 s{sMd}, s{sMd}, 2")
    a(f"s_add_u32 s{sMd}, s{sMd}, s{sWAVE}")
    natural_dma64(a, vD, 1024)
    tr32_addr(a, vTR, 8)
    a(f"s_lshl_b32 s{sT2}, s{sMd}, 6")
    set_srd(a, sWT, sWBO, 0x80000)
    late_start(a, cfg)
    chunks = []
    for ch in range(8):
        def setup(ch=ch): a(f"s_add_u32 s{sT0}, s{sT2}, {ch*65536}")
        def consume(so, ch=ch):
            for e in range(2):
                for hh in range(2):
                    for jh in range(2):
                        a(f"ds_read_b64_tr_b16 {xr(WT+((2*ch+e)*2+hh)*4+2*jh,2)}, v{vTR} offset:{so+(32*e+16*hh+4*jh)*64}")
            a("s_waitcnt lgkmcnt(0)")
        chunks.append(dict(setup=setup, vdma=vD, dstep=16384, consume=consume))
    load_chunks(a, chunks, sLds)
    a(f"v_and_b32 v{vFo}, 31, v0")
    a(f"v_lshlrev_b32 v{vFo}, 2, v{vFo}")
    a(f"v_add_u32 v{vFo}, {F_OB}, v{vFo}")
    a(f"s_cmp_eq_u32 s{sLAY}, 0")
    a(f"s_mov_b32 s{sT1}, {F_OB}")
    a(f"s_cselect_b32 s{sT1}, {64*2048+F_XN}, s{sT1}")
    credit_setup(a, 12, f"s{sT1}", 8, RB_())
    lane32_addr(a, vRb, 256, 512, False)
    a(f"s_lshl_b32 s{sT0}, s{sMd}, 11")
    a(f"v_add_u32 v{vX1}, s{sT0}, v{vRb}")
    a(f"s_cmp_eq_u32 s{sLAY}, 0")
    a("s_cbranch_scc1 L_rd_l0")
    set_srd(a, sIN, sOUT, 0x200000)
    a(f"s_mov_b32 s{sOb}, 0")
    a(f"s_mov_b32 s{sOm}, 63")
    a(f"s_mov_b32 s{sOs}, 15")
    a(f"v_and_b32 v{vT}, 15, v0")
    a(f"v_lshlrev_b32 v{vSt0}, 11, v{vT}")
    a(f"v_bfe_u32 v{vT}, v0, 4, 1")
    a(f"v_lshl_add_u32 v{vSt0}, v{vT}, 10, v{vSt0}")
    a(f"v_lshrrev_b32 v{vT}, 5, v0")
    a(f"v_lshl_add_u32 v{vSt0}, v{vT}, 4, v{vSt0}")
    a(f"s_lshl_b32 s{sT0}, s{sMd}, 6")
    a(f"v_add_u32 v{vSt0}, s{sT0}, v{vSt0}")
    a(f"v_add_u32 v{vSt1}, 32, v{vSt0}")
    a("s_branch L_rd_go")
    a.label("L_rd_l0")
    set_srd(a, sIN, sWSP, WS_BYTES)
    a(f"s_add_u32 s{sOb}, s{sRing}, {R_X2:#x}")
    a(f"s_mov_b32 s{sOm}, {RB_()-1}")
    a(f"s_mov_b32 s{sOs}, 17")
    lane32_addr(a, vSt0, 512, 64, True)
    a(f"s_lshl_b32 s{sT0}, s{sMd}, 11")
    a(f"v_add_u32 v{vSt0}, s{sT0}, v{vSt0}")
    a(f"v_add_u32 v{vSt1}, 1024, v{vSt0}")
    a.label("L_rd_go")
    a(f"s_mov_b32 s{sBuf}, 0")
    ACC, RING, XR = 16, 32, 56
    def body(st, stamp):
        def src_of(sg):
            ring_off(a, sSrc, sg, R_OB)
        a(f"s_sub_u32 s{sFlP}, s{sFl}, s{sBias}")
        fetch_input(a, cfg, stamp, src_of, 2, 8192, 0x8000, vRb, sFlP)
        credit_switch(a, 12, RB_())
        ring_off(a, sX1o, sSeg, R_X1)
        extra = [f"buffer_load_dwordx4 {vr(XR+4*u,4)}, v{vX1}, {W}, s{sX1o} offen offset:{u*1024} sc1" for u in range(2)]
        a(f"s_and_b32 s{sDst}, s{sSeg}, s{sOm}")
        a(f"s_lshl_b32 s{sDst}, s{sDst}, s{sOs}")
        a(f"s_add_u32 s{sDst}, s{sDst}, s{sOb}")
        a(f"s_lshl_b32 s{sT0}, s{sMd}, 2")
        a(f"s_add_u32 s{sFl}, s{sFl}, s{sT0}")
        def step(ks, fr, side):
            for hh in range(2):
                mfma32(a, ACC, WT + (ks * 2 + hh) * 4, fr + 4 * hh, ks == 0 and hh == 0)
                for _ in range(3):
                    if side: a(side.pop(0))
        gemm_phases(a, 16, 2, extra, lambda ks, u: ks * 2048 + u * 1024, RING, step, src_of, 8192, stamp, CFG.get('rs_rd', 11), 2, F_X2, st, mid=False)
        stamp("gemm")
        a("s_waitcnt vmcnt(1)")
        for i in range(8):
            a(f"v_lshlrev_b32 v{64+2*i}, 16, v{XR+i}")
            a(f"v_and_b32 v{65+2*i}, 0xffff0000, v{XR+i}")
        for i in range(8 if cfg.get("rd_round") else 0):
            cvt(a, 80 + i, ACC + 2 * i)
        for i in range(8 if cfg.get("rd_round") else 0):
            a(f"v_lshlrev_b32 v{ACC+2*i}, 16, v{80+i}")
            a(f"v_and_b32 v{ACC+2*i+1}, 0xffff0000, v{80+i}")
        for i in range(8):
            a(f"v_pk_add_f32 {vr(ACC+2*i,2)}, {vr(ACC+2*i,2)}, {vr(64+2*i,2)}")
        for u in range(2):
            for i in range(4): cvt(a, 80 + 4 * u + i, ACC + 8 * u + 2 * i)
            if not cfg.get("out_sc1") or st:
                a(f"buffer_store_dwordx4 {vr(80+4*u,4)}, v{(vSt0, vSt1)[u]}, s[{sIN}:{sIN+3}], s{sDst} offen{st}")
            else:
                l1, l2 = a.newlab("L_o1"), a.newlab("L_o2")
                a(f"s_cmp_eq_u32 s{sLAY}, 1")
                a(f"s_cbranch_scc1 {l1}")
                a(f"buffer_store_dwordx4 {vr(80+4*u,4)}, v{(vSt0, vSt1)[u]}, s[{sIN}:{sIN+3}], s{sDst} offen")
                a(f"s_branch {l2}")
                a.label(l1)
                a(f"buffer_store_dwordx4 {vr(80+4*u,4)}, v{(vSt0, vSt1)[u]}, s[{sIN}:{sIN+3}], s{sDst} offen sc1")
                a.label(l2)
        if cfg.get("rd_copy", True):
            def copy(cond):
                lab = a.newlab("L_nocp")
                a(f"s_cmp_{cond}_u32 s{sSeg}, 63")
                a(f"s_cbranch_scc0 {lab}")
                a(f"s_lshl_b32 s{sX1o}, s{sSeg}, 15")
                a(f"s_add_u32 s{sX1o}, s{sX1o}, {OFF_X2R:#x}")
                for u in range(2):
                    a(f"buffer_store_dwordx4 {vr(80+4*u,4)}, v{(vSt0, vSt1)[u]}, {W}, s{sX1o} offen sc1")
                a.label(lab)
            copy("eq")
        finish(a, cfg, F_X2, st, 2, 2, 8192, src_of)
        if cfg.get("rd_copy", True): copy("lt")
    both_modes(a, "rd", body, cfg)

def row_reduce(a, r, t):
    a(f"v_add_f32_dpp v{r}, v{r}, v{r} row_ror:4 row_mask:0xf bank_mask:0xf")
    a(f"v_add_f32_dpp v{r}, v{r}, v{r} row_ror:8 row_mask:0xf bank_mask:0xf")
    xlane_g(a, "v_add_f32", r, t)

def rnd_bf16(a, r):
    a(f"v_cvt_pk_bf16_f32 v{r}, v{r}, v{r}")
    a(f"v_and_b32 v{r}, 0xffff0000, v{r}")

def layernorm(a, X, T, between=()):
    m, t, s, t2 = T, T + 2, T + 4, T + 6
    between = list(between)
    a(f"v_pk_add_f32 {vr(m,2)}, {vr(X,2)}, {vr(X+2,2)}")
    a(f"v_pk_mul_f32 {vr(s,2)}, {vr(X,2)}, {vr(X,2)}")
    a(f"v_pk_fma_f32 {vr(s,2)}, {vr(X+2,2)}, {vr(X+2,2)}, {vr(s,2)}")
    for i in range(4, 32, 2):
        a(f"v_pk_add_f32 {vr(m,2)}, {vr(m,2)}, {vr(X+i,2)}")
        a(f"v_pk_fma_f32 {vr(s,2)}, {vr(X+i,2)}, {vr(X+i,2)}, {vr(s,2)}")
    a(f"v_add_f32 v{m}, v{m}, v{m+1}")
    a(f"v_add_f32 v{s}, v{s}, v{s+1}")
    def gap():
        if between: a(between.pop(0))
    for ror in (4, 8):
        gap()
        a(f"v_add_f32_dpp v{m}, v{m}, v{m} row_ror:{ror} row_mask:0xf bank_mask:0xf")
        a(f"v_add_f32_dpp v{s}, v{s}, v{s} row_ror:{ror} row_mask:0xf bank_mask:0xf")
    for sw in ("v_permlane16_swap_b32", "v_permlane32_swap_b32"):
        a(f"v_mov_b32 v{t}, v{m}")
        a(f"v_mov_b32 v{t2}, v{s}")
        gap()
        a(f"{sw} v{m}, v{t}")
        a(f"{sw} v{s}, v{t2}")
        a(f"v_add_f32 v{m}, v{m}, v{t}")
        a(f"v_add_f32 v{s}, v{s}, v{t2}")
    a(f"v_mul_f32 v{m}, {fbits(1/512):#x}, v{m}")
    a(f"v_mul_f32 v{s}, {fbits(1/512):#x}, v{s}")
    a(f"v_fma_f32 v{s}, -v{m}, v{m}, v{s}")
    a(f"v_max_f32 v{s}, 0, v{s}")
    rnd_bf16(a, m)
    rnd_bf16(a, s)
    a(f"v_add_f32 v{s}, {fbits(1e-5):#x}, v{s}")
    rnd_bf16(a, s)
    a(f"v_sqrt_f32 v{s}, v{s}")
    gap()
    rnd_bf16(a, s)
    a(f"v_rcp_f32 v{s}, v{s}")
    for x in between: a(x)
    a(f"v_mul_f32 v{m}, v{m}, v{s}")
    for i in range(0, 32, 2):
        a(f"v_pk_fma_f32 {vr(X+i,2)}, {vr(X+i,2)}, {vr(s,2)}, {vr(m,2)} op_sel_hi:[1,0,0] neg_lo:[0,0,1] neg_hi:[0,0,1]")

def unpack(a, dst, src, n):
    for i in range(n):
        a(f"v_lshlrev_b32 v{dst+2*i}, 16, v{src+i}")
        a(f"v_and_b32 v{dst+2*i+1}, 0xffff0000, v{src+i}")

def rows_setup(a, sWb):
    c_, gi = 96, 97
    a(f"s_and_b32 s{sT0}, s{sWb}, 1")
    a(f"s_lshr_b32 s{sT1}, s{sWb}, 1")
    a(f"s_lshl_b32 s{sT1}, s{sT1}, 2")
    a(f"v_and_b32 v{c_}, 3, v0")
    a(f"v_add_u32 v{c_}, s{sT1}, v{c_}")
    a(f"v_lshrrev_b32 v{gi}, 2, v0")
    a(f"s_lshl_b32 s{sT1}, s{sT0}, 8")
    a(f"v_lshl_add_u32 v98, v{c_}, 4, s{sT1}")
    a(f"s_lshl_b32 s{sT1}, s{sT0}, 10")
    a(f"v_lshl_add_u32 v99, v{c_}, 11, s{sT1}")
    a(f"s_lshl_b32 s{sT1}, s{sT0}, 9")
    a(f"s_lshr_b32 s{sT2}, s{sWb}, 1")
    a(f"s_lshl_b32 s{sT2}, s{sT2}, 7")
    a(f"s_add_u32 s{sT1}, s{sT1}, s{sT2}")
    a(f"v_and_b32 v102, 7, v0")
    a(f"v_lshl_add_u32 v102, v102, 4, s{sT1}")

def xn_store_addr(a, vP):
    a(f"s_lshl_b32 s{sT1}, s{sT0}, 10")
    a(f"v_lshl_add_u32 v{vP}, v96, 4, s{sT1}")
    a(f"v_lshl_add_u32 v{vP}, v97, 11, v{vP}")

def ln_to_xn(a, X, T, R, P, vP):
    unpack(a, X, R, 16)
    layernorm(a, X, T)
    for g in range(4):
        for dj in range(4):
            half = dj & 1; jh = dj >> 1
            e = 4 * (g >> 1) + 2 * (g & 1) + jh
            a(f"v_cvt_pk_bf16_f32 v{P+4*g+dj}, v{X+8*half+e}, v{X+8*(2+half)+e}")
        a(f"buffer_store_dwordx4 {vr(P+4*g,4)}, v{vP}, {W}, s{sDst} offen offset:{g*256} sc1")

def ln0(a, cfg):
    sWb, sU = 61, 62
    vA, vP = 8, 12
    X, T, P, R = 16, 48, 128, 144
    a(f"s_cmp_eq_u32 s{sLAY}, 0")
    a("s_cbranch_scc1 L_ln0_done")
    a("v_and_b32 v0, 63, v0")
    a(f"v_mov_b32 v{vOne}, 1")
    a(f"s_lshl_b32 s{sU}, s{sMEMB}, 2")
    a(f"s_add_u32 s{sU}, s{sU}, s{sWAVE}")
    a(f"s_and_b32 s{sWb}, s{sU}, 7")
    a(f"s_lshr_b32 s{sU}, s{sU}, 3")
    rows_setup(a, sWb)
    xn_store_addr(a, vP)
    a(f"v_lshrrev_b32 v100, 1, v97")
    a(f"v_and_b32 v101, 1, v97")
    a(f"v_lshl_add_u32 v100, v100, 3, v101")
    a(f"v_lshl_add_u32 v{vA}, v100, 4, v99")
    set_srd(a, sIN, sX, 0x200000)
    a(f"s_lshl_b32 s{sT0}, s{sU}, 15")
    for k in range(4):
        if k: a(f"s_add_u32 s{sT0}, s{sT0}, {16 << 15}")
        for q in range(4):
            a(f"buffer_load_dwordx4 {vr(R+16*k+4*q,4)}, v{vA}, s[{sIN}:{sIN+3}], s{sT0} offen offset:{q*32}")
    trace(a, cfg, 2, None, vT)
    a(f"s_lshl_b32 s{sDst}, s{sU}, 15")
    a(f"s_add_u32 s{sDst}, s{sDst}, {OFF_XN:#x}")
    a(f"s_lshl_b32 s{sFl}, s{sU}, 11")
    a(f"s_lshl_b32 s{sT0}, s{sWb}, 2")
    a(f"s_add_u32 s{sFl}, s{sFl}, s{sT0}")
    a(f"s_mov_b32 s{sU}, 0")
    a("s_waitcnt vmcnt(0)")
    a(f"v_lshrrev_b32 v100, 1, v97")
    a(f"v_lshl_add_u32 v{vA}, v100, 12, v102")
    a.label("L_ln0_loop")
    a(f"s_sub_u32 s{sT0}, s{sDst}, {OFF_XN-OFF_XR:#x}")
    for q in range(4):
        a(f"buffer_store_dwordx4 {vr(R+4*q,4)}, v{vA}, {W}, s{sT0} offen offset:{q*1024} sc1")
    ln_to_xn(a, X, T, R, P, vP)
    for i in range(24): a(f"v_mov_b64 {vr(R+2*i,2)}, {vr(R+16+2*i,2)}")
    if not cfg.get("noinit"):
        lab = a.newlab("L_l0g")
        a(f"s_cmp_lg_u32 s{sU}, 0")
        a(f"s_cbranch_scc1 {lab}")
        wait_init(a, barrier=False)
        trace(a, cfg, 3, None, vT)
        a.label(lab)
    a("s_waitcnt vmcnt(0)")
    set_flag(a, vOne, sFl, F_XN)
    a(f"s_add_u32 s{sDst}, s{sDst}, {16 << 15}")
    a(f"s_add_u32 s{sFl}, s{sFl}, {16 << 11}")
    a(f"s_add_u32 s{sU}, s{sU}, 1")
    trace(a, cfg, 3, sU, vT)
    if cfg.get("ln0_late", False):
        lab = a.newlab("L_l0l")
        a(f"s_cmp_lg_u32 s{sU}, 1")
        a(f"s_cbranch_scc1 {lab}")
        late_start(a, cfg)
        a.label(lab)
    a(f"s_cmp_lt_u32 s{sU}, 4")
    a("s_cbranch_scc1 L_ln0_loop")
    a.label("L_ln0_done")

def role_rows(a, cfg):
    sWb, sIb, sLo = 61, 62, 63
    vA = 8
    vP = 12
    vP2 = 7
    vFx = 13
    c_, gi = 96, 97
    a.label("L_rows")
    common_start(a)
    a(f"s_sub_u32 s{sWb}, s{sMEMB}, 28")
    a(f"s_lshl_b32 s{sT1}, s{sWb}, 2")
    a(f"s_add_u32 s{sT1}, s{sT1}, s{sWAVE}")
    a(f"s_lshl_b32 s{sWb}, s{sWb}, 1")
    a(f"s_and_b32 s{sT0}, s{sWAVE}, 1")
    a(f"s_add_u32 s{sWb}, s{sWb}, s{sT0}")
    a(f"s_lshr_b32 s{sLo}, s{sWAVE}, 1")
    if cfg.get("split_rows", False):
        a(f"s_and_b32 s{sT0}, s{sT1}, 7")
        a(f"s_lshr_b32 s{sT1}, s{sT1}, 3")
        a(f"s_cmp_eq_u32 s{sLAY}, 0")
        a(f"s_cselect_b32 s{sWb}, s{sT0}, s{sWb}")
        a(f"s_cselect_b32 s{sLo}, s{sT1}, s{sLo}")
    rows_setup(a, sWb)
    a(f"s_cmp_eq_u32 s{sLo}, 1")
    a("s_cbranch_scc1 L_re")
    SelLo, SelHi = 104, 108
    X, T, P, R, RN = 16, 48, 128, 112, 192
    a(f"v_lshlrev_b32 v{vFo}, 2, v0")
    a(f"v_add_u32 v{vFo}, {F_PART}, v{vFo}")
    a(f"v_and_b32 v{vFx}, 7, v0")
    a(f"v_lshlrev_b32 v{vFx}, 2, v{vFx}")
    a("v_bfe_u32 v100, v0, 3, 1")
    a("v_lshl_add_u32 v102, v100, 10, v102")
    a("v_lshrrev_b32 v100, 4, v0")
    a(f"v_lshl_add_u32 v{vP2}, v100, 15, v102")
    a("v_bfe_u32 v100, v0, 4, 1")
    a("v_lshlrev_b32 v101, 12, v100")
    a("v_bfe_u32 v100, v0, 5, 1")
    a("v_lshl_add_u32 v101, v100, 11, v101")
    a(f"v_add_u32 v{vA}, v101, v102")
    a("v_bfe_u32 v100, v0, 2, 2")
    a("v_lshl_add_u32 v101, v100, 9, v101")
    a(f"v_add_u32 v{vP}, v101, v98")
    sel_consts(a, 0, 100, selLo=SelLo, selHi=SelHi)
    vCa, vCv, sCr = 9, 10, 76
    a(f"v_and_b32 v{vCa}, 15, v0")
    a(f"v_lshlrev_b32 v{vCa}, 2, v{vCa}")
    a(f"v_add_u32 v{vCa}, {F_X2}, v{vCa}")
    def res_loads(sg):
        a(f"s_lshl_b32 s{sT0}, s{sg}, 15")
        a(f"s_add_u32 s{sT0}, s{sT0}, {OFF_XR:#x}")
        for i in range(4):
            if i: a(f"s_add_u32 s{sT0}, s{sT0}, 8192")
            a(f"buffer_load_dwordx4 {vr(RN+4*i,4)}, v{vA}, {W}, s{sT0} offen sc1")
    def before():
        a(f"s_lshl_b32 s{sFl}, s{sSeg}, 11")
        poll_flags(a, vT, vFx, sFl, sleep=8)
        for _ in range(2):
            a(f"s_add_u32 s{sFl}, s{sFl}, 2048")
            poll_flags(a, vT, vFx, sFl, sleep=8)
        res_loads(sSeg)
        a("s_waitcnt vmcnt(0)")
    def swaps(r):
        return [f"v_permlane16_swap_b32 v{r+4*p+h}, v{r+4*p+2+h}" for p in range(4) for h in range(2)]
    def body(st, stamp):
        ring_off(a, sSrc, sSeg, R_PART)
        for x in swaps(RN): a(x)
        unpack(a, X, RN, 16)
        poll_flags(a, vT, vFo, sFl, sleep=CFG.get('psleep', 1))
        stamp("flag")
        trace(a, cfg, 0, sSeg, vT)
        for n in range(16):
            if n and n % 2 == 0: a(f"s_add_u32 s{sSrc}, s{sSrc}, 4096")
            a(f"buffer_load_dwordx4 {vr(P+4*n,4)}, v{vP2}, {W}, s{sSrc} offen offset:{(n%2)*2048} sc1")
        a(f"s_and_b32 s{sT0}, s{sSeg}, 63")
        a(f"s_cmp_ge_u32 s{sT0}, {RB_()}")
        a(f"s_cselect_b32 s{sCr}, {RB_()*2048+F_PART-F_X2}, 0")
        a(f"s_sub_u32 s{sCr}, s{sFl}, s{sCr}")
        a(f"s_add_u32 s{sCr}, s{sCr}, {F_PART-F_X2}")
        a(f"buffer_load_dword v{vCv}, v{vCa}, {W}, s{sCr} offen sc1")
        a(f"s_add_u32 s{sT0}, s{sSeg}, 1")
        res_loads(sT0)
        ring_off(a, sT2, sSeg, R_X1)
        a(f"s_add_u32 s{sDst}, s{sT2}, {R_XNB-R_X1:#x}")
        a(f"s_lshl_b32 s{sT0}, s{sWb}, 2")
        a(f"s_add_u32 s{sFl}, s{sFl}, s{sT0}")
        for n in range(16):
            a(f"s_waitcnt vmcnt({20-n})")
            mfma(a, X + 4 * (n // 2), (SelLo, SelHi)[n % 2], P + 4 * n, X + 4 * (n // 2))
            if n >= 5 and n % 2 == 1:
                i = (n - 5) // 2
                cvt(a, R + 2 * i, X + 4 * i); cvt(a, R + 2 * i + 1, X + 4 * i + 2)
        stamp("sum")
        lab = a.newlab("L_crok")
        a("s_waitcnt vmcnt(4)")
        a(f"v_cmp_eq_u32 vcc, 0, v{vCv}")
        a(f"s_cbranch_vccz {lab}")
        poll_flags(a, vCv, vCa, sCr, sleep=2)
        a.label(lab)
        for i in range(12, 16): cvt(a, R + i, X + 2 * i)
        for x in swaps(R): a(x)
        stores = []
        for i in range(4):
            stores.append((f"s_add_u32 s{sT2}, s{sT2}, 8192\n" if i else "") + f"buffer_store_dwordx4 {vr(R+4*i,4)}, v{vP}, {W}, s{sT2} offen{st}")
        layernorm(a, X, T, stores)
        for p in range(4):
            for i in range(4): cvt(a, P + 4 * p + i, X + 8 * p + 2 * i)
            for x in swaps(P)[2*p:2*p+2]: a(x)
            if p: a(f"s_add_u32 s{sDst}, s{sDst}, 8192")
            a(f"buffer_store_dwordx4 {vr(P+4*p,4)}, v{vP}, {W}, s{sDst} offen{st}")
        stamp("ln")
        a("s_waitcnt vmcnt(0)")
        set_flag(a, vOne, sFl, F_XNB, st)
    both_modes(a, "rb", body, cfg, before)
    a.label("L_re")
    a(f"v_and_b32 v{vFo}, 15, v0")
    a(f"v_lshlrev_b32 v{vFo}, 2, v{vFo}")
    a(f"v_add_u32 v{vFo}, {F_X2}, v{vFo}")
    xn_store_addr(a, vP)
    a(f"v_lshrrev_b32 v100, 1, v{gi}")
    a(f"v_lshl_add_u32 v{vA}, v100, 12, v102")
    touch_ring(a, cfg)
    a(f"s_cmp_eq_u32 s{sLAY}, 1")
    a("s_cbranch_scc1 L_exit")
    if not cfg.get("noinit"): wait_init(a)
    else: a("s_barrier")
    stamp = Stamps(a, cfg.get("stamp") == "re", base=4, only=cfg.get("only"))
    a.label("L_re_loop")
    stamp("top")
    a(f"s_lshl_b32 s{sFl}, s{sSeg}, 11")
    ring_off(a, sSrc, sSeg, R_X2)
    poll_flags(a, vT, vFo, sFl, sleep=CFG.get('psleep', 1))
    stamp("flag")
    trace(a, cfg, 0, sSeg, vT)
    for q in range(4):
        a(f"buffer_load_dwordx4 {vr(R+4*q,4)}, v{vA}, {W}, s{sSrc} offen offset:{q*1024} sc1")
    a(f"s_lshl_b32 s{sT0}, s{sSeg}, 15")
    a(f"s_add_u32 s{sDst}, s{sT0}, {OFF_XN+(64<<15):#x}")
    a(f"s_add_u32 s{sSrc}, s{sT0}, {OFF_X2R:#x}")
    a(f"s_lshl_b32 s{sT0}, s{sWb}, 2")
    a(f"s_add_u32 s{sFl}, s{sFl}, s{sT0}")
    a(f"s_add_u32 s{sFl}, s{sFl}, {64<<11}")
    a("s_waitcnt vmcnt(0)")
    stamp("ld")
    for q in range(0 if cfg.get("rd_copy", True) else 4):
        a(f"buffer_store_dwordx4 {vr(R+4*q,4)}, v{vA}, {W}, s{sSrc} offen offset:{q*1024} sc1")
    ln_to_xn(a, X, T, R, P, vP)
    stamp("ln")
    a("s_waitcnt vmcnt(0)")
    set_flag(a, vOne, sFl, F_XN)
    trace(a, cfg, 1, sSeg, vT)
    stamp("end")
    if stamp.on:
        lab = a.newlab("L_nost")
        a(f"s_and_b32 s{sT0}, s{sSeg}, 63")
        a(f"s_cmp_lg_u32 s{sT0}, {cfg.get('stamp_step', 20)}")
        a(f"s_cbranch_scc1 {lab}")
        def row():
            a(f"s_lshl_b32 s{sT0}, s{sGRP}, 7")
            a(f"s_lshl_b32 s{sT1}, s{sMEMB}, 2")
            a(f"s_add_u32 s{sT0}, s{sT0}, s{sT1}")
            a(f"s_add_u32 s{sT0}, s{sT0}, s{sWAVE}")
        dump_stamps(a, stamp, cfg, row)
        a.label(lab)
    a(f"s_add_u32 s{sSeg}, s{sSeg}, 1")
    a(f"s_cmp_lt_u32 s{sSeg}, s{sEnd}")
    a("s_cbranch_scc1 L_re_loop")
    a("s_waitcnt vmcnt(0)")
    a("s_branch L_done")

def role_wo(a, cfg):
    CFG.clear(); CFG.update(cfg)
    a.label("L_wo")
    ln0(a, cfg)
    a(f"s_cmp_lt_u32 s{sMEMB}, 16")
    a("s_cbranch_scc1 L_ra")
    a(f"s_cmp_lt_u32 s{sMEMB}, 24")
    a("s_cbranch_scc1 L_rc")
    a(f"s_cmp_lt_u32 s{sMEMB}, 28")
    a("s_cbranch_scc1 L_rd")
    a("s_branch L_rows")
    role_ra(a, cfg); role_rc(a, cfg); role_rd(a, cfg); role_rows(a, cfg)
```

```python
import sys
from gen_common import *
from gen_chain import chain

HEADER = open('interleave_layers__memory_aug_recurrent_mem_tr__sliding_local_dilated__prompt.s.ref').read().split("; Override launch")[0]

GMAP = [("wa",0,0),("wa",1,0),("chain",1,0),("chain",0,0),("wa",0,1),("wa",1,1),("wo",0,0),("wo",1,0)]
WARM = []

def generate(cfg):
    a = Asm()
    cfg.setdefault("latemask", sum(1 << i for i, x in enumerate(cfg.get("gmap", GMAP)) if x[1] == 1))
    TRC.clear(); TRC.update(cfg)
    roles = cfg.get("roles", {"chain", "wa", "wo"})
    a("s_cmp_ge_u32 s2, 256")
    a("s_cbranch_scc1 L_exit")
    a("s_load_dwordx16 s[4:19], s[0:1], 0")
    a("s_load_dwordx8 s[20:27], s[0:1], 64")
    a("s_load_dwordx2 s[28:29], s[0:1], 96")
    a(f"s_getreg_b32 s{sGRP}, hwreg(HW_REG_XCC_ID, 0, 4)")
    a("v_lshrrev_b32 v1, 6, v0")
    a(f"v_readfirstlane_b32 s{sWAVE}, v1")
    a(f"s_mov_b32 s{sLOCAL}, 1")
    a("s_mov_b32 s31, 0")
    if cfg.get("count_redo") or cfg.get("hold_us"): a("s_memrealtime s[100:101]")
    a("s_waitcnt lgkmcnt(0)")
    set_srd(a, sWS, sWSP, WS_BYTES)
    a(f"s_cmp_lg_u32 s{sWAVE}, 0")
    a("s_cbranch_scc1 L_notw0")
    if cfg.get("scramble"):
        a(f"s_lshr_b32 s{sGRP}, s2, {cfg['scramble']}")
        a(f"s_and_b32 s{sGRP}, s{sGRP}, {cfg.get('scramble_mask', 7)}")
    a(f"s_mov_b32 s{sMEMB}, 1")
    a(f"s_mul_i32 s{sT1}, s{sGRP}, 43")
    a(f"s_lshr_b32 s{sT1}, s{sT1}, 7")
    a(f"s_mul_i32 s{sT0}, s{sT1}, 3")
    a(f"s_sub_u32 s{sT0}, s{sGRP}, s{sT0}")
    a(f"s_lshl_b32 s{sT0}, s{sT0}, 6")
    a(f"s_lshl_b32 s{sT1}, s{sT1}, 2")
    a(f"s_add_u32 s{sT0}, s{sT0}, s{sT1}")
    a(f"s_cmp_gt_u32 s{sGRP}, 7")
    a(f"s_cselect_b32 s{sT0}, 12, s{sT0}")
    a(f"s_atomic_add s{sMEMB}, s[{sDBG}:{sDBG+1}], s{sT0} glc")
    a("s_waitcnt lgkmcnt(0)")
    a(f"s_cmp_gt_u32 s{sGRP}, 7")
    a(f"s_cselect_b32 s{sMEMB}, 32, s{sMEMB}")
    a(f"s_cmp_lt_u32 s{sMEMB}, 32")
    a("s_cbranch_scc1 L_haverole")
    count_tickets(a)
    a(f"s_mov_b32 s{sT1}, 1")
    a(f"s_atomic_add s{sT1}, s[{sDBG}:{sDBG+1}], 0x4c glc")
    a("s_waitcnt lgkmcnt(0)")
    for g in range(8):
        a(f"s_mov_b32 s{sGRP}, {g}")
        a(f"s_min_u32 s{sFV}, s{cnt_reg(g)}, 32")
        a(f"s_add_u32 s{sMEMB}, s{sFV}, s{sT1}")
        a(f"s_cmp_lt_u32 s{sMEMB}, 32")
        a("s_cbranch_scc1 L_haverole")
        a(f"s_sub_u32 s{sT1}, s{sMEMB}, 32")
    a(f"s_mov_b32 s{sGRP}, 8")
    a.label("L_haverole")
    a(f"s_lshl_b32 s{sT0}, s{sGRP}, 8")
    a(f"s_or_b32 s{sT0}, s{sT0}, s{sMEMB}")
    a(f"v_mov_b32 v1, s{sT0}")
    a("v_mov_b32 v2, 0x27ff0")
    a("ds_write_b32 v2, v1")
    a("s_waitcnt lgkmcnt(0)")
    a("s_branch L_bar0")
    a.label("L_notw0")
    if cfg.get("warm0"):
        a(f"s_cmp_lt_u32 s{sWAVE}, 2")
        a("s_cbranch_scc1 L_nowarm0")
        a("v_and_b32 v1, 127, v0")
        a("v_lshlrev_b32 v1, 4, v1")
        n = 0
        for ptr in [dict(k=sWK, v=sWV, o=sWO, q=sWQ)[x] for x in cfg["warm0"]]:
            set_srd(a, sWT, ptr, 0x400000)
            a(f"s_lshl_b32 s{sT0}, s2, 11")
            for i in range(8):
                if i: a(f"s_add_u32 s{sT0}, s{sT0}, {1 << 19}")
                a(f"buffer_load_dwordx4 {ar(n*4,4)}, v1, s[{sWT}:{sWT+3}], s{sT0} offen")
                n += 1
        a("s_branch L_bar0")
        a.label("L_nowarm0")
    if not cfg.get("nocodepf"):
        a(f"s_cmp_lg_u32 s{sWAVE}, 1")
        a("s_cbranch_scc1 L_bar0")
        a("s_getpc_b64 s[64:65]")
        a.label("L_pcref")
        a(f"s_lshr_b32 s{sT0}, s2, 3")
        a(f"s_lshl_b32 s{sT0}, s{sT0}, 12")
        a("v_and_b32 v1, 63, v0")
        a(f"v_lshl_add_u32 v1, v1, 6, s{sT0}")
        a("v_min_u32 v1, L_codeend-L_pcref-4, v1")
        a("global_load_dword v255, v1, s[64:65]")
    a.label("L_bar0")
    a("s_barrier")
    a("v_mov_b32 v2, 0x27ff0")
    a("ds_read_b32 v1, v2")
    a("s_waitcnt lgkmcnt(0)")
    a(f"v_readfirstlane_b32 s{sT0}, v1")
    a("s_barrier")
    a(f"s_and_b32 s{sMEMB}, s{sT0}, 31")
    a(f"s_lshr_b32 s{sGRP}, s{sT0}, 8")
    a(f"s_cmp_gt_u32 s{sGRP}, 7")
    a("s_cbranch_scc1 L_exit")
    trace_setup(a, cfg)
    trace(a, cfg, 7, None, 1)
    gmap = cfg.get("gmap", GMAP)
    for g, (role, lay, par) in enumerate(gmap):
        if role not in roles: continue
        lab = a.newlab("L_ng")
        a(f"s_cmp_lg_u32 s{sGRP}, {g}")
        a(f"s_cbranch_scc1 {lab}")
        a(f"s_mov_b32 s{sLAY}, {lay}")
        a(f"s_mov_b32 s{sT3}, {par}")
        warm = cfg.get("warm", WARM)
        initg = cfg.get("initg", [x for x in range(len(gmap)) if gmap[x] in (("chain", 1, 0), ("wa", 1, 1))])
        if g in initg and not cfg.get("noinit"):
            assert len(initg) == 2
            a(f"s_mov_b32 s{sT2}, {initg.index(g)}")
            a(f"s_getpc_b64 s[98:99]")
            a(f"s_branch L_init")
        if g in warm: warm_weights(a, cfg, warm.index(g), len(warm))
        a(f"s_branch L_{role}")
        a.label(lab)
    a.label("L_done")
    trace(a, cfg, 8, None, 1)
    if cfg.get("wb"):
        a(f"s_or_b32 s{sT0}, s{sWAVE}, s{sMEMB}")
        a("s_cbranch_scc1 L_nowb")
        a("buffer_wbl2 sc1")
        a("s_waitcnt vmcnt(0)")
        a.label("L_nowb")
    if cfg.get("hold_us"):
        a.label("L_hold")
        a("s_memrealtime s[70:71]")
        a("s_waitcnt lgkmcnt(0)")
        a("s_sub_u32 s70, s70, s100")
        a(f"s_cmp_lt_u32 s70, {cfg['hold_us']*100}")
        a("s_cbranch_scc1 L_hold")
    a.label("L_exit")
    a("s_endpgm")
    if not cfg.get("noinit"):
        a.label("L_init")
        a(f"s_lshl_b32 s{sT2}, s{sT2}, 5")
        a(f"s_add_u32 s{sT2}, s{sT2}, s{sMEMB}")
        a("v_lshlrev_b32 v1, 4, v0")
        for i in range(4): a(f"v_mov_b32 v{4+i}, 0")
        a(f"s_lshl_b32 s{sT1}, s{sT2}, 12")
        a(f"buffer_store_dwordx4 v[4:7], v1, s[{sWS}:{sWS+3}], s{sT1} offen sc1")
        for i in range(4): a(f"v_mov_b32 v{8+i}, -1")
        a(f"s_mul_i32 s{sT1}, s{sT2}, {cfg.get('ninit', 23)*4096}")
        a(f"s_add_u32 s{sT1}, s{sT1}, {OFF_MEM:#x}")
        for i in range(cfg.get('ninit', 23)):
            if i: a(f"s_add_u32 s{sT1}, s{sT1}, 4096")
            a(f"buffer_store_dwordx4 v[8:11], v1, s[{sWS}:{sWS+3}], s{sT1} offen sc1")
        a("s_waitcnt vmcnt(0)")
        a("s_barrier")
        a(f"s_cmp_lg_u32 s{sWAVE}, 0")
        a("s_cbranch_scc1 L_init_done")
        a(f"s_mov_b32 s{sT1}, 1")
        a(f"s_atomic_add s{sT1}, s[{sDBG}:{sDBG+1}], 0x8c glc")
        a("s_waitcnt lgkmcnt(0)")
        a(f"s_cmp_lg_u32 s{sT1}, 63")
        a("s_cbranch_scc1 L_init_done")
        count_tickets(a)
        a(f"s_mov_b32 s{sT1}, 0x100")
        for g in range(8):
            a(f"s_cmp_ge_u32 s{cnt_reg(g)}, 32")
            a(f"s_cselect_b32 s{sT0}, {1 << g}, 0")
            a(f"s_or_b32 s{sT1}, s{sT1}, s{sT0}")
        a(f"v_mov_b32 v4, s{sT1}")
        a("v_mov_b32 v5, 0")
        a("s_mov_b64 exec, 1")
        a(f"global_store_dword v5, v4, s[{sDBG}:{sDBG+1}] offset:192 sc1")
        a("s_mov_b64 exec, -1")
        a.label("L_init_done")
        a("s_add_u32 s98, s98, 4")
        a("s_addc_u32 s99, s99, 0")
        a("s_setpc_b64 s[98:99]")
    if "chain" in roles:
        if cfg.get("v3"):
            from gen_chain_v3 import chain as ch
        else: ch = chain
        ch(a, True, cfg)
        ch(a, False, cfg)
    if "wa" in roles:
        if cfg.get("wa1"): from gen_wa_v1 import role_wa
        else: from gen_wa import role_wa
        role_wa(a, cfg)
    if "wo" in roles:
        from gen_wo import role_wo
        role_wo(a, cfg)
    a.label("L_codeend")
    a("s_endpgm")
    if cfg.get("drop"):
        a.ins = [x if not x.text.startswith(cfg["drop"]) else Ins("s_nop 2") for x in a.ins]
    nn = a.fix_hazards(verbose=cfg.get("verbose", False), timed=cfg.get("timed", True))
    if cfg.get("align", True):
        fx = align8(a)
        if cfg.get("verbose"): print("align", fx)
    errs = a.check_waits() + check_ptrs(a)
    for e in errs[:20]: print("WAITERR", e)
    body = a.text()
    txt = HEADER + f"""; @launch grid=(256,1,1) block=(256,1,1) lds=163840
.amdgcn_target "amdgcn-amd-amdhsa--gfx950"
.text
.globl {KNAME}
.p2align 8
.type {KNAME},@function
{KNAME}:
{body}.section .rodata,"a"
.p2align 6
.amdhsa_kernel {KNAME}
  .amdhsa_next_free_vgpr 512
  .amdhsa_next_free_sgpr 102
  .amdhsa_accum_offset 256
  .amdhsa_group_segment_fixed_size 0
  .amdhsa_kernarg_size 104
  .amdhsa_user_sgpr_count 2
  .amdhsa_user_sgpr_kernarg_segment_ptr 1
  .amdhsa_system_sgpr_workgroup_id_x 1
  .amdhsa_float_denorm_mode_32 3
.end_amdhsa_kernel
"""
    return txt, nn, errs

if __name__ == "__main__":
    cfg = eval(sys.argv[2]) if len(sys.argv) > 2 else {}
    txt, nn, errs = generate(cfg)
    open(sys.argv[1], "w").write(txt)
    print("nops", nn, "bytes", len(txt), "errs", len(errs))
```

```python
from gen_common import *

W = f"s[{sWS}:{sWS+3}]"
vL16, vT, vT2, vFo, vOne, vRd = 1, 2, 3, 4, 5, 6
sSeg, sEnd, sFl, sSrc, sDst, sBuf, sLds, sC = 55, 56, 57, 58, 59, 60, 66, 96

def cvt(a, d, s): a(f"v_cvt_pk_bf16_f32 v{d}, v{s}, v{s+1}")
def mfma(a, d, x, y, c):
    a(f"v_mfma_f32_16x16x32_bf16 {vr(d,4)}, {xr(x,4)}, {xr(y,4)}, {vr(c,4) if c is not None else 0}")

def mfma32(a, d, x, y, first):
    a(f"v_mfma_f32_32x32x16_bf16 {vr(d,16)}, {xr(x,4)}, {vr(y,4)}, {0 if first else vr(d,16)}")

def tr32_addr(a, vTR, rowmul_hi):
    a(f"v_lshrrev_b32 v{vT}, 5, v0")
    a(f"v_mul_u32_u24 v{vTR}, {rowmul_hi*64}, v{vT}")
    a(f"v_bfe_u32 v{vT}, v0, 2, 2")
    a(f"v_lshl_add_u32 v{vTR}, v{vT}, 6, v{vTR}")
    a(f"v_bfe_u32 v{vT}, v0, 4, 1")
    a(f"v_lshl_add_u32 v{vTR}, v{vT}, 5, v{vTR}")
    a(f"v_and_b32 v{vT}, 1, v0")
    a(f"v_lshl_add_u32 v{vTR}, v{vT}, 4, v{vTR}")
    a(f"v_bfe_u32 v{vT}, v0, 1, 1")
    a(f"v_lshl_add_u32 v{vTR}, v{vT}, 3, v{vTR}")
    a(f"v_add_u32 v{vTR}, s{sLds}, v{vTR}")

def lane32_addr(a, vdst, mu, mhi, paired):
    a(f"v_bfe_u32 v{vT}, v0, 4, 1")
    a(f"v_mul_u32_u24 v{vdst}, {mu}, v{vT}")
    a(f"v_lshrrev_b32 v{vT}, 5, v0")
    a(f"v_mul_u32_u24 v{vT}, {mhi}, v{vT}")
    a(f"v_add_u32 v{vdst}, v{vdst}, v{vT}")
    if paired:
        a(f"v_bfe_u32 v{vT}, v0, 2, 2")
        a(f"v_lshl_add_u32 v{vdst}, v{vT}, 7, v{vdst}")
        a(f"v_and_b32 v{vT}, 3, v0")
    else:
        a(f"v_and_b32 v{vT}, 15, v0")
    a(f"v_lshl_add_u32 v{vdst}, v{vT}, 4, v{vdst}")

def common_start(a):
    a("v_and_b32 v0, 63, v0")
    a(f"v_lshlrev_b32 v{vL16}, 4, v0")
    a(f"s_lshl_b32 s{sLds}, s{sWAVE}, 15")
    a(f"v_mov_b32 v{vOne}, 1")
    a(f"s_lshl_b32 s{sSeg}, s{sLAY}, 6")
    a(f"s_add_u32 s{sEnd}, s{sSeg}, 64")
    a(f"s_mov_b32 s92, 0")
    a(f"s_mov_b32 s75, 0")
    a(f"s_lshl_b32 s94, s{sLAY}, 21")
    a(f"s_add_u32 s94, s94, {OFF_RING:#x}")

def both_modes(a, name, body, cfg, before=None, far=None):
    touch_ring(a, cfg)
    trace(a, cfg, 6, None, vT)
    if not cfg.get("noinit"): wait_init(a)
    else: a("s_barrier")
    if cfg.get("touch_flags", True):
        a(f"s_lshl_b32 s{sT0}, s{sMEMB}, 12")
        a(f"s_lshl_b32 s{sT1}, s{sWAVE}, 10")
        a(f"s_add_u32 s{sT0}, s{sT0}, s{sT1}")
        a(f"s_lshl_b32 s{sT1}, s{sLAY}, 17")
        a(f"s_add_u32 s{sT0}, s{sT0}, s{sT1}")
        a(f"buffer_load_dwordx4 v[100:103], v{vL16}, {W}, s{sT0} offen sc1")
        a("s_waitcnt vmcnt(0)")
    if before: before()
    if cfg.get("force_global"):
        a(f"s_branch L_{name}_G")
    else:
        a(f"s_cmp_eq_u32 s{sLOCAL}, 0")
        a(f"s_cbranch_scc1 L_{name}_G")
        if far is not None:
            a(f"s_cmp_eq_u32 s{far}, 1")
            a(f"s_cbranch_scc1 L_{name}_G")
    for tag, st in (("L", ""), ("G", " sc1")):
        stamp = Stamps(a, cfg.get("stamp") == name and tag == "L", base=16 if name == "rc" else 4, only=cfg.get("only"))
        a.label(f"L_{name}_{tag}")
        stamp("top")
        a(f"s_lshl_b32 s{sFl}, s{sSeg}, 11")
        body(st, stamp)
        trace(a, cfg, 1, sSeg, vT)
        trace(a, cfg, 5, sSeg, vT)
        stamp("end")
        if stamp.on:
            lab = a.newlab("L_nost")
            a(f"s_and_b32 s{sT0}, s{sSeg}, 63")
            a(f"s_cmp_lg_u32 s{sT0}, {cfg.get('stamp_step', 20)}")
            a(f"s_cbranch_scc1 {lab}")
            def row():
                a(f"s_lshl_b32 s{sT0}, s{sGRP}, 7")
                a(f"s_lshl_b32 s{sT1}, s{sMEMB}, 2")
                a(f"s_add_u32 s{sT0}, s{sT0}, s{sT1}")
                a(f"s_add_u32 s{sT0}, s{sT0}, s{sWAVE}")
            dump_stamps(a, stamp, cfg, row)
            a.label(lab)
        a(f"s_add_u32 s{sSeg}, s{sSeg}, 1")
        a(f"s_cmp_lt_u32 s{sSeg}, s{sEnd}")
        a(f"s_cbranch_scc1 L_{name}_{tag}")
        a("s_waitcnt vmcnt(0)")
        a("s_branch L_done")

sPre, sFlN, vF = 92, 93, 13
sRing, sD0, sD1, sD2, sFlD, sPend = 94, 95, 64, 65, 67, 75
CFG = {}

def RB_(): return CFG.get('ring', 8)

def ring_off(a, dst, sg, part):
    a(f"s_and_b32 s{dst}, s{sg}, {(RB_() if part else 4)-1}")
    a(f"s_lshl_b32 s{dst}, s{dst}, 17")
    a(f"s_add_u32 s{dst}, s{dst}, s{sRing}")
    if part: a(f"s_add_u32 s{dst}, s{dst}, {part:#x}")

def touch_ring(a, cfg):
    R = (4 + RB_()) // 2
    a(f"s_mul_i32 s{sT0}, s{sMEMB}, {R*8192}")
    a(f"s_mul_i32 s{sT1}, s{sWAVE}, {R*2048}")
    a(f"s_add_u32 s{sT0}, s{sT0}, s{sT1}")
    a(f"s_add_u32 s{sT0}, s{sT0}, s{sRing}")
    for i in range(2 * R):
        if i and i % 4 == 0: a(f"s_add_u32 s{sT0}, s{sT0}, 4096")
        a(f"buffer_load_dwordx4 v[100:103], v{vL16}, {W}, s{sT0} offen offset:{(i%4)*1024} sc1")
    a("s_waitcnt vmcnt(0)")

def dma_ops(npiece, phase_bytes):
    NT = ' nt' if (npiece == 4 and CFG.get('nt_o', False)) else ''
    ops = []
    for ph in range(4):
        for i in range(npiece):
            x = []
            if i == 0:
                x.append(f"s_add_u32 m0, s{sD0}, {ph*phase_bytes}")
                x.append(f"s_add_u32 s{sD2}, s{sD1}, {ph*phase_bytes}")
            x.append(f"buffer_load_dwordx4 v{vL16}, {W}, s{sD2} offen offset:{i*1024} sc1{NT} lds")
            ops.append(x)
    return ops

def dma_setup(a, npiece):
    a(f"s_mul_i32 s{sT0}, s{sWAVE}, {npiece*1024}")
    a(f"s_add_u32 s{sD1}, s{sSrc}, s{sT0}")
    a(f"s_add_u32 s{sD0}, s{sBuf}, s{sT0}")

def guarded(a, ops):
    lab = a.newlab("L_g")
    a(f"s_cbranch_vccz {lab}")
    for x in ops: a(x)
    a.label(lab)

def stage_issue(a, npiece, phase_bytes):
    a(f"s_mul_i32 s{sT0}, s{sWAVE}, {npiece*1024}")
    a(f"s_add_u32 s{sT1}, s{sSrc}, s{sT0}")
    a(f"s_add_u32 s{sT0}, s{sBuf}, s{sT0}")
    for ph in range(4):
        a(f"s_add_u32 m0, s{sT0}, {ph*phase_bytes}")
        if ph: a(f"s_add_u32 s{sT1}, s{sT1}, {phase_bytes}")
        for i in range(npiece):
            a(f"buffer_load_dwordx4 v{vL16}, {W}, s{sT1} offen offset:{i*1024} sc1 lds")

def fetch_input(a, cfg, stamp, src_of, npiece, phase_bytes, bufsize, vbase, sFl=sFl):
    lab = a.newlab("L_pre")
    a(f"s_add_u32 s{sFlN}, s{sFl}, 2048")
    a(f"s_cmp_lg_u32 s{sPre}, 0")
    a(f"s_cbranch_scc1 {lab}")
    poll_flags(a, vT, vFo, sFl, sleep=CFG.get('psleep', 1))
    stamp("polled", True)
    src_of(sSeg)
    dma_setup(a, npiece)
    for x in dma_ops(npiece, phase_bytes)[:2 * npiece]:
        for y in x: a(y)
    a.label(lab)
    stamp("flag")
    trace(a, cfg, 0, sSeg, vT)
    a(f"v_add_u32 v{vRd}, s{sBuf}, v{vbase}")
    a(f"s_xor_b32 s{sBuf}, s{sBuf}, {bufsize}")

def resample():
    return f"buffer_load_dword v{vF}, v{vFo}, {W}, s{sFlN} offen sc1"

def finish(a, cfg, fl, st, nstore, npiece, phase_bytes, src_of):
    no = a.newlab('L_noE'); go = a.newlab('L_goE'); fin = a.newlab('L_fin')
    a(f's_mov_b32 s{sFlD}, s{sFl}')
    a(f's_mov_b32 s{sPend}, s{sPre}')
    a(f's_cmp_lg_u32 s{sPre}, 0')
    a(f"s_cbranch_scc1 {fin if CFG.get('pend', True) else no}")
    a(f's_waitcnt vmcnt({nstore})')
    a(f"v_cmp_eq_u32 vcc, 0, v{vF}")
    a(f"s_add_u32 s{sT2}, s{sSeg}, 1")
    a(f"s_cmp_ge_u32 s{sT2}, s{sEnd}")
    a(f"s_cbranch_scc1 {no}")
    a(f"s_cbranch_vccnz {no}")
    src_of(sT2)
    dma_setup(a, npiece)
    for x in dma_ops(npiece, phase_bytes)[:2 * npiece]:
        for y in x: a(y)
    a(f"s_mov_b32 s{sPre}, 1")
    a(f's_waitcnt vmcnt({2*npiece})')
    a(f"s_branch {go}")
    a.label(no)
    a('s_waitcnt vmcnt(0)')
    a.label(go)
    set_flag(a, vOne, sFl, fl, st)
    a.label(fin)

def gemm_phases(a, nks, npiece, extra, rdoffs, ring, step, src_of, phase_bytes, stamp, rs_at, nstore, fl, st, mid=True, nring=3):
    per = nks // 4
    def rd(ks):
        sl = ring + (ks % nring) * 8
        return [f"ds_read_b128 {vr(sl+4*u,4)}, v{vRd} offset:{rdoffs(ks,u)}" for u in range(2)]
    def kstep(ks, more):
        left = nks - 1 - ks
        a(f"s_waitcnt lgkmcnt({2 if left >= 1 else 0})")
        side = (rd(ks + 2) if left >= 2 else []) + more
        step(ks, ring + (ks % nring) * 8, side)
        assert not side
    if CFG.get('pend', True):
        lab = a.newlab("L_np")
        a(f"s_waitcnt vmcnt({npiece+nstore})")
        a(f"s_cmp_lg_u32 s{sPend}, 0")
        a(f"s_cbranch_scc1 {lab}")
    a(f"s_waitcnt vmcnt({npiece})")
    if CFG.get('pend', True): a.label(lab)
    stamp("w0", True)
    a("s_barrier")
    stamp("b0", True)
    for x in rd(0) + rd(1): a(x)
    dq = dma_ops(npiece, phase_bytes)[2 * npiece:]
    dec = CFG.get("dec%d" % nks, 3 * per - 2 if npiece == 2 else 24)
    ops = []
    def gate(q):
        last = max([k for k, x in enumerate(ops) if x == q], default=-1)
        a(f"s_waitcnt vmcnt({len(ops)-1-last})")
        if q == 1 and CFG.get('pend', True):
            lab = a.newlab("L_np")
            a(f"s_cmp_eq_u32 s{sPend}, 0")
            a(f"s_cbranch_scc1 {lab}")
            set_flag(a, vOne, sFlD, fl, st)
            a.label(lab)
        a("s_barrier")
        stamp(f"b{q}", True)
    def common(ks):
        more = []
        for q in (1, 2, 3):
            if ks == q * per - 2: gate(q)
        if dq:
            more.append("\n".join(dq.pop(0))); ops.append(2 + (2 * npiece - len(dq) - 1) // npiece)
        if ks == 2 * npiece:
            for x in extra: more.append(x); ops.append(None)
        return more
    if not mid:
        a(f"s_mov_b32 s{sPre}, 0")
        for ks in range(nks):
            more = common(ks)
            if ks == rs_at: more.append(resample()); ops.append(None)
            kstep(ks, more)
        return
    for ks in range(0, dec):
        more = common(ks)
        if ks == max(2 * npiece, dec - CFG.get('lead%d' % nks, 10 if npiece == 4 else 6)): more.append(resample()); ops.append(None)
        kstep(ks, more)
    no, end = a.newlab("L_Hn"), a.newlab("L_He")
    a("s_waitcnt vmcnt(0)")
    ops.clear()
    a(f"v_cmp_eq_u32 vcc, 0, v{vF}")
    a(f"s_mov_b32 s{sPre}, 0")
    a(f"s_add_u32 s{sT2}, s{sSeg}, 1")
    a(f"s_cmp_ge_u32 s{sT2}, s{sEnd}")
    a(f"s_cbranch_scc1 {no}")
    a(f"s_cbranch_vccnz {no}")
    src_of(sT2)
    dma_setup(a, npiece)
    a(f"s_mov_b32 s{sPre}, 1")
    stamp("dec", True)
    dn = dma_ops(npiece, phase_bytes)[:2 * npiece]
    for ks in range(dec, nks):
        more = []
        if ks == 3 * per - 2: a("s_barrier")
        if dn: more.append("\n".join(dn.pop(0)))
        kstep(ks, more)
    assert not dn
    a(f"s_branch {end}")
    a.label(no)
    for ks in range(dec, nks):
        if ks == 3 * per - 2: a("s_barrier")
        kstep(ks, [resample()] if ks == rs_at else [])
    a.label(end)

def natural_dma64(a, vdst, rowbytes):
    a(f"v_lshrrev_b32 v{vdst}, 2, v0")
    a(f"v_mul_u32_u24 v{vdst}, {rowbytes}, v{vdst}")
    a(f"v_and_b32 v{vT}, 3, v0")
    a(f"v_lshl_add_u32 v{vdst}, v{vT}, 4, v{vdst}")

def img_rd_addr(a, vdst):
    a(f"v_lshrrev_b32 v{vT}, 4, v0")
    a(f"v_lshlrev_b32 v{vT}, 9, v{vT}")
    a(f"v_and_b32 v{vdst}, 15, v0")
    a(f"v_lshl_add_u32 v{vdst}, v{vdst}, 4, v{vT}")

def img2_addr(a, vdst):
    a(f"v_lshrrev_b32 v{vT}, 5, v0")
    a(f"v_lshlrev_b32 v{vdst}, 10, v{vT}")
    a(f"v_bfe_u32 v{vT}, v0, 2, 2")
    a(f"v_lshl_add_u32 v{vdst}, v{vT}, 7, v{vdst}")
    a(f"v_bfe_u32 v{vT}, v0, 4, 1")
    a(f"v_lshl_add_u32 v{vdst}, v{vT}, 6, v{vdst}")
    a(f"v_and_b32 v{vT}, 3, v0")
    a(f"v_lshl_add_u32 v{vdst}, v{vT}, 4, v{vdst}")

sBias, sFlP = 78, 79
def credit_setup(a, vCr, off, n, R):
    a(f"s_mov_b32 s{sBias}, 0")
    a(f"v_and_b32 v{vCr}, {n-1}, v0")
    a(f"v_lshlrev_b32 v{vCr}, 2, v{vCr}")
    a(f"v_add_u32 v{vCr}, {off}, v{vCr}")
    a(f"v_add_u32 v{vT}, {R*2048}, v{vFo}")
    a(f"v_cmp_gt_u32 vcc, 32, v0")
    a(f"v_cndmask_b32 v{vCr}, v{vCr}, v{vT}, vcc")

def credit_switch(a, vCr, R):
    lab = a.newlab("L_nocr")
    a(f"s_and_b32 s{sT0}, s{sSeg}, 63")
    a(f"s_cmp_lg_u32 s{sT0}, {R-1}")
    a(f"s_cbranch_scc1 {lab}")
    a(f"v_mov_b32 v{vFo}, v{vCr}")
    a(f"s_mov_b32 s{sBias}, {R*2048}")
    a(f"s_sub_u32 s{sFlN}, s{sFlN}, {R*2048}")
    a.label(lab)

def role_ra(a, cfg):
    WT = 256
    vD, vTR, vSt, vCr = 96, 97, 7, 8
    sKs, sNs = 61, 62
    a.label("L_ra")
    common_start(a)
    a(f"s_lshr_b32 s{sKs}, s{sMEMB}, 2")
    a(f"s_and_b32 s{sNs}, s{sMEMB}, 3")
    natural_dma64(a, vD, 1024)
    tr32_addr(a, vTR, 4)
    a(f"s_lshl_b32 s{sT2}, s{sKs}, 20")
    a(f"s_lshl_b32 s{sT1}, s{sNs}, 8")
    a(f"s_add_u32 s{sT2}, s{sT2}, s{sT1}")
    a(f"s_lshl_b32 s{sT1}, s{sWAVE}, 6")
    a(f"s_add_u32 s{sT2}, s{sT2}, s{sT1}")
    set_srd(a, sWT, sWO, 0x400000)
    late_start(a, cfg)
    chunks = []
    for ch in range(16):
        def setup(ch=ch): a(f"s_add_u32 s{sT0}, s{sT2}, {ch*65536}")
        def consume(so, ch=ch):
            for e in range(2):
                for hh in range(2):
                    for jh in range(2):
                        a(f"ds_read_b64_tr_b16 {xr(WT+((2*ch+e)*2+hh)*4+2*jh,2)}, v{vTR} offset:{so+(32*e+16*jh+8*hh)*64}")
            a("s_waitcnt lgkmcnt(0)")
        chunks.append(dict(setup=setup, vdma=vD, dstep=16384, consume=consume))
    load_chunks(a, chunks, sLds)
    a(f"v_and_b32 v{vFo}, 31, v0")
    a(f"v_lshlrev_b32 v{vFo}, 2, v{vFo}")
    a(f"s_lshl_b32 s{sT0}, s{sKs}, 7")
    a(f"s_add_u32 s{sT0}, s{sT0}, {F_O}")
    a(f"v_add_u32 v{vFo}, s{sT0}, v{vFo}")
    credit_setup(a, vCr, F_XNB, 8, 4)
    lane32_addr(a, vSt, 512, 64, True)
    lane32_addr(a, 9, 1024, 256, False)
    a(f"s_lshl_b32 s{sT0}, s{sNs}, 13")
    a(f"s_lshl_b32 s{sT1}, s{sWAVE}, 11")
    a(f"s_add_u32 s{sT0}, s{sT0}, s{sT1}")
    a(f"s_lshl_b32 s{sT1}, s{sKs}, 15")
    a(f"s_add_u32 s{sT0}, s{sT0}, s{sT1}")
    a(f"v_add_u32 v{vSt}, s{sT0}, v{vSt}")
    a(f"s_mov_b32 s{sBuf}, 0")
    ACC, RING = 16, 32
    def body(st, stamp):
        def src_of(sg):
            a(f"s_lshl_b32 s{sSrc}, s{sg}, 18")
            a(f"s_lshl_b32 s{sT0}, s{sKs}, 16")
            a(f"s_add_u32 s{sSrc}, s{sSrc}, s{sT0}")
            a(f"s_add_u32 s{sSrc}, s{sSrc}, {OFF_O:#x}")
        a(f"s_sub_u32 s{sFlP}, s{sFl}, s{sBias}")
        fetch_input(a, cfg, stamp, src_of, 4, 16384, 0x10000, 9, sFlP)
        credit_switch(a, vCr, 4)
        ring_off(a, sDst, sSeg, R_PART)
        a(f"s_lshl_b32 s{sT0}, s{sMEMB}, 2")
        a(f"s_add_u32 s{sT0}, s{sT0}, s{sWAVE}")
        a(f"s_lshl_b32 s{sT0}, s{sT0}, 2")
        a(f"s_add_u32 s{sFl}, s{sFl}, s{sT0}")
        def step(ks, fr, side):
            for hh in range(2):
                mfma32(a, ACC, WT + (ks * 2 + hh) * 4, fr + 4 * hh, ks == 0 and hh == 0)
                for _ in range(3):
                    if side: a(side.pop(0))
        gemm_phases(a, 32, 4, [], lambda ks, u: ks * 2048 + u * 512, RING, step, src_of, 16384, stamp, CFG.get('rs_ra', 29), 2, F_PART, st)
        stamp("gemm")
        for u in range(2):
            for i in range(4): cvt(a, 56 + 4 * u + i, ACC + u * 8 + 2 * i)
            a(f"buffer_store_dwordx4 {vr(56+4*u,4)}, v{vSt}, {W}, s{sDst} offen offset:{u*1024}{st}")
        finish(a, cfg, F_PART, st, 2, 4, 16384, src_of)
    both_modes(a, "ra", body, cfg)

def role_rc(a, cfg):
    WT = 256
    vD, vTR, vNeg, vRb = 96, 97, 7, 8
    sHb, sMask, sPrevOK = 61, 76, 62
    a.label("L_rc")
    common_start(a)
    a(f"s_sub_u32 s{sHb}, s{sMEMB}, 16")
    a(f"s_lshl_b32 s{sHb}, s{sHb}, 2")
    a(f"s_add_u32 s{sHb}, s{sHb}, s{sWAVE}")
    a(f"v_lshrrev_b32 v{vD}, 1, v0")
    a(f"v_mul_u32_u24 v{vD}, 3072, v{vD}")
    a(f"v_and_b32 v{vT}, 1, v0")
    a(f"v_lshl_add_u32 v{vD}, v{vT}, 4, v{vD}")
    a(f"v_lshrrev_b32 v{vT}, 4, v0")
    a(f"v_lshlrev_b32 v{vTR}, 8, v{vT}")
    a(f"v_bfe_u32 v{vT}, v0, 2, 2")
    a(f"v_lshl_add_u32 v{vTR}, v{vT}, 5, v{vTR}")
    a(f"v_and_b32 v{vT}, 3, v0")
    a(f"v_lshl_add_u32 v{vTR}, v{vT}, 3, v{vTR}")
    a(f"v_add_u32 v{vTR}, s{sLds}, v{vTR}")
    a(f"s_lshl_b32 s{sT2}, s{sHb}, 5")
    set_srd(a, sWT, sWB, 512 * 3072)
    late_start(a, cfg)
    chunks = []
    for mm in range(3):
        for ch in range(4):
            def setup(mm=mm, ch=ch): a(f"s_add_u32 s{sT0}, s{sT2}, {128*ch*3072 + mm*1024}")
            def consume(so, mm=mm, ch=ch):
                for e in range(4):
                    for jh in range(2):
                        a(f"ds_read_b64_tr_b16 {xr(WT+((4*ch+e)*3+mm)*4+2*jh,2)}, v{vTR} offset:{so+(32*e+4*jh)*32}")
                a("s_waitcnt lgkmcnt(0)")
            chunks.append(dict(setup=setup, vdma=vD, dstep=32 * 3072, consume=consume))
    load_chunks(a, chunks, sLds)
    a(f"v_and_b32 v{vFo}, 7, v0")
    a(f"v_lshlrev_b32 v{vFo}, 2, v{vFo}")
    a(f"v_add_u32 v{vFo}, {F_XNB}, v{vFo}")
    img_rd_addr(a, vRb)
    a(f"v_mov_b32 v{vNeg}, {fbits(-1e9 * 4):#x}")
    a(f"s_mov_b32 s{sC}, {fbits(0.25*1.4426950408889634):#x}")
    a(f"s_mov_b32 s{sC+1}, s{sC}")
    a("v_and_b32 v96, 15, v0")
    a("v_lshrrev_b32 v97, 4, v0")
    a("v_lshlrev_b32 v97, 2, v97")
    for r in range(4):
        a(f"v_add_u32 v98, {r}, v97")
        a(f"v_add_u32 v99, 9, v96")
        a(f"v_cmp_ge_u32 s[{sMask+2*r}:{sMask+2*r+1}], v98, v99")
        a(f"v_sub_u32 v99, v96, v98")
        a(f"v_cmp_ge_u32 s[{sMask+8+2*r}:{sMask+8+2*r+1}], 7, v99")
    KP, VP = (16, 20), (24, 28)
    for r in range(16, 32): a(f"v_mov_b32 v{r}, 0")
    a(f"s_mov_b32 s{sBuf}, 0")
    sPM = 8
    for r in range(4): a(f"s_mov_b64 s[{sPM+2*r}:{sPM+2*r+1}], 0")
    RING, ACC = 32, 56
    def body(st, stamp):
        def src_of(sg):
            ring_off(a, sSrc, sg, R_XNB)
        fetch_input(a, cfg, stamp, src_of, 2, 8192, 0x8000, vRb)
        ring_off(a, sDst, sSeg, R_OB)
        a(f"s_lshl_b32 s{sT0}, s{sHb}, 10")
        a(f"s_add_u32 s{sDst}, s{sDst}, s{sT0}")
        a(f"s_lshl_b32 s{sT0}, s{sHb}, 2")
        a(f"s_add_u32 s{sFl}, s{sFl}, s{sT0}")
        acc = lambda mm, p: ACC + (p * 3 + mm) * 4
        FR = 128
        wq, wk, wv = (lambda ks: WT + ks * 12), (lambda ks: WT + ks * 12 + 4), (lambda ks: WT + ks * 12 + 8)
        def step(ks, fr, side):
            c = lambda x: None if ks == 0 else x
            mfma(a, acc(0, 0), wq(ks), fr, c(acc(0, 0)))
            for _ in range(2):
                if side: a(side.pop(0))
            mfma(a, acc(1, 0), wk(ks), fr, c(acc(1, 0)))
            if side: a(side.pop(0))
            mfma(a, acc(2, 0), fr, wv(ks), c(acc(2, 0)))
            for _ in range(2):
                if side: a(side.pop(0))
        gemm_phases(a, 16, 2, [], lambda ks, u: ks * 2048 + u * 256, FR, step, src_of, 8192, stamp, 99, 1, F_OB, st, mid=False, nring=16)
        stamp("gemm")
        Q = (80, 82); S = (96, 104); B = (84, 88); O = (112, 116); M = (92, 94)
        def xl(op, p):
            out = []
            for sw in ("v_permlane16_swap_b32", "v_permlane32_swap_b32"):
                out += [f"v_mov_b32 v{M[p]+1}, v{M[p]}", None, f"{sw} v{M[p]}, v{M[p]+1}", f"{op} v{M[p]}, v{M[p]}, v{M[p]+1}"]
            return out
        def softmax(p):
            sm = [None] * 3
            sm += [f"v_cvt_pk_bf16_f32 v{Q[p]}, v{acc(0,p)}, v{acc(0,p)+1}", f"v_cvt_pk_bf16_f32 v{Q[p]+1}, v{acc(0,p)+2}, v{acc(0,p)+3}",
                   f"v_cvt_pk_bf16_f32 v{KP[p]+2}, v{acc(1,p)}, v{acc(1,p)+1}", f"v_cvt_pk_bf16_f32 v{KP[p]+3}, v{acc(1,p)+2}, v{acc(1,p)+3}", None,
                   f"v_mfma_f32_16x16x16_bf16 {vr(S[p],4)}, {vr(KP[p],2)}, {vr(Q[p],2)}, 0",
                   f"v_mfma_f32_16x16x16_bf16 {vr(S[p]+4,4)}, {vr(KP[p]+2,2)}, {vr(Q[p],2)}, 0",
                   f"v_mov_b64 {vr(KP[p],2)}, {vr(KP[p]+2,2)}", None, None]
            sm += [f"v_cndmask_b32 v{S[p]+r}, v{vNeg}, v{S[p]+r}, s[{sPM+2*r}:{sPM+2*r+1}]" for r in range(4)]
            sm += [f"v_cndmask_b32 v{S[p]+4+r}, v{vNeg}, v{S[p]+4+r}, s[{sMask+8+2*r}:{sMask+8+2*r+1}]" for r in range(4)]
            sm += [f"v_max3_f32 v{M[p]}, v{S[p]}, v{S[p]+1}, v{S[p]+2}", f"v_max3_f32 v{M[p]}, v{M[p]}, v{S[p]+3}, v{S[p]+4}",
                   f"v_max3_f32 v{M[p]}, v{M[p]}, v{S[p]+5}, v{S[p]+6}", f"v_max_f32 v{M[p]}, v{M[p]}, v{S[p]+7}"]
            sm += xl("v_max_f32", p)
            sm += [f"v_mul_f32 v{M[p]}, s{sC}, v{M[p]}"]
            sm += [f"v_fma_f32 v{S[p]+i}, v{S[p]+i}, s{sC}, -v{M[p]}" for i in range(8)]
            sm += [f"v_exp_f32 v{S[p]+i}, v{S[p]+i}" for i in range(8)]
            sm += [f"v_cvt_pk_bf16_f32 v{B[p]+i}, v{S[p]+2*i}, v{S[p]+2*i+1}" for i in range(4)]
            return sm
        def rsum(p):
            out = []
            for d in (4, 2, 1):
                for i in range(d): out.append(f"v_add_f32 v{S[p]+i if d > 1 else M[p]}, v{S[p]+i}, v{S[p]+i+d}")
            return out + xl("v_add_f32", p) + [f"v_rcp_f32 v{M[p]}, v{M[p]}"]
        def vpack(p): return [f"v_cvt_pk_bf16_f32 v{VP[p]+2}, v{acc(2,p)}, v{acc(2,p)+1}", f"v_cvt_pk_bf16_f32 v{VP[p]+3}, v{acc(2,p)+2}, v{acc(2,p)+3}"]
        def weave(mfmas, side, rate):
            for m_ in mfmas:
                mfma(a, *m_)
                for _ in range(rate):
                    if side:
                        x = side.pop(0)
                        if x: a(x)
        side = softmax(0) + vpack(0)
        mm = []
        for ks in range(16):
            c = lambda x: None if ks == 0 else x
            mm += [(acc(0, 1), wq(ks), FR + 8 * ks + 4, c(acc(0, 1))), (acc(1, 1), wk(ks), FR + 8 * ks + 4, c(acc(1, 1)))]
        weave(mm, side, 2)
        for x in side:
            if x: a(x)
        a(resample())
        side = rsum(0)[:3] + softmax(1)[3:]
        mm = [(acc(2, 1), FR + 8 * ks + 4, wv(ks), None if ks == 0 else acc(2, 1)) for ks in range(16)]
        weave([(O[0], VP[0], B[0], None)] + mm, side, 3)
        for x in side + vpack(1) + rsum(0)[3:7]:
            if x: a(x)
        mfma(a, O[1], VP[1], B[1], None)
        r0, r1 = rsum(0)[7:], rsum(1)
        for x in r1[:7]: a(x)
        for x, y in zip(r0, r1[7:]):
            if x: a(x)
            if y: a(y)
        for p in range(2): a(f"v_mov_b64 {vr(VP[p],2)}, {vr(VP[p]+2,2)}")
        for r in range(4): a(f"s_mov_b64 s[{sPM+2*r}:{sPM+2*r+1}], s[{sMask+2*r}:{sMask+2*r+1}]")
        for p in range(2):
            a(f"v_pk_mul_f32 {vr(O[p],2)}, {vr(O[p],2)}, {vr(M[p],2)} op_sel_hi:[1,0]")
            a(f"v_pk_mul_f32 {vr(O[p]+2,2)}, {vr(O[p]+2,2)}, {vr(M[p],2)} op_sel_hi:[1,0]")
        for p in range(2):
            cvt(a, 80 + 2 * p, O[p]); cvt(a, 81 + 2 * p, O[p] + 2)
        a("v_permlane16_swap_b32 v80, v82")
        a("v_permlane16_swap_b32 v81, v83")
        a(f"buffer_store_dwordx4 v[80:83], v{vL16}, {W}, s{sDst} offen{st}")
        stamp("attn")
        finish(a, cfg, F_OB, st, 1, 2, 8192, src_of)
    both_modes(a, "rc", body, cfg)

def role_rd(a, cfg):
    WT = 256
    vD, vTR, vRb, vX1, vSt0, vSt1 = 96, 97, 8, 9, 10, 11
    sMd, sOb, sX1o, sOm, sOs, sFar = 61, 62, 63, 76, 77, 80
    a.label("L_rd")
    common_start(a)
    a(f"s_sub_u32 s{sMd}, s{sMEMB}, 24")
    a(f"s_lshl_b32 s{sMd}, s{sMd}, 2")
    a(f"s_add_u32 s{sMd}, s{sMd}, s{sWAVE}")
    natural_dma64(a, vD, 1024)
    tr32_addr(a, vTR, 8)
    a(f"s_lshl_b32 s{sT2}, s{sMd}, 6")
    set_srd(a, sWT, sWBO, 0x80000)
    late_start(a, cfg)
    chunks = []
    for ch in range(8):
        def setup(ch=ch): a(f"s_add_u32 s{sT0}, s{sT2}, {ch*65536}")
        def consume(so, ch=ch):
            for e in range(2):
                for hh in range(2):
                    for jh in range(2):
                        a(f"ds_read_b64_tr_b16 {xr(WT+((2*ch+e)*2+hh)*4+2*jh,2)}, v{vTR} offset:{so+(32*e+16*hh+4*jh)*64}")
            a("s_waitcnt lgkmcnt(0)")
        chunks.append(dict(setup=setup, vdma=vD, dstep=16384, consume=consume))
    load_chunks(a, chunks, sLds)
    a(f"v_and_b32 v{vFo}, 31, v0")
    a(f"v_lshlrev_b32 v{vFo}, 2, v{vFo}")
    a(f"v_add_u32 v{vFo}, {F_OB}, v{vFo}")
    a(f"s_cmp_eq_u32 s{sLAY}, 0")
    a(f"s_mov_b32 s{sT1}, {F_OB}")
    a(f"s_cselect_b32 s{sT1}, {64*2048+F_XN}, s{sT1}")
    credit_setup(a, 12, f"s{sT1}", 8, RB_())
    lane32_addr(a, vRb, 256, 512, False)
    a(f"s_lshl_b32 s{sT0}, s{sMd}, 11")
    a(f"v_add_u32 v{vX1}, s{sT0}, v{vRb}")
    a(f"s_mov_b32 s{sFar}, 0")
    a(f"s_cmp_eq_u32 s{sLAY}, 0")
    a("s_cbranch_scc1 L_rd_l0")
    set_srd(a, sIN, sOUT, 0x200000)
    a(f"s_mov_b32 s{sOb}, 0")
    a(f"s_mov_b32 s{sOm}, 63")
    a(f"s_mov_b32 s{sOs}, 15")
    a(f"v_and_b32 v{vT}, 15, v0")
    a(f"v_lshlrev_b32 v{vSt0}, 11, v{vT}")
    a(f"v_bfe_u32 v{vT}, v0, 4, 1")
    a(f"v_lshl_add_u32 v{vSt0}, v{vT}, 10, v{vSt0}")
    a(f"v_lshrrev_b32 v{vT}, 5, v0")
    a(f"v_lshl_add_u32 v{vSt0}, v{vT}, 4, v{vSt0}")
    a(f"s_lshl_b32 s{sT0}, s{sMd}, 6")
    a(f"v_add_u32 v{vSt0}, s{sT0}, v{vSt0}")
    a(f"v_add_u32 v{vSt1}, 32, v{vSt0}")
    a("s_branch L_rd_go")
    a.label("L_rd_l0")
    set_srd(a, sIN, sWSP, WS_BYTES)
    if cfg.get("re_far", False):
        a(f"s_mov_b32 s{sOb}, {OFF_X2R:#x}")
        a(f"s_mov_b32 s{sOm}, 63")
        a(f"s_mov_b32 s{sOs}, 15")
        a(f"s_mov_b32 s{sFar}, 1")
    else:
        a(f"s_add_u32 s{sOb}, s{sRing}, {R_X2:#x}")
        a(f"s_mov_b32 s{sOm}, {RB_()-1}")
        a(f"s_mov_b32 s{sOs}, 17")
    lane32_addr(a, vSt0, 512, 64, True)
    a(f"s_lshl_b32 s{sT0}, s{sMd}, 11")
    a(f"v_add_u32 v{vSt0}, s{sT0}, v{vSt0}")
    a(f"v_add_u32 v{vSt1}, 1024, v{vSt0}")
    a.label("L_rd_go")
    a(f"s_mov_b32 s{sBuf}, 0")
    ACC, RING, XR = 16, 32, 56
    def body(st, stamp):
        def src_of(sg):
            ring_off(a, sSrc, sg, R_OB)
        a(f"s_sub_u32 s{sFlP}, s{sFl}, s{sBias}")
        fetch_input(a, cfg, stamp, src_of, 2, 8192, 0x8000, vRb, sFlP)
        credit_switch(a, 12, RB_())
        ring_off(a, sX1o, sSeg, R_X1)
        extra = [f"buffer_load_dwordx4 {vr(XR+4*u,4)}, v{vX1}, {W}, s{sX1o} offen offset:{u*1024} sc1" for u in range(2)]
        a(f"s_and_b32 s{sDst}, s{sSeg}, s{sOm}")
        a(f"s_lshl_b32 s{sDst}, s{sDst}, s{sOs}")
        a(f"s_add_u32 s{sDst}, s{sDst}, s{sOb}")
        a(f"s_lshl_b32 s{sT0}, s{sMd}, 2")
        a(f"s_add_u32 s{sFl}, s{sFl}, s{sT0}")
        def step(ks, fr, side):
            for hh in range(2):
                mfma32(a, ACC, WT + (ks * 2 + hh) * 4, fr + 4 * hh, ks == 0 and hh == 0)
                for _ in range(3):
                    if side: a(side.pop(0))
        gemm_phases(a, 16, 2, extra, lambda ks, u: ks * 2048 + u * 1024, RING, step, src_of, 8192, stamp, CFG.get('rs_rd', 11), 2, F_X2, st, mid=False)
        stamp("gemm")
        a("s_waitcnt vmcnt(1)")
        for i in range(8):
            a(f"v_lshlrev_b32 v{64+2*i}, 16, v{XR+i}")
            a(f"v_and_b32 v{65+2*i}, 0xffff0000, v{XR+i}")
        for i in range(8 if cfg.get("rd_round") else 0):
            cvt(a, 80 + i, ACC + 2 * i)
        for i in range(8 if cfg.get("rd_round") else 0):
            a(f"v_lshlrev_b32 v{ACC+2*i}, 16, v{80+i}")
            a(f"v_and_b32 v{ACC+2*i+1}, 0xffff0000, v{80+i}")
        for i in range(8):
            a(f"v_pk_add_f32 {vr(ACC+2*i,2)}, {vr(ACC+2*i,2)}, {vr(64+2*i,2)}")
        for u in range(2):
            for i in range(4): cvt(a, 80 + 4 * u + i, ACC + 8 * u + 2 * i)
            if not cfg.get("out_sc1") or st:
                a(f"buffer_store_dwordx4 {vr(80+4*u,4)}, v{(vSt0, vSt1)[u]}, s[{sIN}:{sIN+3}], s{sDst} offen{st}")
            else:
                l1, l2 = a.newlab("L_o1"), a.newlab("L_o2")
                a(f"s_cmp_eq_u32 s{sLAY}, 1")
                a(f"s_cbranch_scc1 {l1}")
                a(f"buffer_store_dwordx4 {vr(80+4*u,4)}, v{(vSt0, vSt1)[u]}, s[{sIN}:{sIN+3}], s{sDst} offen")
                a(f"s_branch {l2}")
                a.label(l1)
                a(f"buffer_store_dwordx4 {vr(80+4*u,4)}, v{(vSt0, vSt1)[u]}, s[{sIN}:{sIN+3}], s{sDst} offen sc1")
                a.label(l2)
        if cfg.get("rd_copy", True) and not cfg.get("re_far", False):
            def copy(cond):
                lab = a.newlab("L_nocp")
                a(f"s_cmp_{cond}_u32 s{sSeg}, 63")
                a(f"s_cbranch_scc0 {lab}")
                a(f"s_lshl_b32 s{sX1o}, s{sSeg}, 15")
                a(f"s_add_u32 s{sX1o}, s{sX1o}, {OFF_X2R:#x}")
                for u in range(2):
                    a(f"buffer_store_dwordx4 {vr(80+4*u,4)}, v{(vSt0, vSt1)[u]}, {W}, s{sX1o} offen sc1")
                a.label(lab)
            copy("eq")
        finish(a, cfg, F_X2, st, 2, 2, 8192, src_of)
        if cfg.get("rd_copy", True) and not cfg.get("re_far", False): copy("lt")
    both_modes(a, "rd", body, cfg, far=sFar if cfg.get("re_far", False) else None)

def row_reduce(a, r, t):
    a(f"v_add_f32_dpp v{r}, v{r}, v{r} row_ror:4 row_mask:0xf bank_mask:0xf")
    a(f"v_add_f32_dpp v{r}, v{r}, v{r} row_ror:8 row_mask:0xf bank_mask:0xf")
    xlane_g(a, "v_add_f32", r, t)

def rnd_bf16(a, r):
    a(f"v_cvt_pk_bf16_f32 v{r}, v{r}, v{r}")
    a(f"v_and_b32 v{r}, 0xffff0000, v{r}")

def layernorm(a, X, T, between=()):
    m, t, s, t2 = T, T + 2, T + 4, T + 6
    between = list(between)
    a(f"v_pk_add_f32 {vr(m,2)}, {vr(X,2)}, {vr(X+2,2)}")
    a(f"v_pk_mul_f32 {vr(s,2)}, {vr(X,2)}, {vr(X,2)}")
    a(f"v_pk_fma_f32 {vr(s,2)}, {vr(X+2,2)}, {vr(X+2,2)}, {vr(s,2)}")
    for i in range(4, 32, 2):
        a(f"v_pk_add_f32 {vr(m,2)}, {vr(m,2)}, {vr(X+i,2)}")
        a(f"v_pk_fma_f32 {vr(s,2)}, {vr(X+i,2)}, {vr(X+i,2)}, {vr(s,2)}")
    a(f"v_add_f32 v{m}, v{m}, v{m+1}")
    a(f"v_add_f32 v{s}, v{s}, v{s+1}")
    def gap():
        if between: a(between.pop(0))
    for ror in (4, 8):
        gap()
        a(f"v_add_f32_dpp v{m}, v{m}, v{m} row_ror:{ror} row_mask:0xf bank_mask:0xf")
        a(f"v_add_f32_dpp v{s}, v{s}, v{s} row_ror:{ror} row_mask:0xf bank_mask:0xf")
    for sw in ("v_permlane16_swap_b32", "v_permlane32_swap_b32"):
        a(f"v_mov_b32 v{t}, v{m}")
        a(f"v_mov_b32 v{t2}, v{s}")
        gap()
        a(f"{sw} v{m}, v{t}")
        a(f"{sw} v{s}, v{t2}")
        a(f"v_add_f32 v{m}, v{m}, v{t}")
        a(f"v_add_f32 v{s}, v{s}, v{t2}")
    a(f"v_mul_f32 v{m}, {fbits(1/512):#x}, v{m}")
    a(f"v_mul_f32 v{s}, {fbits(1/512):#x}, v{s}")
    a(f"v_fma_f32 v{s}, -v{m}, v{m}, v{s}")
    a(f"v_max_f32 v{s}, 0, v{s}")
    rnd_bf16(a, m)
    rnd_bf16(a, s)
    a(f"v_add_f32 v{s}, {fbits(1e-5):#x}, v{s}")
    rnd_bf16(a, s)
    a(f"v_sqrt_f32 v{s}, v{s}")
    gap()
    rnd_bf16(a, s)
    a(f"v_rcp_f32 v{s}, v{s}")
    for x in between: a(x)
    a(f"v_mul_f32 v{m}, v{m}, v{s}")
    for i in range(0, 32, 2):
        a(f"v_pk_fma_f32 {vr(X+i,2)}, {vr(X+i,2)}, {vr(s,2)}, {vr(m,2)} op_sel_hi:[1,0,0] neg_lo:[0,0,1] neg_hi:[0,0,1]")

def unpack(a, dst, src, n):
    for i in range(n):
        a(f"v_lshlrev_b32 v{dst+2*i}, 16, v{src+i}")
        a(f"v_and_b32 v{dst+2*i+1}, 0xffff0000, v{src+i}")

def rows_setup(a, sWb):
    c_, gi = 96, 97
    a(f"s_and_b32 s{sT0}, s{sWb}, 1")
    a(f"s_lshr_b32 s{sT1}, s{sWb}, 1")
    a(f"s_lshl_b32 s{sT1}, s{sT1}, 2")
    a(f"v_and_b32 v{c_}, 3, v0")
    a(f"v_add_u32 v{c_}, s{sT1}, v{c_}")
    a(f"v_lshrrev_b32 v{gi}, 2, v0")
    a(f"s_lshl_b32 s{sT1}, s{sT0}, 8")
    a(f"v_lshl_add_u32 v98, v{c_}, 4, s{sT1}")
    a(f"s_lshl_b32 s{sT1}, s{sT0}, 10")
    a(f"v_lshl_add_u32 v99, v{c_}, 11, s{sT1}")
    a(f"s_lshl_b32 s{sT1}, s{sT0}, 9")
    a(f"s_lshr_b32 s{sT2}, s{sWb}, 1")
    a(f"s_lshl_b32 s{sT2}, s{sT2}, 7")
    a(f"s_add_u32 s{sT1}, s{sT1}, s{sT2}")
    a(f"v_and_b32 v102, 7, v0")
    a(f"v_lshl_add_u32 v102, v102, 4, s{sT1}")

def xn_store_addr(a, vP):
    a(f"s_lshl_b32 s{sT1}, s{sT0}, 10")
    a(f"v_lshl_add_u32 v{vP}, v96, 4, s{sT1}")
    a(f"v_lshl_add_u32 v{vP}, v97, 11, v{vP}")

def ln_to_xn(a, X, T, R, P, vP):
    unpack(a, X, R, 16)
    layernorm(a, X, T)
    for g in range(4):
        for dj in range(4):
            half = dj & 1; jh = dj >> 1
            e = 4 * (g >> 1) + 2 * (g & 1) + jh
            a(f"v_cvt_pk_bf16_f32 v{P+4*g+dj}, v{X+8*half+e}, v{X+8*(2+half)+e}")
        a(f"buffer_store_dwordx4 {vr(P+4*g,4)}, v{vP}, {W}, s{sDst} offen offset:{g*256} sc1")

def ln0(a, cfg):
    sWb, sU = 61, 62
    vA, vP = 8, 12
    X, T, P, R = 16, 48, 128, 144
    a(f"s_cmp_eq_u32 s{sLAY}, 0")
    a("s_cbranch_scc1 L_ln0_done")
    a("v_and_b32 v0, 63, v0")
    a(f"v_mov_b32 v{vOne}, 1")
    a(f"s_lshl_b32 s{sU}, s{sMEMB}, 2")
    a(f"s_add_u32 s{sU}, s{sU}, s{sWAVE}")
    a(f"s_and_b32 s{sWb}, s{sU}, 7")
    a(f"s_lshr_b32 s{sU}, s{sU}, 3")
    rows_setup(a, sWb)
    xn_store_addr(a, vP)
    a(f"v_lshrrev_b32 v100, 1, v97")
    a(f"v_and_b32 v101, 1, v97")
    a(f"v_lshl_add_u32 v100, v100, 3, v101")
    a(f"v_lshl_add_u32 v{vA}, v100, 4, v99")
    set_srd(a, sIN, sX, 0x200000)
    a(f"s_lshl_b32 s{sT0}, s{sU}, 15")
    for k in range(4):
        if k: a(f"s_add_u32 s{sT0}, s{sT0}, {16 << 15}")
        for q in range(4):
            a(f"buffer_load_dwordx4 {vr(R+16*k+4*q,4)}, v{vA}, s[{sIN}:{sIN+3}], s{sT0} offen offset:{q*32}")
    trace(a, cfg, 2, None, vT)
    a(f"s_lshl_b32 s{sDst}, s{sU}, 15")
    a(f"s_add_u32 s{sDst}, s{sDst}, {OFF_XN:#x}")
    a(f"s_lshl_b32 s{sFl}, s{sU}, 11")
    a(f"s_lshl_b32 s{sT0}, s{sWb}, 2")
    a(f"s_add_u32 s{sFl}, s{sFl}, s{sT0}")
    a(f"s_mov_b32 s{sU}, 0")
    a("s_waitcnt vmcnt(0)")
    a(f"v_lshrrev_b32 v100, 1, v97")
    a(f"v_lshl_add_u32 v{vA}, v100, 12, v102")
    a.label("L_ln0_loop")
    a(f"s_sub_u32 s{sT0}, s{sDst}, {OFF_XN-OFF_XR:#x}")
    for q in range(4):
        a(f"buffer_store_dwordx4 {vr(R+4*q,4)}, v{vA}, {W}, s{sT0} offen offset:{q*1024} sc1")
    ln_to_xn(a, X, T, R, P, vP)
    for i in range(24): a(f"v_mov_b64 {vr(R+2*i,2)}, {vr(R+16+2*i,2)}")
    if not cfg.get("noinit"):
        lab = a.newlab("L_l0g")
        a(f"s_cmp_lg_u32 s{sU}, 0")
        a(f"s_cbranch_scc1 {lab}")
        wait_init(a, barrier=False)
        trace(a, cfg, 3, None, vT)
        a.label(lab)
    a("s_waitcnt vmcnt(0)")
    set_flag(a, vOne, sFl, F_XN)
    a(f"s_add_u32 s{sDst}, s{sDst}, {16 << 15}")
    a(f"s_add_u32 s{sFl}, s{sFl}, {16 << 11}")
    a(f"s_add_u32 s{sU}, s{sU}, 1")
    trace(a, cfg, 3, sU, vT)
    if cfg.get("ln0_late", False):
        lab = a.newlab("L_l0l")
        a(f"s_cmp_lg_u32 s{sU}, 1")
        a(f"s_cbranch_scc1 {lab}")
        late_start(a, cfg)
        a.label(lab)
    a(f"s_cmp_lt_u32 s{sU}, 4")
    a("s_cbranch_scc1 L_ln0_loop")
    a.label("L_ln0_done")

def role_rows(a, cfg):
    sWb, sIb, sLo = 61, 62, 63
    vA = 8
    vP = 12
    vP2 = 7
    vFx = 13
    c_, gi = 96, 97
    a.label("L_rows")
    common_start(a)
    a(f"s_sub_u32 s{sWb}, s{sMEMB}, 28")
    a(f"s_lshl_b32 s{sT1}, s{sWb}, 2")
    a(f"s_add_u32 s{sT1}, s{sT1}, s{sWAVE}")
    a(f"s_lshl_b32 s{sWb}, s{sWb}, 1")
    a(f"s_and_b32 s{sT0}, s{sWAVE}, 1")
    a(f"s_add_u32 s{sWb}, s{sWb}, s{sT0}")
    a(f"s_lshr_b32 s{sLo}, s{sWAVE}, 1")
    if cfg.get("split_rows", False):
        a(f"s_and_b32 s{sT0}, s{sT1}, 7")
        a(f"s_lshr_b32 s{sT1}, s{sT1}, 3")
        a(f"s_cmp_eq_u32 s{sLAY}, 0")
        a(f"s_cselect_b32 s{sWb}, s{sT0}, s{sWb}")
        a(f"s_cselect_b32 s{sLo}, s{sT1}, s{sLo}")
    rows_setup(a, sWb)
    a(f"s_cmp_eq_u32 s{sLo}, 1")
    a("s_cbranch_scc1 L_re")
    SelLo, SelHi = 104, 108
    X, T, P, R, RN = 16, 48, 128, 112, 192
    a(f"v_lshlrev_b32 v{vFo}, 2, v0")
    a(f"v_add_u32 v{vFo}, {F_PART}, v{vFo}")
    a(f"v_and_b32 v{vFx}, 7, v0")
    a(f"v_lshlrev_b32 v{vFx}, 2, v{vFx}")
    a("v_bfe_u32 v100, v0, 3, 1")
    a("v_lshl_add_u32 v102, v100, 10, v102")
    a("v_lshrrev_b32 v100, 4, v0")
    a(f"v_lshl_add_u32 v{vP2}, v100, 15, v102")
    a("v_bfe_u32 v100, v0, 4, 1")
    a("v_lshlrev_b32 v101, 12, v100")
    a("v_bfe_u32 v100, v0, 5, 1")
    a("v_lshl_add_u32 v101, v100, 11, v101")
    a(f"v_add_u32 v{vA}, v101, v102")
    a("v_bfe_u32 v100, v0, 2, 2")
    a("v_lshl_add_u32 v101, v100, 9, v101")
    a(f"v_add_u32 v{vP}, v101, v98")
    sel_consts(a, 0, 100, selLo=SelLo, selHi=SelHi)
    vCa, vCv, sCr = 9, 10, 76
    a(f"v_and_b32 v{vCa}, 15, v0")
    a(f"v_lshlrev_b32 v{vCa}, 2, v{vCa}")
    a(f"v_add_u32 v{vCa}, {F_X2}, v{vCa}")
    def res_loads(sg):
        a(f"s_lshl_b32 s{sT0}, s{sg}, 15")
        a(f"s_add_u32 s{sT0}, s{sT0}, {OFF_XR:#x}")
        for i in range(4):
            if i: a(f"s_add_u32 s{sT0}, s{sT0}, 8192")
            a(f"buffer_load_dwordx4 {vr(RN+4*i,4)}, v{vA}, {W}, s{sT0} offen sc1")
    def before():
        a(f"s_lshl_b32 s{sFl}, s{sSeg}, 11")
        poll_flags(a, vT, vFx, sFl, sleep=8)
        for _ in range(2):
            a(f"s_add_u32 s{sFl}, s{sFl}, 2048")
            poll_flags(a, vT, vFx, sFl, sleep=8)
        res_loads(sSeg)
        a("s_waitcnt vmcnt(0)")
    def swaps(r):
        return [f"v_permlane16_swap_b32 v{r+4*p+h}, v{r+4*p+2+h}" for p in range(4) for h in range(2)]
    def body(st, stamp):
        ring_off(a, sSrc, sSeg, R_PART)
        for x in swaps(RN): a(x)
        unpack(a, X, RN, 16)
        poll_flags(a, vT, vFo, sFl, sleep=CFG.get('psleep', 1))
        stamp("flag")
        trace(a, cfg, 0, sSeg, vT)
        for n in range(16):
            if n and n % 2 == 0: a(f"s_add_u32 s{sSrc}, s{sSrc}, 4096")
            a(f"buffer_load_dwordx4 {vr(P+4*n,4)}, v{vP2}, {W}, s{sSrc} offen offset:{(n%2)*2048} sc1")
        a(f"s_and_b32 s{sT0}, s{sSeg}, 63")
        a(f"s_cmp_ge_u32 s{sT0}, {RB_()}")
        a(f"s_cselect_b32 s{sCr}, {RB_()*2048+F_PART-F_X2}, 0")
        a(f"s_sub_u32 s{sCr}, s{sFl}, s{sCr}")
        a(f"s_add_u32 s{sCr}, s{sCr}, {F_PART-F_X2}")
        a(f"buffer_load_dword v{vCv}, v{vCa}, {W}, s{sCr} offen sc1")
        a(f"s_add_u32 s{sT0}, s{sSeg}, 1")
        res_loads(sT0)
        ring_off(a, sT2, sSeg, R_X1)
        a(f"s_add_u32 s{sDst}, s{sT2}, {R_XNB-R_X1:#x}")
        a(f"s_lshl_b32 s{sT0}, s{sWb}, 2")
        a(f"s_add_u32 s{sFl}, s{sFl}, s{sT0}")
        for n in range(16):
            a(f"s_waitcnt vmcnt({20-n})")
            mfma(a, X + 4 * (n // 2), (SelLo, SelHi)[n % 2], P + 4 * n, X + 4 * (n // 2))
            if n >= 5 and n % 2 == 1:
                i = (n - 5) // 2
                cvt(a, R + 2 * i, X + 4 * i); cvt(a, R + 2 * i + 1, X + 4 * i + 2)
        stamp("sum")
        lab = a.newlab("L_crok")
        a("s_waitcnt vmcnt(4)")
        a(f"v_cmp_eq_u32 vcc, 0, v{vCv}")
        a(f"s_cbranch_vccz {lab}")
        poll_flags(a, vCv, vCa, sCr, sleep=2)
        a.label(lab)
        for i in range(12, 16): cvt(a, R + i, X + 2 * i)
        for x in swaps(R): a(x)
        stores = []
        for i in range(4):
            stores.append((f"s_add_u32 s{sT2}, s{sT2}, 8192\n" if i else "") + f"buffer_store_dwordx4 {vr(R+4*i,4)}, v{vP}, {W}, s{sT2} offen{st}")
        layernorm(a, X, T, stores)
        for p in range(4):
            for i in range(4): cvt(a, P + 4 * p + i, X + 8 * p + 2 * i)
            for x in swaps(P)[2*p:2*p+2]: a(x)
            if p: a(f"s_add_u32 s{sDst}, s{sDst}, 8192")
            a(f"buffer_store_dwordx4 {vr(P+4*p,4)}, v{vP}, {W}, s{sDst} offen{st}")
        stamp("ln")
        a("s_waitcnt vmcnt(0)")
        set_flag(a, vOne, sFl, F_XNB, st)
    both_modes(a, "rb", body, cfg, before)
    a.label("L_re")
    a(f"v_and_b32 v{vFo}, 15, v0")
    a(f"v_lshlrev_b32 v{vFo}, 2, v{vFo}")
    a(f"v_add_u32 v{vFo}, {F_X2}, v{vFo}")
    xn_store_addr(a, vP)
    a(f"v_lshrrev_b32 v100, 1, v{gi}")
    a(f"v_lshl_add_u32 v{vA}, v100, 12, v102")
    touch_ring(a, cfg)
    a(f"s_cmp_eq_u32 s{sLAY}, {0 if cfg.get('re_far', False) else 1}")
    a("s_cbranch_scc1 L_exit")
    a(f"s_mov_b32 s{sSeg}, 0")
    a(f"s_mov_b32 s{sEnd}, 64")
    if not cfg.get("noinit"): wait_init(a)
    else: a("s_barrier")
    stamp = Stamps(a, cfg.get("stamp") == "re", base=4, only=cfg.get("only"))
    a.label("L_re_loop")
    stamp("top")
    a(f"s_lshl_b32 s{sFl}, s{sSeg}, 11")
    if cfg.get("re_far", False):
        a(f"s_lshl_b32 s{sSrc}, s{sSeg}, 15")
        a(f"s_add_u32 s{sSrc}, s{sSrc}, {OFF_X2R:#x}")
    else: ring_off(a, sSrc, sSeg, R_X2)
    poll_flags(a, vT, vFo, sFl, sleep=CFG.get('psleep', 1))
    stamp("flag")
    trace(a, cfg, 0, sSeg, vT)
    for q in range(4):
        a(f"buffer_load_dwordx4 {vr(R+4*q,4)}, v{vA}, {W}, s{sSrc} offen offset:{q*1024} sc1")
    a(f"s_lshl_b32 s{sT0}, s{sSeg}, 15")
    a(f"s_add_u32 s{sDst}, s{sT0}, {OFF_XN+(64<<15):#x}")
    a(f"s_add_u32 s{sSrc}, s{sT0}, {OFF_X2R:#x}")
    a(f"s_lshl_b32 s{sT0}, s{sWb}, 2")
    a(f"s_add_u32 s{sFl}, s{sFl}, s{sT0}")
    a(f"s_add_u32 s{sFl}, s{sFl}, {64<<11}")
    a("s_waitcnt vmcnt(0)")
    stamp("ld")
    for q in range(0 if cfg.get("rd_copy", True) or cfg.get("re_far", False) else 4):
        a(f"buffer_store_dwordx4 {vr(R+4*q,4)}, v{vA}, {W}, s{sSrc} offen offset:{q*1024} sc1")
    ln_to_xn(a, X, T, R, P, vP)
    stamp("ln")
    a("s_waitcnt vmcnt(0)")
    set_flag(a, vOne, sFl, F_XN)
    trace(a, cfg, 1, sSeg, vT)
    stamp("end")
    if stamp.on:
        lab = a.newlab("L_nost")
        a(f"s_and_b32 s{sT0}, s{sSeg}, 63")
        a(f"s_cmp_lg_u32 s{sT0}, {cfg.get('stamp_step', 20)}")
        a(f"s_cbranch_scc1 {lab}")
        def row():
            a(f"s_lshl_b32 s{sT0}, s{sGRP}, 7")
            a(f"s_lshl_b32 s{sT1}, s{sMEMB}, 2")
            a(f"s_add_u32 s{sT0}, s{sT0}, s{sT1}")
            a(f"s_add_u32 s{sT0}, s{sT0}, s{sWAVE}")
        dump_stamps(a, stamp, cfg, row)
        a.label(lab)
    a(f"s_add_u32 s{sSeg}, s{sSeg}, 1")
    a(f"s_cmp_lt_u32 s{sSeg}, s{sEnd}")
    a("s_cbranch_scc1 L_re_loop")
    a("s_waitcnt vmcnt(0)")
    a("s_branch L_done")

def role_wo(a, cfg):
    CFG.clear(); CFG.update(cfg)
    a.label("L_wo")
    ln0(a, cfg)
    a(f"s_cmp_lt_u32 s{sMEMB}, 16")
    a("s_cbranch_scc1 L_ra")
    a(f"s_cmp_lt_u32 s{sMEMB}, 24")
    a("s_cbranch_scc1 L_rc")
    a(f"s_cmp_lt_u32 s{sMEMB}, 28")
    a("s_cbranch_scc1 L_rd")
    a("s_branch L_rows")
    role_ra(a, cfg); role_rc(a, cfg); role_rd(a, cfg); role_rows(a, cfg)
```

```python
import sys
from gen_common import *
from gen_chain import chain

HEADER = open('interleave_layers__memory_aug_recurrent_mem_tr__sliding_local_dilated__prompt.s.ref').read().split("; Override launch")[0]

GMAP = [("wa",0,0),("wa",1,0),("chain",1,0),("chain",0,0),("wa",0,1),("wa",1,1),("wo",0,0),("wo",1,0)]
WARM = []

NOTES = """;
; One persistent launch, 256 workgroups (one per CU), eight groups of 32 with fixed jobs; both layers run as a pipeline:
;   chain(l)   the 63 sequential memory-token steps of attention layer l, one head per CU. Wk, Wv, Wo stay in registers,
;              Wq in LDS. The 8-row products use the 2:4 sparse MFMA with both k-halves (or two column sets) packed into
;   wa(l,p)    segments of parity p: Q,K,V projection (weights in registers), then the causal attention of the 32 tokens.
;   wo(l)      16 CUs output projection (split-K 4), 4 CUs partial sum + residual + LayerNorm, 8 CUs dilated local
; Roles: each workgroup takes a ticket on the counter of the die it runs on (HW_REG_XCC_ID, d_debug); workgroups beyond 32
; stores, and everything between groups always uses sc1. Placement therefore only changes speed.
; Hand-offs: flags set after the producer's stores are acknowledged, all-ones words that the data replaces, or a lap bit
; in each 16-byte piece. All of these words are initialised in every launch before the go word in d_debug is written.
; Every wait is bounded. Softmax subtracts the true row maximum; the chain first tries the unshifted form and checks at
; Generated by my own scripts (register allocation, wait states and wait counts checked by them).
"""

def generate(cfg):
    a = Asm()
    cfg.setdefault("latemask", sum(1 << i for i, x in enumerate(cfg.get("gmap", GMAP)) if x[1] == 1))
    TRC.clear(); TRC.update(cfg)
    roles = cfg.get("roles", {"chain", "wa", "wo"})
    a("s_cmp_ge_u32 s2, 256")
    a("s_cbranch_scc1 L_exit")
    a("s_load_dwordx16 s[4:19], s[0:1], 0")
    a("s_load_dwordx8 s[20:27], s[0:1], 64")
    a("s_load_dwordx2 s[28:29], s[0:1], 96")
    a(f"s_getreg_b32 s{sGRP}, hwreg(HW_REG_XCC_ID, 0, 4)")
    a("v_lshrrev_b32 v1, 6, v0")
    a(f"v_readfirstlane_b32 s{sWAVE}, v1")
    a(f"s_mov_b32 s{sLOCAL}, 1")
    a("s_mov_b32 s31, 0")
    if cfg.get("count_redo") or cfg.get("hold_us"): a("s_memrealtime s[100:101]")
    a("s_waitcnt lgkmcnt(0)")
    set_srd(a, sWS, sWSP, WS_BYTES)
    a(f"s_cmp_lg_u32 s{sWAVE}, 0")
    a("s_cbranch_scc1 L_notw0")
    if cfg.get("scramble"):
        a(f"s_lshr_b32 s{sGRP}, s2, {cfg['scramble']}")
        a(f"s_and_b32 s{sGRP}, s{sGRP}, {cfg.get('scramble_mask', 7)}")
    a(f"s_mov_b32 s{sMEMB}, 1")
    a(f"s_mul_i32 s{sT1}, s{sGRP}, 43")
    a(f"s_lshr_b32 s{sT1}, s{sT1}, 7")
    a(f"s_mul_i32 s{sT0}, s{sT1}, 3")
    a(f"s_sub_u32 s{sT0}, s{sGRP}, s{sT0}")
    a(f"s_lshl_b32 s{sT0}, s{sT0}, 6")
    a(f"s_lshl_b32 s{sT1}, s{sT1}, 2")
    a(f"s_add_u32 s{sT0}, s{sT0}, s{sT1}")
    a(f"s_cmp_gt_u32 s{sGRP}, 7")
    a(f"s_cselect_b32 s{sT0}, 12, s{sT0}")
    a(f"s_atomic_add s{sMEMB}, s[{sDBG}:{sDBG+1}], s{sT0} glc")
    a("s_waitcnt lgkmcnt(0)")
    a(f"s_cmp_gt_u32 s{sGRP}, 7")
    a(f"s_cselect_b32 s{sMEMB}, 32, s{sMEMB}")
    a(f"s_cmp_lt_u32 s{sMEMB}, 32")
    a("s_cbranch_scc1 L_haverole")
    count_tickets(a)
    a(f"s_mov_b32 s{sT1}, 1")
    a(f"s_atomic_add s{sT1}, s[{sDBG}:{sDBG+1}], 0x4c glc")
    a("s_waitcnt lgkmcnt(0)")
    for g in range(8):
        a(f"s_mov_b32 s{sGRP}, {g}")
        a(f"s_min_u32 s{sFV}, s{cnt_reg(g)}, 32")
        a(f"s_add_u32 s{sMEMB}, s{sFV}, s{sT1}")
        a(f"s_cmp_lt_u32 s{sMEMB}, 32")
        a("s_cbranch_scc1 L_haverole")
        a(f"s_sub_u32 s{sT1}, s{sMEMB}, 32")
    a(f"s_mov_b32 s{sGRP}, 8")
    a.label("L_haverole")
    a(f"s_lshl_b32 s{sT0}, s{sGRP}, 8")
    a(f"s_or_b32 s{sT0}, s{sT0}, s{sMEMB}")
    a(f"v_mov_b32 v1, s{sT0}")
    a("v_mov_b32 v2, 0x27ff0")
    a("ds_write_b32 v2, v1")
    a("s_waitcnt lgkmcnt(0)")
    a("s_branch L_bar0")
    a.label("L_notw0")
    if cfg.get("tlb"):
        a(f"s_cmp_lg_u32 s{sWAVE}, 2")
        a("s_cbranch_scc1 L_notlb")
        a("v_and_b32 v1, 63, v0")
        a(f"v_lshlrev_b32 v1, {cfg['tlb']}, v1")
        for n, ptr in enumerate((sWK, sWV, sWO, sWQ)):
            set_srd(a, sWT, ptr, 0x400000)
            a(f"buffer_load_dword v{250+n}, v1, s[{sWT}:{sWT+3}], 0 offen")
        a("s_branch L_bar0")
        a.label("L_notlb")
    if cfg.get("warm0"):
        a(f"s_cmp_lt_u32 s{sWAVE}, 2")
        a("s_cbranch_scc1 L_nowarm0")
        a("v_and_b32 v1, 127, v0")
        a("v_lshlrev_b32 v1, 4, v1")
        n = 0
        for ptr in [dict(k=sWK, v=sWV, o=sWO, q=sWQ)[x] for x in cfg["warm0"]]:
            set_srd(a, sWT, ptr, 0x400000)
            a(f"s_lshl_b32 s{sT0}, s2, 11")
            for i in range(8):
                if i: a(f"s_add_u32 s{sT0}, s{sT0}, {1 << 19}")
                a(f"buffer_load_dwordx4 {ar(n*4,4)}, v1, s[{sWT}:{sWT+3}], s{sT0} offen")
                n += 1
        a("s_branch L_bar0")
        a.label("L_nowarm0")
    if not cfg.get("nocodepf", True):
        a(f"s_cmp_lg_u32 s{sWAVE}, 1")
        a("s_cbranch_scc1 L_bar0")
        a("s_getpc_b64 s[64:65]")
        a.label("L_pcref")
        a(f"s_lshr_b32 s{sT0}, s2, 3")
        a(f"s_lshl_b32 s{sT0}, s{sT0}, 12")
        a("v_and_b32 v1, 63, v0")
        a(f"v_lshl_add_u32 v1, v1, 6, s{sT0}")
        a("v_min_u32 v1, L_codeend-L_pcref-4, v1")
        a("global_load_dword v255, v1, s[64:65]")
    a.label("L_bar0")
    a("s_barrier")
    a("v_mov_b32 v2, 0x27ff0")
    a("ds_read_b32 v1, v2")
    a("s_waitcnt lgkmcnt(0)")
    a(f"v_readfirstlane_b32 s{sT0}, v1")
    a("s_barrier")
    a(f"s_and_b32 s{sMEMB}, s{sT0}, 31")
    a(f"s_lshr_b32 s{sGRP}, s{sT0}, 8")
    a(f"s_cmp_gt_u32 s{sGRP}, 7")
    a("s_cbranch_scc1 L_exit")
    trace_setup(a, cfg)
    trace(a, cfg, 7, None, 1)
    gmap = cfg.get("gmap", GMAP)
    for g, (role, lay, par) in enumerate(gmap):
        if role not in roles: continue
        lab = a.newlab("L_ng")
        a(f"s_cmp_lg_u32 s{sGRP}, {g}")
        a(f"s_cbranch_scc1 {lab}")
        a(f"s_mov_b32 s{sLAY}, {lay}")
        a(f"s_mov_b32 s{sT3}, {par}")
        warm = cfg.get("warm", WARM)
        initg = cfg.get("initg", [x for x in range(len(gmap)) if gmap[x] in (("chain", 1, 0), ("wa", 1, 1))])
        if g in initg and not cfg.get("noinit"):
            assert len(initg) == 2
            a(f"s_mov_b32 s{sT2}, {initg.index(g)}")
            a(f"s_getpc_b64 s[98:99]")
            a(f"s_branch L_init")
        if g in warm: warm_weights(a, cfg, warm.index(g), len(warm))
        a(f"s_branch L_{role}")
        a.label(lab)
    a.label("L_done")
    trace(a, cfg, 8, None, 1)
    if cfg.get("wb"):
        a(f"s_or_b32 s{sT0}, s{sWAVE}, s{sMEMB}")
        a("s_cbranch_scc1 L_nowb")
        a("buffer_wbl2 sc1")
        a("s_waitcnt vmcnt(0)")
        a.label("L_nowb")
    if cfg.get("hold_us"):
        a.label("L_hold")
        a("s_memrealtime s[70:71]")
        a("s_waitcnt lgkmcnt(0)")
        a("s_sub_u32 s70, s70, s100")
        a(f"s_cmp_lt_u32 s70, {cfg['hold_us']*100}")
        a("s_cbranch_scc1 L_hold")
    a.label("L_exit")
    a("s_endpgm")
    if not cfg.get("noinit"):
        a.label("L_init")
        a(f"s_lshl_b32 s{sT2}, s{sT2}, 5")
        a(f"s_add_u32 s{sT2}, s{sT2}, s{sMEMB}")
        a("v_lshlrev_b32 v1, 4, v0")
        for i in range(4): a(f"v_mov_b32 v{4+i}, 0")
        a(f"s_lshl_b32 s{sT1}, s{sT2}, 12")
        a(f"buffer_store_dwordx4 v[4:7], v1, s[{sWS}:{sWS+3}], s{sT1} offen sc1")
        for i in range(4): a(f"v_mov_b32 v{8+i}, -1")
        a(f"s_mul_i32 s{sT1}, s{sT2}, {cfg.get('ninit', 23)*4096}")
        a(f"s_add_u32 s{sT1}, s{sT1}, {OFF_MEM:#x}")
        for i in range(cfg.get('ninit', 23)):
            if i: a(f"s_add_u32 s{sT1}, s{sT1}, 4096")
            a(f"buffer_store_dwordx4 v[8:11], v1, s[{sWS}:{sWS+3}], s{sT1} offen sc1")
        a("s_waitcnt vmcnt(0)")
        a("s_barrier")
        a(f"s_cmp_lg_u32 s{sWAVE}, 0")
        a("s_cbranch_scc1 L_init_done")
        a(f"s_mov_b32 s{sT1}, 1")
        a(f"s_atomic_add s{sT1}, s[{sDBG}:{sDBG+1}], 0x8c glc")
        a("s_waitcnt lgkmcnt(0)")
        a(f"s_cmp_lg_u32 s{sT1}, 63")
        a("s_cbranch_scc1 L_init_done")
        count_tickets(a)
        a(f"s_mov_b32 s{sT1}, 0x100")
        for g in range(8):
            a(f"s_cmp_ge_u32 s{cnt_reg(g)}, 32")
            a(f"s_cselect_b32 s{sT0}, {1 << g}, 0")
            a(f"s_or_b32 s{sT1}, s{sT1}, s{sT0}")
        a(f"v_mov_b32 v4, s{sT1}")
        a("v_mov_b32 v5, 0")
        a("s_mov_b64 exec, 1")
        a(f"global_store_dword v5, v4, s[{sDBG}:{sDBG+1}] offset:192 sc1")
        a("s_mov_b64 exec, -1")
        a.label("L_init_done")
        a("s_add_u32 s98, s98, 4")
        a("s_addc_u32 s99, s99, 0")
        a("s_setpc_b64 s[98:99]")
    if "chain" in roles:
        if cfg.get("v3"):
            from gen_chain_v3 import chain as ch
        else: ch = chain
        ch(a, True, cfg)
        ch(a, False, cfg)
    if "wa" in roles:
        if cfg.get("wa1"): from gen_wa_v1 import role_wa
        else: from gen_wa import role_wa
        role_wa(a, cfg)
    if "wo" in roles:
        from gen_wo import role_wo
        role_wo(a, cfg)
    a.label("L_codeend")
    a("s_endpgm")
    if cfg.get("drop"):
        a.ins = [x if not x.text.startswith(cfg["drop"]) else Ins("s_nop 2") for x in a.ins]
    nn = a.fix_hazards(verbose=cfg.get("verbose", False), timed=cfg.get("timed", True))
    if cfg.get("align", True):
        fx = align8(a)
        if cfg.get("verbose"): print("align", fx)
    errs = a.check_waits() + check_ptrs(a)
    for e in errs[:20]: print("WAITERR", e)
    body = a.text()
    txt = HEADER + NOTES + f"""; @launch grid=(256,1,1) block=(256,1,1) lds=163840
.amdgcn_target "amdgcn-amd-amdhsa--gfx950"
.text
.globl {KNAME}
.p2align 8
.type {KNAME},@function
{KNAME}:
{body}.section .rodata,"a"
.p2align 6
.amdhsa_kernel {KNAME}
  .amdhsa_next_free_vgpr 512
  .amdhsa_next_free_sgpr 102
  .amdhsa_accum_offset 256
  .amdhsa_group_segment_fixed_size 0
  .amdhsa_kernarg_size 104
  .amdhsa_user_sgpr_count 2
  .amdhsa_user_sgpr_kernarg_segment_ptr 1
  .amdhsa_system_sgpr_workgroup_id_x 1
  .amdhsa_float_denorm_mode_32 3
.end_amdhsa_kernel
"""
    return txt, nn, errs

if __name__ == "__main__":
    cfg = eval(sys.argv[2]) if len(sys.argv) > 2 else {}
    txt, nn, errs = generate(cfg)
    open(sys.argv[1], "w").write(txt)
    print("nops", nn, "bytes", len(txt), "errs", len(errs))
```

```python
from gen_common import *

def chain(a, local, cfg):
    st = "" if local else " sc1"
    tag = "L" if local else "G"
    stamp = Stamps(a, cfg.get("stamp") == "chain" and local, only=cfg.get("only"))
    vL16, vIdx, vLdsW, vSwx, vSwm, vSrx, vSrm, vOw, vOr, vX1s, vX1l, vX2s = range(1, 13)
    vR, vOnes, vT = 13, 14, 15
    vAw = 0
    sKVb, sKT, sLim, sKVc, sLate = 93, 95, 63, 66, 67
    SelT, VACC, SelM = 16, 20, 28
    q0, k0, q1, k1 = 32, 36, 40, 44
    Kx, Vx, RING, A, WO = 48, 56, 64, 96, 128
    WK, WV = 256, 384
    sStep, sTag, sX2st, sX2re, sMemOff, sKV, sX1a, sX1b, sC = 55, 56, 57, 58, 59, 60, 61, 62, 96
    sMaskHi = 64
    sLds, sRot = 66, 67
    sX2l = 92
    AST, KVL, SX, SM, SJ, OA, CST = 0x20000, 0x22000, 0x27000, 0x27800, 0x27f00, 0x26000, 0x27a00
    sKVL = 94
    lane = 0
    foldc = cfg.get("foldc", True)
    CF = 128**-0.5*1.4426950408889634
    CBF = (fbits(CF) + 0x7fff + ((fbits(CF) >> 16) & 1)) >> 16
    if cfg.get("chain_prologue_done") is None:
        cfg["chain_prologue_done"] = True
        a.label("L_chain")
        a(f"v_and_b32 v0, 63, v0")
        a(f"v_lshlrev_b32 v{vL16}, 4, v0")
        a(f"s_lshl_b32 s{sLds}, s{sWAVE}, 15")
        a(f"s_lshl_b32 s{sRot}, s{sWAVE}, 1")
        vD, vTR, vDo, vTRo = 32, 33, 34, 35
        sL2, sL3 = 70, 71
        vD1, vTR1, sLq = 38, 39, 72
        coop_addrs(a, vD, vD1, vTR, vTR1, vT)
        a(f"s_lshl_b32 s{sLq}, s{sWAVE}, 12")
        a(f"v_lshrrev_b32 v{vDo}, 3, v0")
        a(f"v_lshlrev_b32 v{vDo}, 10, v{vDo}")
        a(f"v_and_b32 v{vT}, 7, v0")
        a(f"v_lshl_add_u32 v{vDo}, v{vT}, 4, v{vDo}")
        a(f"v_bfe_u32 v{vT}, v0, 4, 1")
        a(f"v_lshlrev_b32 v{vTRo}, 11, v{vT}")
        a(f"v_bfe_u32 v{vT}, v0, 5, 1")
        a(f"v_lshl_add_u32 v{vTRo}, v{vT}, 9, v{vTRo}")
        a(f"v_bfe_u32 v{vT}, v0, 2, 1")
        a(f"v_lshl_add_u32 v{vTRo}, v{vT}, 7, v{vTRo}")
        a(f"v_bfe_u32 v{vT}, v0, 3, 1")
        a(f"v_lshl_add_u32 v{vTRo}, v{vT}, 5, v{vTRo}")
        a(f"v_and_b32 v{vT}, 3, v0")
        a(f"v_lshl_add_u32 v{vTRo}, v{vT}, 3, v{vTRo}")
        a(f"v_add_u32 v{vTRo}, s{sLq}, v{vTRo}")
        a(f"s_add_u32 s{sT0}, s{sLds}, s{sLq}")
        a(f"v_add_u32 v{vLdsW}, s{sT0}, v{vL16}")
        a(f"s_lshl_b32 s{sL2}, s{sMEMB}, 8")
        a(f"s_lshl_b32 s{sT1}, s{sWAVE}, 15")
        a(f"s_add_u32 s{sL2}, s{sL2}, s{sT1}")
        a(f"s_lshl_b32 s{sL3}, s{sMEMB}, 17")
        a(f"s_lshl_b32 s{sT1}, s{sWAVE}, 8")
        a(f"s_add_u32 s{sL3}, s{sL3}, s{sT1}")
        late_start(a, cfg)
        stages = []
        for ptr, base in ((sWK, WK), (sWV, WV)):
            for J in range(8):
                def consume(slot, J=J, base=base):
                    end = a.newlab("L_cw")
                    for w in range(4):
                        nxt = a.newlab("L_cw")
                        if w < 3:
                            a(f"s_cmp_lg_u32 s{sWAVE}, {w}")
                            a(f"s_cbranch_scc1 {nxt}")
                        jj = J ^ (2 * w)
                        coop_reads(a, slot, vTR, vTR1, 40, base + jj * 16, base + jj * 16 + 8)
                        if w < 3:
                            a(f"s_branch {end}")
                            a.label(nxt)
                    a.label(end)
                stages.append(dict(issue=lambda slot, ptr=ptr, J=J: coop_issue(a, ptr, J, slot, sL2, vD, vD1, sLq), consume=consume))
        for wp in range(4):
            for ap in range(2):
                def issue(slot, wp=wp, ap=ap):
                    if wp == 0 and ap == 0: set_srd(a, sWT, sWO, 0x400000)
                    a(f"s_add_u32 m0, s{sLq}, {slot*16384}")
                    a(f"s_xor_b32 s{sT0}, s{sWAVE}, {wp}")
                    a(f"s_lshl_b32 s{sT0}, s{sT0}, 15")
                    a(f"s_add_u32 s{sT0}, s{sT0}, s{sL3}")
                    if ap: a(f"s_add_u32 s{sT0}, s{sT0}, {ap*128}")
                    for q in range(4):
                        if q: a(f"s_add_u32 s{sT0}, s{sT0}, {8192-1024}")
                        a(f"buffer_load_dwordx4 v{vDo}, s[{sWT}:{sWT+3}], s{sT0} offen offset:{q*1024}{' nt' if '14c' in cfg.get('ntw', ()) else ''} lds")
                def consume(slot, wp=wp, ap=ap):
                    va = vTRo
                    if slot >= 4:
                        a(f"v_add_u32 v40, 0x10000, v{vTRo}"); va = 40
                    for a1 in range(2):
                        dst = WO + ((2 * ap + a1) * 4 + wp) * 8
                        for e4 in range(4):
                            off = (slot & 3) * 16384 + (8 * (e4 >> 1) + 2 * (e4 & 1)) * 128 + a1 * 64
                            a(f"ds_read_b64_tr_b16 {vr(dst+2*e4,2)}, v{va} offset:{off}")
                stages.append(dict(issue=issue, consume=consume))
        for J in range(8):
            tmp = RING + 16 * (J & 1)
            def post(slot, tmp=tmp):
                a(f"s_add_u32 s{sT0}, s{sLq}, {slot*16384}")
                a(f"v_add_u32 v40, s{sT0}, v{vL16}")
                for i in range(4):
                    a(f"ds_write_b128 v40, {vr(tmp+4*i,4)} offset:{i*1024}")
            stages.append(dict(issue=lambda slot, J=J: coop_issue(a, sWQ, J, slot, sL2, vD, vD1, sLq),
                               consume=lambda slot, tmp=tmp: coop_reads(a, slot, vTR, vTR1, 40, tmp, tmp + 8), post=post))
        co = cfg.get("ch_ord", "kvo")
        parts = {"k": stages[0:8], "v": stages[8:16], "o": stages[16:24]}
        stages = parts[co[0]] + parts[co[1]] + parts[co[2]] + stages[24:]
        def setup_rest():
            sel_consts(a, lane, 96, selT=SelT)
            sel_consts(a, lane, 96, selM=SelM, selLo=112, selHi=116, val=CBF if foldc else 0x3f80)
            smf_index(a, lane, vIdx, 96)
            n_, g_, q_ = 96, 97, 98
            a(f"v_and_b32 v{n_}, 15, v0")
            a(f"v_lshrrev_b32 v{g_}, 4, v0")
            a(f"v_and_b32 v{q_}, 7, v0")
            a(f"s_mov_b32 s{sMaskHi}, 0xff00ff00")
            a(f"s_mov_b32 s{sMaskHi+1}, 0xff00ff00")
            a(f"v_lshlrev_b32 v99, 3, v{q_}")
            a(f"v_and_b32 v{vT}, 1, v{g_}")
            a(f"v_lshl_add_u32 v99, v{vT}, 6, v99")
            a(f"v_add_u32 v99, {SJ}, v99")
            a(f"v_lshrrev_b32 v{vT}, 1, v{g_}")
            a(f"v_lshlrev_b32 v{vSwx}, 8, v{vT}")
            a(f"v_lshl_add_u32 v{vSwx}, v{q_}, 4, v{vSwx}")
            a(f"v_and_b32 v{vT}, 1, v{g_}")
            a(f"v_lshl_add_u32 v{vSwx}, v{vT}, 3, v{vSwx}")
            a(f"s_lshl_b32 s{sT0}, s{sWAVE}, 9")
            a(f"s_add_u32 s{sT1}, s{sT0}, {SX}")
            a(f"v_add_u32 v{vSwx}, s{sT1}, v{vSwx}")
            a(f"v_cndmask_b32 v{vSwx}, v{vSwx}, v99, s[{sMaskHi}:{sMaskHi+1}]")
            a(f"v_lshlrev_b32 v{vSwm}, 4, v{q_}")
            a(f"v_lshl_add_u32 v{vSwm}, v{vT}, 3, v{vSwm}")
            a(f"s_lshl_b32 s{sT1}, s{sWAVE}, 7")
            a(f"s_add_u32 s{sT1}, s{sT1}, {SM}")
            a(f"v_add_u32 v{vSwm}, s{sT1}, v{vSwm}")
            a(f"s_mov_b32 s98, 0")
            a(f"s_mov_b32 s99, 0x00ff00ff")
            a(f"v_cndmask_b32 v{vSwm}, v99, v{vSwm}, s[98:99]")
            a(f"v_lshlrev_b32 v{vSrx}, 9, v{g_}")
            a(f"v_lshl_add_u32 v{vSrx}, v{n_}, 4, v{vSrx}")
            a(f"v_add_u32 v{vSrx}, {SX}, v{vSrx}")
            a(f"v_lshlrev_b32 v{vSrm}, 7, v{g_}")
            a(f"v_lshl_add_u32 v{vSrm}, v{q_}, 4, v{vSrm}")
            a(f"v_add_u32 v{vSrm}, {SM}, v{vSrm}")
            a(f"s_lshl_b32 s{sT1}, s{sWAVE}, 9")
            a(f"s_add_u32 s{sT1}, s{sT1}, {OA-SM}")
            a(f"v_bfe_u32 v{vT}, v0, 3, 1")
            a(f"v_lshl_add_u32 v{vOw}, v{vT}, 3, v{vSrm}")
            a(f"v_add_u32 v{vOw}, s{sT1}, v{vOw}")
            a(f"v_and_b32 v{vOr}, 0xf0, v{vL16}")
            a(f"v_add_u32 v{vOr}, {CST}, v{vOr}")
            a(f"v_lshrrev_b32 v{vT}, 2, v{n_}")
            a(f"v_lshl_add_u32 v{vT}, v{vT}, 2, v{g_}")
            a(f"v_lshlrev_b32 v{vX1s}, 11, v{vT}")
            a(f"v_and_b32 v{vT}, 3, v0")
            a(f"v_lshl_add_u32 v{vX1s}, v{vT}, 4, v{vX1s}")
            a(f"s_lshl_b32 s{sT0}, s{sWAVE}, 16")
            a(f"s_lshl_b32 s{sT1}, s{sMEMB}, 6")
            a(f"s_add_u32 s{sT0}, s{sT0}, s{sT1}")
            a(f"v_add_u32 v{vX1s}, s{sT0}, v{vX1s}")
            a(f"s_lshl_b32 s{sT2}, s{sMEMB}, 2")
            a(f"s_add_u32 s{sT2}, s{sT2}, s{sWAVE}")
            a(f"s_lshl_b32 s{sT0}, s{sT2}, 11")
            a(f"v_add_u32 v{vX1l}, s{sT0}, v{vL16}")
            a(f"v_lshlrev_b32 v{vX2s}, 4, v{g_}")
            a(f"v_lshl_add_u32 v{vX2s}, v{n_}, 2, v{vX2s}")
            a(f"s_lshl_b32 s{sT0}, s{sT2}, 6")
            a(f"v_add_u32 v{vX2s}, s{sT0}, v{vX2s}")
            a(f"v_mov_b32 v{vT}, {OOB:#x}")
            a(f"v_cmp_gt_u32 vcc, 4, v{n_}")
            a(f"v_cndmask_b32 v{vX2s}, v{vT}, v{vX2s}, vcc")
            a(f"v_and_b32 v100, 3, v0")
            a(f"v_lshlrev_b32 v100, 1, v100")
            a(f"v_lshl_add_u32 v100, v{g_}, 10, v100")
            a(f"v_and_b32 v104, 3, v0")
            a(f"v_bfe_u32 v105, v0, 2, 2")
            a(f"v_lshl_add_u32 v104, v104, 2, v105")
            a(f"v_and_b32 v105, 1, v104")
            a(f"v_lshlrev_b32 v105, 4, v105")
            a(f"v_mov_b32 v106, 0x3f80")
            a(f"v_lshlrev_b32 v105, v105, v106")
            a(f"v_lshrrev_b32 v104, 1, v104")
            for e in range(4):
                a(f"v_cmp_eq_u32 vcc, {e}, v104")
                a(f"v_cndmask_b32 v{108+e}, 0, v105, vcc")
            a(f"v_and_b32 v104, 0xf0, v{vL16}")
            a(f"v_add_u32 v104, {CST}, v104")
            a(f"ds_write_b128 v104, v[108:111]")
            a(f"ds_write_b128 v104, v[112:115] offset:256")
            a(f"ds_write_b128 v104, v[116:119] offset:512")
            for e in range(4): a(f"v_mov_b32 v{120+e}, 0x3f803f80")
            for e in range(4): a(f"v_mov_b32 v{124+e}, 0x3f003f00")
            a(f"ds_write_b128 v104, v[120:123] offset:768")
            a(f"ds_write_b128 v104, v[124:127] offset:1024")
            a(f"s_and_b32 s{sT0}, s{sT2}, 1")
            a(f"s_lshl_b32 s{sT0}, s{sT0}, 12")
            a(f"s_lshr_b32 s{sT1}, s{sT2}, 4")
            a(f"s_lshl_b32 s{sT1}, s{sT1}, 7")
            a(f"s_add_u32 s{sT0}, s{sT0}, s{sT1}")
            a(f"s_bfe_u32 s{sT1}, s{sT2}, 0x10001")
            a(f"s_lshl_b32 s{sT1}, s{sT1}, 5")
            a(f"s_add_u32 s{sT0}, s{sT0}, s{sT1}")
            a(f"s_bfe_u32 s{sT1}, s{sT2}, 0x20002")
            a(f"s_lshl_b32 s{sT1}, s{sT1}, 3")
            a(f"s_add_u32 s{sT0}, s{sT0}, s{sT1}")
            set_srd(a, sIN, sMEM0, 8192)
            a(f"buffer_load_ushort v36, v100, s[{sIN}:{sIN+3}], s{sT0} offen")
            a(f"buffer_load_ushort v37, v100, s[{sIN}:{sIN+3}], s{sT0} offen offset:64")
            a(f"s_mov_b32 s{sStep}, 0")
            a(f"s_mov_b32 s{sTag}, 0")
            a(f"s_lshl_b32 s{sT0}, s{sLAY}, 14")
            a(f"s_add_u32 s{sX2st}, s{sT0}, {OFF_X2:#x}")
            a(f"s_add_u32 s{sX2re}, s{sX2st}, 8192")
            a(f"s_lshl_b32 s{sT0}, s{sWAVE}, 11")
            a(f"s_add_u32 s{sX2l}, s{sT0}, s{sX2st}")
            a(f"s_add_u32 s{sT0}, s{sT0}, {AST}")
            a(f"v_add_u32 v{vAw}, s{sT0}, v{vL16}")
            a(f"s_lshl_b32 s{sT0}, s{sLAY}, 19")
            a(f"s_add_u32 s{sMemOff}, s{sT0}, {OFF_MEM:#x}")
            a(f"s_lshl_b32 s{sT0}, s{sLAY}, 18")
            a(f"s_add_u32 s{sX1a}, s{sT0}, {OFF_X1:#x}")
            a(f"s_add_u32 s{sX1b}, s{sX1a}, 32768")
            a(f"s_lshl_b32 s{sT0}, s{sLAY}, 21")
            a(f"s_lshl_b32 s{sT1}, s{sT2}, 12")
            a(f"s_add_u32 s{sT0}, s{sT0}, s{sT1}")
            a(f"s_add_u32 s{sKVb}, s{sT0}, {OFF_KVR:#x}")
            a(f"s_mov_b32 s{sKV}, s{sKVb}")
            a(f"s_mov_b32 s{sC}, {fbits(1.0 if foldc else CF):#x}")
            a(f"s_mov_b32 s{sC+1}, s{sC}")
            a(f"s_mov_b32 s{sLim}, {fbits(cfg.get('lim', 48.0) / (1.0 if foldc else CF)):#x}")
        load_stages(a, stages, meanwhile=setup_rest,
                    hooks=None if cfg.get("noinit") else {25: lambda: go_load(a)})
        trace(a, cfg, 6, None, vT)
        if not cfg.get("noinit"): wait_init(a, sampled=True, barrier=False)
        late_signal(a, cfg)
        a(f"v_lshl_or_b32 v{vR}, v37, 16, v36")
        a(f"v_min_u32 v{vR}, -2, v{vR}")
        for i in range(8):
            a(f"ds_read_b128 {vr(RING+4*i,4)}, v{vLdsW} offset:{(i>>2)*16384+(i&3)*1024}")
        a(f"v_mov_b32 v{vOnes}, -1")
        for f in range(4): a(f"v_mov_b32 v{Kx+4*f}, -1")
        for i in range(4): a(f"v_mov_b64 {vr(VACC+2*i,2)}, 0")
        if cfg.get("nokvcheck"):
            for f in range(16): a(f"v_mov_b32 v{Kx+f}, 0")
        a(f"s_lshl_b32 s{sKVL}, s{sWAVE}, 12")
        a(f"s_add_u32 s{sKVL}, s{sKVL}, {KVL}")
        a(f"s_mov_b32 m0, s{sKVL}")
        a(f"v_add_u32 v{vT}, s{sKVL}, v{vL16}")
        for f in range(4): a(f"v_mov_b32 v{40+f}, {0 if cfg.get('nokvcheck') else -1}")
        for f in range(4): a(f"ds_write_b128 v{vT}, v[40:43] offset:{f*1024}")
        a("s_waitcnt vmcnt(0) lgkmcnt(0)")
        if cfg.get("count_redo"):
            a("s_memrealtime s[70:71]")
            a("s_memtime s[98:99]")
            a("s_waitcnt lgkmcnt(0)")
            a("s_sub_u32 s101, s70, s100")
            a("s_mov_b32 s100, s70")
        if cfg.get("force_global"):
            a("s_branch L_chain_entryG")
        else:
            a(f"s_cmp_eq_u32 s{sLOCAL}, 0")
            a("s_cbranch_scc1 L_chain_entryG")
    W = f"s[{sWS}:{sWS+3}]"
    vC = vOr
    pl = cfg.get("pollmod", "sc1") if local else "sc1"
    if local: st = cfg.get("stmod", "")
    vq = [(t, jj) for jj in range(8) for t in range(2)]
    vacc = (VACC, VACC + 4)
    def smf(acc, x, w): a(f"v_smfmac_f32_16x16x64_bf16 {vr(acc,4)}, {vr(x,4)}, {xr(w,8)}, v{vIdx}")
    def fill_v(n):
        for _ in range(n):
            t, jj = vq.pop(0)
            smf(vacc[t], A + 4 * jj, WV + jj * 16 + t * 8)
    def pad(n):
        k = cfg.get("padkind", "nop")
        if k == "mov":
            for _ in range(n): a(f"v_mov_b32 v{vT}, 0")
        elif k == "nop":
            while n > 0:
                a(f"s_nop {min(n,16)-1}"); n -= 16
        elif k == "mfma":
            for i in range(n // 4): a(f"v_mfma_f32_16x16x32_bf16 v[108:111], {xr(WK+(i%16)*4,4)}, {xr(WV+(i%16)*4,4)}, 0 ; nochk")
    cvt = lambda d, s: a(f"v_cvt_pk_bf16_f32 v{d}, v{s}, v{s+1}")
    mfma = lambda d, x, y, c: a(f"v_mfma_f32_16x16x32_bf16 {vr(d,4)}, {vr(x,4)}, {vr(y,4)}, {vr(c,4) if c is not None else 0}")
    mfma16 = lambda d, x, y, c: a(f"v_mfma_f32_16x16x16_bf16 {vr(d,4)}, {vr(x,2)}, {vr(y,2)}, {vr(c,4) if c is not None else 0}")
    def kv_check():
        a(f"v_bitop3_b32 v{vT}, v{Kx}, v{Kx+4}, s{sKT} bitop3:0x7e")
        a(f"v_bitop3_b32 v120, v{Kx+8}, v{Kx+12}, s{sKT} bitop3:0x7e")
        a(f"v_or_b32 v{vT}, v{vT}, v120")
        a(f"v_and_b32 v{vT}, 1, v{vT}")
        a(f"v_cmp_ne_u32 vcc, 0, v{vT}")
    def x2_issue(r):
        a(f"buffer_load_dwordx4 {vr(r,4)}, v{vL16}, {W}, s{sX2l} offen {pl}")
        a(f"buffer_load_dwordx4 {vr(r+4,4)}, v{vL16}, {W}, s{sX2l} offen offset:1024 {pl}")
    def x2_check(r, n):
        a(f"s_waitcnt vmcnt({n+1})")
        smf(k0, r, WK)
        a(f"v_max3_u32 v{vT}, v{r}, v{r+1}, v{r+2}")
        smf(k1, r, WK + 8)
        a(f"s_waitcnt vmcnt({n})")
        a(f"v_max3_u32 v{vT}, v{vT}, v{r+3}, v{r+4}")
        a(f"ds_write_b128 v{vAw}, {vr(r,4)}")
        a(f"v_max3_u32 v{vT}, v{vT}, v{r+5}, v{r+6}")
        a(f"v_max_u32 v{vT}, v{vT}, v{r+7}")
        a(f"v_cmp_eq_u32 vcc, -1, v{vT}")
        smf(k0, r + 4, WK + 16)
        a(f"ds_write_b128 v{vAw}, {vr(r+4,4)} offset:1024")
        smf(k1, r + 4, WK + 24)
    def zero_k():
        for r in (k0, k0 + 2, k1, k1 + 2): a(f"v_mov_b64 {vr(r,2)}, 0")
    a.label(f"L_chain_entry{tag}")
    a(f"buffer_store_dword v{vR}, v{vX2s}, {W}, s{sX2st} offen{st}")
    a(".p2align 6")
    a.label(f"L_chain_loop{tag}")
    stamp("top")
    trace(a, cfg, 0, sStep, vT)
    a(f"s_cmp_eq_u32 s{sStep}, 63")
    a(f"s_cbranch_scc1 L_chain_last{tag}")
    win = cfg.get("win", dict(a1=["v1", "zv"], b1=["v2", "kvrd", "lw"], a2=["ring0", "lw", "zq", "kvchk"], b2=["ring1", "lw", "sal"]))
    def work(items):
        for x in items:
            if x in ("ring0", "ring1"):
                for i in (range(4) if x == "ring0" else range(4, 8)):
                    a(f"ds_read_b128 {vr(RING+4*i,4)}, v{vLdsW} offset:{(i>>2)*16384+(i&3)*1024}")
            elif x == "kvrd":
                a(f"v_add_u32 v{vT}, s{sKVL}, v{vL16}")
                for f in range(4): a(f"ds_read_b128 {vr(Kx+4*f,4)}, v{vT} offset:{f*1024}")
            elif x == "lw": a("s_waitcnt lgkmcnt(0)")
            elif x == "zq":
                for i in range(8): a(f"v_mov_b64 {vr(q0+2*i,2)}, 0")
            elif x == "zv":
                for i in range(4): a(f"v_mov_b64 {vr(VACC+2*i,2)}, 0")
            elif x == "kvchk":
                a(f"s_bfe_u32 s{sKT}, s{sStep}, 0x10002")
                kv_check()
                if not cfg.get("nokvcheck"): a(f"s_cbranch_vccnz L_chain_kvwait{tag}")
                a.label(f"L_chain_kvok{tag}")
                trace(a, cfg, 1, sStep, vT)
                trace(a, cfg, 5, sStep, vT)
                spin_init(a)
            elif x == "sal":
                a(f"s_add_u32 s{sKV}, s{sStep}, 1")
                a(f"s_and_b32 s{sKV}, s{sKV}, 3")
                a(f"s_lshl_b32 s{sKV}, s{sKV}, 19")
                a(f"s_add_u32 s{sKV}, s{sKV}, s{sKVb}")
            elif x[0] == "v": a(f"s_waitcnt vmcnt({x[1:]})")
            elif x[0] == "p": pad(int(x[1:]))
            else: raise ValueError(x)
    lateok = False
    work(win["a2"])
    stamp("x2iss")
    x2_issue(A)
    work(win["b2"])
    x2_issue(A + 8)
    x2_check(A, 2)
    if not cfg.get("nowait2"): a(f"s_cbranch_vccnz L_chain_x2b{tag}")
    a.label(f"L_chain_x2ok{tag}")
    if cfg.get("count_redo"): a(f"s_add_u32 s31, s31, s{sSPIN}")
    stamp("A0")
    kvl = [f"buffer_load_dwordx4 v{vL16}, {W}, s{sKV} offen offset:{f*1024} sc1 lds" for f in range(4)]
    SLo, SHi = RING, RING + 4
    plan = list(cfg.get("plan", ["r:pre", "m:b1", "k3", "k5", "k7", "h6w"]))
    after_r = []
    def at(pos):
        for x in list(plan):
            if x == pos: a(kvl.pop(0)); plan.remove(x)
            elif x == "m:" + pos: a(memst); plan.remove(x)
            elif x == "r:" + pos: a(rearm); plan.remove(x); after_r.append(len(plan))
    def ring_rd(jj):
        s0 = RING + ((2 * jj) % 4) * 8
        return [f"ds_read_b128 {vr(s0+4*i,4)}, v{vW2} offset:{(jj&1)*16384+i*1024}" for i in range(4)]
    vW2 = vT
    for jj in range(2):
        s0 = RING + 16 * jj; rd = ring_rd(jj)
        if jj == 0: a(f"v_xor_b32 v{vW2}, 0x8000, v{vLdsW}")
        smf(q0, A + 4 * jj, s0); a(rd[0]); a(rd[1])
        smf(q1, A + 4 * jj, s0 + 8); a(rd[2]); a(rd[3])
    memst = f"buffer_store_dword v{vR}, v{vX2s}, {W}, s{sMemOff} offen sc1"
    rearm = f"buffer_store_dword v{vOnes}, v{vX2s}, {W}, s{sX2re} offen{st}"
    rf = cfg.get("rearm_first", True)
    nb = len([x for x in plan if x.endswith("pre")])
    at("pre")
    stamp("k1done", True)
    a(f"s_waitcnt vmcnt({nb}) lgkmcnt(8)")
    a("s_barrier")
    stamp("bar1", True)
    for j2 in range(2, 8, 2):
        a(f"v_xor_b32 v{vT}, {j2*1024}, v{vAw}")
        a(f"ds_read_b128 {vr(A+4*j2,4)}, v{vT}")
        a(f"ds_read_b128 {vr(A+4*j2+4,4)}, v{vT} offset:1024")
        if j2 < 6: fill_v(1)
    at("b1")
    fill_v(2)
    lg = {2: 5, 3: 8, 4: 4, 5: 4}
    Ap0, Ap1, Dp0, Dp1, X = 72, 76, 80, 84, 88
    for jj in range(2, 6):
        if jj in (2, 4): a(f"v_xor_b32 v{vW2}, {(jj//2+1)*0x8000:#x}, v{vLdsW}")
        a(f"s_waitcnt lgkmcnt({lg[jj]})")
        stamp(f"k{jj}", True)
        s0 = RING + ((2 * jj) % 4) * 8; s1 = s0 + 8
        side = ring_rd(jj)
        for acc, wsrc, sd in ((q0, s0, side[0]), (k0, WK + jj * 16, side[1]), (q1, s1, side[2]), (k1, WK + jj * 16 + 8, side[3])):
            smf(acc, A + 4 * jj, wsrc)
            a(sd)
        at(f"k{jj}")
    A6, A7 = A + 24, A + 28
    smf(k0, A6, WK + 96); at("k6")
    smf(k0, A7, WK + 112); a("s_waitcnt lgkmcnt(6)")
    smf(q0, A6, RING); a("s_waitcnt lgkmcnt(2)")
    smf(q0, A7, RING + 16); at("k7")
    smf(q1, A6, RING + 8); a(f"ds_read_b128 {vr(SLo,4)}, v{vC} offset:256")
    a("s_waitcnt lgkmcnt(1)")
    smf(q1, A7, RING + 24); cvt(Ap0 + 2, k0)
    smf(k1, A6, WK + 104); cvt(Ap0 + 3, k0 + 2)
    smf(k1, A7, WK + 120)
    stamp("h3end")
    OF, WA = 96, 112
    cvt(Ap0, q0); cvt(Ap0 + 1, q0 + 2)
    cvt(Ap1, q1); cvt(Ap1 + 1, q1 + 2)
    mfma(Dp0, Ap0, SelT, None)
    a(f"ds_read_b128 {vr(SHi,4)}, v{vC} offset:512")
    cvt(Ap1 + 2, k1); cvt(Ap1 + 3, k1 + 2)
    at("h4")
    mfma(Dp1, Ap1, SelT, None)
    cvt(X, Dp0); cvt(X + 1, Dp0 + 2)
    cvt(X + 2, Dp1); cvt(X + 3, Dp1 + 2)
    Sx0, Sx1, Sm = 32, 36, 40
    mfma(Sx0, Kx, X, None)
    mfma(Sx1, Kx + 4, X, None)
    mfma(Sm, X, X, None)
    cvt(44, Sx0); cvt(45, Sx0 + 2); cvt(46, Sx1); cvt(47, Sx1 + 2)
    a(f"ds_write2_b64 v{vSwx}, v[44:45], v[46:47] offset0:0 offset1:16")
    cvt(92, Sm); cvt(93, Sm + 2)
    a(f"ds_write_b64 v{vSwm}, v[92:93]")
    stamp("swr")
    at("h6w")
    nomax = cfg.get("nomax", True)
    fl = cfg.get("fills", (5, 3, 2, 2) if nomax else (5, 3, 1, 3))
    fill_v(fl[0])
    a("s_waitcnt lgkmcnt(0)")
    stamp("swdone", True)
    a("s_barrier")
    stamp("bar2", True)
    a(f"ds_read_b128 v[72:75], v{vSrx}")
    a(f"ds_read_b128 v[80:83], v{vSrm}")
    a(f"ds_read_b128 v[76:79], v{vSrx} offset:256")
    ONES, HALF = 88, 92
    at("h6r")
    fill_v(fl[1])
    a("s_waitcnt lgkmcnt(1)")
    mfma(32, SLo, 72, None)
    mfma(36, SelM, 80, None)
    a("s_waitcnt lgkmcnt(0)")
    mfma(32, SHi, 76, 32)
    a(f"ds_read_b128 {vr(ONES,4)}, v{vC} offset:768")
    a(f"ds_read_b64 {vr(HALF,2)}, v{vC} offset:1024")
    fill_v(fl[2])
    stamp("sred")
    E = 72
    m, t = 46, 47
    Bx, Pm, vp, LS = 40, 44, 84, 80
    def true_max(fill=False):
        a(f"v_max3_f32 v{m}, v36, v37, v38")
        a(f"v_max3_f32 v{t}, v32, v33, v34")
        a(f"v_max3_f32 v{m}, v{m}, v39, v35")
        a(f"v_max_f32 v{m}, v{m}, v{t}")
        if fill: fill_v(1)
        a(f"v_max_f32_dpp v{m}, v{m}, v{m} row_ror:8 row_mask:0xf bank_mask:0xf")
        a(f"v_mov_b32 v{t}, v{m}")
        if fill: fill_v(1)
        a(f"v_permlane16_swap_b32 v{m}, v{t}")
        a(f"v_max_f32 v{m}, v{m}, v{t}")
        a(f"v_mov_b32 v{t}, v{m}")
        if fill: fill_v(1)
        a(f"v_permlane32_swap_b32 v{m}, v{t}")
        a(f"v_max_f32 v{m}, v{m}, v{t}")
        a(f"v_mul_f32 v{m}, s{sC}, v{m}")
        for i in range(8):
            a(f"v_fma_f32 v{E+i}, v{32+i}, s{sC}, -v{m}")
    def weights_to_o(first):
        for i in ((4, 5, 6, 7, 0, 1, 2, 3) if (first and nomax and foldc) else range(8)):
            a(f"v_exp_f32 v{E+i}, v{(32 if (first and nomax and foldc) else E)+i}")
            if first and nomax and i in (1, 5) and vq: fill_v(1)
        assert not vq
        cvt(Bx, E); cvt(Bx + 1, E + 2); cvt(Bx + 2, E); cvt(Bx + 3, E + 2)
        cvt(Pm, E + 4); cvt(Pm + 1, E + 6)
        a(f"v_mov_b32_dpp v{Bx+2}, v{Bx} row_ror:8 row_mask:0xf bank_mask:0x3")
        a(f"v_mov_b32_dpp v{Bx+3}, v{Bx+1} row_ror:8 row_mask:0xf bank_mask:0x3")
        a(f"v_mov_b32_dpp v{Bx}, v{Bx} row_ror:8 row_mask:0xf bank_mask:0xc")
        a(f"v_mov_b32_dpp v{Bx+1}, v{Bx+1} row_ror:8 row_mask:0xf bank_mask:0xc")
        if first: stamp("pready")
        side = []
        if first:
            side = [f"v_cvt_pk_bf16_f32 v{vp}, v{vacc[0]}, v{vacc[0]+1}", f"v_cvt_pk_bf16_f32 v{vp+1}, v{vacc[0]+2}, v{vacc[0]+3}",
                    f"v_cvt_pk_bf16_f32 v{vp+2}, v{vacc[1]}, v{vacc[1]+1}", f"v_cvt_pk_bf16_f32 v{vp+3}, v{vacc[1]+2}, v{vacc[1]+3}"]
            if nomax:
                side += [f"v_max3_f32 v{m}, abs(v32), abs(v33), abs(v34)", f"v_max3_f32 v{t}, abs(v35), abs(v36), abs(v37)",
                         f"v_max3_f32 v{m}, v{m}, abs(v38), abs(v39)", f"v_max_f32 v{m}, v{m}, v{t}", f"v_cmp_nlt_f32 vcc, v{m}, s{sLim}"]
            a("s_waitcnt lgkmcnt(0)")
        def two():
            for _ in range(2):
                if side: a(side.pop(0))
        mfma16(LS, HALF, Pm, None); two()
        mfma(72, Vx, Bx, None); two()
        mfma(LS, ONES, Bx, LS); two()
        mfma(76, Vx + 4, Bx, None); two()
        mfma16(72, vp, Pm, 72); two()
        mfma16(76, vp + 2, Pm, 76)
        a(f"v_rcp_f32 v{LS}, v{LS}")
    if nomax:
        for i in (() if foldc else (4, 5, 6, 7, 0, 1, 2, 3)):
            a(f"v_mul_f32 v{E+i}, s{sC}, v{32+i}")
    else:
        true_max(True)
    weights_to_o(True)
    if nomax:
        if not cfg.get("nowait1") and not cfg.get("nowait2"): a(f"s_cbranch_vccnz L_chain_big{tag}")
        a.label(f"L_chain_bigok{tag}")
    def pack(U):
        d = 32 + 4 * U; s = WA + 8 * U
        return [[f"v_cvt_pk_bf16_f32 v{d}, v{s}, v{s+1}", f"v_cvt_pk_bf16_f32 v{d+1}, v{s+2}, v{s+3}",
                 f"v_and_or_b32 v{d}, v{d}, -2, s{sTag}"],
                [f"v_cvt_pk_bf16_f32 v{d+2}, v{s+4}, v{s+5}", f"v_cvt_pk_bf16_f32 v{d+3}, v{s+6}, v{s+7}",
                 f"buffer_store_dwordx4 {vr(d,4)}, v{vX1s}, {W}, s{sX1a if U == 0 else sX1b} offen{st}"]]
    sal = [f"s_add_u32 s{sStep}, s{sStep}, 1", f"s_add_u32 s{sMemOff}, s{sMemOff}, 8192", f"s_xor_b32 s{sX2st}, s{sX2st}, 8192",
           f"s_xor_b32 s{sX2re}, s{sX2re}, 8192", f"s_xor_b32 s{sX2l}, s{sX2l}, 8192", f"s_mov_b32 s{sSPIN}, 0"]
    nz = cfg.get("nz", 2)
    for i in range(nz): a(f"v_mov_b64 {vr(WA+2*i,2)}, 0")
    if cfg.get("pkn", True):
        for i in range(0, 8, 2): a(f"v_pk_mul_f32 {vr(72+i,2)}, {vr(72+i,2)}, {vr(LS,2)} op_sel_hi:[1,0]")
    else:
        for i in range(8): a(f"v_mul_f32 v{72+i}, v{72+i}, v{LS}")
    cvt(OF, 72); cvt(OF + 2, 76); cvt(OF + 1, 74); cvt(OF + 3, 78)
    a(f"v_cndmask_b32 v80, v{OF}, v{OF+2}, s[{sMaskHi}:{sMaskHi+1}]")
    a(f"v_cndmask_b32 v81, v{OF+1}, v{OF+3}, s[{sMaskHi}:{sMaskHi+1}]")
    a(f"ds_write_b64 v{vOw}, v[80:81]")
    stamp("owr")
    at("h10w")
    assert not plan and not kvl
    smf(WA, OF, WO)
    for i in range(nz, 8): a(f"v_mov_b64 {vr(WA+2*i,2)}, 0")
    smf(WA + 4, OF, WO + 32)
    a(f"v_and_b32 v85, -16, v{vOw}")
    for ac in range(3): a(f"v_xor_b32 v{82+ac}, {(ac+1)*512}, v85")
    a(f"s_waitcnt vmcnt({after_r[0]}) lgkmcnt(0)")
    stamp("owdone", True)
    a("s_barrier")
    stamp("bar3", True)
    for wp in range(1, 4):
        a(f"ds_read_b128 {vr(OF+4*wp,4)}, v{81+wp}")
    a(f"ds_read_b128 v[40:43], v{vC}")
    smf(WA + 8, OF, WO + 64)
    for x in sal[:3]: a(x)
    smf(WA + 12, OF, WO + 96)
    for x in sal[3:]: a(x)
    pk = pack(0) + pack(1)
    n = 0; side = []
    for ac in range(4):
        for wp in range(1, 4):
            if ac == 0: a(f"s_waitcnt lgkmcnt({4-wp})")
            smf(WA + 4 * ac, OF + 4 * wp, WO + (ac * 4 + wp) * 8)
            n += 1
            stamp(f"wo{n}", True)
            if n in cfg.get("pops", (6, 9, 12)): side += pk.pop(0)
            for _ in range(cfg.get("poprate", 1)):
                if side: a(side.pop(0))
    for x in side: a(x)
    work(win.get("t", []))
    for x in pk.pop(0): a(x)
    stamp("x1st")
    work(win["a1"])
    def x1_issue(r):
        a(f"buffer_load_dwordx4 {vr(r,4)}, v{vX1l}, {W}, s{sX1a} offen {pl}")
        a(f"buffer_load_dwordx4 {vr(r+4,4)}, v{vX1l}, {W}, s{sX1a} offen offset:1024 {pl}")
    def x1_check(r, n):
        a(f"s_waitcnt vmcnt({n+1})")
        mfma(104, 40, r, None)
        a(f"s_waitcnt vmcnt({n})")
        mfma(104, 40, r + 4, 104)
        a(f"v_bitop3_b32 v{vT}, v{r}, v{r+4}, s{sTag} bitop3:0x7e")
        a(f"v_and_b32 v{vT}, 1, v{vT}")
        a(f"v_cmp_ne_u32 vcc, 0, v{vT}")
    stamp("x1iss")
    x1_issue(96)
    work(win["b1"])
    x1_issue(112)
    x1_check(96, 2)
    if not cfg.get("nowait1"): a(f"s_cbranch_vccnz L_chain_x1b{tag}")
    a.label(f"L_chain_x1ok{tag}")
    stamp("x1ok")
    a(f"v_add_f32_dpp v104, v104, v104 row_ror:4 row_mask:0xf bank_mask:0xf")
    a(f"v_add_f32_dpp v105, v105, v105 row_ror:4 row_mask:0xf bank_mask:0xf")
    a(f"s_xor_b32 s{sTag}, s{sTag}, 1")
    a(f"v_add_f32_dpp v104, v104, v104 row_ror:8 row_mask:0xf bank_mask:0xf")
    a(f"v_add_f32_dpp v105, v105, v105 row_ror:8 row_mask:0xf bank_mask:0xf")
    a(f"v_cvt_pk_bf16_f32 v{vR}, v104, v105")
    a(f"v_min_u32 v{vR}, -2, v{vR}")
    a(f"buffer_store_dword v{vR}, v{vX2s}, {W}, s{sX2st} offen{st}")
    if cfg.get("count_redo"):
        a(f"s_lshl_b32 s{sT0}, s{sSPIN}, 16")
        a(f"s_add_u32 s31, s31, s{sT0}")
    if stamp.on:
        a(f"s_cmp_eq_u32 s{sStep}, {cfg.get('stamp_step', 40)}")
        a(f"s_cbranch_scc0 L_chain_loop{tag}")
        a("s_waitcnt lgkmcnt(0)")
        a(f"s_lshl_b32 s{sT0}, s{sMEMB}, 2")
        a(f"s_add_u32 s{sT0}, s{sT0}, s{sWAVE}")
        a(f"s_lshl_b32 s{sT1}, s{sLAY}, 7")
        a(f"s_add_u32 s{sT0}, s{sT0}, s{sT1}")
        a(f"s_lshl_b32 s{sT0}, s{sT0}, 6")
        a(f"s_add_u32 s{sT0}, s{sT0}, {OFF_STAMP:#x}")
        a(f"v_mov_b32 v108, 0")
        for i in range(stamp.n):
            a(f"v_mov_b32 v109, s{stamp.base+2*i}")
            a(f"buffer_store_dword v109, v108, {W}, s{sT0} offen offset:{4*i}")
        cfg["stamp_names"] = stamp.names
    a(f"s_branch L_chain_loop{tag}")
    a.label(f"L_chain_x1b{tag}")
    x1_issue(96)
    spin_tick(a)
    if cfg.get("one1"): x1_check(96, 0)
    else:
        x1_check(112, 2)
        a(f"s_cbranch_vccz L_chain_x1ok{tag}")
        x1_issue(112)
        spin_tick(a)
        x1_check(96, 2)
    a(f"s_cbranch_vccz L_chain_x1ok{tag}")
    a(f"s_branch L_chain_x1b{tag}")
    a.label(f"L_chain_x2b{tag}")
    x2_issue(A)
    spin_tick(a)
    zero_k()
    if cfg.get("one2"): x2_check(A, 0)
    else:
        x2_check(A + 8, 2)
        a(f"s_cbranch_vccz L_chain_x2c{tag}")
        x2_issue(A + 8)
        spin_tick(a)
        zero_k()
        x2_check(A, 2)
    a(f"s_cbranch_vccz L_chain_x2ok{tag}")
    a(f"s_branch L_chain_x2b{tag}")
    a.label(f"L_chain_x2c{tag}")
    for i in range(4):
        a(f"v_mov_b64 {vr(A+2*i,2)}, {vr(A+8+2*i,2)} ; sameval")
    a(f"s_branch L_chain_x2ok{tag}")
    if nomax:
        a.label(f"L_chain_big{tag}")
        true_max()
        weights_to_o(False)
        a(f"s_branch L_chain_bigok{tag}")
    a.label(f"L_chain_last{tag}")
    if cfg.get("count_redo"):
        a("s_memrealtime s[70:71]")
        a("s_memtime s[72:73]")
        a(f"s_lshl_b32 s{sT0}, s{sMEMB}, 2")
        a(f"s_add_u32 s{sT0}, s{sT0}, s{sWAVE}")
        a(f"s_lshl_b32 s{sT1}, s{sLAY}, 7")
        a(f"s_add_u32 s{sT0}, s{sT0}, s{sT1}")
        a(f"s_lshl_b32 s{sT0}, s{sT0}, 6")
        a(f"s_add_u32 s{sT0}, s{sT0}, {OFF_STAMP:#x}")
        a(f"v_mov_b32 v108, 0")
        a("s_waitcnt lgkmcnt(0)")
        a(f"s_sub_u32 s70, s70, s100")
        a(f"s_sub_u32 s72, s72, s98")
        for i, r in enumerate((72, 31, 70, 101)):
            a(f"v_mov_b32 v109, s{r}")
            a(f"buffer_store_dword v109, v108, {W}, s{sT0} offen offset:{48+4*i}")
    a(f"buffer_store_dword v{vR}, v{vX2s}, {W}, s{sMemOff} offen sc1")
    a("s_waitcnt vmcnt(0) lgkmcnt(0)")
    if cfg.get("probe"):
        what, lay = cfg["probe"]
        a(f"s_cmp_lg_u32 s{sLAY}, {lay}")
        a("s_cbranch_scc1 L_done")
        if what == "T0": a("s_mov_b32 s74, s101")
        elif what == "loop": a("s_mov_b32 s74, s70")
        elif what == "end": a("s_add_u32 s74, s70, s101")
        a("s_sub_u32 s75, s100, s101")
        a("s_add_u32 s74, s74, 23000")
        lab = a.newlab("L_probe")
        a.label(lab)
        a("s_memrealtime s[76:77]")
        a("s_waitcnt lgkmcnt(0)")
        a("s_sub_u32 s76, s76, s75")
        a("s_cmp_lt_u32 s76, s74")
        a(f"s_cbranch_scc1 {lab}")
    a("s_branch L_done")
    a.label(f"L_chain_kvwait{tag}")
    if cfg.get("count_redo"): a("s_add_u32 s31, s31, 0x4000000")
    spin_init(a)
    lab = a.newlab("L_kvspin")
    a.label(lab)
    for f in range(4):
        a(f"buffer_load_dwordx4 {vr(Kx+4*f,4)}, v{vL16}, {W}, s{sKV} offen offset:{f*1024} sc1")
    spin_tick(a)
    a("s_waitcnt vmcnt(0)")
    kv_check()
    a(f"s_cbranch_vccz L_chain_kvok{tag}")
    a(f"s_sleep {cfg.get('kvsleep', 1)}")
    a(f"s_branch {lab}")
```

```python
from gen_common import *

W = f"s[{sWS}:{sWS+3}]"
vL16, vT, vT2, vFo, vOne, vRd = 1, 2, 3, 4, 5, 6
sSeg, sEnd, sFl, sSrc, sDst, sBuf, sLds, sC = 55, 56, 57, 58, 59, 60, 66, 96

def cvt(a, d, s): a(f"v_cvt_pk_bf16_f32 v{d}, v{s}, v{s+1}")
def mfma(a, d, x, y, c):
    a(f"v_mfma_f32_16x16x32_bf16 {vr(d,4)}, {xr(x,4)}, {xr(y,4)}, {vr(c,4) if c is not None else 0}")

def mfma32(a, d, x, y, first):
    a(f"v_mfma_f32_32x32x16_bf16 {vr(d,16)}, {xr(x,4)}, {vr(y,4)}, {0 if first else vr(d,16)}")

def tr32_addr(a, vTR, rowmul_hi):
    a(f"v_lshrrev_b32 v{vT}, 5, v0")
    a(f"v_mul_u32_u24 v{vTR}, {rowmul_hi*64}, v{vT}")
    a(f"v_bfe_u32 v{vT}, v0, 2, 2")
    a(f"v_lshl_add_u32 v{vTR}, v{vT}, 6, v{vTR}")
    a(f"v_bfe_u32 v{vT}, v0, 4, 1")
    a(f"v_lshl_add_u32 v{vTR}, v{vT}, 5, v{vTR}")
    a(f"v_and_b32 v{vT}, 1, v0")
    a(f"v_lshl_add_u32 v{vTR}, v{vT}, 4, v{vTR}")
    a(f"v_bfe_u32 v{vT}, v0, 1, 1")
    a(f"v_lshl_add_u32 v{vTR}, v{vT}, 3, v{vTR}")
    a(f"v_add_u32 v{vTR}, s{sLds}, v{vTR}")

def lane32_addr(a, vdst, mu, mhi, paired):
    a(f"v_bfe_u32 v{vT}, v0, 4, 1")
    a(f"v_mul_u32_u24 v{vdst}, {mu}, v{vT}")
    a(f"v_lshrrev_b32 v{vT}, 5, v0")
    a(f"v_mul_u32_u24 v{vT}, {mhi}, v{vT}")
    a(f"v_add_u32 v{vdst}, v{vdst}, v{vT}")
    if paired:
        a(f"v_bfe_u32 v{vT}, v0, 2, 2")
        a(f"v_lshl_add_u32 v{vdst}, v{vT}, 7, v{vdst}")
        a(f"v_and_b32 v{vT}, 3, v0")
    else:
        a(f"v_and_b32 v{vT}, 15, v0")
    a(f"v_lshl_add_u32 v{vdst}, v{vT}, 4, v{vdst}")

def common_start(a):
    a("v_and_b32 v0, 63, v0")
    a(f"v_lshlrev_b32 v{vL16}, 4, v0")
    a(f"s_lshl_b32 s{sLds}, s{sWAVE}, 15")
    a(f"v_mov_b32 v{vOne}, 1")
    a(f"s_lshl_b32 s{sSeg}, s{sLAY}, 6")
    a(f"s_add_u32 s{sEnd}, s{sSeg}, 64")
    a(f"s_mov_b32 s92, 0")
    a(f"s_mov_b32 s75, 0")
    a(f"s_lshl_b32 s94, s{sLAY}, 21")
    a(f"s_add_u32 s94, s94, {OFF_RING:#x}")

def both_modes(a, name, body, cfg, before=None, far=None):
    touch_ring(a, cfg)
    trace(a, cfg, 6, None, vT)
    if not cfg.get("noinit"): wait_init(a)
    else: a("s_barrier")
    if cfg.get("touch_flags", True):
        a(f"s_lshl_b32 s{sT0}, s{sMEMB}, 12")
        a(f"s_lshl_b32 s{sT1}, s{sWAVE}, 10")
        a(f"s_add_u32 s{sT0}, s{sT0}, s{sT1}")
        a(f"s_lshl_b32 s{sT1}, s{sLAY}, 17")
        a(f"s_add_u32 s{sT0}, s{sT0}, s{sT1}")
        a(f"buffer_load_dwordx4 v[100:103], v{vL16}, {W}, s{sT0} offen sc1")
        a("s_waitcnt vmcnt(0)")
    if before: before()
    if cfg.get("force_global"):
        a(f"s_branch L_{name}_G")
    else:
        a(f"s_cmp_eq_u32 s{sLOCAL}, 0")
        a(f"s_cbranch_scc1 L_{name}_G")
        if far is not None:
            a(f"s_cmp_eq_u32 s{far}, 1")
            a(f"s_cbranch_scc1 L_{name}_G")
    for tag, st in (("L", ""), ("G", " sc1")):
        stamp = Stamps(a, cfg.get("stamp") == name and tag == "L", base=16 if name == "rc" else 4, only=cfg.get("only"))
        a.label(f"L_{name}_{tag}")
        stamp("top")
        a(f"s_lshl_b32 s{sFl}, s{sSeg}, 11")
        body(st, stamp)
        trace(a, cfg, 1, sSeg, vT)
        trace(a, cfg, 5, sSeg, vT)
        stamp("end")
        if stamp.on:
            lab = a.newlab("L_nost")
            a(f"s_and_b32 s{sT0}, s{sSeg}, 63")
            a(f"s_cmp_lg_u32 s{sT0}, {cfg.get('stamp_step', 20)}")
            a(f"s_cbranch_scc1 {lab}")
            def row():
                a(f"s_lshl_b32 s{sT0}, s{sGRP}, 7")
                a(f"s_lshl_b32 s{sT1}, s{sMEMB}, 2")
                a(f"s_add_u32 s{sT0}, s{sT0}, s{sT1}")
                a(f"s_add_u32 s{sT0}, s{sT0}, s{sWAVE}")
            dump_stamps(a, stamp, cfg, row)
            a.label(lab)
        a(f"s_add_u32 s{sSeg}, s{sSeg}, 1")
        a(f"s_cmp_lt_u32 s{sSeg}, s{sEnd}")
        a(f"s_cbranch_scc1 L_{name}_{tag}")
        a("s_waitcnt vmcnt(0)")
        a("s_branch L_done")

sPre, sFlN, vF = 92, 93, 13
sRing, sD0, sD1, sD2, sFlD, sPend = 94, 95, 64, 65, 67, 75
CFG = {}

def RB_(): return CFG.get('ring', 8)

def ring_off(a, dst, sg, part):
    a(f"s_and_b32 s{dst}, s{sg}, {(RB_() if part else 4)-1}")
    a(f"s_lshl_b32 s{dst}, s{dst}, 17")
    a(f"s_add_u32 s{dst}, s{dst}, s{sRing}")
    if part: a(f"s_add_u32 s{dst}, s{dst}, {part:#x}")

def touch_ring(a, cfg):
    R = (4 + RB_()) // 2
    a(f"s_mul_i32 s{sT0}, s{sMEMB}, {R*8192}")
    a(f"s_mul_i32 s{sT1}, s{sWAVE}, {R*2048}")
    a(f"s_add_u32 s{sT0}, s{sT0}, s{sT1}")
    a(f"s_add_u32 s{sT0}, s{sT0}, s{sRing}")
    for i in range(2 * R):
        if i and i % 4 == 0: a(f"s_add_u32 s{sT0}, s{sT0}, 4096")
        a(f"buffer_load_dwordx4 v[100:103], v{vL16}, {W}, s{sT0} offen offset:{(i%4)*1024} sc1")
    a("s_waitcnt vmcnt(0)")

def dma_ops(npiece, phase_bytes):
    NT = ' nt' if (npiece == 4 and CFG.get('nt_o', False)) else ''
    ops = []
    for ph in range(4):
        for i in range(npiece):
            x = []
            if i == 0:
                x.append(f"s_add_u32 m0, s{sD0}, {ph*phase_bytes}")
                x.append(f"s_add_u32 s{sD2}, s{sD1}, {ph*phase_bytes}")
            x.append(f"buffer_load_dwordx4 v{vL16}, {W}, s{sD2} offen offset:{i*1024} sc1{NT} lds")
            ops.append(x)
    return ops

def dma_setup(a, npiece):
    a(f"s_mul_i32 s{sT0}, s{sWAVE}, {npiece*1024}")
    a(f"s_add_u32 s{sD1}, s{sSrc}, s{sT0}")
    a(f"s_add_u32 s{sD0}, s{sBuf}, s{sT0}")

def guarded(a, ops):
    lab = a.newlab("L_g")
    a(f"s_cbranch_vccz {lab}")
    for x in ops: a(x)
    a.label(lab)

def stage_issue(a, npiece, phase_bytes):
    a(f"s_mul_i32 s{sT0}, s{sWAVE}, {npiece*1024}")
    a(f"s_add_u32 s{sT1}, s{sSrc}, s{sT0}")
    a(f"s_add_u32 s{sT0}, s{sBuf}, s{sT0}")
    for ph in range(4):
        a(f"s_add_u32 m0, s{sT0}, {ph*phase_bytes}")
        if ph: a(f"s_add_u32 s{sT1}, s{sT1}, {phase_bytes}")
        for i in range(npiece):
            a(f"buffer_load_dwordx4 v{vL16}, {W}, s{sT1} offen offset:{i*1024} sc1 lds")

def fetch_input(a, cfg, stamp, src_of, npiece, phase_bytes, bufsize, vbase, sFl=sFl):
    lab = a.newlab("L_pre")
    a(f"s_add_u32 s{sFlN}, s{sFl}, 2048")
    a(f"s_cmp_lg_u32 s{sPre}, 0")
    a(f"s_cbranch_scc1 {lab}")
    poll_flags(a, vT, vFo, sFl, sleep=CFG.get('psleep', 1))
    stamp("polled", True)
    src_of(sSeg)
    dma_setup(a, npiece)
    for x in dma_ops(npiece, phase_bytes)[:2 * npiece]:
        for y in x: a(y)
    a.label(lab)
    stamp("flag")
    trace(a, cfg, 0, sSeg, vT)
    a(f"v_add_u32 v{vRd}, s{sBuf}, v{vbase}")
    a(f"s_xor_b32 s{sBuf}, s{sBuf}, {bufsize}")

def resample():
    return f"buffer_load_dword v{vF}, v{vFo}, {W}, s{sFlN} offen sc1"

def finish(a, cfg, fl, st, nstore, npiece, phase_bytes, src_of):
    no = a.newlab('L_noE'); go = a.newlab('L_goE'); fin = a.newlab('L_fin')
    a(f's_mov_b32 s{sFlD}, s{sFl}')
    a(f's_mov_b32 s{sPend}, s{sPre}')
    a(f's_cmp_lg_u32 s{sPre}, 0')
    a(f"s_cbranch_scc1 {fin if CFG.get('pend', True) else no}")
    a(f's_waitcnt vmcnt({nstore})')
    a(f"v_cmp_eq_u32 vcc, 0, v{vF}")
    a(f"s_add_u32 s{sT2}, s{sSeg}, 1")
    a(f"s_cmp_ge_u32 s{sT2}, s{sEnd}")
    a(f"s_cbranch_scc1 {no}")
    a(f"s_cbranch_vccnz {no}")
    src_of(sT2)
    dma_setup(a, npiece)
    for x in dma_ops(npiece, phase_bytes)[:2 * npiece]:
        for y in x: a(y)
    a(f"s_mov_b32 s{sPre}, 1")
    a(f's_waitcnt vmcnt({2*npiece})')
    a(f"s_branch {go}")
    a.label(no)
    a('s_waitcnt vmcnt(0)')
    a.label(go)
    set_flag(a, vOne, sFl, fl, st)
    a.label(fin)

def gemm_phases(a, nks, npiece, extra, rdoffs, ring, step, src_of, phase_bytes, stamp, rs_at, nstore, fl, st, mid=True, nring=3):
    per = nks // 4
    def rd(ks):
        sl = ring + (ks % nring) * 8
        return [f"ds_read_b128 {vr(sl+4*u,4)}, v{vRd} offset:{rdoffs(ks,u)}" for u in range(2)]
    def kstep(ks, more):
        left = nks - 1 - ks
        a(f"s_waitcnt lgkmcnt({2 if left >= 1 else 0})")
        side = (rd(ks + 2) if left >= 2 else []) + more
        step(ks, ring + (ks % nring) * 8, side)
        assert not side
    if CFG.get('pend', True):
        lab = a.newlab("L_np")
        a(f"s_waitcnt vmcnt({npiece+nstore})")
        a(f"s_cmp_lg_u32 s{sPend}, 0")
        a(f"s_cbranch_scc1 {lab}")
    a(f"s_waitcnt vmcnt({npiece})")
    if CFG.get('pend', True): a.label(lab)
    stamp("w0", True)
    a("s_barrier")
    stamp("b0", True)
    for x in rd(0) + rd(1): a(x)
    dq = dma_ops(npiece, phase_bytes)[2 * npiece:]
    dec = CFG.get("dec%d" % nks, 3 * per - 2 if npiece == 2 else 24)
    pk_ = CFG.get("pend_ks", None) if (mid and CFG.get('pend', True)) else None
    ops = []
    def gate(q):
        last = max([k for k, x in enumerate(ops) if x == q], default=-1)
        a(f"s_waitcnt vmcnt({len(ops)-1-last})")
        if q == 1 and CFG.get('pend', True) and pk_ is None:
            lab = a.newlab("L_np")
            a(f"s_cmp_eq_u32 s{sPend}, 0")
            a(f"s_cbranch_scc1 {lab}")
            set_flag(a, vOne, sFlD, fl, st)
            a.label(lab)
        a("s_barrier")
        stamp(f"b{q}", True)
    def common(ks):
        more = []
        if ks == pk_:
            lab = a.newlab("L_np")
            a(f"s_cmp_eq_u32 s{sPend}, 0")
            a(f"s_cbranch_scc1 {lab}")
            a(f"s_waitcnt vmcnt({len(ops)})")
            set_flag(a, vOne, sFlD, fl, st)
            a.label(lab)
        for q in (1, 2, 3):
            if ks == q * per - 2: gate(q)
        if dq:
            more.append("\n".join(dq.pop(0))); ops.append(2 + (2 * npiece - len(dq) - 1) // npiece)
        if ks == 2 * npiece:
            for x in extra: more.append(x); ops.append(None)
        return more
    if not mid:
        a(f"s_mov_b32 s{sPre}, 0")
        for ks in range(nks):
            more = common(ks)
            if ks == rs_at: more.append(resample()); ops.append(None)
            kstep(ks, more)
        return
    for ks in range(0, dec):
        more = common(ks)
        if ks == max(2 * npiece, dec - CFG.get('lead%d' % nks, 10 if npiece == 4 else 6)): more.append(resample()); ops.append(None)
        kstep(ks, more)
    no, end = a.newlab("L_Hn"), a.newlab("L_He")
    a("s_waitcnt vmcnt(0)")
    ops.clear()
    a(f"v_cmp_eq_u32 vcc, 0, v{vF}")
    a(f"s_mov_b32 s{sPre}, 0")
    a(f"s_add_u32 s{sT2}, s{sSeg}, 1")
    a(f"s_cmp_ge_u32 s{sT2}, s{sEnd}")
    a(f"s_cbranch_scc1 {no}")
    a(f"s_cbranch_vccnz {no}")
    src_of(sT2)
    dma_setup(a, npiece)
    a(f"s_mov_b32 s{sPre}, 1")
    stamp("dec", True)
    dn = dma_ops(npiece, phase_bytes)[:2 * npiece]
    for ks in range(dec, nks):
        more = []
        if ks == 3 * per - 2: a("s_barrier")
        if dn: more.append("\n".join(dn.pop(0)))
        kstep(ks, more)
    assert not dn
    a(f"s_branch {end}")
    a.label(no)
    for ks in range(dec, nks):
        if ks == 3 * per - 2: a("s_barrier")
        kstep(ks, [resample()] if ks == rs_at else [])
    a.label(end)

def natural_dma64(a, vdst, rowbytes):
    a(f"v_lshrrev_b32 v{vdst}, 2, v0")
    a(f"v_mul_u32_u24 v{vdst}, {rowbytes}, v{vdst}")
    a(f"v_and_b32 v{vT}, 3, v0")
    a(f"v_lshl_add_u32 v{vdst}, v{vT}, 4, v{vdst}")

def img_rd_addr(a, vdst):
    a(f"v_lshrrev_b32 v{vT}, 4, v0")
    a(f"v_lshlrev_b32 v{vT}, 9, v{vT}")
    a(f"v_and_b32 v{vdst}, 15, v0")
    a(f"v_lshl_add_u32 v{vdst}, v{vdst}, 4, v{vT}")

def img2_addr(a, vdst):
    a(f"v_lshrrev_b32 v{vT}, 5, v0")
    a(f"v_lshlrev_b32 v{vdst}, 10, v{vT}")
    a(f"v_bfe_u32 v{vT}, v0, 2, 2")
    a(f"v_lshl_add_u32 v{vdst}, v{vT}, 7, v{vdst}")
    a(f"v_bfe_u32 v{vT}, v0, 4, 1")
    a(f"v_lshl_add_u32 v{vdst}, v{vT}, 6, v{vdst}")
    a(f"v_and_b32 v{vT}, 3, v0")
    a(f"v_lshl_add_u32 v{vdst}, v{vT}, 4, v{vdst}")

sBias, sFlP = 78, 79
def credit_setup(a, vCr, off, n, R):
    a(f"s_mov_b32 s{sBias}, 0")
    a(f"v_and_b32 v{vCr}, {n-1}, v0")
    a(f"v_lshlrev_b32 v{vCr}, 2, v{vCr}")
    a(f"v_add_u32 v{vCr}, {off}, v{vCr}")
    a(f"v_add_u32 v{vT}, {R*2048}, v{vFo}")
    a(f"v_cmp_gt_u32 vcc, 32, v0")
    a(f"v_cndmask_b32 v{vCr}, v{vCr}, v{vT}, vcc")

def credit_switch(a, vCr, R):
    lab = a.newlab("L_nocr")
    a(f"s_and_b32 s{sT0}, s{sSeg}, 63")
    a(f"s_cmp_lg_u32 s{sT0}, {R-1}")
    a(f"s_cbranch_scc1 {lab}")
    a(f"v_mov_b32 v{vFo}, v{vCr}")
    a(f"s_mov_b32 s{sBias}, {R*2048}")
    a(f"s_sub_u32 s{sFlN}, s{sFlN}, {R*2048}")
    a.label(lab)

def role_ra(a, cfg):
    WT = 256
    vD, vTR, vSt, vCr = 96, 97, 7, 8
    sKs, sNs = 61, 62
    a.label("L_ra")
    common_start(a)
    a(f"s_lshr_b32 s{sKs}, s{sMEMB}, 2")
    a(f"s_and_b32 s{sNs}, s{sMEMB}, 3")
    natural_dma64(a, vD, 1024)
    tr32_addr(a, vTR, 4)
    a(f"s_lshl_b32 s{sT2}, s{sKs}, 20")
    a(f"s_lshl_b32 s{sT1}, s{sNs}, 8")
    a(f"s_add_u32 s{sT2}, s{sT2}, s{sT1}")
    a(f"s_lshl_b32 s{sT1}, s{sWAVE}, 6")
    a(f"s_add_u32 s{sT2}, s{sT2}, s{sT1}")
    set_srd(a, sWT, sWO, 0x400000)
    late_start(a, cfg)
    chunks = []
    for ch in range(16):
        def setup(ch=ch): a(f"s_add_u32 s{sT0}, s{sT2}, {ch*65536}")
        def consume(so, ch=ch):
            for e in range(2):
                for hh in range(2):
                    for jh in range(2):
                        a(f"ds_read_b64_tr_b16 {xr(WT+((2*ch+e)*2+hh)*4+2*jh,2)}, v{vTR} offset:{so+(32*e+16*jh+8*hh)*64}")
            a("s_waitcnt lgkmcnt(0)")
        chunks.append(dict(setup=setup, vdma=vD, dstep=16384, consume=consume))
    load_chunks(a, chunks, sLds)
    a(f"v_and_b32 v{vFo}, 31, v0")
    a(f"v_lshlrev_b32 v{vFo}, 2, v{vFo}")
    a(f"s_lshl_b32 s{sT0}, s{sKs}, 7")
    a(f"s_add_u32 s{sT0}, s{sT0}, {F_O}")
    a(f"v_add_u32 v{vFo}, s{sT0}, v{vFo}")
    credit_setup(a, vCr, F_XNB, 8, 4)
    lane32_addr(a, vSt, 512, 64, True)
    lane32_addr(a, 9, 1024, 256, False)
    a(f"s_lshl_b32 s{sT0}, s{sNs}, 13")
    a(f"s_lshl_b32 s{sT1}, s{sWAVE}, 11")
    a(f"s_add_u32 s{sT0}, s{sT0}, s{sT1}")
    a(f"s_lshl_b32 s{sT1}, s{sKs}, 15")
    a(f"s_add_u32 s{sT0}, s{sT0}, s{sT1}")
    a(f"v_add_u32 v{vSt}, s{sT0}, v{vSt}")
    a(f"s_mov_b32 s{sBuf}, 0")
    ACC, RING = 16, 32
    def body(st, stamp):
        def src_of(sg):
            a(f"s_lshl_b32 s{sSrc}, s{sg}, 18")
            a(f"s_lshl_b32 s{sT0}, s{sKs}, 16")
            a(f"s_add_u32 s{sSrc}, s{sSrc}, s{sT0}")
            a(f"s_add_u32 s{sSrc}, s{sSrc}, {OFF_O:#x}")
        a(f"s_sub_u32 s{sFlP}, s{sFl}, s{sBias}")
        fetch_input(a, cfg, stamp, src_of, 4, 16384, 0x10000, 9, sFlP)
        credit_switch(a, vCr, 4)
        ring_off(a, sDst, sSeg, R_PART)
        a(f"s_lshl_b32 s{sT0}, s{sMEMB}, 2")
        a(f"s_add_u32 s{sT0}, s{sT0}, s{sWAVE}")
        a(f"s_lshl_b32 s{sT0}, s{sT0}, 2")
        a(f"s_add_u32 s{sFl}, s{sFl}, s{sT0}")
        def step(ks, fr, side):
            for hh in range(2):
                mfma32(a, ACC, WT + (ks * 2 + hh) * 4, fr + 4 * hh, ks == 0 and hh == 0)
                for _ in range(3):
                    if side: a(side.pop(0))
        gemm_phases(a, 32, 4, [], lambda ks, u: ks * 2048 + u * 512, RING, step, src_of, 16384, stamp, CFG.get('rs_ra', 29), 2, F_PART, st)
        stamp("gemm")
        for u in range(2):
            for i in range(4): cvt(a, 56 + 4 * u + i, ACC + u * 8 + 2 * i)
            a(f"buffer_store_dwordx4 {vr(56+4*u,4)}, v{vSt}, {W}, s{sDst} offen offset:{u*1024}{st}")
        finish(a, cfg, F_PART, st, 2, 4, 16384, src_of)
    both_modes(a, "ra", body, cfg)

def role_rc(a, cfg):
    WT = 256
    vD, vTR, vNeg, vRb = 96, 97, 7, 8
    sHb, sMask, sPrevOK = 61, 76, 62
    a.label("L_rc")
    common_start(a)
    a(f"s_sub_u32 s{sHb}, s{sMEMB}, 16")
    a(f"s_lshl_b32 s{sHb}, s{sHb}, 2")
    a(f"s_add_u32 s{sHb}, s{sHb}, s{sWAVE}")
    a(f"v_lshrrev_b32 v{vD}, 1, v0")
    a(f"v_mul_u32_u24 v{vD}, 3072, v{vD}")
    a(f"v_and_b32 v{vT}, 1, v0")
    a(f"v_lshl_add_u32 v{vD}, v{vT}, 4, v{vD}")
    a(f"v_lshrrev_b32 v{vT}, 4, v0")
    a(f"v_lshlrev_b32 v{vTR}, 8, v{vT}")
    a(f"v_bfe_u32 v{vT}, v0, 2, 2")
    a(f"v_lshl_add_u32 v{vTR}, v{vT}, 5, v{vTR}")
    a(f"v_and_b32 v{vT}, 3, v0")
    a(f"v_lshl_add_u32 v{vTR}, v{vT}, 3, v{vTR}")
    a(f"v_add_u32 v{vTR}, s{sLds}, v{vTR}")
    a(f"s_lshl_b32 s{sT2}, s{sHb}, 5")
    set_srd(a, sWT, sWB, 512 * 3072)
    late_start(a, cfg)
    chunks = []
    for mm in range(3):
        for ch in range(4):
            def setup(mm=mm, ch=ch): a(f"s_add_u32 s{sT0}, s{sT2}, {128*ch*3072 + mm*1024}")
            def consume(so, mm=mm, ch=ch):
                for e in range(4):
                    for jh in range(2):
                        a(f"ds_read_b64_tr_b16 {xr(WT+((4*ch+e)*3+mm)*4+2*jh,2)}, v{vTR} offset:{so+(32*e+4*jh)*32}")
                a("s_waitcnt lgkmcnt(0)")
            chunks.append(dict(setup=setup, vdma=vD, dstep=32 * 3072, consume=consume))
    load_chunks(a, chunks, sLds)
    a(f"v_and_b32 v{vFo}, 7, v0")
    a(f"v_lshlrev_b32 v{vFo}, 2, v{vFo}")
    a(f"v_add_u32 v{vFo}, {F_XNB}, v{vFo}")
    img_rd_addr(a, vRb)
    a(f"v_mov_b32 v{vNeg}, {fbits(-1e9 * 4):#x}")
    a(f"s_mov_b32 s{sC}, {fbits(0.25*1.4426950408889634):#x}")
    a(f"s_mov_b32 s{sC+1}, s{sC}")
    a("v_and_b32 v96, 15, v0")
    a("v_lshrrev_b32 v97, 4, v0")
    a("v_lshlrev_b32 v97, 2, v97")
    for r in range(4):
        a(f"v_add_u32 v98, {r}, v97")
        a(f"v_add_u32 v99, 9, v96")
        a(f"v_cmp_ge_u32 s[{sMask+2*r}:{sMask+2*r+1}], v98, v99")
        a(f"v_sub_u32 v99, v96, v98")
        a(f"v_cmp_ge_u32 s[{sMask+8+2*r}:{sMask+8+2*r+1}], 7, v99")
    KP, VP = (16, 20), (24, 28)
    for r in range(16, 32): a(f"v_mov_b32 v{r}, 0")
    a(f"s_mov_b32 s{sBuf}, 0")
    sPM = 8
    for r in range(4): a(f"s_mov_b64 s[{sPM+2*r}:{sPM+2*r+1}], 0")
    RING, ACC = 32, 56
    def body(st, stamp):
        def src_of(sg):
            ring_off(a, sSrc, sg, R_XNB)
        fetch_input(a, cfg, stamp, src_of, 2, 8192, 0x8000, vRb)
        ring_off(a, sDst, sSeg, R_OB)
        a(f"s_lshl_b32 s{sT0}, s{sHb}, 10")
        a(f"s_add_u32 s{sDst}, s{sDst}, s{sT0}")
        a(f"s_lshl_b32 s{sT0}, s{sHb}, 2")
        a(f"s_add_u32 s{sFl}, s{sFl}, s{sT0}")
        acc = lambda mm, p: ACC + (p * 3 + mm) * 4
        FR = 128
        wq, wk, wv = (lambda ks: WT + ks * 12), (lambda ks: WT + ks * 12 + 4), (lambda ks: WT + ks * 12 + 8)
        def step(ks, fr, side):
            c = lambda x: None if ks == 0 else x
            mfma(a, acc(0, 0), wq(ks), fr, c(acc(0, 0)))
            for _ in range(2):
                if side: a(side.pop(0))
            mfma(a, acc(1, 0), wk(ks), fr, c(acc(1, 0)))
            if side: a(side.pop(0))
            mfma(a, acc(2, 0), fr, wv(ks), c(acc(2, 0)))
            for _ in range(2):
                if side: a(side.pop(0))
        gemm_phases(a, 16, 2, [], lambda ks, u: ks * 2048 + u * 256, FR, step, src_of, 8192, stamp, 99, 1, F_OB, st, mid=False, nring=16)
        stamp("gemm")
        Q = (80, 82); S = (96, 104); B = (84, 88); O = (112, 116); M = (92, 94)
        def xl(op, p):
            out = []
            for sw in ("v_permlane16_swap_b32", "v_permlane32_swap_b32"):
                out += [f"v_mov_b32 v{M[p]+1}, v{M[p]}", None, f"{sw} v{M[p]}, v{M[p]+1}", f"{op} v{M[p]}, v{M[p]}, v{M[p]+1}"]
            return out
        def softmax(p):
            sm = [None] * 3
            sm += [f"v_cvt_pk_bf16_f32 v{Q[p]}, v{acc(0,p)}, v{acc(0,p)+1}", f"v_cvt_pk_bf16_f32 v{Q[p]+1}, v{acc(0,p)+2}, v{acc(0,p)+3}",
                   f"v_cvt_pk_bf16_f32 v{KP[p]+2}, v{acc(1,p)}, v{acc(1,p)+1}", f"v_cvt_pk_bf16_f32 v{KP[p]+3}, v{acc(1,p)+2}, v{acc(1,p)+3}", None,
                   f"v_mfma_f32_16x16x16_bf16 {vr(S[p],4)}, {vr(KP[p],2)}, {vr(Q[p],2)}, 0",
                   f"v_mfma_f32_16x16x16_bf16 {vr(S[p]+4,4)}, {vr(KP[p]+2,2)}, {vr(Q[p],2)}, 0",
                   f"v_mov_b64 {vr(KP[p],2)}, {vr(KP[p]+2,2)}", None, None]
            sm += [f"v_cndmask_b32 v{S[p]+r}, v{vNeg}, v{S[p]+r}, s[{sPM+2*r}:{sPM+2*r+1}]" for r in range(4)]
            sm += [f"v_cndmask_b32 v{S[p]+4+r}, v{vNeg}, v{S[p]+4+r}, s[{sMask+8+2*r}:{sMask+8+2*r+1}]" for r in range(4)]
            sm += [f"v_max3_f32 v{M[p]}, v{S[p]}, v{S[p]+1}, v{S[p]+2}", f"v_max3_f32 v{M[p]}, v{M[p]}, v{S[p]+3}, v{S[p]+4}",
                   f"v_max3_f32 v{M[p]}, v{M[p]}, v{S[p]+5}, v{S[p]+6}", f"v_max_f32 v{M[p]}, v{M[p]}, v{S[p]+7}"]
            sm += xl("v_max_f32", p)
            sm += [f"v_mul_f32 v{M[p]}, s{sC}, v{M[p]}"]
            sm += [f"v_fma_f32 v{S[p]+i}, v{S[p]+i}, s{sC}, -v{M[p]}" for i in range(8)]
            sm += [f"v_exp_f32 v{S[p]+i}, v{S[p]+i}" for i in range(8)]
            sm += [f"v_cvt_pk_bf16_f32 v{B[p]+i}, v{S[p]+2*i}, v{S[p]+2*i+1}" for i in range(4)]
            return sm
        def rsum(p):
            out = []
            for d in (4, 2, 1):
                for i in range(d): out.append(f"v_add_f32 v{S[p]+i if d > 1 else M[p]}, v{S[p]+i}, v{S[p]+i+d}")
            return out + xl("v_add_f32", p) + [f"v_rcp_f32 v{M[p]}, v{M[p]}"]
        def vpack(p): return [f"v_cvt_pk_bf16_f32 v{VP[p]+2}, v{acc(2,p)}, v{acc(2,p)+1}", f"v_cvt_pk_bf16_f32 v{VP[p]+3}, v{acc(2,p)+2}, v{acc(2,p)+3}"]
        def weave(mfmas, side, rate):
            for m_ in mfmas:
                mfma(a, *m_)
                for _ in range(rate):
                    if side:
                        x = side.pop(0)
                        if x: a(x)
        side = softmax(0) + vpack(0)
        mm = []
        for ks in range(16):
            c = lambda x: None if ks == 0 else x
            mm += [(acc(0, 1), wq(ks), FR + 8 * ks + 4, c(acc(0, 1))), (acc(1, 1), wk(ks), FR + 8 * ks + 4, c(acc(1, 1)))]
        weave(mm, side, 2)
        for x in side:
            if x: a(x)
        a(resample())
        side = rsum(0)[:3] + softmax(1)[3:]
        mm = [(acc(2, 1), FR + 8 * ks + 4, wv(ks), None if ks == 0 else acc(2, 1)) for ks in range(16)]
        weave([(O[0], VP[0], B[0], None)] + mm, side, 3)
        for x in side + vpack(1) + rsum(0)[3:7]:
            if x: a(x)
        mfma(a, O[1], VP[1], B[1], None)
        r0, r1 = rsum(0)[7:], rsum(1)
        for x in r1[:7]: a(x)
        for x, y in zip(r0, r1[7:]):
            if x: a(x)
            if y: a(y)
        for p in range(2): a(f"v_mov_b64 {vr(VP[p],2)}, {vr(VP[p]+2,2)}")
        for r in range(4): a(f"s_mov_b64 s[{sPM+2*r}:{sPM+2*r+1}], s[{sMask+2*r}:{sMask+2*r+1}]")
        for p in range(2):
            a(f"v_pk_mul_f32 {vr(O[p],2)}, {vr(O[p],2)}, {vr(M[p],2)} op_sel_hi:[1,0]")
            a(f"v_pk_mul_f32 {vr(O[p]+2,2)}, {vr(O[p]+2,2)}, {vr(M[p],2)} op_sel_hi:[1,0]")
        for p in range(2):
            cvt(a, 80 + 2 * p, O[p]); cvt(a, 81 + 2 * p, O[p] + 2)
        a("v_permlane16_swap_b32 v80, v82")
        a("v_permlane16_swap_b32 v81, v83")
        a(f"buffer_store_dwordx4 v[80:83], v{vL16}, {W}, s{sDst} offen{st}")
        stamp("attn")
        finish(a, cfg, F_OB, st, 1, 2, 8192, src_of)
    both_modes(a, "rc", body, cfg)

def role_rd(a, cfg):
    WT = 256
    vD, vTR, vRb, vX1, vSt0, vSt1 = 96, 97, 8, 9, 10, 11
    sMd, sOb, sX1o, sOm, sOs, sFar = 61, 62, 63, 76, 77, 80
    a.label("L_rd")
    common_start(a)
    a(f"s_sub_u32 s{sMd}, s{sMEMB}, 24")
    a(f"s_lshl_b32 s{sMd}, s{sMd}, 2")
    a(f"s_add_u32 s{sMd}, s{sMd}, s{sWAVE}")
    natural_dma64(a, vD, 1024)
    tr32_addr(a, vTR, 8)
    a(f"s_lshl_b32 s{sT2}, s{sMd}, 6")
    set_srd(a, sWT, sWBO, 0x80000)
    late_start(a, cfg)
    chunks = []
    for ch in range(8):
        def setup(ch=ch): a(f"s_add_u32 s{sT0}, s{sT2}, {ch*65536}")
        def consume(so, ch=ch):
            for e in range(2):
                for hh in range(2):
                    for jh in range(2):
                        a(f"ds_read_b64_tr_b16 {xr(WT+((2*ch+e)*2+hh)*4+2*jh,2)}, v{vTR} offset:{so+(32*e+16*hh+4*jh)*64}")
            a("s_waitcnt lgkmcnt(0)")
        chunks.append(dict(setup=setup, vdma=vD, dstep=16384, consume=consume))
    load_chunks(a, chunks, sLds)
    a(f"v_and_b32 v{vFo}, 31, v0")
    a(f"v_lshlrev_b32 v{vFo}, 2, v{vFo}")
    a(f"v_add_u32 v{vFo}, {F_OB}, v{vFo}")
    a(f"s_cmp_eq_u32 s{sLAY}, 0")
    a(f"s_mov_b32 s{sT1}, {F_OB}")
    a(f"s_cselect_b32 s{sT1}, {64*2048+F_XN}, s{sT1}")
    credit_setup(a, 12, f"s{sT1}", 8, RB_())
    lane32_addr(a, vRb, 256, 512, False)
    a(f"s_lshl_b32 s{sT0}, s{sMd}, 11")
    a(f"v_add_u32 v{vX1}, s{sT0}, v{vRb}")
    a(f"s_mov_b32 s{sFar}, 0")
    a(f"s_cmp_eq_u32 s{sLAY}, 0")
    a("s_cbranch_scc1 L_rd_l0")
    set_srd(a, sIN, sOUT, 0x200000)
    a(f"s_mov_b32 s{sOb}, 0")
    a(f"s_mov_b32 s{sOm}, 63")
    a(f"s_mov_b32 s{sOs}, 15")
    a(f"v_and_b32 v{vT}, 15, v0")
    a(f"v_lshlrev_b32 v{vSt0}, 11, v{vT}")
    a(f"v_bfe_u32 v{vT}, v0, 4, 1")
    a(f"v_lshl_add_u32 v{vSt0}, v{vT}, 10, v{vSt0}")
    a(f"v_lshrrev_b32 v{vT}, 5, v0")
    a(f"v_lshl_add_u32 v{vSt0}, v{vT}, 4, v{vSt0}")
    a(f"s_lshl_b32 s{sT0}, s{sMd}, 6")
    a(f"v_add_u32 v{vSt0}, s{sT0}, v{vSt0}")
    a(f"v_add_u32 v{vSt1}, 32, v{vSt0}")
    a("s_branch L_rd_go")
    a.label("L_rd_l0")
    set_srd(a, sIN, sWSP, WS_BYTES)
    if cfg.get("re_far", False):
        a(f"s_mov_b32 s{sOb}, {OFF_X2R:#x}")
        a(f"s_mov_b32 s{sOm}, 63")
        a(f"s_mov_b32 s{sOs}, 15")
        a(f"s_mov_b32 s{sFar}, 1")
    else:
        a(f"s_add_u32 s{sOb}, s{sRing}, {R_X2:#x}")
        a(f"s_mov_b32 s{sOm}, {RB_()-1}")
        a(f"s_mov_b32 s{sOs}, 17")
    lane32_addr(a, vSt0, 512, 64, True)
    a(f"s_lshl_b32 s{sT0}, s{sMd}, 11")
    a(f"v_add_u32 v{vSt0}, s{sT0}, v{vSt0}")
    a(f"v_add_u32 v{vSt1}, 1024, v{vSt0}")
    a.label("L_rd_go")
    a(f"s_mov_b32 s{sBuf}, 0")
    ACC, RING, XR = 16, 32, 56
    def body(st, stamp):
        def src_of(sg):
            ring_off(a, sSrc, sg, R_OB)
        a(f"s_sub_u32 s{sFlP}, s{sFl}, s{sBias}")
        fetch_input(a, cfg, stamp, src_of, 2, 8192, 0x8000, vRb, sFlP)
        credit_switch(a, 12, RB_())
        ring_off(a, sX1o, sSeg, R_X1)
        extra = [f"buffer_load_dwordx4 {vr(XR+4*u,4)}, v{vX1}, {W}, s{sX1o} offen offset:{u*1024} sc1" for u in range(2)]
        a(f"s_and_b32 s{sDst}, s{sSeg}, s{sOm}")
        a(f"s_lshl_b32 s{sDst}, s{sDst}, s{sOs}")
        a(f"s_add_u32 s{sDst}, s{sDst}, s{sOb}")
        a(f"s_lshl_b32 s{sT0}, s{sMd}, 2")
        a(f"s_add_u32 s{sFl}, s{sFl}, s{sT0}")
        def step(ks, fr, side):
            for hh in range(2):
                mfma32(a, ACC, WT + (ks * 2 + hh) * 4, fr + 4 * hh, ks == 0 and hh == 0)
                for _ in range(3):
                    if side: a(side.pop(0))
        gemm_phases(a, 16, 2, extra, lambda ks, u: ks * 2048 + u * 1024, RING, step, src_of, 8192, stamp, CFG.get('rs_rd', 11), 2, F_X2, st, mid=False)
        stamp("gemm")
        a("s_waitcnt vmcnt(1)")
        for i in range(8):
            a(f"v_lshlrev_b32 v{64+2*i}, 16, v{XR+i}")
            a(f"v_and_b32 v{65+2*i}, 0xffff0000, v{XR+i}")
        for i in range(8 if cfg.get("rd_round") else 0):
            cvt(a, 80 + i, ACC + 2 * i)
        for i in range(8 if cfg.get("rd_round") else 0):
            a(f"v_lshlrev_b32 v{ACC+2*i}, 16, v{80+i}")
            a(f"v_and_b32 v{ACC+2*i+1}, 0xffff0000, v{80+i}")
        for i in range(8):
            a(f"v_pk_add_f32 {vr(ACC+2*i,2)}, {vr(ACC+2*i,2)}, {vr(64+2*i,2)}")
        for u in range(2):
            for i in range(4): cvt(a, 80 + 4 * u + i, ACC + 8 * u + 2 * i)
            if not cfg.get("out_sc1") or st:
                a(f"buffer_store_dwordx4 {vr(80+4*u,4)}, v{(vSt0, vSt1)[u]}, s[{sIN}:{sIN+3}], s{sDst} offen{st}")
            else:
                l1, l2 = a.newlab("L_o1"), a.newlab("L_o2")
                a(f"s_cmp_eq_u32 s{sLAY}, 1")
                a(f"s_cbranch_scc1 {l1}")
                a(f"buffer_store_dwordx4 {vr(80+4*u,4)}, v{(vSt0, vSt1)[u]}, s[{sIN}:{sIN+3}], s{sDst} offen")
                a(f"s_branch {l2}")
                a.label(l1)
                a(f"buffer_store_dwordx4 {vr(80+4*u,4)}, v{(vSt0, vSt1)[u]}, s[{sIN}:{sIN+3}], s{sDst} offen sc1")
                a.label(l2)
        if cfg.get("rd_copy", True) and not cfg.get("re_far", False):
            def copy(cond):
                lab = a.newlab("L_nocp")
                a(f"s_cmp_{cond}_u32 s{sSeg}, 63")
                a(f"s_cbranch_scc0 {lab}")
                a(f"s_lshl_b32 s{sX1o}, s{sSeg}, 15")
                a(f"s_add_u32 s{sX1o}, s{sX1o}, {OFF_X2R:#x}")
                for u in range(2):
                    a(f"buffer_store_dwordx4 {vr(80+4*u,4)}, v{(vSt0, vSt1)[u]}, {W}, s{sX1o} offen sc1")
                a.label(lab)
            copy("eq")
        finish(a, cfg, F_X2, st, 2, 2, 8192, src_of)
        if cfg.get("rd_copy", True) and not cfg.get("re_far", False): copy("lt")
    both_modes(a, "rd", body, cfg, far=sFar if cfg.get("re_far", False) else None)

def row_reduce(a, r, t):
    a(f"v_add_f32_dpp v{r}, v{r}, v{r} row_ror:4 row_mask:0xf bank_mask:0xf")
    a(f"v_add_f32_dpp v{r}, v{r}, v{r} row_ror:8 row_mask:0xf bank_mask:0xf")
    xlane_g(a, "v_add_f32", r, t)

def rnd_bf16(a, r):
    a(f"v_cvt_pk_bf16_f32 v{r}, v{r}, v{r}")
    a(f"v_and_b32 v{r}, 0xffff0000, v{r}")

def layernorm(a, X, T, between=()):
    m, t, s, t2 = T, T + 2, T + 4, T + 6
    between = list(between)
    a(f"v_pk_add_f32 {vr(m,2)}, {vr(X,2)}, {vr(X+2,2)}")
    a(f"v_pk_mul_f32 {vr(s,2)}, {vr(X,2)}, {vr(X,2)}")
    a(f"v_pk_fma_f32 {vr(s,2)}, {vr(X+2,2)}, {vr(X+2,2)}, {vr(s,2)}")
    for i in range(4, 32, 2):
        a(f"v_pk_add_f32 {vr(m,2)}, {vr(m,2)}, {vr(X+i,2)}")
        a(f"v_pk_fma_f32 {vr(s,2)}, {vr(X+i,2)}, {vr(X+i,2)}, {vr(s,2)}")
    a(f"v_add_f32 v{m}, v{m}, v{m+1}")
    a(f"v_add_f32 v{s}, v{s}, v{s+1}")
    def gap():
        if between: a(between.pop(0))
    for ror in (4, 8):
        gap()
        a(f"v_add_f32_dpp v{m}, v{m}, v{m} row_ror:{ror} row_mask:0xf bank_mask:0xf")
        a(f"v_add_f32_dpp v{s}, v{s}, v{s} row_ror:{ror} row_mask:0xf bank_mask:0xf")
    for sw in ("v_permlane16_swap_b32", "v_permlane32_swap_b32"):
        a(f"v_mov_b32 v{t}, v{m}")
        a(f"v_mov_b32 v{t2}, v{s}")
        gap()
        a(f"{sw} v{m}, v{t}")
        a(f"{sw} v{s}, v{t2}")
        a(f"v_add_f32 v{m}, v{m}, v{t}")
        a(f"v_add_f32 v{s}, v{s}, v{t2}")
    a(f"v_mul_f32 v{m}, {fbits(1/512):#x}, v{m}")
    a(f"v_mul_f32 v{s}, {fbits(1/512):#x}, v{s}")
    a(f"v_fma_f32 v{s}, -v{m}, v{m}, v{s}")
    a(f"v_max_f32 v{s}, 0, v{s}")
    rnd_bf16(a, m)
    rnd_bf16(a, s)
    a(f"v_add_f32 v{s}, {fbits(1e-5):#x}, v{s}")
    rnd_bf16(a, s)
    a(f"v_sqrt_f32 v{s}, v{s}")
    gap()
    rnd_bf16(a, s)
    a(f"v_rcp_f32 v{s}, v{s}")
    for x in between: a(x)
    a(f"v_mul_f32 v{m}, v{m}, v{s}")
    for i in range(0, 32, 2):
        a(f"v_pk_fma_f32 {vr(X+i,2)}, {vr(X+i,2)}, {vr(s,2)}, {vr(m,2)} op_sel_hi:[1,0,0] neg_lo:[0,0,1] neg_hi:[0,0,1]")

def unpack(a, dst, src, n):
    for i in range(n):
        a(f"v_lshlrev_b32 v{dst+2*i}, 16, v{src+i}")
        a(f"v_and_b32 v{dst+2*i+1}, 0xffff0000, v{src+i}")

def rows_setup(a, sWb):
    c_, gi = 96, 97
    a(f"s_and_b32 s{sT0}, s{sWb}, 1")
    a(f"s_lshr_b32 s{sT1}, s{sWb}, 1")
    a(f"s_lshl_b32 s{sT1}, s{sT1}, 2")
    a(f"v_and_b32 v{c_}, 3, v0")
    a(f"v_add_u32 v{c_}, s{sT1}, v{c_}")
    a(f"v_lshrrev_b32 v{gi}, 2, v0")
    a(f"s_lshl_b32 s{sT1}, s{sT0}, 8")
    a(f"v_lshl_add_u32 v98, v{c_}, 4, s{sT1}")
    a(f"s_lshl_b32 s{sT1}, s{sT0}, 10")
    a(f"v_lshl_add_u32 v99, v{c_}, 11, s{sT1}")
    a(f"s_lshl_b32 s{sT1}, s{sT0}, 9")
    a(f"s_lshr_b32 s{sT2}, s{sWb}, 1")
    a(f"s_lshl_b32 s{sT2}, s{sT2}, 7")
    a(f"s_add_u32 s{sT1}, s{sT1}, s{sT2}")
    a(f"v_and_b32 v102, 7, v0")
    a(f"v_lshl_add_u32 v102, v102, 4, s{sT1}")

def xn_store_addr(a, vP):
    a(f"s_lshl_b32 s{sT1}, s{sT0}, 10")
    a(f"v_lshl_add_u32 v{vP}, v96, 4, s{sT1}")
    a(f"v_lshl_add_u32 v{vP}, v97, 11, v{vP}")

def ln_to_xn(a, X, T, R, P, vP):
    unpack(a, X, R, 16)
    layernorm(a, X, T)
    for g in range(4):
        for dj in range(4):
            half = dj & 1; jh = dj >> 1
            e = 4 * (g >> 1) + 2 * (g & 1) + jh
            a(f"v_cvt_pk_bf16_f32 v{P+4*g+dj}, v{X+8*half+e}, v{X+8*(2+half)+e}")
        a(f"buffer_store_dwordx4 {vr(P+4*g,4)}, v{vP}, {W}, s{sDst} offen offset:{g*256} sc1")

def ln0(a, cfg):
    sWb, sU = 61, 62
    vA, vP = 8, 12
    X, T, P, R = 16, 48, 128, 144
    a(f"s_cmp_eq_u32 s{sLAY}, 0")
    a("s_cbranch_scc1 L_ln0_done")
    a("v_and_b32 v0, 63, v0")
    a(f"v_mov_b32 v{vOne}, 1")
    a(f"s_lshl_b32 s{sU}, s{sMEMB}, 2")
    a(f"s_add_u32 s{sU}, s{sU}, s{sWAVE}")
    a(f"s_and_b32 s{sWb}, s{sU}, 7")
    a(f"s_lshr_b32 s{sU}, s{sU}, 3")
    rows_setup(a, sWb)
    xn_store_addr(a, vP)
    a(f"v_lshrrev_b32 v100, 1, v97")
    a(f"v_and_b32 v101, 1, v97")
    a(f"v_lshl_add_u32 v100, v100, 3, v101")
    a(f"v_lshl_add_u32 v{vA}, v100, 4, v99")
    set_srd(a, sIN, sX, 0x200000)
    a(f"s_lshl_b32 s{sT0}, s{sU}, 15")
    for k in range(4):
        if k: a(f"s_add_u32 s{sT0}, s{sT0}, {16 << 15}")
        for q in range(4):
            a(f"buffer_load_dwordx4 {vr(R+16*k+4*q,4)}, v{vA}, s[{sIN}:{sIN+3}], s{sT0} offen offset:{q*32}")
    trace(a, cfg, 2, None, vT)
    a(f"s_lshl_b32 s{sDst}, s{sU}, 15")
    a(f"s_add_u32 s{sDst}, s{sDst}, {OFF_XN:#x}")
    a(f"s_lshl_b32 s{sFl}, s{sU}, 11")
    a(f"s_lshl_b32 s{sT0}, s{sWb}, 2")
    a(f"s_add_u32 s{sFl}, s{sFl}, s{sT0}")
    a(f"s_mov_b32 s{sU}, 0")
    a("s_waitcnt vmcnt(0)")
    a(f"v_lshrrev_b32 v100, 1, v97")
    a(f"v_lshl_add_u32 v{vA}, v100, 12, v102")
    a.label("L_ln0_loop")
    a(f"s_sub_u32 s{sT0}, s{sDst}, {OFF_XN-OFF_XR:#x}")
    for q in range(4):
        a(f"buffer_store_dwordx4 {vr(R+4*q,4)}, v{vA}, {W}, s{sT0} offen offset:{q*1024} sc1")
    ln_to_xn(a, X, T, R, P, vP)
    for i in range(24): a(f"v_mov_b64 {vr(R+2*i,2)}, {vr(R+16+2*i,2)}")
    if not cfg.get("noinit"):
        lab = a.newlab("L_l0g")
        a(f"s_cmp_lg_u32 s{sU}, 0")
        a(f"s_cbranch_scc1 {lab}")
        wait_init(a, barrier=False)
        trace(a, cfg, 3, None, vT)
        a.label(lab)
    a("s_waitcnt vmcnt(0)")
    set_flag(a, vOne, sFl, F_XN)
    a(f"s_add_u32 s{sDst}, s{sDst}, {16 << 15}")
    a(f"s_add_u32 s{sFl}, s{sFl}, {16 << 11}")
    a(f"s_add_u32 s{sU}, s{sU}, 1")
    trace(a, cfg, 3, sU, vT)
    if cfg.get("ln0_late", False):
        lab = a.newlab("L_l0l")
        a(f"s_cmp_lg_u32 s{sU}, 1")
        a(f"s_cbranch_scc1 {lab}")
        late_start(a, cfg)
        a.label(lab)
    a(f"s_cmp_lt_u32 s{sU}, 4")
    a("s_cbranch_scc1 L_ln0_loop")
    a.label("L_ln0_done")

def role_rows(a, cfg):
    sWb, sIb, sLo = 61, 62, 63
    vA = 8
    vP = 12
    vP2 = 7
    vFx = 13
    c_, gi = 96, 97
    a.label("L_rows")
    common_start(a)
    a(f"s_sub_u32 s{sWb}, s{sMEMB}, 28")
    a(f"s_lshl_b32 s{sT1}, s{sWb}, 2")
    a(f"s_add_u32 s{sT1}, s{sT1}, s{sWAVE}")
    a(f"s_lshl_b32 s{sWb}, s{sWb}, 1")
    a(f"s_and_b32 s{sT0}, s{sWAVE}, 1")
    a(f"s_add_u32 s{sWb}, s{sWb}, s{sT0}")
    a(f"s_lshr_b32 s{sLo}, s{sWAVE}, 1")
    if cfg.get("split_rows", False):
        a(f"s_and_b32 s{sT0}, s{sT1}, 7")
        a(f"s_lshr_b32 s{sT1}, s{sT1}, 3")
        a(f"s_cmp_eq_u32 s{sLAY}, 0")
        a(f"s_cselect_b32 s{sWb}, s{sT0}, s{sWb}")
        a(f"s_cselect_b32 s{sLo}, s{sT1}, s{sLo}")
    rows_setup(a, sWb)
    a(f"s_cmp_eq_u32 s{sLo}, 1")
    a("s_cbranch_scc1 L_re")
    SelLo, SelHi = 104, 108
    X, T, P, R, RN = 16, 48, 128, 112, 192
    a(f"v_lshlrev_b32 v{vFo}, 2, v0")
    a(f"v_add_u32 v{vFo}, {F_PART}, v{vFo}")
    a(f"v_and_b32 v{vFx}, 7, v0")
    a(f"v_lshlrev_b32 v{vFx}, 2, v{vFx}")
    a("v_bfe_u32 v100, v0, 3, 1")
    a("v_lshl_add_u32 v102, v100, 10, v102")
    a("v_lshrrev_b32 v100, 4, v0")
    a(f"v_lshl_add_u32 v{vP2}, v100, 15, v102")
    a("v_bfe_u32 v100, v0, 4, 1")
    a("v_lshlrev_b32 v101, 12, v100")
    a("v_bfe_u32 v100, v0, 5, 1")
    a("v_lshl_add_u32 v101, v100, 11, v101")
    a(f"v_add_u32 v{vA}, v101, v102")
    a("v_bfe_u32 v100, v0, 2, 2")
    a("v_lshl_add_u32 v101, v100, 9, v101")
    a(f"v_add_u32 v{vP}, v101, v98")
    sel_consts(a, 0, 100, selLo=SelLo, selHi=SelHi)
    vCa, vCv, sCr, vNx = 9, 10, 76, 11
    a(f"v_and_b32 v{vCa}, 15, v0")
    a(f"v_lshlrev_b32 v{vCa}, 2, v{vCa}")
    a(f"v_add_u32 v{vCa}, {F_X2}, v{vCa}")
    def swaps(r):
        return [f"v_permlane16_swap_b32 v{r+4*p+h}, v{r+4*p+2+h}" for p in range(4) for h in range(2)]
    def res_loads(sg):
        a(f"s_lshl_b32 s{sT0}, s{sg}, 15")
        a(f"s_add_u32 s{sT0}, s{sT0}, {OFF_XR:#x}")
        for i in range(4):
            if i: a(f"s_add_u32 s{sT0}, s{sT0}, 8192")
            a(f"buffer_load_dwordx4 {vr(RN+4*i,4)}, v{vA}, {W}, s{sT0} offen sc1")
    def before():
        a(f"s_lshl_b32 s{sFl}, s{sSeg}, 11")
        poll_flags(a, vT, vFx, sFl, sleep=8)
        for _ in range(2):
            a(f"s_add_u32 s{sFl}, s{sFl}, 2048")
            poll_flags(a, vT, vFx, sFl, sleep=8)
        res_loads(sSeg)
        a("s_waitcnt vmcnt(0)")
        if cfg.get("rb_fast", True):
            for x in swaps(RN): a(x)
            unpack(a, X, RN, 16)
            a(f"v_mov_b32 v{vNx}, 0")
    def body(st, stamp):
        ring_off(a, sSrc, sSeg, R_PART)
        fast = cfg.get("rb_fast", True)
        if fast:
            lab = a.newlab("L_rbseen")
            a("s_waitcnt vmcnt(1)")
            a(f"v_cmp_eq_u32 vcc, 0, v{vNx}")
            a(f"s_cbranch_vccz {lab}")
        else:
            for x in swaps(RN): a(x)
            unpack(a, X, RN, 16)
        poll_flags(a, vT, vFo, sFl, sleep=CFG.get('psleep', 1))
        if fast: a.label(lab)
        stamp("flag")
        trace(a, cfg, 0, sSeg, vT)
        for n in range(16):
            if n and n % 2 == 0: a(f"s_add_u32 s{sSrc}, s{sSrc}, 4096")
            a(f"buffer_load_dwordx4 {vr(P+4*n,4)}, v{vP2}, {W}, s{sSrc} offen offset:{(n%2)*2048} sc1")
        a(f"s_and_b32 s{sT0}, s{sSeg}, 63")
        a(f"s_cmp_ge_u32 s{sT0}, {RB_()}")
        a(f"s_cselect_b32 s{sCr}, {RB_()*2048+F_PART-F_X2}, 0")
        a(f"s_sub_u32 s{sCr}, s{sFl}, s{sCr}")
        a(f"s_add_u32 s{sCr}, s{sCr}, {F_PART-F_X2}")
        a(f"buffer_load_dword v{vCv}, v{vCa}, {W}, s{sCr} offen sc1")
        a(f"s_add_u32 s{sT0}, s{sSeg}, 1")
        res_loads(sT0)
        ring_off(a, sT2, sSeg, R_X1)
        a(f"s_add_u32 s{sDst}, s{sT2}, {R_XNB-R_X1:#x}")
        a(f"s_lshl_b32 s{sT0}, s{sWb}, 2")
        a(f"s_add_u32 s{sFl}, s{sFl}, s{sT0}")
        for n in range(16):
            a(f"s_waitcnt vmcnt({20-n})")
            mfma(a, X + 4 * (n // 2), (SelLo, SelHi)[n % 2], P + 4 * n, X + 4 * (n // 2))
            if n >= 5 and n % 2 == 1:
                i = (n - 5) // 2
                cvt(a, R + 2 * i, X + 4 * i); cvt(a, R + 2 * i + 1, X + 4 * i + 2)
        stamp("sum")
        lab = a.newlab("L_crok")
        a("s_waitcnt vmcnt(4)")
        a(f"v_cmp_eq_u32 vcc, 0, v{vCv}")
        a(f"s_cbranch_vccz {lab}")
        poll_flags(a, vCv, vCa, sCr, sleep=2)
        a.label(lab)
        for i in range(12, 16): cvt(a, R + i, X + 2 * i)
        for x in swaps(R): a(x)
        stores = []
        for i in range(4):
            stores.append((f"s_add_u32 s{sT2}, s{sT2}, 8192\n" if i else "") + f"buffer_store_dwordx4 {vr(R+4*i,4)}, v{vP}, {W}, s{sT2} offen{st}")
        layernorm(a, X, T, stores)
        for p in range(4):
            for i in range(4): cvt(a, P + 4 * p + i, X + 8 * p + 2 * i)
            for x in swaps(P)[2*p:2*p+2]: a(x)
            if p: a(f"s_add_u32 s{sDst}, s{sDst}, 8192")
            a(f"buffer_store_dwordx4 {vr(P+4*p,4)}, v{vP}, {W}, s{sDst} offen{st}")
        stamp("ln")
        if fast:
            a(f"s_lshl_b32 s{sT0}, s{sSeg}, 11")
            a(f"s_add_u32 s{sT0}, s{sT0}, 2048")
            a(f"buffer_load_dword v{vNx}, v{vFo}, {W}, s{sT0} offen sc1")
            a("s_waitcnt vmcnt(9)")
            for x in swaps(RN): a(x)
            unpack(a, X, RN, 16)
            a("s_waitcnt vmcnt(1)")
        else: a("s_waitcnt vmcnt(0)")
        set_flag(a, vOne, sFl, F_XNB, st)
    both_modes(a, "rb", body, cfg, before)
    a.label("L_re")
    a(f"v_and_b32 v{vFo}, 15, v0")
    a(f"v_lshlrev_b32 v{vFo}, 2, v{vFo}")
    a(f"v_add_u32 v{vFo}, {F_X2}, v{vFo}")
    xn_store_addr(a, vP)
    a(f"v_lshrrev_b32 v100, 1, v{gi}")
    a(f"v_lshl_add_u32 v{vA}, v100, 12, v102")
    touch_ring(a, cfg)
    a(f"s_cmp_eq_u32 s{sLAY}, {0 if cfg.get('re_far', False) else 1}")
    a("s_cbranch_scc1 L_exit")
    a(f"s_mov_b32 s{sSeg}, 0")
    a(f"s_mov_b32 s{sEnd}, 64")
    if not cfg.get("noinit"): wait_init(a)
    else: a("s_barrier")
    stamp = Stamps(a, cfg.get("stamp") == "re", base=4, only=cfg.get("only"))
    a.label("L_re_loop")
    stamp("top")
    a(f"s_lshl_b32 s{sFl}, s{sSeg}, 11")
    if cfg.get("re_far", False):
        a(f"s_lshl_b32 s{sSrc}, s{sSeg}, 15")
        a(f"s_add_u32 s{sSrc}, s{sSrc}, {OFF_X2R:#x}")
    else: ring_off(a, sSrc, sSeg, R_X2)
    poll_flags(a, vT, vFo, sFl, sleep=CFG.get('psleep', 1))
    stamp("flag")
    trace(a, cfg, 0, sSeg, vT)
    for q in range(4):
        a(f"buffer_load_dwordx4 {vr(R+4*q,4)}, v{vA}, {W}, s{sSrc} offen offset:{q*1024} sc1")
    a(f"s_lshl_b32 s{sT0}, s{sSeg}, 15")
    a(f"s_add_u32 s{sDst}, s{sT0}, {OFF_XN+(64<<15):#x}")
    a(f"s_add_u32 s{sSrc}, s{sT0}, {OFF_X2R:#x}")
    a(f"s_lshl_b32 s{sT0}, s{sWb}, 2")
    a(f"s_add_u32 s{sFl}, s{sFl}, s{sT0}")
    a(f"s_add_u32 s{sFl}, s{sFl}, {64<<11}")
    a("s_waitcnt vmcnt(0)")
    stamp("ld")
    for q in range(0 if cfg.get("rd_copy", True) or cfg.get("re_far", False) else 4):
        a(f"buffer_store_dwordx4 {vr(R+4*q,4)}, v{vA}, {W}, s{sSrc} offen offset:{q*1024} sc1")
    ln_to_xn(a, X, T, R, P, vP)
    stamp("ln")
    a("s_waitcnt vmcnt(0)")
    set_flag(a, vOne, sFl, F_XN)
    trace(a, cfg, 1, sSeg, vT)
    stamp("end")
    if stamp.on:
        lab = a.newlab("L_nost")
        a(f"s_and_b32 s{sT0}, s{sSeg}, 63")
        a(f"s_cmp_lg_u32 s{sT0}, {cfg.get('stamp_step', 20)}")
        a(f"s_cbranch_scc1 {lab}")
        def row():
            a(f"s_lshl_b32 s{sT0}, s{sGRP}, 7")
            a(f"s_lshl_b32 s{sT1}, s{sMEMB}, 2")
            a(f"s_add_u32 s{sT0}, s{sT0}, s{sT1}")
            a(f"s_add_u32 s{sT0}, s{sT0}, s{sWAVE}")
        dump_stamps(a, stamp, cfg, row)
        a.label(lab)
    a(f"s_add_u32 s{sSeg}, s{sSeg}, 1")
    a(f"s_cmp_lt_u32 s{sSeg}, s{sEnd}")
    a("s_cbranch_scc1 L_re_loop")
    a("s_waitcnt vmcnt(0)")
    a("s_branch L_done")

def role_wo(a, cfg):
    CFG.clear(); CFG.update(cfg)
    a.label("L_wo")
    ln0(a, cfg)
    a(f"s_cmp_lt_u32 s{sMEMB}, 16")
    a("s_cbranch_scc1 L_ra")
    a(f"s_cmp_lt_u32 s{sMEMB}, 24")
    a("s_cbranch_scc1 L_rc")
    a(f"s_cmp_lt_u32 s{sMEMB}, 28")
    a("s_cbranch_scc1 L_rd")
    a("s_branch L_rows")
    role_ra(a, cfg); role_rc(a, cfg); role_rd(a, cfg); role_rows(a, cfg)
```

```python
import sys
from gen_common import *
from gen_chain import chain

HEADER = open('interleave_layers__memory_aug_recurrent_mem_tr__sliding_local_dilated__prompt.s.ref').read().split("; Override launch")[0]

GMAP = [("wa",0,0),("wa",1,0),("chain",1,0),("chain",0,0),("wa",0,1),("wa",1,1),("wo",0,0),("wo",1,0)]
WARM = []

NOTES = """;
; One persistent launch, 256 workgroups (one per CU), eight groups of 32 with fixed jobs; both layers run as a pipeline:
;   chain(l)   the 63 sequential memory-token steps of attention layer l, one head per CU. Wk, Wv, Wo stay in registers,
;              Wq in LDS. The 8-row products use the 2:4 sparse MFMA with both k-halves (or two column sets) packed into
;   wa(l,p)    segments of parity p: Q,K,V projection (weights in registers), then the causal attention of the 32 tokens.
;   wo(l)      16 CUs output projection (split-K 4), 4 CUs partial sum + residual + LayerNorm, 8 CUs dilated local
; Roles: each workgroup takes a ticket on the counter of the die it runs on (HW_REG_XCC_ID, d_debug); workgroups beyond 32
; stores, and everything between groups always uses sc1. Placement therefore only changes speed.
; Hand-offs: flags set after the producer's stores are acknowledged, all-ones words that the data replaces, or a lap bit
; in each 16-byte piece. All of these words are initialised in every launch before the go word in d_debug is written.
; Every wait is bounded. Softmax subtracts the true row maximum; the chain first tries the unshifted form and checks at
; Generated by my own scripts (register allocation, wait states and wait counts checked by them).
"""

def generate(cfg):
    a = Asm()
    cfg.setdefault("latemask", sum(1 << i for i, x in enumerate(cfg.get("gmap", GMAP)) if x[1] == 1))
    TRC.clear(); TRC.update(cfg)
    roles = cfg.get("roles", {"chain", "wa", "wo"})
    a("s_cmp_ge_u32 s2, 256")
    a("s_cbranch_scc1 L_exit")
    a("s_load_dwordx16 s[4:19], s[0:1], 0")
    a("s_load_dwordx8 s[20:27], s[0:1], 64")
    a("s_load_dwordx2 s[28:29], s[0:1], 96")
    a(f"s_getreg_b32 s{sGRP}, hwreg(HW_REG_XCC_ID, 0, 4)")
    a("v_lshrrev_b32 v1, 6, v0")
    a(f"v_readfirstlane_b32 s{sWAVE}, v1")
    a(f"s_mov_b32 s{sLOCAL}, 1")
    a("s_mov_b32 s31, 0")
    if cfg.get("count_redo") or cfg.get("hold_us"): a("s_memrealtime s[100:101]")
    a("s_waitcnt lgkmcnt(0)")
    set_srd(a, sWS, sWSP, WS_BYTES)
    a(f"s_cmp_lg_u32 s{sWAVE}, 0")
    a("s_cbranch_scc1 L_notw0")
    if cfg.get("scramble"):
        a(f"s_lshr_b32 s{sGRP}, s2, {cfg['scramble']}")
        a(f"s_and_b32 s{sGRP}, s{sGRP}, {cfg.get('scramble_mask', 7)}")
    a(f"s_mov_b32 s{sMEMB}, 1")
    a(f"s_mul_i32 s{sT1}, s{sGRP}, 43")
    a(f"s_lshr_b32 s{sT1}, s{sT1}, 7")
    a(f"s_mul_i32 s{sT0}, s{sT1}, 3")
    a(f"s_sub_u32 s{sT0}, s{sGRP}, s{sT0}")
    a(f"s_lshl_b32 s{sT0}, s{sT0}, 6")
    a(f"s_lshl_b32 s{sT1}, s{sT1}, 2")
    a(f"s_add_u32 s{sT0}, s{sT0}, s{sT1}")
    a(f"s_cmp_gt_u32 s{sGRP}, 7")
    a(f"s_cselect_b32 s{sT0}, 12, s{sT0}")
    a(f"s_atomic_add s{sMEMB}, s[{sDBG}:{sDBG+1}], s{sT0} glc")
    a("s_waitcnt lgkmcnt(0)")
    a(f"s_cmp_gt_u32 s{sGRP}, 7")
    a(f"s_cselect_b32 s{sMEMB}, 32, s{sMEMB}")
    a(f"s_cmp_lt_u32 s{sMEMB}, 32")
    a("s_cbranch_scc1 L_haverole")
    count_tickets(a)
    a(f"s_mov_b32 s{sT1}, 1")
    a(f"s_atomic_add s{sT1}, s[{sDBG}:{sDBG+1}], 0x4c glc")
    a("s_waitcnt lgkmcnt(0)")
    for g in range(8):
        a(f"s_mov_b32 s{sGRP}, {g}")
        a(f"s_min_u32 s{sFV}, s{cnt_reg(g)}, 32")
        a(f"s_add_u32 s{sMEMB}, s{sFV}, s{sT1}")
        a(f"s_cmp_lt_u32 s{sMEMB}, 32")
        a("s_cbranch_scc1 L_haverole")
        a(f"s_sub_u32 s{sT1}, s{sMEMB}, 32")
    a(f"s_mov_b32 s{sGRP}, 8")
    a.label("L_haverole")
    a(f"s_lshl_b32 s{sT0}, s{sGRP}, 8")
    a(f"s_or_b32 s{sT0}, s{sT0}, s{sMEMB}")
    a(f"v_mov_b32 v1, s{sT0}")
    a("v_mov_b32 v2, 0x27ff0")
    a("ds_write_b32 v2, v1")
    a("s_waitcnt lgkmcnt(0)")
    a("s_branch L_bar0")
    a.label("L_notw0")
    if cfg.get("tlb"):
        a(f"s_cmp_lg_u32 s{sWAVE}, 2")
        a("s_cbranch_scc1 L_notlb")
        a("v_and_b32 v1, 63, v0")
        a(f"v_lshlrev_b32 v1, {cfg['tlb']}, v1")
        for n, ptr in enumerate((sWK, sWV, sWO, sWQ)):
            set_srd(a, sWT, ptr, 0x400000)
            a(f"buffer_load_dword v{250+n}, v1, s[{sWT}:{sWT+3}], 0 offen")
        a("s_branch L_bar0")
        a.label("L_notlb")
    if cfg.get("warm0"):
        a(f"s_cmp_lt_u32 s{sWAVE}, 2")
        a("s_cbranch_scc1 L_nowarm0")
        a("v_and_b32 v1, 127, v0")
        a("v_lshlrev_b32 v1, 4, v1")
        n = 0
        for ptr in [dict(k=sWK, v=sWV, o=sWO, q=sWQ)[x] for x in cfg["warm0"]]:
            set_srd(a, sWT, ptr, 0x400000)
            a(f"s_lshl_b32 s{sT0}, s2, 11")
            for i in range(8):
                if i: a(f"s_add_u32 s{sT0}, s{sT0}, {1 << 19}")
                a(f"buffer_load_dwordx4 {ar(n*4,4)}, v1, s[{sWT}:{sWT+3}], s{sT0} offen")
                n += 1
        a("s_branch L_bar0")
        a.label("L_nowarm0")
    if not cfg.get("nocodepf", True):
        a(f"s_cmp_lg_u32 s{sWAVE}, 1")
        a("s_cbranch_scc1 L_bar0")
        a("s_getpc_b64 s[64:65]")
        a.label("L_pcref")
        a(f"s_lshr_b32 s{sT0}, s2, 3")
        a(f"s_lshl_b32 s{sT0}, s{sT0}, 12")
        a("v_and_b32 v1, 63, v0")
        a(f"v_lshl_add_u32 v1, v1, 6, s{sT0}")
        a("v_min_u32 v1, L_codeend-L_pcref-4, v1")
        a("global_load_dword v255, v1, s[64:65]")
    a.label("L_bar0")
    a("s_barrier")
    a("v_mov_b32 v2, 0x27ff0")
    a("ds_read_b32 v1, v2")
    a("s_waitcnt lgkmcnt(0)")
    a(f"v_readfirstlane_b32 s{sT0}, v1")
    a("s_barrier")
    a(f"s_and_b32 s{sMEMB}, s{sT0}, 31")
    a(f"s_lshr_b32 s{sGRP}, s{sT0}, 8")
    a(f"s_cmp_gt_u32 s{sGRP}, 7")
    a("s_cbranch_scc1 L_exit")
    trace_setup(a, cfg)
    trace(a, cfg, 7, None, 1)
    gmap = cfg.get("gmap", GMAP)
    for g, (role, lay, par) in enumerate(gmap):
        if role not in roles: continue
        lab = a.newlab("L_ng")
        a(f"s_cmp_lg_u32 s{sGRP}, {g}")
        a(f"s_cbranch_scc1 {lab}")
        a(f"s_mov_b32 s{sLAY}, {lay}")
        a(f"s_mov_b32 s{sT3}, {par}")
        warm = cfg.get("warm", WARM)
        initg = cfg.get("initg", [x for x in range(len(gmap)) if gmap[x] in (("chain", 1, 0), ("wa", 1, 1))])
        if g in initg and not cfg.get("noinit"):
            assert len(initg) == 2
            a(f"s_mov_b32 s{sT2}, {initg.index(g)}")
            a(f"s_getpc_b64 s[98:99]")
            a(f"s_branch L_init")
        if g in warm: warm_weights(a, cfg, warm.index(g), len(warm))
        a(f"s_branch L_{role}")
        a.label(lab)
    a.label("L_done")
    trace(a, cfg, 8, None, 1)
    if cfg.get("wb"):
        a(f"s_or_b32 s{sT0}, s{sWAVE}, s{sMEMB}")
        a("s_cbranch_scc1 L_nowb")
        a("buffer_wbl2 sc1")
        a("s_waitcnt vmcnt(0)")
        a.label("L_nowb")
    if cfg.get("hold_us"):
        a.label("L_hold")
        a("s_memrealtime s[70:71]")
        a("s_waitcnt lgkmcnt(0)")
        a("s_sub_u32 s70, s70, s100")
        a(f"s_cmp_lt_u32 s70, {cfg['hold_us']*100}")
        a("s_cbranch_scc1 L_hold")
    a.label("L_exit")
    a("s_endpgm")
    if not cfg.get("noinit"):
        a.label("L_init")
        a(f"s_lshl_b32 s{sT2}, s{sT2}, 5")
        a(f"s_add_u32 s{sT2}, s{sT2}, s{sMEMB}")
        a("v_lshlrev_b32 v1, 4, v0")
        for i in range(4): a(f"v_mov_b32 v{4+i}, 0")
        a(f"s_lshl_b32 s{sT1}, s{sT2}, 12")
        a(f"buffer_store_dwordx4 v[4:7], v1, s[{sWS}:{sWS+3}], s{sT1} offen sc1")
        for i in range(4): a(f"v_mov_b32 v{8+i}, -1")
        a(f"s_mul_i32 s{sT1}, s{sT2}, {cfg.get('ninit', 23)*4096}")
        a(f"s_add_u32 s{sT1}, s{sT1}, {OFF_MEM:#x}")
        for i in range(cfg.get('ninit', 23)):
            if i: a(f"s_add_u32 s{sT1}, s{sT1}, 4096")
            a(f"buffer_store_dwordx4 v[8:11], v1, s[{sWS}:{sWS+3}], s{sT1} offen sc1")
        a("s_waitcnt vmcnt(0)")
        a("s_barrier")
        a(f"s_cmp_lg_u32 s{sWAVE}, 0")
        a("s_cbranch_scc1 L_init_done")
        a(f"s_mov_b32 s{sT1}, 1")
        a(f"s_atomic_add s{sT1}, s[{sDBG}:{sDBG+1}], 0x8c glc")
        a("s_waitcnt lgkmcnt(0)")
        a(f"s_cmp_lg_u32 s{sT1}, 63")
        a("s_cbranch_scc1 L_init_done")
        count_tickets(a)
        a(f"s_mov_b32 s{sT1}, 0x100")
        for g in range(8):
            a(f"s_cmp_ge_u32 s{cnt_reg(g)}, 32")
            a(f"s_cselect_b32 s{sT0}, {1 << g}, 0")
            a(f"s_or_b32 s{sT1}, s{sT1}, s{sT0}")
        a(f"v_mov_b32 v4, s{sT1}")
        a("v_mov_b32 v5, 0")
        a("s_mov_b64 exec, 1")
        a(f"global_store_dword v5, v4, s[{sDBG}:{sDBG+1}] offset:192 sc1")
        a("s_mov_b64 exec, -1")
        a.label("L_init_done")
        a("s_add_u32 s98, s98, 4")
        a("s_addc_u32 s99, s99, 0")
        a("s_setpc_b64 s[98:99]")
    if "chain" in roles:
        if cfg.get("v3"):
            from gen_chain_v3 import chain as ch
        else: ch = chain
        ch(a, True, cfg)
        ch(a, False, cfg)
    if "wa" in roles:
        if cfg.get("wa1"): from gen_wa_v1 import role_wa
        else: from gen_wa import role_wa
        role_wa(a, cfg)
    if "wo" in roles:
        from gen_wo import role_wo
        role_wo(a, cfg)
    a.label("L_codeend")
    a("s_endpgm")
    if cfg.get("thin"):
        out = []
        for x in a.ins:
            out.append(x)
            if x.text.startswith("v_smfmac"): out.append(Ins(f"s_nop {cfg['thin']}"))
        a.ins = out
    if cfg.get("drop"):
        a.ins = [x if not x.text.startswith(cfg["drop"]) else Ins("s_nop 2") for x in a.ins]
    nn = a.fix_hazards(verbose=cfg.get("verbose", False), timed=cfg.get("timed", True), strict=cfg.get("strict", True))
    if cfg.get("align", True):
        fx = align8(a)
        if cfg.get("verbose"): print("align", fx)
    errs = a.check_waits() + check_ptrs(a)
    for e in errs[:20]: print("WAITERR", e)
    body = a.text()
    txt = HEADER + NOTES + f"""; @launch grid=(256,1,1) block=(256,1,1) lds=163840
.amdgcn_target "amdgcn-amd-amdhsa--gfx950"
.text
.globl {KNAME}
.p2align 8
.type {KNAME},@function
{KNAME}:
{body}.section .rodata,"a"
.p2align 6
.amdhsa_kernel {KNAME}
  .amdhsa_next_free_vgpr 512
  .amdhsa_next_free_sgpr 102
  .amdhsa_accum_offset 256
  .amdhsa_group_segment_fixed_size 0
  .amdhsa_kernarg_size 104
  .amdhsa_user_sgpr_count 2
  .amdhsa_user_sgpr_kernarg_segment_ptr 1
  .amdhsa_system_sgpr_workgroup_id_x 1
  .amdhsa_float_denorm_mode_32 3
.end_amdhsa_kernel
"""
    return txt, nn, errs

if __name__ == "__main__":
    cfg = eval(sys.argv[2]) if len(sys.argv) > 2 else {}
    txt, nn, errs = generate(cfg)
    open(sys.argv[1], "w").write(txt)
    print("nops", nn, "bytes", len(txt), "errs", len(errs))
```

```python
import re

def vr(a, n=1):
    return f"v{a}" if n == 1 else f"v[{a}:{a+n-1}]"
def ar(a, n=1):
    return f"a{a}" if n == 1 else f"a[{a}:{a+n-1}]"
def sr(a, n=1):
    return f"s{a}" if n == 1 else f"s[{a}:{a+n-1}]"
def xr(a, n=1):
    return vr(a, n) if a < 256 else ar(a - 256, n)

_REG = re.compile(r"^(-|abs\()?\|?([vas])(?:(\d+)|\[(\d+):(\d+)\])\|?\)?$")

def regs_of(tok):
    tok = tok.strip()
    if tok in ("vcc",):
        return {("s", "vcc")}
    if tok in ("exec",):
        return {("s", "exec")}
    if tok == "m0":
        return {("s", "m0")}
    m = _REG.match(tok)
    if not m:
        return set()
    k = m.group(2)
    if m.group(3) is not None:
        lo = hi = int(m.group(3))
    else:
        lo, hi = int(m.group(4)), int(m.group(5))
    if k == "s":
        return {("s", i) for i in range(lo, hi + 1)}
    off = 256 if k == "a" else 0
    return {("v", i + off) for i in range(lo, hi + 1)}

TRANS = ("v_exp_f32", "v_log_f32", "v_rcp_f32", "v_rsq_f32", "v_sqrt_f32", "v_sin_f32", "v_cos_f32")

class Ins:
    __slots__ = ("text", "op", "kind", "w", "r", "srcC", "passes", "label", "target", "cond", "mods",
                 "dpp", "states", "srcAB", "vm", "lgkm", "wide_store", "lds_dma", "sreads_valu")
    def __init__(self, text):
        self.text = text
        self.label = None; self.target = None; self.cond = False
        self.w = set(); self.r = set(); self.srcC = set(); self.srcAB = set()
        self.passes = 0; self.dpp = False; self.vm = False; self.lgkm = None
        self.wide_store = set(); self.lds_dma = False; self.sreads_valu = set()
        t = text.split(";")[0].strip()
        self.kind = "none"; self.op = ""; self.states = 0; self.mods = ""
        if not t or t.startswith("."):
            return
        if t.endswith(":"):
            self.label = t[:-1]; self.kind = "label"; return
        parts = t.split(None, 1)
        op = parts[0]; self.op = op
        rest = parts[1] if len(parts) > 1 else ""
        ops = [x.strip() for x in re.split(r",(?![^\[]*\])", rest)] if rest else []
        if ops:
            last = ops[-1].split(None, 1)
            if not op.startswith("s_waitcnt"):
                ops[-1] = last[0]
                self.mods = last[1] if len(last) > 1 else ""
        self.states = 1
        R = lambda i: regs_of(ops[i]) if i < len(ops) else set()
        allr = lambda a: set().union(*[R(i) for i in range(a, len(ops))]) if a < len(ops) else set()
        if op.startswith("v_mfma") or op.startswith("v_smfmac"):
            self.kind = "mfma"
            self.passes = 8 if "32x32" in op else 4
            self.w = R(0)
            if op.startswith("v_smfmac"):
                self.srcC = R(0); self.srcAB = R(1) | R(2) | R(3); self.states = 3
            else:
                self.srcC = R(3); self.srcAB = R(1) | R(2); self.states = 2
            self.r = self.srcC | self.srcAB
        elif op.startswith("v_"):
            self.kind = "valu"
            self.dpp = ("row_" in self.mods) or ("quad_perm" in self.mods) or op.endswith("_dpp")
            if op.startswith("v_cmp"):
                self.w = R(0); self.r = allr(1)
            elif op.startswith("v_permlane"):
                self.w = R(0) | R(1); self.r = R(0) | R(1); self.kind = "perm"
            elif op.startswith("v_readfirstlane") or op.startswith("v_readlane"):
                self.w = R(0); self.r = allr(1); self.kind = "readlane"
            elif op.startswith(("v_add_co", "v_sub_co", "v_addc_co")):
                self.w = R(0) | R(1); self.r = allr(2)
            elif op.startswith("v_nop"):
                pass
            else:
                self.w = R(0); self.r = allr(1)
                if op.startswith(("v_fmac", "v_dot2c", "v_pk_fmac", "v_writelane")) or self.dpp:
                    self.r |= R(0)
                if op.startswith("v_cndmask") and len(ops) == 3:
                    self.r |= {("s", "vcc")}
            self.sreads_valu = {x for x in self.r if x[0] == "s"}
        elif op.startswith("ds_"):
            self.kind = "ds"; self.lgkm = "ds"
            if op.startswith(("ds_read", "ds_bpermute", "ds_swizzle", "ds_permute")) or "_rtn" in op:
                self.w = R(0); self.r = allr(1)
            else:
                self.r = allr(0)
        elif op.startswith(("buffer_", "global_")):
            self.kind = "vmem"; self.vm = True
            if op in ("buffer_wbl2", "buffer_inv"):
                pass
            elif "load" in op:
                if " lds" in (" " + self.mods) or "load_lds" in op:
                    self.lds_dma = True; self.r = allr(0) | {("s", "m0")}
                else:
                    self.w = R(0); self.r = allr(1)
            elif "atomic" in op:
                if "sc0" in self.mods:
                    self.w = R(0); self.r = allr(0) if op.startswith("buffer") else allr(1)
                else:
                    self.r = allr(0)
            else:
                self.r = allr(0)
                if op.endswith(("x3", "x4")):
                    self.wide_store = R(0) if op.startswith("buffer") else R(1)
        elif op.startswith(("s_load", "s_buffer_load", "s_memtime", "s_memrealtime", "s_atomic")):
            self.kind = "smem"; self.lgkm = "smem"; self.w = R(0); self.r = allr(1)
        elif op == "s_nop":
            self.kind = "nop"; self.states = int(ops[0], 0) + 1
        elif op == "s_waitcnt":
            self.kind = "wait"; self.mods = rest
        elif op in ("s_branch",) or op.startswith("s_cbranch"):
            self.kind = "branch"; self.target = ops[0]; self.cond = op != "s_branch"
        elif op in ("s_endpgm", "s_setpc_b64"):
            self.kind = "end"
        elif op.startswith("s_"):
            self.kind = "salu"
            if op.startswith(("s_cmp", "s_barrier", "s_sleep", "s_setprio", "s_bitcmp")):
                self.r = allr(0)
            else:
                self.w = R(0); self.r = allr(1)
                if "saveexec" in op:
                    self.w |= {("s", "exec")}
        else:
            raise ValueError("unknown instr: " + text)

def need_states(p, c):
    n = 0
    pv = p.kind in ("valu", "perm", "readlane")
    cv = c.kind in ("valu", "perm", "readlane")
    if pv:
        wv = {x for x in p.w if x[0] == "v"}
        ws = {x for x in p.w if x[0] == "s"}
        if wv:
            if c.kind == "mfma" and wv & c.r: n = max(n, 2)
            if cv and c.dpp and wv & c.r: n = max(n, 2)
            if c.kind == "perm" and wv & c.r: n = max(n, 2)
            if c.kind == "readlane" and wv & c.r: n = max(n, 1)
            if p.op.split("_e")[0] in TRANS and cv and c.op.split("_e")[0] not in TRANS and wv & c.r: n = max(n, 1)
            if ("op_sel" in p.mods or "sdwa" in p.op) and not p.op.startswith("v_pk_") and cv and wv & (c.r | c.w): n = max(n, 1)
        if ws:
            if cv and ws & c.sreads_valu: n = max(n, 4 if c.kind == "readlane" else 2)
            if c.kind == "vmem" and ws & c.r: n = max(n, 5)
            if c.kind == "salu" and ws & c.r: n = max(n, 1)
    if p.kind == "mfma":
        big = p.passes == 8
        if c.kind == "mfma":
            if p.w & c.srcAB: n = max(n, 12 if big else 8)
            if p.w & c.srcC:
                if not (p.w == c.srcC and p.passes == c.passes): n = max(n, 10 if big else 6)
            elif p.w & c.w: n = max(n, 10 if big else 6)
        elif cv or c.kind in ("vmem", "ds"):
            if p.w & (c.r | c.w): n = max(n, 12 if big else 8)
            if cv and p.srcC & c.w: n = max(n, 7 if big else 3)
    if p.wide_store and p.wide_store & c.w and c.kind != "label":
        n = max(n, 2 if cv else 1)
    if p.kind == "salu" and ("s", "m0") in p.w and c.lds_dma: n = max(n, 1)
    return n

class Asm:
    def __init__(self):
        self.ins = []
        self.nlab = 0
    def __call__(self, text):
        for line in text.split("\n"):
            s = line.strip()
            if s:
                self.ins.append(Ins(s))
    def label(self, name):
        self.ins.append(Ins(name + ":"))
    def newlab(self, base="L"):
        self.nlab += 1
        return f"{base}_{self.nlab}"
    def _preds(self):
        labpos = {x.label: i for i, x in enumerate(self.ins) if x.label}
        jumps = {}
        for i, x in enumerate(self.ins):
            if x.kind == "branch":
                jumps.setdefault(labpos[x.target], []).append(i)
        return labpos, jumps
    def fix_hazards(self, verbose=False, timed=True, strict=False):
        total = 0
        if strict:
            timed = False
            for x in self.ins:
                if x.kind == "mfma": x.states = 1
        def elapsed(seq):
            t = 0; pipe = 0; vfree = 0
            for k, x in enumerate(seq):
                if k:
                    if x.kind == "mfma": t = max(t, pipe, vfree)
                    elif x.kind in ("valu", "perm", "readlane"): t = max(t, vfree)
                if k == len(seq) - 1: break
                if x.kind == "mfma":
                    pipe = t + 4 * x.passes
                    vfree = t + (12 if x.op.startswith("v_smfmac") else 8)
                    t += 4
                elif x.kind == "nop": t += 4 * x.states
                else:
                    if x.op.split("_e")[0] in TRANS: vfree = t + 8
                    t += 4
            return t // 4 - 1
        while True:
            labpos, jumps = self._preds()
            ins = self.ins
            out = []; changed = False
            inserts = {}
            for i, c in enumerate(ins):
                if c.kind in ("none", "label", "nop", "wait", "branch", "end"):
                    continue
                best = 0
                stack = [(i - 1, (c,))]
                seen = set()
                while stack:
                    j, seq = stack.pop()
                    while j >= 0 and len(seq) < 15:
                        if (j, len(seq)) in seen: break
                        seen.add((j, len(seq)))
                        p = ins[j]
                        if p.kind == "label":
                            for b in jumps.get(j, []):
                                stack.append((b, seq))
                            k = j - 1
                            while k >= 0 and ins[k].kind == "none": k -= 1
                            if k >= 0 and (ins[k].kind == "end" or (ins[k].kind == "branch" and not ins[k].cond)):
                                break
                            j -= 1
                            continue
                        if p.kind == "none":
                            j -= 1; continue
                        n = need_states(p, c)
                        if n:
                            full = (p,) + seq
                            if timed and p.kind == "mfma":
                                add = 0
                                while elapsed(full[:-1] + ((Ins(f"s_nop {add-1}"),) if add else ()) + full[-1:]) < n: add += 1
                            else:
                                add = n - sum(x.states for x in seq[:-1])
                            best = max(best, add)
                        seq = (p,) + seq
                        if j in inserts: seq = (Ins(f"s_nop {inserts[j]-1}"),) + seq
                        if sum(x.states for x in seq[:-1]) >= 13: break
                        j -= 1
                if best > 0:
                    inserts[i] = best
            if not inserts:
                break
            for i, x in enumerate(ins):
                if i in inserts:
                    out.append(Ins(f"s_nop {inserts[i]-1}"))
                    total += inserts[i]
                    if verbose: print("nop", inserts[i], "before", x.text)
                out.append(x)
            self.ins = out
        return total
    def check_waits(self, cap=6):
        labpos, jumps = self._preds()
        ins = self.ins
        errs = set()
        seen = {}
        work = [(0, (), ())]
        while work:
            i, vm, lg = work.pop()
            vm = list(vm); lg = list(lg)
            while i < len(ins):
                x = ins[i]
                if x.kind == "label":
                    key = (tuple(vm), tuple(lg))
                    s = seen.setdefault(i, set())
                    if key in s or len(s) >= cap: break
                    s.add(key)
                elif x.kind == "wait":
                    m = re.search(r"vmcnt\((\d+)\)", x.mods)
                    if m:
                        n = int(m.group(1))
                        if len(vm) > n: vm = vm[len(vm) - n:] if n else []
                    m = re.search(r"lgkmcnt\((\d+)\)", x.mods)
                    if m:
                        n = int(m.group(1))
                        if n == 0: lg = []
                        else:
                            nds = sum(1 for k, _ in lg if k == "ds")
                            drop = max(0, nds - n); keep = []
                            for k, w in lg:
                                if k == "ds" and drop: drop -= 1
                                else: keep.append((k, w))
                            lg = keep
                elif x.kind == "end":
                    break
                elif x.kind != "none":
                    touch = x.r | x.w
                    if x.op in ("s_memtime", "s_memrealtime") or (x.kind == "mfma" and "nochk" in x.text): touch = set()
                    if "sameval" in x.text:
                        vm = [w - x.w for w in vm]
                    for w in vm:
                        if w & touch and not (x.vm and not (w & x.r)):
                            errs.add((i, "vm", x.text))
                    for k, w in lg:
                        if w & touch and not (x.lgkm == "ds" and k == "ds" and not (w & x.r)):
                            errs.add((i, "lgkm", x.text))
                    if x.vm:
                        vm.append(frozenset() if "nochk" in x.text else frozenset(x.w))
                        if len(vm) > 63: vm = vm[-63:]
                    if x.lgkm:
                        lg.append((x.lgkm, frozenset(x.w)))
                        if len(lg) > 40: lg = lg[-40:]
                    if x.kind == "branch":
                        work.append((labpos[x.target], tuple(vm), tuple(lg)))
                        if not x.cond: break
                i += 1
        return sorted(errs)
    def text(self):
        out = []
        for x in self.ins:
            out.append(x.text if (x.label or x.text.startswith(".")) else " " + x.text)
        return "\n".join(out) + "\n"

import subprocess, tempfile, os
_E64_OK = ("v_mov_b32", "v_add_f32", "v_mul_f32", "v_max_f32", "v_min_u32", "v_max_u32", "v_and_b32", "v_or_b32", "v_xor_b32",
           "v_exp_f32", "v_rcp_f32", "v_sqrt_f32", "v_add_u32", "v_sub_u32", "v_subrev_u32", "v_lshlrev_b32", "v_lshrrev_b32",
           "v_mov_b64", "v_sub_f32", "v_cndmask_b32", "v_cmp_eq_u32", "v_cmp_ne_u32", "v_cmp_nlt_f32")

def sizes_of(ins):
    txt = '.amdgcn_target "amdgcn-amd-amdhsa--gfx950"\n.text\n'
    real = []
    for i, x in enumerate(ins):
        if x.kind == "label": txt += x.text + "\n"
        elif x.kind == "none": continue
        else:
            txt += f"Z{i}:\n {x.text}\n"; real.append(i)
    txt += "Zend:\n"
    d = tempfile.mkdtemp()
    open(d + "/a.s", "w").write(txt)
    subprocess.run(["clang", "-x", "assembler", "-target", "amdgcn-amd-amdhsa", "-mcpu=gfx950", "-c", d + "/a.s", "-o", d + "/a.o"], check=True)
    out = subprocess.run(["llvm-objdump", "-t", d + "/a.o"], capture_output=True, text=True).stdout
    addr = {}
    for line in out.splitlines():
        p = line.split()
        if len(p) >= 4 and p[-1].startswith("Z"): addr[p[-1][1:]] = int(p[0], 16)
    sz = {}
    for k, i in enumerate(real):
        nxt = addr[str(real[k + 1])] if k + 1 < len(real) else addr["end"]
        sz[i] = nxt - addr[str(i)]
    return sz

def align8(asm, minrun=2, padrun=6):
    ins = asm.ins
    sz = sizes_of(ins)
    out = []; par = 0; last4 = None; fixed = padded = 0
    i = 0; n = len(ins)
    while i < n:
        x = ins[i]
        if x.kind == "none":
            if x.text.startswith(".p2align"): par = 0; last4 = None
            out.append(x); i += 1; continue
        if x.kind == "label":
            out.append(x); i += 1; continue
        s = sz[i]
        if s % 8 == 0 and par:
            j = i; cnt = 0
            while j < n and (ins[j].kind in ("none", "label") or sz[j] % 8 == 0):
                if ins[j].kind in ("valu", "perm"): cnt += 1
                j += 1
            if cnt >= minrun:
                done = False
                if last4 is not None:
                    y = out[last4]
                    if y.op in _E64_OK and not y.dpp and "0x" not in y.text and not re.search(r", \d{3,},", y.text):
                        out[last4] = Ins(y.text.replace(y.op, y.op + "_e64", 1)); done = True
                    elif y.op == "s_nop":
                        k = y.states - 1
                        if k == 0: out[last4] = Ins("v_nop_e64")
                        else: out[last4] = Ins(f"s_nop {k-1}"); out.insert(last4 + 1, Ins("s_nop 0"))
                        done = True
                if done: fixed += 1; par = 0; last4 = None
                elif cnt >= padrun:
                    out.append(Ins("s_nop 0")); padded += 1; par = 0; last4 = None
        out.append(x)
        if s % 8 == 4:
            par ^= 1; last4 = len(out) - 1
        i += 1
    asm.ins = out
    return fixed, padded

def check_ptrs(asm, lo=4, hi=29, srds=(32, 36, 40)):
    ins = asm.ins
    labpos, jumps = asm._preds()
    errs = set(); seen = {}
    rets = [i + 1 for i, x in enumerate(ins) if x.kind == "branch" and i and ins[i - 1].op == "s_getpc_b64"]
    work = [(0, frozenset())]
    while work:
        i, bad = work.pop()
        bad = set(bad)
        while i < len(ins):
            x = ins[i]
            if x.kind == "label":
                old = seen.get(i)
                if old is not None and bad <= old: break
                bad |= (old or set()); seen[i] = set(bad)
            elif x.kind == "end":
                if x.op == "s_setpc_b64":
                    for r in rets: work.append((r, frozenset(bad)))
                break
            elif x.kind != "none":
                rs = {r for k, r in x.r if k == "s" and isinstance(r, int)}
                ws = {r for k, r in x.w if k == "s" and isinstance(r, int)}
                srdw = [r for r in ws if any(b <= r < b + 4 for b in srds)]
                if srdw:
                    if x.op != "s_mov_b32": errs.add((i, "descriptor word written by " + x.text))
                    if rs & bad: errs.add((i, "descriptor from overwritten pointer: " + x.text))
                    if any(r % 4 < 2 for r in srdw) and not any(lo <= r <= hi for r in rs): errs.add((i, "descriptor base not from a pointer: " + x.text))
                if x.kind in ("vmem", "smem") and "[" in x.text:
                    for m in re.finditer(r"s\[(\d+):(\d+)\]", x.text):
                        a0, a1 = int(m.group(1)), int(m.group(2))
                        if a1 - a0 == 1 and (a0 in bad or a1 in bad) and (x.kind == "vmem" or ("s", a0) in x.r):
                            errs.add((i, "base pair overwritten: " + x.text))
                if not (x.kind == "smem" and "s[0:1]" in x.text):
                    bad |= {r for r in ws if lo <= r <= hi}
                if x.kind == "branch":
                    work.append((labpos[x.target], frozenset(bad)))
                    if not x.cond: break
            i += 1
    return sorted(errs)
```

```python
from gen_common import *

def chain(a, local, cfg):
    st = "" if local else " sc1"
    tag = "L" if local else "G"
    stamp = Stamps(a, cfg.get("stamp") == "chain" and local, only=cfg.get("only"))
    vL16, vIdx, vLdsW, vSwx, vSwm, vSrx, vSrm, vOw, vOr, vX1s, vX1l, vX2s = range(1, 13)
    vR, vOnes, vT = 13, 14, 15
    vAw = 0
    sKVb, sKT, sLim, sKVc, sLate = 93, 95, 63, 66, 67
    SelT, VACC, SelM = 16, 20, 28
    q0, k0, q1, k1 = 32, 36, 40, 44
    Kx, Vx, RING, A, WO = 48, 56, 64, 96, 128
    WK, WV = 256, 384
    sStep, sTag, sX2st, sX2re, sMemOff, sKV, sX1a, sX1b, sC = 55, 56, 57, 58, 59, 60, 61, 62, 96
    sMaskHi = 64
    sLds, sRot = 66, 67
    sX2l = 92
    AST, KVL, SX, SM, SJ, OA, CST = 0x20000, 0x22000, 0x27000, 0x27800, 0x27f00, 0x26000, 0x27a00
    sKVL = 94
    lane = 0
    foldc = cfg.get("foldc", True)
    x2tag = cfg.get("x2tag", False)
    CF = 128**-0.5*1.4426950408889634
    CBF = (fbits(CF) + 0x7fff + ((fbits(CF) >> 16) & 1)) >> 16
    if cfg.get("chain_prologue_done") is None:
        cfg["chain_prologue_done"] = True
        a.label("L_chain")
        a(f"v_and_b32 v0, 63, v0")
        a(f"v_lshlrev_b32 v{vL16}, 4, v0")
        a(f"s_lshl_b32 s{sLds}, s{sWAVE}, 15")
        a(f"s_lshl_b32 s{sRot}, s{sWAVE}, 1")
        vD, vTR, vDo, vTRo = 32, 33, 34, 35
        sL2, sL3 = 70, 71
        vD1, vTR1, sLq = 38, 39, 72
        coop_addrs(a, vD, vD1, vTR, vTR1, vT)
        a(f"s_lshl_b32 s{sLq}, s{sWAVE}, 12")
        a(f"v_lshrrev_b32 v{vDo}, 3, v0")
        a(f"v_lshlrev_b32 v{vDo}, 10, v{vDo}")
        a(f"v_and_b32 v{vT}, 7, v0")
        a(f"v_lshl_add_u32 v{vDo}, v{vT}, 4, v{vDo}")
        a(f"v_bfe_u32 v{vT}, v0, 4, 1")
        a(f"v_lshlrev_b32 v{vTRo}, 11, v{vT}")
        a(f"v_bfe_u32 v{vT}, v0, 5, 1")
        a(f"v_lshl_add_u32 v{vTRo}, v{vT}, 9, v{vTRo}")
        a(f"v_bfe_u32 v{vT}, v0, 2, 1")
        a(f"v_lshl_add_u32 v{vTRo}, v{vT}, 7, v{vTRo}")
        a(f"v_bfe_u32 v{vT}, v0, 3, 1")
        a(f"v_lshl_add_u32 v{vTRo}, v{vT}, 5, v{vTRo}")
        a(f"v_and_b32 v{vT}, 3, v0")
        a(f"v_lshl_add_u32 v{vTRo}, v{vT}, 3, v{vTRo}")
        a(f"v_add_u32 v{vTRo}, s{sLq}, v{vTRo}")
        a(f"s_add_u32 s{sT0}, s{sLds}, s{sLq}")
        a(f"v_add_u32 v{vLdsW}, s{sT0}, v{vL16}")
        a(f"s_lshl_b32 s{sL2}, s{sMEMB}, 8")
        a(f"s_lshl_b32 s{sT1}, s{sWAVE}, 15")
        a(f"s_add_u32 s{sL2}, s{sL2}, s{sT1}")
        a(f"s_lshl_b32 s{sL3}, s{sMEMB}, 17")
        a(f"s_lshl_b32 s{sT1}, s{sWAVE}, 8")
        a(f"s_add_u32 s{sL3}, s{sL3}, s{sT1}")
        late_start(a, cfg)
        stages = []
        for ptr, base in ((sWK, WK), (sWV, WV)):
            for J in range(8):
                def consume(slot, J=J, base=base):
                    end = a.newlab("L_cw")
                    for w in range(4):
                        nxt = a.newlab("L_cw")
                        if w < 3:
                            a(f"s_cmp_lg_u32 s{sWAVE}, {w}")
                            a(f"s_cbranch_scc1 {nxt}")
                        jj = J ^ (2 * w)
                        coop_reads(a, slot, vTR, vTR1, 40, base + jj * 16, base + jj * 16 + 8)
                        if w < 3:
                            a(f"s_branch {end}")
                            a.label(nxt)
                    a.label(end)
                stages.append(dict(issue=lambda slot, ptr=ptr, J=J: coop_issue(a, ptr, J, slot, sL2, vD, vD1, sLq), consume=consume))
        for wp in range(4):
            for ap in range(2):
                def issue(slot, wp=wp, ap=ap):
                    if wp == 0 and ap == 0: set_srd(a, sWT, sWO, 0x400000)
                    a(f"s_add_u32 m0, s{sLq}, {slot*16384}")
                    a(f"s_xor_b32 s{sT0}, s{sWAVE}, {wp}")
                    a(f"s_lshl_b32 s{sT0}, s{sT0}, 15")
                    a(f"s_add_u32 s{sT0}, s{sT0}, s{sL3}")
                    if ap: a(f"s_add_u32 s{sT0}, s{sT0}, {ap*128}")
                    for q in range(4):
                        if q: a(f"s_add_u32 s{sT0}, s{sT0}, {8192-1024}")
                        a(f"buffer_load_dwordx4 v{vDo}, s[{sWT}:{sWT+3}], s{sT0} offen offset:{q*1024}{' nt' if '14c' in cfg.get('ntw', ()) else ''} lds")
                def consume(slot, wp=wp, ap=ap):
                    va = vTRo
                    if slot >= 4:
                        a(f"v_add_u32 v40, 0x10000, v{vTRo}"); va = 40
                    for a1 in range(2):
                        dst = WO + ((2 * ap + a1) * 4 + wp) * 8
                        for e4 in range(4):
                            off = (slot & 3) * 16384 + (8 * (e4 >> 1) + 2 * (e4 & 1)) * 128 + a1 * 64
                            a(f"ds_read_b64_tr_b16 {vr(dst+2*e4,2)}, v{va} offset:{off}")
                stages.append(dict(issue=issue, consume=consume))
        for J in range(8):
            tmp = RING + 16 * (J & 1)
            def post(slot, tmp=tmp):
                a(f"s_add_u32 s{sT0}, s{sLq}, {slot*16384}")
                a(f"v_add_u32 v40, s{sT0}, v{vL16}")
                for i in range(4):
                    a(f"ds_write_b128 v40, {vr(tmp+4*i,4)} offset:{i*1024}")
            stages.append(dict(issue=lambda slot, J=J: coop_issue(a, sWQ, J, slot, sL2, vD, vD1, sLq),
                               consume=lambda slot, tmp=tmp: coop_reads(a, slot, vTR, vTR1, 40, tmp, tmp + 8), post=post))
        co = cfg.get("ch_ord", "kvo")
        parts = {"k": stages[0:8], "v": stages[8:16], "o": stages[16:24]}
        stages = parts[co[0]] + parts[co[1]] + parts[co[2]] + stages[24:]
        def setup_rest():
            sel_consts(a, lane, 96, selT=SelT)
            sel_consts(a, lane, 96, selM=SelM, selLo=112, selHi=116, val=CBF if foldc else 0x3f80)
            smf_index(a, lane, vIdx, 96)
            n_, g_, q_ = 96, 97, 98
            a(f"v_and_b32 v{n_}, 15, v0")
            a(f"v_lshrrev_b32 v{g_}, 4, v0")
            a(f"v_and_b32 v{q_}, 7, v0")
            a(f"s_mov_b32 s{sMaskHi}, 0xff00ff00")
            a(f"s_mov_b32 s{sMaskHi+1}, 0xff00ff00")
            a(f"v_lshlrev_b32 v99, 3, v{q_}")
            a(f"v_and_b32 v{vT}, 1, v{g_}")
            a(f"v_lshl_add_u32 v99, v{vT}, 6, v99")
            a(f"v_add_u32 v99, {SJ}, v99")
            a(f"v_lshrrev_b32 v{vT}, 1, v{g_}")
            a(f"v_lshlrev_b32 v{vSwx}, 8, v{vT}")
            a(f"v_lshl_add_u32 v{vSwx}, v{q_}, 4, v{vSwx}")
            a(f"v_and_b32 v{vT}, 1, v{g_}")
            a(f"v_lshl_add_u32 v{vSwx}, v{vT}, 3, v{vSwx}")
            a(f"s_lshl_b32 s{sT0}, s{sWAVE}, 9")
            a(f"s_add_u32 s{sT1}, s{sT0}, {SX}")
            a(f"v_add_u32 v{vSwx}, s{sT1}, v{vSwx}")
            a(f"v_cndmask_b32 v{vSwx}, v{vSwx}, v99, s[{sMaskHi}:{sMaskHi+1}]")
            a(f"v_lshlrev_b32 v{vSwm}, 4, v{q_}")
            a(f"v_lshl_add_u32 v{vSwm}, v{vT}, 3, v{vSwm}")
            a(f"s_lshl_b32 s{sT1}, s{sWAVE}, 7")
            a(f"s_add_u32 s{sT1}, s{sT1}, {SM}")
            a(f"v_add_u32 v{vSwm}, s{sT1}, v{vSwm}")
            a(f"s_mov_b32 s98, 0")
            a(f"s_mov_b32 s99, 0x00ff00ff")
            a(f"v_cndmask_b32 v{vSwm}, v99, v{vSwm}, s[98:99]")
            a(f"v_lshlrev_b32 v{vSrx}, 9, v{g_}")
            a(f"v_lshl_add_u32 v{vSrx}, v{n_}, 4, v{vSrx}")
            a(f"v_add_u32 v{vSrx}, {SX}, v{vSrx}")
            a(f"v_lshlrev_b32 v{vSrm}, 7, v{g_}")
            a(f"v_lshl_add_u32 v{vSrm}, v{q_}, 4, v{vSrm}")
            a(f"v_add_u32 v{vSrm}, {SM}, v{vSrm}")
            a(f"s_lshl_b32 s{sT1}, s{sWAVE}, 9")
            a(f"s_add_u32 s{sT1}, s{sT1}, {OA-SM}")
            a(f"v_bfe_u32 v{vT}, v0, 3, 1")
            a(f"v_lshl_add_u32 v{vOw}, v{vT}, 3, v{vSrm}")
            a(f"v_add_u32 v{vOw}, s{sT1}, v{vOw}")
            a(f"v_and_b32 v{vOr}, 0xf0, v{vL16}")
            a(f"v_add_u32 v{vOr}, {CST}, v{vOr}")
            a(f"v_lshrrev_b32 v{vT}, 2, v{n_}")
            a(f"v_lshl_add_u32 v{vT}, v{vT}, 2, v{g_}")
            a(f"v_lshlrev_b32 v{vX1s}, 11, v{vT}")
            a(f"v_and_b32 v{vT}, 3, v0")
            a(f"v_lshl_add_u32 v{vX1s}, v{vT}, 4, v{vX1s}")
            a(f"s_lshl_b32 s{sT0}, s{sWAVE}, 16")
            a(f"s_lshl_b32 s{sT1}, s{sMEMB}, 6")
            a(f"s_add_u32 s{sT0}, s{sT0}, s{sT1}")
            a(f"v_add_u32 v{vX1s}, s{sT0}, v{vX1s}")
            a(f"s_lshl_b32 s{sT2}, s{sMEMB}, 2")
            a(f"s_add_u32 s{sT2}, s{sT2}, s{sWAVE}")
            a(f"s_lshl_b32 s{sT0}, s{sT2}, 11")
            a(f"v_add_u32 v{vX1l}, s{sT0}, v{vL16}")
            a(f"v_lshlrev_b32 v{vX2s}, 4, v{g_}")
            a(f"v_lshl_add_u32 v{vX2s}, v{n_}, 2, v{vX2s}")
            a(f"s_lshl_b32 s{sT0}, s{sT2}, 6")
            a(f"v_add_u32 v{vX2s}, s{sT0}, v{vX2s}")
            a(f"v_mov_b32 v{vT}, {OOB:#x}")
            a(f"v_cmp_gt_u32 vcc, 4, v{n_}")
            a(f"v_cndmask_b32 v{vX2s}, v{vT}, v{vX2s}, vcc")
            a(f"v_and_b32 v100, 3, v0")
            a(f"v_lshlrev_b32 v100, 1, v100")
            a(f"v_lshl_add_u32 v100, v{g_}, 10, v100")
            a(f"v_and_b32 v104, 3, v0")
            a(f"v_bfe_u32 v105, v0, 2, 2")
            a(f"v_lshl_add_u32 v104, v104, 2, v105")
            a(f"v_and_b32 v105, 1, v104")
            a(f"v_lshlrev_b32 v105, 4, v105")
            a(f"v_mov_b32 v106, 0x3f80")
            a(f"v_lshlrev_b32 v105, v105, v106")
            a(f"v_lshrrev_b32 v104, 1, v104")
            for e in range(4):
                a(f"v_cmp_eq_u32 vcc, {e}, v104")
                a(f"v_cndmask_b32 v{108+e}, 0, v105, vcc")
            a(f"v_and_b32 v104, 0xf0, v{vL16}")
            a(f"v_add_u32 v104, {CST}, v104")
            a(f"ds_write_b128 v104, v[108:111]")
            a(f"ds_write_b128 v104, v[112:115] offset:256")
            a(f"ds_write_b128 v104, v[116:119] offset:512")
            for e in range(4): a(f"v_mov_b32 v{120+e}, 0x3f803f80")
            for e in range(4): a(f"v_mov_b32 v{124+e}, 0x3f003f00")
            a(f"ds_write_b128 v104, v[120:123] offset:768")
            a(f"ds_write_b128 v104, v[124:127] offset:1024")
            a(f"s_and_b32 s{sT0}, s{sT2}, 1")
            a(f"s_lshl_b32 s{sT0}, s{sT0}, 12")
            a(f"s_lshr_b32 s{sT1}, s{sT2}, 4")
            a(f"s_lshl_b32 s{sT1}, s{sT1}, 7")
            a(f"s_add_u32 s{sT0}, s{sT0}, s{sT1}")
            a(f"s_bfe_u32 s{sT1}, s{sT2}, 0x10001")
            a(f"s_lshl_b32 s{sT1}, s{sT1}, 5")
            a(f"s_add_u32 s{sT0}, s{sT0}, s{sT1}")
            a(f"s_bfe_u32 s{sT1}, s{sT2}, 0x20002")
            a(f"s_lshl_b32 s{sT1}, s{sT1}, 3")
            a(f"s_add_u32 s{sT0}, s{sT0}, s{sT1}")
            set_srd(a, sIN, sMEM0, 8192)
            a(f"buffer_load_ushort v36, v100, s[{sIN}:{sIN+3}], s{sT0} offen")
            a(f"buffer_load_ushort v37, v100, s[{sIN}:{sIN+3}], s{sT0} offen offset:64")
            a(f"s_mov_b32 s{sStep}, 0")
            a(f"s_mov_b32 s{sTag}, 0")
            a(f"s_lshl_b32 s{sT0}, s{sLAY}, 14")
            a(f"s_add_u32 s{sX2st}, s{sT0}, {OFF_X2:#x}")
            a(f"s_add_u32 s{sX2re}, s{sX2st}, 8192")
            a(f"s_lshl_b32 s{sT0}, s{sWAVE}, 11")
            a(f"s_add_u32 s{sX2l}, s{sT0}, s{sX2st}")
            a(f"s_add_u32 s{sT0}, s{sT0}, {AST}")
            a(f"v_add_u32 v{vAw}, s{sT0}, v{vL16}")
            a(f"s_lshl_b32 s{sT0}, s{sLAY}, 19")
            a(f"s_add_u32 s{sMemOff}, s{sT0}, {OFF_MEM:#x}")
            a(f"s_lshl_b32 s{sT0}, s{sLAY}, 18")
            a(f"s_add_u32 s{sX1a}, s{sT0}, {OFF_X1:#x}")
            a(f"s_add_u32 s{sX1b}, s{sX1a}, 32768")
            a(f"s_lshl_b32 s{sT0}, s{sLAY}, 21")
            a(f"s_lshl_b32 s{sT1}, s{sT2}, 12")
            a(f"s_add_u32 s{sT0}, s{sT0}, s{sT1}")
            a(f"s_add_u32 s{sKVb}, s{sT0}, {OFF_KVR:#x}")
            a(f"s_mov_b32 s{sKV}, s{sKVb}")
            a(f"s_mov_b32 s{sC}, {fbits(1.0 if foldc else CF):#x}")
            a(f"s_mov_b32 s{sC+1}, s{sC}")
            a(f"s_mov_b32 s{sLim}, {fbits(cfg.get('lim', 48.0) / (1.0 if foldc else CF)):#x}")
        load_stages(a, stages, meanwhile=setup_rest,
                    hooks=None if cfg.get("noinit") else {25: lambda: go_load(a)})
        trace(a, cfg, 6, None, vT)
        if not cfg.get("noinit"): wait_init(a, sampled=True, barrier=False)
        late_signal(a, cfg)
        a(f"v_lshl_or_b32 v{vR}, v37, 16, v36")
        a(f"v_min_u32 v{vR}, -2, v{vR}")
        for i in range(8):
            a(f"ds_read_b128 {vr(RING+4*i,4)}, v{vLdsW} offset:{(i>>2)*16384+(i&3)*1024}")
        if x2tag:
            a(f"v_and_b32 v{vT}, 0xf0, v{vL16}")
            a(f"v_cmp_eq_u32 vcc, 0, v{vT}")
            a(f"v_cndmask_b32 v{vOnes}, 0, 1, vcc")
        else: a(f"v_mov_b32 v{vOnes}, -1")
        for f in range(4): a(f"v_mov_b32 v{Kx+4*f}, -1")
        for i in range(4): a(f"v_mov_b64 {vr(VACC+2*i,2)}, 0")
        if cfg.get("nokvcheck"):
            for f in range(16): a(f"v_mov_b32 v{Kx+f}, 0")
        a(f"s_lshl_b32 s{sKVL}, s{sWAVE}, 12")
        a(f"s_add_u32 s{sKVL}, s{sKVL}, {KVL}")
        a(f"s_mov_b32 m0, s{sKVL}")
        a(f"v_add_u32 v{vT}, s{sKVL}, v{vL16}")
        for f in range(4): a(f"v_mov_b32 v{40+f}, {0 if cfg.get('nokvcheck') else -1}")
        for f in range(4): a(f"ds_write_b128 v{vT}, v[40:43] offset:{f*1024}")
        a("s_waitcnt vmcnt(0) lgkmcnt(0)")
        if cfg.get("count_redo"):
            a("s_memrealtime s[70:71]")
            a("s_memtime s[98:99]")
            a("s_waitcnt lgkmcnt(0)")
            a("s_sub_u32 s101, s70, s100")
            a("s_mov_b32 s100, s70")
        if cfg.get("force_global"):
            a("s_branch L_chain_entryG")
        else:
            a(f"s_cmp_eq_u32 s{sLOCAL}, 0")
            a("s_cbranch_scc1 L_chain_entryG")
    W = f"s[{sWS}:{sWS+3}]"
    vC = vOr
    pl = cfg.get("pollmod", "sc1") if local else "sc1"
    if local: st = cfg.get("stmod", "")
    vq = [(t, jj) for jj in range(8) for t in range(2)]
    vacc = (VACC, VACC + 4)
    def smf(acc, x, w): a(f"v_smfmac_f32_16x16x64_bf16 {vr(acc,4)}, {vr(x,4)}, {xr(w,8)}, v{vIdx}")
    def fill_v(n):
        for _ in range(n):
            t, jj = vq.pop(0)
            smf(vacc[t], A + 4 * jj, WV + jj * 16 + t * 8)
    def pad(n):
        k = cfg.get("padkind", "nop")
        if k == "mov":
            for _ in range(n): a(f"v_mov_b32 v{vT}, 0")
        elif k == "nop":
            while n > 0:
                a(f"s_nop {min(n,16)-1}"); n -= 16
        elif k == "mfma":
            for i in range(n // 4): a(f"v_mfma_f32_16x16x32_bf16 v[108:111], {xr(WK+(i%16)*4,4)}, {xr(WV+(i%16)*4,4)}, 0 ; nochk")
    cvt = lambda d, s: a(f"v_cvt_pk_bf16_f32 v{d}, v{s}, v{s+1}")
    mfma = lambda d, x, y, c: a(f"v_mfma_f32_16x16x32_bf16 {vr(d,4)}, {vr(x,4)}, {vr(y,4)}, {vr(c,4) if c is not None else 0}")
    mfma16 = lambda d, x, y, c: a(f"v_mfma_f32_16x16x16_bf16 {vr(d,4)}, {vr(x,2)}, {vr(y,2)}, {vr(c,4) if c is not None else 0}")
    def kv_check():
        a(f"v_bitop3_b32 v{vT}, v{Kx}, v{Kx+4}, s{sKT} bitop3:0x7e")
        a(f"v_bitop3_b32 v120, v{Kx+8}, v{Kx+12}, s{sKT} bitop3:0x7e")
        a(f"v_or_b32 v{vT}, v{vT}, v120")
        a(f"v_and_b32 v{vT}, 1, v{vT}")
        a(f"v_cmp_ne_u32 vcc, 0, v{vT}")
    lateB = cfg.get("lateB", False)
    B2 = A + 24 if lateB else A + 8
    def x2_issue(r):
        a(f"buffer_load_dwordx4 {vr(r,4)}, v{vL16}, {W}, s{sX2l} offen {pl}")
        a(f"buffer_load_dwordx4 {vr(r+4,4)}, v{vL16}, {W}, s{sX2l} offen offset:1024 {pl}")
    def x2_check(r, n):
        a(f"s_waitcnt vmcnt({n+1})")
        smf(k0, r, WK)
        if x2tag:
            a(f"ds_write_b128 v{vAw}, {vr(r,4)}")
            smf(k1, r, WK + 8)
            a(f"s_waitcnt vmcnt({n})")
            a(f"ds_write_b128 v{vAw}, {vr(r+4,4)} offset:1024")
            a(f"v_bitop3_b32 v{vT}, v{r}, v{r+4}, s{sTag} bitop3:0x7e")
            a(f"v_and_b32 v{vT}, 1, v{vT}")
            a(f"v_cmp_ne_u32 vcc, 0, v{vT}")
            smf(k0, r + 4, WK + 16)
            smf(k1, r + 4, WK + 24)
            return
        a(f"v_max3_u32 v{vT}, v{r}, v{r+1}, v{r+2}")
        smf(k1, r, WK + 8)
        a(f"s_waitcnt vmcnt({n})")
        a(f"v_max3_u32 v{vT}, v{vT}, v{r+3}, v{r+4}")
        a(f"ds_write_b128 v{vAw}, {vr(r,4)}")
        a(f"v_max3_u32 v{vT}, v{vT}, v{r+5}, v{r+6}")
        a(f"v_max_u32 v{vT}, v{vT}, v{r+7}")
        a(f"v_cmp_eq_u32 vcc, -1, v{vT}")
        smf(k0, r + 4, WK + 16)
        a(f"ds_write_b128 v{vAw}, {vr(r+4,4)} offset:1024")
        smf(k1, r + 4, WK + 24)
    def x2_store():
        if x2tag:
            a(f"v_bfi_b32 v{vT}, v{vOnes}, s{sTag}, v{vR}")
            a(f"buffer_store_dword v{vT}, v{vX2s}, {W}, s{sX2st} offen{st}")
            a(f"v_min_u32 v{vR}, -2, v{vR}")
        else:
            a(f"v_min_u32 v{vR}, -2, v{vR}")
            a(f"buffer_store_dword v{vR}, v{vX2s}, {W}, s{sX2st} offen{st}")
    def zero_k():
        for r in (k0, k0 + 2, k1, k1 + 2): a(f"v_mov_b64 {vr(r,2)}, 0")
    a.label(f"L_chain_entry{tag}")
    x2_store()
    a(".p2align 6")
    a.label(f"L_chain_loop{tag}")
    stamp("top")
    trace(a, cfg, 0, sStep, vT)
    a(f"s_cmp_eq_u32 s{sStep}, 63")
    a(f"s_cbranch_scc1 L_chain_last{tag}")
    win = cfg.get("win", dict(a1=["v1", "zv"], b1=["v2", "kvrd", "lw"], a2=["ring0", "lw", "zq", "kvchk"], b2=["ring1", "lw", "sal"]))
    def work(items):
        for x in items:
            if x in ("ring0", "ring1"):
                for i in (range(4) if x == "ring0" else range(4, 8)):
                    a(f"ds_read_b128 {vr(RING+4*i,4)}, v{vLdsW} offset:{(i>>2)*16384+(i&3)*1024}")
            elif x == "kvrd":
                a(f"v_add_u32 v{vT}, s{sKVL}, v{vL16}")
                for f in range(4): a(f"ds_read_b128 {vr(Kx+4*f,4)}, v{vT} offset:{f*1024}")
            elif x == "lw": a("s_waitcnt lgkmcnt(0)")
            elif x == "zq":
                for i in range(8): a(f"v_mov_b64 {vr(q0+2*i,2)}, 0")
            elif x == "zv":
                for i in range(4): a(f"v_mov_b64 {vr(VACC+2*i,2)}, 0")
            elif x == "kvchk":
                a(f"s_bfe_u32 s{sKT}, s{sStep}, 0x10002")
                kv_check()
                if not cfg.get("nokvcheck"): a(f"s_cbranch_vccnz L_chain_kvwait{tag}")
                a.label(f"L_chain_kvok{tag}")
                trace(a, cfg, 1, sStep, vT)
                trace(a, cfg, 5, sStep, vT)
                spin_init(a)
            elif x == "sal":
                a(f"s_add_u32 s{sKV}, s{sStep}, 1")
                a(f"s_and_b32 s{sKV}, s{sKV}, 3")
                a(f"s_lshl_b32 s{sKV}, s{sKV}, 19")
                a(f"s_add_u32 s{sKV}, s{sKV}, s{sKVb}")
            elif x[0] == "v": a(f"s_waitcnt vmcnt({x[1:]})")
            elif x[0] == "p": pad(int(x[1:]))
            else: raise ValueError(x)
    lateok = False
    work(win["a2"])
    stamp("x2iss")
    x2_issue(A)
    work(win["b2"])
    x2_issue(B2)
    x2_check(A, 2)
    if not cfg.get("nowait2"): a(f"s_cbranch_vccnz L_chain_x2b{tag}")
    a.label(f"L_chain_x2ok{tag}")
    if cfg.get("count_redo"): a(f"s_add_u32 s31, s31, s{sSPIN}")
    stamp("A0")
    kvl = [f"buffer_load_dwordx4 v{vL16}, {W}, s{sKV} offen offset:{f*1024} sc1 lds" for f in range(4)]
    SLo, SHi = RING, RING + 4
    plan = list(cfg.get("plan", ["r:pre", "m:b1", "k3", "k5", "k7", "h6w"]))
    after_r = []
    if x2tag: plan = [x for x in plan if not x.startswith("r:")]
    def at(pos):
        for x in list(plan):
            if x == pos: a(kvl.pop(0)); plan.remove(x)
            elif x == "m:" + pos: a(memst); plan.remove(x)
            elif x == "r:" + pos: a(rearm); plan.remove(x); after_r.append(len(plan))
    def ring_rd(jj):
        s0 = RING + ((2 * jj) % 4) * 8
        return [f"ds_read_b128 {vr(s0+4*i,4)}, v{vW2} offset:{(jj&1)*16384+i*1024}" for i in range(4)]
    vW2 = vT
    for jj in range(2):
        s0 = RING + 16 * jj; rd = ring_rd(jj)
        if jj == 0: a(f"v_xor_b32 v{vW2}, 0x8000, v{vLdsW}")
        smf(q0, A + 4 * jj, s0); a(rd[0]); a(rd[1])
        smf(q1, A + 4 * jj, s0 + 8); a(rd[2]); a(rd[3])
    memst = f"buffer_store_dword v{vR}, v{vX2s}, {W}, s{sMemOff} offen sc1"
    rearm = f"buffer_store_dword v{vOnes}, v{vX2s}, {W}, s{sX2re} offen{st}"
    rf = cfg.get("rearm_first", True)
    nb = len([x for x in plan if x.endswith("pre")])
    at("pre")
    stamp("k1done", True)
    a("s_waitcnt lgkmcnt(8)" if lateB else f"s_waitcnt vmcnt({nb}) lgkmcnt(8)")
    a("s_barrier")
    stamp("bar1", True)
    for j2 in range(2, 8, 2):
        if lateB and j2 == 6:
            fill_v(2)
            a(f"s_waitcnt vmcnt({nb})")
        a(f"v_xor_b32 v{vT}, {j2*1024}, v{vAw}")
        a(f"ds_read_b128 {vr(A+4*j2,4)}, v{vT}")
        a(f"ds_read_b128 {vr(A+4*j2+4,4)}, v{vT} offset:1024")
        if j2 < 6: fill_v(1)
    at("b1")
    if not lateB: fill_v(2)
    lg = {2: 5, 3: 8, 4: 4, 5: 4}
    Ap0, Ap1, Dp0, Dp1, X = 72, 76, 80, 84, 88
    for jj in range(2, 6):
        if jj in (2, 4): a(f"v_xor_b32 v{vW2}, {(jj//2+1)*0x8000:#x}, v{vLdsW}")
        a(f"s_waitcnt lgkmcnt({lg[jj]})")
        stamp(f"k{jj}", True)
        s0 = RING + ((2 * jj) % 4) * 8; s1 = s0 + 8
        side = ring_rd(jj)
        for acc, wsrc, sd in ((q0, s0, side[0]), (k0, WK + jj * 16, side[1]), (q1, s1, side[2]), (k1, WK + jj * 16 + 8, side[3])):
            smf(acc, A + 4 * jj, wsrc)
            a(sd)
        at(f"k{jj}")
    A6, A7 = A + 24, A + 28
    smf(k0, A6, WK + 96); at("k6")
    smf(k0, A7, WK + 112); a("s_waitcnt lgkmcnt(6)")
    smf(q0, A6, RING); a("s_waitcnt lgkmcnt(2)")
    smf(q0, A7, RING + 16); at("k7")
    smf(q1, A6, RING + 8); a(f"ds_read_b128 {vr(SLo,4)}, v{vC} offset:256")
    a("s_waitcnt lgkmcnt(1)")
    smf(q1, A7, RING + 24); cvt(Ap0 + 2, k0)
    smf(k1, A6, WK + 104); cvt(Ap0 + 3, k0 + 2)
    smf(k1, A7, WK + 120)
    stamp("h3end")
    OF, WA = 96, 112
    cvt(Ap0, q0); cvt(Ap0 + 1, q0 + 2)
    cvt(Ap1, q1); cvt(Ap1 + 1, q1 + 2)
    mfma(Dp0, Ap0, SelT, None)
    a(f"ds_read_b128 {vr(SHi,4)}, v{vC} offset:512")
    cvt(Ap1 + 2, k1); cvt(Ap1 + 3, k1 + 2)
    at("h4")
    mfma(Dp1, Ap1, SelT, None)
    cvt(X, Dp0); cvt(X + 1, Dp0 + 2)
    cvt(X + 2, Dp1); cvt(X + 3, Dp1 + 2)
    Sx0, Sx1, Sm = 32, 36, 40
    mfma(Sx0, Kx, X, None)
    mfma(Sx1, Kx + 4, X, None)
    mfma(Sm, X, X, None)
    cvt(44, Sx0); cvt(45, Sx0 + 2); cvt(46, Sx1); cvt(47, Sx1 + 2)
    a(f"ds_write2_b64 v{vSwx}, v[44:45], v[46:47] offset0:0 offset1:16")
    cvt(92, Sm); cvt(93, Sm + 2)
    a(f"ds_write_b64 v{vSwm}, v[92:93]")
    stamp("swr")
    at("h6w")
    nomax = cfg.get("nomax", True)
    fl = cfg.get("fills", (5, 3, 2, 2) if nomax else (5, 3, 1, 3))
    fill_v(fl[0])
    a("s_waitcnt lgkmcnt(0)")
    stamp("swdone", True)
    a("s_barrier")
    stamp("bar2", True)
    a(f"ds_read_b128 v[72:75], v{vSrx}")
    a(f"ds_read_b128 v[80:83], v{vSrm}")
    a(f"ds_read_b128 v[76:79], v{vSrx} offset:256")
    ONES, HALF = 88, 92
    at("h6r")
    fill_v(fl[1])
    a("s_waitcnt lgkmcnt(1)")
    mfma(32, SLo, 72, None)
    mfma(36, SelM, 80, None)
    a("s_waitcnt lgkmcnt(0)")
    mfma(32, SHi, 76, 32)
    a(f"ds_read_b128 {vr(ONES,4)}, v{vC} offset:768")
    a(f"ds_read_b64 {vr(HALF,2)}, v{vC} offset:1024")
    fill_v(fl[2])
    stamp("sred")
    E = 72
    m, t = 46, 47
    Bx, Pm, vp, LS = 40, 44, 84, 80
    def true_max(fill=False):
        a(f"v_max3_f32 v{m}, v36, v37, v38")
        a(f"v_max3_f32 v{t}, v32, v33, v34")
        a(f"v_max3_f32 v{m}, v{m}, v39, v35")
        a(f"v_max_f32 v{m}, v{m}, v{t}")
        if fill: fill_v(1)
        a(f"v_max_f32_dpp v{m}, v{m}, v{m} row_ror:8 row_mask:0xf bank_mask:0xf")
        a(f"v_mov_b32 v{t}, v{m}")
        if fill: fill_v(1)
        a(f"v_permlane16_swap_b32 v{m}, v{t}")
        a(f"v_max_f32 v{m}, v{m}, v{t}")
        a(f"v_mov_b32 v{t}, v{m}")
        if fill: fill_v(1)
        a(f"v_permlane32_swap_b32 v{m}, v{t}")
        a(f"v_max_f32 v{m}, v{m}, v{t}")
        a(f"v_mul_f32 v{m}, s{sC}, v{m}")
        for i in range(8):
            a(f"v_fma_f32 v{E+i}, v{32+i}, s{sC}, -v{m}")
    def weights_to_o(first):
        for i in ((4, 5, 6, 7, 0, 1, 2, 3) if (first and nomax and foldc) else range(8)):
            a(f"v_exp_f32 v{E+i}, v{(32 if (first and nomax and foldc) else E)+i}")
            if first and nomax and i in (1, 5) and vq: fill_v(1)
        assert not vq
        cvt(Bx, E); cvt(Bx + 1, E + 2); cvt(Bx + 2, E); cvt(Bx + 3, E + 2)
        cvt(Pm, E + 4); cvt(Pm + 1, E + 6)
        a(f"v_mov_b32_dpp v{Bx+2}, v{Bx} row_ror:8 row_mask:0xf bank_mask:0x3")
        a(f"v_mov_b32_dpp v{Bx+3}, v{Bx+1} row_ror:8 row_mask:0xf bank_mask:0x3")
        a(f"v_mov_b32_dpp v{Bx}, v{Bx} row_ror:8 row_mask:0xf bank_mask:0xc")
        a(f"v_mov_b32_dpp v{Bx+1}, v{Bx+1} row_ror:8 row_mask:0xf bank_mask:0xc")
        if first: stamp("pready")
        side = []
        if first:
            side = [f"v_cvt_pk_bf16_f32 v{vp}, v{vacc[0]}, v{vacc[0]+1}", f"v_cvt_pk_bf16_f32 v{vp+1}, v{vacc[0]+2}, v{vacc[0]+3}",
                    f"v_cvt_pk_bf16_f32 v{vp+2}, v{vacc[1]}, v{vacc[1]+1}", f"v_cvt_pk_bf16_f32 v{vp+3}, v{vacc[1]+2}, v{vacc[1]+3}"]
            if nomax:
                side += [f"v_max3_f32 v{m}, abs(v32), abs(v33), abs(v34)", f"v_max3_f32 v{t}, abs(v35), abs(v36), abs(v37)",
                         f"v_max3_f32 v{m}, v{m}, abs(v38), abs(v39)", f"v_max_f32 v{m}, v{m}, v{t}", f"v_cmp_nlt_f32 vcc, v{m}, s{sLim}"]
            a("s_waitcnt lgkmcnt(0)")
        def two():
            for _ in range(2):
                if side: a(side.pop(0))
        mfma16(LS, HALF, Pm, None); two()
        mfma(72, Vx, Bx, None); two()
        mfma(LS, ONES, Bx, LS); two()
        mfma(76, Vx + 4, Bx, None); two()
        mfma16(72, vp, Pm, 72); two()
        mfma16(76, vp + 2, Pm, 76)
        a(f"v_rcp_f32 v{LS}, v{LS}")
    if nomax:
        for i in (() if foldc else (4, 5, 6, 7, 0, 1, 2, 3)):
            a(f"v_mul_f32 v{E+i}, s{sC}, v{32+i}")
    else:
        true_max(True)
    weights_to_o(True)
    if nomax:
        if not cfg.get("nowait1") and not cfg.get("nowait2"): a(f"s_cbranch_vccnz L_chain_big{tag}")
        a.label(f"L_chain_bigok{tag}")
    def pack(U):
        d = 32 + 4 * U; s = WA + 8 * U
        return [[f"v_cvt_pk_bf16_f32 v{d}, v{s}, v{s+1}", f"v_cvt_pk_bf16_f32 v{d+1}, v{s+2}, v{s+3}",
                 f"v_and_or_b32 v{d}, v{d}, -2, s{sTag}"],
                [f"v_cvt_pk_bf16_f32 v{d+2}, v{s+4}, v{s+5}", f"v_cvt_pk_bf16_f32 v{d+3}, v{s+6}, v{s+7}",
                 f"buffer_store_dwordx4 {vr(d,4)}, v{vX1s}, {W}, s{sX1a if U == 0 else sX1b} offen{st}"]]
    sal = [f"s_add_u32 s{sStep}, s{sStep}, 1", f"s_add_u32 s{sMemOff}, s{sMemOff}, 8192", f"s_mov_b32 s{sSPIN}, 0"]
    if not x2tag: sal += [f"s_xor_b32 s{sX2st}, s{sX2st}, 8192", f"s_xor_b32 s{sX2re}, s{sX2re}, 8192", f"s_xor_b32 s{sX2l}, s{sX2l}, 8192"]
    nz = cfg.get("nz", 2)
    for i in range(nz): a(f"v_mov_b64 {vr(WA+2*i,2)}, 0")
    if cfg.get("pkn", True):
        for i in range(0, 8, 2): a(f"v_pk_mul_f32 {vr(72+i,2)}, {vr(72+i,2)}, {vr(LS,2)} op_sel_hi:[1,0]")
    else:
        for i in range(8): a(f"v_mul_f32 v{72+i}, v{72+i}, v{LS}")
    cvt(OF, 72); cvt(OF + 2, 76); cvt(OF + 1, 74); cvt(OF + 3, 78)
    a(f"v_cndmask_b32 v80, v{OF}, v{OF+2}, s[{sMaskHi}:{sMaskHi+1}]")
    a(f"v_cndmask_b32 v81, v{OF+1}, v{OF+3}, s[{sMaskHi}:{sMaskHi+1}]")
    a(f"ds_write_b64 v{vOw}, v[80:81]")
    stamp("owr")
    at("h10w")
    assert not plan and not kvl
    smf(WA, OF, WO)
    for i in range(nz, 8): a(f"v_mov_b64 {vr(WA+2*i,2)}, 0")
    smf(WA + 4, OF, WO + 32)
    a(f"v_and_b32 v85, -16, v{vOw}")
    for ac in range(3): a(f"v_xor_b32 v{82+ac}, {(ac+1)*512}, v85")
    if x2tag: a("s_waitcnt lgkmcnt(0)")
    else: a(f"s_waitcnt vmcnt({after_r[0]}) lgkmcnt(0)")
    stamp("owdone", True)
    a("s_barrier")
    stamp("bar3", True)
    for wp in range(1, 4):
        a(f"ds_read_b128 {vr(OF+4*wp,4)}, v{81+wp}")
    a(f"ds_read_b128 v[40:43], v{vC}")
    smf(WA + 8, OF, WO + 64)
    for x in sal[:3]: a(x)
    smf(WA + 12, OF, WO + 96)
    for x in sal[3:]: a(x)
    pk = pack(0) + pack(1)
    n = 0; side = []
    for ac in range(4):
        for wp in range(1, 4):
            if ac == 0: a(f"s_waitcnt lgkmcnt({4-wp})")
            smf(WA + 4 * ac, OF + 4 * wp, WO + (ac * 4 + wp) * 8)
            n += 1
            stamp(f"wo{n}", True)
            if n in cfg.get("pops", (8, 10, 12)): side += pk.pop(0)
            for _ in range(cfg.get("poprate", 2)):
                if side: a(side.pop(0))
    for x in side: a(x)
    work(win.get("t", []))
    for x in pk.pop(0): a(x)
    stamp("x1st")
    work(win["a1"])
    def x1_issue(r):
        a(f"buffer_load_dwordx4 {vr(r,4)}, v{vX1l}, {W}, s{sX1a} offen {pl}")
        a(f"buffer_load_dwordx4 {vr(r+4,4)}, v{vX1l}, {W}, s{sX1a} offen offset:1024 {pl}")
    def x1_check(r, n):
        a(f"s_waitcnt vmcnt({n+1})")
        mfma(104, 40, r, None)
        a(f"s_waitcnt vmcnt({n})")
        mfma(104, 40, r + 4, 104)
        a(f"v_bitop3_b32 v{vT}, v{r}, v{r+4}, s{sTag} bitop3:0x7e")
        a(f"v_and_b32 v{vT}, 1, v{vT}")
        a(f"v_cmp_ne_u32 vcc, 0, v{vT}")
    stamp("x1iss")
    x1_issue(96)
    work(win["b1"])
    x1_issue(112)
    x1_check(96, 2)
    if not cfg.get("nowait1"): a(f"s_cbranch_vccnz L_chain_x1b{tag}")
    a.label(f"L_chain_x1ok{tag}")
    stamp("x1ok")
    a(f"v_add_f32_dpp v104, v104, v104 row_ror:4 row_mask:0xf bank_mask:0xf")
    a(f"v_add_f32_dpp v105, v105, v105 row_ror:4 row_mask:0xf bank_mask:0xf")
    a(f"s_xor_b32 s{sTag}, s{sTag}, 1")
    a(f"v_add_f32_dpp v104, v104, v104 row_ror:8 row_mask:0xf bank_mask:0xf")
    a(f"v_add_f32_dpp v105, v105, v105 row_ror:8 row_mask:0xf bank_mask:0xf")
    a(f"v_cvt_pk_bf16_f32 v{vR}, v104, v105")
    x2_store()
    if cfg.get("count_redo"):
        a(f"s_lshl_b32 s{sT0}, s{sSPIN}, 16")
        a(f"s_add_u32 s31, s31, s{sT0}")
    if stamp.on:
        a(f"s_cmp_eq_u32 s{sStep}, {cfg.get('stamp_step', 40)}")
        a(f"s_cbranch_scc0 L_chain_loop{tag}")
        a("s_waitcnt lgkmcnt(0)")
        a(f"s_lshl_b32 s{sT0}, s{sMEMB}, 2")
        a(f"s_add_u32 s{sT0}, s{sT0}, s{sWAVE}")
        a(f"s_lshl_b32 s{sT1}, s{sLAY}, 7")
        a(f"s_add_u32 s{sT0}, s{sT0}, s{sT1}")
        a(f"s_lshl_b32 s{sT0}, s{sT0}, 6")
        a(f"s_add_u32 s{sT0}, s{sT0}, {OFF_STAMP:#x}")
        a(f"v_mov_b32 v108, 0")
        for i in range(stamp.n):
            a(f"v_mov_b32 v109, s{stamp.base+2*i}")
            a(f"buffer_store_dword v109, v108, {W}, s{sT0} offen offset:{4*i}")
        cfg["stamp_names"] = stamp.names
    a(f"s_branch L_chain_loop{tag}")
    a.label(f"L_chain_x1b{tag}")
    x1_issue(96)
    spin_tick(a)
    if cfg.get("one1"): x1_check(96, 0)
    else:
        x1_check(112, 2)
        a(f"s_cbranch_vccz L_chain_x1ok{tag}")
        x1_issue(112)
        spin_tick(a)
        x1_check(96, 2)
    a(f"s_cbranch_vccz L_chain_x1ok{tag}")
    a(f"s_branch L_chain_x1b{tag}")
    a.label(f"L_chain_x2b{tag}")
    x2_issue(A)
    spin_tick(a)
    zero_k()
    if cfg.get("one2"): x2_check(A, 0)
    else:
        x2_check(B2, 2)
        a(f"s_cbranch_vccz L_chain_x2c{tag}")
        x2_issue(B2)
        spin_tick(a)
        zero_k()
        x2_check(A, 2)
    a(f"s_cbranch_vccz L_chain_x2ok{tag}")
    a(f"s_branch L_chain_x2b{tag}")
    a.label(f"L_chain_x2c{tag}")
    for i in range(4):
        a(f"v_mov_b64 {vr(A+2*i,2)}, {vr(B2+2*i,2)} ; sameval")
    a(f"s_branch L_chain_x2ok{tag}")
    if nomax:
        a.label(f"L_chain_big{tag}")
        true_max()
        weights_to_o(False)
        a(f"s_branch L_chain_bigok{tag}")
    a.label(f"L_chain_last{tag}")
    if cfg.get("count_redo"):
        a("s_memrealtime s[70:71]")
        a("s_memtime s[72:73]")
        a(f"s_lshl_b32 s{sT0}, s{sMEMB}, 2")
        a(f"s_add_u32 s{sT0}, s{sT0}, s{sWAVE}")
        a(f"s_lshl_b32 s{sT1}, s{sLAY}, 7")
        a(f"s_add_u32 s{sT0}, s{sT0}, s{sT1}")
        a(f"s_lshl_b32 s{sT0}, s{sT0}, 6")
        a(f"s_add_u32 s{sT0}, s{sT0}, {OFF_STAMP:#x}")
        a(f"v_mov_b32 v108, 0")
        a("s_waitcnt lgkmcnt(0)")
        a(f"s_sub_u32 s70, s70, s100")
        a(f"s_sub_u32 s72, s72, s98")
        for i, r in enumerate((72, 31, 70, 101)):
            a(f"v_mov_b32 v109, s{r}")
            a(f"buffer_store_dword v109, v108, {W}, s{sT0} offen offset:{48+4*i}")
    a(f"buffer_store_dword v{vR}, v{vX2s}, {W}, s{sMemOff} offen sc1")
    a("s_waitcnt vmcnt(0) lgkmcnt(0)")
    if cfg.get("probe"):
        what, lay = cfg["probe"]
        a(f"s_cmp_lg_u32 s{sLAY}, {lay}")
        a("s_cbranch_scc1 L_done")
        if what == "T0": a("s_mov_b32 s74, s101")
        elif what == "loop": a("s_mov_b32 s74, s70")
        elif what == "end": a("s_add_u32 s74, s70, s101")
        a("s_sub_u32 s75, s100, s101")
        a("s_add_u32 s74, s74, 23000")
        lab = a.newlab("L_probe")
        a.label(lab)
        a("s_memrealtime s[76:77]")
        a("s_waitcnt lgkmcnt(0)")
        a("s_sub_u32 s76, s76, s75")
        a("s_cmp_lt_u32 s76, s74")
        a(f"s_cbranch_scc1 {lab}")
    a("s_branch L_done")
    a.label(f"L_chain_kvwait{tag}")
    if cfg.get("count_redo"): a("s_add_u32 s31, s31, 0x4000000")
    spin_init(a)
    lab = a.newlab("L_kvspin")
    a.label(lab)
    for f in range(4):
        a(f"buffer_load_dwordx4 {vr(Kx+4*f,4)}, v{vL16}, {W}, s{sKV} offen offset:{f*1024} sc1")
    spin_tick(a)
    a("s_waitcnt vmcnt(0)")
    kv_check()
    a(f"s_cbranch_vccz L_chain_kvok{tag}")
    a(f"s_sleep {cfg.get('kvsleep', 1)}")
    a(f"s_branch {lab}")
```
